```python
import torch

def _softmax(x, axis=-1):
    return torch.softmax(x, dim=axis)
def _gelu(x):
    return torch.nn.functional.gelu(x, approximate="tanh")
def _silu(x):
    return torch.nn.functional.silu(x)
def _sigmoid(x):
    return torch.sigmoid(x)
def _layernorm(x, axis=-1, eps=1e-5):
    m = x.mean(dim=axis, keepdim=True)
    v = x.var(dim=axis, keepdim=True, unbiased=False)
    return (x - m) / torch.sqrt(v + eps)
def _scatter_add(tgt, idx, src, axis=0):
    return tgt.clone().index_add_(axis, idx, src)
def _segment_sum(src, seg, n):
    out = torch.zeros((n,) + src.shape[1:], dtype=src.dtype)
    return out.index_add_(0, seg, src)
def _pad(x, pw):
    flat = tuple(v for pair in reversed(pw) for v in pair)
    return torch.nn.functional.pad(x, flat)

kernel_name = 'interleave_layers__mha_block_cached__compressed_kv_cla__decode'

def setup_inputs():

    _w = (lambda a: (lambda t: t.to(torch.bfloat16) if t.is_floating_point() else t)(torch.as_tensor(a)))
    def _A_setup():
        B, Sq, D = 1, 1, 576
        H, Sk, Dh = 32, 8192, 128
        return {
            "x": _w((lambda *s: torch.randn(*s, dtype=torch.bfloat16) * 0.05)(B, Sq, D)),
            "k_cache": _w((lambda *s: torch.randn(*s, dtype=torch.bfloat16) * 0.8)(B, H, Sk, Dh)),
            "v_cache": _w((lambda *s: torch.randn(*s, dtype=torch.bfloat16) * 1.6)(B, H, Sk, Dh)),
            "wq": _w((lambda *s: torch.randn(*s, dtype=torch.bfloat16) * 0.8)(D, H * Dh) * (D ** -0.5)),
            "wo": _w((lambda *s: torch.randn(*s, dtype=torch.bfloat16) * 1.6)(H * Dh, D) * ((H * Dh) ** -0.5)),
        }
    _A_in = _A_setup()

    def _B_setup():
        B, H, Sq, Sk, D, M = 1, 32, 1, 8192, 128, 576
        Dc = 4 * D
        return {
            "x": _w((lambda *s: torch.randn(*s, dtype=torch.bfloat16) * 0.05)(B, Sq, M)),
            "c_kv": _w((lambda *s: torch.randn(*s, dtype=torch.bfloat16) * 0.4)(B, Sk, Dc)),
            "w_q": _w((lambda *s: torch.randn(*s, dtype=torch.bfloat16) * 3.2)(M, H, D) * (M ** -0.5)),
            "w_uk": _w((lambda *s: torch.randn(*s, dtype=torch.bfloat16) * 3.2)(Dc, H, D) * (Dc ** -0.5)),
            "w_uv": _w((lambda *s: torch.randn(*s, dtype=torch.bfloat16) * 0.4)(Dc, H, D) * (Dc ** -0.5)),
            "w_o": _w((lambda *s: torch.randn(*s, dtype=torch.bfloat16) * 0.4)(H, D, M) * ((H * D) ** -0.5)),
        }
    _B_in = _B_setup()

    return {
        "A_x": _A_in["x"],
        "A_k_cache": _A_in["k_cache"],
        "A_v_cache": _A_in["v_cache"],
        "A_wq": _A_in["wq"],
        "A_wo": _A_in["wo"],
        "B_x": _B_in["x"],
        "B_c_kv": _B_in["c_kv"],
        "B_w_q": _B_in["w_q"],
        "B_w_uk": _B_in["w_uk"],
        "B_w_uv": _B_in["w_uv"],
        "B_w_o": _B_in["w_o"],
    }

def reference(A_x, A_k_cache, A_v_cache, A_wq, A_wo, B_x, B_c_kv, B_w_q, B_w_uk, B_w_uv, B_w_o):
    def _A_ref(x, k_cache, v_cache, wq, wo):
        B, Sq, D = x.shape
        H, Dh = 32, 128
        q = (lambda x, *d: x.permute(*d))((x @ wq).reshape(B, Sq, H, Dh), 0, 2, 1, 3)
        scores = torch.einsum("bhqd,bhkd->bhqk", q, k_cache) * (Dh ** -0.5)
        p = _softmax(scores, axis=-1)
        o = torch.einsum("bhqk,bhkd->bhqd", p, v_cache)
        return (lambda x, *d: x.permute(*d))(o, 0, 2, 1, 3).reshape(B, Sq, H * Dh) @ wo

    def _B_ref(x, c_kv, w_q, w_uk, w_uv, w_o):
        B, Sq, M = x.shape[0], x.shape[1], x.shape[2]
        Sk = c_kv.shape[1]
        H, D = w_q.shape[1], w_q.shape[2]
        q = torch.einsum("bqm,mhd->bhqd", x, w_q)
        k = torch.einsum("bkc,chd->bhkd", c_kv, w_uk)
        v = torch.einsum("bkc,chd->bhkd", c_kv, w_uv)
        scores = torch.einsum("bhqd,bhkd->bhqk", q, k) * (D ** -0.5)
        off = Sk - Sq
        qi = torch.arange(Sq)[:, None]
        kj = torch.arange(Sk)[None, :]
        cmask = kj <= (qi + off)
        scores = torch.where(cmask[None, None], scores, -1e9)
        p = _softmax(scores, axis=-1)
        ctx = torch.einsum("bhqk,bhkd->bhqd", p, v)
        return torch.einsum("bhqd,hdm->bqm", ctx, w_o)

    x = A_x
    x = x + _A_ref(_layernorm(x, axis=-1), A_k_cache, A_v_cache, A_wq, A_wo)
    x = x + _B_ref(_layernorm(x, axis=-1), B_c_kv, B_w_q, B_w_uk, B_w_uv, B_w_o)
    x = x + _A_ref(_layernorm(x, axis=-1), A_k_cache, A_v_cache, A_wq, A_wo)
    x = x + _B_ref(_layernorm(x, axis=-1), B_c_kv, B_w_q, B_w_uk, B_w_uv, B_w_o)
    return x
```

```python
import re

TRANS = ('v_exp_f32', 'v_log_f32', 'v_rcp_f32', 'v_rsq_f32', 'v_sqrt_f32', 'v_sin_f32', 'v_cos_f32')


def regs_of(op):
    op = op.strip()
    op = re.sub(r'^-|^\||\|$', '', op)
    m = re.fullmatch(r'abs\((.*)\)', op)
    if m:
        op = m.group(1)
    m = re.fullmatch(r'([vas])(\d+)', op)
    if m:
        return {(m.group(1), int(m.group(2)))}
    m = re.fullmatch(r'([vas])\[(\d+):(\d+)\]', op)
    if m:
        return {(m.group(1), i) for i in range(int(m.group(2)), int(m.group(3)) + 1)}
    if op == 'vcc':
        return {('s', 'vcc')}
    if op == 'exec':
        return {('s', 'exec')}
    if op == 'm0':
        return {('s', 'm0')}
    return set()


class Ins:
    def __init__(self, text, region):
        self.text = text
        self.region = region
        t = text.split(';')[0].strip()
        self.label = t.endswith(':')
        self.directive = t.startswith('.')
        self.empty = (t == '')
        self.mn = ''
        self.w = set()
        self.r = set()
        self.srcc = set()
        self.data = set()
        if self.label or self.directive or self.empty:
            return
        parts = t.split(None, 1)
        self.mn = mn = parts[0]
        rest = parts[1] if len(parts) > 1 else ''
        ops = []
        cur = ''
        depth = 0
        for ch in rest:
            if ch == '[':
                depth += 1
            if ch == ']':
                depth -= 1
            if ch == ',' and depth == 0:
                ops.append(cur)
                cur = ''
            else:
                cur += ch
        if cur.strip():
            ops.append(cur)
        mods = ''
        if ops:
            last = ops[-1].strip().split(None, 1)
            ops[-1] = last[0]
            mods = last[1] if len(last) > 1 else ''
        self.mods = mods
        R = [regs_of(o) for o in ops]
        self.mfma = mn.startswith('v_mfma') or mn.startswith('v_smfmac')
        self.dot = mn.startswith('v_dot')
        self.valu = mn.startswith('v_') and not self.mfma
        self.dpp = mn.endswith('_dpp')
        self.perml = mn.startswith('v_permlane')
        self.trans = any(mn.startswith(x) for x in TRANS)
        self.salu = mn.startswith('s_')
        self.vmem = mn.startswith('buffer_') or mn.startswith('global_')
        self.ds = mn.startswith('ds_')
        self.lds_dma = self.vmem and re.search(r'\blds\b', mods) is not None
        self.rdlane = mn.startswith('v_readlane') or mn.startswith('v_readfirstlane')
        self.wide_store = False
        U = lambda l: set().union(*l) if l else set()
        if self.mfma:
            self.w = R[0]
            if mn.startswith('v_smfmac'):
                self.srcc = R[0]
                self.ab = R[1] | R[2] | R[3]
            else:
                self.srcc = R[3]
                self.ab = R[1] | R[2]
            self.r = self.srcc | self.ab
        elif self.valu:
            self.w = R[0]
            self.r = U(R[1:])
            if self.perml:
                self.w = R[0] | R[1]
                self.r = R[0] | R[1]
            if mn.startswith('v_fmac') or mn.startswith('v_dot2c') or mn.startswith('v_pk_fmac'):
                self.r |= R[0]
            if mn.startswith('v_cndmask') and len(ops) == 3:
                self.r |= {('s', 'vcc')}
            if mn.startswith('v_cmpx'):
                self.w |= {('s', 'exec')}
        elif self.ds:
            if mn.startswith('ds_read') or mn.startswith('ds_bperm') or mn.startswith('ds_swiz'):
                self.w = R[0]
                self.r = U(R[1:])
            else:
                self.r = U(R)
        elif self.vmem:
            if 'load' in mn and not self.lds_dma:
                self.w = R[0]
                self.r = U(R[1:])
            else:
                self.r = U(R)
                if 'store' in mn and (mn.endswith('x3') or mn.endswith('x4')):
                    self.wide_store = True
                    self.data = R[0] if mn.startswith('buffer_') else R[1]
            if self.lds_dma:
                self.r |= {('s', 'm0')}
        elif self.salu:
            if mn.startswith('s_cmp') or mn.startswith('s_cbranch') or mn in ('s_nop', 's_waitcnt', 's_barrier', 's_sleep', 's_branch', 's_endpgm', 's_setprio') or mn.startswith('s_bitcmp'):
                self.r = U(R)
            else:
                self.w = R[0] if R else set()
                self.r = U(R[1:])
                if 'saveexec' in mn:
                    self.w = self.w | {('s', 'exec')}

    def states(self):
        if self.label or self.directive or self.empty:
            return 0
        if self.mn == 's_nop':
            return int(self.text.split(';')[0].split()[1], 0) + 1
        return 1


def vec(s):
    return {x for x in s if x[0] in 'va'}


def sca(s):
    return {x for x in s if x[0] == 's'}


def need(p, c):
    n = 0
    if p.valu:
        vw = vec(p.w)
        sw = sca(p.w)
        if vw & c.r:
            if c.mfma:
                n = max(n, 3 if p.dot else 2)
            if c.valu and (c.dpp or c.perml):
                n = max(n, 2)
            if c.rdlane:
                n = max(n, 1)
            if p.trans and (c.valu or c.vmem or c.ds):
                n = max(n, 1)
        if p.dot and (vw & (c.r | c.w)):
            if not (c.valu and c.dot and c.mn == p.mn and c.w == p.w and not (vw & (c.r - c.w))):
                n = max(n, 3)
        if sw & c.r:
            if c.vmem:
                n = max(n, 5)
            if c.valu:
                n = max(n, 4 if c.mn.startswith('v_readlane') or c.mn.startswith('v_writelane') else 2)
            if c.salu:
                n = max(n, 1)
        if ('s', 'exec') in sw:
            if c.mfma or c.rdlane or (c.valu and c.perml):
                n = max(n, 4)
            if c.valu and c.dpp:
                n = max(n, 5)
    if p.mfma:
        if c.mfma:
            if p.w & c.ab:
                n = max(n, 8)
            if p.w & c.srcc and p.w != c.srcc:
                n = max(n, 6)
            if p.w & c.srcc and (p.mn != c.mn):
                n = max(n, 6)
            if p.w & c.w and not (p.w & c.srcc):
                n = max(n, 6)
        elif (c.valu or c.vmem or c.ds) and (p.w & (c.r | c.w)):
            n = max(n, 8)
        if c.valu and (p.srcc & c.w):
            n = max(n, 3)
    if p.salu and ('s', 'm0') in p.w and c.vmem and c.lds_dma:
        n = max(n, 1)
    if p.vmem and p.wide_store and (p.data & c.w):
        n = max(n, 2)
    return n


class Asm:
    def __init__(self):
        self.ins = []
        self.tail = []
        self.region = ()
        self.nreg = 0
        self.vmq = []
        self.dsq = []
        self.uid = 0

    def e(self, text):
        for line in text.split('\n'):
            line = line.strip()
            if line == '':
                continue
            i = Ins(line, self.region)
            self.ins.append(i)
            if not (i.label or i.directive or i.empty):
                if i.vmem:
                    self.vmq.append([None, self.region])
                if i.ds:
                    self.dsq.append([None, self.region])
                if i.mn == 's_waitcnt' and self.region == ():
                    m = re.search(r'vmcnt\((\d+)\)', line)
                    if m and int(m.group(1)) == 0:
                        self.vmq = []
                    m = re.search(r'lgkmcnt\((\d+)\)', line)
                    if m and int(m.group(1)) == 0:
                        self.dsq = []

    def tag_vm(self, tag):
        self.vmq[-1][0] = tag

    def tag_ds(self, tag):
        self.dsq[-1][0] = tag

    def _cnt(self, q, tag):
        idx = [k for k, x in enumerate(q) if x[0] == tag]
        if not idx:
            return None
        k = idx[-1]
        cur = self.region
        n = 0
        for x in q[k + 1:]:
            if x[1] == cur[:len(x[1])]:
                n += 1
        return n

    def wait(self, vm=None, ds=None):
        parts = []
        if vm is not None:
            n = self._cnt(self.vmq, vm)
            if n is not None:
                parts.append(f'vmcnt({min(n, 63)})')
        if ds is not None:
            n = self._cnt(self.dsq, ds)
            if n is not None:
                parts.append(f'lgkmcnt({min(n, 15)})')
        if parts:
            self.e('s_waitcnt ' + ' '.join(parts))

    def begin_skip(self):
        self.nreg += 1
        self.region = self.region + (self.nreg,)

    def end_skip(self):
        self.region = self.region[:-1]

    def lab(self, base):
        self.uid += 1
        return f'L_{base}_{self.uid}'

    def ool(self, text):
        self.tail.append(text)

    def finish(self):
        out = []
        nops = 0
        for c in self.ins:
            if not (c.label or c.directive or c.empty):
                always = 0
                req = 0
                between = []
                for p in reversed(out):
                    if always >= 12:
                        break
                    if p.label or p.directive or p.empty:
                        continue
                    n = need(p, c)
                    if n > 0:
                        dist = sum(q.states() for q in between
                                   if q.region == c.region[:len(q.region)] or q.region == p.region[:len(q.region)])
                        req = max(req, n - dist)
                    between.append(p)
                    if p.region == c.region[:len(p.region)]:
                        always += p.states()
                if req > 0:
                    nop = Ins(f's_nop {req - 1}', c.region)
                    out.append(nop)
                    nops += req
            out.append(c)
        txt = ''
        for i in out:
            txt += (i.text if (i.label or i.directive) else '    ' + i.text) + '\n'
        for t in self.tail:
            for line in t.split('\n'):
                line = line.strip()
                if line:
                    txt += (line if line.endswith(':') else '    ' + line) + '\n'
        self.nops = nops
        return txt
```

```python
import sys, math, struct
from asmlib import Asm

NAME = 'interleave_layers__mha_block_cached__compressed_kv_cla__decode'


def f32(x):
    return '0x%08x' % struct.unpack('<I', struct.pack('<f', x))[0]


L_QA, L_QB, L_OAL, L_C1ML, L_OA, L_OB = 0, 1024, 2048, 4096, 8192, 16384
L_IT = 32768
GB, G_IT = 0x80000, 393216
G_YA, G_YB, G_QABS, G_C2 = 0, 0x2800, 0x8000, 0x10000
CB = 0x200000
STAMP = 0x800000
WS_SIZE = 0x1000000
OOB = 0x40000000
CKV = 65536
STG = 131072
ZML = STG + 7168
ZO = STG + 8192 + 7168
ZL = STG + 2 * 8192 + 7168
K_, V_, WQ, WO, CK, BWQ, WUK, WUV, BWO, WS, OUT, DBG, XIN = ['s[%d:%d]' % (4 + 4 * i, 7 + 4 * i) for i in range(13)]
sX, sJ, sH, sS, sV, sL, sG, sIT, sLOC, sW8, sKV, sKG = ['s%d' % i for i in range(56, 68)]
t0, t1, t2, t3, t4, t5 = ['s%d' % i for i in range(68, 74)]
sM, sPOLL = 's76', 's77'
M8 = 's[78:79]'
sHS = 's80'
sWO = 's81'
sRES = 's82'
sST = 's83'
vT, vA, vSP = 'v2', 'v3', 'v6'
TBL = [0, 8, 9, 1]
DPPI = 'quad_perm:[0,1,2,3]'
FULL = 'row_mask:0xf bank_mask:0xf'


def vr(a, n):
    return f'v[{a}:{a + n - 1}]' if n > 1 else f'v{a}'


class Gen:
    def __init__(self, opt):
        self.o = opt
        self.a = Asm()
        self.nst = 0
        self.stnames = []

    def stamp(self, name):
        if not self.o.get('stamps'):
            return
        a = self.a
        k = self.nst
        self.nst += 1
        self.stnames.append(name)
        a.e(f's_memrealtime s[84:85]')
        a.e('s_waitcnt lgkmcnt(0)')
        a.e(f's_add_u32 m0, {sST}, {k}')
        a.e(f'v_writelane_b32 v7, s84, m0')

    def lstore(self, lines):
        a = self.a
        slow, back = a.lab('slow'), a.lab('back')
        a.e(f's_cmp_eq_u32 {sLOC}, 0')
        a.e(f's_cbranch_scc1 {slow}')
        for l in lines:
            a.e(l)
        a.e(f'{back}:')
        a.ool(f'{slow}:\ns_nop 7\n' + '\n'.join(l + ' sc1' if l.startswith('buffer_') else l for l in lines) + f'\ns_branch {back}')

    def poll_begin(self):
        a = self.a
        self.ptop, self.pretry, self.pdone = a.lab('poll'), a.lab('retry'), a.lab('got')
        a.e(f'{self.ptop}:')

    def poll_end(self, vmax):
        a = self.a
        a.e(f'v_cmp_eq_u32 vcc, -1, {vmax}')
        a.e(f's_cbranch_vccnz {self.pretry}')
        a.e(f'{self.pdone}:')
        a.ool(f'{self.pretry}:\ns_add_u32 {sPOLL}, {sPOLL}, 1\ns_cmp_gt_u32 {sPOLL}, 100000\ns_cbranch_scc1 {self.pdone}\ns_nop 7\ns_branch {self.ptop}')

    def maxchain(self, vmax, regs, first):
        a = self.a
        regs = list(regs)
        if first:
            if len(regs) >= 3:
                a.e(f'v_max3_u32 {vmax}, v{regs[0]}, v{regs[1]}, v{regs[2]}')
                regs = regs[3:]
            elif len(regs) == 2:
                a.e(f'v_max_u32 {vmax}, v{regs[0]}, v{regs[1]}')
                regs = []
            else:
                a.e(f'v_mov_b32 {vmax}, v{regs[0]}')
                regs = []
        while len(regs) >= 2:
            a.e(f'v_max3_u32 {vmax}, {vmax}, v{regs[0]}, v{regs[1]}')
            regs = regs[2:]
        if regs:
            a.e(f'v_max_u32 {vmax}, {vmax}, v{regs[0]}')

    def sleep(self, key):
        n = self.o.get('sleep', {}).get(key, 0)
        if n:
            self.a.e(f's_sleep {n}')

    def wave_only(self, w):
        a = self.a
        self.wl = a.lab('notw')
        a.e(f's_cmp_lg_u32 {sV}, {w}')
        a.e(f's_cbranch_scc1 {self.wl}')
        a.begin_skip()
        return self.wl

    def end_only(self, lab):
        self.a.end_skip()
        self.a.e(f'{lab}:')

    def pos_bytes(self, dst, tmp):
        a = self.a
        a.e(f'v_lshlrev_b32 {dst}, 3, v0')
        a.e(f'v_and_b32 {dst}, 16, {dst}')
        a.e(f'v_and_b32 {tmp}, 12, v0')
        a.e(f'v_or_b32 {dst}, {dst}, {tmp}')

    def dma_wq(self, srd, vt):
        a = self.a
        pol = self.o.get('pol_w', '')
        a.e(f'v_lshrrev_b32 {vt}, 1, v0')
        a.e(f'v_lshlrev_b32 {vt}, 13, {vt}')
        a.e(f'v_and_b32 v63, 1, v0')
        a.e(f'v_lshl_or_b32 {vt}, v63, 4, {vt}')
        a.e(f's_lshl_b32 {t0}, {sV}, 18')
        a.e(f's_add_u32 {t0}, {t0}, {sHS}')
        for slot in range(5):
            ks = 16 if slot == 0 else 4 * (slot - 1)
            a.e(f's_add_u32 {t1}, {t0}, {ks * 262144}')
            a.e(f's_add_u32 m0, {sW8}, {slot * 1024}')
            a.e(f'buffer_load_dwordx4 {vt}, {srd}, {t1} offen {pol} lds')
        a.tag_vm('wq')

    def dma_wo(self, srd, va, vb):
        a = self.a
        pol = self.o.get('pol_w', '')
        a.e(f's_add_u32 {t1}, {sWO}, {64 * 1152}')
        for i in range(3):
            a.e(f'v_add_u32 {va}, {64 * i}, v0')
            a.e(f'v_mul_u32_u24 {vb}, 21846, {va}')
            a.e(f'v_lshrrev_b32 {vb}, 16, {vb}')
            a.e(f'v_lshlrev_b32 {va}, 4, {va}')
            a.e(f'v_mul_u32_u24 {vb}, {1152 - 48}, {vb}')
            a.e(f'v_add_u32 {va}, {va}, {vb}')
            a.e(f's_add_u32 m0, {sW8}, {i * 1024}')
            a.e(f'buffer_load_dwordx4 {va}, {srd}, {sWO} offen {pol} lds')
            a.e(f's_add_u32 m0, {sW8}, {(i + 3) * 1024}')
            a.e(f'buffer_load_dwordx4 {va}, {srd}, {t1} offen {pol} lds')
        a.tag_vm('wo')

    def dma_wuv(self, vt, vu):
        a = self.a
        pol = self.o.get('pol_w', '')
        a.e(f'v_lshrrev_b32 {vt}, 1, v0')
        a.e(f'v_lshlrev_b32 {vt}, 13, {vt}')
        a.e(f'v_and_b32 {vu}, 1, v0')
        a.e(f'v_lshl_or_b32 {vt}, {vu}, 4, {vt}')
        a.e(f's_lshl_b32 {t0}, {sV}, 20')
        a.e(f's_add_u32 {t0}, {t0}, {sHS}')
        for i in range(4):
            a.e(f's_add_u32 {t1}, {t0}, {i * 262144}')
            a.e(f's_add_u32 m0, {sW8}, {4096 + i * 1024}')
            a.e(f'buffer_load_dwordx4 {vt}, {WUV}, {t1} offen {pol} lds')
        a.tag_vm('wuv')

    def wuk_base(self):
        a = self.a
        a.e(f's_lshl_b32 {t0}, {sS}, 2')
        a.e(f's_add_u32 {t0}, {t0}, {sV}')
        a.e(f's_lshl_b32 {t0}, {t0}, 17')
        a.e(f's_lshl_b32 {t1}, {sH}, 8')
        a.e(f's_add_u32 {t0}, {t0}, {t1}')

    def touch_wuk(self, vt, vu):
        a = self.a
        pol = self.o.get('pol_w', '')
        self.wuk_base()
        a.e(f'v_and_b32 {vt}, 15, v0')
        a.e(f'v_lshlrev_b32 {vt}, 13, {vt}')
        a.e(f'v_lshrrev_b32 {vu}, 4, v0')
        a.e(f'v_lshl_or_b32 {vt}, {vu}, 6, {vt}')
        a.e(f'buffer_load_dword {vu}, {vt}, {WUK}, {t0} offen {pol}')

    def load_wuk(self, base, vt, vu):
        a = self.a
        self.wuk_base()
        a.e(f'v_and_b32 {vt}, 15, v0')
        a.e(f'v_lshlrev_b32 {vt}, 13, {vt}')
        a.e(f'v_and_b32 {vu}, 48, v0')
        a.e(f'v_or_b32 {vt}, {vt}, {vu}')
        for ks in range(4):
            a.e(f'buffer_load_dwordx4 {vr(base + 4 * ks, 4)}, {vt}, {WUK}, {t0} offen offset:{ks * 64}')
        a.tag_vm('wuk')

    def lnq_prep(self):
        a = self.a
        a.e('v_lshrrev_b32 v56, 4, v0')
        a.e('v_and_b32 v57, 15, v0')
        a.e('v_lshlrev_b32 v57, 3, v57')
        a.e('v_lshl_or_b32 v56, v56, 8, v57')
        a.e(f'v_add_u32 v56, {sW8}, v56')
        a.wait(vm='wq')
        for slot in range(5):
            for half in range(2):
                a.e(f'ds_read_b64_tr_b16 {vr(36 + 4 * slot + 2 * half, 2)}, v56 offset:{slot * 1024 + half * 128}')
        a.tag_ds('wqr')

    def lnq_mfma(self, slot, first):
        a = self.a
        A = vr(16 + 4 * slot, 4)
        B = vr(36 + 4 * slot, 4)
        c1 = '0' if first else 'v[56:59]'
        c2 = '0' if first else 'v[60:63]'
        a.e(f'v_mfma_f32_16x16x32_bf16 v[56:59], {A}, {B}, {c1}')
        a.e(f'v_mfma_f32_16x16x32_bf16 v[60:63], {A}, {A}, {c2}')

    def lnq_gather(self, goff):
        a = self.a
        for r in range(16, 36):
            a.e(f'v_mov_b32 v{r}, 0x3f803f80')
        a.e('v_and_b32 v14, 7, v0')
        a.e('v_mul_u32_u24 v14, 1152, v14')
        a.e('v_and_b32 v15, 48, v0')
        a.e('v_add_u32 v14, v14, v15')
        a.e(f's_lshl_b32 {t0}, {sV}, 6')
        a.e(f's_add_u32 {t0}, {t0}, {sG}')
        a.e(f's_add_u32 {t0}, {t0}, {goff}')
        a.e(f's_cmp_lt_u32 {sV}, 2')
        a.e(f's_cselect_b32 {t1}, {t0}, {OOB}')
        a.wait(ds='wqr')
        self.sleep('h2')
        self.poll_begin()
        a.e(f's_mov_b64 exec, {M8}')
        a.e(f'buffer_load_dwordx4 v[16:19], v14, {WS}, {t1} offen offset:1024 sc1')
        a.tag_vm('y0')
        for slot in range(1, 5):
            a.e(f'buffer_load_dwordx4 {vr(16 + 4 * slot, 4)}, v14, {WS}, {t0} offen offset:{256 * (slot - 1)} sc1')
            a.tag_vm(f'y{slot}')
        a.e('s_mov_b64 exec, -1')
        for slot in range(5):
            a.wait(vm=f'y{slot}')
            self.lnq_mfma(slot, slot == 0)
            self.maxchain('v15', range(16 + 4 * slot, 20 + 4 * slot), slot == 0)
        self.poll_end('v15')

    def lnq_reduce(self):
        a = self.a
        a.e(f's_lshl_b32 {t0}, {sV}, 2')
        a.e(f's_add_u32 {t0}, {t0}, {ZL}')
        a.e(f'v_lshl_add_u32 v20, v0, 4, {t0}')
        a.e('v_pk_add_f32 v[16:17], v[56:57], v[58:59]')
        a.e('v_pk_add_f32 v[18:19], v[60:61], v[62:63]')
        a.e('v_add_f32 v16, v16, v17')
        a.e('v_add_f32 v18, v18, v19')
        a.e('v_permlane16_swap_b32 v16, v18')
        a.e('v_add_f32 v16, v16, v18')
        a.e('v_add_f32_dpp v16, v16, v16 quad_perm:[1,0,3,2] row_mask:0x2 bank_mask:0xf')
        a.e('v_add_f32_dpp v16, v16, v16 quad_perm:[2,3,0,1] row_mask:0x2 bank_mask:0xf')
        a.e('v_add_f32_dpp v16, v16, v16 row_half_mirror row_mask:0x2 bank_mask:0xf')
        a.e('ds_write_b32 v20, v16')
        a.e('v_and_b32 v17, 15, v0')
        a.e(f'v_mov_b32 v18, {ZL}')
        a.e('v_lshl_add_u32 v17, v17, 4, v18')
        a.e('s_waitcnt lgkmcnt(0)')
        a.e('s_barrier')

    def lnq_final(self, dst):
        a = self.a
        a.e('ds_read_b128 v[32:35], v18 offset:384')
        a.tag_ds('s1')
        a.e('ds_read_b128 v[28:31], v18 offset:256')
        a.tag_ds('s2')
        a.e('ds_read_b128 v[24:27], v17 offset:512')
        a.tag_ds('cs')
        a.e('ds_read_b128 v[20:23], v17')
        a.tag_ds('qq')
        a.wait(ds='s1')
        a.e('v_pk_add_f32 v[32:33], v[32:33], v[34:35]')
        a.e('v_add_f32 v32, v32, v33')
        a.e(f'v_mul_f32 v32, {f32(1.0 / (8 * 576))}, v32')
        a.wait(ds='s2')
        a.e('v_pk_add_f32 v[28:29], v[28:29], v[30:31]')
        a.e('v_add_f32 v28, v28, v29')
        a.e(f'v_mov_b32 v30, {f32(1e-5)}')
        a.e(f'v_fmamk_f32 v28, v28, {f32(1.0 / 576)}, v30')
        a.e('v_fma_f32 v28, -v32, v32, v28')
        a.e('v_max_f32 v28, v28, v30')
        a.e('v_rsq_f32 v28, v28')
        a.wait(ds='cs')
        a.e('v_pk_add_f32 v[24:25], v[24:25], v[26:27]')
        a.e('v_add_f32 v24, v24, v25')
        a.e('v_mul_f32 v32, 0x3e000000, v32')
        a.e(f'v_mul_f32 v28, {f32(math.log2(math.e) / math.sqrt(128.0))}, v28')
        a.wait(ds='qq')
        a.e('v_pk_add_f32 v[20:21], v[20:21], v[22:23]')
        a.e('v_add_f32 v20, v20, v21')
        a.e('v_fma_f32 v20, -v32, v24, v20')
        a.e('v_mul_f32 v20, v20, v28')
        a.e(f'v_mov_b32_dpp v21, v20 quad_perm:[1,0,3,2] {FULL}')
        a.e(f'v_cvt_pk_bf16_f32 {dst}, v20, v21')

    def publish_q(self, src, loff, va, vb):
        a = self.a
        self.pos_bytes(va, vb)
        a.e(f's_and_b32 {t0}, {sHS}, 1023')
        a.e(f's_add_u32 {t0}, {t0}, {sL}')
        a.e('s_mov_b64 exec, 0x5555')
        self.lstore([f'buffer_store_dword {src}, {va}, {WS}, {t0} offen offset:{loff}'])
        a.e('s_mov_b64 exec, -1')

    def resid_loads(self, goff, base, va):
        a = self.a
        a.e(f'v_lshlrev_b32 {va}, 2, v0')
        a.e(f's_mul_i32 {t2}, {sJ}, 48')
        a.e(f's_add_u32 {t2}, {t2}, {sG}')
        a.e(f's_add_u32 {t2}, {t2}, {goff}')
        a.e(f's_add_u32 {t3}, {t2}, {4 * 1152}')
        a.e('s_mov_b64 exec, 0xfff')

    def resid_issue(self, base, va):
        a = self.a
        for i in range(8):
            so = t2 if i < 4 else t3
            a.e(f'buffer_load_dword v{base + i}, {va}, {WS}, {so} offen offset:{(i & 3) * 1152} sc1')
        a.tag_vm('res')

    def resid_sum(self, base):
        a = self.a
        a.e(f'v_lshlrev_b32 v4, 16, v{base}')
        a.e(f'v_and_b32 v5, 0xffff0000, v{base}')
        for i in range(1, 8):
            a.e(f'v_lshlrev_b32 v{base}, 16, v{base + i}')
            a.e(f'v_and_b32 v{base + i}, 0xffff0000, v{base + i}')
            a.e(f'v_add_f32 v4, v4, v{base}')
            a.e(f'v_add_f32 v5, v5, v{base + i}')

    def lnq_tail(self, goff, loff, isb):
        a = self.a
        self.lnq_prep()
        self.lnq_gather(goff)
        self.stamp('h2got')
        if isb:
            self.load_wuk(40, 'v14', 'v15')
        self.lnq_reduce()
        l = self.wave_only(0)
        self.lnq_final('v20')
        self.publish_q('v20', loff, 'v21', 'v22')
        self.end_only(l)
        l2 = a.lab('nores')
        a.e(f's_cmp_lg_u32 {sRES}, 3')
        a.e(f's_cbranch_scc1 {l2}')
        a.begin_skip()
        self.resid_loads(goff, 24, 'v23')
        self.resid_issue(24, 'v23')
        a.e('s_waitcnt vmcnt(0)')
        self.resid_sum(24)
        a.e('s_mov_b64 exec, -1')
        a.end_skip()
        a.e(f'{l2}:')
        self.stamp('qpub')

    def q_issue(self, loff, base):
        a = self.a
        a.e(f'buffer_load_dwordx4 {vr(base, 4)}, {vSP}, {WS}, {t4} offen offset:{loff} sc1')
        a.e(f'buffer_load_dwordx4 {vr(base + 4, 4)}, {vSP}, {WS}, {t4} offen offset:{loff + 128} sc1')
        a.tag_vm('q')

    def q_addr(self):
        a = self.a
        a.e(f's_and_b32 {t4}, {sHS}, 0x300')
        a.e(f's_add_u32 {t4}, {t4}, {sL}')

    def q_gather(self, loff, base, vmax):
        a = self.a
        self.q_addr()
        self.sleep('hq')
        self.poll_begin()
        self.q_issue(loff, base)
        a.wait(vm='q')
        self.maxchain(vmax, range(base, base + 8), True)
        self.poll_end(vmax)

    def qk_softmax(self, Q, D, S, T):
        a = self.a
        a.e(f'v_mov_b64 {vr(D, 2)}, 0')
        for t in range(19):
            if t >= 3:
                d = D + 4 * ((t - 3) & 3)
                a.e(f'v_add_f32_dpp v{S + ((t - 3) & 3)}, v{d}, v{d + 1} {DPPI} row_mask:{1 << ((t - 3) >> 2)} bank_mask:0xf')
            if t + 1 < 16:
                a.e(f'v_mov_b64 {vr(D + 4 * ((t + 1) & 3), 2)}, 0')
            if t < 16:
                d = vr(D + 4 * (t & 3), 4)
                a.e(f'v_smfmac_f32_16x16x64_bf16 {d}, {vr(Q, 4)}, a[{16 * t}:{16 * t + 7}], v1')
                a.e(f'v_smfmac_f32_16x16x64_bf16 {d}, {vr(Q + 4, 4)}, a[{16 * t + 8}:{16 * t + 15}], v1')
            if t == 15:
                a.e(f'v_lshrrev_b32 v{T + 1}, 4, v0')
                a.e(f'v_lshlrev_b32 v{T + 1}, 7, v{T + 1}')
                a.e(f'v_and_b32 v{T + 2}, 8, v0')
                a.e(f'v_lshl_or_b32 v{T + 1}, v{T + 2}, 2, v{T + 1}')
                a.e(f'v_and_b32 v{T + 2}, 2, v0')
                a.e(f'v_lshl_or_b32 v{T + 1}, v{T + 2}, 3, v{T + 1}')
                a.e(f'v_and_b32 v{T + 2}, 5, v0')
                a.e(f'v_lshl_or_b32 v{T + 1}, v{T + 2}, 1, v{T + 1}')
                a.e(f'v_add_u32 v{T + 1}, {sW8}, v{T + 1}')
        m = f'v{T}'
        a.e(f'v_max3_f32 {m}, v{S}, v{S + 1}, v{S + 2}')
        a.e(f'v_max_f32 {m}, {m}, v{S + 3}')
        for c in ('row_ror:8', 'row_ror:4', 'row_ror:2', 'row_ror:1'):
            a.e(f'v_max_f32_dpp {m}, {m}, {m} {c} {FULL}')
        a.e(f'v_max_f32_dpp {m}, {m}, {m} row_bcast:15 row_mask:0xa bank_mask:0xf')
        a.e(f'v_max_f32_dpp {m}, {m}, {m} row_bcast:31 row_mask:0xc bank_mask:0xf')
        a.e(f'v_readlane_b32 {sM}, {m}, 63')
        for r in range(4):
            a.e(f'v_subrev_f32 v{S + r}, {sM}, v{S + r}')
        for r in range(4):
            a.e(f'v_exp_f32 v{S + r}, v{S + r}')
        a.e(f'v_cvt_pk_bf16_f32 v{T + 2}, v{S}, v{S + 1}')
        a.e(f'v_cvt_pk_bf16_f32 v{T + 3}, v{S + 2}, v{S + 3}')
        a.e(f'ds_write_b16 v{T + 1}, v{T + 2} offset:6144')
        a.e(f'ds_write_b16_d16_hi v{T + 1}, v{T + 2} offset:{6144 + 4}')
        a.e(f'ds_write_b16 v{T + 1}, v{T + 3} offset:{6144 + 64}')
        a.e(f'ds_write_b16_d16_hi v{T + 1}, v{T + 3} offset:{6144 + 68}')
        a.e(f'v_pk_add_f32 {vr(S, 2)}, {vr(S, 2)}, {vr(S + 2, 2)}')
        a.e(f'v_add_f32 {m}, v{S}, v{S + 1}')

    def lsum(self, l):
        out = []
        for c in ('row_ror:8', 'row_ror:4', 'row_ror:2', 'row_ror:1'):
            out.append(f'v_add_f32_dpp {l}, {l}, {l} {c} {FULL}')
        out.append(f'v_add_f32_dpp {l}, {l}, {l} row_bcast:15 row_mask:0xa bank_mask:0xf')
        out.append(f'v_add_f32_dpp {l}, {l}, {l} row_bcast:31 row_mask:0xc bank_mask:0xf')
        return out

    def combine_write(self, O, l, T):
        a = self.a
        a.e(f'v_lshl_add_u32 v{T + 2}, v0, 2, {sW8}')
        a.e(f'ds_write2st64_b32 v{T + 2}, v{O}, v{O + 1} offset0:26 offset1:27')
        a.e(f's_lshl_b32 {t0}, {sV}, 3')
        a.e(f's_add_u32 {t0}, {t0}, {ZML}')
        a.e(f'v_mov_b32 v{T + 3}, {t0}')
        a.e(f'v_mov_b32 v{T}, {sM}')
        a.e('s_mov_b32 exec_lo, 0')
        a.e('s_brev_b32 exec_hi, 1')
        a.e(f'ds_write_b64 v{T + 3}, {vr(T, 2)}')
        a.e('s_mov_b64 exec, -1')
        a.e('s_waitcnt lgkmcnt(0)')

    def combine_publish(self):
        a = self.a
        a.e(f'v_mov_b32 v9, {ZML}')
        a.e(f'v_mov_b32 v10, {STG + 6656}')
        a.e('v_lshl_add_u32 v8, v0, 3, v10')
        a.e('s_barrier')
        l = self.wave_only(0)
        a.e('ds_read_b128 v[12:15], v9')
        a.e('ds_read_b128 v[16:19], v9 offset:16')
        a.tag_ds('ml')
        for w in range(4):
            a.e(f'ds_read_b64 {vr(20 + 2 * w, 2)}, v8 offset:{w * 8192}')
            a.tag_ds(f'o{w}')
        a.e('v_and_b32 v10, 56, v0')
        a.e('v_and_b32 v11, 1, v0')
        a.e('v_lshl_or_b32 v10, v11, 2, v10')
        a.e('v_bfe_u32 v11, v0, 1, 2')
        a.e('v_or_b32 v10, v10, v11')
        a.e('v_lshlrev_b32 v10, 2, v10')
        a.e(f's_lshl_b32 {t0}, {sJ}, 8')
        a.e(f's_add_u32 {t0}, {t0}, {sL}')
        a.e(f's_add_u32 {t0}, {t0}, {L_OA}')
        a.e(f's_lshl_b32 {t1}, {sJ}, 2')
        a.e(f's_add_u32 {t1}, {t1}, {sL}')
        a.wait(ds='ml')
        a.e('v_max3_f32 v28, v12, v14, v16')
        a.e('v_max_f32 v28, v28, v18')
        for w in range(4):
            a.e(f'v_sub_f32 v{12 + 2 * w}, v{12 + 2 * w}, v28')
        for w in range(4):
            a.e(f'v_exp_f32 v{12 + 2 * w}, v{12 + 2 * w}')
        a.e('v_mul_f32 v29, v12, v13')
        a.e('v_fmac_f32 v29, v14, v15')
        a.e('v_fmac_f32 v29, v16, v17')
        a.e('v_fmac_f32 v29, v18, v19')
        a.e('v_rcp_f32 v30, v29')
        a.e('v_log_f32 v29, v29')
        a.wait(ds='o3')
        a.e('v_pk_mul_f32 v[20:21], v[20:21], v[12:13] op_sel_hi:[1,0]')
        for w in range(1, 4):
            a.e(f'v_pk_fma_f32 v[20:21], {vr(20 + 2 * w, 2)}, {vr(12 + 2 * w, 2)}, v[20:21] op_sel_hi:[1,0,1]')
        a.e('v_pk_mul_f32 v[20:21], v[20:21], v[30:31] op_sel_hi:[1,0]')
        a.e('v_add_f32 v29, v29, v28')
        a.e('v_cvt_pk_bf16_f32 v20, v20, v21')
        self.lstore([f'buffer_store_dword v20, v10, {WS}, {t0} offen',
                     's_mov_b64 exec, 1',
                     f'buffer_store_dword v29, v10, {WS}, {t1} offen offset:{L_OAL}',
                     's_mov_b64 exec, -1'])
        self.end_only(l)

    def w8(self, lw, t):
        a = self.a
        a.e(f'v_max_f32_dpp {t}, {lw}, {lw} row_ror:4 {FULL}')
        a.e(f'v_max_f32_dpp {t}, {t}, {t} row_ror:2 {FULL}')
        a.e(f'v_max_f32_dpp {t}, {t}, {t} row_ror:1 {FULL}')
        a.e(f'v_sub_f32 {lw}, {lw}, {t}')
        a.e(f'v_exp_f32 {lw}, {lw}')
        a.e(f'v_add_f32_dpp {t}, {lw}, {lw} row_ror:4 {FULL}')
        a.e(f'v_add_f32_dpp {t}, {t}, {t} row_ror:2 {FULL}')
        a.e(f'v_add_f32_dpp {t}, {t}, {t} row_ror:1 {FULL}')
        a.e(f'v_rcp_f32 {t}, {t}')
        a.e(f'v_mul_f32 {lw}, {lw}, {t}')

    def rot8(self, dst, tmp):
        a = self.a
        a.e(f'v_lshrrev_b32 {tmp}, 3, v0')
        a.e(f'v_and_b32 {tmp}, 6, {tmp}')
        a.e(f'v_add_u32 {dst}, v0, {tmp}')
        a.e(f'v_and_b32 {dst}, 7, {dst}')

    def outproj(self, isa, next_srd):
        a = self.a
        loff = L_OA if isa else L_OB
        a.e('v_lshrrev_b32 v28, 4, v0')
        a.e('v_bfe_u32 v29, v0, 2, 2')
        a.e('v_lshl_add_u32 v28, v28, 3, v29')
        a.e('v_mul_u32_u24 v28, 48, v28')
        a.e('v_and_b32 v29, 3, v0')
        a.e('v_lshl_add_u32 v28, v29, 3, v28')
        a.e(f'v_add_u32 v28, {sW8}, v28')
        a.wait(vm='wo')
        for tile in range(2):
            for blk in range(2):
                for hh in range(2):
                    for half in range(2):
                        off = (64 * blk + 32 * hh + 4 * half) * 48 + 32 * tile
                        a.e(f'ds_read_b64_tr_b16 {vr(32 + 16 * tile + 8 * blk + 4 * hh + 2 * half, 2)}, v28 offset:{off}')
        a.e('v_bfe_u32 v29, v0, 1, 3')
        a.e(f'v_lshl_add_u32 v29, v29, 8, {vSP}')
        a.e(f's_lshl_b32 {t0}, {sV}, 11')
        a.e(f's_add_u32 {t0}, {t0}, {sL}')
        a.e(f's_add_u32 {t0}, {t0}, {loff}')
        if isa:
            self.rot8('v30', 'v31')
            a.e('v_lshlrev_b32 v30, 2, v30')
            a.e(f's_lshl_b32 {t1}, {sV}, 5')
            a.e(f's_add_u32 {t1}, {t1}, {sL}')
        a.e('v_and_b32 v18, 15, v0')
        a.e('v_lshrrev_b32 v19, 5, v0')
        a.e('v_lshl_add_u32 v18, v19, 4, v18')
        a.e('v_bfe_u32 v19, v0, 4, 1')
        a.e('v_lshlrev_b32 v19, 2, v19')
        a.e('v_lshl_add_u32 v18, v18, 5, v19')
        a.e(f's_lshl_b32 {t2}, {sV}, 3')
        a.e(f's_add_u32 {t2}, {t2}, {ZO}')
        a.e(f'v_add_u32 v18, {t2}, v18')
        for r in range(20, 28, 2):
            a.e(f'v_mov_b64 {vr(r, 2)}, 0')
        a.e('s_waitcnt lgkmcnt(0)')
        self.sleep('h1' if isa else 'hd')
        self.poll_begin()
        if isa:
            a.e(f'buffer_load_dword v16, v30, {WS}, {t1} offen offset:{L_OAL} sc1')
        a.e(f'buffer_load_dwordx4 v[8:11], v29, {WS}, {t0} offen sc1')
        a.e(f'buffer_load_dwordx4 v[12:15], v29, {WS}, {t0} offen offset:128 sc1')
        a.tag_vm('o')
        a.wait(vm='o')
        self.maxchain('v17', list(range(8, 17 if isa else 16)), True)
        self.poll_end('v17')
        self.stamp('ogot')
        a.e('v_smfmac_f32_16x16x64_bf16 v[20:23], v[8:11], v[32:39], v1')
        a.e('v_smfmac_f32_16x16x64_bf16 v[24:27], v[8:11], v[48:55], v1')
        a.e('v_smfmac_f32_16x16x64_bf16 v[20:23], v[12:15], v[40:47], v1')
        a.e('v_smfmac_f32_16x16x64_bf16 v[24:27], v[12:15], v[56:63], v1')
        if isa:
            self.w8('v16', 'v17')
            a.e('v_add_f32 v20, v20, v21')
            a.e('v_add_f32 v22, v22, v23')
            a.e('v_add_f32 v24, v24, v25')
            a.e('v_add_f32 v26, v26, v27')
            a.e(f'v_mul_f32_dpp v20, v16, v20 row_newbcast:0 {FULL}')
            a.e(f'v_mul_f32_dpp v24, v16, v24 row_newbcast:0 {FULL}')
            a.e(f'v_fmac_f32_dpp v20, v16, v22 row_newbcast:1 {FULL}')
            a.e(f'v_fmac_f32_dpp v24, v16, v26 row_newbcast:1 {FULL}')
        else:
            a.e('v_pk_add_f32 v[20:21], v[20:21], v[22:23]')
            a.e('v_pk_add_f32 v[24:25], v[24:25], v[26:27]')
            a.e('v_add_f32 v20, v20, v21')
            a.e('v_add_f32 v24, v24, v25')
        a.e('v_permlane32_swap_b32 v20, v24')
        a.e('v_add_f32 v20, v20, v24')
        a.e('ds_write_b32 v18, v20')
        a.e(f'v_mov_b32 v19, {ZO}')
        a.e('v_and_b32 v21, 15, v0')
        a.e('v_lshl_add_u32 v19, v21, 6, v19')
        a.e('s_waitcnt lgkmcnt(0)')
        a.e('s_barrier')
        l = a.lab('noy')
        a.e(f's_bitcmp0_b32 {sRES}, 0')
        a.e(f's_cbranch_scc1 {l}')
        a.begin_skip()
        for i in range(4):
            a.e(f'ds_read_b128 {vr(32 + 4 * i, 4)}, v19 offset:{16 * i}')
            a.tag_ds(f'z{i}')
        a.e('v_lshlrev_b32 v21, 2, v0')
        a.e(f's_mul_i32 {t0}, {sJ}, 48')
        a.e(f's_mul_i32 {t1}, {sX}, 1152')
        a.e(f's_add_u32 {t0}, {t0}, {t1}')
        a.e(f's_add_u32 {t0}, {t0}, {sG}')
        a.e(f's_add_u32 {t0}, {t0}, {G_YA if isa else G_YB}')
        a.wait(ds='z1')
        a.e('v_pk_add_f32 v[32:33], v[32:33], v[34:35]')
        a.e('v_pk_add_f32 v[36:37], v[36:37], v[38:39]')
        a.e('v_pk_add_f32 v[32:33], v[32:33], v[36:37]')
        a.e('v_add_f32 v32, v32, v33')
        a.wait(ds='z3')
        a.e('v_pk_add_f32 v[40:41], v[40:41], v[42:43]')
        a.e('v_pk_add_f32 v[44:45], v[44:45], v[46:47]')
        a.e('v_pk_add_f32 v[40:41], v[40:41], v[44:45]')
        a.e('v_add_f32 v33, v40, v41')
        a.e('v_pk_add_f32 v[32:33], v[32:33], v[4:5]')
        a.e('v_cvt_pk_bf16_f32 v32, v32, v33')
        a.e('s_mov_b64 exec, 0xfff')
        a.e(f'buffer_store_dword v32, v21, {WS}, {t0} offen sc1')
        a.e('s_mov_b64 exec, -1')
        a.end_skip()
        a.e(f'{l}:')
        self.stamp('ypub')

    def qabs(self):
        a = self.a
        a.e('v_mov_b64 v[16:17], 0')
        a.e('v_lshlrev_b32 v21, 1, v0')
        a.e(f's_lshl_b32 {t0}, {sH}, 10')
        a.e(f's_lshl_b32 {t1}, {sS}, 7')
        a.e(f's_add_u32 {t0}, {t0}, {t1}')
        a.e(f's_lshl_b32 {t1}, {sV}, 5')
        a.e(f's_add_u32 {t0}, {t0}, {t1}')
        a.e(f's_add_u32 {t0}, {t0}, {sG}')
        a.e(f's_add_u32 {t0}, {t0}, {G_QABS}')
        self.q_gather(L_QB, 8, 'v20')
        self.stamp('qgotB')
        a.e('v_smfmac_f32_16x16x64_bf16 v[16:19], v[8:11], v[40:47], v1')
        a.e('v_smfmac_f32_16x16x64_bf16 v[16:19], v[12:15], v[48:55], v1')
        a.e('v_add_f32 v16, v16, v17')
        a.e(f'v_mov_b32_dpp v17, v16 quad_perm:[1,0,3,2] {FULL}')
        a.e('v_cvt_pk_bf16_f32 v16, v16, v17')
        a.e('s_mov_b64 exec, 0x5555')
        a.e(f'buffer_store_dword v16, v21, {WS}, {t0} offen sc1')
        a.e('s_mov_b64 exec, -1')
        self.stamp('qapub')

    def attn_b(self):
        a = self.a
        RING = 5

        def cread(k):
            ks, t = k >> 2, k & 3
            if t == 0 or k == RING:
                a.e(f'v_xor_b32 v40, {CKV | (ks << 6)}, {vA}')
            a.e(f'ds_read_b128 {vr(44 + 4 * (k % RING), 4)}, v40 offset:{t * 4096}')
            a.tag_ds(f'c{k}')
        for k in range(RING):
            cread(k)
        a.e('v_and_b32 v41, 15, v0')
        a.e('v_and_b32 v42, 48, v0')
        a.e('v_lshl_or_b32 v41, v41, 10, v42')
        a.e(f's_and_b32 {t0}, {sJ}, 1')
        a.e(f's_lshl_b32 {t0}, {t0}, 14')
        a.e(f's_lshl_b32 {t1}, {sV}, 8')
        a.e(f's_add_u32 {t0}, {t0}, {t1}')
        a.e(f's_add_u32 {t0}, {t0}, {sG}')
        a.e(f's_add_u32 {t0}, {t0}, {G_QABS}')
        self.sleep('ha')
        self.poll_begin()
        for ks in range(4):
            a.e(f'buffer_load_dwordx4 {vr(8 + 4 * ks, 4)}, v41, {WS}, {t0} offen offset:{ks * 64} sc1')
            a.tag_vm(f'qa{ks}')
        for ks in range(4):
            a.wait(vm=f'qa{ks}')
            self.maxchain('v42', range(8 + 4 * ks, 12 + 4 * ks), ks == 0)
        self.poll_end('v42')
        self.stamp('qagot')
        for k in range(16):
            ks, t = k >> 2, k & 3
            a.wait(ds=f'c{k}')
            c = '0' if ks == 0 else vr(24 + 4 * t, 4)
            a.e(f'v_mfma_f32_16x16x32_bf16 {vr(24 + 4 * t, 4)}, {vr(44 + 4 * (k % RING), 4)}, {vr(8 + 4 * ks, 4)}, {c}')
            if k + RING < 16:
                cread(k + RING)
        self.dma_wuv('v41', 'v42')
        a.e(f'v_lshl_add_u32 v43, v0, 4, {sW8}')
        a.e('v_xor_b32 v40, 0x2000, v43')
        a.e('v_xor_b32 v41, 0x4000, v43')
        a.e('v_xor_b32 v42, 0x6000, v43')
        for t in range(4):
            a.e(f'ds_write_b128 v43, {vr(24 + 4 * t, 4)} offset:{t * 1024}')
        a.e('s_waitcnt lgkmcnt(0)')
        a.e('s_barrier')
        for t in range(4):
            a.e(f'ds_read_b128 {vr(8 + 4 * t, 4)}, v40 offset:{t * 1024}')
            a.tag_ds(f'r1{t}')
        for t in range(4):
            a.e(f'ds_read_b128 {vr(44 + 4 * t, 4)}, v41 offset:{t * 1024}')
            a.tag_ds(f'r2{t}')
        a.e('ds_read_b128 v[60:63], v42')
        a.tag_ds('r30')
        for t in range(4):
            a.wait(ds=f'r1{t}')
            for p in range(2):
                r = 24 + 4 * t + 2 * p
                a.e(f'v_pk_add_f32 {vr(r, 2)}, {vr(r, 2)}, {vr(8 + 4 * t + 2 * p, 2)}')
            if t < 3:
                a.e(f'ds_read_b128 {vr(8 + 4 * t, 4)}, v42 offset:{(t + 1) * 1024}')
                a.tag_ds(f'r3{t + 1}')
        for t in range(4):
            a.wait(ds=f'r3{t}')
            src = 60 if t == 0 else 8 + 4 * (t - 1)
            for p in range(2):
                r = 44 + 4 * t + 2 * p
                a.e(f'v_pk_add_f32 {vr(r, 2)}, {vr(r, 2)}, {vr(src + 2 * p, 2)}')
            for p in range(2):
                r = 24 + 4 * t + 2 * p
                a.e(f'v_pk_add_f32 {vr(r, 2)}, {vr(r, 2)}, {vr(44 + 4 * t + 2 * p, 2)}')
        self.stamp('sxch')
        SLOT = [44, 52, 16]

        def tread(e):
            a.e(f'v_xor_b32 v40, {CKV | (e << 5)}, {vT}')
            for t in range(4):
                a.e(f'ds_read_b64_tr_b16 {vr(SLOT[e % 3] + 2 * t, 2)}, v40 offset:{t * 4096}')
            a.tag_ds(f't{e}')
        for e in range(3):
            tread(e)
        a.e('v_max3_f32 v42, v24, v25, v26')
        for r in range(27, 39, 2):
            a.e(f'v_max3_f32 v42, v42, v{r}, v{r + 1}')
        a.e('v_max_f32 v42, v42, v39')
        a.e('v_mov_b32 v43, v42')
        a.e('v_permlane32_swap_b32 v42, v43')
        a.e('v_max_f32 v42, v42, v43')
        a.e('v_mov_b32 v43, v42')
        a.e('v_permlane16_swap_b32 v42, v43')
        a.e('v_max_f32 v42, v42, v43')
        for r in range(24, 40, 2):
            a.e(f'v_pk_add_f32 {vr(r, 2)}, {vr(r, 2)}, v[42:43] op_sel_hi:[1,0] neg_lo:[0,1] neg_hi:[0,1]')
        for r in range(24, 40):
            a.e(f'v_exp_f32 v{r}, v{r}')
        for r in range(8):
            a.e(f'v_cvt_pk_bf16_f32 v{8 + r}, v{24 + 2 * r}, v{25 + 2 * r}')
        for r in range(24, 32, 2):
            a.e(f'v_pk_add_f32 {vr(r, 2)}, {vr(r, 2)}, {vr(r + 8, 2)}')
        a.e('v_pk_add_f32 v[24:25], v[24:25], v[28:29]')
        a.e('v_pk_add_f32 v[26:27], v[26:27], v[30:31]')
        a.e('v_pk_add_f32 v[24:25], v[24:25], v[26:27]')
        a.e('v_add_f32 v43, v24, v25')
        self.stamp('smax')
        a.e('v_and_b32 v41, 15, v0')
        a.e('v_lshlrev_b32 v41, 14, v41')
        a.e('v_and_or_b32 v41, v0, 48, v41')
        a.e(f's_lshl_b32 {t0}, {sX}, 1')
        a.e(f's_and_b32 {t1}, {sJ}, 1')
        a.e(f's_add_u32 {t0}, {t0}, {t1}')
        a.e(f's_lshl_b32 {t0}, {t0}, 18')
        a.e(f's_lshr_b32 {t2}, {sJ}, 1')
        a.e(f's_lshl_b32 {t3}, {t2}, 10')
        a.e(f's_add_u32 {t0}, {t0}, {t3}')
        a.e(f's_lshl_b32 {t3}, {sV}, 8')
        a.e(f's_add_u32 {t0}, {t0}, {t3}')
        a.e(f's_add_u32 {t0}, {t0}, {CB}')
        a.e(f's_lshl_b32 {t1}, {t1}, 11')
        a.e(f's_lshl_b32 {t2}, {t2}, 3')
        a.e(f's_add_u32 {t1}, {t1}, {t2}')
        a.e(f's_add_u32 {t1}, {t1}, {sL}')
        a.e(f's_add_u32 {t1}, {t1}, {L_C1ML}')

        def pack(q):
            d0, d1 = 24 + 4 * ((2 * q) & 3), 24 + 4 * ((2 * q + 1) & 3)
            a.e(f'v_cvt_pk_bf16_f32 v60, v{d0}, v{d0 + 1}')
            a.e(f'v_cvt_pk_bf16_f32 v61, v{d0 + 2}, v{d0 + 3}')
            a.e(f'v_cvt_pk_bf16_f32 v62, v{d1}, v{d1 + 1}')
            a.e(f'v_cvt_pk_bf16_f32 v63, v{d1 + 2}, v{d1 + 3}')
            self.lstore([f'buffer_store_dwordx4 v[60:63], v41, {WS}, {t0} offen offset:{q * 64}'])
        for e in range(8):
            a.wait(ds=f't{e}')
            d = vr(24 + 4 * (e & 3), 4)
            s = SLOT[e % 3]
            a.e(f'v_mfma_f32_16x16x32_bf16 {d}, {vr(s, 4)}, v[8:11], 0')
            a.e(f'v_mfma_f32_16x16x32_bf16 {d}, {vr(s + 4, 4)}, v[12:15], {d}')
            if e + 3 < 8:
                tread(e + 3)
            if e in (3, 5, 7):
                pack((e - 3) // 2)
        a.e('v_mov_b32 v40, v43')
        a.e('v_permlane32_swap_b32 v43, v40')
        a.e('v_add_f32 v43, v43, v40')
        a.e('v_mov_b32 v40, v43')
        a.e('v_permlane16_swap_b32 v43, v40')
        a.e('v_add_f32 v43, v43, v40')
        pack(3)
        l = self.wave_only(0)
        a.e('v_lshlrev_b32 v40, 7, v0')
        a.e('s_mov_b64 exec, 0xffff')
        self.lstore([f'buffer_store_dwordx2 v[42:43], v40, {WS}, {t1} offen'])
        a.e('s_mov_b64 exec, -1')
        self.end_only(l)
        self.stamp('c1pub')
        a.e('s_barrier')

    def red(self):
        a = self.a
        a.e(f'v_lshl_add_u32 v40, v0, 3, {sW8}')
        a.wait(vm='wuv')
        for i in range(8):
            a.e(f'ds_read_b64_tr_b16 {vr(48 + 2 * i, 2)}, v40 offset:{4096 + 512 * i}')
        a.e('v_lshrrev_b32 v41, 4, v0')
        a.e('v_and_b32 v42, 15, v0')
        a.e('v_lshlrev_b32 v43, 4, v42')
        a.e('v_lshl_or_b32 v43, v41, 12, v43')
        a.e('v_lshl_add_u32 v44, v41, 2, v0')
        a.e('v_and_b32 v44, 15, v44')
        a.e('v_lshlrev_b32 v44, 3, v44')
        a.e(f's_lshl_b32 {t5}, {sX}, 5')
        a.e(f's_add_u32 {t5}, {t5}, {sJ}')
        a.e(f's_lshl_b32 {t5}, {t5}, 14')
        a.e(f's_lshl_b32 {t1}, {sV}, 8')
        a.e(f's_add_u32 {t5}, {t5}, {t1}')
        a.e(f's_add_u32 {t5}, {t5}, {CB}')
        a.e(f's_lshl_b32 {t2}, {sJ}, 7')
        a.e(f's_add_u32 {t2}, {t2}, {sL}')
        a.e(f's_add_u32 {t2}, {t2}, {L_C1ML}')
        a.e('v_lshrrev_b32 v45, 1, v42')
        a.e('v_lshlrev_b32 v45, 5, v45')
        a.e('v_and_or_b32 v45, v0, 16, v45')
        a.e('v_and_b32 v46, 1, v0')
        a.e('v_lshl_or_b32 v45, v46, 3, v45')
        a.e('v_lshrrev_b32 v46, 5, v0')
        a.e('v_lshl_or_b32 v45, v46, 2, v45')
        a.e(f's_lshl_b32 {t3}, {sJ}, 3')
        a.e(f's_add_u32 {t3}, {t3}, {sX}')
        a.e(f's_mul_i32 {t3}, {t3}, 1152')
        a.e(f's_add_u32 {t3}, {t3}, {t1}')
        a.e(f's_add_u32 {t3}, {t3}, {sG}')
        a.e(f's_add_u32 {t3}, {t3}, {G_C2}')
        for r in range(28, 36, 2):
            a.e(f'v_mov_b64 {vr(r, 2)}, 0')
        a.e('s_waitcnt lgkmcnt(0)')
        self.sleep('hc1')
        self.poll_begin()
        a.e(f'buffer_load_dwordx2 v[24:25], v44, {WS}, {t2} offen sc1')
        for i in range(4):
            a.e(f'buffer_load_dwordx4 {vr(8 + 4 * i, 4)}, v43, {WS}, {t5} offen offset:{i * 1024} sc1')
            a.tag_vm(f'c{i}')
        for i in range(4):
            a.wait(vm=f'c{i}')
            self.maxchain('v47', ([24, 25] if i == 0 else []) + list(range(8 + 4 * i, 12 + 4 * i)), i == 0)
        self.poll_end('v47')
        self.stamp('c1got')
        a.e(f'v_max_f32_dpp v36, v24, v24 row_ror:8 {FULL}')
        for c in (4, 2, 1):
            a.e(f'v_max_f32_dpp v36, v36, v36 row_ror:{c} {FULL}')
        a.e('v_sub_f32 v24, v24, v36')
        a.e('v_exp_f32 v24, v24')
        a.e('v_cvt_pk_bf16_f32 v26, v24, 0')
        a.e('v_cvt_pk_bf16_f32 v27, 0, v24')
        a.e('v_mul_f32 v25, v25, v27')
        extra = [f'v_add_f32_dpp v25, v25, v25 row_ror:{c} {FULL}' for c in (8, 4, 2, 1)]
        extra += ['v_rcp_f32 v38, v25', 'v_log_f32 v37, v25']
        k = 0
        for i in range(4):
            for d in range(4):
                a.e(f'v_dot2c_f32_bf16_dpp v{28 + 2 * d}, v26, v{8 + 4 * i + d} row_newbcast:{i} {FULL}')
                a.e(f'v_dot2c_f32_bf16_dpp v{29 + 2 * d}, v27, v{8 + 4 * i + d} row_newbcast:{i} {FULL}')
                if k < len(extra):
                    a.e(extra[k])
                    k += 1
        a.e('v_add_f32 v37, v37, v36')
        for i in range(4):
            a.e(f'v_permlane32_swap_b32 v{28 + i}, v{32 + i}')
        a.e('v_pk_add_f32 v[28:29], v[28:29], v[32:33]')
        a.e('v_pk_add_f32 v[30:31], v[30:31], v[34:35]')
        a.e('v_permlane16_swap_b32 v28, v30')
        a.e('v_permlane16_swap_b32 v29, v31')
        a.e('v_pk_add_f32 v[28:29], v[28:29], v[30:31]')
        a.e('v_pk_mul_f32 v[28:29], v[28:29], v[38:39] op_sel_hi:[1,0]')
        a.e('v_cvt_pk_bf16_f32 v28, v28, v29')
        a.e(f'buffer_store_dword v28, v45, {WS}, {t3} offen sc1')
        l = self.wave_only(0)
        a.e('s_mov_b64 exec, 1')
        a.e(f'buffer_store_dword v37, v45, {WS}, {t3} offen offset:1024 sc1')
        a.e('s_mov_b64 exec, -1')
        self.end_only(l)
        self.stamp('c2pub')
        for r in range(8, 12):
            a.e(f'v_mov_b32 v{r}, -1')
        self.lstore([f'buffer_store_dwordx4 v[8:11], v43, {WS}, {t5} offen offset:{i * 1024}' for i in range(4)])
        self.dma_wo(BWO, 'v28', 'v29')

    def uv(self):
        a = self.a
        a.e('v_bfe_u32 v28, v0, 1, 3')
        a.e('v_mul_u32_u24 v28, 1152, v28')
        a.e(f'v_add_u32 v28, v28, {vSP}')
        self.rot8('v29', 'v30')
        a.e('v_mul_u32_u24 v29, 1152, v29')
        a.e(f's_mul_i32 {t1}, {sH}, 9216')
        a.e(f's_add_u32 {t1}, {t1}, {sG}')
        a.e(f's_add_u32 {t1}, {t1}, {G_C2}')
        a.e(f's_lshl_b32 {t0}, {sV}, 8')
        a.e(f's_add_u32 {t0}, {t0}, {t1}')
        self.pos_bytes('v30', 'v31')
        a.e('v_and_b32 v31, 16, v0')
        a.e('v_lshl_or_b32 v30, v31, 4, v30')
        a.e(f's_lshr_b32 {t2}, {sJ}, 3')
        a.e(f's_lshl_b32 {t2}, {t2}, 2')
        a.e(f's_add_u32 {t2}, {t2}, {sV}')
        a.e(f's_lshl_b32 {t2}, {t2}, 9')
        a.e(f's_lshl_b32 {t3}, {sS}, 5')
        a.e(f's_add_u32 {t2}, {t2}, {t3}')
        a.e(f's_add_u32 {t2}, {t2}, {sL}')
        a.e(f's_add_u32 {t2}, {t2}, {L_OB}')
        a.e('v_mov_b64 v[20:21], 0')
        a.e('v_mov_b64 v[22:23], 0')
        self.sleep('hc2')
        self.poll_begin()
        a.e(f'buffer_load_dword v16, v29, {WS}, {t1} offen offset:1024 sc1')
        a.e(f'buffer_load_dwordx4 v[8:11], v28, {WS}, {t0} offen sc1')
        a.e(f'buffer_load_dwordx4 v[12:15], v28, {WS}, {t0} offen offset:128 sc1')
        a.tag_vm('c2')
        a.wait(vm='c2')
        self.maxchain('v17', range(8, 17), True)
        self.poll_end('v17')
        self.stamp('c2got')
        a.e('v_smfmac_f32_16x16x64_bf16 v[20:23], v[8:11], v[48:55], v1')
        a.e('v_smfmac_f32_16x16x64_bf16 v[20:23], v[12:15], v[56:63], v1')
        self.w8('v16', 'v17')
        a.e('v_add_f32 v20, v20, v21')
        a.e('v_add_f32 v22, v22, v23')
        a.e(f'v_mul_f32_dpp v20, v16, v20 row_newbcast:0 {FULL}')
        a.e(f'v_fmac_f32_dpp v20, v16, v22 row_newbcast:1 {FULL}')
        a.e('v_mov_b32 v21, v20')
        a.e('v_permlane32_swap_b32 v20, v21')
        a.e('v_add_f32 v20, v20, v21')
        a.e(f'v_mov_b32_dpp v21, v20 quad_perm:[1,0,3,2] {FULL}')
        a.e('v_cvt_pk_bf16_f32 v20, v20, v21')
        a.e('s_mov_b64 exec, 0x55555555')
        self.lstore([f'buffer_store_dword v20, v30, {WS}, {t2} offen'])
        a.e('s_mov_b64 exec, -1')
        self.stamp('dpub')

    def attn_a3(self):
        a = self.a
        self.q_gather(L_QA, 8, 'v16')
        self.stamp('qgotA')
        self.dma_wo(WO, 'v60', 'v61')
        SLOT = [48, 56]

        def vread(e):
            a.e(f'v_xor_b32 v47, {e << 5}, {vT}')
            for t in range(4):
                a.e(f'ds_read_b64_tr_b16 {vr(SLOT[e & 1] + 2 * t, 2)}, v47 offset:{t * 4096}')
            a.tag_ds(f'v{e}')
        vread(0)
        vread(1)
        self.qk_softmax(8, 16, 32, 36)
        a.e(f'v_add_u32 v46, {sW8}, {vSP}')
        a.e('s_waitcnt lgkmcnt(0)')
        for U in range(4):
            a.e(f'ds_read_b128 {vr(8 + 4 * U, 4)}, v46 offset:{6144 + 128 * U}')
            a.tag_ds(f'p{U}')
        self.stamp('smaxA')
        a.e('v_mov_b32 v41, v36')
        ls = self.lsum('v41')
        ACC = [24, 28, 32]
        a.e('v_mov_b64 v[24:25], 0')
        for e in range(10):
            if e >= 2:
                d = ACC[(e - 2) % 3]
                a.e(f'v_add_f32_dpp v{44 + ((e - 2) >> 2)}, v{d}, v{d + 1} {DPPI} row_mask:{1 << ((e - 2) & 3)} bank_mask:0xf')
            if e + 1 < 8:
                a.e(f'v_mov_b64 {vr(ACC[(e + 1) % 3], 2)}, 0')
            if e < 8:
                d = vr(ACC[e % 3], 4)
                for U in range(3):
                    if e == 0:
                        a.wait(ds=f'p{U}')
                    a.e(f'v_smfmac_f32_16x16x64_bf16 {d}, {vr(8 + 4 * U, 4)}, {vr(64 + 64 * U + 8 * e, 8)}, v1')
                    if U == 0 and e < len(ls):
                        a.e(ls[e])
                a.wait(ds='p3' if e == 0 else f'v{e}')
                a.e(f'v_smfmac_f32_16x16x64_bf16 {d}, v[20:23], {vr(SLOT[e & 1], 8)}, v1')
                if e + 2 < 8:
                    vread(e + 2)
        self.combine_write(44, 41, 40)
        self.stamp('pvA')

    def dma_tile(self, t):
        a = self.a
        pol = self.o.get('pol_kv', 'nt')
        srd = K_ if t < 16 else V_
        a.e(f's_add_u32 {t0}, {sKG}, {(t & 15) * 16384}')
        a.e(f's_add_u32 m0, {sKV}, {(t & 3) * 4096}')
        for q in range(4):
            a.e(f'buffer_load_dwordx4 v{8 + q}, {srd}, {t0} offen offset:{q * 1024} {pol} lds')
        a.tag_vm(f'tile{t}')

    def dma_ckv(self, t):
        a = self.a
        pol = self.o.get('pol_c', '')
        a.e('v_lshrrev_b32 v62, 4, v0')
        a.e('v_mul_u32_u24 v62, 768, v62')
        a.e(f's_lshl_b32 {t1}, {sX}, 4')
        a.e(f's_lshr_b32 {t2}, {sJ}, 1')
        a.e(f's_add_u32 {t1}, {t1}, {t2}')
        a.e(f's_lshl_b32 {t1}, {t1}, 16')
        a.e(f's_lshl_b32 {t2}, {sV}, 8')
        a.e(f's_add_u32 {t1}, {t1}, {t2}')
        for q in range(4):
            a.e(f'v_add_u32 v63, v{8 + q}, v62')
            a.e(f's_add_u32 {t2}, {t1}, {(16 * t + 4 * q) * 1024}')
            a.e(f's_add_u32 m0, {sKV}, {CKV + t * 4096 + q * 1024}')
            a.e(f'buffer_load_dwordx4 v63, {CK}, {t2} offen {pol} lds')

    def prologue(self):
        a = self.a
        a.e('s_cmp_ge_u32 s2, 256')
        a.e('s_cbranch_scc1 L_end')
        a.e('s_load_dwordx16 s[68:83], s[0:1], 0')
        a.e('s_load_dwordx8 s[84:91], s[0:1], 64')
        a.e('s_load_dwordx4 s[92:95], s[0:1], 96')
        a.e('v_lshrrev_b32 v1, 6, v0')
        a.e('v_mov_b32 v63, v0')
        a.e(f'v_readfirstlane_b32 {sV}, v1')
        a.e('v_and_b32 v0, 63, v0')
        a.e(f's_and_b32 {sX}, s2, 7')
        a.e(f's_lshr_b32 {sJ}, s2, 3')
        a.e(f's_lshr_b32 {sH}, {sJ}, 3')
        a.e(f's_lshl_b32 s3, {sX}, 2')
        a.e(f's_add_u32 {sH}, {sH}, s3')
        a.e(f's_and_b32 {sS}, {sJ}, 7')
        a.e(f's_lshl_b32 {sKV}, {sV}, 14')
        a.e(f's_lshl_b32 {sKG}, {sH}, 21')
        a.e(f's_lshl_b32 s3, {sS}, 18')
        a.e(f's_add_u32 {sKG}, {sKG}, s3')
        a.e(f's_lshl_b32 s3, {sV}, 12')
        a.e(f's_add_u32 {sKG}, {sKG}, s3')
        a.e('v_lshrrev_b32 v12, 4, v0')
        a.e('v_and_b32 v13, 15, v0')
        a.e('v_lshlrev_b32 v14, 1, v12')
        a.e('v_xor_b32 v14, v14, v13')
        a.e('v_lshlrev_b32 v14, 4, v14')
        a.e('v_lshl_or_b32 v8, v12, 8, v14')
        for q in range(1, 4):
            a.e(f'v_xor_b32 v{8 + q}, {TBL[q] << 4}, v8')
        srds = [(4, 70, 1 << 26), (8, 72, 1 << 26), (12, 74, 576 * 8192), (16, 76, 4096 * 1152), (20, 80, 1 << 23),
                (24, 82, 576 * 8192), (28, 84, 1 << 22), (32, 86, 1 << 22), (36, 88, 4096 * 1152), (40, 94, WS_SIZE),
                (44, 90, 1152), (48, 92, 256), (52, 68, 1152)]
        for d, s, n in srds:
            a.e(f's_mov_b32 s{d + 2}, {n}')
            a.e(f's_mov_b32 s{d + 3}, 0x20000')
        a.e('s_waitcnt lgkmcnt(0)')
        for d, s, n in srds:
            a.e(f's_mov_b64 s[{d}:{d + 1}], s[{s}:{s + 1}]')
        for t in range(4):
            self.dma_tile(t)
        a.e(f's_lshl_b32 {sL}, {sX}, 16')
        a.e(f's_mov_b32 {sG}, {GB}')
        a.e(f's_mov_b32 {sIT}, 0')
        a.e(f's_mov_b32 {sPOLL}, 0')
        a.e(f's_mov_b32 {sST}, 0')
        a.e(f's_lshl_b32 {sW8}, {sV}, 13')
        a.e(f's_add_u32 {sW8}, {sW8}, {STG}')
        a.e('s_mov_b32 s78, 0x00ff00ff')
        a.e('s_mov_b32 s79, 0x00ff00ff')
        a.e(f's_lshl_b32 {sHS}, {sH}, 8')
        a.e(f's_lshl_b32 s3, {sS}, 5')
        a.e(f's_add_u32 {sHS}, {sHS}, s3')
        a.e(f's_lshl_b32 {sWO}, {sX}, 2')
        a.e(f's_add_u32 {sWO}, {sWO}, {sV}')
        a.e(f's_mul_i32 {sWO}, {sWO}, {128 * 1152}')
        a.e(f's_mul_i32 s3, {sJ}, 48')
        a.e(f's_add_u32 {sWO}, {sWO}, s3')
        a.e(f's_cmp_lt_u32 {sJ}, 24')
        a.e(f's_cselect_b32 {sWO}, {sWO}, {OOB}')
        a.e(f's_cselect_b32 {sRES}, 1, 0')
        a.e(f's_cmp_eq_u32 {sV}, 3')
        a.e(f's_cselect_b32 {sRES}, {sRES}, 0')
        a.e(f's_mul_i32 {t0}, {sRES}, 3')
        a.e(f's_cmp_eq_u32 {sX}, 0')
        a.e(f's_cselect_b32 {sRES}, {t0}, {sRES}')
        if self.o.get('stamps'):
            a.e('v_mov_b32 v7, 0')
        self.stamp('start')
        a.e(f's_getpc_b64 s[74:75]')
        a.e('L_pc:')
        a.e('v_lshlrev_b32 v62, 7, v63')
        a.e(f'v_min_u32 v62, L_codeend-L_pc, v62')
        a.e('global_load_dword v61, v62, s[74:75]')
        a.e('v_and_b32 v14, 1, v0')
        a.e('v_mul_u32_u24 v1, 0xaaaa, v14')
        a.e('v_add_u32 v1, 0x4444, v1')
        a.e('v_lshlrev_b32 v14, 4, v14')
        a.e(f'v_lshl_or_b32 {vSP}, v12, 5, v14')
        def tbl(dst, x, tmp):
            a.e(f'v_lshrrev_b32 {tmp}, 1, {x}')
            a.e(f'v_xor_b32 {dst}, {x}, {tmp}')
            a.e(f'v_and_b32 {dst}, 1, {dst}')
            a.e(f'v_lshl_or_b32 {dst}, {dst}, 3, {tmp}')
        a.e('v_lshrrev_b32 v15, 2, v13')
        tbl('v16', 'v15', 'v17')
        a.e('v_and_b32 v17, 3, v13')
        a.e('v_lshlrev_b32 v18, 1, v17')
        a.e('v_xor_b32 v16, v16, v18')
        a.e('v_xor_b32 v16, v16, v12')
        a.e('v_lshlrev_b32 v16, 4, v16')
        a.e(f'v_lshl_or_b32 {vA}, v13, 8, v16')
        a.e(f'v_add_u32 {vA}, {sKV}, {vA}')
        tbl('v16', 'v12', 'v18')
        a.e('v_lshlrev_b32 v18, 1, v15')
        a.e('v_xor_b32 v16, v16, v18')
        a.e('v_lshrrev_b32 v18, 1, v17')
        a.e('v_xor_b32 v16, v16, v18')
        a.e('v_lshlrev_b32 v16, 4, v16')
        a.e('v_lshrrev_b32 v18, 2, v0')
        a.e('v_lshl_or_b32 v16, v18, 8, v16')
        a.e('v_and_b32 v18, 1, v0')
        a.e(f'v_lshl_or_b32 {vT}, v18, 3, v16')
        a.e(f'v_add_u32 {vT}, {sKV}, {vT}')
        self.dma_wq(WQ, 'v56')
        a.e('v_mov_b32 v57, 0x3f803f80')
        a.e(f'v_cndmask_b32 v16, v57, 0, {M8}')
        for r in range(17, 36):
            a.e(f'v_mov_b32 v{r}, v16')
        a.e(f's_lshl_b32 {t0}, {sV}, 6')
        a.e('s_mov_b32 exec_lo, 0x00010001')
        a.e('s_mov_b32 exec_hi, 0x00010001')
        a.e(f'buffer_load_dwordx4 v[16:19], v0, {XIN}, {t0} offen offset:1024')
        for slot in range(1, 5):
            a.e(f'buffer_load_dwordx4 {vr(16 + 4 * slot, 4)}, v0, {XIN}, {t0} offen offset:{256 * (slot - 1)}')
        a.e('s_mov_b64 exec, -1')
        a.e('v_lshlrev_b32 v58, 2, v0')
        a.e(f's_mul_i32 {t0}, {sJ}, 48')
        a.e(f's_cmp_eq_u32 {sRES}, 3')
        a.e(f's_cselect_b32 {t0}, {t0}, {OOB}')
        a.e(f'buffer_load_dword v5, v58, {XIN}, {t0} offen')
        a.tag_vm('x')
        for r in range(56, 60):
            a.e(f'v_mov_b32 v{r}, -1')
        a.e(f's_lshl_b32 {t0}, {sJ}, 2')
        a.e(f's_add_u32 {t0}, {t0}, {sV}')
        a.e(f's_lshl_b32 {t4}, {t0}, 9')
        a.e(f's_add_u32 {t4}, {t4}, {sL}')
        a.e(f's_lshl_b32 {t1}, {sX}, 7')
        a.e(f's_add_u32 {t0}, {t0}, {t1}')
        a.e(f's_mul_i32 {t1}, {t0}, 768')
        a.e(f's_add_u32 {t1}, {t1}, {GB}')
        a.e(f's_lshl_b32 {t5}, {t0}, 12')
        a.e(f's_add_u32 {t5}, {t5}, {CB}')
        a.e('v_lshlrev_b32 v60, 3, v0')
        a.e(f'buffer_store_dwordx2 v[56:57], v60, {WS}, {t4} offen sc1')
        a.e('v_mul_u32_u24 v60, 12, v0')
        a.e(f'buffer_store_dwordx3 v[56:58], v60, {WS}, {t1} offen sc1')
        a.e('v_lshlrev_b32 v60, 4, v0')
        for i in range(4):
            a.e(f'buffer_store_dwordx4 v[56:59], v60, {WS}, {t5} offen offset:{i * 1024} sc1')
        a.tag_vm('clr')
        for ks in range(4):
            a.e(f'v_xor_b32 v{12 + ks}, {ks << 6}, {vA}')

    def pv_block(self, U):
        a = self.a
        a.e(f'v_add_u32 v63, {sW8}, {vSP}')
        a.e(f'ds_read_b128 v[20:23], v63 offset:{6144 + 128 * U}')
        a.e('s_waitcnt lgkmcnt(0)')
        for e in range(8):
            a.e(f'v_smfmac_f32_16x16x64_bf16 {vr(24 + 4 * e, 4)}, v[20:23], {vr(64 + 64 * U + 8 * e, 8)}, v1')

    def stream(self):
        a = self.a
        o = self.o
        for t in range(28):
            a.wait(vm=f'tile{t}')
            slot = (t & 3) * 4096
            if t < 16:
                for ks in range(4):
                    a.e(f'ds_read_b128 a[{16 * t + 4 * ks}:{16 * t + 4 * ks + 3}], v{12 + ks} offset:{slot}')
            else:
                u = t - 16
                if u == 0:
                    for e in range(8):
                        a.e(f'v_xor_b32 v{12 + e}, {e << 5}, {vT}')
                for e in range(8):
                    a.e(f'ds_read_b64_tr_b16 {vr(64 + 64 * (u >> 2) + 8 * e + 2 * (u & 3), 2)}, v{12 + e} offset:{slot}')
            a.e('s_waitcnt lgkmcnt(0)')
            self.dma_tile(t + 4)
            if t == 4:
                a.wait(vm='clr')
                a.e('v_lshlrev_b32 v60, 6, v0')
                a.e(f'buffer_load_dword v61, v60, {WS}, {t5} offen')
                a.e('v_and_b32 v60, 0x1ff, v60')
                a.e(f'buffer_load_dword v61, v60, {WS}, {t4} offen')
                a.tag_vm('touch')
                a.e('v_lshlrev_b32 v4, 16, v5')
                a.e('v_and_b32 v5, 0xffff0000, v5')
            if t == 9:
                a.wait(vm='touch')
                self.lnq_prep()
                a.wait(ds='wqr')
                for slot in range(5):
                    self.lnq_mfma(slot, slot == 0)
                self.lnq_reduce()
                l = self.wave_only(0)
                self.lnq_final('v56')
                self.end_only(l)
            if t == 5:
                a.e('s_barrier')
                l = self.wave_only(1)
                a.e('s_getreg_b32 s74, hwreg(HW_REG_XCC_ID, 0, 3)')
                a.e('s_lshl_b32 s74, s74, 3')
                a.e('s_lshl_b64 s[74:75], 1, s74')
                a.e('v_mov_b32 v58, s74')
                a.e('v_mov_b32 v59, s75')
                a.e(f's_lshl_b32 {t0}, {sX}, 5')
                a.e('s_mov_b64 exec, 1')
                a.e(f'buffer_atomic_add_x2 v[58:59], v0, {DBG}, {t0} offen sc1')
                a.e('s_mov_b64 exec, -1')
                self.end_only(l)
            if t == 10:
                a.e('v_and_b32 v60, 7, v0')
                a.e('v_lshlrev_b32 v60, 5, v60')
                a.e(f'buffer_load_dwordx2 v[58:59], v60, {DBG}, 0 offen sc1')
                a.tag_vm('cnt')
            if t == 14:
                chk, retry, done = a.lab('chk'), a.lab('cretry'), a.lab('cdone')
                a.wait(vm='cnt')
                a.e(f'{chk}:')
                a.e('v_sad_u8 v61, v58, 0, 0')
                a.e('v_sad_u8 v61, v59, 0, v61')
                a.e('v_cmp_ne_u32 vcc, 32, v61')
                a.e(f's_cbranch_vccnz {retry}')
                a.e(f'{done}:')
                a.ool(f'{retry}:\ns_add_u32 {sPOLL}, {sPOLL}, 1\ns_cmp_gt_u32 {sPOLL}, 100000\ns_cbranch_scc1 {done}\n'
                      f'buffer_load_dwordx2 v[58:59], v60, {DBG}, 0 offen sc1\ns_waitcnt vmcnt(0)\ns_branch {chk}')
                a.e('s_getreg_b32 s74, hwreg(HW_REG_XCC_ID, 0, 3)')
                a.e('s_lshl_b32 s74, s74, 3')
                a.e('s_lshl_b64 s[74:75], 32, s74')
                a.e(f'v_readlane_b32 {t2}, v58, {sX}')
                a.e(f'v_readlane_b32 {t3}, v59, {sX}')
                a.e(f's_cmp_eq_u64 s[74:75], s[70:71]')
                a.e(f's_cselect_b32 {sLOC}, {0 if o.get("force_slow") else 1}, 0')
                l = self.wave_only(0)
                self.publish_q('v56', L_QA, 'v60', 'v61')
                self.end_only(l)
                self.dma_wo(WO, 'v60', 'v61')
            if t == 17:
                self.q_addr()
                self.q_issue(L_QA, 56)
            if t == 21:
                chk, retry, done = a.lab('chk'), a.lab('qretry'), a.lab('qdone')
                a.wait(vm='q')
                a.e(f'{chk}:')
                self.maxchain('v20', range(56, 64), True)
                a.e('v_cmp_eq_u32 vcc, -1, v20')
                a.e(f's_cbranch_vccnz {retry}')
                a.e(f'{done}:')
                a.ool(f'{retry}:\ns_add_u32 {sPOLL}, {sPOLL}, 1\ns_cmp_gt_u32 {sPOLL}, 100000\ns_cbranch_scc1 {done}\n'
                      f'buffer_load_dwordx4 v[56:59], {vSP}, {WS}, {t4} offen offset:{L_QA} sc1\n'
                      f'buffer_load_dwordx4 v[60:63], {vSP}, {WS}, {t4} offen offset:{L_QA + 128} sc1\n'
                      f's_waitcnt vmcnt(0)\ns_branch {chk}')
                self.qk_softmax(56, 24, 40, 44)
                a.e('v_mov_b32 v57, v44')
                for l in self.lsum('v57'):
                    a.e(l)
                for r in range(24, 56, 4):
                    a.e(f'v_mov_b64 {vr(r, 2)}, 0')
                a.e('s_waitcnt lgkmcnt(0)')
            if t in (22, 23, 24, 25):
                self.dma_ckv(t - 22)
            if t == 22:
                self.pv_block(0)
            if t == 24:
                self.pv_block(1)
        self.pv_block(2)
        a.e(f'ds_read_b128 v[20:23], v63 offset:{6144 + 128 * 3}')
        a.e('v_mov_b32 v9, v57')
        a.wait(vm='tile31')
        self.stamp('kvdone')
        SLOT = [56, 10]

        def vread(e, s):
            a.e(f'v_xor_b32 v18, {e << 5}, {vT}')
            for t in range(4):
                a.e(f'ds_read_b64_tr_b16 {vr(s + 2 * t, 2)}, v18 offset:{t * 4096}')
            a.tag_ds(f'v{e}')
        vread(0, SLOT[0])
        vread(1, SLOT[1])
        for e in range(8):
            a.wait(ds=f'v{e}')
            a.e(f'v_smfmac_f32_16x16x64_bf16 {vr(24 + 4 * e, 4)}, v[20:23], {vr(SLOT[e & 1], 8)}, v1')
            if e + 2 < 8:
                vread(e + 2, SLOT[e & 1])
        for e in range(8):
            a.e(f'v_add_f32_dpp v{12 + (e >> 2)}, v{24 + 4 * e}, v{25 + 4 * e} {DPPI} row_mask:{1 << (e & 3)} bank_mask:0xf')
        self.combine_write(12, 9, 8)
        self.stamp('pv1')

    def build(self):
        a = self.a
        o = self.o
        self.prologue()
        self.stream()
        n0 = self.nst
        a.e('L_top:')
        a.e('s_nop 1')
        self.combine_publish()
        self.stamp('opub')
        a.vmq.append(['wo', ()])
        self.outproj(True, BWQ)
        self.dma_wq(BWQ, 'v62')
        self.touch_wuk('v60', 'v13')
        self.lnq_tail(G_YA, L_QB, True)
        self.qabs()
        self.attn_b()
        self.red()
        self.uv()
        self.outproj(False, WQ)
        a.e(f's_cmp_eq_u32 {sIT}, 1')
        a.e('s_cbranch_scc1 L_final')
        self.dma_wq(WQ, 'v62')
        a.e(f's_add_u32 {sL}, {sL}, {L_IT}')
        self.lnq_tail(G_YB, L_QA, False)
        a.e(f's_add_u32 {sG}, {sG}, {G_IT}')
        a.e(f's_mov_b32 {sIT}, 1')
        self.attn_a3()
        if o.get('stamps'):
            a.e(f's_mov_b32 {sST}, {self.nst - n0}')
        self.nper = self.nst - n0
        self.n0 = n0
        a.e('s_branch L_top')
        a.e('L_final:')
        a.e(f's_cmp_lg_u32 {sRES}, 3')
        a.e('s_cbranch_scc1 L_fin2')
        self.resid_loads(G_YB, 24, 'v23')
        self.sleep('fin')
        self.poll_begin()
        self.resid_issue(24, 'v23')
        a.e('s_waitcnt vmcnt(0)')
        self.maxchain('v22', range(24, 32), True)
        self.poll_end('v22')
        self.resid_sum(24)
        a.e('v_cvt_pk_bf16_f32 v4, v4, v5')
        a.e(f's_mul_i32 {t0}, {sJ}, 48')
        a.e(f'buffer_store_dword v4, v23, {OUT}, {t0} offen')
        a.e('s_mov_b64 exec, -1')
        a.e('L_fin2:')
        if o.get('stamps'):
            a.e('s_waitcnt vmcnt(0)')
            a.e('s_memrealtime s[84:85]')
            a.e('s_waitcnt lgkmcnt(0)')
            a.e('v_writelane_b32 v7, s84, 62')
            a.e(f'v_writelane_b32 v7, {sPOLL}, 63')
            a.e(f's_lshl_b32 {t0}, s2, 2')
            a.e(f's_add_u32 {t0}, {t0}, {sV}')
            a.e(f's_lshl_b32 {t0}, {t0}, 8')
            a.e(f's_add_u32 {t0}, {t0}, {STAMP}')
            a.e('v_lshlrev_b32 v8, 2, v0')
            a.e(f'buffer_store_dword v7, v8, {WS}, {t0} offen')
        a.e('L_end:')
        a.e('s_endpgm')
        body = a.finish()
        ref = open('cdna_kernels/' + NAME + '.s.ref').read() if o.get('hdr', True) else ''
        hdr = ''.join(l + '\n' for l in ref.split('\n') if l.startswith(';') and '@launch' not in l and 'Override' not in l and 'grid=ceil' not in l)
        txt = hdr + '; @launch grid=(256,1,1) block=(256,1,1) lds=163840\n'
        txt += '.amdgcn_target "amdgcn-amd-amdhsa--gfx950"\n.text\n'
        txt += f'.globl {NAME}_kernel\n.p2align 8\n.type {NAME}_kernel,@function\n{NAME}_kernel:\n'
        txt += body
        txt += f"""L_codeend:
    s_endpgm
.section .rodata,"a"
.p2align 6
.amdhsa_kernel {NAME}_kernel
  .amdhsa_next_free_vgpr 512
  .amdhsa_next_free_sgpr 102
  .amdhsa_accum_offset 256
  .amdhsa_group_segment_fixed_size 0
  .amdhsa_kernarg_size 112
  .amdhsa_user_sgpr_count 2
  .amdhsa_user_sgpr_kernarg_segment_ptr 1
  .amdhsa_system_sgpr_workgroup_id_x 1
.end_amdhsa_kernel
"""
        return txt


DEFAULT = dict(sleep=dict(h2=8, ha=8, hc2=6, fin=10))

if __name__ == '__main__':
    import json
    opt = dict(DEFAULT)
    out = sys.argv[1]
    if len(sys.argv) > 2:
        opt.update(json.loads(sys.argv[2]))
    g = Gen(opt)
    open(out, 'w').write(g.build())
    print('nops', g.a.nops, 'stamps', g.stnames, g.n0, g.nper)
```

```python
import sys, math, struct
from asmlib import Asm

NAME = 'interleave_layers__mha_block_cached__compressed_kv_cla__decode'


def f32(x):
    return '0x%08x' % struct.unpack('<I', struct.pack('<f', x))[0]


L_QA, L_QB, L_OAL, L_C1ML, L_OA, L_OB = 0, 1024, 2048, 4096, 8192, 16384
L_IT = 32768
GB, G_IT = 0x80000, 393216
G_YA, G_YB, G_QABS, G_C2 = 0, 0x2800, 0x8000, 0x10000
CB = 0x200000
STAMP = 0x800000
WS_SIZE = 0x1000000
OOB = 0x40000000
CKV = 65536
STG = 131072
ZML = STG + 7168
ZO = STG + 8192 + 7168
ZL = STG + 2 * 8192 + 7168
K_, V_, WQ, WO, CK, BWQ, WUK, WUV, BWO, WS, OUT, DBG, XIN = ['s[%d:%d]' % (4 + 4 * i, 7 + 4 * i) for i in range(13)]
sX, sJ, sH, sS, sV, sL, sG, sIT, sLOC, sW8, sKV, sKG = ['s%d' % i for i in range(56, 68)]
t0, t1, t2, t3, t4, t5 = ['s%d' % i for i in range(68, 74)]
sM, sPOLL = 's76', 's77'
M8 = 's[78:79]'
sHS = 's80'
sWO = 's81'
sRES = 's82'
sST = 's83'
vT, vA, vSP = 'v2', 'v3', 'v6'
TBL = [0, 8, 9, 1]
DPPI = 'quad_perm:[0,1,2,3]'
FULL = 'row_mask:0xf bank_mask:0xf'


def vr(a, n):
    return f'v[{a}:{a + n - 1}]' if n > 1 else f'v{a}'


class Gen:
    def __init__(self, opt):
        self.o = opt
        self.a = Asm()
        self.nst = 0
        self.stnames = []

    def stamp(self, name):
        if not self.o.get('stamps'):
            return
        a = self.a
        k = self.nst
        self.nst += 1
        self.stnames.append(name)
        a.e(f's_memrealtime s[84:85]')
        a.e('s_waitcnt lgkmcnt(0)')
        a.e(f's_add_u32 m0, {sST}, {k}')
        a.e(f'v_writelane_b32 v7, s84, m0')

    def lstore(self, lines):
        a = self.a
        slow, back = a.lab('slow'), a.lab('back')
        a.e(f's_cmp_eq_u32 {sLOC}, 0')
        a.e(f's_cbranch_scc1 {slow}')
        for l in lines:
            a.e(l)
        a.e(f'{back}:')
        a.ool(f'{slow}:\ns_nop 7\n' + '\n'.join(l + ' sc1' if l.startswith('buffer_') else l for l in lines) + f'\ns_branch {back}')

    def poll_begin(self):
        a = self.a
        self.ptop, self.pretry, self.pdone = a.lab('poll'), a.lab('retry'), a.lab('got')
        a.e(f'{self.ptop}:')

    def poll_end(self, vmax):
        a = self.a
        a.e(f'v_cmp_eq_u32 vcc, -1, {vmax}')
        a.e(f's_cbranch_vccnz {self.pretry}')
        a.e(f'{self.pdone}:')
        a.ool(f'{self.pretry}:\ns_add_u32 {sPOLL}, {sPOLL}, 1\ns_cmp_gt_u32 {sPOLL}, 100000\ns_cbranch_scc1 {self.pdone}\ns_nop 7\ns_branch {self.ptop}')

    def maxchain(self, vmax, regs, first):
        a = self.a
        regs = list(regs)
        if first:
            if len(regs) >= 3:
                a.e(f'v_max3_u32 {vmax}, v{regs[0]}, v{regs[1]}, v{regs[2]}')
                regs = regs[3:]
            elif len(regs) == 2:
                a.e(f'v_max_u32 {vmax}, v{regs[0]}, v{regs[1]}')
                regs = []
            else:
                a.e(f'v_mov_b32 {vmax}, v{regs[0]}')
                regs = []
        while len(regs) >= 2:
            a.e(f'v_max3_u32 {vmax}, {vmax}, v{regs[0]}, v{regs[1]}')
            regs = regs[2:]
        if regs:
            a.e(f'v_max_u32 {vmax}, {vmax}, v{regs[0]}')

    def sleep(self, key):
        n = self.o.get('sleep', {}).get(key, 0)
        if n:
            self.a.e(f's_sleep {n}')

    def wave_only(self, w):
        a = self.a
        self.wl = a.lab('notw')
        a.e(f's_cmp_lg_u32 {sV}, {w}')
        a.e(f's_cbranch_scc1 {self.wl}')
        a.begin_skip()
        return self.wl

    def end_only(self, lab):
        self.a.end_skip()
        self.a.e(f'{lab}:')

    def pos_bytes(self, dst, tmp):
        a = self.a
        a.e(f'v_lshlrev_b32 {dst}, 3, v0')
        a.e(f'v_and_b32 {dst}, 16, {dst}')
        a.e(f'v_and_b32 {tmp}, 12, v0')
        a.e(f'v_or_b32 {dst}, {dst}, {tmp}')

    def dma_wq(self, srd, vt):
        a = self.a
        pol = self.o.get('pol_w', '')
        a.e(f'v_lshrrev_b32 {vt}, 1, v0')
        a.e(f'v_lshlrev_b32 {vt}, 13, {vt}')
        a.e(f'v_and_b32 v63, 1, v0')
        a.e(f'v_lshl_or_b32 {vt}, v63, 4, {vt}')
        a.e(f's_lshl_b32 {t0}, {sV}, 18')
        a.e(f's_add_u32 {t0}, {t0}, {sHS}')
        for slot in range(5):
            ks = 16 if slot == 0 else 4 * (slot - 1)
            a.e(f's_add_u32 {t1}, {t0}, {ks * 262144}')
            a.e(f's_add_u32 m0, {sW8}, {slot * 1024}')
            a.e(f'buffer_load_dwordx4 {vt}, {srd}, {t1} offen {pol} lds')
        a.tag_vm('wq')

    def dma_wo(self, srd, va, vb):
        a = self.a
        pol = self.o.get('pol_w', '')
        a.e(f's_add_u32 {t1}, {sWO}, {64 * 1152}')
        for i in range(3):
            a.e(f'v_add_u32 {va}, {64 * i}, v0')
            a.e(f'v_mul_u32_u24 {vb}, 21846, {va}')
            a.e(f'v_lshrrev_b32 {vb}, 16, {vb}')
            a.e(f'v_lshlrev_b32 {va}, 4, {va}')
            a.e(f'v_mul_u32_u24 {vb}, {1152 - 48}, {vb}')
            a.e(f'v_add_u32 {va}, {va}, {vb}')
            a.e(f's_add_u32 m0, {sW8}, {i * 1024}')
            a.e(f'buffer_load_dwordx4 {va}, {srd}, {sWO} offen {pol} lds')
            a.e(f's_add_u32 m0, {sW8}, {(i + 3) * 1024}')
            a.e(f'buffer_load_dwordx4 {va}, {srd}, {t1} offen {pol} lds')
        a.tag_vm('wo')

    def dma_wuv(self, vt, vu):
        a = self.a
        pol = self.o.get('pol_w', '')
        a.e(f'v_lshrrev_b32 {vt}, 1, v0')
        a.e(f'v_lshlrev_b32 {vt}, 13, {vt}')
        a.e(f'v_and_b32 {vu}, 1, v0')
        a.e(f'v_lshl_or_b32 {vt}, {vu}, 4, {vt}')
        a.e(f's_lshl_b32 {t0}, {sV}, 20')
        a.e(f's_add_u32 {t0}, {t0}, {sHS}')
        for i in range(4):
            a.e(f's_add_u32 {t1}, {t0}, {i * 262144}')
            a.e(f's_add_u32 m0, {sW8}, {4096 + i * 1024}')
            a.e(f'buffer_load_dwordx4 {vt}, {WUV}, {t1} offen {pol} lds')
        a.tag_vm('wuv')

    def wuk_base(self):
        a = self.a
        a.e(f's_lshl_b32 {t0}, {sS}, 2')
        a.e(f's_add_u32 {t0}, {t0}, {sV}')
        a.e(f's_lshl_b32 {t0}, {t0}, 17')
        a.e(f's_lshl_b32 {t1}, {sH}, 8')
        a.e(f's_add_u32 {t0}, {t0}, {t1}')

    def touch_wuk(self, vt, vu):
        a = self.a
        pol = self.o.get('pol_w', '')
        self.wuk_base()
        a.e(f'v_and_b32 {vt}, 15, v0')
        a.e(f'v_lshlrev_b32 {vt}, 13, {vt}')
        a.e(f'v_lshrrev_b32 {vu}, 4, v0')
        a.e(f'v_lshl_or_b32 {vt}, {vu}, 6, {vt}')
        a.e(f'buffer_load_dword {vu}, {vt}, {WUK}, {t0} offen {pol}')

    def load_wuk(self, base, vt, vu):
        a = self.a
        self.wuk_base()
        a.e(f'v_and_b32 {vt}, 15, v0')
        a.e(f'v_lshlrev_b32 {vt}, 13, {vt}')
        a.e(f'v_and_b32 {vu}, 48, v0')
        a.e(f'v_or_b32 {vt}, {vt}, {vu}')
        for ks in range(4):
            a.e(f'buffer_load_dwordx4 {vr(base + 4 * ks, 4)}, {vt}, {WUK}, {t0} offen offset:{ks * 64}')
        a.tag_vm('wuk')

    def lnq_prep(self):
        a = self.a
        a.e('v_lshrrev_b32 v56, 4, v0')
        a.e('v_and_b32 v57, 15, v0')
        a.e('v_lshlrev_b32 v57, 3, v57')
        a.e('v_lshl_or_b32 v56, v56, 8, v57')
        a.e(f'v_add_u32 v56, {sW8}, v56')
        a.wait(vm='wq')
        for slot in range(5):
            for half in range(2):
                a.e(f'ds_read_b64_tr_b16 {vr(36 + 4 * slot + 2 * half, 2)}, v56 offset:{slot * 1024 + half * 128}')
        a.tag_ds('wqr')

    def lnq_mfma(self, slot, first):
        a = self.a
        A = vr(16 + 4 * slot, 4)
        B = vr(36 + 4 * slot, 4)
        c1 = '0' if first else 'v[56:59]'
        c2 = '0' if first else 'v[60:63]'
        a.e(f'v_mfma_f32_16x16x32_bf16 v[56:59], {A}, {B}, {c1}')
        a.e(f'v_mfma_f32_16x16x32_bf16 v[60:63], {A}, {A}, {c2}')

    def lnq_gather(self, goff):
        a = self.a
        for r in range(16, 36):
            a.e(f'v_mov_b32 v{r}, 0x3f803f80')
        a.e('v_and_b32 v14, 7, v0')
        a.e('v_mul_u32_u24 v14, 1152, v14')
        a.e('v_and_b32 v15, 48, v0')
        a.e('v_add_u32 v14, v14, v15')
        a.e(f's_lshl_b32 {t0}, {sV}, 6')
        a.e(f's_add_u32 {t0}, {t0}, {sG}')
        a.e(f's_add_u32 {t0}, {t0}, {goff}')
        a.e(f's_cmp_lt_u32 {sV}, 2')
        a.e(f's_cselect_b32 {t1}, {t0}, {OOB}')
        a.wait(ds='wqr')
        self.sleep('h2')
        self.poll_begin()
        a.e(f's_mov_b64 exec, {M8}')
        a.e(f'buffer_load_dwordx4 v[16:19], v14, {WS}, {t1} offen offset:1024 sc1')
        a.tag_vm('y0')
        for slot in range(1, 5):
            a.e(f'buffer_load_dwordx4 {vr(16 + 4 * slot, 4)}, v14, {WS}, {t0} offen offset:{256 * (slot - 1)} sc1')
            a.tag_vm(f'y{slot}')
        a.e('s_mov_b64 exec, -1')
        for slot in range(5):
            a.wait(vm=f'y{slot}')
            self.lnq_mfma(slot, slot == 0)
            self.maxchain('v15', range(16 + 4 * slot, 20 + 4 * slot), slot == 0)
        self.poll_end('v15')

    def lnq_reduce(self):
        a = self.a
        a.e(f's_lshl_b32 {t0}, {sV}, 2')
        a.e(f's_add_u32 {t0}, {t0}, {ZL}')
        a.e(f'v_lshl_add_u32 v20, v0, 4, {t0}')
        a.e('v_pk_add_f32 v[16:17], v[56:57], v[58:59]')
        a.e('v_pk_add_f32 v[18:19], v[60:61], v[62:63]')
        a.e('v_add_f32 v16, v16, v17')
        a.e('v_add_f32 v18, v18, v19')
        a.e('v_permlane16_swap_b32 v16, v18')
        a.e('v_add_f32 v16, v16, v18')
        a.e('v_add_f32_dpp v16, v16, v16 quad_perm:[1,0,3,2] row_mask:0x2 bank_mask:0xf')
        a.e('v_add_f32_dpp v16, v16, v16 quad_perm:[2,3,0,1] row_mask:0x2 bank_mask:0xf')
        a.e('v_add_f32_dpp v16, v16, v16 row_half_mirror row_mask:0x2 bank_mask:0xf')
        a.e('ds_write_b32 v20, v16')
        a.e('v_and_b32 v17, 15, v0')
        a.e(f'v_mov_b32 v18, {ZL}')
        a.e('v_lshl_add_u32 v17, v17, 4, v18')
        a.e('s_waitcnt lgkmcnt(0)')
        a.e('s_barrier')

    def lnq_final(self, dst):
        a = self.a
        a.e('ds_read_b128 v[32:35], v18 offset:384')
        a.tag_ds('s1')
        a.e('ds_read_b128 v[28:31], v18 offset:256')
        a.tag_ds('s2')
        a.e('ds_read_b128 v[24:27], v17 offset:512')
        a.tag_ds('cs')
        a.e('ds_read_b128 v[20:23], v17')
        a.tag_ds('qq')
        a.wait(ds='s1')
        a.e('v_pk_add_f32 v[32:33], v[32:33], v[34:35]')
        a.e('v_add_f32 v32, v32, v33')
        a.e(f'v_mul_f32 v32, {f32(1.0 / (8 * 576))}, v32')
        a.wait(ds='s2')
        a.e('v_pk_add_f32 v[28:29], v[28:29], v[30:31]')
        a.e('v_add_f32 v28, v28, v29')
        a.e(f'v_mov_b32 v30, {f32(1e-5)}')
        a.e(f'v_fmamk_f32 v28, v28, {f32(1.0 / 576)}, v30')
        a.e('v_fma_f32 v28, -v32, v32, v28')
        a.e('v_max_f32 v28, v28, v30')
        a.e('v_rsq_f32 v28, v28')
        a.wait(ds='cs')
        a.e('v_pk_add_f32 v[24:25], v[24:25], v[26:27]')
        a.e('v_add_f32 v24, v24, v25')
        a.e('v_mul_f32 v32, 0x3e000000, v32')
        a.e(f'v_mul_f32 v28, {f32(math.log2(math.e) / math.sqrt(128.0))}, v28')
        a.wait(ds='qq')
        a.e('v_pk_add_f32 v[20:21], v[20:21], v[22:23]')
        a.e('v_add_f32 v20, v20, v21')
        a.e('v_fma_f32 v20, -v32, v24, v20')
        a.e('v_mul_f32 v20, v20, v28')
        a.e(f'v_mov_b32_dpp v21, v20 quad_perm:[1,0,3,2] {FULL}')
        a.e(f'v_cvt_pk_bf16_f32 {dst}, v20, v21')

    def publish_q(self, src, loff, va, vb):
        a = self.a
        self.pos_bytes(va, vb)
        a.e(f's_and_b32 {t0}, {sHS}, 1023')
        a.e(f's_add_u32 {t0}, {t0}, {sL}')
        a.e('s_mov_b64 exec, 0x5555')
        self.lstore([f'buffer_store_dword {src}, {va}, {WS}, {t0} offen offset:{loff}'])
        a.e('s_mov_b64 exec, -1')

    def resid_loads(self, goff, base, va):
        a = self.a
        a.e(f'v_lshlrev_b32 {va}, 2, v0')
        a.e(f's_mul_i32 {t2}, {sJ}, 48')
        a.e(f's_add_u32 {t2}, {t2}, {sG}')
        a.e(f's_add_u32 {t2}, {t2}, {goff}')
        a.e(f's_add_u32 {t3}, {t2}, {4 * 1152}')
        a.e('s_mov_b64 exec, 0xfff')

    def resid_issue(self, base, va):
        a = self.a
        for i in range(8):
            so = t2 if i < 4 else t3
            a.e(f'buffer_load_dword v{base + i}, {va}, {WS}, {so} offen offset:{(i & 3) * 1152} sc1')
        a.tag_vm('res')

    def resid_sum(self, base):
        a = self.a
        a.e(f'v_lshlrev_b32 v4, 16, v{base}')
        a.e(f'v_and_b32 v5, 0xffff0000, v{base}')
        for i in range(1, 8):
            a.e(f'v_lshlrev_b32 v{base}, 16, v{base + i}')
            a.e(f'v_and_b32 v{base + i}, 0xffff0000, v{base + i}')
            a.e(f'v_add_f32 v4, v4, v{base}')
            a.e(f'v_add_f32 v5, v5, v{base + i}')

    def lnq_tail(self, goff, loff, isb):
        a = self.a
        self.lnq_prep()
        self.lnq_gather(goff)
        self.stamp('h2got')
        if isb:
            self.load_wuk(40, 'v14', 'v15')
        self.lnq_reduce()
        l = self.wave_only(0)
        self.lnq_final('v20')
        self.publish_q('v20', loff, 'v21', 'v22')
        self.end_only(l)
        l2 = a.lab('nores')
        a.e(f's_cmp_lg_u32 {sRES}, 3')
        a.e(f's_cbranch_scc1 {l2}')
        a.begin_skip()
        self.resid_loads(goff, 24, 'v23')
        self.resid_issue(24, 'v23')
        a.e('s_waitcnt vmcnt(0)')
        self.resid_sum(24)
        a.e('s_mov_b64 exec, -1')
        a.end_skip()
        a.e(f'{l2}:')
        self.stamp('qpub')

    def q_issue(self, loff, base):
        a = self.a
        a.e(f'buffer_load_dwordx4 {vr(base, 4)}, {vSP}, {WS}, {t4} offen offset:{loff} sc1')
        a.e(f'buffer_load_dwordx4 {vr(base + 4, 4)}, {vSP}, {WS}, {t4} offen offset:{loff + 128} sc1')
        a.tag_vm('q')

    def q_addr(self):
        a = self.a
        a.e(f's_and_b32 {t4}, {sHS}, 0x300')
        a.e(f's_add_u32 {t4}, {t4}, {sL}')

    def q_gather(self, loff, base, vmax):
        a = self.a
        self.q_addr()
        self.sleep('hq')
        self.poll_begin()
        self.q_issue(loff, base)
        a.wait(vm='q')
        self.maxchain(vmax, range(base, base + 8), True)
        self.poll_end(vmax)

    def qk_softmax(self, Q, D, S, T):
        a = self.a
        a.e(f'v_mov_b64 {vr(D, 2)}, 0')
        for t in range(19):
            if t >= 3:
                d = D + 4 * ((t - 3) & 3)
                a.e(f'v_add_f32_dpp v{S + ((t - 3) & 3)}, v{d}, v{d + 1} {DPPI} row_mask:{1 << ((t - 3) >> 2)} bank_mask:0xf')
            if t + 1 < 16:
                a.e(f'v_mov_b64 {vr(D + 4 * ((t + 1) & 3), 2)}, 0')
            if t < 16:
                d = vr(D + 4 * (t & 3), 4)
                a.e(f'v_smfmac_f32_16x16x64_bf16 {d}, {vr(Q, 4)}, a[{16 * t}:{16 * t + 7}], v1')
                a.e(f'v_smfmac_f32_16x16x64_bf16 {d}, {vr(Q + 4, 4)}, a[{16 * t + 8}:{16 * t + 15}], v1')
            if t == 15:
                a.e(f'v_lshrrev_b32 v{T + 1}, 4, v0')
                a.e(f'v_lshlrev_b32 v{T + 1}, 7, v{T + 1}')
                a.e(f'v_and_b32 v{T + 2}, 8, v0')
                a.e(f'v_lshl_or_b32 v{T + 1}, v{T + 2}, 2, v{T + 1}')
                a.e(f'v_and_b32 v{T + 2}, 2, v0')
                a.e(f'v_lshl_or_b32 v{T + 1}, v{T + 2}, 3, v{T + 1}')
                a.e(f'v_and_b32 v{T + 2}, 5, v0')
                a.e(f'v_lshl_or_b32 v{T + 1}, v{T + 2}, 1, v{T + 1}')
                a.e(f'v_add_u32 v{T + 1}, {sW8}, v{T + 1}')
        m = f'v{T}'
        a.e(f'v_max3_f32 {m}, v{S}, v{S + 1}, v{S + 2}')
        a.e(f'v_max_f32 {m}, {m}, v{S + 3}')
        for c in ('row_ror:8', 'row_ror:4', 'row_ror:2', 'row_ror:1'):
            a.e(f'v_max_f32_dpp {m}, {m}, {m} {c} {FULL}')
        a.e(f'v_max_f32_dpp {m}, {m}, {m} row_bcast:15 row_mask:0xa bank_mask:0xf')
        a.e(f'v_max_f32_dpp {m}, {m}, {m} row_bcast:31 row_mask:0xc bank_mask:0xf')
        a.e(f'v_readlane_b32 {sM}, {m}, 63')
        for r in range(4):
            a.e(f'v_subrev_f32 v{S + r}, {sM}, v{S + r}')
        for r in range(4):
            a.e(f'v_exp_f32 v{S + r}, v{S + r}')
        a.e(f'v_cvt_pk_bf16_f32 v{T + 2}, v{S}, v{S + 1}')
        a.e(f'v_cvt_pk_bf16_f32 v{T + 3}, v{S + 2}, v{S + 3}')
        a.e(f'ds_write_b16 v{T + 1}, v{T + 2} offset:6144')
        a.e(f'ds_write_b16_d16_hi v{T + 1}, v{T + 2} offset:{6144 + 4}')
        a.e(f'ds_write_b16 v{T + 1}, v{T + 3} offset:{6144 + 64}')
        a.e(f'ds_write_b16_d16_hi v{T + 1}, v{T + 3} offset:{6144 + 68}')
        a.e(f'v_pk_add_f32 {vr(S, 2)}, {vr(S, 2)}, {vr(S + 2, 2)}')
        a.e(f'v_add_f32 {m}, v{S}, v{S + 1}')

    def lsum(self, l):
        out = []
        for c in ('row_ror:8', 'row_ror:4', 'row_ror:2', 'row_ror:1'):
            out.append(f'v_add_f32_dpp {l}, {l}, {l} {c} {FULL}')
        out.append(f'v_add_f32_dpp {l}, {l}, {l} row_bcast:15 row_mask:0xa bank_mask:0xf')
        out.append(f'v_add_f32_dpp {l}, {l}, {l} row_bcast:31 row_mask:0xc bank_mask:0xf')
        return out

    def combine_write(self, O, l, T):
        a = self.a
        a.e(f'v_lshl_add_u32 v{T + 2}, v0, 2, {sW8}')
        a.e(f'ds_write2st64_b32 v{T + 2}, v{O}, v{O + 1} offset0:26 offset1:27')
        a.e(f's_lshl_b32 {t0}, {sV}, 3')
        a.e(f's_add_u32 {t0}, {t0}, {ZML}')
        a.e(f'v_mov_b32 v{T + 3}, {t0}')
        a.e(f'v_mov_b32 v{T}, {sM}')
        a.e('s_mov_b32 exec_lo, 0')
        a.e('s_brev_b32 exec_hi, 1')
        a.e(f'ds_write_b64 v{T + 3}, {vr(T, 2)}')
        a.e('s_mov_b64 exec, -1')
        a.e('s_waitcnt lgkmcnt(0)')

    def combine_publish(self):
        a = self.a
        a.e(f'v_mov_b32 v9, {ZML}')
        a.e(f'v_mov_b32 v10, {STG + 6656}')
        a.e('v_lshl_add_u32 v8, v0, 3, v10')
        a.e('s_barrier')
        l = self.wave_only(0)
        a.e('ds_read_b128 v[12:15], v9')
        a.e('ds_read_b128 v[16:19], v9 offset:16')
        a.tag_ds('ml')
        for w in range(4):
            a.e(f'ds_read_b64 {vr(20 + 2 * w, 2)}, v8 offset:{w * 8192}')
            a.tag_ds(f'o{w}')
        a.e('v_and_b32 v10, 56, v0')
        a.e('v_and_b32 v11, 1, v0')
        a.e('v_lshl_or_b32 v10, v11, 2, v10')
        a.e('v_bfe_u32 v11, v0, 1, 2')
        a.e('v_or_b32 v10, v10, v11')
        a.e('v_lshlrev_b32 v10, 2, v10')
        a.e(f's_lshl_b32 {t0}, {sJ}, 8')
        a.e(f's_add_u32 {t0}, {t0}, {sL}')
        a.e(f's_add_u32 {t0}, {t0}, {L_OA}')
        a.e(f's_lshl_b32 {t1}, {sJ}, 2')
        a.e(f's_add_u32 {t1}, {t1}, {sL}')
        a.wait(ds='ml')
        a.e('v_max3_f32 v28, v12, v14, v16')
        a.e('v_max_f32 v28, v28, v18')
        for w in range(4):
            a.e(f'v_sub_f32 v{12 + 2 * w}, v{12 + 2 * w}, v28')
        for w in range(4):
            a.e(f'v_exp_f32 v{12 + 2 * w}, v{12 + 2 * w}')
        a.e('v_mul_f32 v29, v12, v13')
        a.e('v_fmac_f32 v29, v14, v15')
        a.e('v_fmac_f32 v29, v16, v17')
        a.e('v_fmac_f32 v29, v18, v19')
        a.e('v_rcp_f32 v30, v29')
        a.e('v_log_f32 v29, v29')
        a.wait(ds='o3')
        a.e('v_pk_mul_f32 v[20:21], v[20:21], v[12:13] op_sel_hi:[1,0]')
        for w in range(1, 4):
            a.e(f'v_pk_fma_f32 v[20:21], {vr(20 + 2 * w, 2)}, {vr(12 + 2 * w, 2)}, v[20:21] op_sel_hi:[1,0,1]')
        a.e('v_pk_mul_f32 v[20:21], v[20:21], v[30:31] op_sel_hi:[1,0]')
        a.e('v_add_f32 v29, v29, v28')
        a.e('v_cvt_pk_bf16_f32 v20, v20, v21')
        self.lstore([f'buffer_store_dword v20, v10, {WS}, {t0} offen',
                     's_mov_b64 exec, 1',
                     f'buffer_store_dword v29, v10, {WS}, {t1} offen offset:{L_OAL}',
                     's_mov_b64 exec, -1'])
        self.end_only(l)

    def w8(self, lw, t):
        a = self.a
        a.e(f'v_max_f32_dpp {t}, {lw}, {lw} row_ror:4 {FULL}')
        a.e(f'v_max_f32_dpp {t}, {t}, {t} row_ror:2 {FULL}')
        a.e(f'v_max_f32_dpp {t}, {t}, {t} row_ror:1 {FULL}')
        a.e(f'v_sub_f32 {lw}, {lw}, {t}')
        a.e(f'v_exp_f32 {lw}, {lw}')
        a.e(f'v_add_f32_dpp {t}, {lw}, {lw} row_ror:4 {FULL}')
        a.e(f'v_add_f32_dpp {t}, {t}, {t} row_ror:2 {FULL}')
        a.e(f'v_add_f32_dpp {t}, {t}, {t} row_ror:1 {FULL}')
        a.e(f'v_rcp_f32 {t}, {t}')
        a.e(f'v_mul_f32 {lw}, {lw}, {t}')

    def rot8(self, dst, tmp):
        a = self.a
        a.e(f'v_lshrrev_b32 {tmp}, 3, v0')
        a.e(f'v_and_b32 {tmp}, 6, {tmp}')
        a.e(f'v_add_u32 {dst}, v0, {tmp}')
        a.e(f'v_and_b32 {dst}, 7, {dst}')

    def outproj(self, isa, next_srd):
        a = self.a
        loff = L_OA if isa else L_OB
        a.e('v_lshrrev_b32 v28, 4, v0')
        a.e('v_bfe_u32 v29, v0, 2, 2')
        a.e('v_lshl_add_u32 v28, v28, 3, v29')
        a.e('v_mul_u32_u24 v28, 48, v28')
        a.e('v_and_b32 v29, 3, v0')
        a.e('v_lshl_add_u32 v28, v29, 3, v28')
        a.e(f'v_add_u32 v28, {sW8}, v28')
        a.wait(vm='wo')
        for tile in range(2):
            for blk in range(2):
                for hh in range(2):
                    for half in range(2):
                        off = (64 * blk + 32 * hh + 4 * half) * 48 + 32 * tile
                        a.e(f'ds_read_b64_tr_b16 {vr(32 + 16 * tile + 8 * blk + 4 * hh + 2 * half, 2)}, v28 offset:{off}')
        a.e('v_bfe_u32 v29, v0, 1, 3')
        a.e(f'v_lshl_add_u32 v29, v29, 8, {vSP}')
        a.e(f's_lshl_b32 {t0}, {sV}, 11')
        a.e(f's_add_u32 {t0}, {t0}, {sL}')
        a.e(f's_add_u32 {t0}, {t0}, {loff}')
        if isa:
            self.rot8('v30', 'v31')
            a.e('v_lshlrev_b32 v30, 2, v30')
            a.e(f's_lshl_b32 {t1}, {sV}, 5')
            a.e(f's_add_u32 {t1}, {t1}, {sL}')
        a.e('v_and_b32 v18, 15, v0')
        a.e('v_lshrrev_b32 v19, 5, v0')
        a.e('v_lshl_add_u32 v18, v19, 4, v18')
        a.e('v_bfe_u32 v19, v0, 4, 1')
        a.e('v_lshlrev_b32 v19, 2, v19')
        a.e('v_lshl_add_u32 v18, v18, 5, v19')
        a.e(f's_lshl_b32 {t2}, {sV}, 3')
        a.e(f's_add_u32 {t2}, {t2}, {ZO}')
        a.e(f'v_add_u32 v18, {t2}, v18')
        for r in range(20, 28, 2):
            a.e(f'v_mov_b64 {vr(r, 2)}, 0')
        a.e('s_waitcnt lgkmcnt(0)')
        self.sleep('h1' if isa else 'hd')
        self.poll_begin()
        if isa:
            a.e(f'buffer_load_dword v16, v30, {WS}, {t1} offen offset:{L_OAL} sc1')
        a.e(f'buffer_load_dwordx4 v[8:11], v29, {WS}, {t0} offen sc1')
        a.e(f'buffer_load_dwordx4 v[12:15], v29, {WS}, {t0} offen offset:128 sc1')
        a.tag_vm('o')
        a.wait(vm='o')
        self.maxchain('v17', list(range(8, 17 if isa else 16)), True)
        self.poll_end('v17')
        self.stamp('ogot')
        a.e('v_smfmac_f32_16x16x64_bf16 v[20:23], v[8:11], v[32:39], v1')
        a.e('v_smfmac_f32_16x16x64_bf16 v[24:27], v[8:11], v[48:55], v1')
        a.e('v_smfmac_f32_16x16x64_bf16 v[20:23], v[12:15], v[40:47], v1')
        a.e('v_smfmac_f32_16x16x64_bf16 v[24:27], v[12:15], v[56:63], v1')
        if isa:
            self.w8('v16', 'v17')
            a.e('v_add_f32 v20, v20, v21')
            a.e('v_add_f32 v22, v22, v23')
            a.e('v_add_f32 v24, v24, v25')
            a.e('v_add_f32 v26, v26, v27')
            a.e(f'v_mul_f32_dpp v20, v16, v20 row_newbcast:0 {FULL}')
            a.e(f'v_mul_f32_dpp v24, v16, v24 row_newbcast:0 {FULL}')
            a.e(f'v_fmac_f32_dpp v20, v16, v22 row_newbcast:1 {FULL}')
            a.e(f'v_fmac_f32_dpp v24, v16, v26 row_newbcast:1 {FULL}')
        else:
            a.e('v_pk_add_f32 v[20:21], v[20:21], v[22:23]')
            a.e('v_pk_add_f32 v[24:25], v[24:25], v[26:27]')
            a.e('v_add_f32 v20, v20, v21')
            a.e('v_add_f32 v24, v24, v25')
        a.e('v_permlane32_swap_b32 v20, v24')
        a.e('v_add_f32 v20, v20, v24')
        a.e('ds_write_b32 v18, v20')
        a.e(f'v_mov_b32 v19, {ZO}')
        a.e('v_and_b32 v21, 15, v0')
        a.e('v_lshl_add_u32 v19, v21, 6, v19')
        a.e('s_waitcnt lgkmcnt(0)')
        a.e('s_barrier')
        l = a.lab('noy')
        a.e(f's_bitcmp0_b32 {sRES}, 0')
        a.e(f's_cbranch_scc1 {l}')
        a.begin_skip()
        for i in range(4):
            a.e(f'ds_read_b128 {vr(32 + 4 * i, 4)}, v19 offset:{16 * i}')
            a.tag_ds(f'z{i}')
        a.e('v_lshlrev_b32 v21, 2, v0')
        a.e(f's_mul_i32 {t0}, {sJ}, 48')
        a.e(f's_mul_i32 {t1}, {sX}, 1152')
        a.e(f's_add_u32 {t0}, {t0}, {t1}')
        a.e(f's_add_u32 {t0}, {t0}, {sG}')
        a.e(f's_add_u32 {t0}, {t0}, {G_YA if isa else G_YB}')
        a.wait(ds='z1')
        a.e('v_pk_add_f32 v[32:33], v[32:33], v[34:35]')
        a.e('v_pk_add_f32 v[36:37], v[36:37], v[38:39]')
        a.e('v_pk_add_f32 v[32:33], v[32:33], v[36:37]')
        a.e('v_add_f32 v32, v32, v33')
        a.wait(ds='z3')
        a.e('v_pk_add_f32 v[40:41], v[40:41], v[42:43]')
        a.e('v_pk_add_f32 v[44:45], v[44:45], v[46:47]')
        a.e('v_pk_add_f32 v[40:41], v[40:41], v[44:45]')
        a.e('v_add_f32 v33, v40, v41')
        a.e('v_pk_add_f32 v[32:33], v[32:33], v[4:5]')
        a.e('v_cvt_pk_bf16_f32 v32, v32, v33')
        a.e('s_mov_b64 exec, 0xfff')
        a.e(f'buffer_store_dword v32, v21, {WS}, {t0} offen sc1')
        a.e('s_mov_b64 exec, -1')
        a.end_skip()
        a.e(f'{l}:')
        self.stamp('ypub')

    def qabs(self):
        a = self.a
        a.e('v_mov_b64 v[16:17], 0')
        a.e('v_lshlrev_b32 v21, 1, v0')
        a.e(f's_lshl_b32 {t0}, {sH}, 10')
        a.e(f's_lshl_b32 {t1}, {sS}, 7')
        a.e(f's_add_u32 {t0}, {t0}, {t1}')
        a.e(f's_lshl_b32 {t1}, {sV}, 5')
        a.e(f's_add_u32 {t0}, {t0}, {t1}')
        a.e(f's_add_u32 {t0}, {t0}, {sG}')
        a.e(f's_add_u32 {t0}, {t0}, {G_QABS}')
        self.q_gather(L_QB, 8, 'v20')
        self.stamp('qgotB')
        a.e('v_smfmac_f32_16x16x64_bf16 v[16:19], v[8:11], v[40:47], v1')
        a.e('v_smfmac_f32_16x16x64_bf16 v[16:19], v[12:15], v[48:55], v1')
        a.e('v_add_f32 v16, v16, v17')
        a.e(f'v_mov_b32_dpp v17, v16 quad_perm:[1,0,3,2] {FULL}')
        a.e('v_cvt_pk_bf16_f32 v16, v16, v17')
        a.e('s_mov_b64 exec, 0x5555')
        a.e(f'buffer_store_dword v16, v21, {WS}, {t0} offen sc1')
        a.e('s_mov_b64 exec, -1')
        self.stamp('qapub')

    def attn_b(self):
        a = self.a
        RING = 5

        def cread(k):
            ks, t = k >> 2, k & 3
            if t == 0 or k == RING:
                a.e(f'v_xor_b32 v40, {CKV | (ks << 6)}, {vA}')
            a.e(f'ds_read_b128 {vr(44 + 4 * (k % RING), 4)}, v40 offset:{t * 4096}')
            a.tag_ds(f'c{k}')
        for k in range(RING):
            cread(k)
        a.e('v_and_b32 v41, 15, v0')
        a.e('v_and_b32 v42, 48, v0')
        a.e('v_lshl_or_b32 v41, v41, 10, v42')
        a.e(f's_and_b32 {t0}, {sJ}, 1')
        a.e(f's_lshl_b32 {t0}, {t0}, 14')
        a.e(f's_lshl_b32 {t1}, {sV}, 8')
        a.e(f's_add_u32 {t0}, {t0}, {t1}')
        a.e(f's_add_u32 {t0}, {t0}, {sG}')
        a.e(f's_add_u32 {t0}, {t0}, {G_QABS}')
        self.sleep('ha')
        self.poll_begin()
        for ks in range(4):
            a.e(f'buffer_load_dwordx4 {vr(8 + 4 * ks, 4)}, v41, {WS}, {t0} offen offset:{ks * 64} sc1')
            a.tag_vm(f'qa{ks}')
        for ks in range(4):
            a.wait(vm=f'qa{ks}')
            self.maxchain('v42', range(8 + 4 * ks, 12 + 4 * ks), ks == 0)
        self.poll_end('v42')
        self.stamp('qagot')
        for k in range(16):
            ks, t = k >> 2, k & 3
            a.wait(ds=f'c{k}')
            c = '0' if ks == 0 else vr(24 + 4 * t, 4)
            a.e(f'v_mfma_f32_16x16x32_bf16 {vr(24 + 4 * t, 4)}, {vr(44 + 4 * (k % RING), 4)}, {vr(8 + 4 * ks, 4)}, {c}')
            if k + RING < 16:
                cread(k + RING)
        self.dma_wuv('v41', 'v42')
        a.e(f'v_lshl_add_u32 v43, v0, 4, {sW8}')
        a.e('v_xor_b32 v40, 0x2000, v43')
        a.e('v_xor_b32 v41, 0x4000, v43')
        a.e('v_xor_b32 v42, 0x6000, v43')
        for t in range(4):
            a.e(f'ds_write_b128 v43, {vr(24 + 4 * t, 4)} offset:{t * 1024}')
        a.e('s_waitcnt lgkmcnt(0)')
        a.e('s_barrier')
        for t in range(4):
            a.e(f'ds_read_b128 {vr(8 + 4 * t, 4)}, v40 offset:{t * 1024}')
            a.tag_ds(f'r1{t}')
        for t in range(4):
            a.e(f'ds_read_b128 {vr(44 + 4 * t, 4)}, v41 offset:{t * 1024}')
            a.tag_ds(f'r2{t}')
        a.e('ds_read_b128 v[60:63], v42')
        a.tag_ds('r30')
        for t in range(4):
            a.wait(ds=f'r1{t}')
            for p in range(2):
                r = 24 + 4 * t + 2 * p
                a.e(f'v_pk_add_f32 {vr(r, 2)}, {vr(r, 2)}, {vr(8 + 4 * t + 2 * p, 2)}')
            if t < 3:
                a.e(f'ds_read_b128 {vr(8 + 4 * t, 4)}, v42 offset:{(t + 1) * 1024}')
                a.tag_ds(f'r3{t + 1}')
        for t in range(4):
            a.wait(ds=f'r3{t}')
            src = 60 if t == 0 else 8 + 4 * (t - 1)
            for p in range(2):
                r = 44 + 4 * t + 2 * p
                a.e(f'v_pk_add_f32 {vr(r, 2)}, {vr(r, 2)}, {vr(src + 2 * p, 2)}')
            for p in range(2):
                r = 24 + 4 * t + 2 * p
                a.e(f'v_pk_add_f32 {vr(r, 2)}, {vr(r, 2)}, {vr(44 + 4 * t + 2 * p, 2)}')
        self.stamp('sxch')
        SLOT = [44, 52, 16]

        def tread(e):
            a.e(f'v_xor_b32 v40, {CKV | (e << 5)}, {vT}')
            for t in range(4):
                a.e(f'ds_read_b64_tr_b16 {vr(SLOT[e % 3] + 2 * t, 2)}, v40 offset:{t * 4096}')
            a.tag_ds(f't{e}')
        for e in range(3):
            tread(e)
        a.e('v_max3_f32 v42, v24, v25, v26')
        for r in range(27, 39, 2):
            a.e(f'v_max3_f32 v42, v42, v{r}, v{r + 1}')
        a.e('v_max_f32 v42, v42, v39')
        a.e('v_mov_b32 v43, v42')
        a.e('v_permlane32_swap_b32 v42, v43')
        a.e('v_max_f32 v42, v42, v43')
        a.e('v_mov_b32 v43, v42')
        a.e('v_permlane16_swap_b32 v42, v43')
        a.e('v_max_f32 v42, v42, v43')
        for r in range(24, 40, 2):
            a.e(f'v_pk_add_f32 {vr(r, 2)}, {vr(r, 2)}, v[42:43] op_sel_hi:[1,0] neg_lo:[0,1] neg_hi:[0,1]')
        for r in range(24, 40):
            a.e(f'v_exp_f32 v{r}, v{r}')
        for r in range(8):
            a.e(f'v_cvt_pk_bf16_f32 v{8 + r}, v{24 + 2 * r}, v{25 + 2 * r}')
        for r in range(24, 32, 2):
            a.e(f'v_pk_add_f32 {vr(r, 2)}, {vr(r, 2)}, {vr(r + 8, 2)}')
        a.e('v_pk_add_f32 v[24:25], v[24:25], v[28:29]')
        a.e('v_pk_add_f32 v[26:27], v[26:27], v[30:31]')
        a.e('v_pk_add_f32 v[24:25], v[24:25], v[26:27]')
        a.e('v_add_f32 v43, v24, v25')
        self.stamp('smax')
        a.e('v_and_b32 v41, 15, v0')
        a.e('v_lshlrev_b32 v41, 14, v41')
        a.e('v_and_or_b32 v41, v0, 48, v41')
        a.e(f's_lshl_b32 {t0}, {sX}, 1')
        a.e(f's_and_b32 {t1}, {sJ}, 1')
        a.e(f's_add_u32 {t0}, {t0}, {t1}')
        a.e(f's_lshl_b32 {t0}, {t0}, 18')
        a.e(f's_lshr_b32 {t2}, {sJ}, 1')
        a.e(f's_lshl_b32 {t3}, {t2}, 10')
        a.e(f's_add_u32 {t0}, {t0}, {t3}')
        a.e(f's_lshl_b32 {t3}, {sV}, 8')
        a.e(f's_add_u32 {t0}, {t0}, {t3}')
        a.e(f's_add_u32 {t0}, {t0}, {CB}')
        a.e(f's_lshl_b32 {t1}, {t1}, 11')
        a.e(f's_lshl_b32 {t2}, {t2}, 3')
        a.e(f's_add_u32 {t1}, {t1}, {t2}')
        a.e(f's_add_u32 {t1}, {t1}, {sL}')
        a.e(f's_add_u32 {t1}, {t1}, {L_C1ML}')

        def pack(q):
            d0, d1 = 24 + 4 * ((2 * q) & 3), 24 + 4 * ((2 * q + 1) & 3)
            a.e(f'v_cvt_pk_bf16_f32 v60, v{d0}, v{d0 + 1}')
            a.e(f'v_cvt_pk_bf16_f32 v61, v{d0 + 2}, v{d0 + 3}')
            a.e(f'v_cvt_pk_bf16_f32 v62, v{d1}, v{d1 + 1}')
            a.e(f'v_cvt_pk_bf16_f32 v63, v{d1 + 2}, v{d1 + 3}')
            self.lstore([f'buffer_store_dwordx4 v[60:63], v41, {WS}, {t0} offen offset:{q * 64}'])
        for e in range(8):
            a.wait(ds=f't{e}')
            d = vr(24 + 4 * (e & 3), 4)
            s = SLOT[e % 3]
            a.e(f'v_mfma_f32_16x16x32_bf16 {d}, {vr(s, 4)}, v[8:11], 0')
            a.e(f'v_mfma_f32_16x16x32_bf16 {d}, {vr(s + 4, 4)}, v[12:15], {d}')
            if e + 3 < 8:
                tread(e + 3)
            if e in (3, 5, 7):
                pack((e - 3) // 2)
        a.e('v_mov_b32 v40, v43')
        a.e('v_permlane32_swap_b32 v43, v40')
        a.e('v_add_f32 v43, v43, v40')
        a.e('v_mov_b32 v40, v43')
        a.e('v_permlane16_swap_b32 v43, v40')
        a.e('v_add_f32 v43, v43, v40')
        pack(3)
        l = self.wave_only(0)
        a.e('v_lshlrev_b32 v40, 7, v0')
        a.e('s_mov_b64 exec, 0xffff')
        self.lstore([f'buffer_store_dwordx2 v[42:43], v40, {WS}, {t1} offen'])
        a.e('s_mov_b64 exec, -1')
        self.end_only(l)
        self.stamp('c1pub')
        a.e('s_barrier')

    def red(self):
        a = self.a
        a.e(f'v_lshl_add_u32 v40, v0, 3, {sW8}')
        a.wait(vm='wuv')
        for i in range(8):
            a.e(f'ds_read_b64_tr_b16 {vr(48 + 2 * i, 2)}, v40 offset:{4096 + 512 * i}')
        a.e('v_lshrrev_b32 v41, 4, v0')
        a.e('v_and_b32 v42, 15, v0')
        a.e('v_lshlrev_b32 v43, 4, v42')
        a.e('v_lshl_or_b32 v43, v41, 12, v43')
        a.e('v_lshl_add_u32 v44, v41, 2, v0')
        a.e('v_and_b32 v44, 15, v44')
        a.e('v_lshlrev_b32 v44, 3, v44')
        a.e(f's_lshl_b32 {t5}, {sX}, 5')
        a.e(f's_add_u32 {t5}, {t5}, {sJ}')
        a.e(f's_lshl_b32 {t5}, {t5}, 14')
        a.e(f's_lshl_b32 {t1}, {sV}, 8')
        a.e(f's_add_u32 {t5}, {t5}, {t1}')
        a.e(f's_add_u32 {t5}, {t5}, {CB}')
        a.e(f's_lshl_b32 {t2}, {sJ}, 7')
        a.e(f's_add_u32 {t2}, {t2}, {sL}')
        a.e(f's_add_u32 {t2}, {t2}, {L_C1ML}')
        a.e('v_lshrrev_b32 v45, 1, v42')
        a.e('v_lshlrev_b32 v45, 5, v45')
        a.e('v_and_or_b32 v45, v0, 16, v45')
        a.e('v_and_b32 v46, 1, v0')
        a.e('v_lshl_or_b32 v45, v46, 3, v45')
        a.e('v_lshrrev_b32 v46, 5, v0')
        a.e('v_lshl_or_b32 v45, v46, 2, v45')
        a.e(f's_lshl_b32 {t3}, {sJ}, 3')
        a.e(f's_add_u32 {t3}, {t3}, {sX}')
        a.e(f's_mul_i32 {t3}, {t3}, 1152')
        a.e(f's_add_u32 {t3}, {t3}, {t1}')
        a.e(f's_add_u32 {t3}, {t3}, {sG}')
        a.e(f's_add_u32 {t3}, {t3}, {G_C2}')
        for r in range(28, 36, 2):
            a.e(f'v_mov_b64 {vr(r, 2)}, 0')
        a.e('s_waitcnt lgkmcnt(0)')
        self.sleep('hc1')
        self.poll_begin()
        a.e(f'buffer_load_dwordx2 v[24:25], v44, {WS}, {t2} offen sc1')
        for i in range(4):
            a.e(f'buffer_load_dwordx4 {vr(8 + 4 * i, 4)}, v43, {WS}, {t5} offen offset:{i * 1024} sc1')
            a.tag_vm(f'c{i}')
        for i in range(4):
            a.wait(vm=f'c{i}')
            self.maxchain('v47', ([24, 25] if i == 0 else []) + list(range(8 + 4 * i, 12 + 4 * i)), i == 0)
        self.poll_end('v47')
        self.stamp('c1got')
        a.e(f'v_max_f32_dpp v36, v24, v24 row_ror:8 {FULL}')
        for c in (4, 2, 1):
            a.e(f'v_max_f32_dpp v36, v36, v36 row_ror:{c} {FULL}')
        a.e('v_sub_f32 v24, v24, v36')
        a.e('v_exp_f32 v24, v24')
        a.e('v_cvt_pk_bf16_f32 v26, v24, 0')
        a.e('v_cvt_pk_bf16_f32 v27, 0, v24')
        a.e('v_mul_f32 v25, v25, v27')
        extra = [f'v_add_f32_dpp v25, v25, v25 row_ror:{c} {FULL}' for c in (8, 4, 2, 1)]
        extra += ['v_rcp_f32 v38, v25', 'v_log_f32 v37, v25']
        k = 0
        for i in range(4):
            for d in range(4):
                a.e(f'v_dot2c_f32_bf16_dpp v{28 + 2 * d}, v26, v{8 + 4 * i + d} row_newbcast:{i} {FULL}')
                a.e(f'v_dot2c_f32_bf16_dpp v{29 + 2 * d}, v27, v{8 + 4 * i + d} row_newbcast:{i} {FULL}')
                if k < len(extra):
                    a.e(extra[k])
                    k += 1
        a.e('v_add_f32 v37, v37, v36')
        for i in range(4):
            a.e(f'v_permlane32_swap_b32 v{28 + i}, v{32 + i}')
        a.e('v_pk_add_f32 v[28:29], v[28:29], v[32:33]')
        a.e('v_pk_add_f32 v[30:31], v[30:31], v[34:35]')
        a.e('v_permlane16_swap_b32 v28, v30')
        a.e('v_permlane16_swap_b32 v29, v31')
        a.e('v_pk_add_f32 v[28:29], v[28:29], v[30:31]')
        a.e('v_pk_mul_f32 v[28:29], v[28:29], v[38:39] op_sel_hi:[1,0]')
        a.e('v_cvt_pk_bf16_f32 v28, v28, v29')
        a.e(f'buffer_store_dword v28, v45, {WS}, {t3} offen sc1')
        l = self.wave_only(0)
        a.e('s_mov_b64 exec, 1')
        a.e(f'buffer_store_dword v37, v45, {WS}, {t3} offen offset:1024 sc1')
        a.e('s_mov_b64 exec, -1')
        self.end_only(l)
        self.stamp('c2pub')
        for r in range(8, 12):
            a.e(f'v_mov_b32 v{r}, -1')
        self.lstore([f'buffer_store_dwordx4 v[8:11], v43, {WS}, {t5} offen offset:{i * 1024}' for i in range(4)])
        self.dma_wo(BWO, 'v28', 'v29')

    def uv(self):
        a = self.a
        a.e('v_bfe_u32 v28, v0, 1, 3')
        a.e('v_mul_u32_u24 v28, 1152, v28')
        a.e(f'v_add_u32 v28, v28, {vSP}')
        self.rot8('v29', 'v30')
        a.e('v_mul_u32_u24 v29, 1152, v29')
        a.e(f's_mul_i32 {t1}, {sH}, 9216')
        a.e(f's_add_u32 {t1}, {t1}, {sG}')
        a.e(f's_add_u32 {t1}, {t1}, {G_C2}')
        a.e(f's_lshl_b32 {t0}, {sV}, 8')
        a.e(f's_add_u32 {t0}, {t0}, {t1}')
        self.pos_bytes('v30', 'v31')
        a.e('v_and_b32 v31, 16, v0')
        a.e('v_lshl_or_b32 v30, v31, 4, v30')
        a.e(f's_lshr_b32 {t2}, {sJ}, 3')
        a.e(f's_lshl_b32 {t2}, {t2}, 2')
        a.e(f's_add_u32 {t2}, {t2}, {sV}')
        a.e(f's_lshl_b32 {t2}, {t2}, 9')
        a.e(f's_lshl_b32 {t3}, {sS}, 5')
        a.e(f's_add_u32 {t2}, {t2}, {t3}')
        a.e(f's_add_u32 {t2}, {t2}, {sL}')
        a.e(f's_add_u32 {t2}, {t2}, {L_OB}')
        a.e('v_mov_b64 v[20:21], 0')
        a.e('v_mov_b64 v[22:23], 0')
        self.sleep('hc2')
        self.poll_begin()
        a.e(f'buffer_load_dword v16, v29, {WS}, {t1} offen offset:1024 sc1')
        a.e(f'buffer_load_dwordx4 v[8:11], v28, {WS}, {t0} offen sc1')
        a.e(f'buffer_load_dwordx4 v[12:15], v28, {WS}, {t0} offen offset:128 sc1')
        a.tag_vm('c2')
        a.wait(vm='c2')
        self.maxchain('v17', range(8, 17), True)
        self.poll_end('v17')
        self.stamp('c2got')
        a.e('v_smfmac_f32_16x16x64_bf16 v[20:23], v[8:11], v[48:55], v1')
        a.e('v_smfmac_f32_16x16x64_bf16 v[20:23], v[12:15], v[56:63], v1')
        self.w8('v16', 'v17')
        a.e('v_add_f32 v20, v20, v21')
        a.e('v_add_f32 v22, v22, v23')
        a.e(f'v_mul_f32_dpp v20, v16, v20 row_newbcast:0 {FULL}')
        a.e(f'v_fmac_f32_dpp v20, v16, v22 row_newbcast:1 {FULL}')
        a.e('v_mov_b32 v21, v20')
        a.e('v_permlane32_swap_b32 v20, v21')
        a.e('v_add_f32 v20, v20, v21')
        a.e(f'v_mov_b32_dpp v21, v20 quad_perm:[1,0,3,2] {FULL}')
        a.e('v_cvt_pk_bf16_f32 v20, v20, v21')
        a.e('s_mov_b64 exec, 0x55555555')
        self.lstore([f'buffer_store_dword v20, v30, {WS}, {t2} offen'])
        a.e('s_mov_b64 exec, -1')
        self.stamp('dpub')

    def attn_a3(self):
        a = self.a
        self.q_gather(L_QA, 8, 'v16')
        self.stamp('qgotA')
        self.dma_wo(WO, 'v60', 'v61')
        SLOT = [48, 56]

        def vread(e):
            a.e(f'v_xor_b32 v47, {e << 5}, {vT}')
            for t in range(4):
                a.e(f'ds_read_b64_tr_b16 {vr(SLOT[e & 1] + 2 * t, 2)}, v47 offset:{t * 4096}')
            a.tag_ds(f'v{e}')
        vread(0)
        vread(1)
        self.qk_softmax(8, 16, 32, 36)
        a.e(f'v_add_u32 v46, {sW8}, {vSP}')
        a.e('s_waitcnt lgkmcnt(0)')
        for U in range(4):
            a.e(f'ds_read_b128 {vr(8 + 4 * U, 4)}, v46 offset:{6144 + 128 * U}')
            a.tag_ds(f'p{U}')
        self.stamp('smaxA')
        a.e('v_mov_b32 v41, v36')
        ls = self.lsum('v41')
        ACC = [24, 28, 32]
        a.e('v_mov_b64 v[24:25], 0')
        for e in range(10):
            if e >= 2:
                d = ACC[(e - 2) % 3]
                a.e(f'v_add_f32_dpp v{44 + ((e - 2) >> 2)}, v{d}, v{d + 1} {DPPI} row_mask:{1 << ((e - 2) & 3)} bank_mask:0xf')
            if e + 1 < 8:
                a.e(f'v_mov_b64 {vr(ACC[(e + 1) % 3], 2)}, 0')
            if e < 8:
                d = vr(ACC[e % 3], 4)
                for U in range(3):
                    if e == 0:
                        a.wait(ds=f'p{U}')
                    a.e(f'v_smfmac_f32_16x16x64_bf16 {d}, {vr(8 + 4 * U, 4)}, {vr(64 + 64 * U + 8 * e, 8)}, v1')
                    if U == 0 and e < len(ls):
                        a.e(ls[e])
                a.wait(ds='p3' if e == 0 else f'v{e}')
                a.e(f'v_smfmac_f32_16x16x64_bf16 {d}, v[20:23], {vr(SLOT[e & 1], 8)}, v1')
                if e + 2 < 8:
                    vread(e + 2)
        self.combine_write(44, 41, 40)
        self.stamp('pvA')

    def dma_tile(self, t):
        a = self.a
        pol = self.o.get('pol_kv', 'nt')
        srd = K_ if t < 16 else V_
        a.e(f's_add_u32 {t0}, {sKG}, {(t & 15) * 16384}')
        a.e(f's_add_u32 m0, {sKV}, {(t & 3) * 4096}')
        for q in range(4):
            a.e(f'buffer_load_dwordx4 v{8 + q}, {srd}, {t0} offen offset:{q * 1024} {pol} lds')
        a.tag_vm(f'tile{t}')

    def dma_ckv(self, t):
        a = self.a
        pol = self.o.get('pol_c', '')
        a.e('v_lshrrev_b32 v62, 4, v0')
        a.e('v_mul_u32_u24 v62, 768, v62')
        a.e(f's_lshl_b32 {t1}, {sX}, 4')
        a.e(f's_lshr_b32 {t2}, {sJ}, 1')
        a.e(f's_add_u32 {t1}, {t1}, {t2}')
        a.e(f's_lshl_b32 {t1}, {t1}, 16')
        a.e(f's_lshl_b32 {t2}, {sV}, 8')
        a.e(f's_add_u32 {t1}, {t1}, {t2}')
        for q in range(4):
            a.e(f'v_add_u32 v63, v{8 + q}, v62')
            a.e(f's_add_u32 {t2}, {t1}, {(16 * t + 4 * q) * 1024}')
            a.e(f's_add_u32 m0, {sKV}, {CKV + t * 4096 + q * 1024}')
            a.e(f'buffer_load_dwordx4 v63, {CK}, {t2} offen {pol} lds')

    def prologue(self):
        a = self.a
        a.e('s_cmp_ge_u32 s2, 256')
        a.e('s_cbranch_scc1 L_end')
        if self.o.get('diag_fixed'):
            a.e('s_memrealtime s[98:99]')
        a.e('s_load_dwordx16 s[68:83], s[0:1], 0')
        a.e('s_load_dwordx8 s[84:91], s[0:1], 64')
        a.e('s_load_dwordx4 s[92:95], s[0:1], 96')
        a.e('v_lshrrev_b32 v1, 6, v0')
        a.e('v_mov_b32 v63, v0')
        a.e(f'v_readfirstlane_b32 {sV}, v1')
        a.e('v_and_b32 v0, 63, v0')
        a.e(f's_and_b32 {sX}, s2, 7')
        a.e(f's_lshr_b32 {sJ}, s2, 3')
        a.e(f's_lshr_b32 {sH}, {sJ}, 3')
        a.e(f's_lshl_b32 s3, {sX}, 2')
        a.e(f's_add_u32 {sH}, {sH}, s3')
        a.e(f's_and_b32 {sS}, {sJ}, 7')
        a.e(f's_lshl_b32 {sKV}, {sV}, 14')
        a.e(f's_lshl_b32 {sKG}, {sH}, 21')
        a.e(f's_lshl_b32 s3, {sS}, 18')
        a.e(f's_add_u32 {sKG}, {sKG}, s3')
        a.e(f's_lshl_b32 s3, {sV}, 12')
        a.e(f's_add_u32 {sKG}, {sKG}, s3')
        a.e('v_lshrrev_b32 v12, 4, v0')
        a.e('v_and_b32 v13, 15, v0')
        a.e('v_lshlrev_b32 v14, 1, v12')
        a.e('v_xor_b32 v14, v14, v13')
        a.e('v_lshlrev_b32 v14, 4, v14')
        a.e('v_lshl_or_b32 v8, v12, 8, v14')
        for q in range(1, 4):
            a.e(f'v_xor_b32 v{8 + q}, {TBL[q] << 4}, v8')
        srds = [(4, 70, 1 << 26), (8, 72, 1 << 26), (12, 74, 576 * 8192), (16, 76, 4096 * 1152), (20, 80, 1 << 23),
                (24, 82, 576 * 8192), (28, 84, 1 << 22), (32, 86, 1 << 22), (36, 88, 4096 * 1152), (40, 94, WS_SIZE),
                (44, 90, 1152), (48, 92, 256), (52, 68, 1152)]
        for d, s, n in srds:
            a.e(f's_mov_b32 s{d + 2}, {n}')
            a.e(f's_mov_b32 s{d + 3}, 0x20000')
        a.e('s_waitcnt lgkmcnt(0)')
        for d, s, n in srds:
            a.e(f's_mov_b64 s[{d}:{d + 1}], s[{s}:{s + 1}]')
        for t in range(4):
            self.dma_tile(t)
        a.e(f's_lshl_b32 {sL}, {sX}, 16')
        a.e(f's_mov_b32 {sG}, {GB}')
        a.e(f's_mov_b32 {sIT}, 0')
        a.e(f's_mov_b32 {sPOLL}, 0')
        a.e(f's_mov_b32 {sST}, 0')
        a.e(f's_lshl_b32 {sW8}, {sV}, 13')
        a.e(f's_add_u32 {sW8}, {sW8}, {STG}')
        a.e('s_mov_b32 s78, 0x00ff00ff')
        a.e('s_mov_b32 s79, 0x00ff00ff')
        a.e(f's_lshl_b32 {sHS}, {sH}, 8')
        a.e(f's_lshl_b32 s3, {sS}, 5')
        a.e(f's_add_u32 {sHS}, {sHS}, s3')
        a.e(f's_lshl_b32 {sWO}, {sX}, 2')
        a.e(f's_add_u32 {sWO}, {sWO}, {sV}')
        a.e(f's_mul_i32 {sWO}, {sWO}, {128 * 1152}')
        a.e(f's_mul_i32 s3, {sJ}, 48')
        a.e(f's_add_u32 {sWO}, {sWO}, s3')
        a.e(f's_cmp_lt_u32 {sJ}, 24')
        a.e(f's_cselect_b32 {sWO}, {sWO}, {OOB}')
        a.e(f's_cselect_b32 {sRES}, 1, 0')
        a.e(f's_cmp_eq_u32 {sV}, 3')
        a.e(f's_cselect_b32 {sRES}, {sRES}, 0')
        a.e(f's_mul_i32 {t0}, {sRES}, 3')
        a.e(f's_cmp_eq_u32 {sX}, 0')
        a.e(f's_cselect_b32 {sRES}, {t0}, {sRES}')
        if self.o.get('stamps'):
            a.e('v_mov_b32 v7, 0')
        self.stamp('start')
        a.e(f's_getpc_b64 s[74:75]')
        a.e('L_pc:')
        a.e('v_lshlrev_b32 v62, 7, v63')
        a.e(f'v_min_u32 v62, L_codeend-L_pc, v62')
        a.e('global_load_dword v61, v62, s[74:75]')
        a.e('v_and_b32 v14, 1, v0')
        a.e('v_mul_u32_u24 v1, 0xaaaa, v14')
        a.e('v_add_u32 v1, 0x4444, v1')
        a.e('v_lshlrev_b32 v14, 4, v14')
        a.e(f'v_lshl_or_b32 {vSP}, v12, 5, v14')
        def tbl(dst, x, tmp):
            a.e(f'v_lshrrev_b32 {tmp}, 1, {x}')
            a.e(f'v_xor_b32 {dst}, {x}, {tmp}')
            a.e(f'v_and_b32 {dst}, 1, {dst}')
            a.e(f'v_lshl_or_b32 {dst}, {dst}, 3, {tmp}')
        a.e('v_lshrrev_b32 v15, 2, v13')
        tbl('v16', 'v15', 'v17')
        a.e('v_and_b32 v17, 3, v13')
        a.e('v_lshlrev_b32 v18, 1, v17')
        a.e('v_xor_b32 v16, v16, v18')
        a.e('v_xor_b32 v16, v16, v12')
        a.e('v_lshlrev_b32 v16, 4, v16')
        a.e(f'v_lshl_or_b32 {vA}, v13, 8, v16')
        a.e(f'v_add_u32 {vA}, {sKV}, {vA}')
        tbl('v16', 'v12', 'v18')
        a.e('v_lshlrev_b32 v18, 1, v15')
        a.e('v_xor_b32 v16, v16, v18')
        a.e('v_lshrrev_b32 v18, 1, v17')
        a.e('v_xor_b32 v16, v16, v18')
        a.e('v_lshlrev_b32 v16, 4, v16')
        a.e('v_lshrrev_b32 v18, 2, v0')
        a.e('v_lshl_or_b32 v16, v18, 8, v16')
        a.e('v_and_b32 v18, 1, v0')
        a.e(f'v_lshl_or_b32 {vT}, v18, 3, v16')
        a.e(f'v_add_u32 {vT}, {sKV}, {vT}')
        self.dma_wq(WQ, 'v56')
        a.e('v_mov_b32 v57, 0x3f803f80')
        a.e(f'v_cndmask_b32 v16, v57, 0, {M8}')
        for r in range(17, 36):
            a.e(f'v_mov_b32 v{r}, v16')
        a.e(f's_lshl_b32 {t0}, {sV}, 6')
        a.e('s_mov_b32 exec_lo, 0x00010001')
        a.e('s_mov_b32 exec_hi, 0x00010001')
        a.e(f'buffer_load_dwordx4 v[16:19], v0, {XIN}, {t0} offen offset:1024')
        for slot in range(1, 5):
            a.e(f'buffer_load_dwordx4 {vr(16 + 4 * slot, 4)}, v0, {XIN}, {t0} offen offset:{256 * (slot - 1)}')
        a.e('s_mov_b64 exec, -1')
        a.e('v_lshlrev_b32 v58, 2, v0')
        a.e(f's_mul_i32 {t0}, {sJ}, 48')
        a.e(f's_cmp_eq_u32 {sRES}, 3')
        a.e(f's_cselect_b32 {t0}, {t0}, {OOB}')
        a.e(f'buffer_load_dword v5, v58, {XIN}, {t0} offen')
        a.tag_vm('x')
        for r in range(56, 60):
            a.e(f'v_mov_b32 v{r}, -1')
        a.e(f's_lshl_b32 {t0}, {sJ}, 2')
        a.e(f's_add_u32 {t0}, {t0}, {sV}')
        a.e(f's_lshl_b32 {t4}, {t0}, 9')
        a.e(f's_add_u32 {t4}, {t4}, {sL}')
        a.e(f's_lshl_b32 {t1}, {sX}, 7')
        a.e(f's_add_u32 {t0}, {t0}, {t1}')
        a.e(f's_mul_i32 {t1}, {t0}, 768')
        a.e(f's_add_u32 {t1}, {t1}, {GB}')
        a.e(f's_lshl_b32 {t5}, {t0}, 12')
        a.e(f's_add_u32 {t5}, {t5}, {CB}')
        a.e('v_lshlrev_b32 v60, 3, v0')
        a.e(f'buffer_store_dwordx2 v[56:57], v60, {WS}, {t4} offen sc1')
        a.e('v_mul_u32_u24 v60, 12, v0')
        a.e(f'buffer_store_dwordx3 v[56:58], v60, {WS}, {t1} offen sc1')
        a.e('v_lshlrev_b32 v60, 4, v0')
        for i in range(4):
            a.e(f'buffer_store_dwordx4 v[56:59], v60, {WS}, {t5} offen offset:{i * 1024} sc1')
        a.tag_vm('clr')
        for ks in range(4):
            a.e(f'v_xor_b32 v{12 + ks}, {ks << 6}, {vA}')

    def pv_block(self, U):
        a = self.a
        a.e(f'v_add_u32 v63, {sW8}, {vSP}')
        a.e(f'ds_read_b128 v[20:23], v63 offset:{6144 + 128 * U}')
        a.e('s_waitcnt lgkmcnt(0)')
        for e in range(8):
            a.e(f'v_smfmac_f32_16x16x64_bf16 {vr(24 + 4 * e, 4)}, v[20:23], {vr(64 + 64 * U + 8 * e, 8)}, v1')

    def stream(self):
        a = self.a
        o = self.o
        for t in range(28):
            a.wait(vm=f'tile{t}')
            slot = (t & 3) * 4096
            if t < 16:
                for ks in range(4):
                    a.e(f'ds_read_b128 a[{16 * t + 4 * ks}:{16 * t + 4 * ks + 3}], v{12 + ks} offset:{slot}')
            else:
                u = t - 16
                if u == 0:
                    for e in range(8):
                        a.e(f'v_xor_b32 v{12 + e}, {e << 5}, {vT}')
                for e in range(8):
                    a.e(f'ds_read_b64_tr_b16 {vr(64 + 64 * (u >> 2) + 8 * e + 2 * (u & 3), 2)}, v{12 + e} offset:{slot}')
            a.e('s_waitcnt lgkmcnt(0)')
            self.dma_tile(t + 4)
            if t == 4:
                a.wait(vm='clr')
                a.e('v_lshlrev_b32 v60, 6, v0')
                a.e(f'buffer_load_dword v61, v60, {WS}, {t5} offen')
                a.e('v_and_b32 v60, 0x1ff, v60')
                a.e(f'buffer_load_dword v61, v60, {WS}, {t4} offen')
                a.tag_vm('touch')
                a.e('v_lshlrev_b32 v4, 16, v5')
                a.e('v_and_b32 v5, 0xffff0000, v5')
            if t == 9:
                a.wait(vm='touch')
                self.lnq_prep()
                a.wait(ds='wqr')
                for slot in range(5):
                    self.lnq_mfma(slot, slot == 0)
                self.lnq_reduce()
                l = self.wave_only(0)
                self.lnq_final('v56')
                self.end_only(l)
            if t == 5:
                a.e('s_barrier')
                l = self.wave_only(1)
                a.e('s_getreg_b32 s74, hwreg(HW_REG_XCC_ID, 0, 3)')
                a.e('s_lshl_b32 s74, s74, 3')
                a.e('s_lshl_b64 s[74:75], 1, s74')
                a.e('v_mov_b32 v58, s74')
                a.e('v_mov_b32 v59, s75')
                a.e(f's_lshl_b32 {t0}, {sX}, 5')
                a.e('s_mov_b64 exec, 1')
                a.e(f'buffer_atomic_add_x2 v[58:59], v0, {DBG}, {t0} offen sc1')
                a.e('s_mov_b64 exec, -1')
                self.end_only(l)
            if t == 10:
                a.e('v_and_b32 v60, 7, v0')
                a.e('v_lshlrev_b32 v60, 5, v60')
                a.e(f'buffer_load_dwordx2 v[58:59], v60, {DBG}, 0 offen sc1')
                a.tag_vm('cnt')
            if t == 14:
                chk, retry, done = a.lab('chk'), a.lab('cretry'), a.lab('cdone')
                a.wait(vm='cnt')
                a.e(f'{chk}:')
                a.e('v_sad_u8 v61, v58, 0, 0')
                a.e('v_sad_u8 v61, v59, 0, v61')
                a.e('v_cmp_ne_u32 vcc, 32, v61')
                a.e(f's_cbranch_vccnz {retry}')
                a.e(f'{done}:')
                a.ool(f'{retry}:\ns_add_u32 {sPOLL}, {sPOLL}, 1\ns_cmp_gt_u32 {sPOLL}, 100000\ns_cbranch_scc1 {done}\n'
                      f'buffer_load_dwordx2 v[58:59], v60, {DBG}, 0 offen sc1\ns_waitcnt vmcnt(0)\ns_branch {chk}')
                a.e('s_getreg_b32 s74, hwreg(HW_REG_XCC_ID, 0, 3)')
                a.e('s_lshl_b32 s74, s74, 3')
                a.e('s_lshl_b64 s[74:75], 32, s74')
                a.e(f'v_readlane_b32 {t2}, v58, {sX}')
                a.e(f'v_readlane_b32 {t3}, v59, {sX}')
                a.e(f's_cmp_eq_u64 s[74:75], s[70:71]')
                a.e(f's_cselect_b32 {sLOC}, {0 if o.get("force_slow") else 1}, 0')
                l = self.wave_only(0)
                self.publish_q('v56', L_QA, 'v60', 'v61')
                self.end_only(l)
                self.dma_wo(WO, 'v60', 'v61')
            if t == 17:
                self.q_addr()
                self.q_issue(L_QA, 56)
            if t == 21:
                chk, retry, done = a.lab('chk'), a.lab('qretry'), a.lab('qdone')
                a.wait(vm='q')
                a.e(f'{chk}:')
                self.maxchain('v20', range(56, 64), True)
                a.e('v_cmp_eq_u32 vcc, -1, v20')
                a.e(f's_cbranch_vccnz {retry}')
                a.e(f'{done}:')
                a.ool(f'{retry}:\ns_add_u32 {sPOLL}, {sPOLL}, 1\ns_cmp_gt_u32 {sPOLL}, 100000\ns_cbranch_scc1 {done}\n'
                      f'buffer_load_dwordx4 v[56:59], {vSP}, {WS}, {t4} offen offset:{L_QA} sc1\n'
                      f'buffer_load_dwordx4 v[60:63], {vSP}, {WS}, {t4} offen offset:{L_QA + 128} sc1\n'
                      f's_waitcnt vmcnt(0)\ns_branch {chk}')
                self.qk_softmax(56, 24, 40, 44)
                a.e('v_mov_b32 v57, v44')
                for l in self.lsum('v57'):
                    a.e(l)
                for r in range(24, 56, 4):
                    a.e(f'v_mov_b64 {vr(r, 2)}, 0')
                a.e('s_waitcnt lgkmcnt(0)')
            if t in (22, 23, 24, 25):
                self.dma_ckv(t - 22)
            if t == 22:
                self.pv_block(0)
            if t == 24:
                self.pv_block(1)
        self.pv_block(2)
        a.e(f'ds_read_b128 v[20:23], v63 offset:{6144 + 128 * 3}')
        a.e('v_mov_b32 v9, v57')
        a.wait(vm='tile31')
        self.stamp('kvdone')
        SLOT = [56, 10]

        def vread(e, s):
            a.e(f'v_xor_b32 v18, {e << 5}, {vT}')
            for t in range(4):
                a.e(f'ds_read_b64_tr_b16 {vr(s + 2 * t, 2)}, v18 offset:{t * 4096}')
            a.tag_ds(f'v{e}')
        vread(0, SLOT[0])
        vread(1, SLOT[1])
        for e in range(8):
            a.wait(ds=f'v{e}')
            a.e(f'v_smfmac_f32_16x16x64_bf16 {vr(24 + 4 * e, 4)}, v[20:23], {vr(SLOT[e & 1], 8)}, v1')
            if e + 2 < 8:
                vread(e + 2, SLOT[e & 1])
        for e in range(8):
            a.e(f'v_add_f32_dpp v{12 + (e >> 2)}, v{24 + 4 * e}, v{25 + 4 * e} {DPPI} row_mask:{1 << (e & 3)} bank_mask:0xf')
        self.combine_write(12, 9, 8)
        self.stamp('pv1')

    def build(self):
        a = self.a
        o = self.o
        self.prologue()
        self.stream()
        n0 = self.nst
        a.e('L_top:')
        a.e('s_nop 1')
        self.combine_publish()
        self.stamp('opub')
        a.vmq.append(['wo', ()])
        self.outproj(True, BWQ)
        self.dma_wq(BWQ, 'v62')
        self.touch_wuk('v60', 'v13')
        self.lnq_tail(G_YA, L_QB, True)
        self.qabs()
        self.attn_b()
        self.red()
        self.uv()
        self.outproj(False, WQ)
        a.e(f's_cmp_eq_u32 {sIT}, 1')
        a.e('s_cbranch_scc1 L_final')
        self.dma_wq(WQ, 'v62')
        a.e(f's_add_u32 {sL}, {sL}, {L_IT}')
        self.lnq_tail(G_YB, L_QA, False)
        a.e(f's_add_u32 {sG}, {sG}, {G_IT}')
        a.e(f's_mov_b32 {sIT}, 1')
        self.attn_a3()
        if o.get('stamps'):
            a.e(f's_mov_b32 {sST}, {self.nst - n0}')
        self.nper = self.nst - n0
        self.n0 = n0
        a.e('s_branch L_top')
        a.e('L_final:')
        a.e(f's_cmp_lg_u32 {sRES}, 3')
        a.e('s_cbranch_scc1 L_fin2')
        self.resid_loads(G_YB, 24, 'v23')
        self.sleep('fin')
        self.poll_begin()
        self.resid_issue(24, 'v23')
        a.e('s_waitcnt vmcnt(0)')
        self.maxchain('v22', range(24, 32), True)
        self.poll_end('v22')
        self.resid_sum(24)
        a.e('v_cvt_pk_bf16_f32 v4, v4, v5')
        a.e(f's_mul_i32 {t0}, {sJ}, 48')
        a.e(f'buffer_store_dword v4, v23, {OUT}, {t0} offen')
        a.e('s_mov_b64 exec, -1')
        a.e('L_fin2:')
        if o.get('diag_fixed'):
            a.e('L_dfx:')
            a.e('s_memrealtime s[96:97]')
            a.e('s_waitcnt lgkmcnt(0)')
            a.e('s_sub_u32 s96, s96, s98')
            a.e(f's_cmp_lt_u32 s96, {o["diag_fixed"]}')
            a.e('s_cbranch_scc1 L_dfx')
        if o.get('stamps'):
            a.e('s_waitcnt vmcnt(0)')
            a.e('s_memrealtime s[84:85]')
            a.e('s_waitcnt lgkmcnt(0)')
            a.e('v_writelane_b32 v7, s84, 62')
            a.e(f'v_writelane_b32 v7, {sPOLL}, 63')
            a.e(f's_lshl_b32 {t0}, s2, 2')
            a.e(f's_add_u32 {t0}, {t0}, {sV}')
            a.e(f's_lshl_b32 {t0}, {t0}, 8')
            a.e(f's_add_u32 {t0}, {t0}, {STAMP}')
            a.e('v_lshlrev_b32 v8, 2, v0')
            a.e(f'buffer_store_dword v7, v8, {WS}, {t0} offen')
        a.e('L_end:')
        a.e('s_endpgm')
        body = a.finish()
        ref = open('cdna_kernels/' + NAME + '.s.ref').read() if o.get('hdr', True) else ''
        hdr = ''.join(l + '\n' for l in ref.split('\n') if l.startswith(';') and '@launch' not in l and 'Override' not in l and 'grid=ceil' not in l)
        txt = hdr + '; @launch grid=(256,1,1) block=(256,1,1) lds=163840\n'
        txt += '.amdgcn_target "amdgcn-amd-amdhsa--gfx950"\n.text\n'
        txt += f'.globl {NAME}_kernel\n.p2align 8\n.type {NAME}_kernel,@function\n{NAME}_kernel:\n'
        txt += body
        txt += f"""L_codeend:
    s_endpgm
.section .rodata,"a"
.p2align 6
.amdhsa_kernel {NAME}_kernel
  .amdhsa_next_free_vgpr 512
  .amdhsa_next_free_sgpr 102
  .amdhsa_accum_offset 256
  .amdhsa_group_segment_fixed_size 0
  .amdhsa_kernarg_size 112
  .amdhsa_user_sgpr_count 2
  .amdhsa_user_sgpr_kernarg_segment_ptr 1
  .amdhsa_system_sgpr_workgroup_id_x 1
.end_amdhsa_kernel
"""
        return txt


DEFAULT = dict(sleep=dict(h2=8, ha=8, hc2=6, fin=10))

if __name__ == '__main__':
    import json
    opt = dict(DEFAULT)
    out = sys.argv[1]
    if len(sys.argv) > 2:
        opt.update(json.loads(sys.argv[2]))
    g = Gen(opt)
    open(out, 'w').write(g.build())
    print('nops', g.a.nops, 'stamps', g.stnames, g.n0, g.nper)
```

```python
import sys, math, struct
from asmlib import Asm

NAME = 'interleave_layers__mha_block_cached__compressed_kv_cla__decode'


def f32(x):
    return '0x%08x' % struct.unpack('<I', struct.pack('<f', x))[0]


K1 = 1024
L_X = 128 * K1
L_IT = 56 * K1
L_QA, L_QB, L_OA, L_OB, L_C1ML = 0, 16 * K1, 32 * K1, 40 * K1, 48 * K1
L_STA, L_STB, L_OAL = 52 * K1, 52 * K1 + 256, 52 * K1 + 512
L_CSA = 112 * K1
GB, G_IT = 0x100000, 384 * K1
G_YA, G_YB, G_QABS, G_C2L, G_C2 = 0, 24 * K1, 48 * K1, 80 * K1, 112 * K1
CB = 0x200000
STAMP = 0x800000
WS_SIZE = 0x1000000
OOB = 0x40000000
CKV = 65536
STG = 131072
ZML = STG + 7168
ZO = STG + 8192 + 7168
ZQ = STG + 2 * 8192 + 7168
K_, V_, CK, DBG, XIN, WQ, WO, BWQ, WUK, WUV, BWO, WS, WSL, WSG, OUT = ['s[%d:%d]' % (4 + 4 * i, 7 + 4 * i) for i in range(15)]
(sX, sJ, sV, sLOC, sW8, sKV, sKG, sIT, sPOLL, sM, sRES, sST, sH, sS,
 t0, t1, t2, t3, t4, t5) = ['s%d' % i for i in range(64, 84)]
MY = 's[84:85]'
(oY, oQA, oQB, oST, oQgA, oSTgA, oWQ, oWO, oWUK, oWUV, oYpub) = ['s%d' % i for i in range(86, 97)]
(oQgB, oSTgB, oQApub, oQAg, oC1pub, oMLpub, oC1g, oMLg, oC2pub, oC2Lpub, oC2g, oC2Lg,
 oOBpub, oOApub, oOALpub, oOALg, oRES, oO) = ['s%d' % i for i in range(4, 22)]
vT, vA, vL16 = 'v2', 'v3', 'v6'
TBL = [0, 8, 9, 1]
DPPI = 'quad_perm:[0,1,2,3]'
FULL = 'row_mask:0xf bank_mask:0xf'
QSCALE = math.log2(math.e) / math.sqrt(128.0)


def vr(a, n):
    return f'v[{a}:{a + n - 1}]' if n > 1 else f'v{a}'


class Gen:
    def __init__(self, opt):
        self.o = opt
        self.a = Asm()
        self.nst = 0
        self.stnames = []

    def stamp(self, name, level=1):
        if self.o.get('stamps', 0) < level:
            return
        a = self.a
        self.nst += 1
        self.stnames.append(name)
        a.e(f's_mov_b32 m0, {sST}')
        a.e(f's_pack_ll_b32_b16 s98, s98, {sPOLL}')
        a.e('v_writelane_b32 v7, s98, m0')
        a.e(f's_add_u32 {sST}, s97, {self.nst}')
        a.e('s_memrealtime s[98:99]')

    def lstore(self, lines):
        a = self.a
        slow, back = a.lab('slow'), a.lab('back')
        a.e(f's_cbranch_scc1 {slow}')
        for l in lines:
            a.e(l)
        a.e(f'{back}:')
        a.ool(f'{slow}:\ns_nop 7\n' + '\n'.join(l + ' sc1' if l.startswith('buffer_') else l for l in lines) + f'\ns_branch {back}')

    def lcmp(self):
        self.a.e(f's_cmp_eq_u32 {sLOC}, 0')

    def poll_begin(self):
        a = self.a
        self.ptop, self.pretry, self.pdone = a.lab('poll'), a.lab('retry'), a.lab('got')
        a.e(f'{self.ptop}:')

    def poll_end(self, vmax):
        a = self.a
        a.e(f'v_cmp_eq_u32 vcc, -1, {vmax}')
        a.e(f's_cbranch_vccnz {self.pretry}')
        a.e(f'{self.pdone}:')
        a.ool(f'{self.pretry}:\ns_add_u32 {sPOLL}, {sPOLL}, 1\ns_cmp_gt_u32 {sPOLL}, 100000\ns_cbranch_scc1 {self.pdone}\ns_nop 7\ns_branch {self.ptop}')

    def poll_cmp(self, vmax):
        self.a.e(f'v_cmp_eq_u32 vcc, -1, {vmax}')

    def poll_br(self, last=True):
        a = self.a
        done = a.lab('got')
        retry = a.lab('retry')
        a.e(f's_cbranch_vccnz {retry}')
        a.e(f'{done}:')
        a.ool(f'{retry}:\ns_cselect_b32 s3, 1, 0\ns_add_u32 {sPOLL}, {sPOLL}, 1\ns_cmp_gt_u32 {sPOLL}, 100000\ns_cbranch_scc0 {self.ptop}\n'
              f's_cmp_eq_u32 s3, 1\ns_branch {done}')

    def pipe_poll(self, ld, vmax, regs, key):
        a = self.a
        n = sum(x.startswith('buffer') for x in ld)
        if self.o.get('pipe', {}).get(key, 1):
            self.poll_begin()
            for x in ld:
                a.e(x)
            a.e(f's_waitcnt vmcnt({n})')
            self.maxchain(vmax, regs, True)
            self.poll_cmp(vmax)
            self.poll_br()
        else:
            a.e('s_waitcnt vmcnt(0)')
            self.late_check(vmax, regs, ld)

    def late_check(self, vmax, regs, reissue):
        a = self.a
        chk, retry, done = a.lab('chk'), a.lab('retry'), a.lab('done')
        a.e(f'{chk}:')
        self.maxchain(vmax, regs, True)
        a.e(f'v_cmp_eq_u32 vcc, -1, {vmax}')
        a.e(f's_cbranch_vccnz {retry}')
        a.e(f'{done}:')
        a.ool(f'{retry}:\ns_add_u32 {sPOLL}, {sPOLL}, 1\ns_cmp_gt_u32 {sPOLL}, 100000\ns_cbranch_scc1 {done}\n'
              + '\n'.join(reissue) + f'\ns_waitcnt vmcnt(0)\ns_branch {chk}')

    def maxchain(self, vmax, regs, first):
        a = self.a
        regs = list(regs)
        if first:
            if len(regs) >= 3:
                a.e(f'v_max3_u32 {vmax}, v{regs[0]}, v{regs[1]}, v{regs[2]}')
                regs = regs[3:]
            elif len(regs) == 2:
                a.e(f'v_max_u32 {vmax}, v{regs[0]}, v{regs[1]}')
                regs = []
            else:
                a.e(f'v_mov_b32 {vmax}, v{regs[0]}')
                regs = []
        while len(regs) >= 2:
            a.e(f'v_max3_u32 {vmax}, {vmax}, v{regs[0]}, v{regs[1]}')
            regs = regs[2:]
        if regs:
            a.e(f'v_max_u32 {vmax}, {vmax}, v{regs[0]}')

    def sleep(self, key):
        n = self.o.get('sleep', {}).get(key, 0)
        if n:
            self.a.e(f's_sleep {n}')

    def wave_only(self, w):
        a = self.a
        l = a.lab('notw')
        a.e(f's_cmp_lg_u32 {sV}, {w}')
        a.e(f's_cbranch_scc1 {l}')
        a.begin_skip()
        return l

    def end_only(self, lab):
        self.a.end_skip()
        self.a.e(f'{lab}:')

    def pos_bytes(self, dst, tmp):
        a = self.a
        a.e(f'v_lshlrev_b32 {dst}, 3, v0')
        a.e(f'v_and_b32 {dst}, 16, {dst}')
        a.e(f'v_and_or_b32 {dst}, v0, 12, {dst}')

    def sp_addr(self, dst, base):
        a = self.a
        a.e(f'v_and_b32 {dst}, 48, v0')
        a.e(f'v_lshlrev_b32 {dst}, 1, {dst}')
        a.e(f'v_and_or_b32 {dst}, {vL16}, 16, {dst}')
        if base:
            a.e(f'v_add_u32 {dst}, {base}, {dst}')

    def sums(self, dst, terms, const=0):
        a = self.a
        first = True
        for reg, mul in terms:
            d = dst if first else t0
            if mul & (mul - 1) == 0:
                a.e(f's_lshl_b32 {d}, {reg}, {mul.bit_length() - 1}')
            else:
                a.e(f's_mul_i32 {d}, {reg}, {mul}')
            if not first:
                a.e(f's_add_u32 {dst}, {dst}, {t0}')
            first = False
        if const:
            a.e(f's_add_u32 {dst}, {dst}, {const}')

    def k64_addr(self, vt, vu):
        a = self.a
        a.e(f'v_lshrrev_b32 {vt}, 2, v0')
        a.e(f'v_lshlrev_b32 {vt}, 13, {vt}')
        a.e(f'v_and_or_b32 {vt}, {vL16}, 48, {vt}')

    def wq_prep(self, vt, vu):
        a = self.a
        a.e(f'v_lshrrev_b32 {vu}, 4, v0')
        a.e(f'v_lshlrev_b32 {vt}, 5, {vu}')
        a.e(f'v_xor_b32 {vt}, {vt}, {vL16}')
        a.e(f'v_and_b32 {vt}, 0xf0, {vt}')
        a.e(f'v_lshl_or_b32 {vt}, {vu}, 13, {vt}')
        a.e(f'v_xor_b32 {vu}, 0x80, {vt}')

    def wq_issue(self, srd, vt, vu, parts):
        a = self.a
        pol = self.o.get('pol_w', '')
        for i in parts:
            if i == parts[0] or i == 3:
                a.e(f's_add_u32 m0, {sW8}, {(i // 3) * 3072}')
            a.e(f's_add_u32 {t1}, {oWQ}, {i * 4 * 8192 - (i % 3) * 1024}')
            a.e(f'buffer_load_dwordx4 {vu if (i >> 1) & 1 else vt}, {srd}, {t1} offen offset:{(i % 3) * 1024} {pol} lds')
        a.tag_vm('wq')

    def dma_wq(self, srd, vt, vu):
        self.wq_prep(vt, vu)
        self.wq_issue(srd, vt, vu, list(range(6)))

    def dma_wuv(self, vt):
        a = self.a
        pol = self.o.get('pol_w', '')
        self.k64_addr(vt, None)
        for i in range(4):
            a.e(f's_add_u32 m0, {sW8}, {i * 1024}')
            a.e(f's_add_u32 {t1}, {oWUV}, {i * 16 * 8192}')
            a.e(f'buffer_load_dwordx4 {vt}, {WUV}, {t1} offen {pol} lds')
        a.tag_vm('wuv')

    def wuk_prep(self, vt, vu):
        a = self.a
        a.e(f'v_lshrrev_b32 {vu}, 4, v0')
        a.e(f'v_lshlrev_b32 {vt}, 5, {vu}')
        a.e(f'v_xor_b32 {vt}, {vt}, {vL16}')
        a.e(f'v_and_b32 {vt}, 0xf0, {vt}')
        a.e(f'v_lshl_or_b32 {vt}, {vu}, 13, {vt}')

    def wuk_issue(self, vt, vu):
        a = self.a
        pol = self.o.get('pol_w', '')
        a.e(f's_mov_b32 m0, {sW8}')
        for q in range(4):
            a.e(f's_add_u32 {t1}, {oWUK}, {q * (4 * 8192 - 1024)}')
            if q:
                a.e(f'v_xor_b32 {vu}, {TBL[q] << 4}, {vt}')
            a.e(f'buffer_load_dwordx4 {vu if q else vt}, {WUK}, {t1} offen offset:{q * 1024} {pol} lds')
        a.tag_vm('wuk')

    def wo_prep(self, R, tmp):
        a = self.a
        for i in range(3):
            a.e(f'v_add_u32 v{R + i}, {64 * i}, v0')
            a.e(f'v_mul_u32_u24 {tmp}, 21846, v{R + i}')
            a.e(f'v_lshrrev_b32 {tmp}, 16, {tmp}')
            a.e(f'v_mul_u32_u24 {tmp}, {1152 - 48}, {tmp}')
            a.e(f'v_lshl_add_u32 v{R + i}, v0, 4, {tmp}')
        a.e(f's_add_u32 {t5}, {oWO}, {64 * 1152}')

    def wo_lines(self, srd, R):
        pol = self.o.get('pol_w', '')
        out = []
        for h in range(2):
            out.append(f's_add_u32 m0, {sW8}, {h * 3072}')
            for i in range(3):
                out.append(f'buffer_load_dwordx4 v{R + i}, {srd}, {t5 if h else oWO} offen offset:{i * 1024} {pol} lds')
        return out

    def dma_wo(self, srd, R, tmp):
        self.wo_prep(R, tmp)
        for x in self.wo_lines(srd, R):
            self.a.e(x)
        self.a.tag_vm('wo')

    def touch(self, what, vt, vd):
        a = self.a
        if what in ('bwq', 'wuv', 'wuk'):
            srd = {'bwq': BWQ, 'wuv': WUV, 'wuk': WUK}[what]
            a.e(f'v_lshrrev_b32 {vt}, 3, v0')
            a.e(f'v_lshlrev_b32 {vt}, 6, {vt}')
            a.e(f'v_and_or_b32 {vt}, v0, 7, {vt}')
            a.e(f'v_lshlrev_b32 {vt}, 7, {vt}')
            rows = 5 if what == 'bwq' else 4
            self.sums(t1, [(sJ, 4 * rows * 8192), (sV, rows * 8192), (sX, 1024)])
            a.e(f's_mov_b32 exec_hi, {0xff if rows == 5 else 0}')
            self.touch_ld(vd, vt, srd)
        else:
            srd = {'wo': WO, 'bwo': BWO}[what]
            a.e(f'v_lshlrev_b32 {vt}, 7, v0')
            self.sums(t1, [(sX, 512 * 1152), (sJ, 18432), (sV, 4608)])
            a.e('s_mov_b32 exec_hi, 15')
            self.touch_ld(vd, vt, srd)

    def touch_ld(self, vd, vt, srd):
        a = self.a
        if vd is None:
            a.e(f's_mov_b32 m0, {STG + 3 * 8192 + 7936}')
            a.e(f'buffer_load_dword {vt}, {srd}, {t1} offen lds')
        else:
            a.e(f'buffer_load_dword {vd}, {vt}, {srd}, {t1} offen')
        a.e('s_mov_b32 exec_hi, -1')

    def touches(self, where, vt, vd):
        for w in self.o.get('touch', {}).get(where, []):
            self.touch(w, vt, vd)

    def lnq_addr(self):
        a = self.a
        a.e('v_lshrrev_b32 v52, 4, v0')
        a.e('v_cmp_gt_u32 vcc, 3, v52')
        a.e('v_bfe_u32 v53, v0, 2, 2')
        a.e('v_cndmask_b32 v52, 0, v52, vcc')
        a.e('v_and_b32 v54, 1, v52')
        a.e('v_lshl_add_u32 v54, v54, 2, v53')
        a.e('v_lshl_add_u32 v52, v52, 3, v53')
        a.e('v_and_b32 v53, 3, v0')
        a.e('v_lshl_or_b32 v53, v54, 2, v53')
        a.e('v_lshlrev_b32 v53, 3, v53')
        a.e('v_lshl_or_b32 v52, v52, 8, v53')
        a.e(f's_lshl_b32 {t0}, {sV}, 6')
        a.e(f's_add_u32 {t0}, {t0}, {STG}')
        a.e(f'v_xor_b32 v52, {t0}, v52')
        a.e('v_xor_b32 v54, 32, v52')

    def lnq_prep(self):
        a = self.a
        a.wait(vm='wq')
        a.e('s_barrier')
        for rho in range(3):
            for tau in range(2):
                for half in range(2):
                    a.e(f'ds_read_b64_tr_b16 {vr(28 + 8 * rho + 4 * tau + 2 * half, 2)}, v{52 + 2 * tau} offset:{8192 * rho + 1024 * half}')
        a.e('s_waitcnt lgkmcnt(0)')
        a.e('s_barrier')

    def lnq_rows(self):
        a = self.a
        a.e('v_mov_b32 v53, 0x3f803f80')
        a.e(f's_lshl_b64 s[82:83], {MY}, 8')
        a.e('v_cndmask_b32 v16, 0, v53, s[82:83]')
        a.e('v_mov_b32 v17, v16')
        for r in range(18, 28, 2):
            a.e(f'v_mov_b64 {vr(r, 2)}, v[16:17]')

    def lnq_mfma(self, rho):
        a = self.a
        A = vr(16 + 4 * rho, 4)
        c = (lambda r: '0') if rho == 0 else (lambda r: r)
        a.e(f'v_mfma_f32_16x16x32_bf16 v[60:63], {A}, {A}, {c("v[60:63]")}')
        a.e(f'v_mfma_f32_16x16x32_bf16 v[52:55], {A}, {vr(28 + 8 * rho, 4)}, {c("v[52:55]")}')
        a.e(f'v_mfma_f32_16x16x32_bf16 v[56:59], {A}, {vr(32 + 8 * rho, 4)}, {c("v[56:59]")}')

    def lnq_reduce(self, isb):
        a = self.a
        a.e('v_pk_add_f32 v[60:61], v[60:61], v[62:63]')
        a.e('v_add_f32 v60, v60, v61')
        a.e('v_pk_add_f32 v[52:53], v[52:53], v[54:55]')
        a.e('v_mov_b32 v61, v60')
        a.e('v_pk_add_f32 v[56:57], v[56:57], v[58:59]')
        a.e('v_add_f32 v52, v52, v53')
        a.e('v_permlane16_swap_b32 v60, v61')
        a.e('v_add_f32 v56, v56, v57')
        a.e('v_add_f32 v60, v60, v61')
        a.e('v_permlane16_swap_b32 v52, v56')
        a.e(f'v_add_f32_dpp v60, v60, v60 quad_perm:[1,0,3,2] {FULL}')
        a.e('v_add_f32 v52, v52, v56')
        self.lcmp()
        a.e(f'v_add_f32_dpp v60, v60, v60 quad_perm:[2,3,0,1] {FULL}')
        if isb:
            a.e(f'v_mov_b32_dpp v53, v52 quad_perm:[1,0,3,2] {FULL}')
            a.e('v_cvt_pk_bf16_f32 v52, v52, v53')
        a.e(f'v_add_f32_dpp v60, v60, v60 row_half_mirror {FULL}')

    def lnq_pubaddr(self, isb, first):
        a = self.a
        if isb:
            self.pos_bytes('v14', None)
            a.e('v_and_b32 v15, 16, v0')
            a.e('v_lshl_or_b32 v14, v15, 4, v14')
            a.e('v_and_b32 v15, 32, v0')
            a.e('v_lshl_or_b32 v14, v15, 6, v14')
        else:
            a.e('v_and_b32 v14, 31, v0')
            a.e('v_lshlrev_b32 v14, 2, v14')
            if first:
                a.e('v_lshrrev_b32 v15, 5, v0')
                a.e(f'v_mul_u32_u24 v15, {L_CSA - L_QA}, v15')
                a.e('v_add_u32 v14, v14, v15')
        a.e('v_lshrrev_b32 v15, 1, v0')

    def lnq_publish(self, isb, first, q='v52', st='v60', qa='v14', sa='v15'):
        lines = []
        if isb:
            lines += ['s_mov_b32 exec_lo, 0x55555555', 's_mov_b32 exec_hi, 0x55555555']
        elif not first:
            lines += ['s_mov_b32 exec_hi, 0']
        lines += [f'buffer_store_dword {q}, {qa}, {WSL}, {oQB if isb else oQA} offen',
                  's_mov_b64 exec, 0x101',
                  f'buffer_store_dword {st}, {sa}, {WSL}, {oST} offen offset:{256 if isb else 0}',
                  's_mov_b64 exec, -1']
        self.lstore(lines)

    def lnq_tail(self, goff, isb):
        a = self.a
        self.lnq_rows()
        a.e('v_and_b32 v12, 7, v0')
        a.e('v_mul_u32_u24 v12, 3072, v12')
        a.e('v_and_or_b32 v12, v0, 48, v12')
        a.e(f's_add_u32 {t4}, {oY}, {goff}')
        l = a.lab('now')
        a.e(f's_cmp_eq_u32 {sV}, 3')
        a.e(f's_cbranch_scc1 {l}')
        a.begin_skip()
        self.dma_wq(BWQ if isb else WQ, 'v8', 'v9')
        self.end_only(l)
        a.e('s_barrier')
        self.lnq_addr()
        self.lnq_pubaddr(isb, False)
        if isb:
            self.wuk_prep('v8', 'v9')
        else:
            self.c1_addr('v56', 'v57')
            for r in range(8, 12):
                a.e(f'v_mov_b32 v{r}, -1')
        self.sleep('h2a' if isb else 'h2b')
        ld = [f's_mov_b64 exec, {MY}']
        for rho in range(3):
            ld.append(f'buffer_load_dwordx4 {vr(16 + 4 * rho, 4)}, v12, {WSG}, {t4} offen offset:{128 * rho} sc1')
        ld.append('s_mov_b64 exec, -1')
        for x in ld:
            a.e(x)
            if x.startswith('buffer'):
                a.tag_vm('y' + x.split('offset:')[1].split()[0])
        self.lnq_prep()
        self.stamp('wqrdy', 2)
        if isb:
            self.wuk_issue('v8', 'v9')
        else:
            self.lcmp()
            self.lstore([f'buffer_store_dwordx4 v[8:11], v56, {WS}, {oC1g} offen offset:{i * 1024}' for i in range(4)])
        chk, retry, done = a.lab('chk'), a.lab('retry'), a.lab('done')
        a.e(f'{chk}:')
        for rho in range(3):
            a.wait(vm=f'y{128 * rho}')
            if rho == 2:
                self.maxchain('v13', range(16 + 4 * rho, 20 + 4 * rho), False)
                self.poll_cmp('v13')
            self.lnq_mfma(rho)
            if rho < 2:
                self.maxchain('v13', range(16 + 4 * rho, 20 + 4 * rho), rho == 0)
        a.e(f's_cbranch_vccnz {retry}')
        a.e(f'{done}:')
        a.ool(f'{retry}:\ns_add_u32 {sPOLL}, {sPOLL}, 1\ns_cmp_gt_u32 {sPOLL}, 100000\ns_cbranch_scc1 {done}\n'
              + '\n'.join(ld) + f'\ns_waitcnt vmcnt(0)\ns_branch {chk}')
        self.stamp('h2got', 2)
        self.lnq_reduce(isb)
        self.lnq_publish(isb, False)
        self.stamp('qpub')

    def c1_addr(self, dst, tmp):
        a = self.a
        a.e(f'v_lshrrev_b32 {tmp}, 4, v0')
        a.e(f'v_and_b32 {dst}, 0xf0, {vL16}')
        a.e(f'v_lshl_or_b32 {dst}, {tmp}, 12, {dst}')

    def stats(self, S):
        out = []
        for c in (4, 2, 1):
            out.append(f'v_add_f32_dpp v{S + 1}, v{S + 1}, v{S + 1} row_ror:{c} {FULL}')
            out.append(f'v_add_f32_dpp v{S}, v{S}, v{S} row_ror:{c} {FULL}')
        out.append(f'v_mul_f32 v{S + 1}, {f32(1.0 / (8 * 576))}, v{S + 1}')
        out.append(f'v_mul_f32 v{S}, {f32(1.0 / 576)}, v{S}')
        out.append(f'v_fma_f32 v{S}, -v{S + 1}, v{S + 1}, v{S}')
        out.append(f'v_max_f32 v{S}, 0, v{S}')
        out.append(f'v_add_f32 v{S}, {f32(1e-5)}, v{S}')
        out.append(f'v_rsq_f32 v{S}, v{S}')
        out.append(f'v_mul_f32 v{S + 1}, 0x3e000000, v{S + 1}')
        out.append(f'v_mul_f32 v{S}, {f32(QSCALE)}, v{S}')
        return out

    def mix(self, x, y):
        x, y = list(x), list(y)
        while x or y:
            if x:
                self.a.e(x.pop(0))
            if y:
                self.a.e(y.pop(0))

    def resid(self, goff, base, va, final):
        a = self.a
        a.e(f'v_lshlrev_b32 {va}, 2, v0')
        a.e(f's_add_u32 {t2}, {oRES}, {goff}')
        a.e('s_mov_b64 exec, 0xfff')
        if final:
            self.sleep('fin')
        self.poll_begin()
        for i in range(8):
            if i & 1 == 0:
                a.e(f's_add_u32 {t3}, {t2}, {i * 3072}')
            a.e(f'buffer_load_dword v{base + i}, {va}, {WSG}, {t3} offen offset:{(i & 1) * 3072} sc1')
        a.e('s_waitcnt vmcnt(0)')
        self.maxchain(f'v{base + 8}', range(base, base + 8), True)
        self.poll_end(f'v{base + 8}')
        a.e(f'v_lshlrev_b32 v4, 16, v{base}')
        a.e(f'v_and_b32 v5, 0xffff0000, v{base}')
        for i in range(1, 8):
            a.e(f'v_lshlrev_b32 v{base}, 16, v{base + i}')
            a.e(f'v_and_b32 v{base + i}, 0xffff0000, v{base + i}')
            a.e(f'v_add_f32 v4, v4, v{base}')
            a.e(f'v_add_f32 v5, v5, v{base + i}')

    def resid_track(self, goff, base, va):
        a = self.a
        l2 = a.lab('nores')
        a.e(f's_cmp_lg_u32 {sRES}, 3')
        a.e(f's_cbranch_scc1 {l2}')
        a.begin_skip()
        self.resid(goff, base, va, False)
        a.e('s_mov_b64 exec, -1')
        a.end_skip()
        a.e(f'{l2}:')

    def qa_addr(self, T):
        a = self.a
        a.e(f'v_and_b32 v{T}, 4, v0')
        a.e(f'v_lshlrev_b32 v{T}, 3, v{T}')
        a.e(f'v_and_b32 v{T + 1}, 3, v0')
        a.e(f'v_lshl_or_b32 v{T}, v{T + 1}, 2, v{T}')
        a.e(f'v_lshrrev_b32 v{T + 1}, 5, v0')
        a.e(f'v_lshl_or_b32 v{T}, v{T + 1}, 4, v{T}')
        a.e(f'v_bfe_u32 v{T + 1}, v0, 4, 1')
        a.e(f'v_lshl_or_b32 v{T}, v{T + 1}, 1, v{T}')
        a.e(f's_lshl_b32 {t0}, {sV}, 6')
        a.e(f's_add_u32 {t0}, {t0}, {ZQ}')
        a.e(f'v_add_u32 v{T}, {t0}, v{T}')
        a.e(f'v_and_b32 v{T + 1}, 7, v0')
        a.e(f'v_lshlrev_b32 v{T + 1}, 3, v{T + 1}')
        self.sp_addr(f'v{T + 2}', ZQ)

    def red8(self, R):
        return [f'v_permlane32_swap_b32 v{R}, v{R + 2}',
                f'v_permlane32_swap_b32 v{R + 1}, v{R + 3}',
                f'v_pk_add_f32 {vr(R, 2)}, {vr(R, 2)}, {vr(R + 2, 2)}',
                f'v_permlane16_swap_b32 v{R}, v{R + 1}',
                f'v_add_f32 v{R}, v{R}, v{R + 1}',
                f'v_add_f32_dpp v{R}, v{R}, v{R} row_ror:8 {FULL}']

    def qa_loads(self, R, S, T):
        return [f'buffer_load_dwordx2 {vr(S, 2)}, v{T + 1}, {WSL}, {oSTgA} offen sc1',
                f'buffer_load_dwordx4 {vr(R, 4)}, {vL16}, {WSL}, {oQgA} offen sc1']

    def qa_finish(self, R, S, T, Q, br=False):
        a = self.a
        self.mix(self.stats(S), self.red8(R) + [f'v_and_b32 v{R + 1}, 0xffff0000, v1'])
        a.e(f'v_fma_f32 v{R}, -v{S + 1}, v{R + 1}, v{R}')
        a.e(f'v_mul_f32 v{R}, v{R}, v{S}')
        a.e(f'v_cvt_pk_bf16_f32 v{R}, v{R}, v{R}')
        a.e(f'ds_write_b16 v{T}, v{R}')
        a.e('s_waitcnt vmcnt(0) lgkmcnt(0)' if br else 's_waitcnt lgkmcnt(0)')
        a.e('s_barrier')
        a.e(f'ds_read_b128 {vr(Q, 4)}, v{T + 2}')
        a.tag_ds('q0')
        a.e(f'ds_read_b128 {vr(Q + 4, 4)}, v{T + 2} offset:128')
        a.tag_ds('q1')

    def p_addr(self, r, t):
        a = self.a
        a.e(f'v_and_b32 {r}, 0x32, v0')
        a.e(f'v_lshlrev_b32 {r}, 3, {r}')
        a.e(f'v_and_b32 {t}, 8, v0')
        a.e(f'v_lshl_or_b32 {r}, {t}, 2, {r}')
        a.e(f'v_and_b32 {t}, 5, v0')
        a.e(f'v_lshl_or_b32 {r}, {t}, 1, {r}')
        a.e(f'v_add_u32 {r}, {sW8}, {r}')

    def qk_softmax(self, Q, D, S, T, fill=()):
        a = self.a
        for t in range(19):
            if t >= 3:
                d = D + 4 * ((t - 3) & 3)
                a.e(f'v_add_f32_dpp v{S + ((t - 3) & 3)}, v{d}, v{d + 1} {DPPI} row_mask:{1 << ((t - 3) >> 2)} bank_mask:0xf')
            if 4 <= t + 1 < 16:
                a.e(f'v_mov_b64 {vr(D + 4 * ((t + 1) & 3), 2)}, 0')
            if t < 16:
                d = vr(D + 4 * (t & 3), 4)
                if t == 0:
                    a.wait(ds='q0')
                a.e(f'v_smfmac_f32_16x16x64_bf16 {d}, {vr(Q, 4)}, a[{16 * t}:{16 * t + 7}], v1')
                if t == 0:
                    a.wait(ds='q1')
                elif t - 1 < len(fill):
                    for x in fill[t - 1]:
                        a.e(x)
                a.e(f'v_smfmac_f32_16x16x64_bf16 {d}, {vr(Q + 4, 4)}, a[{16 * t + 8}:{16 * t + 15}], v1')
        m = f'v{T}'
        a.e(f'v_max3_f32 {m}, v{S}, v{S + 1}, v{S + 2}')
        a.e(f'v_max_f32 {m}, {m}, v{S + 3}')
        for c in ('row_ror:8', 'row_ror:4', 'row_ror:2', 'row_ror:1'):
            a.e(f'v_max_f32_dpp {m}, {m}, {m} {c} {FULL}')
        a.e(f'v_max_f32_dpp {m}, {m}, {m} row_bcast:15 row_mask:0xa bank_mask:0xf')
        a.e(f'v_max_f32_dpp {m}, {m}, {m} row_bcast:31 row_mask:0xc bank_mask:0xf')
        a.e(f'v_readlane_b32 {sM}, {m}, 63')
        for r in range(4):
            a.e(f'v_subrev_f32 v{S + r}, {sM}, v{S + r}')
        for r in range(4):
            a.e(f'v_exp_f32 v{S + r}, v{S + r}')
        a.e(f'v_cvt_pk_bf16_f32 v{T + 2}, v{S}, v{S + 1}')
        a.e(f'v_cvt_pk_bf16_f32 v{T + 3}, v{S + 2}, v{S + 3}')
        a.e(f'ds_write_b16 v{T + 1}, v{T + 2} offset:6144')
        a.e(f'ds_write_b16_d16_hi v{T + 1}, v{T + 2} offset:{6144 + 4}')
        a.e(f'ds_write_b16 v{T + 1}, v{T + 3} offset:{6144 + 64}')
        a.e(f'ds_write_b16_d16_hi v{T + 1}, v{T + 3} offset:{6144 + 68}')

    def lsum(self, l, S):
        out = [f'v_pk_add_f32 {vr(S, 2)}, {vr(S, 2)}, {vr(S + 2, 2)}', f'v_add_f32 {l}, v{S}, v{S + 1}']
        for c in ('row_ror:8', 'row_ror:4', 'row_ror:2', 'row_ror:1'):
            out.append(f'v_add_f32_dpp {l}, {l}, {l} {c} {FULL}')
        out.append(f'v_add_f32_dpp {l}, {l}, {l} row_bcast:15 row_mask:0xa bank_mask:0xf')
        out.append(f'v_add_f32_dpp {l}, {l}, {l} row_bcast:31 row_mask:0xc bank_mask:0xf')
        return out

    def ml_write(self, T):
        a = self.a
        a.e(f's_lshl_b32 {t0}, {sV}, 3')
        a.e(f's_add_u32 {t0}, {t0}, {ZML}')
        a.e(f'v_mov_b32 v{T + 2}, {t0}')
        a.e(f'v_mov_b32 v{T}, {sM}')
        a.e('s_mov_b32 exec_lo, 0')
        a.e('s_brev_b32 exec_hi, 1')
        a.e(f'ds_write_b64 v{T + 2}, {vr(T, 2)}')
        a.e('s_mov_b64 exec, -1')

    def combine_publish(self):
        a = self.a
        a.e('ds_write2st64_b32 v46, v44, v45 offset0:26 offset1:27')
        a.e(f'v_mov_b32 v9, {ZML}')
        a.e(f'v_mov_b32 v10, {STG + 6656}')
        a.e('v_lshl_add_u32 v8, v0, 3, v10')
        a.e('v_and_b32 v10, 56, v0')
        a.e('v_lshlrev_b32 v10, 5, v10')
        a.e(f'v_and_or_b32 v10, {vL16}, 16, v10')
        a.e('v_and_b32 v11, 6, v0')
        a.e('v_lshl_or_b32 v10, v11, 1, v10')
        a.e(f's_cmp_lg_u32 {sV}, 0')
        a.e('s_waitcnt lgkmcnt(0)')
        a.e('s_barrier')
        l = a.lab('notw')
        a.e(f's_cbranch_scc1 {l}')
        a.begin_skip()
        a.e('ds_read_b128 v[12:15], v9')
        a.e('ds_read_b128 v[16:19], v9 offset:16')
        a.tag_ds('ml')
        for w in range(4):
            a.e(f'ds_read_b64 {vr(20 + 2 * w, 2)}, v8 offset:{w * 8192}')
            a.tag_ds(f'o{w}')
        self.lcmp()
        a.wait(ds='ml')
        a.e('v_max3_f32 v28, v12, v14, v16')
        a.e('v_max_f32 v28, v28, v18')
        for w in range(4):
            a.e(f'v_sub_f32 v{12 + 2 * w}, v{12 + 2 * w}, v28')
        for w in range(4):
            a.e(f'v_exp_f32 v{12 + 2 * w}, v{12 + 2 * w}')
        a.e('v_mul_f32 v29, v12, v13')
        a.e('v_fmac_f32 v29, v14, v15')
        a.e('v_fmac_f32 v29, v16, v17')
        a.e('v_fmac_f32 v29, v18, v19')
        a.e('v_rcp_f32 v30, v29')
        a.wait(ds='o3')
        a.e('v_pk_mul_f32 v[20:21], v[20:21], v[12:13] op_sel_hi:[1,0]')
        for w in range(1, 4):
            a.e(f'v_pk_fma_f32 v[20:21], {vr(20 + 2 * w, 2)}, {vr(12 + 2 * w, 2)}, v[20:21] op_sel_hi:[1,0,1]')
        a.e('v_pk_mul_f32 v[20:21], v[20:21], v[30:31] op_sel_hi:[1,0]')
        a.e('v_log_f32 v29, v29')
        a.e('v_cvt_pk_bf16_f32 v20, v20, v21')
        a.e('v_add_f32 v29, v29, v28')
        self.lstore([f'buffer_store_dword v20, v10, {WSL}, {oOApub} offen',
                     's_mov_b64 exec, 1',
                     f'buffer_store_dword v29, v10, {WSL}, {oOALpub} offen',
                     's_mov_b64 exec, -1'])
        self.end_only(l)

    def w8(self, lw, t):
        return [f'v_max_f32_dpp {t}, {lw}, {lw} row_ror:4 {FULL}',
                f'v_max_f32_dpp {t}, {t}, {t} row_ror:2 {FULL}',
                f'v_max_f32_dpp {t}, {t}, {t} row_ror:1 {FULL}',
                f'v_sub_f32 {lw}, {lw}, {t}',
                f'v_exp_f32 {lw}, {lw}',
                f'v_add_f32_dpp {t}, {lw}, {lw} row_ror:4 {FULL}',
                f'v_add_f32_dpp {t}, {t}, {t} row_ror:2 {FULL}',
                f'v_add_f32_dpp {t}, {t}, {t} row_ror:1 {FULL}',
                f'v_rcp_f32 {t}, {t}']

    def rot8(self, dst, sh):
        a = self.a
        a.e(f'v_lshrrev_b32 {dst}, 4, v0')
        a.e(f'v_lshl_add_u32 {dst}, {dst}, 1, v0')
        a.e(f'v_and_b32 {dst}, 7, {dst}')
        a.e(f'v_lshlrev_b32 {dst}, {sh}, {dst}')

    def weigh2(self, skip=0, lw='v16'):
        a = self.a
        w = self.w8(lw, 'v17')
        for x in w[skip:6]:
            a.e(x)
        a.e('v_add_f32 v20, v20, v21')
        a.e('v_add_f32 v22, v22, v23')
        a.e(w[6])
        a.e('v_add_f32 v24, v24, v25')
        a.e('v_add_f32 v26, v26, v27')
        a.e(w[7])
        a.e(f'v_mul_f32_dpp v20, {lw}, v20 row_newbcast:0 {FULL}')
        a.e(f'v_mul_f32_dpp v24, {lw}, v24 row_newbcast:0 {FULL}')
        a.e(f'v_fmac_f32_dpp v20, {lw}, v22 row_newbcast:1 {FULL}')
        a.e(f'v_fmac_f32_dpp v24, {lw}, v26 row_newbcast:1 {FULL}')
        a.e(w[8])
        a.e('v_permlane32_swap_b32 v20, v24')
        a.e('v_add_f32 v20, v20, v24')
        a.e('v_mul_f32 v20, v20, v17')

    def outproj(self, isa):
        a = self.a
        a.e('v_lshrrev_b32 v28, 4, v0')
        a.e('v_bfe_u32 v29, v0, 2, 2')
        a.e('v_lshl_add_u32 v28, v28, 3, v29')
        a.e('v_mul_u32_u24 v28, 48, v28')
        a.e('v_and_b32 v29, 3, v0')
        a.e('v_lshl_add_u32 v28, v29, 3, v28')
        a.e(f'v_add_u32 v28, {sW8}, v28')
        a.wait(vm='wo')
        for blk in range(2):
            for tile in range(2):
                for hh in range(2):
                    for half in range(2):
                        off = (64 * blk + 32 * hh + 4 * half) * 48 + 32 * tile
                        a.e(f'ds_read_b64_tr_b16 {vr(32 + 16 * tile + 8 * blk + 4 * hh + 2 * half, 2)}, v28 offset:{off}')
        if isa:
            self.rot8('v30', 2)
        else:
            a.e(f's_add_u32 {t4}, {oO}, {L_OB - L_OA}')
        so = oO if isa else t4
        ld = []
        if isa:
            ld.append(f'buffer_load_dword v16, v30, {WSL}, {oOALg} offen sc1')
        ld.append(f'buffer_load_dwordx4 v[8:11], {vL16}, {WSL}, {so} offen sc1')
        ld.append(f'buffer_load_dwordx4 v[12:15], {vL16}, {WSL}, {so} offen offset:1024 sc1')
        self.sleep('h1' if isa else 'hd')
        for x in ld:
            a.e(x)
        a.e('v_and_b32 v18, 15, v0')
        a.e('v_lshrrev_b32 v19, 5, v0')
        a.e('v_lshl_add_u32 v18, v19, 4, v18')
        a.e('v_bfe_u32 v19, v0, 4, 1')
        a.e('v_lshlrev_b32 v19, 2, v19')
        a.e('v_lshl_add_u32 v18, v18, 5, v19')
        a.e(f's_lshl_b32 {t2}, {sV}, 3')
        a.e(f's_add_u32 {t2}, {t2}, {ZO}')
        a.e(f'v_add_u32 v18, {t2}, v18')
        a.e(f'v_mov_b32 v19, {ZO}')
        a.e('v_and_b32 v29, 15, v0')
        a.e('v_lshl_add_u32 v19, v29, 6, v19')
        a.e('v_lshlrev_b32 v29, 2, v0')
        a.e(f's_add_u32 {t2}, {oYpub}, {G_YA if isa else G_YB}')
        for r in range(20, 28, 2):
            a.e(f'v_mov_b64 {vr(r, 2)}, 0')
        a.e('s_waitcnt lgkmcnt(0)')
        self.pipe_poll(ld, 'v17', list(range(8, 17 if isa else 16)), 'po')
        a.e('v_smfmac_f32_16x16x64_bf16 v[20:23], v[8:11], v[32:39], v1')
        if isa:
            a.e('v_mov_b32 v31, v16')
        a.e('v_smfmac_f32_16x16x64_bf16 v[24:27], v[8:11], v[48:55], v1')
        w = self.w8('v31', 'v17')
        if isa:
            a.e(w[0])
        a.e('v_smfmac_f32_16x16x64_bf16 v[20:23], v[12:15], v[40:47], v1')
        if isa:
            a.e(w[1])
        a.e('v_smfmac_f32_16x16x64_bf16 v[24:27], v[12:15], v[56:63], v1')
        self.stamp('ogot')
        if isa:
            self.weigh2(2, 'v31')
        else:
            a.e('v_pk_add_f32 v[20:21], v[20:21], v[22:23]')
            a.e('v_pk_add_f32 v[24:25], v[24:25], v[26:27]')
            a.e('v_add_f32 v20, v20, v21')
            a.e('v_add_f32 v24, v24, v25')
            a.e('v_permlane32_swap_b32 v20, v24')
            a.e('v_add_f32 v20, v20, v24')
        a.e('ds_write_b32 v18, v20')
        a.e(f's_bitcmp0_b32 {sRES}, 0')
        a.e('s_waitcnt vmcnt(0) lgkmcnt(0)')
        a.e('s_barrier')
        l = a.lab('noy')
        a.e(f's_cbranch_scc1 {l}')
        a.begin_skip()
        for i in range(4):
            a.e(f'ds_read_b128 {vr(32 + 4 * i, 4)}, v19 offset:{16 * i}')
            a.tag_ds(f'z{i}')
        a.e('s_mov_b32 exec_hi, 0')
        a.wait(ds='z1')
        a.e('v_pk_add_f32 v[32:33], v[32:33], v[34:35]')
        a.e('v_pk_add_f32 v[36:37], v[36:37], v[38:39]')
        a.e('v_pk_add_f32 v[32:33], v[32:33], v[36:37]')
        a.e('v_add_f32 v32, v32, v33')
        a.wait(ds='z3')
        a.e('v_pk_add_f32 v[40:41], v[40:41], v[42:43]')
        a.e('v_pk_add_f32 v[44:45], v[44:45], v[46:47]')
        a.e('v_pk_add_f32 v[40:41], v[40:41], v[44:45]')
        a.e('v_add_f32 v33, v40, v41')
        a.e('v_pk_add_f32 v[32:33], v[32:33], v[4:5]')
        a.e('v_cvt_pk_bf16_f32 v32, v32, v33')
        a.e(f'buffer_store_dword v32, v29, {WSG}, {t2} offen sc1')
        a.e('s_mov_b32 exec_hi, -1')
        a.end_skip()
        a.e(f'{l}:')
        self.stamp('ypub')

    def qabs(self):
        a = self.a
        a.e(f's_sub_u32 {t0}, {sW8}, {sKV}')
        a.e(f'v_add_u32 v36, {t0}, {vA}')
        a.wait(vm='wuk')
        for ks in range(4):
            if ks:
                a.e(f'v_xor_b32 v37, {ks << 6}, v36')
            a.e(f'ds_read_b128 {vr(40 + 4 * ks, 4)}, {"v37" if ks else "v36"}')
        a.e('v_and_b32 v36, 7, v0')
        a.e('v_lshlrev_b32 v37, 3, v36')
        self.sleep('hqb')
        self.poll_begin()
        a.e(f'buffer_load_dwordx2 v[34:35], v37, {WSL}, {oSTgB} offen sc1')
        for i in range(4):
            a.e(f'buffer_load_dwordx4 {vr(8 + 4 * i, 4)}, {vL16}, {WSL}, {oQgB} offen offset:{i * 1024} sc1')
            a.tag_vm(f'q{i}')
        for r in range(24, 32, 2):
            a.e(f'v_mov_b64 {vr(r, 2)}, 0')
        a.e('v_and_b32 v38, 8, v0')
        a.e('v_lshlrev_b32 v38, 3, v38')
        a.e('v_lshl_or_b32 v38, v36, 1, v38')
        a.e(f's_lshl_b32 {t0}, {sV}, 4')
        a.e(f's_add_u32 {t0}, {t0}, {ZQ}')
        a.e(f'v_add_u32 v38, {t0}, v38')
        a.e(f'v_add_u32 v39, {ZQ}, {vL16}')
        a.e('s_waitcnt lgkmcnt(0)')
        a.wait(vm='q0')
        a.e('v_smfmac_f32_16x16x64_bf16 v[24:27], v[8:11], v[40:47], v1')
        self.maxchain('v33', [34, 35, 8, 9, 10, 11], True)
        a.wait(vm='q1')
        a.e('v_smfmac_f32_16x16x64_bf16 v[24:27], v[12:15], v[48:55], v1')
        self.maxchain('v33', range(12, 16), False)
        a.wait(vm='q2')
        a.e('v_smfmac_f32_16x16x64_bf16 v[28:31], v[16:19], v[40:47], v1')
        self.maxchain('v33', range(16, 20), False)
        a.wait(vm='q3')
        a.e('v_smfmac_f32_16x16x64_bf16 v[28:31], v[20:23], v[48:55], v1')
        self.maxchain('v33', range(20, 24), False)
        self.poll_cmp('v33')
        st = self.stats(34)
        for x in st[:4]:
            a.e(x)
        st = st[4:]
        self.poll_br()
        self.stamp('qgotB', 2)
        self.mix(st, ['v_pk_add_f32 v[24:25], v[24:25], v[26:27]', 'v_add_f32 v24, v24, v25', f's_cmp_lg_u32 {sV}, 0',
                      'v_pk_add_f32 v[28:29], v[28:29], v[30:31]', 'v_add_f32 v28, v28, v29'])
        a.e('v_fma_f32 v24, -v35, v28, v24')
        a.e('v_mul_f32 v24, v24, v34')
        a.e('v_mov_b32 v25, v24')
        a.e('v_permlane32_swap_b32 v24, v25')
        a.e('v_add_f32 v24, v24, v25')
        a.e('v_mov_b32 v25, v24')
        a.e('v_permlane16_swap_b32 v24, v25')
        a.e('v_add_f32 v24, v24, v25')
        a.e('v_cvt_pk_bf16_f32 v24, v24, v24')
        a.e('ds_write_b16 v38, v24')
        a.e('s_waitcnt lgkmcnt(0)')
        a.e('s_barrier')
        l = a.lab('notw')
        a.e(f's_cbranch_scc1 {l}')
        a.begin_skip()
        a.e('s_mov_b64 exec, 0xff')
        a.e('ds_read_b128 v[24:27], v39')
        a.e('s_waitcnt lgkmcnt(0)')
        a.e(f'buffer_store_dwordx4 v[24:27], {vL16}, {WSG}, {oQApub} offen sc1')
        a.e('s_mov_b64 exec, -1')
        self.end_only(l)
        self.stamp('qapub')
        self.touches('w3', 'v8', 'v9')
        self.resid_track(G_YA, 10, 'v8')

    def attn_b(self):
        a = self.a
        a.e(f's_mul_i32 {t0}, {sV}, {4096 - 16384}')
        a.e(f's_add_u32 {t0}, {t0}, {CKV}')
        a.e(f'v_add_u32 v56, {t0}, {vA}')
        a.e('v_xor_b32 v57, 64, v56')
        ORD = [(r, ks) for kp in range(2) for r in range(4) for ks in (2 * kp, 2 * kp + 1)]
        a.e('v_and_b32 v58, 12, v0')
        a.e('v_lshlrev_b32 v58, 4, v58')
        a.e('v_and_or_b32 v58, v0, 48, v58')
        a.e('v_lshlrev_b32 v58, 2, v58')
        a.e(f'v_and_or_b32 v58, {vL16}, 48, v58')
        a.e(f'v_add_u32 v59, {STG}, {vL16}')
        self.sleep('ha')
        self.poll_begin()
        a.e('v_lshlrev_b32 v8, 7, v0')
        a.e('v_mov_b32 v9, 0')
        ld = [f's_mov_b32 m0, {sW8}', 's_mov_b32 exec_hi, 0', f'buffer_load_dword v9, v8, {WSG}, {oQAg} offen sc1', 's_mov_b32 exec_hi, -1']
        for ks in range(4):
            ld.append(f'buffer_load_dwordx4 v58, {WSG}, {oQAg} offen offset:{ks * 1024} sc1 lds')
        for x in ld:
            a.e(x)
        for k in range(8):
            r, ks = ORD[k]
            a.e(f'ds_read_b128 {vr(24 + 4 * k, 4)}, v{56 + (ks & 1)} offset:{r * 16384}')
        a.e('v_xor_b32 v56, 128, v56')
        a.e('v_xor_b32 v57, 128, v57')
        chk, retry, done = a.lab('chk'), a.lab('retry'), a.lab('done')
        a.e(f'{chk}:')
        a.e('s_waitcnt vmcnt(4)')
        a.e('v_cmp_eq_u32 vcc, -1, v9')
        a.e(f's_cbranch_vccnz {retry}')
        a.e(f'{done}:')
        a.ool(f'{retry}:\ns_add_u32 {sPOLL}, {sPOLL}, 1\ns_cmp_gt_u32 {sPOLL}, 100000\ns_cbranch_scc1 {done}\n'
              + '\n'.join(ld) + f'\ns_branch {chk}')
        a.e('s_waitcnt vmcnt(0) lgkmcnt(0)')
        a.e('s_barrier')
        self.stamp('qagot')

        def qread(k):
            r, ks = ORD[k]
            a.e(f'ds_read_b128 {vr(8 + 4 * (k & 3), 4)}, v59 offset:{r * 8192 + ks * 1024}')
            a.tag_ds(f'q{k}')
        for k in range(4):
            qread(k)
        for k in range(16):
            a.wait(ds=f'q{k}')
            a.e(f'v_mfma_f32_16x16x32_bf16 v[60:63], {vr(24 + 4 * (k & 7), 4)}, {vr(8 + 4 * (k & 3), 4)}, {"v[60:63]" if k else "0"}')
            if k < 8:
                r, ks = ORD[k + 8]
                a.e(f'ds_read_b128 {vr(24 + 4 * k, 4)}, v{56 + (ks & 1)} offset:{r * 16384}')
            if k + 4 < 16:
                qread(k + 4)
        SLOT = [16, 40, 48]

        def tread(e, ad='v57'):
            l = [f'v_xor_b32 {ad}, {CKV | (e << 5)}, {vT}']
            for t in range(4):
                l.append(f'ds_read_b64_tr_b16 {vr(SLOT[e % 3] + 2 * t, 2)}, {ad} offset:{t * 4096}')
            return l
        a.e('v_xor_b32 v56, 128, v56')
        a.e(f'v_add_u32 v8, {sW8}, {vL16}')
        for x in tread(0):
            a.e(x)
        a.e('ds_write_b128 v8, v[60:63] offset:7168')
        a.tag_ds('sw')
        for x in tread(1) + tread(2):
            a.e(x)
        a.e('v_xor_b32 v57, 64, v56')
        a.wait(ds='sw')
        a.e('s_barrier')
        self.stamp('sbar', 2)
        for t in range(4):
            a.e(f'ds_read_b128 {vr(24 + 4 * t, 4)}, v59 offset:{t * 8192 + 7168}')
            a.tag_ds(f's{t}')
        self.k64_addr('v8', None)
        a.e(f's_mov_b32 m0, {sW8}')
        a.wait(ds='s0')
        a.e('v_cmp_u_f32 vcc, v24, v24')
        a.e('v_max3_f32 v62, v24, v25, v26')
        a.wait(ds='s1')
        a.e('v_max3_f32 v62, v62, v27, v28')
        a.e('v_max3_f32 v62, v62, v29, v30')
        a.wait(ds='s2')
        a.e('v_max3_f32 v62, v62, v31, v32')
        a.e('v_max3_f32 v62, v62, v33, v34')
        a.wait(ds='s3')
        a.e('v_max3_f32 v62, v62, v35, v36')
        a.e('v_max3_f32 v62, v62, v37, v38')
        a.e('v_max_f32 v62, v62, v39')
        self.poll_br()
        pol = self.o.get('pol_w', '')
        dm = []
        for i in range(4):
            dm.append([f's_add_u32 {t1}, {oWUV}, {i * (16 * 8192 - 1024)}',
                       f'buffer_load_dwordx4 v8, {WUV}, {t1} offen offset:{i * 1024} {pol} lds'])
        a.e('v_mov_b32 v63, v62')
        for x in dm[0]:
            a.e(x)
        a.e('v_permlane32_swap_b32 v62, v63')
        a.e('v_max_f32 v62, v62, v63')
        a.e('v_mov_b32 v63, v62')
        for x in dm[1]:
            a.e(x)
        a.e('v_permlane16_swap_b32 v62, v63')
        a.e('v_max_f32 v62, v62, v63')
        for r in range(24, 40, 2):
            a.e(f'v_pk_add_f32 {vr(r, 2)}, {vr(r, 2)}, v[62:63] op_sel_hi:[1,0] neg_lo:[0,1] neg_hi:[0,1]')
        for x in dm[2]:
            a.e(x)
        for r in range(24, 32):
            a.e(f'v_exp_f32 v{r}, v{r}')
        for x in dm[3]:
            a.e(x)
        a.tag_vm('wuv')
        for r in range(4):
            a.e(f'v_cvt_pk_bf16_f32 v{8 + r}, v{24 + 2 * r}, v{25 + 2 * r}')
        for r in range(32, 40):
            a.e(f'v_exp_f32 v{r}, v{r}')
        ACC = [56, 32, 36]
        a.e(f'v_mfma_f32_16x16x32_bf16 v[56:59], v[8:11], {vr(SLOT[0], 4)}, 0')
        for r in range(4, 8):
            a.e(f'v_cvt_pk_bf16_f32 v{8 + r}, v{24 + 2 * r}, v{25 + 2 * r}')
        for r in range(24, 32, 2):
            a.e(f'v_pk_add_f32 {vr(r, 2)}, {vr(r, 2)}, {vr(r + 8, 2)}')
        self.stamp('smax', 2)
        filler = ['v_pk_add_f32 v[24:25], v[24:25], v[28:29]', 'v_pk_add_f32 v[26:27], v[26:27], v[30:31]',
                  'v_pk_add_f32 v[24:25], v[24:25], v[26:27]', 'v_add_f32 v63, v24, v25']

        def pack(q):
            d0, d1 = ACC[(2 * q) % 3], ACC[(2 * q + 1) % 3]
            for r in range(4):
                a.e(f'v_cvt_pk_bf16_f32 v{24 + 2 * r + (q & 1)}, v{d0 + r}, v{d1 + r}')
        so = [oC1pub, t1, t2, t3]

        def put(hf, more=[]):
            self.lstore([f'buffer_store_dwordx2 {vr(24 + 2 * r, 2)}, v61, {WS}, {so[r]} offen offset:{hf * 128}' for r in range(4)] + more)
        mlat = self.o.get('ml_at', 5)
        ml = ['v_lshlrev_b32 v60, 7, v0', 's_mov_b64 exec, 0xffff',
              f'buffer_store_dwordx2 v[62:63], v60, {WSL}, {oMLpub} offen', 's_mov_b64 exec, -1']
        for e in range(8):
            if e in (3, 5, 7):
                pack((e - 3) // 2)
            a.wait(ds=f't{e}')
            d = vr(ACC[e % 3], 4)
            s = SLOT[e % 3]
            if e:
                a.e(f'v_mfma_f32_16x16x32_bf16 {d}, v[8:11], {vr(s, 4)}, 0')
            if e == 1:
                a.e(filler[0]); a.e(filler[1])
            if e == 2:
                a.e(filler[2]); a.e(filler[3])
            if e == 3:
                a.e('v_permlane32_swap_b32 v63, v61')
                a.e('v_add_f32 v63, v63, v61')
            if e == 4:
                a.e('v_permlane16_swap_b32 v63, v61')
                a.e('v_add_f32 v63, v63, v61')
            if e == 5:
                a.e('v_lshrrev_b32 v61, 4, v0')
                a.e('v_lshlrev_b32 v61, 13, v61')
            a.e(f'v_mfma_f32_16x16x32_bf16 {d}, v[12:15], {vr(s + 4, 4)}, {d}')
            if e in (2, 3):
                a.e('v_mov_b32 v61, v63')
            if e + 3 < 8:
                for x in tread(e + 3, 'v60'):
                    a.e(x)
                a.tag_ds(f't{e + 3}')
            if e == 4 and mlat == 4:
                self.lcmp()
                self.lstore(ml)
            if e == 5:
                a.e('v_and_or_b32 v61, v0, 15, v61')
                a.e('v_lshlrev_b32 v61, 3, v61')
                a.e(f's_add_u32 {t1}, {oC1pub}, 16384')
                a.e(f's_add_u32 {t2}, {oC1pub}, 32768')
                a.e(f's_add_u32 {t3}, {oC1pub}, 49152')
                self.lcmp()
                put(0, ml if mlat == 5 else [])
            if e == mlat and e > 5:
                self.lstore(ml)
        pack(3)
        put(1, ml if mlat == 8 else [])
        self.stamp('c1pub')

    def red(self):
        a = self.a
        self.c1_addr('v43', 'v41')
        a.e('v_lshl_add_u32 v44, v41, 2, v0')
        a.e('v_and_b32 v44, 15, v44')
        a.e('v_lshlrev_b32 v44, 3, v44')
        a.e('v_and_b32 v40, 12, v0')
        a.e('v_lshlrev_b32 v40, 5, v40')
        a.e('v_and_or_b32 v40, v0, 51, v40')
        a.e(f'v_lshl_add_u32 v40, v40, 3, {sW8}')
        self.sleep('hc1')
        ld = [f'buffer_load_dwordx2 v[22:23], v44, {WSL}, {oMLg} offen sc1']
        a.e(ld[0])
        a.e('v_and_b32 v45, 8, v0')
        a.e('v_lshlrev_b32 v45, 3, v45')
        a.e('v_and_or_b32 v45, v0, 6, v45')
        a.e('v_lshlrev_b32 v45, 4, v45')
        a.e('v_and_or_b32 v45, v0, 16, v45')
        a.e('v_and_b32 v46, 1, v0')
        a.e('v_lshl_or_b32 v45, v46, 3, v45')
        a.e('v_lshrrev_b32 v46, 5, v0')
        a.e('v_lshl_or_b32 v45, v46, 2, v45')
        a.e('v_lshlrev_b32 v46, 2, v0')
        self.pipe_poll(ld, 'v47', [22, 23], 'pm')
        a.e('v_mov_b64 v[42:43], v[22:23]' if False else 'v_mov_b32 v41, v22')
        a.e('v_mov_b32 v42, v23')
        self.stamp('mlgot', 2)
        self.poll_begin()
        for i in range(4):
            a.e(f'buffer_load_dwordx4 {vr(8 + 4 * i, 4)}, v43, {WS}, {oC1g} offen offset:{i * 1024} sc1')
            a.tag_vm(f'c{i}')
        for tau in range(2):
            for gam in range(2):
                for tt in range(2):
                    a.e(f'ds_read_b64_tr_b16 {vr(48 + 8 * tau + 4 * gam + 2 * tt, 2)}, v40 offset:{(8 * gam + tt) * 64 + 32 * tau}')
        a.e('v_mov_b32 v24, v41')
        a.e('v_mov_b32 v25, v42')
        for r in range(28, 36, 2):
            a.e(f'v_mov_b64 {vr(r, 2)}, 0')
        a.e(f'v_max_f32_dpp v36, v24, v24 row_ror:8 {FULL}')
        for c in (4, 2):
            a.e(f'v_max_f32_dpp v36, v36, v36 row_ror:{c} {FULL}')
        a.e(f'v_max_f32_dpp v36, v36, v36 row_ror:1 {FULL}')
        a.e('v_sub_f32 v24, v24, v36')
        a.e('v_exp_f32 v24, v24')
        a.e('v_cvt_pk_bf16_f32 v26, v24, 0')
        a.e('v_cvt_pk_bf16_f32 v27, 0, v24')
        a.e('v_mul_f32 v25, v25, v27')
        extra = [f'v_add_f32_dpp v25, v25, v25 row_ror:{c} {FULL}' for c in (8, 4, 2, 1)]
        extra += ['v_rcp_f32 v38, v25', 'v_log_f32 v37, v25']
        for x in extra:
            a.e(x)
        k = len(extra)
        for i in range(4):
            a.wait(vm=f'c{i}')
            for d in range(4):
                a.e(f'v_dot2c_f32_bf16_dpp v{28 + 2 * d}, v26, v{8 + 4 * i + d} row_newbcast:{i} {FULL}')
                a.e(f'v_dot2c_f32_bf16_dpp v{29 + 2 * d}, v27, v{8 + 4 * i + d} row_newbcast:{i} {FULL}')
                if k < len(extra):
                    a.e(extra[k])
                    k += 1
        for i in range(4):
            a.e(f'v_permlane32_swap_b32 v{28 + i}, v{32 + i}')
        a.e('v_pk_add_f32 v[28:29], v[28:29], v[32:33]')
        a.e('v_pk_add_f32 v[30:31], v[30:31], v[34:35]')
        a.e('v_add_f32 v37, v37, v36')
        a.e('v_cmp_u_f32 vcc, v28, v30')
        a.e('v_permlane16_swap_b32 v28, v30')
        a.e('v_permlane16_swap_b32 v29, v31')
        a.e('v_pk_add_f32 v[28:29], v[28:29], v[30:31]')
        a.e('v_pk_mul_f32 v[28:29], v[28:29], v[38:39] op_sel_hi:[1,0]')
        a.e('v_cvt_pk_bf16_f32 v28, v28, v29')
        self.poll_br()
        a.e(f'buffer_store_dword v28, v45, {WSG}, {oC2pub} offen sc1')
        a.e('s_mov_b32 exec_hi, 0')
        a.e(f'buffer_store_dword v37, v46, {WSG}, {oC2Lpub} offen sc1')
        a.e('s_mov_b32 exec_hi, -1')
        self.stamp('c2pub')
        a.e('s_waitcnt lgkmcnt(0)')
        self.dma_wo(BWO, 8, 'v11')

    def wb(self, where):
        a = self.a
        if self.o.get('wb') != where:
            return
        l = a.lab('nowb')
        self.sums(t1, [(sJ, 8), (sV, 2), (sIT, 1)])
        a.e(f's_cmp_lg_u32 {t1}, {24 * 8 + 1}')
        a.e(f's_cbranch_scc1 {l}')
        a.begin_skip()
        a.e('buffer_wbl2 sc1')
        self.end_only(l)

    def uv(self):
        a = self.a
        self.sp_addr('v28', None)
        a.e('v_and_b32 v29, 14, v0')
        a.e('v_lshl_or_b32 v28, v29, 6, v28')
        self.rot8('v29', 7)
        self.pos_bytes('v30', None)
        a.e('v_and_b32 v31, 32, v0')
        a.e('v_lshl_or_b32 v30, v31, 3, v30')
        a.e('s_barrier')
        self.sleep('hc2')
        self.poll_begin()
        a.e(f'buffer_load_dword v16, v29, {WSG}, {oC2Lg} offen sc1')
        a.e(f'buffer_load_dwordx4 v[8:11], v28, {WSG}, {oC2g} offen sc1')
        for r in range(20, 28, 2):
            a.e(f'v_mov_b64 {vr(r, 2)}, 0')
        a.e('s_waitcnt vmcnt(0)')
        a.e('v_smfmac_f32_16x16x64_bf16 v[20:23], v[8:11], v[48:55], v1')
        self.maxchain('v18', [8, 9, 10, 11, 16], True)
        a.e('v_smfmac_f32_16x16x64_bf16 v[24:27], v[8:11], v[56:63], v1')
        self.poll_cmp('v18')
        w = self.w8('v16', 'v17')
        a.e(w[0])
        a.e(w[1])
        a.e(w[2])
        self.poll_br()
        self.stamp('c2got', 2)
        self.weigh2(3)
        a.e('v_mov_b32 v21, v20')
        self.lcmp()
        a.e('v_permlane16_swap_b32 v20, v21')
        a.e('v_add_f32 v20, v20, v21')
        a.e(f'v_mov_b32_dpp v21, v20 quad_perm:[1,0,3,2] {FULL}')
        a.e('v_cvt_pk_bf16_f32 v20, v20, v21')
        self.lstore(['s_mov_b32 exec_lo, 0x5555', 's_mov_b32 exec_hi, 0x5555',
                     f'buffer_store_dword v20, v30, {WSL}, {oOBpub} offen', 's_mov_b64 exec, -1'])
        self.stamp('dpub')
        self.wb('dpub')

    def attn_a3(self):
        a = self.a
        SLOT = [48, 56]

        def vread(e):
            a.e(f'v_xor_b32 v47, {e << 5}, {vT}')
            for t in range(4):
                a.e(f'ds_read_b64_tr_b16 {vr(SLOT[e & 1] + 2 * t, 2)}, v47 offset:{t * 4096}')
            a.tag_ds(f'v{e}')
        self.qa_addr(40)
        self.sleep('hqa')
        ld = self.qa_loads(8, 12, 40)
        for x in ld:
            a.e(x)
        vread(0)
        vread(1)
        for r in range(16, 32, 4):
            a.e(f'v_mov_b64 {vr(r, 2)}, 0')
        self.p_addr('v37', 'v36')
        self.wo_prep(43, 'v36')
        a.e(f's_sub_u32 {t0}, {sW8}, {ZQ}')
        a.e(f'v_add_u32 v46, {t0}, v42')
        self.pipe_poll(ld, 'v36', range(8, 14), 'pq')
        a.e('v_mov_b64 v[38:39], v[12:13]')
        a.e('v_mov_b64 v[32:33], v[8:9]')
        a.e('v_mov_b64 v[34:35], v[10:11]')
        self.stamp('qgotA', 2)
        self.qa_finish(32, 38, 40, 8, True)
        self.stamp('qrdy')
        wl = self.wo_lines(WO, 43)
        fill = [[wl[0]], [wl[1]], [], [wl[2]], [], [wl[3]], [wl[4]], [wl[5]], [], [wl[6]], [], [wl[7]]]
        self.qk_softmax(8, 16, 32, 36, fill)
        ls = self.lsum('v41', 32)
        for U in range(4):
            a.e(f'ds_read_b128 {vr(8 + 4 * U, 4)}, v46 offset:{6144 + 128 * U}')
            a.tag_ds(f'p{U}')
        a.e('v_mov_b64 v[24:25], 0')
        for x in ls[:5]:
            a.e(x)
        a.e(f'v_lshl_add_u32 v46, v0, 2, {sW8}')
        self.stamp('smaxA')
        ACC = [24, 28, 32]
        for e in range(10):
            if e >= 2:
                d = ACC[(e - 2) % 3]
                a.e(f'v_add_f32_dpp v{44 + ((e - 2) >> 2)}, v{d}, v{d + 1} {DPPI} row_mask:{1 << ((e - 2) & 3)} bank_mask:0xf')
            if e + 1 < 8:
                a.e(f'v_mov_b64 {vr(ACC[(e + 1) % 3], 2)}, 0')
            if e < 8:
                d = vr(ACC[e % 3], 4)
                order = [3, 0, 1, 2] if e else [0, 1, 2, 3]
                for U in order:
                    if e == 0:
                        a.wait(ds=f'p{U}')
                    if U == 3:
                        a.wait(ds=f'v{e}')
                        a.e(f'v_smfmac_f32_16x16x64_bf16 {d}, v[20:23], {vr(SLOT[e & 1], 8)}, v1')
                        pend = []
                        if e + 2 < 8:
                            pend = [f'v_xor_b32 v47, {(e + 2) << 5}, {vT}'] + \
                                   [f'ds_read_b64_tr_b16 {vr(SLOT[e & 1] + 2 * t, 2)}, v47 offset:{t * 4096}' for t in range(4)]
                        if e == 0:
                            for x in pend:
                                a.e(x)
                            a.tag_ds('v2')
                            pend = []
                        elif pend:
                            a.e(pend.pop(0))
                            a.e(pend.pop(0))
                    else:
                        a.e(f'v_smfmac_f32_16x16x64_bf16 {d}, {vr(8 + 4 * U, 4)}, {vr(64 + 64 * U + 8 * e, 8)}, v1')
                        if e == 6:
                            a.e(ls[5 + U])
                        if e and pend:
                            a.e(pend.pop(0))
                            if pend:
                                a.e(pend.pop(0))
                            if not pend:
                                a.tag_ds(f'v{e + 2}')
            if e == 7:
                self.ml_write(40)
        self.stamp('pvA')

    def dma_tile(self, t):
        a = self.a
        pol = self.o.get('pol_kv', 'nt')
        srd = K_ if t < 16 else V_
        a.e(f's_add_u32 m0, {sKV}, {(t & 3) * 4096}')
        a.e(f's_add_u32 {t0}, {sKG}, {(t & 15) * 16384}')
        for q in range(4):
            a.e(f'buffer_load_dwordx4 v{8 + q}, {srd}, {t0} offen offset:{q * 1024} {pol} lds')
        a.tag_vm(f'tile{t}')

    def dma_ckv(self, t):
        a = self.a
        pol = self.o.get('pol_c', '')
        a.e('v_lshrrev_b32 v62, 4, v0')
        a.e('v_mul_u32_u24 v62, 768, v62')
        a.e(f's_lshr_b32 {t2}, {sJ}, 1')
        self.sums(t1, [(sX, 1 << 20), (t2, 1 << 16), (sV, 256)])
        for q in range(4):
            a.e(f's_add_u32 m0, {sKV}, {CKV + t * 4096 + q * 1024}')
            a.e(f'v_add_u32 v63, v{8 + q}, v62')
            a.e(f's_add_u32 {t2}, {t1}, {(16 * t + 4 * q) * 1024}')
            a.e(f'buffer_load_dwordx4 v63, {CK}, {t2} offen {pol} lds')

    def prologue(self):
        a = self.a
        a.e('s_cmp_ge_u32 s2, 256')
        a.e('s_cbranch_scc1 L_end')
        if self.o.get('diag_fixed'):
            a.e('s_memrealtime s[100:101]')
        if self.o.get('stamps'):
            a.e('s_memrealtime s[98:99]')
        a.e('s_load_dwordx2 s[4:5], s[0:1], 8')
        ptrs = [(V_, 16), (CK, 48), (DBG, 96), (XIN, 0), (WQ, 24), (WO, 32), (BWQ, 56), (WUK, 64), (WUV, 72), (BWO, 80),
                (WS, 104), (OUT, 88)]
        sizes = {K_: 1 << 26, V_: 1 << 26, CK: 1 << 23, DBG: 256, XIN: 1152, WQ: 576 * 8192, WO: 4096 * 1152,
                 BWQ: 576 * 8192, WUK: 1 << 22, WUV: 1 << 22, BWO: 4096 * 1152, WS: WS_SIZE, WSL: L_X, WSG: G_IT, OUT: 1152}
        base = lambda s: int(s[2:s.index(':')])
        a.e('v_lshrrev_b32 v1, 6, v0')
        a.e('v_mov_b32 v63, v0')
        a.e(f'v_readfirstlane_b32 {sV}, v1')
        a.e('v_and_b32 v0, 63, v0')
        a.e(f's_and_b32 {sX}, s2, 7')
        a.e(f's_lshr_b32 {sJ}, s2, 3')
        a.e(f's_lshl_b32 {sKV}, {sV}, 14')
        self.sums(sKG, [(sX, 1 << 23), (sJ, 1 << 18), (sV, 1 << 12)])
        a.e(f'v_lshlrev_b32 {vL16}, 4, v0')
        a.e('v_and_b32 v12, 48, v0')
        a.e('v_lshlrev_b32 v12, 1, v12')
        a.e(f'v_xor_b32 v8, v12, {vL16}')
        for q in range(1, 4):
            a.e(f'v_xor_b32 v{8 + q}, {TBL[q] << 4}, v8')
        a.e(f's_mov_b32 s6, {sizes[K_]}')
        a.e('s_mov_b32 s7, 0x20000')
        a.e('s_waitcnt lgkmcnt(0)')
        for t in range(4):
            if t < self.o.get('depth', 4):
                self.dma_tile(t)
            for srd, off in ptrs[3 * t:3 * t + 3]:
                b = base(srd)
                a.e(f's_load_dwordx2 s[{b}:{b + 1}], s[0:1], {off}')
        for srd, n in sizes.items():
            if srd != K_:
                a.e(f's_mov_b32 s{base(srd) + 2}, {n}')
                a.e(f's_mov_b32 s{base(srd) + 3}, 0x20000')
        a.e(f's_getpc_b64 s[82:83]')
        a.e('L_pc:')
        a.e('v_lshlrev_b32 v62, 7, v63')
        a.e(f'v_min_u32 v62, L_codeend-L_pc, v62')
        a.e('global_load_dword v61, v62, s[82:83]')
        a.e(f's_lshr_b32 {t1}, {sJ}, 3')
        self.sums(sH, [(sX, 4), (t1, 1)])
        a.e(f's_and_b32 {sS}, {sJ}, 7')
        a.e(f's_mov_b32 {sIT}, 0')
        a.e(f's_mov_b32 {sPOLL}, 0')
        a.e(f's_mov_b32 {sST}, 0')
        self.sums(sW8, [(sV, 8192)], STG)
        a.e('s_mov_b32 s84, 0x00ff00ff')
        a.e('s_mov_b32 s85, 0x000000ff')
        self.sums(oY, [(sS, 384)])
        self.sums(oQA, [(t1, 4096), (sV, 1024), (sS, 128)], L_QA)
        self.sums(oQB, [(t1, 4096), (sV, 512), (sS, 32)], L_QB)
        self.sums(oST, [(sJ, 8)], L_STA)
        a.e(f's_cmp_eq_u32 {sV}, 0')
        a.e(f's_cselect_b32 {oST}, {oST}, {OOB}')
        self.sums(oQgA, [(t1, 4096), (sV, 1024)], L_QA)
        self.sums(oSTgA, [(t1, 64)], L_STA)
        self.sums(oWQ, [(sS, 72 * 8192), (sH, 256), (sV, 24 * 8192)])
        a.e(f's_cmp_eq_u32 {sV}, 3')
        a.e(f's_cselect_b32 {oWQ}, {OOB}, {oWQ}')
        self.sums(oWUV, [(sS, 64 * 8192), (sH, 256), (sV, 64)])
        self.sums(oWUK, [(sJ, 16 * 8192), (sX, 1024), (sV, 256)])
        self.sums(oWO, [(sX, 512 * 1152), (sV, 128 * 1152), (sJ, 48)])
        self.sums(oYpub, [(sX, 3072), (sJ, 128)])
        a.e(f's_cmp_lt_u32 {sJ}, 24')
        a.e(f's_cselect_b32 {oWO}, {oWO}, {OOB}')
        a.e(f's_cselect_b32 {sRES}, 1, 0')
        a.e(f's_cmp_eq_u32 {sV}, 3')
        a.e(f's_cselect_b32 {sRES}, {sRES}, 0')
        a.e(f's_mul_i32 {t0}, {sRES}, 3')
        a.e(f's_cmp_eq_u32 {sX}, 0')
        a.e(f's_cselect_b32 {sRES}, {t0}, {sRES}')
        if self.o.get('stamps'):
            a.e('v_mov_b32 v7, 0')
            a.e('s_mov_b32 s97, 0')
        a.e('v_and_b32 v14, 1, v0')
        a.e('v_mul_u32_u24 v1, 0xaaaa, v14')
        a.e('v_add_u32 v1, 0x4444, v1')

        def tbl(dst, x, tmp):
            a.e(f'v_lshrrev_b32 {tmp}, 1, {x}')
            a.e(f'v_xor_b32 {dst}, {x}, {tmp}')
            a.e(f'v_and_b32 {dst}, 1, {dst}')
            a.e(f'v_lshl_or_b32 {dst}, {dst}, 3, {tmp}')
        a.e('v_lshrrev_b32 v12, 4, v0')
        a.e('v_and_b32 v13, 15, v0')
        a.e('v_lshrrev_b32 v15, 2, v13')
        tbl('v16', 'v15', 'v17')
        a.e('v_and_b32 v17, 3, v13')
        a.e('v_lshlrev_b32 v18, 1, v17')
        a.e('v_xor_b32 v16, v16, v18')
        a.e('v_xor_b32 v16, v16, v12')
        a.e('v_lshlrev_b32 v16, 4, v16')
        a.e(f'v_lshl_or_b32 {vA}, v13, 8, v16')
        a.e(f'v_add_u32 {vA}, {sKV}, {vA}')
        tbl('v16', 'v12', 'v18')
        a.e('v_lshlrev_b32 v18, 1, v15')
        a.e('v_xor_b32 v16, v16, v18')
        a.e('v_lshrrev_b32 v18, 1, v17')
        a.e('v_xor_b32 v16, v16, v18')
        a.e('v_lshlrev_b32 v16, 4, v16')
        a.e('v_lshrrev_b32 v18, 2, v0')
        a.e('v_lshl_or_b32 v16, v18, 8, v16')
        a.e(f'v_lshl_or_b32 {vT}, v14, 3, v16')
        a.e(f'v_add_u32 {vT}, {sKV}, {vT}')
        a.e('s_waitcnt lgkmcnt(0)')
        self.stamp('start')
        w, l, g = base(WS), base(WSL), base(WSG)
        a.e(f's_lshl_b32 {t0}, {sX}, 17')
        a.e(f's_add_u32 s{l}, s{w}, {t0}')
        a.e(f's_addc_u32 s{l + 1}, s{w + 1}, 0')
        a.e(f's_add_u32 s{g}, s{w}, {GB}')
        a.e(f's_addc_u32 s{g + 1}, s{w + 1}, 0')
        self.dma_wq(WQ, 'v56', 'v57')
        self.lnq_rows()
        a.e(f's_mul_i32 {t0}, {sS}, 144')
        a.e('s_mov_b32 exec_lo, 0x00010001')
        a.e('s_mov_b32 exec_hi, 0x00000001')
        for rho in range(3):
            a.e(f'buffer_load_dwordx4 {vr(16 + 4 * rho, 4)}, v0, {XIN}, {t0} offen offset:{48 * rho}')
        a.e('s_mov_b64 exec, -1')
        a.e('v_lshlrev_b32 v58, 2, v0')
        a.e(f's_mul_i32 {t0}, {sJ}, 48')
        a.e(f's_cmp_eq_u32 {sRES}, 3')
        a.e(f's_cselect_b32 {t0}, {t0}, {OOB}')
        a.e(f'buffer_load_dword v5, v58, {XIN}, {t0} offen')
        for r in range(56, 60):
            a.e(f'v_mov_b32 v{r}, -1')
        self.sums(t3, [(sX, 128), (sJ, 4), (sV, 1)])
        a.e(f's_lshl_b32 {t4}, {t3}, 10')
        self.sums(t1, [(t3, 768)], GB)
        self.sums(t5, [(t3, 4096)], CB)
        a.e(f'buffer_store_dwordx4 v[56:59], {vL16}, {WS}, {t4} offen sc1')
        a.e('v_mul_u32_u24 v60, 12, v0')
        a.e(f'buffer_store_dwordx3 v[56:58], v60, {WS}, {t1} offen sc1')
        for i in range(4):
            a.e(f'buffer_store_dwordx4 v[56:59], {vL16}, {WS}, {t5} offen offset:{i * 1024} sc1')
        a.tag_vm('clr')
        for ks in range(4):
            a.e(f'v_xor_b32 v{12 + ks}, {ks << 6}, {vA}')

    def late_scalars(self):
        a = self.a
        a.e(f's_lshr_b32 {t1}, {sJ}, 3')
        a.e(f's_and_b32 {t2}, {sJ}, 1')
        a.e(f's_lshr_b32 {t3}, {sJ}, 1')
        a.e(f's_lshr_b32 {t4}, {sX}, 2')
        a.e(f's_and_b32 {t5}, {sX}, 3')
        self.sums(oQgB, [(sV, 4096)], L_QB)
        self.sums(oSTgB, [(sV, 64)], L_STB)
        self.sums(oQApub, [(t4, 16384), (t3, 1024), (t5, 256), (t2, 128)], G_QABS)
        self.sums(oQAg, [(t2, 16384), (sV, 4096)], G_QABS)
        self.sums(oC1pub, [(sX, 1 << 19), (t2, 1 << 18), (t3, 1024), (sV, 256)], CB)
        self.sums(oMLpub, [(t2, 2048), (t3, 8)], L_C1ML)
        self.sums(oC1g, [(sX, 1 << 19), (sJ, 16384), (sV, 256)], CB)
        self.sums(oMLg, [(sJ, 128)], L_C1ML)
        self.sums(oC2pub, [(sJ, 8192), (sV, 2048), (sX, 128)], G_C2)
        self.sums(oC2Lpub, [(sJ, 1024), (sX, 128)], G_C2L)
        self.sums(oC2g, [(sH, 8192), (sS, 1024)], G_C2)
        self.sums(oC2Lg, [(sH, 1024)], G_C2L)
        self.sums(oOBpub, [(t1, 2048), (sV, 512), (sS, 32)], L_OB)
        self.sums(oOApub, [(t1, 2048), (sS, 32)], L_OA)
        self.sums(oOALpub, [(sJ, 4)], L_OAL)
        self.sums(oOALg, [(sV, 32)], L_OAL)
        self.sums(oRES, [(sJ, 128)])
        self.sums(oO, [(sV, 2048)], L_OA)
        a.e(f's_cmp_eq_u32 {sV}, 0')
        a.e(f's_cselect_b32 {oMLpub}, {oMLpub}, {OOB}')
        a.e(f's_cselect_b32 {oC2Lpub}, {oC2Lpub}, {OOB}')

    def pv_block(self, U):
        a = self.a
        self.sp_addr('v63', sW8)
        a.e(f'ds_read_b128 v[20:23], v63 offset:{6144 + 128 * U}')
        a.e('s_waitcnt lgkmcnt(0)')
        for e in range(8):
            a.e(f'v_smfmac_f32_16x16x64_bf16 {vr(24 + 4 * e, 4)}, v[20:23], {vr(64 + 64 * U + 8 * e, 8)}, v1')

    def stream(self):
        a = self.a
        o = self.o
        ckv_at = o.get('ckv_at', [22, 23, 24, 25])
        depth = o.get('depth', 4)
        for t in range(28):
            a.wait(vm=f'tile{t}')
            if depth < 4:
                self.dma_tile(t + depth)
            slot = (t & 3) * 4096
            if t < 16:
                for ks in range(4):
                    a.e(f'ds_read_b128 a[{16 * t + 4 * ks}:{16 * t + 4 * ks + 3}], v{12 + ks} offset:{slot}')
            else:
                u = t - 16
                if u == 0:
                    for e in range(8):
                        a.e(f'v_xor_b32 v{12 + e}, {e << 5}, {vT}')
                for e in range(8):
                    a.e(f'ds_read_b64_tr_b16 {vr(64 + 64 * (u >> 2) + 8 * e + 2 * (u & 3), 2)}, v{12 + e} offset:{slot}')
            a.e('s_waitcnt lgkmcnt(0)')
            if depth == 4:
                self.dma_tile(t + 4)
            elif t == 27:
                for u in range(28 + depth, 32):
                    self.dma_tile(u)
            if t == 4:
                a.wait(vm='clr')
                a.e('v_lshlrev_b32 v60, 6, v0')
                a.e(f'buffer_load_dword v61, v60, {WS}, {t5} offen')
                a.e('v_and_b32 v60, 0x3ff, v60')
                a.e(f'buffer_load_dword v61, v60, {WS}, {t4} offen')
                a.tag_vm('touch')
                a.e('v_lshlrev_b32 v4, 16, v5')
                a.e('v_and_b32 v5, 0xffff0000, v5')
            if t == 5:
                a.e('s_barrier')
                l = self.wave_only(1)
                a.e('s_getreg_b32 s82, hwreg(HW_REG_XCC_ID, 0, 3)')
                a.e('s_lshl_b32 s82, s82, 3')
                a.e('s_lshl_b64 s[82:83], 1, s82')
                a.e('v_mov_b32 v58, s82')
                a.e('v_mov_b32 v59, s83')
                a.e(f's_lshl_b32 {t0}, {sX}, 5')
                a.e('s_mov_b64 exec, 1')
                a.e(f'buffer_atomic_add_x2 v[58:59], v0, {DBG}, {t0} offen sc1')
                a.e('s_mov_b64 exec, -1')
                self.end_only(l)
            if t == 9:
                a.wait(vm='touch')
                self.lnq_addr()
                self.lnq_prep()
                for rho in range(3):
                    self.lnq_mfma(rho)
                self.lnq_reduce(False)
                self.dma_wo(WO, 56, 'v63')
            if t == 10:
                a.e('v_and_b32 v57, 7, v0')
                a.e('v_lshlrev_b32 v57, 5, v57')
                a.e(f'buffer_load_dwordx2 v[58:59], v57, {DBG}, 0 offen sc1')
                a.tag_vm('cnt')
            if t == 15:
                chk, retry, done = a.lab('chk'), a.lab('cretry'), a.lab('cdone')
                a.wait(vm='cnt')
                a.e(f'{chk}:')
                a.e('v_sad_u8 v61, v58, 0, 0')
                a.e('v_sad_u8 v61, v59, 0, v61')
                a.e('v_cmp_ne_u32 vcc, 32, v61')
                a.e(f's_cbranch_vccnz {retry}')
                a.e(f'{done}:')
                a.ool(f'{retry}:\ns_add_u32 {sPOLL}, {sPOLL}, 1\ns_cmp_gt_u32 {sPOLL}, 100000\ns_cbranch_scc1 {done}\n'
                      f'buffer_load_dwordx2 v[58:59], v57, {DBG}, 0 offen sc1\ns_waitcnt vmcnt(0)\ns_branch {chk}')
                a.e('s_getreg_b32 s82, hwreg(HW_REG_XCC_ID, 0, 3)')
                a.e('s_lshl_b32 s82, s82, 3')
                a.e('s_lshl_b64 s[82:83], 32, s82')
                a.e(f'v_readlane_b32 {t2}, v58, {sX}')
                a.e(f'v_readlane_b32 {t3}, v59, {sX}')
                a.e(f's_cmp_eq_u64 s[82:83], s[80:81]')
                a.e(f's_cselect_b32 {sLOC}, {0 if o.get("force_slow") else 1}, 0')
                self.lnq_pubaddr(False, True)
                self.lcmp()
                self.lnq_publish(False, True)
            if t == 18:
                self.qa_addr(48)
                a.e(f's_add_u32 {t4}, {oQgA}, {L_CSA - L_QA}')
                ql = self.qa_loads(40, 52, 48) + [f'buffer_load_dwordx4 v[44:47], {vL16}, {WSL}, {t4} offen sc1']
                for x in ql:
                    a.e(x)
                a.tag_vm('q')
            if t == 22:
                a.wait(vm='q')
                self.late_check('v20', list(range(40, 48)) + [52, 53], ql)
                for x in self.red8(44):
                    a.e(x)
                a.e('v_cvt_pk_bf16_f32 v44, 0, v44')
                a.e('v_or_b32 v1, v1, v44')
                self.qa_finish(40, 52, 48, 56)
                for r in range(24, 40, 4):
                    a.e(f'v_mov_b64 {vr(r, 2)}, 0')
                self.p_addr('v45', 'v44')
                self.qk_softmax(56, 24, 40, 44)
                for x in self.lsum('v57', 40):
                    a.e(x)
                self.ml_write(56)
                for r in range(24, 56, 4):
                    a.e(f'v_mov_b64 {vr(r, 2)}, 0')
                a.e('s_waitcnt lgkmcnt(0)')
            for i, at in enumerate(ckv_at):
                if at == t:
                    self.dma_ckv(i)
            self.touches(f's{t}', 'v62', 'v31')
            if t == 23:
                self.pv_block(0)
            if t == 24:
                self.pv_block(1)
        self.late_scalars()
        self.pv_block(2)
        a.e(f'ds_read_b128 v[20:23], v63 offset:{6144 + 128 * 3}')
        a.wait(vm='tile31')
        self.stamp('kvdone')

        def vread(e, s):
            for t in range(4):
                a.e(f'ds_read_b64_tr_b16 {vr(s + 2 * t, 2)}, v{16 + (e & 3)} offset:{t * 4096}')
            a.tag_ds(f'v{e}')
        order = [4, 5, 6, 7, 0, 1, 2, 3]
        vread(order[0], 8)
        vread(order[1], 56)
        for i, e in enumerate(order):
            a.wait(ds=f'v{e}')
            s = [8, 56][i & 1]
            a.e(f'v_smfmac_f32_16x16x64_bf16 {vr(24 + 4 * e, 4)}, v[20:23], {vr(s, 8)}, v1')
            if i + 2 < 8:
                if i >= 2:
                    a.e(f'v_xor_b32 v{16 + (order[i + 2] & 3)}, {order[i + 2] << 5}, {vT}')
                vread(order[i + 2], s)
        for e in order:
            a.e(f'v_add_f32_dpp v{16 + (e >> 2)}, v{24 + 4 * e}, v{25 + 4 * e} {DPPI} row_mask:{1 << (e & 3)} bank_mask:0xf')
        a.e('v_mov_b64 v[44:45], v[16:17]')
        a.e(f'v_lshl_add_u32 v46, v0, 2, {sW8}')
        self.stamp('pv1')

    def build(self):
        a = self.a
        o = self.o
        base = lambda s: int(s[2:s.index(':')])
        self.prologue()
        self.stream()
        n0 = self.nst
        a.vmq = []
        l, g = base(WSL), base(WSG)
        a.e('L_top:')
        self.combine_publish()
        self.stamp('opub')
        lb = a.lab('it0')
        a.e(f's_cmp_eq_u32 {sIT}, 0')
        a.e(f's_cbranch_scc1 {lb}')
        a.begin_skip()
        self.resid_track(G_YB, 10, 'v8')
        a.e(f's_add_u32 s{g}, s{g}, {G_IT}')
        a.e(f's_addc_u32 s{g + 1}, s{g + 1}, 0')
        self.end_only(lb)
        self.outproj(True)
        self.lnq_tail(G_YA, True)
        self.qabs()
        self.attn_b()
        self.red()
        self.uv()
        self.outproj(False)
        a.e(f's_cmp_eq_u32 {sIT}, 1')
        a.e('s_cbranch_scc1 L_final')
        a.e(f's_add_u32 s{l}, s{l}, {L_IT}')
        a.e(f's_addc_u32 s{l + 1}, s{l + 1}, 0')
        a.e(f's_mov_b32 s{l + 2}, {L_IT}')
        a.e(f's_mov_b32 {sIT}, 1')
        self.lnq_tail(G_YB, False)
        self.attn_a3()
        self.nper = self.nst - n0
        if o.get('stamps'):
            a.e(f's_mov_b32 s97, {self.nper}')
        self.n0 = n0
        a.e('s_waitcnt vmcnt(0)')
        a.e('s_branch L_top')
        a.e('L_final:')
        self.wb('ypub')
        if o.get('clean', 0):
            a.e('s_barrier')
            a.e('v_lshrrev_b32 v41, 4, v0')
            a.e('v_and_b32 v42, 15, v0')
            a.e('v_lshlrev_b32 v43, 4, v42')
            a.e('v_lshl_or_b32 v43, v41, 12, v43')
            a.e(f's_cmp_eq_u32 {sRES}, 3')
            a.e('s_cbranch_scc1 L_fin1')
            for i in range(4):
                a.e(f'buffer_store_dwordx4 v[8:11], v43, {WS}, {oC1g} offen offset:{i * 1024} sc1')
            a.e('L_fin1:')
        a.e(f's_cmp_lg_u32 {sRES}, 3')
        a.e('s_cbranch_scc1 L_fin2')
        self.resid(G_YB, 10, 'v8', True)
        a.e('v_cvt_pk_bf16_f32 v4, v4, v5')
        a.e(f's_mul_i32 {t0}, {sJ}, 48')
        a.e(f'buffer_store_dword v4, v8, {OUT}, {t0} offen')
        a.e('s_mov_b64 exec, -1')
        a.e('L_fin2:')
        if o.get('diag_fixed'):
            a.e('L_dfx:')
            a.e('s_memrealtime s[94:95]')
            a.e('s_waitcnt lgkmcnt(0)')
            a.e('s_sub_u32 s94, s94, s100')
            a.e(f's_cmp_lt_u32 s94, {o["diag_fixed"]}')
            a.e('s_cbranch_scc1 L_dfx')
        if o.get('stamps'):
            a.e('s_waitcnt vmcnt(0) lgkmcnt(0)')
            self.stamp('end')
            a.e('s_waitcnt lgkmcnt(0)')
            a.e('v_writelane_b32 v7, s98, 62')
            a.e(f'v_writelane_b32 v7, {sPOLL}, 63')
            self.sums(t1, [('s2', 1024), (sV, 256)], STAMP)
            a.e('v_lshlrev_b32 v8, 2, v0')
            a.e(f'buffer_store_dword v7, v8, {WS}, {t1} offen')
        a.e('L_end:')
        a.e('s_endpgm')
        body = a.finish()
        ref = open('cdna_kernels/' + NAME + '.s.ref').read() if o.get('hdr', True) else ''
        hdr = ''.join(l + '\n' for l in ref.split('\n') if l.startswith(';') and '@launch' not in l and 'Override' not in l and 'grid=ceil' not in l)
        txt = hdr + '; @launch grid=(256,1,1) block=(256,1,1) lds=163840\n'
        txt += '.amdgcn_target "amdgcn-amd-amdhsa--gfx950"\n.text\n'
        txt += f'.globl {NAME}_kernel\n.p2align 8\n.type {NAME}_kernel,@function\n{NAME}_kernel:\n'
        txt += body
        txt += f"""L_codeend:
    s_endpgm
.section .rodata,"a"
.p2align 6
.amdhsa_kernel {NAME}_kernel
  .amdhsa_next_free_vgpr 512
  .amdhsa_next_free_sgpr 102
  .amdhsa_accum_offset 256
  .amdhsa_group_segment_fixed_size 0
  .amdhsa_kernarg_size 112
  .amdhsa_user_sgpr_count 2
  .amdhsa_user_sgpr_kernarg_segment_ptr 1
  .amdhsa_system_sgpr_workgroup_id_x 1
.end_amdhsa_kernel
"""
        return txt


DEFAULT = dict(sleep=dict(h2a=9, h2b=9, ha=12, hc2=5, fin=10, hqb=1), pol_c='nt', depth=3,
               touch=dict(s27=['bwq', 'wuk', 'bwo']))

if __name__ == '__main__':
    import json
    opt = dict(DEFAULT)
    out = sys.argv[1]
    if len(sys.argv) > 2:
        opt.update(json.loads(sys.argv[2]))
    g = Gen(opt)
    open(out, 'w').write(g.build())
    print('nops', g.a.nops, 'stamps', g.stnames, g.n0, g.nper)
```

```python
import re

TRANS = ('v_exp_f32', 'v_log_f32', 'v_rcp_f32', 'v_rsq_f32', 'v_sqrt_f32', 'v_sin_f32', 'v_cos_f32')


def regs_of(op):
    op = op.strip()
    op = re.sub(r'^-|^\||\|$', '', op)
    m = re.fullmatch(r'abs\((.*)\)', op)
    if m:
        op = m.group(1)
    m = re.fullmatch(r'([vas])(\d+)', op)
    if m:
        return {(m.group(1), int(m.group(2)))}
    m = re.fullmatch(r'([vas])\[(\d+):(\d+)\]', op)
    if m:
        return {(m.group(1), i) for i in range(int(m.group(2)), int(m.group(3)) + 1)}
    if op == 'vcc':
        return {('s', 'vcc')}
    if op == 'exec':
        return {('s', 'exec')}
    if op == 'm0':
        return {('s', 'm0')}
    return set()


class Ins:
    def __init__(self, text, region):
        self.text = text
        self.region = region
        t = text.split(';')[0].strip()
        self.label = t.endswith(':')
        self.directive = t.startswith('.')
        self.empty = (t == '')
        self.mn = ''
        self.w = set()
        self.r = set()
        self.srcc = set()
        self.data = set()
        if self.label or self.directive or self.empty:
            return
        parts = t.split(None, 1)
        self.mn = mn = parts[0]
        rest = parts[1] if len(parts) > 1 else ''
        ops = []
        cur = ''
        depth = 0
        for ch in rest:
            if ch == '[':
                depth += 1
            if ch == ']':
                depth -= 1
            if ch == ',' and depth == 0:
                ops.append(cur)
                cur = ''
            else:
                cur += ch
        if cur.strip():
            ops.append(cur)
        mods = ''
        if ops:
            last = ops[-1].strip().split(None, 1)
            ops[-1] = last[0]
            mods = last[1] if len(last) > 1 else ''
        self.mods = mods
        R = [regs_of(o) for o in ops]
        self.mfma = mn.startswith('v_mfma') or mn.startswith('v_smfmac')
        self.dot = mn.startswith('v_dot')
        self.valu = mn.startswith('v_') and not self.mfma
        self.dpp = mn.endswith('_dpp')
        self.perml = mn.startswith('v_permlane')
        self.trans = any(mn.startswith(x) for x in TRANS)
        self.salu = mn.startswith('s_')
        self.vmem = mn.startswith('buffer_') or mn.startswith('global_')
        self.ds = mn.startswith('ds_')
        self.lds_dma = self.vmem and re.search(r'\blds\b', mods) is not None
        self.rdlane = mn.startswith('v_readlane') or mn.startswith('v_readfirstlane')
        self.wide_store = False
        U = lambda l: set().union(*l) if l else set()
        if self.mfma:
            self.w = R[0]
            if mn.startswith('v_smfmac'):
                self.srcc = R[0]
                self.ab = R[1] | R[2] | R[3]
            else:
                self.srcc = R[3]
                self.ab = R[1] | R[2]
            self.r = self.srcc | self.ab
        elif self.valu:
            self.w = R[0]
            self.r = U(R[1:])
            if self.perml:
                self.w = R[0] | R[1]
                self.r = R[0] | R[1]
            if mn.startswith('v_fmac') or mn.startswith('v_dot2c') or mn.startswith('v_pk_fmac'):
                self.r |= R[0]
            if mn.startswith('v_cndmask') and len(ops) == 3:
                self.r |= {('s', 'vcc')}
            if mn.startswith('v_cmpx'):
                self.w |= {('s', 'exec')}
        elif self.ds:
            if mn.startswith('ds_read') or mn.startswith('ds_bperm') or mn.startswith('ds_swiz'):
                self.w = R[0]
                self.r = U(R[1:])
            else:
                self.r = U(R)
        elif self.vmem:
            if 'load' in mn and not self.lds_dma:
                self.w = R[0]
                self.r = U(R[1:])
            else:
                self.r = U(R)
                if 'store' in mn and (mn.endswith('x3') or mn.endswith('x4')):
                    self.wide_store = True
                    self.data = R[0] if mn.startswith('buffer_') else R[1]
            if self.lds_dma:
                self.r |= {('s', 'm0')}
        elif self.salu:
            if mn.startswith('s_cmp') or mn.startswith('s_cbranch') or mn in ('s_nop', 's_waitcnt', 's_barrier', 's_sleep', 's_branch', 's_endpgm', 's_setprio') or mn.startswith('s_bitcmp'):
                self.r = U(R)
            else:
                self.w = R[0] if R else set()
                self.r = U(R[1:])
                if 'saveexec' in mn:
                    self.w = self.w | {('s', 'exec')}

    def states(self):
        if self.label or self.directive or self.empty:
            return 0
        if self.mn == 's_nop':
            return int(self.text.split(';')[0].split()[1], 0) + 1
        return 1


def vec(s):
    return {x for x in s if x[0] in 'va'}


def sca(s):
    return {x for x in s if x[0] == 's'}


def need(p, c):
    n = 0
    if p.valu:
        vw = vec(p.w)
        sw = sca(p.w)
        if vw & c.r:
            if c.mfma:
                n = max(n, 3 if p.dot else 2)
            if c.valu and (c.dpp or c.perml):
                n = max(n, 2)
            if c.rdlane:
                n = max(n, 1)
            if p.trans and (c.valu or c.vmem or c.ds):
                n = max(n, 1)
        if p.dot and (vw & (c.r | c.w)):
            if not (c.valu and c.dot and c.mn == p.mn and c.w == p.w and not (vw & (c.r - c.w))):
                n = max(n, 3)
        if sw & c.r:
            if c.vmem:
                n = max(n, 5)
            if c.valu:
                n = max(n, 4 if c.mn.startswith('v_readlane') or c.mn.startswith('v_writelane') else 2)
            if c.salu:
                n = max(n, 1)
        if ('s', 'exec') in sw:
            if c.mfma or c.rdlane or (c.valu and c.perml):
                n = max(n, 4)
            if c.valu and c.dpp:
                n = max(n, 5)
    if p.mfma:
        if c.mfma:
            if p.w & c.ab:
                n = max(n, 8)
            if p.w & c.srcc and p.w != c.srcc:
                n = max(n, 6)
            if p.w & c.srcc and (p.mn != c.mn):
                n = max(n, 6)
            if p.w & c.w and not (p.w & c.srcc):
                n = max(n, 6)
        elif (c.valu or c.vmem or c.ds) and (p.w & (c.r | c.w)):
            n = max(n, 8)
        if c.valu and (p.srcc & c.w):
            n = max(n, 3)
    if p.salu and ('s', 'm0') in p.w and c.vmem and c.lds_dma:
        n = max(n, 1)
    if p.vmem and p.wide_store and (p.data & c.w):
        n = max(n, 2)
    return n


class Asm:
    def __init__(self):
        self.ins = []
        self.tail = []
        self.region = ()
        self.nreg = 0
        self.vmq = []
        self.dsq = []
        self.uid = 0
        self.cold = False

    def e(self, text):
        for line in text.split('\n'):
            line = line.strip()
            if line == '':
                continue
            i = Ins(line, self.region)
            self.ins.append(i)
            if not (i.label or i.directive or i.empty):
                if i.vmem:
                    self.vmq.append([None, self.region])
                if i.ds:
                    self.dsq.append([None, self.region])
                if i.mn == 's_waitcnt' and self.region == ():
                    m = re.search(r'vmcnt\((\d+)\)', line)
                    if m and int(m.group(1)) == 0:
                        self.vmq = []
                    m = re.search(r'lgkmcnt\((\d+)\)', line)
                    if m and int(m.group(1)) == 0:
                        self.dsq = []

    def tag_vm(self, tag):
        self.vmq[-1][0] = tag

    def tag_ds(self, tag):
        self.dsq[-1][0] = tag

    def _cnt(self, q, tag):
        idx = [k for k, x in enumerate(q) if x[0] == tag]
        if not idx:
            return None
        k = idx[-1]
        cur = self.region
        n = 0
        for x in q[k + 1:]:
            if x[1] == cur[:len(x[1])]:
                n += 1
        return n

    def wait(self, vm=None, ds=None):
        parts = []
        if vm is not None:
            n = self._cnt(self.vmq, vm)
            if n is not None:
                parts.append(f'vmcnt({min(n, 62)})')
        if ds is not None:
            n = self._cnt(self.dsq, ds)
            if n is not None:
                parts.append(f'lgkmcnt({min(n, 14)})')
        if parts:
            self.e('s_waitcnt ' + ' '.join(parts))

    def begin_skip(self):
        self.nreg += 1
        self.region = self.region + (self.nreg,)

    def end_skip(self):
        self.region = self.region[:-1]

    def lab(self, base):
        self.uid += 1
        return f'L_{base}_{self.uid}'

    def ool(self, text):
        self.tail.append(('#cold' if self.cold else '') + text)

    def finish(self):
        out = []
        nops = 0
        for c in self.ins:
            if not (c.label or c.directive or c.empty):
                always = 0
                req = 0
                between = []
                for p in reversed(out):
                    if always >= 12:
                        break
                    if p.label or p.directive or p.empty:
                        continue
                    n = need(p, c)
                    if n > 0:
                        dist = sum(q.states() for q in between
                                   if q.region == c.region[:len(q.region)] or q.region == p.region[:len(q.region)])
                        req = max(req, n - dist)
                    between.append(p)
                    if p.region == c.region[:len(p.region)]:
                        always += p.states()
                nops += max(req, 0)
                while req > 0:
                    if req >= 5:
                        out.append(Ins('s_nop 2', c.region))
                        out.append(Ins('v_mov_b32 v0, v0', c.region))
                        req -= 4
                    else:
                        out.append(Ins(f's_nop {req - 1}', c.region))
                        req = 0
            out.append(c)
        txt = ''
        for i in out:
            txt += (i.text if (i.label or i.directive) else '    ' + i.text) + '\n'
        isl = 0
        self.tail.sort(key=lambda t: t.startswith('#cold'))
        for t in self.tail:
            if t.startswith('#cold'):
                t = t[5:]
            else:
                txt += f'L_isl_{isl}:\n    s_branch L_isl_{isl + 1}\n'
                isl += 1
            for line in t.split('\n'):
                line = line.strip()
                if line:
                    txt += (line if line.endswith(':') else '    ' + line) + '\n'
        txt += f'L_isl_{isl}:\n    s_branch L_isl_ret\n'
        self.nops = nops
        return txt
```

```python
import sys, math, struct
from asmlib import Asm

NAME = 'interleave_layers__mha_block_cached__compressed_kv_cla__decode'


def f32(x):
    return '0x%08x' % struct.unpack('<I', struct.pack('<f', x))[0]


K1 = 1024
L_X = 128 * K1
L_IT = 56 * K1
L_QA, L_QB, L_OA, L_OB, L_C1ML = 0, 16 * K1, 32 * K1, 40 * K1, 48 * K1
L_STA, L_STB, L_OAL = 52 * K1, 52 * K1 + 256, 52 * K1 + 512
L_CSA = 112 * K1
GB, G_IT = 0x100000, 384 * K1
G_YA, G_YB, G_QABS, G_C2L, G_C2 = 0, 24 * K1, 48 * K1, 80 * K1, 112 * K1
CB = 0x200000
STAMP = 0x800000
WS_SIZE = 0x1000000
OOB = 0x40000000
CKV = 65536
STG = 131072
ZML = STG + 7168
ZO = STG + 8192 + 7168
ZQ = STG + 2 * 8192 + 7168
K_, V_, CK, DBG, XIN, WQ, WO, BWQ, WUK, WUV, BWO, WS, WSL, WSG, OUT = ['s[%d:%d]' % (4 + 4 * i, 7 + 4 * i) for i in range(15)]
(sX, sJ, sV, sLOC, sW8, sKV, sKG, sIT, sPOLL, sM, sRES, sST, sH, sS,
 t0, t1, t2, t3, t4, t5) = ['s%d' % i for i in range(64, 84)]
MY = 's[84:85]'
(oY, oQA, oQB, oST, oQgA, oSTgA, oWQ, oWO, oWUK, oWUV, oYpub) = ['s%d' % i for i in range(86, 97)]
(oQgB, oSTgB, oQApub, oQAg, oC1pub, oMLpub, oC1g, oMLg, oC2pub, oC2Lpub, oC2g, oC2Lg,
 oOBpub, oOApub, oOALpub, oOALg, oRES, oO) = ['s%d' % i for i in range(4, 22)]
vT, vA, vL16 = 'v2', 'v3', 'v6'
TBL = [0, 8, 9, 1]
DPPI = 'quad_perm:[0,1,2,3]'
FULL = 'row_mask:0xf bank_mask:0xf'
QSCALE = math.log2(math.e) / math.sqrt(128.0)


def vr(a, n):
    return f'v[{a}:{a + n - 1}]' if n > 1 else f'v{a}'


class Gen:
    def __init__(self, opt):
        self.o = opt
        self.a = Asm()
        self.nst = 0
        self.stnames = []
        self.mode = None

    def stamp(self, name, level=1):
        if self.o.get('stamps', 0) < level or self.mode == 'slow':
            return
        if self.o.get('only') and name not in self.o['only'] and name != 'end':
            return
        a = self.a
        self.nst += 1
        self.stnames.append(name)
        a.e(f's_mov_b32 m0, {sST}')
        a.e(f's_pack_ll_b32_b16 s98, s98, {sPOLL}')
        a.e('v_writelane_b32 v7, s98, m0')
        a.e(f's_mov_b32 {sST}, {self.nst}')
        a.e(f's_bitset1_b32 {sST}, s97')
        a.e('s_memtime s[98:99]' if self.o.get('clk') else 's_memrealtime s[98:99]')

    def K(self, n, key=None):
        if key is not None:
            n = self.o.get('K', {}).get(key, n)
        if not self.o.get('warm', 1):
            return
        for i in range(n):
            self.a.e('v_mov_b32 v0, v0')
            self.a.e('s_nop 2')

    def Wm(self):
        if self.o.get('warm', 1):
            self.a.e('v_mov_b32 v0, v0')

    def bar(self, n=2, vm=False):
        self.K(n)
        self.Wm()
        self.a.e('s_waitcnt vmcnt(0) lgkmcnt(0)' if vm else 's_waitcnt lgkmcnt(0)')
        self.Wm()
        self.a.e('s_barrier')
        self.Wm()

    def retry_to(self, top):
        a = self.a
        done, retry = a.lab('got'), a.lab('retry')
        a.e(f's_cbranch_vccnz {retry}')
        a.e(f'{done}:')
        a.ool(f'{retry}:\ns_cselect_b32 s3, 1, 0\ns_add_u32 {sPOLL}, {sPOLL}, 1\ns_cmp_gt_u32 {sPOLL}, 100000\ns_nop 1\ns_cbranch_scc0 {top}\n'
              f's_cmp_eq_u32 s3, 1\ns_branch {done}')

    def lstore(self, lines):
        a = self.a
        if self.mode is not None:
            for l in lines:
                a.e(l + ' sc1' if self.mode == 'slow' and l.startswith('buffer_') else l)
            return
        slow, back = a.lab('slow'), a.lab('back')
        a.e(f's_cbranch_scc1 {slow}')
        for l in lines:
            a.e(l)
        a.e(f'{back}:')
        a.ool('#cold' + f'{slow}:\ns_nop 7\n' + '\n'.join(l + ' sc1' if l.startswith('buffer_') else l for l in lines) + f'\ns_branch {back}')

    def lcmp(self):
        if self.mode is None:
            self.a.e(f's_cmp_eq_u32 {sLOC}, 0')

    def poll_begin(self):
        a = self.a
        self.ptop, self.pretry, self.pdone = a.lab('poll'), a.lab('retry'), a.lab('got')
        a.e(f'{self.ptop}:')

    def poll_end(self, vmax):
        a = self.a
        a.e(f'v_cmp_eq_u32 vcc, -1, {vmax}')
        a.e(f's_cbranch_vccnz {self.pretry}')
        a.e(f'{self.pdone}:')
        a.ool(f'{self.pretry}:\ns_add_u32 {sPOLL}, {sPOLL}, 1\ns_cmp_gt_u32 {sPOLL}, 100000\ns_cbranch_scc1 {self.pdone}\ns_nop 7\ns_branch {self.ptop}')

    def poll_cmp(self, vmax):
        self.a.e(f'v_cmp_eq_u32 vcc, -1, {vmax}')

    def poll_br(self, last=True):
        a = self.a
        done = a.lab('got')
        retry = a.lab('retry')
        a.e(f's_cbranch_vccnz {retry}')
        a.e(f'{done}:')
        a.ool(f'{retry}:\ns_cselect_b32 s3, 1, 0\ns_add_u32 {sPOLL}, {sPOLL}, 1\ns_cmp_gt_u32 {sPOLL}, 100000\ns_cbranch_scc0 {self.ptop}\n'
              f's_cmp_eq_u32 s3, 1\ns_branch {done}')

    def pipe_poll(self, ld, vmax, regs, key):
        a = self.a
        n = sum(x.startswith('buffer') for x in ld)
        if self.o.get('pipe', {}).get(key, 1):
            self.poll_begin()
            for x in ld:
                a.e(x)
            a.e(f's_waitcnt vmcnt({n})')
            self.maxchain(vmax, regs, True)
            self.poll_cmp(vmax)
            self.poll_br()
        else:
            a.e('s_waitcnt vmcnt(0)')
            self.late_check(vmax, regs, ld)

    def late_check(self, vmax, regs, reissue):
        a = self.a
        chk, retry, done = a.lab('chk'), a.lab('retry'), a.lab('done')
        a.e(f'{chk}:')
        self.maxchain(vmax, regs, True)
        a.e(f'v_cmp_eq_u32 vcc, -1, {vmax}')
        a.e(f's_cbranch_vccnz {retry}')
        a.e(f'{done}:')
        a.ool(f'{retry}:\ns_add_u32 {sPOLL}, {sPOLL}, 1\ns_cmp_gt_u32 {sPOLL}, 100000\ns_cbranch_scc1 {done}\n'
              + '\n'.join(reissue) + f'\ns_waitcnt vmcnt(0)\ns_branch {chk}')

    def maxchain(self, vmax, regs, first):
        a = self.a
        regs = list(regs)
        if first:
            if len(regs) >= 3:
                a.e(f'v_max3_u32 {vmax}, v{regs[0]}, v{regs[1]}, v{regs[2]}')
                regs = regs[3:]
            elif len(regs) == 2:
                a.e(f'v_max_u32 {vmax}, v{regs[0]}, v{regs[1]}')
                regs = []
            else:
                a.e(f'v_mov_b32 {vmax}, v{regs[0]}')
                regs = []
        while len(regs) >= 2:
            a.e(f'v_max3_u32 {vmax}, {vmax}, v{regs[0]}, v{regs[1]}')
            regs = regs[2:]
        if regs:
            a.e(f'v_max_u32 {vmax}, {vmax}, v{regs[0]}')

    def sleep(self, key):
        n = self.o.get('sleep', {}).get(key, 0)
        if n:
            self.a.e(f's_sleep {n}')

    def wave_only(self, w):
        a = self.a
        l = a.lab('notw')
        a.e(f's_cmp_lg_u32 {sV}, {w}')
        a.e(f's_cbranch_scc1 {l}')
        a.begin_skip()
        return l

    def end_only(self, lab):
        self.a.end_skip()
        self.a.e(f'{lab}:')

    def pos_bytes(self, dst, tmp):
        a = self.a
        a.e(f'v_lshlrev_b32 {dst}, 3, v0')
        a.e(f'v_and_b32 {dst}, 16, {dst}')
        a.e(f'v_and_or_b32 {dst}, v0, 12, {dst}')

    def sp_addr(self, dst, base):
        a = self.a
        a.e(f'v_and_b32 {dst}, 48, v0')
        a.e(f'v_lshlrev_b32 {dst}, 1, {dst}')
        a.e(f'v_and_or_b32 {dst}, {vL16}, 16, {dst}')
        if base:
            a.e(f'v_add_u32 {dst}, {base}, {dst}')

    def sums(self, dst, terms, const=0):
        a = self.a
        first = True
        for reg, mul in terms:
            d = dst if first else t0
            if mul & (mul - 1) == 0:
                a.e(f's_lshl_b32 {d}, {reg}, {mul.bit_length() - 1}')
            else:
                a.e(f's_mul_i32 {d}, {reg}, {mul}')
            if not first:
                a.e(f's_add_u32 {dst}, {dst}, {t0}')
            first = False
        if const:
            a.e(f's_add_u32 {dst}, {dst}, {const}')

    def k64_addr(self, vt, vu):
        a = self.a
        a.e(f'v_lshrrev_b32 {vt}, 2, v0')
        a.e(f'v_lshlrev_b32 {vt}, 13, {vt}')
        a.e(f'v_and_or_b32 {vt}, {vL16}, 48, {vt}')

    def wq_prep(self, vt, vu):
        a = self.a
        a.e(f'v_lshrrev_b32 {vu}, 4, v0')
        a.e(f'v_lshlrev_b32 {vt}, 5, {vu}')
        a.e(f'v_xor_b32 {vt}, {vt}, {vL16}')
        a.e(f'v_and_b32 {vt}, 0xf0, {vt}')
        a.e(f'v_lshl_or_b32 {vt}, {vu}, 13, {vt}')
        a.e(f'v_xor_b32 {vu}, 0x80, {vt}')

    def wq_issue(self, srd, vt, vu, parts, pol=''):
        a = self.a
        for i in parts:
            if i == parts[0] or i == 3:
                a.e(f's_add_u32 m0, {sW8}, {(i // 3) * 3072}')
            a.e(f's_add_u32 {t1}, {oWQ}, {i * 4 * 8192 - (i % 3) * 1024}')
            a.e(f'buffer_load_dwordx4 {vu if (i >> 1) & 1 else vt}, {srd}, {t1} offen offset:{(i % 3) * 1024} {pol} lds')
        a.tag_vm('wq')

    def dma_wq(self, srd, vt, vu, pol=''):
        self.wq_prep(vt, vu)
        self.wq_issue(srd, vt, vu, list(range(6)), pol)

    def dma_wuv(self, vt):
        a = self.a
        pol = self.o.get('pol_w', '')
        self.k64_addr(vt, None)
        for i in range(4):
            a.e(f's_add_u32 m0, {sW8}, {i * 1024}')
            a.e(f's_add_u32 {t1}, {oWUV}, {i * 16 * 8192}')
            a.e(f'buffer_load_dwordx4 {vt}, {WUV}, {t1} offen {pol} lds')
        a.tag_vm('wuv')

    def wuk_prep(self, vt, vu):
        a = self.a
        a.e(f'v_lshrrev_b32 {vu}, 4, v0')
        a.e(f'v_lshlrev_b32 {vt}, 5, {vu}')
        a.e(f'v_xor_b32 {vt}, {vt}, {vL16}')
        a.e(f'v_and_b32 {vt}, 0xf0, {vt}')
        a.e(f'v_lshl_or_b32 {vt}, {vu}, 13, {vt}')

    def wuk_issue(self, vt, vu):
        a = self.a
        pol = self.o.get('pol_w', '')
        a.e(f's_mov_b32 m0, {sW8}')
        for q in range(4):
            a.e(f's_add_u32 {t1}, {oWUK}, {q * (4 * 8192 - 1024)}')
            if q:
                a.e(f'v_xor_b32 {vu}, {TBL[q] << 4}, {vt}')
            a.e(f'buffer_load_dwordx4 {vu if q else vt}, {WUK}, {t1} offen offset:{q * 1024} {pol} lds')
        a.tag_vm('wuk')

    def wo_prep(self, R, tmp):
        a = self.a
        for i in range(3):
            a.e(f'v_add_u32 v{R + i}, {64 * i}, v0')
            a.e(f'v_mul_u32_u24 {tmp}, 21846, v{R + i}')
            a.e(f'v_lshrrev_b32 {tmp}, 16, {tmp}')
            a.e(f'v_mul_u32_u24 {tmp}, {1152 - 48}, {tmp}')
            a.e(f'v_lshl_add_u32 v{R + i}, v0, 4, {tmp}')
        a.e(f's_add_u32 {t5}, {oWO}, {64 * 1152}')

    def wo_lines(self, srd, R, pol=''):
        out = []
        for h in range(2):
            out.append(f's_add_u32 m0, {sW8}, {h * 3072}')
            for i in range(3):
                out.append(f'buffer_load_dwordx4 v{R + i}, {srd}, {t5 if h else oWO} offen offset:{i * 1024} {pol} lds')
        return out

    def dma_wo(self, srd, R, tmp):
        self.wo_prep(R, tmp)
        for x in self.wo_lines(srd, R, self.o.get('pol_wo1', '')):
            self.a.e(x)
        self.a.tag_vm('wo')

    def touch(self, what, vt, vd):
        a = self.a
        half = None
        if what[-1] in '01' and what != 'c1':
            what, half = what[:-1], int(what[-1])
        if what in ('wq', 'bwq', 'wuv', 'wuk'):
            srd = {'wq': WQ, 'bwq': BWQ, 'wuv': WUV, 'wuk': WUK}[what]
            a.e(f'v_lshrrev_b32 {vt}, 3, v0')
            a.e(f'v_lshlrev_b32 {vt}, 6, {vt}')
            a.e(f'v_and_or_b32 {vt}, v0, 7, {vt}')
            a.e(f'v_lshlrev_b32 {vt}, 7, {vt}')
            rows = 5 if what in ('wq', 'bwq') else 4
            self.sums(t1, [(sJ, 4 * rows * 8192), (sV, rows * 8192), (sX, 1024)])
            n = 8 * rows
        elif what == 'c1':
            srd = WS
            a.e(f'v_lshlrev_b32 {vt}, 7, v0')
            self.sums(t1, [(sX, 1 << 19), (sJ, 16384), (sV, 4096)], CB)
            n = 32
        else:
            srd = {'wo': WO, 'bwo': BWO}[what]
            a.e(f'v_lshlrev_b32 {vt}, 7, v0')
            self.sums(t1, [(sX, 512 * 1152), (sJ, 18432), (sV, 4608)])
            n = 36
        m = (1 << n) - 1
        if half == 0:
            m = (1 << (n // 2)) - 1
        elif half == 1:
            m ^= (1 << (n // 2)) - 1
        a.e(f's_mov_b32 exec_lo, {m & 0xffffffff}')
        a.e(f's_mov_b32 exec_hi, {m >> 32}')
        if vd is None:
            a.e(f's_add_u32 m0, {sW8}, 1024')
            a.e(f'buffer_load_dword {vt}, {srd}, {t1} offen lds')
        else:
            a.e(f'buffer_load_dword {vd}, {vt}, {srd}, {t1} offen')
        a.e('s_mov_b64 exec, -1')

    def touches(self, where, vt, vd):
        for w in self.o.get('touch', {}).get(where, []):
            self.touch(w, vt, vd)

    def lnq_addr(self):
        a = self.a
        a.e('v_lshrrev_b32 v52, 4, v0')
        a.e('v_cmp_gt_u32 vcc, 3, v52')
        a.e('v_bfe_u32 v53, v0, 2, 2')
        a.e('v_cndmask_b32 v52, 0, v52, vcc')
        a.e('v_and_b32 v54, 1, v52')
        a.e('v_lshl_add_u32 v54, v54, 2, v53')
        a.e('v_lshl_add_u32 v52, v52, 3, v53')
        a.e('v_and_b32 v53, 3, v0')
        a.e('v_lshl_or_b32 v53, v54, 2, v53')
        a.e('v_lshlrev_b32 v53, 3, v53')
        a.e('v_lshl_or_b32 v52, v52, 8, v53')
        a.e(f's_lshl_b32 {t0}, {sV}, 6')
        a.e(f's_add_u32 {t0}, {t0}, {STG}')
        a.e(f'v_xor_b32 v52, {t0}, v52')
        a.e('v_xor_b32 v54, 32, v52')

    def lnq_prep(self):
        a = self.a
        a.wait(vm='wq')
        a.e('s_barrier')
        for rho in range(3):
            for tau in range(2):
                for half in range(2):
                    a.e(f'ds_read_b64_tr_b16 {vr(28 + 8 * rho + 4 * tau + 2 * half, 2)}, v{52 + 2 * tau} offset:{8192 * rho + 1024 * half}')
        a.e('s_waitcnt lgkmcnt(0)')
        a.e('s_barrier')

    def lnq_rows(self):
        a = self.a
        a.e('v_mov_b32 v53, 0x3f803f80')
        a.e(f's_lshl_b64 s[82:83], {MY}, 8')
        a.e('v_cndmask_b32 v16, 0, v53, s[82:83]')
        a.e('v_mov_b32 v17, v16')
        for r in range(18, 28, 2):
            a.e(f'v_mov_b64 {vr(r, 2)}, v[16:17]')

    def lnq_mfma(self, rho):
        a = self.a
        A = vr(16 + 4 * rho, 4)
        c = (lambda r: '0') if rho == 0 else (lambda r: r)
        a.e(f'v_mfma_f32_16x16x32_bf16 v[60:63], {A}, {A}, {c("v[60:63]")}')
        a.e(f'v_mfma_f32_16x16x32_bf16 v[52:55], {A}, {vr(28 + 8 * rho, 4)}, {c("v[52:55]")}')
        a.e(f'v_mfma_f32_16x16x32_bf16 v[56:59], {A}, {vr(32 + 8 * rho, 4)}, {c("v[56:59]")}')

    def lnq_reduce(self, isb, chk=False):
        a = self.a
        a.e('v_pk_add_f32 v[60:61], v[60:61], v[62:63]')
        a.e('v_add_f32 v60, v60, v61')
        if chk:
            a.e('v_cmp_u_f32 vcc, v60, v60')
        a.e('v_pk_add_f32 v[52:53], v[52:53], v[54:55]')
        a.e('v_mov_b32 v61, v60')
        a.e('v_pk_add_f32 v[56:57], v[56:57], v[58:59]')
        a.e('v_add_f32 v52, v52, v53')
        a.e('v_permlane16_swap_b32 v60, v61')
        a.e('v_add_f32 v56, v56, v57')
        a.e('v_add_f32 v60, v60, v61')
        a.e('v_permlane16_swap_b32 v52, v56')
        a.e(f'v_add_f32_dpp v60, v60, v60 quad_perm:[1,0,3,2] {FULL}')
        a.e('v_add_f32 v52, v52, v56')
        self.lcmp()
        a.e(f'v_add_f32_dpp v60, v60, v60 quad_perm:[2,3,0,1] {FULL}')
        if isb:
            a.e(f'v_mov_b32_dpp v53, v52 quad_perm:[1,0,3,2] {FULL}')
            a.e('v_cvt_pk_bf16_f32 v52, v52, v53')
        a.e(f'v_add_f32_dpp v60, v60, v60 row_half_mirror {FULL}')

    def lnq_pubaddr(self, isb, first):
        a = self.a
        if isb:
            self.pos_bytes('v14', None)
            a.e('v_and_b32 v15, 16, v0')
            a.e('v_lshl_or_b32 v14, v15, 4, v14')
            a.e('v_and_b32 v15, 32, v0')
            a.e('v_lshl_or_b32 v14, v15, 6, v14')
        else:
            a.e('v_and_b32 v14, 31, v0')
            a.e('v_lshlrev_b32 v14, 2, v14')
            if first:
                a.e('v_lshrrev_b32 v15, 5, v0')
                a.e(f'v_mul_u32_u24 v15, {L_CSA - L_QA}, v15')
                a.e('v_add_u32 v14, v14, v15')
        a.e('v_lshrrev_b32 v15, 1, v0')

    def lnq_publish(self, isb, first, q='v52', st='v60', qa='v14', sa='v15'):
        lines = []
        if isb:
            lines += ['s_mov_b32 exec_lo, 0x55555555', 's_mov_b32 exec_hi, 0x55555555']
        elif not first:
            lines += ['s_mov_b32 exec_hi, 0']
        lines += [f'buffer_store_dword {q}, {qa}, {WSL}, {oQB if isb else oQA} offen',
                  's_mov_b64 exec, 0x101',
                  f'buffer_store_dword {st}, {sa}, {WSL}, {oST} offen offset:{256 if isb else 0}',
                  's_mov_b64 exec, -1']
        self.lstore(lines)

    def lnq_tail(self, goff, isb):
        a = self.a
        self.lnq_rows()
        a.e('v_lshrrev_b32 v12, 2, v0')
        a.e('v_mul_u32_u24 v12, 3072, v12')
        a.e(f'v_and_or_b32 v12, {vL16}, 48, v12')
        a.e(f's_lshl_b32 {t4}, {sV}, 7')
        a.e(f's_add_u32 {t4}, {t4}, {oY}')
        a.e(f's_add_u32 {t4}, {t4}, {goff}')
        a.e(f's_add_u32 {t5}, {sW8}, 6144')
        l = a.lab('now')
        a.e(f's_cmp_eq_u32 {sV}, 3')
        a.e(f's_cselect_b32 {t4}, {OOB}, {t4}')
        a.e(f's_cbranch_scc1 {l}')
        a.begin_skip()
        self.dma_wq(BWQ if isb else WQ, 'v8', 'v9', '' if isb else self.o.get('pol_wq3', ''))
        self.end_only(l)
        a.e('s_barrier')
        self.lnq_addr()
        self.lnq_pubaddr(isb, False)
        a.e('v_and_b32 v11, 7, v0')
        a.e('v_lshlrev_b32 v11, 6, v11')
        a.e('v_and_or_b32 v11, v0, 48, v11')
        a.e(f'v_add_u32 v11, {STG + 6144}, v11')
        a.e('v_mov_b32 v13, 0')
        if isb:
            self.wuk_prep('v8', 'v9')
        else:
            for r in range(56, 60):
                a.e(f'v_mov_b32 v{r}, -1')
        if isb and self.o.get('c1_late', 1) == 1:
            go, back = a.lab('clr'), a.lab('clrback')
            a.e(f's_cmp_eq_u32 {sIT}, 0')
            a.e(f's_cbranch_scc1 {go}')
            self.sleep('h2a')
            a.e(f'{back}:')
            fl = ' sc1' if self.mode == 'slow' else ''
            n0 = self.o.get('sleep', {}).get('h2c', 0)
            a.ool(f'{go}:\n' + '\n'.join(f'v_mov_b32 v{r}, -1' for r in range(56, 60)) + '\n'
                  + '\n'.join(f'buffer_store_dwordx4 v[56:59], {vL16}, {WS}, {oC1g} offen offset:{i * 1024}{fl}' for i in range(4))
                  + (f'\ns_sleep {n0}' if n0 else '\ns_nop 1') + f'\ns_branch {back}')
        else:
            self.sleep('h2a' if isb else 'h2b')
        ld = [f's_mov_b32 m0, {t5}', 's_mov_b64 exec, 0x77777777',
              f'buffer_load_dword v13, v12, {WSG}, {t4} offen sc1',
              f'buffer_load_dwordx4 v12, {WSG}, {t4} offen sc1 lds',
              's_mov_b64 exec, -1']
        for i, x in enumerate(ld):
            a.e(x)
            if i in (2, 3):
                a.tag_vm(f'y{i}')
        if isb:
            self.touches('w1b', 'v56', 'v10')
        self.lnq_prep()
        self.stamp('wqrdy', 2)
        if isb:
            self.wuk_issue('v8', 'v9')
        else:
            self.lcmp()
            self.lstore([f'buffer_store_dwordx4 v[56:59], {vL16}, {WS}, {oC1g} offen offset:{i * 1024}' for i in range(4)])
        chk, again = a.lab('chk'), a.lab('again')
        a.wait(vm='y2')
        a.e(f'{chk}:')
        a.e('v_cmp_eq_u32 vcc, -1, v13')
        a.wait(vm='y3')
        self.retry_to(again)
        a.ool(f'{again}:\n' + '\n'.join(ld) + f'\ns_waitcnt vmcnt(0)\ns_branch {chk}')
        a.e(f's_mov_b64 exec, {MY}')
        a.e('s_barrier')
        for rho in range(3):
            a.e(f'ds_read_b128 {vr(16 + 4 * rho, 4)}, v11 offset:{8192 * rho}')
            a.tag_ds(f'a{rho}')
        a.e('s_mov_b64 exec, -1')
        self.stamp('h2got', 2)
        self.K(2)
        for rho in range(3):
            a.wait(ds=f'a{rho}')
            self.lnq_mfma(rho)
        self.lnq_reduce(isb, True)
        again2 = a.lab('again')
        self.retry_to(again2)
        a.ool(f'{again2}:\ns_barrier\ns_branch {again}')
        self.lnq_publish(isb, False)
        self.stamp('qpub')

    def c1_addr(self, dst, tmp):
        a = self.a
        a.e(f'v_lshrrev_b32 {tmp}, 4, v0')
        a.e(f'v_and_b32 {dst}, 0xf0, {vL16}')
        a.e(f'v_lshl_or_b32 {dst}, {tmp}, 12, {dst}')

    def stats(self, S):
        out = []
        for c in (4, 2, 1):
            out.append(f'v_add_f32_dpp v{S + 1}, v{S + 1}, v{S + 1} row_ror:{c} {FULL}')
            out.append(f'v_add_f32_dpp v{S}, v{S}, v{S} row_ror:{c} {FULL}')
        out.append(f'v_mul_f32 v{S + 1}, {f32(1.0 / (8 * 576))}, v{S + 1}')
        out.append(f'v_mul_f32 v{S}, {f32(1.0 / 576)}, v{S}')
        out.append(f'v_fma_f32 v{S}, -v{S + 1}, v{S + 1}, v{S}')
        out.append(f'v_max_f32 v{S}, 0, v{S}')
        out.append(f'v_add_f32 v{S}, {f32(1e-5)}, v{S}')
        out.append(f'v_rsq_f32 v{S}, v{S}')
        out.append(f'v_mul_f32 v{S + 1}, 0x3e000000, v{S + 1}')
        out.append(f'v_mul_f32 v{S}, {f32(QSCALE)}, v{S}')
        return out

    def mix(self, x, y):
        x, y = list(x), list(y)
        while x or y:
            if x:
                self.a.e(x.pop(0))
            if y:
                self.a.e(y.pop(0))

    def resid(self, goff, base, va, final):
        a = self.a
        a.e(f'v_lshlrev_b32 {va}, 2, v0')
        a.e(f's_add_u32 {t2}, {oRES}, {goff}')
        a.e('s_mov_b64 exec, 0xfff')
        if final:
            self.sleep('fin')
        self.poll_begin()
        for i in range(8):
            if i & 1 == 0:
                a.e(f's_add_u32 {t3}, {t2}, {i * 3072}')
            a.e(f'buffer_load_dword v{base + i}, {va}, {WSG}, {t3} offen offset:{(i & 1) * 3072} sc1')
        a.e('s_waitcnt vmcnt(0)')
        self.maxchain(f'v{base + 8}', range(base, base + 8), True)
        self.poll_end(f'v{base + 8}')
        a.e(f'v_lshlrev_b32 v4, 16, v{base}')
        a.e(f'v_and_b32 v5, 0xffff0000, v{base}')
        for i in range(1, 8):
            a.e(f'v_lshlrev_b32 v{base}, 16, v{base + i}')
            a.e(f'v_and_b32 v{base + i}, 0xffff0000, v{base + i}')
            a.e(f'v_add_f32 v4, v4, v{base}')
            a.e(f'v_add_f32 v5, v5, v{base + i}')

    def resid_track(self, goff, base, va, cond):
        a = self.a
        go, back = a.lab('res'), a.lab('resback')
        a.e(cond)
        a.e(f's_cbranch_scc1 {go}')
        a.e(f'{back}:')
        sub = Asm()
        sub.uid = a.uid + 1000 * (1 + len(a.tail))
        self.a = sub
        sub.e(f'{go}:')
        sub.e('s_nop 1')
        self.resid(goff, base, va, False)
        sub.e('s_mov_b64 exec, -1')
        sub.e(f's_branch {back}')
        self.a = a
        body = [i.text for i in sub.ins]
        cut = [k for k in range(0, len(body), 14)]
        for k in cut:
            part = body[k:k + 14]
            if k + 14 < len(body):
                nxt = a.lab('resp')
                part.append(f's_branch {nxt}')
                body[k + 14] = f'{nxt}:\n' + body[k + 14]
            a.ool('\n'.join(part))
        for t in sub.tail:
            a.ool(t)

    def qa_addr(self, T):
        a = self.a
        a.e(f'v_and_b32 v{T}, 4, v0')
        a.e(f'v_lshlrev_b32 v{T}, 3, v{T}')
        a.e(f'v_and_b32 v{T + 1}, 3, v0')
        a.e(f'v_lshl_or_b32 v{T}, v{T + 1}, 2, v{T}')
        a.e(f'v_lshrrev_b32 v{T + 1}, 5, v0')
        a.e(f'v_lshl_or_b32 v{T}, v{T + 1}, 4, v{T}')
        a.e(f'v_bfe_u32 v{T + 1}, v0, 4, 1')
        a.e(f'v_lshl_or_b32 v{T}, v{T + 1}, 1, v{T}')
        a.e(f's_lshl_b32 {t0}, {sV}, 6')
        a.e(f's_add_u32 {t0}, {t0}, {ZQ}')
        a.e(f'v_add_u32 v{T}, {t0}, v{T}')
        a.e(f'v_and_b32 v{T + 1}, 7, v0')
        a.e(f'v_lshlrev_b32 v{T + 1}, 3, v{T + 1}')
        self.sp_addr(f'v{T + 2}', ZQ)

    def red8(self, R):
        return [f'v_permlane32_swap_b32 v{R}, v{R + 2}',
                f'v_permlane32_swap_b32 v{R + 1}, v{R + 3}',
                f'v_pk_add_f32 {vr(R, 2)}, {vr(R, 2)}, {vr(R + 2, 2)}',
                f'v_permlane16_swap_b32 v{R}, v{R + 1}',
                f'v_add_f32 v{R}, v{R}, v{R + 1}',
                f'v_add_f32_dpp v{R}, v{R}, v{R} row_ror:8 {FULL}']

    def qa_loads(self, R, S, T):
        return [f'buffer_load_dwordx2 {vr(S, 2)}, v{T + 1}, {WSL}, {oSTgA} offen sc1',
                f'buffer_load_dwordx4 {vr(R, 4)}, {vL16}, {WSL}, {oQgA} offen sc1']

    def qa_finish(self, R, S, T, Q, br=False):
        a = self.a
        self.mix(self.stats(S), self.red8(R) + [f'v_and_b32 v{R + 1}, 0xffff0000, v1'])
        a.e(f'v_fma_f32 v{R}, -v{S + 1}, v{R + 1}, v{R}')
        a.e(f'v_mul_f32 v{R}, v{R}, v{S}')
        a.e(f'v_cvt_pk_bf16_f32 v{R}, v{R}, v{R}')
        a.e(f'ds_write_b16 v{T}, v{R}')
        if br:
            return
        self.bar(2, br)
        a.e(f'ds_read_b128 {vr(Q, 4)}, v{T + 2}')
        a.tag_ds('q0')
        a.e(f'ds_read_b128 {vr(Q + 4, 4)}, v{T + 2} offset:128')
        a.tag_ds('q1')

    def p_addr(self, r, t):
        a = self.a
        a.e(f'v_and_b32 {r}, 0x32, v0')
        a.e(f'v_lshlrev_b32 {r}, 3, {r}')
        a.e(f'v_and_b32 {t}, 8, v0')
        a.e(f'v_lshl_or_b32 {r}, {t}, 2, {r}')
        a.e(f'v_and_b32 {t}, 5, v0')
        a.e(f'v_lshl_or_b32 {r}, {t}, 1, {r}')
        a.e(f'v_add_u32 {r}, {sW8}, {r}')

    def qk_softmax(self, Q, D, S, T, fill=()):
        a = self.a
        for t in range(19):
            if t >= 3:
                d = D + 4 * ((t - 3) & 3)
                a.e(f'v_add_f32_dpp v{S + ((t - 3) & 3)}, v{d}, v{d + 1} {DPPI} row_mask:{1 << ((t - 3) >> 2)} bank_mask:0xf')
            if 4 <= t + 1 < 16:
                a.e(f'v_mov_b64 {vr(D + 4 * ((t + 1) & 3), 2)}, 0')
            if t < 16:
                d = vr(D + 4 * (t & 3), 4)
                if t == 0:
                    a.wait(ds='q0')
                a.e(f'v_smfmac_f32_16x16x64_bf16 {d}, {vr(Q, 4)}, a[{16 * t}:{16 * t + 7}], v1')
                if t == 0:
                    a.wait(ds='q1')
                elif t - 1 < len(fill):
                    for x in fill[t - 1]:
                        a.e(x)
                a.e(f'v_smfmac_f32_16x16x64_bf16 {d}, {vr(Q + 4, 4)}, a[{16 * t + 8}:{16 * t + 15}], v1')
        self.softmax_a(S, T, f'v{T + 1}')

    def softmax_a(self, S, T, pa, fill=()):
        a = self.a
        fill = list(fill)

        def f2():
            for _ in range(2):
                if fill:
                    a.e(fill.pop(0))
        m = f'v{T}'
        a.e(f'v_max3_f32 {m}, v{S}, v{S + 1}, v{S + 2}')
        a.e(f'v_max_f32 {m}, {m}, v{S + 3}')
        for c in ('row_ror:8', 'row_ror:4', 'row_ror:2', 'row_ror:1'):
            f2()
            a.e(f'v_max_f32_dpp {m}, {m}, {m} {c} {FULL}')
        f2()
        a.e(f'v_max_f32_dpp {m}, {m}, {m} row_bcast:15 row_mask:0xa bank_mask:0xf')
        f2()
        a.e(f'v_max_f32_dpp {m}, {m}, {m} row_bcast:31 row_mask:0xc bank_mask:0xf')
        a.e(f'v_readlane_b32 {sM}, {m}, 63')
        f2()
        assert not fill
        for r in range(4):
            a.e(f'v_subrev_f32 v{S + r}, {sM}, v{S + r}')
        for r in range(4):
            a.e(f'v_exp_f32 v{S + r}, v{S + r}')
        a.e(f'v_cvt_pk_bf16_f32 v{T + 2}, v{S}, v{S + 1}')
        a.e(f'v_cvt_pk_bf16_f32 v{T + 3}, v{S + 2}, v{S + 3}')
        a.e(f'ds_write_b16 {pa}, v{T + 2} offset:6144')
        a.e(f'ds_write_b16_d16_hi {pa}, v{T + 2} offset:{6144 + 4}')
        a.e(f'ds_write_b16 {pa}, v{T + 3} offset:{6144 + 64}')
        a.e(f'ds_write_b16_d16_hi {pa}, v{T + 3} offset:{6144 + 68}')

    def lsum(self, l, S):
        out = [f'v_pk_add_f32 {vr(S, 2)}, {vr(S, 2)}, {vr(S + 2, 2)}', f'v_add_f32 {l}, v{S}, v{S + 1}']
        for c in ('row_ror:8', 'row_ror:4', 'row_ror:2', 'row_ror:1'):
            out.append(f'v_add_f32_dpp {l}, {l}, {l} {c} {FULL}')
        out.append(f'v_add_f32_dpp {l}, {l}, {l} row_bcast:15 row_mask:0xa bank_mask:0xf')
        out.append(f'v_add_f32_dpp {l}, {l}, {l} row_bcast:31 row_mask:0xc bank_mask:0xf')
        return out

    def ml_write(self, T):
        return [f's_lshl_b32 {t0}, {sV}, 3', f's_add_u32 {t0}, {t0}, {ZML}', f'v_mov_b32 v{T + 2}, 0x30000', f'v_mov_b32 v{T}, {sM}',
                f'v_writelane_b32 v{T + 2}, {t0}, 63\nds_write_b64 v{T + 2}, {vr(T, 2)}']

    def ml_read(self, R, T):
        return [f'v_mov_b32 v{T}, {ZML}', f'ds_read_b128 {vr(R, 4)}, v{T}', f'ds_read_b128 {vr(R + 4, 4)}, v{T} offset:16']

    def ml_scale(self, R, T, F, LW):
        out = [f'v_max3_f32 v{T}, v{R}, v{R + 2}, v{R + 4}', f'v_max_f32 v{T}, v{T}, v{R + 6}']
        out += [f'v_sub_f32 v{R + 2 * w}, v{R + 2 * w}, v{T}' for w in range(4)]
        out += [f'v_sub_f32 v{F}, {sM}, v{T}']
        out += [f'v_exp_f32 v{R + 2 * w}, v{R + 2 * w}' for w in range(4)]
        out += [f'v_exp_f32 v{F}, v{F}', f'v_mul_f32 v{LW}, v{R}, v{R + 1}']
        out += [f'v_fmac_f32 v{LW}, v{R + 2 * w}, v{R + 2 * w + 1}' for w in range(1, 4)]
        out += [f'v_rcp_f32 v{R}, v{LW}', f'v_log_f32 v{LW}, v{LW}', f'v_mul_f32 v{F}, v{F}, v{R}', f'v_add_f32 v{LW}, v{LW}, v{T}']
        return out

    def combine_publish(self):
        a = self.a
        a.e('ds_write2st64_b32 v46, v44, v45 offset0:26 offset1:27')
        a.e(f'v_mov_b32 v10, {STG + 6656}')
        a.e('v_lshl_add_u32 v8, v0, 3, v10')
        a.e('v_and_b32 v10, 56, v0')
        a.e('v_lshlrev_b32 v10, 5, v10')
        a.e(f'v_and_or_b32 v10, {vL16}, 16, v10')
        a.e('v_and_b32 v11, 6, v0')
        a.e('v_lshl_or_b32 v10, v11, 1, v10')
        a.e(f's_cmp_lg_u32 {sV}, 0')
        a.e('s_waitcnt lgkmcnt(0)')
        a.e('s_barrier')
        l = a.lab('notw')
        a.e(f's_cbranch_scc1 {l}')
        a.begin_skip()
        for w in range(4):
            a.e(f'ds_read_b64 {vr(20 + 2 * w, 2)}, v8 offset:{w * 8192}')
            a.tag_ds(f'o{w}')
        self.lstore(['s_mov_b64 exec, 1', f'buffer_store_dword v47, v10, {WSL}, {oOALpub} offen', 's_mov_b64 exec, -1'])
        a.wait(ds='o1')
        a.e('v_pk_add_f32 v[20:21], v[20:21], v[22:23]')
        a.wait(ds='o3')
        a.e('v_pk_add_f32 v[24:25], v[24:25], v[26:27]')
        a.e('v_pk_add_f32 v[20:21], v[20:21], v[24:25]')
        a.e('v_cvt_pk_bf16_f32 v20, v20, v21')
        self.lstore([f'buffer_store_dword v20, v10, {WSL}, {oOApub} offen'])
        self.end_only(l)

    def w8(self, lw, t):
        return [f'v_max_f32_dpp {t}, {lw}, {lw} row_ror:4 {FULL}',
                f'v_max_f32_dpp {t}, {t}, {t} row_ror:2 {FULL}',
                f'v_max_f32_dpp {t}, {t}, {t} row_ror:1 {FULL}',
                f'v_sub_f32 {lw}, {lw}, {t}',
                f'v_exp_f32 {lw}, {lw}',
                f'v_add_f32_dpp {t}, {lw}, {lw} row_ror:4 {FULL}',
                f'v_add_f32_dpp {t}, {t}, {t} row_ror:2 {FULL}',
                f'v_add_f32_dpp {t}, {t}, {t} row_ror:1 {FULL}',
                f'v_rcp_f32 {t}, {t}']

    def rot8(self, dst, sh):
        a = self.a
        a.e(f'v_lshrrev_b32 {dst}, 4, v0')
        a.e(f'v_lshl_add_u32 {dst}, {dst}, 1, v0')
        a.e(f'v_and_b32 {dst}, 7, {dst}')
        a.e(f'v_lshlrev_b32 {dst}, {sh}, {dst}')

    def weigh2(self, skip=0, lw='v16', chk=False):
        a = self.a
        w = self.w8(lw, 'v17')
        for x in w[skip:6]:
            a.e(x)
        a.e('v_add_f32 v20, v20, v21')
        a.e('v_add_f32 v22, v22, v23')
        a.e(w[6])
        a.e('v_add_f32 v24, v24, v25')
        a.e('v_add_f32 v26, v26, v27')
        a.e(w[7])
        a.e(f'v_mul_f32_dpp v20, {lw}, v20 row_newbcast:0 {FULL}')
        a.e(f'v_mul_f32_dpp v24, {lw}, v24 row_newbcast:0 {FULL}')
        a.e(f'v_fmac_f32_dpp v20, {lw}, v22 row_newbcast:1 {FULL}')
        a.e(f'v_fmac_f32_dpp v24, {lw}, v26 row_newbcast:1 {FULL}')
        a.e(w[8])
        if chk:
            a.e('v_cmp_u_f32 vcc, v20, v20')
        a.e('v_permlane32_swap_b32 v20, v24')
        a.e('v_add_f32 v20, v20, v24')
        a.e('v_mul_f32 v20, v20, v17')

    def outproj(self, isa):
        a = self.a
        if isa:
            self.rot8('v30', 2)
        else:
            a.e(f's_add_u32 {t4}, {oO}, {L_OB - L_OA}')
        so = oO if isa else t4
        ld = []
        if isa:
            ld.append(f'buffer_load_dword v16, v30, {WSL}, {oOALg} offen sc1')
        ld.append(f'buffer_load_dwordx4 v[8:11], {vL16}, {WSL}, {so} offen sc1')
        ld.append(f'buffer_load_dwordx4 v[12:15], {vL16}, {WSL}, {so} offen offset:1024 sc1')
        a.e('v_lshrrev_b32 v28, 4, v0')
        a.e('v_bfe_u32 v29, v0, 2, 2')
        a.e('v_lshl_add_u32 v28, v28, 3, v29')
        a.e('v_mul_u32_u24 v28, 48, v28')
        a.e('v_and_b32 v29, 3, v0')
        a.e('v_lshl_add_u32 v28, v29, 3, v28')
        a.e(f'v_add_u32 v28, {sW8}, v28')
        a.wait(vm='wo')
        tr = []
        for blk in range(2):
            for tile in range(2):
                for hh in range(2):
                    for half in range(2):
                        off = (64 * blk + 32 * hh + 4 * half) * 48 + 32 * tile
                        tr.append(f'ds_read_b64_tr_b16 {vr(32 + 16 * tile + 8 * blk + 4 * hh + 2 * half, 2)}, v28 offset:{off}')
        a.e(f's_lshl_b32 {t2}, {sV}, 3')
        a.e(f's_add_u32 {t2}, {t2}, {ZO}')
        pre = ['v_and_b32 v18, 15, v0', 'v_lshrrev_b32 v19, 5, v0', 'v_lshl_add_u32 v18, v19, 4, v18', 'v_bfe_u32 v19, v0, 4, 1',
               'v_lshlrev_b32 v19, 2, v19', 'v_lshl_add_u32 v18, v18, 5, v19', f'v_add_u32 v18, {t2}, v18', f'v_mov_b32 v19, {ZO}',
               'v_and_b32 v29, 15, v0', 'v_lshl_add_u32 v19, v29, 6, v19', 'v_lshlrev_b32 v29, 2, v0']
        n1 = self.o.get('tr_pre', 8)
        for x in tr[:n1]:
            a.e(x)
        self.sleep('h1' if isa else 'hd')
        for x in ld:
            a.e(x)
        self.mix(tr[n1:], pre)
        a.e(f's_add_u32 {t2}, {oYpub}, {G_YA if isa else G_YB}')
        top = a.lab('poll')
        a.e(f'{top}:')
        for x in ld:
            a.e(x)
        for r in range(20, 28, 2):
            a.e(f'v_mov_b64 {vr(r, 2)}, 0')
        self.K(0, 'po')
        a.e(f's_waitcnt vmcnt({len(ld)}) lgkmcnt(0)')
        if isa:
            a.e('v_max3_u32 v17, v8, v12, v16')
        else:
            a.e('v_max_u32 v17, v8, v12')
        a.e('v_cmp_eq_u32 vcc, -1, v17')
        a.e('v_smfmac_f32_16x16x64_bf16 v[20:23], v[8:11], v[32:39], v1')
        if isa:
            a.e('v_mov_b32 v31, v16')
        a.e('v_smfmac_f32_16x16x64_bf16 v[24:27], v[8:11], v[48:55], v1')
        self.retry_to(top)
        w = self.w8('v31', 'v17')
        a.e('v_smfmac_f32_16x16x64_bf16 v[20:23], v[12:15], v[40:47], v1')
        if isa:
            a.e(w[0])
        a.e('v_smfmac_f32_16x16x64_bf16 v[24:27], v[12:15], v[56:63], v1')
        self.stamp('ogot')
        if isa:
            self.weigh2(1, 'v31', True)
        else:
            a.e('v_pk_add_f32 v[20:21], v[20:21], v[22:23]')
            a.e('v_pk_add_f32 v[24:25], v[24:25], v[26:27]')
            a.e('v_add_f32 v20, v20, v21')
            a.e('v_add_f32 v24, v24, v25')
            a.e('v_cmp_u_f32 vcc, v20, v20')
            a.e('v_permlane32_swap_b32 v20, v24')
            a.e('v_add_f32 v20, v20, v24')
        a.e('ds_write_b32 v18, v20')
        self.K(1)
        self.retry_to(top)
        a.e(f's_bitcmp0_b32 {sRES}, 0')
        self.bar(1, True)
        l = a.lab('noy')
        a.e(f's_cbranch_scc1 {l}')
        a.begin_skip()
        for i in range(4):
            a.e(f'ds_read_b128 {vr(32 + 4 * i, 4)}, v19 offset:{16 * i}')
            a.tag_ds(f'z{i}')
            if i & 1:
                self.Wm()
        a.e('s_mov_b32 exec_hi, 0')
        self.K(2)
        self.Wm()
        a.wait(ds='z1')
        a.e('v_pk_add_f32 v[32:33], v[32:33], v[34:35]')
        a.e('v_pk_add_f32 v[36:37], v[36:37], v[38:39]')
        a.e('v_pk_add_f32 v[32:33], v[32:33], v[36:37]')
        a.e('v_add_f32 v32, v32, v33')
        a.wait(ds='z3')
        a.e('v_pk_add_f32 v[40:41], v[40:41], v[42:43]')
        a.e('v_pk_add_f32 v[44:45], v[44:45], v[46:47]')
        a.e('v_pk_add_f32 v[40:41], v[40:41], v[44:45]')
        a.e('v_add_f32 v33, v40, v41')
        a.e('v_pk_add_f32 v[32:33], v[32:33], v[4:5]')
        a.e('v_cvt_pk_bf16_f32 v32, v32, v33')
        a.e(f'buffer_store_dword v32, v29, {WSG}, {t2} offen sc1')
        a.e('s_mov_b32 exec_hi, -1')
        a.end_skip()
        a.e(f'{l}:')
        self.stamp('ypub')

    def qabs(self):
        a = self.a
        a.e('v_and_b32 v36, 7, v0')
        a.e('v_lshlrev_b32 v37, 3, v36')
        a.e(f's_sub_u32 {t0}, {sW8}, {sKV}')
        a.e(f'v_add_u32 v56, {t0}, {vA}')
        for ks in range(1, 4):
            a.e(f'v_xor_b32 v{56 + ks}, {ks << 6}, v56')
        a.e('v_and_b32 v38, 8, v0')
        a.e('v_lshlrev_b32 v38, 3, v38')
        a.e('v_lshl_or_b32 v38, v36, 1, v38')
        a.e(f's_lshl_b32 {t0}, {sV}, 4')
        a.e(f's_add_u32 {t0}, {t0}, {ZQ}')
        a.e(f'v_add_u32 v38, {t0}, v38')
        a.e(f'v_add_u32 v39, {ZQ}, {vL16}')
        self.sleep('hqb')
        top = a.lab('poll')
        a.e(f'{top}:')
        a.e(f'buffer_load_dwordx2 v[34:35], v37, {WSL}, {oSTgB} offen sc1')
        a.tag_vm('st')
        for i in (2, 3, 0, 1):
            a.e(f'buffer_load_dwordx4 {vr(8 + 4 * i, 4)}, {vL16}, {WSL}, {oQgB} offen offset:{i * 1024} sc1')
            a.tag_vm(f'q{i}')
        a.wait(vm='wuk')
        for ks in range(4):
            a.e(f'ds_read_b128 {vr(40 + 4 * ks, 4)}, v{56 + ks}')
            a.e(f'v_mov_b64 {vr(24 + 2 * ks, 2)}, 0')
        self.K(0, 'qb')
        a.wait(vm='st')
        a.e('v_cmp_u_f32 vcc, v34, v35')
        st = self.stats(34)
        for x in st[:4]:
            a.e(x)
        self.retry_to(top)
        for x in st[4:6]:
            a.e(x)
        a.e('s_waitcnt lgkmcnt(0)')
        a.wait(vm='q2')
        a.e('v_smfmac_f32_16x16x64_bf16 v[28:31], v[16:19], v[40:47], v1')
        for x in st[6:]:
            a.e(x)
        a.wait(vm='q3')
        a.e('v_smfmac_f32_16x16x64_bf16 v[28:31], v[20:23], v[48:55], v1')
        self.K(2, 'qb2')
        a.wait(vm='q0')
        a.e('v_smfmac_f32_16x16x64_bf16 v[24:27], v[8:11], v[40:47], v1')
        self.K(1, 'qb3')
        a.e('v_pk_add_f32 v[28:29], v[28:29], v[30:31]')
        a.e('v_add_f32 v28, v28, v29')
        a.e('v_mul_f32 v28, v28, v35')
        a.e(f's_cmp_lg_u32 {sV}, 0')
        a.wait(vm='q1')
        a.e('v_smfmac_f32_16x16x64_bf16 v[24:27], v[12:15], v[48:55], v1')
        self.stamp('qgotB', 2)
        a.e('v_pk_add_f32 v[24:25], v[24:25], v[26:27]')
        a.e('v_sub_f32 v24, v24, v28')
        a.e('v_add_f32 v24, v24, v25')
        a.e('v_mul_f32 v25, v24, v34')
        a.e('v_mul_f32 v24, v24, v34')
        a.e('v_cmp_u_f32 vcc, v24, v24')
        a.e('v_permlane32_swap_b32 v24, v25')
        a.e('v_add_f32 v26, v24, v25')
        a.e('v_add_f32 v24, v24, v25')
        a.e('v_permlane16_swap_b32 v24, v26')
        a.e('v_add_f32 v24, v24, v26')
        a.e('v_cvt_pk_bf16_f32 v24, v24, v24')
        a.e('ds_write_b16 v38, v24')
        self.retry_to(top)
        a.e('s_waitcnt lgkmcnt(0)')
        a.e('s_barrier')
        l = a.lab('notw')
        a.e(f's_cbranch_scc1 {l}')
        a.begin_skip()
        a.e('s_mov_b64 exec, 0xff')
        a.e('ds_read_b128 v[24:27], v39')
        a.e('s_waitcnt lgkmcnt(0)')
        a.e(f'buffer_store_dwordx4 v[24:27], {vL16}, {WSG}, {oQApub} offen sc1')
        a.e('s_mov_b64 exec, -1')
        self.end_only(l)
        self.stamp('qapub')
        self.touches('w3', 'v8', 'v9')
        self.resid_track(G_YA, 10, 'v8', f's_cmp_eq_u32 {sRES}, 3')

    def attn_b(self):
        a = self.a
        a.e(f's_mul_i32 {t0}, {sV}, {4096 - 16384}')
        a.e(f's_add_u32 {t0}, {t0}, {CKV}')
        a.e(f'v_add_u32 v56, {t0}, {vA}')
        a.e('v_xor_b32 v57, 64, v56')
        ORD = [(r, ks) for kp in range(2) for r in range(4) for ks in (2 * kp, 2 * kp + 1)]
        ga = ['v_and_b32 v58, 12, v0', 'v_lshlrev_b32 v58, 4, v58', 'v_and_or_b32 v58, v0, 48, v58', 'v_lshlrev_b32 v58, 2, v58',
              f'v_and_or_b32 v58, {vL16}, 48, v58', 'v_lshlrev_b32 v8, 7, v0', 'v_mov_b32 v9, 0']
        for x in ga:
            a.e(x)
        a.e(f'v_add_u32 v59, {STG}, {vL16}')
        a.e('s_barrier')
        self.sleep('ha')
        top = a.lab('poll')
        a.e(f'{top}:')
        ld = [f's_mov_b32 m0, {sW8}', 's_mov_b32 exec_hi, 0', f'buffer_load_dword v9, v8, {WSG}, {oQAg} offen sc1', 's_mov_b32 exec_hi, -1']
        for ks in range(4):
            ld.append(f'buffer_load_dwordx4 v58, {WSG}, {oQAg} offen offset:{ks * 1024} sc1 lds')
        for x in ld:
            a.e(x)
        for k in range(8):
            r, ks = ORD[k]
            a.e(f'ds_read_b128 {vr(24 + 4 * k, 4)}, v{56 + (ks & 1)} offset:{r * 16384}')
        a.e('v_xor_b32 v56, 128, v56')
        a.e('v_xor_b32 v57, 128, v57')
        self.k64_addr('v10', None)
        chk, again = a.lab('chk'), a.lab('again')
        a.e(f'{chk}:')
        a.e('s_waitcnt vmcnt(4)')
        a.e('v_cmp_eq_u32 vcc, -1, v9')
        self.retry_to(again)
        a.ool(f'{again}:\n' + '\n'.join(ld) + f'\ns_branch {chk}')
        pol = self.o.get('pol_w', '')
        for i in range(1, 4):
            a.e(f's_add_u32 {[t1, t2, t3][i - 1]}, {oWUV}, {i * (16 * 8192 - 1024)}')
        a.e('v_mov_b32 v58, v10')
        a.e('s_waitcnt vmcnt(0) lgkmcnt(0)')
        a.e('s_barrier')
        self.stamp('qagot')

        def qread(k):
            r, ks = ORD[k]
            a.e(f'ds_read_b128 {vr(8 + 4 * (k & 3), 4)}, v59 offset:{r * 8192 + ks * 1024}')
            a.tag_ds(f'q{k}')
        for k in range(4):
            qread(k)
        a.e(f's_add_u32 m0, {sW8}, 4096')
        SLOT = [16, 40, 48]

        def tread(e, ad='v57'):
            l = [f'v_xor_b32 {ad}, {CKV | (e << 5)}, {vT}']
            for t in range(4):
                l.append(f'ds_read_b64_tr_b16 {vr(SLOT[e % 3] + 2 * t, 2)}, {ad} offset:{t * 4096}')
            return l
        for k in range(16):
            a.wait(ds=f'q{k}')
            a.e(f'v_mfma_f32_16x16x32_bf16 v[60:63], {vr(24 + 4 * (k & 7), 4)}, {vr(8 + 4 * (k & 3), 4)}, {"v[60:63]" if k else "0"}')
            if k < 8:
                r, ks = ORD[k + 8]
                a.e(f'ds_read_b128 {vr(24 + 4 * k, 4)}, v{56 + (ks & 1)} offset:{r * 16384}')
            if k + 4 < 16:
                qread(k + 4)
            if k in (0, 2, 4, 6):
                a.e(f'buffer_load_dwordx4 v58, {WUV}, {[oWUV, t1, t2, t3][k >> 1]} offen offset:{(k >> 1) * 1024} {pol} lds')
            if k == 10:
                a.e('s_barrier')
            if k == 11:
                self.touches('w4', 'v58', None)
            if k == 12:
                a.e('v_xor_b32 v56, 128, v56')
                a.e(f'v_add_u32 v8, {sW8}, {vL16}')
            if k == 13:
                t1_ = tread(1)
                a.e(t1_[0]); a.e(t1_[1])
            if k == 14:
                a.e(t1_[2]); a.e(t1_[3])
        a.e(t1_[4])
        t0_ = tread(0)
        a.e(t0_[0]); a.e(t0_[1]); a.e(t0_[2])
        self.Wm()
        a.e(t0_[3]); a.e(t0_[4])
        t2_ = tread(2)
        a.e(t2_[0])
        a.e('ds_write_b128 v8, v[60:63]')
        a.tag_ds('sw')
        a.e(t2_[1]); a.e(t2_[2])
        self.Wm()
        a.e(t2_[3]); a.e(t2_[4])
        a.e('v_xor_b32 v57, 64, v56')
        self.K(2, 'sw')
        self.Wm()
        a.wait(ds='sw')
        self.Wm()
        a.e('s_barrier')
        self.Wm()
        self.stamp('sbar', 2)
        for t in range(4):
            a.e(f'ds_read_b128 {vr(24 + 4 * t, 4)}, v59 offset:{t * 8192}')
            a.tag_ds(f's{t}')
            if t & 1:
                self.Wm()
        a.e('v_lshrrev_b32 v61, 4, v0')
        a.e(f'v_and_b32 v60, 0xf0, {vL16}')
        a.e('v_lshl_or_b32 v61, v61, 16, v60')
        a.e(f's_add_u32 {t1}, {oC1pub}, 4096')
        a.e(f's_add_u32 {t2}, {oC1pub}, 8192')
        a.e(f's_add_u32 {t3}, {oC1pub}, 12288')
        self.Wm()
        self.lcmp()
        a.wait(ds='s0')
        a.e('v_cmp_u_f32 vcc, v24, v24')
        a.e('v_max3_f32 v62, v24, v25, v26')
        a.wait(ds='s1')
        a.e('v_max3_f32 v62, v62, v27, v28')
        a.e('v_max3_f32 v62, v62, v29, v30')
        a.wait(ds='s2')
        a.e('v_max3_f32 v62, v62, v31, v32')
        a.e('v_max3_f32 v62, v62, v33, v34')
        a.wait(ds='s3')
        a.e('v_max3_f32 v62, v62, v35, v36')
        a.e('v_max3_f32 v62, v62, v37, v38')
        a.e('v_max_f32 v63, v62, v39')
        a.e('v_max_f32 v62, v62, v39')
        again = a.lab('again')
        self.retry_to(again)
        a.ool(f'{again}:\n' + '\n'.join(ga) + f'\ns_barrier\ns_branch {top}')
        a.e('v_permlane32_swap_b32 v62, v63')
        a.e('v_max_f32 v60, v62, v63')
        a.e('v_max_f32 v62, v62, v63')
        a.e('v_permlane16_swap_b32 v62, v60')
        a.e('v_max_f32 v62, v62, v60')
        for r in range(24, 40, 2):
            a.e(f'v_pk_add_f32 {vr(r, 2)}, {vr(r, 2)}, v[62:63] op_sel_hi:[1,0] neg_lo:[0,1] neg_hi:[0,1]')
        for r in range(24, 32):
            a.e(f'v_exp_f32 v{r}, v{r}')
        for r in range(4):
            a.e(f'v_cvt_pk_bf16_f32 v{8 + r}, v{24 + 2 * r}, v{25 + 2 * r}')
        for r in range(32, 40):
            a.e(f'v_exp_f32 v{r}, v{r}')
        ACC = [56, 32, 36, 28]
        a.e(f'v_mfma_f32_16x16x32_bf16 v[56:59], v[8:11], {vr(SLOT[0], 4)}, 0')
        for r in range(4, 8):
            a.e(f'v_cvt_pk_bf16_f32 v{8 + r}, v{24 + 2 * r}, v{25 + 2 * r}')
        a.e('v_pk_add_f32 v[24:25], v[24:25], v[32:33]')
        a.e('v_pk_add_f32 v[26:27], v[26:27], v[34:35]')
        self.stamp('smax', 2)
        so = [oC1pub, t1, t2, t3]
        ml = ['s_mov_b64 exec, 0xffff', f'buffer_store_dwordx2 v[62:63], v60, {WSL}, {oMLpub} offen', 's_mov_b64 exec, -1']
        mlat = self.o.get('ml_at', 2)

        def pack(q):
            d0, d1 = ACC[(2 * q) & 3], ACC[(2 * q + 1) & 3]
            return [f'v_cvt_pk_bf16_f32 v{24 + r}, v{d0 + r}, v{d1 + r}' for r in range(4)]

        def put(q):
            self.lstore([f'buffer_store_dwordx4 v[24:27], v61, {WS}, {so[q]} offen'] + (ml if q == mlat else []))
        F = {e: [[], []] for e in range(8)}
        F[0][1] = ['v_pk_add_f32 v[28:29], v[28:29], v[36:37]', 'v_pk_add_f32 v[30:31], v[30:31], v[38:39]']
        F[1][0] = ['v_pk_add_f32 v[24:25], v[24:25], v[28:29]', 'v_pk_add_f32 v[26:27], v[26:27], v[30:31]']
        F[2][0] = ['v_pk_add_f32 v[24:25], v[24:25], v[26:27]', 'v_add_f32 v63, v24, v25']
        F[3][0] = pack(0)[:2]
        F[3][1] = pack(0)[2:]
        F[5][0] = pack(1)[:2]
        F[5][1] = pack(1)[2:] + ['v_mov_b32 v60, v63']
        F[6][0] = ['v_permlane32_swap_b32 v63, v60', 'v_add_f32 v16, v63, v60', 'v_add_f32 v63, v63, v60']
        F[6][1] = ['v_and_b32 v60, 12, v0', 'v_lshlrev_b32 v60, 4, v60', 'v_permlane16_swap_b32 v63, v16', 'v_add_f32 v63, v63, v16']
        F[7][0] = pack(2)[:2] + ['v_and_or_b32 v60, v0, 3, v60']
        F[7][1] = pack(2)[2:] + ['v_lshlrev_b32 v60, 3, v60']
        for e in range(8):
            a.wait(ds=f't{e}')
            d = vr(ACC[e & 3], 4)
            s = SLOT[e % 3]
            nx = tread(e + 3, 'v60') if e + 3 < 8 else []
            if e:
                a.e(f'v_mfma_f32_16x16x32_bf16 {d}, v[8:11], {vr(s, 4)}, 0')
            for x in nx[:3]:
                a.e(x)
            for x in F[e][0]:
                a.e(x)
            a.e(f'v_mfma_f32_16x16x32_bf16 {d}, v[12:15], {vr(s + 4, 4)}, {d}')
            for x in nx[3:]:
                a.e(x)
            if nx:
                a.tag_ds(f't{e + 3}')
            for x in F[e][1]:
                a.e(x)
            if e in (3, 5, 7):
                put((e - 3) // 2)
        for x in pack(3):
            a.e(x)
        put(3)
        self.stamp('c1pub')

    def red(self):
        a = self.a
        a.e('v_and_b32 v44, 3, v0')
        a.e('v_lshlrev_b32 v44, 6, v44')
        a.e('v_and_or_b32 v44, v0, 60, v44')
        a.e('v_lshlrev_b32 v44, 1, v44')
        self.sleep('hc1')
        ld = [f'buffer_load_dwordx2 v[22:23], v44, {WSL}, {oMLg} offen sc1']
        a.e(ld[0])
        a.e('v_and_b32 v40, 4, v0')
        a.e('v_lshlrev_b32 v40, 4, v40')
        a.e('v_and_or_b32 v40, v0, 48, v40')
        a.e('v_lshlrev_b32 v40, 1, v40')
        a.e('v_and_or_b32 v40, v0, 11, v40')
        a.e(f'v_lshl_add_u32 v40, v40, 3, {sW8}')
        a.e('v_and_b32 v45, 56, v0')
        a.e('v_lshlrev_b32 v45, 1, v45')
        a.e('v_and_or_b32 v45, v0, 6, v45')
        a.e('v_lshlrev_b32 v45, 1, v45')
        a.e(f'v_and_or_b32 v45, {vL16}, 16, v45')
        a.e('v_lshlrev_b32 v46, 2, v0')
        self.wo_prep(41, 'v39')
        self.pipe_poll(ld, 'v47', [22, 23], 'pm')
        a.e('v_mov_b64 v[24:25], v[22:23]')
        self.stamp('mlgot', 2)
        cl = [f'buffer_load_dwordx4 {vr(8 + 4 * i, 4)}, {vL16}, {WS}, {oC1g} offen offset:{i * 1024} sc1' for i in range(4)]
        for i, x in enumerate(cl):
            a.e(x)
            a.tag_vm(f'c{i}')
        tr = []
        for tau in range(2):
            for gam in range(2):
                for tt in range(2):
                    tr.append(f'ds_read_b64_tr_b16 {vr(48 + 8 * tau + 4 * gam + 2 * tt, 2)}, v40 offset:{4096 + (32 * gam + 2 * tt) * 64 + 32 * tau}')
        a.e(f'v_max_f32_dpp v36, v24, v24 quad_perm:[1,0,3,2] {FULL}')
        a.e(tr[0]); a.e(tr[1])
        a.e(f'v_max_f32_dpp v37, v36, v36 quad_perm:[2,3,0,1] {FULL}')
        a.e(f'v_max_f32_dpp v36, v36, v36 quad_perm:[2,3,0,1] {FULL}')
        a.e(tr[2]); a.e(tr[3])
        a.e('v_permlane32_swap_b32 v36, v37')
        a.e('v_max_f32 v38, v36, v37')
        a.e('v_max_f32 v36, v36, v37')
        a.e(tr[4]); a.e(tr[5])
        a.e('v_permlane16_swap_b32 v36, v38')
        a.e('v_max_f32 v36, v36, v38')
        a.e('v_sub_f32 v24, v24, v36')
        a.e('v_exp_f32 v24, v24')
        a.e(tr[6])
        a.e('v_mul_f32 v25, v25, v24')
        a.e(tr[7])
        a.e('v_mov_b64 v[28:29], 0')
        a.e(f'v_add_f32_dpp v25, v25, v25 quad_perm:[1,0,3,2] {FULL}')
        a.e('v_mov_b64 v[30:31], 0')
        a.e('v_mov_b64 v[32:33], 0')
        a.e(f'v_add_f32_dpp v37, v25, v25 quad_perm:[2,3,0,1] {FULL}')
        a.e(f'v_add_f32_dpp v25, v25, v25 quad_perm:[2,3,0,1] {FULL}')
        a.e('v_mov_b64 v[34:35], 0')
        a.e('v_permlane32_swap_b32 v25, v37')
        a.e('v_add_f32 v38, v25, v37')
        a.e('v_add_f32 v25, v25, v37')
        a.e('v_permlane16_swap_b32 v25, v38')
        a.e('v_add_f32 v25, v25, v38')
        a.e('v_rcp_f32 v38, v25')
        a.e('v_log_f32 v37, v25')
        a.e('v_mul_f32 v24, v24, v38')
        a.e('v_add_f32 v37, v37, v36')
        a.e('v_cvt_pk_bf16_f32 v26, v24, 0')
        a.e('v_cvt_pk_bf16_f32 v27, 0, v24')
        top, again = a.lab('acc'), a.lab('again')
        a.e(f'{top}:')
        for i in range(4):
            if i:
                self.K(0, 'rd')
            a.wait(vm=f'c{i}')
            for d in range(4):
                a.e(f'v_dot2c_f32_bf16_dpp v{28 + 2 * d}, v26, v{8 + 4 * i + d} row_newbcast:{4 * d + i} {FULL}')
                a.e(f'v_dot2c_f32_bf16_dpp v{29 + 2 * d}, v27, v{8 + 4 * i + d} row_newbcast:{4 * d + i} {FULL}')
        for i in range(4):
            a.e(f'v_permlane32_swap_b32 v{28 + i}, v{32 + i}')
        a.e('v_pk_add_f32 v[28:29], v[28:29], v[32:33]')
        a.e('v_pk_add_f32 v[30:31], v[30:31], v[34:35]')
        a.e('v_cmp_u_f32 vcc, v28, v30')
        a.e('v_permlane16_swap_b32 v28, v30')
        a.e('v_permlane16_swap_b32 v29, v31')
        a.e('v_pk_add_f32 v[28:29], v[28:29], v[30:31]')
        a.e('v_cvt_pk_bf16_f32 v28, v28, v29')
        self.retry_to(again)
        a.ool(f'{again}:\n' + '\n'.join(cl) + '\n' + '\n'.join(f'v_mov_b64 {vr(r, 2)}, 0' for r in range(28, 36, 2)) + f'\ns_branch {top}')
        a.e(f'buffer_store_dword v28, v45, {WSG}, {oC2pub} offen sc1')
        a.e('s_mov_b32 exec_hi, 0')
        a.e(f'buffer_store_dword v37, v46, {WSG}, {oC2Lpub} offen sc1')
        a.e('s_mov_b32 exec_hi, -1')
        self.stamp('c2pub')
        a.e('s_waitcnt lgkmcnt(0)')
        a.e('s_barrier')
        if self.o.get('x_wo'):
            a.e('s_waitcnt vmcnt(0)')
            self.stamp('x_ack')
        self.wol = self.wo_lines(BWO, 41)
        npre = self.o.get('wo_pre', 8)
        for x in self.wol[:npre]:
            a.e(x)
        if npre == 8:
            a.tag_vm('wo')
        self.wol = self.wol[npre:]
        if self.o.get('x_wo'):
            self.stamp('x_iss')
            a.e('s_waitcnt vmcnt(0)')
            self.stamp('x_land')

    def wb(self, where):
        a = self.a
        if self.o.get('wb') != where:
            return
        l = a.lab('nowb')
        self.sums(t1, [(sJ, 8), (sV, 2), (sIT, 1)])
        a.e(f's_cmp_lg_u32 {t1}, {24 * 8 + 1}')
        a.e(f's_cbranch_scc1 {l}')
        a.begin_skip()
        a.e('buffer_wbl2 sc1')
        self.end_only(l)

    def uv(self):
        a = self.a
        a.e('v_lshrrev_b32 v28, 1, v0')
        a.e('v_and_or_b32 v28, v28, 16, 0')
        a.e('v_and_or_b32 v28, v0, 14, v28')
        a.e('v_lshlrev_b32 v28, 6, v28')
        a.e('v_and_or_b32 v28, v0, 16, v28')
        a.e('v_lshlrev_b32 v28, 1, v28')
        a.e(f'v_and_or_b32 v28, {vL16}, 16, v28')
        self.rot8('v29', 7)
        self.pos_bytes('v30', None)
        a.e('v_and_b32 v31, 32, v0')
        a.e('v_lshl_or_b32 v30, v31, 3, v30')
        self.sleep('hc2')
        ld = [f'buffer_load_dword v16, v29, {WSG}, {oC2Lg} offen sc1',
              f'buffer_load_dwordx4 v[8:11], v28, {WSG}, {oC2g} offen sc1']
        z = [f'v_mov_b64 {vr(r, 2)}, 0' for r in range(20, 28, 2)]
        for x in ld:
            a.e(x)
        a.tag_vm('c2')
        for x in self.wol:
            a.e(x)
        if self.wol:
            a.tag_vm('wo')
        for x in z:
            a.e(x)
        a.wait(vm='c2')
        top, again = a.lab('chk'), a.lab('again')
        a.e(f'{top}:')
        a.e('v_smfmac_f32_16x16x64_bf16 v[20:23], v[8:11], v[48:55], v1')
        self.maxchain('v18', [8, 9, 10, 11, 16], True)
        a.e('v_smfmac_f32_16x16x64_bf16 v[24:27], v[8:11], v[56:63], v1')
        self.poll_cmp('v18')
        w = self.w8('v16', 'v17')
        a.e(w[0])
        a.e(w[1])
        a.e(w[2])
        self.retry_to(again)
        a.ool(f'{again}:\n' + '\n'.join(ld + z) + f'\ns_waitcnt vmcnt(0)\ns_branch {top}')
        self.stamp('c2got', 2)
        self.weigh2(3)
        a.e('v_mov_b32 v21, v20')
        self.lcmp()
        a.e('v_permlane16_swap_b32 v20, v21')
        a.e('v_add_f32 v20, v20, v21')
        a.e(f'v_mov_b32_dpp v21, v20 quad_perm:[1,0,3,2] {FULL}')
        a.e('v_cvt_pk_bf16_f32 v20, v20, v21')
        self.lstore(['s_mov_b32 exec_lo, 0x5555', 's_mov_b32 exec_hi, 0x5555',
                     f'buffer_store_dword v20, v30, {WSL}, {oOBpub} offen', 's_mov_b64 exec, -1'])
        self.stamp('dpub')
        self.wb('dpub')

    def attn_a3(self):
        a = self.a
        self.qa_addr(14)
        self.sleep('hqa')
        ld = self.qa_loads(8, 12, 14)
        for x in ld:
            a.e(x)
        a.e('v_mov_b64 v[20:21], 0')
        a.e(f'v_lshl_add_u32 v17, v0, 3, {sW8}')
        a.e('ds_write_b64 v17, v[20:21] offset:6656')
        a.e(f's_add_u32 {t0}, {sW8}, 6656')
        a.e(f'v_mov_b32 v17, {t0}')
        a.e('s_mov_b32 s22, 0x000f000f')
        a.e('s_mov_b32 s23, 0x000f000f')
        for c in range(4):
            a.e(f'v_cndmask_b32 v{56 + c}, v17, v16, s[22:23]')
            a.e('s_lshl_b64 s[22:23], s[22:23], 4')
        self.p_addr('v60', 'v17')
        self.wo_prep(61, 'v17')
        for r in (16, 24, 28):
            a.e(f'v_mov_b64 {vr(r, 2)}, 0')
        self.pipe_poll(ld, 'v38', [8, 12], 'pq')
        top = self.ptop
        a.e('v_mov_b64 v[36:37], v[12:13]')
        a.e('v_mov_b64 v[32:33], v[8:9]')
        a.e('v_mov_b64 v[34:35], v[10:11]')
        self.stamp('qgotA', 2)
        self.qa_finish(32, 36, 14, None, True)
        a.e('v_lshlrev_b32 v33, 16, v32')
        a.e('v_cmp_u_f32 vcc, v33, v33')
        a.e(f's_sub_u32 {t2}, {sW8}, {ZQ - 6144}')
        a.e('s_mov_b32 s22, 0x000f000f')
        a.e('s_mov_b32 s23, 0x000f000f')
        self.retry_to(top)
        a.e('s_waitcnt vmcnt(0) lgkmcnt(0)')
        a.e('s_barrier')

        def qrd(c, b):
            a.e(f'ds_read_b128 {vr(32 + 8 * (c % 3) + 4 * b, 4)}, v{56 + c} offset:{128 * b}')
            a.tag_ds(f'q{c}{b}')
        for c in range(3):
            qrd(c, 0)
            qrd(c, 1)
        self.stamp('qrdy')
        ds, va = [], []
        for e in range(8):
            for t in range(4):
                ds.append((e, f'ds_read_b64_tr_b16 a[{8 * e + 2 * t}:{8 * e + 2 * t + 1}], v{14 + (e & 1)} offset:{t * 4096}'))
        wl = self.wo_lines(WO, 61, self.o.get('pol_wo3', ''))
        other = {2: wl[0], 3: wl[1], 7: wl[2], 11: wl[3], 13: wl[4], 15: wl[5], 19: wl[6], 23: wl[7],
                 5: 'v_mov_b64 v[8:9], 0', 6: 'v_mov_b64 v[12:13], 0', 8: f'v_mov_b32 v10, {t2}'}
        for e, k in enumerate((4, 10, 14, 18, 22, 26, 30), 1):
            other[k] = f'v_xor_b32 v{14 + (e & 1)}, {e << 5}, {vT}'
        pc = []
        for c in range(4):
            pc.append('v_cndmask_b32 v11, 0, v10, s[22:23]')
            pc.append(f'v_add_u32 v{56 + c}, v{56 + c}, v11')
            if c < 3:
                pc.append('s_lshl_b64 s[22:23], s[22:23], 4')
        a.e(f'v_mov_b32 v14, {vT}')
        for k in range(32):
            c, r, b = k >> 3, (k >> 1) & 3, k & 1
            if r == 0:
                a.wait(ds=f'q{c}{b}')
            t = k >> 1
            a.e(f'v_smfmac_f32_16x16x64_bf16 {vr(16 + 4 * r, 4)}, {vr(32 + 8 * (c % 3) + 4 * b, 4)}, a[{16 * t + 8 * b}:{16 * t + 8 * b + 7}], v1')
            if k in (8, 9):
                qrd(3, k - 8)
            elif k >= 1:
                a.e(ds.pop(0)[1])
            if k in other:
                a.e(other[k])
        for r in range(4):
            if ds:
                a.e(ds.pop(0)[1])
            a.e(f'v_add_f32 v{16 + r}, v{16 + 4 * r}, v{17 + 4 * r}')
        self.softmax_a(16, 20, 'v60', pc)

        def prd(j):
            a.e(f'ds_read_b128 {vr(32 + 4 * (j % 6), 4)}, v{56 + (j >> 2)} offset:{128 * (j & 3)}')
            a.tag_ds(f'p{j}')
        for j in range(6):
            prd(j)
        self.stamp('smaxA')
        ls = self.lsum('v21', 16)
        for x in ls[:4]:
            a.e(x)
        fill = [[x] for x in ls[4:]] + [self.ml_write(20)[:2], self.ml_write(20)[2:4], self.ml_write(20)[4:], [], [], ['BAR'],
                                        self.ml_read(24, 22)[:2], ['MLR'], [], [], []]
        sc = self.ml_scale(24, 22, 62, 63)
        fill += [['MLW'] + sc[:1]] + [sc[1:3], sc[3:5], sc[5:7]] + [[x] for x in sc[7:12]] + [sc[12:14], sc[14:16], sc[16:17], sc[17:18], sc[18:20]]
        for j in range(16):
            c, U = j >> 2, j & 3
            for hf in range(2):
                e = c + 4 * hf
                if hf == 0:
                    a.wait(ds=f'p{j}')
                B = vr(64 + 64 * U + 8 * e, 8) if U < 3 else f'a[{8 * e}:{8 * e + 7}]'
                a.e(f'v_smfmac_f32_16x16x64_bf16 {vr(8 + 4 * hf, 4)}, {vr(32 + 4 * (j % 6), 4)}, {B}, v1')
                if hf == 1 and j + 6 < 16:
                    prd(j + 6)
                for x in (fill.pop(0) if fill else []):
                    if x == 'BAR':
                        a.wait(ds='mlw')
                        a.e('s_barrier')
                    elif x == 'MLR':
                        a.e(self.ml_read(24, 22)[2])
                        a.tag_ds('mlr')
                    elif x == 'MLW':
                        a.wait(ds='mlr')
                    else:
                        a.e(x)
                        if 'ds_write_b64' in x:
                            a.tag_ds('mlw')
        assert not fill
        a.e(f'v_lshl_add_u32 v46, v0, 2, {sW8}')
        a.e('v_mov_b32 v47, v63')
        a.e('s_waitcnt vmcnt(0)')
        a.e('v_add_f32 v44, v8, v9')
        a.e('v_add_f32 v45, v12, v13')
        a.e('v_pk_mul_f32 v[44:45], v[44:45], v[62:63] op_sel_hi:[1,0]')
        self.stamp('pvA')

    def dma_tile(self, t):
        a = self.a
        pol = self.o.get('pol_kv', 'nt')
        srd = K_ if t < 16 else V_
        a.e(f's_add_u32 m0, {sKV}, {(t & 3) * 4096}')
        a.e(f's_add_u32 {t0}, {sKG}, {(t & 15) * 16384}')
        for q in range(4):
            a.e(f'buffer_load_dwordx4 v{8 + q}, {srd}, {t0} offen offset:{q * 1024} {pol} lds')
        a.tag_vm(f'tile{t}')

    def dma_ckv(self, t):
        a = self.a
        pol = self.o.get('pol_c', '')
        a.e('v_lshrrev_b32 v62, 4, v0')
        a.e('v_mul_u32_u24 v62, 768, v62')
        a.e(f's_lshr_b32 {t2}, {sJ}, 1')
        self.sums(t1, [(sX, 1 << 20), (t2, 1 << 16), (sV, 256)])
        for q in range(4):
            a.e(f's_add_u32 m0, {sKV}, {CKV + t * 4096 + q * 1024}')
            a.e(f'v_add_u32 v63, v{8 + q}, v62')
            a.e(f's_add_u32 {t2}, {t1}, {(16 * t + 4 * q) * 1024}')
            a.e(f'buffer_load_dwordx4 v63, {CK}, {t2} offen {pol} lds')

    def prologue(self):
        a = self.a
        a.e('s_cmp_ge_u32 s2, 256')
        a.e('s_cbranch_scc1 L_end')
        if self.o.get('diag_fixed'):
            a.e('s_memrealtime s[100:101]')
        if self.o.get('stamps'):
            a.e('s_memtime s[98:99]' if self.o.get('clk') else 's_memrealtime s[98:99]')
        a.e('s_load_dwordx2 s[4:5], s[0:1], 8')
        ptrs = [(V_, 16), (CK, 48), (DBG, 96), (XIN, 0), (WQ, 24), (WO, 32), (BWQ, 56), (WUK, 64), (WUV, 72), (BWO, 80),
                (WS, 104), (OUT, 88)]
        sizes = {K_: 1 << 26, V_: 1 << 26, CK: 1 << 23, DBG: 256, XIN: 1152, WQ: 576 * 8192, WO: 4096 * 1152,
                 BWQ: 576 * 8192, WUK: 1 << 22, WUV: 1 << 22, BWO: 4096 * 1152, WS: WS_SIZE, WSL: L_X, WSG: G_IT, OUT: 1152}
        base = lambda s: int(s[2:s.index(':')])
        a.e('v_lshrrev_b32 v1, 6, v0')
        a.e('v_mov_b32 v63, v0')
        a.e(f'v_readfirstlane_b32 {sV}, v1')
        a.e('v_and_b32 v0, 63, v0')
        a.e(f's_and_b32 {sX}, s2, 7')
        a.e(f's_lshr_b32 {sJ}, s2, 3')
        a.e(f's_lshl_b32 {sKV}, {sV}, 14')
        self.sums(sKG, [(sX, 1 << 23), (sJ, 1 << 18), (sV, 1 << 12)])
        a.e(f'v_lshlrev_b32 {vL16}, 4, v0')
        a.e('v_and_b32 v12, 48, v0')
        a.e('v_lshlrev_b32 v12, 1, v12')
        a.e(f'v_xor_b32 v8, v12, {vL16}')
        for q in range(1, 4):
            a.e(f'v_xor_b32 v{8 + q}, {TBL[q] << 4}, v8')
        a.e(f's_mov_b32 s6, {sizes[K_]}')
        a.e('s_mov_b32 s7, 0x20000')
        a.e('s_waitcnt lgkmcnt(0)')
        for t in range(4):
            if t < self.o.get('depth', 4):
                self.dma_tile(t)
            for srd, off in ptrs[3 * t:3 * t + 3]:
                b = base(srd)
                a.e(f's_load_dwordx2 s[{b}:{b + 1}], s[0:1], {off}')
        for srd, n in sizes.items():
            if srd != K_:
                a.e(f's_mov_b32 s{base(srd) + 2}, {n}')
                a.e(f's_mov_b32 s{base(srd) + 3}, 0x20000')
        a.e(f's_getpc_b64 s[82:83]')
        a.e('L_pc:')
        a.e('v_lshlrev_b32 v62, 7, v63')
        a.e(f'v_min_u32 v62, L_codeend-L_pc, v62')
        a.e('global_load_dword v61, v62, s[82:83]')
        a.e(f's_lshr_b32 {t1}, {sJ}, 3')
        self.sums(sH, [(sX, 4), (t1, 1)])
        a.e(f's_and_b32 {sS}, {sJ}, 7')
        a.e(f's_mov_b32 {sIT}, 0')
        a.e(f's_mov_b32 {sPOLL}, 0')
        a.e(f's_mov_b32 {sST}, 0')
        self.sums(sW8, [(sV, 8192)], STG)
        a.e('s_mov_b32 s84, 0x00ff00ff')
        a.e('s_mov_b32 s85, 0x000000ff')
        self.sums(oY, [(sS, 384)])
        self.sums(oQA, [(t1, 4096), (sV, 1024), (sS, 128)], L_QA)
        self.sums(oQB, [(t1, 4096), (sV, 512), (sS, 32)], L_QB)
        self.sums(oST, [(sJ, 8)], L_STA)
        a.e(f's_cmp_eq_u32 {sV}, 0')
        a.e(f's_cselect_b32 {oST}, {oST}, {OOB}')
        self.sums(oQgA, [(t1, 4096), (sV, 1024)], L_QA)
        self.sums(oSTgA, [(t1, 64)], L_STA)
        self.sums(oWQ, [(sS, 72 * 8192), (sH, 256), (sV, 24 * 8192)])
        a.e(f's_cmp_eq_u32 {sV}, 3')
        a.e(f's_cselect_b32 {oWQ}, {OOB}, {oWQ}')
        self.sums(oWUV, [(sS, 64 * 8192), (sH, 256), (sV, 64)])
        self.sums(oWUK, [(sJ, 16 * 8192), (sX, 1024), (sV, 256)])
        self.sums(oWO, [(sX, 512 * 1152), (sV, 128 * 1152), (sJ, 48)])
        self.sums(oYpub, [(sX, 3072), (sJ, 128)])
        if self.o.get('asym'):
            a.e(f's_getreg_b32 {t0}, hwreg(HW_REG_XCC_ID, 0, 3)')
            a.e(f's_lshr_b32 {t0}, {self.o["asym"][0]}, {t0}')
            a.e(f's_lshl_b32 {t0}, {t0}, 31')
            a.e(f's_or_b32 {oYpub}, {oYpub}, {t0}')
        a.e(f's_cmp_lt_u32 {sJ}, 24')
        a.e(f's_cselect_b32 {oWO}, {oWO}, {OOB}')
        a.e(f's_cselect_b32 {sRES}, 1, 0')
        a.e(f's_cmp_eq_u32 {sV}, 3')
        a.e(f's_cselect_b32 {sRES}, {sRES}, 0')
        a.e(f's_mul_i32 {t0}, {sRES}, 3')
        a.e(f's_cmp_eq_u32 {sX}, 0')
        a.e(f's_cselect_b32 {sRES}, {t0}, {sRES}')
        if self.o.get('stamps'):
            a.e('v_mov_b32 v7, 0')
            a.e('s_mov_b32 s97, 8')
        a.e('v_and_b32 v14, 1, v0')
        a.e('v_mul_u32_u24 v1, 0xaaaa, v14')
        a.e('v_add_u32 v1, 0x4444, v1')

        def tbl(dst, x, tmp):
            a.e(f'v_lshrrev_b32 {tmp}, 1, {x}')
            a.e(f'v_xor_b32 {dst}, {x}, {tmp}')
            a.e(f'v_and_b32 {dst}, 1, {dst}')
            a.e(f'v_lshl_or_b32 {dst}, {dst}, 3, {tmp}')
        a.e('v_lshrrev_b32 v12, 4, v0')
        a.e('v_and_b32 v13, 15, v0')
        a.e('v_lshrrev_b32 v15, 2, v13')
        tbl('v16', 'v15', 'v17')
        a.e('v_and_b32 v17, 3, v13')
        a.e('v_lshlrev_b32 v18, 1, v17')
        a.e('v_xor_b32 v16, v16, v18')
        a.e('v_xor_b32 v16, v16, v12')
        a.e('v_lshlrev_b32 v16, 4, v16')
        a.e(f'v_lshl_or_b32 {vA}, v13, 8, v16')
        a.e(f'v_add_u32 {vA}, {sKV}, {vA}')
        tbl('v16', 'v12', 'v18')
        a.e('v_lshlrev_b32 v18, 1, v15')
        a.e('v_xor_b32 v16, v16, v18')
        a.e('v_lshrrev_b32 v18, 1, v17')
        a.e('v_xor_b32 v16, v16, v18')
        a.e('v_lshlrev_b32 v16, 4, v16')
        a.e('v_lshrrev_b32 v18, 2, v0')
        a.e('v_lshl_or_b32 v16, v18, 8, v16')
        a.e(f'v_lshl_or_b32 {vT}, v14, 3, v16')
        a.e(f'v_add_u32 {vT}, {sKV}, {vT}')
        a.e('s_waitcnt lgkmcnt(0)')
        self.stamp('start')
        w, l, g = base(WS), base(WSL), base(WSG)
        a.e(f's_lshl_b32 {t0}, {sX}, 17')
        a.e(f's_add_u32 s{l}, s{w}, {t0}')
        a.e(f's_addc_u32 s{l + 1}, s{w + 1}, 0')
        a.e(f's_add_u32 s{g}, s{w}, {GB}')
        a.e(f's_addc_u32 s{g + 1}, s{w + 1}, 0')
        self.dma_wq(WQ, 'v56', 'v57')
        self.lnq_rows()
        a.e(f's_mul_i32 {t0}, {sS}, 144')
        a.e('s_mov_b32 exec_lo, 0x00010001')
        a.e('s_mov_b32 exec_hi, 0x00000001')
        for rho in range(3):
            a.e(f'buffer_load_dwordx4 {vr(16 + 4 * rho, 4)}, v0, {XIN}, {t0} offen offset:{48 * rho}')
        a.e('s_mov_b64 exec, -1')
        a.e('v_lshlrev_b32 v58, 2, v0')
        a.e(f's_mul_i32 {t0}, {sJ}, 48')
        a.e(f's_cmp_eq_u32 {sRES}, 3')
        a.e(f's_cselect_b32 {t0}, {t0}, {OOB}')
        a.e(f'buffer_load_dword v5, v58, {XIN}, {t0} offen')
        for r in range(56, 60):
            a.e(f'v_mov_b32 v{r}, -1')
        self.sums(t3, [(sX, 128), (sJ, 4), (sV, 1)])
        a.e(f's_lshl_b32 {t4}, {t3}, 10')
        self.sums(t1, [(t3, 768)], GB)
        self.sums(t5, [(t3, 4096)], CB)
        a.e(f'buffer_store_dwordx4 v[56:59], {vL16}, {WS}, {t4} offen sc1')
        a.e('v_mul_u32_u24 v60, 12, v0')
        a.e(f'buffer_store_dwordx3 v[56:58], v60, {WS}, {t1} offen sc1')
        for i in range(0 if self.o.get('c1_late', 1) else 4):
            a.e(f'buffer_store_dwordx4 v[56:59], {vL16}, {WS}, {t5} offen offset:{i * 1024} sc1')
        a.tag_vm('clr')
        for ks in range(4):
            a.e(f'v_xor_b32 v{12 + ks}, {ks << 6}, {vA}')

    def late_scalars(self):
        a = self.a
        if self.o.get('asym'):
            a.e(f's_bitset0_b32 {oYpub}, 31')
        a.e(f's_lshr_b32 {t1}, {sJ}, 3')
        a.e(f's_and_b32 {t2}, {sJ}, 1')
        a.e(f's_lshr_b32 {t3}, {sJ}, 1')
        a.e(f's_lshr_b32 {t4}, {sX}, 2')
        a.e(f's_and_b32 {t5}, {sX}, 3')
        self.sums(oQgB, [(sV, 4096)], L_QB)
        self.sums(oSTgB, [(sV, 64)], L_STB)
        self.sums(oQApub, [(t4, 16384), (t3, 1024), (t5, 256), (t2, 128)], G_QABS)
        self.sums(oQAg, [(t2, 16384), (sV, 4096)], G_QABS)
        self.sums(oC1pub, [(sX, 1 << 19), (t2, 1 << 18), (sV, 16384), (t3, 256)], CB)
        self.sums(oMLpub, [(t2, 2048), (t3, 32)], L_C1ML)
        self.sums(oC1g, [(sX, 1 << 19), (sJ, 16384), (sV, 4096)], CB)
        a.e(f's_lshr_b32 {t4}, {sJ}, 2')
        self.sums(oMLg, [(t4, 512)], L_C1ML)
        self.sums(oC2pub, [(sJ, 8192), (sV, 2048), (sX, 256)], G_C2)
        self.sums(oC2Lpub, [(t4, 1024), (sX, 128)], G_C2L)
        a.e(f's_and_b32 {t4}, {sJ}, 3')
        a.e(f's_cselect_b32 {oC2Lpub}, {OOB}, {oC2Lpub}')
        self.sums(oC2g, [(sX, 32768), (sS, 4096), (t1, 64)], G_C2)
        self.sums(oC2Lg, [(sX, 1024), (t1, 16)], G_C2L)
        self.sums(oOBpub, [(t1, 2048), (sV, 512), (sS, 32)], L_OB)
        self.sums(oOApub, [(t1, 2048), (sS, 32)], L_OA)
        self.sums(oOALpub, [(sJ, 4)], L_OAL)
        self.sums(oOALg, [(sV, 32)], L_OAL)
        self.sums(oRES, [(sJ, 128)])
        self.sums(oO, [(sV, 2048)], L_OA)
        a.e(f's_cmp_eq_u32 {sV}, 0')
        a.e(f's_cselect_b32 {oMLpub}, {oMLpub}, {OOB}')
        a.e(f's_cselect_b32 {oC2Lpub}, {oC2Lpub}, {OOB}')

    def pv_block(self, U):
        a = self.a
        self.sp_addr('v63', sW8)
        a.e(f'ds_read_b128 v[20:23], v63 offset:{6144 + 128 * U}')
        a.e('s_waitcnt lgkmcnt(0)')
        for e in range(8):
            a.e(f'v_smfmac_f32_16x16x64_bf16 {vr(24 + 4 * e, 4)}, v[20:23], {vr(64 + 64 * U + 8 * e, 8)}, v1')

    def stream(self):
        a = self.a
        o = self.o
        ckv_at = o.get('ckv_at', [22, 23, 24, 25])
        depth = o.get('depth', 4)
        for t in range(28):
            a.wait(vm=f'tile{t}')
            if o.get('sstamps') and t % 4 == 0:
                self.stamp(f't{t}')
            asym = o.get('asym')
            if depth < 4 and not asym:
                self.dma_tile(t + depth)
            slot = (t & 3) * 4096
            if t < 16:
                for ks in range(4):
                    a.e(f'ds_read_b128 a[{16 * t + 4 * ks}:{16 * t + 4 * ks + 3}], v{12 + ks} offset:{slot}')
            else:
                u = t - 16
                if u == 0:
                    for e in range(8):
                        a.e(f'v_xor_b32 v{12 + e}, {e << 5}, {vT}')
                for e in range(8):
                    a.e(f'ds_read_b64_tr_b16 {vr(64 + 64 * (u >> 2) + 8 * e + 2 * (u & 3), 2)}, v{12 + e} offset:{slot}')
            a.e('s_waitcnt lgkmcnt(0)')
            if asym:
                if t >= asym[1] and t < asym[2]:
                    l = a.lab('deep')
                    a.e(f's_bitcmp1_b32 s96, 31')
                    a.e(f's_cbranch_scc1 {l}')
                    a.begin_skip()
                    a.wait(vm=f'tile{t + asym[3]}')
                    self.end_only(l)
                self.dma_tile(t + depth)
                if t == 27:
                    for u in range(28 + depth, 32):
                        self.dma_tile(u)
            elif depth == 4:
                self.dma_tile(t + 4)
            elif t == 27:
                for u in range(28 + depth, 32):
                    self.dma_tile(u)
            if t == 4:
                a.wait(vm='clr')
                a.e('v_lshlrev_b32 v60, 6, v0')
                if not o.get('c1_late', 1):
                    a.e(f'buffer_load_dword v61, v60, {WS}, {t5} offen')
                a.e('v_and_b32 v60, 0x3ff, v60')
                a.e(f'buffer_load_dword v61, v60, {WS}, {t4} offen')
                a.tag_vm('touch')
                a.e('v_lshlrev_b32 v4, 16, v5')
                a.e('v_and_b32 v5, 0xffff0000, v5')
            if t == 5:
                a.e('s_barrier')
                l = self.wave_only(1)
                a.e('s_getreg_b32 s82, hwreg(HW_REG_XCC_ID, 0, 3)')
                a.e('s_lshl_b32 s82, s82, 3')
                a.e('s_lshl_b64 s[82:83], 1, s82')
                a.e('v_mov_b32 v58, s82')
                a.e('v_mov_b32 v59, s83')
                a.e(f's_lshl_b32 {t0}, {sX}, 5')
                a.e('s_mov_b64 exec, 1')
                a.e(f'buffer_atomic_add_x2 v[58:59], v0, {DBG}, {t0} offen sc1')
                a.e('s_mov_b64 exec, -1')
                self.end_only(l)
            if t == 9:
                a.wait(vm='touch')
                self.lnq_addr()
                self.lnq_prep()
                for rho in range(3):
                    self.lnq_mfma(rho)
                self.lnq_reduce(False)
            if t == o.get('wo_at', 9):
                self.dma_wo(WO, 61 if t > 9 else 56, 'v56' if t > 9 else 'v63')
            if t == 10:
                a.e('v_and_b32 v57, 7, v0')
                a.e('v_lshlrev_b32 v57, 5, v57')
                a.e(f'buffer_load_dwordx2 v[58:59], v57, {DBG}, 0 offen sc1')
                a.tag_vm('cnt')
            if t == 15:
                chk, retry, done = a.lab('chk'), a.lab('cretry'), a.lab('cdone')
                a.wait(vm='cnt')
                a.e(f'{chk}:')
                a.e('v_sad_u8 v61, v58, 0, 0')
                a.e('v_sad_u8 v61, v59, 0, v61')
                a.e('v_cmp_ne_u32 vcc, 32, v61')
                a.e(f's_cbranch_vccnz {retry}')
                a.e(f'{done}:')
                a.ool(f'{retry}:\ns_add_u32 {sPOLL}, {sPOLL}, 1\ns_cmp_gt_u32 {sPOLL}, 100000\ns_cbranch_scc1 {done}\n'
                      f'buffer_load_dwordx2 v[58:59], v57, {DBG}, 0 offen sc1\ns_waitcnt vmcnt(0)\ns_branch {chk}')
                a.e('s_getreg_b32 s82, hwreg(HW_REG_XCC_ID, 0, 3)')
                a.e('s_lshl_b32 s82, s82, 3')
                a.e('s_lshl_b64 s[82:83], 32, s82')
                a.e(f'v_readlane_b32 {t2}, v58, {sX}')
                a.e(f'v_readlane_b32 {t3}, v59, {sX}')
                a.e(f's_cmp_eq_u64 s[82:83], s[80:81]')
                a.e(f's_cselect_b32 {sLOC}, {0 if o.get("force_slow") else 1}, 0')
                self.lnq_pubaddr(False, True)
                self.lcmp()
                self.lnq_publish(False, True)
            if t == 18:
                self.qa_addr(48)
                a.e(f's_add_u32 {t4}, {oQgA}, {L_CSA - L_QA}')
                ql = self.qa_loads(40, 52, 48) + [f'buffer_load_dwordx4 v[44:47], {vL16}, {WSL}, {t4} offen sc1']
                for x in ql:
                    a.e(x)
                a.tag_vm('q')
            if t == 22:
                a.wait(vm='q')
                self.late_check('v20', list(range(40, 48)) + [52, 53], ql)
                for x in self.red8(44):
                    a.e(x)
                a.e('v_cvt_pk_bf16_f32 v44, 0, v44')
                a.e('v_or_b32 v1, v1, v44')
                self.qa_finish(40, 52, 48, 56)
                for r in range(24, 40, 4):
                    a.e(f'v_mov_b64 {vr(r, 2)}, 0')
                self.p_addr('v45', 'v44')
                self.qk_softmax(56, 24, 40, 44)
                for x in self.lsum('v57', 40):
                    a.e(x)
                for x in self.ml_write(56):
                    a.e(x)
                for r in range(24, 56, 4):
                    a.e(f'v_mov_b64 {vr(r, 2)}, 0')
                a.e('s_waitcnt lgkmcnt(0)')
            for i, at in enumerate(ckv_at):
                if at == t:
                    self.dma_ckv(i)
            self.touches(f's{t}', 'v62', 'v31')
            if t == o.get('mlbar', 26):
                a.e('s_barrier')
                for x in self.ml_read(56, 20):
                    a.e(x)
                a.e('s_waitcnt lgkmcnt(0)')
                for x in self.ml_scale(56, 20, 21, 22):
                    a.e(x)
                a.e('v_readfirstlane_b32 s22, v21')
                a.e('v_readfirstlane_b32 s23, v22')
            if t == o.get('c1_late', 1) and t > 15:
                self.sums(t1, [(sX, 1 << 19), (sJ, 16384), (sV, 4096)], CB)
                for r in range(56, 60):
                    a.e(f'v_mov_b32 v{r}, -1')
                self.lcmp()
                self.lstore([f'buffer_store_dwordx4 v[56:59], {vL16}, {WS}, {t1} offen offset:{i * 1024}' for i in range(4)])
            if t == o.get('isl_at', 12):
                a.e('s_branch L_isl_0')
                a.e('L_isl_ret:')
            if t == o.get('late_touch', -1):
                self.sums(t3, [(sX, 128), (sJ, 4), (sV, 1)])
                a.e(f's_lshl_b32 {t2}, {t3}, 10')
                a.e('v_lshlrev_b32 v62, 7, v0')
                a.e('v_and_b32 v62, 0x3ff, v62')
                a.e(f'buffer_load_dword v31, v62, {WS}, {t2} offen')
            if t == 23:
                self.pv_block(0)
            if t == 24:
                self.pv_block(1)
        self.late_scalars()
        self.pv_block(2)
        a.e(f'ds_read_b128 v[20:23], v63 offset:{6144 + 128 * 3}')
        a.wait(vm='tile31')
        self.stamp('kvdone')

        def vread(e, s):
            for t in range(4):
                a.e(f'ds_read_b64_tr_b16 {vr(s + 2 * t, 2)}, v{16 + (e & 3)} offset:{t * 4096}')
            a.tag_ds(f'v{e}')
        order = [4, 5, 6, 7, 0, 1, 2, 3]
        vread(order[0], 8)
        vread(order[1], 56)
        for i, e in enumerate(order):
            a.wait(ds=f'v{e}')
            s = [8, 56][i & 1]
            a.e(f'v_smfmac_f32_16x16x64_bf16 {vr(24 + 4 * e, 4)}, v[20:23], {vr(s, 8)}, v1')
            if i + 2 < 8:
                if i >= 2:
                    a.e(f'v_xor_b32 v{16 + (order[i + 2] & 3)}, {order[i + 2] << 5}, {vT}')
                vread(order[i + 2], s)
        for e in order:
            a.e(f'v_add_f32_dpp v{16 + (e >> 2)}, v{24 + 4 * e}, v{25 + 4 * e} {DPPI} row_mask:{1 << (e & 3)} bank_mask:0xf')
        a.e('v_mul_f32 v45, s22, v17')
        a.e('v_mul_f32 v44, s22, v16')
        a.e(f'v_lshl_add_u32 v46, v0, 2, {sW8}')
        a.e('v_mov_b32 v47, s23')
        self.stamp('pv1')

    def tail(self, mode):
        a = self.a
        o = self.o
        base = lambda s: int(s[2:s.index(':')])
        self.mode = mode
        n0 = self.nst
        a.vmq = [['wo', ()]] + [[None, ()] for _ in range(len(o.get('touch', {}).get('s27', [])) if o.get('wo_at', 9) == 27 else 40)]
        l, g = base(WSL), base(WSG)
        a.e(f'L_top_{mode}:')
        self.combine_publish()
        self.stamp('opub')
        a.e(f's_mul_i32 {t0}, {sRES}, {sIT}')
        self.resid_track(G_YB, 10, 'v8', f's_cmp_eq_u32 {t0}, 3')
        a.e(f's_mul_i32 {t0}, {sIT}, {G_IT}')
        a.e(f's_add_u32 s{g}, s{g}, {t0}')
        a.e(f's_addc_u32 s{g + 1}, s{g + 1}, 0')
        self.outproj(True)
        self.lnq_tail(G_YA, True)
        self.qabs()
        self.attn_b()
        self.red()
        self.uv()
        self.outproj(False)
        a.e(f's_cmp_eq_u32 {sIT}, 1')
        a.e(f's_cbranch_scc1 L_final_{mode}')
        a.e(f's_add_u32 s{l}, s{l}, {L_IT}')
        a.e(f's_addc_u32 s{l + 1}, s{l + 1}, 0')
        a.e(f's_mov_b32 s{l + 2}, {L_IT}')
        a.e(f's_mov_b32 {sIT}, 1')
        self.lnq_tail(G_YB, False)
        self.attn_a3()
        self.nper = self.nst - n0
        self.n0 = n0
        if o.get('stamps'):
            a.e('s_mov_b32 s97, 5')
        a.e(f's_branch L_top_{mode}')
        a.e(f'L_final_{mode}:')
        a.e(f's_cmp_lg_u32 {sRES}, 3')
        a.e('s_cbranch_scc1 L_fin2')
        self.resid(G_YB, 10, 'v8', True)
        a.e('v_cvt_pk_bf16_f32 v4, v4, v5')
        a.e(f's_mul_i32 {t0}, {sJ}, 48')
        a.e(f'buffer_store_dword v4, v8, {OUT}, {t0} offen')
        a.e('s_mov_b64 exec, -1')
        self.mode = None

    def build(self):
        a = self.a
        o = self.o
        base = lambda s: int(s[2:s.index(':')])
        self.prologue()
        self.stream()
        a.e(f's_cmp_eq_u32 {sLOC}, 0')
        a.e('s_cbranch_scc1 L_top_slow')
        self.tail('fast')
        a.e('L_fin2:')
        if o.get('diag_fixed'):
            a.e('L_dfx:')
            a.e('s_memrealtime s[94:95]')
            a.e('s_waitcnt lgkmcnt(0)')
            a.e('s_sub_u32 s94, s94, s100')
            a.e(f's_cmp_lt_u32 s94, {o["diag_fixed"]}')
            a.e('s_cbranch_scc1 L_dfx')
        if o.get('stamps'):
            a.e('s_waitcnt vmcnt(0) lgkmcnt(0)')
            self.stamp('end')
            a.e('s_waitcnt lgkmcnt(0)')
            a.e('v_writelane_b32 v7, s98, 62')
            a.e(f'v_writelane_b32 v7, {sPOLL}, 63')
            a.e('s_getreg_b32 s82, hwreg(HW_REG_XCC_ID, 0, 3)')
            a.e('s_getreg_b32 s83, hwreg(HW_REG_HW_ID)')
            a.e('s_lshl_b32 s83, s83, 4')
            a.e('s_or_b32 s82, s82, s83')
            a.e('v_writelane_b32 v7, s82, 61')
            self.sums(t1, [('s2', 1024), (sV, 256)], STAMP)
            a.e('v_lshlrev_b32 v8, 2, v0')
            a.e(f'buffer_store_dword v7, v8, {WS}, {t1} offen')
        a.e('L_end:')
        a.e('s_endpgm')
        slow = Gen(self.o)
        slow.a.uid = 500000
        slow.a.cold = True
        slow.tail('slow')
        slow.a.e('s_branch L_fin2')
        sb = slow.a.finish()
        sb = sb[:sb.index('L_isl_0:')]
        body = a.finish()
        ref = open('cdna_kernels/' + NAME + '.s.ref').read() if o.get('hdr', True) else ''
        hdr = ''.join(l + '\n' for l in ref.split('\n') if l.startswith(';') and '@launch' not in l and 'Override' not in l and 'grid=ceil' not in l)
        txt = hdr + '; @launch grid=(256,1,1) block=(256,1,1) lds=163840\n'
        txt += '.amdgcn_target "amdgcn-amd-amdhsa--gfx950"\n.text\n'
        txt += f'.globl {NAME}_kernel\n.p2align 8\n.type {NAME}_kernel,@function\n{NAME}_kernel:\n'
        txt += body
        txt += 'L_codeend:\n' + sb
        txt += f"""    s_endpgm
.section .rodata,"a"
.p2align 6
.amdhsa_kernel {NAME}_kernel
  .amdhsa_next_free_vgpr 512
  .amdhsa_next_free_sgpr 102
  .amdhsa_accum_offset 256
  .amdhsa_group_segment_fixed_size 0
  .amdhsa_kernarg_size 112
  .amdhsa_user_sgpr_count 2
  .amdhsa_user_sgpr_kernarg_segment_ptr 1
  .amdhsa_system_sgpr_workgroup_id_x 1
.end_amdhsa_kernel
"""
        return txt


DEFAULT = dict(sleep=dict(h2a=7, h2b=7, h2c=2, ha=11, hc2=7, fin=10), pol_c='nt', depth=3,
               touch=dict(s27=['bwo', 'c1'], w1b=['wuk']), wo_pre=4, pol_wq3='nt',
               late_touch=-1, wo_at=9, warm=0, c1_late=1, ckv_at=[10, 11, 12, 13])

if __name__ == '__main__':
    import json
    opt = dict(DEFAULT)
    out = sys.argv[1]
    if len(sys.argv) > 2:
        opt.update(json.loads(sys.argv[2]))
    g = Gen(opt)
    open(out, 'w').write(g.build())
    print('nops', g.a.nops, 'stamps', g.stnames, g.n0, g.nper)
```

```python
import sys, math, struct
from asmlib import Asm

NAME = 'interleave_layers__mha_block_cached__compressed_kv_cla__decode'


def f32(x):
    return '0x%08x' % struct.unpack('<I', struct.pack('<f', x))[0]


K1 = 1024
L_X = 128 * K1
L_IT = 56 * K1
L_QA, L_QB, L_OA, L_OB, L_C1ML = 0, 16 * K1, 32 * K1, 40 * K1, 48 * K1
L_STA, L_STB, L_OAL = 52 * K1, 52 * K1 + 256, 52 * K1 + 512
L_CSA = 112 * K1
GB, G_IT = 0x100000, 384 * K1
G_YA, G_YB, G_QABS, G_C2L, G_C2 = 0, 24 * K1, 48 * K1, 80 * K1, 112 * K1
CB = 0x200000
STAMP = 0x800000
WS_SIZE = 0x1000000
OOB = 0x40000000
CKV = 65536
STG = 131072
ZML = STG + 7168
ZO = STG + 8192 + 7168
ZQ = STG + 2 * 8192 + 7168
K_, V_, CK, DBG, XIN, WQ, WO, BWQ, WUK, WUV, BWO, WS, WSL, WSG, OUT = ['s[%d:%d]' % (4 + 4 * i, 7 + 4 * i) for i in range(15)]
(sX, sJ, sV, sLOC, sW8, sKV, sKG, sIT, sPOLL, sM, sRES, sST, sH, sS,
 t0, t1, t2, t3, t4, t5) = ['s%d' % i for i in range(64, 84)]
MY = 's[84:85]'
(oY, oQA, oQB, oST, oQgA, oSTgA, oWQ, oWO, oWUK, oWUV, oYpub) = ['s%d' % i for i in range(86, 97)]
(oQgB, oSTgB, oQApub, oQAg, oC1pub, oMLpub, oC1g, oMLg, oC2pub, oC2Lpub, oC2g, oC2Lg,
 oOBpub, oOApub, oOALpub, oOALg, oRES, oO) = ['s%d' % i for i in range(4, 22)]
vT, vA, vL16 = 'v2', 'v3', 'v6'
TBL = [0, 8, 9, 1]
DPPI = 'quad_perm:[0,1,2,3]'
FULL = 'row_mask:0xf bank_mask:0xf'
QSCALE = math.log2(math.e) / math.sqrt(128.0)


def vr(a, n):
    return f'v[{a}:{a + n - 1}]' if n > 1 else f'v{a}'


class Gen:
    def __init__(self, opt):
        self.o = opt
        self.a = Asm()
        self.nst = 0
        self.stnames = []
        self.mode = None

    def stamp(self, name, level=1):
        if self.o.get('stamps', 0) < level or self.mode == 'slow':
            return
        if self.o.get('only') and name not in self.o['only'] and name != 'end':
            return
        a = self.a
        self.nst += 1
        self.stnames.append(name)
        a.e(f's_mov_b32 m0, {sST}')
        a.e(f's_pack_ll_b32_b16 s98, s98, {sPOLL}')
        a.e('v_writelane_b32 v7, s98, m0')
        a.e(f's_mov_b32 {sST}, {self.nst}')
        a.e(f's_bitset1_b32 {sST}, s97')
        a.e('s_memtime s[98:99]' if self.o.get('clk') else 's_memrealtime s[98:99]')

    def K(self, n, key=None):
        if key is not None:
            n = self.o.get('K', {}).get(key, n)
        if not self.o.get('warm', 1):
            return
        for i in range(n):
            self.a.e('v_mov_b32 v0, v0')
            self.a.e('s_nop 2')

    def Wm(self):
        if self.o.get('warm', 1):
            self.a.e('v_mov_b32 v0, v0')

    def bar(self, n=2, vm=False):
        self.K(n)
        self.Wm()
        self.a.e('s_waitcnt vmcnt(0) lgkmcnt(0)' if vm else 's_waitcnt lgkmcnt(0)')
        self.Wm()
        self.a.e('s_barrier')
        self.Wm()

    def retry_to(self, top):
        a = self.a
        done, retry = a.lab('got'), a.lab('retry')
        a.e(f's_cbranch_vccnz {retry}')
        a.e(f'{done}:')
        a.ool(f'{retry}:\ns_cselect_b32 s3, 1, 0\ns_add_u32 {sPOLL}, {sPOLL}, 1\ns_cmp_gt_u32 {sPOLL}, 100000\ns_nop 1\ns_cbranch_scc0 {top}\n'
              f's_cmp_eq_u32 s3, 1\ns_branch {done}')

    def lstore(self, lines):
        a = self.a
        if self.mode is not None:
            for l in lines:
                a.e(l + ' sc1' if self.mode == 'slow' and l.startswith('buffer_') else l)
            return
        slow, back = a.lab('slow'), a.lab('back')
        a.e(f's_cbranch_scc1 {slow}')
        for l in lines:
            a.e(l)
        a.e(f'{back}:')
        a.ool('#cold' + f'{slow}:\ns_nop 7\n' + '\n'.join(l + ' sc1' if l.startswith('buffer_') else l for l in lines) + f'\ns_branch {back}')

    def lcmp(self):
        if self.mode is None:
            self.a.e(f's_cmp_eq_u32 {sLOC}, 0')

    def poll_begin(self):
        a = self.a
        self.ptop, self.pretry, self.pdone = a.lab('poll'), a.lab('retry'), a.lab('got')
        a.e(f'{self.ptop}:')

    def poll_end(self, vmax):
        a = self.a
        a.e(f'v_cmp_eq_u32 vcc, -1, {vmax}')
        a.e(f's_cbranch_vccnz {self.pretry}')
        a.e(f'{self.pdone}:')
        a.ool(f'{self.pretry}:\ns_add_u32 {sPOLL}, {sPOLL}, 1\ns_cmp_gt_u32 {sPOLL}, 100000\ns_cbranch_scc1 {self.pdone}\ns_nop 7\ns_branch {self.ptop}')

    def poll_cmp(self, vmax):
        self.a.e(f'v_cmp_eq_u32 vcc, -1, {vmax}')

    def poll_br(self, last=True):
        a = self.a
        done = a.lab('got')
        retry = a.lab('retry')
        a.e(f's_cbranch_vccnz {retry}')
        a.e(f'{done}:')
        a.ool(f'{retry}:\ns_cselect_b32 s3, 1, 0\ns_add_u32 {sPOLL}, {sPOLL}, 1\ns_cmp_gt_u32 {sPOLL}, 100000\ns_cbranch_scc0 {self.ptop}\n'
              f's_cmp_eq_u32 s3, 1\ns_branch {done}')

    def pipe_poll(self, ld, vmax, regs, key):
        a = self.a
        n = sum(x.startswith('buffer') for x in ld)
        if self.o.get('pipe', {}).get(key, 1):
            self.poll_begin()
            for x in ld:
                a.e(x)
            a.e(f's_waitcnt vmcnt({n})')
            self.maxchain(vmax, regs, True)
            self.poll_cmp(vmax)
            self.poll_br()
        else:
            a.e('s_waitcnt vmcnt(0)')
            self.late_check(vmax, regs, ld)

    def late_check(self, vmax, regs, reissue):
        a = self.a
        chk, retry, done = a.lab('chk'), a.lab('retry'), a.lab('done')
        a.e(f'{chk}:')
        self.maxchain(vmax, regs, True)
        a.e(f'v_cmp_eq_u32 vcc, -1, {vmax}')
        a.e(f's_cbranch_vccnz {retry}')
        a.e(f'{done}:')
        a.ool(f'{retry}:\ns_add_u32 {sPOLL}, {sPOLL}, 1\ns_cmp_gt_u32 {sPOLL}, 100000\ns_cbranch_scc1 {done}\n'
              + '\n'.join(reissue) + f'\ns_waitcnt vmcnt(0)\ns_branch {chk}')

    def maxchain(self, vmax, regs, first):
        a = self.a
        regs = list(regs)
        if first:
            if len(regs) >= 3:
                a.e(f'v_max3_u32 {vmax}, v{regs[0]}, v{regs[1]}, v{regs[2]}')
                regs = regs[3:]
            elif len(regs) == 2:
                a.e(f'v_max_u32 {vmax}, v{regs[0]}, v{regs[1]}')
                regs = []
            else:
                a.e(f'v_mov_b32 {vmax}, v{regs[0]}')
                regs = []
        while len(regs) >= 2:
            a.e(f'v_max3_u32 {vmax}, {vmax}, v{regs[0]}, v{regs[1]}')
            regs = regs[2:]
        if regs:
            a.e(f'v_max_u32 {vmax}, {vmax}, v{regs[0]}')

    def sleep(self, key):
        n = self.o.get('sleep', {}).get(key, 0)
        if n:
            self.a.e(f's_sleep {n}')

    def wave_only(self, w):
        a = self.a
        l = a.lab('notw')
        a.e(f's_cmp_lg_u32 {sV}, {w}')
        a.e(f's_cbranch_scc1 {l}')
        a.begin_skip()
        return l

    def end_only(self, lab):
        self.a.end_skip()
        self.a.e(f'{lab}:')

    def pos_bytes(self, dst, tmp):
        a = self.a
        a.e(f'v_lshlrev_b32 {dst}, 3, v0')
        a.e(f'v_and_b32 {dst}, 16, {dst}')
        a.e(f'v_and_or_b32 {dst}, v0, 12, {dst}')

    def sp_addr(self, dst, base):
        a = self.a
        a.e(f'v_and_b32 {dst}, 48, v0')
        a.e(f'v_lshlrev_b32 {dst}, 1, {dst}')
        a.e(f'v_and_or_b32 {dst}, {vL16}, 16, {dst}')
        if base:
            a.e(f'v_add_u32 {dst}, {base}, {dst}')

    def sums(self, dst, terms, const=0):
        a = self.a
        first = True
        for reg, mul in terms:
            d = dst if first else t0
            if mul & (mul - 1) == 0:
                a.e(f's_lshl_b32 {d}, {reg}, {mul.bit_length() - 1}')
            else:
                a.e(f's_mul_i32 {d}, {reg}, {mul}')
            if not first:
                a.e(f's_add_u32 {dst}, {dst}, {t0}')
            first = False
        if const:
            a.e(f's_add_u32 {dst}, {dst}, {const}')

    def k64_addr(self, vt, vu):
        a = self.a
        a.e(f'v_lshrrev_b32 {vt}, 2, v0')
        a.e(f'v_lshlrev_b32 {vt}, 13, {vt}')
        a.e(f'v_and_or_b32 {vt}, {vL16}, 48, {vt}')

    def wq_prep(self, vt, vu):
        a = self.a
        a.e(f'v_lshrrev_b32 {vu}, 4, v0')
        a.e(f'v_lshlrev_b32 {vt}, 5, {vu}')
        a.e(f'v_xor_b32 {vt}, {vt}, {vL16}')
        a.e(f'v_and_b32 {vt}, 0xf0, {vt}')
        a.e(f'v_lshl_or_b32 {vt}, {vu}, 13, {vt}')
        a.e(f'v_xor_b32 {vu}, 0x80, {vt}')

    def wq_issue(self, srd, vt, vu, parts, pol=''):
        a = self.a
        for i in parts:
            if i == parts[0] or i == 3:
                a.e(f's_add_u32 m0, {sW8}, {(i // 3) * 3072}')
            a.e(f's_add_u32 {t1}, {oWQ}, {i * 4 * 8192 - (i % 3) * 1024}')
            a.e(f'buffer_load_dwordx4 {vu if (i >> 1) & 1 else vt}, {srd}, {t1} offen offset:{(i % 3) * 1024} {pol} lds')
        a.tag_vm('wq')

    def dma_wq(self, srd, vt, vu, pol=''):
        self.wq_prep(vt, vu)
        self.wq_issue(srd, vt, vu, list(range(6)), pol)

    def dma_wuv(self, vt):
        a = self.a
        pol = self.o.get('pol_w', '')
        self.k64_addr(vt, None)
        for i in range(4):
            a.e(f's_add_u32 m0, {sW8}, {i * 1024}')
            a.e(f's_add_u32 {t1}, {oWUV}, {i * 16 * 8192}')
            a.e(f'buffer_load_dwordx4 {vt}, {WUV}, {t1} offen {pol} lds')
        a.tag_vm('wuv')

    def wuk_prep(self, vt, vu):
        a = self.a
        a.e(f'v_lshrrev_b32 {vu}, 4, v0')
        a.e(f'v_lshlrev_b32 {vt}, 5, {vu}')
        a.e(f'v_xor_b32 {vt}, {vt}, {vL16}')
        a.e(f'v_and_b32 {vt}, 0xf0, {vt}')
        a.e(f'v_lshl_or_b32 {vt}, {vu}, 13, {vt}')

    def wuk_issue(self, vt, vu):
        a = self.a
        pol = self.o.get('pol_w', '')
        a.e(f's_mov_b32 m0, {sW8}')
        for q in range(4):
            a.e(f's_add_u32 {t1}, {oWUK}, {q * (4 * 8192 - 1024)}')
            if q:
                a.e(f'v_xor_b32 {vu}, {TBL[q] << 4}, {vt}')
            a.e(f'buffer_load_dwordx4 {vu if q else vt}, {WUK}, {t1} offen offset:{q * 1024} {pol} lds')
        a.tag_vm('wuk')

    def wo_prep(self, R, tmp):
        a = self.a
        for i in range(3):
            a.e(f'v_add_u32 v{R + i}, {64 * i}, v0')
            a.e(f'v_mul_u32_u24 {tmp}, 21846, v{R + i}')
            a.e(f'v_lshrrev_b32 {tmp}, 16, {tmp}')
            a.e(f'v_mul_u32_u24 {tmp}, {1152 - 48}, {tmp}')
            a.e(f'v_lshl_add_u32 v{R + i}, v0, 4, {tmp}')
        a.e(f's_add_u32 {t5}, {oWO}, {64 * 1152}')

    def wo_lines(self, srd, R, pol=''):
        out = []
        for h in range(2):
            out.append(f's_add_u32 m0, {sW8}, {h * 3072}')
            for i in range(3):
                out.append(f'buffer_load_dwordx4 v{R + i}, {srd}, {t5 if h else oWO} offen offset:{i * 1024} {pol} lds')
        return out

    def dma_wo(self, srd, R, tmp):
        self.wo_prep(R, tmp)
        for x in self.wo_lines(srd, R, self.o.get('pol_wo1', '')):
            self.a.e(x)
        self.a.tag_vm('wo')

    def touch(self, what, vt, vd):
        a = self.a
        half = None
        if what[-1] in '01' and what != 'c1':
            what, half = what[:-1], int(what[-1])
        if what in ('wq', 'bwq', 'wuv', 'wuk'):
            srd = {'wq': WQ, 'bwq': BWQ, 'wuv': WUV, 'wuk': WUK}[what]
            a.e(f'v_lshrrev_b32 {vt}, 3, v0')
            a.e(f'v_lshlrev_b32 {vt}, 6, {vt}')
            a.e(f'v_and_or_b32 {vt}, v0, 7, {vt}')
            a.e(f'v_lshlrev_b32 {vt}, 7, {vt}')
            rows = 5 if what in ('wq', 'bwq') else 4
            self.sums(t1, [(sJ, 4 * rows * 8192), (sV, rows * 8192), (sX, 1024)])
            n = 8 * rows
        elif what == 'c1':
            srd = WS
            a.e(f'v_lshlrev_b32 {vt}, 7, v0')
            self.sums(t1, [(sX, 1 << 19), (sJ, 16384), (sV, 4096)], CB)
            n = 32
        else:
            srd = {'wo': WO, 'bwo': BWO}[what]
            a.e(f'v_lshlrev_b32 {vt}, 7, v0')
            self.sums(t1, [(sX, 512 * 1152), (sJ, 18432), (sV, 4608)])
            n = 36
        m = (1 << n) - 1
        if half == 0:
            m = (1 << (n // 2)) - 1
        elif half == 1:
            m ^= (1 << (n // 2)) - 1
        a.e(f's_mov_b32 exec_lo, {m & 0xffffffff}')
        a.e(f's_mov_b32 exec_hi, {m >> 32}')
        if vd is None:
            a.e(f's_add_u32 m0, {sW8}, 1024')
            a.e(f'buffer_load_dword {vt}, {srd}, {t1} offen lds')
        else:
            a.e(f'buffer_load_dword {vd}, {vt}, {srd}, {t1} offen')
        a.e('s_mov_b64 exec, -1')

    def touches(self, where, vt, vd):
        for w in self.o.get('touch', {}).get(where, []):
            self.touch(w, vt, vd)

    def lnq_addr(self):
        a = self.a
        a.e('v_lshrrev_b32 v52, 4, v0')
        a.e('v_cmp_gt_u32 vcc, 3, v52')
        a.e('v_bfe_u32 v53, v0, 2, 2')
        a.e('v_cndmask_b32 v52, 0, v52, vcc')
        a.e('v_and_b32 v54, 1, v52')
        a.e('v_lshl_add_u32 v54, v54, 2, v53')
        a.e('v_lshl_add_u32 v52, v52, 3, v53')
        a.e('v_and_b32 v53, 3, v0')
        a.e('v_lshl_or_b32 v53, v54, 2, v53')
        a.e('v_lshlrev_b32 v53, 3, v53')
        a.e('v_lshl_or_b32 v52, v52, 8, v53')
        a.e(f's_lshl_b32 {t0}, {sV}, 6')
        a.e(f's_add_u32 {t0}, {t0}, {STG}')
        a.e(f'v_xor_b32 v52, {t0}, v52')
        a.e('v_xor_b32 v54, 32, v52')

    def lnq_prep(self):
        a = self.a
        a.wait(vm='wq')
        a.e('s_barrier')
        for rho in range(3):
            for tau in range(2):
                for half in range(2):
                    a.e(f'ds_read_b64_tr_b16 {vr(28 + 8 * rho + 4 * tau + 2 * half, 2)}, v{52 + 2 * tau} offset:{8192 * rho + 1024 * half}')
        a.e('s_waitcnt lgkmcnt(0)')
        a.e('s_barrier')

    def lnq_rows(self):
        a = self.a
        a.e('v_mov_b32 v53, 0x3f803f80')
        a.e(f's_lshl_b64 s[82:83], {MY}, 8')
        a.e('v_cndmask_b32 v16, 0, v53, s[82:83]')
        a.e('v_mov_b32 v17, v16')
        for r in range(18, 28, 2):
            a.e(f'v_mov_b64 {vr(r, 2)}, v[16:17]')

    def lnq_mfma(self, rho):
        a = self.a
        A = vr(16 + 4 * rho, 4)
        c = (lambda r: '0') if rho == 0 else (lambda r: r)
        a.e(f'v_mfma_f32_16x16x32_bf16 v[60:63], {A}, {A}, {c("v[60:63]")}')
        a.e(f'v_mfma_f32_16x16x32_bf16 v[52:55], {A}, {vr(28 + 8 * rho, 4)}, {c("v[52:55]")}')
        a.e(f'v_mfma_f32_16x16x32_bf16 v[56:59], {A}, {vr(32 + 8 * rho, 4)}, {c("v[56:59]")}')

    def lnq_reduce(self, isb, chk=False):
        a = self.a
        a.e('v_pk_add_f32 v[60:61], v[60:61], v[62:63]')
        a.e('v_add_f32 v60, v60, v61')
        if chk:
            a.e('v_cmp_u_f32 vcc, v60, v60')
        a.e('v_pk_add_f32 v[52:53], v[52:53], v[54:55]')
        a.e('v_mov_b32 v61, v60')
        a.e('v_pk_add_f32 v[56:57], v[56:57], v[58:59]')
        a.e('v_add_f32 v52, v52, v53')
        a.e('v_permlane16_swap_b32 v60, v61')
        a.e('v_add_f32 v56, v56, v57')
        a.e('v_add_f32 v60, v60, v61')
        a.e('v_permlane16_swap_b32 v52, v56')
        a.e(f'v_add_f32_dpp v60, v60, v60 quad_perm:[1,0,3,2] {FULL}')
        a.e('v_add_f32 v52, v52, v56')
        self.lcmp()
        a.e(f'v_add_f32_dpp v60, v60, v60 quad_perm:[2,3,0,1] {FULL}')
        if isb:
            a.e(f'v_mov_b32_dpp v53, v52 quad_perm:[1,0,3,2] {FULL}')
            a.e('v_cvt_pk_bf16_f32 v52, v52, v53')
        a.e(f'v_add_f32_dpp v60, v60, v60 row_half_mirror {FULL}')

    def lnq_pubaddr(self, isb, first):
        a = self.a
        if isb:
            self.pos_bytes('v14', None)
            a.e('v_and_b32 v15, 16, v0')
            a.e('v_lshl_or_b32 v14, v15, 4, v14')
            a.e('v_and_b32 v15, 32, v0')
            a.e('v_lshl_or_b32 v14, v15, 6, v14')
        else:
            a.e('v_and_b32 v14, 31, v0')
            a.e('v_lshlrev_b32 v14, 2, v14')
            if first:
                a.e('v_lshrrev_b32 v15, 5, v0')
                a.e(f'v_mul_u32_u24 v15, {L_CSA - L_QA}, v15')
                a.e('v_add_u32 v14, v14, v15')
        a.e('v_lshrrev_b32 v15, 1, v0')

    def lnq_publish(self, isb, first, q='v52', st='v60', qa='v14', sa='v15'):
        lines = []
        if isb:
            lines += ['s_mov_b32 exec_lo, 0x55555555', 's_mov_b32 exec_hi, 0x55555555']
        elif not first:
            lines += ['s_mov_b32 exec_hi, 0']
        lines += [f'buffer_store_dword {q}, {qa}, {WSL}, {oQB if isb else oQA} offen',
                  's_mov_b64 exec, 0x101',
                  f'buffer_store_dword {st}, {sa}, {WSL}, {oST} offen offset:{256 if isb else 0}',
                  's_mov_b64 exec, -1']
        self.lstore(lines)

    def lnq_tail(self, goff, isb):
        a = self.a
        self.lnq_rows()
        a.e('v_lshrrev_b32 v12, 2, v0')
        a.e('v_mul_u32_u24 v12, 3072, v12')
        a.e(f'v_and_or_b32 v12, {vL16}, 48, v12')
        a.e(f's_lshl_b32 {t4}, {sV}, 7')
        a.e(f's_add_u32 {t4}, {t4}, {oY}')
        a.e(f's_add_u32 {t4}, {t4}, {goff}')
        a.e(f's_add_u32 {t5}, {sW8}, 6144')
        l = a.lab('now')
        a.e(f's_cmp_eq_u32 {sV}, 3')
        a.e(f's_cselect_b32 {t4}, {OOB}, {t4}')
        a.e(f's_cbranch_scc1 {l}')
        a.begin_skip()
        self.dma_wq(BWQ if isb else WQ, 'v8', 'v9', '' if isb else self.o.get('pol_wq3', ''))
        self.end_only(l)
        a.e('s_barrier')
        self.lnq_addr()
        self.lnq_pubaddr(isb, False)
        a.e('v_and_b32 v11, 7, v0')
        a.e('v_lshlrev_b32 v11, 6, v11')
        a.e('v_and_or_b32 v11, v0, 48, v11')
        a.e(f'v_add_u32 v11, {STG + 6144}, v11')
        a.e('v_mov_b32 v13, 0')
        if isb:
            self.wuk_prep('v8', 'v9')
        else:
            for r in range(56, 60):
                a.e(f'v_mov_b32 v{r}, -1')
        if isb and self.o.get('c1_late', 1) == 1:
            go, back = a.lab('clr'), a.lab('clrback')
            a.e(f's_cmp_eq_u32 {sIT}, 0')
            a.e(f's_cbranch_scc1 {go}')
            self.sleep('h2a')
            a.e(f'{back}:')
            fl = ' sc1' if self.mode == 'slow' else ''
            n0 = self.o.get('sleep', {}).get('h2c', 0)
            a.ool(f'{go}:\n' + '\n'.join(f'v_mov_b32 v{r}, -1' for r in range(56, 60)) + '\n'
                  + '\n'.join(f'buffer_store_dwordx4 v[56:59], {vL16}, {WS}, {oC1g} offen offset:{i * 1024}{fl}' for i in range(4))
                  + (f'\ns_sleep {n0}' if n0 else '\ns_nop 1') + f'\ns_branch {back}')
        else:
            self.sleep('h2a' if isb else 'h2b')
        ld = [f's_mov_b32 m0, {t5}', 's_mov_b64 exec, 0x77777777',
              f'buffer_load_dword v13, v12, {WSG}, {t4} offen sc1',
              f'buffer_load_dwordx4 v12, {WSG}, {t4} offen sc1 lds',
              's_mov_b64 exec, -1']
        for i, x in enumerate(ld):
            a.e(x)
            if i in (2, 3):
                a.tag_vm(f'y{i}')
        if isb:
            self.touches('w1b', 'v56', 'v10')
        self.lnq_prep()
        self.stamp('wqrdy', 2)
        if isb:
            self.wuk_issue('v8', 'v9')
        else:
            self.lcmp()
            self.lstore([f'buffer_store_dwordx4 v[56:59], {vL16}, {WS}, {oC1g} offen offset:{i * 1024}' for i in range(4)])
        chk, again = a.lab('chk'), a.lab('again')
        a.wait(vm='y2')
        a.e(f'{chk}:')
        a.e('v_cmp_eq_u32 vcc, -1, v13')
        a.wait(vm='y3')
        self.retry_to(again)
        a.ool(f'{again}:\n' + '\n'.join(ld) + f'\ns_waitcnt vmcnt(0)\ns_branch {chk}')
        a.e(f's_mov_b64 exec, {MY}')
        a.e('s_barrier')
        for rho in range(3):
            a.e(f'ds_read_b128 {vr(16 + 4 * rho, 4)}, v11 offset:{8192 * rho}')
            a.tag_ds(f'a{rho}')
        a.e('s_mov_b64 exec, -1')
        self.stamp('h2got', 2)
        self.K(2)
        for rho in range(3):
            a.wait(ds=f'a{rho}')
            self.lnq_mfma(rho)
        self.lnq_reduce(isb, True)
        again2 = a.lab('again')
        self.retry_to(again2)
        a.ool(f'{again2}:\ns_barrier\ns_branch {again}')
        self.lnq_publish(isb, False)
        self.stamp('qpub')

    def c1_addr(self, dst, tmp):
        a = self.a
        a.e(f'v_lshrrev_b32 {tmp}, 4, v0')
        a.e(f'v_and_b32 {dst}, 0xf0, {vL16}')
        a.e(f'v_lshl_or_b32 {dst}, {tmp}, 12, {dst}')

    def stats(self, S):
        out = []
        for c in (4, 2, 1):
            out.append(f'v_add_f32_dpp v{S + 1}, v{S + 1}, v{S + 1} row_ror:{c} {FULL}')
            out.append(f'v_add_f32_dpp v{S}, v{S}, v{S} row_ror:{c} {FULL}')
        out.append(f'v_mul_f32 v{S + 1}, {f32(1.0 / (8 * 576))}, v{S + 1}')
        out.append(f'v_mul_f32 v{S}, {f32(1.0 / 576)}, v{S}')
        out.append(f'v_fma_f32 v{S}, -v{S + 1}, v{S + 1}, v{S}')
        out.append(f'v_max_f32 v{S}, 0, v{S}')
        out.append(f'v_add_f32 v{S}, {f32(1e-5)}, v{S}')
        out.append(f'v_rsq_f32 v{S}, v{S}')
        out.append(f'v_mul_f32 v{S + 1}, 0x3e000000, v{S + 1}')
        out.append(f'v_mul_f32 v{S}, {f32(QSCALE)}, v{S}')
        return out

    def mix(self, x, y):
        x, y = list(x), list(y)
        while x or y:
            if x:
                self.a.e(x.pop(0))
            if y:
                self.a.e(y.pop(0))

    def resid(self, goff, base, va, final):
        a = self.a
        a.e(f'v_lshlrev_b32 {va}, 2, v0')
        a.e(f's_add_u32 {t2}, {oRES}, {goff}')
        a.e('s_mov_b64 exec, 0xfff')
        if final:
            self.sleep('fin')
        self.poll_begin()
        for i in range(8):
            if i & 1 == 0:
                a.e(f's_add_u32 {t3}, {t2}, {i * 3072}')
            a.e(f'buffer_load_dword v{base + i}, {va}, {WSG}, {t3} offen offset:{(i & 1) * 3072} sc1')
        a.e('s_waitcnt vmcnt(0)')
        self.maxchain(f'v{base + 8}', range(base, base + 8), True)
        self.poll_end(f'v{base + 8}')
        a.e(f'v_lshlrev_b32 v4, 16, v{base}')
        a.e(f'v_and_b32 v5, 0xffff0000, v{base}')
        for i in range(1, 8):
            a.e(f'v_lshlrev_b32 v{base}, 16, v{base + i}')
            a.e(f'v_and_b32 v{base + i}, 0xffff0000, v{base + i}')
            a.e(f'v_add_f32 v4, v4, v{base}')
            a.e(f'v_add_f32 v5, v5, v{base + i}')

    def resid_track(self, goff, base, va, cond):
        a = self.a
        go, back = a.lab('res'), a.lab('resback')
        a.e(cond)
        a.e(f's_cbranch_scc1 {go}')
        a.e(f'{back}:')
        sub = Asm()
        sub.uid = a.uid + 1000 * (1 + len(a.tail))
        self.a = sub
        sub.e(f'{go}:')
        sub.e('s_nop 1')
        self.resid(goff, base, va, False)
        sub.e('s_mov_b64 exec, -1')
        sub.e(f's_branch {back}')
        self.a = a
        body = [i.text for i in sub.ins]
        cut = [k for k in range(0, len(body), 14)]
        for k in cut:
            part = body[k:k + 14]
            if k + 14 < len(body):
                nxt = a.lab('resp')
                part.append(f's_branch {nxt}')
                body[k + 14] = f'{nxt}:\n' + body[k + 14]
            a.ool('\n'.join(part))
        for t in sub.tail:
            a.ool(t)

    def qa_addr(self, T):
        a = self.a
        a.e(f'v_and_b32 v{T}, 4, v0')
        a.e(f'v_lshlrev_b32 v{T}, 3, v{T}')
        a.e(f'v_and_b32 v{T + 1}, 3, v0')
        a.e(f'v_lshl_or_b32 v{T}, v{T + 1}, 2, v{T}')
        a.e(f'v_lshrrev_b32 v{T + 1}, 5, v0')
        a.e(f'v_lshl_or_b32 v{T}, v{T + 1}, 4, v{T}')
        a.e(f'v_bfe_u32 v{T + 1}, v0, 4, 1')
        a.e(f'v_lshl_or_b32 v{T}, v{T + 1}, 1, v{T}')
        a.e(f's_lshl_b32 {t0}, {sV}, 6')
        a.e(f's_add_u32 {t0}, {t0}, {ZQ}')
        a.e(f'v_add_u32 v{T}, {t0}, v{T}')
        a.e(f'v_and_b32 v{T + 1}, 7, v0')
        a.e(f'v_lshlrev_b32 v{T + 1}, 3, v{T + 1}')
        self.sp_addr(f'v{T + 2}', ZQ)

    def red8(self, R):
        return [f'v_permlane32_swap_b32 v{R}, v{R + 2}',
                f'v_permlane32_swap_b32 v{R + 1}, v{R + 3}',
                f'v_pk_add_f32 {vr(R, 2)}, {vr(R, 2)}, {vr(R + 2, 2)}',
                f'v_permlane16_swap_b32 v{R}, v{R + 1}',
                f'v_add_f32 v{R}, v{R}, v{R + 1}',
                f'v_add_f32_dpp v{R}, v{R}, v{R} row_ror:8 {FULL}']

    def qa_loads(self, R, S, T):
        return [f'buffer_load_dwordx2 {vr(S, 2)}, v{T + 1}, {WSL}, {oSTgA} offen sc1',
                f'buffer_load_dwordx4 {vr(R, 4)}, {vL16}, {WSL}, {oQgA} offen sc1']

    def qa_finish(self, R, S, T, Q, br=False):
        a = self.a
        self.mix(self.stats(S), self.red8(R) + [f'v_and_b32 v{R + 1}, 0xffff0000, v1'])
        a.e(f'v_fma_f32 v{R}, -v{S + 1}, v{R + 1}, v{R}')
        a.e(f'v_mul_f32 v{R}, v{R}, v{S}')
        a.e(f'v_cvt_pk_bf16_f32 v{R}, v{R}, v{R}')
        a.e(f'ds_write_b16 v{T}, v{R}')
        if br:
            return
        self.bar(2, br)
        a.e(f'ds_read_b128 {vr(Q, 4)}, v{T + 2}')
        a.tag_ds('q0')
        a.e(f'ds_read_b128 {vr(Q + 4, 4)}, v{T + 2} offset:128')
        a.tag_ds('q1')

    def p_addr(self, r, t):
        a = self.a
        a.e(f'v_and_b32 {r}, 0x32, v0')
        a.e(f'v_lshlrev_b32 {r}, 3, {r}')
        a.e(f'v_and_b32 {t}, 8, v0')
        a.e(f'v_lshl_or_b32 {r}, {t}, 2, {r}')
        a.e(f'v_and_b32 {t}, 5, v0')
        a.e(f'v_lshl_or_b32 {r}, {t}, 1, {r}')
        a.e(f'v_add_u32 {r}, {sW8}, {r}')

    def qk_softmax(self, Q, D, S, T, fill=()):
        a = self.a
        for t in range(19):
            if t >= 3:
                d = D + 4 * ((t - 3) & 3)
                a.e(f'v_add_f32_dpp v{S + ((t - 3) & 3)}, v{d}, v{d + 1} {DPPI} row_mask:{1 << ((t - 3) >> 2)} bank_mask:0xf')
            if 4 <= t + 1 < 16:
                a.e(f'v_mov_b64 {vr(D + 4 * ((t + 1) & 3), 2)}, 0')
            if t < 16:
                d = vr(D + 4 * (t & 3), 4)
                if t == 0:
                    a.wait(ds='q0')
                a.e(f'v_smfmac_f32_16x16x64_bf16 {d}, {vr(Q, 4)}, a[{16 * t}:{16 * t + 7}], v1')
                if t == 0:
                    a.wait(ds='q1')
                elif t - 1 < len(fill):
                    for x in fill[t - 1]:
                        a.e(x)
                a.e(f'v_smfmac_f32_16x16x64_bf16 {d}, {vr(Q + 4, 4)}, a[{16 * t + 8}:{16 * t + 15}], v1')
        self.softmax_a(S, T, f'v{T + 1}')

    def softmax_a(self, S, T, pa, fill=()):
        a = self.a
        fill = list(fill)

        def f2():
            for _ in range(2):
                if fill:
                    a.e(fill.pop(0))
        m = f'v{T}'
        a.e(f'v_max3_f32 {m}, v{S}, v{S + 1}, v{S + 2}')
        a.e(f'v_max_f32 {m}, {m}, v{S + 3}')
        for c in ('row_ror:8', 'row_ror:4', 'row_ror:2', 'row_ror:1'):
            f2()
            a.e(f'v_max_f32_dpp {m}, {m}, {m} {c} {FULL}')
        f2()
        a.e(f'v_max_f32_dpp {m}, {m}, {m} row_bcast:15 row_mask:0xa bank_mask:0xf')
        f2()
        a.e(f'v_max_f32_dpp {m}, {m}, {m} row_bcast:31 row_mask:0xc bank_mask:0xf')
        a.e(f'v_readlane_b32 {sM}, {m}, 63')
        f2()
        assert not fill
        for r in range(4):
            a.e(f'v_subrev_f32 v{S + r}, {sM}, v{S + r}')
        for r in range(4):
            a.e(f'v_exp_f32 v{S + r}, v{S + r}')
        a.e(f'v_cvt_pk_bf16_f32 v{T + 2}, v{S}, v{S + 1}')
        a.e(f'v_cvt_pk_bf16_f32 v{T + 3}, v{S + 2}, v{S + 3}')
        a.e(f'ds_write_b16 {pa}, v{T + 2} offset:6144')
        a.e(f'ds_write_b16_d16_hi {pa}, v{T + 2} offset:{6144 + 4}')
        a.e(f'ds_write_b16 {pa}, v{T + 3} offset:{6144 + 64}')
        a.e(f'ds_write_b16_d16_hi {pa}, v{T + 3} offset:{6144 + 68}')

    def lsum(self, l, S):
        out = [f'v_pk_add_f32 {vr(S, 2)}, {vr(S, 2)}, {vr(S + 2, 2)}', f'v_add_f32 {l}, v{S}, v{S + 1}']
        for c in ('row_ror:8', 'row_ror:4', 'row_ror:2', 'row_ror:1'):
            out.append(f'v_add_f32_dpp {l}, {l}, {l} {c} {FULL}')
        out.append(f'v_add_f32_dpp {l}, {l}, {l} row_bcast:15 row_mask:0xa bank_mask:0xf')
        out.append(f'v_add_f32_dpp {l}, {l}, {l} row_bcast:31 row_mask:0xc bank_mask:0xf')
        return out

    def ml_write(self, T):
        return [f's_lshl_b32 {t0}, {sV}, 3', f's_add_u32 {t0}, {t0}, {ZML}', f'v_mov_b32 v{T + 2}, 0x30000', f'v_mov_b32 v{T}, {sM}',
                f'v_writelane_b32 v{T + 2}, {t0}, 63\nds_write_b64 v{T + 2}, {vr(T, 2)}']

    def ml_read(self, R, T):
        return [f'v_mov_b32 v{T}, {ZML}', f'ds_read_b128 {vr(R, 4)}, v{T}', f'ds_read_b128 {vr(R + 4, 4)}, v{T} offset:16']

    def ml_scale(self, R, T, F, LW):
        out = [f'v_max3_f32 v{T}, v{R}, v{R + 2}, v{R + 4}', f'v_max_f32 v{T}, v{T}, v{R + 6}']
        out += [f'v_sub_f32 v{R + 2 * w}, v{R + 2 * w}, v{T}' for w in range(4)]
        out += [f'v_sub_f32 v{F}, {sM}, v{T}']
        out += [f'v_exp_f32 v{R + 2 * w}, v{R + 2 * w}' for w in range(4)]
        out += [f'v_exp_f32 v{F}, v{F}', f'v_mul_f32 v{LW}, v{R}, v{R + 1}']
        out += [f'v_fmac_f32 v{LW}, v{R + 2 * w}, v{R + 2 * w + 1}' for w in range(1, 4)]
        out += [f'v_rcp_f32 v{R}, v{LW}', f'v_log_f32 v{LW}, v{LW}', f'v_mul_f32 v{F}, v{F}, v{R}', f'v_add_f32 v{LW}, v{LW}, v{T}']
        return out

    def combine_publish(self):
        a = self.a
        a.e('ds_write2st64_b32 v46, v44, v45 offset0:26 offset1:27')
        a.e(f'v_mov_b32 v10, {STG + 6656}')
        a.e('v_lshl_add_u32 v8, v0, 3, v10')
        a.e('v_and_b32 v10, 56, v0')
        a.e('v_lshlrev_b32 v10, 5, v10')
        a.e(f'v_and_or_b32 v10, {vL16}, 16, v10')
        a.e('v_and_b32 v11, 6, v0')
        a.e('v_lshl_or_b32 v10, v11, 1, v10')
        a.e(f's_cmp_lg_u32 {sV}, 0')
        a.e('s_waitcnt lgkmcnt(0)')
        a.e('s_barrier')
        l = a.lab('notw')
        a.e(f's_cbranch_scc1 {l}')
        a.begin_skip()
        for w in range(4):
            a.e(f'ds_read_b64 {vr(20 + 2 * w, 2)}, v8 offset:{w * 8192}')
            a.tag_ds(f'o{w}')
        self.lstore(['s_mov_b64 exec, 1', f'buffer_store_dword v47, v10, {WSL}, {oOALpub} offen', 's_mov_b64 exec, -1'])
        a.wait(ds='o1')
        a.e('v_pk_add_f32 v[20:21], v[20:21], v[22:23]')
        a.wait(ds='o3')
        a.e('v_pk_add_f32 v[24:25], v[24:25], v[26:27]')
        a.e('v_pk_add_f32 v[20:21], v[20:21], v[24:25]')
        a.e('v_cvt_pk_bf16_f32 v20, v20, v21')
        self.lstore([f'buffer_store_dword v20, v10, {WSL}, {oOApub} offen'])
        self.end_only(l)

    def w8(self, lw, t):
        return [f'v_max_f32_dpp {t}, {lw}, {lw} row_ror:4 {FULL}',
                f'v_max_f32_dpp {t}, {t}, {t} row_ror:2 {FULL}',
                f'v_max_f32_dpp {t}, {t}, {t} row_ror:1 {FULL}',
                f'v_sub_f32 {lw}, {lw}, {t}',
                f'v_exp_f32 {lw}, {lw}',
                f'v_add_f32_dpp {t}, {lw}, {lw} row_ror:4 {FULL}',
                f'v_add_f32_dpp {t}, {t}, {t} row_ror:2 {FULL}',
                f'v_add_f32_dpp {t}, {t}, {t} row_ror:1 {FULL}',
                f'v_rcp_f32 {t}, {t}']

    def rot8(self, dst, sh):
        a = self.a
        a.e(f'v_lshrrev_b32 {dst}, 4, v0')
        a.e(f'v_lshl_add_u32 {dst}, {dst}, 1, v0')
        a.e(f'v_and_b32 {dst}, 7, {dst}')
        a.e(f'v_lshlrev_b32 {dst}, {sh}, {dst}')

    def weigh2(self, skip=0, lw='v16', chk=False):
        a = self.a
        w = self.w8(lw, 'v17')
        for x in w[skip:6]:
            a.e(x)
        a.e('v_add_f32 v20, v20, v21')
        a.e('v_add_f32 v22, v22, v23')
        a.e(w[6])
        a.e('v_add_f32 v24, v24, v25')
        a.e('v_add_f32 v26, v26, v27')
        a.e(w[7])
        a.e(f'v_mul_f32_dpp v20, {lw}, v20 row_newbcast:0 {FULL}')
        a.e(f'v_mul_f32_dpp v24, {lw}, v24 row_newbcast:0 {FULL}')
        a.e(f'v_fmac_f32_dpp v20, {lw}, v22 row_newbcast:1 {FULL}')
        a.e(f'v_fmac_f32_dpp v24, {lw}, v26 row_newbcast:1 {FULL}')
        a.e(w[8])
        if chk:
            a.e('v_cmp_u_f32 vcc, v20, v20')
        a.e('v_permlane32_swap_b32 v20, v24')
        a.e('v_add_f32 v20, v20, v24')
        a.e('v_mul_f32 v20, v20, v17')

    def outproj(self, isa):
        a = self.a
        if isa:
            self.rot8('v30', 2)
        else:
            a.e(f's_add_u32 {t4}, {oO}, {L_OB - L_OA}')
        so = oO if isa else t4
        ld = []
        if isa:
            ld.append(f'buffer_load_dword v16, v30, {WSL}, {oOALg} offen sc1')
        ld.append(f'buffer_load_dwordx4 v[8:11], {vL16}, {WSL}, {so} offen sc1')
        ld.append(f'buffer_load_dwordx4 v[12:15], {vL16}, {WSL}, {so} offen offset:1024 sc1')
        a.e('v_lshrrev_b32 v28, 4, v0')
        a.e('v_bfe_u32 v29, v0, 2, 2')
        a.e('v_lshl_add_u32 v28, v28, 3, v29')
        a.e('v_mul_u32_u24 v28, 48, v28')
        a.e('v_and_b32 v29, 3, v0')
        a.e('v_lshl_add_u32 v28, v29, 3, v28')
        a.e(f'v_add_u32 v28, {sW8}, v28')
        a.wait(vm='wo')
        tr = []
        for blk in range(2):
            for tile in range(2):
                for hh in range(2):
                    for half in range(2):
                        off = (64 * blk + 32 * hh + 4 * half) * 48 + 32 * tile
                        tr.append(f'ds_read_b64_tr_b16 {vr(32 + 16 * tile + 8 * blk + 4 * hh + 2 * half, 2)}, v28 offset:{off}')
        a.e(f's_lshl_b32 {t2}, {sV}, 3')
        a.e(f's_add_u32 {t2}, {t2}, {ZO}')
        pre = ['v_and_b32 v18, 15, v0', 'v_lshrrev_b32 v19, 5, v0', 'v_lshl_add_u32 v18, v19, 4, v18', 'v_bfe_u32 v19, v0, 4, 1',
               'v_lshlrev_b32 v19, 2, v19', 'v_lshl_add_u32 v18, v18, 5, v19', f'v_add_u32 v18, {t2}, v18', f'v_mov_b32 v19, {ZO}',
               'v_and_b32 v29, 15, v0', 'v_lshl_add_u32 v19, v29, 6, v19', 'v_lshlrev_b32 v29, 2, v0']
        n1 = self.o.get('tr_pre', 8)
        for x in tr[:n1]:
            a.e(x)
        self.sleep('h1' if isa else 'hd')
        for x in ld:
            a.e(x)
        self.mix(tr[n1:], pre)
        a.e(f's_add_u32 {t2}, {oYpub}, {G_YA if isa else G_YB}')
        top = a.lab('poll')
        a.e(f'{top}:')
        for x in ld:
            a.e(x)
        for r in range(20, 28, 2):
            a.e(f'v_mov_b64 {vr(r, 2)}, 0')
        self.K(0, 'po')
        a.e(f's_waitcnt vmcnt({len(ld)}) lgkmcnt(0)')
        if isa:
            a.e('v_max3_u32 v17, v8, v12, v16')
        else:
            a.e('v_max_u32 v17, v8, v12')
        a.e('v_cmp_eq_u32 vcc, -1, v17')
        a.e('v_smfmac_f32_16x16x64_bf16 v[20:23], v[8:11], v[32:39], v1')
        if isa:
            a.e('v_mov_b32 v31, v16')
        a.e('v_smfmac_f32_16x16x64_bf16 v[24:27], v[8:11], v[48:55], v1')
        self.retry_to(top)
        w = self.w8('v31', 'v17')
        a.e('v_smfmac_f32_16x16x64_bf16 v[20:23], v[12:15], v[40:47], v1')
        if isa:
            a.e(w[0])
        a.e('v_smfmac_f32_16x16x64_bf16 v[24:27], v[12:15], v[56:63], v1')
        self.stamp('ogot')
        if isa:
            self.weigh2(1, 'v31', True)
        else:
            a.e('v_pk_add_f32 v[20:21], v[20:21], v[22:23]')
            a.e('v_pk_add_f32 v[24:25], v[24:25], v[26:27]')
            a.e('v_add_f32 v20, v20, v21')
            a.e('v_add_f32 v24, v24, v25')
            a.e('v_cmp_u_f32 vcc, v20, v20')
            a.e('v_permlane32_swap_b32 v20, v24')
            a.e('v_add_f32 v20, v20, v24')
        a.e('ds_write_b32 v18, v20')
        self.K(1)
        self.retry_to(top)
        a.e(f's_bitcmp0_b32 {sRES}, 0')
        self.bar(1, True)
        l = a.lab('noy')
        a.e(f's_cbranch_scc1 {l}')
        a.begin_skip()
        for i in range(4):
            a.e(f'ds_read_b128 {vr(32 + 4 * i, 4)}, v19 offset:{16 * i}')
            a.tag_ds(f'z{i}')
            if i & 1:
                self.Wm()
        a.e('s_mov_b32 exec_hi, 0')
        self.K(2)
        self.Wm()
        a.wait(ds='z1')
        a.e('v_pk_add_f32 v[32:33], v[32:33], v[34:35]')
        a.e('v_pk_add_f32 v[36:37], v[36:37], v[38:39]')
        a.e('v_pk_add_f32 v[32:33], v[32:33], v[36:37]')
        a.e('v_add_f32 v32, v32, v33')
        a.wait(ds='z3')
        a.e('v_pk_add_f32 v[40:41], v[40:41], v[42:43]')
        a.e('v_pk_add_f32 v[44:45], v[44:45], v[46:47]')
        a.e('v_pk_add_f32 v[40:41], v[40:41], v[44:45]')
        a.e('v_add_f32 v33, v40, v41')
        a.e('v_pk_add_f32 v[32:33], v[32:33], v[4:5]')
        a.e('v_cvt_pk_bf16_f32 v32, v32, v33')
        a.e(f'buffer_store_dword v32, v29, {WSG}, {t2} offen sc1')
        a.e('s_mov_b32 exec_hi, -1')
        a.end_skip()
        a.e(f'{l}:')
        self.stamp('ypub')

    def qabs(self):
        a = self.a
        a.e('v_and_b32 v36, 7, v0')
        a.e('v_lshlrev_b32 v37, 3, v36')
        a.e(f's_sub_u32 {t0}, {sW8}, {sKV}')
        a.e(f'v_add_u32 v56, {t0}, {vA}')
        for ks in range(1, 4):
            a.e(f'v_xor_b32 v{56 + ks}, {ks << 6}, v56')
        a.e('v_and_b32 v38, 8, v0')
        a.e('v_lshlrev_b32 v38, 3, v38')
        a.e('v_lshl_or_b32 v38, v36, 1, v38')
        a.e(f's_lshl_b32 {t0}, {sV}, 4')
        a.e(f's_add_u32 {t0}, {t0}, {ZQ}')
        a.e(f'v_add_u32 v38, {t0}, v38')
        a.e(f'v_add_u32 v39, {ZQ}, {vL16}')
        self.sleep('hqb')
        top = a.lab('poll')
        a.e(f'{top}:')
        a.e(f'buffer_load_dwordx2 v[34:35], v37, {WSL}, {oSTgB} offen sc1')
        a.tag_vm('st')
        for i in (2, 3, 0, 1):
            a.e(f'buffer_load_dwordx4 {vr(8 + 4 * i, 4)}, {vL16}, {WSL}, {oQgB} offen offset:{i * 1024} sc1')
            a.tag_vm(f'q{i}')
        a.wait(vm='wuk')
        for ks in range(4):
            a.e(f'ds_read_b128 {vr(40 + 4 * ks, 4)}, v{56 + ks}')
            a.e(f'v_mov_b64 {vr(24 + 2 * ks, 2)}, 0')
        self.K(0, 'qb')
        a.wait(vm='st')
        a.e('v_cmp_u_f32 vcc, v34, v35')
        st = self.stats(34)
        for x in st[:4]:
            a.e(x)
        self.retry_to(top)
        for x in st[4:6]:
            a.e(x)
        a.e('s_waitcnt lgkmcnt(0)')
        a.wait(vm='q2')
        a.e('v_smfmac_f32_16x16x64_bf16 v[28:31], v[16:19], v[40:47], v1')
        for x in st[6:]:
            a.e(x)
        a.wait(vm='q3')
        a.e('v_smfmac_f32_16x16x64_bf16 v[28:31], v[20:23], v[48:55], v1')
        self.K(2, 'qb2')
        a.wait(vm='q0')
        a.e('v_smfmac_f32_16x16x64_bf16 v[24:27], v[8:11], v[40:47], v1')
        self.K(1, 'qb3')
        a.e('v_pk_add_f32 v[28:29], v[28:29], v[30:31]')
        a.e('v_add_f32 v28, v28, v29')
        a.e('v_mul_f32 v28, v28, v35')
        a.e(f's_cmp_lg_u32 {sV}, 0')
        a.wait(vm='q1')
        a.e('v_smfmac_f32_16x16x64_bf16 v[24:27], v[12:15], v[48:55], v1')
        self.stamp('qgotB', 2)
        a.e('v_pk_add_f32 v[24:25], v[24:25], v[26:27]')
        a.e('v_sub_f32 v24, v24, v28')
        a.e('v_add_f32 v24, v24, v25')
        a.e('v_mul_f32 v25, v24, v34')
        a.e('v_mul_f32 v24, v24, v34')
        a.e('v_cmp_u_f32 vcc, v24, v24')
        a.e('v_permlane32_swap_b32 v24, v25')
        a.e('v_add_f32 v26, v24, v25')
        a.e('v_add_f32 v24, v24, v25')
        a.e('v_permlane16_swap_b32 v24, v26')
        a.e('v_add_f32 v24, v24, v26')
        a.e('v_cvt_pk_bf16_f32 v24, v24, v24')
        a.e('ds_write_b16 v38, v24')
        self.retry_to(top)
        a.e('s_waitcnt lgkmcnt(0)')
        a.e('s_barrier')
        l = a.lab('notw')
        a.e(f's_cbranch_scc1 {l}')
        a.begin_skip()
        a.e('s_mov_b64 exec, 0xff')
        a.e('ds_read_b128 v[24:27], v39')
        a.e('s_waitcnt lgkmcnt(0)')
        a.e(f'buffer_store_dwordx4 v[24:27], {vL16}, {WSG}, {oQApub} offen sc1')
        a.e('s_mov_b64 exec, -1')
        self.end_only(l)
        self.stamp('qapub')
        self.touches('w3', 'v8', 'v9')
        self.resid_track(G_YA, 10, 'v8', f's_cmp_eq_u32 {sRES}, 3')

    def attn_b(self):
        a = self.a
        a.e(f's_mul_i32 {t0}, {sV}, {4096 - 16384}')
        a.e(f's_add_u32 {t0}, {t0}, {CKV}')
        a.e(f'v_add_u32 v56, {t0}, {vA}')
        a.e('v_xor_b32 v57, 64, v56')
        ORD = [(r, ks) for kp in range(2) for r in range(4) for ks in (2 * kp, 2 * kp + 1)]
        ga = ['v_and_b32 v58, 12, v0', 'v_lshlrev_b32 v58, 4, v58', 'v_and_or_b32 v58, v0, 48, v58', 'v_lshlrev_b32 v58, 2, v58',
              f'v_and_or_b32 v58, {vL16}, 48, v58', 'v_lshlrev_b32 v8, 7, v0', 'v_mov_b32 v9, 0']
        for x in ga:
            a.e(x)
        a.e(f'v_add_u32 v59, {STG}, {vL16}')
        a.e('s_barrier')
        self.sleep('ha')
        top = a.lab('poll')
        a.e(f'{top}:')
        ld = [f's_mov_b32 m0, {sW8}', 's_mov_b32 exec_hi, 0', f'buffer_load_dword v9, v8, {WSG}, {oQAg} offen sc1', 's_mov_b32 exec_hi, -1']
        for ks in range(4):
            ld.append(f'buffer_load_dwordx4 v58, {WSG}, {oQAg} offen offset:{ks * 1024} sc1 lds')
        for x in ld:
            a.e(x)
        for k in range(8):
            r, ks = ORD[k]
            a.e(f'ds_read_b128 {vr(24 + 4 * k, 4)}, v{56 + (ks & 1)} offset:{r * 16384}')
        a.e('v_xor_b32 v56, 128, v56')
        a.e('v_xor_b32 v57, 128, v57')
        self.k64_addr('v10', None)
        chk, again = a.lab('chk'), a.lab('again')
        a.e(f'{chk}:')
        a.e('s_waitcnt vmcnt(4)')
        a.e('v_cmp_eq_u32 vcc, -1, v9')
        self.retry_to(again)
        a.ool(f'{again}:\n' + '\n'.join(ld) + f'\ns_branch {chk}')
        pol = self.o.get('pol_w', '')
        for i in range(1, 4):
            a.e(f's_add_u32 {[t1, t2, t3][i - 1]}, {oWUV}, {i * (16 * 8192 - 1024)}')
        a.e('v_mov_b32 v58, v10')
        a.e('s_waitcnt vmcnt(0) lgkmcnt(0)')
        a.e('s_barrier')
        self.stamp('qagot')

        def qread(k):
            r, ks = ORD[k]
            a.e(f'ds_read_b128 {vr(8 + 4 * (k & 3), 4)}, v59 offset:{r * 8192 + ks * 1024}')
            a.tag_ds(f'q{k}')
        for k in range(4):
            qread(k)
        a.e(f's_add_u32 m0, {sW8}, 4096')
        SLOT = [16, 40, 48]

        def tread(e, ad='v57'):
            l = [f'v_xor_b32 {ad}, {CKV | (e << 5)}, {vT}']
            for t in range(4):
                l.append(f'ds_read_b64_tr_b16 {vr(SLOT[e % 3] + 2 * t, 2)}, {ad} offset:{t * 4096}')
            return l
        for k in range(16):
            a.wait(ds=f'q{k}')
            a.e(f'v_mfma_f32_16x16x32_bf16 v[60:63], {vr(24 + 4 * (k & 7), 4)}, {vr(8 + 4 * (k & 3), 4)}, {"v[60:63]" if k else "0"}')
            if k < 8:
                r, ks = ORD[k + 8]
                a.e(f'ds_read_b128 {vr(24 + 4 * k, 4)}, v{56 + (ks & 1)} offset:{r * 16384}')
            if k + 4 < 16:
                qread(k + 4)
            if k in (0, 2, 4, 6):
                a.e(f'buffer_load_dwordx4 v58, {WUV}, {[oWUV, t1, t2, t3][k >> 1]} offen offset:{(k >> 1) * 1024} {pol} lds')
            if k == 10:
                a.e('s_barrier')
            if k == 11:
                self.touches('w4', 'v58', None)
            if k == 12:
                a.e('v_xor_b32 v56, 128, v56')
                a.e(f'v_add_u32 v8, {sW8}, {vL16}')
            if k == 13:
                t1_ = tread(1)
                a.e(t1_[0]); a.e(t1_[1])
            if k == 14:
                a.e(t1_[2]); a.e(t1_[3])
        a.e(t1_[4])
        t0_ = tread(0)
        a.e(t0_[0]); a.e(t0_[1]); a.e(t0_[2])
        self.Wm()
        a.e(t0_[3]); a.e(t0_[4])
        t2_ = tread(2)
        a.e(t2_[0])
        a.e('ds_write_b128 v8, v[60:63]')
        a.tag_ds('sw')
        a.e(t2_[1]); a.e(t2_[2])
        self.Wm()
        a.e(t2_[3]); a.e(t2_[4])
        a.e('v_xor_b32 v57, 64, v56')
        self.K(2, 'sw')
        self.Wm()
        a.wait(ds='sw')
        self.Wm()
        a.e('s_barrier')
        self.Wm()
        self.stamp('sbar', 2)
        for t in range(4):
            a.e(f'ds_read_b128 {vr(24 + 4 * t, 4)}, v59 offset:{t * 8192}')
            a.tag_ds(f's{t}')
            if t & 1:
                self.Wm()
        a.e('v_lshrrev_b32 v61, 4, v0')
        a.e(f'v_and_b32 v60, 0xf0, {vL16}')
        a.e('v_lshl_or_b32 v61, v61, 16, v60')
        a.e(f's_add_u32 {t1}, {oC1pub}, 4096')
        a.e(f's_add_u32 {t2}, {oC1pub}, 8192')
        a.e(f's_add_u32 {t3}, {oC1pub}, 12288')
        self.Wm()
        self.lcmp()
        a.wait(ds='s0')
        a.e('v_cmp_u_f32 vcc, v24, v24')
        a.e('v_max3_f32 v62, v24, v25, v26')
        a.wait(ds='s1')
        a.e('v_max3_f32 v62, v62, v27, v28')
        a.e('v_max3_f32 v62, v62, v29, v30')
        a.wait(ds='s2')
        a.e('v_max3_f32 v62, v62, v31, v32')
        a.e('v_max3_f32 v62, v62, v33, v34')
        a.wait(ds='s3')
        a.e('v_max3_f32 v62, v62, v35, v36')
        a.e('v_max3_f32 v62, v62, v37, v38')
        a.e('v_max_f32 v63, v62, v39')
        a.e('v_max_f32 v62, v62, v39')
        again = a.lab('again')
        self.retry_to(again)
        a.ool(f'{again}:\n' + '\n'.join(ga) + f'\ns_barrier\ns_branch {top}')
        a.e('v_permlane32_swap_b32 v62, v63')
        a.e('v_max_f32 v60, v62, v63')
        a.e('v_max_f32 v62, v62, v63')
        a.e('v_permlane16_swap_b32 v62, v60')
        a.e('v_max_f32 v62, v62, v60')
        for r in range(24, 40, 2):
            a.e(f'v_pk_add_f32 {vr(r, 2)}, {vr(r, 2)}, v[62:63] op_sel_hi:[1,0] neg_lo:[0,1] neg_hi:[0,1]')
        for r in range(24, 32):
            a.e(f'v_exp_f32 v{r}, v{r}')
        for r in range(4):
            a.e(f'v_cvt_pk_bf16_f32 v{8 + r}, v{24 + 2 * r}, v{25 + 2 * r}')
        for r in range(32, 40):
            a.e(f'v_exp_f32 v{r}, v{r}')
        ACC = [56, 32, 36, 28]
        a.e(f'v_mfma_f32_16x16x32_bf16 v[56:59], v[8:11], {vr(SLOT[0], 4)}, 0')
        for r in range(4, 8):
            a.e(f'v_cvt_pk_bf16_f32 v{8 + r}, v{24 + 2 * r}, v{25 + 2 * r}')
        a.e('v_pk_add_f32 v[24:25], v[24:25], v[32:33]')
        a.e('v_pk_add_f32 v[26:27], v[26:27], v[34:35]')
        self.stamp('smax', 2)
        so = [oC1pub, t1, t2, t3]
        ml = ['s_mov_b64 exec, 0xffff', f'buffer_store_dwordx2 v[62:63], v60, {WSL}, {oMLpub} offen', 's_mov_b64 exec, -1']
        mlat = self.o.get('ml_at', 2)

        def pack(q):
            d0, d1 = ACC[(2 * q) & 3], ACC[(2 * q + 1) & 3]
            return [f'v_cvt_pk_bf16_f32 v{24 + r}, v{d0 + r}, v{d1 + r}' for r in range(4)]

        def put(q):
            self.lstore([f'buffer_store_dwordx4 v[24:27], v61, {WS}, {so[q]} offen'] + (ml if q == mlat else []))
        F = {e: [[], []] for e in range(8)}
        F[0][1] = ['v_pk_add_f32 v[28:29], v[28:29], v[36:37]', 'v_pk_add_f32 v[30:31], v[30:31], v[38:39]']
        F[1][0] = ['v_pk_add_f32 v[24:25], v[24:25], v[28:29]', 'v_pk_add_f32 v[26:27], v[26:27], v[30:31]']
        F[2][0] = ['v_pk_add_f32 v[24:25], v[24:25], v[26:27]', 'v_add_f32 v63, v24, v25']
        F[3][0] = pack(0)[:2]
        F[3][1] = pack(0)[2:]
        F[5][0] = pack(1)[:2]
        F[5][1] = pack(1)[2:] + ['v_mov_b32 v60, v63']
        F[6][0] = ['v_permlane32_swap_b32 v63, v60', 'v_add_f32 v16, v63, v60', 'v_add_f32 v63, v63, v60']
        F[6][1] = ['v_and_b32 v60, 12, v0', 'v_lshlrev_b32 v60, 4, v60', 'v_permlane16_swap_b32 v63, v16', 'v_add_f32 v63, v63, v16']
        F[7][0] = pack(2)[:2] + ['v_and_or_b32 v60, v0, 3, v60']
        F[7][1] = pack(2)[2:] + ['v_lshlrev_b32 v60, 3, v60']
        for e in range(8):
            a.wait(ds=f't{e}')
            d = vr(ACC[e & 3], 4)
            s = SLOT[e % 3]
            nx = tread(e + 3, 'v60') if e + 3 < 8 else []
            if e:
                a.e(f'v_mfma_f32_16x16x32_bf16 {d}, v[8:11], {vr(s, 4)}, 0')
            for x in nx[:3]:
                a.e(x)
            for x in F[e][0]:
                a.e(x)
            a.e(f'v_mfma_f32_16x16x32_bf16 {d}, v[12:15], {vr(s + 4, 4)}, {d}')
            for x in nx[3:]:
                a.e(x)
            if nx:
                a.tag_ds(f't{e + 3}')
            for x in F[e][1]:
                a.e(x)
            if e in (3, 5, 7):
                put((e - 3) // 2)
        for x in pack(3):
            a.e(x)
        put(3)
        self.stamp('c1pub')

    def red(self):
        a = self.a
        a.e('v_and_b32 v44, 3, v0')
        a.e('v_lshlrev_b32 v44, 6, v44')
        a.e('v_and_or_b32 v44, v0, 60, v44')
        a.e('v_lshlrev_b32 v44, 1, v44')
        self.sleep('hc1')
        ld = [f'buffer_load_dwordx2 v[22:23], v44, {WSL}, {oMLg} offen sc1']
        a.e(ld[0])
        a.e('v_and_b32 v40, 4, v0')
        a.e('v_lshlrev_b32 v40, 4, v40')
        a.e('v_and_or_b32 v40, v0, 48, v40')
        a.e('v_lshlrev_b32 v40, 1, v40')
        a.e('v_and_or_b32 v40, v0, 11, v40')
        a.e(f'v_lshl_add_u32 v40, v40, 3, {sW8}')
        a.e('v_and_b32 v45, 56, v0')
        a.e('v_lshlrev_b32 v45, 1, v45')
        a.e('v_and_or_b32 v45, v0, 6, v45')
        a.e('v_lshlrev_b32 v45, 1, v45')
        a.e(f'v_and_or_b32 v45, {vL16}, 16, v45')
        a.e('v_lshlrev_b32 v46, 2, v0')
        self.wo_prep(41, 'v39')
        self.pipe_poll(ld, 'v47', [22, 23], 'pm')
        a.e('v_mov_b64 v[24:25], v[22:23]')
        self.stamp('mlgot', 2)
        cl = [f'buffer_load_dwordx4 {vr(8 + 4 * i, 4)}, {vL16}, {WS}, {oC1g} offen offset:{i * 1024} sc1' for i in range(4)]
        for i, x in enumerate(cl):
            a.e(x)
            a.tag_vm(f'c{i}')
        tr = []
        for tau in range(2):
            for gam in range(2):
                for tt in range(2):
                    tr.append(f'ds_read_b64_tr_b16 {vr(48 + 8 * tau + 4 * gam + 2 * tt, 2)}, v40 offset:{4096 + (32 * gam + 2 * tt) * 64 + 32 * tau}')
        a.e(f'v_max_f32_dpp v36, v24, v24 quad_perm:[1,0,3,2] {FULL}')
        a.e(tr[0]); a.e(tr[1])
        a.e(f'v_max_f32_dpp v37, v36, v36 quad_perm:[2,3,0,1] {FULL}')
        a.e(f'v_max_f32_dpp v36, v36, v36 quad_perm:[2,3,0,1] {FULL}')
        a.e(tr[2]); a.e(tr[3])
        a.e('v_permlane32_swap_b32 v36, v37')
        a.e('v_max_f32 v38, v36, v37')
        a.e('v_max_f32 v36, v36, v37')
        a.e(tr[4]); a.e(tr[5])
        a.e('v_permlane16_swap_b32 v36, v38')
        a.e('v_max_f32 v36, v36, v38')
        a.e('v_sub_f32 v24, v24, v36')
        a.e('v_exp_f32 v24, v24')
        a.e(tr[6])
        a.e('v_mul_f32 v25, v25, v24')
        a.e(tr[7])
        a.e('v_mov_b64 v[28:29], 0')
        a.e(f'v_add_f32_dpp v25, v25, v25 quad_perm:[1,0,3,2] {FULL}')
        a.e('v_mov_b64 v[30:31], 0')
        a.e('v_mov_b64 v[32:33], 0')
        a.e(f'v_add_f32_dpp v37, v25, v25 quad_perm:[2,3,0,1] {FULL}')
        a.e(f'v_add_f32_dpp v25, v25, v25 quad_perm:[2,3,0,1] {FULL}')
        a.e('v_mov_b64 v[34:35], 0')
        a.e('v_permlane32_swap_b32 v25, v37')
        a.e('v_add_f32 v38, v25, v37')
        a.e('v_add_f32 v25, v25, v37')
        a.e('v_permlane16_swap_b32 v25, v38')
        a.e('v_add_f32 v25, v25, v38')
        a.e('v_rcp_f32 v38, v25')
        a.e('v_log_f32 v37, v25')
        a.e('v_mul_f32 v24, v24, v38')
        a.e('v_add_f32 v37, v37, v36')
        a.e('v_cvt_pk_bf16_f32 v26, v24, 0')
        a.e('v_cvt_pk_bf16_f32 v27, 0, v24')
        top, again = a.lab('acc'), a.lab('again')
        a.e(f'{top}:')
        for i in range(4):
            if i:
                self.K(0, 'rd')
            a.wait(vm=f'c{i}')
            for d in range(4):
                a.e(f'v_dot2c_f32_bf16_dpp v{28 + 2 * d}, v26, v{8 + 4 * i + d} row_newbcast:{4 * d + i} {FULL}')
                a.e(f'v_dot2c_f32_bf16_dpp v{29 + 2 * d}, v27, v{8 + 4 * i + d} row_newbcast:{4 * d + i} {FULL}')
        for i in range(4):
            a.e(f'v_permlane32_swap_b32 v{28 + i}, v{32 + i}')
        a.e('v_pk_add_f32 v[28:29], v[28:29], v[32:33]')
        a.e('v_pk_add_f32 v[30:31], v[30:31], v[34:35]')
        a.e('v_cmp_u_f32 vcc, v28, v30')
        a.e('v_permlane16_swap_b32 v28, v30')
        a.e('v_permlane16_swap_b32 v29, v31')
        a.e('v_pk_add_f32 v[28:29], v[28:29], v[30:31]')
        a.e('v_cvt_pk_bf16_f32 v28, v28, v29')
        self.retry_to(again)
        a.ool(f'{again}:\n' + '\n'.join(cl) + '\n' + '\n'.join(f'v_mov_b64 {vr(r, 2)}, 0' for r in range(28, 36, 2)) + f'\ns_branch {top}')
        a.e(f'buffer_store_dword v28, v45, {WSG}, {oC2pub} offen sc1')
        a.e('s_mov_b32 exec_hi, 0')
        a.e(f'buffer_store_dword v37, v46, {WSG}, {oC2Lpub} offen sc1')
        a.e('s_mov_b32 exec_hi, -1')
        self.stamp('c2pub')
        a.e('s_waitcnt lgkmcnt(0)')
        a.e('s_barrier')
        if self.o.get('x_wo'):
            a.e('s_waitcnt vmcnt(0)')
            self.stamp('x_ack')
        self.wol = self.wo_lines(BWO, 41)
        npre = self.o.get('wo_pre', 8)
        for x in self.wol[:npre]:
            a.e(x)
        if npre == 8:
            a.tag_vm('wo')
        self.wol = self.wol[npre:]
        if self.o.get('x_wo'):
            self.stamp('x_iss')
            a.e('s_waitcnt vmcnt(0)')
            self.stamp('x_land')

    def wb(self, where):
        a = self.a
        if self.o.get('wb') != where:
            return
        l = a.lab('nowb')
        self.sums(t1, [(sJ, 8), (sV, 2), (sIT, 1)])
        a.e(f's_cmp_lg_u32 {t1}, {24 * 8 + 1}')
        a.e(f's_cbranch_scc1 {l}')
        a.begin_skip()
        a.e('buffer_wbl2 sc1')
        self.end_only(l)

    def uv(self):
        a = self.a
        a.e('v_lshrrev_b32 v28, 1, v0')
        a.e('v_and_or_b32 v28, v28, 16, 0')
        a.e('v_and_or_b32 v28, v0, 14, v28')
        a.e('v_lshlrev_b32 v28, 6, v28')
        a.e('v_and_or_b32 v28, v0, 16, v28')
        a.e('v_lshlrev_b32 v28, 1, v28')
        a.e(f'v_and_or_b32 v28, {vL16}, 16, v28')
        self.rot8('v29', 7)
        self.pos_bytes('v30', None)
        a.e('v_and_b32 v31, 32, v0')
        a.e('v_lshl_or_b32 v30, v31, 3, v30')
        self.sleep('hc2')
        ld = [f'buffer_load_dword v16, v29, {WSG}, {oC2Lg} offen sc1',
              f'buffer_load_dwordx4 v[8:11], v28, {WSG}, {oC2g} offen sc1']
        z = [f'v_mov_b64 {vr(r, 2)}, 0' for r in range(20, 28, 2)]
        for x in ld:
            a.e(x)
        a.tag_vm('c2')
        for x in self.wol:
            a.e(x)
        if self.wol:
            a.tag_vm('wo')
        for x in z:
            a.e(x)
        a.wait(vm='c2')
        top, again = a.lab('chk'), a.lab('again')
        a.e(f'{top}:')
        a.e('v_smfmac_f32_16x16x64_bf16 v[20:23], v[8:11], v[48:55], v1')
        self.maxchain('v18', [8, 9, 10, 11, 16], True)
        a.e('v_smfmac_f32_16x16x64_bf16 v[24:27], v[8:11], v[56:63], v1')
        self.poll_cmp('v18')
        w = self.w8('v16', 'v17')
        a.e(w[0])
        a.e(w[1])
        a.e(w[2])
        self.retry_to(again)
        a.ool(f'{again}:\n' + '\n'.join(ld + z) + f'\ns_waitcnt vmcnt(0)\ns_branch {top}')
        self.stamp('c2got', 2)
        self.weigh2(3)
        a.e('v_mov_b32 v21, v20')
        self.lcmp()
        a.e('v_permlane16_swap_b32 v20, v21')
        a.e('v_add_f32 v20, v20, v21')
        a.e(f'v_mov_b32_dpp v21, v20 quad_perm:[1,0,3,2] {FULL}')
        a.e('v_cvt_pk_bf16_f32 v20, v20, v21')
        self.lstore(['s_mov_b32 exec_lo, 0x5555', 's_mov_b32 exec_hi, 0x5555',
                     f'buffer_store_dword v20, v30, {WSL}, {oOBpub} offen', 's_mov_b64 exec, -1'])
        self.stamp('dpub')
        self.wb('dpub')

    def attn_a3(self):
        a = self.a
        self.qa_addr(14)
        self.sleep('hqa')
        ld = self.qa_loads(8, 12, 14)
        for x in ld:
            a.e(x)
        a.e('v_mov_b64 v[20:21], 0')
        a.e(f'v_lshl_add_u32 v17, v0, 3, {sW8}')
        a.e('ds_write_b64 v17, v[20:21] offset:6656')
        a.e(f's_add_u32 {t0}, {sW8}, 6656')
        a.e(f'v_mov_b32 v17, {t0}')
        a.e('s_mov_b32 s22, 0x000f000f')
        a.e('s_mov_b32 s23, 0x000f000f')
        for c in range(4):
            a.e(f'v_cndmask_b32 v{56 + c}, v17, v16, s[22:23]')
            a.e('s_lshl_b64 s[22:23], s[22:23], 4')
        self.p_addr('v60', 'v17')
        self.wo_prep(61, 'v17')
        for r in (16, 24, 28):
            a.e(f'v_mov_b64 {vr(r, 2)}, 0')
        self.pipe_poll(ld, 'v38', [8, 12], 'pq')
        top = self.ptop
        a.e('v_mov_b64 v[36:37], v[12:13]')
        a.e('v_mov_b64 v[32:33], v[8:9]')
        a.e('v_mov_b64 v[34:35], v[10:11]')
        self.stamp('qgotA', 2)
        self.qa_finish(32, 36, 14, None, True)
        a.e('v_lshlrev_b32 v33, 16, v32')
        a.e('v_cmp_u_f32 vcc, v33, v33')
        a.e(f's_sub_u32 {t2}, {sW8}, {ZQ - 6144}')
        a.e('s_mov_b32 s22, 0x000f000f')
        a.e('s_mov_b32 s23, 0x000f000f')
        self.retry_to(top)
        a.e('s_waitcnt vmcnt(0) lgkmcnt(0)')
        a.e('s_barrier')

        def qrd(c, b):
            a.e(f'ds_read_b128 {vr(32 + 8 * (c % 3) + 4 * b, 4)}, v{56 + c} offset:{128 * b}')
            a.tag_ds(f'q{c}{b}')
        for c in range(3):
            qrd(c, 0)
            qrd(c, 1)
        self.stamp('qrdy')
        ds, va = [], []
        for e in range(8):
            for t in range(4):
                ds.append((e, f'ds_read_b64_tr_b16 a[{8 * e + 2 * t}:{8 * e + 2 * t + 1}], v{14 + (e & 1)} offset:{t * 4096}'))
        wl = self.wo_lines(WO, 61, self.o.get('pol_wo3', ''))
        other = {2: wl[0], 3: wl[1], 7: wl[2], 11: wl[3], 13: wl[4], 15: wl[5], 19: wl[6], 23: wl[7],
                 5: 'v_mov_b64 v[8:9], 0', 6: 'v_mov_b64 v[12:13], 0', 8: f'v_mov_b32 v10, {t2}'}
        for e, k in enumerate((4, 10, 14, 18, 22, 26, 30), 1):
            other[k] = f'v_xor_b32 v{14 + (e & 1)}, {e << 5}, {vT}'
        pc = []
        for c in range(4):
            pc.append('v_cndmask_b32 v11, 0, v10, s[22:23]')
            pc.append(f'v_add_u32 v{56 + c}, v{56 + c}, v11')
            if c < 3:
                pc.append('s_lshl_b64 s[22:23], s[22:23], 4')
        a.e(f'v_mov_b32 v14, {vT}')
        for k in range(32):
            c, r, b = k >> 3, (k >> 1) & 3, k & 1
            if r == 0:
                a.wait(ds=f'q{c}{b}')
            t = k >> 1
            a.e(f'v_smfmac_f32_16x16x64_bf16 {vr(16 + 4 * r, 4)}, {vr(32 + 8 * (c % 3) + 4 * b, 4)}, a[{16 * t + 8 * b}:{16 * t + 8 * b + 7}], v1')
            if k in (8, 9):
                qrd(3, k - 8)
            elif k >= 1:
                a.e(ds.pop(0)[1])
            if k in other:
                a.e(other[k])
        for r in range(4):
            if ds:
                a.e(ds.pop(0)[1])
            a.e(f'v_add_f32 v{16 + r}, v{16 + 4 * r}, v{17 + 4 * r}')
        self.softmax_a(16, 20, 'v60', pc)

        def prd(j):
            a.e(f'ds_read_b128 {vr(32 + 4 * (j % 6), 4)}, v{56 + (j >> 2)} offset:{128 * (j & 3)}')
            a.tag_ds(f'p{j}')
        for j in range(6):
            prd(j)
        self.stamp('smaxA')
        ls = self.lsum('v21', 16)
        for x in ls[:4]:
            a.e(x)
        fill = [[x] for x in ls[4:]] + [self.ml_write(20)[:2], self.ml_write(20)[2:4], self.ml_write(20)[4:], [], [], ['BAR'],
                                        self.ml_read(24, 22)[:2], ['MLR'], [], [], []]
        sc = self.ml_scale(24, 22, 62, 63)
        fill += [['MLW'] + sc[:1]] + [sc[1:3], sc[3:5], sc[5:7]] + [[x] for x in sc[7:12]] + [sc[12:14], sc[14:16], sc[16:17], sc[17:18], sc[18:20]]
        for j in range(16):
            c, U = j >> 2, j & 3
            for hf in range(2):
                e = c + 4 * hf
                if hf == 0:
                    a.wait(ds=f'p{j}')
                B = vr(64 + 64 * U + 8 * e, 8) if U < 3 else f'a[{8 * e}:{8 * e + 7}]'
                a.e(f'v_smfmac_f32_16x16x64_bf16 {vr(8 + 4 * hf, 4)}, {vr(32 + 4 * (j % 6), 4)}, {B}, v1')
                if hf == 1 and j + 6 < 16:
                    prd(j + 6)
                for x in (fill.pop(0) if fill else []):
                    if x == 'BAR':
                        a.wait(ds='mlw')
                        a.e('s_barrier')
                    elif x == 'MLR':
                        a.e(self.ml_read(24, 22)[2])
                        a.tag_ds('mlr')
                    elif x == 'MLW':
                        a.wait(ds='mlr')
                    else:
                        a.e(x)
                        if 'ds_write_b64' in x:
                            a.tag_ds('mlw')
        assert not fill
        a.e(f'v_lshl_add_u32 v46, v0, 2, {sW8}')
        a.e('v_mov_b32 v47, v63')
        a.e('s_waitcnt vmcnt(0)')
        a.e('v_add_f32 v44, v8, v9')
        a.e('v_add_f32 v45, v12, v13')
        a.e('v_pk_mul_f32 v[44:45], v[44:45], v[62:63] op_sel_hi:[1,0]')
        self.stamp('pvA')

    def dma_tile(self, t):
        a = self.a
        pol = self.o.get('pol_kv', 'nt')
        srd = K_ if t < 16 else V_
        a.e(f's_add_u32 m0, {sKV}, {(t & 3) * 4096}')
        a.e(f's_add_u32 {t0}, {sKG}, {(t & 15) * 16384}')
        for q in range(4):
            a.e(f'buffer_load_dwordx4 v{8 + q}, {srd}, {t0} offen offset:{q * 1024} {pol} lds')
        a.tag_vm(f'tile{t}')

    def dma_ckv(self, t):
        a = self.a
        pol = self.o.get('pol_c', '')
        a.e('v_lshrrev_b32 v62, 4, v0')
        a.e('v_mul_u32_u24 v62, 768, v62')
        a.e(f's_lshr_b32 {t2}, {sJ}, 1')
        self.sums(t1, [(sX, 1 << 20), (t2, 1 << 16), (sV, 256)])
        for q in range(4):
            a.e(f's_add_u32 m0, {sKV}, {CKV + t * 4096 + q * 1024}')
            a.e(f'v_add_u32 v63, v{8 + q}, v62')
            a.e(f's_add_u32 {t2}, {t1}, {(16 * t + 4 * q) * 1024}')
            a.e(f'buffer_load_dwordx4 v63, {CK}, {t2} offen {pol} lds')

    def prologue(self):
        a = self.a
        a.e('s_cmp_ge_u32 s2, 256')
        a.e('s_cbranch_scc1 L_end')
        if self.o.get('diag_fixed'):
            a.e('s_memrealtime s[100:101]')
        if self.o.get('stamps'):
            a.e('s_memtime s[98:99]' if self.o.get('clk') else 's_memrealtime s[98:99]')
        a.e('s_load_dwordx2 s[4:5], s[0:1], 8')
        ptrs = [(V_, 16), (CK, 48), (DBG, 96), (XIN, 0), (WQ, 24), (WO, 32), (BWQ, 56), (WUK, 64), (WUV, 72), (BWO, 80),
                (WS, 104), (OUT, 88)]
        sizes = {K_: 1 << 26, V_: 1 << 26, CK: 1 << 23, DBG: 256, XIN: 1152, WQ: 576 * 8192, WO: 4096 * 1152,
                 BWQ: 576 * 8192, WUK: 1 << 22, WUV: 1 << 22, BWO: 4096 * 1152, WS: WS_SIZE, WSL: L_X, WSG: G_IT, OUT: 1152}
        base = lambda s: int(s[2:s.index(':')])
        a.e('v_lshrrev_b32 v1, 6, v0')
        a.e('v_mov_b32 v63, v0')
        a.e(f'v_readfirstlane_b32 {sV}, v1')
        a.e('v_and_b32 v0, 63, v0')
        a.e(f's_and_b32 {sX}, s2, 7')
        a.e(f's_lshr_b32 {sJ}, s2, 3')
        a.e(f's_lshl_b32 {sKV}, {sV}, 14')
        self.sums(sKG, [(sX, 1 << 23), (sJ, 1 << 18), (sV, 1 << 12)])
        a.e(f'v_lshlrev_b32 {vL16}, 4, v0')
        a.e('v_and_b32 v12, 48, v0')
        a.e('v_lshlrev_b32 v12, 1, v12')
        a.e(f'v_xor_b32 v8, v12, {vL16}')
        for q in range(1, 4):
            a.e(f'v_xor_b32 v{8 + q}, {TBL[q] << 4}, v8')
        a.e(f's_mov_b32 s6, {sizes[K_]}')
        a.e('s_mov_b32 s7, 0x20000')
        a.e('s_waitcnt lgkmcnt(0)')
        for t in range(4):
            if t < self.o.get('depth', 4):
                self.dma_tile(t)
            for srd, off in ptrs[3 * t:3 * t + 3]:
                b = base(srd)
                a.e(f's_load_dwordx2 s[{b}:{b + 1}], s[0:1], {off}')
        for srd, n in sizes.items():
            if srd != K_:
                a.e(f's_mov_b32 s{base(srd) + 2}, {n}')
                a.e(f's_mov_b32 s{base(srd) + 3}, 0x20000')
        a.e(f's_getpc_b64 s[82:83]')
        a.e('L_pc:')
        a.e('v_lshlrev_b32 v62, 7, v63')
        a.e(f'v_min_u32 v62, L_codeend-L_pc, v62')
        a.e('global_load_dword v61, v62, s[82:83]')
        a.e(f's_lshr_b32 {t1}, {sJ}, 3')
        self.sums(sH, [(sX, 4), (t1, 1)])
        a.e(f's_and_b32 {sS}, {sJ}, 7')
        a.e(f's_mov_b32 {sIT}, 0')
        a.e(f's_mov_b32 {sPOLL}, 0')
        a.e(f's_mov_b32 {sST}, 0')
        self.sums(sW8, [(sV, 8192)], STG)
        a.e('s_mov_b32 s84, 0x00ff00ff')
        a.e('s_mov_b32 s85, 0x000000ff')
        self.sums(oY, [(sS, 384)])
        self.sums(oQA, [(t1, 4096), (sV, 1024), (sS, 128)], L_QA)
        self.sums(oQB, [(t1, 4096), (sV, 512), (sS, 32)], L_QB)
        self.sums(oST, [(sJ, 8)], L_STA)
        a.e(f's_cmp_eq_u32 {sV}, 0')
        a.e(f's_cselect_b32 {oST}, {oST}, {OOB}')
        self.sums(oQgA, [(t1, 4096), (sV, 1024)], L_QA)
        self.sums(oSTgA, [(t1, 64)], L_STA)
        self.sums(oWQ, [(sS, 72 * 8192), (sH, 256), (sV, 24 * 8192)])
        a.e(f's_cmp_eq_u32 {sV}, 3')
        a.e(f's_cselect_b32 {oWQ}, {OOB}, {oWQ}')
        self.sums(oWUV, [(sS, 64 * 8192), (sH, 256), (sV, 64)])
        self.sums(oWUK, [(sJ, 16 * 8192), (sX, 1024), (sV, 256)])
        self.sums(oWO, [(sX, 512 * 1152), (sV, 128 * 1152), (sJ, 48)])
        self.sums(oYpub, [(sX, 3072), (sJ, 128)])
        if self.o.get('asym'):
            a.e(f's_getreg_b32 {t0}, hwreg(HW_REG_XCC_ID, 0, 3)')
            a.e(f's_lshr_b32 {t0}, {self.o["asym"][0]}, {t0}')
            a.e(f's_lshl_b32 {t0}, {t0}, 31')
            a.e(f's_or_b32 {oYpub}, {oYpub}, {t0}')
        a.e(f's_cmp_lt_u32 {sJ}, 24')
        a.e(f's_cselect_b32 {oWO}, {oWO}, {OOB}')
        a.e(f's_cselect_b32 {sRES}, 1, 0')
        a.e(f's_cmp_eq_u32 {sV}, 3')
        a.e(f's_cselect_b32 {sRES}, {sRES}, 0')
        a.e(f's_mul_i32 {t0}, {sRES}, 3')
        a.e(f's_cmp_eq_u32 {sX}, 0')
        a.e(f's_cselect_b32 {sRES}, {t0}, {sRES}')
        if self.o.get('stamps'):
            a.e('v_mov_b32 v7, 0')
            a.e('s_mov_b32 s97, 8')
        a.e('v_and_b32 v14, 1, v0')
        a.e('v_mul_u32_u24 v1, 0xaaaa, v14')
        a.e('v_add_u32 v1, 0x4444, v1')

        def tbl(dst, x, tmp):
            a.e(f'v_lshrrev_b32 {tmp}, 1, {x}')
            a.e(f'v_xor_b32 {dst}, {x}, {tmp}')
            a.e(f'v_and_b32 {dst}, 1, {dst}')
            a.e(f'v_lshl_or_b32 {dst}, {dst}, 3, {tmp}')
        a.e('v_lshrrev_b32 v12, 4, v0')
        a.e('v_and_b32 v13, 15, v0')
        a.e('v_lshrrev_b32 v15, 2, v13')
        tbl('v16', 'v15', 'v17')
        a.e('v_and_b32 v17, 3, v13')
        a.e('v_lshlrev_b32 v18, 1, v17')
        a.e('v_xor_b32 v16, v16, v18')
        a.e('v_xor_b32 v16, v16, v12')
        a.e('v_lshlrev_b32 v16, 4, v16')
        a.e(f'v_lshl_or_b32 {vA}, v13, 8, v16')
        a.e(f'v_add_u32 {vA}, {sKV}, {vA}')
        tbl('v16', 'v12', 'v18')
        a.e('v_lshlrev_b32 v18, 1, v15')
        a.e('v_xor_b32 v16, v16, v18')
        a.e('v_lshrrev_b32 v18, 1, v17')
        a.e('v_xor_b32 v16, v16, v18')
        a.e('v_lshlrev_b32 v16, 4, v16')
        a.e('v_lshrrev_b32 v18, 2, v0')
        a.e('v_lshl_or_b32 v16, v18, 8, v16')
        a.e(f'v_lshl_or_b32 {vT}, v14, 3, v16')
        a.e(f'v_add_u32 {vT}, {sKV}, {vT}')
        a.e('s_waitcnt lgkmcnt(0)')
        self.stamp('start')
        w, l, g = base(WS), base(WSL), base(WSG)
        a.e(f's_lshl_b32 {t0}, {sX}, 17')
        a.e(f's_add_u32 s{l}, s{w}, {t0}')
        a.e(f's_addc_u32 s{l + 1}, s{w + 1}, 0')
        a.e(f's_add_u32 s{g}, s{w}, {GB}')
        a.e(f's_addc_u32 s{g + 1}, s{w + 1}, 0')
        self.dma_wq(WQ, 'v56', 'v57')
        self.lnq_rows()
        a.e(f's_mul_i32 {t0}, {sS}, 144')
        a.e('s_mov_b32 exec_lo, 0x00010001')
        a.e('s_mov_b32 exec_hi, 0x00000001')
        for rho in range(3):
            a.e(f'buffer_load_dwordx4 {vr(16 + 4 * rho, 4)}, v0, {XIN}, {t0} offen offset:{48 * rho}')
        a.e('s_mov_b64 exec, -1')
        a.e('v_lshlrev_b32 v58, 2, v0')
        a.e(f's_mul_i32 {t0}, {sJ}, 48')
        a.e(f's_cmp_eq_u32 {sRES}, 3')
        a.e(f's_cselect_b32 {t0}, {t0}, {OOB}')
        a.e(f'buffer_load_dword v5, v58, {XIN}, {t0} offen')
        for r in range(56, 60):
            a.e(f'v_mov_b32 v{r}, -1')
        self.sums(t3, [(sX, 128), (sJ, 4), (sV, 1)])
        a.e(f's_lshl_b32 {t4}, {t3}, 10')
        self.sums(t1, [(t3, 768)], GB)
        self.sums(t5, [(t3, 4096)], CB)
        a.e(f'buffer_store_dwordx4 v[56:59], {vL16}, {WS}, {t4} offen sc1')
        a.e('v_mul_u32_u24 v60, 12, v0')
        a.e(f'buffer_store_dwordx3 v[56:58], v60, {WS}, {t1} offen sc1')
        for i in range(0 if self.o.get('c1_late', 1) else 4):
            a.e(f'buffer_store_dwordx4 v[56:59], {vL16}, {WS}, {t5} offen offset:{i * 1024} sc1')
        a.tag_vm('clr')
        for ks in range(4):
            a.e(f'v_xor_b32 v{12 + ks}, {ks << 6}, {vA}')

    def late_scalars(self):
        a = self.a
        if self.o.get('asym'):
            a.e(f's_bitset0_b32 {oYpub}, 31')
        a.e(f's_lshr_b32 {t1}, {sJ}, 3')
        a.e(f's_and_b32 {t2}, {sJ}, 1')
        a.e(f's_lshr_b32 {t3}, {sJ}, 1')
        a.e(f's_lshr_b32 {t4}, {sX}, 2')
        a.e(f's_and_b32 {t5}, {sX}, 3')
        self.sums(oQgB, [(sV, 4096)], L_QB)
        self.sums(oSTgB, [(sV, 64)], L_STB)
        self.sums(oQApub, [(t4, 16384), (t3, 1024), (t5, 256), (t2, 128)], G_QABS)
        self.sums(oQAg, [(t2, 16384), (sV, 4096)], G_QABS)
        self.sums(oC1pub, [(sX, 1 << 19), (t2, 1 << 18), (sV, 16384), (t3, 256)], CB)
        self.sums(oMLpub, [(t2, 2048), (t3, 32)], L_C1ML)
        self.sums(oC1g, [(sX, 1 << 19), (sJ, 16384), (sV, 4096)], CB)
        a.e(f's_lshr_b32 {t4}, {sJ}, 2')
        self.sums(oMLg, [(t4, 512)], L_C1ML)
        self.sums(oC2pub, [(sJ, 8192), (sV, 2048), (sX, 256)], G_C2)
        self.sums(oC2Lpub, [(t4, 1024), (sX, 128)], G_C2L)
        a.e(f's_and_b32 {t4}, {sJ}, 3')
        a.e(f's_cselect_b32 {oC2Lpub}, {OOB}, {oC2Lpub}')
        self.sums(oC2g, [(sX, 32768), (sS, 4096), (t1, 64)], G_C2)
        self.sums(oC2Lg, [(sX, 1024), (t1, 16)], G_C2L)
        self.sums(oOBpub, [(t1, 2048), (sV, 512), (sS, 32)], L_OB)
        self.sums(oOApub, [(t1, 2048), (sS, 32)], L_OA)
        self.sums(oOALpub, [(sJ, 4)], L_OAL)
        self.sums(oOALg, [(sV, 32)], L_OAL)
        self.sums(oRES, [(sJ, 128)])
        self.sums(oO, [(sV, 2048)], L_OA)
        a.e(f's_cmp_eq_u32 {sV}, 0')
        a.e(f's_cselect_b32 {oMLpub}, {oMLpub}, {OOB}')
        a.e(f's_cselect_b32 {oC2Lpub}, {oC2Lpub}, {OOB}')

    def pv_block(self, U):
        a = self.a
        self.sp_addr('v63', sW8)
        a.e(f'ds_read_b128 v[20:23], v63 offset:{6144 + 128 * U}')
        a.e('s_waitcnt lgkmcnt(0)')
        for e in range(8):
            a.e(f'v_smfmac_f32_16x16x64_bf16 {vr(24 + 4 * e, 4)}, v[20:23], {vr(64 + 64 * U + 8 * e, 8)}, v1')

    def stream(self):
        a = self.a
        o = self.o
        ckv_at = o.get('ckv_at', [22, 23, 24, 25])
        depth = o.get('depth', 4)
        for t in range(28):
            a.wait(vm=f'tile{t}')
            if o.get('sstamps') and t % 4 == 0:
                self.stamp(f't{t}')
            asym = o.get('asym')
            if depth < 4 and not asym:
                self.dma_tile(t + depth)
            slot = (t & 3) * 4096
            if t < 16:
                for ks in range(4):
                    a.e(f'ds_read_b128 a[{16 * t + 4 * ks}:{16 * t + 4 * ks + 3}], v{12 + ks} offset:{slot}')
            else:
                u = t - 16
                if u == 0:
                    for e in range(8):
                        a.e(f'v_xor_b32 v{12 + e}, {e << 5}, {vT}')
                for e in range(8):
                    a.e(f'ds_read_b64_tr_b16 {vr(64 + 64 * (u >> 2) + 8 * e + 2 * (u & 3), 2)}, v{12 + e} offset:{slot}')
            a.e('s_waitcnt lgkmcnt(0)')
            if asym:
                if t >= asym[1] and t < asym[2]:
                    l = a.lab('deep')
                    a.e(f's_bitcmp1_b32 s96, 31')
                    a.e(f's_cbranch_scc1 {l}')
                    a.begin_skip()
                    a.wait(vm=f'tile{t + asym[3]}')
                    self.end_only(l)
                self.dma_tile(t + depth)
                if t == 27:
                    for u in range(28 + depth, 32):
                        self.dma_tile(u)
            elif depth == 4:
                self.dma_tile(t + 4)
            elif t == 27:
                for u in range(28 + depth, 32):
                    self.dma_tile(u)
            if t == 4:
                a.wait(vm='clr')
                a.e('v_lshlrev_b32 v60, 6, v0')
                if not o.get('c1_late', 1):
                    a.e(f'buffer_load_dword v61, v60, {WS}, {t5} offen')
                a.e('v_and_b32 v60, 0x3ff, v60')
                a.e(f'buffer_load_dword v61, v60, {WS}, {t4} offen')
                a.tag_vm('touch')
                a.e('v_lshlrev_b32 v4, 16, v5')
                a.e('v_and_b32 v5, 0xffff0000, v5')
            if t == 5:
                a.e('s_barrier')
                l = self.wave_only(1)
                a.e('s_getreg_b32 s82, hwreg(HW_REG_XCC_ID, 0, 3)')
                a.e('s_lshl_b32 s82, s82, 3')
                a.e('s_lshl_b64 s[82:83], 1, s82')
                a.e('v_mov_b32 v58, s82')
                a.e('v_mov_b32 v59, s83')
                a.e(f's_lshl_b32 {t0}, {sX}, 5')
                a.e('s_mov_b64 exec, 1')
                a.e(f'buffer_atomic_add_x2 v[58:59], v0, {DBG}, {t0} offen sc1')
                a.e('s_mov_b64 exec, -1')
                self.end_only(l)
            if t == 9:
                a.wait(vm='touch')
                self.lnq_addr()
                self.lnq_prep()
                for rho in range(3):
                    self.lnq_mfma(rho)
                self.lnq_reduce(False)
            if t == o.get('wo_at', 9):
                self.dma_wo(WO, 61 if t > 9 else 56, 'v56' if t > 9 else 'v63')
            if t == 10:
                a.e('v_and_b32 v57, 7, v0')
                a.e('v_lshlrev_b32 v57, 5, v57')
                a.e(f'buffer_load_dwordx2 v[58:59], v57, {DBG}, 0 offen sc1')
                a.tag_vm('cnt')
            if t == 15:
                chk, retry, done = a.lab('chk'), a.lab('cretry'), a.lab('cdone')
                a.wait(vm='cnt')
                a.e(f'{chk}:')
                a.e('v_sad_u8 v61, v58, 0, 0')
                a.e('v_sad_u8 v61, v59, 0, v61')
                a.e('v_cmp_ne_u32 vcc, 32, v61')
                a.e(f's_cbranch_vccnz {retry}')
                a.e(f'{done}:')
                a.ool(f'{retry}:\ns_add_u32 {sPOLL}, {sPOLL}, 1\ns_cmp_gt_u32 {sPOLL}, 100000\ns_cbranch_scc1 {done}\n'
                      f'buffer_load_dwordx2 v[58:59], v57, {DBG}, 0 offen sc1\ns_waitcnt vmcnt(0)\ns_branch {chk}')
                a.e('s_getreg_b32 s82, hwreg(HW_REG_XCC_ID, 0, 3)')
                a.e('s_lshl_b32 s82, s82, 3')
                a.e('s_lshl_b64 s[82:83], 32, s82')
                a.e(f'v_readlane_b32 {t2}, v58, {sX}')
                a.e(f'v_readlane_b32 {t3}, v59, {sX}')
                a.e(f's_cmp_eq_u64 s[82:83], s[80:81]')
                a.e(f's_cselect_b32 {sLOC}, {0 if o.get("force_slow") else 1}, 0')
                self.lnq_pubaddr(False, True)
                self.lcmp()
                self.lnq_publish(False, True)
            if t == 18:
                self.qa_addr(48)
                a.e(f's_add_u32 {t4}, {oQgA}, {L_CSA - L_QA}')
                ql = self.qa_loads(40, 52, 48) + [f'buffer_load_dwordx4 v[44:47], {vL16}, {WSL}, {t4} offen sc1']
                for x in ql:
                    a.e(x)
                a.tag_vm('q')
            if t == 22:
                a.wait(vm='q')
                self.late_check('v20', list(range(40, 48)) + [52, 53], ql)
                for x in self.red8(44):
                    a.e(x)
                a.e('v_cvt_pk_bf16_f32 v44, 0, v44')
                a.e('v_or_b32 v1, v1, v44')
                self.qa_finish(40, 52, 48, 56)
                for r in range(24, 40, 4):
                    a.e(f'v_mov_b64 {vr(r, 2)}, 0')
                self.p_addr('v45', 'v44')
                self.qk_softmax(56, 24, 40, 44)
                for x in self.lsum('v57', 40):
                    a.e(x)
                for x in self.ml_write(56):
                    a.e(x)
                for r in range(24, 56, 4):
                    a.e(f'v_mov_b64 {vr(r, 2)}, 0')
                a.e('s_waitcnt lgkmcnt(0)')
            for i, at in enumerate(ckv_at):
                if at == t:
                    self.dma_ckv(i)
            self.touches(f's{t}', 'v62', 'v31')
            if t == o.get('mlbar', 26):
                a.e('s_barrier')
                for x in self.ml_read(56, 20):
                    a.e(x)
                a.e('s_waitcnt lgkmcnt(0)')
                for x in self.ml_scale(56, 20, 21, 22):
                    a.e(x)
                a.e('v_readfirstlane_b32 s22, v21')
                a.e('v_readfirstlane_b32 s23, v22')
            if t == o.get('c1_late', 1) and t > 15:
                self.sums(t1, [(sX, 1 << 19), (sJ, 16384), (sV, 4096)], CB)
                for r in range(56, 60):
                    a.e(f'v_mov_b32 v{r}, -1')
                self.lcmp()
                self.lstore([f'buffer_store_dwordx4 v[56:59], {vL16}, {WS}, {t1} offen offset:{i * 1024}' for i in range(4)])
            if t == o.get('tlb_at', -1):
                g = o.get('tlb_n', 2)
                a.e(f's_mov_b64 exec, {(1 << g) - 1}')
                self.sums(t2, [(sX, 1 << 19)], CB)
                for srd, so, span in ((BWQ, oWQ, 24 * 8192), (WUK, oWUK, 16 * 8192), (WUV, oWUV, 64 * 8192), (BWO, oWO, 128 * 1152),
                                      (WS, t2, 1 << 19), (OUT, '0', 1024)):
                    a.e(f'v_mul_u32_u24 v62, {(span - 8192 if span > 8192 else span) // (g - 1) // 4 * 4}, v0')
                    a.e(f'buffer_load_dword v31, v62, {srd}, {so} offen')
                a.e('s_mov_b64 exec, -1')
            if t == o.get('isl_at', 12):
                a.e('s_branch L_isl_0')
                a.e('L_isl_ret:')
            if t == o.get('late_touch', -1):
                self.sums(t3, [(sX, 128), (sJ, 4), (sV, 1)])
                a.e(f's_lshl_b32 {t2}, {t3}, 10')
                a.e('v_lshlrev_b32 v62, 7, v0')
                a.e('v_and_b32 v62, 0x3ff, v62')
                a.e(f'buffer_load_dword v31, v62, {WS}, {t2} offen')
            if t == 23:
                self.pv_block(0)
            if t == 24:
                self.pv_block(1)
        self.late_scalars()
        self.pv_block(2)
        a.e(f'ds_read_b128 v[20:23], v63 offset:{6144 + 128 * 3}')
        a.wait(vm='tile31')
        self.stamp('kvdone')

        def vread(e, s):
            for t in range(4):
                a.e(f'ds_read_b64_tr_b16 {vr(s + 2 * t, 2)}, v{16 + (e & 3)} offset:{t * 4096}')
            a.tag_ds(f'v{e}')
        order = [4, 5, 6, 7, 0, 1, 2, 3]
        vread(order[0], 8)
        vread(order[1], 56)
        for i, e in enumerate(order):
            a.wait(ds=f'v{e}')
            s = [8, 56][i & 1]
            a.e(f'v_smfmac_f32_16x16x64_bf16 {vr(24 + 4 * e, 4)}, v[20:23], {vr(s, 8)}, v1')
            if i + 2 < 8:
                if i >= 2:
                    a.e(f'v_xor_b32 v{16 + (order[i + 2] & 3)}, {order[i + 2] << 5}, {vT}')
                vread(order[i + 2], s)
        for e in order:
            a.e(f'v_add_f32_dpp v{16 + (e >> 2)}, v{24 + 4 * e}, v{25 + 4 * e} {DPPI} row_mask:{1 << (e & 3)} bank_mask:0xf')
        a.e('v_mul_f32 v45, s22, v17')
        a.e('v_mul_f32 v44, s22, v16')
        a.e(f'v_lshl_add_u32 v46, v0, 2, {sW8}')
        a.e('v_mov_b32 v47, s23')
        self.stamp('pv1')

    def tail(self, mode):
        a = self.a
        o = self.o
        base = lambda s: int(s[2:s.index(':')])
        self.mode = mode
        n0 = self.nst
        a.vmq = [['wo', ()]] + [[None, ()] for _ in range(len(o.get('touch', {}).get('s27', [])) if o.get('wo_at', 9) == 27 else 40)]
        l, g = base(WSL), base(WSG)
        a.e(f'L_top_{mode}:')
        self.combine_publish()
        self.stamp('opub')
        a.e(f's_mul_i32 {t0}, {sRES}, {sIT}')
        self.resid_track(G_YB, 10, 'v8', f's_cmp_eq_u32 {t0}, 3')
        a.e(f's_mul_i32 {t0}, {sIT}, {G_IT}')
        a.e(f's_add_u32 s{g}, s{g}, {t0}')
        a.e(f's_addc_u32 s{g + 1}, s{g + 1}, 0')
        self.outproj(True)
        self.lnq_tail(G_YA, True)
        self.qabs()
        self.attn_b()
        self.red()
        self.uv()
        self.outproj(False)
        a.e(f's_cmp_eq_u32 {sIT}, 1')
        a.e(f's_cbranch_scc1 L_final_{mode}')
        a.e(f's_add_u32 s{l}, s{l}, {L_IT}')
        a.e(f's_addc_u32 s{l + 1}, s{l + 1}, 0')
        a.e(f's_mov_b32 s{l + 2}, {L_IT}')
        a.e(f's_mov_b32 {sIT}, 1')
        self.lnq_tail(G_YB, False)
        self.attn_a3()
        self.nper = self.nst - n0
        self.n0 = n0
        if o.get('stamps'):
            a.e('s_mov_b32 s97, 5')
        a.e(f's_branch L_top_{mode}')
        a.e(f'L_final_{mode}:')
        a.e(f's_cmp_lg_u32 {sRES}, 3')
        a.e('s_cbranch_scc1 L_fin2')
        self.resid(G_YB, 10, 'v8', True)
        a.e('v_cvt_pk_bf16_f32 v4, v4, v5')
        a.e(f's_mul_i32 {t0}, {sJ}, 48')
        a.e(f'buffer_store_dword v4, v8, {OUT}, {t0} offen')
        a.e('s_mov_b64 exec, -1')
        self.mode = None

    def build(self):
        a = self.a
        o = self.o
        base = lambda s: int(s[2:s.index(':')])
        self.prologue()
        self.stream()
        a.e(f's_cmp_eq_u32 {sLOC}, 0')
        a.e('s_cbranch_scc1 L_top_slow')
        self.tail('fast')
        a.e('L_fin2:')
        if o.get('diag_fixed'):
            a.e('L_dfx:')
            a.e('s_memrealtime s[94:95]')
            a.e('s_waitcnt lgkmcnt(0)')
            a.e('s_sub_u32 s94, s94, s100')
            a.e(f's_cmp_lt_u32 s94, {o["diag_fixed"]}')
            a.e('s_cbranch_scc1 L_dfx')
        if o.get('stamps'):
            a.e('s_waitcnt vmcnt(0) lgkmcnt(0)')
            self.stamp('end')
            a.e('s_waitcnt lgkmcnt(0)')
            a.e('v_writelane_b32 v7, s98, 62')
            a.e(f'v_writelane_b32 v7, {sPOLL}, 63')
            a.e('s_getreg_b32 s82, hwreg(HW_REG_XCC_ID, 0, 3)')
            a.e('s_getreg_b32 s83, hwreg(HW_REG_HW_ID)')
            a.e('s_lshl_b32 s83, s83, 4')
            a.e('s_or_b32 s82, s82, s83')
            a.e('v_writelane_b32 v7, s82, 61')
            self.sums(t1, [('s2', 1024), (sV, 256)], STAMP)
            a.e('v_lshlrev_b32 v8, 2, v0')
            a.e(f'buffer_store_dword v7, v8, {WS}, {t1} offen')
        a.e('L_end:')
        a.e('s_endpgm')
        slow = Gen(self.o)
        slow.a.uid = 500000
        slow.a.cold = True
        slow.tail('slow')
        slow.a.e('s_branch L_fin2')
        sb = slow.a.finish()
        sb = sb[:sb.index('L_isl_0:')]
        body = a.finish()
        ref = open('cdna_kernels/' + NAME + '.s.ref').read() if o.get('hdr', True) else ''
        hdr = ''.join(l + '\n' for l in ref.split('\n') if l.startswith(';') and '@launch' not in l and 'Override' not in l and 'grid=ceil' not in l)
        txt = hdr + '; @launch grid=(256,1,1) block=(256,1,1) lds=163840\n'
        txt += '.amdgcn_target "amdgcn-amd-amdhsa--gfx950"\n.text\n'
        txt += f'.globl {NAME}_kernel\n.p2align 8\n.type {NAME}_kernel,@function\n{NAME}_kernel:\n'
        txt += body
        txt += 'L_codeend:\n' + sb
        txt += f"""    s_endpgm
.section .rodata,"a"
.p2align 6
.amdhsa_kernel {NAME}_kernel
  .amdhsa_next_free_vgpr 512
  .amdhsa_next_free_sgpr 102
  .amdhsa_accum_offset 256
  .amdhsa_group_segment_fixed_size 0
  .amdhsa_kernarg_size 112
  .amdhsa_user_sgpr_count 2
  .amdhsa_user_sgpr_kernarg_segment_ptr 1
  .amdhsa_system_sgpr_workgroup_id_x 1
.end_amdhsa_kernel
"""
        return txt


DEFAULT = dict(sleep=dict(h2a=7, h2b=7, h2c=2, ha=11, hc2=7, fin=10), pol_c='nt', depth=3,
               touch=dict(s27=['bwo', 'c1'], w1b=['wuk']), wo_pre=4, pol_wq3='nt',
               late_touch=-1, wo_at=9, warm=0, c1_late=1, ckv_at=[10, 11, 12, 13])

if __name__ == '__main__':
    import json
    opt = dict(DEFAULT)
    out = sys.argv[1]
    if len(sys.argv) > 2:
        opt.update(json.loads(sys.argv[2]))
    g = Gen(opt)
    open(out, 'w').write(g.build())
    print('nops', g.a.nops, 'stamps', g.stnames, g.n0, g.nper)
```

```python
import re

WARM_PADS = False
TRANS = ('v_exp_f32', 'v_log_f32', 'v_rcp_f32', 'v_rsq_f32', 'v_sqrt_f32', 'v_sin_f32', 'v_cos_f32')


def regs_of(op):
    op = op.strip()
    op = re.sub(r'^-|^\||\|$', '', op)
    m = re.fullmatch(r'abs\((.*)\)', op)
    if m:
        op = m.group(1)
    m = re.fullmatch(r'([vas])(\d+)', op)
    if m:
        return {(m.group(1), int(m.group(2)))}
    m = re.fullmatch(r'([vas])\[(\d+):(\d+)\]', op)
    if m:
        return {(m.group(1), i) for i in range(int(m.group(2)), int(m.group(3)) + 1)}
    if op == 'vcc':
        return {('s', 'vcc')}
    if op == 'exec':
        return {('s', 'exec')}
    if op == 'm0':
        return {('s', 'm0')}
    return set()


class Ins:
    def __init__(self, text, region):
        self.text = text
        self.region = region
        t = text.split(';')[0].strip()
        self.label = t.endswith(':')
        self.directive = t.startswith('.')
        self.empty = (t == '')
        self.mn = ''
        self.w = set()
        self.r = set()
        self.srcc = set()
        self.data = set()
        if self.label or self.directive or self.empty:
            return
        parts = t.split(None, 1)
        self.mn = mn = parts[0]
        rest = parts[1] if len(parts) > 1 else ''
        ops = []
        cur = ''
        depth = 0
        for ch in rest:
            if ch == '[':
                depth += 1
            if ch == ']':
                depth -= 1
            if ch == ',' and depth == 0:
                ops.append(cur)
                cur = ''
            else:
                cur += ch
        if cur.strip():
            ops.append(cur)
        mods = ''
        if ops:
            last = ops[-1].strip().split(None, 1)
            ops[-1] = last[0]
            mods = last[1] if len(last) > 1 else ''
        self.mods = mods
        R = [regs_of(o) for o in ops]
        self.mfma = mn.startswith('v_mfma') or mn.startswith('v_smfmac')
        self.dot = mn.startswith('v_dot')
        self.valu = mn.startswith('v_') and not self.mfma
        self.dpp = mn.endswith('_dpp')
        self.perml = mn.startswith('v_permlane')
        self.trans = any(mn.startswith(x) for x in TRANS)
        self.salu = mn.startswith('s_')
        self.vmem = mn.startswith('buffer_') or mn.startswith('global_')
        self.ds = mn.startswith('ds_')
        self.lds_dma = self.vmem and re.search(r'\blds\b', mods) is not None
        self.rdlane = mn.startswith('v_readlane') or mn.startswith('v_readfirstlane')
        self.wide_store = False
        U = lambda l: set().union(*l) if l else set()
        if self.mfma:
            self.w = R[0]
            if mn.startswith('v_smfmac'):
                self.srcc = R[0]
                self.ab = R[1] | R[2] | R[3]
            else:
                self.srcc = R[3]
                self.ab = R[1] | R[2]
            self.r = self.srcc | self.ab
        elif self.valu:
            self.w = R[0]
            self.r = U(R[1:])
            if self.perml:
                self.w = R[0] | R[1]
                self.r = R[0] | R[1]
            if mn.startswith('v_fmac') or mn.startswith('v_dot2c') or mn.startswith('v_pk_fmac'):
                self.r |= R[0]
            if mn.startswith('v_cndmask') and len(ops) == 3:
                self.r |= {('s', 'vcc')}
            if mn.startswith('v_cmpx'):
                self.w |= {('s', 'exec')}
        elif self.ds:
            if mn.startswith('ds_read') or mn.startswith('ds_bperm') or mn.startswith('ds_swiz'):
                self.w = R[0]
                self.r = U(R[1:])
            else:
                self.r = U(R)
        elif self.vmem:
            if 'load' in mn and not self.lds_dma:
                self.w = R[0]
                self.r = U(R[1:])
            else:
                self.r = U(R)
                if 'store' in mn and (mn.endswith('x3') or mn.endswith('x4')):
                    self.wide_store = True
                    self.data = R[0] if mn.startswith('buffer_') else R[1]
            if self.lds_dma:
                self.r |= {('s', 'm0')}
        elif self.salu:
            if mn.startswith('s_cmp') or mn.startswith('s_cbranch') or mn in ('s_nop', 's_waitcnt', 's_barrier', 's_sleep', 's_branch', 's_endpgm', 's_setprio') or mn.startswith('s_bitcmp'):
                self.r = U(R)
            else:
                self.w = R[0] if R else set()
                self.r = U(R[1:])
                if 'saveexec' in mn:
                    self.w = self.w | {('s', 'exec')}

    def states(self):
        if self.label or self.directive or self.empty:
            return 0
        if self.mn == 's_nop':
            return int(self.text.split(';')[0].split()[1], 0) + 1
        return 1


def vec(s):
    return {x for x in s if x[0] in 'va'}


def sca(s):
    return {x for x in s if x[0] == 's'}


def need(p, c):
    n = 0
    if p.valu:
        vw = vec(p.w)
        sw = sca(p.w)
        if vw & c.r:
            if c.mfma:
                n = max(n, 3 if p.dot else 2)
            if c.valu and (c.dpp or c.perml):
                n = max(n, 2)
            if c.rdlane:
                n = max(n, 1)
            if p.trans and (c.valu or c.vmem or c.ds):
                n = max(n, 1)
        if p.dot and (vw & (c.r | c.w)):
            if not (c.valu and c.dot and c.mn == p.mn and c.w == p.w and not (vw & (c.r - c.w))):
                n = max(n, 3)
        if sw & c.r:
            if c.vmem:
                n = max(n, 5)
            if c.valu:
                n = max(n, 4 if c.mn.startswith('v_readlane') or c.mn.startswith('v_writelane') else 2)
            if c.salu:
                n = max(n, 1)
        if ('s', 'exec') in sw:
            if c.mfma or c.rdlane or (c.valu and c.perml):
                n = max(n, 4)
            if c.valu and c.dpp:
                n = max(n, 5)
    if p.mfma and p.mn.endswith('x4_f32'):
        if p.w & (c.r | c.w) and not (c.mn == p.mn and c.w == p.w):
            n = max(n, 10)
    elif p.mfma:
        if c.mfma:
            if p.w & c.ab:
                n = max(n, 8)
            if p.w & c.srcc and p.w != c.srcc:
                n = max(n, 6)
            if p.w & c.srcc and (p.mn != c.mn):
                n = max(n, 6)
            if p.w & c.w and not (p.w & c.srcc):
                n = max(n, 6)
        elif (c.valu or c.vmem or c.ds) and (p.w & (c.r | c.w)):
            n = max(n, 8)
        if c.valu and (p.srcc & c.w):
            n = max(n, 3)
    if p.salu and ('s', 'm0') in p.w and c.vmem and c.lds_dma:
        n = max(n, 1)
    if p.vmem and p.wide_store and (p.data & c.w):
        n = max(n, 2)
    return n


class Asm:
    def __init__(self):
        self.ins = []
        self.tail = []
        self.region = ()
        self.nreg = 0
        self.vmq = []
        self.dsq = []
        self.uid = 0
        self.cold = False

    def e(self, text):
        for line in text.split('\n'):
            line = line.strip()
            if line == '':
                continue
            i = Ins(line, self.region)
            self.ins.append(i)
            if not (i.label or i.directive or i.empty):
                if i.vmem:
                    self.vmq.append([None, self.region])
                if i.ds:
                    self.dsq.append([None, self.region])
                if i.mn == 's_waitcnt' and self.region == ():
                    m = re.search(r'vmcnt\((\d+)\)', line)
                    if m and int(m.group(1)) == 0:
                        self.vmq = []
                    m = re.search(r'lgkmcnt\((\d+)\)', line)
                    if m and int(m.group(1)) == 0:
                        self.dsq = []

    def tag_vm(self, tag):
        self.vmq[-1][0] = tag

    def tag_ds(self, tag):
        self.dsq[-1][0] = tag

    def _cnt(self, q, tag):
        idx = [k for k, x in enumerate(q) if x[0] == tag]
        if not idx:
            return None
        k = idx[-1]
        cur = self.region
        n = 0
        for x in q[k + 1:]:
            if x[1] == cur[:len(x[1])]:
                n += 1
        return n

    def wait(self, vm=None, ds=None):
        parts = []
        if vm is not None:
            n = self._cnt(self.vmq, vm)
            if n is not None:
                parts.append(f'vmcnt({min(n, 62)})')
        if ds is not None:
            n = self._cnt(self.dsq, ds)
            if n is not None:
                parts.append(f'lgkmcnt({min(n, 14)})')
        if parts:
            self.e('s_waitcnt ' + ' '.join(parts))

    def begin_skip(self):
        self.nreg += 1
        self.region = self.region + (self.nreg,)

    def end_skip(self):
        self.region = self.region[:-1]

    def lab(self, base):
        self.uid += 1
        return f'L_{base}_{self.uid}'

    def ool(self, text):
        self.tail.append(('#cold' if self.cold else '') + text)

    def finish(self):
        out = []
        nops = 0
        for c in self.ins:
            if not (c.label or c.directive or c.empty):
                always = 0
                req = 0
                between = []
                for p in reversed(out):
                    if always >= 12:
                        break
                    if p.label or p.directive or p.empty:
                        continue
                    n = need(p, c)
                    if n > 0:
                        dist = sum(q.states() for q in between
                                   if q.region == c.region[:len(q.region)] or q.region == p.region[:len(q.region)])
                        req = max(req, n - dist)
                    between.append(p)
                    if p.region == c.region[:len(p.region)]:
                        always += p.states()
                nops += max(req, 0)
                while req > 0:
                    if req >= 5 and WARM_PADS:
                        out.append(Ins('s_nop 2', c.region))
                        out.append(Ins('v_mov_b32 v0, v0', c.region))
                        req -= 4
                    else:
                        out.append(Ins(f's_nop {req - 1}', c.region))
                        req = 0
            out.append(c)
        txt = ''
        for i in out:
            txt += (i.text if (i.label or i.directive) else '    ' + i.text) + '\n'
        isl = 0
        self.tail.sort(key=lambda t: t.startswith('#cold'))
        for t in self.tail:
            if t.startswith('#cold'):
                t = t[5:]
            else:
                txt += f'L_isl_{isl}:\n    s_branch L_isl_{isl + 1}\n'
                isl += 1
            for line in t.split('\n'):
                line = line.strip()
                if line:
                    txt += (line if line.endswith(':') else '    ' + line) + '\n'
        txt += f'L_isl_{isl}:\n    s_branch L_isl_ret\n'
        self.nops = nops
        return txt
```

```python
import sys, math, struct
from asmlib import Asm

NAME = 'interleave_layers__mha_block_cached__compressed_kv_cla__decode'


def f32(x):
    return '0x%08x' % struct.unpack('<I', struct.pack('<f', x))[0]


K1 = 1024
L_X = 128 * K1
L_IT = 56 * K1
L_QA, L_QB, L_OA, L_OB, L_C1ML = 0, 16 * K1, 32 * K1, 40 * K1, 48 * K1
L_STA, L_STB, L_OAL, L_FL = 52 * K1, 52 * K1 + 256, 52 * K1 + 512, 52 * K1 + 640
L_CSA = 112 * K1
GB, G_IT = 0x100000, 384 * K1
G_YA, G_YB, G_QABS, G_C2L, G_C2 = 0, 24 * K1, 48 * K1, 80 * K1, 112 * K1
CB = 0x200000
STAMP = 0x800000
WS_SIZE = 0x1000000
OOB = 0x40000000
CKV = 65536
STG = 131072
ZML = STG + 7168
ZO = STG + 8192 + 7168
ZQ = STG + 2 * 8192 + 7168
K_, V_, CK, DBG, XIN, WQ, WO, BWQ, WUK, WUV, BWO, WS, WSL, WSG, OUT = ['s[%d:%d]' % (4 + 4 * i, 7 + 4 * i) for i in range(15)]
(sX, sJ, sV, sLOC, sW8, sKV, sKG, sIT, sPOLL, sM, sRES, sST, sH, sS,
 t0, t1, t2, t3, t4, t5) = ['s%d' % i for i in range(64, 84)]
MY = 's[84:85]'
(oY, oQA, oQB, oST, oQgA, oSTgA, oWQ, oWO, oWUK, oWUV, oYpub) = ['s%d' % i for i in range(86, 97)]
(oQgB, oSTgB, oQApub, oQAg, oC1pub, oMLpub, oC1g, oMLg, oC2pub, oC2Lpub, oC2g, oC2Lg,
 oOBpub, oOApub, oOALpub, oOALg, oRES, oO) = ['s%d' % i for i in range(4, 22)]
vT, vA, vL16 = 'v2', 'v3', 'v6'
TBL = [0, 8, 9, 1]
DPPI = 'quad_perm:[0,1,2,3]'
FULL = 'row_mask:0xf bank_mask:0xf'
QSCALE = math.log2(math.e) / math.sqrt(128.0)


def vr(a, n):
    return f'v[{a}:{a + n - 1}]' if n > 1 else f'v{a}'


class Gen:
    def __init__(self, opt):
        self.o = opt
        self.a = Asm()
        self.nst = 0
        self.stnames = []
        self.mode = None

    def stamp(self, name, level=1):
        if self.o.get('stamps', 0) < level or self.mode == 'slow':
            return
        if self.o.get('only') and name not in self.o['only'] and name != 'end':
            return
        a = self.a
        self.nst += 1
        self.stnames.append(name)
        a.e(f's_mov_b32 m0, {sST}')
        a.e(f's_pack_ll_b32_b16 s98, s98, {sPOLL}')
        a.e('v_writelane_b32 v7, s98, m0')
        a.e(f's_mov_b32 {sST}, {self.nst}')
        a.e(f's_bitset1_b32 {sST}, s97')
        a.e('s_memtime s[98:99]' if self.o.get('clk') else 's_memrealtime s[98:99]')

    def K(self, n, key=None, force=False):
        if key is not None:
            n = self.o.get('K', {}).get(key, n)
        if not self.o.get('warm', 1) and not force:
            return
        for i in range(n):
            self.a.e('v_mov_b32 v0, v0')
            self.a.e('s_nop 2')

    def H(self, key, n, junk):
        n = self.o.get('H', {}).get(key, n if self.o.get('heat', 1) else 0)
        for i in range(n):
            self.a.e(f'v_mfma_f32_16x16x4_f32 {vr(junk, 4)}, v0, v0, 0')

    def Wm(self):
        if self.o.get('warm', 1):
            self.a.e('v_mov_b32 v0, v0')

    def bar(self, n=2, vm=False):
        self.K(n)
        self.Wm()
        self.a.e('s_waitcnt vmcnt(0) lgkmcnt(0)' if vm else 's_waitcnt lgkmcnt(0)')
        self.Wm()
        self.a.e('s_barrier')
        self.Wm()

    def retry_to(self, top):
        a = self.a
        done, retry = a.lab('got'), a.lab('retry')
        a.e(f's_cbranch_vccnz {retry}')
        a.e(f'{done}:')
        a.ool(f'{retry}:\ns_cselect_b32 s3, 1, 0\ns_add_u32 {sPOLL}, {sPOLL}, 1\ns_cmp_gt_u32 {sPOLL}, 100000\ns_nop 1\ns_cbranch_scc0 {top}\n'
              f's_cmp_eq_u32 s3, 1\ns_branch {done}')

    def ool_if(self, cond, fn, els=None):
        a = self.a
        go, back = a.lab('go'), a.lab('back')
        a.e(cond)
        a.e(f's_cbranch_scc1 {go}')
        if els:
            a.begin_skip()
            els()
            a.end_skip()
        a.e(f'{back}:')
        sub = Asm()
        sub.uid = a.uid + 1000 * (1 + len(a.tail))
        self.a = sub
        sub.e(f'{go}:')
        sub.e('s_nop 1')
        fn()
        sub.e('s_nop 1')
        sub.e(f's_branch {back}')
        self.a = a
        tail, sub.tail = sub.tail, []
        body = sub.finish().split('\n')
        body = [x.strip() for x in body[:[i for i, x in enumerate(body) if x.startswith('L_isl_0')][0]] if x.strip()]
        for k in range(0, len(body), 14):
            part = body[k:k + 14]
            if k + 14 < len(body):
                nxt = a.lab('p')
                part.append(f's_branch {nxt}')
                body[k + 14] = f'{nxt}:\n' + body[k + 14]
            a.ool('\n'.join(part))
        for t in tail:
            a.ool(t)

    def lstore(self, lines):
        a = self.a
        if self.mode is not None:
            for l in lines:
                a.e(l + ' sc1' if self.mode == 'slow' and l.startswith('buffer_') else l)
            return
        slow, back = a.lab('slow'), a.lab('back')
        a.e(f's_cbranch_scc1 {slow}')
        for l in lines:
            a.e(l)
        a.e(f'{back}:')
        a.ool('#cold' + f'{slow}:\ns_nop 7\n' + '\n'.join(l + ' sc1' if l.startswith('buffer_') else l for l in lines) + f'\ns_branch {back}')

    def lcmp(self):
        if self.mode is None:
            self.a.e(f's_cmp_eq_u32 {sLOC}, 0')

    def poll_begin(self):
        a = self.a
        self.ptop, self.pretry, self.pdone = a.lab('poll'), a.lab('retry'), a.lab('got')
        a.e(f'{self.ptop}:')

    def poll_end(self, vmax):
        a = self.a
        a.e(f'v_cmp_eq_u32 vcc, -1, {vmax}')
        a.e(f's_cbranch_vccnz {self.pretry}')
        a.e(f'{self.pdone}:')
        a.ool(f'{self.pretry}:\ns_add_u32 {sPOLL}, {sPOLL}, 1\ns_cmp_gt_u32 {sPOLL}, 100000\ns_cbranch_scc1 {self.pdone}\ns_nop 7\ns_branch {self.ptop}')

    def poll_cmp(self, vmax):
        self.a.e(f'v_cmp_eq_u32 vcc, -1, {vmax}')

    def poll_br(self, last=True):
        a = self.a
        done = a.lab('got')
        retry = a.lab('retry')
        a.e(f's_cbranch_vccnz {retry}')
        a.e(f'{done}:')
        a.ool(f'{retry}:\ns_cselect_b32 s3, 1, 0\ns_add_u32 {sPOLL}, {sPOLL}, 1\ns_cmp_gt_u32 {sPOLL}, 100000\ns_cbranch_scc0 {self.ptop}\n'
              f's_cmp_eq_u32 s3, 1\ns_branch {done}')

    def pipe_poll(self, ld, vmax, regs, key, mid=()):
        a = self.a
        n = sum(x.startswith('buffer') for x in ld)
        if self.o.get('pipe', {}).get(key, 1):
            self.poll_begin()
            for x in ld:
                self.H(key + '0', 0, 40)
                a.e(x)
            self.H(key + '1', 0, 40)
            a.e(f's_waitcnt vmcnt({n})')
            self.maxchain(vmax, regs, True)
            self.poll_cmp(vmax)
            for x in mid:
                a.e(x)
            self.poll_br()
        else:
            a.e('s_waitcnt vmcnt(0)')
            self.late_check(vmax, regs, ld)

    def late_check(self, vmax, regs, reissue):
        a = self.a
        chk, retry, done = a.lab('chk'), a.lab('retry'), a.lab('done')
        a.e(f'{chk}:')
        self.maxchain(vmax, regs, True)
        a.e(f'v_cmp_eq_u32 vcc, -1, {vmax}')
        a.e(f's_cbranch_vccnz {retry}')
        a.e(f'{done}:')
        a.ool(f'{retry}:\ns_add_u32 {sPOLL}, {sPOLL}, 1\ns_cmp_gt_u32 {sPOLL}, 100000\ns_cbranch_scc1 {done}\n'
              + '\n'.join(reissue) + f'\ns_waitcnt vmcnt(0)\ns_branch {chk}')

    def maxchain(self, vmax, regs, first):
        a = self.a
        regs = list(regs)
        if first:
            if len(regs) >= 3:
                a.e(f'v_max3_u32 {vmax}, v{regs[0]}, v{regs[1]}, v{regs[2]}')
                regs = regs[3:]
            elif len(regs) == 2:
                a.e(f'v_max_u32 {vmax}, v{regs[0]}, v{regs[1]}')
                regs = []
            else:
                a.e(f'v_mov_b32 {vmax}, v{regs[0]}')
                regs = []
        while len(regs) >= 2:
            a.e(f'v_max3_u32 {vmax}, {vmax}, v{regs[0]}, v{regs[1]}')
            regs = regs[2:]
        if regs:
            a.e(f'v_max_u32 {vmax}, {vmax}, v{regs[0]}')

    def sleep(self, key):
        n = self.o.get('sleep', {}).get(key, 0)
        if n:
            self.a.e(f's_sleep {n}')

    def wave_only(self, w):
        a = self.a
        l = a.lab('notw')
        a.e(f's_cmp_lg_u32 {sV}, {w}')
        a.e(f's_cbranch_scc1 {l}')
        a.begin_skip()
        return l

    def end_only(self, lab):
        self.a.end_skip()
        self.a.e(f'{lab}:')

    def pos_bytes(self, dst, tmp):
        a = self.a
        a.e(f'v_lshlrev_b32 {dst}, 3, v0')
        a.e(f'v_and_b32 {dst}, 16, {dst}')
        a.e(f'v_and_or_b32 {dst}, v0, 12, {dst}')

    def sp_addr(self, dst, base):
        a = self.a
        a.e(f'v_and_b32 {dst}, 48, v0')
        a.e(f'v_lshlrev_b32 {dst}, 1, {dst}')
        a.e(f'v_and_or_b32 {dst}, {vL16}, 16, {dst}')
        if base:
            a.e(f'v_add_u32 {dst}, {base}, {dst}')

    def sums(self, dst, terms, const=0):
        a = self.a
        first = True
        for reg, mul in terms:
            d = dst if first else t0
            if mul & (mul - 1) == 0:
                a.e(f's_lshl_b32 {d}, {reg}, {mul.bit_length() - 1}')
            else:
                a.e(f's_mul_i32 {d}, {reg}, {mul}')
            if not first:
                a.e(f's_add_u32 {dst}, {dst}, {t0}')
            first = False
        if const:
            a.e(f's_add_u32 {dst}, {dst}, {const}')

    def k64_addr(self, vt, vu):
        a = self.a
        a.e(f'v_lshrrev_b32 {vt}, 2, v0')
        a.e(f'v_lshlrev_b32 {vt}, 13, {vt}')
        a.e(f'v_and_or_b32 {vt}, {vL16}, 48, {vt}')

    def wq_prep(self, vt, vu):
        a = self.a
        a.e(f'v_lshrrev_b32 {vu}, 4, v0')
        a.e(f'v_lshlrev_b32 {vt}, 5, {vu}')
        a.e(f'v_xor_b32 {vt}, {vt}, {vL16}')
        a.e(f'v_and_b32 {vt}, 0xf0, {vt}')
        a.e(f'v_lshl_or_b32 {vt}, {vu}, 13, {vt}')
        a.e(f'v_xor_b32 {vu}, 0x80, {vt}')

    def wq_issue(self, srd, vt, vu, parts, pol=''):
        a = self.a
        for i in parts:
            if i == parts[0] or i == 3:
                a.e(f's_add_u32 m0, {sW8}, {(i // 3) * 3072}')
            a.e(f's_add_u32 {t1}, {oWQ}, {i * 4 * 8192 - (i % 3) * 1024}')
            a.e(f'buffer_load_dwordx4 {vu if (i >> 1) & 1 else vt}, {srd}, {t1} offen offset:{(i % 3) * 1024} {pol} lds')
        a.tag_vm('wq')

    def dma_wq(self, srd, vt, vu, pol=''):
        self.wq_prep(vt, vu)
        self.wq_issue(srd, vt, vu, list(range(6)), pol)

    def dma_wuv(self, vt):
        a = self.a
        pol = self.o.get('pol_w', '')
        self.k64_addr(vt, None)
        for i in range(4):
            a.e(f's_add_u32 m0, {sW8}, {i * 1024}')
            a.e(f's_add_u32 {t1}, {oWUV}, {i * 16 * 8192}')
            a.e(f'buffer_load_dwordx4 {vt}, {WUV}, {t1} offen {pol} lds')
        a.tag_vm('wuv')

    def wuk_prep(self, vt, vu):
        a = self.a
        a.e(f'v_lshrrev_b32 {vu}, 4, v0')
        a.e(f'v_lshlrev_b32 {vt}, 5, {vu}')
        a.e(f'v_xor_b32 {vt}, {vt}, {vL16}')
        a.e(f'v_and_b32 {vt}, 0xf0, {vt}')
        a.e(f'v_lshl_or_b32 {vt}, {vu}, 13, {vt}')

    def wuk_issue(self, vt, vu):
        a = self.a
        pol = self.o.get('pol_w', '')
        a.e(f's_mov_b32 m0, {sW8}')
        for q in range(4):
            a.e(f's_add_u32 {t1}, {oWUK}, {q * (4 * 8192 - 1024)}')
            if q:
                a.e(f'v_xor_b32 {vu}, {TBL[q] << 4}, {vt}')
            a.e(f'buffer_load_dwordx4 {vu if q else vt}, {WUK}, {t1} offen offset:{q * 1024} {pol} lds')
        a.tag_vm('wuk')

    def wo_prep(self, R, tmp):
        a = self.a
        for i in range(3):
            a.e(f'v_add_u32 v{R + i}, {64 * i}, v0')
            a.e(f'v_mul_u32_u24 {tmp}, 21846, v{R + i}')
            a.e(f'v_lshrrev_b32 {tmp}, 16, {tmp}')
            a.e(f'v_mul_u32_u24 {tmp}, {1152 - 48}, {tmp}')
            a.e(f'v_lshl_add_u32 v{R + i}, v0, 4, {tmp}')
        a.e(f's_add_u32 {t5}, {oWO}, {64 * 1152}')

    def wo_lines(self, srd, R, pol='', base=sW8):
        out = []
        for h in range(2):
            out.append(f's_add_u32 m0, {base}, {h * 3072}')
            for i in range(3):
                out.append(f'buffer_load_dwordx4 v{R + i}, {srd}, {t5 if h else oWO} offen offset:{i * 1024} {pol} lds')
        return out

    def wo_group(self, srd, R, lo, hi):
        out = []
        for k in range(lo, hi):
            h, i = divmod(k, 3)
            if k == lo or i == 0:
                out.append(f's_add_u32 m0, {sW8}, {h * 3072}')
            out.append(f'buffer_load_dwordx4 v{R + i}, {srd}, {t5 if h else oWO} offen offset:{i * 1024} lds')
        return out

    def dma_wo(self, srd, R, tmp):
        self.wo_prep(R, tmp)
        for x in self.wo_lines(srd, R, self.o.get('pol_wo1', '')):
            self.a.e(x)
        self.a.tag_vm('wo')

    def touch(self, what, vt, vd):
        a = self.a
        half = None
        if what[-1] in '01' and what != 'c1':
            what, half = what[:-1], int(what[-1])
        if what in ('wq', 'bwq', 'wuv', 'wuk'):
            srd = {'wq': WQ, 'bwq': BWQ, 'wuv': WUV, 'wuk': WUK}[what]
            a.e(f'v_lshrrev_b32 {vt}, 3, v0')
            a.e(f'v_lshlrev_b32 {vt}, 6, {vt}')
            a.e(f'v_and_or_b32 {vt}, v0, 7, {vt}')
            a.e(f'v_lshlrev_b32 {vt}, 7, {vt}')
            rows = 5 if what in ('wq', 'bwq') else 4
            self.sums(t1, [(sJ, 4 * rows * 8192), (sV, rows * 8192), (sX, 1024)])
            n = 8 * rows
        elif what == 'c1':
            srd = WS
            a.e(f'v_lshlrev_b32 {vt}, 7, v0')
            self.sums(t1, [(sX, 1 << 19), (sJ, 16384), (sV, 4096)], CB)
            n = 32
        else:
            srd = {'wo': WO, 'bwo': BWO}[what]
            a.e(f'v_lshlrev_b32 {vt}, 7, v0')
            self.sums(t1, [(sX, 512 * 1152), (sJ, 18432), (sV, 4608)])
            n = 36
        m = (1 << n) - 1
        if half == 0:
            m = (1 << (n // 2)) - 1
        elif half == 1:
            m ^= (1 << (n // 2)) - 1
        a.e(f's_mov_b32 exec_lo, {m & 0xffffffff}')
        a.e(f's_mov_b32 exec_hi, {m >> 32}')
        if vd is None:
            a.e(f's_add_u32 m0, {sW8}, 1024')
            a.e(f'buffer_load_dword {vt}, {srd}, {t1} offen lds')
        else:
            a.e(f'buffer_load_dword {vd}, {vt}, {srd}, {t1} offen')
        a.e('s_mov_b64 exec, -1')

    def touches(self, where, vt, vd):
        for w in self.o.get('touch', {}).get(where, []):
            self.touch(w, vt, vd)

    def lnq_addr(self):
        a = self.a
        a.e('v_lshrrev_b32 v52, 4, v0')
        a.e('v_cmp_gt_u32 vcc, 3, v52')
        a.e('v_bfe_u32 v53, v0, 2, 2')
        a.e('v_cndmask_b32 v52, 0, v52, vcc')
        a.e('v_and_b32 v54, 1, v52')
        a.e('v_lshl_add_u32 v54, v54, 2, v53')
        a.e('v_lshl_add_u32 v52, v52, 3, v53')
        a.e('v_and_b32 v53, 3, v0')
        a.e('v_lshl_or_b32 v53, v54, 2, v53')
        a.e('v_lshlrev_b32 v53, 3, v53')
        a.e('v_lshl_or_b32 v52, v52, 8, v53')
        a.e(f's_lshl_b32 {t0}, {sV}, 6')
        a.e(f's_add_u32 {t0}, {t0}, {STG}')
        a.e(f'v_xor_b32 v52, {t0}, v52')
        a.e('v_xor_b32 v54, 32, v52')

    def lnq_prep(self):
        a = self.a
        a.wait(vm='wq')
        a.e('s_barrier')
        for rho in range(3):
            for tau in range(2):
                for half in range(2):
                    a.e(f'ds_read_b64_tr_b16 {vr(28 + 8 * rho + 4 * tau + 2 * half, 2)}, v{52 + 2 * tau} offset:{8192 * rho + 1024 * half}')
        a.e('s_waitcnt lgkmcnt(0)')
        a.e('s_barrier')

    def lnq_rows(self):
        a = self.a
        a.e('v_mov_b32 v53, 0x3f803f80')
        a.e(f's_lshl_b64 s[82:83], {MY}, 8')
        a.e('v_cndmask_b32 v16, 0, v53, s[82:83]')
        a.e('v_mov_b32 v17, v16')
        for r in range(18, 28, 2):
            a.e(f'v_mov_b64 {vr(r, 2)}, v[16:17]')

    def lnq_mfma(self, rho):
        a = self.a
        A = vr(16 + 4 * rho, 4)
        c = (lambda r: '0') if rho == 0 else (lambda r: r)
        return [f'v_mfma_f32_16x16x32_bf16 v[60:63], {A}, {A}, {c("v[60:63]")}',
                f'v_mfma_f32_16x16x32_bf16 v[52:55], {A}, {vr(28 + 8 * rho, 4)}, {c("v[52:55]")}',
                f'v_mfma_f32_16x16x32_bf16 v[56:59], {A}, {vr(32 + 8 * rho, 4)}, {c("v[56:59]")}']

    def lnq_reduce(self, isb, chk=False):
        a = self.a
        a.e('v_pk_add_f32 v[60:61], v[60:61], v[62:63]')
        a.e('v_add_f32 v60, v60, v61')
        if chk:
            a.e('v_cmp_u_f32 vcc, v60, v60')
        a.e('v_pk_add_f32 v[52:53], v[52:53], v[54:55]')
        a.e('v_mov_b32 v61, v60')
        a.e('v_pk_add_f32 v[56:57], v[56:57], v[58:59]')
        a.e('v_add_f32 v52, v52, v53')
        a.e('v_permlane16_swap_b32 v60, v61')
        a.e('v_add_f32 v56, v56, v57')
        a.e('v_add_f32 v60, v60, v61')
        a.e('v_permlane16_swap_b32 v52, v56')
        a.e(f'v_add_f32_dpp v60, v60, v60 quad_perm:[1,0,3,2] {FULL}')
        a.e('v_add_f32 v52, v52, v56')
        self.lcmp()
        a.e(f'v_add_f32_dpp v60, v60, v60 quad_perm:[2,3,0,1] {FULL}')
        if isb:
            a.e(f'v_mov_b32_dpp v53, v52 quad_perm:[1,0,3,2] {FULL}')
            a.e('v_cvt_pk_bf16_f32 v52, v52, v53')
        a.e(f'v_add_f32_dpp v60, v60, v60 row_half_mirror {FULL}')

    def lnq_pubaddr(self, isb, first):
        a = self.a
        if isb:
            self.pos_bytes('v14', None)
            a.e('v_and_b32 v15, 16, v0')
            a.e('v_lshl_or_b32 v14, v15, 4, v14')
            a.e('v_and_b32 v15, 32, v0')
            a.e('v_lshl_or_b32 v14, v15, 6, v14')
        else:
            a.e('v_and_b32 v14, 31, v0')
            a.e('v_lshlrev_b32 v14, 2, v14')
            if first:
                a.e('v_lshrrev_b32 v15, 5, v0')
                a.e(f'v_mul_u32_u24 v15, {L_CSA - L_QA}, v15')
                a.e('v_add_u32 v14, v14, v15')
        a.e('v_lshrrev_b32 v15, 1, v0')

    def lnq_publish(self, isb, first, q='v52', st='v60', qa='v14', sa='v15'):
        lines = []
        if isb:
            lines += ['s_mov_b32 exec_lo, 0x55555555', 's_mov_b32 exec_hi, 0x55555555']
        elif not first:
            lines += ['s_mov_b32 exec_hi, 0']
        lines += [f'buffer_store_dword {q}, {qa}, {WSL}, {oQB if isb else oQA} offen',
                  's_mov_b64 exec, 0x101',
                  f'buffer_store_dword {st}, {sa}, {WSL}, {oST} offen offset:{256 if isb else 0}',
                  's_mov_b64 exec, -1']
        self.lstore(lines)

    def lnq_tail(self, goff, isb):
        a = self.a
        if self.o.get('ybar', 1):
            a.e('s_barrier')
        self.lnq_rows()
        a.e('v_lshrrev_b32 v12, 2, v0')
        a.e('v_mul_u32_u24 v12, 3072, v12')
        a.e(f'v_and_or_b32 v12, {vL16}, 48, v12')
        a.e(f's_lshl_b32 {t4}, {sV}, 7')
        a.e(f's_add_u32 {t4}, {t4}, {oY}')
        a.e(f's_add_u32 {t4}, {t4}, {goff}')
        a.e(f's_add_u32 {t5}, {sW8}, 6144')
        l = a.lab('now')
        a.e(f's_cmp_eq_u32 {sV}, 3')
        a.e(f's_cselect_b32 {t4}, {OOB}, {t4}')
        a.e(f's_cbranch_scc1 {l}')
        a.begin_skip()
        self.dma_wq(BWQ if isb else WQ, 'v8', 'v9', '' if isb else self.o.get('pol_wq3', ''))
        self.end_only(l)
        if not self.o.get('ybar', 1):
            a.e('s_barrier')
        self.lnq_addr()
        self.lnq_pubaddr(isb, False)
        a.e('v_and_b32 v11, 7, v0')
        a.e('v_lshlrev_b32 v11, 6, v11')
        a.e('v_and_or_b32 v11, v0, 48, v11')
        a.e(f'v_add_u32 v11, {STG + 6144}, v11')
        a.e('v_mov_b32 v13, 0')
        if isb:
            self.wuk_prep('v8', 'v9')
            a.e(f's_cmp_eq_u32 {sV}, 1')
            a.e(f's_cselect_b32 {t3}, {oOALpub}, {OOB}')
        else:
            for r in range(56, 60):
                a.e(f'v_mov_b32 v{r}, -1')
        if isb and self.o.get('c1_late', 1) == 1:
            go, back = a.lab('clr'), a.lab('clrback')
            a.e(f's_cmp_eq_u32 {sIT}, 0')
            a.e(f's_cbranch_scc1 {go}')
            self.sleep('h2a')
            a.e(f'{back}:')
            fl = ' sc1' if self.mode == 'slow' else ''
            n0 = self.o.get('sleep', {}).get('h2c', 0)
            a.ool(f'{go}:\n' + '\n'.join(f'v_mov_b32 v{r}, -1' for r in range(56, 60)) + '\n'
                  + '\n'.join(f'buffer_store_dwordx4 v[56:59], {vL16}, {WS}, {oC1g} offen offset:{i * 1024}{fl}' for i in range(4))
                  + (f'\ns_sleep {n0}' if n0 else '\ns_nop 1') + f'\ns_branch {back}')
        else:
            self.sleep('h2a' if isb else 'h2b')
        ld = [f's_mov_b32 m0, {t5}', 's_mov_b64 exec, 0x77777777',
              f'buffer_load_dword v13, v12, {WSG}, {t4} offen sc1',
              f'buffer_load_dwordx4 v12, {WSG}, {t4} offen sc1 lds',
              's_mov_b64 exec, -1']
        for i, x in enumerate(ld):
            a.e(x)
            if i in (2, 3):
                a.tag_vm(f'y{i}')
        self.touches('w1b' if isb else 'w1c', 'v60', 'v10')
        self.lnq_prep()
        self.stamp('wqrdy', 2)
        if isb:
            self.wuk_issue('v8', 'v9')
        else:
            self.lcmp()
            self.lstore([f'buffer_store_dwordx4 v[56:59], {vL16}, {WS}, {oC1g} offen offset:{i * 1024}' for i in range(4)])
        chk, again = a.lab('chk'), a.lab('again')
        a.wait(vm='y2')
        a.e(f'{chk}:')
        a.e('v_cmp_eq_u32 vcc, -1, v13')
        a.wait(vm='y3')
        self.retry_to(again)
        a.ool(f'{again}:\n' + '\n'.join(ld) + f'\ns_waitcnt vmcnt(0)\ns_branch {chk}')
        a.e(f's_mov_b64 exec, {MY}')
        a.e('s_barrier')
        for rho in range(3):
            a.e(f'ds_read_b128 {vr(16 + 4 * rho, 4)}, v11 offset:{8192 * rho}')
            a.tag_ds(f'a{rho}')
        fl = isb and self.o.get('qflag', 1)
        if fl:
            self.lstore([f'buffer_store_dword v0, off, {WSL}, {t3} offset:{L_FL - L_OAL}'])
        a.e('s_mov_b64 exec, -1')
        self.stamp('h2got', 2)
        if fl:
            a.e('v_and_b32 v9, 7, v0')
            a.e('v_lshlrev_b32 v9, 2, v9')
        self.H('l1', 0, 56)
        mm = [self.lnq_mfma(rho) for rho in range(3)]
        for rho in range(3):
            a.wait(ds=f'a{rho}')
            a.e(mm[rho][0])
        g = ['v_pk_add_f32 v[60:61], v[60:61], v[62:63]', 'v_add_f32 v62, v60, v61', 'v_add_f32 v60, v60, v61', 'v_cmp_u_f32 vcc, v62, v62',
             'v_permlane16_swap_b32 v60, v62', 'v_add_f32 v60, v60, v62',
             f'v_add_f32_dpp v60, v60, v60 quad_perm:[1,0,3,2] {FULL}', f'v_add_f32_dpp v60, v60, v60 quad_perm:[2,3,0,1] {FULL}',
             f'v_add_f32_dpp v60, v60, v60 row_half_mirror {FULL}']
        a.e(mm[0][1]); a.e('s_nop 1')
        a.e(mm[1][1]); a.e('s_nop 1')
        a.e(mm[2][1]); a.e('s_nop 0'); a.e(g[0])
        a.e(mm[0][2]); a.e(g[1]); a.e(g[2])
        a.e(mm[1][2]); a.e(g[3]); a.e(g[4])
        a.e(mm[2][2]); a.e(g[5])
        a.e('v_pk_add_f32 v[52:53], v[52:53], v[54:55]')
        a.e('v_add_f32 v52, v52, v53')
        a.e(g[6])
        a.e(g[7])
        a.e('v_pk_add_f32 v[56:57], v[56:57], v[58:59]')
        a.e('v_add_f32 v56, v56, v57')
        a.e(g[8])
        again2 = a.lab('again')
        self.retry_to(again2)
        a.e('v_permlane16_swap_b32 v52, v56')
        a.e('v_add_f32 v52, v52, v56')
        if isb:
            a.e(f'v_mov_b32_dpp v53, v52 quad_perm:[1,0,3,2] {FULL}')
            a.e('v_cvt_pk_bf16_f32 v52, v52, v53')
        a.ool(f'{again2}:\ns_barrier\ns_branch {again}')
        if fl == 1:
            a.e(f'buffer_load_dword v10, v9, {WSL}, {oOALg} offen offset:{L_FL - L_OAL} sc1')
            a.tag_vm('fl')
        self.lnq_publish(isb, False)
        if fl == 2:
            a.e(f'buffer_load_dword v10, v9, {WSL}, {oOALg} offen offset:{L_FL - L_OAL} sc1')
            a.tag_vm('fl')
        self.stamp('qpub')

    def c1_addr(self, dst, tmp):
        a = self.a
        a.e(f'v_lshrrev_b32 {tmp}, 4, v0')
        a.e(f'v_and_b32 {dst}, 0xf0, {vL16}')
        a.e(f'v_lshl_or_b32 {dst}, {tmp}, 12, {dst}')

    def stats(self, S):
        out = []
        for c in (4, 2, 1):
            out.append(f'v_add_f32_dpp v{S + 1}, v{S + 1}, v{S + 1} row_ror:{c} {FULL}')
            out.append(f'v_add_f32_dpp v{S}, v{S}, v{S} row_ror:{c} {FULL}')
        out.append(f'v_mul_f32 v{S + 1}, {f32(1.0 / (8 * 576))}, v{S + 1}')
        out.append(f'v_mul_f32 v{S}, {f32(1.0 / 576)}, v{S}')
        out.append(f'v_fma_f32 v{S}, -v{S + 1}, v{S + 1}, v{S}')
        out.append(f'v_max_f32 v{S}, 0, v{S}')
        out.append(f'v_add_f32 v{S}, {f32(1e-5)}, v{S}')
        out.append(f'v_rsq_f32 v{S}, v{S}')
        out.append(f'v_mul_f32 v{S + 1}, 0x3e000000, v{S + 1}')
        out.append(f'v_mul_f32 v{S}, {f32(QSCALE)}, v{S}')
        return out

    def mix(self, x, y):
        x, y = list(x), list(y)
        while x or y:
            if x:
                self.a.e(x.pop(0))
            if y:
                self.a.e(y.pop(0))

    def resid(self, goff, base, va, final):
        a = self.a
        a.e(f'v_lshlrev_b32 {va}, 2, v0')
        a.e(f's_add_u32 {t2}, {oRES}, {goff}')
        a.e('s_mov_b64 exec, 0xfff')
        if final:
            self.sleep('fin')
        self.poll_begin()
        for i in range(8):
            if i & 1 == 0:
                a.e(f's_add_u32 {t3}, {t2}, {i * 3072}')
            a.e(f'buffer_load_dword v{base + i}, {va}, {WSG}, {t3} offen offset:{(i & 1) * 3072} sc1')
        a.e(f'v_mov_b32 v{base + 8}, 0x3f80')
        a.e(f'v_mov_b32 v{base + 9}, 0x3f800000')
        a.e('v_mov_b64 v[4:5], 0')
        for i in range(8):
            if i & 1 == 0:
                a.e(f's_waitcnt vmcnt({6 - i})')
            a.e(f'v_dot2c_f32_bf16 v4, v{base + 8}, v{base + i}')
            a.e(f'v_dot2c_f32_bf16 v5, v{base + 9}, v{base + i}')
        a.e('s_nop 2')
        a.e('v_cmp_u_f32 vcc, v4, v5')
        if final:
            a.e('v_cvt_pk_bf16_f32 v9, v4, v5')
            a.e(f's_mul_i32 {t0}, {sJ}, 48')
        self.poll_br()

    def resid_track(self, goff, base, va, cond):
        a = self.a
        go, back = a.lab('res'), a.lab('resback')
        a.e(cond)
        a.e(f's_cbranch_scc1 {go}')
        a.e(f'{back}:')
        sub = Asm()
        sub.uid = a.uid + 1000 * (1 + len(a.tail))
        self.a = sub
        sub.e(f'{go}:')
        sub.e('s_nop 1')
        self.resid(goff, base, va, False)
        sub.e('s_mov_b64 exec, -1')
        sub.e(f's_branch {back}')
        self.a = a
        body = [i.text for i in sub.ins]
        cut = [k for k in range(0, len(body), 14)]
        for k in cut:
            part = body[k:k + 14]
            if k + 14 < len(body):
                nxt = a.lab('resp')
                part.append(f's_branch {nxt}')
                body[k + 14] = f'{nxt}:\n' + body[k + 14]
            a.ool('\n'.join(part))
        for t in sub.tail:
            a.ool(t)

    def qa_addr(self, T):
        a = self.a
        a.e(f'v_and_b32 v{T}, 4, v0')
        a.e(f'v_lshlrev_b32 v{T}, 3, v{T}')
        a.e(f'v_and_b32 v{T + 1}, 3, v0')
        a.e(f'v_lshl_or_b32 v{T}, v{T + 1}, 2, v{T}')
        a.e(f'v_lshrrev_b32 v{T + 1}, 5, v0')
        a.e(f'v_lshl_or_b32 v{T}, v{T + 1}, 4, v{T}')
        a.e(f'v_bfe_u32 v{T + 1}, v0, 4, 1')
        a.e(f'v_lshl_or_b32 v{T}, v{T + 1}, 1, v{T}')
        a.e(f's_lshl_b32 {t0}, {sV}, 6')
        a.e(f's_add_u32 {t0}, {t0}, {ZQ}')
        a.e(f'v_add_u32 v{T}, {t0}, v{T}')
        a.e(f'v_and_b32 v{T + 1}, 7, v0')
        a.e(f'v_lshlrev_b32 v{T + 1}, 3, v{T + 1}')
        self.sp_addr(f'v{T + 2}', ZQ)

    def red8(self, R):
        return [f'v_permlane32_swap_b32 v{R}, v{R + 2}',
                f'v_permlane32_swap_b32 v{R + 1}, v{R + 3}',
                f'v_pk_add_f32 {vr(R, 2)}, {vr(R, 2)}, {vr(R + 2, 2)}',
                f'v_permlane16_swap_b32 v{R}, v{R + 1}',
                f'v_add_f32 v{R}, v{R}, v{R + 1}',
                f'v_add_f32_dpp v{R}, v{R}, v{R} row_ror:8 {FULL}']

    def qa_loads(self, R, S, T):
        return [f'buffer_load_dwordx2 {vr(S, 2)}, v{T + 1}, {WSL}, {oSTgA} offen sc1',
                f'buffer_load_dwordx4 {vr(R, 4)}, {vL16}, {WSL}, {oQgA} offen sc1']

    def qa_finish(self, R, S, T, Q, br=False):
        a = self.a
        self.mix(self.stats(S), self.red8(R) + [f'v_and_b32 v{R + 1}, 0xffff0000, v1'])
        a.e(f'v_fma_f32 v{R}, -v{S + 1}, v{R + 1}, v{R}')
        a.e(f'v_mul_f32 v{R}, v{R}, v{S}')
        a.e(f'v_cvt_pk_bf16_f32 v{R}, v{R}, v{R}')
        a.e(f'ds_write_b16 v{T}, v{R}')
        if br:
            return
        self.bar(2, br)
        a.e(f'ds_read_b128 {vr(Q, 4)}, v{T + 2}')
        a.tag_ds('q0')
        a.e(f'ds_read_b128 {vr(Q + 4, 4)}, v{T + 2} offset:128')
        a.tag_ds('q1')

    def p_addr(self, r, t):
        a = self.a
        a.e(f'v_and_b32 {r}, 0x32, v0')
        a.e(f'v_lshlrev_b32 {r}, 3, {r}')
        a.e(f'v_and_b32 {t}, 8, v0')
        a.e(f'v_lshl_or_b32 {r}, {t}, 2, {r}')
        a.e(f'v_and_b32 {t}, 5, v0')
        a.e(f'v_lshl_or_b32 {r}, {t}, 1, {r}')
        a.e(f'v_add_u32 {r}, {sW8}, {r}')

    def qk_softmax(self, Q, D, S, T, fill=()):
        a = self.a
        for t in range(19):
            if t >= 3:
                d = D + 4 * ((t - 3) & 3)
                a.e(f'v_add_f32_dpp v{S + ((t - 3) & 3)}, v{d}, v{d + 1} {DPPI} row_mask:{1 << ((t - 3) >> 2)} bank_mask:0xf')
            if 4 <= t + 1 < 16:
                a.e(f'v_mov_b64 {vr(D + 4 * ((t + 1) & 3), 2)}, 0')
            if t < 16:
                d = vr(D + 4 * (t & 3), 4)
                if t == 0:
                    a.wait(ds='q0')
                a.e(f'v_smfmac_f32_16x16x64_bf16 {d}, {vr(Q, 4)}, a[{16 * t}:{16 * t + 7}], v1')
                if t == 0:
                    a.wait(ds='q1')
                elif t - 1 < len(fill):
                    for x in fill[t - 1]:
                        a.e(x)
                a.e(f'v_smfmac_f32_16x16x64_bf16 {d}, {vr(Q + 4, 4)}, a[{16 * t + 8}:{16 * t + 15}], v1')
        self.softmax_a(S, T, f'v{T + 1}')

    def softmax_a(self, S, T, pa, fill=()):
        a = self.a
        fill = list(fill)

        def f2():
            for _ in range(2):
                if fill:
                    a.e(fill.pop(0))
        m = f'v{T}'
        a.e(f'v_max3_f32 {m}, v{S}, v{S + 1}, v{S + 2}')
        a.e(f'v_max_f32 {m}, {m}, v{S + 3}')
        for c in ('row_ror:8', 'row_ror:4', 'row_ror:2', 'row_ror:1'):
            f2()
            a.e(f'v_max_f32_dpp {m}, {m}, {m} {c} {FULL}')
        f2()
        a.e(f'v_max_f32_dpp {m}, {m}, {m} row_bcast:15 row_mask:0xa bank_mask:0xf')
        f2()
        a.e(f'v_max_f32_dpp {m}, {m}, {m} row_bcast:31 row_mask:0xc bank_mask:0xf')
        a.e(f'v_readlane_b32 {sM}, {m}, 63')
        f2()
        assert not fill
        for r in range(4):
            a.e(f'v_subrev_f32 v{S + r}, {sM}, v{S + r}')
        for r in range(4):
            a.e(f'v_exp_f32 v{S + r}, v{S + r}')
        a.e(f'v_cvt_pk_bf16_f32 v{T + 2}, v{S}, v{S + 1}')
        a.e(f'v_cvt_pk_bf16_f32 v{T + 3}, v{S + 2}, v{S + 3}')
        a.e(f'ds_write_b16 {pa}, v{T + 2} offset:6144')
        a.e(f'ds_write_b16_d16_hi {pa}, v{T + 2} offset:{6144 + 4}')
        a.e(f'ds_write_b16 {pa}, v{T + 3} offset:{6144 + 64}')
        a.e(f'ds_write_b16_d16_hi {pa}, v{T + 3} offset:{6144 + 68}')

    def lsum(self, l, S):
        out = [f'v_pk_add_f32 {vr(S, 2)}, {vr(S, 2)}, {vr(S + 2, 2)}', f'v_add_f32 {l}, v{S}, v{S + 1}']
        for c in ('row_ror:8', 'row_ror:4', 'row_ror:2', 'row_ror:1'):
            out.append(f'v_add_f32_dpp {l}, {l}, {l} {c} {FULL}')
        out.append(f'v_add_f32_dpp {l}, {l}, {l} row_bcast:15 row_mask:0xa bank_mask:0xf')
        out.append(f'v_add_f32_dpp {l}, {l}, {l} row_bcast:31 row_mask:0xc bank_mask:0xf')
        return out

    def ml_write(self, T):
        return [f's_lshl_b32 {t0}, {sV}, 3', f's_add_u32 {t0}, {t0}, {ZML}', f'v_mov_b32 v{T + 2}, 0x30000', f'v_mov_b32 v{T}, {sM}',
                f'v_writelane_b32 v{T + 2}, {t0}, 63\nds_write_b64 v{T + 2}, {vr(T, 2)}']

    def ml_read(self, R, T):
        return [f'v_mov_b32 v{T}, {ZML}', f'ds_read_b128 {vr(R, 4)}, v{T}', f'ds_read_b128 {vr(R + 4, 4)}, v{T} offset:16']

    def ml_scale(self, R, T, F, LW):
        out = [f'v_max3_f32 v{T}, v{R}, v{R + 2}, v{R + 4}', f'v_max_f32 v{T}, v{T}, v{R + 6}']
        out += [f'v_sub_f32 v{R + 2 * w}, v{R + 2 * w}, v{T}' for w in range(4)]
        out += [f'v_sub_f32 v{F}, {sM}, v{T}']
        out += [f'v_exp_f32 v{R + 2 * w}, v{R + 2 * w}' for w in range(4)]
        out += [f'v_exp_f32 v{F}, v{F}', f'v_mul_f32 v{LW}, v{R}, v{R + 1}']
        out += [f'v_fmac_f32 v{LW}, v{R + 2 * w}, v{R + 2 * w + 1}' for w in range(1, 4)]
        out += [f'v_rcp_f32 v{R}, v{LW}', f'v_log_f32 v{LW}, v{LW}', f'v_mul_f32 v{F}, v{F}, v{R}', f'v_add_f32 v{LW}, v{LW}, v{T}']
        return out

    def combine_publish(self):
        a = self.a
        a.e('ds_write2st64_b32 v46, v44, v45 offset0:26 offset1:27')
        a.e(f'v_mov_b32 v10, {STG + 6656}')
        a.e('v_lshl_add_u32 v8, v0, 3, v10')
        a.e('v_and_b32 v10, 56, v0')
        a.e('v_lshlrev_b32 v10, 5, v10')
        a.e(f'v_and_or_b32 v10, {vL16}, 16, v10')
        a.e('v_and_b32 v11, 6, v0')
        a.e('v_lshl_or_b32 v10, v11, 1, v10')
        a.e(f's_cmp_lg_u32 {sV}, 0')
        self.H('c1', 0, 12)
        a.e('s_waitcnt lgkmcnt(0)')
        a.e('s_barrier')
        l = a.lab('notw')
        a.e(f's_cbranch_scc1 {l}')
        a.begin_skip()
        for w in range(4):
            a.e(f'ds_read_b64 {vr(20 + 2 * w, 2)}, v8 offset:{w * 8192}')
            a.tag_ds(f'o{w}')
            if w == 0:
                self.H('c2', 0, 12)
        self.lstore(['s_mov_b64 exec, 1', f'buffer_store_dword v47, v10, {WSL}, {oOALpub} offen', 's_mov_b64 exec, -1'])
        a.wait(ds='o1')
        a.e('v_pk_add_f32 v[20:21], v[20:21], v[22:23]')
        a.wait(ds='o3')
        a.e('v_pk_add_f32 v[24:25], v[24:25], v[26:27]')
        a.e('v_pk_add_f32 v[20:21], v[20:21], v[24:25]')
        a.e('v_cvt_pk_bf16_f32 v20, v20, v21')
        self.lstore([f'buffer_store_dword v20, v10, {WSL}, {oOApub} offen'])
        self.end_only(l)

    def w8(self, lw, t):
        return [f'v_max_f32_dpp {t}, {lw}, {lw} row_ror:4 {FULL}',
                f'v_max_f32_dpp {t}, {t}, {t} row_ror:2 {FULL}',
                f'v_max_f32_dpp {t}, {t}, {t} row_ror:1 {FULL}',
                f'v_sub_f32 {lw}, {lw}, {t}',
                f'v_exp_f32 {lw}, {lw}',
                f'v_add_f32_dpp {t}, {lw}, {lw} row_ror:4 {FULL}',
                f'v_add_f32_dpp {t}, {t}, {t} row_ror:2 {FULL}',
                f'v_add_f32_dpp {t}, {t}, {t} row_ror:1 {FULL}',
                f'v_rcp_f32 {t}, {t}']

    def rot8(self, dst, sh):
        a = self.a
        a.e(f'v_lshrrev_b32 {dst}, 4, v0')
        a.e(f'v_lshl_add_u32 {dst}, {dst}, 1, v0')
        a.e(f'v_and_b32 {dst}, 7, {dst}')
        a.e(f'v_lshlrev_b32 {dst}, {sh}, {dst}')

    def weigh2(self, skip=0, lw='v16', chk=False):
        a = self.a
        w = self.w8(lw, 'v17')
        for x in w[skip:6]:
            a.e(x)
        a.e('v_add_f32 v20, v20, v21')
        a.e('v_add_f32 v22, v22, v23')
        a.e(w[6])
        a.e('v_add_f32 v24, v24, v25')
        a.e('v_add_f32 v26, v26, v27')
        a.e(w[7])
        a.e(f'v_mul_f32_dpp v20, {lw}, v20 row_newbcast:0 {FULL}')
        a.e(f'v_mul_f32_dpp v24, {lw}, v24 row_newbcast:0 {FULL}')
        a.e(f'v_fmac_f32_dpp v20, {lw}, v22 row_newbcast:1 {FULL}')
        a.e(f'v_fmac_f32_dpp v24, {lw}, v26 row_newbcast:1 {FULL}')
        a.e(w[8])
        if chk:
            a.e('v_cmp_u_f32 vcc, v20, v20')
        a.e('v_permlane32_swap_b32 v20, v24')
        a.e('v_add_f32 v20, v20, v24')
        a.e('v_mul_f32 v20, v20, v17')

    def weigh2n(self, lw):
        a = self.a
        a.e('v_add_f32 v20, v20, v21')
        a.e('v_add_f32 v22, v22, v23')
        a.e(f'v_mul_f32_dpp v20, {lw}, v20 row_newbcast:0 {FULL}')
        a.e(f'v_fmac_f32_dpp v20, {lw}, v22 row_newbcast:1 {FULL}')
        a.e('v_add_f32 v24, v24, v25')
        a.e('v_add_f32 v26, v26, v27')
        a.e(f'v_mul_f32_dpp v24, {lw}, v24 row_newbcast:0 {FULL}')
        a.e(f'v_fmac_f32_dpp v24, {lw}, v26 row_newbcast:1 {FULL}')
        a.e('v_cmp_u_f32 vcc, v20, v20')
        a.e('v_permlane32_swap_b32 v20, v24')
        a.e('v_add_f32 v20, v20, v24')

    def outproj(self, isa):
        a = self.a
        if isa:
            self.rot8('v30', 2)
        else:
            a.e(f's_add_u32 {t4}, {oO}, {L_OB - L_OA}')
        so = oO if isa else t4
        ld = []
        if isa:
            ld.append(f'buffer_load_dword v16, v30, {WSL}, {oOALg} offen sc1')
        ld.append(f'buffer_load_dwordx4 v[8:11], {vL16}, {WSL}, {so} offen sc1')
        ld.append(f'buffer_load_dwordx4 v[12:15], {vL16}, {WSL}, {so} offen offset:1024 sc1')
        a.e('v_lshrrev_b32 v28, 4, v0')
        a.e('v_bfe_u32 v29, v0, 2, 2')
        a.e('v_lshl_add_u32 v28, v28, 3, v29')
        a.e('v_mul_u32_u24 v28, 48, v28')
        a.e('v_and_b32 v29, 3, v0')
        a.e('v_lshl_add_u32 v28, v29, 3, v28')
        if isa or not self.o.get('l4_wo', 0):
            a.e(f'v_add_u32 v28, {sW8}, v28')
        else:
            a.e(f's_cmp_eq_u32 {sIT}, 1')
            a.e(f's_cselect_b32 {t0}, {sKV}, {sW8}')
            a.e(f'v_add_u32 v28, {t0}, v28')
        a.wait(vm='wo')
        tr = []
        for blk in range(2):
            for tile in range(2):
                for hh in range(2):
                    for half in range(2):
                        off = (64 * blk + 32 * hh + 4 * half) * 48 + 32 * tile
                        tr.append(f'ds_read_b64_tr_b16 {vr(32 + 16 * tile + 8 * blk + 4 * hh + 2 * half, 2)}, v28 offset:{off}')
        a.e(f's_lshl_b32 {t2}, {sV}, 3')
        a.e(f's_add_u32 {t2}, {t2}, {ZO}')
        pre = ['v_and_b32 v18, 15, v0', 'v_lshrrev_b32 v19, 5, v0', 'v_lshl_add_u32 v18, v19, 4, v18', 'v_bfe_u32 v19, v0, 4, 1',
               'v_lshlrev_b32 v19, 2, v19', 'v_lshl_add_u32 v18, v18, 5, v19', f'v_add_u32 v18, {t2}, v18', f'v_mov_b32 v19, {ZO}',
               'v_and_b32 v29, 15, v0', 'v_lshl_add_u32 v19, v29, 6, v19', 'v_lshlrev_b32 v29, 2, v0']
        n1 = self.o.get('tr_pre', 8)
        for x in tr[:n1]:
            a.e(x)
        self.sleep('h1' if isa else 'hd')
        for x in ld:
            a.e(x)
        self.mix(tr[n1:], pre)
        a.e(f's_add_u32 {t2}, {oYpub}, {G_YA if isa else G_YB}')
        top = a.lab('poll')
        a.e(f'{top}:')
        for x in ld:
            self.H('o0', 0, 20)
            a.e(x)
        for r in range(26, 18, -2):
            a.e(f'v_mov_b64 {vr(r, 2)}, 0')
        self.K(0, 'po', True)
        a.e(f's_waitcnt vmcnt({len(ld)}) lgkmcnt(0)')
        if isa:
            a.e('v_max3_u32 v17, v8, v12, v16')
        else:
            a.e('v_max_u32 v17, v8, v12')
        a.e('v_cmp_eq_u32 vcc, -1, v17')
        a.e('v_smfmac_f32_16x16x64_bf16 v[20:23], v[8:11], v[32:39], v1')
        if isa:
            a.e('v_mov_b32 v31, v16')
        a.e('v_smfmac_f32_16x16x64_bf16 v[24:27], v[8:11], v[48:55], v1')
        self.retry_to(top)
        w = self.w8('v31', 'v17')
        a.e('v_smfmac_f32_16x16x64_bf16 v[20:23], v[12:15], v[40:47], v1')
        if isa:
            a.e(w[0])
        a.e('v_smfmac_f32_16x16x64_bf16 v[24:27], v[12:15], v[56:63], v1')
        self.stamp('ogot')
        if isa:
            self.weigh2(1, 'v31', True)
        else:
            a.e('v_pk_add_f32 v[20:21], v[20:21], v[22:23]')
            a.e('v_pk_add_f32 v[24:25], v[24:25], v[26:27]')
            a.e('v_add_f32 v20, v20, v21')
            a.e('v_add_f32 v24, v24, v25')
            a.e('v_cmp_u_f32 vcc, v20, v20')
            a.e('v_permlane32_swap_b32 v20, v24')
            a.e('v_add_f32 v20, v20, v24')
        a.e('ds_write_b32 v18, v20')
        self.H('o1', 0, 24)
        self.retry_to(top)
        a.e(f's_bitcmp0_b32 {sRES}, 0')
        self.H('o2', 0, 24)
        self.bar(1, True)
        l = a.lab('noy')
        a.e(f's_cbranch_scc1 {l}')
        a.begin_skip()
        for i in range(4):
            a.e(f'ds_read_b128 {vr(32 + 4 * i, 4)}, v19 offset:{16 * i}')
            a.tag_ds(f'z{i}')
            if i == 1:
                self.H('o3', 0, 24)
        a.e('s_mov_b32 exec_hi, 0')
        self.K(2)
        self.Wm()
        a.wait(ds='z1')
        a.e('v_pk_add_f32 v[32:33], v[32:33], v[34:35]')
        a.e('v_pk_add_f32 v[36:37], v[36:37], v[38:39]')
        a.e('v_pk_add_f32 v[32:33], v[32:33], v[36:37]')
        a.e('v_add_f32 v32, v32, v33')
        a.wait(ds='z3')
        a.e('v_pk_add_f32 v[40:41], v[40:41], v[42:43]')
        a.e('v_pk_add_f32 v[44:45], v[44:45], v[46:47]')
        a.e('v_pk_add_f32 v[40:41], v[40:41], v[44:45]')
        a.e('v_add_f32 v33, v40, v41')
        a.e('v_pk_add_f32 v[32:33], v[32:33], v[4:5]')
        a.e('v_cvt_pk_bf16_f32 v32, v32, v33')
        a.e(f'buffer_store_dword v32, v29, {WSG}, {t2} offen sc1')
        a.e('s_mov_b32 exec_hi, -1')
        a.end_skip()
        a.e(f'{l}:')
        self.stamp('ypub')

    def qabs(self):
        a = self.a
        a.e('v_and_b32 v36, 7, v0')
        a.e('v_lshlrev_b32 v37, 3, v36')
        a.e(f's_sub_u32 {t0}, {sW8}, {sKV}')
        a.e(f'v_add_u32 v56, {t0}, {vA}')
        for ks in range(1, 4):
            a.e(f'v_xor_b32 v{56 + ks}, {ks << 6}, v56')
        a.e('v_and_b32 v38, 8, v0')
        a.e('v_lshlrev_b32 v38, 3, v38')
        a.e('v_lshl_or_b32 v38, v36, 1, v38')
        a.e(f's_lshl_b32 {t0}, {sV}, 4')
        a.e(f's_add_u32 {t0}, {t0}, {ZQ}')
        a.e(f'v_add_u32 v38, {t0}, v38')
        a.e(f'v_add_u32 v39, {ZQ}, {vL16}')
        if self.o.get('qflag', 1):
            chk, again = a.lab('chk'), a.lab('again')
            a.wait(vm='fl')
            a.e(f'{chk}:')
            a.e('v_cmp_eq_u32 vcc, -1, v10')
            self.retry_to(again)
            a.ool(f'{again}:\nbuffer_load_dword v10, v9, {WSL}, {oOALg} offen offset:{L_FL - L_OAL} sc1\ns_waitcnt vmcnt(1)\ns_branch {chk}')
        self.sleep('hqb')
        top = a.lab('poll')
        a.e(f'{top}:')
        a.e(f'buffer_load_dwordx2 v[34:35], v37, {WSL}, {oSTgB} offen sc1')
        a.tag_vm('st')
        for i in (2, 3, 0, 1):
            a.e(f'buffer_load_dwordx4 {vr(8 + 4 * i, 4)}, {vL16}, {WSL}, {oQgB} offen offset:{i * 1024} sc1')
            a.tag_vm(f'q{i}')
        a.wait(vm='wuk')
        for ks in range(4):
            a.e(f'ds_read_b128 {vr(40 + 4 * ks, 4)}, v{56 + ks}')
            a.e(f'v_mov_b64 {vr(24 + 2 * ks, 2)}, 0')
        self.H('q1', 0, 60)
        a.wait(vm='st')
        a.e('v_cmp_u_f32 vcc, v34, v35')
        st = self.stats(34)
        for x in st[:4]:
            a.e(x)
        self.retry_to(top)
        for x in st[4:6]:
            a.e(x)
        a.e('s_waitcnt lgkmcnt(0)')
        a.wait(vm='q2')
        a.e('v_smfmac_f32_16x16x64_bf16 v[28:31], v[16:19], v[40:47], v1')
        for x in st[6:]:
            a.e(x)
        a.wait(vm='q3')
        a.e('v_smfmac_f32_16x16x64_bf16 v[28:31], v[20:23], v[48:55], v1')
        self.H('q2', 0, 60)
        a.wait(vm='q0')
        a.e('v_smfmac_f32_16x16x64_bf16 v[24:27], v[8:11], v[40:47], v1')
        self.K(1, 'qb3', True)
        a.e('v_pk_add_f32 v[28:29], v[28:29], v[30:31]')
        a.e('v_add_f32 v28, v28, v29')
        a.e('v_mul_f32 v28, v28, v35')
        a.e(f's_cmp_lg_u32 {sV}, 0')
        self.K(0, 'qb4', True)
        a.wait(vm='q1')
        a.e('v_smfmac_f32_16x16x64_bf16 v[24:27], v[12:15], v[48:55], v1')
        self.stamp('qgotB', 2)
        a.e('v_pk_add_f32 v[24:25], v[24:25], v[26:27]')
        a.e('v_sub_f32 v24, v24, v28')
        a.e('v_add_f32 v24, v24, v25')
        a.e('v_mul_f32 v25, v24, v34')
        a.e('v_mul_f32 v24, v24, v34')
        a.e('v_cmp_u_f32 vcc, v24, v24')
        a.e('v_permlane32_swap_b32 v24, v25')
        a.e('v_add_f32 v26, v24, v25')
        a.e('v_add_f32 v24, v24, v25')
        a.e('v_permlane16_swap_b32 v24, v26')
        a.e('v_add_f32 v24, v24, v26')
        a.e('v_cvt_pk_bf16_f32 v24, v24, v24')
        a.e('ds_write_b16 v38, v24')
        self.retry_to(top)
        a.e('s_waitcnt lgkmcnt(0)')
        a.e('s_barrier')
        l = a.lab('notw')
        a.e(f's_cbranch_scc1 {l}')
        a.begin_skip()
        a.e('s_mov_b64 exec, 0xff')
        a.e('ds_read_b128 v[24:27], v39')
        a.e('s_waitcnt lgkmcnt(0)')
        a.e(f'buffer_store_dwordx4 v[24:27], {vL16}, {WSG}, {oQApub} offen sc1')
        a.e('s_mov_b64 exec, -1')
        self.end_only(l)
        self.stamp('qapub')
        self.touches('w3', 'v8', 'v9')
        self.resid_track(G_YA, 10, 'v8', f's_cmp_eq_u32 {sRES}, 3')

    def attn_b(self):
        a = self.a
        a.e(f's_mul_i32 {t0}, {sV}, {4096 - 16384}')
        a.e(f's_add_u32 {t0}, {t0}, {CKV}')
        a.e(f'v_add_u32 v56, {t0}, {vA}')
        a.e('v_xor_b32 v57, 64, v56')
        ORD = [(r, ks) for kp in range(2) for r in range(4) for ks in (2 * kp, 2 * kp + 1)]
        ga = ['v_and_b32 v58, 12, v0', 'v_lshlrev_b32 v58, 4, v58', 'v_and_or_b32 v58, v0, 48, v58', 'v_lshlrev_b32 v58, 2, v58',
              f'v_and_or_b32 v58, {vL16}, 48, v58', 'v_lshlrev_b32 v8, 7, v0', 'v_mov_b32 v9, 0']
        for x in ga:
            a.e(x)
        a.e(f'v_add_u32 v59, {STG}, {vL16}')
        a.e('s_barrier')
        if self.o.get('l4_wo', 0) == 1:
            def early_wo():
                self.wo_prep(12, 'v15')
                for x in self.wo_lines(BWO, 12, '', sKV):
                    self.a.e(x)
                self.sleep('ha1')
            self.ool_if(f's_cmp_eq_u32 {sIT}, 1', early_wo, lambda: self.sleep('ha'))
        else:
            self.sleep('ha')
        top = a.lab('poll')
        a.e(f'{top}:')
        ld = [f's_mov_b32 m0, {sW8}', 's_mov_b32 exec_hi, 0', f'buffer_load_dword v9, v8, {WSG}, {oQAg} offen sc1', 's_mov_b32 exec_hi, -1']
        for ks in range(4):
            ld.append(f'buffer_load_dwordx4 v58, {WSG}, {oQAg} offen offset:{ks * 1024} sc1 lds')
        for x in ld:
            a.e(x)
        for k in range(8):
            r, ks = ORD[k]
            a.e(f'ds_read_b128 {vr(24 + 4 * k, 4)}, v{56 + (ks & 1)} offset:{r * 16384}')
        a.e('v_xor_b32 v56, 128, v56')
        a.e('v_xor_b32 v57, 128, v57')
        self.k64_addr('v10', None)
        l4 = self.o.get('l4_wo', 0)
        if l4 == 2:
            self.wo_prep(12, 'v15')
        chk, again = a.lab('chk'), a.lab('again')
        a.e(f'{chk}:')
        a.e('s_waitcnt vmcnt(4)')
        a.e('v_cmp_eq_u32 vcc, -1, v9')
        self.retry_to(again)
        a.ool(f'{again}:\n' + '\n'.join(ld) + f'\ns_branch {chk}')
        pol = self.o.get('pol_w', '')
        for i in range(1, 4):
            a.e(f's_add_u32 {[t1, t2, t3][i - 1]}, {oWUV}, {i * (16 * 8192 - 1024)}')
        a.e('v_mov_b32 v58, v10')
        half = self.o.get('qa_half', 1)
        if l4 == 2:
            a.e(f's_cmp_eq_u32 {sIT}, 1')
            a.e(f's_cselect_b32 {t0}, {sKV}, 0x30000')
            a.e(f's_cselect_b32 {t4}, {oWO}, {OOB}')
            a.e(f's_cselect_b32 {t5}, {t5}, {OOB}')
            for x in self.wo_lines(BWO, 12, '', t0):
                a.e(x.replace(f', {oWO} ', f', {t4} '))
        ex = 6 if l4 == 2 else 0
        a.e(f's_waitcnt vmcnt({(2 if half else 0) + ex}) lgkmcnt(0)')
        a.e('s_barrier')
        self.stamp('qagot')

        def qread(k):
            r, ks = ORD[k]
            a.e(f'ds_read_b128 {vr(8 + 4 * (k & 3), 4)}, v59 offset:{r * 8192 + ks * 1024}')
            a.tag_ds(f'q{k}')
        for k in range(4):
            qread(k)
        a.e(f's_add_u32 m0, {sW8}, 4096')
        SLOT = [16, 40, 48]

        def tread(e, ad='v57'):
            l = [f'v_xor_b32 {ad}, {CKV | (e << 5)}, {vT}']
            for t in range(4):
                l.append(f'ds_read_b64_tr_b16 {vr(SLOT[e % 3] + 2 * t, 2)}, {ad} offset:{t * 4096}')
            return l
        for k in range(16):
            a.wait(ds=f'q{k}')
            a.e(f'v_mfma_f32_16x16x32_bf16 v[60:63], {vr(24 + 4 * (k & 7), 4)}, {vr(8 + 4 * (k & 3), 4)}, {"v[60:63]" if k else "0"}')
            if k < 8:
                r, ks = ORD[k + 8]
                a.e(f'ds_read_b128 {vr(24 + 4 * k, 4)}, v{56 + (ks & 1)} offset:{r * 16384}')
            if k == 4 and half:
                a.e(f's_waitcnt vmcnt({2 + ex})')
                a.e('s_barrier')
            if k + 4 < 16:
                qread(k + 4)
            if k in (0, 2, 4, 6):
                a.e(f'buffer_load_dwordx4 v58, {WUV}, {[oWUV, t1, t2, t3][k >> 1]} offen offset:{(k >> 1) * 1024} {pol} lds')
            if k == 10:
                a.e('s_barrier')
            if k == 8:
                a.e(f'v_and_b32 v58, 0xf0, {vL16}')
                a.e(f's_lshl_b32 {t0}, {sV}, 2')
            if k == 9:
                a.e(f'v_add_u32 v58, {STG}, v58')
                a.e(f's_add_u32 {t1}, {oC1pub}, 4096')
            if k == 11:
                a.e(f'v_add_u32 v24, {t0}, v58')
                a.e(f's_add_u32 {t2}, {oC1pub}, 8192')
            if k == 12:
                a.e('v_xor_b32 v56, 128, v56')
                a.e(f'v_lshl_add_u32 v25, v0, 3, {sW8}')
            if k == 13:
                t1_ = tread(1)
                a.e(t1_[0]); a.e(t1_[1])
            if k == 14:
                a.e(t1_[2]); a.e(t1_[3])
        a.e(t1_[4])
        t0_, t2_ = tread(0), tread(2)
        a.e(f'v_mov_b32 v26, {STG}')
        a.e('v_lshl_add_u32 v26, v0, 3, v26')
        a.e(f's_add_u32 {t3}, {oC1pub}, 12288')
        for r in range(36, 40):
            a.e(f'v_mov_b32 v{r}, 0x3f803f80')
        a.e('v_max3_f32 v28, v60, v61, v62')
        a.e('v_max_f32 v29, v28, v63')
        a.e('v_max_f32 v28, v28, v63')
        a.e(t0_[0]); a.e(t0_[1])
        a.e('v_permlane32_swap_b32 v28, v29')
        a.e('v_max_f32 v30, v28, v29')
        a.e('v_max_f32 v28, v28, v29')
        a.e(t0_[2]); a.e(t0_[3])
        a.e('v_permlane16_swap_b32 v28, v30')
        a.e('v_max_f32 v28, v28, v30')
        a.e('ds_write_b32 v24, v28')
        a.tag_ds('mw')
        a.e(t0_[4])
        a.e(t2_[0])
        self.H('b0', 1, 32)
        a.e(t2_[1]); a.e(t2_[2]); a.e(t2_[3]); a.e(t2_[4])
        self.H('b1', 1, 32)
        a.wait(ds='mw')
        a.e('s_barrier')
        a.e('ds_read_b128 v[28:31], v58')
        a.tag_ds('mr')
        self.stamp('sbar', 2)
        self.H('b2', 1, 32)
        a.wait(ds='mr')
        a.e('v_max3_f32 v28, v28, v29, v30')
        a.e('v_max_f32 v28, v28, v31')
        a.e('v_pk_add_f32 v[60:61], v[60:61], v[28:29] op_sel_hi:[1,0] neg_lo:[0,1] neg_hi:[0,1]')
        a.e('v_pk_add_f32 v[62:63], v[62:63], v[28:29] op_sel_hi:[1,0] neg_lo:[0,1] neg_hi:[0,1]')
        for r in range(60, 64):
            a.e(f'v_exp_f32 v{r}, v{r}')
        a.e('v_cvt_pk_bf16_f32 v30, v60, v61')
        a.e('v_cvt_pk_bf16_f32 v31, v62, v63')
        a.e('ds_write_b64 v25, v[30:31] offset:1024')
        a.e('v_lshrrev_b32 v61, 4, v0')
        a.e(f'v_and_b32 v60, 0xf0, {vL16}')
        a.e('v_lshl_or_b32 v61, v61, 16, v60')
        a.e('v_mov_b32 v62, v28')
        a.e('v_xor_b32 v57, 64, v56')
        a.e('v_and_b32 v27, 12, v0')
        a.e('v_lshlrev_b32 v27, 4, v27')
        self.H('b3', 1, 32)
        self.lcmp()
        a.e('s_waitcnt lgkmcnt(0)')
        a.e('s_barrier')
        a.e('ds_read2st64_b64 v[8:11], v26 offset0:2 offset1:18')
        a.tag_ds('p0')
        a.e('ds_read2st64_b64 v[12:15], v26 offset0:34 offset1:50')
        a.tag_ds('p1')
        self.stamp('smax', 2)
        a.e('v_and_or_b32 v27, v0, 3, v27')
        a.e('v_lshlrev_b32 v27, 3, v27')
        self.K(2, 'b4', True)
        ACC = [28, 56, 36, 32]
        a.wait(ds='p0')
        a.e('v_cmp_u_f32 vcc, v8, v8')
        a.e(f'v_mfma_f32_16x16x32_bf16 v[28:31], v[8:11], {vr(SLOT[0], 4)}, 0')
        a.e('v_mfma_f32_16x16x32_bf16 v[32:35], v[36:39], v[8:11], 0')
        again = a.lab('again')
        self.retry_to(again)
        a.ool(f'{again}:\n' + '\n'.join(['s_waitcnt lgkmcnt(0)'] + ga) + f'\ns_barrier\ns_branch {top}')
        a.wait(ds='p1')
        a.e('v_mfma_f32_16x16x32_bf16 v[32:35], v[36:39], v[12:15], v[32:35]')
        so = [oC1pub, t1, t2, t3]
        ml = ['s_mov_b64 exec, 0xffff', f'buffer_store_dwordx2 v[62:63], v27, {WSL}, {oMLpub} offen', 's_mov_b64 exec, -1']
        mlat = self.o.get('ml_at', 2)

        def pack(q):
            d0, d1 = ACC[(2 * q) & 3], ACC[(2 * q + 1) & 3]
            return [f'v_cvt_pk_bf16_f32 v{24 + r}, v{d0 + r}, v{d1 + r}' for r in range(4)]

        def put(q):
            self.lstore([f'buffer_store_dwordx4 v[24:27], v61, {WS}, {so[q]} offen'] + (ml if q == mlat else []))
        F = {e: [[], []] for e in range(8)}
        early = self.o.get('ml_early', 1)
        mlat = -1
        F[1][1] = ['v_mov_b32 v63, v32']
        F[self.o.get('ml_e', 2)][1] += ['ML']
        F[3][0] = pack(0)[:2]
        F[3][1] = pack(0)[2:]
        F[5][0] = pack(1)[:2]
        F[5][1] = pack(1)[2:]
        F[6][0] = ['v_and_b32 v60, 3, v0', 'v_lshlrev_b32 v60, 6, v60']
        F[6][1] = ['v_and_or_b32 v60, v0, 60, v60', 'v_lshlrev_b32 v60, 1, v60']
        F[7][0] = pack(2)
        for e in range(8):
            a.wait(ds=f't{e}')
            d = vr(ACC[e & 3], 4)
            s = SLOT[e % 3]
            nx = tread(e + 3, 'v60') if e + 3 < 8 else []
            if nx:
                a.e(nx[0])
            if e:
                a.e(f'v_mfma_f32_16x16x32_bf16 {d}, v[8:11], {vr(s, 4)}, 0')
            if e in (4, 6):
                put((e - 4) // 2)
            for x in nx[1:3]:
                a.e(x)
            for x in F[e][0]:
                a.e(x)
            a.e(f'v_mfma_f32_16x16x32_bf16 {d}, v[12:15], {vr(s + 4, 4)}, {d}')
            for x in nx[3:]:
                a.e(x)
            if nx:
                a.tag_ds(f't{e + 3}')
            for x in F[e][1]:
                if x == 'ML':
                    self.lstore(ml)
                else:
                    a.e(x)
            if e == 7:
                put(2)
        if early == 1:
            a.e(f'buffer_load_dwordx2 v[22:23], v60, {WSL}, {oMLg} offen sc1')
            a.tag_vm('ml0')
        for x in pack(3):
            a.e(x)
        put(3)
        if early == 2:
            a.e(f'buffer_load_dwordx2 v[22:23], v60, {WSL}, {oMLg} offen sc1')
            a.tag_vm('ml0')
        self.stamp('c1pub')

    def red(self):
        a = self.a
        ld = f'buffer_load_dwordx2 v[22:23], v60, {WSL}, {oMLg} offen sc1'
        a.e('v_and_b32 v45, 56, v0')
        a.e('v_lshlrev_b32 v45, 1, v45')
        a.e('v_and_or_b32 v45, v0, 6, v45')
        a.e('v_lshlrev_b32 v45, 1, v45')
        a.e(f'v_and_or_b32 v45, {vL16}, 16, v45')
        a.e('v_lshlrev_b32 v46, 2, v0')
        for r in range(28, 36, 2):
            a.e(f'v_mov_b64 {vr(r, 2)}, 0')
        ne = self.o.get('wo_e', 0)
        if ne:
            self.wo_prep(41, 'v39')
            a.e('s_barrier')
        cl = [f'buffer_load_dwordx4 {vr(8 + 4 * i, 4)}, {vL16}, {WS}, {oC1g} offen offset:{i * 1024} sc1' for i in range(4)]
        ch = [f'v_max_f32_dpp v36, v22, v22 quad_perm:[1,0,3,2] {FULL}',
              f'v_max_f32_dpp v37, v36, v36 quad_perm:[2,3,0,1] {FULL}', f'v_max_f32_dpp v36, v36, v36 quad_perm:[2,3,0,1] {FULL}',
              'v_permlane32_swap_b32 v36, v37', 'v_max_f32 v38, v36, v37', 'v_max_f32 v36, v36, v37',
              'v_permlane16_swap_b32 v36, v38', 'v_max_f32 v36, v36, v38', 'v_sub_f32 v24, v24, v36', 'v_exp_f32 v24, v24',
              'v_mul_f32 v25, v25, v24', f'v_add_f32_dpp v25, v25, v25 quad_perm:[1,0,3,2] {FULL}',
              f'v_add_f32_dpp v37, v25, v25 quad_perm:[2,3,0,1] {FULL}', f'v_add_f32_dpp v25, v25, v25 quad_perm:[2,3,0,1] {FULL}',
              'v_permlane32_swap_b32 v25, v37', 'v_add_f32 v38, v25, v37', 'v_add_f32 v25, v25, v37',
              'v_permlane16_swap_b32 v25, v38', 'v_add_f32 v25, v25, v38', 'v_rcp_f32 v38, v25', 'v_log_f32 v37, v25',
              'v_mul_f32 v24, v24, v38', 'v_add_f32 v37, v37, v36', 'v_cvt_pk_bf16_f32 v26, v24, 0', 'v_cvt_pk_bf16_f32 v27, 0, v24']
        chk, again = a.lab('chk'), a.lab('again')
        a.wait(vm='ml0')
        a.e(f'{chk}:')
        a.e('v_cmp_u_f32 vcc, v22, v23')
        a.e(ch[0])
        a.e('v_mov_b64 v[24:25], v[22:23]')
        self.retry_to(again)
        a.ool(f'{again}:\n{ld}\ns_waitcnt vmcnt(1)\ns_branch {chk}')
        self.stamp('mlgot', 2)
        npre = self.o.get('red_pre', 8)
        for x in ch[1:npre]:
            a.e(x)
        self.sleep('hc1')
        for i, x in enumerate(cl):
            a.e(x)
            a.tag_vm(f'c{i}')
        for x in self.wo_group(BWO, 41, 0, ne):
            a.e(x)
        for x in ch[max(npre, 1):]:
            a.e(x)
        lwe = self.o.get('lw_early', 1)
        lws = ['s_mov_b32 exec_hi, 0', f'buffer_store_dword v37, v46, {WSG}, {oC2Lpub} offen sc1', 's_mov_b32 exec_hi, -1']
        if lwe:
            for x in lws:
                a.e(x)
        self.H('r1', 0, 48)
        top, again = a.lab('acc'), a.lab('again')
        a.e(f'{top}:')
        for i in range(4):
            if i:
                self.K(0, 'rd', True)
            a.wait(vm=f'c{i}')
            for d in range(4):
                a.e(f'v_dot2c_f32_bf16_dpp v{28 + 2 * d}, v26, v{8 + 4 * i + d} row_newbcast:{4 * d + i} {FULL}')
                a.e(f'v_dot2c_f32_bf16_dpp v{29 + 2 * d}, v27, v{8 + 4 * i + d} row_newbcast:{4 * d + i} {FULL}')
        for i in range(4):
            a.e(f'v_permlane32_swap_b32 v{28 + i}, v{32 + i}')
        a.e('v_pk_add_f32 v[28:29], v[28:29], v[32:33]')
        a.e('v_pk_add_f32 v[30:31], v[30:31], v[34:35]')
        a.e('v_cmp_u_f32 vcc, v28, v30')
        a.e('v_permlane16_swap_b32 v28, v30')
        a.e('v_permlane16_swap_b32 v29, v31')
        a.e('v_pk_add_f32 v[28:29], v[28:29], v[30:31]')
        a.e('v_cvt_pk_bf16_f32 v28, v28, v29')
        self.retry_to(again)
        a.ool(f'{again}:\n' + '\n'.join(cl) + '\n' + '\n'.join(f'v_mov_b64 {vr(r, 2)}, 0' for r in range(28, 36, 2)) + f'\ns_waitcnt vmcnt(0)\ns_branch {top}')
        a.e(f'buffer_store_dword v28, v45, {WSG}, {oC2pub} offen sc1')
        if not lwe:
            for x in lws:
                a.e(x)
        self.stamp('c2pub')
        a.e('v_and_b32 v40, 4, v0')
        a.e('v_lshlrev_b32 v40, 4, v40')
        a.e('v_and_or_b32 v40, v0, 48, v40')
        a.e('v_lshlrev_b32 v40, 1, v40')
        a.e('v_and_or_b32 v40, v0, 11, v40')
        a.e(f'v_lshl_add_u32 v40, v40, 3, {sW8}')
        for tau in range(2):
            for gam in range(2):
                for tt in range(2):
                    a.e(f'ds_read_b64_tr_b16 {vr(48 + 8 * tau + 4 * gam + 2 * tt, 2)}, v40 offset:{4096 + (32 * gam + 2 * tt) * 64 + 32 * tau}')
        if not ne:
            self.wo_prep(41, 'v39')
        if self.o.get('wo_pre', 6) > 4:
            a.e('s_waitcnt lgkmcnt(0)')
        a.e('s_barrier')
        if self.o.get('x_wo'):
            a.e('s_waitcnt vmcnt(0)')
            self.stamp('x_ack')
        npre = self.o.get('wo_pre', 6)
        for x in self.wo_group(BWO, 41, ne, npre):
            a.e(x)
        if npre == 6:
            a.tag_vm('wo')
        self.wol = self.wo_group(BWO, 41, npre, 6)
        if self.o.get('x_wo'):
            self.stamp('x_iss')
            a.e('s_waitcnt vmcnt(0)')
            self.stamp('x_land')

    def wb(self, where):
        a = self.a
        if self.o.get('wb') != where:
            return
        l = a.lab('nowb')
        self.sums(t1, [(sJ, 8), (sV, 2), (sIT, 1)])
        a.e(f's_cmp_lg_u32 {t1}, {24 * 8 + 1}')
        a.e(f's_cbranch_scc1 {l}')
        a.begin_skip()
        a.e('buffer_wbl2 sc1')
        self.end_only(l)

    def uv(self):
        a = self.a
        a.e('v_lshrrev_b32 v28, 1, v0')
        a.e('v_and_or_b32 v28, v28, 16, 0')
        a.e('v_and_or_b32 v28, v0, 14, v28')
        a.e('v_lshlrev_b32 v28, 6, v28')
        a.e('v_and_or_b32 v28, v0, 16, v28')
        a.e('v_lshlrev_b32 v28, 1, v28')
        a.e(f'v_and_or_b32 v28, {vL16}, 16, v28')
        self.rot8('v29', 7)
        self.pos_bytes('v30', None)
        a.e('v_and_b32 v31, 32, v0')
        a.e('v_lshl_or_b32 v30, v31, 3, v30')
        self.touches('w5', 'v12', 'v13')
        a.e('s_waitcnt lgkmcnt(0)')
        self.sleep('hc2')
        ld = [f'buffer_load_dword v16, v29, {WSG}, {oC2Lg} offen sc1',
              f'buffer_load_dwordx4 v[8:11], v28, {WSG}, {oC2g} offen sc1']
        z = [f'v_mov_b64 {vr(r, 2)}, 0' for r in range(20, 28, 2)]
        lwe = self.o.get('lw_early', 1)
        a.e(ld[0])
        a.tag_vm('lw')
        if lwe:
            self.sleep('hc2b')
        a.e(ld[1])
        a.tag_vm('c2')
        for x in z:
            a.e(x)
        for x in self.wol:
            a.e(x)
        if self.wol:
            a.tag_vm('wo')
        top, again = a.lab('chk'), a.lab('again')
        w = self.w8('v16', 'v17')
        if lwe:
            self.H('u0', 0, 12)
            a.wait(vm='lw')
            a.e(f'{top}:')
            for x in w:
                a.e(x)
            a.e('v_mul_f32 v16, v16, v17')
            self.H('u1', 0, 12)
            a.wait(vm='c2')
            a.e('v_smfmac_f32_16x16x64_bf16 v[20:23], v[8:11], v[48:55], v1')
            a.e('v_cmp_u_f32 vcc, v8, v16')
            a.e('v_smfmac_f32_16x16x64_bf16 v[24:27], v[8:11], v[56:63], v1')
            self.retry_to(again)
            self.stamp('c2got', 2)
            self.weigh2n('v16')
        else:
            a.wait(vm='c2')
            a.e(f'{top}:')
            a.e('v_smfmac_f32_16x16x64_bf16 v[20:23], v[8:11], v[48:55], v1')
            self.maxchain('v18', [8, 9, 10, 11, 16], True)
            a.e('v_smfmac_f32_16x16x64_bf16 v[24:27], v[8:11], v[56:63], v1')
            self.poll_cmp('v18')
            a.e(w[0])
            a.e(w[1])
            a.e(w[2])
            self.retry_to(again)
            self.stamp('c2got', 2)
            self.weigh2(3)
        a.ool(f'{again}:\n' + '\n'.join(ld + z) + f'\ns_waitcnt vmcnt(0)\ns_branch {top}')
        a.e('v_mov_b32 v21, v20')
        self.lcmp()
        a.e('v_permlane16_swap_b32 v20, v21')
        a.e('v_add_f32 v20, v20, v21')
        if lwe:
            self.retry_to(again)
        a.e(f'v_mov_b32_dpp v21, v20 quad_perm:[1,0,3,2] {FULL}')
        a.e('v_cvt_pk_bf16_f32 v20, v20, v21')
        self.lstore(['s_mov_b32 exec_lo, 0x5555', 's_mov_b32 exec_hi, 0x5555',
                     f'buffer_store_dword v20, v30, {WSL}, {oOBpub} offen', 's_mov_b64 exec, -1'])
        self.stamp('dpub')
        self.wb('dpub')

    def attn_a3(self):
        a = self.a
        self.qa_addr(14)
        self.sleep('hqa')
        ld = self.qa_loads(8, 12, 14)
        for x in ld:
            a.e(x)
        a.e('v_mov_b64 v[20:21], 0')
        a.e(f'v_lshl_add_u32 v17, v0, 3, {sW8}')
        a.e('ds_write_b64 v17, v[20:21] offset:6656')
        a.e(f's_add_u32 {t0}, {sW8}, 6656')
        a.e(f'v_mov_b32 v17, {t0}')
        a.e('s_mov_b32 s22, 0x000f000f')
        a.e('s_mov_b32 s23, 0x000f000f')
        for c in range(4):
            a.e(f'v_cndmask_b32 v{56 + c}, v17, v16, s[22:23]')
            a.e('s_lshl_b64 s[22:23], s[22:23], 4')
        self.p_addr('v60', 'v17')
        self.wo_prep(61, 'v17')
        for r in (16, 24, 28):
            a.e(f'v_mov_b64 {vr(r, 2)}, 0')
        self.pipe_poll(ld, 'v38', [8, 12], 'pq', ['v_mov_b64 v[36:37], v[12:13]', 'v_mov_b64 v[32:33], v[8:9]', 'v_mov_b64 v[34:35], v[10:11]'])
        top = self.ptop
        self.stamp('qgotA', 2)
        self.qa_finish(32, 36, 14, None, True)
        a.e('v_lshlrev_b32 v33, 16, v32')
        a.e('v_cmp_u_f32 vcc, v33, v33')
        a.e(f's_sub_u32 {t2}, {sW8}, {ZQ - 6144}')
        a.e('s_mov_b32 s22, 0x000f000f')
        a.e('s_mov_b32 s23, 0x000f000f')
        self.H('a1', 1, 52)
        self.retry_to(top)
        a.e('s_waitcnt vmcnt(0) lgkmcnt(0)')
        a.e('s_barrier')
        self.H('a2', 1, 8)

        def qrd(c, b):
            a.e(f'ds_read_b128 {vr(32 + 8 * (c % 3) + 4 * b, 4)}, v{56 + c} offset:{128 * b}')
            a.tag_ds(f'q{c}{b}')
        for c in range(3):
            qrd(c, 0)
            qrd(c, 1)
        self.stamp('qrdy')
        ds, va = [], []
        for e in range(8):
            for t in range(4):
                ds.append((e, f'ds_read_b64_tr_b16 a[{8 * e + 2 * t}:{8 * e + 2 * t + 1}], v{14 + (e & 1)} offset:{t * 4096}'))
        wl = self.wo_lines(WO, 61, self.o.get('pol_wo3', ''))
        other = {2: wl[0], 3: wl[1], 7: wl[2], 11: wl[3], 13: wl[4], 15: wl[5], 19: wl[6], 23: wl[7],
                 5: 'v_mov_b64 v[8:9], 0', 6: 'v_mov_b64 v[12:13], 0', 8: f'v_mov_b32 v10, {t2}'}
        for e, k in enumerate((4, 10, 14, 18, 22, 26, 30), 1):
            other[k] = f'v_xor_b32 v{14 + (e & 1)}, {e << 5}, {vT}'
        pc = []
        for c in range(4):
            pc.append('v_cndmask_b32 v11, 0, v10, s[22:23]')
            pc.append(f'v_add_u32 v{56 + c}, v{56 + c}, v11')
            if c < 3:
                pc.append('s_lshl_b64 s[22:23], s[22:23], 4')
        a.e(f'v_mov_b32 v14, {vT}')
        for k in range(32):
            c, r, b = k >> 3, (k >> 1) & 3, k & 1
            if r == 0:
                a.wait(ds=f'q{c}{b}')
            t = k >> 1
            a.e(f'v_smfmac_f32_16x16x64_bf16 {vr(16 + 4 * r, 4)}, {vr(32 + 8 * (c % 3) + 4 * b, 4)}, a[{16 * t + 8 * b}:{16 * t + 8 * b + 7}], v1')
            if k in (8, 9):
                qrd(3, k - 8)
            elif k >= 1:
                a.e(ds.pop(0)[1])
            if k in other:
                a.e(other[k])
        for r in range(4):
            if ds:
                a.e(ds.pop(0)[1])
            a.e(f'v_add_f32 v{16 + r}, v{16 + 4 * r}, v{17 + 4 * r}')
        self.softmax_a(16, 20, 'v60', pc)

        def prd(j):
            a.e(f'ds_read_b128 {vr(32 + 4 * (j % 6), 4)}, v{56 + (j >> 2)} offset:{128 * (j & 3)}')
            a.tag_ds(f'p{j}')
        for j in range(6):
            if j == 0:
                self.H('a3', 1, 24)
            prd(j)
        self.stamp('smaxA')
        ls = self.lsum('v21', 16)
        for x in ls[:4]:
            a.e(x)
        fill = [[x] for x in ls[4:]] + [self.ml_write(20)[:2], self.ml_write(20)[2:4], self.ml_write(20)[4:], [], [], ['BAR'],
                                        self.ml_read(24, 22)[:2], ['MLR'], [], [], []]
        sc = self.ml_scale(24, 22, 62, 63)
        fill += [['MLW'] + sc[:1]] + [sc[1:3], sc[3:5], sc[5:7]] + [[x] for x in sc[7:12]] + [sc[12:14], sc[14:16], sc[16:17], sc[17:18], sc[18:20]]
        for j in range(16):
            c, U = j >> 2, j & 3
            for hf in range(2):
                e = c + 4 * hf
                if hf == 0:
                    a.wait(ds=f'p{j}')
                B = vr(64 + 64 * U + 8 * e, 8) if U < 3 else f'a[{8 * e}:{8 * e + 7}]'
                a.e(f'v_smfmac_f32_16x16x64_bf16 {vr(8 + 4 * hf, 4)}, {vr(32 + 4 * (j % 6), 4)}, {B}, v1')
                if hf == 1 and j + 6 < 16:
                    prd(j + 6)
                for x in (fill.pop(0) if fill else []):
                    if x == 'BAR':
                        a.wait(ds='mlw')
                        a.e('s_barrier')
                    elif x == 'MLR':
                        a.e(self.ml_read(24, 22)[2])
                        a.tag_ds('mlr')
                    elif x == 'MLW':
                        a.wait(ds='mlr')
                    else:
                        a.e(x)
                        if 'ds_write_b64' in x:
                            a.tag_ds('mlw')
        assert not fill
        a.e(f'v_lshl_add_u32 v46, v0, 2, {sW8}')
        a.e('v_mov_b32 v47, v63')
        a.e('s_waitcnt vmcnt(0)')
        a.e('v_add_f32 v44, v8, v9')
        a.e('v_add_f32 v45, v12, v13')
        a.e('v_pk_mul_f32 v[44:45], v[44:45], v[62:63] op_sel_hi:[1,0]')
        self.stamp('pvA')

    def dma_tile(self, t):
        a = self.a
        pol = self.o.get('pol_kv', 'nt')
        srd = K_ if t < 16 else V_
        a.e(f's_add_u32 m0, {sKV}, {(t & 3) * 4096}')
        a.e(f's_add_u32 {t0}, {sKG}, {(t & 15) * 16384}')
        for q in range(4):
            a.e(f'buffer_load_dwordx4 v{8 + q}, {srd}, {t0} offen offset:{q * 1024} {pol} lds')
        a.tag_vm(f'tile{t}')

    def dma_ckv(self, t):
        a = self.a
        pol = self.o.get('pol_c', '')
        a.e('v_lshrrev_b32 v62, 4, v0')
        a.e('v_mul_u32_u24 v62, 768, v62')
        a.e(f's_lshr_b32 {t2}, {sJ}, 1')
        self.sums(t1, [(sX, 1 << 20), (t2, 1 << 16), (sV, 256)])
        for q in range(4):
            a.e(f's_add_u32 m0, {sKV}, {CKV + t * 4096 + q * 1024}')
            a.e(f'v_add_u32 v63, v{8 + q}, v62')
            a.e(f's_add_u32 {t2}, {t1}, {(16 * t + 4 * q) * 1024}')
            a.e(f'buffer_load_dwordx4 v63, {CK}, {t2} offen {pol} lds')

    def prologue(self):
        a = self.a
        a.e('s_cmp_ge_u32 s2, 256')
        a.e('s_cbranch_scc1 L_end')
        if self.o.get('diag_fixed'):
            a.e('s_memrealtime s[100:101]')
        if self.o.get('stamps'):
            a.e('s_memtime s[98:99]' if self.o.get('clk') else 's_memrealtime s[98:99]')
        a.e('s_load_dwordx2 s[4:5], s[0:1], 8')
        ptrs = [(V_, 16), (CK, 48), (DBG, 96), (XIN, 0), (WQ, 24), (WO, 32), (BWQ, 56), (WUK, 64), (WUV, 72), (BWO, 80),
                (WS, 104), (OUT, 88)]
        sizes = {K_: 1 << 26, V_: 1 << 26, CK: 1 << 23, DBG: 256, XIN: 1152, WQ: 576 * 8192, WO: 4096 * 1152,
                 BWQ: 576 * 8192, WUK: 1 << 22, WUV: 1 << 22, BWO: 4096 * 1152, WS: WS_SIZE, WSL: L_X, WSG: G_IT, OUT: 1152}
        base = lambda s: int(s[2:s.index(':')])
        a.e('v_lshrrev_b32 v1, 6, v0')
        a.e('v_mov_b32 v63, v0')
        a.e(f'v_readfirstlane_b32 {sV}, v1')
        a.e('v_and_b32 v0, 63, v0')
        a.e(f's_and_b32 {sX}, s2, 7')
        a.e(f's_lshr_b32 {sJ}, s2, 3')
        a.e(f's_lshl_b32 {sKV}, {sV}, 14')
        self.sums(sKG, [(sX, 1 << 23), (sJ, 1 << 18), (sV, 1 << 12)])
        a.e(f'v_lshlrev_b32 {vL16}, 4, v0')
        a.e('v_and_b32 v12, 48, v0')
        a.e('v_lshlrev_b32 v12, 1, v12')
        a.e(f'v_xor_b32 v8, v12, {vL16}')
        for q in range(1, 4):
            a.e(f'v_xor_b32 v{8 + q}, {TBL[q] << 4}, v8')
        a.e(f's_mov_b32 s6, {sizes[K_]}')
        a.e('s_mov_b32 s7, 0x20000')
        a.e('s_waitcnt lgkmcnt(0)')
        for t in range(4):
            if t < self.o.get('depth', 4):
                self.dma_tile(t)
            for srd, off in ptrs[3 * t:3 * t + 3]:
                b = base(srd)
                a.e(f's_load_dwordx2 s[{b}:{b + 1}], s[0:1], {off}')
        for srd, n in sizes.items():
            if srd != K_:
                a.e(f's_mov_b32 s{base(srd) + 2}, {n}')
                a.e(f's_mov_b32 s{base(srd) + 3}, 0x20000')
        a.e(f's_getpc_b64 s[82:83]')
        a.e('L_pc:')
        a.e('v_lshlrev_b32 v62, 7, v63')
        a.e(f'v_min_u32 v62, L_codeend-L_pc, v62')
        a.e('global_load_dword v61, v62, s[82:83]')
        a.e(f's_lshr_b32 {t1}, {sJ}, 3')
        self.sums(sH, [(sX, 4), (t1, 1)])
        a.e(f's_and_b32 {sS}, {sJ}, 7')
        a.e(f's_mov_b32 {sIT}, 0')
        a.e(f's_mov_b32 {sPOLL}, 0')
        a.e(f's_mov_b32 {sST}, 0')
        self.sums(sW8, [(sV, 8192)], STG)
        a.e('s_mov_b32 s84, 0x00ff00ff')
        a.e('s_mov_b32 s85, 0x000000ff')
        self.sums(oY, [(sS, 384)])
        self.sums(oQA, [(t1, 4096), (sV, 1024), (sS, 128)], L_QA)
        self.sums(oQB, [(t1, 4096), (sV, 512), (sS, 32)], L_QB)
        self.sums(oST, [(sJ, 8)], L_STA)
        a.e(f's_cmp_eq_u32 {sV}, 0')
        a.e(f's_cselect_b32 {oST}, {oST}, {OOB}')
        self.sums(oQgA, [(t1, 4096), (sV, 1024)], L_QA)
        self.sums(oSTgA, [(t1, 64)], L_STA)
        self.sums(oWQ, [(sS, 72 * 8192), (sH, 256), (sV, 24 * 8192)])
        a.e(f's_cmp_eq_u32 {sV}, 3')
        a.e(f's_cselect_b32 {oWQ}, {OOB}, {oWQ}')
        self.sums(oWUV, [(sS, 64 * 8192), (sH, 256), (sV, 64)])
        self.sums(oWUK, [(sJ, 16 * 8192), (sX, 1024), (sV, 256)])
        self.sums(oWO, [(sX, 512 * 1152), (sV, 128 * 1152), (sJ, 48)])
        self.sums(oYpub, [(sX, 3072), (sJ, 128)])
        if self.o.get('asym'):
            a.e(f's_getreg_b32 {t0}, hwreg(HW_REG_XCC_ID, 0, 3)')
            a.e(f's_lshr_b32 {t0}, {self.o["asym"][0]}, {t0}')
            a.e(f's_lshl_b32 {t0}, {t0}, 31')
            a.e(f's_or_b32 {oYpub}, {oYpub}, {t0}')
        a.e(f's_cmp_lt_u32 {sJ}, 24')
        a.e(f's_cselect_b32 {oWO}, {oWO}, {OOB}')
        a.e(f's_cselect_b32 {sRES}, 1, 0')
        a.e(f's_cmp_eq_u32 {sV}, 3')
        a.e(f's_cselect_b32 {sRES}, {sRES}, 0')
        a.e(f's_mul_i32 {t0}, {sRES}, 3')
        a.e(f's_cmp_eq_u32 {sX}, 0')
        a.e(f's_cselect_b32 {sRES}, {t0}, {sRES}')
        if self.o.get('stamps'):
            a.e('v_mov_b32 v7, 0')
            a.e('s_mov_b32 s97, 8')
        a.e('v_and_b32 v14, 1, v0')
        a.e('v_mul_u32_u24 v1, 0xaaaa, v14')
        a.e('v_add_u32 v1, 0x4444, v1')

        def tbl(dst, x, tmp):
            a.e(f'v_lshrrev_b32 {tmp}, 1, {x}')
            a.e(f'v_xor_b32 {dst}, {x}, {tmp}')
            a.e(f'v_and_b32 {dst}, 1, {dst}')
            a.e(f'v_lshl_or_b32 {dst}, {dst}, 3, {tmp}')
        a.e('v_lshrrev_b32 v12, 4, v0')
        a.e('v_and_b32 v13, 15, v0')
        a.e('v_lshrrev_b32 v15, 2, v13')
        tbl('v16', 'v15', 'v17')
        a.e('v_and_b32 v17, 3, v13')
        a.e('v_lshlrev_b32 v18, 1, v17')
        a.e('v_xor_b32 v16, v16, v18')
        a.e('v_xor_b32 v16, v16, v12')
        a.e('v_lshlrev_b32 v16, 4, v16')
        a.e(f'v_lshl_or_b32 {vA}, v13, 8, v16')
        a.e(f'v_add_u32 {vA}, {sKV}, {vA}')
        tbl('v16', 'v12', 'v18')
        a.e('v_lshlrev_b32 v18, 1, v15')
        a.e('v_xor_b32 v16, v16, v18')
        a.e('v_lshrrev_b32 v18, 1, v17')
        a.e('v_xor_b32 v16, v16, v18')
        a.e('v_lshlrev_b32 v16, 4, v16')
        a.e('v_lshrrev_b32 v18, 2, v0')
        a.e('v_lshl_or_b32 v16, v18, 8, v16')
        a.e(f'v_lshl_or_b32 {vT}, v14, 3, v16')
        a.e(f'v_add_u32 {vT}, {sKV}, {vT}')
        a.e('s_waitcnt lgkmcnt(0)')
        self.stamp('start')
        w, l, g = base(WS), base(WSL), base(WSG)
        a.e(f's_lshl_b32 {t0}, {sX}, 17')
        a.e(f's_add_u32 s{l}, s{w}, {t0}')
        a.e(f's_addc_u32 s{l + 1}, s{w + 1}, 0')
        a.e(f's_add_u32 s{g}, s{w}, {GB}')
        a.e(f's_addc_u32 s{g + 1}, s{w + 1}, 0')
        self.dma_wq(WQ, 'v56', 'v57')
        self.lnq_rows()
        a.e(f's_mul_i32 {t0}, {sS}, 144')
        a.e('s_mov_b32 exec_lo, 0x00010001')
        a.e('s_mov_b32 exec_hi, 0x00000001')
        for rho in range(3):
            a.e(f'buffer_load_dwordx4 {vr(16 + 4 * rho, 4)}, v0, {XIN}, {t0} offen offset:{48 * rho}')
        a.e('s_mov_b64 exec, -1')
        a.e('v_lshlrev_b32 v58, 2, v0')
        a.e(f's_mul_i32 {t0}, {sJ}, 48')
        a.e(f's_cmp_eq_u32 {sRES}, 3')
        a.e(f's_cselect_b32 {t0}, {t0}, {OOB}')
        a.e(f'buffer_load_dword v5, v58, {XIN}, {t0} offen')
        for r in range(56, 60):
            a.e(f'v_mov_b32 v{r}, -1')
        self.sums(t3, [(sX, 128), (sJ, 4), (sV, 1)])
        a.e(f's_lshl_b32 {t4}, {t3}, 10')
        self.sums(t1, [(t3, 768)], GB)
        self.sums(t5, [(t3, 4096)], CB)
        a.e(f'buffer_store_dwordx4 v[56:59], {vL16}, {WS}, {t4} offen sc1')
        a.e('v_mul_u32_u24 v60, 12, v0')
        a.e(f'buffer_store_dwordx3 v[56:58], v60, {WS}, {t1} offen sc1')
        for i in range(0 if self.o.get('c1_late', 1) else 4):
            a.e(f'buffer_store_dwordx4 v[56:59], {vL16}, {WS}, {t5} offen offset:{i * 1024} sc1')
        a.tag_vm('clr')
        for ks in range(4):
            a.e(f'v_xor_b32 v{12 + ks}, {ks << 6}, {vA}')

    def late_scalars(self):
        a = self.a
        if self.o.get('asym'):
            a.e(f's_bitset0_b32 {oYpub}, 31')
        a.e(f's_lshr_b32 {t1}, {sJ}, 3')
        a.e(f's_and_b32 {t2}, {sJ}, 1')
        a.e(f's_lshr_b32 {t3}, {sJ}, 1')
        a.e(f's_lshr_b32 {t4}, {sX}, 2')
        a.e(f's_and_b32 {t5}, {sX}, 3')
        self.sums(oQgB, [(sV, 4096)], L_QB)
        self.sums(oSTgB, [(sV, 64)], L_STB)
        self.sums(oQApub, [(t4, 16384), (t3, 1024), (t5, 256), (t2, 128)], G_QABS)
        self.sums(oQAg, [(t2, 16384), (sV, 4096)], G_QABS)
        self.sums(oC1pub, [(sX, 1 << 19), (t2, 1 << 18), (sV, 16384), (t3, 256)], CB)
        self.sums(oMLpub, [(t2, 2048), (t3, 32)], L_C1ML)
        self.sums(oC1g, [(sX, 1 << 19), (sJ, 16384), (sV, 4096)], CB)
        a.e(f's_lshr_b32 {t4}, {sJ}, 2')
        self.sums(oMLg, [(t4, 512)], L_C1ML)
        self.sums(oC2pub, [(sJ, 8192), (sV, 2048), (sX, 256)], G_C2)
        self.sums(oC2Lpub, [(t4, 1024), (sX, 128)], G_C2L)
        a.e(f's_and_b32 {t4}, {sJ}, 3')
        a.e(f's_cselect_b32 {oC2Lpub}, {OOB}, {oC2Lpub}')
        self.sums(oC2g, [(sX, 32768), (sS, 4096), (t1, 64)], G_C2)
        self.sums(oC2Lg, [(sX, 1024), (t1, 16)], G_C2L)
        self.sums(oOBpub, [(t1, 2048), (sV, 512), (sS, 32)], L_OB)
        self.sums(oOApub, [(t1, 2048), (sS, 32)], L_OA)
        self.sums(oOALpub, [(sJ, 4)], L_OAL)
        self.sums(oOALg, [(sV, 32)], L_OAL)
        self.sums(oRES, [(sJ, 128)])
        self.sums(oO, [(sV, 2048)], L_OA)
        a.e(f's_cmp_eq_u32 {sV}, 0')
        a.e(f's_cselect_b32 {oMLpub}, {oMLpub}, {OOB}')
        a.e(f's_cselect_b32 {oC2Lpub}, {oC2Lpub}, {OOB}')

    def pv_block(self, U):
        a = self.a
        self.sp_addr('v63', sW8)
        a.e(f'ds_read_b128 v[20:23], v63 offset:{6144 + 128 * U}')
        a.e('s_waitcnt lgkmcnt(0)')
        for e in range(8):
            a.e(f'v_smfmac_f32_16x16x64_bf16 {vr(24 + 4 * e, 4)}, v[20:23], {vr(64 + 64 * U + 8 * e, 8)}, v1')

    def stream(self):
        a = self.a
        o = self.o
        ckv_at = o.get('ckv_at', [22, 23, 24, 25])
        depth = o.get('depth', 4)
        for t in range(28):
            a.wait(vm=f'tile{t}')
            if o.get('sstamps') and t % 4 == 0:
                self.stamp(f't{t}')
            asym = o.get('asym')
            for pi, (pa, pl, pc_) in enumerate(o.get('pace', [])):
                if t == pc_:
                    pv = 'v55' if pc_ <= 22 else 'v60'
                    pw = 'v54' if pc_ <= 22 else 'v61'
                    chk, retry, done = a.lab('chk'), a.lab('pretry'), a.lab('pdone')
                    a.wait(vm=f'pace{pi}')
                    a.e(f'{chk}:')
                    a.e(f'v_cmp_gt_u32 vcc, {o.get("pace_n", 32)}, {pv}')
                    a.e(f's_cbranch_vccnz {retry}')
                    a.e(f'{done}:')
                    a.ool(f'{retry}:\ns_add_u32 {sPOLL}, {sPOLL}, 1\ns_cmp_gt_u32 {sPOLL}, 100000\ns_cbranch_scc1 {done}\ns_sleep 4\n'
                          f'buffer_load_dword {pv}, {pw}, {DBG}, 0 offen offset:{8 + 4 * pi} sc1\ns_waitcnt vmcnt(0)\ns_branch {chk}')
            if depth < 4 and not asym:
                self.dma_tile(t + depth)
            slot = (t & 3) * 4096
            if t < 16:
                for ks in range(4):
                    a.e(f'ds_read_b128 a[{16 * t + 4 * ks}:{16 * t + 4 * ks + 3}], v{12 + ks} offset:{slot}')
            else:
                u = t - 16
                if u == 0:
                    for e in range(8):
                        a.e(f'v_xor_b32 v{12 + e}, {e << 5}, {vT}')
                for e in range(8):
                    a.e(f'ds_read_b64_tr_b16 {vr(64 + 64 * (u >> 2) + 8 * e + 2 * (u & 3), 2)}, v{12 + e} offset:{slot}')
            a.e('s_waitcnt lgkmcnt(0)')
            if asym:
                if t >= asym[1] and t < asym[2]:
                    l = a.lab('deep')
                    a.e(f's_bitcmp1_b32 s96, 31')
                    a.e(f's_cbranch_scc1 {l}')
                    a.begin_skip()
                    a.wait(vm=f'tile{t + asym[3]}')
                    self.end_only(l)
                self.dma_tile(t + depth)
                if t == 27:
                    for u in range(28 + depth, 32):
                        self.dma_tile(u)
            elif depth == 4:
                self.dma_tile(t + 4)
            elif t == 27:
                for u in range(28 + depth, 32):
                    self.dma_tile(u)
            if t == 4:
                a.wait(vm='clr')
                a.e('v_lshlrev_b32 v60, 6, v0')
                if not o.get('c1_late', 1):
                    a.e(f'buffer_load_dword v61, v60, {WS}, {t5} offen')
                a.e('v_and_b32 v60, 0x3ff, v60')
                a.e(f'buffer_load_dword v61, v60, {WS}, {t4} offen')
                a.tag_vm('touch')
                a.e('v_lshlrev_b32 v4, 16, v5')
                a.e('v_and_b32 v5, 0xffff0000, v5')
            if t == o.get('atom_at', 5):
                a.e('s_barrier')
                l = self.wave_only(1)
                a.e('s_getreg_b32 s82, hwreg(HW_REG_XCC_ID, 0, 3)')
                a.e('s_lshl_b32 s82, s82, 3')
                a.e('s_lshl_b64 s[82:83], 1, s82')
                a.e('v_mov_b32 v58, s82')
                a.e('v_mov_b32 v59, s83')
                a.e(f's_lshl_b32 {t0}, {sX}, 5')
                a.e('s_mov_b64 exec, 1')
                a.e(f'buffer_atomic_add_x2 v[58:59], v0, {DBG}, {t0} offen sc1')
                a.e('s_mov_b64 exec, -1')
                self.end_only(l)
            if t == 9:
                a.wait(vm='touch')
                self.lnq_addr()
                self.lnq_prep()
                for rho in range(3):
                    for x in self.lnq_mfma(rho):
                        a.e(x)
                self.lnq_reduce(False)
            if t == o.get('wo_at', 9):
                self.dma_wo(WO, 61 if t > 9 else 56, 'v56' if t > 9 else 'v63')
            if t == o.get('cnt_at', 10):
                a.e('v_and_b32 v57, 7, v0')
                a.e('v_lshlrev_b32 v57, 5, v57')
                a.e(f'buffer_load_dwordx2 v[58:59], v57, {DBG}, 0 offen sc1')
                a.tag_vm('cnt')
            if t == 15:
                chk, retry, done = a.lab('chk'), a.lab('cretry'), a.lab('cdone')
                a.wait(vm='cnt')
                a.e(f'{chk}:')
                a.e('v_sad_u8 v61, v58, 0, 0')
                a.e('v_sad_u8 v61, v59, 0, v61')
                a.e('v_cmp_ne_u32 vcc, 32, v61')
                if not o.get('x_noinit'):
                    a.e(f's_cbranch_vccnz {retry}')
                a.e(f'{done}:')
                a.ool(f'{retry}:\ns_add_u32 {sPOLL}, {sPOLL}, 1\ns_cmp_gt_u32 {sPOLL}, 100000\ns_cbranch_scc1 {done}\ns_sleep 8\n'
                      f'buffer_load_dwordx2 v[58:59], v57, {DBG}, 0 offen sc1\ns_waitcnt vmcnt(0)\ns_branch {chk}')
                a.e('s_getreg_b32 s82, hwreg(HW_REG_XCC_ID, 0, 3)')
                a.e('s_lshl_b32 s82, s82, 3')
                a.e('s_lshl_b64 s[82:83], 32, s82')
                a.e(f'v_readlane_b32 {t2}, v58, {sX}')
                a.e(f'v_readlane_b32 {t3}, v59, {sX}')
                a.e(f's_cmp_eq_u64 s[82:83], s[80:81]')
                a.e(f's_cselect_b32 {sLOC}, {0 if o.get("force_slow") else 1}, {1 if o.get("x_noinit") else 0}')
                self.lnq_pubaddr(False, True)
                self.lcmp()
                self.lnq_publish(False, True)
            if t == 18:
                self.qa_addr(48)
                a.e(f's_add_u32 {t4}, {oQgA}, {L_CSA - L_QA}')
                ql = self.qa_loads(40, 52, 48) + [f'buffer_load_dwordx4 v[44:47], {vL16}, {WSL}, {t4} offen sc1']
                for x in ql:
                    a.e(x)
                a.tag_vm('q')
            if t == 22:
                a.wait(vm='q')
                self.late_check('v20', list(range(40, 48)) + [52, 53], ql)
                for x in self.red8(44):
                    a.e(x)
                a.e('v_cvt_pk_bf16_f32 v44, 0, v44')
                a.e('v_or_b32 v1, v1, v44')
                self.qa_finish(40, 52, 48, 56)
                for r in range(24, 40, 4):
                    a.e(f'v_mov_b64 {vr(r, 2)}, 0')
                self.p_addr('v45', 'v44')
                self.qk_softmax(56, 24, 40, 44)
                for x in self.lsum('v57', 40):
                    a.e(x)
                for x in self.ml_write(56):
                    a.e(x)
                for r in range(24, 56, 4):
                    a.e(f'v_mov_b64 {vr(r, 2)}, 0')
                a.e('s_waitcnt lgkmcnt(0)')
            for i, at in enumerate(ckv_at):
                if at == t:
                    self.dma_ckv(i)
            self.touches(f's{t}', 'v62', 'v31')
            if t == o.get('mlbar', 26):
                a.e('s_barrier')
                for x in self.ml_read(56, 20):
                    a.e(x)
                a.e('s_waitcnt lgkmcnt(0)')
                for x in self.ml_scale(56, 20, 21, 22):
                    a.e(x)
                a.e('v_readfirstlane_b32 s22, v21')
                a.e('v_readfirstlane_b32 s23, v22')
            if t == o.get('c1_late', 1) and t > 15:
                self.sums(t1, [(sX, 1 << 19), (sJ, 16384), (sV, 4096)], CB)
                for r in range(56, 60):
                    a.e(f'v_mov_b32 v{r}, -1')
                self.lcmp()
                self.lstore([f'buffer_store_dwordx4 v[56:59], {vL16}, {WS}, {t1} offen offset:{i * 1024}' for i in range(4)])
            if t == o.get('tlb_at', -1):
                g = o.get('tlb_n', 2)
                a.e(f's_mov_b64 exec, {(1 << g) - 1}')
                self.sums(t2, [(sX, 1 << 19)], CB)
                for srd, so, span in ((BWQ, oWQ, 24 * 8192), (WUK, oWUK, 16 * 8192), (WUV, oWUV, 64 * 8192), (BWO, oWO, 128 * 1152),
                                      (WS, t2, 1 << 19), (OUT, '0', 1024)):
                    a.e(f'v_mul_u32_u24 v62, {(span - 8192 if span > 8192 else span) // (g - 1) // 4 * 4}, v0')
                    a.e(f'buffer_load_dword v31, v62, {srd}, {so} offen')
                a.e('s_mov_b64 exec, -1')
            for pi, (pa, pl, pc_) in enumerate(o.get('pace', [])):
                if t == pa:
                    l = self.wave_only(1)
                    a.e('v_mov_b32 v62, 1')
                    a.e(f's_lshl_b32 {t0}, {sX}, 5')
                    a.e('s_mov_b64 exec, 1')
                    a.e(f'buffer_atomic_add v62, v0, {DBG}, {t0} offen offset:{8 + 4 * pi} sc1')
                    a.e('s_mov_b64 exec, -1')
                    self.end_only(l)
                pv = 'v55' if pc_ <= 22 else 'v60'
                pw = 'v54' if pc_ <= 22 else 'v61'
                if t == pl:
                    a.e(f'v_and_b32 {pw}, 7, v0')
                    a.e(f'v_lshlrev_b32 {pw}, 5, {pw}')
                    a.e(f'buffer_load_dword {pv}, {pw}, {DBG}, 0 offen offset:{8 + 4 * pi} sc1')
                    a.tag_vm(f'pace{pi}')
            if t == o.get('isl_at', 12):
                a.e('s_branch L_isl_0')
                a.e('L_isl_ret:')
            if t == o.get('late_touch', -1):
                self.sums(t3, [(sX, 128), (sJ, 4), (sV, 1)])
                a.e(f's_lshl_b32 {t2}, {t3}, 10')
                a.e('v_lshlrev_b32 v62, 7, v0')
                a.e('v_and_b32 v62, 0x3ff, v62')
                a.e(f'buffer_load_dword v31, v62, {WS}, {t2} offen')
            if t == 23:
                self.pv_block(0)
            if t == 24:
                self.pv_block(1)
        self.late_scalars()
        self.pv_block(2)
        a.e(f'ds_read_b128 v[20:23], v63 offset:{6144 + 128 * 3}')
        a.wait(vm='tile31')
        self.stamp('kvdone')

        def vread(e, s):
            for t in range(4):
                a.e(f'ds_read_b64_tr_b16 {vr(s + 2 * t, 2)}, v{16 + (e & 3)} offset:{t * 4096}')
            a.tag_ds(f'v{e}')
        order = [4, 5, 6, 7, 0, 1, 2, 3]
        vread(order[0], 8)
        vread(order[1], 56)
        for i, e in enumerate(order):
            a.wait(ds=f'v{e}')
            s = [8, 56][i & 1]
            a.e(f'v_smfmac_f32_16x16x64_bf16 {vr(24 + 4 * e, 4)}, v[20:23], {vr(s, 8)}, v1')
            if i + 2 < 8:
                if i >= 2:
                    a.e(f'v_xor_b32 v{16 + (order[i + 2] & 3)}, {order[i + 2] << 5}, {vT}')
                vread(order[i + 2], s)
        for e in order:
            a.e(f'v_add_f32_dpp v{16 + (e >> 2)}, v{24 + 4 * e}, v{25 + 4 * e} {DPPI} row_mask:{1 << (e & 3)} bank_mask:0xf')
        a.e('v_mul_f32 v45, s22, v17')
        a.e('v_mul_f32 v44, s22, v16')
        a.e(f'v_lshl_add_u32 v46, v0, 2, {sW8}')
        a.e('v_mov_b32 v47, s23')
        self.stamp('pv1')

    def tail(self, mode):
        a = self.a
        o = self.o
        base = lambda s: int(s[2:s.index(':')])
        self.mode = mode
        n0 = self.nst
        a.vmq = [['wo', ()]] + [[None, ()] for _ in range(len(o.get('touch', {}).get('s27', [])) if o.get('wo_at', 9) == 27 else 40)]
        l, g = base(WSL), base(WSG)
        a.e(f'L_top_{mode}:')
        self.combine_publish()
        self.stamp('opub')
        a.e(f's_mul_i32 {t0}, {sRES}, {sIT}')
        self.resid_track(G_YB, 10, 'v8', f's_cmp_eq_u32 {t0}, 3')
        a.e(f's_mul_i32 {t0}, {sIT}, {G_IT}')
        a.e(f's_add_u32 s{g}, s{g}, {t0}')
        a.e(f's_addc_u32 s{g + 1}, s{g + 1}, 0')
        self.outproj(True)
        self.lnq_tail(G_YA, True)
        self.qabs()
        self.attn_b()
        self.red()
        self.uv()
        self.outproj(False)
        a.e(f's_cmp_eq_u32 {sIT}, 1')
        a.e(f's_cbranch_scc1 L_final_{mode}')
        a.e(f's_add_u32 s{l}, s{l}, {L_IT}')
        a.e(f's_addc_u32 s{l + 1}, s{l + 1}, 0')
        a.e(f's_mov_b32 s{l + 2}, {L_IT}')
        a.e(f's_mov_b32 {sIT}, 1')
        self.lnq_tail(G_YB, False)
        self.attn_a3()
        self.nper = self.nst - n0
        self.n0 = n0
        if o.get('stamps'):
            a.e('s_mov_b32 s97, 5')
        a.e(f's_branch L_top_{mode}')
        a.e(f'L_final_{mode}:')
        a.e(f's_cmp_lg_u32 {sRES}, 3')
        a.e('s_cbranch_scc1 L_fin2')
        self.resid(G_YB, 10, 'v8', True)
        a.e(f'buffer_store_dword v9, v8, {OUT}, {t0} offen')
        a.e('s_mov_b64 exec, -1')
        self.mode = None

    def build(self):
        a = self.a
        o = self.o
        base = lambda s: int(s[2:s.index(':')])
        self.prologue()
        self.stream()
        a.e(f's_cmp_eq_u32 {sLOC}, 0')
        a.e('s_cbranch_scc1 L_top_slow')
        self.tail('fast')
        a.e('L_fin2:')
        if o.get('diag_fixed'):
            a.e('L_dfx:')
            a.e('s_memrealtime s[94:95]')
            a.e('s_waitcnt lgkmcnt(0)')
            a.e('s_sub_u32 s94, s94, s100')
            a.e(f's_cmp_lt_u32 s94, {o["diag_fixed"]}')
            a.e('s_cbranch_scc1 L_dfx')
        if o.get('stamps'):
            a.e('s_waitcnt vmcnt(0) lgkmcnt(0)')
            self.stamp('end')
            a.e('s_waitcnt lgkmcnt(0)')
            a.e('v_writelane_b32 v7, s98, 62')
            a.e(f'v_writelane_b32 v7, {sPOLL}, 63')
            a.e('s_getreg_b32 s82, hwreg(HW_REG_XCC_ID, 0, 3)')
            a.e('s_getreg_b32 s83, hwreg(HW_REG_HW_ID)')
            a.e('s_lshl_b32 s83, s83, 4')
            a.e('s_or_b32 s82, s82, s83')
            a.e('v_writelane_b32 v7, s82, 61')
            self.sums(t1, [('s2', 1024), (sV, 256)], STAMP)
            a.e('v_lshlrev_b32 v8, 2, v0')
            a.e(f'buffer_store_dword v7, v8, {WS}, {t1} offen')
        a.e('L_end:')
        a.e('s_endpgm')
        slow = Gen(self.o)
        slow.a.uid = 500000
        slow.a.cold = True
        slow.tail('slow')
        slow.a.e('s_branch L_fin2')
        sb = slow.a.finish()
        sb = sb[:sb.index('L_isl_0:')]
        body = a.finish()
        ref = open('cdna_kernels/' + NAME + '.s.ref').read() if o.get('hdr', True) else ''
        hdr = ''.join(l + '\n' for l in ref.split('\n') if l.startswith(';') and '@launch' not in l and 'Override' not in l and 'grid=ceil' not in l)
        txt = hdr + '; @launch grid=(256,1,1) block=(256,1,1) lds=163840\n'
        txt += '.amdgcn_target "amdgcn-amd-amdhsa--gfx950"\n.text\n'
        txt += f'.globl {NAME}_kernel\n.p2align 8\n.type {NAME}_kernel,@function\n{NAME}_kernel:\n'
        txt += body
        txt += 'L_codeend:\n' + sb
        txt += f"""    s_endpgm
.section .rodata,"a"
.p2align 6
.amdhsa_kernel {NAME}_kernel
  .amdhsa_next_free_vgpr 512
  .amdhsa_next_free_sgpr 102
  .amdhsa_accum_offset 256
  .amdhsa_group_segment_fixed_size 0
  .amdhsa_kernarg_size 112
  .amdhsa_user_sgpr_count 2
  .amdhsa_user_sgpr_kernarg_segment_ptr 1
  .amdhsa_system_sgpr_workgroup_id_x 1
.end_amdhsa_kernel
"""
        return txt


DEFAULT = dict(sleep=dict(h2a=7, h2b=7, h2c=2, ha=11, ha1=5, hc2=3, hc2b=2, fin=10), pol_c='nt', depth=3,
               touch=dict(s27=['bwo', 'c1'], w1b=['wuk']), wo_e=0, wo_pre=3, red_pre=4, pol_wq3='nt',
               late_touch=-1, wo_at=9, warm=0, c1_late=1, ml_early=2, qflag=0, atom_at=4, cnt_at=12, ckv_at=[10, 11, 12, 13])

if __name__ == '__main__':
    import json
    opt = dict(DEFAULT)
    out = sys.argv[1]
    if len(sys.argv) > 2:
        opt.update(json.loads(sys.argv[2]))
    g = Gen(opt)
    open(out, 'w').write(g.build())
    print('nops', g.a.nops, 'stamps', g.stnames, g.n0, g.nper)
```

```python
import sys, math, struct
from asmlib import Asm

NAME = 'interleave_layers__mha_block_cached__compressed_kv_cla__decode'


def f32(x):
    return '0x%08x' % struct.unpack('<I', struct.pack('<f', x))[0]


K1 = 1024
L_X = 128 * K1
L_IT = 72 * K1
L_SZ = 56 * K1
L_QA, L_QB, L_OA, L_OB, L_C1ML = 0, 16 * K1, 32 * K1, 40 * K1, 48 * K1
L_STA, L_STB, L_OAL, L_FL = 52 * K1, 52 * K1 + 256, 52 * K1 + 512, 52 * K1 + 640
L_CSA = 56 * K1
GB, G_IT = 0x100000, 384 * K1
G_YA, G_YB, G_QABS, G_C2L, G_C2 = 0, 24 * K1, 48 * K1, 80 * K1, 112 * K1
CB = 0x200000
STAMP = 0x800000
WS_SIZE = 0x1000000
OOB = 0x40000000
CKV = 65536
STG = 131072
ZML = STG + 7168
ZO = STG + 8192 + 7168
ZQ = STG + 2 * 8192 + 7168
K_, V_, CK, DBG, XIN, WQ, WO, BWQ, WUK, WUV, BWO, WS, WSL, WSG, OUT = ['s[%d:%d]' % (4 + 4 * i, 7 + 4 * i) for i in range(15)]
(sX, sJ, sV, sLOC, sW8, sKV, sKG, sIT, sPOLL, sM, sRES, sST, sH, sS,
 t0, t1, t2, t3, t4, t5) = ['s%d' % i for i in range(64, 84)]
MY = 's[84:85]'
(oY, oQA, oQB, oST, oQgA, oSTgA, oWQ, oWO, oWUK, oWUV, oYpub) = ['s%d' % i for i in range(86, 97)]
(oQgB, oSTgB, oQApub, oQAg, oC1pub, oMLpub, oC1g, oMLg, oC2pub, oC2Lpub, oC2g, oC2Lg,
 oOBpub, oOApub, oOALpub, oOALg, oRES, oO) = ['s%d' % i for i in range(4, 22)]
vT, vA, vL16 = 'v2', 'v3', 'v6'
TBL = [0, 8, 9, 1]
DPPI = 'quad_perm:[0,1,2,3]'
FULL = 'row_mask:0xf bank_mask:0xf'
QSCALE = math.log2(math.e) / math.sqrt(128.0)


def vr(a, n):
    return f'v[{a}:{a + n - 1}]' if n > 1 else f'v{a}'


class Gen:
    def __init__(self, opt):
        self.o = opt
        self.a = Asm()
        self.nst = 0
        self.stnames = []
        self.mode = None

    def stamp(self, name, level=1):
        if self.o.get('stamps', 0) < level or self.mode == 'slow':
            return
        if self.o.get('only') and name not in self.o['only'] and name != 'end':
            return
        a = self.a
        self.nst += 1
        self.stnames.append(name)
        a.e(f's_mov_b32 m0, {sST}')
        a.e(f's_pack_ll_b32_b16 s98, s98, {sPOLL}')
        a.e('v_writelane_b32 v7, s98, m0')
        a.e(f's_mov_b32 {sST}, {self.nst}')
        a.e(f's_bitset1_b32 {sST}, s97')
        a.e('s_memtime s[98:99]' if self.o.get('clk') else 's_memrealtime s[98:99]')

    def K(self, n, key=None, force=False):
        if key is not None:
            n = self.o.get('K', {}).get(key, n)
        if not self.o.get('warm', 1) and not force:
            return
        for i in range(n):
            self.a.e('v_mov_b32 v0, v0')
            self.a.e('s_nop 2')

    def H(self, key, n, junk):
        n = self.o.get('H', {}).get(key, n if self.o.get('heat', 1) else 0)
        for i in range(n):
            self.a.e(f'v_mfma_f32_16x16x4_f32 {vr(junk, 4)}, v0, v0, 0')

    def Wm(self):
        if self.o.get('warm', 1):
            self.a.e('v_mov_b32 v0, v0')

    def bar(self, n=2, vm=False):
        self.K(n)
        self.Wm()
        self.a.e('s_waitcnt vmcnt(0) lgkmcnt(0)' if vm else 's_waitcnt lgkmcnt(0)')
        self.Wm()
        self.a.e('s_barrier')
        self.Wm()

    def retry_to(self, top):
        a = self.a
        done, retry = a.lab('got'), a.lab('retry')
        a.e(f's_cbranch_vccnz {retry}')
        a.e(f'{done}:')
        a.ool(f'{retry}:\ns_cselect_b32 s3, 1, 0\ns_add_u32 {sPOLL}, {sPOLL}, 1\ns_cmp_gt_u32 {sPOLL}, 100000\ns_nop 1\ns_cbranch_scc0 {top}\n'
              f's_cmp_eq_u32 s3, 1\ns_branch {done}')

    def ool_if(self, cond, fn, els=None):
        a = self.a
        go, back = a.lab('go'), a.lab('back')
        a.e(cond)
        a.e(f's_cbranch_scc1 {go}')
        if els:
            a.begin_skip()
            els()
            a.end_skip()
        a.e(f'{back}:')
        sub = Asm()
        sub.uid = a.uid + 1000 * (1 + len(a.tail))
        self.a = sub
        sub.e(f'{go}:')
        sub.e('s_nop 1')
        fn()
        sub.e('s_nop 1')
        sub.e(f's_branch {back}')
        self.a = a
        tail, sub.tail = sub.tail, []
        body = sub.finish().split('\n')
        body = [x.strip() for x in body[:[i for i, x in enumerate(body) if x.startswith('L_isl_0')][0]] if x.strip()]
        for k in range(0, len(body), 14):
            part = body[k:k + 14]
            if k + 14 < len(body):
                nxt = a.lab('p')
                part.append(f's_branch {nxt}')
                body[k + 14] = f'{nxt}:\n' + body[k + 14]
            a.ool('\n'.join(part))
        for t in tail:
            a.ool(t)

    def lstore(self, lines):
        a = self.a
        if self.mode is not None:
            for l in lines:
                a.e(l + ' sc1' if self.mode == 'slow' and l.startswith('buffer_') else l)
            return
        slow, back = a.lab('slow'), a.lab('back')
        a.e(f's_cbranch_scc1 {slow}')
        for l in lines:
            a.e(l)
        a.e(f'{back}:')
        a.ool('#cold' + f'{slow}:\ns_nop 7\n' + '\n'.join(l + ' sc1' if l.startswith('buffer_') else l for l in lines) + f'\ns_branch {back}')

    def lcmp(self):
        if self.mode is None:
            self.a.e(f's_cmp_eq_u32 {sLOC}, 0')

    def poll_begin(self):
        a = self.a
        self.ptop, self.pretry, self.pdone = a.lab('poll'), a.lab('retry'), a.lab('got')
        a.e(f'{self.ptop}:')

    def poll_end(self, vmax):
        a = self.a
        a.e(f'v_cmp_eq_u32 vcc, -1, {vmax}')
        a.e(f's_cbranch_vccnz {self.pretry}')
        a.e(f'{self.pdone}:')
        a.ool(f'{self.pretry}:\ns_add_u32 {sPOLL}, {sPOLL}, 1\ns_cmp_gt_u32 {sPOLL}, 100000\ns_cbranch_scc1 {self.pdone}\ns_nop 7\ns_branch {self.ptop}')

    def poll_cmp(self, vmax):
        self.a.e(f'v_cmp_eq_u32 vcc, -1, {vmax}')

    def poll_br(self, last=True):
        a = self.a
        done = a.lab('got')
        retry = a.lab('retry')
        a.e(f's_cbranch_vccnz {retry}')
        a.e(f'{done}:')
        a.ool(f'{retry}:\ns_cselect_b32 s3, 1, 0\ns_add_u32 {sPOLL}, {sPOLL}, 1\ns_cmp_gt_u32 {sPOLL}, 100000\ns_cbranch_scc0 {self.ptop}\n'
              f's_cmp_eq_u32 s3, 1\ns_branch {done}')

    def pipe_poll(self, ld, vmax, regs, key, mid=()):
        a = self.a
        n = sum(x.startswith('buffer') for x in ld)
        if self.o.get('pipe', {}).get(key, 1):
            self.poll_begin()
            for x in ld:
                self.H(key + '0', 0, 40)
                a.e(x)
            self.H(key + '1', 0, 40)
            a.e(f's_waitcnt vmcnt({n})')
            self.maxchain(vmax, regs, True)
            self.poll_cmp(vmax)
            for x in mid:
                a.e(x)
            self.poll_br()
        else:
            a.e('s_waitcnt vmcnt(0)')
            self.late_check(vmax, regs, ld)

    def late_check(self, vmax, regs, reissue):
        a = self.a
        chk, retry, done = a.lab('chk'), a.lab('retry'), a.lab('done')
        a.e(f'{chk}:')
        self.maxchain(vmax, regs, True)
        a.e(f'v_cmp_eq_u32 vcc, -1, {vmax}')
        a.e(f's_cbranch_vccnz {retry}')
        a.e(f'{done}:')
        a.ool(f'{retry}:\ns_add_u32 {sPOLL}, {sPOLL}, 1\ns_cmp_gt_u32 {sPOLL}, 100000\ns_cbranch_scc1 {done}\n'
              + '\n'.join(reissue) + f'\ns_waitcnt vmcnt(0)\ns_branch {chk}')

    def maxchain(self, vmax, regs, first):
        a = self.a
        regs = list(regs)
        if first:
            if len(regs) >= 3:
                a.e(f'v_max3_u32 {vmax}, v{regs[0]}, v{regs[1]}, v{regs[2]}')
                regs = regs[3:]
            elif len(regs) == 2:
                a.e(f'v_max_u32 {vmax}, v{regs[0]}, v{regs[1]}')
                regs = []
            else:
                a.e(f'v_mov_b32 {vmax}, v{regs[0]}')
                regs = []
        while len(regs) >= 2:
            a.e(f'v_max3_u32 {vmax}, {vmax}, v{regs[0]}, v{regs[1]}')
            regs = regs[2:]
        if regs:
            a.e(f'v_max_u32 {vmax}, {vmax}, v{regs[0]}')

    def sleep(self, key):
        n = self.o.get('sleep', {}).get(key, 0)
        if n:
            self.a.e(f's_sleep {n}')

    def wave_only(self, w):
        a = self.a
        l = a.lab('notw')
        a.e(f's_cmp_lg_u32 {sV}, {w}')
        a.e(f's_cbranch_scc1 {l}')
        a.begin_skip()
        return l

    def end_only(self, lab):
        self.a.end_skip()
        self.a.e(f'{lab}:')

    def pos_bytes(self, dst, tmp):
        a = self.a
        a.e(f'v_lshlrev_b32 {dst}, 3, v0')
        a.e(f'v_and_b32 {dst}, 16, {dst}')
        a.e(f'v_and_or_b32 {dst}, v0, 12, {dst}')

    def sp_addr(self, dst, base):
        a = self.a
        a.e(f'v_and_b32 {dst}, 48, v0')
        a.e(f'v_lshlrev_b32 {dst}, 1, {dst}')
        a.e(f'v_and_or_b32 {dst}, {vL16}, 16, {dst}')
        if base:
            a.e(f'v_add_u32 {dst}, {base}, {dst}')

    def sums(self, dst, terms, const=0):
        a = self.a
        first = True
        for reg, mul in terms:
            d = dst if first else t0
            if mul & (mul - 1) == 0:
                a.e(f's_lshl_b32 {d}, {reg}, {mul.bit_length() - 1}')
            else:
                a.e(f's_mul_i32 {d}, {reg}, {mul}')
            if not first:
                a.e(f's_add_u32 {dst}, {dst}, {t0}')
            first = False
        if const:
            a.e(f's_add_u32 {dst}, {dst}, {const}')

    def k64_addr(self, vt, vu):
        a = self.a
        a.e(f'v_lshrrev_b32 {vt}, 2, v0')
        a.e(f'v_lshlrev_b32 {vt}, 13, {vt}')
        a.e(f'v_and_or_b32 {vt}, {vL16}, 48, {vt}')

    def wq_prep(self, vt, vu):
        a = self.a
        a.e(f'v_lshrrev_b32 {vu}, 4, v0')
        a.e(f'v_lshlrev_b32 {vt}, 5, {vu}')
        a.e(f'v_xor_b32 {vt}, {vt}, {vL16}')
        a.e(f'v_and_b32 {vt}, 0xf0, {vt}')
        a.e(f'v_lshl_or_b32 {vt}, {vu}, 13, {vt}')
        a.e(f'v_xor_b32 {vu}, 0x80, {vt}')

    def wq_issue(self, srd, vt, vu, parts, pol=''):
        a = self.a
        for i in parts:
            if i == parts[0] or i == 3:
                a.e(f's_add_u32 m0, {sW8}, {(i // 3) * 3072}')
            a.e(f's_add_u32 {t1}, {oWQ}, {i * 4 * 8192 - (i % 3) * 1024}')
            a.e(f'buffer_load_dwordx4 {vu if (i >> 1) & 1 else vt}, {srd}, {t1} offen offset:{(i % 3) * 1024} {pol} lds')
        a.tag_vm('wq')

    def dma_wq(self, srd, vt, vu, pol=''):
        self.wq_prep(vt, vu)
        self.wq_issue(srd, vt, vu, list(range(6)), pol)

    def dma_wuv(self, vt):
        a = self.a
        pol = self.o.get('pol_w', '')
        self.k64_addr(vt, None)
        for i in range(4):
            a.e(f's_add_u32 m0, {sW8}, {i * 1024}')
            a.e(f's_add_u32 {t1}, {oWUV}, {i * 16 * 8192}')
            a.e(f'buffer_load_dwordx4 {vt}, {WUV}, {t1} offen {pol} lds')
        a.tag_vm('wuv')

    def wuk_prep(self, vt, vu):
        a = self.a
        a.e(f'v_lshrrev_b32 {vu}, 4, v0')
        a.e(f'v_lshlrev_b32 {vt}, 5, {vu}')
        a.e(f'v_xor_b32 {vt}, {vt}, {vL16}')
        a.e(f'v_and_b32 {vt}, 0xf0, {vt}')
        a.e(f'v_lshl_or_b32 {vt}, {vu}, 13, {vt}')

    def wuk_issue(self, vt, vu):
        a = self.a
        pol = self.o.get('pol_wuk', '')
        a.e(f's_mov_b32 m0, {sW8}')
        for q in range(4):
            a.e(f's_add_u32 {t1}, {oWUK}, {q * (4 * 8192 - 1024)}')
            if q:
                a.e(f'v_xor_b32 {vu}, {TBL[q] << 4}, {vt}')
            a.e(f'buffer_load_dwordx4 {vu if q else vt}, {WUK}, {t1} offen offset:{q * 1024} {pol} lds')
        a.tag_vm('wuk')

    def wo_prep(self, R, tmp):
        a = self.a
        for i in range(3):
            a.e(f'v_add_u32 v{R + i}, {64 * i}, v0')
            a.e(f'v_mul_u32_u24 {tmp}, 21846, v{R + i}')
            a.e(f'v_lshrrev_b32 {tmp}, 16, {tmp}')
            a.e(f'v_mul_u32_u24 {tmp}, {1152 - 48}, {tmp}')
            a.e(f'v_lshl_add_u32 v{R + i}, v0, 4, {tmp}')
        a.e(f's_add_u32 {t5}, {oWO}, {64 * 1152}')

    def wo_lines(self, srd, R, pol='', base=sW8):
        out = []
        for h in range(2):
            out.append(f's_add_u32 m0, {base}, {h * 3072}')
            for i in range(3):
                out.append(f'buffer_load_dwordx4 v{R + i}, {srd}, {t5 if h else oWO} offen offset:{i * 1024} {pol} lds')
        return out

    def wo_group(self, srd, R, lo, hi):
        out = []
        for k in range(lo, hi):
            h, i = divmod(k, 3)
            if k == lo or i == 0:
                out.append(f's_add_u32 m0, {sW8}, {h * 3072}')
            out.append(f'buffer_load_dwordx4 v{R + i}, {srd}, {t5 if h else oWO} offen offset:{i * 1024} lds')
        return out

    def dma_wo(self, srd, R, tmp):
        self.wo_prep(R, tmp)
        for x in self.wo_lines(srd, R, self.o.get('pol_wo1', '')):
            self.a.e(x)
        self.a.tag_vm('wo')

    def touch(self, what, vt, vd):
        a = self.a
        if what == 'code':
            l = a.lab('pc')
            self.sums(t1, [(sJ, 1024), (sV, 256)])
            a.e(f'v_lshl_add_u32 {vt}, v0, 7, {t1}')
            a.e(f'v_min_u32 {vt}, L_codeend-L_top_fast, {vt}')
            a.e('s_getpc_b64 s[0:1]')
            a.e(f'{l}:')
            a.e(f's_add_u32 s0, s0, L_top_fast-{l}')
            a.e(f's_addc_u32 s1, s1, {0 if self.mode is None else -1}')
            a.e('s_mov_b64 exec, 3')
            a.e(f'global_load_dword {vd}, {vt}, s[0:1]')
            a.e('s_mov_b64 exec, -1')
            return
        half = None
        if what[-1] in '01' and what != 'c1':
            what, half = what[:-1], int(what[-1])
        if what in ('wq', 'bwq', 'wuv', 'wuk'):
            srd = {'wq': WQ, 'bwq': BWQ, 'wuv': WUV, 'wuk': WUK}[what]
            a.e(f'v_lshrrev_b32 {vt}, 3, v0')
            a.e(f'v_lshlrev_b32 {vt}, 6, {vt}')
            a.e(f'v_and_or_b32 {vt}, v0, 7, {vt}')
            a.e(f'v_lshlrev_b32 {vt}, 7, {vt}')
            rows = 5 if what in ('wq', 'bwq') else 4
            self.sums(t1, [(sJ, 4 * rows * 8192), (sV, rows * 8192), (sX, 1024)])
            n = 8 * rows
        elif what == 'loc':
            srd = WS
            a.e(f'v_lshlrev_b32 {vt}, 7, v0')
            self.sums(t1, [(sX, L_X), (sJ, 4096), (sV, 1024)])
            n = 8
        elif what == 'c1':
            srd = WS
            a.e(f'v_lshlrev_b32 {vt}, 7, v0')
            self.sums(t1, [(sX, 1 << 19), (sJ, 16384), (sV, 4096)], CB)
            n = 32
        else:
            srd = {'wo': WO, 'bwo': BWO}[what]
            a.e(f'v_lshlrev_b32 {vt}, 7, v0')
            self.sums(t1, [(sX, 512 * 1152), (sJ, 18432), (sV, 4608)])
            n = 36
        m = (1 << n) - 1
        if half == 0:
            m = (1 << (n // 2)) - 1
        elif half == 1:
            m ^= (1 << (n // 2)) - 1
        a.e(f's_mov_b32 exec_lo, {m & 0xffffffff}')
        a.e(f's_mov_b32 exec_hi, {m >> 32}')
        if vd is None:
            a.e(f's_add_u32 m0, {sW8}, 1024')
            a.e(f'buffer_load_dword {vt}, {srd}, {t1} offen lds')
        else:
            a.e(f'buffer_load_dword {vd}, {vt}, {srd}, {t1} offen')
        a.e('s_mov_b64 exec, -1')

    def touches(self, where, vt, vd):
        for w in self.o.get('touch', {}).get(where, []):
            self.touch(w, vt, vd)

    def lnq_addr(self):
        a = self.a
        a.e('v_lshrrev_b32 v52, 4, v0')
        a.e('v_cmp_gt_u32 vcc, 3, v52')
        a.e('v_bfe_u32 v53, v0, 2, 2')
        a.e('v_cndmask_b32 v52, 0, v52, vcc')
        a.e('v_and_b32 v54, 1, v52')
        a.e('v_lshl_add_u32 v54, v54, 2, v53')
        a.e('v_lshl_add_u32 v52, v52, 3, v53')
        a.e('v_and_b32 v53, 3, v0')
        a.e('v_lshl_or_b32 v53, v54, 2, v53')
        a.e('v_lshlrev_b32 v53, 3, v53')
        a.e('v_lshl_or_b32 v52, v52, 8, v53')
        a.e(f's_lshl_b32 {t0}, {sV}, 6')
        a.e(f's_add_u32 {t0}, {t0}, {STG}')
        a.e(f'v_xor_b32 v52, {t0}, v52')
        a.e('v_xor_b32 v54, 32, v52')

    def lnq_prep(self):
        a = self.a
        a.wait(vm='wq')
        a.e('s_barrier')
        for rho in range(3):
            for tau in range(2):
                for half in range(2):
                    a.e(f'ds_read_b64_tr_b16 {vr(28 + 8 * rho + 4 * tau + 2 * half, 2)}, v{52 + 2 * tau} offset:{8192 * rho + 1024 * half}')
        a.e('s_waitcnt lgkmcnt(0)')
        a.e('s_barrier')

    def lnq_rows(self):
        a = self.a
        a.e('v_mov_b32 v53, 0x3f803f80')
        a.e(f's_lshl_b64 s[82:83], {MY}, 8')
        a.e('v_cndmask_b32 v16, 0, v53, s[82:83]')
        a.e('v_mov_b32 v17, v16')
        for r in range(18, 28, 2):
            a.e(f'v_mov_b64 {vr(r, 2)}, v[16:17]')

    def lnq_mfma(self, rho):
        a = self.a
        A = vr(16 + 4 * rho, 4)
        c = (lambda r: '0') if rho == 0 else (lambda r: r)
        return [f'v_mfma_f32_16x16x32_bf16 v[60:63], {A}, {A}, {c("v[60:63]")}',
                f'v_mfma_f32_16x16x32_bf16 v[52:55], {A}, {vr(28 + 8 * rho, 4)}, {c("v[52:55]")}',
                f'v_mfma_f32_16x16x32_bf16 v[56:59], {A}, {vr(32 + 8 * rho, 4)}, {c("v[56:59]")}']

    def lnq_reduce(self, isb, chk=False):
        a = self.a
        a.e('v_pk_add_f32 v[60:61], v[60:61], v[62:63]')
        a.e('v_add_f32 v60, v60, v61')
        if chk:
            a.e('v_cmp_u_f32 vcc, v60, v60')
        a.e('v_pk_add_f32 v[52:53], v[52:53], v[54:55]')
        a.e('v_mov_b32 v61, v60')
        a.e('v_pk_add_f32 v[56:57], v[56:57], v[58:59]')
        a.e('v_add_f32 v52, v52, v53')
        a.e('v_permlane16_swap_b32 v60, v61')
        a.e('v_add_f32 v56, v56, v57')
        a.e('v_add_f32 v60, v60, v61')
        a.e('v_permlane16_swap_b32 v52, v56')
        a.e(f'v_add_f32_dpp v60, v60, v60 quad_perm:[1,0,3,2] {FULL}')
        a.e('v_add_f32 v52, v52, v56')
        self.lcmp()
        a.e(f'v_add_f32_dpp v60, v60, v60 quad_perm:[2,3,0,1] {FULL}')
        if isb:
            a.e(f'v_mov_b32_dpp v53, v52 quad_perm:[1,0,3,2] {FULL}')
            a.e('v_cvt_pk_bf16_f32 v52, v52, v53')
        a.e(f'v_add_f32_dpp v60, v60, v60 row_half_mirror {FULL}')

    def lnq_pubaddr(self, isb, first):
        a = self.a
        if isb:
            self.pos_bytes('v14', None)
            a.e('v_and_b32 v15, 16, v0')
            a.e('v_lshl_or_b32 v14, v15, 4, v14')
            a.e('v_and_b32 v15, 32, v0')
            a.e('v_lshl_or_b32 v14, v15, 6, v14')
        else:
            a.e('v_and_b32 v14, 31, v0')
            a.e('v_lshlrev_b32 v14, 2, v14')
            if first:
                a.e('v_lshrrev_b32 v15, 5, v0')
                a.e(f'v_mul_u32_u24 v15, {L_CSA - L_QA}, v15')
                a.e('v_add_u32 v14, v14, v15')
        a.e('v_lshrrev_b32 v15, 1, v0')

    def lnq_publish(self, isb, first, q='v52', st='v60', qa='v14', sa='v15'):
        lines = []
        if isb:
            lines += ['s_mov_b32 exec_lo, 0x55555555', 's_mov_b32 exec_hi, 0x55555555']
        elif not first:
            lines += ['s_mov_b32 exec_hi, 0']
        lines += [f'buffer_store_dword {q}, {qa}, {WSL}, {oQB if isb else oQA} offen',
                  's_mov_b64 exec, 0x101',
                  f'buffer_store_dword {st}, {sa}, {WSL}, {oST} offen offset:{256 if isb else 0}',
                  's_mov_b64 exec, -1']
        self.lstore(lines)

    def lnq_tail(self, goff, isb):
        a = self.a
        if self.o.get('ybar', 1):
            a.e('s_barrier')
        self.lnq_rows()
        a.e('v_lshrrev_b32 v12, 2, v0')
        a.e('v_mul_u32_u24 v12, 3072, v12')
        a.e(f'v_and_or_b32 v12, {vL16}, 48, v12')
        a.e(f's_lshl_b32 {t4}, {sV}, 7')
        a.e(f's_add_u32 {t4}, {t4}, {oY}')
        a.e(f's_add_u32 {t4}, {t4}, {goff}')
        a.e(f's_add_u32 {t5}, {sW8}, 6144')
        l = a.lab('now')
        a.e(f's_cmp_eq_u32 {sV}, 3')
        a.e(f's_cselect_b32 {t4}, {OOB}, {t4}')
        a.e(f's_cbranch_scc1 {l}')
        a.begin_skip()
        self.dma_wq(BWQ if isb else WQ, 'v8', 'v9', self.o.get('pol_bwq', '') if isb else self.o.get('pol_wq3', ''))
        self.end_only(l)
        if not self.o.get('ybar', 1):
            a.e('s_barrier')
        self.lnq_addr()
        self.lnq_pubaddr(isb, False)
        a.e('v_and_b32 v11, 7, v0')
        a.e('v_lshlrev_b32 v11, 6, v11')
        a.e('v_and_or_b32 v11, v0, 48, v11')
        a.e(f'v_add_u32 v11, {STG + 6144}, v11')
        a.e('v_mov_b32 v13, 0')
        if isb:
            self.wuk_prep('v8', 'v9')
            a.e(f's_cmp_eq_u32 {sV}, 1')
            a.e(f's_cselect_b32 {t3}, {oOALpub}, {OOB}')
        else:
            for r in range(56, 60):
                a.e(f'v_mov_b32 v{r}, -1')
        if isb and self.o.get('c1_late', 1) == 1:
            def clear1():
                b = self.a
                for r in range(56, 60):
                    b.e(f'v_mov_b32 v{r}, -1')
                self.lstore([f'buffer_store_dwordx4 v[56:59], {vL16}, {WS}, {oC1g} offen offset:{i * 1024}' for i in range(4)])
                self.sums(t1, [(sX, 128 * 384), (sJ, 4 * 384), (sV, 384)], GB + G_IT)
                b.e('s_mov_b64 exec, 0xffffff')
                b.e(f'buffer_store_dwordx4 v[56:59], {vL16}, {WS}, {t1} offen sc1')
                b.e('s_mov_b64 exec, -1')
                self.sleep('h2c')
            self.ool_if(f's_cmp_eq_u32 {sIT}, 0', clear1, lambda: self.sleep('h2a'))
        else:
            self.sleep('h2a' if isb else 'h2b')
        ld = [f's_mov_b32 m0, {t5}', 's_mov_b64 exec, 0x77777777',
              f'buffer_load_dword v13, v12, {WSG}, {t4} offen sc1',
              f'buffer_load_dwordx4 v12, {WSG}, {t4} offen sc1 lds',
              's_mov_b64 exec, -1']
        for i, x in enumerate(ld):
            a.e(x)
            if i in (2, 3):
                a.tag_vm(f'y{i}')
        self.touches('w1b' if isb else 'w1c', 'v60', 'v10')
        self.lnq_prep()
        self.stamp('wqrdy', 2)
        if isb:
            self.wuk_issue('v8', 'v9')
        else:
            self.lcmp()
            self.lstore([f'buffer_store_dwordx4 v[56:59], {vL16}, {WS}, {oC1g} offen offset:{i * 1024}' for i in range(4)])
        chk, again = a.lab('chk'), a.lab('again')
        a.wait(vm='y2')
        a.e(f'{chk}:')
        a.e('v_cmp_eq_u32 vcc, -1, v13')
        a.wait(vm='y3')
        self.retry_to(again)
        a.ool(f'{again}:\n' + '\n'.join(ld) + f'\ns_waitcnt vmcnt(0)\ns_branch {chk}')
        a.e(f's_mov_b64 exec, {MY}')
        a.e('s_barrier')
        for rho in range(3):
            a.e(f'ds_read_b128 {vr(16 + 4 * rho, 4)}, v11 offset:{8192 * rho}')
            a.tag_ds(f'a{rho}')
        fl = isb and self.o.get('qflag', 1)
        if fl:
            self.lstore([f'buffer_store_dword v0, off, {WSL}, {t3} offset:{L_FL - L_OAL}'])
        a.e('s_mov_b64 exec, -1')
        self.stamp('h2got', 2)
        if fl:
            a.e('v_and_b32 v9, 7, v0')
            a.e('v_lshlrev_b32 v9, 2, v9')
        self.H('l1', 0, 56)
        mm = [self.lnq_mfma(rho) for rho in range(3)]
        for rho in range(3):
            a.wait(ds=f'a{rho}')
            a.e(mm[rho][0])
        g = ['v_pk_add_f32 v[60:61], v[60:61], v[62:63]', 'v_add_f32 v62, v60, v61', 'v_add_f32 v60, v60, v61', 'v_cmp_u_f32 vcc, v62, v62',
             'v_permlane16_swap_b32 v60, v62', 'v_add_f32 v60, v60, v62',
             f'v_add_f32_dpp v60, v60, v60 quad_perm:[1,0,3,2] {FULL}', f'v_add_f32_dpp v60, v60, v60 quad_perm:[2,3,0,1] {FULL}',
             f'v_add_f32_dpp v60, v60, v60 row_half_mirror {FULL}']
        a.e(mm[0][1]); a.e('s_nop 1')
        a.e(mm[1][1]); a.e('s_nop 1')
        a.e(mm[2][1]); a.e('s_nop 0'); a.e(g[0])
        a.e(mm[0][2]); a.e(g[1]); a.e(g[2])
        a.e(mm[1][2]); a.e(g[3]); a.e(g[4])
        a.e(mm[2][2]); a.e(g[5])
        a.e('v_pk_add_f32 v[52:53], v[52:53], v[54:55]')
        a.e('v_add_f32 v52, v52, v53')
        a.e(g[6])
        a.e(g[7])
        a.e('v_pk_add_f32 v[56:57], v[56:57], v[58:59]')
        a.e('v_add_f32 v56, v56, v57')
        a.e(g[8])
        again2 = a.lab('again')
        self.retry_to(again2)
        a.e('v_permlane16_swap_b32 v52, v56')
        a.e('v_add_f32 v52, v52, v56')
        if isb:
            a.e(f'v_mov_b32_dpp v53, v52 quad_perm:[1,0,3,2] {FULL}')
            a.e('v_cvt_pk_bf16_f32 v52, v52, v53')
        a.ool(f'{again2}:\ns_barrier\ns_branch {again}')
        if fl == 1:
            a.e(f'buffer_load_dword v10, v9, {WSL}, {oOALg} offen offset:{L_FL - L_OAL} sc1')
            a.tag_vm('fl')
        self.lnq_publish(isb, False)
        if fl == 2:
            a.e(f'buffer_load_dword v10, v9, {WSL}, {oOALg} offen offset:{L_FL - L_OAL} sc1')
            a.tag_vm('fl')
        self.stamp('qpub')

    def c1_addr(self, dst, tmp):
        a = self.a
        a.e(f'v_lshrrev_b32 {tmp}, 4, v0')
        a.e(f'v_and_b32 {dst}, 0xf0, {vL16}')
        a.e(f'v_lshl_or_b32 {dst}, {tmp}, 12, {dst}')

    def stats(self, S):
        out = []
        for c in (4, 2, 1):
            out.append(f'v_add_f32_dpp v{S + 1}, v{S + 1}, v{S + 1} row_ror:{c} {FULL}')
            out.append(f'v_add_f32_dpp v{S}, v{S}, v{S} row_ror:{c} {FULL}')
        out.append(f'v_mul_f32 v{S + 1}, {f32(1.0 / (8 * 576))}, v{S + 1}')
        out.append(f'v_mul_f32 v{S}, {f32(1.0 / 576)}, v{S}')
        out.append(f'v_fma_f32 v{S}, -v{S + 1}, v{S + 1}, v{S}')
        out.append(f'v_max_f32 v{S}, 0, v{S}')
        out.append(f'v_add_f32 v{S}, {f32(1e-5)}, v{S}')
        out.append(f'v_rsq_f32 v{S}, v{S}')
        out.append(f'v_mul_f32 v{S + 1}, 0x3e000000, v{S + 1}')
        out.append(f'v_mul_f32 v{S}, {f32(QSCALE)}, v{S}')
        return out

    def mix(self, x, y):
        x, y = list(x), list(y)
        while x or y:
            if x:
                self.a.e(x.pop(0))
            if y:
                self.a.e(y.pop(0))

    def resid(self, goff, base, va, final):
        a = self.a
        a.e(f'v_lshlrev_b32 {va}, 2, v0')
        a.e(f's_add_u32 {t2}, {oRES}, {goff}')
        a.e('s_mov_b64 exec, 0xfff')
        if final:
            self.sleep('fin')
        self.poll_begin()
        for i in range(8):
            if i & 1 == 0:
                a.e(f's_add_u32 {t3}, {t2}, {i * 3072}')
            a.e(f'buffer_load_dword v{base + i}, {va}, {WSG}, {t3} offen offset:{(i & 1) * 3072} sc1')
        a.e(f'v_mov_b32 v{base + 8}, 0x3f80')
        a.e(f'v_mov_b32 v{base + 9}, 0x3f800000')
        a.e('v_mov_b64 v[4:5], 0')
        for i in range(8):
            if i & 1 == 0:
                a.e(f's_waitcnt vmcnt({6 - i})')
            a.e(f'v_dot2c_f32_bf16 v4, v{base + 8}, v{base + i}')
            a.e(f'v_dot2c_f32_bf16 v5, v{base + 9}, v{base + i}')
        a.e('s_nop 2')
        a.e('v_cmp_u_f32 vcc, v4, v5')
        if final:
            a.e('v_cvt_pk_bf16_f32 v9, v4, v5')
            a.e(f's_mul_i32 {t0}, {sJ}, 48')
        self.poll_br()

    def resid_track(self, goff, base, va, cond):
        a = self.a
        go, back = a.lab('res'), a.lab('resback')
        a.e(cond)
        a.e(f's_cbranch_scc1 {go}')
        a.e(f'{back}:')
        sub = Asm()
        sub.uid = a.uid + 1000 * (1 + len(a.tail))
        self.a = sub
        sub.e(f'{go}:')
        sub.e('s_nop 1')
        self.resid(goff, base, va, False)
        sub.e('s_mov_b64 exec, -1')
        sub.e(f's_branch {back}')
        self.a = a
        body = [i.text for i in sub.ins]
        cut = [k for k in range(0, len(body), 14)]
        for k in cut:
            part = body[k:k + 14]
            if k + 14 < len(body):
                nxt = a.lab('resp')
                part.append(f's_branch {nxt}')
                body[k + 14] = f'{nxt}:\n' + body[k + 14]
            a.ool('\n'.join(part))
        for t in sub.tail:
            a.ool(t)

    def qa_addr(self, T):
        a = self.a
        a.e(f'v_and_b32 v{T}, 4, v0')
        a.e(f'v_lshlrev_b32 v{T}, 3, v{T}')
        a.e(f'v_and_b32 v{T + 1}, 3, v0')
        a.e(f'v_lshl_or_b32 v{T}, v{T + 1}, 2, v{T}')
        a.e(f'v_lshrrev_b32 v{T + 1}, 5, v0')
        a.e(f'v_lshl_or_b32 v{T}, v{T + 1}, 4, v{T}')
        a.e(f'v_bfe_u32 v{T + 1}, v0, 4, 1')
        a.e(f'v_lshl_or_b32 v{T}, v{T + 1}, 1, v{T}')
        a.e(f's_lshl_b32 {t0}, {sV}, 6')
        a.e(f's_add_u32 {t0}, {t0}, {ZQ}')
        a.e(f'v_add_u32 v{T}, {t0}, v{T}')
        a.e(f'v_and_b32 v{T + 1}, 7, v0')
        a.e(f'v_lshlrev_b32 v{T + 1}, 3, v{T + 1}')
        self.sp_addr(f'v{T + 2}', ZQ)

    def red8(self, R):
        return [f'v_permlane32_swap_b32 v{R}, v{R + 2}',
                f'v_permlane32_swap_b32 v{R + 1}, v{R + 3}',
                f'v_pk_add_f32 {vr(R, 2)}, {vr(R, 2)}, {vr(R + 2, 2)}',
                f'v_permlane16_swap_b32 v{R}, v{R + 1}',
                f'v_add_f32 v{R}, v{R}, v{R + 1}',
                f'v_add_f32_dpp v{R}, v{R}, v{R} row_ror:8 {FULL}']

    def qa_loads(self, R, S, T):
        return [f'buffer_load_dwordx2 {vr(S, 2)}, v{T + 1}, {WSL}, {oSTgA} offen sc1',
                f'buffer_load_dwordx4 {vr(R, 4)}, {vL16}, {WSL}, {oQgA} offen sc1']

    def qa_finish(self, R, S, T, Q, br=False):
        a = self.a
        self.mix(self.stats(S), self.red8(R) + [f'v_and_b32 v{R + 1}, 0xffff0000, v1'])
        a.e(f'v_fma_f32 v{R}, -v{S + 1}, v{R + 1}, v{R}')
        a.e(f'v_mul_f32 v{R}, v{R}, v{S}')
        a.e(f'v_cvt_pk_bf16_f32 v{R}, v{R}, v{R}')
        a.e(f'ds_write_b16 v{T}, v{R}')
        if br:
            return
        self.bar(2, br)
        a.e(f'ds_read_b128 {vr(Q, 4)}, v{T + 2}')
        a.tag_ds('q0')
        a.e(f'ds_read_b128 {vr(Q + 4, 4)}, v{T + 2} offset:128')
        a.tag_ds('q1')

    def p_addr(self, r, t):
        a = self.a
        a.e(f'v_and_b32 {r}, 0x32, v0')
        a.e(f'v_lshlrev_b32 {r}, 3, {r}')
        a.e(f'v_and_b32 {t}, 8, v0')
        a.e(f'v_lshl_or_b32 {r}, {t}, 2, {r}')
        a.e(f'v_and_b32 {t}, 5, v0')
        a.e(f'v_lshl_or_b32 {r}, {t}, 1, {r}')
        a.e(f'v_add_u32 {r}, {sW8}, {r}')

    def qk_softmax(self, Q, D, S, T, fill=()):
        a = self.a
        for t in range(19):
            if t >= 3:
                d = D + 4 * ((t - 3) & 3)
                a.e(f'v_add_f32_dpp v{S + ((t - 3) & 3)}, v{d}, v{d + 1} {DPPI} row_mask:{1 << ((t - 3) >> 2)} bank_mask:0xf')
            if 4 <= t + 1 < 16:
                a.e(f'v_mov_b64 {vr(D + 4 * ((t + 1) & 3), 2)}, 0')
            if t < 16:
                d = vr(D + 4 * (t & 3), 4)
                if t == 0:
                    a.wait(ds='q0')
                a.e(f'v_smfmac_f32_16x16x64_bf16 {d}, {vr(Q, 4)}, a[{16 * t}:{16 * t + 7}], v1')
                if t == 0:
                    a.wait(ds='q1')
                elif t - 1 < len(fill):
                    for x in fill[t - 1]:
                        a.e(x)
                a.e(f'v_smfmac_f32_16x16x64_bf16 {d}, {vr(Q + 4, 4)}, a[{16 * t + 8}:{16 * t + 15}], v1')
        self.softmax_a(S, T, f'v{T + 1}')

    def softmax_a(self, S, T, pa, fill=()):
        a = self.a
        fill = list(fill)

        def f2():
            for _ in range(2):
                if fill:
                    a.e(fill.pop(0))
        m = f'v{T}'
        a.e(f'v_max3_f32 {m}, v{S}, v{S + 1}, v{S + 2}')
        a.e(f'v_max_f32 {m}, {m}, v{S + 3}')
        for c in ('row_ror:8', 'row_ror:4', 'row_ror:2', 'row_ror:1'):
            f2()
            a.e(f'v_max_f32_dpp {m}, {m}, {m} {c} {FULL}')
        f2()
        a.e(f'v_max_f32_dpp {m}, {m}, {m} row_bcast:15 row_mask:0xa bank_mask:0xf')
        f2()
        a.e(f'v_max_f32_dpp {m}, {m}, {m} row_bcast:31 row_mask:0xc bank_mask:0xf')
        a.e(f'v_readlane_b32 {sM}, {m}, 63')
        f2()
        assert not fill
        for r in range(4):
            a.e(f'v_subrev_f32 v{S + r}, {sM}, v{S + r}')
        for r in range(4):
            a.e(f'v_exp_f32 v{S + r}, v{S + r}')
        a.e(f'v_cvt_pk_bf16_f32 v{T + 2}, v{S}, v{S + 1}')
        a.e(f'v_cvt_pk_bf16_f32 v{T + 3}, v{S + 2}, v{S + 3}')
        a.e(f'ds_write_b16 {pa}, v{T + 2} offset:6144')
        a.e(f'ds_write_b16_d16_hi {pa}, v{T + 2} offset:{6144 + 4}')
        a.e(f'ds_write_b16 {pa}, v{T + 3} offset:{6144 + 64}')
        a.e(f'ds_write_b16_d16_hi {pa}, v{T + 3} offset:{6144 + 68}')

    def lsum(self, l, S):
        out = [f'v_pk_add_f32 {vr(S, 2)}, {vr(S, 2)}, {vr(S + 2, 2)}', f'v_add_f32 {l}, v{S}, v{S + 1}']
        for c in ('row_ror:8', 'row_ror:4', 'row_ror:2', 'row_ror:1'):
            out.append(f'v_add_f32_dpp {l}, {l}, {l} {c} {FULL}')
        out.append(f'v_add_f32_dpp {l}, {l}, {l} row_bcast:15 row_mask:0xa bank_mask:0xf')
        out.append(f'v_add_f32_dpp {l}, {l}, {l} row_bcast:31 row_mask:0xc bank_mask:0xf')
        return out

    def ml_write(self, T):
        return [f's_lshl_b32 {t0}, {sV}, 3', f's_add_u32 {t0}, {t0}, {ZML}', f'v_mov_b32 v{T + 2}, 0x30000', f'v_mov_b32 v{T}, {sM}',
                f'v_writelane_b32 v{T + 2}, {t0}, 63\nds_write_b64 v{T + 2}, {vr(T, 2)}']

    def ml_read(self, R, T):
        return [f'v_mov_b32 v{T}, {ZML}', f'ds_read_b128 {vr(R, 4)}, v{T}', f'ds_read_b128 {vr(R + 4, 4)}, v{T} offset:16']

    def ml_scale(self, R, T, F, LW):
        out = [f'v_max3_f32 v{T}, v{R}, v{R + 2}, v{R + 4}', f'v_max_f32 v{T}, v{T}, v{R + 6}']
        out += [f'v_sub_f32 v{R + 2 * w}, v{R + 2 * w}, v{T}' for w in range(4)]
        out += [f'v_sub_f32 v{F}, {sM}, v{T}']
        out += [f'v_exp_f32 v{R + 2 * w}, v{R + 2 * w}' for w in range(4)]
        out += [f'v_exp_f32 v{F}, v{F}', f'v_mul_f32 v{LW}, v{R}, v{R + 1}']
        out += [f'v_fmac_f32 v{LW}, v{R + 2 * w}, v{R + 2 * w + 1}' for w in range(1, 4)]
        out += [f'v_rcp_f32 v{R}, v{LW}', f'v_log_f32 v{LW}, v{LW}', f'v_mul_f32 v{F}, v{F}, v{R}', f'v_add_f32 v{LW}, v{LW}, v{T}']
        return out

    def combine_publish(self):
        a = self.a
        a.e('ds_write2st64_b32 v46, v44, v45 offset0:26 offset1:27')
        a.e(f'buffer_load_dword v16, v47, {WSL}, {oOALg} offen sc1')
        a.tag_vm('lw')
        a.e(f'v_mov_b32 v10, {STG + 6656}')
        a.e('v_lshl_add_u32 v8, v0, 3, v10')
        a.e('v_and_b32 v10, 56, v0')
        a.e('v_lshlrev_b32 v10, 5, v10')
        a.e(f'v_and_or_b32 v10, {vL16}, 16, v10')
        a.e('v_and_b32 v11, 6, v0')
        a.e('v_lshl_or_b32 v10, v11, 1, v10')
        a.e(f's_cmp_lg_u32 {sV}, 0')
        self.H('c1', 0, 12)
        a.e('s_waitcnt lgkmcnt(0)')
        a.e('s_barrier')
        l = a.lab('notw')
        a.e(f's_cbranch_scc1 {l}')
        a.begin_skip()
        for w in range(4):
            a.e(f'ds_read_b64 {vr(20 + 2 * w, 2)}, v8 offset:{w * 8192}')
            a.tag_ds(f'o{w}')
            if w == 0:
                self.H('c2', 0, 12)
        a.wait(ds='o1')
        a.e('v_pk_add_f32 v[20:21], v[20:21], v[22:23]')
        a.wait(ds='o3')
        a.e('v_pk_add_f32 v[24:25], v[24:25], v[26:27]')
        a.e('v_pk_add_f32 v[20:21], v[20:21], v[24:25]')
        a.e('v_cvt_pk_bf16_f32 v20, v20, v21')
        self.end_only(l)
        self.lstore([f'buffer_store_dword v20, v10, {WSL}, {oOApub} offen'])

    def w8(self, lw, t):
        return [f'v_max_f32_dpp {t}, {lw}, {lw} row_ror:4 {FULL}',
                f'v_max_f32_dpp {t}, {t}, {t} row_ror:2 {FULL}',
                f'v_max_f32_dpp {t}, {t}, {t} row_ror:1 {FULL}',
                f'v_sub_f32 {lw}, {lw}, {t}',
                f'v_exp_f32 {lw}, {lw}',
                f'v_add_f32_dpp {t}, {lw}, {lw} row_ror:4 {FULL}',
                f'v_add_f32_dpp {t}, {t}, {t} row_ror:2 {FULL}',
                f'v_add_f32_dpp {t}, {t}, {t} row_ror:1 {FULL}',
                f'v_rcp_f32 {t}, {t}']

    def rot8(self, dst, sh):
        a = self.a
        a.e(f'v_lshrrev_b32 {dst}, 4, v0')
        a.e(f'v_lshl_add_u32 {dst}, {dst}, 1, v0')
        a.e(f'v_and_b32 {dst}, 7, {dst}')
        a.e(f'v_lshlrev_b32 {dst}, {sh}, {dst}')

    def weigh2(self, skip=0, lw='v16', chk=False):
        a = self.a
        w = self.w8(lw, 'v17')
        for x in w[skip:6]:
            a.e(x)
        a.e('v_add_f32 v20, v20, v21')
        a.e('v_add_f32 v22, v22, v23')
        a.e(w[6])
        a.e('v_add_f32 v24, v24, v25')
        a.e('v_add_f32 v26, v26, v27')
        a.e(w[7])
        a.e(f'v_mul_f32_dpp v20, {lw}, v20 row_newbcast:0 {FULL}')
        a.e(f'v_mul_f32_dpp v24, {lw}, v24 row_newbcast:0 {FULL}')
        a.e(f'v_fmac_f32_dpp v20, {lw}, v22 row_newbcast:1 {FULL}')
        a.e(f'v_fmac_f32_dpp v24, {lw}, v26 row_newbcast:1 {FULL}')
        a.e(w[8])
        if chk:
            a.e('v_cmp_u_f32 vcc, v20, v20')
        a.e('v_permlane32_swap_b32 v20, v24')
        a.e('v_add_f32 v20, v20, v24')
        a.e('v_mul_f32 v20, v20, v17')

    def w8n(self, lw, t, W):
        return self.w8(lw, t) + [f'v_mul_f32_dpp v{W}, {lw}, {t} row_newbcast:0 {FULL}', f'v_mul_f32_dpp v{W + 1}, {lw}, {t} row_newbcast:1 {FULL}']

    def weigh2n(self, W):
        a = self.a
        w = vr(W, 2)
        a.e(f'v_pk_mul_f32 v[20:21], v[20:21], {w} op_sel_hi:[1,0]')
        a.e(f'v_pk_fma_f32 v[20:21], v[22:23], {w}, v[20:21] op_sel:[0,1,0] op_sel_hi:[1,1,1]')
        a.e(f'v_pk_mul_f32 v[24:25], v[24:25], {w} op_sel_hi:[1,0]')
        a.e('v_add_f32 v20, v20, v21')
        a.e(f'v_pk_fma_f32 v[24:25], v[26:27], {w}, v[24:25] op_sel:[0,1,0] op_sel_hi:[1,1,1]')
        a.e('v_add_f32 v24, v24, v25')
        a.e('v_cmp_u_f32 vcc, v20, v20')
        a.e('v_permlane32_swap_b32 v20, v24')
        a.e('v_add_f32 v20, v20, v24')

    def outproj(self, isa):
        a = self.a
        if not isa:
            a.e(f's_add_u32 {t4}, {oO}, {L_OB - L_OA}')
        so = oO if isa else t4
        ld = [f'buffer_load_dwordx4 v[8:11], {vL16}, {WSL}, {so} offen sc1',
              f'buffer_load_dwordx4 v[12:15], {vL16}, {WSL}, {so} offen offset:1024 sc1']
        a.e('v_lshrrev_b32 v28, 4, v0')
        a.e('v_bfe_u32 v29, v0, 2, 2')
        a.e('v_lshl_add_u32 v28, v28, 3, v29')
        a.e('v_mul_u32_u24 v28, 48, v28')
        a.e('v_and_b32 v29, 3, v0')
        a.e('v_lshl_add_u32 v28, v29, 3, v28')
        a.e(f'v_add_u32 v28, {sW8}, v28')
        tr = []
        for blk in range(2):
            for tile in range(2):
                for hh in range(2):
                    for half in range(2):
                        off = (64 * blk + 32 * hh + 4 * half) * 48 + 32 * tile
                        tr.append(f'ds_read_b64_tr_b16 {vr(32 + 16 * tile + 8 * blk + 4 * hh + 2 * half, 2)}, v28 offset:{off}')
        a.e(f's_lshl_b32 {t2}, {sV}, 3')
        a.e(f's_add_u32 {t2}, {t2}, {ZO}')
        pre = ['v_and_b32 v18, 15, v0', 'v_lshrrev_b32 v19, 5, v0', 'v_lshl_add_u32 v18, v19, 4, v18', 'v_bfe_u32 v19, v0, 4, 1',
               'v_lshlrev_b32 v19, 2, v19', 'v_lshl_add_u32 v18, v18, 5, v19', f'v_add_u32 v18, {t2}, v18', f'v_mov_b32 v19, {ZO}',
               'v_and_b32 v29, 15, v0', 'v_lshl_add_u32 v19, v29, 6, v19', 'v_lshlrev_b32 v29, 2, v0']
        n1 = self.o.get('tr_pre', 8)
        if isa:
            a.e('s_waitcnt vmcnt(1)')
            a.vmq = []
        a.wait(vm='wo')
        for x in tr[:n1]:
            a.e(x)
        if isa:
            chk, again = a.lab('chk'), a.lab('again')
            a.e(f'{chk}:')
            a.e('v_cmp_eq_u32 vcc, -1, v16')
            a.e('v_mov_b32 v22, v16')
            self.retry_to(again)
            a.ool(f'{again}:\nbuffer_load_dword v16, v47, {WSL}, {oOALg} offen sc1\ns_waitcnt vmcnt(1)\ns_branch {chk}')
        self.sleep('h1' if isa else 'hd')
        for x in ld:
            a.e(x)
        if isa:
            pre = [x for p in zip(self.w8n('v22', 'v17', 30), pre) for x in p]
        self.mix(tr[n1:], pre)
        a.e(f's_add_u32 {t2}, {oYpub}, {G_YA if isa else G_YB}')
        top = a.lab('poll')
        a.e(f'{top}:')
        for x in ld:
            self.H('o0', 0, 20)
            a.e(x)
        for r in range(26, 18, -2):
            a.e(f'v_mov_b64 {vr(r, 2)}, 0')
        self.K(0, 'po', True)
        a.e(f's_waitcnt vmcnt({len(ld)}) lgkmcnt(0)')
        a.e('v_cmp_u_f32 vcc, v8, v12')
        a.e('v_smfmac_f32_16x16x64_bf16 v[20:23], v[8:11], v[32:39], v1')
        a.e('v_smfmac_f32_16x16x64_bf16 v[20:23], v[12:15], v[40:47], v1')
        self.retry_to(top)
        a.e('v_smfmac_f32_16x16x64_bf16 v[24:27], v[8:11], v[48:55], v1')
        a.e('v_smfmac_f32_16x16x64_bf16 v[24:27], v[12:15], v[56:63], v1')
        self.stamp('ogot')
        if isa:
            self.weigh2n(30)
        else:
            a.e('v_pk_add_f32 v[20:21], v[20:21], v[22:23]')
            a.e('v_add_f32 v20, v20, v21')
            a.e('v_cmp_u_f32 vcc, v20, v20')
            a.e('v_pk_add_f32 v[24:25], v[24:25], v[26:27]')
            a.e('v_add_f32 v24, v24, v25')
            a.e('v_permlane32_swap_b32 v20, v24')
            a.e('v_add_f32 v20, v20, v24')
        a.e('ds_write_b32 v18, v20')
        self.H('o1', 0, 24)
        self.retry_to(top)
        a.e(f's_bitcmp0_b32 {sRES}, 0')
        self.H('o2', 0, 24)
        self.bar(1, True)
        l = a.lab('noy')
        a.e(f's_cbranch_scc1 {l}')
        a.begin_skip()
        for i in range(4):
            a.e(f'ds_read_b128 {vr(32 + 4 * i, 4)}, v19 offset:{16 * i}')
            a.tag_ds(f'z{i}')
            if i == 1:
                self.H('o3', 0, 24)
        a.e('s_mov_b32 exec_hi, 0')
        self.K(2)
        self.Wm()
        a.wait(ds='z1')
        a.e('v_pk_add_f32 v[32:33], v[32:33], v[34:35]')
        a.e('v_pk_add_f32 v[36:37], v[36:37], v[38:39]')
        a.e('v_pk_add_f32 v[32:33], v[32:33], v[36:37]')
        a.e('v_add_f32 v32, v32, v33')
        a.wait(ds='z3')
        a.e('v_pk_add_f32 v[40:41], v[40:41], v[42:43]')
        a.e('v_pk_add_f32 v[44:45], v[44:45], v[46:47]')
        a.e('v_pk_add_f32 v[40:41], v[40:41], v[44:45]')
        a.e('v_add_f32 v33, v40, v41')
        a.e('v_pk_add_f32 v[32:33], v[32:33], v[4:5]')
        a.e('v_cvt_pk_bf16_f32 v32, v32, v33')
        a.e(f'buffer_store_dword v32, v29, {WSG}, {t2} offen sc1')
        a.e('s_mov_b32 exec_hi, -1')
        a.end_skip()
        a.e(f'{l}:')
        self.stamp('ypub')

    def qabs(self):
        a = self.a
        a.e('v_and_b32 v36, 7, v0')
        a.e('v_lshlrev_b32 v37, 3, v36')
        a.e(f's_sub_u32 {t0}, {sW8}, {sKV}')
        a.e(f'v_add_u32 v56, {t0}, {vA}')
        for ks in range(1, 4):
            a.e(f'v_xor_b32 v{56 + ks}, {ks << 6}, v56')
        a.e('v_and_b32 v38, 8, v0')
        a.e('v_lshlrev_b32 v38, 3, v38')
        a.e('v_lshl_or_b32 v38, v36, 1, v38')
        a.e(f's_lshl_b32 {t0}, {sV}, 4')
        a.e(f's_add_u32 {t0}, {t0}, {ZQ}')
        a.e(f'v_add_u32 v38, {t0}, v38')
        a.e(f'v_add_u32 v39, {ZQ}, {vL16}')
        if self.o.get('qflag', 1):
            chk, again = a.lab('chk'), a.lab('again')
            a.wait(vm='fl')
            a.e(f'{chk}:')
            a.e('v_cmp_eq_u32 vcc, -1, v10')
            self.retry_to(again)
            a.ool(f'{again}:\nbuffer_load_dword v10, v9, {WSL}, {oOALg} offen offset:{L_FL - L_OAL} sc1\ns_waitcnt vmcnt(1)\ns_branch {chk}')
        self.sleep('hqb')
        top = a.lab('poll')
        a.e(f'{top}:')
        a.e(f'buffer_load_dwordx2 v[34:35], v37, {WSL}, {oSTgB} offen sc1')
        a.tag_vm('st')
        for i in (2, 3, 0, 1):
            a.e(f'buffer_load_dwordx4 {vr(8 + 4 * i, 4)}, {vL16}, {WSL}, {oQgB} offen offset:{i * 1024} sc1')
            a.tag_vm(f'q{i}')
        a.wait(vm='wuk')
        for ks in range(4):
            a.e(f'ds_read_b128 {vr(40 + 4 * ks, 4)}, v{56 + ks}')
            a.e(f'v_mov_b64 {vr(24 + 2 * ks, 2)}, 0')
        self.H('q1', 0, 60)
        a.wait(vm='st')
        a.e('v_cmp_u_f32 vcc, v34, v35')
        st = self.stats(34)
        for x in st[:4]:
            a.e(x)
        self.retry_to(top)
        for x in st[4:6]:
            a.e(x)
        a.e('s_waitcnt lgkmcnt(0)')
        a.wait(vm='q2')
        a.e('v_smfmac_f32_16x16x64_bf16 v[28:31], v[16:19], v[40:47], v1')
        for x in st[6:]:
            a.e(x)
        a.wait(vm='q3')
        a.e('v_smfmac_f32_16x16x64_bf16 v[28:31], v[20:23], v[48:55], v1')
        self.H('q2', 0, 60)
        a.wait(vm='q0')
        a.e('v_smfmac_f32_16x16x64_bf16 v[24:27], v[8:11], v[40:47], v1')
        self.K(1, 'qb3', True)
        a.e('v_pk_add_f32 v[28:29], v[28:29], v[30:31]')
        a.e('v_add_f32 v28, v28, v29')
        a.e('v_mul_f32 v28, v28, v35')
        a.e(f's_cmp_lg_u32 {sV}, 0')
        self.K(0, 'qb4', True)
        a.wait(vm='q1')
        a.e('v_smfmac_f32_16x16x64_bf16 v[24:27], v[12:15], v[48:55], v1')
        self.stamp('qgotB', 2)
        a.e('v_pk_add_f32 v[24:25], v[24:25], v[26:27]')
        a.e('v_sub_f32 v24, v24, v28')
        a.e('v_add_f32 v24, v24, v25')
        a.e('v_mul_f32 v25, v24, v34')
        a.e('v_mul_f32 v24, v24, v34')
        a.e('v_cmp_u_f32 vcc, v24, v24')
        a.e('v_permlane32_swap_b32 v24, v25')
        a.e('v_add_f32 v26, v24, v25')
        a.e('v_add_f32 v24, v24, v25')
        a.e('v_permlane16_swap_b32 v24, v26')
        a.e('v_add_f32 v24, v24, v26')
        a.e('v_cvt_pk_bf16_f32 v24, v24, v24')
        a.e('ds_write_b16 v38, v24')
        self.retry_to(top)
        a.e('s_waitcnt lgkmcnt(0)')
        a.e('s_barrier')
        l = a.lab('notw')
        a.e(f's_cbranch_scc1 {l}')
        a.begin_skip()
        a.e('s_mov_b64 exec, 0xff')
        a.e('ds_read_b128 v[24:27], v39')
        a.e('s_waitcnt lgkmcnt(0)')
        a.e(f'buffer_store_dwordx4 v[24:27], {vL16}, {WSG}, {oQApub} offen sc1')
        a.e('s_mov_b64 exec, -1')
        self.end_only(l)
        self.stamp('qapub')
        self.touches('w3', 'v8', 'v9')
        self.resid_track(G_YA, 10, 'v8', f's_cmp_eq_u32 {sRES}, 3')

    def attn_b(self):
        a = self.a
        a.e(f's_mul_i32 {t0}, {sV}, {4096 - 16384}')
        a.e(f's_add_u32 {t0}, {t0}, {CKV}')
        a.e(f'v_add_u32 v56, {t0}, {vA}')
        a.e('v_xor_b32 v57, 64, v56')
        ORD = [(r, ks) for kp in range(2) for r in range(4) for ks in (2 * kp, 2 * kp + 1)]
        ga = ['v_and_b32 v58, 12, v0', 'v_lshlrev_b32 v58, 4, v58', 'v_and_or_b32 v58, v0, 48, v58', 'v_lshlrev_b32 v58, 2, v58',
              f'v_and_or_b32 v58, {vL16}, 48, v58', 'v_lshlrev_b32 v8, 7, v0', 'v_mov_b32 v9, 0']
        for x in ga:
            a.e(x)
        a.e(f'v_add_u32 v59, {STG}, {vL16}')
        a.e('s_barrier')
        if self.o.get('l4_wo', 0) == 1:
            def early_wo():
                self.wo_prep(12, 'v15')
                for x in self.wo_lines(BWO, 12, '', sKV):
                    self.a.e(x)
                self.sleep('ha1')
            self.ool_if(f's_cmp_eq_u32 {sIT}, 1', early_wo, lambda: self.sleep('ha'))
        else:
            self.sleep('ha')
        top = a.lab('poll')
        a.e(f'{top}:')
        ld = [f's_mov_b32 m0, {sW8}', 's_mov_b32 exec_hi, 0', f'buffer_load_dword v9, v8, {WSG}, {oQAg} offen sc1', 's_mov_b32 exec_hi, -1']
        for ks in range(4):
            ld.append(f'buffer_load_dwordx4 v58, {WSG}, {oQAg} offen offset:{ks * 1024} sc1 lds')
        for x in ld:
            a.e(x)
        for k in range(8):
            r, ks = ORD[k]
            a.e(f'ds_read_b128 {vr(24 + 4 * k, 4)}, v{56 + (ks & 1)} offset:{r * 16384}')
        a.e('v_xor_b32 v56, 128, v56')
        a.e('v_xor_b32 v57, 128, v57')
        self.k64_addr('v10', None)
        l4 = self.o.get('l4_wo', 0)
        if l4 == 2:
            self.wo_prep(12, 'v15')
        chk, again = a.lab('chk'), a.lab('again')
        a.e(f'{chk}:')
        a.e('s_waitcnt vmcnt(4)')
        a.e('v_cmp_eq_u32 vcc, -1, v9')
        self.retry_to(again)
        a.ool(f'{again}:\n' + '\n'.join(ld) + f'\ns_branch {chk}')
        pol = self.o.get('pol_wuv', '')
        for i in range(1, 4):
            a.e(f's_add_u32 {[t1, t2, t3][i - 1]}, {oWUV}, {i * (16 * 8192 - 1024)}')
        a.e('v_mov_b32 v58, v10')
        half = self.o.get('qa_half', 1)
        if l4 == 2:
            a.e(f's_cmp_eq_u32 {sIT}, 1')
            a.e(f's_cselect_b32 {t0}, {sKV}, 0x30000')
            a.e(f's_cselect_b32 {t4}, {oWO}, {OOB}')
            a.e(f's_cselect_b32 {t5}, {t5}, {OOB}')
            for x in self.wo_lines(BWO, 12, '', t0):
                a.e(x.replace(f', {oWO} ', f', {t4} '))
        ex = 6 if l4 == 2 else 0
        a.e(f's_waitcnt vmcnt({(2 if half else 0) + ex}) lgkmcnt(0)')
        a.e('s_barrier')
        self.stamp('qagot')

        def qread(k):
            r, ks = ORD[k]
            a.e(f'ds_read_b128 {vr(8 + 4 * (k & 3), 4)}, v59 offset:{r * 8192 + ks * 1024}')
            a.tag_ds(f'q{k}')
        for k in range(4):
            qread(k)
        a.e(f's_add_u32 m0, {sW8}, 4096')
        SLOT = [16, 40, 48]

        def tread(e, ad='v57'):
            l = [f'v_xor_b32 {ad}, {CKV | (e << 5)}, {vT}']
            for t in range(4):
                l.append(f'ds_read_b64_tr_b16 {vr(SLOT[e % 3] + 2 * t, 2)}, {ad} offset:{t * 4096}')
            return l
        for k in range(16):
            a.wait(ds=f'q{k}')
            a.e(f'v_mfma_f32_16x16x32_bf16 v[60:63], {vr(24 + 4 * (k & 7), 4)}, {vr(8 + 4 * (k & 3), 4)}, {"v[60:63]" if k else "0"}')
            if k < 8:
                r, ks = ORD[k + 8]
                a.e(f'ds_read_b128 {vr(24 + 4 * k, 4)}, v{56 + (ks & 1)} offset:{r * 16384}')
            if k == 4 and half:
                a.e(f's_waitcnt vmcnt({2 + ex})')
                a.e('s_barrier')
            if k + 4 < 16:
                qread(k + 4)
            if k in (0, 2, 4, 6):
                a.e(f'buffer_load_dwordx4 v58, {WUV}, {[oWUV, t1, t2, t3][k >> 1]} offen offset:{(k >> 1) * 1024} {pol} lds')
            if k == 10:
                a.e('s_barrier')
            if k == 8:
                a.e(f'v_and_b32 v58, 0xf0, {vL16}')
                a.e(f's_lshl_b32 {t0}, {sV}, 2')
            if k == 9:
                a.e(f'v_add_u32 v58, {STG}, v58')
                a.e(f's_add_u32 {t1}, {oC1pub}, 4096')
            if k == 11:
                a.e(f'v_add_u32 v24, {t0}, v58')
                a.e(f's_add_u32 {t2}, {oC1pub}, 8192')
            if k == 12:
                a.e('v_xor_b32 v56, 128, v56')
                a.e(f'v_lshl_add_u32 v25, v0, 3, {sW8}')
            if k == 13:
                t1_ = tread(1)
                a.e(t1_[0]); a.e(t1_[1])
            if k == 14:
                a.e(t1_[2]); a.e(t1_[3])
        a.e(t1_[4])
        t0_, t2_ = tread(0), tread(2)
        a.e(f'v_mov_b32 v26, {STG}')
        a.e('v_lshl_add_u32 v26, v0, 3, v26')
        a.e(f's_add_u32 {t3}, {oC1pub}, 12288')
        for r in range(36, 40):
            a.e(f'v_mov_b32 v{r}, 0x3f803f80')
        a.e('v_max3_f32 v28, v60, v61, v62')
        a.e('v_max_f32 v29, v28, v63')
        a.e('v_max_f32 v28, v28, v63')
        a.e(t0_[0]); a.e(t0_[1])
        a.e('v_permlane32_swap_b32 v28, v29')
        a.e('v_max_f32 v30, v28, v29')
        a.e('v_max_f32 v28, v28, v29')
        a.e(t0_[2]); a.e(t0_[3])
        a.e('v_permlane16_swap_b32 v28, v30')
        a.e('v_max_f32 v28, v28, v30')
        a.e('ds_write_b32 v24, v28')
        a.tag_ds('mw')
        a.e(t0_[4])
        a.e(t2_[0])
        self.H('b0', 1, 32)
        a.e(t2_[1]); a.e(t2_[2]); a.e(t2_[3]); a.e(t2_[4])
        self.H('b1', 1, 32)
        a.wait(ds='mw')
        a.e('s_barrier')
        a.e('ds_read_b128 v[28:31], v58')
        a.tag_ds('mr')
        self.stamp('sbar', 2)
        self.H('b2', 1, 32)
        a.wait(ds='mr')
        a.e('v_max3_f32 v28, v28, v29, v30')
        a.e('v_max_f32 v28, v28, v31')
        a.e('v_pk_add_f32 v[60:61], v[60:61], v[28:29] op_sel_hi:[1,0] neg_lo:[0,1] neg_hi:[0,1]')
        a.e('v_pk_add_f32 v[62:63], v[62:63], v[28:29] op_sel_hi:[1,0] neg_lo:[0,1] neg_hi:[0,1]')
        for r in range(60, 64):
            a.e(f'v_exp_f32 v{r}, v{r}')
        a.e('v_cvt_pk_bf16_f32 v30, v60, v61')
        a.e('v_cvt_pk_bf16_f32 v31, v62, v63')
        a.e('ds_write_b64 v25, v[30:31] offset:1024')
        a.e('v_lshrrev_b32 v61, 4, v0')
        a.e(f'v_and_b32 v60, 0xf0, {vL16}')
        a.e('v_lshl_or_b32 v61, v61, 16, v60')
        a.e('v_mov_b32 v62, v28')
        a.e('v_xor_b32 v57, 64, v56')
        a.e('v_and_b32 v27, 12, v0')
        a.e('v_lshlrev_b32 v27, 4, v27')
        self.H('b3', 1, 32)
        self.lcmp()
        a.e('s_waitcnt lgkmcnt(0)')
        a.e('s_barrier')
        a.e('ds_read2st64_b64 v[8:11], v26 offset0:2 offset1:18')
        a.tag_ds('p0')
        a.e('ds_read2st64_b64 v[12:15], v26 offset0:34 offset1:50')
        a.tag_ds('p1')
        self.stamp('smax', 2)
        a.e('v_and_or_b32 v27, v0, 3, v27')
        a.e('v_lshlrev_b32 v27, 3, v27')
        self.K(2, 'b4', True)
        ACC = [28, 56, 36, 32]
        a.wait(ds='p0')
        a.e('v_cmp_u_f32 vcc, v8, v8')
        a.e(f'v_mfma_f32_16x16x32_bf16 v[28:31], v[8:11], {vr(SLOT[0], 4)}, 0')
        a.e('v_mfma_f32_16x16x32_bf16 v[32:35], v[36:39], v[8:11], 0')
        again = a.lab('again')
        self.retry_to(again)
        a.ool(f'{again}:\n' + '\n'.join(['s_waitcnt lgkmcnt(0)'] + ga) + f'\ns_barrier\ns_branch {top}')
        a.wait(ds='p1')
        a.e('v_mfma_f32_16x16x32_bf16 v[32:35], v[36:39], v[12:15], v[32:35]')
        so = [oC1pub, t1, t2, t3]
        ml = ['s_mov_b64 exec, 0xffff', f'buffer_store_dwordx2 v[62:63], v27, {WSL}, {oMLpub} offen', 's_mov_b64 exec, -1']
        mlat = self.o.get('ml_at', 2)

        def pack(q):
            d0, d1 = ACC[(2 * q) & 3], ACC[(2 * q + 1) & 3]
            return [f'v_cvt_pk_bf16_f32 v{24 + r}, v{d0 + r}, v{d1 + r}' for r in range(4)]

        def put(q):
            self.lstore([f'buffer_store_dwordx4 v[24:27], v61, {WS}, {so[q]} offen'] + (ml if q == mlat else []))
        F = {e: [[], []] for e in range(8)}
        early = self.o.get('ml_early', 1)
        mlat = -1
        F[1][1] = ['v_mov_b32 v63, v32']
        F[self.o.get('ml_e', 2)][1] += ['ML']
        F[3][0] = pack(0)[:2]
        F[3][1] = pack(0)[2:]
        F[5][0] = pack(1)[:2]
        F[5][1] = pack(1)[2:]
        F[6][0] = ['v_and_b32 v60, 3, v0', 'v_lshlrev_b32 v60, 6, v60']
        F[6][1] = ['v_and_or_b32 v60, v0, 60, v60', 'v_lshlrev_b32 v60, 1, v60']
        F[7][0] = pack(2)
        for e in range(8):
            a.wait(ds=f't{e}')
            d = vr(ACC[e & 3], 4)
            s = SLOT[e % 3]
            nx = tread(e + 3, 'v60') if e + 3 < 8 else []
            if nx:
                a.e(nx[0])
            if e:
                a.e(f'v_mfma_f32_16x16x32_bf16 {d}, v[8:11], {vr(s, 4)}, 0')
            if e in (4, 6):
                put((e - 4) // 2)
            for x in nx[1:3]:
                a.e(x)
            for x in F[e][0]:
                a.e(x)
            a.e(f'v_mfma_f32_16x16x32_bf16 {d}, v[12:15], {vr(s + 4, 4)}, {d}')
            for x in nx[3:]:
                a.e(x)
            if nx:
                a.tag_ds(f't{e + 3}')
            for x in F[e][1]:
                if x == 'ML':
                    self.lstore(ml)
                else:
                    a.e(x)
            if e == 7:
                put(2)
        if early == 1:
            a.e(f'buffer_load_dwordx2 v[22:23], v60, {WSL}, {oMLg} offen sc1')
            a.tag_vm('ml0')
        for x in pack(3):
            a.e(x)
        put(3)
        if early == 2:
            a.e(f'buffer_load_dwordx2 v[22:23], v60, {WSL}, {oMLg} offen sc1')
            a.tag_vm('ml0')
        self.stamp('c1pub')

    def red(self):
        a = self.a
        ld = f'buffer_load_dwordx2 v[22:23], v60, {WSL}, {oMLg} offen sc1'
        a.e('v_and_b32 v45, 56, v0')
        a.e('v_lshlrev_b32 v45, 1, v45')
        a.e('v_and_or_b32 v45, v0, 6, v45')
        a.e('v_lshlrev_b32 v45, 1, v45')
        a.e(f'v_and_or_b32 v45, {vL16}, 16, v45')
        a.e('v_lshlrev_b32 v46, 2, v0')
        for r in range(28, 36, 2):
            a.e(f'v_mov_b64 {vr(r, 2)}, 0')
        ne = self.o.get('wo_e', 0)
        if ne:
            self.wo_prep(41, 'v39')
            a.e('s_barrier')
        cl = [f'buffer_load_dwordx4 {vr(8 + 4 * i, 4)}, {vL16}, {WS}, {oC1g} offen offset:{i * 1024} sc1' for i in range(4)]
        ch = [f'v_max_f32_dpp v36, v22, v22 quad_perm:[1,0,3,2] {FULL}',
              f'v_max_f32_dpp v37, v36, v36 quad_perm:[2,3,0,1] {FULL}', f'v_max_f32_dpp v36, v36, v36 quad_perm:[2,3,0,1] {FULL}',
              'v_permlane32_swap_b32 v36, v37', 'v_max_f32 v38, v36, v37', 'v_max_f32 v36, v36, v37',
              'v_permlane16_swap_b32 v36, v38', 'v_max_f32 v36, v36, v38', 'v_sub_f32 v24, v24, v36', 'v_exp_f32 v24, v24',
              'v_mul_f32 v25, v25, v24', f'v_add_f32_dpp v25, v25, v25 quad_perm:[1,0,3,2] {FULL}',
              f'v_add_f32_dpp v37, v25, v25 quad_perm:[2,3,0,1] {FULL}', f'v_add_f32_dpp v25, v25, v25 quad_perm:[2,3,0,1] {FULL}',
              'v_permlane32_swap_b32 v25, v37', 'v_add_f32 v38, v25, v37', 'v_add_f32 v25, v25, v37',
              'v_permlane16_swap_b32 v25, v38', 'v_add_f32 v25, v25, v38', 'v_rcp_f32 v38, v25', 'v_log_f32 v37, v25',
              'v_mul_f32 v24, v24, v38', 'v_add_f32 v37, v37, v36', 'v_cvt_pk_bf16_f32 v26, v24, 0', 'v_cvt_pk_bf16_f32 v27, 0, v24']
        chk, again = a.lab('chk'), a.lab('again')
        a.wait(vm='ml0')
        a.e(f'{chk}:')
        a.e('v_cmp_u_f32 vcc, v22, v23')
        a.e(ch[0])
        a.e('v_mov_b64 v[24:25], v[22:23]')
        self.retry_to(again)
        a.ool(f'{again}:\n{ld}\ns_waitcnt vmcnt(1)\ns_branch {chk}')
        self.stamp('mlgot', 2)
        npre = self.o.get('red_pre', 8)
        for x in ch[1:npre]:
            a.e(x)
        self.sleep('hc1')
        for i, x in enumerate(cl):
            a.e(x)
            a.tag_vm(f'c{i}')
        for x in self.wo_group(BWO, 41, 0, ne):
            a.e(x)
        for x in ch[max(npre, 1):]:
            a.e(x)
        lwe = self.o.get('lw_early', 1)
        lws = ['s_mov_b32 exec_hi, 0', f'buffer_store_dword v37, v46, {WSG}, {oC2Lpub} offen sc1', 's_mov_b32 exec_hi, -1']
        if lwe:
            for x in lws:
                a.e(x)
        self.H('r1', 0, 48)
        top, again = a.lab('acc'), a.lab('again')
        a.e(f'{top}:')
        for i in range(4):
            if i:
                self.K(0, 'rd', True)
            a.wait(vm=f'c{i}')
            for d in range(4):
                a.e(f'v_dot2c_f32_bf16_dpp v{28 + 2 * d}, v26, v{8 + 4 * i + d} row_newbcast:{4 * d + i} {FULL}')
                a.e(f'v_dot2c_f32_bf16_dpp v{29 + 2 * d}, v27, v{8 + 4 * i + d} row_newbcast:{4 * d + i} {FULL}')
        for i in range(4):
            a.e(f'v_permlane32_swap_b32 v{28 + i}, v{32 + i}')
        a.e('v_pk_add_f32 v[28:29], v[28:29], v[32:33]')
        a.e('v_pk_add_f32 v[30:31], v[30:31], v[34:35]')
        a.e('v_cmp_u_f32 vcc, v28, v30')
        a.e('v_permlane16_swap_b32 v28, v30')
        a.e('v_permlane16_swap_b32 v29, v31')
        a.e('v_pk_add_f32 v[28:29], v[28:29], v[30:31]')
        a.e('v_cvt_pk_bf16_f32 v28, v28, v29')
        self.retry_to(again)
        a.ool(f'{again}:\n' + '\n'.join(cl) + '\n' + '\n'.join(f'v_mov_b64 {vr(r, 2)}, 0' for r in range(28, 36, 2)) + f'\ns_waitcnt vmcnt(0)\ns_branch {top}')
        a.e(f'buffer_store_dword v28, v45, {WSG}, {oC2pub} offen sc1')
        if not lwe:
            for x in lws:
                a.e(x)
        self.stamp('c2pub')
        a.e('v_and_b32 v40, 4, v0')
        a.e('v_lshlrev_b32 v40, 4, v40')
        a.e('v_and_or_b32 v40, v0, 48, v40')
        a.e('v_lshlrev_b32 v40, 1, v40')
        a.e('v_and_or_b32 v40, v0, 11, v40')
        a.e(f'v_lshl_add_u32 v40, v40, 3, {sW8}')
        for tau in range(2):
            for gam in range(2):
                for tt in range(2):
                    a.e(f'ds_read_b64_tr_b16 {vr(48 + 8 * tau + 4 * gam + 2 * tt, 2)}, v40 offset:{4096 + (32 * gam + 2 * tt) * 64 + 32 * tau}')
        if not ne:
            self.wo_prep(41, 'v39')
        if self.o.get('wo_pre', 6) > 4:
            a.e('s_waitcnt lgkmcnt(0)')
        a.e('s_barrier')
        if self.o.get('x_wo'):
            a.e('s_waitcnt vmcnt(0)')
            self.stamp('x_ack')

        def clear2():
            b = self.a
            for r in range(8, 12):
                b.e(f'v_mov_b32 v{r}, -1')
            self.sums(t2, [(sJ, 4 * 448), (sV, 448)], L_IT)
            b.e('s_mov_b64 exec, 0xfffffff')
            self.lstore([f'buffer_store_dwordx4 v[8:11], {vL16}, {WSL}, {t2} offen'])
            b.e('s_mov_b64 exec, -1')
        npre = self.o.get('wo_pre', 6)
        for x in self.wo_group(BWO, 41, ne, npre):
            a.e(x)
        if npre == 6:
            a.tag_vm('wo')
        self.ool_if(f's_cmp_eq_u32 {sIT}, 0', clear2, lambda: self.sleep('hc4'))
        self.wol = self.wo_group(BWO, 41, npre, 6)
        if self.o.get('x_wo'):
            self.stamp('x_iss')
            a.e('s_waitcnt vmcnt(0)')
            self.stamp('x_land')

    def wb(self, where):
        a = self.a
        if self.o.get('wb') != where:
            return
        l = a.lab('nowb')
        self.sums(t1, [(sJ, 8), (sV, 2), (sIT, 1)])
        a.e(f's_cmp_lg_u32 {t1}, {24 * 8 + 1}')
        a.e(f's_cbranch_scc1 {l}')
        a.begin_skip()
        a.e('buffer_wbl2 sc1')
        self.end_only(l)

    def uv(self):
        a = self.a
        a.e('v_lshrrev_b32 v28, 1, v0')
        a.e('v_and_or_b32 v28, v28, 16, 0')
        a.e('v_and_or_b32 v28, v0, 14, v28')
        a.e('v_lshlrev_b32 v28, 6, v28')
        a.e('v_and_or_b32 v28, v0, 16, v28')
        a.e('v_lshlrev_b32 v28, 1, v28')
        a.e(f'v_and_or_b32 v28, {vL16}, 16, v28')
        self.rot8('v29', 7)
        self.pos_bytes('v30', None)
        a.e('v_and_b32 v31, 32, v0')
        a.e('v_lshl_or_b32 v30, v31, 3, v30')
        self.touches('w5', 'v12', 'v13')
        a.e('s_waitcnt lgkmcnt(0)')
        self.sleep('hc2')
        ld = [f'buffer_load_dword v16, v29, {WSG}, {oC2Lg} offen sc1',
              f'buffer_load_dwordx4 v[8:11], v28, {WSG}, {oC2g} offen sc1']
        z = [f'v_mov_b64 {vr(r, 2)}, 0' for r in range(20, 28, 2)]
        lwe = self.o.get('lw_early', 1)
        a.e(ld[0])
        a.tag_vm('lw')
        if lwe:
            self.sleep('hc2b')
        a.e(ld[1])
        a.tag_vm('c2')
        for x in z:
            a.e(x)
        for x in self.wol:
            a.e(x)
        if self.wol:
            a.tag_vm('wo')
        top, again = a.lab('chk'), a.lab('again')
        w = self.w8('v16', 'v17')
        if lwe:
            self.H('u0', 0, 12)
            a.wait(vm='lw')
            a.e(f'{top}:')
            for x in self.w8n('v16', 'v17', 18):
                a.e(x)
            self.H('u1', 0, 12)
            a.wait(vm='c2')
            a.e('v_smfmac_f32_16x16x64_bf16 v[20:23], v[8:11], v[48:55], v1')
            a.e('v_cmp_u_f32 vcc, v8, v18')
            a.e('v_smfmac_f32_16x16x64_bf16 v[24:27], v[8:11], v[56:63], v1')
            self.retry_to(again)
            self.stamp('c2got', 2)
            self.weigh2n(18)
        else:
            a.wait(vm='c2')
            a.e(f'{top}:')
            a.e('v_smfmac_f32_16x16x64_bf16 v[20:23], v[8:11], v[48:55], v1')
            self.maxchain('v18', [8, 9, 10, 11, 16], True)
            a.e('v_smfmac_f32_16x16x64_bf16 v[24:27], v[8:11], v[56:63], v1')
            self.poll_cmp('v18')
            a.e(w[0])
            a.e(w[1])
            a.e(w[2])
            self.retry_to(again)
            self.stamp('c2got', 2)
            self.weigh2(3)
        a.ool(f'{again}:\n' + '\n'.join(ld + z) + f'\ns_waitcnt vmcnt(0)\ns_branch {top}')
        a.e('v_mov_b32 v21, v20')
        self.lcmp()
        a.e('v_permlane16_swap_b32 v20, v21')
        a.e('v_add_f32 v20, v20, v21')
        if lwe:
            self.retry_to(again)
        a.e(f'v_mov_b32_dpp v21, v20 quad_perm:[1,0,3,2] {FULL}')
        a.e('v_cvt_pk_bf16_f32 v20, v20, v21')
        self.lstore(['s_mov_b32 exec_lo, 0x5555', 's_mov_b32 exec_hi, 0x5555',
                     f'buffer_store_dword v20, v30, {WSL}, {oOBpub} offen', 's_mov_b64 exec, -1'])
        self.stamp('dpub')
        self.wb('dpub')

    def attn_a3(self):
        a = self.a
        self.qa_addr(14)
        self.sleep('hqa')
        ld = self.qa_loads(8, 12, 14)
        for x in ld:
            a.e(x)
        a.e('v_mov_b64 v[20:21], 0')
        a.e(f'v_lshl_add_u32 v17, v0, 3, {sW8}')
        a.e('ds_write_b64 v17, v[20:21] offset:6656')
        a.e(f's_add_u32 {t0}, {sW8}, 6656')
        a.e(f'v_mov_b32 v17, {t0}')
        a.e('s_mov_b32 s22, 0x000f000f')
        a.e('s_mov_b32 s23, 0x000f000f')
        for c in range(4):
            a.e(f'v_cndmask_b32 v{56 + c}, v17, v16, s[22:23]')
            a.e('s_lshl_b64 s[22:23], s[22:23], 4')
        self.p_addr('v60', 'v17')
        self.wo_prep(61, 'v17')
        for r in (16, 24, 28):
            a.e(f'v_mov_b64 {vr(r, 2)}, 0')
        self.pipe_poll(ld, 'v38', [8, 12], 'pq', ['v_mov_b64 v[36:37], v[12:13]', 'v_mov_b64 v[32:33], v[8:9]', 'v_mov_b64 v[34:35], v[10:11]'])
        top = self.ptop
        self.stamp('qgotA', 2)
        self.qa_finish(32, 36, 14, None, True)
        a.e('v_lshlrev_b32 v33, 16, v32')
        a.e('v_cmp_u_f32 vcc, v33, v33')
        a.e(f's_sub_u32 {t2}, {sW8}, {ZQ - 6144}')
        a.e(f's_cmp_eq_u32 {sV}, 0')
        a.e(f's_cselect_b32 {t3}, {oOALpub}, {OOB}')
        a.e('s_mov_b32 s22, 0x000f000f')
        a.e('s_mov_b32 s23, 0x000f000f')
        self.H('a1', 1, 52)
        self.retry_to(top)
        a.e('s_waitcnt vmcnt(0) lgkmcnt(0)')
        a.e('s_barrier')
        self.H('a2', 1, 8)

        def qrd(c, b):
            a.e(f'ds_read_b128 {vr(32 + 8 * (c % 3) + 4 * b, 4)}, v{56 + c} offset:{128 * b}')
            a.tag_ds(f'q{c}{b}')
        for c in range(3):
            qrd(c, 0)
            qrd(c, 1)
        if self.o.get('wo3', 0):
            self.touch('wo', 'v15', None)
        self.stamp('qrdy')
        ds, va = [], []
        for e in range(8):
            for t in range(4):
                ds.append((e, f'ds_read_b64_tr_b16 a[{8 * e + 2 * t}:{8 * e + 2 * t + 1}], v{14 + (e & 1)} offset:{t * 4096}'))
        wl = self.wo_lines(WO, 61, self.o.get('pol_wo3', ''))
        other = {2: wl[0], 3: wl[1], 7: wl[2], 11: wl[3], 13: wl[4], 15: wl[5], 19: wl[6], 23: wl[7],
                 5: 'v_mov_b64 v[8:9], 0', 6: 'v_mov_b64 v[12:13], 0', 8: f'v_mov_b32 v10, {t2}'}
        wo3 = self.o.get('wo3', 0)
        late = {}
        if wo3:
            for k in (2, 3, 7, 11, 13, 15, 19, 23):
                del other[k]
            pos = {1: (0, 1, 4, 7, 9, 10, 13, 16), 2: (8, 9, 12, 15, 17, 18, 21, 24)}[wo3]
            late = dict(zip(pos, wl))
        for e, k in enumerate((4, 10, 14, 18, 22, 26, 30), 1):
            other[k] = f'v_xor_b32 v{14 + (e & 1)}, {e << 5}, {vT}'
        pc = []
        for c in range(4):
            pc.append('v_cndmask_b32 v11, 0, v10, s[22:23]')
            pc.append(f'v_add_u32 v{56 + c}, v{56 + c}, v11')
            if c < 3:
                pc.append('s_lshl_b64 s[22:23], s[22:23], 4')
        a.e(f'v_mov_b32 v14, {vT}')
        for k in range(32):
            c, r, b = k >> 3, (k >> 1) & 3, k & 1
            if r == 0:
                a.wait(ds=f'q{c}{b}')
            t = k >> 1
            a.e(f'v_smfmac_f32_16x16x64_bf16 {vr(16 + 4 * r, 4)}, {vr(32 + 8 * (c % 3) + 4 * b, 4)}, a[{16 * t + 8 * b}:{16 * t + 8 * b + 7}], v1')
            if k in (8, 9):
                qrd(3, k - 8)
            elif k >= 1:
                a.e(ds.pop(0)[1])
            if k in other:
                a.e(other[k])
        for r in range(4):
            if ds:
                a.e(ds.pop(0)[1])
            a.e(f'v_add_f32 v{16 + r}, v{16 + 4 * r}, v{17 + 4 * r}')
        self.softmax_a(16, 20, 'v60', pc)

        def prd(j):
            a.e(f'ds_read_b128 {vr(32 + 4 * (j % 6), 4)}, v{56 + (j >> 2)} offset:{128 * (j & 3)}')
            a.tag_ds(f'p{j}')
        for j in range(6):
            if j == 0:
                self.H('a3', 1, 24)
            prd(j)
        self.stamp('smaxA')
        ls = self.lsum('v21', 16)
        for x in ls[:4]:
            a.e(x)
        fill = [[x] for x in ls[4:]] + [self.ml_write(20)[:2], self.ml_write(20)[2:4], self.ml_write(20)[4:], [], [], ['BAR'],
                                        self.ml_read(24, 22)[:2], ['MLR'], [], [], []]
        sc = self.ml_scale(24, 22, 18, 19)
        fill += [['MLW'] + sc[:1]] + [sc[1:3], sc[3:5], sc[5:7]] + [[x] for x in sc[7:12]] + [sc[12:14], sc[14:16], sc[16:17], sc[17:18], sc[18:20], ['LW']]
        for j in range(16):
            c, U = j >> 2, j & 3
            for hf in range(2):
                e = c + 4 * hf
                if hf == 0:
                    a.wait(ds=f'p{j}')
                B = vr(64 + 64 * U + 8 * e, 8) if U < 3 else f'a[{8 * e}:{8 * e + 7}]'
                a.e(f'v_smfmac_f32_16x16x64_bf16 {vr(8 + 4 * hf, 4)}, {vr(32 + 4 * (j % 6), 4)}, {B}, v1')
                if 2 * j + hf in late:
                    a.e(late[2 * j + hf])
                if hf == 1 and j + 6 < 16:
                    prd(j + 6)
                for x in (fill.pop(0) if fill else []):
                    if x == 'BAR':
                        a.wait(ds='mlw')
                        a.e('s_barrier')
                    elif x == 'MLR':
                        a.e(self.ml_read(24, 22)[2])
                        a.tag_ds('mlr')
                    elif x == 'LW':
                        self.lstore([f'buffer_store_dword v19, off, {WSL}, {t3}'])
                    elif x == 'MLW':
                        a.wait(ds='mlr')
                    else:
                        a.e(x)
                        if 'ds_write_b64' in x:
                            a.tag_ds('mlw')
        assert not fill
        a.e(f'v_lshl_add_u32 v46, v0, 2, {sW8}')
        self.rot8('v47', 2)
        a.e('v_add_f32 v44, v8, v9')
        a.e('v_add_f32 v45, v12, v13')
        a.e('v_pk_mul_f32 v[44:45], v[44:45], v[18:19] op_sel_hi:[1,0]')
        self.stamp('pvA')

    def dma_tile(self, t):
        a = self.a
        pol = self.o.get('pol_kv', 'nt')
        srd = K_ if t < 16 else V_
        a.e(f's_add_u32 m0, {sKV}, {(t & 3) * 4096}')
        a.e(f's_add_u32 {t0}, {sKG}, {(t & 15) * 16384}')
        for q in range(4):
            a.e(f'buffer_load_dwordx4 v{8 + q}, {srd}, {t0} offen offset:{q * 1024} {pol} lds')
        a.tag_vm(f'tile{t}')

    def make_items(self):
        o = self.o
        pol, polc = o.get('pol_kv', 'nt'), o.get('pol_c', '')
        extra = {}
        c0, cs = o.get('ckv_from', 44), o.get('ckv_step', 2)
        for i in range(16):
            t, q = i >> 2, i & 3
            extra.setdefault(c0 + cs * i, []).append((f'c{i}', [
                f's_add_u32 m0, {sKV}, {CKV + i * 1024}', f'v_add_u32 v238, v{8 + q}, v254', f's_add_u32 {t0}, s1, {(16 * t + 4 * q) * 1024}',
                f'buffer_load_dwordx4 v238, {CK}, {t0} offen {polc} lds']))
        w0, wstep = o.get('wo_from', 52), o.get('wo_step', 4)
        for k in range(6):
            h, i = divmod(k, 3)
            extra.setdefault(w0 + wstep * k, []).append((f'w{k}', [
                f's_add_u32 m0, {sW8}, {h * 3072}', f's_add_u32 {t0}, {oWO}, {h * 64 * 1152}',
                f'buffer_load_dwordx4 v{(246, 247, 255)[i]}, {WO}, {t0} offen offset:{i * 1024} lds']))
        items = []
        self.extra = {tag: lines for v in extra.values() for tag, lines in v}
        for d in range(128):
            t, q = d >> 2, d & 3
            items.append((f'tile{t}' if q == 3 else f'd{d}', [
                f's_add_u32 m0, {sKV}, {(t & 3) * 4096}', f's_add_u32 {t0}, {sKG}, {(t & 15) * 16384}',
                f'buffer_load_dwordx4 v{8 + q}, {K_ if t < 16 else V_}, {t0} offen offset:{q * 1024} {pol} lds']))
        self.items = items
        self.pos = {tag: k for k, (tag, _) in enumerate(items)}
        self.issued = 0
        self.done_tile = -1
        self.lnq_done = False

    def issue_to(self, n):
        a = self.a
        prev = None
        lim = self.pos[f'tile{min(self.done_tile + 4, 31)}'] + 1
        while self.issued < min(n, lim):
            tag, lines = self.items[self.issued]
            if tag[0] == 'w':
                assert self.lnq_done, 'w_o staged before the q weights were read'
            assert tag[0] in 'td' or 2 < self.done_tile < 26
            for x in (lines if lines[:2] != prev else lines[2:]):
                a.e(x)
            a.tag_vm(tag)
            prev = lines[:2]
            self.issued += 1

    def prologue(self):
        a = self.a
        self.make_items()
        a.e('s_cmp_ge_u32 s2, 256')
        a.e('s_cbranch_scc1 L_end')
        if self.o.get('diag_fixed'):
            a.e('s_memrealtime s[100:101]')
        if self.o.get('stamps'):
            a.e('s_memtime s[98:99]' if self.o.get('clk') else 's_memrealtime s[98:99]')
        a.e('s_load_dwordx2 s[4:5], s[0:1], 8')
        ptrs = [(V_, 16), (CK, 48), (DBG, 96), (XIN, 0), (WQ, 24), (WO, 32), (BWQ, 56), (WUK, 64), (WUV, 72), (BWO, 80),
                (WS, 104), (OUT, 88)]
        sizes = {K_: 1 << 26, V_: 1 << 26, CK: 1 << 23, DBG: 256, XIN: 1152, WQ: 576 * 8192, WO: 4096 * 1152,
                 BWQ: 576 * 8192, WUK: 1 << 22, WUV: 1 << 22, BWO: 4096 * 1152, WS: WS_SIZE, WSL: L_X, WSG: G_IT, OUT: 1152}
        base = lambda s: int(s[2:s.index(':')])
        a.e('v_lshrrev_b32 v1, 6, v0')
        a.e('v_mov_b32 v63, v0')
        a.e(f'v_readfirstlane_b32 {sV}, v1')
        a.e('v_and_b32 v0, 63, v0')
        a.e(f's_and_b32 {sX}, s2, 7')
        a.e(f's_lshr_b32 {sJ}, s2, 3')
        a.e(f's_lshl_b32 {sKV}, {sV}, 14')
        self.sums(sKG, [(sX, 1 << 23), (sJ, 1 << 18), (sV, 1 << 12)])
        a.e(f'v_lshlrev_b32 {vL16}, 4, v0')
        a.e('v_and_b32 v12, 48, v0')
        a.e('v_lshlrev_b32 v12, 1, v12')
        a.e(f'v_xor_b32 v8, v12, {vL16}')
        for q in range(1, 4):
            a.e(f'v_xor_b32 v{8 + q}, {TBL[q] << 4}, v8')
        a.e(f's_mov_b32 s6, {sizes[K_]}')
        a.e('s_mov_b32 s7, 0x20000')
        a.e('s_waitcnt lgkmcnt(0)')
        for t in range(4):
            self.issue_to(min(4 * t + 4, self.o.get('win0', 8)))
            for srd, off in ptrs[3 * t:3 * t + 3]:
                b = base(srd)
                a.e(f's_load_dwordx2 s[{b}:{b + 1}], s[0:1], {off}')
        for srd, n in sizes.items():
            if srd != K_:
                a.e(f's_mov_b32 s{base(srd) + 2}, {n}')
                a.e(f's_mov_b32 s{base(srd) + 3}, 0x20000')
        a.e(f's_getpc_b64 s[82:83]')
        a.e('L_pc:')
        a.e('v_lshlrev_b32 v62, 7, v63')
        a.e(f'v_min_u32 v62, L_codeend-L_pc, v62')
        a.e('global_load_dword v61, v62, s[82:83]')
        a.e(f's_lshr_b32 {t1}, {sJ}, 3')
        self.sums(sH, [(sX, 4), (t1, 1)])
        a.e(f's_and_b32 {sS}, {sJ}, 7')
        a.e(f's_mov_b32 {sIT}, 0')
        a.e(f's_mov_b32 {sPOLL}, 0')
        a.e(f's_mov_b32 {sST}, 0')
        self.sums(sW8, [(sV, 8192)], STG)
        a.e('s_mov_b32 s84, 0x00ff00ff')
        a.e('s_mov_b32 s85, 0x000000ff')
        self.sums(oY, [(sS, 384)])
        self.sums(oQA, [(t1, 4096), (sV, 1024), (sS, 128)], L_QA)
        self.sums(oQB, [(t1, 4096), (sV, 512), (sS, 32)], L_QB)
        self.sums(oST, [(sJ, 8)], L_STA)
        a.e(f's_cmp_eq_u32 {sV}, 0')
        a.e(f's_cselect_b32 {oST}, {oST}, {OOB}')
        self.sums(oQgA, [(t1, 4096), (sV, 1024)], L_QA)
        self.sums(oSTgA, [(t1, 64)], L_STA)
        self.sums(oWQ, [(sS, 72 * 8192), (sH, 256), (sV, 24 * 8192)])
        a.e(f's_cmp_eq_u32 {sV}, 3')
        a.e(f's_cselect_b32 {oWQ}, {OOB}, {oWQ}')
        self.sums(oWUV, [(sS, 64 * 8192), (sH, 256), (sV, 64)])
        self.sums(oWUK, [(sJ, 16 * 8192), (sX, 1024), (sV, 256)])
        self.sums(oWO, [(sX, 512 * 1152), (sV, 128 * 1152), (sJ, 48)])
        self.sums(oYpub, [(sX, 3072), (sJ, 128)])
        if self.o.get('asym'):
            a.e(f's_getreg_b32 {t0}, hwreg(HW_REG_XCC_ID, 0, 3)')
            a.e(f's_lshr_b32 {t0}, {self.o["asym"][0]}, {t0}')
            a.e(f's_lshl_b32 {t0}, {t0}, 31')
            a.e(f's_or_b32 {oYpub}, {oYpub}, {t0}')
        a.e(f's_cmp_lt_u32 {sJ}, 24')
        a.e(f's_cselect_b32 {oWO}, {oWO}, {OOB}')
        a.e(f's_cselect_b32 {sRES}, 1, 0')
        a.e(f's_cmp_eq_u32 {sV}, 3')
        a.e(f's_cselect_b32 {sRES}, {sRES}, 0')
        a.e(f's_mul_i32 {t0}, {sRES}, 3')
        a.e(f's_cmp_eq_u32 {sX}, 0')
        a.e(f's_cselect_b32 {sRES}, {t0}, {sRES}')
        if self.o.get('stamps'):
            a.e('v_mov_b32 v7, 0')
            a.e('s_mov_b32 s97, 8')
        a.e('v_and_b32 v14, 1, v0')
        a.e('v_mul_u32_u24 v1, 0xaaaa, v14')
        a.e('v_add_u32 v1, 0x4444, v1')

        def tbl(dst, x, tmp):
            a.e(f'v_lshrrev_b32 {tmp}, 1, {x}')
            a.e(f'v_xor_b32 {dst}, {x}, {tmp}')
            a.e(f'v_and_b32 {dst}, 1, {dst}')
            a.e(f'v_lshl_or_b32 {dst}, {dst}, 3, {tmp}')
        a.e('v_lshrrev_b32 v12, 4, v0')
        a.e('v_and_b32 v13, 15, v0')
        a.e('v_lshrrev_b32 v15, 2, v13')
        tbl('v16', 'v15', 'v17')
        a.e('v_and_b32 v17, 3, v13')
        a.e('v_lshlrev_b32 v18, 1, v17')
        a.e('v_xor_b32 v16, v16, v18')
        a.e('v_xor_b32 v16, v16, v12')
        a.e('v_lshlrev_b32 v16, 4, v16')
        a.e(f'v_lshl_or_b32 {vA}, v13, 8, v16')
        a.e(f'v_add_u32 {vA}, {sKV}, {vA}')
        tbl('v16', 'v12', 'v18')
        a.e('v_lshlrev_b32 v18, 1, v15')
        a.e('v_xor_b32 v16, v16, v18')
        a.e('v_lshrrev_b32 v18, 1, v17')
        a.e('v_xor_b32 v16, v16, v18')
        a.e('v_lshlrev_b32 v16, 4, v16')
        a.e('v_lshrrev_b32 v18, 2, v0')
        a.e('v_lshl_or_b32 v16, v18, 8, v16')
        a.e(f'v_lshl_or_b32 {vT}, v14, 3, v16')
        a.e(f'v_add_u32 {vT}, {sKV}, {vT}')
        a.e('s_waitcnt lgkmcnt(0)')
        self.stamp('start')
        w, l, g = base(WS), base(WSL), base(WSG)
        a.e(f's_lshl_b32 {t0}, {sX}, 17')
        a.e(f's_add_u32 s{l}, s{w}, {t0}')
        a.e(f's_addc_u32 s{l + 1}, s{w + 1}, 0')
        a.e(f's_add_u32 s{g}, s{w}, {GB}')
        a.e(f's_addc_u32 s{g + 1}, s{w + 1}, 0')
        self.dma_wq(WQ, 'v56', 'v57')
        self.lnq_rows()
        a.e(f's_mul_i32 {t0}, {sS}, 144')
        a.e('s_mov_b32 exec_lo, 0x00010001')
        a.e('s_mov_b32 exec_hi, 0x00000001')
        for rho in range(3):
            a.e(f'buffer_load_dwordx4 {vr(16 + 4 * rho, 4)}, v0, {XIN}, {t0} offen offset:{48 * rho}')
        a.e('s_mov_b64 exec, -1')
        a.e('v_lshlrev_b32 v58, 2, v0')
        a.e(f's_mul_i32 {t0}, {sJ}, 48')
        a.e(f's_cmp_eq_u32 {sRES}, 3')
        a.e(f's_cselect_b32 {t0}, {t0}, {OOB}')
        a.e(f'buffer_load_dword v5, v58, {XIN}, {t0} offen')
        for r in range(56, 60):
            a.e(f'v_mov_b32 v{r}, -1')
        self.sums(t4, [(sX, L_X), (sJ, 2560), (sV, 640)])
        self.sums(t1, [(sX, 128 * 384), (sJ, 4 * 384), (sV, 384)], GB)
        a.e('s_mov_b32 exec_hi, 0xff')
        a.e(f'buffer_store_dwordx4 v[56:59], {vL16}, {WS}, {t4} offen sc1')
        a.e('s_mov_b64 exec, 0xffffff')
        a.e(f'buffer_store_dwordx4 v[56:59], {vL16}, {WS}, {t1} offen sc1')
        a.e('s_mov_b64 exec, -1')
        a.tag_vm('clr')
        for ks in range(4):
            a.e(f'v_xor_b32 v{12 + ks}, {ks << 6}, {vA}')

    def late_scalars(self):
        a = self.a
        if self.o.get('asym'):
            a.e(f's_bitset0_b32 {oYpub}, 31')
        a.e(f's_lshr_b32 {t1}, {sJ}, 3')
        a.e(f's_and_b32 {t2}, {sJ}, 1')
        a.e(f's_lshr_b32 {t3}, {sJ}, 1')
        a.e(f's_lshr_b32 {t4}, {sX}, 2')
        a.e(f's_and_b32 {t5}, {sX}, 3')
        self.sums(oQgB, [(sV, 4096)], L_QB)
        self.sums(oSTgB, [(sV, 64)], L_STB)
        self.sums(oQApub, [(t4, 16384), (t3, 1024), (t5, 256), (t2, 128)], G_QABS)
        self.sums(oQAg, [(t2, 16384), (sV, 4096)], G_QABS)
        self.sums(oC1pub, [(sX, 1 << 19), (t2, 1 << 18), (sV, 16384), (t3, 256)], CB)
        self.sums(oMLpub, [(t2, 2048), (t3, 32)], L_C1ML)
        self.sums(oC1g, [(sX, 1 << 19), (sJ, 16384), (sV, 4096)], CB)
        a.e(f's_lshr_b32 {t4}, {sJ}, 2')
        self.sums(oMLg, [(t4, 512)], L_C1ML)
        self.sums(oC2pub, [(sJ, 8192), (sV, 2048), (sX, 256)], G_C2)
        self.sums(oC2Lpub, [(t4, 1024), (sX, 128)], G_C2L)
        a.e(f's_and_b32 {t4}, {sJ}, 3')
        a.e(f's_cselect_b32 {oC2Lpub}, {OOB}, {oC2Lpub}')
        self.sums(oC2g, [(sX, 32768), (sS, 4096), (t1, 64)], G_C2)
        self.sums(oC2Lg, [(sX, 1024), (t1, 16)], G_C2L)
        self.sums(oOBpub, [(t1, 2048), (sV, 512), (sS, 32)], L_OB)
        self.sums(oOApub, [(t1, 2048), (sS, 32)], L_OA)
        self.sums(oOALpub, [(sJ, 4)], L_OAL)
        self.sums(oOALg, [(sV, 32)], L_OAL)
        self.sums(oRES, [(sJ, 128)])
        self.sums(oO, [(sV, 2048)], L_OA)
        a.e(f's_cmp_eq_u32 {sV}, 0')
        a.e(f's_cselect_b32 {oMLpub}, {oMLpub}, {OOB}')
        a.e(f's_cselect_b32 {oOApub}, {oOApub}, {OOB}')
        a.e(f's_cselect_b32 {oC2Lpub}, {oC2Lpub}, {OOB}')

    def pv_block(self, U):
        a = self.a
        self.sp_addr('v63', sW8)
        a.e(f'ds_read_b128 v[20:23], v63 offset:{6144 + 128 * U}')
        a.e('s_waitcnt lgkmcnt(0)')
        for e in range(8):
            a.e(f'v_smfmac_f32_16x16x64_bf16 {vr(24 + 4 * e, 4)}, v[20:23], {vr(64 + 64 * U + 8 * e, 8)}, v1')

    def stream(self):
        a = self.a
        o = self.o
        landed = 0
        for t in range(28):
            win = o.get('win', 6) if t < o.get('wide_at', 99) else o.get('wide', 12)
            while landed <= self.pos[f'tile{t}']:
                if self.issued < landed + 1 + win or landed == self.pos[f'tile{t}']:
                    a.wait(vm=self.items[landed][0])
                    if o.get('sstamps') and t % 4 == 0 and landed == self.pos[f'tile{t}']:
                        self.stamp(f't{t}')
                    self.issue_to(landed + 1 + win)
                landed += 1
            slot = (t & 3) * 4096
            if t < 16:
                for ks in range(4):
                    a.e(f'ds_read_b128 a[{16 * t + 4 * ks}:{16 * t + 4 * ks + 3}], v{12 + ks} offset:{slot}')
            else:
                u = t - 16
                if u == 0:
                    for e in range(8):
                        a.e(f'v_xor_b32 v{12 + e}, {e << 5}, {vT}')
                for e in range(8):
                    a.e(f'ds_read_b64_tr_b16 {vr(64 + 64 * (u >> 2) + 8 * e + 2 * (u & 3), 2)}, v{12 + e} offset:{slot}')
            a.e('s_waitcnt lgkmcnt(0)')
            self.done_tile = t
            self.issue_to(landed + win + o.get('boost', {}).get(str(t), 0) if t < 27 else 999)
            if t == 2:
                a.e('v_lshrrev_b32 v254, 4, v0')
                a.e('v_mul_u32_u24 v254, 768, v254')
                a.e(f's_lshr_b32 {t2}, {sJ}, 1')
                self.sums('s1', [(sX, 1 << 20), (t2, 1 << 16), (sV, 256)])
                for i, r in enumerate((246, 247, 255)):
                    a.e(f'v_add_u32 v{r}, {64 * i}, v0')
                    a.e(f'v_mul_u32_u24 v{r}, 21846, v{r}')
                    a.e(f'v_lshrrev_b32 v{r}, 16, v{r}')
                    a.e(f'v_mul_u32_u24 v{r}, {1152 - 48}, v{r}')
                    a.e(f'v_lshl_add_u32 v{r}, v0, 4, v{r}')
            if t == 4:
                a.wait(vm='clr')
                a.e('v_lshlrev_b32 v60, 7, v0')
                a.e('s_mov_b64 exec, 31')
                a.e(f'buffer_load_dword v61, v60, {WS}, {t4} offen')
                a.e('s_mov_b64 exec, -1')
                a.tag_vm('touch')
                a.e('v_lshlrev_b32 v4, 16, v5')
                a.e('v_and_b32 v5, 0xffff0000, v5')
            if t == o.get('atom_at', 5):
                a.e('s_barrier')
                l = self.wave_only(1)
                a.e('s_getreg_b32 s82, hwreg(HW_REG_XCC_ID, 0, 3)')
                a.e('s_lshl_b32 s82, s82, 3')
                a.e('s_lshl_b64 s[82:83], 1, s82')
                a.e('v_mov_b32 v58, s82')
                a.e('v_mov_b32 v59, s83')
                a.e(f's_lshl_b32 {t0}, {sX}, 5')
                a.e('s_mov_b64 exec, 1')
                a.e(f'buffer_atomic_add_x2 v[58:59], v0, {DBG}, {t0} offen sc1')
                a.e('s_mov_b64 exec, -1')
                self.end_only(l)
            if t == 9:
                a.wait(vm='touch')
                self.lnq_addr()
                self.lnq_prep()
                for rho in range(3):
                    for x in self.lnq_mfma(rho):
                        a.e(x)
                self.lnq_reduce(False)
                self.lnq_done = True
            if t == o.get('cnt_at', 10):
                a.e('v_and_b32 v57, 7, v0')
                a.e('v_lshlrev_b32 v57, 5, v57')
                a.e(f'buffer_load_dwordx2 v[58:59], v57, {DBG}, 0 offen sc1')
                a.tag_vm('cnt')
            if t == 15:
                chk, retry, done = a.lab('chk'), a.lab('cretry'), a.lab('cdone')
                a.wait(vm='cnt')
                a.e(f'{chk}:')
                a.e('v_sad_u8 v61, v58, 0, 0')
                a.e('v_sad_u8 v61, v59, 0, v61')
                a.e('v_cmp_ne_u32 vcc, 32, v61')
                if not o.get('x_noinit'):
                    a.e(f's_cbranch_vccnz {retry}')
                a.e(f'{done}:')
                a.ool(f'{retry}:\ns_add_u32 {sPOLL}, {sPOLL}, 1\ns_cmp_gt_u32 {sPOLL}, 100000\ns_cbranch_scc1 {done}\ns_sleep 8\n'
                      f'buffer_load_dwordx2 v[58:59], v57, {DBG}, 0 offen sc1\ns_waitcnt vmcnt(0)\ns_branch {chk}')
                a.e('s_getreg_b32 s82, hwreg(HW_REG_XCC_ID, 0, 3)')
                a.e('s_lshl_b32 s82, s82, 3')
                a.e('s_lshl_b64 s[82:83], 32, s82')
                a.e(f'v_readlane_b32 {t2}, v58, {sX}')
                a.e(f'v_readlane_b32 {t3}, v59, {sX}')
                a.e(f's_cmp_eq_u64 s[82:83], s[80:81]')
                a.e(f's_cselect_b32 {sLOC}, {0 if o.get("force_slow") else 1}, {1 if o.get("x_noinit") else 0}')
                self.lnq_pubaddr(False, True)
                self.lcmp()
                self.lnq_publish(False, True)
            if t == 18:
                self.qa_addr(48)
                a.e(f's_add_u32 {t4}, {oQgA}, {L_CSA - L_QA}')
                ql = self.qa_loads(40, 52, 48) + [f'buffer_load_dwordx4 v[44:47], {vL16}, {WSL}, {t4} offen sc1']
                for x in ql:
                    a.e(x)
                a.tag_vm('q')
            if t == 22:
                a.wait(vm='q')
                self.late_check('v20', list(range(40, 48)) + [52, 53], ql)
                for x in self.red8(44):
                    a.e(x)
                a.e('v_cvt_pk_bf16_f32 v44, 0, v44')
                a.e('v_or_b32 v1, v1, v44')
                self.qa_finish(40, 52, 48, 56)
                for r in range(24, 40, 4):
                    a.e(f'v_mov_b64 {vr(r, 2)}, 0')
                self.p_addr('v45', 'v44')
                self.qk_softmax(56, 24, 40, 44)
                for x in self.lsum('v57', 40):
                    a.e(x)
                for x in self.ml_write(56):
                    a.e(x)
                for r in range(24, 56, 4):
                    a.e(f'v_mov_b64 {vr(r, 2)}, 0')
                a.e('s_waitcnt lgkmcnt(0)')
            for i, at in enumerate(o.get('ckv_at', [10, 11, 12, 13])):
                if at == t:
                    for q in range(4):
                        for x in self.extra[f'c{4 * i + q}']:
                            a.e(x)
            if t == o.get('wo_at', 9):
                assert self.lnq_done
                for k in range(6):
                    for x in self.extra[f'w{k}']:
                        a.e(x)
            self.touches(f's{t}', 'v62', 'v31')
            if t == o.get('mlbar', 26):
                a.e('s_barrier')
                for x in self.ml_read(56, 20):
                    a.e(x)
                a.e('s_waitcnt lgkmcnt(0)')
                for x in self.ml_scale(56, 20, 21, 22):
                    a.e(x)
                a.e('v_readfirstlane_b32 s22, v21')
                a.e('v_readfirstlane_b32 s23, v22')
            if t == o.get('c1_late', 1) and t > 15:
                self.sums(t1, [(sX, 1 << 19), (sJ, 16384), (sV, 4096)], CB)
                for r in range(56, 60):
                    a.e(f'v_mov_b32 v{r}, -1')
                self.lcmp()
                self.lstore([f'buffer_store_dwordx4 v[56:59], {vL16}, {WS}, {t1} offen offset:{i * 1024}' for i in range(4)])
            if t == o.get('tlb_at', -1):
                g = o.get('tlb_n', 2)
                a.e(f's_mov_b64 exec, {(1 << g) - 1}')
                self.sums(t2, [(sX, 1 << 19)], CB)
                for srd, so, span in ((BWQ, oWQ, 24 * 8192), (WUK, oWUK, 16 * 8192), (WUV, oWUV, 64 * 8192), (BWO, oWO, 128 * 1152),
                                      (WS, t2, 1 << 19), (OUT, '0', 1024)):
                    a.e(f'v_mul_u32_u24 v62, {(span - 8192 if span > 8192 else span) // (g - 1) // 4 * 4}, v0')
                    a.e(f'buffer_load_dword v31, v62, {srd}, {so} offen')
                a.e('s_mov_b64 exec, -1')
            if t == o.get('isl_at', 12):
                a.e('s_branch L_isl_0')
                a.e('L_isl_ret:')
            if t == o.get('late_touch', -1):
                self.sums(t3, [(sX, 128), (sJ, 4), (sV, 1)])
                a.e(f's_lshl_b32 {t2}, {t3}, 10')
                a.e('v_lshlrev_b32 v62, 7, v0')
                a.e('v_and_b32 v62, 0x3ff, v62')
                a.e(f'buffer_load_dword v31, v62, {WS}, {t2} offen')
            if t == 23:
                self.pv_block(0)
            if t == 24:
                self.pv_block(1)
        self.late_scalars()
        a.e('v_mov_b32 v62, s23')
        a.e(f's_cmp_eq_u32 {sV}, 0')
        a.e(f's_cselect_b32 {t1}, {oOALpub}, {OOB}')
        self.lcmp()
        self.lstore([f'buffer_store_dword v62, off, {WSL}, {t1}'])
        self.pv_block(2)
        a.e('v_lshrrev_b32 v62, 1, v0')
        a.e('v_and_b32 v62, 8, v62')
        a.e('v_and_or_b32 v62, v0, 32, v62')
        a.e(f'v_add_u32 v62, {sW8}, v62')
        a.e(f'v_add_u32 v62, {6144 + 384}, v62')
        for tt in range(4):
            o0 = 16 * (tt >> 1) + (tt & 1)
            r = (20, 22, 8, 10)[tt]
            a.e(f'ds_read2_b32 {vr(r, 2)}, v62 offset0:{o0} offset1:{o0 + 4}')
        a.e('s_mov_b32 vcc_lo, 0x55555555')
        a.e('s_mov_b32 vcc_hi, 0x55555555')
        a.e('s_waitcnt lgkmcnt(0)')
        for r in (20, 21, 22, 23, 8, 9, 10, 11):
            a.e(f'v_cndmask_b32 v{r}, 0, v{r}, vcc')
        self.last_tiles(range(3))
        a.e(f's_cmp_eq_u32 {sLOC}, 0')
        a.e('s_cbranch_scc1 L_pre_slow')

    def last_tiles(self, which):
        a = self.a
        for tt in which:
            a.wait(vm=f'tile{28 + tt}')
            if tt == 3:
                self.stamp('kvdone')
            dst = [56, 58, 60, 62] * 2 if tt < 3 else [56, 58, 60, 62, 20, 22, 8, 12]
            n1 = 4 if tt < 3 else 8
            for e in range(n1):
                a.e(f'ds_read_b64_tr_b16 {vr(dst[e], 2)}, v{12 + e} offset:{tt * 4096}')
                a.tag_ds(f'v{e}')
            if tt == 3:
                self.rot8('v14', 2)
            for e in range(8):
                a.wait(ds=f'v{e}')
                d = vr(24 + 4 * e, 4)
                a.e(f'v_mfma_f32_16x16x16_bf16 {d}, {vr((20, 22, 8, 10)[tt], 2)}, {vr(dst[e], 2)}, {d}')
                if e + n1 < 8:
                    a.e(f'ds_read_b64_tr_b16 {vr(dst[e], 2)}, v{12 + e + n1} offset:{tt * 4096}')
                    a.tag_ds(f'v{e + n1}')
                if tt == 3 and e >= 4:
                    x = e - 4
                    a.e(f'v_add_f32_dpp v16, v{24 + 4 * x}, v{25 + 4 * x} {DPPI} row_mask:{1 << x} bank_mask:0xf')
        if 3 not in which:
            return
        for e in range(4, 8):
            a.e(f'v_add_f32_dpp v17, v{24 + 4 * e}, v{25 + 4 * e} {DPPI} row_mask:{1 << (e & 3)} bank_mask:0xf')
        a.e('v_mul_f32 v44, s22, v16')
        a.e('v_mul_f32 v45, s22, v17')
        a.e(f'v_lshl_add_u32 v46, v0, 2, {sW8}')
        a.e('v_mov_b32 v47, v14')
        self.stamp('pv1')

    def tail(self, mode):
        a = self.a
        o = self.o
        base = lambda s: int(s[2:s.index(':')])
        self.mode = mode
        if mode == 'slow':
            a.e('L_pre_slow:')
            a.e('s_nop 7')
            a.e('s_waitcnt vmcnt(0)')
        self.last_tiles([3])
        n0 = self.nst
        a.vmq = [['wo', ()]] + [[None, ()] for _ in range(len(o.get('touch', {}).get('s27', [])) if o.get('wo_at', 9) == 27 else 40)]
        l, g = base(WSL), base(WSG)
        a.e(f'L_top_{mode}:')
        self.combine_publish()
        self.stamp('opub')
        a.e(f's_mul_i32 {t0}, {sRES}, {sIT}')
        self.resid_track(G_YB, 20, 'v8', f's_cmp_eq_u32 {t0}, 3')
        a.e(f's_mul_i32 {t0}, {sIT}, {G_IT}')
        a.e(f's_add_u32 s{g}, s{g}, {t0}')
        a.e(f's_addc_u32 s{g + 1}, s{g + 1}, 0')
        self.outproj(True)
        self.lnq_tail(G_YA, True)
        self.qabs()
        self.attn_b()
        self.red()
        self.uv()
        self.outproj(False)
        a.e(f's_cmp_eq_u32 {sIT}, 1')
        a.e(f's_cbranch_scc1 L_final_{mode}')
        a.e(f's_add_u32 s{l}, s{l}, {L_IT}')
        a.e(f's_addc_u32 s{l + 1}, s{l + 1}, 0')
        a.e(f's_mov_b32 s{l + 2}, {L_SZ}')
        a.e(f's_mov_b32 {sIT}, 1')
        self.lnq_tail(G_YB, False)
        self.attn_a3()
        self.nper = self.nst - n0
        self.n0 = n0
        if o.get('stamps'):
            a.e('s_mov_b32 s97, 5')
        a.e(f's_branch L_top_{mode}')
        a.e(f'L_final_{mode}:')
        a.e(f's_cmp_lg_u32 {sRES}, 3')
        a.e('s_cbranch_scc1 L_fin2')
        self.resid(G_YB, 10, 'v8', True)
        a.e(f'buffer_store_dword v9, v8, {OUT}, {t0} offen')
        a.e('s_mov_b64 exec, -1')
        self.mode = None

    def build(self):
        a = self.a
        o = self.o
        base = lambda s: int(s[2:s.index(':')])
        self.prologue()
        self.stream()
        self.tail('fast')
        a.e('L_fin2:')
        if o.get('diag_fixed'):
            a.e('L_dfx:')
            a.e('s_memrealtime s[94:95]')
            a.e('s_waitcnt lgkmcnt(0)')
            a.e('s_sub_u32 s94, s94, s100')
            a.e(f's_cmp_lt_u32 s94, {o["diag_fixed"]}')
            a.e('s_cbranch_scc1 L_dfx')
        if o.get('stamps'):
            a.e('s_waitcnt vmcnt(0) lgkmcnt(0)')
            self.stamp('end')
            a.e('s_waitcnt lgkmcnt(0)')
            a.e('v_writelane_b32 v7, s98, 62')
            a.e(f'v_writelane_b32 v7, {sPOLL}, 63')
            a.e('s_getreg_b32 s82, hwreg(HW_REG_XCC_ID, 0, 3)')
            a.e('s_getreg_b32 s83, hwreg(HW_REG_HW_ID)')
            a.e('s_lshl_b32 s83, s83, 4')
            a.e('s_or_b32 s82, s82, s83')
            a.e('v_writelane_b32 v7, s82, 61')
            self.sums(t1, [('s2', 1024), (sV, 256)], STAMP)
            a.e('v_lshlrev_b32 v8, 2, v0')
            a.e(f'buffer_store_dword v7, v8, {WS}, {t1} offen')
        a.e('L_end:')
        a.e('s_endpgm')
        slow = Gen(self.o)
        slow.a.uid = 500000
        slow.a.cold = True
        slow.tail('slow')
        slow.a.e('s_branch L_fin2')
        sb = slow.a.finish()
        sb = sb[:sb.index('L_isl_0:')]
        body = a.finish()
        ref = open('cdna_kernels/' + NAME + '.s.ref').read() if o.get('hdr', True) else ''
        hdr = ''.join(l + '\n' for l in ref.split('\n') if l.startswith(';') and '@launch' not in l and 'Override' not in l and 'grid=ceil' not in l)
        txt = hdr + '; @launch grid=(256,1,1) block=(256,1,1) lds=163840\n'
        txt += '.amdgcn_target "amdgcn-amd-amdhsa--gfx950"\n.text\n'
        txt += f'.globl {NAME}_kernel\n.p2align 8\n.type {NAME}_kernel,@function\n{NAME}_kernel:\n'
        txt += body
        txt += 'L_codeend:\n' + sb
        txt += f"""    s_endpgm
.section .rodata,"a"
.p2align 6
.amdhsa_kernel {NAME}_kernel
  .amdhsa_next_free_vgpr 512
  .amdhsa_next_free_sgpr 102
  .amdhsa_accum_offset 256
  .amdhsa_group_segment_fixed_size 0
  .amdhsa_kernarg_size 112
  .amdhsa_user_sgpr_count 2
  .amdhsa_user_sgpr_kernarg_segment_ptr 1
  .amdhsa_system_sgpr_workgroup_id_x 1
.end_amdhsa_kernel
"""
        return txt


DEFAULT = dict(sleep=dict(h2a=7, h2b=7, h2c=1, ha=11, ha1=5, hc2=1, hc2b=2, hc4=1, fin=10), pol_c='nt', depth=3,
               touch=dict(s27=['bwo', 'c1'], w1b=['loc', 'code', 'wuk'], w1c=['loc'], w5=['code']), wo_e=0, wo_pre=3, red_pre=4, tr_pre=4, pol_wq3='nt',
               late_touch=-1, wo_at=9, warm=0, c1_late=1, ml_early=2, qflag=0, ybar=0, atom_at=4, cnt_at=12, win=6, boost={}, win0=6)

if __name__ == '__main__':
    import json
    opt = dict(DEFAULT)
    out = sys.argv[1]
    if len(sys.argv) > 2:
        opt.update(json.loads(sys.argv[2]))
    g = Gen(opt)
    open(out, 'w').write(g.build())
    print('nops', g.a.nops, 'stamps', g.stnames, g.n0, g.nper)
```

```python
import sys, math, struct
from asmlib import Asm

NAME = 'interleave_layers__mha_block_cached__compressed_kv_cla__decode'


def f32(x):
    return '0x%08x' % struct.unpack('<I', struct.pack('<f', x))[0]


K1 = 1024
L_X = 128 * K1
L_IT = 72 * K1
L_SZ = 56 * K1
L_QA, L_QB, L_OA, L_OB, L_C1ML = 0, 16 * K1, 32 * K1, 40 * K1, 48 * K1
L_STA, L_STB, L_OAL, L_FL = 52 * K1, 52 * K1 + 256, 52 * K1 + 512, 52 * K1 + 640
L_CSA = 56 * K1
GB, G_IT = 0x100000, 384 * K1
G_YA, G_YB, G_QABS, G_C2L, G_C2 = 0, 24 * K1, 48 * K1, 80 * K1, 112 * K1
CB = 0x200000
STAMP = 0x800000
WS_SIZE = 0x1000000
OOB = 0x40000000
CKV = 65536
STG = 131072
ZML = STG + 7168
ZO = STG + 8192 + 7168
ZQ = STG + 2 * 8192 + 7168
K_, V_, CK, DBG, XIN, WQ, WO, BWQ, WUK, WUV, BWO, WS, WSL, WSG, OUT = ['s[%d:%d]' % (4 + 4 * i, 7 + 4 * i) for i in range(15)]
(sX, sJ, sV, sLOC, sW8, sKV, sKG, sIT, sPOLL, sM, sRES, sST, sH, sS,
 t0, t1, t2, t3, t4, t5) = ['s%d' % i for i in range(64, 84)]
MY = 's[84:85]'
(oY, oQA, oQB, oST, oQgA, oSTgA, oWQ, oWO, oWUK, oWUV, oYpub) = ['s%d' % i for i in range(86, 97)]
(oQgB, oSTgB, oQApub, oQAg, oC1pub, oMLpub, oC1g, oMLg, oC2pub, oC2Lpub, oC2g, oC2Lg,
 oOBpub, oOApub, oOALpub, oOALg, oRES, oO) = ['s%d' % i for i in range(4, 22)]
vT, vA, vL16 = 'v2', 'v3', 'v6'
TBL = [0, 8, 9, 1]
DPPI = 'quad_perm:[0,1,2,3]'
FULL = 'row_mask:0xf bank_mask:0xf'
QSCALE = math.log2(math.e) / math.sqrt(128.0)


def vr(a, n):
    return f'v[{a}:{a + n - 1}]' if n > 1 else f'v{a}'


class Gen:
    def __init__(self, opt):
        self.o = opt
        self.a = Asm()
        self.nst = 0
        self.stnames = []
        self.mode = None
        self.alt = False

    def stamp(self, name, level=1):
        if self.o.get('stamps', 0) < level or self.mode == 'slow':
            return
        if self.o.get('only') and name not in self.o['only'] and name != 'end':
            return
        a = self.a
        self.nst += 1
        self.stnames.append(name)
        a.e(f's_mov_b32 m0, {sST}')
        a.e(f's_pack_ll_b32_b16 s98, s98, {sPOLL}')
        a.e('v_writelane_b32 v7, s98, m0')
        a.e(f's_mov_b32 {sST}, {self.nst}')
        a.e(f's_bitset1_b32 {sST}, s97')
        a.e('s_memtime s[98:99]' if self.o.get('clk') else 's_memrealtime s[98:99]')

    def K(self, n, key=None, force=False):
        if key is not None:
            n = self.o.get('K', {}).get(key, n)
        if not self.o.get('warm', 1) and not force:
            return
        for i in range(n):
            self.a.e('v_mov_b32 v0, v0')
            self.a.e('s_nop 2')

    def H(self, key, n, junk):
        n = self.o.get('H', {}).get(key, n if self.o.get('heat', 1) else 0)
        for i in range(n):
            self.a.e(f'v_mfma_f32_16x16x4_f32 {vr(junk, 4)}, v0, v0, 0')

    def Wm(self):
        if self.o.get('warm', 1):
            self.a.e('v_mov_b32 v0, v0')

    def bar(self, n=2, vm=False):
        self.K(n)
        self.Wm()
        self.a.e('s_waitcnt vmcnt(0) lgkmcnt(0)' if vm else 's_waitcnt lgkmcnt(0)')
        self.Wm()
        self.a.e('s_barrier')
        self.Wm()

    def retry_to(self, top):
        a = self.a
        done, retry = a.lab('got'), a.lab('retry')
        a.e(f's_cbranch_vccnz {retry}')
        a.e(f'{done}:')
        a.ool(f'{retry}:\ns_cselect_b32 s3, 1, 0\ns_add_u32 {sPOLL}, {sPOLL}, 1\ns_cmp_gt_u32 {sPOLL}, 100000\ns_nop 1\ns_cbranch_scc0 {top}\n'
              f's_cmp_eq_u32 s3, 1\ns_branch {done}')

    def ool_if(self, cond, fn, els=None):
        a = self.a
        go, back = a.lab('go'), a.lab('back')
        a.e(cond)
        a.e(f's_cbranch_scc1 {go}')
        if els:
            a.begin_skip()
            els()
            a.end_skip()
        a.e(f'{back}:')
        sub = Asm()
        sub.uid = a.uid + 1000 * (1 + len(a.tail))
        self.a = sub
        sub.e(f'{go}:')
        sub.e('s_nop 1')
        fn()
        sub.e('s_nop 1')
        sub.e(f's_branch {back}')
        self.a = a
        tail, sub.tail = sub.tail, []
        body = sub.finish().split('\n')
        body = [x.strip() for x in body[:[i for i, x in enumerate(body) if x.startswith('L_isl_0')][0]] if x.strip()]
        for k in range(0, len(body), 14):
            part = body[k:k + 14]
            if k + 14 < len(body):
                nxt = a.lab('p')
                part.append(f's_branch {nxt}')
                body[k + 14] = f'{nxt}:\n' + body[k + 14]
            a.ool('\n'.join(part))
        for t in tail:
            a.ool(t)

    def lstore(self, lines):
        a = self.a
        if self.mode is not None:
            for l in lines:
                a.e(l + ' sc1' if self.mode == 'slow' and l.startswith('buffer_') else l)
            return
        slow, back = a.lab('slow'), a.lab('back')
        a.e(f's_cbranch_scc1 {slow}')
        for l in lines:
            a.e(l)
        a.e(f'{back}:')
        a.ool(('' if a.cold else '#cold') + f'{slow}:\ns_nop 7\n' + '\n'.join(l + ' sc1' if l.startswith('buffer_') else l for l in lines) + f'\ns_branch {back}')

    def lcmp(self):
        if self.mode is None:
            self.a.e(f's_cmp_eq_u32 {sLOC}, 0')

    def poll_begin(self):
        a = self.a
        self.ptop, self.pretry, self.pdone = a.lab('poll'), a.lab('retry'), a.lab('got')
        a.e(f'{self.ptop}:')

    def poll_end(self, vmax):
        a = self.a
        a.e(f'v_cmp_eq_u32 vcc, -1, {vmax}')
        a.e(f's_cbranch_vccnz {self.pretry}')
        a.e(f'{self.pdone}:')
        a.ool(f'{self.pretry}:\ns_add_u32 {sPOLL}, {sPOLL}, 1\ns_cmp_gt_u32 {sPOLL}, 100000\ns_cbranch_scc1 {self.pdone}\ns_nop 7\ns_branch {self.ptop}')

    def poll_cmp(self, vmax):
        self.a.e(f'v_cmp_eq_u32 vcc, -1, {vmax}')

    def poll_br(self, last=True):
        a = self.a
        done = a.lab('got')
        retry = a.lab('retry')
        a.e(f's_cbranch_vccnz {retry}')
        a.e(f'{done}:')
        a.ool(f'{retry}:\ns_cselect_b32 s3, 1, 0\ns_add_u32 {sPOLL}, {sPOLL}, 1\ns_cmp_gt_u32 {sPOLL}, 100000\ns_cbranch_scc0 {self.ptop}\n'
              f's_cmp_eq_u32 s3, 1\ns_branch {done}')

    def pipe_poll(self, ld, vmax, regs, key, mid=()):
        a = self.a
        n = sum(x.startswith('buffer') for x in ld)
        if self.o.get('pipe', {}).get(key, 1):
            self.poll_begin()
            for x in ld:
                self.H(key + '0', 0, 40)
                a.e(x)
            self.H(key + '1', 0, 40)
            a.e(f's_waitcnt vmcnt({n})')
            self.maxchain(vmax, regs, True)
            self.poll_cmp(vmax)
            for x in mid:
                a.e(x)
            self.poll_br()
        else:
            a.e('s_waitcnt vmcnt(0)')
            self.late_check(vmax, regs, ld)

    def late_check(self, vmax, regs, reissue):
        a = self.a
        chk, retry, done = a.lab('chk'), a.lab('retry'), a.lab('done')
        a.e(f'{chk}:')
        self.maxchain(vmax, regs, True)
        a.e(f'v_cmp_eq_u32 vcc, -1, {vmax}')
        a.e(f's_cbranch_vccnz {retry}')
        a.e(f'{done}:')
        a.ool(f'{retry}:\ns_add_u32 {sPOLL}, {sPOLL}, 1\ns_cmp_gt_u32 {sPOLL}, 100000\ns_cbranch_scc1 {done}\n'
              + '\n'.join(reissue) + f'\ns_waitcnt vmcnt(0)\ns_branch {chk}')

    def maxchain(self, vmax, regs, first):
        a = self.a
        regs = list(regs)
        if first:
            if len(regs) >= 3:
                a.e(f'v_max3_u32 {vmax}, v{regs[0]}, v{regs[1]}, v{regs[2]}')
                regs = regs[3:]
            elif len(regs) == 2:
                a.e(f'v_max_u32 {vmax}, v{regs[0]}, v{regs[1]}')
                regs = []
            else:
                a.e(f'v_mov_b32 {vmax}, v{regs[0]}')
                regs = []
        while len(regs) >= 2:
            a.e(f'v_max3_u32 {vmax}, {vmax}, v{regs[0]}, v{regs[1]}')
            regs = regs[2:]
        if regs:
            a.e(f'v_max_u32 {vmax}, {vmax}, v{regs[0]}')

    def sleep(self, key):
        n = self.o.get('sleep', {}).get(key, 0)
        if n:
            self.a.e(f's_sleep {n}')

    def wave_only(self, w):
        a = self.a
        l = a.lab('notw')
        a.e(f's_cmp_lg_u32 {sV}, {w}')
        a.e(f's_cbranch_scc1 {l}')
        a.begin_skip()
        return l

    def end_only(self, lab):
        self.a.end_skip()
        self.a.e(f'{lab}:')

    def pos_bytes(self, dst, tmp):
        a = self.a
        a.e(f'v_lshlrev_b32 {dst}, 3, v0')
        a.e(f'v_and_b32 {dst}, 16, {dst}')
        a.e(f'v_and_or_b32 {dst}, v0, 12, {dst}')

    def sp_addr(self, dst, base):
        a = self.a
        a.e(f'v_and_b32 {dst}, 48, v0')
        a.e(f'v_lshlrev_b32 {dst}, 1, {dst}')
        a.e(f'v_and_or_b32 {dst}, {vL16}, 16, {dst}')
        if base:
            a.e(f'v_add_u32 {dst}, {base}, {dst}')

    def sums(self, dst, terms, const=0):
        a = self.a
        first = True
        for reg, mul in terms:
            d = dst if first else t0
            if mul & (mul - 1) == 0:
                a.e(f's_lshl_b32 {d}, {reg}, {mul.bit_length() - 1}')
            else:
                a.e(f's_mul_i32 {d}, {reg}, {mul}')
            if not first:
                a.e(f's_add_u32 {dst}, {dst}, {t0}')
            first = False
        if const:
            a.e(f's_add_u32 {dst}, {dst}, {const}')

    def k64_addr(self, vt, vu):
        a = self.a
        a.e(f'v_lshrrev_b32 {vt}, 2, v0')
        a.e(f'v_lshlrev_b32 {vt}, 13, {vt}')
        a.e(f'v_and_or_b32 {vt}, {vL16}, 48, {vt}')

    def wq_prep(self, vt, vu):
        a = self.a
        a.e(f'v_lshrrev_b32 {vu}, 4, v0')
        a.e(f'v_lshlrev_b32 {vt}, 5, {vu}')
        a.e(f'v_xor_b32 {vt}, {vt}, {vL16}')
        a.e(f'v_and_b32 {vt}, 0xf0, {vt}')
        a.e(f'v_lshl_or_b32 {vt}, {vu}, 13, {vt}')
        a.e(f'v_xor_b32 {vu}, 0x80, {vt}')

    def wq_issue(self, srd, vt, vu, parts, pol=''):
        a = self.a
        for i in parts:
            if i == parts[0] or i == 3:
                a.e(f's_add_u32 m0, {sW8}, {(i // 3) * 3072}')
            a.e(f's_add_u32 {t1}, {oWQ}, {i * 4 * 8192 - (i % 3) * 1024}')
            a.e(f'buffer_load_dwordx4 {vu if (i >> 1) & 1 else vt}, {srd}, {t1} offen offset:{(i % 3) * 1024} {pol} lds')
        a.tag_vm('wq')

    def dma_wq(self, srd, vt, vu, pol=''):
        self.wq_prep(vt, vu)
        self.wq_issue(srd, vt, vu, list(range(6)), pol)

    def dma_wuv(self, vt):
        a = self.a
        pol = self.o.get('pol_w', '')
        self.k64_addr(vt, None)
        for i in range(4):
            a.e(f's_add_u32 m0, {sW8}, {i * 1024}')
            a.e(f's_add_u32 {t1}, {oWUV}, {i * 16 * 8192}')
            a.e(f'buffer_load_dwordx4 {vt}, {WUV}, {t1} offen {pol} lds')
        a.tag_vm('wuv')

    def wuk_prep(self, vt, vu):
        a = self.a
        a.e(f'v_lshrrev_b32 {vu}, 4, v0')
        a.e(f'v_lshlrev_b32 {vt}, 5, {vu}')
        a.e(f'v_xor_b32 {vt}, {vt}, {vL16}')
        a.e(f'v_and_b32 {vt}, 0xf0, {vt}')
        a.e(f'v_lshl_or_b32 {vt}, {vu}, 13, {vt}')

    def wuk_issue(self, vt, vu):
        a = self.a
        pol = self.o.get('pol_wuk', '')
        a.e(f's_mov_b32 m0, {sW8}')
        for q in range(4):
            a.e(f's_add_u32 {t1}, {oWUK}, {q * (4 * 8192 - 1024)}')
            if q:
                a.e(f'v_xor_b32 {vu}, {TBL[q] << 4}, {vt}')
            a.e(f'buffer_load_dwordx4 {vu if q else vt}, {WUK}, {t1} offen offset:{q * 1024} {pol} lds')
        a.tag_vm('wuk')

    def wo_prep(self, R, tmp):
        a = self.a
        for i in range(3):
            a.e(f'v_add_u32 v{R + i}, {64 * i}, v0')
            a.e(f'v_mul_u32_u24 {tmp}, 21846, v{R + i}')
            a.e(f'v_lshrrev_b32 {tmp}, 16, {tmp}')
            a.e(f'v_mul_u32_u24 {tmp}, {1152 - 48}, {tmp}')
            a.e(f'v_lshl_add_u32 v{R + i}, v0, 4, {tmp}')
        a.e(f's_add_u32 {t5}, {oWO}, {64 * 1152}')

    def wo_lines(self, srd, R, pol='', base=sW8):
        out = []
        for h in range(2):
            out.append(f's_add_u32 m0, {base}, {h * 3072}')
            for i in range(3):
                out.append(f'buffer_load_dwordx4 v{R + i}, {srd}, {t5 if h else oWO} offen offset:{i * 1024} {pol} lds')
        return out

    def wo_group(self, srd, R, lo, hi):
        out = []
        for k in range(lo, hi):
            h, i = divmod(k, 3)
            if k == lo or i == 0:
                out.append(f's_add_u32 m0, {sW8}, {h * 3072}')
            out.append(f'buffer_load_dwordx4 v{R + i}, {srd}, {t5 if h else oWO} offen offset:{i * 1024} lds')
        return out

    def dma_wo(self, srd, R, tmp):
        self.wo_prep(R, tmp)
        for x in self.wo_lines(srd, R, self.o.get('pol_wo1', '')):
            self.a.e(x)
        self.a.tag_vm('wo')

    def touch(self, what, vt, vd):
        a = self.a
        if what == 'code':
            l = a.lab('pc')
            self.sums(t1, [(sJ, 1024), (sV, 256)])
            a.e(f'v_lshl_add_u32 {vt}, v0, 7, {t1}')
            a.e(f'v_min_u32 {vt}, L_tailend-L_top_fast, {vt}')
            a.e('s_getpc_b64 s[0:1]')
            a.e(f'{l}:')
            a.e(f's_add_u32 s0, s0, L_top_fast-{l}')
            a.e(f's_addc_u32 s1, s1, {0 if self.mode is None else -1}')
            a.e('s_mov_b64 exec, 3')
            a.e(f'global_load_dword {vd}, {vt}, s[0:1]')
            a.e('s_mov_b64 exec, -1')
            return
        half = None
        if what[-1] in '01' and what != 'c1':
            what, half = what[:-1], int(what[-1])
        if what in ('wq', 'bwq', 'wuv', 'wuk'):
            srd = {'wq': WQ, 'bwq': BWQ, 'wuv': WUV, 'wuk': WUK}[what]
            a.e(f'v_lshrrev_b32 {vt}, 3, v0')
            a.e(f'v_lshlrev_b32 {vt}, 6, {vt}')
            a.e(f'v_and_or_b32 {vt}, v0, 7, {vt}')
            a.e(f'v_lshlrev_b32 {vt}, 7, {vt}')
            rows = 5 if what in ('wq', 'bwq') else 4
            self.sums(t1, [(sJ, 4 * rows * 8192), (sV, rows * 8192), (sX, 1024)])
            n = 8 * rows
        elif what == 'loc':
            srd = WS
            a.e(f'v_lshlrev_b32 {vt}, 7, v0')
            self.sums(t1, [(sX, L_X), (sJ, 4096), (sV, 1024)])
            n = 8
        elif what == 'c1':
            srd = WS
            a.e(f'v_lshlrev_b32 {vt}, 7, v0')
            self.sums(t1, [(sX, 1 << 19), (sJ, 16384), (sV, 4096)], CB)
            n = 32
        else:
            srd = {'wo': WO, 'bwo': BWO}[what]
            a.e(f'v_lshlrev_b32 {vt}, 7, v0')
            self.sums(t1, [(sX, 512 * 1152), (sJ, 18432), (sV, 4608)])
            n = 36
        m = (1 << n) - 1
        if half == 0:
            m = (1 << (n // 2)) - 1
        elif half == 1:
            m ^= (1 << (n // 2)) - 1
        a.e(f's_mov_b32 exec_lo, {m & 0xffffffff}')
        a.e(f's_mov_b32 exec_hi, {m >> 32}')
        if vd is None:
            a.e(f's_add_u32 m0, {sW8}, 1024')
            a.e(f'buffer_load_dword {vt}, {srd}, {t1} offen lds')
        else:
            a.e(f'buffer_load_dword {vd}, {vt}, {srd}, {t1} offen')
        a.e('s_mov_b64 exec, -1')

    def touches(self, where, vt, vd):
        for w in self.o.get('touch', {}).get(where, []):
            self.touch(w, vt, vd)

    def lnq_addr(self):
        a = self.a
        a.e('v_lshrrev_b32 v52, 4, v0')
        a.e('v_cmp_gt_u32 vcc, 3, v52')
        a.e('v_bfe_u32 v53, v0, 2, 2')
        a.e('v_cndmask_b32 v52, 0, v52, vcc')
        a.e('v_and_b32 v54, 1, v52')
        a.e('v_lshl_add_u32 v54, v54, 2, v53')
        a.e('v_lshl_add_u32 v52, v52, 3, v53')
        a.e('v_and_b32 v53, 3, v0')
        a.e('v_lshl_or_b32 v53, v54, 2, v53')
        a.e('v_lshlrev_b32 v53, 3, v53')
        a.e('v_lshl_or_b32 v52, v52, 8, v53')
        a.e(f's_lshl_b32 {t0}, {sV}, 6')
        a.e(f's_add_u32 {t0}, {t0}, {STG}')
        a.e(f'v_xor_b32 v52, {t0}, v52')
        a.e('v_xor_b32 v54, 32, v52')

    def lnq_prep(self):
        a = self.a
        a.wait(vm='wq')
        a.e('s_barrier')
        for rho in range(3):
            for tau in range(2):
                for half in range(2):
                    a.e(f'ds_read_b64_tr_b16 {vr(28 + 8 * rho + 4 * tau + 2 * half, 2)}, v{52 + 2 * tau} offset:{8192 * rho + 1024 * half}')
        a.e('s_waitcnt lgkmcnt(0)')
        a.e('s_barrier')

    def lnq_rows(self):
        a = self.a
        a.e('v_mov_b32 v53, 0x3f803f80')
        a.e(f's_lshl_b64 s[82:83], {MY}, 8')
        a.e('v_cndmask_b32 v16, 0, v53, s[82:83]')
        a.e('v_mov_b32 v17, v16')
        for r in range(18, 28, 2):
            a.e(f'v_mov_b64 {vr(r, 2)}, v[16:17]')

    def lnq_mfma(self, rho):
        a = self.a
        A = vr(16 + 4 * rho, 4)
        c = (lambda r: '0') if rho == 0 else (lambda r: r)
        return [f'v_mfma_f32_16x16x32_bf16 v[60:63], {A}, {A}, {c("v[60:63]")}',
                f'v_mfma_f32_16x16x32_bf16 v[52:55], {A}, {vr(28 + 8 * rho, 4)}, {c("v[52:55]")}',
                f'v_mfma_f32_16x16x32_bf16 v[56:59], {A}, {vr(32 + 8 * rho, 4)}, {c("v[56:59]")}']

    def lnq_reduce(self, isb, chk=False):
        a = self.a
        a.e('v_pk_add_f32 v[60:61], v[60:61], v[62:63]')
        a.e('v_add_f32 v60, v60, v61')
        if chk:
            a.e('v_cmp_u_f32 vcc, v60, v60')
        a.e('v_pk_add_f32 v[52:53], v[52:53], v[54:55]')
        a.e('v_mov_b32 v61, v60')
        a.e('v_pk_add_f32 v[56:57], v[56:57], v[58:59]')
        a.e('v_add_f32 v52, v52, v53')
        a.e('v_permlane16_swap_b32 v60, v61')
        a.e('v_add_f32 v56, v56, v57')
        a.e('v_add_f32 v60, v60, v61')
        a.e('v_permlane16_swap_b32 v52, v56')
        a.e(f'v_add_f32_dpp v60, v60, v60 quad_perm:[1,0,3,2] {FULL}')
        a.e('v_add_f32 v52, v52, v56')
        self.lcmp()
        a.e(f'v_add_f32_dpp v60, v60, v60 quad_perm:[2,3,0,1] {FULL}')
        if isb:
            a.e(f'v_mov_b32_dpp v53, v52 quad_perm:[1,0,3,2] {FULL}')
            a.e('v_cvt_pk_bf16_f32 v52, v52, v53')
        a.e(f'v_add_f32_dpp v60, v60, v60 row_half_mirror {FULL}')

    def lnq_pubaddr(self, isb, first):
        a = self.a
        if isb:
            self.pos_bytes('v14', None)
            a.e('v_and_b32 v15, 16, v0')
            a.e('v_lshl_or_b32 v14, v15, 4, v14')
            a.e('v_and_b32 v15, 32, v0')
            a.e('v_lshl_or_b32 v14, v15, 6, v14')
        else:
            a.e('v_and_b32 v14, 31, v0')
            a.e('v_lshlrev_b32 v14, 2, v14')
            if first:
                a.e('v_lshrrev_b32 v15, 5, v0')
                a.e(f'v_mul_u32_u24 v15, {L_CSA - L_QA}, v15')
                a.e('v_add_u32 v14, v14, v15')
        a.e('v_lshrrev_b32 v15, 1, v0')

    def lnq_publish(self, isb, first, q='v52', st='v60', qa='v14', sa='v15'):
        lines = []
        if isb:
            lines += ['s_mov_b32 exec_lo, 0x55555555', 's_mov_b32 exec_hi, 0x55555555']
        elif not first:
            lines += ['s_mov_b32 exec_hi, 0']
        lines += [f'buffer_store_dword {q}, {qa}, {WSL}, {oQB if isb else oQA} offen',
                  's_mov_b64 exec, 0x101',
                  f'buffer_store_dword {st}, {sa}, {WSL}, {oST} offen offset:{256 if isb else 0}',
                  's_mov_b64 exec, -1']
        self.lstore(lines)

    def lnq_tail(self, goff, isb):
        a = self.a
        if self.o.get('ybar', 1):
            a.e('s_barrier')
        self.lnq_rows()
        a.e('v_lshrrev_b32 v12, 2, v0')
        a.e('v_mul_u32_u24 v12, 3072, v12')
        a.e(f'v_and_or_b32 v12, {vL16}, 48, v12')
        a.e(f's_lshl_b32 {t4}, {sV}, 7')
        a.e(f's_add_u32 {t4}, {t4}, {oY}')
        a.e(f's_add_u32 {t4}, {t4}, {goff}')
        a.e(f's_add_u32 {t5}, {sW8}, 6144')
        l = a.lab('now')
        a.e(f's_cmp_eq_u32 {sV}, 3')
        a.e(f's_cselect_b32 {t4}, {OOB}, {t4}')
        a.e(f's_cbranch_scc1 {l}')
        a.begin_skip()
        self.dma_wq(BWQ if isb else WQ, 'v8', 'v9', self.o.get('pol_bwq', '') if isb else self.o.get('pol_wq3', ''))
        self.end_only(l)
        if not self.o.get('ybar', 1):
            a.e('s_barrier')
        self.lnq_addr()
        self.lnq_pubaddr(isb, False)
        a.e('v_and_b32 v11, 7, v0')
        a.e('v_lshlrev_b32 v11, 6, v11')
        a.e('v_and_or_b32 v11, v0, 48, v11')
        a.e(f'v_add_u32 v11, {STG + 6144}, v11')
        a.e('v_mov_b32 v13, 0')
        if isb:
            self.wuk_prep('v8', 'v9')
            a.e(f's_cmp_eq_u32 {sV}, 1')
            a.e(f's_cselect_b32 {t3}, {oOALpub}, {OOB}')
        else:
            for r in range(56, 60):
                a.e(f'v_mov_b32 v{r}, -1')
        if isb and self.o.get('c1_late', 1) == 1:
            def clear1():
                b = self.a
                for r in range(56, 60):
                    b.e(f'v_mov_b32 v{r}, -1')
                self.lstore([f'buffer_store_dwordx4 v[56:59], {vL16}, {WS}, {oC1g} offen offset:{i * 1024}' for i in range(4)])
                self.sums(t1, [(sX, 128 * 384), (sJ, 4 * 384), (sV, 384)], GB + G_IT)
                b.e('s_mov_b64 exec, 0xffffff')
                b.e(f'buffer_store_dwordx4 v[56:59], {vL16}, {WS}, {t1} offen sc1')
                b.e('s_mov_b64 exec, -1')
                self.sleep('h2c')
            self.ool_if(f's_cmp_eq_u32 {sIT}, 0', clear1, lambda: self.sleep('h2a'))
        else:
            self.sleep('h2a' if isb else 'h2b')
        ld = [f's_mov_b32 m0, {t5}', 's_mov_b64 exec, 0x77777777',
              f'buffer_load_dword v13, v12, {WSG}, {t4} offen sc1',
              f'buffer_load_dwordx4 v12, {WSG}, {t4} offen sc1 lds',
              's_mov_b64 exec, -1']
        for i, x in enumerate(ld):
            a.e(x)
            if i in (2, 3):
                a.tag_vm(f'y{i}')
        self.touches('w1b' if isb else 'w1c', 'v60', 'v10')
        self.lnq_prep()
        self.stamp('wqrdy', 2)
        if isb:
            self.wuk_issue('v8', 'v9')
        else:
            self.lcmp()
            self.lstore([f'buffer_store_dwordx4 v[56:59], {vL16}, {WS}, {oC1g} offen offset:{i * 1024}' for i in range(4)])
        chk, again = a.lab('chk'), a.lab('again')
        a.wait(vm='y2')
        a.e(f'{chk}:')
        a.e('v_cmp_eq_u32 vcc, -1, v13')
        a.wait(vm='y3')
        self.retry_to(again)
        a.ool(f'{again}:\n' + '\n'.join(ld) + f'\ns_waitcnt vmcnt(0)\ns_branch {chk}')
        a.e(f's_mov_b64 exec, {MY}')
        a.e('s_barrier')
        for rho in range(3):
            a.e(f'ds_read_b128 {vr(16 + 4 * rho, 4)}, v11 offset:{8192 * rho}')
            a.tag_ds(f'a{rho}')
        fl = isb and self.o.get('qflag', 1)
        if fl:
            self.lstore([f'buffer_store_dword v0, off, {WSL}, {t3} offset:{L_FL - L_OAL}'])
        a.e('s_mov_b64 exec, -1')
        self.stamp('h2got', 2)
        if fl:
            a.e('v_and_b32 v9, 7, v0')
            a.e('v_lshlrev_b32 v9, 2, v9')
        self.H('l1', 0, 56)
        mm = [self.lnq_mfma(rho) for rho in range(3)]
        for rho in range(3):
            a.wait(ds=f'a{rho}')
            a.e(mm[rho][0])
        g = ['v_pk_add_f32 v[60:61], v[60:61], v[62:63]', 'v_add_f32 v62, v60, v61', 'v_add_f32 v60, v60, v61', 'v_cmp_u_f32 vcc, v62, v62',
             'v_permlane16_swap_b32 v60, v62', 'v_add_f32 v60, v60, v62',
             f'v_add_f32_dpp v60, v60, v60 quad_perm:[1,0,3,2] {FULL}', f'v_add_f32_dpp v60, v60, v60 quad_perm:[2,3,0,1] {FULL}',
             f'v_add_f32_dpp v60, v60, v60 row_half_mirror {FULL}']
        a.e(mm[0][1]); a.e('s_nop 1')
        a.e(mm[1][1]); a.e('s_nop 1')
        a.e(mm[2][1]); a.e('s_nop 0'); a.e(g[0])
        a.e(mm[0][2]); a.e(g[1]); a.e(g[2])
        a.e(mm[1][2]); a.e(g[3]); a.e(g[4])
        a.e(mm[2][2]); a.e(g[5])
        a.e('v_pk_add_f32 v[52:53], v[52:53], v[54:55]')
        a.e('v_add_f32 v52, v52, v53')
        a.e(g[6])
        a.e(g[7])
        a.e('v_pk_add_f32 v[56:57], v[56:57], v[58:59]')
        a.e('v_add_f32 v56, v56, v57')
        a.e(g[8])
        again2 = a.lab('again')
        self.retry_to(again2)
        a.e('v_permlane16_swap_b32 v52, v56')
        a.e('v_add_f32 v52, v52, v56')
        if isb:
            a.e(f'v_mov_b32_dpp v53, v52 quad_perm:[1,0,3,2] {FULL}')
            a.e('v_cvt_pk_bf16_f32 v52, v52, v53')
        a.ool(f'{again2}:\ns_barrier\ns_branch {again}')
        if fl == 1:
            a.e(f'buffer_load_dword v10, v9, {WSL}, {oOALg} offen offset:{L_FL - L_OAL} sc1')
            a.tag_vm('fl')
        self.lnq_publish(isb, False)
        if fl == 2:
            a.e(f'buffer_load_dword v10, v9, {WSL}, {oOALg} offen offset:{L_FL - L_OAL} sc1')
            a.tag_vm('fl')
        self.stamp('qpub')

    def c1_addr(self, dst, tmp):
        a = self.a
        a.e(f'v_lshrrev_b32 {tmp}, 4, v0')
        a.e(f'v_and_b32 {dst}, 0xf0, {vL16}')
        a.e(f'v_lshl_or_b32 {dst}, {tmp}, 12, {dst}')

    def stats(self, S):
        out = []
        for c in (4, 2, 1):
            out.append(f'v_add_f32_dpp v{S + 1}, v{S + 1}, v{S + 1} row_ror:{c} {FULL}')
            out.append(f'v_add_f32_dpp v{S}, v{S}, v{S} row_ror:{c} {FULL}')
        out.append(f'v_mul_f32 v{S + 1}, {f32(1.0 / (8 * 576))}, v{S + 1}')
        out.append(f'v_mul_f32 v{S}, {f32(1.0 / 576)}, v{S}')
        out.append(f'v_fma_f32 v{S}, -v{S + 1}, v{S + 1}, v{S}')
        out.append(f'v_max_f32 v{S}, 0, v{S}')
        out.append(f'v_add_f32 v{S}, {f32(1e-5)}, v{S}')
        out.append(f'v_rsq_f32 v{S}, v{S}')
        out.append(f'v_mul_f32 v{S + 1}, 0x3e000000, v{S + 1}')
        out.append(f'v_mul_f32 v{S}, {f32(QSCALE)}, v{S}')
        return out

    def mix(self, x, y):
        x, y = list(x), list(y)
        while x or y:
            if x:
                self.a.e(x.pop(0))
            if y:
                self.a.e(y.pop(0))

    def resid(self, goff, base, va, final):
        a = self.a
        a.e(f'v_lshlrev_b32 {va}, 2, v0')
        a.e(f's_add_u32 {t2}, {oRES}, {goff}')
        a.e('s_mov_b64 exec, 0xfff')
        if final:
            self.sleep('fin')
        self.poll_begin()
        for i in range(8):
            if i & 1 == 0:
                a.e(f's_add_u32 {t3}, {t2}, {i * 3072}')
            a.e(f'buffer_load_dword v{base + i}, {va}, {WSG}, {t3} offen offset:{(i & 1) * 3072} sc1')
        a.e(f'v_mov_b32 v{base + 8}, 0x3f80')
        a.e(f'v_mov_b32 v{base + 9}, 0x3f800000')
        a.e('v_mov_b64 v[4:5], 0')
        for i in range(8):
            if i & 1 == 0:
                a.e(f's_waitcnt vmcnt({6 - i})')
            a.e(f'v_dot2c_f32_bf16 v4, v{base + 8}, v{base + i}')
            a.e(f'v_dot2c_f32_bf16 v5, v{base + 9}, v{base + i}')
        a.e('s_nop 2')
        a.e('v_cmp_u_f32 vcc, v4, v5')
        if final:
            a.e('v_cvt_pk_bf16_f32 v9, v4, v5')
            a.e(f's_mul_i32 {t0}, {sJ}, 48')
        self.poll_br()

    def resid_track(self, goff, base, va, cond):
        a = self.a
        go, back = a.lab('res'), a.lab('resback')
        a.e(cond)
        a.e(f's_cbranch_scc1 {go}')
        a.e(f'{back}:')
        sub = Asm()
        sub.uid = a.uid + 1000 * (1 + len(a.tail))
        self.a = sub
        sub.e(f'{go}:')
        sub.e('s_nop 1')
        self.resid(goff, base, va, False)
        sub.e('s_mov_b64 exec, -1')
        sub.e(f's_branch {back}')
        self.a = a
        body = [i.text for i in sub.ins]
        cut = [k for k in range(0, len(body), 14)]
        for k in cut:
            part = body[k:k + 14]
            if k + 14 < len(body):
                nxt = a.lab('resp')
                part.append(f's_branch {nxt}')
                body[k + 14] = f'{nxt}:\n' + body[k + 14]
            a.ool('\n'.join(part))
        for t in sub.tail:
            a.ool(t)

    def qa_addr(self, T):
        a = self.a
        a.e(f'v_and_b32 v{T}, 4, v0')
        a.e(f'v_lshlrev_b32 v{T}, 3, v{T}')
        a.e(f'v_and_b32 v{T + 1}, 3, v0')
        a.e(f'v_lshl_or_b32 v{T}, v{T + 1}, 2, v{T}')
        a.e(f'v_lshrrev_b32 v{T + 1}, 5, v0')
        a.e(f'v_lshl_or_b32 v{T}, v{T + 1}, 4, v{T}')
        a.e(f'v_bfe_u32 v{T + 1}, v0, 4, 1')
        a.e(f'v_lshl_or_b32 v{T}, v{T + 1}, 1, v{T}')
        a.e(f's_lshl_b32 {t0}, {sV}, 6')
        a.e(f's_add_u32 {t0}, {t0}, {ZQ}')
        a.e(f'v_add_u32 v{T}, {t0}, v{T}')
        a.e(f'v_and_b32 v{T + 1}, 7, v0')
        a.e(f'v_lshlrev_b32 v{T + 1}, 3, v{T + 1}')
        self.sp_addr(f'v{T + 2}', ZQ)

    def red8(self, R):
        return [f'v_permlane32_swap_b32 v{R}, v{R + 2}',
                f'v_permlane32_swap_b32 v{R + 1}, v{R + 3}',
                f'v_pk_add_f32 {vr(R, 2)}, {vr(R, 2)}, {vr(R + 2, 2)}',
                f'v_permlane16_swap_b32 v{R}, v{R + 1}',
                f'v_add_f32 v{R}, v{R}, v{R + 1}',
                f'v_add_f32_dpp v{R}, v{R}, v{R} row_ror:8 {FULL}']

    def qa_loads(self, R, S, T):
        return [f'buffer_load_dwordx2 {vr(S, 2)}, v{T + 1}, {WSL}, {oSTgA} offen sc1',
                f'buffer_load_dwordx4 {vr(R, 4)}, {vL16}, {WSL}, {oQgA} offen sc1']

    def qa_finish(self, R, S, T, Q, br=False):
        a = self.a
        self.mix(self.stats(S), self.red8(R) + [f'v_and_b32 v{R + 1}, 0xffff0000, v1'])
        a.e(f'v_fma_f32 v{R}, -v{S + 1}, v{R + 1}, v{R}')
        a.e(f'v_mul_f32 v{R}, v{R}, v{S}')
        a.e(f'v_cvt_pk_bf16_f32 v{R}, v{R}, v{R}')
        a.e(f'ds_write_b16 v{T}, v{R}')
        if br:
            return
        self.bar(2, br)
        a.e(f'ds_read_b128 {vr(Q, 4)}, v{T + 2}')
        a.tag_ds('q0')
        a.e(f'ds_read_b128 {vr(Q + 4, 4)}, v{T + 2} offset:128')
        a.tag_ds('q1')

    def p_addr(self, r, t):
        a = self.a
        a.e(f'v_and_b32 {r}, 0x32, v0')
        a.e(f'v_lshlrev_b32 {r}, 3, {r}')
        a.e(f'v_and_b32 {t}, 8, v0')
        a.e(f'v_lshl_or_b32 {r}, {t}, 2, {r}')
        a.e(f'v_and_b32 {t}, 5, v0')
        a.e(f'v_lshl_or_b32 {r}, {t}, 1, {r}')
        a.e(f'v_add_u32 {r}, {sW8}, {r}')

    def qk_softmax(self, Q, D, S, T, fill=()):
        a = self.a
        for t in range(19):
            if t >= 3:
                d = D + 4 * ((t - 3) & 3)
                a.e(f'v_add_f32_dpp v{S + ((t - 3) & 3)}, v{d}, v{d + 1} {DPPI} row_mask:{1 << ((t - 3) >> 2)} bank_mask:0xf')
            if 4 <= t + 1 < 16:
                a.e(f'v_mov_b64 {vr(D + 4 * ((t + 1) & 3), 2)}, 0')
            if t < 16:
                d = vr(D + 4 * (t & 3), 4)
                if t == 0:
                    a.wait(ds='q0')
                a.e(f'v_smfmac_f32_16x16x64_bf16 {d}, {vr(Q, 4)}, a[{16 * t}:{16 * t + 7}], v1')
                if t == 0:
                    a.wait(ds='q1')
                elif t - 1 < len(fill):
                    for x in fill[t - 1]:
                        a.e(x)
                a.e(f'v_smfmac_f32_16x16x64_bf16 {d}, {vr(Q + 4, 4)}, a[{16 * t + 8}:{16 * t + 15}], v1')
        self.softmax_a(S, T, f'v{T + 1}')

    def softmax_a(self, S, T, pa, fill=()):
        a = self.a
        fill = list(fill)

        def f2():
            for _ in range(2):
                if fill:
                    a.e(fill.pop(0))
        m = f'v{T}'
        a.e(f'v_max3_f32 {m}, v{S}, v{S + 1}, v{S + 2}')
        a.e(f'v_max_f32 {m}, {m}, v{S + 3}')
        for c in ('row_ror:8', 'row_ror:4', 'row_ror:2', 'row_ror:1'):
            f2()
            a.e(f'v_max_f32_dpp {m}, {m}, {m} {c} {FULL}')
        f2()
        a.e(f'v_max_f32_dpp {m}, {m}, {m} row_bcast:15 row_mask:0xa bank_mask:0xf')
        f2()
        a.e(f'v_max_f32_dpp {m}, {m}, {m} row_bcast:31 row_mask:0xc bank_mask:0xf')
        a.e(f'v_readlane_b32 {sM}, {m}, 63')
        f2()
        assert not fill
        for r in range(4):
            a.e(f'v_subrev_f32 v{S + r}, {sM}, v{S + r}')
        for r in range(4):
            a.e(f'v_exp_f32 v{S + r}, v{S + r}')
        a.e(f'v_cvt_pk_bf16_f32 v{T + 2}, v{S}, v{S + 1}')
        a.e(f'v_cvt_pk_bf16_f32 v{T + 3}, v{S + 2}, v{S + 3}')
        a.e(f'ds_write_b16 {pa}, v{T + 2} offset:6144')
        a.e(f'ds_write_b16_d16_hi {pa}, v{T + 2} offset:{6144 + 4}')
        a.e(f'ds_write_b16 {pa}, v{T + 3} offset:{6144 + 64}')
        a.e(f'ds_write_b16_d16_hi {pa}, v{T + 3} offset:{6144 + 68}')

    def lsum(self, l, S):
        out = [f'v_pk_add_f32 {vr(S, 2)}, {vr(S, 2)}, {vr(S + 2, 2)}', f'v_add_f32 {l}, v{S}, v{S + 1}']
        for c in ('row_ror:8', 'row_ror:4', 'row_ror:2', 'row_ror:1'):
            out.append(f'v_add_f32_dpp {l}, {l}, {l} {c} {FULL}')
        out.append(f'v_add_f32_dpp {l}, {l}, {l} row_bcast:15 row_mask:0xa bank_mask:0xf')
        out.append(f'v_add_f32_dpp {l}, {l}, {l} row_bcast:31 row_mask:0xc bank_mask:0xf')
        return out

    def ml_write(self, T):
        return [f's_lshl_b32 {t0}, {sV}, 3', f's_add_u32 {t0}, {t0}, {ZML}', f'v_mov_b32 v{T + 2}, 0x30000', f'v_mov_b32 v{T}, {sM}',
                f'v_writelane_b32 v{T + 2}, {t0}, 63\nds_write_b64 v{T + 2}, {vr(T, 2)}']

    def ml_read(self, R, T):
        return [f'v_mov_b32 v{T}, {ZML}', f'ds_read_b128 {vr(R, 4)}, v{T}', f'ds_read_b128 {vr(R + 4, 4)}, v{T} offset:16']

    def ml_scale(self, R, T, F, LW):
        out = [f'v_max3_f32 v{T}, v{R}, v{R + 2}, v{R + 4}', f'v_max_f32 v{T}, v{T}, v{R + 6}']
        out += [f'v_sub_f32 v{R + 2 * w}, v{R + 2 * w}, v{T}' for w in range(4)]
        out += [f'v_sub_f32 v{F}, {sM}, v{T}']
        out += [f'v_exp_f32 v{R + 2 * w}, v{R + 2 * w}' for w in range(4)]
        out += [f'v_exp_f32 v{F}, v{F}', f'v_mul_f32 v{LW}, v{R}, v{R + 1}']
        out += [f'v_fmac_f32 v{LW}, v{R + 2 * w}, v{R + 2 * w + 1}' for w in range(1, 4)]
        out += [f'v_rcp_f32 v{R}, v{LW}', f'v_log_f32 v{LW}, v{LW}', f'v_mul_f32 v{F}, v{F}, v{R}', f'v_add_f32 v{LW}, v{LW}, v{T}']
        return out

    def combine_publish(self):
        a = self.a
        a.e('ds_write2st64_b32 v46, v44, v45 offset0:26 offset1:27')
        a.e(f'buffer_load_dword v16, v47, {WSL}, {oOALg} offen sc1')
        a.tag_vm('lw')
        a.e(f'v_mov_b32 v10, {STG + 6656}')
        a.e('v_lshl_add_u32 v8, v0, 3, v10')
        a.e('v_and_b32 v10, 56, v0')
        a.e('v_lshlrev_b32 v10, 5, v10')
        a.e(f'v_and_or_b32 v10, {vL16}, 16, v10')
        a.e('v_and_b32 v11, 6, v0')
        a.e('v_lshl_or_b32 v10, v11, 1, v10')
        a.e(f's_cmp_lg_u32 {sV}, 0')
        self.H('c1', 0, 12)
        a.e('s_waitcnt lgkmcnt(0)')
        a.e('s_barrier')
        l = a.lab('notw')
        a.e(f's_cbranch_scc1 {l}')
        a.begin_skip()
        for w in range(4):
            a.e(f'ds_read_b64 {vr(20 + 2 * w, 2)}, v8 offset:{w * 8192}')
            a.tag_ds(f'o{w}')
            if w == 0:
                self.H('c2', 0, 12)
        a.wait(ds='o1')
        a.e('v_pk_add_f32 v[20:21], v[20:21], v[22:23]')
        a.wait(ds='o3')
        a.e('v_pk_add_f32 v[24:25], v[24:25], v[26:27]')
        a.e('v_pk_add_f32 v[20:21], v[20:21], v[24:25]')
        a.e('v_cvt_pk_bf16_f32 v20, v20, v21')
        self.end_only(l)
        self.lstore([f'buffer_store_dword v20, v10, {WSL}, {oOApub} offen'])

    def w8(self, lw, t):
        return [f'v_max_f32_dpp {t}, {lw}, {lw} row_ror:4 {FULL}',
                f'v_max_f32_dpp {t}, {t}, {t} row_ror:2 {FULL}',
                f'v_max_f32_dpp {t}, {t}, {t} row_ror:1 {FULL}',
                f'v_sub_f32 {lw}, {lw}, {t}',
                f'v_exp_f32 {lw}, {lw}',
                f'v_add_f32_dpp {t}, {lw}, {lw} row_ror:4 {FULL}',
                f'v_add_f32_dpp {t}, {t}, {t} row_ror:2 {FULL}',
                f'v_add_f32_dpp {t}, {t}, {t} row_ror:1 {FULL}',
                f'v_rcp_f32 {t}, {t}']

    def rot8(self, dst, sh):
        a = self.a
        a.e(f'v_lshrrev_b32 {dst}, 4, v0')
        a.e(f'v_lshl_add_u32 {dst}, {dst}, 1, v0')
        a.e(f'v_and_b32 {dst}, 7, {dst}')
        a.e(f'v_lshlrev_b32 {dst}, {sh}, {dst}')

    def weigh2(self, skip=0, lw='v16', chk=False):
        a = self.a
        w = self.w8(lw, 'v17')
        for x in w[skip:6]:
            a.e(x)
        a.e('v_add_f32 v20, v20, v21')
        a.e('v_add_f32 v22, v22, v23')
        a.e(w[6])
        a.e('v_add_f32 v24, v24, v25')
        a.e('v_add_f32 v26, v26, v27')
        a.e(w[7])
        a.e(f'v_mul_f32_dpp v20, {lw}, v20 row_newbcast:0 {FULL}')
        a.e(f'v_mul_f32_dpp v24, {lw}, v24 row_newbcast:0 {FULL}')
        a.e(f'v_fmac_f32_dpp v20, {lw}, v22 row_newbcast:1 {FULL}')
        a.e(f'v_fmac_f32_dpp v24, {lw}, v26 row_newbcast:1 {FULL}')
        a.e(w[8])
        if chk:
            a.e('v_cmp_u_f32 vcc, v20, v20')
        a.e('v_permlane32_swap_b32 v20, v24')
        a.e('v_add_f32 v20, v20, v24')
        a.e('v_mul_f32 v20, v20, v17')

    def w8n(self, lw, t, W):
        return self.w8(lw, t) + [f'v_mul_f32_dpp v{W}, {lw}, {t} row_newbcast:0 {FULL}', f'v_mul_f32_dpp v{W + 1}, {lw}, {t} row_newbcast:1 {FULL}']

    def weigh2n(self, W):
        a = self.a
        w = vr(W, 2)
        a.e(f'v_pk_mul_f32 v[20:21], v[20:21], {w} op_sel_hi:[1,0]')
        a.e(f'v_pk_fma_f32 v[20:21], v[22:23], {w}, v[20:21] op_sel:[0,1,0] op_sel_hi:[1,1,1]')
        a.e(f'v_pk_mul_f32 v[24:25], v[24:25], {w} op_sel_hi:[1,0]')
        a.e('v_add_f32 v20, v20, v21')
        a.e(f'v_pk_fma_f32 v[24:25], v[26:27], {w}, v[24:25] op_sel:[0,1,0] op_sel_hi:[1,1,1]')
        a.e('v_add_f32 v24, v24, v25')
        a.e('v_cmp_u_f32 vcc, v20, v20')
        a.e('v_permlane32_swap_b32 v20, v24')
        a.e('v_add_f32 v20, v20, v24')

    def outproj(self, isa):
        a = self.a
        if not isa:
            a.e(f's_add_u32 {t4}, {oO}, {L_OB - L_OA}')
        so = oO if isa else t4
        ld = [f'buffer_load_dwordx4 v[8:11], {vL16}, {WSL}, {so} offen sc1',
              f'buffer_load_dwordx4 v[12:15], {vL16}, {WSL}, {so} offen offset:1024 sc1']
        a.e('v_lshrrev_b32 v28, 4, v0')
        a.e('v_bfe_u32 v29, v0, 2, 2')
        a.e('v_lshl_add_u32 v28, v28, 3, v29')
        a.e('v_mul_u32_u24 v28, 48, v28')
        a.e('v_and_b32 v29, 3, v0')
        a.e('v_lshl_add_u32 v28, v29, 3, v28')
        a.e(f'v_add_u32 v28, {sW8}, v28')
        tr = []
        for blk in range(2):
            for tile in range(2):
                for hh in range(2):
                    for half in range(2):
                        off = (64 * blk + 32 * hh + 4 * half) * 48 + 32 * tile
                        tr.append(f'ds_read_b64_tr_b16 {vr(32 + 16 * tile + 8 * blk + 4 * hh + 2 * half, 2)}, v28 offset:{off}')
        a.e(f's_lshl_b32 {t2}, {sV}, 3')
        a.e(f's_add_u32 {t2}, {t2}, {ZO}')
        pre = ['v_and_b32 v18, 15, v0', 'v_lshrrev_b32 v19, 5, v0', 'v_lshl_add_u32 v18, v19, 4, v18', 'v_bfe_u32 v19, v0, 4, 1',
               'v_lshlrev_b32 v19, 2, v19', 'v_lshl_add_u32 v18, v18, 5, v19', f'v_add_u32 v18, {t2}, v18', f'v_mov_b32 v19, {ZO}',
               'v_and_b32 v29, 15, v0', 'v_lshl_add_u32 v19, v29, 6, v19', 'v_lshlrev_b32 v29, 2, v0']
        n1 = self.o.get('tr_pre', 8)
        if isa:
            a.e('s_waitcnt vmcnt(1)')
            a.vmq = []
        a.wait(vm='wo')
        for x in tr[:n1]:
            a.e(x)
        if isa:
            chk, again = a.lab('chk'), a.lab('again')
            a.e(f'{chk}:')
            a.e('v_cmp_eq_u32 vcc, -1, v16')
            a.e('v_mov_b32 v22, v16')
            self.retry_to(again)
            a.ool(f'{again}:\nbuffer_load_dword v16, v47, {WSL}, {oOALg} offen sc1\ns_waitcnt vmcnt(1)\ns_branch {chk}')
        self.sleep('h1' if isa else 'hd')
        for x in ld:
            a.e(x)
        if isa:
            pre = [x for p in zip(self.w8n('v22', 'v17', 30), pre) for x in p]
        self.mix(tr[n1:], pre)
        a.e(f's_add_u32 {t2}, {oYpub}, {G_YA if isa else G_YB}')
        top = a.lab('poll')
        a.e(f'{top}:')
        for x in ld:
            self.H('o0', 0, 20)
            a.e(x)
        for r in range(26, 18, -2):
            a.e(f'v_mov_b64 {vr(r, 2)}, 0')
        self.K(0, 'po', True)
        a.e(f's_waitcnt vmcnt({len(ld)}) lgkmcnt(0)')
        a.e('v_cmp_u_f32 vcc, v8, v12')
        a.e('v_smfmac_f32_16x16x64_bf16 v[20:23], v[8:11], v[32:39], v1')
        a.e('v_smfmac_f32_16x16x64_bf16 v[20:23], v[12:15], v[40:47], v1')
        self.retry_to(top)
        a.e('v_smfmac_f32_16x16x64_bf16 v[24:27], v[8:11], v[48:55], v1')
        a.e('v_smfmac_f32_16x16x64_bf16 v[24:27], v[12:15], v[56:63], v1')
        self.stamp('ogot')
        if isa:
            self.weigh2n(30)
        else:
            a.e('v_pk_add_f32 v[20:21], v[20:21], v[22:23]')
            a.e('v_add_f32 v20, v20, v21')
            a.e('v_cmp_u_f32 vcc, v20, v20')
            a.e('v_pk_add_f32 v[24:25], v[24:25], v[26:27]')
            a.e('v_add_f32 v24, v24, v25')
            a.e('v_permlane32_swap_b32 v20, v24')
            a.e('v_add_f32 v20, v20, v24')
        a.e('ds_write_b32 v18, v20')
        self.H('o1', 0, 24)
        self.retry_to(top)
        a.e(f's_bitcmp0_b32 {sRES}, 0')
        self.H('o2', 0, 24)
        self.bar(1, True)
        l = a.lab('noy')
        a.e(f's_cbranch_scc1 {l}')
        a.begin_skip()
        for i in range(4):
            a.e(f'ds_read_b128 {vr(32 + 4 * i, 4)}, v19 offset:{16 * i}')
            a.tag_ds(f'z{i}')
            if i == 1:
                self.H('o3', 0, 24)
        a.e('s_mov_b32 exec_hi, 0')
        self.K(2)
        self.Wm()
        a.wait(ds='z1')
        a.e('v_pk_add_f32 v[32:33], v[32:33], v[34:35]')
        a.e('v_pk_add_f32 v[36:37], v[36:37], v[38:39]')
        a.e('v_pk_add_f32 v[32:33], v[32:33], v[36:37]')
        a.e('v_add_f32 v32, v32, v33')
        a.wait(ds='z3')
        a.e('v_pk_add_f32 v[40:41], v[40:41], v[42:43]')
        a.e('v_pk_add_f32 v[44:45], v[44:45], v[46:47]')
        a.e('v_pk_add_f32 v[40:41], v[40:41], v[44:45]')
        a.e('v_add_f32 v33, v40, v41')
        a.e('v_pk_add_f32 v[32:33], v[32:33], v[4:5]')
        a.e('v_cvt_pk_bf16_f32 v32, v32, v33')
        a.e(f'buffer_store_dword v32, v29, {WSG}, {t2} offen sc1')
        a.e('s_mov_b32 exec_hi, -1')
        a.end_skip()
        a.e(f'{l}:')
        self.stamp('ypub')

    def qabs(self):
        a = self.a
        a.e('v_and_b32 v36, 7, v0')
        a.e('v_lshlrev_b32 v37, 3, v36')
        a.e(f's_sub_u32 {t0}, {sW8}, {sKV}')
        a.e(f'v_add_u32 v56, {t0}, {vA}')
        for ks in range(1, 4):
            a.e(f'v_xor_b32 v{56 + ks}, {ks << 6}, v56')
        a.e('v_and_b32 v38, 8, v0')
        a.e('v_lshlrev_b32 v38, 3, v38')
        a.e('v_lshl_or_b32 v38, v36, 1, v38')
        a.e(f's_lshl_b32 {t0}, {sV}, 4')
        a.e(f's_add_u32 {t0}, {t0}, {ZQ}')
        a.e(f'v_add_u32 v38, {t0}, v38')
        a.e(f'v_add_u32 v39, {ZQ}, {vL16}')
        if self.o.get('qflag', 1):
            chk, again = a.lab('chk'), a.lab('again')
            a.wait(vm='fl')
            a.e(f'{chk}:')
            a.e('v_cmp_eq_u32 vcc, -1, v10')
            self.retry_to(again)
            a.ool(f'{again}:\nbuffer_load_dword v10, v9, {WSL}, {oOALg} offen offset:{L_FL - L_OAL} sc1\ns_waitcnt vmcnt(1)\ns_branch {chk}')
        self.sleep('hqb')
        top = a.lab('poll')
        a.e(f'{top}:')
        a.e(f'buffer_load_dwordx2 v[34:35], v37, {WSL}, {oSTgB} offen sc1')
        a.tag_vm('st')
        for i in (2, 3, 0, 1):
            a.e(f'buffer_load_dwordx4 {vr(8 + 4 * i, 4)}, {vL16}, {WSL}, {oQgB} offen offset:{i * 1024} sc1')
            a.tag_vm(f'q{i}')
        a.wait(vm='wuk')
        for ks in range(4):
            a.e(f'ds_read_b128 {vr(40 + 4 * ks, 4)}, v{56 + ks}')
            a.e(f'v_mov_b64 {vr(24 + 2 * ks, 2)}, 0')
        self.H('q1', 0, 60)
        a.wait(vm='st')
        a.e('v_cmp_u_f32 vcc, v34, v35')
        st = self.stats(34)
        for x in st[:4]:
            a.e(x)
        self.retry_to(top)
        for x in st[4:6]:
            a.e(x)
        a.e('s_waitcnt lgkmcnt(0)')
        a.wait(vm='q2')
        a.e('v_smfmac_f32_16x16x64_bf16 v[28:31], v[16:19], v[40:47], v1')
        for x in st[6:]:
            a.e(x)
        a.wait(vm='q3')
        a.e('v_smfmac_f32_16x16x64_bf16 v[28:31], v[20:23], v[48:55], v1')
        self.H('q2', 0, 60)
        a.wait(vm='q0')
        a.e('v_smfmac_f32_16x16x64_bf16 v[24:27], v[8:11], v[40:47], v1')
        self.K(1, 'qb3', True)
        a.e('v_pk_add_f32 v[28:29], v[28:29], v[30:31]')
        a.e('v_add_f32 v28, v28, v29')
        a.e('v_mul_f32 v28, v28, v35')
        a.e(f's_cmp_lg_u32 {sV}, 0')
        self.K(0, 'qb4', True)
        a.wait(vm='q1')
        a.e('v_smfmac_f32_16x16x64_bf16 v[24:27], v[12:15], v[48:55], v1')
        self.stamp('qgotB', 2)
        a.e('v_pk_add_f32 v[24:25], v[24:25], v[26:27]')
        a.e('v_sub_f32 v24, v24, v28')
        a.e('v_add_f32 v24, v24, v25')
        a.e('v_mul_f32 v25, v24, v34')
        a.e('v_mul_f32 v24, v24, v34')
        a.e('v_cmp_u_f32 vcc, v24, v24')
        a.e('v_permlane32_swap_b32 v24, v25')
        a.e('v_add_f32 v26, v24, v25')
        a.e('v_add_f32 v24, v24, v25')
        a.e('v_permlane16_swap_b32 v24, v26')
        a.e('v_add_f32 v24, v24, v26')
        a.e('v_cvt_pk_bf16_f32 v24, v24, v24')
        a.e('ds_write_b16 v38, v24')
        self.retry_to(top)
        a.e('s_waitcnt lgkmcnt(0)')
        a.e('s_barrier')
        l = a.lab('notw')
        a.e(f's_cbranch_scc1 {l}')
        a.begin_skip()
        a.e('s_mov_b64 exec, 0xff')
        a.e('ds_read_b128 v[24:27], v39')
        a.e('s_waitcnt lgkmcnt(0)')
        a.e(f'buffer_store_dwordx4 v[24:27], {vL16}, {WSG}, {oQApub} offen sc1')
        a.e('s_mov_b64 exec, -1')
        self.end_only(l)
        self.stamp('qapub')
        self.touches('w3', 'v8', 'v9')
        self.resid_track(G_YA, 10, 'v8', f's_cmp_eq_u32 {sRES}, 3')

    def attn_b(self):
        a = self.a
        a.e(f's_mul_i32 {t0}, {sV}, {4096 - 16384}')
        a.e(f's_add_u32 {t0}, {t0}, {CKV}')
        a.e(f'v_add_u32 v56, {t0}, {vA}')
        a.e('v_xor_b32 v57, 64, v56')
        ORD = [(r, ks) for kp in range(2) for r in range(4) for ks in (2 * kp, 2 * kp + 1)]
        ga = ['v_and_b32 v58, 12, v0', 'v_lshlrev_b32 v58, 4, v58', 'v_and_or_b32 v58, v0, 48, v58', 'v_lshlrev_b32 v58, 2, v58',
              f'v_and_or_b32 v58, {vL16}, 48, v58', 'v_lshlrev_b32 v8, 7, v0', 'v_mov_b32 v9, 0']
        for x in ga:
            a.e(x)
        a.e(f'v_add_u32 v59, {STG}, {vL16}')
        a.e('s_barrier')
        if self.o.get('l4_wo', 0) == 1:
            def early_wo():
                self.wo_prep(12, 'v15')
                for x in self.wo_lines(BWO, 12, '', sKV):
                    self.a.e(x)
                self.sleep('ha1')
            self.ool_if(f's_cmp_eq_u32 {sIT}, 1', early_wo, lambda: self.sleep('ha'))
        else:
            self.sleep('ha')
        top = a.lab('poll')
        a.e(f'{top}:')
        ld = [f's_mov_b32 m0, {sW8}', 's_mov_b32 exec_hi, 0', f'buffer_load_dword v9, v8, {WSG}, {oQAg} offen sc1', 's_mov_b32 exec_hi, -1']
        for ks in range(4):
            ld.append(f'buffer_load_dwordx4 v58, {WSG}, {oQAg} offen offset:{ks * 1024} sc1 lds')
        for x in ld:
            a.e(x)
        for k in range(8):
            r, ks = ORD[k]
            a.e(f'ds_read_b128 {vr(24 + 4 * k, 4)}, v{56 + (ks & 1)} offset:{r * 16384}')
        a.e('v_xor_b32 v56, 128, v56')
        a.e('v_xor_b32 v57, 128, v57')
        self.k64_addr('v10', None)
        l4 = self.o.get('l4_wo', 0)
        if l4 == 2:
            self.wo_prep(12, 'v15')
        chk, again = a.lab('chk'), a.lab('again')
        a.e(f'{chk}:')
        a.e('s_waitcnt vmcnt(4)')
        a.e('v_cmp_eq_u32 vcc, -1, v9')
        self.retry_to(again)
        a.ool(f'{again}:\n' + '\n'.join(ld) + f'\ns_branch {chk}')
        pol = self.o.get('pol_wuv', '')
        for i in range(1, 4):
            a.e(f's_add_u32 {[t1, t2, t3][i - 1]}, {oWUV}, {i * (16 * 8192 - 1024)}')
        a.e('v_mov_b32 v58, v10')
        half = self.o.get('qa_half', 1)
        if l4 == 2:
            a.e(f's_cmp_eq_u32 {sIT}, 1')
            a.e(f's_cselect_b32 {t0}, {sKV}, 0x30000')
            a.e(f's_cselect_b32 {t4}, {oWO}, {OOB}')
            a.e(f's_cselect_b32 {t5}, {t5}, {OOB}')
            for x in self.wo_lines(BWO, 12, '', t0):
                a.e(x.replace(f', {oWO} ', f', {t4} '))
        ex = 6 if l4 == 2 else 0
        a.e(f's_waitcnt vmcnt({(2 if half else 0) + ex}) lgkmcnt(0)')
        a.e('s_barrier')
        self.stamp('qagot')

        def qread(k):
            r, ks = ORD[k]
            a.e(f'ds_read_b128 {vr(8 + 4 * (k & 3), 4)}, v59 offset:{r * 8192 + ks * 1024}')
            a.tag_ds(f'q{k}')
        for k in range(4):
            qread(k)
        a.e(f's_add_u32 m0, {sW8}, 4096')
        SLOT = [16, 40, 48]

        def tread(e, ad='v57'):
            l = [f'v_xor_b32 {ad}, {CKV | (e << 5)}, {vT}']
            for t in range(4):
                l.append(f'ds_read_b64_tr_b16 {vr(SLOT[e % 3] + 2 * t, 2)}, {ad} offset:{t * 4096}')
            return l
        for k in range(16):
            a.wait(ds=f'q{k}')
            a.e(f'v_mfma_f32_16x16x32_bf16 v[60:63], {vr(24 + 4 * (k & 7), 4)}, {vr(8 + 4 * (k & 3), 4)}, {"v[60:63]" if k else "0"}')
            if k < 8:
                r, ks = ORD[k + 8]
                a.e(f'ds_read_b128 {vr(24 + 4 * k, 4)}, v{56 + (ks & 1)} offset:{r * 16384}')
            if k == 4 and half:
                a.e(f's_waitcnt vmcnt({2 + ex})')
                a.e('s_barrier')
            if k + 4 < 16:
                qread(k + 4)
            if k in (0, 2, 4, 6):
                a.e(f'buffer_load_dwordx4 v58, {WUV}, {[oWUV, t1, t2, t3][k >> 1]} offen offset:{(k >> 1) * 1024} {pol} lds')
            if k == 10:
                a.e('s_barrier')
            if k == 8:
                a.e(f'v_and_b32 v58, 0xf0, {vL16}')
                a.e(f's_lshl_b32 {t0}, {sV}, 2')
            if k == 9:
                a.e(f'v_add_u32 v58, {STG}, v58')
                a.e(f's_add_u32 {t1}, {oC1pub}, 4096')
            if k == 11:
                a.e(f'v_add_u32 v24, {t0}, v58')
                a.e(f's_add_u32 {t2}, {oC1pub}, 8192')
            if k == 12:
                a.e('v_xor_b32 v56, 128, v56')
                a.e(f'v_lshl_add_u32 v25, v0, 3, {sW8}')
            if k == 13:
                t1_ = tread(1)
                a.e(t1_[0]); a.e(t1_[1])
            if k == 14:
                a.e(t1_[2]); a.e(t1_[3])
        a.e(t1_[4])
        t0_, t2_ = tread(0), tread(2)
        a.e(f'v_mov_b32 v26, {STG}')
        a.e('v_lshl_add_u32 v26, v0, 3, v26')
        a.e(f's_add_u32 {t3}, {oC1pub}, 12288')
        for r in range(36, 40):
            a.e(f'v_mov_b32 v{r}, 0x3f803f80')
        a.e('v_max3_f32 v28, v60, v61, v62')
        a.e('v_max_f32 v29, v28, v63')
        a.e('v_max_f32 v28, v28, v63')
        a.e(t0_[0]); a.e(t0_[1])
        a.e('v_permlane32_swap_b32 v28, v29')
        a.e('v_max_f32 v30, v28, v29')
        a.e('v_max_f32 v28, v28, v29')
        a.e(t0_[2]); a.e(t0_[3])
        a.e('v_permlane16_swap_b32 v28, v30')
        a.e('v_max_f32 v28, v28, v30')
        a.e('ds_write_b32 v24, v28')
        a.tag_ds('mw')
        a.e(t0_[4])
        a.e(t2_[0])
        self.H('b0', 1, 32)
        a.e(t2_[1]); a.e(t2_[2]); a.e(t2_[3]); a.e(t2_[4])
        self.H('b1', 1, 32)
        a.wait(ds='mw')
        a.e('s_barrier')
        a.e('ds_read_b128 v[28:31], v58')
        a.tag_ds('mr')
        self.stamp('sbar', 2)
        self.H('b2', 1, 32)
        a.wait(ds='mr')
        a.e('v_max3_f32 v28, v28, v29, v30')
        a.e('v_max_f32 v28, v28, v31')
        a.e('v_pk_add_f32 v[60:61], v[60:61], v[28:29] op_sel_hi:[1,0] neg_lo:[0,1] neg_hi:[0,1]')
        a.e('v_pk_add_f32 v[62:63], v[62:63], v[28:29] op_sel_hi:[1,0] neg_lo:[0,1] neg_hi:[0,1]')
        for r in range(60, 64):
            a.e(f'v_exp_f32 v{r}, v{r}')
        a.e('v_cvt_pk_bf16_f32 v30, v60, v61')
        a.e('v_cvt_pk_bf16_f32 v31, v62, v63')
        a.e('ds_write_b64 v25, v[30:31] offset:1024')
        a.e('v_lshrrev_b32 v61, 4, v0')
        a.e(f'v_and_b32 v60, 0xf0, {vL16}')
        a.e('v_lshl_or_b32 v61, v61, 16, v60')
        a.e('v_mov_b32 v62, v28')
        a.e('v_xor_b32 v57, 64, v56')
        a.e('v_and_b32 v27, 12, v0')
        a.e('v_lshlrev_b32 v27, 4, v27')
        self.H('b3', 1, 32)
        self.lcmp()
        a.e('s_waitcnt lgkmcnt(0)')
        a.e('s_barrier')
        a.e('ds_read2st64_b64 v[8:11], v26 offset0:2 offset1:18')
        a.tag_ds('p0')
        a.e('ds_read2st64_b64 v[12:15], v26 offset0:34 offset1:50')
        a.tag_ds('p1')
        self.stamp('smax', 2)
        a.e('v_and_or_b32 v27, v0, 3, v27')
        a.e('v_lshlrev_b32 v27, 3, v27')
        self.K(2, 'b4', True)
        ACC = [28, 56, 36, 32]
        a.wait(ds='p0')
        a.e('v_cmp_u_f32 vcc, v8, v8')
        a.e(f'v_mfma_f32_16x16x32_bf16 v[28:31], v[8:11], {vr(SLOT[0], 4)}, 0')
        a.e('v_mfma_f32_16x16x32_bf16 v[32:35], v[36:39], v[8:11], 0')
        again = a.lab('again')
        self.retry_to(again)
        a.ool(f'{again}:\n' + '\n'.join(['s_waitcnt lgkmcnt(0)'] + ga) + f'\ns_barrier\ns_branch {top}')
        a.wait(ds='p1')
        a.e('v_mfma_f32_16x16x32_bf16 v[32:35], v[36:39], v[12:15], v[32:35]')
        so = [oC1pub, t1, t2, t3]
        ml = ['s_mov_b64 exec, 0xffff', f'buffer_store_dwordx2 v[62:63], v27, {WSL}, {oMLpub} offen', 's_mov_b64 exec, -1']
        mlat = self.o.get('ml_at', 2)

        def pack(q):
            d0, d1 = ACC[(2 * q) & 3], ACC[(2 * q + 1) & 3]
            return [f'v_cvt_pk_bf16_f32 v{24 + r}, v{d0 + r}, v{d1 + r}' for r in range(4)]

        def put(q):
            self.lstore([f'buffer_store_dwordx4 v[24:27], v61, {WS}, {so[q]} offen'] + (ml if q == mlat else []))
        F = {e: [[], []] for e in range(8)}
        early = self.o.get('ml_early', 1)
        mlat = -1
        F[1][1] = ['v_mov_b32 v63, v32']
        F[self.o.get('ml_e', 2)][1] += ['ML']
        F[3][0] = pack(0)[:2]
        F[3][1] = pack(0)[2:]
        F[5][0] = pack(1)[:2]
        F[5][1] = pack(1)[2:]
        F[6][0] = ['v_and_b32 v60, 3, v0', 'v_lshlrev_b32 v60, 6, v60']
        F[6][1] = ['v_and_or_b32 v60, v0, 60, v60', 'v_lshlrev_b32 v60, 1, v60']
        F[7][0] = pack(2)
        for e in range(8):
            a.wait(ds=f't{e}')
            d = vr(ACC[e & 3], 4)
            s = SLOT[e % 3]
            nx = tread(e + 3, 'v60') if e + 3 < 8 else []
            if nx:
                a.e(nx[0])
            if e:
                a.e(f'v_mfma_f32_16x16x32_bf16 {d}, v[8:11], {vr(s, 4)}, 0')
            if e in (4, 6):
                put((e - 4) // 2)
            for x in nx[1:3]:
                a.e(x)
            for x in F[e][0]:
                a.e(x)
            a.e(f'v_mfma_f32_16x16x32_bf16 {d}, v[12:15], {vr(s + 4, 4)}, {d}')
            for x in nx[3:]:
                a.e(x)
            if nx:
                a.tag_ds(f't{e + 3}')
            for x in F[e][1]:
                if x == 'ML':
                    self.lstore(ml)
                else:
                    a.e(x)
            if e == 7:
                put(2)
        if early == 1:
            a.e(f'buffer_load_dwordx2 v[22:23], v60, {WSL}, {oMLg} offen sc1')
            a.tag_vm('ml0')
        for x in pack(3):
            a.e(x)
        put(3)
        if early == 2:
            a.e(f'buffer_load_dwordx2 v[22:23], v60, {WSL}, {oMLg} offen sc1')
            a.tag_vm('ml0')
        self.stamp('c1pub')

    def red(self):
        a = self.a
        ld = f'buffer_load_dwordx2 v[22:23], v60, {WSL}, {oMLg} offen sc1'
        a.e('v_and_b32 v45, 56, v0')
        a.e('v_lshlrev_b32 v45, 1, v45')
        a.e('v_and_or_b32 v45, v0, 6, v45')
        a.e('v_lshlrev_b32 v45, 1, v45')
        a.e(f'v_and_or_b32 v45, {vL16}, 16, v45')
        a.e('v_lshlrev_b32 v46, 2, v0')
        for r in range(28, 36, 2):
            a.e(f'v_mov_b64 {vr(r, 2)}, 0')
        ne = self.o.get('wo_e', 0)
        if ne:
            self.wo_prep(41, 'v39')
            a.e('s_barrier')
        cl = [f'buffer_load_dwordx4 {vr(8 + 4 * i, 4)}, {vL16}, {WS}, {oC1g} offen offset:{i * 1024} sc1' for i in range(4)]
        ch = [f'v_max_f32_dpp v36, v22, v22 quad_perm:[1,0,3,2] {FULL}',
              f'v_max_f32_dpp v37, v36, v36 quad_perm:[2,3,0,1] {FULL}', f'v_max_f32_dpp v36, v36, v36 quad_perm:[2,3,0,1] {FULL}',
              'v_permlane32_swap_b32 v36, v37', 'v_max_f32 v38, v36, v37', 'v_max_f32 v36, v36, v37',
              'v_permlane16_swap_b32 v36, v38', 'v_max_f32 v36, v36, v38', 'v_sub_f32 v24, v24, v36', 'v_exp_f32 v24, v24',
              'v_mul_f32 v25, v25, v24', f'v_add_f32_dpp v25, v25, v25 quad_perm:[1,0,3,2] {FULL}',
              f'v_add_f32_dpp v37, v25, v25 quad_perm:[2,3,0,1] {FULL}', f'v_add_f32_dpp v25, v25, v25 quad_perm:[2,3,0,1] {FULL}',
              'v_permlane32_swap_b32 v25, v37', 'v_add_f32 v38, v25, v37', 'v_add_f32 v25, v25, v37',
              'v_permlane16_swap_b32 v25, v38', 'v_add_f32 v25, v25, v38', 'v_rcp_f32 v38, v25', 'v_log_f32 v37, v25',
              'v_mul_f32 v24, v24, v38', 'v_add_f32 v37, v37, v36', 'v_cvt_pk_bf16_f32 v26, v24, 0', 'v_cvt_pk_bf16_f32 v27, 0, v24']
        chk, again = a.lab('chk'), a.lab('again')
        a.wait(vm='ml0')
        a.e(f'{chk}:')
        a.e('v_cmp_u_f32 vcc, v22, v23')
        a.e(ch[0])
        a.e('v_mov_b64 v[24:25], v[22:23]')
        self.retry_to(again)
        a.ool(f'{again}:\n{ld}\ns_waitcnt vmcnt(1)\ns_branch {chk}')
        self.stamp('mlgot', 2)
        npre = self.o.get('red_pre', 8)
        for x in ch[1:npre]:
            a.e(x)
        self.sleep('hc1')
        for i, x in enumerate(cl):
            a.e(x)
            a.tag_vm(f'c{i}')
        for x in self.wo_group(BWO, 41, 0, ne):
            a.e(x)
        for x in ch[max(npre, 1):]:
            a.e(x)
        lwe = self.o.get('lw_early', 1)
        lws = ['s_mov_b32 exec_hi, 0', f'buffer_store_dword v37, v46, {WSG}, {oC2Lpub} offen sc1', 's_mov_b32 exec_hi, -1']
        if lwe:
            for x in lws:
                a.e(x)
        self.H('r1', 0, 48)
        top, again = a.lab('acc'), a.lab('again')
        a.e(f'{top}:')
        for i in range(4):
            if i:
                self.K(0, 'rd', True)
            a.wait(vm=f'c{i}')
            for d in range(4):
                a.e(f'v_dot2c_f32_bf16_dpp v{28 + 2 * d}, v26, v{8 + 4 * i + d} row_newbcast:{4 * d + i} {FULL}')
                a.e(f'v_dot2c_f32_bf16_dpp v{29 + 2 * d}, v27, v{8 + 4 * i + d} row_newbcast:{4 * d + i} {FULL}')
        for i in range(4):
            a.e(f'v_permlane32_swap_b32 v{28 + i}, v{32 + i}')
        a.e('v_pk_add_f32 v[28:29], v[28:29], v[32:33]')
        a.e('v_pk_add_f32 v[30:31], v[30:31], v[34:35]')
        a.e('v_cmp_u_f32 vcc, v28, v30')
        a.e('v_permlane16_swap_b32 v28, v30')
        a.e('v_permlane16_swap_b32 v29, v31')
        a.e('v_pk_add_f32 v[28:29], v[28:29], v[30:31]')
        a.e('v_cvt_pk_bf16_f32 v28, v28, v29')
        self.retry_to(again)
        a.ool(f'{again}:\n' + '\n'.join(cl) + '\n' + '\n'.join(f'v_mov_b64 {vr(r, 2)}, 0' for r in range(28, 36, 2)) + f'\ns_waitcnt vmcnt(0)\ns_branch {top}')
        a.e(f'buffer_store_dword v28, v45, {WSG}, {oC2pub} offen sc1')
        if not lwe:
            for x in lws:
                a.e(x)
        self.stamp('c2pub')
        a.e('v_and_b32 v40, 4, v0')
        a.e('v_lshlrev_b32 v40, 4, v40')
        a.e('v_and_or_b32 v40, v0, 48, v40')
        a.e('v_lshlrev_b32 v40, 1, v40')
        a.e('v_and_or_b32 v40, v0, 11, v40')
        a.e(f'v_lshl_add_u32 v40, v40, 3, {sW8}')
        for tau in range(2):
            for gam in range(2):
                for tt in range(2):
                    a.e(f'ds_read_b64_tr_b16 {vr(48 + 8 * tau + 4 * gam + 2 * tt, 2)}, v40 offset:{4096 + (32 * gam + 2 * tt) * 64 + 32 * tau}')
        if not ne:
            self.wo_prep(41, 'v39')
        if self.o.get('wo_pre', 6) > 4:
            a.e('s_waitcnt lgkmcnt(0)')
        a.e('s_barrier')
        if self.o.get('x_wo'):
            a.e('s_waitcnt vmcnt(0)')
            self.stamp('x_ack')

        def clear2():
            b = self.a
            for r in range(8, 12):
                b.e(f'v_mov_b32 v{r}, -1')
            self.sums(t2, [(sJ, 4 * 448), (sV, 448)], L_IT)
            b.e('s_mov_b64 exec, 0xfffffff')
            self.lstore([f'buffer_store_dwordx4 v[8:11], {vL16}, {WSL}, {t2} offen'])
            b.e('s_mov_b64 exec, -1')
        npre = self.o.get('wo_pre', 6)
        for x in self.wo_group(BWO, 41, ne, npre):
            a.e(x)
        if npre == 6:
            a.tag_vm('wo')
        self.ool_if(f's_cmp_eq_u32 {sIT}, 0', clear2, lambda: self.sleep('hc4'))
        self.wol = self.wo_group(BWO, 41, npre, 6)
        if self.o.get('x_wo'):
            self.stamp('x_iss')
            a.e('s_waitcnt vmcnt(0)')
            self.stamp('x_land')

    def wb(self, where):
        a = self.a
        if self.o.get('wb') != where:
            return
        l = a.lab('nowb')
        self.sums(t1, [(sJ, 8), (sV, 2), (sIT, 1)])
        a.e(f's_cmp_lg_u32 {t1}, {24 * 8 + 1}')
        a.e(f's_cbranch_scc1 {l}')
        a.begin_skip()
        a.e('buffer_wbl2 sc1')
        self.end_only(l)

    def uv(self):
        a = self.a
        a.e('v_lshrrev_b32 v28, 1, v0')
        a.e('v_and_or_b32 v28, v28, 16, 0')
        a.e('v_and_or_b32 v28, v0, 14, v28')
        a.e('v_lshlrev_b32 v28, 6, v28')
        a.e('v_and_or_b32 v28, v0, 16, v28')
        a.e('v_lshlrev_b32 v28, 1, v28')
        a.e(f'v_and_or_b32 v28, {vL16}, 16, v28')
        self.rot8('v29', 7)
        self.pos_bytes('v30', None)
        a.e('v_and_b32 v31, 32, v0')
        a.e('v_lshl_or_b32 v30, v31, 3, v30')
        self.touches('w5', 'v12', 'v13')
        a.e('s_waitcnt lgkmcnt(0)')
        self.sleep('hc2')
        ld = [f'buffer_load_dword v16, v29, {WSG}, {oC2Lg} offen sc1',
              f'buffer_load_dwordx4 v[8:11], v28, {WSG}, {oC2g} offen sc1']
        z = [f'v_mov_b64 {vr(r, 2)}, 0' for r in range(20, 28, 2)]
        lwe = self.o.get('lw_early', 1)
        a.e(ld[0])
        a.tag_vm('lw')
        if lwe:
            self.sleep('hc2b')
        a.e(ld[1])
        a.tag_vm('c2')
        for x in z:
            a.e(x)
        for x in self.wol:
            a.e(x)
        if self.wol:
            a.tag_vm('wo')
        top, again = a.lab('chk'), a.lab('again')
        w = self.w8('v16', 'v17')
        if lwe:
            self.H('u0', 0, 12)
            a.wait(vm='lw')
            a.e(f'{top}:')
            for x in self.w8n('v16', 'v17', 18):
                a.e(x)
            self.H('u1', 0, 12)
            a.wait(vm='c2')
            a.e('v_smfmac_f32_16x16x64_bf16 v[20:23], v[8:11], v[48:55], v1')
            a.e('v_cmp_u_f32 vcc, v8, v18')
            a.e('v_smfmac_f32_16x16x64_bf16 v[24:27], v[8:11], v[56:63], v1')
            self.retry_to(again)
            self.stamp('c2got', 2)
            self.weigh2n(18)
        else:
            a.wait(vm='c2')
            a.e(f'{top}:')
            a.e('v_smfmac_f32_16x16x64_bf16 v[20:23], v[8:11], v[48:55], v1')
            self.maxchain('v18', [8, 9, 10, 11, 16], True)
            a.e('v_smfmac_f32_16x16x64_bf16 v[24:27], v[8:11], v[56:63], v1')
            self.poll_cmp('v18')
            a.e(w[0])
            a.e(w[1])
            a.e(w[2])
            self.retry_to(again)
            self.stamp('c2got', 2)
            self.weigh2(3)
        a.ool(f'{again}:\n' + '\n'.join(ld + z) + f'\ns_waitcnt vmcnt(0)\ns_branch {top}')
        a.e('v_mov_b32 v21, v20')
        self.lcmp()
        a.e('v_permlane16_swap_b32 v20, v21')
        a.e('v_add_f32 v20, v20, v21')
        if lwe:
            self.retry_to(again)
        a.e(f'v_mov_b32_dpp v21, v20 quad_perm:[1,0,3,2] {FULL}')
        a.e('v_cvt_pk_bf16_f32 v20, v20, v21')
        self.lstore(['s_mov_b32 exec_lo, 0x5555', 's_mov_b32 exec_hi, 0x5555',
                     f'buffer_store_dword v20, v30, {WSL}, {oOBpub} offen', 's_mov_b64 exec, -1'])
        self.stamp('dpub')
        self.wb('dpub')

    def attn_a3(self):
        a = self.a
        self.qa_addr(14)
        self.sleep('hqa')
        ld = self.qa_loads(8, 12, 14)
        for x in ld:
            a.e(x)
        a.e('v_mov_b64 v[20:21], 0')
        a.e(f'v_lshl_add_u32 v17, v0, 3, {sW8}')
        a.e('ds_write_b64 v17, v[20:21] offset:6656')
        a.e(f's_add_u32 {t0}, {sW8}, 6656')
        a.e(f'v_mov_b32 v17, {t0}')
        a.e('s_mov_b32 s22, 0x000f000f')
        a.e('s_mov_b32 s23, 0x000f000f')
        for c in range(4):
            a.e(f'v_cndmask_b32 v{56 + c}, v17, v16, s[22:23]')
            a.e('s_lshl_b64 s[22:23], s[22:23], 4')
        self.p_addr('v60', 'v17')
        self.wo_prep(61, 'v17')
        for r in (16, 24, 28):
            a.e(f'v_mov_b64 {vr(r, 2)}, 0')
        self.pipe_poll(ld, 'v38', [8, 12], 'pq', ['v_mov_b64 v[36:37], v[12:13]', 'v_mov_b64 v[32:33], v[8:9]', 'v_mov_b64 v[34:35], v[10:11]'])
        top = self.ptop
        self.stamp('qgotA', 2)
        self.qa_finish(32, 36, 14, None, True)
        a.e('v_lshlrev_b32 v33, 16, v32')
        a.e('v_cmp_u_f32 vcc, v33, v33')
        a.e(f's_sub_u32 {t2}, {sW8}, {ZQ - 6144}')
        a.e(f's_cmp_eq_u32 {sV}, 0')
        a.e(f's_cselect_b32 {t3}, {oOALpub}, {OOB}')
        a.e('s_mov_b32 s22, 0x000f000f')
        a.e('s_mov_b32 s23, 0x000f000f')
        self.H('a1', 1, 52)
        self.retry_to(top)
        a.e('s_waitcnt vmcnt(0) lgkmcnt(0)')
        a.e('s_barrier')
        self.H('a2', 1, 8)

        def qrd(c, b):
            a.e(f'ds_read_b128 {vr(32 + 8 * (c % 3) + 4 * b, 4)}, v{56 + c} offset:{128 * b}')
            a.tag_ds(f'q{c}{b}')
        for c in range(3):
            qrd(c, 0)
            qrd(c, 1)
        if self.o.get('wo3', 0):
            self.touch('wo', 'v15', None)
        self.stamp('qrdy')
        ds, va = [], []
        for e in range(8):
            for t in range(4):
                ds.append((e, f'ds_read_b64_tr_b16 a[{8 * e + 2 * t}:{8 * e + 2 * t + 1}], v{14 + (e & 1)} offset:{t * 4096}'))
        wl = self.wo_lines(WO, 61, self.o.get('pol_wo3', ''))
        other = {2: wl[0], 3: wl[1], 7: wl[2], 11: wl[3], 13: wl[4], 15: wl[5], 19: wl[6], 23: wl[7],
                 5: 'v_mov_b64 v[8:9], 0', 6: 'v_mov_b64 v[12:13], 0', 8: f'v_mov_b32 v10, {t2}'}
        wo3 = self.o.get('wo3', 0)
        late = {}
        if wo3:
            for k in (2, 3, 7, 11, 13, 15, 19, 23):
                del other[k]
            pos = {1: (0, 1, 4, 7, 9, 10, 13, 16), 2: (8, 9, 12, 15, 17, 18, 21, 24)}[wo3]
            late = dict(zip(pos, wl))
        for e, k in enumerate((4, 10, 14, 18, 22, 26, 30), 1):
            other[k] = f'v_xor_b32 v{14 + (e & 1)}, {e << 5}, {vT}'
        pc = []
        for c in range(4):
            pc.append('v_cndmask_b32 v11, 0, v10, s[22:23]')
            pc.append(f'v_add_u32 v{56 + c}, v{56 + c}, v11')
            if c < 3:
                pc.append('s_lshl_b64 s[22:23], s[22:23], 4')
        a.e(f'v_mov_b32 v14, {vT}')
        for k in range(32):
            c, r, b = k >> 3, (k >> 1) & 3, k & 1
            if r == 0:
                a.wait(ds=f'q{c}{b}')
            t = k >> 1
            a.e(f'v_smfmac_f32_16x16x64_bf16 {vr(16 + 4 * r, 4)}, {vr(32 + 8 * (c % 3) + 4 * b, 4)}, a[{16 * t + 8 * b}:{16 * t + 8 * b + 7}], v1')
            if k in (8, 9):
                qrd(3, k - 8)
            elif k >= 1:
                a.e(ds.pop(0)[1])
            if k in other:
                a.e(other[k])
        for r in range(4):
            if ds:
                a.e(ds.pop(0)[1])
            a.e(f'v_add_f32 v{16 + r}, v{16 + 4 * r}, v{17 + 4 * r}')
        self.softmax_a(16, 20, 'v60', pc)

        def prd(j):
            a.e(f'ds_read_b128 {vr(32 + 4 * (j % 6), 4)}, v{56 + (j >> 2)} offset:{128 * (j & 3)}')
            a.tag_ds(f'p{j}')
        for j in range(6):
            if j == 0:
                self.H('a3', 1, 24)
            prd(j)
        self.stamp('smaxA')
        ls = self.lsum('v21', 16)
        for x in ls[:4]:
            a.e(x)
        fill = [[x] for x in ls[4:]] + [self.ml_write(20)[:2], self.ml_write(20)[2:4], self.ml_write(20)[4:], [], [], ['BAR'],
                                        self.ml_read(24, 22)[:2], ['MLR'], [], [], []]
        sc = self.ml_scale(24, 22, 18, 19)
        fill += [['MLW'] + sc[:1]] + [sc[1:3], sc[3:5], sc[5:7]] + [[x] for x in sc[7:12]] + [sc[12:14], sc[14:16], sc[16:17], sc[17:18], sc[18:20], ['LW']]
        for j in range(16):
            c, U = j >> 2, j & 3
            for hf in range(2):
                e = c + 4 * hf
                if hf == 0:
                    a.wait(ds=f'p{j}')
                B = vr(64 + 64 * U + 8 * e, 8) if U < 3 else f'a[{8 * e}:{8 * e + 7}]'
                a.e(f'v_smfmac_f32_16x16x64_bf16 {vr(8 + 4 * hf, 4)}, {vr(32 + 4 * (j % 6), 4)}, {B}, v1')
                if 2 * j + hf in late:
                    a.e(late[2 * j + hf])
                if hf == 1 and j + 6 < 16:
                    prd(j + 6)
                for x in (fill.pop(0) if fill else []):
                    if x == 'BAR':
                        a.wait(ds='mlw')
                        a.e('s_barrier')
                    elif x == 'MLR':
                        a.e(self.ml_read(24, 22)[2])
                        a.tag_ds('mlr')
                    elif x == 'LW':
                        self.lstore([f'buffer_store_dword v19, off, {WSL}, {t3}'])
                    elif x == 'MLW':
                        a.wait(ds='mlr')
                    else:
                        a.e(x)
                        if 'ds_write_b64' in x:
                            a.tag_ds('mlw')
        assert not fill
        a.e(f'v_lshl_add_u32 v46, v0, 2, {sW8}')
        self.rot8('v47', 2)
        a.e('v_add_f32 v44, v8, v9')
        a.e('v_add_f32 v45, v12, v13')
        a.e('v_pk_mul_f32 v[44:45], v[44:45], v[18:19] op_sel_hi:[1,0]')
        self.stamp('pvA')

    def dma_tile(self, t):
        a = self.a
        pol = self.o.get('pol_kv', 'nt')
        srd = K_ if t < 16 else V_
        a.e(f's_add_u32 m0, {sKV}, {(t & 3) * 4096}')
        a.e(f's_add_u32 {t0}, {sKG}, {(t & 15) * 16384}')
        for q in range(4):
            a.e(f'buffer_load_dwordx4 v{8 + q}, {srd}, {t0} offen offset:{q * 1024} {pol} lds')
        a.tag_vm(f'tile{t}')

    def make_items(self):
        o = self.o
        pol, polc = o.get('pol_kv', 'nt'), o.get('pol_c', '')
        extra = {}
        c0, cs = o.get('ckv_from', 44), o.get('ckv_step', 2)
        for i in range(16):
            t, q = i >> 2, i & 3
            extra.setdefault(c0 + cs * i, []).append((f'c{i}', [
                f's_add_u32 m0, {sKV}, {CKV + i * 1024}', f'v_add_u32 v238, v{8 + q}, v254', f's_add_u32 {t0}, s1, {(16 * t + 4 * q) * 1024}',
                f'buffer_load_dwordx4 v238, {CK}, {t0} offen {polc} lds']))
        w0, wstep = o.get('wo_from', 52), o.get('wo_step', 4)
        for k in range(6):
            h, i = divmod(k, 3)
            extra.setdefault(w0 + wstep * k, []).append((f'w{k}', [
                f's_add_u32 m0, {sW8}, {h * 3072}', f's_add_u32 {t0}, {oWO}, {h * 64 * 1152}',
                f'buffer_load_dwordx4 v{(246, 247, 255)[i]}, {WO}, {t0} offen offset:{i * 1024} lds']))
        items = []
        self.extra = {tag: lines for v in extra.values() for tag, lines in v}
        for d in range(128):
            t, q = d >> 2, d & 3
            items.append((f'tile{t}' if q == 3 else f'd{d}', [
                f's_add_u32 m0, {sKV}, {(t & 3) * 4096}', f's_add_u32 {t0}, {sKG}, {(t & 15) * 16384}',
                f'buffer_load_dwordx4 v{8 + q}, {K_ if t < 16 else V_}, {t0} offen offset:{q * 1024} {pol} lds']))
        self.items = items
        self.pos = {tag: k for k, (tag, _) in enumerate(items)}
        self.issued = 0
        self.done_tile = -1
        self.lnq_done = False

    def issue_to(self, n):
        a = self.a
        prev = None
        lim = self.pos[f'tile{min(self.done_tile + 4, 31)}'] + 1
        while self.issued < min(n, lim):
            tag, lines = self.items[self.issued]
            if tag[0] == 'w':
                assert self.lnq_done, 'w_o staged before the q weights were read'
            assert tag[0] in 'td' or 2 < self.done_tile < 26
            for x in (lines if lines[:2] != prev else lines[2:]):
                a.e(x)
            a.tag_vm(tag)
            prev = lines[:2]
            self.issued += 1

    def prologue(self):
        a = self.a
        self.make_items()
        a.e('s_cmp_ge_u32 s2, 256')
        a.e('s_cbranch_scc1 L_end')
        if self.o.get('diag_fixed'):
            a.e('s_memrealtime s[100:101]')
        if self.o.get('stamps'):
            a.e('s_memtime s[98:99]' if self.o.get('clk') else 's_memrealtime s[98:99]')
        a.e('s_load_dwordx2 s[4:5], s[0:1], 8')
        ptrs = [(V_, 16), (CK, 48), (DBG, 96), (XIN, 0), (WQ, 24), (WO, 32), (BWQ, 56), (WUK, 64), (WUV, 72), (BWO, 80),
                (WS, 104), (OUT, 88)]
        sizes = {K_: 1 << 26, V_: 1 << 26, CK: 1 << 23, DBG: 256, XIN: 1152, WQ: 576 * 8192, WO: 4096 * 1152,
                 BWQ: 576 * 8192, WUK: 1 << 22, WUV: 1 << 22, BWO: 4096 * 1152, WS: WS_SIZE, WSL: L_X, WSG: G_IT, OUT: 1152}
        base = lambda s: int(s[2:s.index(':')])
        a.e('v_lshrrev_b32 v1, 6, v0')
        a.e('v_mov_b32 v63, v0')
        a.e(f'v_readfirstlane_b32 {sV}, v1')
        a.e('v_and_b32 v0, 63, v0')
        a.e(f's_and_b32 {sX}, s2, 7')
        a.e(f's_lshr_b32 {sJ}, s2, 3')
        a.e(f's_lshl_b32 {sKV}, {sV}, 14')
        self.sums(sKG, [(sX, 1 << 23), (sJ, 1 << 18), (sV, 1 << 12)])
        a.e(f'v_lshlrev_b32 {vL16}, 4, v0')
        a.e('v_and_b32 v12, 48, v0')
        a.e('v_lshlrev_b32 v12, 1, v12')
        a.e(f'v_xor_b32 v8, v12, {vL16}')
        for q in range(1, 4):
            a.e(f'v_xor_b32 v{8 + q}, {TBL[q] << 4}, v8')
        a.e(f's_mov_b32 s6, {sizes[K_]}')
        a.e('s_mov_b32 s7, 0x20000')
        a.e('s_waitcnt lgkmcnt(0)')
        for t in range(4):
            self.issue_to(min(4 * t + 4, self.o.get('win0', 8)))
            for srd, off in ptrs[3 * t:3 * t + 3]:
                b = base(srd)
                a.e(f's_load_dwordx2 s[{b}:{b + 1}], s[0:1], {off}')
        for srd, n in sizes.items():
            if srd != K_:
                a.e(f's_mov_b32 s{base(srd) + 2}, {n}')
                a.e(f's_mov_b32 s{base(srd) + 3}, 0x20000')
        a.e(f's_getpc_b64 s[82:83]')
        a.e('L_pc:')
        a.e('v_lshlrev_b32 v62, 7, v63')
        a.e(f'v_min_u32 v62, L_codeend-L_pc, v62')
        a.e('global_load_dword v61, v62, s[82:83]')
        a.e(f's_lshr_b32 {t1}, {sJ}, 3')
        self.sums(sH, [(sX, 4), (t1, 1)])
        a.e(f's_and_b32 {sS}, {sJ}, 7')
        a.e(f's_mov_b32 {sIT}, 0')
        a.e(f's_mov_b32 {sPOLL}, 0')
        a.e(f's_mov_b32 {sST}, 0')
        self.sums(sW8, [(sV, 8192)], STG)
        a.e('s_mov_b32 s84, 0x00ff00ff')
        a.e('s_mov_b32 s85, 0x000000ff')
        self.sums(oY, [(sS, 384)])
        self.sums(oQA, [(t1, 4096), (sV, 1024), (sS, 128)], L_QA)
        self.sums(oQB, [(t1, 4096), (sV, 512), (sS, 32)], L_QB)
        self.sums(oST, [(sJ, 8)], L_STA)
        a.e(f's_cmp_eq_u32 {sV}, 0')
        a.e(f's_cselect_b32 {oST}, {oST}, {OOB}')
        self.sums(oQgA, [(t1, 4096), (sV, 1024)], L_QA)
        self.sums(oSTgA, [(t1, 64)], L_STA)
        self.sums(oWQ, [(sS, 72 * 8192), (sH, 256), (sV, 24 * 8192)])
        a.e(f's_cmp_eq_u32 {sV}, 3')
        a.e(f's_cselect_b32 {oWQ}, {OOB}, {oWQ}')
        self.sums(oWUV, [(sS, 64 * 8192), (sH, 256), (sV, 64)])
        self.sums(oWUK, [(sJ, 16 * 8192), (sX, 1024), (sV, 256)])
        self.sums(oWO, [(sX, 512 * 1152), (sV, 128 * 1152), (sJ, 48)])
        self.sums(oYpub, [(sX, 3072), (sJ, 128)])
        if self.o.get('asym'):
            a.e(f's_getreg_b32 {t0}, hwreg(HW_REG_XCC_ID, 0, 3)')
            a.e(f's_lshr_b32 {t0}, {self.o["asym"][0]}, {t0}')
            a.e(f's_lshl_b32 {t0}, {t0}, 31')
            a.e(f's_or_b32 {oYpub}, {oYpub}, {t0}')
        a.e(f's_cmp_lt_u32 {sJ}, 24')
        a.e(f's_cselect_b32 {oWO}, {oWO}, {OOB}')
        a.e(f's_cselect_b32 {sRES}, 1, 0')
        a.e(f's_cmp_eq_u32 {sV}, 3')
        a.e(f's_cselect_b32 {sRES}, {sRES}, 0')
        a.e(f's_mul_i32 {t0}, {sRES}, 3')
        a.e(f's_cmp_eq_u32 {sX}, 0')
        a.e(f's_cselect_b32 {sRES}, {t0}, {sRES}')
        if self.o.get('stamps'):
            a.e('v_mov_b32 v7, 0')
            a.e('s_mov_b32 s97, 8')
        a.e('v_and_b32 v14, 1, v0')
        a.e('v_mul_u32_u24 v1, 0xaaaa, v14')
        a.e('v_add_u32 v1, 0x4444, v1')

        def tbl(dst, x, tmp):
            a.e(f'v_lshrrev_b32 {tmp}, 1, {x}')
            a.e(f'v_xor_b32 {dst}, {x}, {tmp}')
            a.e(f'v_and_b32 {dst}, 1, {dst}')
            a.e(f'v_lshl_or_b32 {dst}, {dst}, 3, {tmp}')
        a.e('v_lshrrev_b32 v12, 4, v0')
        a.e('v_and_b32 v13, 15, v0')
        a.e('v_lshrrev_b32 v15, 2, v13')
        tbl('v16', 'v15', 'v17')
        a.e('v_and_b32 v17, 3, v13')
        a.e('v_lshlrev_b32 v18, 1, v17')
        a.e('v_xor_b32 v16, v16, v18')
        a.e('v_xor_b32 v16, v16, v12')
        a.e('v_lshlrev_b32 v16, 4, v16')
        a.e(f'v_lshl_or_b32 {vA}, v13, 8, v16')
        a.e(f'v_add_u32 {vA}, {sKV}, {vA}')
        tbl('v16', 'v12', 'v18')
        a.e('v_lshlrev_b32 v18, 1, v15')
        a.e('v_xor_b32 v16, v16, v18')
        a.e('v_lshrrev_b32 v18, 1, v17')
        a.e('v_xor_b32 v16, v16, v18')
        a.e('v_lshlrev_b32 v16, 4, v16')
        a.e('v_lshrrev_b32 v18, 2, v0')
        a.e('v_lshl_or_b32 v16, v18, 8, v16')
        a.e(f'v_lshl_or_b32 {vT}, v14, 3, v16')
        a.e(f'v_add_u32 {vT}, {sKV}, {vT}')
        a.e('s_waitcnt lgkmcnt(0)')
        self.stamp('start')
        w, l, g = base(WS), base(WSL), base(WSG)
        a.e(f's_lshl_b32 {t0}, {sX}, 17')
        a.e(f's_add_u32 s{l}, s{w}, {t0}')
        a.e(f's_addc_u32 s{l + 1}, s{w + 1}, 0')
        a.e(f's_add_u32 s{g}, s{w}, {GB}')
        a.e(f's_addc_u32 s{g + 1}, s{w + 1}, 0')
        self.dma_wq(WQ, 'v56', 'v57')
        self.lnq_rows()
        a.e(f's_mul_i32 {t0}, {sS}, 144')
        a.e('s_mov_b32 exec_lo, 0x00010001')
        a.e('s_mov_b32 exec_hi, 0x00000001')
        for rho in range(3):
            a.e(f'buffer_load_dwordx4 {vr(16 + 4 * rho, 4)}, v0, {XIN}, {t0} offen offset:{48 * rho}')
        a.e('s_mov_b64 exec, -1')
        a.e('v_lshlrev_b32 v58, 2, v0')
        a.e(f's_mul_i32 {t0}, {sJ}, 48')
        a.e(f's_cmp_eq_u32 {sRES}, 3')
        a.e(f's_cselect_b32 {t0}, {t0}, {OOB}')
        a.e(f'buffer_load_dword v5, v58, {XIN}, {t0} offen')
        for r in range(56, 60):
            a.e(f'v_mov_b32 v{r}, -1')
        self.sums(t4, [(sX, L_X), (sJ, 2560), (sV, 640)])
        self.sums(t1, [(sX, 128 * 384), (sJ, 4 * 384), (sV, 384)], GB)
        a.e('s_mov_b32 exec_hi, 0xff')
        a.e(f'buffer_store_dwordx4 v[56:59], {vL16}, {WS}, {t4} offen sc1')
        a.e('s_mov_b64 exec, 0xffffff')
        a.e(f'buffer_store_dwordx4 v[56:59], {vL16}, {WS}, {t1} offen sc1')
        a.e('s_mov_b64 exec, -1')
        a.tag_vm('clr')
        for ks in range(4):
            a.e(f'v_xor_b32 v{12 + ks}, {ks << 6}, {vA}')

    def late_scalars(self):
        a = self.a
        if self.o.get('asym'):
            a.e(f's_bitset0_b32 {oYpub}, 31')
        a.e(f's_lshr_b32 {t1}, {sJ}, 3')
        a.e(f's_and_b32 {t2}, {sJ}, 1')
        a.e(f's_lshr_b32 {t3}, {sJ}, 1')
        a.e(f's_lshr_b32 {t4}, {sX}, 2')
        a.e(f's_and_b32 {t5}, {sX}, 3')
        self.sums(oQgB, [(sV, 4096)], L_QB)
        self.sums(oSTgB, [(sV, 64)], L_STB)
        self.sums(oQApub, [(t4, 16384), (t3, 1024), (t5, 256), (t2, 128)], G_QABS)
        self.sums(oQAg, [(t2, 16384), (sV, 4096)], G_QABS)
        self.sums(oC1pub, [(sX, 1 << 19), (t2, 1 << 18), (sV, 16384), (t3, 256)], CB)
        self.sums(oMLpub, [(t2, 2048), (t3, 32)], L_C1ML)
        self.sums(oC1g, [(sX, 1 << 19), (sJ, 16384), (sV, 4096)], CB)
        a.e(f's_lshr_b32 {t4}, {sJ}, 2')
        self.sums(oMLg, [(t4, 512)], L_C1ML)
        self.sums(oC2pub, [(sJ, 8192), (sV, 2048), (sX, 256)], G_C2)
        self.sums(oC2Lpub, [(t4, 1024), (sX, 128)], G_C2L)
        a.e(f's_and_b32 {t4}, {sJ}, 3')
        a.e(f's_cselect_b32 {oC2Lpub}, {OOB}, {oC2Lpub}')
        self.sums(oC2g, [(sX, 32768), (sS, 4096), (t1, 64)], G_C2)
        self.sums(oC2Lg, [(sX, 1024), (t1, 16)], G_C2L)
        self.sums(oOBpub, [(t1, 2048), (sV, 512), (sS, 32)], L_OB)
        self.sums(oOApub, [(t1, 2048), (sS, 32)], L_OA)
        self.sums(oOALpub, [(sJ, 4)], L_OAL)
        self.sums(oOALg, [(sV, 32)], L_OAL)
        self.sums(oRES, [(sJ, 128)])
        self.sums(oO, [(sV, 2048)], L_OA)
        a.e(f's_cmp_eq_u32 {sV}, 0')
        a.e(f's_cselect_b32 {oMLpub}, {oMLpub}, {OOB}')
        a.e(f's_cselect_b32 {oOApub}, {oOApub}, {OOB}')
        a.e(f's_cselect_b32 {oC2Lpub}, {oC2Lpub}, {OOB}')

    def pv_block(self, U):
        a = self.a
        self.sp_addr('v63', sW8)
        a.e(f'ds_read_b128 v[20:23], v63 offset:{6144 + 128 * U}')
        a.e('s_waitcnt lgkmcnt(0)')
        for e in range(8):
            a.e(f'v_smfmac_f32_16x16x64_bf16 {vr(24 + 4 * e, 4)}, v[20:23], {vr(64 + 64 * U + 8 * e, 8)}, v1')

    def stream(self):
        a = self.a
        o = self.o
        landed = 0
        for t in range(28):
            win = o.get('win', 6) if t < o.get('wide_at', 99) else o.get('wide', 12)
            while landed <= self.pos[f'tile{t}']:
                if self.issued < landed + 1 + win or landed == self.pos[f'tile{t}']:
                    a.wait(vm=self.items[landed][0])
                    if o.get('sstamps') and t % 4 == 0 and landed == self.pos[f'tile{t}']:
                        self.stamp(f't{t}')
                    self.issue_to(landed + 1 + win)
                landed += 1
            slot = (t & 3) * 4096
            if t < 16:
                for ks in range(4):
                    a.e(f'ds_read_b128 a[{16 * t + 4 * ks}:{16 * t + 4 * ks + 3}], v{12 + ks} offset:{slot}')
            else:
                u = t - 16
                if u == 0:
                    for e in range(8):
                        a.e(f'v_xor_b32 v{12 + e}, {e << 5}, {vT}')
                for e in range(8):
                    a.e(f'ds_read_b64_tr_b16 {vr(64 + 64 * (u >> 2) + 8 * e + 2 * (u & 3), 2)}, v{12 + e} offset:{slot}')
            a.e('s_waitcnt lgkmcnt(0)')
            self.done_tile = t
            self.issue_to(landed + win + o.get('boost', {}).get(str(t), 0) if t < 27 else 999)
            if t == 2:
                a.e('v_lshrrev_b32 v254, 4, v0')
                a.e('v_mul_u32_u24 v254, 768, v254')
                a.e(f's_lshr_b32 {t2}, {sJ}, 1')
                self.sums('s1', [(sX, 1 << 20), (t2, 1 << 16), (sV, 256)])
                for i, r in enumerate((246, 247, 255)):
                    a.e(f'v_add_u32 v{r}, {64 * i}, v0')
                    a.e(f'v_mul_u32_u24 v{r}, 21846, v{r}')
                    a.e(f'v_lshrrev_b32 v{r}, 16, v{r}')
                    a.e(f'v_mul_u32_u24 v{r}, {1152 - 48}, v{r}')
                    a.e(f'v_lshl_add_u32 v{r}, v0, 4, v{r}')
            if t == 4:
                a.wait(vm='clr')
                a.e('v_lshlrev_b32 v60, 7, v0')
                a.e('s_mov_b64 exec, 31')
                a.e(f'buffer_load_dword v61, v60, {WS}, {t4} offen')
                a.e('s_mov_b64 exec, -1')
                a.tag_vm('touch')
                a.e('v_lshlrev_b32 v4, 16, v5')
                a.e('v_and_b32 v5, 0xffff0000, v5')
            if t == o.get('atom_at', 5):
                a.e('s_barrier')
                l = self.wave_only(1)
                a.e('s_getreg_b32 s82, hwreg(HW_REG_XCC_ID, 0, 3)')
                a.e('s_lshl_b32 s82, s82, 3')
                a.e('s_lshl_b64 s[82:83], 1, s82')
                a.e('v_mov_b32 v58, s82')
                a.e('v_mov_b32 v59, s83')
                a.e(f's_lshl_b32 {t0}, {sX}, 5')
                a.e('s_mov_b64 exec, 1')
                a.e(f'buffer_atomic_add_x2 v[58:59], v0, {DBG}, {t0} offen sc1')
                a.e('s_mov_b64 exec, -1')
                self.end_only(l)
            if t == 9:
                a.wait(vm='touch')
                self.lnq_addr()
                self.lnq_prep()
                for rho in range(3):
                    for x in self.lnq_mfma(rho):
                        a.e(x)
                self.lnq_reduce(False)
                self.lnq_done = True
            if t == o.get('cnt_at', 10):
                a.e('v_and_b32 v57, 7, v0')
                a.e('v_lshlrev_b32 v57, 5, v57')
                a.e(f'buffer_load_dwordx2 v[58:59], v57, {DBG}, 0 offen sc1')
                a.tag_vm('cnt')
            if t == 15:
                chk, retry, done = a.lab('chk'), a.lab('cretry'), a.lab('cdone')
                a.wait(vm='cnt')
                a.e(f'{chk}:')
                a.e('v_sad_u8 v61, v58, 0, 0')
                a.e('v_sad_u8 v61, v59, 0, v61')
                a.e('v_cmp_ne_u32 vcc, 32, v61')
                if not o.get('x_noinit'):
                    a.e(f's_cbranch_vccnz {retry}')
                a.e(f'{done}:')
                a.ool(f'{retry}:\ns_add_u32 {sPOLL}, {sPOLL}, 1\ns_cmp_gt_u32 {sPOLL}, 100000\ns_cbranch_scc1 {done}\ns_sleep 8\n'
                      f'buffer_load_dwordx2 v[58:59], v57, {DBG}, 0 offen sc1\ns_waitcnt vmcnt(0)\ns_branch {chk}')
                a.e('s_getreg_b32 s82, hwreg(HW_REG_XCC_ID, 0, 3)')
                a.e('s_lshl_b32 s82, s82, 3')
                a.e('s_lshl_b64 s[82:83], 32, s82')
                a.e(f'v_readlane_b32 {t2}, v58, {sX}')
                a.e(f'v_readlane_b32 {t3}, v59, {sX}')
                a.e(f's_cmp_eq_u64 s[82:83], s[80:81]')
                a.e(f's_cselect_b32 {sLOC}, {0 if o.get("force_slow") else 1}, {1 if o.get("x_noinit") else 0}')
                self.lnq_pubaddr(False, True)
                self.lcmp()
                self.lnq_publish(False, True)
            if t == 18:
                self.qa_addr(48)
                a.e(f's_add_u32 {t4}, {oQgA}, {L_CSA - L_QA}')
                ql = self.qa_loads(40, 52, 48) + [f'buffer_load_dwordx4 v[44:47], {vL16}, {WSL}, {t4} offen sc1']
                for x in ql:
                    a.e(x)
                a.tag_vm('q')
            if t == 22:
                a.wait(vm='q')
                self.late_check('v20', list(range(40, 48)) + [52, 53], ql)
                for x in self.red8(44):
                    a.e(x)
                a.e('v_cvt_pk_bf16_f32 v44, 0, v44')
                a.e('v_or_b32 v1, v1, v44')
                self.qa_finish(40, 52, 48, 56)
                for r in range(24, 40, 4):
                    a.e(f'v_mov_b64 {vr(r, 2)}, 0')
                self.p_addr('v45', 'v44')
                self.qk_softmax(56, 24, 40, 44)
                for x in self.lsum('v57', 40):
                    a.e(x)
                for x in self.ml_write(56):
                    a.e(x)
                for r in range(24, 56, 4):
                    a.e(f'v_mov_b64 {vr(r, 2)}, 0')
                a.e('s_waitcnt lgkmcnt(0)')
            for i, at in enumerate(o.get('ckv_at', [10, 11, 12, 13])):
                if at == t:
                    for q in range(4):
                        for x in self.extra[f'c{4 * i + q}']:
                            a.e(x)
            if t == o.get('wo_at', 9):
                assert self.lnq_done
                for k in range(6):
                    for x in self.extra[f'w{k}']:
                        a.e(x)
            self.touches(f's{t}', 'v62', 'v31')
            if t == o.get('mlbar', 26):
                a.e('s_barrier')
                for x in self.ml_read(56, 20):
                    a.e(x)
                a.e('s_waitcnt lgkmcnt(0)')
                for x in self.ml_scale(56, 20, 21, 22):
                    a.e(x)
                a.e('v_readfirstlane_b32 s22, v21')
                a.e('v_readfirstlane_b32 s23, v22')
            if t == o.get('c1_late', 1) and t > 15:
                self.sums(t1, [(sX, 1 << 19), (sJ, 16384), (sV, 4096)], CB)
                for r in range(56, 60):
                    a.e(f'v_mov_b32 v{r}, -1')
                self.lcmp()
                self.lstore([f'buffer_store_dwordx4 v[56:59], {vL16}, {WS}, {t1} offen offset:{i * 1024}' for i in range(4)])
            if t == o.get('tlb_at', -1):
                g = o.get('tlb_n', 2)
                a.e(f's_mov_b64 exec, {(1 << g) - 1}')
                self.sums(t2, [(sX, 1 << 19)], CB)
                for srd, so, span in ((BWQ, oWQ, 24 * 8192), (WUK, oWUK, 16 * 8192), (WUV, oWUV, 64 * 8192), (BWO, oWO, 128 * 1152),
                                      (WS, t2, 1 << 19), (OUT, '0', 1024)):
                    a.e(f'v_mul_u32_u24 v62, {(span - 8192 if span > 8192 else span) // (g - 1) // 4 * 4}, v0')
                    a.e(f'buffer_load_dword v31, v62, {srd}, {so} offen')
                a.e('s_mov_b64 exec, -1')
            if t == o.get('isl_at', 12):
                a.e('s_branch L_isl_0')
                if self.alt:
                    a.e('L_isl_ret2:')
                else:
                    a.e('L_isl_ret:')
                    if o.get('hi'):
                        a.e('s_cmp_lg_u32 s0, 0')
                        a.e('s_cbranch_scc1 L_isl_ret2')
            if t == o.get('late_touch', -1):
                self.sums(t3, [(sX, 128), (sJ, 4), (sV, 1)])
                a.e(f's_lshl_b32 {t2}, {t3}, 10')
                a.e('v_lshlrev_b32 v62, 7, v0')
                a.e('v_and_b32 v62, 0x3ff, v62')
                a.e(f'buffer_load_dword v31, v62, {WS}, {t2} offen')
            if t == 23:
                self.pv_block(0)
            if t == 24:
                self.pv_block(1)
        if self.alt:
            a.e('s_nop 7')
            a.e('s_branch L_join')
            return
        a.e('L_join:')
        self.late_scalars()
        a.e('v_mov_b32 v62, s23')
        a.e(f's_cmp_eq_u32 {sV}, 0')
        a.e(f's_cselect_b32 {t1}, {oOALpub}, {OOB}')
        self.lcmp()
        self.lstore([f'buffer_store_dword v62, off, {WSL}, {t1}'])
        self.pv_block(2)
        a.e('v_lshrrev_b32 v62, 1, v0')
        a.e('v_and_b32 v62, 8, v62')
        a.e('v_and_or_b32 v62, v0, 32, v62')
        a.e(f'v_add_u32 v62, {sW8}, v62')
        a.e(f'v_add_u32 v62, {6144 + 384}, v62')
        for tt in range(4):
            o0 = 16 * (tt >> 1) + (tt & 1)
            r = (20, 22, 8, 10)[tt]
            a.e(f'ds_read2_b32 {vr(r, 2)}, v62 offset0:{o0} offset1:{o0 + 4}')
        a.e('s_mov_b32 vcc_lo, 0x55555555')
        a.e('s_mov_b32 vcc_hi, 0x55555555')
        a.e('s_waitcnt lgkmcnt(0)')
        for r in (20, 21, 22, 23, 8, 9, 10, 11):
            a.e(f'v_cndmask_b32 v{r}, 0, v{r}, vcc')
        self.last_tiles(range(3))
        a.e(f's_cmp_eq_u32 {sLOC}, 0')
        a.e('s_cbranch_scc1 L_pre_slow')

    def last_tiles(self, which):
        a = self.a
        for tt in which:
            a.wait(vm=f'tile{28 + tt}')
            if tt == 3:
                self.stamp('kvdone')
            dst = [56, 58, 60, 62] * 2 if tt < 3 else [56, 58, 60, 62, 20, 22, 8, 12]
            n1 = 4 if tt < 3 else 8
            for e in range(n1):
                a.e(f'ds_read_b64_tr_b16 {vr(dst[e], 2)}, v{12 + e} offset:{tt * 4096}')
                a.tag_ds(f'v{e}')
            if tt == 3:
                self.rot8('v14', 2)
            for e in range(8):
                a.wait(ds=f'v{e}')
                d = vr(24 + 4 * e, 4)
                a.e(f'v_mfma_f32_16x16x16_bf16 {d}, {vr((20, 22, 8, 10)[tt], 2)}, {vr(dst[e], 2)}, {d}')
                if e + n1 < 8:
                    a.e(f'ds_read_b64_tr_b16 {vr(dst[e], 2)}, v{12 + e + n1} offset:{tt * 4096}')
                    a.tag_ds(f'v{e + n1}')
                if tt == 3 and e >= 4:
                    x = e - 4
                    a.e(f'v_add_f32_dpp v16, v{24 + 4 * x}, v{25 + 4 * x} {DPPI} row_mask:{1 << x} bank_mask:0xf')
        if 3 not in which:
            return
        for e in range(4, 8):
            a.e(f'v_add_f32_dpp v17, v{24 + 4 * e}, v{25 + 4 * e} {DPPI} row_mask:{1 << (e & 3)} bank_mask:0xf')
        a.e('v_mul_f32 v44, s22, v16')
        a.e('v_mul_f32 v45, s22, v17')
        a.e(f'v_lshl_add_u32 v46, v0, 2, {sW8}')
        a.e('v_mov_b32 v47, v14')
        self.stamp('pv1')

    def tail(self, mode):
        a = self.a
        o = self.o
        base = lambda s: int(s[2:s.index(':')])
        self.mode = mode
        if mode == 'slow':
            a.e('L_pre_slow:')
            a.e('s_nop 7')
            a.e('s_waitcnt vmcnt(0)')
        self.last_tiles([3])
        n0 = self.nst
        a.vmq = [['wo', ()]] + [[None, ()] for _ in range(len(o.get('touch', {}).get('s27', [])) if o.get('wo_at', 9) == 27 else 40)]
        l, g = base(WSL), base(WSG)
        a.e(f'L_top_{mode}:')
        self.combine_publish()
        self.stamp('opub')
        a.e(f's_mul_i32 {t0}, {sRES}, {sIT}')
        self.resid_track(G_YB, 20, 'v8', f's_cmp_eq_u32 {t0}, 3')
        a.e(f's_mul_i32 {t0}, {sIT}, {G_IT}')
        a.e(f's_add_u32 s{g}, s{g}, {t0}')
        a.e(f's_addc_u32 s{g + 1}, s{g + 1}, 0')
        self.outproj(True)
        self.lnq_tail(G_YA, True)
        self.qabs()
        self.attn_b()
        self.red()
        self.uv()
        self.outproj(False)
        a.e(f's_cmp_eq_u32 {sIT}, 1')
        a.e(f's_cbranch_scc1 L_final_{mode}')
        a.e(f's_add_u32 s{l}, s{l}, {L_IT}')
        a.e(f's_addc_u32 s{l + 1}, s{l + 1}, 0')
        a.e(f's_mov_b32 s{l + 2}, {L_SZ}')
        a.e(f's_mov_b32 {sIT}, 1')
        self.lnq_tail(G_YB, False)
        self.attn_a3()
        self.nper = self.nst - n0
        self.n0 = n0
        if o.get('stamps'):
            a.e('s_mov_b32 s97, 5')
        a.e(f's_branch L_top_{mode}')
        a.e(f'L_final_{mode}:')
        a.e(f's_cmp_lg_u32 {sRES}, 3')
        a.e('s_cbranch_scc1 L_fin2')
        self.resid(G_YB, 10, 'v8', True)
        a.e(f'buffer_store_dword v9, v8, {OUT}, {t0} offen')
        a.e('s_mov_b64 exec, -1')
        self.mode = None

    def build(self):
        a = self.a
        o = self.o
        base = lambda s: int(s[2:s.index(':')])
        self.prologue()
        altb = ''
        if o.get('hi'):
            import copy
            a.e('s_getreg_b32 s0, hwreg(HW_REG_XCC_ID, 0, 3)')
            a.e(f's_lshr_b32 s0, {o["hi"][0]}, s0')
            a.e('s_and_b32 s0, s0, 1')
            a.e('s_cbranch_scc1 L_alt')
            alt = Gen(dict(o, win=o['hi'][1]))
            alt.alt = True
            alt.a.uid = 300000
            alt.a.cold = True
            alt.a.vmq = copy.deepcopy(a.vmq)
            alt.make_items()
            alt.issued = self.issued
            alt.nst = self.nst
            alt.a.e('L_alt:')
            alt.stream()
            altb = alt.a.finish()
            altb = altb[:altb.index('L_isl_0:')]
        self.stream()
        self.tail('fast')
        a.e('L_fin2:')
        if o.get('diag_fixed'):
            a.e('L_dfx:')
            a.e('s_memrealtime s[94:95]')
            a.e('s_waitcnt lgkmcnt(0)')
            a.e('s_sub_u32 s94, s94, s100')
            a.e(f's_cmp_lt_u32 s94, {o["diag_fixed"]}')
            a.e('s_cbranch_scc1 L_dfx')
        if o.get('stamps'):
            a.e('s_waitcnt vmcnt(0) lgkmcnt(0)')
            self.stamp('end')
            a.e('s_waitcnt lgkmcnt(0)')
            a.e('v_writelane_b32 v7, s98, 62')
            a.e(f'v_writelane_b32 v7, {sPOLL}, 63')
            a.e('s_getreg_b32 s82, hwreg(HW_REG_XCC_ID, 0, 3)')
            a.e('s_getreg_b32 s83, hwreg(HW_REG_HW_ID)')
            a.e('s_lshl_b32 s83, s83, 4')
            a.e('s_or_b32 s82, s82, s83')
            a.e('v_writelane_b32 v7, s82, 61')
            self.sums(t1, [('s2', 1024), (sV, 256)], STAMP)
            a.e('v_lshlrev_b32 v8, 2, v0')
            a.e(f'buffer_store_dword v7, v8, {WS}, {t1} offen')
        a.e('L_end:')
        a.e('s_endpgm')
        slow = Gen(self.o)
        slow.a.uid = 500000
        slow.a.cold = True
        slow.tail('slow')
        slow.a.e('s_branch L_fin2')
        sb = slow.a.finish()
        sb = sb[:sb.index('L_isl_0:')]
        body = a.finish()
        ref = open('cdna_kernels/' + NAME + '.s.ref').read() if o.get('hdr', True) else ''
        hdr = ''.join(l + '\n' for l in ref.split('\n') if l.startswith(';') and '@launch' not in l and 'Override' not in l and 'grid=ceil' not in l)
        txt = hdr + '; @launch grid=(256,1,1) block=(256,1,1) lds=163840\n'
        txt += '.amdgcn_target "amdgcn-amd-amdhsa--gfx950"\n.text\n'
        txt += f'.globl {NAME}_kernel\n.p2align 8\n.type {NAME}_kernel,@function\n{NAME}_kernel:\n'
        txt += body
        txt += 'L_tailend:\n' + altb + 'L_codeend:\n' + sb
        txt += f"""    s_endpgm
.section .rodata,"a"
.p2align 6
.amdhsa_kernel {NAME}_kernel
  .amdhsa_next_free_vgpr 512
  .amdhsa_next_free_sgpr 102
  .amdhsa_accum_offset 256
  .amdhsa_group_segment_fixed_size 0
  .amdhsa_kernarg_size 112
  .amdhsa_user_sgpr_count 2
  .amdhsa_user_sgpr_kernarg_segment_ptr 1
  .amdhsa_system_sgpr_workgroup_id_x 1
.end_amdhsa_kernel
"""
        return txt


DEFAULT = dict(sleep=dict(h2a=7, h2b=7, h2c=1, ha=11, ha1=5, hc2=1, hc2b=2, hc4=1, fin=10), pol_c='nt', depth=3,
               touch=dict(s27=['bwo', 'c1'], w1b=['loc', 'code', 'wuk'], w1c=['loc'], w5=['code']), wo_e=0, wo_pre=3, red_pre=4, tr_pre=4, pol_wq3='nt',
               late_touch=-1, wo_at=9, warm=0, c1_late=1, ml_early=2, qflag=0, ybar=0, atom_at=4, cnt_at=12, win=6, boost={}, win0=6)

if __name__ == '__main__':
    import json
    opt = dict(DEFAULT)
    out = sys.argv[1]
    if len(sys.argv) > 2:
        opt.update(json.loads(sys.argv[2]))
    g = Gen(opt)
    open(out, 'w').write(g.build())
    print('nops', g.a.nops, 'stamps', g.stnames, g.n0, g.nper)
```

```python
import sys, math, struct
from asmlib import Asm

NAME = 'interleave_layers__mha_block_cached__compressed_kv_cla__decode'


def f32(x):
    return '0x%08x' % struct.unpack('<I', struct.pack('<f', x))[0]


K1 = 1024
L_X = 128 * K1
L_IT = 72 * K1
L_SZ = 56 * K1
L_QA, L_QB, L_OA, L_OB, L_C1ML = 0, 16 * K1, 32 * K1, 40 * K1, 48 * K1
L_STA, L_STB, L_OAL, L_FL = 52 * K1, 52 * K1 + 256, 52 * K1 + 512, 52 * K1 + 640
L_CSA = 56 * K1
GB, G_IT = 0x100000, 384 * K1
G_YA, G_YB, G_QABS, G_C2L, G_C2 = 0, 24 * K1, 48 * K1, 80 * K1, 112 * K1
CB = 0x200000
STAMP = 0x800000
WS_SIZE = 0x1000000
OOB = 0x40000000
CKV = 65536
STG = 131072
ZML = STG + 7168
ZO = STG + 8192 + 7168
ZQ = STG + 2 * 8192 + 7168
K_, V_, CK, DBG, XIN, WQ, WO, BWQ, WUK, WUV, BWO, WS, WSL, WSG, OUT = ['s[%d:%d]' % (4 + 4 * i, 7 + 4 * i) for i in range(15)]
(sX, sJ, sV, sLOC, sW8, sKV, sKG, sIT, sPOLL, sM, sRES, sST, sH, sS,
 t0, t1, t2, t3, t4, t5) = ['s%d' % i for i in range(64, 84)]
MY = 's[84:85]'
(oY, oQA, oQB, oST, oQgA, oSTgA, oWQ, oWO, oWUK, oWUV, oYpub) = ['s%d' % i for i in range(86, 97)]
(oQgB, oSTgB, oQApub, oQAg, oC1pub, oMLpub, oC1g, oMLg, oC2pub, oC2Lpub, oC2g, oC2Lg,
 oOBpub, oOApub, oOALpub, oOALg, oRES, oO) = ['s%d' % i for i in range(4, 22)]
vT, vA, vL16 = 'v2', 'v3', 'v6'
TBL = [0, 8, 9, 1]
DPPI = 'quad_perm:[0,1,2,3]'
FULL = 'row_mask:0xf bank_mask:0xf'
QSCALE = math.log2(math.e) / math.sqrt(128.0)


def vr(a, n):
    return f'v[{a}:{a + n - 1}]' if n > 1 else f'v{a}'


class Gen:
    def __init__(self, opt):
        self.o = opt
        self.a = Asm()
        self.nst = 0
        self.stnames = []
        self.mode = None
        self.alt = False

    def stamp(self, name, level=1):
        if self.o.get('stamps', 0) < level or self.mode == 'slow':
            return
        if self.o.get('only') and name not in self.o['only'] and name != 'end':
            return
        a = self.a
        self.nst += 1
        self.stnames.append(name)
        a.e(f's_mov_b32 m0, {sST}')
        a.e(f's_pack_ll_b32_b16 s98, s98, {sPOLL}')
        a.e('v_writelane_b32 v7, s98, m0')
        a.e(f's_mov_b32 {sST}, {self.nst}')
        a.e(f's_bitset1_b32 {sST}, s97')
        a.e('s_memtime s[98:99]' if self.o.get('clk') else 's_memrealtime s[98:99]')

    def K(self, n, key=None, force=False):
        if key is not None:
            n = self.o.get('K', {}).get(key, n)
        if not self.o.get('warm', 1) and not force:
            return
        for i in range(n):
            self.a.e('v_mov_b32 v0, v0')
            self.a.e('s_nop 2')

    def H(self, key, n, junk):
        n = self.o.get('H', {}).get(key, n if self.o.get('heat', 1) else 0)
        for i in range(n):
            self.a.e(f'v_mfma_f32_16x16x4_f32 {vr(junk, 4)}, v0, v0, 0')

    def Wm(self):
        if self.o.get('warm', 1):
            self.a.e('v_mov_b32 v0, v0')

    def bar(self, n=2, vm=False):
        self.K(n)
        self.Wm()
        self.a.e('s_waitcnt vmcnt(0) lgkmcnt(0)' if vm else 's_waitcnt lgkmcnt(0)')
        self.Wm()
        self.a.e('s_barrier')
        self.Wm()

    def retry_to(self, top):
        a = self.a
        done, retry = a.lab('got'), a.lab('retry')
        a.e(f's_cbranch_vccnz {retry}')
        a.e(f'{done}:')
        a.ool(f'{retry}:\ns_cselect_b32 s3, 1, 0\ns_add_u32 {sPOLL}, {sPOLL}, 1\ns_cmp_gt_u32 {sPOLL}, 100000\ns_nop 1\ns_cbranch_scc0 {top}\n'
              f's_cmp_eq_u32 s3, 1\ns_branch {done}')

    def ool_if(self, cond, fn, els=None, big=False):
        a = self.a
        go, back = a.lab('go'), a.lab('back')
        a.e(cond)
        a.e(f's_cbranch_scc1 {go}')
        if els and big:
            els()
            a.vmq, a.dsq = [], []
        elif els:
            a.begin_skip()
            els()
            a.end_skip()
        a.e(f'{back}:')
        sub = Asm()
        sub.uid = a.uid + 1000 * (1 + len(a.tail))
        self.a = sub
        sub.e(f'{go}:')
        sub.e('s_nop 1')
        fn()
        sub.e('s_nop 1')
        sub.e(f's_branch {back}')
        self.a = a
        tail, sub.tail = sub.tail, []
        body = sub.finish().split('\n')
        body = [x.strip() for x in body[:[i for i, x in enumerate(body) if x.startswith('L_isl_0')][0]] if x.strip()]
        for k in range(0, len(body), 14):
            part = body[k:k + 14]
            if k + 14 < len(body):
                nxt = a.lab('p')
                part.append(f's_branch {nxt}')
                body[k + 14] = f'{nxt}:\n' + body[k + 14]
            a.ool('\n'.join(part))
        for t in tail:
            a.ool(t)

    def lstore(self, lines):
        a = self.a
        if self.mode is not None:
            for l in lines:
                a.e(l + ' sc1' if self.mode == 'slow' and l.startswith('buffer_') else l)
            return
        slow, back = a.lab('slow'), a.lab('back')
        a.e(f's_cbranch_scc1 {slow}')
        for l in lines:
            a.e(l)
        a.e(f'{back}:')
        a.ool(('' if a.cold else '#cold') + f'{slow}:\ns_nop 7\n' + '\n'.join(l + ' sc1' if l.startswith('buffer_') else l for l in lines) + f'\ns_branch {back}')

    def lcmp(self):
        if self.mode is None:
            self.a.e(f's_cmp_eq_u32 {sLOC}, 0')

    def poll_begin(self):
        a = self.a
        self.ptop, self.pretry, self.pdone = a.lab('poll'), a.lab('retry'), a.lab('got')
        a.e(f'{self.ptop}:')

    def poll_end(self, vmax):
        a = self.a
        a.e(f'v_cmp_eq_u32 vcc, -1, {vmax}')
        a.e(f's_cbranch_vccnz {self.pretry}')
        a.e(f'{self.pdone}:')
        a.ool(f'{self.pretry}:\ns_add_u32 {sPOLL}, {sPOLL}, 1\ns_cmp_gt_u32 {sPOLL}, 100000\ns_cbranch_scc1 {self.pdone}\ns_nop 7\ns_branch {self.ptop}')

    def poll_cmp(self, vmax):
        self.a.e(f'v_cmp_eq_u32 vcc, -1, {vmax}')

    def poll_br(self, last=True):
        a = self.a
        done = a.lab('got')
        retry = a.lab('retry')
        a.e(f's_cbranch_vccnz {retry}')
        a.e(f'{done}:')
        a.ool(f'{retry}:\ns_cselect_b32 s3, 1, 0\ns_add_u32 {sPOLL}, {sPOLL}, 1\ns_cmp_gt_u32 {sPOLL}, 100000\ns_cbranch_scc0 {self.ptop}\n'
              f's_cmp_eq_u32 s3, 1\ns_branch {done}')

    def pipe_poll(self, ld, vmax, regs, key, mid=()):
        a = self.a
        n = sum(x.startswith('buffer') for x in ld)
        if self.o.get('pipe', {}).get(key, 1):
            self.poll_begin()
            for x in ld:
                self.H(key + '0', 0, 40)
                a.e(x)
            self.H(key + '1', 0, 40)
            a.e(f's_waitcnt vmcnt({n})')
            self.maxchain(vmax, regs, True)
            self.poll_cmp(vmax)
            for x in mid:
                a.e(x)
            self.poll_br()
        else:
            a.e('s_waitcnt vmcnt(0)')
            self.late_check(vmax, regs, ld)

    def late_check(self, vmax, regs, reissue):
        a = self.a
        chk, retry, done = a.lab('chk'), a.lab('retry'), a.lab('done')
        a.e(f'{chk}:')
        self.maxchain(vmax, regs, True)
        a.e(f'v_cmp_eq_u32 vcc, -1, {vmax}')
        a.e(f's_cbranch_vccnz {retry}')
        a.e(f'{done}:')
        a.ool(f'{retry}:\ns_add_u32 {sPOLL}, {sPOLL}, 1\ns_cmp_gt_u32 {sPOLL}, 100000\ns_cbranch_scc1 {done}\n'
              + '\n'.join(reissue) + f'\ns_waitcnt vmcnt(0)\ns_branch {chk}')

    def maxchain(self, vmax, regs, first):
        a = self.a
        regs = list(regs)
        if first:
            if len(regs) >= 3:
                a.e(f'v_max3_u32 {vmax}, v{regs[0]}, v{regs[1]}, v{regs[2]}')
                regs = regs[3:]
            elif len(regs) == 2:
                a.e(f'v_max_u32 {vmax}, v{regs[0]}, v{regs[1]}')
                regs = []
            else:
                a.e(f'v_mov_b32 {vmax}, v{regs[0]}')
                regs = []
        while len(regs) >= 2:
            a.e(f'v_max3_u32 {vmax}, {vmax}, v{regs[0]}, v{regs[1]}')
            regs = regs[2:]
        if regs:
            a.e(f'v_max_u32 {vmax}, {vmax}, v{regs[0]}')

    def sleep(self, key):
        n = self.o.get('sleep', {}).get(key, 0)
        if n:
            self.a.e(f's_sleep {n}')

    def wave_only(self, w):
        a = self.a
        l = a.lab('notw')
        a.e(f's_cmp_lg_u32 {sV}, {w}')
        a.e(f's_cbranch_scc1 {l}')
        a.begin_skip()
        return l

    def end_only(self, lab):
        self.a.end_skip()
        self.a.e(f'{lab}:')

    def pos_bytes(self, dst, tmp):
        a = self.a
        a.e(f'v_lshlrev_b32 {dst}, 3, v0')
        a.e(f'v_and_b32 {dst}, 16, {dst}')
        a.e(f'v_and_or_b32 {dst}, v0, 12, {dst}')

    def sp_addr(self, dst, base):
        a = self.a
        a.e(f'v_and_b32 {dst}, 48, v0')
        a.e(f'v_lshlrev_b32 {dst}, 1, {dst}')
        a.e(f'v_and_or_b32 {dst}, {vL16}, 16, {dst}')
        if base:
            a.e(f'v_add_u32 {dst}, {base}, {dst}')

    def sums(self, dst, terms, const=0):
        a = self.a
        first = True
        for reg, mul in terms:
            d = dst if first else t0
            if mul & (mul - 1) == 0:
                a.e(f's_lshl_b32 {d}, {reg}, {mul.bit_length() - 1}')
            else:
                a.e(f's_mul_i32 {d}, {reg}, {mul}')
            if not first:
                a.e(f's_add_u32 {dst}, {dst}, {t0}')
            first = False
        if const:
            a.e(f's_add_u32 {dst}, {dst}, {const}')

    def k64_addr(self, vt, vu):
        a = self.a
        a.e(f'v_lshrrev_b32 {vt}, 2, v0')
        a.e(f'v_lshlrev_b32 {vt}, 13, {vt}')
        a.e(f'v_and_or_b32 {vt}, {vL16}, 48, {vt}')

    def wq_prep(self, vt, vu):
        a = self.a
        a.e(f'v_lshrrev_b32 {vu}, 4, v0')
        a.e(f'v_lshlrev_b32 {vt}, 5, {vu}')
        a.e(f'v_xor_b32 {vt}, {vt}, {vL16}')
        a.e(f's_lshl_b32 {t1}, {sV}, 7')
        a.e(f'v_xor_b32 {vt}, {t1}, {vt}')
        a.e(f'v_and_b32 {vt}, 0xf0, {vt}')
        a.e(f'v_lshl_or_b32 {vt}, {vu}, 13, {vt}')

    def wq_issue(self, srd, vt, vu, parts, pol=''):
        a = self.a
        for i in parts:
            if i == parts[0] or i == 3:
                a.e(f's_add_u32 m0, {sW8}, {(i // 3) * 3072}')
            a.e(f's_add_u32 {t1}, {oWQ}, {i * 4 * 8192 - (i % 3) * 1024}')
            a.e(f'buffer_load_dwordx4 {vt}, {srd}, {t1} offen offset:{(i % 3) * 1024} {pol} lds')
        a.tag_vm('wq')

    def dma_wq(self, srd, vt, vu, pol=''):
        self.wq_prep(vt, vu)
        self.wq_issue(srd, vt, vu, list(range(6)), pol)

    def dma_wuv(self, vt):
        a = self.a
        pol = self.o.get('pol_w', '')
        self.k64_addr(vt, None)
        for i in range(4):
            a.e(f's_add_u32 m0, {sW8}, {i * 1024}')
            a.e(f's_add_u32 {t1}, {oWUV}, {i * 16 * 8192}')
            a.e(f'buffer_load_dwordx4 {vt}, {WUV}, {t1} offen {pol} lds')
        a.tag_vm('wuv')

    def wuk_prep(self, vt, vu):
        a = self.a
        a.e(f'v_lshrrev_b32 {vu}, 4, v0')
        a.e(f'v_lshlrev_b32 {vt}, 5, {vu}')
        a.e(f'v_xor_b32 {vt}, {vt}, {vL16}')
        a.e(f'v_and_b32 {vt}, 0xf0, {vt}')
        a.e(f'v_lshl_or_b32 {vt}, {vu}, 13, {vt}')

    def wuk_issue(self, vt, vu):
        a = self.a
        pol = self.o.get('pol_wuk', '')
        a.e(f's_mov_b32 m0, {sW8}')
        for q in range(4):
            a.e(f's_add_u32 {t1}, {oWUK}, {q * (4 * 8192 - 1024)}')
            if q:
                a.e(f'v_xor_b32 {vu}, {TBL[q] << 4}, {vt}')
            a.e(f'buffer_load_dwordx4 {vu if q else vt}, {WUK}, {t1} offen offset:{q * 1024} {pol} lds')
        a.tag_vm('wuk')

    def wo_prep(self, R, tmp):
        a = self.a
        for i in range(3):
            a.e(f'v_add_u32 v{R + i}, {64 * i}, v0')
            a.e(f'v_mul_u32_u24 {tmp}, 21846, v{R + i}')
            a.e(f'v_lshrrev_b32 {tmp}, 16, {tmp}')
            a.e(f'v_mul_u32_u24 {tmp}, {1152 - 48}, {tmp}')
            a.e(f'v_lshl_add_u32 v{R + i}, v0, 4, {tmp}')
        a.e(f's_add_u32 {t5}, {oWO}, {64 * 1152}')

    def wo_lines(self, srd, R, pol='', base=sW8):
        out = []
        for h in range(2):
            out.append(f's_add_u32 m0, {base}, {h * 3072}')
            for i in range(3):
                out.append(f'buffer_load_dwordx4 v{R + i}, {srd}, {t5 if h else oWO} offen offset:{i * 1024} {pol} lds')
        return out

    def wo_group(self, srd, R, lo, hi):
        out = []
        for k in range(lo, hi):
            h, i = divmod(k, 3)
            if k == lo or i == 0:
                out.append(f's_add_u32 m0, {sW8}, {h * 3072}')
            out.append(f'buffer_load_dwordx4 v{R + i}, {srd}, {t5 if h else oWO} offen offset:{i * 1024} lds')
        return out

    def dma_wo(self, srd, R, tmp):
        self.wo_prep(R, tmp)
        for x in self.wo_lines(srd, R, self.o.get('pol_wo1', '')):
            self.a.e(x)
        self.a.tag_vm('wo')

    def touch(self, what, vt, vd):
        a = self.a
        if what == 'code':
            l = a.lab('pc')
            self.sums(t1, [(sJ, 1024), (sV, 256)])
            a.e(f'v_lshl_add_u32 {vt}, v0, 7, {t1}')
            a.e(f'v_min_u32 {vt}, L_tailend-L_top_fast, {vt}')
            a.e('s_getpc_b64 s[0:1]')
            a.e(f'{l}:')
            a.e(f's_add_u32 s0, s0, L_top_fast-{l}')
            a.e(f's_addc_u32 s1, s1, {0 if self.mode is None else -1}')
            a.e('s_mov_b64 exec, 3')
            a.e(f'global_load_dword {vd}, {vt}, s[0:1]')
            a.e('s_mov_b64 exec, -1')
            return
        if what[0] == 'X':
            what, lo, hi = (what.split(':') + ['0', '9'])[:3]
            if what in ('Xbwq', 'Xwq', 'Xwuk', 'Xwuv'):
                srd, rows = {'Xbwq': (BWQ, 18), 'Xwq': (WQ, 18), 'Xwuk': (WUK, 12), 'Xwuv': (WUV, 16)}[what]
                a.e(f'v_lshrrev_b32 {vt}, 3, v0')
                a.e(f'v_lshlrev_b32 {vt}, 6, {vt}')
                a.e(f'v_and_or_b32 {vt}, v0, 7, {vt}')
                a.e(f'v_lshlrev_b32 {vt}, 7, {vt}')
                self.sums(t1, [(sX, 1024), (sJ, 4 * rows * 8192), (sV, rows * 8192)], (1 << 32) - 96 * rows * 8192)
                for k in range(0, rows, 8):
                    if rows - k < 8:
                        a.e(f's_mov_b32 exec_lo, {(1 << ((rows - k) * 8)) - 1}')
                        a.e('s_mov_b32 exec_hi, 0')
                    if int(lo) <= k // 8 < int(hi):
                        a.e(f'buffer_load_dword {vd}, {vt}, {srd}, {t1} offen')
                    a.e(f's_add_u32 {t1}, {t1}, 65536')
                a.e('s_mov_b64 exec, -1')
                return
            srd, base, per = {'Xc1': (WS, [(sX, 1 << 19)], 16384), 'Xbwo': (BWO, [(sX, 512 * 1152)], 18432), 'Xwo': (WO, [(sX, 512 * 1152)], 18432)}[what]
            a.e(f'v_lshlrev_b32 {vt}, 7, v0')
            self.sums(t1, base + [(sJ, 4 * per), (sV, per)], (CB if what == 'Xc1' else 0) - 96 * per + (1 << 32 if what != 'Xc1' else 0))
            for k in range(0, per, 8192):
                if per - k < 8192:
                    a.e(f's_mov_b64 exec, {(1 << ((per - k) // 128)) - 1}')
                if int(lo) <= k // 8192 < int(hi):
                    a.e(f'buffer_load_dword {vd}, {vt}, {srd}, {t1} offen')
                a.e(f's_add_u32 {t1}, {t1}, 8192')
            a.e('s_mov_b64 exec, -1')
            return
        half = None
        if what[-1] in '01' and what != 'c1':
            what, half = what[:-1], int(what[-1])
        if what in ('wq', 'bwq', 'wuv', 'wuk'):
            srd = {'wq': WQ, 'bwq': BWQ, 'wuv': WUV, 'wuk': WUK}[what]
            a.e(f'v_lshrrev_b32 {vt}, 3, v0')
            a.e(f'v_lshlrev_b32 {vt}, 6, {vt}')
            a.e(f'v_and_or_b32 {vt}, v0, 7, {vt}')
            a.e(f'v_lshlrev_b32 {vt}, 7, {vt}')
            rows = 5 if what in ('wq', 'bwq') else 4
            self.sums(t1, [(sJ, 4 * rows * 8192), (sV, rows * 8192), (sX, 1024)])
            n = 8 * rows
        elif what == 'loc':
            srd = WS
            a.e(f'v_lshlrev_b32 {vt}, 7, v0')
            self.sums(t1, [(sX, L_X), (sJ, 4096), (sV, 1024)])
            n = 8
        elif what == 'c1h':
            srd = WS
            a.e(f'v_lshlrev_b32 {vt}, 7, v0')
            self.sums(t1, [(sX, 1 << 19), (sJ, 16384), (sV, 2048)], CB + 8192)
            n = 16
        elif what == 'c1':
            srd = WS
            a.e(f'v_lshlrev_b32 {vt}, 7, v0')
            self.sums(t1, [(sX, 1 << 19), (sJ, 16384), (sV, 4096)], CB)
            n = 32
        else:
            srd = {'wo': WO, 'bwo': BWO}[what]
            a.e(f'v_lshlrev_b32 {vt}, 7, v0')
            self.sums(t1, [(sX, 512 * 1152), (sJ, 18432), (sV, 4608)])
            n = 36
        m = (1 << n) - 1
        if half == 0:
            m = (1 << (n // 2)) - 1
        elif half == 1:
            m ^= (1 << (n // 2)) - 1
        a.e(f's_mov_b32 exec_lo, {m & 0xffffffff}')
        a.e(f's_mov_b32 exec_hi, {m >> 32}')
        if vd is None:
            a.e(f's_add_u32 m0, {sW8}, 1024')
            a.e(f'buffer_load_dword {vt}, {srd}, {t1} offen lds')
        else:
            a.e(f'buffer_load_dword {vd}, {vt}, {srd}, {t1} offen')
        a.e('s_mov_b64 exec, -1')

    def touches(self, where, vt, vd):
        for w in self.o.get('touch', {}).get(where, []):
            self.touch(w, vt, vd)

    def lnq_addr(self):
        a = self.a
        a.e('v_lshrrev_b32 v52, 4, v0')
        a.e('v_bfe_u32 v53, v0, 2, 2')
        a.e('v_lshl_add_u32 v52, v52, 5, v53')
        a.e('v_and_b32 v53, 31, v0')
        a.e('v_lshlrev_b32 v53, 3, v53')
        a.e('v_lshl_or_b32 v52, v52, 8, v53')
        a.e(f's_lshl_b32 {t0}, {sV}, 6')
        a.e(f's_add_u32 {t0}, {t0}, {STG}')
        a.e(f'v_xor_b32 v52, {t0}, v52')
        a.e('v_xor_b32 v54, 32, v52')

    def lnq_prep(self):
        a = self.a
        a.wait(vm='wq')
        a.e('s_barrier')
        for rho in range(3):
            for tau in range(2):
                for half in range(2):
                    a.e(f'ds_read_b64_tr_b16 {vr(28 + 8 * rho + 4 * tau + 2 * half, 2)}, v{52 + 2 * tau} offset:{2048 * rho + 1024 * half}')
        a.e('s_waitcnt lgkmcnt(0)')
        a.e('s_barrier')

    def lnq_rows(self):
        a = self.a
        a.e('v_mov_b32 v53, 0x3f803f80')
        a.e(f's_lshl_b64 s[82:83], {MY}, 8')
        a.e('v_cndmask_b32 v16, 0, v53, s[82:83]')
        a.e('v_mov_b32 v17, v16')
        for r in range(18, 28, 2):
            a.e(f'v_mov_b64 {vr(r, 2)}, v[16:17]')

    def lnq_mfma(self, rho):
        a = self.a
        A = vr(16 + 4 * rho, 4)
        c = (lambda r: '0') if rho == 0 else (lambda r: r)
        return [f'v_mfma_f32_16x16x32_bf16 v[60:63], {A}, {A}, {c("v[60:63]")}',
                f'v_mfma_f32_16x16x32_bf16 v[52:55], {A}, {vr(28 + 8 * rho, 4)}, {c("v[52:55]")}',
                f'v_mfma_f32_16x16x32_bf16 v[56:59], {A}, {vr(32 + 8 * rho, 4)}, {c("v[56:59]")}']

    def lnq_reduce(self, isb, chk=False):
        a = self.a
        a.e('v_pk_add_f32 v[60:61], v[60:61], v[62:63]')
        a.e('v_add_f32 v60, v60, v61')
        if chk:
            a.e('v_cmp_u_f32 vcc, v60, v60')
        a.e('v_pk_add_f32 v[52:53], v[52:53], v[54:55]')
        a.e('v_mov_b32 v61, v60')
        a.e('v_pk_add_f32 v[56:57], v[56:57], v[58:59]')
        a.e('v_add_f32 v52, v52, v53')
        a.e('v_permlane16_swap_b32 v60, v61')
        a.e('v_add_f32 v56, v56, v57')
        a.e('v_add_f32 v60, v60, v61')
        a.e('v_permlane16_swap_b32 v52, v56')
        a.e(f'v_add_f32_dpp v60, v60, v60 quad_perm:[1,0,3,2] {FULL}')
        a.e('v_add_f32 v52, v52, v56')
        self.lcmp()
        a.e(f'v_add_f32_dpp v60, v60, v60 quad_perm:[2,3,0,1] {FULL}')
        if isb:
            a.e(f'v_mov_b32_dpp v53, v52 quad_perm:[1,0,3,2] {FULL}')
            a.e('v_cvt_pk_bf16_f32 v52, v52, v53')
        a.e(f'v_add_f32_dpp v60, v60, v60 row_half_mirror {FULL}')

    def lnq_pubaddr(self, isb, first):
        a = self.a
        if isb:
            self.pos_bytes('v14', None)
            a.e('v_and_b32 v15, 16, v0')
            a.e('v_lshl_or_b32 v14, v15, 4, v14')
            a.e('v_and_b32 v15, 32, v0')
            a.e('v_lshl_or_b32 v14, v15, 6, v14')
        else:
            a.e('v_and_b32 v14, 31, v0')
            a.e('v_lshlrev_b32 v14, 2, v14')
            if first:
                a.e('v_lshrrev_b32 v15, 5, v0')
                a.e(f'v_mul_u32_u24 v15, {L_CSA - L_QA}, v15')
                a.e('v_add_u32 v14, v14, v15')
        a.e('v_lshrrev_b32 v15, 1, v0')

    def lnq_publish(self, isb, first, q='v52', st='v60', qa='v14', sa='v15'):
        lines = []
        if isb:
            lines += ['s_mov_b32 exec_lo, 0x55555555', 's_mov_b32 exec_hi, 0x55555555']
        elif not first:
            lines += ['s_mov_b32 exec_hi, 0']
        lines += [f'buffer_store_dword {q}, {qa}, {WSL}, {oQB if isb else oQA} offen',
                  's_mov_b64 exec, 0x101',
                  f'buffer_store_dword {st}, {sa}, {WSL}, {oST} offen offset:{256 if isb else 0}',
                  's_mov_b64 exec, -1']
        self.lstore(lines)

    def lnq_tail(self, goff, isb):
        a = self.a
        if self.o.get('ybar', 1):
            a.e('s_barrier')
        self.lnq_rows()
        a.e('v_lshrrev_b32 v12, 2, v0')
        a.e('v_mul_u32_u24 v12, 3072, v12')
        a.e(f'v_and_or_b32 v12, {vL16}, 48, v12')
        a.e(f's_add_u32 {t4}, {oY}, {goff}')
        a.e(f's_add_u32 {t5}, {sW8}, 6144')
        self.dma_wq(BWQ if isb else WQ, 'v8', 'v9', self.o.get('pol_bwq', '') if isb else self.o.get('pol_wq3', ''))
        if not self.o.get('ybar', 1):
            a.e('s_barrier')
        self.lnq_addr()
        self.lnq_pubaddr(isb, False)
        a.e('v_and_b32 v11, 48, v0')
        a.e('v_lshlrev_b32 v11, 3, v11')
        a.e('v_and_or_b32 v11, v0, 7, v11')
        a.e('v_lshlrev_b32 v11, 6, v11')
        a.e(f'v_add_u32 v11, {STG + 6144}, v11')
        a.e('v_mov_b32 v13, 0')
        if isb:
            self.wuk_prep('v8', 'v9')

            def clear1():
                self.clear_g1(56)
                self.sleep('h2c')
            self.ool_if(f's_cmp_eq_u32 {sIT}, 0', clear1, lambda: self.sleep('h2a'))
        else:
            self.sleep('h2b')
        ld = [f's_mov_b32 m0, {t5}', 's_mov_b64 exec, 0x77777777',
              f'buffer_load_dword v13, v12, {WSG}, {t4} offen sc1',
              f'buffer_load_dwordx4 v12, {WSG}, {t4} offen sc1 lds',
              's_mov_b64 exec, -1']
        for i, x in enumerate(ld):
            a.e(x)
            if i in (2, 3):
                a.tag_vm(f'y{i}')
        self.touches('w1b' if isb else 'w1c', 'v60', 'v10')
        self.lnq_prep()
        self.stamp('wqrdy', 2)
        if isb:
            self.wuk_issue('v8', 'v9')
        chk, again = a.lab('chk'), a.lab('again')
        a.wait(vm='y2')
        a.e(f'{chk}:')
        a.e('v_cmp_eq_u32 vcc, -1, v13')
        a.wait(vm='y3')
        self.retry_to(again)
        a.ool(f'{again}:\n' + '\n'.join(ld) + f'\ns_waitcnt vmcnt(0)\ns_branch {chk}')
        a.e(f's_mov_b64 exec, {MY}')
        a.e('s_barrier')
        for rho in range(3):
            a.e(f'ds_read_b128 {vr(16 + 4 * rho, 4)}, v11 offset:{16 * rho}')
            a.tag_ds(f'a{rho}')
        fl = isb and self.o.get('qflag', 1)
        if fl:
            self.lstore([f'buffer_store_dword v0, off, {WSL}, {t3} offset:{L_FL - L_OAL}'])
        a.e('s_mov_b64 exec, -1')
        self.stamp('h2got', 2)
        if fl:
            a.e('v_and_b32 v9, 7, v0')
            a.e('v_lshlrev_b32 v9, 2, v9')
        self.H('l1', 0, 56)
        mm = [self.lnq_mfma(rho) for rho in range(3)]
        for rho in range(3):
            a.wait(ds=f'a{rho}')
            a.e(mm[rho][0])
        g = ['v_pk_add_f32 v[60:61], v[60:61], v[62:63]', 'v_add_f32 v62, v60, v61', 'v_add_f32 v60, v60, v61', 'v_cmp_u_f32 vcc, v62, v62',
             'v_permlane16_swap_b32 v60, v62', 'v_add_f32 v60, v60, v62',
             f'v_add_f32_dpp v60, v60, v60 quad_perm:[1,0,3,2] {FULL}', f'v_add_f32_dpp v60, v60, v60 quad_perm:[2,3,0,1] {FULL}',
             f'v_add_f32_dpp v60, v60, v60 row_half_mirror {FULL}']
        a.e(mm[0][1]); a.e('s_nop 1')
        a.e(mm[1][1]); a.e('s_nop 1')
        a.e(mm[2][1]); a.e('s_nop 0'); a.e(g[0])
        a.e(mm[0][2]); a.e(g[1]); a.e(g[2])
        a.e(mm[1][2]); a.e(g[3]); a.e(g[4])
        a.e(mm[2][2]); a.e(g[5])
        a.e('v_pk_add_f32 v[52:53], v[52:53], v[54:55]')
        a.e('v_add_f32 v52, v52, v53')
        a.e(g[6])
        a.e(g[7])
        a.e('v_pk_add_f32 v[56:57], v[56:57], v[58:59]')
        a.e('v_add_f32 v56, v56, v57')
        a.e(g[8])
        again2 = a.lab('again')
        self.retry_to(again2)
        a.e('v_permlane16_swap_b32 v52, v56')
        a.e('v_add_f32 v52, v52, v56')
        if isb:
            a.e(f'v_mov_b32_dpp v53, v52 quad_perm:[1,0,3,2] {FULL}')
            a.e('v_cvt_pk_bf16_f32 v52, v52, v53')
        a.ool(f'{again2}:\ns_barrier\ns_branch {again}')
        if fl == 1:
            a.e(f'buffer_load_dword v10, v9, {WSL}, {oOALg} offen offset:{L_FL - L_OAL} sc1')
            a.tag_vm('fl')
        self.lnq_publish(isb, False)
        if fl == 2:
            a.e(f'buffer_load_dword v10, v9, {WSL}, {oOALg} offen offset:{L_FL - L_OAL} sc1')
            a.tag_vm('fl')
        self.stamp('qpub')

    def clear_g1(self, R):
        b = self.a
        for r in range(R, R + 4):
            b.e(f'v_mov_b32 v{r}, -1')
        self.sums(t1, [(sX, 128 * 384), (sJ, 4 * 384), (sV, 384)], GB + G_IT)
        b.e('s_mov_b64 exec, 0xffffff')
        b.e(f'buffer_store_dwordx4 {vr(R, 4)}, {vL16}, {WS}, {t1} offen sc1')
        b.e('s_mov_b64 exec, -1')

    def clear_c1(self, R, va, vt):
        b = self.a
        for r in range(R, R + 4):
            b.e(f'v_mov_b32 v{r}, -1')
        b.e(f'v_lshrrev_b32 {va}, 4, v0')
        b.e(f'v_and_b32 {vt}, 0xf0, {vL16}')
        b.e(f'v_lshl_or_b32 {va}, {va}, 16, {vt}')
        out = []
        for q in range(4):
            out.append(f's_add_u32 {t1}, {oC1pub}, {q * 4096}')
            out.append(f'buffer_store_dwordx4 {vr(R, 4)}, {va}, {WS}, {t1} offen')
        return out

    def oob(self, reg, mask):
        a = self.a
        a.e(f's_mov_b32 vcc_lo, {mask[0]}')
        a.e(f's_mov_b32 vcc_hi, {mask[1]}')
        a.e(f'v_cndmask_b32 {reg[0]}, {reg[1]}, 2.0, vcc')

    def c1_addr(self, dst, tmp):
        a = self.a
        a.e(f'v_lshrrev_b32 {tmp}, 4, v0')
        a.e(f'v_and_b32 {dst}, 0xf0, {vL16}')
        a.e(f'v_lshl_or_b32 {dst}, {tmp}, 12, {dst}')

    def stats(self, S):
        out = []
        for c in (4, 2, 1):
            out.append(f'v_add_f32_dpp v{S + 1}, v{S + 1}, v{S + 1} row_ror:{c} {FULL}')
            out.append(f'v_add_f32_dpp v{S}, v{S}, v{S} row_ror:{c} {FULL}')
        out.append(f'v_mul_f32 v{S + 1}, {f32(1.0 / (8 * 576))}, v{S + 1}')
        out.append(f'v_mul_f32 v{S}, {f32(1.0 / 576)}, v{S}')
        out.append(f'v_fma_f32 v{S}, -v{S + 1}, v{S + 1}, v{S}')
        out.append(f'v_max_f32 v{S}, 0, v{S}')
        out.append(f'v_add_f32 v{S}, {f32(1e-5)}, v{S}')
        out.append(f'v_rsq_f32 v{S}, v{S}')
        out.append(f'v_mul_f32 v{S + 1}, 0x3e000000, v{S + 1}')
        out.append(f'v_mul_f32 v{S}, {f32(QSCALE)}, v{S}')
        return out

    def mix(self, x, y):
        x, y = list(x), list(y)
        while x or y:
            if x:
                self.a.e(x.pop(0))
            if y:
                self.a.e(y.pop(0))

    def resid(self, goff, base, va, final):
        a = self.a
        a.e(f'v_lshlrev_b32 {va}, 2, v0')
        a.e(f's_add_u32 {t2}, {oRES}, {goff}')
        a.e('s_mov_b64 exec, 0xfff')
        if final:
            self.sleep('fin')
        self.poll_begin()
        for i in range(8):
            if i & 1 == 0:
                a.e(f's_add_u32 {t3}, {t2}, {i * 3072}')
            a.e(f'buffer_load_dword v{base + i}, {va}, {WSG}, {t3} offen offset:{(i & 1) * 3072} sc1')
        a.e(f'v_mov_b32 v{base + 8}, 0x3f80')
        a.e(f'v_mov_b32 v{base + 9}, 0x3f800000')
        a.e('v_mov_b64 v[4:5], 0')
        for i in range(8):
            if i & 1 == 0:
                a.e(f's_waitcnt vmcnt({6 - i})')
            a.e(f'v_dot2c_f32_bf16 v4, v{base + 8}, v{base + i}')
            a.e(f'v_dot2c_f32_bf16 v5, v{base + 9}, v{base + i}')
        a.e('s_nop 2')
        a.e('v_cmp_u_f32 vcc, v4, v5')
        if final:
            a.e('v_cvt_pk_bf16_f32 v9, v4, v5')
            a.e(f's_mul_i32 {t0}, {sJ}, 48')
        self.poll_br()

    def resid_track(self, goff, base, va, cond):
        a = self.a
        go, back = a.lab('res'), a.lab('resback')
        a.e(cond)
        a.e(f's_cbranch_scc1 {go}')
        a.e(f'{back}:')
        sub = Asm()
        sub.uid = a.uid + 1000 * (1 + len(a.tail))
        self.a = sub
        sub.e(f'{go}:')
        sub.e('s_nop 1')
        self.resid(goff, base, va, False)
        sub.e('s_mov_b64 exec, -1')
        sub.e(f's_branch {back}')
        self.a = a
        body = [i.text for i in sub.ins]
        cut = [k for k in range(0, len(body), 14)]
        for k in cut:
            part = body[k:k + 14]
            if k + 14 < len(body):
                nxt = a.lab('resp')
                part.append(f's_branch {nxt}')
                body[k + 14] = f'{nxt}:\n' + body[k + 14]
            a.ool('\n'.join(part))
        for t in sub.tail:
            a.ool(t)

    def qa_addr(self, T):
        a = self.a
        a.e(f'v_and_b32 v{T}, 4, v0')
        a.e(f'v_lshlrev_b32 v{T}, 3, v{T}')
        a.e(f'v_and_b32 v{T + 1}, 3, v0')
        a.e(f'v_lshl_or_b32 v{T}, v{T + 1}, 2, v{T}')
        a.e(f'v_lshrrev_b32 v{T + 1}, 5, v0')
        a.e(f'v_lshl_or_b32 v{T}, v{T + 1}, 4, v{T}')
        a.e(f'v_bfe_u32 v{T + 1}, v0, 4, 1')
        a.e(f'v_lshl_or_b32 v{T}, v{T + 1}, 1, v{T}')
        a.e(f's_lshl_b32 {t0}, {sV}, 6')
        a.e(f's_add_u32 {t0}, {t0}, {ZQ}')
        a.e(f'v_add_u32 v{T}, {t0}, v{T}')
        a.e(f'v_and_b32 v{T + 1}, 7, v0')
        a.e(f'v_lshlrev_b32 v{T + 1}, 3, v{T + 1}')
        self.oob((f'v{T + 1}', f'v{T + 1}'), (0xc0c0c0c0, 0xc0c0c0c0))
        self.oob((f'v{T + 3}', vL16), (0, 0xffff0000))
        self.sp_addr(f'v{T + 2}', ZQ)

    def red8(self, R):
        return [f'v_permlane32_swap_b32 v{R}, v{R + 2}',
                f'v_permlane32_swap_b32 v{R + 1}, v{R + 3}',
                f'v_pk_add_f32 {vr(R, 2)}, {vr(R, 2)}, {vr(R + 2, 2)}',
                f'v_permlane16_swap_b32 v{R}, v{R + 1}',
                f'v_add_f32 v{R}, v{R}, v{R + 1}',
                f'v_add_f32_dpp v{R}, v{R}, v{R} row_ror:8 {FULL}']

    def qa_loads(self, R, S, T):
        return [f'buffer_load_dwordx2 {vr(S, 2)}, v{T + 1}, {WSL}, {oSTgA} offen sc1',
                f'buffer_load_dwordx4 {vr(R, 4)}, v{T + 3}, {WSL}, {oQgA} offen sc1']

    def qa_finish(self, R, S, T, Q, br=False):
        a = self.a
        self.mix(self.stats(S), self.red8(R) + [f'v_and_b32 v{R + 1}, 0xffff0000, v1'])
        a.e(f'v_fma_f32 v{R}, -v{S + 1}, v{R + 1}, v{R}')
        a.e(f'v_mul_f32 v{R}, v{R}, v{S}')
        a.e(f'v_cvt_pk_bf16_f32 v{R}, v{R}, v{R}')
        a.e(f'ds_write_b16 v{T}, v{R}')
        if br:
            return
        self.bar(2, br)
        a.e(f'ds_read_b128 {vr(Q, 4)}, v{T + 2}')
        a.tag_ds('q0')
        a.e(f'ds_read_b128 {vr(Q + 4, 4)}, v{T + 2} offset:128')
        a.tag_ds('q1')

    def p_addr(self, r, t):
        a = self.a
        a.e(f'v_and_b32 {r}, 0x32, v0')
        a.e(f'v_lshlrev_b32 {r}, 3, {r}')
        a.e(f'v_and_b32 {t}, 8, v0')
        a.e(f'v_lshl_or_b32 {r}, {t}, 2, {r}')
        a.e(f'v_and_b32 {t}, 5, v0')
        a.e(f'v_lshl_or_b32 {r}, {t}, 1, {r}')
        a.e(f'v_add_u32 {r}, {sW8}, {r}')

    def qk_softmax(self, Q, D, S, T, fill=()):
        a = self.a
        for t in range(19):
            if t >= 3:
                d = D + 4 * ((t - 3) & 3)
                a.e(f'v_add_f32_dpp v{S + ((t - 3) & 3)}, v{d}, v{d + 1} {DPPI} row_mask:{1 << ((t - 3) >> 2)} bank_mask:0xf')
            if 4 <= t + 1 < 16:
                a.e(f'v_mov_b64 {vr(D + 4 * ((t + 1) & 3), 2)}, 0')
            if t < 16:
                d = vr(D + 4 * (t & 3), 4)
                if t == 0:
                    a.wait(ds='q0')
                a.e(f'v_smfmac_f32_16x16x64_bf16 {d}, {vr(Q, 4)}, a[{16 * t}:{16 * t + 7}], v1')
                if t == 0:
                    a.wait(ds='q1')
                elif t - 1 < len(fill):
                    for x in fill[t - 1]:
                        a.e(x)
                a.e(f'v_smfmac_f32_16x16x64_bf16 {d}, {vr(Q + 4, 4)}, a[{16 * t + 8}:{16 * t + 15}], v1')
        self.softmax_a(S, T, f'v{T + 1}')

    def softmax_a(self, S, T, pa, fill=()):
        a = self.a
        fill = list(fill)

        def f2():
            for _ in range(2):
                if fill:
                    a.e(fill.pop(0))
        m = f'v{T}'
        a.e(f'v_max3_f32 {m}, v{S}, v{S + 1}, v{S + 2}')
        a.e(f'v_max_f32 {m}, {m}, v{S + 3}')
        for c in ('row_ror:8', 'row_ror:4', 'row_ror:2', 'row_ror:1'):
            f2()
            a.e(f'v_max_f32_dpp {m}, {m}, {m} {c} {FULL}')
        f2()
        a.e(f'v_max_f32_dpp {m}, {m}, {m} row_bcast:15 row_mask:0xa bank_mask:0xf')
        f2()
        a.e(f'v_max_f32_dpp {m}, {m}, {m} row_bcast:31 row_mask:0xc bank_mask:0xf')
        a.e(f'v_readlane_b32 {sM}, {m}, 63')
        f2()
        assert not fill
        for r in range(4):
            a.e(f'v_subrev_f32 v{S + r}, {sM}, v{S + r}')
        for r in range(4):
            a.e(f'v_exp_f32 v{S + r}, v{S + r}')
        a.e(f'v_cvt_pk_bf16_f32 v{T + 2}, v{S}, v{S + 1}')
        a.e(f'v_cvt_pk_bf16_f32 v{T + 3}, v{S + 2}, v{S + 3}')
        a.e(f'ds_write_b16 {pa}, v{T + 2} offset:6144')
        a.e(f'ds_write_b16_d16_hi {pa}, v{T + 2} offset:{6144 + 4}')
        a.e(f'ds_write_b16 {pa}, v{T + 3} offset:{6144 + 64}')
        a.e(f'ds_write_b16_d16_hi {pa}, v{T + 3} offset:{6144 + 68}')

    def lsum(self, l, S):
        out = [f'v_pk_add_f32 {vr(S, 2)}, {vr(S, 2)}, {vr(S + 2, 2)}', f'v_add_f32 {l}, v{S}, v{S + 1}']
        for c in ('row_ror:8', 'row_ror:4', 'row_ror:2', 'row_ror:1'):
            out.append(f'v_add_f32_dpp {l}, {l}, {l} {c} {FULL}')
        out.append(f'v_add_f32_dpp {l}, {l}, {l} row_bcast:15 row_mask:0xa bank_mask:0xf')
        out.append(f'v_add_f32_dpp {l}, {l}, {l} row_bcast:31 row_mask:0xc bank_mask:0xf')
        return out

    def ml_write(self, T):
        return [f's_lshl_b32 {t0}, {sV}, 3', f's_add_u32 {t0}, {t0}, {ZML}', f'v_mov_b32 v{T + 2}, 0x30000', f'v_mov_b32 v{T}, {sM}',
                f'v_writelane_b32 v{T + 2}, {t0}, 63\nds_write_b64 v{T + 2}, {vr(T, 2)}']

    def ml_read(self, R, T):
        return [f'v_mov_b32 v{T}, {ZML}', f'ds_read_b128 {vr(R, 4)}, v{T}', f'ds_read_b128 {vr(R + 4, 4)}, v{T} offset:16']

    def ml_scale(self, R, T, F, LW):
        out = [f'v_max3_f32 v{T}, v{R}, v{R + 2}, v{R + 4}', f'v_max_f32 v{T}, v{T}, v{R + 6}']
        out += [f'v_sub_f32 v{R + 2 * w}, v{R + 2 * w}, v{T}' for w in range(4)]
        out += [f'v_sub_f32 v{F}, {sM}, v{T}']
        out += [f'v_exp_f32 v{R + 2 * w}, v{R + 2 * w}' for w in range(4)]
        out += [f'v_exp_f32 v{F}, v{F}', f'v_mul_f32 v{LW}, v{R}, v{R + 1}']
        out += [f'v_fmac_f32 v{LW}, v{R + 2 * w}, v{R + 2 * w + 1}' for w in range(1, 4)]
        out += [f'v_rcp_f32 v{R}, v{LW}', f'v_log_f32 v{LW}, v{LW}', f'v_mul_f32 v{F}, v{F}, v{R}', f'v_add_f32 v{LW}, v{LW}, v{T}']
        return out

    def combine_publish(self):
        a = self.a
        a.e('ds_write2st64_b32 v46, v44, v45 offset0:26 offset1:27')
        a.e(f'buffer_load_dword v16, v47, {WSL}, {oOALg} offen sc1')
        a.tag_vm('lw')
        a.e(f'v_mov_b32 v10, {STG + 6656}')
        a.e('v_lshl_add_u32 v8, v0, 3, v10')
        a.e('v_and_b32 v10, 56, v0')
        a.e('v_lshlrev_b32 v10, 5, v10')
        a.e(f'v_and_or_b32 v10, {vL16}, 16, v10')
        a.e('v_and_b32 v11, 6, v0')
        a.e('v_lshl_or_b32 v10, v11, 1, v10')
        a.e(f's_cmp_lg_u32 {sV}, 0')
        self.H('c1', 0, 12)
        a.e('s_waitcnt lgkmcnt(0)')
        a.e('s_barrier')
        l = a.lab('notw')
        a.e(f's_cbranch_scc1 {l}')
        a.begin_skip()
        for w in range(4):
            a.e(f'ds_read_b64 {vr(20 + 2 * w, 2)}, v8 offset:{w * 8192}')
            a.tag_ds(f'o{w}')
            if w == 0:
                self.H('c2', 0, 12)
        a.wait(ds='o1')
        a.e('v_pk_add_f32 v[20:21], v[20:21], v[22:23]')
        a.wait(ds='o3')
        a.e('v_pk_add_f32 v[24:25], v[24:25], v[26:27]')
        a.e('v_pk_add_f32 v[20:21], v[20:21], v[24:25]')
        a.e('v_cvt_pk_bf16_f32 v20, v20, v21')
        self.end_only(l)
        self.lstore([f'buffer_store_dword v20, v10, {WSL}, {oOApub} offen'])

    def w8(self, lw, t):
        return [f'v_max_f32_dpp {t}, {lw}, {lw} row_ror:4 {FULL}',
                f'v_max_f32_dpp {t}, {t}, {t} row_ror:2 {FULL}',
                f'v_max_f32_dpp {t}, {t}, {t} row_ror:1 {FULL}',
                f'v_sub_f32 {lw}, {lw}, {t}',
                f'v_exp_f32 {lw}, {lw}',
                f'v_add_f32_dpp {t}, {lw}, {lw} row_ror:4 {FULL}',
                f'v_add_f32_dpp {t}, {t}, {t} row_ror:2 {FULL}',
                f'v_add_f32_dpp {t}, {t}, {t} row_ror:1 {FULL}',
                f'v_rcp_f32 {t}, {t}']

    def rot8(self, dst, sh):
        a = self.a
        a.e(f'v_lshrrev_b32 {dst}, 4, v0')
        a.e(f'v_lshl_add_u32 {dst}, {dst}, 1, v0')
        a.e(f'v_and_b32 {dst}, 7, {dst}')
        a.e(f'v_lshlrev_b32 {dst}, {sh}, {dst}')

    def weigh2(self, skip=0, lw='v16', chk=False):
        a = self.a
        w = self.w8(lw, 'v17')
        for x in w[skip:6]:
            a.e(x)
        a.e('v_add_f32 v20, v20, v21')
        a.e('v_add_f32 v22, v22, v23')
        a.e(w[6])
        a.e('v_add_f32 v24, v24, v25')
        a.e('v_add_f32 v26, v26, v27')
        a.e(w[7])
        a.e(f'v_mul_f32_dpp v20, {lw}, v20 row_newbcast:0 {FULL}')
        a.e(f'v_mul_f32_dpp v24, {lw}, v24 row_newbcast:0 {FULL}')
        a.e(f'v_fmac_f32_dpp v20, {lw}, v22 row_newbcast:1 {FULL}')
        a.e(f'v_fmac_f32_dpp v24, {lw}, v26 row_newbcast:1 {FULL}')
        a.e(w[8])
        if chk:
            a.e('v_cmp_u_f32 vcc, v20, v20')
        a.e('v_permlane32_swap_b32 v20, v24')
        a.e('v_add_f32 v20, v20, v24')
        a.e('v_mul_f32 v20, v20, v17')

    def w8n(self, lw, t, W):
        return self.w8(lw, t) + [f'v_mul_f32_dpp v{W}, {lw}, {t} row_newbcast:0 {FULL}', f'v_mul_f32_dpp v{W + 1}, {lw}, {t} row_newbcast:1 {FULL}']

    def weigh2n(self, W):
        a = self.a
        w = vr(W, 2)
        a.e(f'v_pk_mul_f32 v[20:21], v[20:21], {w} op_sel_hi:[1,0]')
        a.e(f'v_pk_fma_f32 v[20:21], v[22:23], {w}, v[20:21] op_sel:[0,1,0] op_sel_hi:[1,1,1]')
        a.e(f'v_pk_mul_f32 v[24:25], v[24:25], {w} op_sel_hi:[1,0]')
        a.e('v_add_f32 v20, v20, v21')
        a.e(f'v_pk_fma_f32 v[24:25], v[26:27], {w}, v[24:25] op_sel:[0,1,0] op_sel_hi:[1,1,1]')
        a.e('v_add_f32 v24, v24, v25')
        a.e('v_cmp_u_f32 vcc, v20, v20')
        a.e('v_permlane32_swap_b32 v20, v24')
        a.e('v_add_f32 v20, v20, v24')

    def outproj(self, isa):
        a = self.a
        if not isa:
            a.e(f's_add_u32 {t4}, {oO}, {L_OB - L_OA}')
        so = oO if isa else t4
        ld = [f'buffer_load_dwordx4 v[8:11], {vL16}, {WSL}, {so} offen sc1',
              f'buffer_load_dwordx4 v[12:15], {vL16}, {WSL}, {so} offen offset:1024 sc1']
        a.e('v_lshrrev_b32 v28, 4, v0')
        a.e('v_bfe_u32 v29, v0, 2, 2')
        a.e('v_lshl_add_u32 v28, v28, 3, v29')
        a.e('v_mul_u32_u24 v28, 48, v28')
        a.e('v_and_b32 v29, 3, v0')
        a.e('v_lshl_add_u32 v28, v29, 3, v28')
        a.e(f'v_add_u32 v28, {sW8}, v28')
        tr = []
        for blk in range(2):
            for tile in range(2):
                for hh in range(2):
                    for half in range(2):
                        off = (64 * blk + 32 * hh + 4 * half) * 48 + 32 * tile
                        tr.append(f'ds_read_b64_tr_b16 {vr(32 + 16 * tile + 8 * blk + 4 * hh + 2 * half, 2)}, v28 offset:{off}')
        a.e(f's_lshl_b32 {t2}, {sV}, 3')
        a.e(f's_add_u32 {t2}, {t2}, {ZO}')
        pre = ['v_and_b32 v18, 15, v0', 'v_lshrrev_b32 v19, 5, v0', 'v_lshl_add_u32 v18, v19, 4, v18', 'v_bfe_u32 v19, v0, 4, 1',
               'v_lshlrev_b32 v19, 2, v19', 'v_lshl_add_u32 v18, v18, 5, v19', f'v_add_u32 v18, {t2}, v18', f'v_mov_b32 v19, {ZO}',
               'v_and_b32 v29, 15, v0', 'v_lshl_add_u32 v19, v29, 6, v19', 'v_lshlrev_b32 v29, 2, v0']
        n1 = self.o.get('tr_pre', 8)
        if isa:
            a.e('s_waitcnt vmcnt(1)')
            a.vmq = []
        a.wait(vm='wo')
        for x in tr[:n1]:
            a.e(x)
        if isa:
            chk, again = a.lab('chk'), a.lab('again')
            a.e(f'{chk}:')
            a.e('v_cmp_eq_u32 vcc, -1, v16')
            a.e('v_mov_b32 v22, v16')
            self.retry_to(again)
            a.ool(f'{again}:\nbuffer_load_dword v16, v47, {WSL}, {oOALg} offen sc1\ns_waitcnt vmcnt(1)\ns_branch {chk}')
        self.sleep('h1' if isa else 'hd')
        for x in ld:
            a.e(x)
        if isa:
            pre = [x for p in zip(self.w8n('v22', 'v17', 30), pre) for x in p]
        self.mix(tr[n1:], pre)
        a.e(f's_add_u32 {t2}, {oYpub}, {G_YA if isa else G_YB}')
        top = a.lab('poll')
        a.e(f'{top}:')
        for x in ld:
            self.H('o0', 0, 20)
            a.e(x)
        for r in range(26, 18, -2):
            a.e(f'v_mov_b64 {vr(r, 2)}, 0')
        self.K(0, 'po', True)
        a.e(f's_waitcnt vmcnt({len(ld)}) lgkmcnt(0)')
        a.e('v_cmp_u_f32 vcc, v8, v12')
        a.e('v_smfmac_f32_16x16x64_bf16 v[20:23], v[8:11], v[32:39], v1')
        a.e('v_smfmac_f32_16x16x64_bf16 v[20:23], v[12:15], v[40:47], v1')
        self.retry_to(top)
        a.e('v_smfmac_f32_16x16x64_bf16 v[24:27], v[8:11], v[48:55], v1')
        a.e('v_smfmac_f32_16x16x64_bf16 v[24:27], v[12:15], v[56:63], v1')
        self.stamp('ogot')
        if isa:
            self.weigh2n(30)
        else:
            a.e('v_pk_add_f32 v[20:21], v[20:21], v[22:23]')
            a.e('v_add_f32 v20, v20, v21')
            a.e('v_cmp_u_f32 vcc, v20, v20')
            a.e('v_pk_add_f32 v[24:25], v[24:25], v[26:27]')
            a.e('v_add_f32 v24, v24, v25')
            a.e('v_permlane32_swap_b32 v20, v24')
            a.e('v_add_f32 v20, v20, v24')
        a.e('ds_write_b32 v18, v20')
        self.H('o1', 0, 24)
        self.retry_to(top)
        a.e(f's_bitcmp0_b32 {sRES}, 0')
        self.H('o2', 0, 24)
        self.bar(1, True)
        l = a.lab('noy')
        a.e(f's_cbranch_scc1 {l}')
        a.begin_skip()
        for i in range(4):
            a.e(f'ds_read_b128 {vr(32 + 4 * i, 4)}, v19 offset:{16 * i}')
            a.tag_ds(f'z{i}')
            if i == 1:
                self.H('o3', 0, 24)
        a.e('s_mov_b32 exec_hi, 0')
        self.K(2)
        self.Wm()
        a.wait(ds='z1')
        a.e('v_pk_add_f32 v[32:33], v[32:33], v[34:35]')
        a.e('v_pk_add_f32 v[36:37], v[36:37], v[38:39]')
        a.e('v_pk_add_f32 v[32:33], v[32:33], v[36:37]')
        a.e('v_add_f32 v32, v32, v33')
        a.wait(ds='z3')
        a.e('v_pk_add_f32 v[40:41], v[40:41], v[42:43]')
        a.e('v_pk_add_f32 v[44:45], v[44:45], v[46:47]')
        a.e('v_pk_add_f32 v[40:41], v[40:41], v[44:45]')
        a.e('v_add_f32 v33, v40, v41')
        a.e('v_pk_add_f32 v[32:33], v[32:33], v[4:5]')
        a.e('v_cvt_pk_bf16_f32 v32, v32, v33')
        a.e(f'buffer_store_dword v32, v29, {WSG}, {t2} offen sc1')
        a.e('s_mov_b32 exec_hi, -1')
        a.end_skip()
        a.e(f'{l}:')
        self.stamp('ypub')

    def qabs(self):
        a = self.a
        a.e('v_and_b32 v36, 7, v0')
        a.e('v_lshlrev_b32 v37, 3, v36')
        self.oob(('v37', 'v37'), (0xc0c0c0c0, 0xc0c0c0c0))
        self.oob(('v33', vL16), (0xf000f000, 0xf000f000))
        a.e(f's_sub_u32 {t0}, {sW8}, {sKV}')
        a.e(f'v_add_u32 v56, {t0}, {vA}')
        for ks in range(1, 4):
            a.e(f'v_xor_b32 v{56 + ks}, {ks << 6}, v56')
        a.e('v_and_b32 v38, 8, v0')
        a.e('v_lshlrev_b32 v38, 3, v38')
        a.e('v_lshl_or_b32 v38, v36, 1, v38')
        a.e(f's_lshl_b32 {t0}, {sV}, 4')
        a.e(f's_add_u32 {t0}, {t0}, {ZQ}')
        a.e(f'v_add_u32 v38, {t0}, v38')
        a.e(f'v_add_u32 v39, {ZQ}, {vL16}')
        if self.o.get('qflag', 1):
            chk, again = a.lab('chk'), a.lab('again')
            a.wait(vm='fl')
            a.e(f'{chk}:')
            a.e('v_cmp_eq_u32 vcc, -1, v10')
            self.retry_to(again)
            a.ool(f'{again}:\nbuffer_load_dword v10, v9, {WSL}, {oOALg} offen offset:{L_FL - L_OAL} sc1\ns_waitcnt vmcnt(1)\ns_branch {chk}')
        self.sleep('hqb')
        top = a.lab('poll')
        a.e(f'{top}:')
        a.e(f'buffer_load_dwordx2 v[34:35], v37, {WSL}, {oSTgB} offen sc1')
        a.tag_vm('st')
        for i in (2, 3, 0, 1):
            a.e(f'buffer_load_dwordx4 {vr(8 + 4 * i, 4)}, v33, {WSL}, {oQgB} offen offset:{i * 1024} sc1')
            a.tag_vm(f'q{i}')
        a.e('s_waitcnt vmcnt(5)')
        for ks in range(4):
            a.e(f'ds_read_b128 {vr(40 + 4 * ks, 4)}, v{56 + ks}')
            a.e(f'v_mov_b64 {vr(24 + 2 * ks, 2)}, 0')
        self.H('q1', 0, 60)
        a.wait(vm='st')
        a.e('v_cmp_u_f32 vcc, v34, v35')
        st = self.stats(34)
        for x in st[:4]:
            a.e(x)
        self.retry_to(top)
        for x in st[4:6]:
            a.e(x)
        a.e('s_waitcnt lgkmcnt(0)')
        a.wait(vm='q2')
        a.e('v_smfmac_f32_16x16x64_bf16 v[28:31], v[16:19], v[40:47], v1')
        for x in st[6:]:
            a.e(x)
        a.wait(vm='q3')
        a.e('v_smfmac_f32_16x16x64_bf16 v[28:31], v[20:23], v[48:55], v1')
        self.H('q2', 0, 60)
        a.wait(vm='q0')
        a.e('v_smfmac_f32_16x16x64_bf16 v[24:27], v[8:11], v[40:47], v1')
        self.K(1, 'qb3', True)
        a.e('v_pk_add_f32 v[28:29], v[28:29], v[30:31]')
        a.e('v_add_f32 v28, v28, v29')
        a.e('v_mul_f32 v28, v28, v35')
        a.e(f's_cmp_lg_u32 {sV}, 0')
        self.K(0, 'qb4', True)
        a.wait(vm='q1')
        a.e('v_smfmac_f32_16x16x64_bf16 v[24:27], v[12:15], v[48:55], v1')
        self.stamp('qgotB', 2)
        a.e('v_pk_add_f32 v[24:25], v[24:25], v[26:27]')
        a.e('v_sub_f32 v24, v24, v28')
        a.e('v_add_f32 v24, v24, v25')
        a.e('v_mul_f32 v25, v24, v34')
        a.e('v_mul_f32 v24, v24, v34')
        a.e('v_cmp_u_f32 vcc, v24, v24')
        a.e('v_permlane32_swap_b32 v24, v25')
        a.e('v_add_f32 v26, v24, v25')
        a.e('v_add_f32 v24, v24, v25')
        a.e('v_permlane16_swap_b32 v24, v26')
        a.e('v_add_f32 v24, v24, v26')
        a.e('v_cvt_pk_bf16_f32 v24, v24, v24')
        a.e('ds_write_b16 v38, v24')
        self.retry_to(top)
        a.e('s_waitcnt lgkmcnt(0)')
        a.e('s_barrier')
        l = a.lab('notw')
        a.e(f's_cbranch_scc1 {l}')
        a.begin_skip()
        a.e('s_mov_b64 exec, 0xff')
        a.e('ds_read_b128 v[24:27], v39')
        a.e('s_waitcnt lgkmcnt(0)')
        a.e(f'buffer_store_dwordx4 v[24:27], {vL16}, {WSG}, {oQApub} offen sc1')
        a.e('s_mov_b64 exec, -1')
        self.end_only(l)
        self.stamp('qapub')
        self.touches('w3', 'v8', 'v9')
        self.resid_track(G_YA, 10, 'v8', f's_cmp_eq_u32 {sRES}, 3')

    def attn_b(self):
        a = self.a
        a.e(f's_mul_i32 {t0}, {sV}, {4096 - 16384}')
        a.e(f's_add_u32 {t0}, {t0}, {CKV}')
        a.e(f'v_add_u32 v56, {t0}, {vA}')
        a.e('v_xor_b32 v57, 64, v56')
        ORD = [(r, ks) for kp in range(2) for r in range(4) for ks in (2 * kp, 2 * kp + 1)]
        ga = ['v_and_b32 v58, 12, v0', 'v_lshlrev_b32 v58, 4, v58', 'v_and_or_b32 v58, v0, 48, v58', 'v_lshlrev_b32 v58, 2, v58',
              f'v_and_or_b32 v58, {vL16}, 48, v58', 'v_lshlrev_b32 v8, 7, v0', 'v_mov_b32 v9, 0']
        for x in ga:
            a.e(x)
        a.e(f'v_add_u32 v59, {STG}, {vL16}')
        a.e('s_barrier')

        self.lstore(self.clear_c1(12, 'v16', 'v17'))
        self.sleep('ha')
        top = a.lab('poll')
        a.e(f'{top}:')
        ld = [f's_mov_b32 m0, {sW8}', 's_mov_b32 exec_hi, 0', f'buffer_load_dword v9, v8, {WSG}, {oQAg} offen sc1', 's_mov_b32 exec_hi, -1']
        for ks in range(4):
            ld.append(f'buffer_load_dwordx4 v58, {WSG}, {oQAg} offen offset:{ks * 1024} sc1 lds')
        for x in ld:
            a.e(x)
        for k in range(8):
            r, ks = ORD[k]
            a.e(f'ds_read_b128 {vr(24 + 4 * k, 4)}, v{56 + (ks & 1)} offset:{r * 16384}')
        a.e('v_xor_b32 v56, 128, v56')
        a.e('v_xor_b32 v57, 128, v57')
        self.k64_addr('v10', None)
        l4 = self.o.get('l4_wo', 0)
        if l4 == 2:
            self.wo_prep(12, 'v15')
        chk, again = a.lab('chk'), a.lab('again')
        a.e(f'{chk}:')
        a.e('s_waitcnt vmcnt(4)')
        a.e('v_cmp_eq_u32 vcc, -1, v9')
        self.retry_to(again)
        a.ool(f'{again}:\n' + '\n'.join(ld) + f'\ns_branch {chk}')
        pol = self.o.get('pol_wuv', '')
        for i in range(1, 4):
            a.e(f's_add_u32 {[t1, t2, t3][i - 1]}, {oWUV}, {i * (16 * 8192 - 1024)}')
        a.e('v_mov_b32 v58, v10')
        half = self.o.get('qa_half', 1)
        if l4 == 2:
            a.e(f's_cmp_eq_u32 {sIT}, 1')
            a.e(f's_cselect_b32 {t0}, {sKV}, 0x30000')
            a.e(f's_cselect_b32 {t4}, {oWO}, {OOB}')
            a.e(f's_cselect_b32 {t5}, {t5}, {OOB}')
            for x in self.wo_lines(BWO, 12, '', t0):
                a.e(x.replace(f', {oWO} ', f', {t4} '))
        ex = 6 if l4 == 2 else 0
        a.e(f's_waitcnt vmcnt({(2 if half else 0) + ex}) lgkmcnt(0)')
        a.e('s_barrier')
        self.stamp('qagot')

        def qread(k):
            r, ks = ORD[k]
            a.e(f'ds_read_b128 {vr(8 + 4 * (k & 3), 4)}, v59 offset:{r * 8192 + ks * 1024}')
            a.tag_ds(f'q{k}')
        for k in range(4):
            qread(k)
        a.e(f's_add_u32 m0, {sW8}, 4096')
        SLOT = [16, 40, 48]

        def tread(e, ad='v57'):
            l = [f'v_xor_b32 {ad}, {CKV | (e << 5)}, {vT}']
            for t in range(4):
                l.append(f'ds_read_b64_tr_b16 {vr(SLOT[e % 3] + 2 * t, 2)}, {ad} offset:{t * 4096}')
            return l
        for k in range(16):
            a.wait(ds=f'q{k}')
            a.e(f'v_mfma_f32_16x16x32_bf16 v[60:63], {vr(24 + 4 * (k & 7), 4)}, {vr(8 + 4 * (k & 3), 4)}, {"v[60:63]" if k else "0"}')
            if k < 8:
                r, ks = ORD[k + 8]
                a.e(f'ds_read_b128 {vr(24 + 4 * k, 4)}, v{56 + (ks & 1)} offset:{r * 16384}')
            if k == 4 and half:
                a.e(f's_waitcnt vmcnt({2 + ex})')
                a.e('s_barrier')
            if k + 4 < 16:
                qread(k + 4)
            if k in (0, 2, 4, 6):
                a.e(f'buffer_load_dwordx4 v58, {WUV}, {[oWUV, t1, t2, t3][k >> 1]} offen offset:{(k >> 1) * 1024} {pol} lds')
            if k == 10:
                a.e('s_barrier')
            if k == 8:
                a.e(f'v_and_b32 v58, 0xf0, {vL16}')
                a.e(f's_lshl_b32 {t0}, {sV}, 2')
            if k == 9:
                a.e(f'v_add_u32 v58, {STG}, v58')
                a.e(f's_add_u32 {t1}, {oC1pub}, 4096')
            if k == 11:
                a.e(f'v_add_u32 v24, {t0}, v58')
                a.e(f's_add_u32 {t2}, {oC1pub}, 8192')
            if k == 12:
                a.e('v_xor_b32 v56, 128, v56')
                a.e(f'v_lshl_add_u32 v25, v0, 3, {sW8}')
            if k == 13:
                t1_ = tread(1)
                a.e(t1_[0]); a.e(t1_[1])
            if k == 14:
                a.e(t1_[2]); a.e(t1_[3])
        a.e(t1_[4])
        t0_, t2_ = tread(0), tread(2)
        a.e(f'v_mov_b32 v26, {STG}')
        a.e('v_lshl_add_u32 v26, v0, 3, v26')
        a.e(f's_add_u32 {t3}, {oC1pub}, 12288')
        for r in range(36, 40):
            a.e(f'v_mov_b32 v{r}, 0x3f803f80')
        a.e('v_max3_f32 v28, v60, v61, v62')
        a.e('v_max_f32 v29, v28, v63')
        a.e('v_max_f32 v28, v28, v63')
        a.e(t0_[0]); a.e(t0_[1])
        a.e('v_permlane32_swap_b32 v28, v29')
        a.e('v_max_f32 v30, v28, v29')
        a.e('v_max_f32 v28, v28, v29')
        a.e(t0_[2]); a.e(t0_[3])
        a.e('v_permlane16_swap_b32 v28, v30')
        a.e('v_max_f32 v28, v28, v30')
        a.e('ds_write_b32 v24, v28')
        a.tag_ds('mw')
        a.e(t0_[4])
        a.e(t2_[0])
        self.H('b0', 1, 32)
        a.e(t2_[1]); a.e(t2_[2]); a.e(t2_[3]); a.e(t2_[4])
        self.H('b1', 1, 32)
        a.wait(ds='mw')
        a.e('s_barrier')
        a.e('ds_read_b128 v[28:31], v58')
        a.tag_ds('mr')
        self.stamp('sbar', 2)
        self.H('b2', 1, 32)
        a.wait(ds='mr')
        a.e('v_max3_f32 v28, v28, v29, v30')
        a.e('v_max_f32 v28, v28, v31')
        a.e('v_pk_add_f32 v[60:61], v[60:61], v[28:29] op_sel_hi:[1,0] neg_lo:[0,1] neg_hi:[0,1]')
        a.e('v_pk_add_f32 v[62:63], v[62:63], v[28:29] op_sel_hi:[1,0] neg_lo:[0,1] neg_hi:[0,1]')
        for r in range(60, 64):
            a.e(f'v_exp_f32 v{r}, v{r}')
        a.e('v_cvt_pk_bf16_f32 v30, v60, v61')
        a.e('v_cvt_pk_bf16_f32 v31, v62, v63')
        a.e('ds_write_b64 v25, v[30:31] offset:1024')
        a.e('v_lshrrev_b32 v61, 4, v0')
        a.e(f'v_and_b32 v60, 0xf0, {vL16}')
        a.e('v_lshl_or_b32 v61, v61, 16, v60')
        a.e('v_mov_b32 v62, v28')
        a.e('v_xor_b32 v57, 64, v56')
        a.e('v_and_b32 v27, 12, v0')
        a.e('v_lshlrev_b32 v27, 4, v27')
        self.H('b3', 1, 32)
        self.lcmp()
        a.e('s_waitcnt lgkmcnt(0)')
        a.e('s_barrier')
        a.e('ds_read2st64_b64 v[8:11], v26 offset0:2 offset1:18')
        a.tag_ds('p0')
        a.e('ds_read2st64_b64 v[12:15], v26 offset0:34 offset1:50')
        a.tag_ds('p1')
        self.stamp('smax', 2)
        a.e('v_and_or_b32 v27, v0, 3, v27')
        a.e('v_lshlrev_b32 v27, 3, v27')
        self.K(2, 'b4', True)
        ACC = [28, 56, 36, 32]
        a.wait(ds='p0')
        a.e('v_cmp_u_f32 vcc, v8, v8')
        a.e(f'v_mfma_f32_16x16x32_bf16 v[28:31], v[8:11], {vr(SLOT[0], 4)}, 0')
        a.e('v_mfma_f32_16x16x32_bf16 v[32:35], v[36:39], v[8:11], 0')
        again = a.lab('again')
        self.retry_to(again)
        a.ool(f'{again}:\n' + '\n'.join(['s_waitcnt lgkmcnt(0)'] + ga) + f'\ns_barrier\ns_branch {top}')
        a.wait(ds='p1')
        a.e('v_mfma_f32_16x16x32_bf16 v[32:35], v[36:39], v[12:15], v[32:35]')
        so = [oC1pub, t1, t2, t3]
        ml = ['s_mov_b64 exec, 0xffff', f'buffer_store_dwordx2 v[62:63], v27, {WSL}, {oMLpub} offen', 's_mov_b64 exec, -1']
        mlat = self.o.get('ml_at', 2)

        def pack(q):
            d0, d1 = ACC[(2 * q) & 3], ACC[(2 * q + 1) & 3]
            return [f'v_cvt_pk_bf16_f32 v{24 + r}, v{d0 + r}, v{d1 + r}' for r in range(4)]

        def put(q):
            self.lstore([f'buffer_store_dwordx4 v[24:27], v61, {WS}, {so[q]} offen'] + (ml if q == mlat else []))
        F = {e: [[], []] for e in range(8)}
        early = self.o.get('ml_early', 1)
        mlat = -1
        F[1][1] = ['v_mov_b32 v63, v32']
        F[self.o.get('ml_e', 2)][1] += ['ML']
        F[3][0] = pack(0)[:2]
        F[3][1] = pack(0)[2:]
        F[5][0] = pack(1)[:2]
        F[5][1] = pack(1)[2:]
        F[6][0] = ['v_and_b32 v60, 3, v0', 'v_lshlrev_b32 v60, 6, v60']
        F[6][1] = ['v_and_or_b32 v60, v0, 60, v60', 'v_lshlrev_b32 v60, 1, v60']
        F[7][0] = pack(2)
        for e in range(8):
            a.wait(ds=f't{e}')
            d = vr(ACC[e & 3], 4)
            s = SLOT[e % 3]
            nx = tread(e + 3, 'v60') if e + 3 < 8 else []
            if nx:
                a.e(nx[0])
            if e:
                a.e(f'v_mfma_f32_16x16x32_bf16 {d}, v[8:11], {vr(s, 4)}, 0')
            if e in (4, 6):
                put((e - 4) // 2)
            for x in nx[1:3]:
                a.e(x)
            for x in F[e][0]:
                a.e(x)
            a.e(f'v_mfma_f32_16x16x32_bf16 {d}, v[12:15], {vr(s + 4, 4)}, {d}')
            for x in nx[3:]:
                a.e(x)
            if nx:
                a.tag_ds(f't{e + 3}')
            for x in F[e][1]:
                if x == 'ML':
                    self.lstore(ml)
                else:
                    a.e(x)
            if e == 7:
                put(2)
        if early == 1:
            a.e(f'buffer_load_dwordx2 v[22:23], v60, {WSL}, {oMLg} offen sc1')
            a.tag_vm('ml0')
        for x in pack(3):
            a.e(x)
        put(3)
        if early == 2:
            a.e(f'buffer_load_dwordx2 v[22:23], v60, {WSL}, {oMLg} offen sc1')
            a.tag_vm('ml0')
        self.stamp('c1pub')

    def red(self):
        a = self.a
        ld = f'buffer_load_dwordx2 v[22:23], v60, {WSL}, {oMLg} offen sc1'
        a.e('v_and_b32 v45, 56, v0')
        a.e('v_lshlrev_b32 v45, 1, v45')
        a.e('v_and_or_b32 v45, v0, 6, v45')
        a.e('v_lshlrev_b32 v45, 1, v45')
        a.e(f'v_and_or_b32 v45, {vL16}, 16, v45')
        a.e('v_lshlrev_b32 v46, 2, v0')
        for r in range(28, 36, 2):
            a.e(f'v_mov_b64 {vr(r, 2)}, 0')
        ne = self.o.get('wo_e', 0)
        if ne:
            self.wo_prep(41, 'v39')
            a.e('s_barrier')
        cl = [f'buffer_load_dwordx4 {vr(8 + 4 * i, 4)}, {vL16}, {WS}, {oC1g} offen offset:{i * 1024} sc1' for i in range(4)]
        ch = [f'v_max_f32_dpp v36, v22, v22 quad_perm:[1,0,3,2] {FULL}',
              f'v_max_f32_dpp v37, v36, v36 quad_perm:[2,3,0,1] {FULL}', f'v_max_f32_dpp v36, v36, v36 quad_perm:[2,3,0,1] {FULL}',
              'v_permlane32_swap_b32 v36, v37', 'v_max_f32 v38, v36, v37', 'v_max_f32 v36, v36, v37',
              'v_permlane16_swap_b32 v36, v38', 'v_max_f32 v36, v36, v38', 'v_sub_f32 v24, v24, v36', 'v_exp_f32 v24, v24',
              'v_mul_f32 v25, v25, v24', f'v_add_f32_dpp v25, v25, v25 quad_perm:[1,0,3,2] {FULL}',
              f'v_add_f32_dpp v37, v25, v25 quad_perm:[2,3,0,1] {FULL}', f'v_add_f32_dpp v25, v25, v25 quad_perm:[2,3,0,1] {FULL}',
              'v_permlane32_swap_b32 v25, v37', 'v_add_f32 v38, v25, v37', 'v_add_f32 v25, v25, v37',
              'v_permlane16_swap_b32 v25, v38', 'v_add_f32 v25, v25, v38', 'v_rcp_f32 v38, v25', 'v_log_f32 v37, v25',
              'v_mul_f32 v24, v24, v38', 'v_add_f32 v37, v37, v36', 'v_cvt_pk_bf16_f32 v26, v24, 0', 'v_cvt_pk_bf16_f32 v27, 0, v24']
        chk, again = a.lab('chk'), a.lab('again')
        a.wait(vm='ml0')
        a.e(f'{chk}:')
        a.e('v_cmp_u_f32 vcc, v22, v23')
        a.e(ch[0])
        a.e('v_mov_b64 v[24:25], v[22:23]')
        self.retry_to(again)
        a.ool(f'{again}:\n{ld}\ns_waitcnt vmcnt(1)\ns_branch {chk}')
        self.stamp('mlgot', 2)
        npre = self.o.get('red_pre', 8)
        for x in ch[1:npre]:
            a.e(x)
        self.sleep('hc1')
        for i, x in enumerate(cl):
            a.e(x)
            a.tag_vm(f'c{i}')
        for x in self.wo_group(BWO, 41, 0, ne):
            a.e(x)
        for x in ch[max(npre, 1):]:
            a.e(x)
        lwe = self.o.get('lw_early', 1)
        lws = ['s_mov_b32 exec_hi, 0', f'buffer_store_dword v37, v46, {WSG}, {oC2Lpub} offen sc1', 's_mov_b32 exec_hi, -1']
        if lwe:
            for x in lws:
                a.e(x)
        self.H('r1', 0, 48)
        top, again = a.lab('acc'), a.lab('again')
        a.e(f'{top}:')
        for i in range(4):
            if i:
                self.K(0, 'rd', True)
            a.wait(vm=f'c{i}')
            for d in range(4):
                a.e(f'v_dot2c_f32_bf16_dpp v{28 + 2 * d}, v26, v{8 + 4 * i + d} row_newbcast:{4 * d + i} {FULL}')
                a.e(f'v_dot2c_f32_bf16_dpp v{29 + 2 * d}, v27, v{8 + 4 * i + d} row_newbcast:{4 * d + i} {FULL}')
        for i in range(4):
            a.e(f'v_permlane32_swap_b32 v{28 + i}, v{32 + i}')
        a.e('v_pk_add_f32 v[28:29], v[28:29], v[32:33]')
        a.e('v_pk_add_f32 v[30:31], v[30:31], v[34:35]')
        a.e('v_cmp_u_f32 vcc, v28, v30')
        a.e('v_permlane16_swap_b32 v28, v30')
        a.e('v_permlane16_swap_b32 v29, v31')
        a.e('v_pk_add_f32 v[28:29], v[28:29], v[30:31]')
        a.e('v_cvt_pk_bf16_f32 v28, v28, v29')
        self.retry_to(again)
        a.ool(f'{again}:\n' + '\n'.join(cl) + '\n' + '\n'.join(f'v_mov_b64 {vr(r, 2)}, 0' for r in range(28, 36, 2)) + f'\ns_waitcnt vmcnt(0)\ns_branch {top}')
        a.e(f'buffer_store_dword v28, v45, {WSG}, {oC2pub} offen sc1')
        if not lwe:
            for x in lws:
                a.e(x)
        self.stamp('c2pub')
        a.e('v_and_b32 v40, 4, v0')
        a.e('v_lshlrev_b32 v40, 4, v40')
        a.e('v_and_or_b32 v40, v0, 48, v40')
        a.e('v_lshlrev_b32 v40, 1, v40')
        a.e('v_and_or_b32 v40, v0, 11, v40')
        a.e(f'v_lshl_add_u32 v40, v40, 3, {sW8}')
        for tau in range(2):
            for gam in range(2):
                for tt in range(2):
                    a.e(f'ds_read_b64_tr_b16 {vr(48 + 8 * tau + 4 * gam + 2 * tt, 2)}, v40 offset:{4096 + (32 * gam + 2 * tt) * 64 + 32 * tau}')
        if not ne:
            self.wo_prep(41, 'v39')
        if self.o.get('wo_pre', 6) > 4:
            a.e('s_waitcnt lgkmcnt(0)')
        a.e('s_barrier')
        if self.o.get('x_wo'):
            a.e('s_waitcnt vmcnt(0)')
            self.stamp('x_ack')

        def clear2():
            b = self.a
            for r in range(8, 12):
                b.e(f'v_mov_b32 v{r}, -1')
            self.sums(t2, [(sJ, 4 * 448), (sV, 448)], L_IT)
            b.e('s_mov_b64 exec, 0xfffffff')
            self.lstore([f'buffer_store_dwordx4 v[8:11], {vL16}, {WSL}, {t2} offen'])
            b.e('s_mov_b64 exec, -1')
        npre = self.o.get('wo_pre', 6)
        for x in self.wo_group(BWO, 41, ne, npre):
            a.e(x)
        if npre == 6:
            a.tag_vm('wo')
        self.ool_if(f's_cmp_eq_u32 {sIT}, 0', clear2, lambda: self.sleep('hc4'))
        self.wol = self.wo_group(BWO, 41, npre, 6)
        if self.o.get('x_wo'):
            self.stamp('x_iss')
            a.e('s_waitcnt vmcnt(0)')
            self.stamp('x_land')

    def wb(self, where):
        a = self.a
        if self.o.get('wb') != where:
            return
        l = a.lab('nowb')
        self.sums(t1, [(sJ, 8), (sV, 2), (sIT, 1)])
        a.e(f's_cmp_lg_u32 {t1}, {24 * 8 + 1}')
        a.e(f's_cbranch_scc1 {l}')
        a.begin_skip()
        a.e('buffer_wbl2 sc1')
        self.end_only(l)

    def uv(self):
        a = self.a
        a.e('v_lshrrev_b32 v28, 1, v0')
        a.e('v_and_or_b32 v28, v28, 16, 0')
        a.e('v_and_or_b32 v28, v0, 14, v28')
        a.e('v_lshlrev_b32 v28, 6, v28')
        a.e('v_and_or_b32 v28, v0, 16, v28')
        a.e('v_lshlrev_b32 v28, 1, v28')
        a.e(f'v_and_or_b32 v28, {vL16}, 16, v28')
        self.rot8('v29', 7)
        self.pos_bytes('v30', None)
        a.e('v_and_b32 v31, 32, v0')
        a.e('v_lshl_or_b32 v30, v31, 3, v30')
        self.touches('w5', 'v12', 'v13')
        a.e('s_waitcnt lgkmcnt(0)')
        self.sleep('hc2')
        ld = [f'buffer_load_dword v16, v29, {WSG}, {oC2Lg} offen sc1',
              f'buffer_load_dwordx4 v[8:11], v28, {WSG}, {oC2g} offen sc1']
        z = [f'v_mov_b64 {vr(r, 2)}, 0' for r in range(20, 28, 2)]
        lwe = self.o.get('lw_early', 1)
        a.e(ld[0])
        a.tag_vm('lw')
        if lwe:
            self.sleep('hc2b')
        a.e(ld[1])
        a.tag_vm('c2')
        for x in z:
            a.e(x)
        for x in self.wol:
            a.e(x)
        if self.wol:
            a.tag_vm('wo')
        top, again = a.lab('chk'), a.lab('again')
        w = self.w8('v16', 'v17')
        if lwe:
            self.H('u0', 0, 12)
            a.wait(vm='lw')
            a.e(f'{top}:')
            for x in self.w8n('v16', 'v17', 18):
                a.e(x)
            self.H('u1', 0, 12)
            a.wait(vm='c2')
            a.e('v_smfmac_f32_16x16x64_bf16 v[20:23], v[8:11], v[48:55], v1')
            a.e('v_cmp_u_f32 vcc, v8, v18')
            a.e('v_smfmac_f32_16x16x64_bf16 v[24:27], v[8:11], v[56:63], v1')
            self.retry_to(again)
            self.stamp('c2got', 2)
            self.weigh2n(18)
        else:
            a.wait(vm='c2')
            a.e(f'{top}:')
            a.e('v_smfmac_f32_16x16x64_bf16 v[20:23], v[8:11], v[48:55], v1')
            self.maxchain('v18', [8, 9, 10, 11, 16], True)
            a.e('v_smfmac_f32_16x16x64_bf16 v[24:27], v[8:11], v[56:63], v1')
            self.poll_cmp('v18')
            a.e(w[0])
            a.e(w[1])
            a.e(w[2])
            self.retry_to(again)
            self.stamp('c2got', 2)
            self.weigh2(3)
        a.ool(f'{again}:\n' + '\n'.join(ld + z) + f'\ns_waitcnt vmcnt(0)\ns_branch {top}')
        a.e('v_mov_b32 v21, v20')
        self.lcmp()
        a.e('v_permlane16_swap_b32 v20, v21')
        a.e('v_add_f32 v20, v20, v21')
        if lwe:
            self.retry_to(again)
        a.e(f'v_mov_b32_dpp v21, v20 quad_perm:[1,0,3,2] {FULL}')
        a.e('v_cvt_pk_bf16_f32 v20, v20, v21')
        self.lstore(['s_mov_b32 exec_lo, 0x5555', 's_mov_b32 exec_hi, 0x5555',
                     f'buffer_store_dword v20, v30, {WSL}, {oOBpub} offen', 's_mov_b64 exec, -1'])
        self.stamp('dpub')
        self.wb('dpub')

    def attn_a3(self):
        a = self.a
        self.qa_addr(44)
        self.sleep('hqa')
        ld = self.qa_loads(8, 12, 44)
        for x in ld:
            a.e(x)
        a.e('v_mov_b64 v[20:21], 0')
        a.e(f'v_lshl_add_u32 v17, v0, 3, {sW8}')
        a.e('ds_write_b64 v17, v[20:21] offset:6656')
        a.e(f's_add_u32 {t0}, {sW8}, 6656')
        a.e(f'v_mov_b32 v17, {t0}')
        a.e('s_mov_b32 s22, 0x000f000f')
        a.e('s_mov_b32 s23, 0x000f000f')
        for c in range(4):
            a.e(f'v_cndmask_b32 v{56 + c}, v17, v46, s[22:23]')
            a.e('s_lshl_b64 s[22:23], s[22:23], 4')
        self.p_addr('v60', 'v17')
        self.wo_prep(61, 'v17')
        for r in (16, 24, 28):
            a.e(f'v_mov_b64 {vr(r, 2)}, 0')
        self.pipe_poll(ld, 'v38', [8, 12], 'pq', ['v_mov_b64 v[36:37], v[12:13]', 'v_mov_b64 v[32:33], v[8:9]', 'v_mov_b64 v[34:35], v[10:11]'])
        top = self.ptop
        self.stamp('qgotA', 2)
        self.qa_finish(32, 36, 44, None, True)
        a.e('v_lshlrev_b32 v33, 16, v32')
        a.e('v_cmp_u_f32 vcc, v33, v33')
        a.e(f's_sub_u32 {t2}, {sW8}, {ZQ - 6144}')
        a.e(f's_cmp_eq_u32 {sV}, 0')
        a.e(f's_cselect_b32 {t3}, {oOALpub}, {OOB}')
        a.e('s_mov_b32 s22, 0x000f000f')
        a.e('s_mov_b32 s23, 0x000f000f')
        self.H('a1', 1, 52)
        self.retry_to(top)
        a.e('s_waitcnt vmcnt(0) lgkmcnt(0)')
        a.e('s_barrier')
        self.H('a2', 1, 8)

        def qrd(c, b):
            a.e(f'ds_read_b128 {vr(32 + 8 * (c % 3) + 4 * b, 4)}, v{56 + c} offset:{128 * b}')
            a.tag_ds(f'q{c}{b}')
        for c in range(3):
            qrd(c, 0)
            qrd(c, 1)
        if self.o.get('wo3', 0):
            self.touch('wo', 'v15', None)
        self.stamp('qrdy')
        ds, va = [], []
        for e in range(8):
            for t in range(4):
                ds.append((e, f'ds_read_b64_tr_b16 a[{8 * e + 2 * t}:{8 * e + 2 * t + 1}], v{14 + (e & 1)} offset:{t * 4096}'))
        wl = self.wo_lines(WO, 61, self.o.get('pol_wo3', ''))
        other = {2: wl[0], 3: wl[1], 7: wl[2], 11: wl[3], 13: wl[4], 15: wl[5], 19: wl[6], 23: wl[7],
                 5: 'v_mov_b64 v[8:9], 0', 6: 'v_mov_b64 v[12:13], 0', 8: f'v_mov_b32 v10, {t2}'}
        wo3 = self.o.get('wo3', 0)
        late = {}
        if wo3:
            for k in (2, 3, 7, 11, 13, 15, 19, 23):
                del other[k]
            pos = {1: (0, 1, 4, 7, 9, 10, 13, 16), 2: (8, 9, 12, 15, 17, 18, 21, 24)}[wo3]
            late = dict(zip(pos, wl))
        for e, k in enumerate((4, 10, 14, 18, 22, 26, 30), 1):
            other[k] = f'v_xor_b32 v{14 + (e & 1)}, {e << 5}, {vT}'
        pc = []
        for c in range(4):
            pc.append('v_cndmask_b32 v11, 0, v10, s[22:23]')
            pc.append(f'v_add_u32 v{56 + c}, v{56 + c}, v11')
            if c < 3:
                pc.append('s_lshl_b64 s[22:23], s[22:23], 4')
        a.e(f'v_mov_b32 v14, {vT}')
        for k in range(32):
            c, r, b = k >> 3, (k >> 1) & 3, k & 1
            if r == 0:
                a.wait(ds=f'q{c}{b}')
            t = k >> 1
            a.e(f'v_smfmac_f32_16x16x64_bf16 {vr(16 + 4 * r, 4)}, {vr(32 + 8 * (c % 3) + 4 * b, 4)}, a[{16 * t + 8 * b}:{16 * t + 8 * b + 7}], v1')
            if k in (8, 9):
                qrd(3, k - 8)
            elif k >= 1:
                a.e(ds.pop(0)[1])
            if k in other:
                a.e(other[k])
        for r in range(4):
            if ds:
                a.e(ds.pop(0)[1])
            a.e(f'v_add_f32 v{16 + r}, v{16 + 4 * r}, v{17 + 4 * r}')
        self.softmax_a(16, 20, 'v60', pc)

        def prd(j):
            a.e(f'ds_read_b128 {vr(32 + 4 * (j % 6), 4)}, v{56 + (j >> 2)} offset:{128 * (j & 3)}')
            a.tag_ds(f'p{j}')
        for j in range(6):
            if j == 0:
                self.H('a3', 1, 24)
            prd(j)
        self.stamp('smaxA')
        ls = self.lsum('v21', 16)
        for x in ls[:4]:
            a.e(x)
        fill = [[x] for x in ls[4:]] + [self.ml_write(20)[:2], self.ml_write(20)[2:4], self.ml_write(20)[4:], [], [], ['BAR'],
                                        self.ml_read(24, 22)[:2], ['MLR'], [], [], []]
        sc = self.ml_scale(24, 22, 18, 19)
        fill += [['MLW'] + sc[:1]] + [sc[1:3], sc[3:5], sc[5:7]] + [[x] for x in sc[7:12]] + [sc[12:14], sc[14:16], sc[16:17], sc[17:18], sc[18:20], ['LW']]
        for j in range(16):
            c, U = j >> 2, j & 3
            for hf in range(2):
                e = c + 4 * hf
                if hf == 0:
                    a.wait(ds=f'p{j}')
                B = vr(64 + 64 * U + 8 * e, 8) if U < 3 else f'a[{8 * e}:{8 * e + 7}]'
                a.e(f'v_smfmac_f32_16x16x64_bf16 {vr(8 + 4 * hf, 4)}, {vr(32 + 4 * (j % 6), 4)}, {B}, v1')
                if 2 * j + hf in late:
                    a.e(late[2 * j + hf])
                if hf == 1 and j + 6 < 16:
                    prd(j + 6)
                for x in (fill.pop(0) if fill else []):
                    if x == 'BAR':
                        a.wait(ds='mlw')
                        a.e('s_barrier')
                    elif x == 'MLR':
                        a.e(self.ml_read(24, 22)[2])
                        a.tag_ds('mlr')
                    elif x == 'LW':
                        self.lstore([f'buffer_store_dword v19, off, {WSL}, {t3}'])
                    elif x == 'MLW':
                        a.wait(ds='mlr')
                    else:
                        a.e(x)
                        if 'ds_write_b64' in x:
                            a.tag_ds('mlw')
        assert not fill
        a.e(f'v_lshl_add_u32 v46, v0, 2, {sW8}')
        self.rot8('v47', 2)
        a.e('v_add_f32 v44, v8, v9')
        a.e('v_add_f32 v45, v12, v13')
        a.e('v_pk_mul_f32 v[44:45], v[44:45], v[18:19] op_sel_hi:[1,0]')
        self.stamp('pvA')

    def dma_tile(self, t):
        a = self.a
        pol = self.o.get('pol_kv', 'nt')
        srd = K_ if t < 16 else V_
        a.e(f's_add_u32 m0, {sKV}, {(t & 3) * 4096}')
        a.e(f's_add_u32 {t0}, {sKG}, {(t & 15) * 16384}')
        for q in range(4):
            a.e(f'buffer_load_dwordx4 v{8 + q}, {srd}, {t0} offen offset:{q * 1024} {pol} lds')
        a.tag_vm(f'tile{t}')

    def make_items(self):
        o = self.o
        pol, polc = o.get('pol_kv', 'nt'), o.get('pol_c', '')
        extra = {}
        c0, cs = o.get('ckv_from', 44), o.get('ckv_step', 2)
        for i in range(16):
            t, q = i >> 2, i & 3
            extra.setdefault(c0 + cs * i, []).append((f'c{i}', [
                f's_add_u32 m0, {sKV}, {CKV + i * 1024}', f'v_add_u32 v238, v{8 + q}, v254', f's_add_u32 {t0}, s1, {(16 * t + 4 * q) * 1024}',
                f'buffer_load_dwordx4 v238, {CK}, {t0} offen {polc} lds']))
        w0, wstep = o.get('wo_from', 52), o.get('wo_step', 4)
        for k in range(6):
            h, i = divmod(k, 3)
            extra.setdefault(w0 + wstep * k, []).append((f'w{k}', [
                f's_add_u32 m0, {sW8}, {h * 3072}', f's_add_u32 {t0}, {oWO}, {h * 64 * 1152}',
                f'buffer_load_dwordx4 v{(246, 247, 255)[i]}, {WO}, {t0} offen offset:{i * 1024} lds']))
        items = []
        self.extra = {tag: lines for v in extra.values() for tag, lines in v}
        for d in range(128):
            t, q = d >> 2, d & 3
            items.append((f'tile{t}' if q == 3 else f'd{d}', [
                f's_add_u32 m0, {sKV}, {(t & 3) * 4096}', f's_add_u32 {t0}, {sKG}, {(t & 15) * 16384}',
                f'buffer_load_dwordx4 v{8 + q}, {K_ if t < 16 else V_}, {t0} offen offset:{q * 1024} {pol} lds']))
        self.items = items
        self.pos = {tag: k for k, (tag, _) in enumerate(items)}
        self.issued = 0
        self.done_tile = -1
        self.lnq_done = False

    def issue_to(self, n):
        a = self.a
        prev = None
        lim = self.pos[f'tile{min(self.done_tile + 4, 31)}'] + 1
        while self.issued < min(n, lim):
            tag, lines = self.items[self.issued]
            if tag[0] == 'w':
                assert self.lnq_done, 'w_o staged before the q weights were read'
            assert tag[0] in 'td' or 2 < self.done_tile < 26
            for x in (lines if lines[:2] != prev else lines[2:]):
                a.e(x)
            a.tag_vm(tag)
            prev = lines[:2]
            self.issued += 1

    def prologue(self):
        a = self.a
        self.make_items()
        a.e('s_cmp_ge_u32 s2, 256')
        a.e('s_cbranch_scc1 L_end')
        if self.o.get('diag_fixed'):
            a.e('s_memrealtime s[100:101]')
        if self.o.get('stamps'):
            a.e('s_memtime s[98:99]' if self.o.get('clk') else 's_memrealtime s[98:99]')
        a.e('s_load_dwordx2 s[4:5], s[0:1], 8')
        ptrs = [(V_, 16), (CK, 48), (DBG, 96), (XIN, 0), (WQ, 24), (WO, 32), (BWQ, 56), (WUK, 64), (WUV, 72), (BWO, 80),
                (WS, 104), (OUT, 88)]
        sizes = {K_: 1 << 26, V_: 1 << 26, CK: 1 << 23, DBG: 256, XIN: 1152, WQ: 576 * 8192, WO: 4096 * 1152,
                 BWQ: 576 * 8192, WUK: 1 << 22, WUV: 1 << 22, BWO: 4096 * 1152, WS: WS_SIZE, WSL: L_X, WSG: G_IT, OUT: 1152}
        base = lambda s: int(s[2:s.index(':')])
        a.e('v_lshrrev_b32 v1, 6, v0')
        a.e('v_mov_b32 v63, v0')
        a.e(f'v_readfirstlane_b32 {sV}, v1')
        a.e('v_and_b32 v0, 63, v0')
        a.e(f's_and_b32 {sX}, s2, 7')
        a.e(f's_lshr_b32 {sJ}, s2, 3')
        a.e(f's_lshl_b32 {sKV}, {sV}, 14')
        self.sums(sKG, [(sX, 1 << 23), (sJ, 1 << 18), (sV, 1 << 12)])
        a.e(f'v_lshlrev_b32 {vL16}, 4, v0')
        a.e('v_and_b32 v12, 48, v0')
        a.e('v_lshlrev_b32 v12, 1, v12')
        a.e(f'v_xor_b32 v8, v12, {vL16}')
        for q in range(1, 4):
            a.e(f'v_xor_b32 v{8 + q}, {TBL[q] << 4}, v8')
        a.e(f's_mov_b32 s6, {sizes[K_]}')
        a.e('s_mov_b32 s7, 0x20000')
        a.e('s_waitcnt lgkmcnt(0)')
        for t in range(4):
            self.issue_to(min(4 * t + 4, self.o.get('win0', 8)))
            for srd, off in ptrs[3 * t:3 * t + 3]:
                b = base(srd)
                a.e(f's_load_dwordx2 s[{b}:{b + 1}], s[0:1], {off}')
        for srd, n in sizes.items():
            if srd != K_:
                a.e(f's_mov_b32 s{base(srd) + 2}, {n}')
                a.e(f's_mov_b32 s{base(srd) + 3}, 0x20000')
        a.e(f's_getpc_b64 s[82:83]')
        a.e('L_pc:')
        a.e('v_lshlrev_b32 v62, 7, v63')
        a.e(f'v_min_u32 v62, L_codeend-L_pc, v62')
        a.e('global_load_dword v61, v62, s[82:83]')
        a.e(f's_lshr_b32 {t1}, {sJ}, 3')
        self.sums(sH, [(sX, 4), (t1, 1)])
        a.e(f's_and_b32 {sS}, {sJ}, 7')
        a.e(f's_mov_b32 {sIT}, 0')
        a.e(f's_mov_b32 {sPOLL}, 0')
        a.e(f's_mov_b32 {sST}, 0')
        self.sums(sW8, [(sV, 8192)], STG)
        a.e('s_mov_b32 s84, 0x00ff00ff')
        a.e('s_mov_b32 s85, 0x00ff00ff')
        a.e(f's_mul_i32 {t2}, {sJ}, 43')
        a.e(f's_lshr_b32 {t2}, {t2}, 8')
        a.e(f's_mul_i32 {t3}, {t2}, 6')
        a.e(f's_sub_u32 {t3}, {sJ}, {t3}')
        self.sums(oY, [(t3, 512), (sV, 128)])
        self.sums(oQA, [(t2, 4096), (sV, 1024), (t3, 128)], L_QA)
        self.sums(oQB, [(t2, 4096), (sV, 512), (t3, 32)], L_QB)
        self.sums(oST, [(t2, 64), (t3, 8)], L_STA)
        self.sums(oWQ, [(t3, 96 * 8192), (sV, 24 * 8192), (sX, 1024), (t2, 256)])
        a.e(f's_cmp_eq_u32 {sV}, 0')
        a.e(f's_cselect_b32 {oST}, {oST}, {OOB}')
        a.e(f's_cmp_lt_u32 {sJ}, 24')
        for r in (oQA, oST, oWQ):
            a.e(f's_cselect_b32 {r}, {r}, {OOB}')
        self.sums(oQgA, [(t1, 4096), (sV, 1024)], L_QA)
        self.sums(oSTgA, [(t1, 64)], L_STA)
        self.sums(oWUV, [(sS, 64 * 8192), (sH, 256), (sV, 64)])
        self.sums(oWUK, [(sJ, 16 * 8192), (sX, 1024), (sV, 256)])
        self.sums(oWO, [(sX, 512 * 1152), (sV, 128 * 1152), (sJ, 48)])
        self.sums(oYpub, [(sX, 3072), (sJ, 128)])
        if self.o.get('asym'):
            a.e(f's_getreg_b32 {t0}, hwreg(HW_REG_XCC_ID, 0, 3)')
            a.e(f's_lshr_b32 {t0}, {self.o["asym"][0]}, {t0}')
            a.e(f's_lshl_b32 {t0}, {t0}, 31')
            a.e(f's_or_b32 {oYpub}, {oYpub}, {t0}')
        a.e(f's_cmp_lt_u32 {sJ}, 24')
        a.e(f's_cselect_b32 {oWO}, {oWO}, {OOB}')
        a.e(f's_cselect_b32 {sRES}, 1, 0')
        a.e(f's_cmp_eq_u32 {sV}, 3')
        a.e(f's_cselect_b32 {sRES}, {sRES}, 0')
        a.e(f's_mul_i32 {t0}, {sRES}, 3')
        a.e(f's_cmp_eq_u32 {sX}, 0')
        a.e(f's_cselect_b32 {sRES}, {t0}, {sRES}')
        if self.o.get('stamps'):
            a.e('v_mov_b32 v7, 0')
            a.e('s_mov_b32 s97, 8')
        a.e('v_and_b32 v14, 1, v0')
        a.e('v_mul_u32_u24 v1, 0xaaaa, v14')
        a.e('v_add_u32 v1, 0x4444, v1')

        def tbl(dst, x, tmp):
            a.e(f'v_lshrrev_b32 {tmp}, 1, {x}')
            a.e(f'v_xor_b32 {dst}, {x}, {tmp}')
            a.e(f'v_and_b32 {dst}, 1, {dst}')
            a.e(f'v_lshl_or_b32 {dst}, {dst}, 3, {tmp}')
        a.e('v_lshrrev_b32 v12, 4, v0')
        a.e('v_and_b32 v13, 15, v0')
        a.e('v_lshrrev_b32 v15, 2, v13')
        tbl('v16', 'v15', 'v17')
        a.e('v_and_b32 v17, 3, v13')
        a.e('v_lshlrev_b32 v18, 1, v17')
        a.e('v_xor_b32 v16, v16, v18')
        a.e('v_xor_b32 v16, v16, v12')
        a.e('v_lshlrev_b32 v16, 4, v16')
        a.e(f'v_lshl_or_b32 {vA}, v13, 8, v16')
        a.e(f'v_add_u32 {vA}, {sKV}, {vA}')
        tbl('v16', 'v12', 'v18')
        a.e('v_lshlrev_b32 v18, 1, v15')
        a.e('v_xor_b32 v16, v16, v18')
        a.e('v_lshrrev_b32 v18, 1, v17')
        a.e('v_xor_b32 v16, v16, v18')
        a.e('v_lshlrev_b32 v16, 4, v16')
        a.e('v_lshrrev_b32 v18, 2, v0')
        a.e('v_lshl_or_b32 v16, v18, 8, v16')
        a.e(f'v_lshl_or_b32 {vT}, v14, 3, v16')
        a.e(f'v_add_u32 {vT}, {sKV}, {vT}')
        a.e('s_waitcnt lgkmcnt(0)')
        self.stamp('start')
        w, l, g = base(WS), base(WSL), base(WSG)
        a.e(f's_lshl_b32 {t0}, {sX}, 17')
        a.e(f's_add_u32 s{l}, s{w}, {t0}')
        a.e(f's_addc_u32 s{l + 1}, s{w + 1}, 0')
        a.e(f's_add_u32 s{g}, s{w}, {GB}')
        a.e(f's_addc_u32 s{g + 1}, s{w + 1}, 0')
        self.dma_wq(WQ, 'v56', 'v57')
        self.lnq_rows()
        a.e(f's_mul_i32 {t0}, {t3}, 192')
        a.e('v_mul_u32_u24 v58, 3, v0')
        a.e('s_mov_b32 exec_lo, 0x00010001')
        a.e('s_mov_b32 exec_hi, 0x00010001')
        for rho in range(3):
            a.e(f'buffer_load_dwordx4 {vr(16 + 4 * rho, 4)}, v58, {XIN}, {t0} offen offset:{16 * rho}')
        a.e('s_mov_b64 exec, -1')
        a.e('v_lshlrev_b32 v58, 2, v0')
        a.e(f's_mul_i32 {t0}, {sJ}, 48')
        a.e(f's_cmp_eq_u32 {sRES}, 3')
        a.e(f's_cselect_b32 {t0}, {t0}, {OOB}')
        a.e(f'buffer_load_dword v5, v58, {XIN}, {t0} offen')
        for r in range(56, 60):
            a.e(f'v_mov_b32 v{r}, -1')
        self.sums(t4, [(sX, L_X), (sJ, 2560), (sV, 640)])
        self.sums(t1, [(sX, 128 * 384), (sJ, 4 * 384), (sV, 384)], GB)
        a.e('s_mov_b32 exec_hi, 0xff')
        a.e(f'buffer_store_dwordx4 v[56:59], {vL16}, {WS}, {t4} offen sc1')
        a.e('s_mov_b64 exec, 0xffffff')
        a.e(f'buffer_store_dwordx4 v[56:59], {vL16}, {WS}, {t1} offen sc1')
        a.e('s_mov_b64 exec, -1')
        a.tag_vm('clr')
        for ks in range(4):
            a.e(f'v_xor_b32 v{12 + ks}, {ks << 6}, {vA}')

    def late_scalars(self):
        a = self.a
        if self.o.get('asym'):
            a.e(f's_bitset0_b32 {oYpub}, 31')
        a.e(f's_lshr_b32 {t1}, {sJ}, 3')
        a.e(f's_and_b32 {t2}, {sJ}, 1')
        a.e(f's_lshr_b32 {t3}, {sJ}, 1')
        a.e(f's_lshr_b32 {t4}, {sX}, 2')
        a.e(f's_and_b32 {t5}, {sX}, 3')
        self.sums(oQgB, [(sV, 4096)], L_QB)
        self.sums(oSTgB, [(sV, 64)], L_STB)
        self.sums(oQApub, [(t4, 16384), (t3, 1024), (t5, 256), (t2, 128)], G_QABS)
        self.sums(oQAg, [(t2, 16384), (sV, 4096)], G_QABS)
        self.sums(oC1pub, [(sX, 1 << 19), (t2, 1 << 18), (sV, 16384), (t3, 256)], CB)
        self.sums(oMLpub, [(t2, 2048), (t3, 32)], L_C1ML)
        self.sums(oC1g, [(sX, 1 << 19), (sJ, 16384), (sV, 4096)], CB)
        a.e(f's_lshr_b32 {t4}, {sJ}, 2')
        self.sums(oMLg, [(t4, 512)], L_C1ML)
        self.sums(oC2pub, [(sJ, 8192), (sV, 2048), (sX, 256)], G_C2)
        self.sums(oC2Lpub, [(t4, 1024), (sX, 128)], G_C2L)
        a.e(f's_and_b32 {t4}, {sJ}, 3')
        a.e(f's_cselect_b32 {oC2Lpub}, {OOB}, {oC2Lpub}')
        self.sums(oC2g, [(sX, 32768), (sS, 4096), (t1, 64)], G_C2)
        self.sums(oC2Lg, [(sX, 1024), (t1, 16)], G_C2L)
        self.sums(oOBpub, [(t1, 2048), (sV, 512), (sS, 32)], L_OB)
        self.sums(oOApub, [(t1, 2048), (sS, 32)], L_OA)
        self.sums(oOALpub, [(sJ, 4)], L_OAL)
        self.sums(oOALg, [(sV, 32)], L_OAL)
        self.sums(oRES, [(sJ, 128)])
        self.sums(oO, [(sV, 2048)], L_OA)
        a.e(f's_cmp_eq_u32 {sV}, 0')
        a.e(f's_cselect_b32 {oMLpub}, {oMLpub}, {OOB}')
        a.e(f's_cselect_b32 {oOApub}, {oOApub}, {OOB}')
        a.e(f's_cselect_b32 {oC2Lpub}, {oC2Lpub}, {OOB}')

    def pv_block(self, U):
        a = self.a
        self.sp_addr('v63', sW8)
        a.e(f'ds_read_b128 v[20:23], v63 offset:{6144 + 128 * U}')
        a.e('s_waitcnt lgkmcnt(0)')
        for e in range(8):
            a.e(f'v_smfmac_f32_16x16x64_bf16 {vr(24 + 4 * e, 4)}, v[20:23], {vr(64 + 64 * U + 8 * e, 8)}, v1')

    def stream(self):
        a = self.a
        o = self.o
        landed = 0
        for t in range(28):
            win = o.get('win', 6) if t < o.get('wide_at', 99) else o.get('wide', 12)
            while landed <= self.pos[f'tile{t}']:
                if self.issued < landed + 1 + win or landed == self.pos[f'tile{t}']:
                    a.wait(vm=self.items[landed][0])
                    if o.get('sstamps') and t % 4 == 0 and landed == self.pos[f'tile{t}']:
                        self.stamp(f't{t}')
                    self.issue_to(landed + 1 + win)
                landed += 1
            slot = (t & 3) * 4096
            if t < 16:
                for ks in range(4):
                    a.e(f'ds_read_b128 a[{16 * t + 4 * ks}:{16 * t + 4 * ks + 3}], v{12 + ks} offset:{slot}')
            else:
                u = t - 16
                if u == 0:
                    for e in range(8):
                        a.e(f'v_xor_b32 v{12 + e}, {e << 5}, {vT}')
                for e in range(8):
                    a.e(f'ds_read_b64_tr_b16 {vr(64 + 64 * (u >> 2) + 8 * e + 2 * (u & 3), 2)}, v{12 + e} offset:{slot}')
            a.e('s_waitcnt lgkmcnt(0)')
            self.done_tile = t
            self.issue_to(landed + win + o.get('boost', {}).get(str(t), 0) if t < 27 else 999)
            if t == 2:
                a.e('v_lshrrev_b32 v254, 4, v0')
                a.e('v_mul_u32_u24 v254, 768, v254')
                a.e(f's_lshr_b32 {t2}, {sJ}, 1')
                self.sums('s1', [(sX, 1 << 20), (t2, 1 << 16), (sV, 256)])
                for i, r in enumerate((246, 247, 255)):
                    a.e(f'v_add_u32 v{r}, {64 * i}, v0')
                    a.e(f'v_mul_u32_u24 v{r}, 21846, v{r}')
                    a.e(f'v_lshrrev_b32 v{r}, 16, v{r}')
                    a.e(f'v_mul_u32_u24 v{r}, {1152 - 48}, v{r}')
                    a.e(f'v_lshl_add_u32 v{r}, v0, 4, v{r}')
            if t == 4:
                a.wait(vm='clr')
                a.e('v_lshlrev_b32 v60, 7, v0')
                a.e('s_mov_b64 exec, 31')
                a.e(f'buffer_load_dword v61, v60, {WS}, {t4} offen')
                a.e('s_mov_b64 exec, -1')
                a.tag_vm('touch')
                a.e('v_lshlrev_b32 v4, 16, v5')
                a.e('v_and_b32 v5, 0xffff0000, v5')
            if t == o.get('atom_at', 5):
                a.e('s_barrier')
                l = self.wave_only(1)
                a.e('s_getreg_b32 s82, hwreg(HW_REG_XCC_ID, 0, 3)')
                a.e('s_lshl_b32 s82, s82, 3')
                a.e('s_lshl_b64 s[82:83], 1, s82')
                a.e('v_mov_b32 v58, s82')
                a.e('v_mov_b32 v59, s83')
                a.e(f's_lshl_b32 {t0}, {sX}, 5')
                a.e('s_mov_b64 exec, 1')
                a.e(f'buffer_atomic_add_x2 v[58:59], v0, {DBG}, {t0} offen sc1')
                a.e('s_mov_b64 exec, -1')
                self.end_only(l)
            if t == 9:
                a.wait(vm='touch')
                self.lnq_addr()
                self.lnq_prep()
                for rho in range(3):
                    for x in self.lnq_mfma(rho):
                        a.e(x)
                self.lnq_reduce(False)
                self.lnq_done = True
            if t == o.get('cnt_at', 10):
                a.e('v_and_b32 v57, 7, v0')
                a.e('v_lshlrev_b32 v57, 5, v57')
                a.e(f'buffer_load_dwordx2 v[58:59], v57, {DBG}, 0 offen sc1')
                a.tag_vm('cnt')
            if t == 15:
                chk, retry, done = a.lab('chk'), a.lab('cretry'), a.lab('cdone')
                a.wait(vm='cnt')
                a.e(f'{chk}:')
                a.e('v_sad_u8 v61, v58, 0, 0')
                a.e('v_sad_u8 v61, v59, 0, v61')
                a.e('v_cmp_ne_u32 vcc, 32, v61')
                if not o.get('x_noinit'):
                    a.e(f's_cbranch_vccnz {retry}')
                a.e(f'{done}:')
                a.ool(f'{retry}:\ns_add_u32 {sPOLL}, {sPOLL}, 1\ns_cmp_gt_u32 {sPOLL}, 100000\ns_cbranch_scc1 {done}\ns_sleep 8\n'
                      f'buffer_load_dwordx2 v[58:59], v57, {DBG}, 0 offen sc1\ns_waitcnt vmcnt(0)\ns_branch {chk}')
                a.e('s_getreg_b32 s82, hwreg(HW_REG_XCC_ID, 0, 3)')
                a.e('s_lshl_b32 s82, s82, 3')
                a.e('s_lshl_b64 s[82:83], 32, s82')
                a.e(f'v_readlane_b32 {t2}, v58, {sX}')
                a.e(f'v_readlane_b32 {t3}, v59, {sX}')
                a.e(f's_cmp_eq_u64 s[82:83], s[80:81]')
                a.e(f's_cselect_b32 {sLOC}, {0 if o.get("force_slow") else 1}, {1 if o.get("x_noinit") else 0}')
                self.lnq_pubaddr(False, True)
                self.lcmp()
                self.lnq_publish(False, True)
            if t == 18:
                self.qa_addr(48)
                a.e(f's_add_u32 {t4}, {oQgA}, {L_CSA - L_QA}')
                ql = self.qa_loads(40, 52, 48) + [f'buffer_load_dwordx4 v[44:47], v51, {WSL}, {t4} offen sc1']
                for x in ql:
                    a.e(x)
                a.tag_vm('q')
            if t == 22:
                a.wait(vm='q')
                self.late_check('v20', list(range(40, 48)) + [52, 53], ql)
                for x in self.red8(44):
                    a.e(x)
                a.e('v_cvt_pk_bf16_f32 v44, 0, v44')
                a.e('v_or_b32 v1, v1, v44')
                self.qa_finish(40, 52, 48, 56)
                for r in range(24, 40, 4):
                    a.e(f'v_mov_b64 {vr(r, 2)}, 0')
                self.p_addr('v45', 'v44')
                self.qk_softmax(56, 24, 40, 44)
                for x in self.lsum('v57', 40):
                    a.e(x)
                for x in self.ml_write(56):
                    a.e(x)
                for r in range(24, 56, 4):
                    a.e(f'v_mov_b64 {vr(r, 2)}, 0')
                a.e('s_waitcnt lgkmcnt(0)')
            for i, at in enumerate(o.get('ckv_at', [10, 11, 12, 13])):
                if at == t:
                    for q in range(4):
                        for x in self.extra[f'c{4 * i + q}']:
                            a.e(x)
            if t == o.get('wo_at', 9):
                assert self.lnq_done
                for k in range(6):
                    for x in self.extra[f'w{k}']:
                        a.e(x)
            self.touches(f's{t}', 'v62', 'v31')
            if t == o.get('mlbar', 26):
                a.e('s_barrier')
                for x in self.ml_read(56, 20):
                    a.e(x)
                a.e('s_waitcnt lgkmcnt(0)')
                for x in self.ml_scale(56, 20, 21, 22):
                    a.e(x)
                a.e('v_readfirstlane_b32 s22, v21')
                a.e('v_readfirstlane_b32 s23, v22')
            if t == o.get('c1_late', 1) and t > 15:
                self.sums(t1, [(sX, 1 << 19), (sJ, 16384), (sV, 4096)], CB)
                for r in range(56, 60):
                    a.e(f'v_mov_b32 v{r}, -1')
                self.lcmp()
                self.lstore([f'buffer_store_dwordx4 v[56:59], {vL16}, {WS}, {t1} offen offset:{i * 1024}' for i in range(4)])
            if t == o.get('tlb_at', -1):
                g = o.get('tlb_n', 2)
                a.e(f's_mov_b64 exec, {(1 << g) - 1}')
                self.sums(t2, [(sX, 1 << 19)], CB)
                for srd, so, span in ((BWQ, oWQ, 24 * 8192), (WUK, oWUK, 16 * 8192), (WUV, oWUV, 64 * 8192), (BWO, oWO, 128 * 1152),
                                      (WS, t2, 1 << 19), (OUT, '0', 1024)):
                    a.e(f'v_mul_u32_u24 v62, {(span - 8192 if span > 8192 else span) // (g - 1) // 4 * 4}, v0')
                    a.e(f'buffer_load_dword v31, v62, {srd}, {so} offen')
                a.e('s_mov_b64 exec, -1')
            if t == o.get('isl_at', 12):
                a.e('s_branch L_isl_0')
                if self.alt:
                    a.e('L_isl_ret2:')
                else:
                    a.e('L_isl_ret:')
                    if o.get('hi'):
                        a.e('s_cmp_lg_u32 s0, 0')
                        a.e('s_cbranch_scc1 L_isl_ret2')
            if t == o.get('late_touch', -1):
                self.sums(t3, [(sX, 128), (sJ, 4), (sV, 1)])
                a.e(f's_lshl_b32 {t2}, {t3}, 10')
                a.e('v_lshlrev_b32 v62, 7, v0')
                a.e('v_and_b32 v62, 0x3ff, v62')
                a.e(f'buffer_load_dword v31, v62, {WS}, {t2} offen')
            if t == 23:
                self.pv_block(0)
            if t == 24:
                self.pv_block(1)
        if self.alt:
            a.e('s_nop 7')
            a.e('s_branch L_join')
            return
        a.e('L_join:')
        self.late_scalars()
        a.e('v_mov_b32 v62, s23')
        a.e(f's_cmp_eq_u32 {sV}, 0')
        a.e(f's_cselect_b32 {t1}, {oOALpub}, {OOB}')
        self.lcmp()
        self.lstore([f'buffer_store_dword v62, off, {WSL}, {t1}'])
        self.pv_block(2)
        a.e('v_lshrrev_b32 v62, 1, v0')
        a.e('v_and_b32 v62, 8, v62')
        a.e('v_and_or_b32 v62, v0, 32, v62')
        a.e(f'v_add_u32 v62, {sW8}, v62')
        a.e(f'v_add_u32 v62, {6144 + 384}, v62')
        for tt in range(4):
            o0 = 16 * (tt >> 1) + (tt & 1)
            r = (20, 22, 8, 10)[tt]
            a.e(f'ds_read2_b32 {vr(r, 2)}, v62 offset0:{o0} offset1:{o0 + 4}')
        a.e('s_mov_b32 vcc_lo, 0x55555555')
        a.e('s_mov_b32 vcc_hi, 0x55555555')
        a.e('s_waitcnt lgkmcnt(0)')
        for r in (20, 21, 22, 23, 8, 9, 10, 11):
            a.e(f'v_cndmask_b32 v{r}, 0, v{r}, vcc')
        self.last_tiles(range(3))
        a.e(f's_cmp_eq_u32 {sLOC}, 0')
        a.e('s_cbranch_scc1 L_pre_slow')

    def last_tiles(self, which):
        a = self.a
        for tt in which:
            a.wait(vm=f'tile{28 + tt}')
            if tt == 3:
                self.stamp('kvdone')
            dst = [56, 58, 60, 62] * 2 if tt < 3 else [56, 58, 60, 62, 20, 22, 8, 12]
            n1 = 4 if tt < 3 else 8
            for e in range(n1):
                a.e(f'ds_read_b64_tr_b16 {vr(dst[e], 2)}, v{12 + e} offset:{tt * 4096}')
                a.tag_ds(f'v{e}')
            if tt == 3:
                self.rot8('v14', 2)
            for e in range(8):
                a.wait(ds=f'v{e}')
                d = vr(24 + 4 * e, 4)
                a.e(f'v_mfma_f32_16x16x16_bf16 {d}, {vr((20, 22, 8, 10)[tt], 2)}, {vr(dst[e], 2)}, {d}')
                if e + n1 < 8:
                    a.e(f'ds_read_b64_tr_b16 {vr(dst[e], 2)}, v{12 + e + n1} offset:{tt * 4096}')
                    a.tag_ds(f'v{e + n1}')
                if tt == 3 and e >= 4:
                    x = e - 4
                    a.e(f'v_add_f32_dpp v16, v{24 + 4 * x}, v{25 + 4 * x} {DPPI} row_mask:{1 << x} bank_mask:0xf')
        if 3 not in which:
            return
        for e in range(4, 8):
            a.e(f'v_add_f32_dpp v17, v{24 + 4 * e}, v{25 + 4 * e} {DPPI} row_mask:{1 << (e & 3)} bank_mask:0xf')
        a.e('v_mul_f32 v44, s22, v16')
        a.e('v_mul_f32 v45, s22, v17')
        a.e(f'v_lshl_add_u32 v46, v0, 2, {sW8}')
        a.e('v_mov_b32 v47, v14')
        self.stamp('pv1')

    def tail(self, mode):
        a = self.a
        o = self.o
        base = lambda s: int(s[2:s.index(':')])
        self.mode = mode
        if mode == 'slow':
            a.e('L_pre_slow:')
            a.e('s_nop 7')
            a.e('s_waitcnt vmcnt(0)')
        self.last_tiles([3])
        n0 = self.nst
        a.vmq = [['wo', ()]] + [[None, ()] for _ in range(len(o.get('touch', {}).get('s27', [])) if o.get('wo_at', 9) == 27 else 40)]
        l, g = base(WSL), base(WSG)
        a.e(f'L_top_{mode}:')
        self.combine_publish()
        self.stamp('opub')
        a.e(f's_mul_i32 {t0}, {sRES}, {sIT}')
        self.resid_track(G_YB, 20, 'v8', f's_cmp_eq_u32 {t0}, 3')
        a.e(f's_mul_i32 {t0}, {sIT}, {G_IT}')
        a.e(f's_add_u32 s{g}, s{g}, {t0}')
        a.e(f's_addc_u32 s{g + 1}, s{g + 1}, 0')

        def idle_a():
            b = self.a
            self.wuk_prep('v8', 'v9')
            self.wuk_issue('v8', 'v9')
            self.touches('i1', 'v60', 'v10')
            l1 = b.lab('it1')
            b.e(f's_cmp_eq_u32 {sIT}, 1')
            b.e(f's_cbranch_scc1 {l1}')
            self.clear_g1(56)
            self.touches('i0', 'v60', 'v10')
            if o.get('touch', {}).get('i0b'):
                lp = b.lab('lp')
                b.e(f'{lp}:')
                b.e('s_sleep 4')
                b.e(f'buffer_load_dword v12, {vL16}, {WSL}, {oO} offen sc1')
                b.e('s_waitcnt vmcnt(0)')
                b.e('v_cmp_eq_u32 vcc, -1, v12')
                self.retry_to(lp)
                b.e('s_barrier')
                self.touches('i0b', 'v60', 'v10')
            l2 = b.lab('it1')
            b.e(f's_branch {l2}')
            b.e(f'{l1}:')
            self.sleep('ia')
            b.e(f'{l2}:')

        def busy_a():
            self.outproj(True)
            self.lnq_tail(G_YA, True)
        self.ool_if(f's_cmp_ge_u32 {sJ}, 24', idle_a, busy_a, True)
        self.qabs()
        self.attn_b()
        self.red()
        self.uv()

        def nextpass():
            b = self.a
            b.e(f's_cmp_eq_u32 {sIT}, 1')
            b.e(f's_cbranch_scc1 L_final_{mode}')
            b.e(f's_add_u32 s{l}, s{l}, {L_IT}')
            b.e(f's_addc_u32 s{l + 1}, s{l + 1}, 0')
            b.e(f's_mov_b32 s{l + 2}, {L_SZ}')
            b.e(f's_mov_b32 {sIT}, 1')

        def idle_b():
            nextpass()
            self.touches('i2', 'v60', 'v10')
            self.sleep('ib')

        def busy_b():
            self.outproj(False)
            nextpass()
            self.lnq_tail(G_YB, False)
        self.ool_if(f's_cmp_ge_u32 {sJ}, 24', idle_b, busy_b, True)
        self.attn_a3()
        self.nper = self.nst - n0
        self.n0 = n0
        if o.get('stamps'):
            a.e('s_mov_b32 s97, 5')
        a.e(f's_branch L_top_{mode}')
        a.e(f'L_final_{mode}:')
        a.e(f's_cmp_lg_u32 {sRES}, 3')
        a.e('s_cbranch_scc1 L_fin2')
        self.resid(G_YB, 10, 'v8', True)
        a.e(f'buffer_store_dword v9, v8, {OUT}, {t0} offen')
        a.e('s_mov_b64 exec, -1')
        self.mode = None

    def build(self):
        a = self.a
        o = self.o
        base = lambda s: int(s[2:s.index(':')])
        self.prologue()
        altb = ''
        if o.get('hi'):
            import copy
            if o['hi'][0]:
                a.e('s_getreg_b32 s0, hwreg(HW_REG_XCC_ID, 0, 3)')
                a.e(f's_lshr_b32 s0, {o["hi"][0]}, s0')
                a.e('s_and_b32 s0, s0, 1')
            else:
                a.e(f's_cmp_ge_u32 {sJ}, 24')
                a.e('s_cselect_b32 s0, 1, 0')
            a.e('s_cbranch_scc1 L_alt')
            alt = Gen(dict(o, win=o['hi'][1]))
            alt.alt = True
            alt.a.uid = 300000
            alt.a.cold = True
            alt.a.vmq = copy.deepcopy(a.vmq)
            alt.make_items()
            alt.issued = self.issued
            alt.nst = self.nst
            alt.a.e('L_alt:')
            alt.stream()
            altb = alt.a.finish()
            altb = altb[:altb.index('L_isl_0:')]
        self.stream()
        self.tail('fast')
        a.e('L_fin2:')
        if o.get('diag_fixed'):
            a.e('L_dfx:')
            a.e('s_memrealtime s[94:95]')
            a.e('s_waitcnt lgkmcnt(0)')
            a.e('s_sub_u32 s94, s94, s100')
            a.e(f's_cmp_lt_u32 s94, {o["diag_fixed"]}')
            a.e('s_cbranch_scc1 L_dfx')
        if o.get('stamps'):
            a.e('s_waitcnt vmcnt(0) lgkmcnt(0)')
            self.stamp('end')
            a.e('s_waitcnt lgkmcnt(0)')
            a.e('v_writelane_b32 v7, s98, 62')
            a.e(f'v_writelane_b32 v7, {sPOLL}, 63')
            a.e('s_getreg_b32 s82, hwreg(HW_REG_XCC_ID, 0, 3)')
            a.e('s_getreg_b32 s83, hwreg(HW_REG_HW_ID)')
            a.e('s_lshl_b32 s83, s83, 4')
            a.e('s_or_b32 s82, s82, s83')
            a.e('v_writelane_b32 v7, s82, 61')
            self.sums(t1, [('s2', 1024), (sV, 256)], STAMP)
            a.e('v_lshlrev_b32 v8, 2, v0')
            a.e(f'buffer_store_dword v7, v8, {WS}, {t1} offen')
        a.e('L_end:')
        a.e('s_endpgm')
        slow = Gen(self.o)
        slow.a.uid = 500000
        slow.a.cold = True
        slow.tail('slow')
        slow.a.e('s_branch L_fin2')
        sb = slow.a.finish()
        sb = sb[:sb.index('L_isl_0:')]
        body = a.finish()
        ref = open('cdna_kernels/' + NAME + '.s.ref').read() if o.get('hdr', True) else ''
        hdr = ''.join(l + '\n' for l in ref.split('\n') if l.startswith(';') and '@launch' not in l and 'Override' not in l and 'grid=ceil' not in l)
        txt = hdr + '; @launch grid=(256,1,1) block=(256,1,1) lds=163840\n'
        txt += '.amdgcn_target "amdgcn-amd-amdhsa--gfx950"\n.text\n'
        txt += f'.globl {NAME}_kernel\n.p2align 8\n.type {NAME}_kernel,@function\n{NAME}_kernel:\n'
        txt += body
        txt += 'L_tailend:\n' + altb + 'L_codeend:\n' + sb
        txt += f"""    s_endpgm
.section .rodata,"a"
.p2align 6
.amdhsa_kernel {NAME}_kernel
  .amdhsa_next_free_vgpr 512
  .amdhsa_next_free_sgpr 102
  .amdhsa_accum_offset 256
  .amdhsa_group_segment_fixed_size 0
  .amdhsa_kernarg_size 112
  .amdhsa_user_sgpr_count 2
  .amdhsa_user_sgpr_kernarg_segment_ptr 1
  .amdhsa_system_sgpr_workgroup_id_x 1
.end_amdhsa_kernel
"""
        return txt


DEFAULT = dict(sleep=dict(h2a=7, h2b=7, h2c=3, ha=7, ia=30, ib=30, ha1=5, hc2=1, hc2b=2, hc4=1, fin=10), pol_c='nt', depth=3,
               touch=dict(w1b=['loc', 'code', 'wuk'], w1c=['loc'], w5=['code'], i0=['Xc1', 'Xbwo'], i1=['loc', 'code'], i2=['loc']), wo_e=0, wo_pre=3, red_pre=4, tr_pre=4, pol_wq3='nt',
               late_touch=-1, wo_at=9, warm=0, c1_late=1, ml_early=2, qflag=0, ybar=0, atom_at=4, cnt_at=12, win=6, boost={}, win0=6)

if __name__ == '__main__':
    import json
    opt = dict(DEFAULT)
    out = sys.argv[1]
    if len(sys.argv) > 2:
        opt.update(json.loads(sys.argv[2]))
    g = Gen(opt)
    open(out, 'w').write(g.build())
    print('nops', g.a.nops, 'stamps', g.stnames, g.n0, g.nper)
```

```python
import sys, math, struct
from asmlib import Asm

NAME = 'interleave_layers__mha_block_cached__compressed_kv_cla__decode'


def f32(x):
    return '0x%08x' % struct.unpack('<I', struct.pack('<f', x))[0]


K1 = 1024
L_X = 128 * K1
L_IT = 72 * K1
L_SZ = 56 * K1
L_QA, L_QB, L_OA, L_OB, L_C1ML = 0, 16 * K1, 32 * K1, 40 * K1, 48 * K1
L_STA, L_STB, L_OAL, L_FL = 52 * K1, 52 * K1 + 256, 52 * K1 + 512, 52 * K1 + 640
L_CSA = 56 * K1
GB, G_IT = 0x100000, 384 * K1
G_YA, G_YB, G_QABS, G_C2L, G_C2 = 0, 24 * K1, 48 * K1, 80 * K1, 112 * K1
CB = 0x200000
STAMP = 0x800000
WS_SIZE = 0x1000000
OOB = 0x40000000
CKV = 65536
STG = 131072
ZML = STG + 7168
ZO = STG + 8192 + 7168
ZQ = STG + 2 * 8192 + 7168
K_, V_, CK, DBG, XIN, WQ, WO, BWQ, WUK, WUV, BWO, WS, WSL, WSG, OUT = ['s[%d:%d]' % (4 + 4 * i, 7 + 4 * i) for i in range(15)]
(sX, sJ, sV, sLOC, sW8, sKV, sKG, sIT, sPOLL, sM, sRES, sST, sH, sS,
 t0, t1, t2, t3, t4, t5) = ['s%d' % i for i in range(64, 84)]
MY = 's[84:85]'
(oY, oQA, oQB, oST, oQgA, oSTgA, oWQ, oWO, oWUK, oWUV, oYpub) = ['s%d' % i for i in range(86, 97)]
(oQgB, oSTgB, oQApub, oQAg, oC1pub, oMLpub, oC1g, oMLg, oC2pub, oC2Lpub, oC2g, oC2Lg,
 oOBpub, oOApub, oOALpub, oOALg, oRES, oO) = ['s%d' % i for i in range(4, 22)]
vT, vA, vL16 = 'v2', 'v3', 'v6'
TBL = [0, 8, 9, 1]
DPPI = 'quad_perm:[0,1,2,3]'
FULL = 'row_mask:0xf bank_mask:0xf'
QSCALE = math.log2(math.e) / math.sqrt(128.0)


def vr(a, n):
    return f'v[{a}:{a + n - 1}]' if n > 1 else f'v{a}'


class Gen:
    def __init__(self, opt):
        self.o = opt
        self.a = Asm()
        self.nst = 0
        self.stnames = []
        self.mode = None
        self.alt = False

    def stamp(self, name, level=1):
        if self.o.get('stamps', 0) < level or self.mode == 'slow':
            return
        if self.o.get('only') and name not in self.o['only'] and name != 'end':
            return
        a = self.a
        self.nst += 1
        self.stnames.append(name)
        a.e(f's_mov_b32 m0, {sST}')
        a.e(f's_pack_ll_b32_b16 s98, s98, {sPOLL}')
        a.e('v_writelane_b32 v7, s98, m0')
        a.e(f's_mov_b32 {sST}, {self.nst}')
        a.e(f's_bitset1_b32 {sST}, s97')
        a.e('s_memtime s[98:99]' if self.o.get('clk') else 's_memrealtime s[98:99]')

    def K(self, n, key=None, force=False):
        if key is not None:
            n = self.o.get('K', {}).get(key, n)
        if not self.o.get('warm', 1) and not force:
            return
        for i in range(n):
            self.a.e('v_mov_b32 v0, v0')
            self.a.e('s_nop 2')

    def H(self, key, n, junk):
        n = self.o.get('H', {}).get(key, n if self.o.get('heat', 1) else 0)
        for i in range(n):
            self.a.e(f'v_mfma_f32_16x16x4_f32 {vr(junk, 4)}, v0, v0, 0')

    def Wm(self):
        if self.o.get('warm', 1):
            self.a.e('v_mov_b32 v0, v0')

    def bar(self, n=2, vm=False):
        self.K(n)
        self.Wm()
        self.a.e('s_waitcnt vmcnt(0) lgkmcnt(0)' if vm else 's_waitcnt lgkmcnt(0)')
        self.Wm()
        self.a.e('s_barrier')
        self.Wm()

    def retry_to(self, top):
        a = self.a
        done, retry = a.lab('got'), a.lab('retry')
        a.e(f's_cbranch_vccnz {retry}')
        a.e(f'{done}:')
        a.ool(f'{retry}:\ns_cselect_b32 s3, 1, 0\ns_add_u32 {sPOLL}, {sPOLL}, 1\ns_cmp_gt_u32 {sPOLL}, 100000\ns_nop 1\ns_cbranch_scc0 {top}\n'
              f's_cmp_eq_u32 s3, 1\ns_branch {done}')

    def ool_if(self, cond, fn, els=None, big=False):
        a = self.a
        go, back = a.lab('go'), a.lab('back')
        a.e(cond)
        a.e(f's_cbranch_scc1 {go}')
        if els and big:
            els()
            a.vmq, a.dsq = [], []
        elif els:
            a.begin_skip()
            els()
            a.end_skip()
        a.e(f'{back}:')
        sub = Asm()
        sub.uid = a.uid + 1000 * (1 + len(a.tail))
        self.a = sub
        sub.e(f'{go}:')
        sub.e('s_nop 1')
        fn()
        sub.e('s_nop 1')
        sub.e(f's_branch {back}')
        self.a = a
        tail, sub.tail = sub.tail, []
        body = sub.finish().split('\n')
        body = [x.strip() for x in body[:[i for i, x in enumerate(body) if x.startswith('L_isl_0')][0]] if x.strip()]
        for k in range(0, len(body), 14):
            part = body[k:k + 14]
            if k + 14 < len(body):
                nxt = a.lab('p')
                part.append(f's_branch {nxt}')
                body[k + 14] = f'{nxt}:\n' + body[k + 14]
            a.ool('\n'.join(part))
        for t in tail:
            a.ool(t)

    def lstore(self, lines):
        a = self.a
        if self.mode is not None:
            for l in lines:
                a.e(l + ' sc1' if self.mode == 'slow' and l.startswith('buffer_') else l)
            return
        slow, back = a.lab('slow'), a.lab('back')
        a.e(f's_cbranch_scc1 {slow}')
        for l in lines:
            a.e(l)
        a.e(f'{back}:')
        a.ool(('' if a.cold else '#cold') + f'{slow}:\ns_nop 7\n' + '\n'.join(l + ' sc1' if l.startswith('buffer_') else l for l in lines) + f'\ns_branch {back}')

    def lcmp(self):
        if self.mode is None:
            self.a.e(f's_cmp_eq_u32 {sLOC}, 0')

    def poll_begin(self):
        a = self.a
        self.ptop, self.pretry, self.pdone = a.lab('poll'), a.lab('retry'), a.lab('got')
        a.e(f'{self.ptop}:')

    def poll_end(self, vmax):
        a = self.a
        a.e(f'v_cmp_eq_u32 vcc, -1, {vmax}')
        a.e(f's_cbranch_vccnz {self.pretry}')
        a.e(f'{self.pdone}:')
        a.ool(f'{self.pretry}:\ns_add_u32 {sPOLL}, {sPOLL}, 1\ns_cmp_gt_u32 {sPOLL}, 100000\ns_cbranch_scc1 {self.pdone}\ns_nop 7\ns_branch {self.ptop}')

    def poll_cmp(self, vmax):
        self.a.e(f'v_cmp_eq_u32 vcc, -1, {vmax}')

    def poll_br(self, last=True):
        a = self.a
        done = a.lab('got')
        retry = a.lab('retry')
        a.e(f's_cbranch_vccnz {retry}')
        a.e(f'{done}:')
        a.ool(f'{retry}:\ns_cselect_b32 s3, 1, 0\ns_add_u32 {sPOLL}, {sPOLL}, 1\ns_cmp_gt_u32 {sPOLL}, 100000\ns_cbranch_scc0 {self.ptop}\n'
              f's_cmp_eq_u32 s3, 1\ns_branch {done}')

    def pipe_poll(self, ld, vmax, regs, key, mid=()):
        a = self.a
        n = sum(x.startswith('buffer') for x in ld)
        if self.o.get('pipe', {}).get(key, 1):
            self.poll_begin()
            for x in ld:
                self.H(key + '0', 0, 40)
                a.e(x)
            self.H(key + '1', 0, 40)
            a.e(f's_waitcnt vmcnt({n})')
            self.maxchain(vmax, regs, True)
            self.poll_cmp(vmax)
            for x in mid:
                a.e(x)
            self.poll_br()
        else:
            a.e('s_waitcnt vmcnt(0)')
            self.late_check(vmax, regs, ld)

    def late_check(self, vmax, regs, reissue):
        a = self.a
        chk, retry, done = a.lab('chk'), a.lab('retry'), a.lab('done')
        a.e(f'{chk}:')
        self.maxchain(vmax, regs, True)
        a.e(f'v_cmp_eq_u32 vcc, -1, {vmax}')
        a.e(f's_cbranch_vccnz {retry}')
        a.e(f'{done}:')
        a.ool(f'{retry}:\ns_add_u32 {sPOLL}, {sPOLL}, 1\ns_cmp_gt_u32 {sPOLL}, 100000\ns_cbranch_scc1 {done}\n'
              + '\n'.join(reissue) + f'\ns_waitcnt vmcnt(0)\ns_branch {chk}')

    def maxchain(self, vmax, regs, first):
        a = self.a
        regs = list(regs)
        if first:
            if len(regs) >= 3:
                a.e(f'v_max3_u32 {vmax}, v{regs[0]}, v{regs[1]}, v{regs[2]}')
                regs = regs[3:]
            elif len(regs) == 2:
                a.e(f'v_max_u32 {vmax}, v{regs[0]}, v{regs[1]}')
                regs = []
            else:
                a.e(f'v_mov_b32 {vmax}, v{regs[0]}')
                regs = []
        while len(regs) >= 2:
            a.e(f'v_max3_u32 {vmax}, {vmax}, v{regs[0]}, v{regs[1]}')
            regs = regs[2:]
        if regs:
            a.e(f'v_max_u32 {vmax}, {vmax}, v{regs[0]}')

    def sleep(self, key):
        n = self.o.get('sleep', {}).get(key, 0)
        if n:
            self.a.e(f's_sleep {n}')

    def wave_only(self, w):
        a = self.a
        l = a.lab('notw')
        a.e(f's_cmp_lg_u32 {sV}, {w}')
        a.e(f's_cbranch_scc1 {l}')
        a.begin_skip()
        return l

    def end_only(self, lab):
        self.a.end_skip()
        self.a.e(f'{lab}:')

    def pos_bytes(self, dst, tmp):
        a = self.a
        a.e(f'v_lshlrev_b32 {dst}, 3, v0')
        a.e(f'v_and_b32 {dst}, 16, {dst}')
        a.e(f'v_and_or_b32 {dst}, v0, 12, {dst}')

    def sp_addr(self, dst, base):
        a = self.a
        a.e(f'v_and_b32 {dst}, 48, v0')
        a.e(f'v_lshlrev_b32 {dst}, 1, {dst}')
        a.e(f'v_and_or_b32 {dst}, {vL16}, 16, {dst}')
        if base:
            a.e(f'v_add_u32 {dst}, {base}, {dst}')

    def sums(self, dst, terms, const=0):
        a = self.a
        first = True
        for reg, mul in terms:
            d = dst if first else t0
            if mul & (mul - 1) == 0:
                a.e(f's_lshl_b32 {d}, {reg}, {mul.bit_length() - 1}')
            else:
                a.e(f's_mul_i32 {d}, {reg}, {mul}')
            if not first:
                a.e(f's_add_u32 {dst}, {dst}, {t0}')
            first = False
        if const:
            a.e(f's_add_u32 {dst}, {dst}, {const}')

    def k64_addr(self, vt, vu):
        a = self.a
        a.e(f'v_lshrrev_b32 {vt}, 2, v0')
        a.e(f'v_lshlrev_b32 {vt}, 13, {vt}')
        a.e(f'v_and_or_b32 {vt}, {vL16}, 48, {vt}')

    def wq_prep(self, vt, vu):
        a = self.a
        a.e(f'v_lshrrev_b32 {vu}, 4, v0')
        a.e(f'v_lshlrev_b32 {vt}, 5, {vu}')
        a.e(f'v_xor_b32 {vt}, {vt}, {vL16}')
        a.e(f's_lshl_b32 {t1}, {sV}, 7')
        a.e(f'v_xor_b32 {vt}, {t1}, {vt}')
        a.e(f'v_and_b32 {vt}, 0xf0, {vt}')
        a.e(f'v_lshl_or_b32 {vt}, {vu}, 13, {vt}')

    def wq_issue(self, srd, vt, vu, parts, pol=''):
        a = self.a
        for i in parts:
            if i == parts[0] or i == 3:
                a.e(f's_add_u32 m0, {sW8}, {(i // 3) * 3072}')
            a.e(f's_add_u32 {t1}, {oWQ}, {i * 4 * 8192 - (i % 3) * 1024}')
            a.e(f'buffer_load_dwordx4 {vt}, {srd}, {t1} offen offset:{(i % 3) * 1024} {pol} lds')
        a.tag_vm('wq')

    def dma_wq(self, srd, vt, vu, pol=''):
        self.wq_prep(vt, vu)
        self.wq_issue(srd, vt, vu, list(range(6)), pol)

    def dma_wuv(self, vt):
        a = self.a
        pol = self.o.get('pol_w', '')
        self.k64_addr(vt, None)
        for i in range(4):
            a.e(f's_add_u32 m0, {sW8}, {i * 1024}')
            a.e(f's_add_u32 {t1}, {oWUV}, {i * 16 * 8192}')
            a.e(f'buffer_load_dwordx4 {vt}, {WUV}, {t1} offen {pol} lds')
        a.tag_vm('wuv')

    def wuk_prep(self, vt, vu):
        a = self.a
        a.e(f'v_lshrrev_b32 {vu}, 4, v0')
        a.e(f'v_lshlrev_b32 {vt}, 5, {vu}')
        a.e(f'v_xor_b32 {vt}, {vt}, {vL16}')
        a.e(f'v_and_b32 {vt}, 0xf0, {vt}')
        a.e(f'v_lshl_or_b32 {vt}, {vu}, 13, {vt}')

    def wuk_issue(self, vt, vu):
        a = self.a
        pol = self.o.get('pol_wuk', '')
        a.e(f's_mov_b32 m0, {sW8}')
        for q in range(4):
            a.e(f's_add_u32 {t1}, {oWUK}, {q * (4 * 8192 - 1024)}')
            if q:
                a.e(f'v_xor_b32 {vu}, {TBL[q] << 4}, {vt}')
            a.e(f'buffer_load_dwordx4 {vu if q else vt}, {WUK}, {t1} offen offset:{q * 1024} {pol} lds')
        a.tag_vm('wuk')

    def wo_prep(self, R, tmp):
        a = self.a
        for i in range(3):
            a.e(f'v_add_u32 v{R + i}, {64 * i}, v0')
            a.e(f'v_mul_u32_u24 {tmp}, 21846, v{R + i}')
            a.e(f'v_lshrrev_b32 {tmp}, 16, {tmp}')
            a.e(f'v_mul_u32_u24 {tmp}, {1152 - 48}, {tmp}')
            a.e(f'v_lshl_add_u32 v{R + i}, v0, 4, {tmp}')
        a.e(f's_add_u32 {t5}, {oWO}, {64 * 1152}')

    def wo_lines(self, srd, R, pol='', base=sW8):
        out = []
        for h in range(2):
            out.append(f's_add_u32 m0, {base}, {h * 3072}')
            for i in range(3):
                out.append(f'buffer_load_dwordx4 v{R + i}, {srd}, {t5 if h else oWO} offen offset:{i * 1024} {pol} lds')
        return out

    def wo_group(self, srd, R, lo, hi):
        out = []
        for k in range(lo, hi):
            h, i = divmod(k, 3)
            if k == lo or i == 0:
                out.append(f's_add_u32 m0, {sW8}, {h * 3072}')
            out.append(f'buffer_load_dwordx4 v{R + i}, {srd}, {t5 if h else oWO} offen offset:{i * 1024} lds')
        return out

    def dma_wo(self, srd, R, tmp):
        self.wo_prep(R, tmp)
        for x in self.wo_lines(srd, R, self.o.get('pol_wo1', '')):
            self.a.e(x)
        self.a.tag_vm('wo')

    def touch(self, what, vt, vd):
        a = self.a
        if what == 'code':
            l = a.lab('pc')
            self.sums(t1, [(sJ, 1024), (sV, 256)])
            a.e(f'v_lshl_add_u32 {vt}, v0, 7, {t1}')
            a.e(f'v_min_u32 {vt}, L_tailend-L_top_fast, {vt}')
            a.e('s_getpc_b64 s[0:1]')
            a.e(f'{l}:')
            a.e(f's_add_u32 s0, s0, L_top_fast-{l}')
            a.e(f's_addc_u32 s1, s1, {0 if self.mode is None else -1}')
            a.e('s_mov_b64 exec, 3')
            a.e(f'global_load_dword {vd}, {vt}, s[0:1]')
            a.e('s_mov_b64 exec, -1')
            return
        if what[0] == 'X':
            what, lo, hi = (what.split(':') + ['0', '9'])[:3]
            if what in ('Xbwq', 'Xwq', 'Xwuk', 'Xwuv'):
                srd, rows = {'Xbwq': (BWQ, 18), 'Xwq': (WQ, 18), 'Xwuk': (WUK, 12), 'Xwuv': (WUV, 16)}[what]
                a.e(f'v_lshrrev_b32 {vt}, 3, v0')
                a.e(f'v_lshlrev_b32 {vt}, 6, {vt}')
                a.e(f'v_and_or_b32 {vt}, v0, 7, {vt}')
                a.e(f'v_lshlrev_b32 {vt}, 7, {vt}')
                self.sums(t1, [(sX, 1024), (sJ, 4 * rows * 8192), (sV, rows * 8192)], (1 << 32) - 96 * rows * 8192)
                for k in range(0, rows, 8):
                    if rows - k < 8:
                        a.e(f's_mov_b32 exec_lo, {(1 << ((rows - k) * 8)) - 1}')
                        a.e('s_mov_b32 exec_hi, 0')
                    if int(lo) <= k // 8 < int(hi):
                        a.e(f'buffer_load_dword {vd}, {vt}, {srd}, {t1} offen')
                    a.e(f's_add_u32 {t1}, {t1}, 65536')
                a.e('s_mov_b64 exec, -1')
                return
            srd, base, per = {'Xc1': (WS, [(sX, 1 << 19)], 16384), 'Xbwo': (BWO, [(sX, 512 * 1152)], 18432), 'Xwo': (WO, [(sX, 512 * 1152)], 18432)}[what]
            a.e(f'v_lshlrev_b32 {vt}, 7, v0')
            self.sums(t1, base + [(sJ, 4 * per), (sV, per)], (CB if what == 'Xc1' else 0) - 96 * per + (1 << 32 if what != 'Xc1' else 0))
            for k in range(0, per, 8192):
                if per - k < 8192:
                    a.e(f's_mov_b64 exec, {(1 << ((per - k) // 128)) - 1}')
                if int(lo) <= k // 8192 < int(hi):
                    a.e(f'buffer_load_dword {vd}, {vt}, {srd}, {t1} offen')
                a.e(f's_add_u32 {t1}, {t1}, 8192')
            a.e('s_mov_b64 exec, -1')
            return
        half = None
        if what[-1] in '01' and what != 'c1':
            what, half = what[:-1], int(what[-1])
        if what in ('wq', 'bwq', 'wuv', 'wuk'):
            srd = {'wq': WQ, 'bwq': BWQ, 'wuv': WUV, 'wuk': WUK}[what]
            a.e(f'v_lshrrev_b32 {vt}, 3, v0')
            a.e(f'v_lshlrev_b32 {vt}, 6, {vt}')
            a.e(f'v_and_or_b32 {vt}, v0, 7, {vt}')
            a.e(f'v_lshlrev_b32 {vt}, 7, {vt}')
            rows = 5 if what in ('wq', 'bwq') else 4
            self.sums(t1, [(sJ, 4 * rows * 8192), (sV, rows * 8192), (sX, 1024)])
            n = 8 * rows
        elif what == 'loc':
            srd = WS
            a.e(f'v_lshlrev_b32 {vt}, 7, v0')
            self.sums(t1, [(sX, L_X), (sJ, 4096), (sV, 1024)])
            n = 8
        elif what == 'c1h':
            srd = WS
            a.e(f'v_lshlrev_b32 {vt}, 7, v0')
            self.sums(t1, [(sX, 1 << 19), (sJ, 16384), (sV, 2048)], CB + 8192)
            n = 16
        elif what == 'c1':
            srd = WS
            a.e(f'v_lshlrev_b32 {vt}, 7, v0')
            self.sums(t1, [(sX, 1 << 19), (sJ, 16384), (sV, 4096)], CB)
            n = 32
        else:
            srd = {'wo': WO, 'bwo': BWO}[what]
            a.e(f'v_lshlrev_b32 {vt}, 7, v0')
            self.sums(t1, [(sX, 512 * 1152), (sJ, 18432), (sV, 4608)])
            n = 36
        m = (1 << n) - 1
        if half == 0:
            m = (1 << (n // 2)) - 1
        elif half == 1:
            m ^= (1 << (n // 2)) - 1
        a.e(f's_mov_b32 exec_lo, {m & 0xffffffff}')
        a.e(f's_mov_b32 exec_hi, {m >> 32}')
        if vd is None:
            a.e(f's_add_u32 m0, {sW8}, 1024')
            a.e(f'buffer_load_dword {vt}, {srd}, {t1} offen lds')
        else:
            a.e(f'buffer_load_dword {vd}, {vt}, {srd}, {t1} offen')
        a.e('s_mov_b64 exec, -1')

    def touches(self, where, vt, vd):
        for w in self.o.get('touch', {}).get(where, []):
            self.touch(w, vt, vd)

    def lnq_addr(self):
        a = self.a
        a.e('v_lshrrev_b32 v52, 4, v0')
        a.e('v_bfe_u32 v53, v0, 2, 2')
        a.e('v_lshl_add_u32 v52, v52, 5, v53')
        a.e('v_and_b32 v53, 31, v0')
        a.e('v_lshlrev_b32 v53, 3, v53')
        a.e('v_lshl_or_b32 v52, v52, 8, v53')
        a.e(f's_lshl_b32 {t0}, {sV}, 6')
        a.e(f's_add_u32 {t0}, {t0}, {STG}')
        a.e(f'v_xor_b32 v52, {t0}, v52')
        a.e('v_xor_b32 v54, 32, v52')

    def lnq_prep(self):
        a = self.a
        a.wait(vm='wq')
        a.e('s_barrier')
        for rho in range(3):
            for tau in range(2):
                for half in range(2):
                    a.e(f'ds_read_b64_tr_b16 {vr(28 + 8 * rho + 4 * tau + 2 * half, 2)}, v{52 + 2 * tau} offset:{2048 * rho + 1024 * half}')
        a.e('s_waitcnt lgkmcnt(0)')
        a.e('s_barrier')

    def lnq_rows(self):
        a = self.a
        a.e('v_mov_b32 v53, 0x3f803f80')
        a.e(f's_lshl_b64 s[82:83], {MY}, 8')
        a.e('v_cndmask_b32 v16, 0, v53, s[82:83]')
        a.e('v_mov_b32 v17, v16')
        for r in range(18, 28, 2):
            a.e(f'v_mov_b64 {vr(r, 2)}, v[16:17]')

    def lnq_mfma(self, rho):
        a = self.a
        A = vr(16 + 4 * rho, 4)
        c = (lambda r: '0') if rho == 0 else (lambda r: r)
        return [f'v_mfma_f32_16x16x32_bf16 v[60:63], {A}, {A}, {c("v[60:63]")}',
                f'v_mfma_f32_16x16x32_bf16 v[52:55], {A}, {vr(28 + 8 * rho, 4)}, {c("v[52:55]")}',
                f'v_mfma_f32_16x16x32_bf16 v[56:59], {A}, {vr(32 + 8 * rho, 4)}, {c("v[56:59]")}']

    def lnq_reduce(self, isb, chk=False):
        a = self.a
        a.e('v_pk_add_f32 v[60:61], v[60:61], v[62:63]')
        a.e('v_add_f32 v60, v60, v61')
        if chk:
            a.e('v_cmp_u_f32 vcc, v60, v60')
        a.e('v_pk_add_f32 v[52:53], v[52:53], v[54:55]')
        a.e('v_mov_b32 v61, v60')
        a.e('v_pk_add_f32 v[56:57], v[56:57], v[58:59]')
        a.e('v_add_f32 v52, v52, v53')
        a.e('v_permlane16_swap_b32 v60, v61')
        a.e('v_add_f32 v56, v56, v57')
        a.e('v_add_f32 v60, v60, v61')
        a.e('v_permlane16_swap_b32 v52, v56')
        a.e(f'v_add_f32_dpp v60, v60, v60 quad_perm:[1,0,3,2] {FULL}')
        a.e('v_add_f32 v52, v52, v56')
        self.lcmp()
        a.e(f'v_add_f32_dpp v60, v60, v60 quad_perm:[2,3,0,1] {FULL}')
        if isb:
            a.e(f'v_mov_b32_dpp v53, v52 quad_perm:[1,0,3,2] {FULL}')
            a.e('v_cvt_pk_bf16_f32 v52, v52, v53')
        a.e(f'v_add_f32_dpp v60, v60, v60 row_half_mirror {FULL}')

    def lnq_pubaddr(self, isb, first):
        a = self.a
        if isb:
            self.pos_bytes('v14', None)
            a.e('v_and_b32 v15, 16, v0')
            a.e('v_lshl_or_b32 v14, v15, 4, v14')
            a.e('v_and_b32 v15, 32, v0')
            a.e('v_lshl_or_b32 v14, v15, 6, v14')
        else:
            a.e('v_and_b32 v14, 31, v0')
            a.e('v_lshlrev_b32 v14, 2, v14')
            if first:
                a.e('v_lshrrev_b32 v15, 5, v0')
                a.e(f'v_mul_u32_u24 v15, {L_CSA - L_QA}, v15')
                a.e('v_add_u32 v14, v14, v15')
        a.e('v_lshrrev_b32 v15, 1, v0')

    def lnq_publish(self, isb, first, q='v52', st='v60', qa='v14', sa='v15'):
        lines = []
        if isb:
            lines += ['s_mov_b32 exec_lo, 0x55555555', 's_mov_b32 exec_hi, 0x55555555']
        elif not first:
            lines += ['s_mov_b32 exec_hi, 0']
        lines += [f'buffer_store_dword {q}, {qa}, {WSL}, {oQB if isb else oQA} offen',
                  's_mov_b64 exec, 0x101',
                  f'buffer_store_dword {st}, {sa}, {WSL}, {oST} offen offset:{256 if isb else 0}',
                  's_mov_b64 exec, -1']
        self.lstore(lines)

    def lnq_tail(self, goff, isb):
        a = self.a
        if self.o.get('ybar', 1):
            a.e('s_barrier')
        self.lnq_rows()
        a.e('v_lshrrev_b32 v12, 2, v0')
        a.e('v_mul_u32_u24 v12, 3072, v12')
        a.e(f'v_and_or_b32 v12, {vL16}, 48, v12')
        a.e(f's_add_u32 {t4}, {oY}, {goff}')
        a.e(f's_add_u32 {t5}, {sW8}, 6144')
        self.dma_wq(BWQ if isb else WQ, 'v8', 'v9', self.o.get('pol_bwq', '') if isb else self.o.get('pol_wq3', ''))
        if not self.o.get('ybar', 1):
            a.e('s_barrier')
        self.lnq_addr()
        self.lnq_pubaddr(isb, False)
        a.e('v_and_b32 v11, 48, v0')
        a.e('v_lshlrev_b32 v11, 3, v11')
        a.e('v_and_or_b32 v11, v0, 7, v11')
        a.e('v_lshlrev_b32 v11, 6, v11')
        a.e(f'v_add_u32 v11, {STG + 6144}, v11')
        a.e('v_mov_b32 v13, 0')
        if isb:
            self.wuk_prep('v8', 'v9')

            def clear1():
                self.clear_g1(56)
                self.sleep('h2c')
            self.ool_if(f's_cmp_eq_u32 {sIT}, 0', clear1, lambda: self.sleep('h2a'))
        else:
            self.sleep('h2b')
        ld = [f's_mov_b32 m0, {t5}', 's_mov_b64 exec, 0x77777777',
              f'buffer_load_dword v13, v12, {WSG}, {t4} offen sc1',
              f'buffer_load_dwordx4 v12, {WSG}, {t4} offen sc1 lds',
              's_mov_b64 exec, -1']
        for i, x in enumerate(ld):
            a.e(x)
            if i in (2, 3):
                a.tag_vm(f'y{i}')
        self.touches('w1b' if isb else 'w1c', 'v60', 'v10')
        self.lnq_prep()
        self.stamp('wqrdy', 2)
        if isb:
            self.wuk_issue('v8', 'v9')
        chk, again = a.lab('chk'), a.lab('again')
        a.wait(vm='y2')
        a.e(f'{chk}:')
        a.e('v_cmp_eq_u32 vcc, -1, v13')
        a.wait(vm='y3')
        self.retry_to(again)
        a.ool(f'{again}:\n' + '\n'.join(ld) + f'\ns_waitcnt vmcnt(0)\ns_branch {chk}')
        a.e(f's_mov_b64 exec, {MY}')
        a.e('s_barrier')
        for rho in range(3):
            a.e(f'ds_read_b128 {vr(16 + 4 * rho, 4)}, v11 offset:{16 * rho}')
            a.tag_ds(f'a{rho}')
        fl = isb and self.o.get('qflag', 1)
        if fl:
            self.lstore([f'buffer_store_dword v0, off, {WSL}, {t3} offset:{L_FL - L_OAL}'])
        a.e('s_mov_b64 exec, -1')
        self.stamp('h2got', 2)
        if fl:
            a.e('v_and_b32 v9, 7, v0')
            a.e('v_lshlrev_b32 v9, 2, v9')
        self.H('l1', 0, 56)
        mm = [self.lnq_mfma(rho) for rho in range(3)]
        for rho in range(3):
            a.wait(ds=f'a{rho}')
            a.e(mm[rho][0])
        g = ['v_pk_add_f32 v[60:61], v[60:61], v[62:63]', 'v_add_f32 v62, v60, v61', 'v_add_f32 v60, v60, v61', 'v_cmp_u_f32 vcc, v62, v62',
             'v_permlane16_swap_b32 v60, v62', 'v_add_f32 v60, v60, v62',
             f'v_add_f32_dpp v60, v60, v60 quad_perm:[1,0,3,2] {FULL}', f'v_add_f32_dpp v60, v60, v60 quad_perm:[2,3,0,1] {FULL}',
             f'v_add_f32_dpp v60, v60, v60 row_half_mirror {FULL}']
        a.e(mm[0][1]); a.e('s_nop 1')
        a.e(mm[1][1]); a.e('s_nop 1')
        a.e(mm[2][1]); a.e('s_nop 0'); a.e(g[0])
        a.e(mm[0][2]); a.e(g[1]); a.e(g[2])
        a.e(mm[1][2]); a.e(g[3]); a.e(g[4])
        a.e(mm[2][2]); a.e(g[5])
        a.e('v_pk_add_f32 v[52:53], v[52:53], v[54:55]')
        a.e('v_add_f32 v52, v52, v53')
        a.e(g[6])
        a.e(g[7])
        a.e('v_pk_add_f32 v[56:57], v[56:57], v[58:59]')
        a.e('v_add_f32 v56, v56, v57')
        a.e(g[8])
        again2 = a.lab('again')
        self.retry_to(again2)
        a.e('v_permlane16_swap_b32 v52, v56')
        a.e('v_add_f32 v52, v52, v56')
        if isb:
            a.e(f'v_mov_b32_dpp v53, v52 quad_perm:[1,0,3,2] {FULL}')
            a.e('v_cvt_pk_bf16_f32 v52, v52, v53')
        a.ool(f'{again2}:\ns_barrier\ns_branch {again}')
        if fl == 1:
            a.e(f'buffer_load_dword v10, v9, {WSL}, {oOALg} offen offset:{L_FL - L_OAL} sc1')
            a.tag_vm('fl')
        self.lnq_publish(isb, False)
        if fl == 2:
            a.e(f'buffer_load_dword v10, v9, {WSL}, {oOALg} offen offset:{L_FL - L_OAL} sc1')
            a.tag_vm('fl')
        self.stamp('qpub')

    def clear_g1(self, R):
        b = self.a
        for r in range(R, R + 4):
            b.e(f'v_mov_b32 v{r}, -1')
        self.sums(t1, [(sX, 128 * 384), (sJ, 4 * 384), (sV, 384)], GB + G_IT)
        b.e('s_mov_b64 exec, 0xffffff')
        b.e(f'buffer_store_dwordx4 {vr(R, 4)}, {vL16}, {WS}, {t1} offen sc1')
        b.e('s_mov_b64 exec, -1')

    def clear_c1(self, R, va, vt):
        b = self.a
        for r in range(R, R + 4):
            b.e(f'v_mov_b32 v{r}, -1')
        b.e(f'v_lshrrev_b32 {va}, 4, v0')
        b.e(f'v_and_b32 {vt}, 0xf0, {vL16}')
        b.e(f'v_lshl_or_b32 {va}, {va}, 16, {vt}')
        out = []
        for q in range(4):
            out.append(f's_add_u32 {t1}, {oC1pub}, {q * 4096}')
            out.append(f'buffer_store_dwordx4 {vr(R, 4)}, {va}, {WS}, {t1} offen')
        return out

    def oob(self, reg, mask):
        a = self.a
        a.e(f's_mov_b32 vcc_lo, {mask[0]}')
        a.e(f's_mov_b32 vcc_hi, {mask[1]}')
        a.e(f'v_cndmask_b32 {reg[0]}, {reg[1]}, 2.0, vcc')

    def c1_addr(self, dst, tmp):
        a = self.a
        a.e(f'v_lshrrev_b32 {tmp}, 4, v0')
        a.e(f'v_and_b32 {dst}, 0xf0, {vL16}')
        a.e(f'v_lshl_or_b32 {dst}, {tmp}, 12, {dst}')

    def stats(self, S):
        out = []
        for c in (4, 2, 1):
            out.append(f'v_add_f32_dpp v{S + 1}, v{S + 1}, v{S + 1} row_ror:{c} {FULL}')
            out.append(f'v_add_f32_dpp v{S}, v{S}, v{S} row_ror:{c} {FULL}')
        out.append(f'v_mul_f32 v{S + 1}, {f32(1.0 / (8 * 576))}, v{S + 1}')
        out.append(f'v_mul_f32 v{S}, {f32(1.0 / 576)}, v{S}')
        out.append(f'v_fma_f32 v{S}, -v{S + 1}, v{S + 1}, v{S}')
        out.append(f'v_max_f32 v{S}, 0, v{S}')
        out.append(f'v_add_f32 v{S}, {f32(1e-5)}, v{S}')
        out.append(f'v_rsq_f32 v{S}, v{S}')
        out.append(f'v_mul_f32 v{S + 1}, 0x3e000000, v{S + 1}')
        out.append(f'v_mul_f32 v{S}, {f32(QSCALE)}, v{S}')
        return out

    def mix(self, x, y):
        x, y = list(x), list(y)
        while x or y:
            if x:
                self.a.e(x.pop(0))
            if y:
                self.a.e(y.pop(0))

    def resid(self, goff, base, va, final):
        a = self.a
        a.e(f'v_lshlrev_b32 {va}, 2, v0')
        a.e(f's_add_u32 {t2}, {oRES}, {goff}')
        a.e('s_mov_b64 exec, 0xfff')
        if final:
            self.sleep('fin')
        self.poll_begin()
        for i in range(8):
            if i & 1 == 0:
                a.e(f's_add_u32 {t3}, {t2}, {i * 3072}')
            a.e(f'buffer_load_dword v{base + i}, {va}, {WSG}, {t3} offen offset:{(i & 1) * 3072} sc1')
        a.e(f'v_mov_b32 v{base + 8}, 0x3f80')
        a.e(f'v_mov_b32 v{base + 9}, 0x3f800000')
        a.e('v_mov_b64 v[4:5], 0')
        for i in range(8):
            if i & 1 == 0:
                a.e(f's_waitcnt vmcnt({6 - i})')
            a.e(f'v_dot2c_f32_bf16 v4, v{base + 8}, v{base + i}')
            a.e(f'v_dot2c_f32_bf16 v5, v{base + 9}, v{base + i}')
        a.e('s_nop 2')
        a.e('v_cmp_u_f32 vcc, v4, v5')
        if final:
            a.e('v_cvt_pk_bf16_f32 v9, v4, v5')
            a.e(f's_mul_i32 {t0}, {sJ}, 48')
        self.poll_br()

    def resid_track(self, goff, base, va, cond):
        a = self.a
        go, back = a.lab('res'), a.lab('resback')
        a.e(cond)
        a.e(f's_cbranch_scc1 {go}')
        a.e(f'{back}:')
        sub = Asm()
        sub.uid = a.uid + 1000 * (1 + len(a.tail))
        self.a = sub
        sub.e(f'{go}:')
        sub.e('s_nop 1')
        self.resid(goff, base, va, False)
        sub.e('s_mov_b64 exec, -1')
        sub.e(f's_branch {back}')
        self.a = a
        body = [i.text for i in sub.ins]
        cut = [k for k in range(0, len(body), 14)]
        for k in cut:
            part = body[k:k + 14]
            if k + 14 < len(body):
                nxt = a.lab('resp')
                part.append(f's_branch {nxt}')
                body[k + 14] = f'{nxt}:\n' + body[k + 14]
            a.ool('\n'.join(part))
        for t in sub.tail:
            a.ool(t)

    def qa_addr(self, T):
        a = self.a
        a.e(f'v_and_b32 v{T}, 4, v0')
        a.e(f'v_lshlrev_b32 v{T}, 3, v{T}')
        a.e(f'v_and_b32 v{T + 1}, 3, v0')
        a.e(f'v_lshl_or_b32 v{T}, v{T + 1}, 2, v{T}')
        a.e(f'v_lshrrev_b32 v{T + 1}, 5, v0')
        a.e(f'v_lshl_or_b32 v{T}, v{T + 1}, 4, v{T}')
        a.e(f'v_bfe_u32 v{T + 1}, v0, 4, 1')
        a.e(f'v_lshl_or_b32 v{T}, v{T + 1}, 1, v{T}')
        a.e(f's_lshl_b32 {t0}, {sV}, 6')
        a.e(f's_add_u32 {t0}, {t0}, {ZQ}')
        a.e(f'v_add_u32 v{T}, {t0}, v{T}')
        a.e(f'v_and_b32 v{T + 1}, 7, v0')
        a.e(f'v_lshlrev_b32 v{T + 1}, 3, v{T + 1}')
        self.oob((f'v{T + 1}', f'v{T + 1}'), (0xc0c0c0c0, 0xc0c0c0c0))
        self.oob((f'v{T + 3}', vL16), (0, 0xffff0000))
        self.sp_addr(f'v{T + 2}', ZQ)

    def red8(self, R):
        return [f'v_permlane32_swap_b32 v{R}, v{R + 2}',
                f'v_permlane32_swap_b32 v{R + 1}, v{R + 3}',
                f'v_pk_add_f32 {vr(R, 2)}, {vr(R, 2)}, {vr(R + 2, 2)}',
                f'v_permlane16_swap_b32 v{R}, v{R + 1}',
                f'v_add_f32 v{R}, v{R}, v{R + 1}',
                f'v_add_f32_dpp v{R}, v{R}, v{R} row_ror:8 {FULL}']

    def qa_loads(self, R, S, T):
        return [f'buffer_load_dwordx2 {vr(S, 2)}, v{T + 1}, {WSL}, {oSTgA} offen sc1',
                f'buffer_load_dwordx4 {vr(R, 4)}, v{T + 3}, {WSL}, {oQgA} offen sc1']

    def qa_finish(self, R, S, T, Q, br=False):
        a = self.a
        self.mix(self.stats(S), self.red8(R) + [f'v_and_b32 v{R + 1}, 0xffff0000, v1'])
        a.e(f'v_fma_f32 v{R}, -v{S + 1}, v{R + 1}, v{R}')
        a.e(f'v_mul_f32 v{R}, v{R}, v{S}')
        a.e(f'v_cvt_pk_bf16_f32 v{R}, v{R}, v{R}')
        a.e(f'ds_write_b16 v{T}, v{R}')
        if br:
            return
        self.bar(2, br)
        a.e(f'ds_read_b128 {vr(Q, 4)}, v{T + 2}')
        a.tag_ds('q0')
        a.e(f'ds_read_b128 {vr(Q + 4, 4)}, v{T + 2} offset:128')
        a.tag_ds('q1')

    def p_addr(self, r, t):
        a = self.a
        a.e(f'v_and_b32 {r}, 0x32, v0')
        a.e(f'v_lshlrev_b32 {r}, 3, {r}')
        a.e(f'v_and_b32 {t}, 8, v0')
        a.e(f'v_lshl_or_b32 {r}, {t}, 2, {r}')
        a.e(f'v_and_b32 {t}, 5, v0')
        a.e(f'v_lshl_or_b32 {r}, {t}, 1, {r}')
        a.e(f'v_add_u32 {r}, {sW8}, {r}')

    def qk_softmax(self, Q, D, S, T, fill=()):
        a = self.a
        for t in range(19):
            if t >= 3:
                d = D + 4 * ((t - 3) & 3)
                a.e(f'v_add_f32_dpp v{S + ((t - 3) & 3)}, v{d}, v{d + 1} {DPPI} row_mask:{1 << ((t - 3) >> 2)} bank_mask:0xf')
            if 4 <= t + 1 < 16:
                a.e(f'v_mov_b64 {vr(D + 4 * ((t + 1) & 3), 2)}, 0')
            if t < 16:
                d = vr(D + 4 * (t & 3), 4)
                if t == 0:
                    a.wait(ds='q0')
                a.e(f'v_smfmac_f32_16x16x64_bf16 {d}, {vr(Q, 4)}, a[{16 * t}:{16 * t + 7}], v1')
                if t == 0:
                    a.wait(ds='q1')
                elif t - 1 < len(fill):
                    for x in fill[t - 1]:
                        a.e(x)
                a.e(f'v_smfmac_f32_16x16x64_bf16 {d}, {vr(Q + 4, 4)}, a[{16 * t + 8}:{16 * t + 15}], v1')
        self.softmax_a(S, T, f'v{T + 1}')

    def softmax_a(self, S, T, pa, fill=()):
        a = self.a
        fill = list(fill)

        def f2():
            for _ in range(2):
                if fill:
                    a.e(fill.pop(0))
        m = f'v{T}'
        a.e(f'v_max3_f32 {m}, v{S}, v{S + 1}, v{S + 2}')
        a.e(f'v_max_f32 {m}, {m}, v{S + 3}')
        for c in ('row_ror:8', 'row_ror:4', 'row_ror:2', 'row_ror:1'):
            f2()
            a.e(f'v_max_f32_dpp {m}, {m}, {m} {c} {FULL}')
        f2()
        a.e(f'v_max_f32_dpp {m}, {m}, {m} row_bcast:15 row_mask:0xa bank_mask:0xf')
        f2()
        a.e(f'v_max_f32_dpp {m}, {m}, {m} row_bcast:31 row_mask:0xc bank_mask:0xf')
        a.e(f'v_readlane_b32 {sM}, {m}, 63')
        f2()
        assert not fill
        for r in range(4):
            a.e(f'v_subrev_f32 v{S + r}, {sM}, v{S + r}')
        for r in range(4):
            a.e(f'v_exp_f32 v{S + r}, v{S + r}')
        a.e(f'v_cvt_pk_bf16_f32 v{T + 2}, v{S}, v{S + 1}')
        a.e(f'v_cvt_pk_bf16_f32 v{T + 3}, v{S + 2}, v{S + 3}')
        a.e(f'ds_write_b16 {pa}, v{T + 2} offset:6144')
        a.e(f'ds_write_b16_d16_hi {pa}, v{T + 2} offset:{6144 + 4}')
        a.e(f'ds_write_b16 {pa}, v{T + 3} offset:{6144 + 64}')
        a.e(f'ds_write_b16_d16_hi {pa}, v{T + 3} offset:{6144 + 68}')

    def lsum(self, l, S):
        out = [f'v_pk_add_f32 {vr(S, 2)}, {vr(S, 2)}, {vr(S + 2, 2)}', f'v_add_f32 {l}, v{S}, v{S + 1}']
        for c in ('row_ror:8', 'row_ror:4', 'row_ror:2', 'row_ror:1'):
            out.append(f'v_add_f32_dpp {l}, {l}, {l} {c} {FULL}')
        out.append(f'v_add_f32_dpp {l}, {l}, {l} row_bcast:15 row_mask:0xa bank_mask:0xf')
        out.append(f'v_add_f32_dpp {l}, {l}, {l} row_bcast:31 row_mask:0xc bank_mask:0xf')
        return out

    def ml_write(self, T):
        return [f's_lshl_b32 {t0}, {sV}, 3', f's_add_u32 {t0}, {t0}, {ZML}', f'v_mov_b32 v{T + 2}, 0x30000', f'v_mov_b32 v{T}, {sM}',
                f'v_writelane_b32 v{T + 2}, {t0}, 63\nds_write_b64 v{T + 2}, {vr(T, 2)}']

    def ml_read(self, R, T):
        return [f'v_mov_b32 v{T}, {ZML}', f'ds_read_b128 {vr(R, 4)}, v{T}', f'ds_read_b128 {vr(R + 4, 4)}, v{T} offset:16']

    def ml_scale(self, R, T, F, LW):
        out = [f'v_max3_f32 v{T}, v{R}, v{R + 2}, v{R + 4}', f'v_max_f32 v{T}, v{T}, v{R + 6}']
        out += [f'v_sub_f32 v{R + 2 * w}, v{R + 2 * w}, v{T}' for w in range(4)]
        out += [f'v_sub_f32 v{F}, {sM}, v{T}']
        out += [f'v_exp_f32 v{R + 2 * w}, v{R + 2 * w}' for w in range(4)]
        out += [f'v_exp_f32 v{F}, v{F}', f'v_mul_f32 v{LW}, v{R}, v{R + 1}']
        out += [f'v_fmac_f32 v{LW}, v{R + 2 * w}, v{R + 2 * w + 1}' for w in range(1, 4)]
        out += [f'v_rcp_f32 v{R}, v{LW}', f'v_log_f32 v{LW}, v{LW}', f'v_mul_f32 v{F}, v{F}, v{R}', f'v_add_f32 v{LW}, v{LW}, v{T}']
        return out

    def combine_publish(self):
        a = self.a
        a.e('ds_write2st64_b32 v46, v44, v45 offset0:26 offset1:27')
        a.e(f'buffer_load_dword v16, v47, {WSL}, {oOALg} offen sc1')
        a.tag_vm('lw')
        a.e(f'v_mov_b32 v10, {STG + 6656}')
        a.e('v_lshl_add_u32 v8, v0, 3, v10')
        a.e('v_and_b32 v10, 56, v0')
        a.e('v_lshlrev_b32 v10, 5, v10')
        a.e(f'v_and_or_b32 v10, {vL16}, 16, v10')
        a.e('v_and_b32 v11, 6, v0')
        a.e('v_lshl_or_b32 v10, v11, 1, v10')
        a.e(f's_cmp_lg_u32 {sV}, 0')
        self.H('c1', 0, 12)
        a.e('s_waitcnt lgkmcnt(0)')
        a.e('s_barrier')
        l = a.lab('notw')
        a.e(f's_cbranch_scc1 {l}')
        a.begin_skip()
        for w in range(4):
            a.e(f'ds_read_b64 {vr(20 + 2 * w, 2)}, v8 offset:{w * 8192}')
            a.tag_ds(f'o{w}')
            if w == 0:
                self.H('c2', 0, 12)
        a.wait(ds='o1')
        a.e('v_pk_add_f32 v[20:21], v[20:21], v[22:23]')
        a.wait(ds='o3')
        a.e('v_pk_add_f32 v[24:25], v[24:25], v[26:27]')
        a.e('v_pk_add_f32 v[20:21], v[20:21], v[24:25]')
        a.e('v_cvt_pk_bf16_f32 v20, v20, v21')
        self.end_only(l)
        self.lstore([f'buffer_store_dword v20, v10, {WSL}, {oOApub} offen'])

    def w8(self, lw, t):
        return [f'v_max_f32_dpp {t}, {lw}, {lw} row_ror:4 {FULL}',
                f'v_max_f32_dpp {t}, {t}, {t} row_ror:2 {FULL}',
                f'v_max_f32_dpp {t}, {t}, {t} row_ror:1 {FULL}',
                f'v_sub_f32 {lw}, {lw}, {t}',
                f'v_exp_f32 {lw}, {lw}',
                f'v_add_f32_dpp {t}, {lw}, {lw} row_ror:4 {FULL}',
                f'v_add_f32_dpp {t}, {t}, {t} row_ror:2 {FULL}',
                f'v_add_f32_dpp {t}, {t}, {t} row_ror:1 {FULL}',
                f'v_rcp_f32 {t}, {t}']

    def rot8(self, dst, sh):
        a = self.a
        a.e(f'v_lshrrev_b32 {dst}, 4, v0')
        a.e(f'v_lshl_add_u32 {dst}, {dst}, 1, v0')
        a.e(f'v_and_b32 {dst}, 7, {dst}')
        a.e(f'v_lshlrev_b32 {dst}, {sh}, {dst}')

    def weigh2(self, skip=0, lw='v16', chk=False):
        a = self.a
        w = self.w8(lw, 'v17')
        for x in w[skip:6]:
            a.e(x)
        a.e('v_add_f32 v20, v20, v21')
        a.e('v_add_f32 v22, v22, v23')
        a.e(w[6])
        a.e('v_add_f32 v24, v24, v25')
        a.e('v_add_f32 v26, v26, v27')
        a.e(w[7])
        a.e(f'v_mul_f32_dpp v20, {lw}, v20 row_newbcast:0 {FULL}')
        a.e(f'v_mul_f32_dpp v24, {lw}, v24 row_newbcast:0 {FULL}')
        a.e(f'v_fmac_f32_dpp v20, {lw}, v22 row_newbcast:1 {FULL}')
        a.e(f'v_fmac_f32_dpp v24, {lw}, v26 row_newbcast:1 {FULL}')
        a.e(w[8])
        if chk:
            a.e('v_cmp_u_f32 vcc, v20, v20')
        a.e('v_permlane32_swap_b32 v20, v24')
        a.e('v_add_f32 v20, v20, v24')
        a.e('v_mul_f32 v20, v20, v17')

    def w8n(self, lw, t, W):
        return self.w8(lw, t) + [f'v_mul_f32_dpp v{W}, {lw}, {t} row_newbcast:0 {FULL}', f'v_mul_f32_dpp v{W + 1}, {lw}, {t} row_newbcast:1 {FULL}']

    def weigh2n(self, W):
        a = self.a
        w = vr(W, 2)
        a.e(f'v_pk_mul_f32 v[20:21], v[20:21], {w} op_sel_hi:[1,0]')
        a.e(f'v_pk_fma_f32 v[20:21], v[22:23], {w}, v[20:21] op_sel:[0,1,0] op_sel_hi:[1,1,1]')
        a.e(f'v_pk_mul_f32 v[24:25], v[24:25], {w} op_sel_hi:[1,0]')
        a.e('v_add_f32 v20, v20, v21')
        a.e(f'v_pk_fma_f32 v[24:25], v[26:27], {w}, v[24:25] op_sel:[0,1,0] op_sel_hi:[1,1,1]')
        a.e('v_add_f32 v24, v24, v25')
        a.e('v_cmp_u_f32 vcc, v20, v20')
        a.e('v_permlane32_swap_b32 v20, v24')
        a.e('v_add_f32 v20, v20, v24')

    def outproj(self, isa):
        a = self.a
        if not isa:
            a.e(f's_add_u32 {t4}, {oO}, {L_OB - L_OA}')
        so = oO if isa else t4
        ld = [f'buffer_load_dwordx4 v[8:11], {vL16}, {WSL}, {so} offen sc1',
              f'buffer_load_dwordx4 v[12:15], {vL16}, {WSL}, {so} offen offset:1024 sc1']
        a.e('v_lshrrev_b32 v28, 4, v0')
        a.e('v_bfe_u32 v29, v0, 2, 2')
        a.e('v_lshl_add_u32 v28, v28, 3, v29')
        a.e('v_mul_u32_u24 v28, 48, v28')
        a.e('v_and_b32 v29, 3, v0')
        a.e('v_lshl_add_u32 v28, v29, 3, v28')
        a.e(f'v_add_u32 v28, {sW8}, v28')
        tr = []
        for blk in range(2):
            for tile in range(2):
                for hh in range(2):
                    for half in range(2):
                        off = (64 * blk + 32 * hh + 4 * half) * 48 + 32 * tile
                        tr.append(f'ds_read_b64_tr_b16 {vr(32 + 16 * tile + 8 * blk + 4 * hh + 2 * half, 2)}, v28 offset:{off}')
        a.e(f's_lshl_b32 {t2}, {sV}, 3')
        a.e(f's_add_u32 {t2}, {t2}, {ZO}')
        pre = ['v_and_b32 v18, 15, v0', 'v_lshrrev_b32 v19, 5, v0', 'v_lshl_add_u32 v18, v19, 4, v18', 'v_bfe_u32 v19, v0, 4, 1',
               'v_lshlrev_b32 v19, 2, v19', 'v_lshl_add_u32 v18, v18, 5, v19', f'v_add_u32 v18, {t2}, v18', f'v_mov_b32 v19, {ZO}',
               'v_and_b32 v29, 15, v0', 'v_lshl_add_u32 v19, v29, 6, v19', 'v_lshlrev_b32 v29, 2, v0']
        n1 = self.o.get('tr_pre', 8)
        if isa:
            a.e('s_waitcnt vmcnt(1)')
            a.vmq = []
        a.wait(vm='wo')
        for x in tr[:n1]:
            a.e(x)
        if isa:
            chk, again = a.lab('chk'), a.lab('again')
            a.e(f'{chk}:')
            a.e('v_cmp_eq_u32 vcc, -1, v16')
            a.e('v_mov_b32 v22, v16')
            self.retry_to(again)
            a.ool(f'{again}:\nbuffer_load_dword v16, v47, {WSL}, {oOALg} offen sc1\ns_waitcnt vmcnt(1)\ns_branch {chk}')
        self.sleep('h1' if isa else 'hd')
        for x in ld:
            a.e(x)
        if isa:
            pre = [x for p in zip(self.w8n('v22', 'v17', 30), pre) for x in p]
        self.mix(tr[n1:], pre)
        a.e(f's_add_u32 {t2}, {oYpub}, {G_YA if isa else G_YB}')
        top = a.lab('poll')
        a.e(f'{top}:')
        for x in ld:
            self.H('o0', 0, 20)
            a.e(x)
        for r in range(26, 18, -2):
            a.e(f'v_mov_b64 {vr(r, 2)}, 0')
        self.K(0, 'po', True)
        a.e(f's_waitcnt vmcnt({len(ld)}) lgkmcnt(0)')
        a.e('v_cmp_u_f32 vcc, v8, v12')
        a.e('v_smfmac_f32_16x16x64_bf16 v[20:23], v[8:11], v[32:39], v1')
        a.e('v_smfmac_f32_16x16x64_bf16 v[20:23], v[12:15], v[40:47], v1')
        self.retry_to(top)
        a.e('v_smfmac_f32_16x16x64_bf16 v[24:27], v[8:11], v[48:55], v1')
        a.e('v_smfmac_f32_16x16x64_bf16 v[24:27], v[12:15], v[56:63], v1')
        self.stamp('ogot')
        if isa:
            self.weigh2n(30)
        else:
            a.e('v_pk_add_f32 v[20:21], v[20:21], v[22:23]')
            a.e('v_add_f32 v20, v20, v21')
            a.e('v_cmp_u_f32 vcc, v20, v20')
            a.e('v_pk_add_f32 v[24:25], v[24:25], v[26:27]')
            a.e('v_add_f32 v24, v24, v25')
            a.e('v_permlane32_swap_b32 v20, v24')
            a.e('v_add_f32 v20, v20, v24')
        a.e('ds_write_b32 v18, v20')
        self.H('o1', 0, 24)
        self.retry_to(top)
        a.e(f's_bitcmp0_b32 {sRES}, 0')
        self.H('o2', 0, 24)
        self.bar(1, True)
        l = a.lab('noy')
        a.e(f's_cbranch_scc1 {l}')
        a.begin_skip()
        for i in range(4):
            a.e(f'ds_read_b128 {vr(32 + 4 * i, 4)}, v19 offset:{16 * i}')
            a.tag_ds(f'z{i}')
            if i == 1:
                self.H('o3', 0, 24)
        a.e('s_mov_b32 exec_hi, 0')
        self.K(2)
        self.Wm()
        a.wait(ds='z1')
        a.e('v_pk_add_f32 v[32:33], v[32:33], v[34:35]')
        a.e('v_pk_add_f32 v[36:37], v[36:37], v[38:39]')
        a.e('v_pk_add_f32 v[32:33], v[32:33], v[36:37]')
        a.e('v_add_f32 v32, v32, v33')
        a.wait(ds='z3')
        a.e('v_pk_add_f32 v[40:41], v[40:41], v[42:43]')
        a.e('v_pk_add_f32 v[44:45], v[44:45], v[46:47]')
        a.e('v_pk_add_f32 v[40:41], v[40:41], v[44:45]')
        a.e('v_add_f32 v33, v40, v41')
        a.e('v_pk_add_f32 v[32:33], v[32:33], v[4:5]')
        a.e('v_cvt_pk_bf16_f32 v32, v32, v33')
        a.e(f'buffer_store_dword v32, v29, {WSG}, {t2} offen sc1')
        a.e('s_mov_b32 exec_hi, -1')
        a.end_skip()
        a.e(f'{l}:')
        self.stamp('ypub')

    def qabs(self):
        a = self.a
        a.e('v_and_b32 v36, 7, v0')
        a.e('v_lshlrev_b32 v37, 3, v36')
        self.oob(('v37', 'v37'), (0xc0c0c0c0, 0xc0c0c0c0))
        self.oob(('v33', vL16), (0xf000f000, 0xf000f000))
        a.e(f's_sub_u32 {t0}, {sW8}, {sKV}')
        a.e(f'v_add_u32 v56, {t0}, {vA}')
        for ks in range(1, 4):
            a.e(f'v_xor_b32 v{56 + ks}, {ks << 6}, v56')
        a.e('v_and_b32 v38, 8, v0')
        a.e('v_lshlrev_b32 v38, 3, v38')
        a.e('v_lshl_or_b32 v38, v36, 1, v38')
        a.e(f's_lshl_b32 {t0}, {sV}, 4')
        a.e(f's_add_u32 {t0}, {t0}, {ZQ}')
        a.e(f'v_add_u32 v38, {t0}, v38')
        a.e(f'v_add_u32 v39, {ZQ}, {vL16}')
        if self.o.get('qflag', 1):
            chk, again = a.lab('chk'), a.lab('again')
            a.wait(vm='fl')
            a.e(f'{chk}:')
            a.e('v_cmp_eq_u32 vcc, -1, v10')
            self.retry_to(again)
            a.ool(f'{again}:\nbuffer_load_dword v10, v9, {WSL}, {oOALg} offen offset:{L_FL - L_OAL} sc1\ns_waitcnt vmcnt(1)\ns_branch {chk}')
        self.sleep('hqb')
        top = a.lab('poll')
        a.e(f'{top}:')
        a.e(f'buffer_load_dwordx2 v[34:35], v37, {WSL}, {oSTgB} offen sc1')
        a.tag_vm('st')
        for i in (2, 3, 0, 1):
            a.e(f'buffer_load_dwordx4 {vr(8 + 4 * i, 4)}, v33, {WSL}, {oQgB} offen offset:{i * 1024} sc1')
            a.tag_vm(f'q{i}')
        a.e('s_waitcnt vmcnt(5)')
        for ks in range(4):
            a.e(f'ds_read_b128 {vr(40 + 4 * ks, 4)}, v{56 + ks}')
            a.e(f'v_mov_b64 {vr(24 + 2 * ks, 2)}, 0')
        self.H('q1', 0, 60)
        a.wait(vm='st')
        a.e('v_cmp_u_f32 vcc, v34, v35')
        st = self.stats(34)
        for x in st[:4]:
            a.e(x)
        self.retry_to(top)
        for x in st[4:6]:
            a.e(x)
        a.e('s_waitcnt lgkmcnt(0)')
        a.wait(vm='q2')
        a.e('v_smfmac_f32_16x16x64_bf16 v[28:31], v[16:19], v[40:47], v1')
        for x in st[6:]:
            a.e(x)
        a.wait(vm='q3')
        a.e('v_smfmac_f32_16x16x64_bf16 v[28:31], v[20:23], v[48:55], v1')
        self.H('q2', 0, 60)
        a.wait(vm='q0')
        a.e('v_smfmac_f32_16x16x64_bf16 v[24:27], v[8:11], v[40:47], v1')
        self.K(1, 'qb3', True)
        a.e('v_pk_add_f32 v[28:29], v[28:29], v[30:31]')
        a.e('v_add_f32 v28, v28, v29')
        a.e('v_mul_f32 v28, v28, v35')
        a.e(f's_cmp_lg_u32 {sV}, 0')
        self.K(0, 'qb4', True)
        a.wait(vm='q1')
        a.e('v_smfmac_f32_16x16x64_bf16 v[24:27], v[12:15], v[48:55], v1')
        self.stamp('qgotB', 2)
        a.e('v_pk_add_f32 v[24:25], v[24:25], v[26:27]')
        a.e('v_sub_f32 v24, v24, v28')
        a.e('v_add_f32 v24, v24, v25')
        a.e('v_mul_f32 v25, v24, v34')
        a.e('v_mul_f32 v24, v24, v34')
        a.e('v_cmp_u_f32 vcc, v24, v24')
        a.e('v_permlane32_swap_b32 v24, v25')
        a.e('v_add_f32 v26, v24, v25')
        a.e('v_add_f32 v24, v24, v25')
        a.e('v_permlane16_swap_b32 v24, v26')
        a.e('v_add_f32 v24, v24, v26')
        a.e('v_cvt_pk_bf16_f32 v24, v24, v24')
        a.e('ds_write_b16 v38, v24')
        self.retry_to(top)
        a.e('s_waitcnt lgkmcnt(0)')
        a.e('s_barrier')
        l = a.lab('notw')
        a.e(f's_cbranch_scc1 {l}')
        a.begin_skip()
        a.e('s_mov_b64 exec, 0xff')
        a.e('ds_read_b128 v[24:27], v39')
        a.e('s_waitcnt lgkmcnt(0)')
        a.e(f'buffer_store_dwordx4 v[24:27], {vL16}, {WSG}, {oQApub} offen sc1')
        a.e('s_mov_b64 exec, -1')
        self.end_only(l)
        self.stamp('qapub')
        self.touches('w3', 'v8', 'v9')
        self.resid_track(G_YA, 10, 'v8', f's_cmp_eq_u32 {sRES}, 3')

    def attn_b(self):
        a = self.a
        a.e(f's_mul_i32 {t0}, {sV}, {4096 - 16384}')
        a.e(f's_add_u32 {t0}, {t0}, {CKV}')
        a.e(f'v_add_u32 v56, {t0}, {vA}')
        a.e('v_xor_b32 v57, 64, v56')
        ORD = [(r, ks) for kp in range(2) for r in range(4) for ks in (2 * kp, 2 * kp + 1)]
        ga = ['v_and_b32 v58, 12, v0', 'v_lshlrev_b32 v58, 4, v58', 'v_and_or_b32 v58, v0, 48, v58', 'v_lshlrev_b32 v58, 2, v58',
              f'v_and_or_b32 v58, {vL16}, 48, v58', 'v_lshlrev_b32 v8, 7, v0', 'v_mov_b32 v9, 0']
        for x in ga:
            a.e(x)
        a.e(f'v_add_u32 v59, {STG}, {vL16}')
        a.e('s_barrier')

        self.lstore(self.clear_c1(12, 'v16', 'v17'))
        self.sleep('ha')
        top = a.lab('poll')
        a.e(f'{top}:')
        ld = [f's_mov_b32 m0, {sW8}', 's_mov_b32 exec_hi, 0', f'buffer_load_dword v9, v8, {WSG}, {oQAg} offen sc1', 's_mov_b32 exec_hi, -1']
        for ks in range(4):
            ld.append(f'buffer_load_dwordx4 v58, {WSG}, {oQAg} offen offset:{ks * 1024} sc1 lds')
        for x in ld:
            a.e(x)
        for k in range(8):
            r, ks = ORD[k]
            a.e(f'ds_read_b128 {vr(24 + 4 * k, 4)}, v{56 + (ks & 1)} offset:{r * 16384}')
        a.e('v_xor_b32 v56, 128, v56')
        a.e('v_xor_b32 v57, 128, v57')
        self.k64_addr('v10', None)
        l4 = self.o.get('l4_wo', 0)
        if l4 == 2:
            self.wo_prep(12, 'v15')
        chk, again = a.lab('chk'), a.lab('again')
        a.e(f'{chk}:')
        a.e('s_waitcnt vmcnt(4)')
        a.e('v_cmp_eq_u32 vcc, -1, v9')
        self.retry_to(again)
        a.ool(f'{again}:\n' + '\n'.join(ld) + f'\ns_branch {chk}')
        pol = self.o.get('pol_wuv', '')
        for i in range(1, 4):
            a.e(f's_add_u32 {[t1, t2, t3][i - 1]}, {oWUV}, {i * (16 * 8192 - 1024)}')
        a.e('v_mov_b32 v58, v10')
        half = self.o.get('qa_half', 1)
        if l4 == 2:
            a.e(f's_cmp_eq_u32 {sIT}, 1')
            a.e(f's_cselect_b32 {t0}, {sKV}, 0x30000')
            a.e(f's_cselect_b32 {t4}, {oWO}, {OOB}')
            a.e(f's_cselect_b32 {t5}, {t5}, {OOB}')
            for x in self.wo_lines(BWO, 12, '', t0):
                a.e(x.replace(f', {oWO} ', f', {t4} '))
        ex = 6 if l4 == 2 else 0
        a.e(f's_waitcnt vmcnt({(2 if half else 0) + ex}) lgkmcnt(0)')
        a.e('s_barrier')
        self.stamp('qagot')

        def qread(k):
            r, ks = ORD[k]
            a.e(f'ds_read_b128 {vr(8 + 4 * (k & 3), 4)}, v59 offset:{r * 8192 + ks * 1024}')
            a.tag_ds(f'q{k}')
        for k in range(4):
            qread(k)
        a.e(f's_add_u32 m0, {sW8}, 4096')
        SLOT = [16, 40, 48]

        def tread(e, ad='v57'):
            l = [f'v_xor_b32 {ad}, {CKV | (e << 5)}, {vT}']
            for t in range(4):
                l.append(f'ds_read_b64_tr_b16 {vr(SLOT[e % 3] + 2 * t, 2)}, {ad} offset:{t * 4096}')
            return l
        for k in range(16):
            a.wait(ds=f'q{k}')
            a.e(f'v_mfma_f32_16x16x32_bf16 v[60:63], {vr(24 + 4 * (k & 7), 4)}, {vr(8 + 4 * (k & 3), 4)}, {"v[60:63]" if k else "0"}')
            if k < 8:
                r, ks = ORD[k + 8]
                a.e(f'ds_read_b128 {vr(24 + 4 * k, 4)}, v{56 + (ks & 1)} offset:{r * 16384}')
            if k == 4 and half:
                a.e(f's_waitcnt vmcnt({2 + ex})')
                a.e('s_barrier')
            if k + 4 < 16:
                qread(k + 4)
            if k in (0, 2, 4, 6):
                a.e(f'buffer_load_dwordx4 v58, {WUV}, {[oWUV, t1, t2, t3][k >> 1]} offen offset:{(k >> 1) * 1024} {pol} lds')
            if k == 10:
                a.e('s_barrier')
            if k == 8:
                a.e(f'v_and_b32 v58, 0xf0, {vL16}')
                a.e(f's_lshl_b32 {t0}, {sV}, 2')
            if k == 9:
                a.e(f'v_add_u32 v58, {STG}, v58')
                a.e(f's_add_u32 {t1}, {oC1pub}, 4096')
            if k == 11:
                a.e(f'v_add_u32 v24, {t0}, v58')
                a.e(f's_add_u32 {t2}, {oC1pub}, 8192')
            if k == 12:
                a.e('v_xor_b32 v56, 128, v56')
                a.e(f'v_lshl_add_u32 v25, v0, 3, {sW8}')
            if k == 13:
                t1_ = tread(1)
                a.e(t1_[0]); a.e(t1_[1])
            if k == 14:
                a.e(t1_[2]); a.e(t1_[3])
        a.e(t1_[4])
        t0_, t2_ = tread(0), tread(2)
        a.e(f'v_mov_b32 v26, {STG}')
        a.e('v_lshl_add_u32 v26, v0, 3, v26')
        a.e(f's_add_u32 {t3}, {oC1pub}, 12288')
        for r in range(36, 40):
            a.e(f'v_mov_b32 v{r}, 0x3f803f80')
        a.e('v_max3_f32 v28, v60, v61, v62')
        a.e('v_max_f32 v29, v28, v63')
        a.e('v_max_f32 v28, v28, v63')
        a.e(t0_[0]); a.e(t0_[1])
        a.e('v_permlane32_swap_b32 v28, v29')
        a.e('v_max_f32 v30, v28, v29')
        a.e('v_max_f32 v28, v28, v29')
        a.e(t0_[2]); a.e(t0_[3])
        a.e('v_permlane16_swap_b32 v28, v30')
        a.e('v_max_f32 v28, v28, v30')
        a.e('ds_write_b32 v24, v28')
        a.tag_ds('mw')
        a.e(t0_[4])
        a.e(t2_[0])
        self.H('b0', 1, 32)
        a.e(t2_[1]); a.e(t2_[2]); a.e(t2_[3]); a.e(t2_[4])
        self.H('b1', 1, 32)
        a.wait(ds='mw')
        a.e('s_barrier')
        a.e('ds_read_b128 v[28:31], v58')
        a.tag_ds('mr')
        self.stamp('sbar', 2)
        self.H('b2', 1, 32)
        a.wait(ds='mr')
        a.e('v_max3_f32 v28, v28, v29, v30')
        a.e('v_max_f32 v28, v28, v31')
        a.e('v_pk_add_f32 v[60:61], v[60:61], v[28:29] op_sel_hi:[1,0] neg_lo:[0,1] neg_hi:[0,1]')
        a.e('v_pk_add_f32 v[62:63], v[62:63], v[28:29] op_sel_hi:[1,0] neg_lo:[0,1] neg_hi:[0,1]')
        for r in range(60, 64):
            a.e(f'v_exp_f32 v{r}, v{r}')
        a.e('v_cvt_pk_bf16_f32 v30, v60, v61')
        a.e('v_cvt_pk_bf16_f32 v31, v62, v63')
        a.e('ds_write_b64 v25, v[30:31] offset:1024')
        a.e('v_lshrrev_b32 v61, 4, v0')
        a.e(f'v_and_b32 v60, 0xf0, {vL16}')
        a.e('v_lshl_or_b32 v61, v61, 16, v60')
        a.e('v_mov_b32 v62, v28')
        a.e('v_xor_b32 v57, 64, v56')
        a.e('v_and_b32 v27, 12, v0')
        a.e('v_lshlrev_b32 v27, 4, v27')
        self.H('b3', 1, 32)
        self.lcmp()
        a.e('s_waitcnt lgkmcnt(0)')
        a.e('s_barrier')
        a.e('ds_read2st64_b64 v[8:11], v26 offset0:2 offset1:18')
        a.tag_ds('p0')
        a.e('ds_read2st64_b64 v[12:15], v26 offset0:34 offset1:50')
        a.tag_ds('p1')
        self.stamp('smax', 2)
        a.e('v_and_or_b32 v27, v0, 3, v27')
        a.e('v_lshlrev_b32 v27, 3, v27')
        self.K(2, 'b4', True)
        ACC = [28, 56, 36, 32]
        a.wait(ds='p0')
        a.e('v_cmp_u_f32 vcc, v8, v8')
        a.e(f'v_mfma_f32_16x16x32_bf16 v[28:31], v[8:11], {vr(SLOT[0], 4)}, 0')
        a.e('v_mfma_f32_16x16x32_bf16 v[32:35], v[36:39], v[8:11], 0')
        again = a.lab('again')
        self.retry_to(again)
        a.ool(f'{again}:\n' + '\n'.join(['s_waitcnt lgkmcnt(0)'] + ga) + f'\ns_barrier\ns_branch {top}')
        a.wait(ds='p1')
        a.e('v_mfma_f32_16x16x32_bf16 v[32:35], v[36:39], v[12:15], v[32:35]')
        so = [oC1pub, t1, t2, t3]
        ml = ['s_mov_b64 exec, 0xffff', f'buffer_store_dwordx2 v[62:63], v27, {WSL}, {oMLpub} offen', 's_mov_b64 exec, -1']
        mlat = self.o.get('ml_at', 2)

        def pack(q):
            d0, d1 = ACC[(2 * q) & 3], ACC[(2 * q + 1) & 3]
            return [f'v_cvt_pk_bf16_f32 v{24 + r}, v{d0 + r}, v{d1 + r}' for r in range(4)]

        def put(q):
            self.lstore([f'buffer_store_dwordx4 v[24:27], v61, {WS}, {so[q]} offen'] + (ml if q == mlat else []))
        F = {e: [[], []] for e in range(8)}
        early = self.o.get('ml_early', 1)
        mlat = -1
        F[1][1] = ['v_mov_b32 v63, v32']
        F[self.o.get('ml_e', 2)][1] += ['ML']
        F[3][0] = pack(0)[:2]
        F[3][1] = pack(0)[2:]
        F[5][0] = pack(1)[:2]
        F[5][1] = pack(1)[2:]
        F[6][0] = ['v_and_b32 v60, 3, v0', 'v_lshlrev_b32 v60, 6, v60']
        F[6][1] = ['v_and_or_b32 v60, v0, 60, v60', 'v_lshlrev_b32 v60, 1, v60']
        F[7][0] = pack(2)
        for e in range(8):
            a.wait(ds=f't{e}')
            d = vr(ACC[e & 3], 4)
            s = SLOT[e % 3]
            nx = tread(e + 3, 'v60') if e + 3 < 8 else []
            if nx:
                a.e(nx[0])
            if e:
                a.e(f'v_mfma_f32_16x16x32_bf16 {d}, v[8:11], {vr(s, 4)}, 0')
            if e in (4, 6):
                put((e - 4) // 2)
            for x in nx[1:3]:
                a.e(x)
            for x in F[e][0]:
                a.e(x)
            a.e(f'v_mfma_f32_16x16x32_bf16 {d}, v[12:15], {vr(s + 4, 4)}, {d}')
            for x in nx[3:]:
                a.e(x)
            if nx:
                a.tag_ds(f't{e + 3}')
            for x in F[e][1]:
                if x == 'ML':
                    self.lstore(ml)
                else:
                    a.e(x)
            if e == 7:
                put(2)
        if early == 1:
            a.e(f'buffer_load_dwordx2 v[22:23], v60, {WSL}, {oMLg} offen sc1')
            a.tag_vm('ml0')
        for x in pack(3):
            a.e(x)
        put(3)
        if early == 2:
            a.e(f'buffer_load_dwordx2 v[22:23], v60, {WSL}, {oMLg} offen sc1')
            a.tag_vm('ml0')
        self.stamp('c1pub')

    def red(self):
        a = self.a
        ld = f'buffer_load_dwordx2 v[22:23], v60, {WSL}, {oMLg} offen sc1'
        a.e('v_and_b32 v45, 56, v0')
        a.e('v_lshlrev_b32 v45, 1, v45')
        a.e('v_and_or_b32 v45, v0, 6, v45')
        a.e('v_lshlrev_b32 v45, 1, v45')
        a.e(f'v_and_or_b32 v45, {vL16}, 16, v45')
        a.e('v_lshlrev_b32 v46, 2, v0')
        for r in range(28, 36, 2):
            a.e(f'v_mov_b64 {vr(r, 2)}, 0')
        ne = self.o.get('wo_e', 0)
        if ne:
            self.wo_prep(41, 'v39')
            a.e('s_barrier')
        cl = [f'buffer_load_dwordx4 {vr(8 + 4 * i, 4)}, {vL16}, {WS}, {oC1g} offen offset:{i * 1024} sc1' for i in range(4)]
        ch = [f'v_max_f32_dpp v36, v22, v22 quad_perm:[1,0,3,2] {FULL}',
              f'v_max_f32_dpp v37, v36, v36 quad_perm:[2,3,0,1] {FULL}', f'v_max_f32_dpp v36, v36, v36 quad_perm:[2,3,0,1] {FULL}',
              'v_permlane32_swap_b32 v36, v37', 'v_max_f32 v38, v36, v37', 'v_max_f32 v36, v36, v37',
              'v_permlane16_swap_b32 v36, v38', 'v_max_f32 v36, v36, v38', 'v_sub_f32 v24, v24, v36', 'v_exp_f32 v24, v24',
              'v_mul_f32 v25, v25, v24', f'v_add_f32_dpp v25, v25, v25 quad_perm:[1,0,3,2] {FULL}',
              f'v_add_f32_dpp v37, v25, v25 quad_perm:[2,3,0,1] {FULL}', f'v_add_f32_dpp v25, v25, v25 quad_perm:[2,3,0,1] {FULL}',
              'v_permlane32_swap_b32 v25, v37', 'v_add_f32 v38, v25, v37', 'v_add_f32 v25, v25, v37',
              'v_permlane16_swap_b32 v25, v38', 'v_add_f32 v25, v25, v38', 'v_rcp_f32 v38, v25', 'v_log_f32 v37, v25',
              'v_mul_f32 v24, v24, v38', 'v_add_f32 v37, v37, v36', 'v_cvt_pk_bf16_f32 v26, v24, 0', 'v_cvt_pk_bf16_f32 v27, 0, v24']
        chk, again = a.lab('chk'), a.lab('again')
        a.wait(vm='ml0')
        a.e(f'{chk}:')
        a.e('v_cmp_u_f32 vcc, v22, v23')
        a.e(ch[0])
        a.e('v_mov_b64 v[24:25], v[22:23]')
        self.retry_to(again)
        a.ool(f'{again}:\n{ld}\ns_waitcnt vmcnt(1)\ns_branch {chk}')
        self.stamp('mlgot', 2)
        npre = self.o.get('red_pre', 8)
        for x in ch[1:npre]:
            a.e(x)
        self.sleep('hc1')
        for i, x in enumerate(cl):
            a.e(x)
            a.tag_vm(f'c{i}')
        for x in self.wo_group(BWO, 41, 0, ne):
            a.e(x)
        for x in ch[max(npre, 1):]:
            a.e(x)
        lwe = self.o.get('lw_early', 1)
        lws = ['s_mov_b32 exec_hi, 0', f'buffer_store_dword v37, v46, {WSG}, {oC2Lpub} offen sc1', 's_mov_b32 exec_hi, -1']
        if lwe:
            for x in lws:
                a.e(x)
        self.H('r1', 0, 48)
        top, again = a.lab('acc'), a.lab('again')
        a.e(f'{top}:')
        for i in range(4):
            if i:
                self.K(0, 'rd', True)
            a.wait(vm=f'c{i}')
            for d in range(4):
                a.e(f'v_dot2c_f32_bf16_dpp v{28 + 2 * d}, v26, v{8 + 4 * i + d} row_newbcast:{4 * d + i} {FULL}')
                a.e(f'v_dot2c_f32_bf16_dpp v{29 + 2 * d}, v27, v{8 + 4 * i + d} row_newbcast:{4 * d + i} {FULL}')
        for i in range(4):
            a.e(f'v_permlane32_swap_b32 v{28 + i}, v{32 + i}')
        a.e('v_pk_add_f32 v[28:29], v[28:29], v[32:33]')
        a.e('v_pk_add_f32 v[30:31], v[30:31], v[34:35]')
        a.e('v_cmp_u_f32 vcc, v28, v30')
        a.e('v_permlane16_swap_b32 v28, v30')
        a.e('v_permlane16_swap_b32 v29, v31')
        a.e('v_pk_add_f32 v[28:29], v[28:29], v[30:31]')
        a.e('v_cvt_pk_bf16_f32 v28, v28, v29')
        self.retry_to(again)
        a.ool(f'{again}:\n' + '\n'.join(cl) + '\n' + '\n'.join(f'v_mov_b64 {vr(r, 2)}, 0' for r in range(28, 36, 2)) + f'\ns_waitcnt vmcnt(0)\ns_branch {top}')
        a.e(f'buffer_store_dword v28, v45, {WSG}, {oC2pub} offen sc1')
        if not lwe:
            for x in lws:
                a.e(x)
        self.stamp('c2pub')
        a.e('v_and_b32 v40, 4, v0')
        a.e('v_lshlrev_b32 v40, 4, v40')
        a.e('v_and_or_b32 v40, v0, 48, v40')
        a.e('v_lshlrev_b32 v40, 1, v40')
        a.e('v_and_or_b32 v40, v0, 11, v40')
        a.e(f'v_lshl_add_u32 v40, v40, 3, {sW8}')
        for tau in range(2):
            for gam in range(2):
                for tt in range(2):
                    a.e(f'ds_read_b64_tr_b16 {vr(48 + 8 * tau + 4 * gam + 2 * tt, 2)}, v40 offset:{4096 + (32 * gam + 2 * tt) * 64 + 32 * tau}')
        if not ne:
            self.wo_prep(41, 'v39')
        if self.o.get('wo_pre', 6) > 4:
            a.e('s_waitcnt lgkmcnt(0)')
        a.e('s_barrier')
        if self.o.get('x_wo'):
            a.e('s_waitcnt vmcnt(0)')
            self.stamp('x_ack')

        def clear2():
            b = self.a
            for r in range(8, 12):
                b.e(f'v_mov_b32 v{r}, -1')
            self.sums(t2, [(sJ, 4 * 448), (sV, 448)], L_IT)
            b.e('s_mov_b64 exec, 0xfffffff')
            self.lstore([f'buffer_store_dwordx4 v[8:11], {vL16}, {WSL}, {t2} offen'])
            b.e('s_mov_b64 exec, -1')
        npre = self.o.get('wo_pre', 6)
        for x in self.wo_group(BWO, 41, ne, npre):
            a.e(x)
        if npre == 6:
            a.tag_vm('wo')
        self.ool_if(f's_cmp_eq_u32 {sIT}, 0', clear2, lambda: self.sleep('hc4'))
        self.wol = self.wo_group(BWO, 41, npre, 6)
        if self.o.get('x_wo'):
            self.stamp('x_iss')
            a.e('s_waitcnt vmcnt(0)')
            self.stamp('x_land')

    def wb(self, where):
        a = self.a
        if self.o.get('wb') != where:
            return
        l = a.lab('nowb')
        self.sums(t1, [(sJ, 8), (sV, 2), (sIT, 1)])
        a.e(f's_cmp_lg_u32 {t1}, {24 * 8 + 1}')
        a.e(f's_cbranch_scc1 {l}')
        a.begin_skip()
        a.e('buffer_wbl2 sc1')
        self.end_only(l)

    def uv(self):
        a = self.a
        a.e('v_lshrrev_b32 v28, 1, v0')
        a.e('v_and_or_b32 v28, v28, 16, 0')
        a.e('v_and_or_b32 v28, v0, 14, v28')
        a.e('v_lshlrev_b32 v28, 6, v28')
        a.e('v_and_or_b32 v28, v0, 16, v28')
        a.e('v_lshlrev_b32 v28, 1, v28')
        a.e(f'v_and_or_b32 v28, {vL16}, 16, v28')
        self.rot8('v29', 7)
        self.pos_bytes('v30', None)
        a.e('v_and_b32 v31, 32, v0')
        a.e('v_lshl_or_b32 v30, v31, 3, v30')
        self.touches('w5', 'v12', 'v13')
        a.e('s_waitcnt lgkmcnt(0)')
        self.sleep('hc2')
        ld = [f'buffer_load_dword v16, v29, {WSG}, {oC2Lg} offen sc1',
              f'buffer_load_dwordx4 v[8:11], v28, {WSG}, {oC2g} offen sc1']
        z = [f'v_mov_b64 {vr(r, 2)}, 0' for r in range(20, 28, 2)]
        lwe = self.o.get('lw_early', 1)
        a.e(ld[0])
        a.tag_vm('lw')
        if lwe:
            self.sleep('hc2b')
        a.e(ld[1])
        a.tag_vm('c2')
        for x in z:
            a.e(x)
        for x in self.wol:
            a.e(x)
        if self.wol:
            a.tag_vm('wo')
        top, again = a.lab('chk'), a.lab('again')
        w = self.w8('v16', 'v17')
        if lwe:
            self.H('u0', 0, 12)
            a.wait(vm='lw')
            a.e(f'{top}:')
            for x in self.w8n('v16', 'v17', 18):
                a.e(x)
            self.H('u1', 0, 12)
            a.wait(vm='c2')
            a.e('v_smfmac_f32_16x16x64_bf16 v[20:23], v[8:11], v[48:55], v1')
            a.e('v_cmp_u_f32 vcc, v8, v18')
            a.e('v_smfmac_f32_16x16x64_bf16 v[24:27], v[8:11], v[56:63], v1')
            self.retry_to(again)
            self.stamp('c2got', 2)
            self.weigh2n(18)
        else:
            a.wait(vm='c2')
            a.e(f'{top}:')
            a.e('v_smfmac_f32_16x16x64_bf16 v[20:23], v[8:11], v[48:55], v1')
            self.maxchain('v18', [8, 9, 10, 11, 16], True)
            a.e('v_smfmac_f32_16x16x64_bf16 v[24:27], v[8:11], v[56:63], v1')
            self.poll_cmp('v18')
            a.e(w[0])
            a.e(w[1])
            a.e(w[2])
            self.retry_to(again)
            self.stamp('c2got', 2)
            self.weigh2(3)
        a.ool(f'{again}:\n' + '\n'.join(ld + z) + f'\ns_waitcnt vmcnt(0)\ns_branch {top}')
        a.e('v_mov_b32 v21, v20')
        self.lcmp()
        a.e('v_permlane16_swap_b32 v20, v21')
        a.e('v_add_f32 v20, v20, v21')
        if lwe:
            self.retry_to(again)
        a.e(f'v_mov_b32_dpp v21, v20 quad_perm:[1,0,3,2] {FULL}')
        a.e('v_cvt_pk_bf16_f32 v20, v20, v21')
        self.lstore(['s_mov_b32 exec_lo, 0x5555', 's_mov_b32 exec_hi, 0x5555',
                     f'buffer_store_dword v20, v30, {WSL}, {oOBpub} offen', 's_mov_b64 exec, -1'])
        self.stamp('dpub')
        self.wb('dpub')

    def attn_a3(self):
        a = self.a
        self.qa_addr(44)
        self.sleep('hqa')
        ld = self.qa_loads(8, 12, 44)
        for x in ld:
            a.e(x)
        a.e('v_mov_b64 v[20:21], 0')
        a.e(f'v_lshl_add_u32 v17, v0, 3, {sW8}')
        a.e('ds_write_b64 v17, v[20:21] offset:6656')
        a.e(f's_add_u32 {t0}, {sW8}, 6656')
        a.e(f'v_mov_b32 v17, {t0}')
        a.e('s_mov_b32 s22, 0x000f000f')
        a.e('s_mov_b32 s23, 0x000f000f')
        for c in range(4):
            a.e(f'v_cndmask_b32 v{56 + c}, v17, v46, s[22:23]')
            a.e('s_lshl_b64 s[22:23], s[22:23], 4')
        self.p_addr('v60', 'v17')
        self.wo_prep(61, 'v17')
        for r in (16, 24, 28):
            a.e(f'v_mov_b64 {vr(r, 2)}, 0')
        self.pipe_poll(ld, 'v38', [8, 12], 'pq', ['v_mov_b64 v[36:37], v[12:13]', 'v_mov_b64 v[32:33], v[8:9]', 'v_mov_b64 v[34:35], v[10:11]'])
        top = self.ptop
        self.stamp('qgotA', 2)
        self.qa_finish(32, 36, 44, None, True)
        a.e('v_lshlrev_b32 v33, 16, v32')
        a.e('v_cmp_u_f32 vcc, v33, v33')
        a.e(f's_sub_u32 {t2}, {sW8}, {ZQ - 6144}')
        a.e(f's_cmp_eq_u32 {sV}, 0')
        a.e(f's_cselect_b32 {t3}, {oOALpub}, {OOB}')
        a.e('s_mov_b32 s22, 0x000f000f')
        a.e('s_mov_b32 s23, 0x000f000f')
        self.H('a1', 1, 52)
        self.retry_to(top)
        a.e('s_waitcnt vmcnt(0) lgkmcnt(0)')
        a.e('s_barrier')
        self.H('a2', 1, 8)

        def qrd(c, b):
            a.e(f'ds_read_b128 {vr(32 + 8 * (c % 3) + 4 * b, 4)}, v{56 + c} offset:{128 * b}')
            a.tag_ds(f'q{c}{b}')
        for c in range(3):
            qrd(c, 0)
            qrd(c, 1)
        if self.o.get('wo3', 0):
            self.touch('wo', 'v15', None)
        self.stamp('qrdy')
        ds, va = [], []
        for e in range(8):
            for t in range(4):
                ds.append((e, f'ds_read_b64_tr_b16 a[{8 * e + 2 * t}:{8 * e + 2 * t + 1}], v{14 + (e & 1)} offset:{t * 4096}'))
        wl = self.wo_lines(WO, 61, self.o.get('pol_wo3', ''))
        other = {2: wl[0], 3: wl[1], 7: wl[2], 11: wl[3], 13: wl[4], 15: wl[5], 19: wl[6], 23: wl[7],
                 5: 'v_mov_b64 v[8:9], 0', 6: 'v_mov_b64 v[12:13], 0', 8: f'v_mov_b32 v10, {t2}'}
        wo3 = self.o.get('wo3', 0)
        late = {}
        if wo3:
            for k in (2, 3, 7, 11, 13, 15, 19, 23):
                del other[k]
            pos = {1: (0, 1, 4, 7, 9, 10, 13, 16), 2: (8, 9, 12, 15, 17, 18, 21, 24)}[wo3]
            late = dict(zip(pos, wl))
        for e, k in enumerate((4, 10, 14, 18, 22, 26, 30), 1):
            other[k] = f'v_xor_b32 v{14 + (e & 1)}, {e << 5}, {vT}'
        pc = []
        for c in range(4):
            pc.append('v_cndmask_b32 v11, 0, v10, s[22:23]')
            pc.append(f'v_add_u32 v{56 + c}, v{56 + c}, v11')
            if c < 3:
                pc.append('s_lshl_b64 s[22:23], s[22:23], 4')
        a.e(f'v_mov_b32 v14, {vT}')
        for k in range(32):
            c, r, b = k >> 3, (k >> 1) & 3, k & 1
            if r == 0:
                a.wait(ds=f'q{c}{b}')
            t = k >> 1
            a.e(f'v_smfmac_f32_16x16x64_bf16 {vr(16 + 4 * r, 4)}, {vr(32 + 8 * (c % 3) + 4 * b, 4)}, a[{16 * t + 8 * b}:{16 * t + 8 * b + 7}], v1')
            if k in (8, 9):
                qrd(3, k - 8)
            elif k >= 1:
                a.e(ds.pop(0)[1])
            if k in other:
                a.e(other[k])
        for r in range(4):
            if ds:
                a.e(ds.pop(0)[1])
            a.e(f'v_add_f32 v{16 + r}, v{16 + 4 * r}, v{17 + 4 * r}')
        self.softmax_a(16, 20, 'v60', pc)

        def prd(j):
            a.e(f'ds_read_b128 {vr(32 + 4 * (j % 6), 4)}, v{56 + (j >> 2)} offset:{128 * (j & 3)}')
            a.tag_ds(f'p{j}')
        for j in range(6):
            if j == 0:
                self.H('a3', 1, 24)
            prd(j)
        self.stamp('smaxA')
        ls = self.lsum('v21', 16)
        for x in ls[:4]:
            a.e(x)
        fill = [[x] for x in ls[4:]] + [self.ml_write(20)[:2], self.ml_write(20)[2:4], self.ml_write(20)[4:], [], [], ['BAR'],
                                        self.ml_read(24, 22)[:2], ['MLR'], [], [], []]
        sc = self.ml_scale(24, 22, 18, 19)
        fill += [['MLW'] + sc[:1]] + [sc[1:3], sc[3:5], sc[5:7]] + [[x] for x in sc[7:12]] + [sc[12:14], sc[14:16], sc[16:17], sc[17:18], sc[18:20], ['LW']]
        for j in range(16):
            c, U = j >> 2, j & 3
            for hf in range(2):
                e = c + 4 * hf
                if hf == 0:
                    a.wait(ds=f'p{j}')
                B = vr(64 + 64 * U + 8 * e, 8) if U < 3 else f'a[{8 * e}:{8 * e + 7}]'
                a.e(f'v_smfmac_f32_16x16x64_bf16 {vr(8 + 4 * hf, 4)}, {vr(32 + 4 * (j % 6), 4)}, {B}, v1')
                if 2 * j + hf in late:
                    a.e(late[2 * j + hf])
                if hf == 1 and j + 6 < 16:
                    prd(j + 6)
                for x in (fill.pop(0) if fill else []):
                    if x == 'BAR':
                        a.wait(ds='mlw')
                        a.e('s_barrier')
                    elif x == 'MLR':
                        a.e(self.ml_read(24, 22)[2])
                        a.tag_ds('mlr')
                    elif x == 'LW':
                        self.lstore([f'buffer_store_dword v19, off, {WSL}, {t3}'])
                    elif x == 'MLW':
                        a.wait(ds='mlr')
                    else:
                        a.e(x)
                        if 'ds_write_b64' in x:
                            a.tag_ds('mlw')
        assert not fill
        a.e(f'v_lshl_add_u32 v46, v0, 2, {sW8}')
        self.rot8('v47', 2)
        a.e('v_add_f32 v44, v8, v9')
        a.e('v_add_f32 v45, v12, v13')
        a.e('v_pk_mul_f32 v[44:45], v[44:45], v[18:19] op_sel_hi:[1,0]')
        self.stamp('pvA')

    def dma_tile(self, t):
        a = self.a
        pol = self.o.get('pol_kv', 'nt')
        srd = K_ if t < 16 else V_
        a.e(f's_add_u32 m0, {sKV}, {(t & 3) * 4096}')
        a.e(f's_add_u32 {t0}, {sKG}, {(t & 15) * 16384}')
        for q in range(4):
            a.e(f'buffer_load_dwordx4 v{8 + q}, {srd}, {t0} offen offset:{q * 1024} {pol} lds')
        a.tag_vm(f'tile{t}')

    def make_items(self):
        o = self.o
        pol, polc = o.get('pol_kv', 'nt'), o.get('pol_c', '')
        extra = {}
        c0, cs = o.get('ckv_from', 44), o.get('ckv_step', 2)
        for i in range(16):
            t, q = i >> 2, i & 3
            extra.setdefault(c0 + cs * i, []).append((f'c{i}', [
                f's_add_u32 m0, {sKV}, {CKV + i * 1024}', f'v_add_u32 v238, v{8 + q}, v254', f's_add_u32 {t0}, s1, {(16 * t + 4 * q) * 1024}',
                f'buffer_load_dwordx4 v238, {CK}, {t0} offen {polc} lds']))
        w0, wstep = o.get('wo_from', 52), o.get('wo_step', 4)
        for k in range(6):
            h, i = divmod(k, 3)
            extra.setdefault(w0 + wstep * k, []).append((f'w{k}', [
                f's_add_u32 m0, {sW8}, {h * 3072}', f's_add_u32 {t0}, {oWO}, {h * 64 * 1152}',
                f'buffer_load_dwordx4 v{(246, 247, 255)[i]}, {WO}, {t0} offen offset:{i * 1024} lds']))
        items = []
        self.extra = {tag: lines for v in extra.values() for tag, lines in v}
        for d in range(128):
            t, q = d >> 2, d & 3
            items.append((f'tile{t}' if q == 3 else f'd{d}', [
                f's_add_u32 m0, {sKV}, {(t & 3) * 4096}', f's_add_u32 {t0}, {sKG}, {(t & 15) * 16384}',
                f'buffer_load_dwordx4 v{8 + q}, {K_ if t < 16 else V_}, {t0} offen offset:{q * 1024} {pol} lds']))
        self.items = items
        self.pos = {tag: k for k, (tag, _) in enumerate(items)}
        self.issued = 0
        self.done_tile = -1
        self.lnq_done = False

    def issue_to(self, n):
        a = self.a
        prev = None
        lim = self.pos[f'tile{min(self.done_tile + 4, 31)}'] + 1
        while self.issued < min(n, lim):
            tag, lines = self.items[self.issued]
            if tag[0] == 'w':
                assert self.lnq_done, 'w_o staged before the q weights were read'
            assert tag[0] in 'td' or 2 < self.done_tile < 26
            for x in (lines if lines[:2] != prev else lines[2:]):
                a.e(x)
            a.tag_vm(tag)
            prev = lines[:2]
            self.issued += 1

    def prologue(self):
        a = self.a
        self.make_items()
        a.e('s_cmp_ge_u32 s2, 256')
        a.e('s_cbranch_scc1 L_end')
        if self.o.get('diag_fixed'):
            a.e('s_memrealtime s[100:101]')
        if self.o.get('stamps'):
            a.e('s_memtime s[98:99]' if self.o.get('clk') else 's_memrealtime s[98:99]')
        a.e('s_load_dwordx2 s[4:5], s[0:1], 8')
        ptrs = [(V_, 16), (CK, 48), (DBG, 96), (XIN, 0), (WQ, 24), (WO, 32), (BWQ, 56), (WUK, 64), (WUV, 72), (BWO, 80),
                (WS, 104), (OUT, 88)]
        sizes = {K_: 1 << 26, V_: 1 << 26, CK: 1 << 23, DBG: 256, XIN: 1152, WQ: 576 * 8192, WO: 4096 * 1152,
                 BWQ: 576 * 8192, WUK: 1 << 22, WUV: 1 << 22, BWO: 4096 * 1152, WS: WS_SIZE, WSL: L_X, WSG: G_IT, OUT: 1152}
        base = lambda s: int(s[2:s.index(':')])
        a.e('v_lshrrev_b32 v1, 6, v0')
        a.e('v_mov_b32 v63, v0')
        a.e(f'v_readfirstlane_b32 {sV}, v1')
        a.e('v_and_b32 v0, 63, v0')
        a.e(f's_and_b32 {sX}, s2, 7')
        a.e(f's_lshr_b32 {sJ}, s2, 3')
        a.e(f's_lshl_b32 {sKV}, {sV}, 14')
        self.sums(sKG, [(sX, 1 << 23), (sJ, 1 << 18), (sV, 1 << 12)])
        a.e(f'v_lshlrev_b32 {vL16}, 4, v0')
        a.e('v_and_b32 v12, 48, v0')
        a.e('v_lshlrev_b32 v12, 1, v12')
        a.e(f'v_xor_b32 v8, v12, {vL16}')
        for q in range(1, 4):
            a.e(f'v_xor_b32 v{8 + q}, {TBL[q] << 4}, v8')
        a.e(f's_mov_b32 s6, {sizes[K_]}')
        a.e('s_mov_b32 s7, 0x20000')
        a.e('s_waitcnt lgkmcnt(0)')
        for t in range(4):
            self.issue_to(min(4 * t + 4, self.o.get('win0', 8)))
            for srd, off in ptrs[3 * t:3 * t + 3]:
                b = base(srd)
                a.e(f's_load_dwordx2 s[{b}:{b + 1}], s[0:1], {off}')
        for srd, n in sizes.items():
            if srd != K_:
                a.e(f's_mov_b32 s{base(srd) + 2}, {n}')
                a.e(f's_mov_b32 s{base(srd) + 3}, 0x20000')
        a.e(f's_getpc_b64 s[82:83]')
        a.e('L_pc:')
        a.e('v_lshlrev_b32 v62, 7, v63')
        a.e(f'v_min_u32 v62, L_codeend-L_pc, v62')
        a.e('global_load_dword v61, v62, s[82:83]')
        a.e(f's_lshr_b32 {t1}, {sJ}, 3')
        self.sums(sH, [(sX, 4), (t1, 1)])
        a.e(f's_and_b32 {sS}, {sJ}, 7')
        a.e(f's_mov_b32 {sIT}, 0')
        a.e(f's_mov_b32 {sPOLL}, 0')
        a.e(f's_mov_b32 {sST}, 0')
        self.sums(sW8, [(sV, 8192)], STG)
        a.e('s_mov_b32 s84, 0x00ff00ff')
        a.e('s_mov_b32 s85, 0x00ff00ff')
        a.e(f's_mul_i32 {t2}, {sJ}, 43')
        a.e(f's_lshr_b32 {t2}, {t2}, 8')
        a.e(f's_mul_i32 {t3}, {t2}, 6')
        a.e(f's_sub_u32 {t3}, {sJ}, {t3}')
        self.sums(oY, [(t3, 512), (sV, 128)])
        self.sums(oQA, [(t2, 4096), (sV, 1024), (t3, 128)], L_QA)
        self.sums(oQB, [(t2, 4096), (sV, 512), (t3, 32)], L_QB)
        self.sums(oST, [(t2, 64), (t3, 8)], L_STA)
        self.sums(oWQ, [(t3, 96 * 8192), (sV, 24 * 8192), (sX, 1024), (t2, 256)])
        a.e(f's_cmp_eq_u32 {sV}, 0')
        a.e(f's_cselect_b32 {oST}, {oST}, {OOB}')
        a.e(f's_cmp_lt_u32 {sJ}, 24')
        for r in (oQA, oST, oWQ):
            a.e(f's_cselect_b32 {r}, {r}, {OOB}')
        self.sums(oQgA, [(t1, 4096), (sV, 1024)], L_QA)
        self.sums(oSTgA, [(t1, 64)], L_STA)
        self.sums(oWUV, [(sS, 64 * 8192), (sH, 256), (sV, 64)])
        self.sums(oWUK, [(sJ, 16 * 8192), (sX, 1024), (sV, 256)])
        self.sums(oWO, [(sX, 512 * 1152), (sV, 128 * 1152), (sJ, 48)])
        self.sums(oYpub, [(sX, 3072), (sJ, 128)])
        if self.o.get('asym'):
            a.e(f's_getreg_b32 {t0}, hwreg(HW_REG_XCC_ID, 0, 3)')
            a.e(f's_lshr_b32 {t0}, {self.o["asym"][0]}, {t0}')
            a.e(f's_lshl_b32 {t0}, {t0}, 31')
            a.e(f's_or_b32 {oYpub}, {oYpub}, {t0}')
        a.e(f's_cmp_lt_u32 {sJ}, 24')
        a.e(f's_cselect_b32 {oWO}, {oWO}, {OOB}')
        a.e(f's_cselect_b32 {sRES}, 1, 0')
        a.e(f's_cmp_eq_u32 {sV}, 3')
        a.e(f's_cselect_b32 {sRES}, {sRES}, 0')
        a.e(f's_mul_i32 {t0}, {sRES}, 3')
        a.e(f's_cmp_eq_u32 {sX}, 0')
        a.e(f's_cselect_b32 {sRES}, {t0}, {sRES}')
        if self.o.get('stamps'):
            a.e('v_mov_b32 v7, 0')
            a.e('s_mov_b32 s97, 8')
        a.e('v_and_b32 v14, 1, v0')
        a.e('v_mul_u32_u24 v1, 0xaaaa, v14')
        a.e('v_add_u32 v1, 0x4444, v1')

        def tbl(dst, x, tmp):
            a.e(f'v_lshrrev_b32 {tmp}, 1, {x}')
            a.e(f'v_xor_b32 {dst}, {x}, {tmp}')
            a.e(f'v_and_b32 {dst}, 1, {dst}')
            a.e(f'v_lshl_or_b32 {dst}, {dst}, 3, {tmp}')
        a.e('v_lshrrev_b32 v12, 4, v0')
        a.e('v_and_b32 v13, 15, v0')
        a.e('v_lshrrev_b32 v15, 2, v13')
        tbl('v16', 'v15', 'v17')
        a.e('v_and_b32 v17, 3, v13')
        a.e('v_lshlrev_b32 v18, 1, v17')
        a.e('v_xor_b32 v16, v16, v18')
        a.e('v_xor_b32 v16, v16, v12')
        a.e('v_lshlrev_b32 v16, 4, v16')
        a.e(f'v_lshl_or_b32 {vA}, v13, 8, v16')
        a.e(f'v_add_u32 {vA}, {sKV}, {vA}')
        tbl('v16', 'v12', 'v18')
        a.e('v_lshlrev_b32 v18, 1, v15')
        a.e('v_xor_b32 v16, v16, v18')
        a.e('v_lshrrev_b32 v18, 1, v17')
        a.e('v_xor_b32 v16, v16, v18')
        a.e('v_lshlrev_b32 v16, 4, v16')
        a.e('v_lshrrev_b32 v18, 2, v0')
        a.e('v_lshl_or_b32 v16, v18, 8, v16')
        a.e(f'v_lshl_or_b32 {vT}, v14, 3, v16')
        a.e(f'v_add_u32 {vT}, {sKV}, {vT}')
        a.e('s_waitcnt lgkmcnt(0)')
        self.stamp('start')
        w, l, g = base(WS), base(WSL), base(WSG)
        a.e(f's_lshl_b32 {t0}, {sX}, 17')
        a.e(f's_add_u32 s{l}, s{w}, {t0}')
        a.e(f's_addc_u32 s{l + 1}, s{w + 1}, 0')
        a.e(f's_add_u32 s{g}, s{w}, {GB}')
        a.e(f's_addc_u32 s{g + 1}, s{w + 1}, 0')
        self.dma_wq(WQ, 'v56', 'v57')
        self.lnq_rows()
        a.e(f's_mul_i32 {t0}, {t3}, 192')
        a.e('v_mul_u32_u24 v58, 3, v0')
        a.e('s_mov_b32 exec_lo, 0x00010001')
        a.e('s_mov_b32 exec_hi, 0x00010001')
        for rho in range(3):
            a.e(f'buffer_load_dwordx4 {vr(16 + 4 * rho, 4)}, v58, {XIN}, {t0} offen offset:{16 * rho}')
        a.e('s_mov_b64 exec, -1')
        a.e('v_lshlrev_b32 v58, 2, v0')
        a.e(f's_mul_i32 {t0}, {sJ}, 48')
        a.e(f's_cmp_eq_u32 {sRES}, 3')
        a.e(f's_cselect_b32 {t0}, {t0}, {OOB}')
        a.e(f'buffer_load_dword v5, v58, {XIN}, {t0} offen')
        for r in range(56, 60):
            a.e(f'v_mov_b32 v{r}, -1')
        self.sums(t4, [(sX, L_X), (sJ, 2560), (sV, 640)])
        self.sums(t1, [(sX, 128 * 384), (sJ, 4 * 384), (sV, 384)], GB)
        a.e('s_mov_b32 exec_hi, 0xff')
        a.e(f'buffer_store_dwordx4 v[56:59], {vL16}, {WS}, {t4} offen sc1')
        a.e('s_mov_b64 exec, 0xffffff')
        a.e(f'buffer_store_dwordx4 v[56:59], {vL16}, {WS}, {t1} offen sc1')
        a.e('s_mov_b64 exec, -1')
        a.tag_vm('clr')
        for ks in range(4):
            a.e(f'v_xor_b32 v{12 + ks}, {ks << 6}, {vA}')

    def late_scalars(self):
        a = self.a
        if self.o.get('asym'):
            a.e(f's_bitset0_b32 {oYpub}, 31')
        a.e(f's_lshr_b32 {t1}, {sJ}, 3')
        a.e(f's_and_b32 {t2}, {sJ}, 1')
        a.e(f's_lshr_b32 {t3}, {sJ}, 1')
        a.e(f's_lshr_b32 {t4}, {sX}, 2')
        a.e(f's_and_b32 {t5}, {sX}, 3')
        self.sums(oQgB, [(sV, 4096)], L_QB)
        self.sums(oSTgB, [(sV, 64)], L_STB)
        self.sums(oQApub, [(t4, 16384), (t3, 1024), (t5, 256), (t2, 128)], G_QABS)
        self.sums(oQAg, [(t2, 16384), (sV, 4096)], G_QABS)
        self.sums(oC1pub, [(sX, 1 << 19), (t2, 1 << 18), (sV, 16384), (t3, 256)], CB)
        self.sums(oMLpub, [(t2, 2048), (t3, 32)], L_C1ML)
        self.sums(oC1g, [(sX, 1 << 19), (sJ, 16384), (sV, 4096)], CB)
        a.e(f's_lshr_b32 {t4}, {sJ}, 2')
        self.sums(oMLg, [(t4, 512)], L_C1ML)
        self.sums(oC2pub, [(sJ, 8192), (sV, 2048), (sX, 256)], G_C2)
        self.sums(oC2Lpub, [(t4, 1024), (sX, 128)], G_C2L)
        a.e(f's_and_b32 {t4}, {sJ}, 3')
        a.e(f's_cselect_b32 {oC2Lpub}, {OOB}, {oC2Lpub}')
        self.sums(oC2g, [(sX, 32768), (sS, 4096), (t1, 64)], G_C2)
        self.sums(oC2Lg, [(sX, 1024), (t1, 16)], G_C2L)
        self.sums(oOBpub, [(t1, 2048), (sV, 512), (sS, 32)], L_OB)
        self.sums(oOApub, [(t1, 2048), (sS, 32)], L_OA)
        self.sums(oOALpub, [(sJ, 4)], L_OAL)
        self.sums(oOALg, [(sV, 32)], L_OAL)
        self.sums(oRES, [(sJ, 128)])
        self.sums(oO, [(sV, 2048)], L_OA)
        a.e(f's_cmp_eq_u32 {sV}, 0')
        a.e(f's_cselect_b32 {oMLpub}, {oMLpub}, {OOB}')
        a.e(f's_cselect_b32 {oOApub}, {oOApub}, {OOB}')
        a.e(f's_cselect_b32 {oC2Lpub}, {oC2Lpub}, {OOB}')

    def pv_block(self, U):
        a = self.a
        self.sp_addr('v63', sW8)
        a.e(f'ds_read_b128 v[20:23], v63 offset:{6144 + 128 * U}')
        a.e('s_waitcnt lgkmcnt(0)')
        for e in range(8):
            a.e(f'v_smfmac_f32_16x16x64_bf16 {vr(24 + 4 * e, 4)}, v[20:23], {vr(64 + 64 * U + 8 * e, 8)}, v1')

    def stream(self):
        a = self.a
        o = self.o
        landed = 0
        for t in range(28):
            win = o.get('win', 6) if t < o.get('wide_at', 99) else o.get('wide', 12)
            while landed <= self.pos[f'tile{t}']:
                if self.issued < landed + 1 + win or landed == self.pos[f'tile{t}']:
                    a.wait(vm=self.items[landed][0])
                    if o.get('sstamps') and t % 4 == 0 and landed == self.pos[f'tile{t}']:
                        self.stamp(f't{t}')
                    self.issue_to(landed + 1 + win)
                landed += 1
            slot = (t & 3) * 4096
            if t < 16:
                for ks in range(4):
                    a.e(f'ds_read_b128 a[{16 * t + 4 * ks}:{16 * t + 4 * ks + 3}], v{12 + ks} offset:{slot}')
            else:
                u = t - 16
                if u == 0:
                    for e in range(8):
                        a.e(f'v_xor_b32 v{12 + e}, {e << 5}, {vT}')
                for e in range(8):
                    a.e(f'ds_read_b64_tr_b16 {vr(64 + 64 * (u >> 2) + 8 * e + 2 * (u & 3), 2)}, v{12 + e} offset:{slot}')
            a.e('s_waitcnt lgkmcnt(0)')
            self.done_tile = t
            self.issue_to(landed + win + o.get('boost', {}).get(str(t), 0) if t < 27 else 999)
            if t == 2:
                a.e('v_lshrrev_b32 v254, 4, v0')
                a.e('v_mul_u32_u24 v254, 768, v254')
                a.e(f's_lshr_b32 {t2}, {sJ}, 1')
                self.sums('s1', [(sX, 1 << 20), (t2, 1 << 16), (sV, 256)])
                for i, r in enumerate((246, 247, 255)):
                    a.e(f'v_add_u32 v{r}, {64 * i}, v0')
                    a.e(f'v_mul_u32_u24 v{r}, 21846, v{r}')
                    a.e(f'v_lshrrev_b32 v{r}, 16, v{r}')
                    a.e(f'v_mul_u32_u24 v{r}, {1152 - 48}, v{r}')
                    a.e(f'v_lshl_add_u32 v{r}, v0, 4, v{r}')
            if t == 4:
                a.wait(vm='clr')
                a.e('v_lshlrev_b32 v60, 7, v0')
                a.e('s_mov_b64 exec, 31')
                a.e(f'buffer_load_dword v61, v60, {WS}, {t4} offen')
                a.e('s_mov_b64 exec, -1')
                a.tag_vm('touch')
                a.e('v_lshlrev_b32 v4, 16, v5')
                a.e('v_and_b32 v5, 0xffff0000, v5')
            if t == o.get('atom_at', 5):
                a.e('s_barrier')
                l = self.wave_only(1)
                a.e('s_getreg_b32 s82, hwreg(HW_REG_XCC_ID, 0, 3)')
                a.e('s_lshl_b32 s82, s82, 3')
                a.e('s_lshl_b64 s[82:83], 1, s82')
                a.e('v_mov_b32 v58, s82')
                a.e('v_mov_b32 v59, s83')
                a.e(f's_lshl_b32 {t0}, {sX}, 5')
                a.e('s_mov_b64 exec, 1')
                a.e(f'buffer_atomic_add_x2 v[58:59], v0, {DBG}, {t0} offen sc1')
                a.e('s_mov_b64 exec, -1')
                self.end_only(l)
            if t == 9:
                a.wait(vm='touch')
                self.lnq_addr()
                self.lnq_prep()
                for rho in range(3):
                    for x in self.lnq_mfma(rho):
                        a.e(x)
                self.lnq_reduce(False)
                self.lnq_done = True
            if t == o.get('cnt_at', 10):
                a.e('v_and_b32 v57, 7, v0')
                a.e('v_lshlrev_b32 v57, 5, v57')
                a.e(f'buffer_load_dwordx2 v[58:59], v57, {DBG}, 0 offen sc1')
                a.tag_vm('cnt')
            if t == 15:
                chk, retry, done = a.lab('chk'), a.lab('cretry'), a.lab('cdone')
                a.wait(vm='cnt')
                a.e(f'{chk}:')
                a.e('v_sad_u8 v61, v58, 0, 0')
                a.e('v_sad_u8 v61, v59, 0, v61')
                a.e('v_cmp_ne_u32 vcc, 32, v61')
                if not o.get('x_noinit'):
                    a.e(f's_cbranch_vccnz {retry}')
                a.e(f'{done}:')
                a.ool(f'{retry}:\ns_add_u32 {sPOLL}, {sPOLL}, 1\ns_cmp_gt_u32 {sPOLL}, 100000\ns_cbranch_scc1 {done}\ns_sleep 8\n'
                      f'buffer_load_dwordx2 v[58:59], v57, {DBG}, 0 offen sc1\ns_waitcnt vmcnt(0)\ns_branch {chk}')
                a.e('s_getreg_b32 s82, hwreg(HW_REG_XCC_ID, 0, 3)')
                a.e('s_lshl_b32 s82, s82, 3')
                a.e('s_lshl_b64 s[82:83], 32, s82')
                a.e(f'v_readlane_b32 {t2}, v58, {sX}')
                a.e(f'v_readlane_b32 {t3}, v59, {sX}')
                a.e(f's_cmp_eq_u64 s[82:83], s[80:81]')
                a.e(f's_cselect_b32 {sLOC}, {0 if o.get("force_slow") else 1}, {1 if o.get("x_noinit") else 0}')
                self.lnq_pubaddr(False, True)
                self.lcmp()
                self.lnq_publish(False, True)
            if t == 18:
                self.qa_addr(48)
                a.e(f's_add_u32 {t4}, {oQgA}, {L_CSA - L_QA}')
                ql = self.qa_loads(40, 52, 48) + [f'buffer_load_dwordx4 v[44:47], v51, {WSL}, {t4} offen sc1']
                for x in ql:
                    a.e(x)
                a.tag_vm('q')
            if t == 22:
                a.wait(vm='q')
                self.late_check('v20', list(range(40, 48)) + [52, 53], ql)
                for x in self.red8(44):
                    a.e(x)
                a.e('v_cvt_pk_bf16_f32 v44, 0, v44')
                a.e('v_or_b32 v1, v1, v44')
                self.qa_finish(40, 52, 48, 56)
                for r in range(24, 40, 4):
                    a.e(f'v_mov_b64 {vr(r, 2)}, 0')
                self.p_addr('v45', 'v44')
                self.qk_softmax(56, 24, 40, 44)
                for x in self.lsum('v57', 40):
                    a.e(x)
                for x in self.ml_write(56):
                    a.e(x)
                for r in range(24, 56, 4):
                    a.e(f'v_mov_b64 {vr(r, 2)}, 0')
                a.e('s_waitcnt lgkmcnt(0)')
            for i, at in enumerate(o.get('ckv_at', [10, 11, 12, 13])):
                if at == t:
                    for q in range(4):
                        for x in self.extra[f'c{4 * i + q}']:
                            a.e(x)
            if t == o.get('wo_at', 9):
                assert self.lnq_done
                for k in range(6):
                    for x in self.extra[f'w{k}']:
                        a.e(x)
            self.touches(f's{t}', 'v62', 'v31')
            if t == o.get('mlbar', 26):
                a.e('s_barrier')
                for x in self.ml_read(56, 20):
                    a.e(x)
                a.e('s_waitcnt lgkmcnt(0)')
                for x in self.ml_scale(56, 20, 21, 22):
                    a.e(x)
                a.e('v_readfirstlane_b32 s22, v21')
                a.e('v_readfirstlane_b32 s23, v22')
            if t == o.get('c1_late', 1) and t > 15:
                self.sums(t1, [(sX, 1 << 19), (sJ, 16384), (sV, 4096)], CB)
                for r in range(56, 60):
                    a.e(f'v_mov_b32 v{r}, -1')
                self.lcmp()
                self.lstore([f'buffer_store_dwordx4 v[56:59], {vL16}, {WS}, {t1} offen offset:{i * 1024}' for i in range(4)])
            if t == o.get('tlb_at', -1):
                g = o.get('tlb_n', 2)
                a.e(f's_mov_b64 exec, {(1 << g) - 1}')
                self.sums(t2, [(sX, 1 << 19)], CB)
                for srd, so, span in ((BWQ, oWQ, 24 * 8192), (WUK, oWUK, 16 * 8192), (WUV, oWUV, 64 * 8192), (BWO, oWO, 128 * 1152),
                                      (WS, t2, 1 << 19), (OUT, '0', 1024)):
                    a.e(f'v_mul_u32_u24 v62, {(span - 8192 if span > 8192 else span) // (g - 1) // 4 * 4}, v0')
                    a.e(f'buffer_load_dword v31, v62, {srd}, {so} offen')
                a.e('s_mov_b64 exec, -1')
            if t == o.get('isl_at', 12):
                a.e('s_branch L_isl_0')
                if self.alt:
                    a.e('L_isl_ret2:')
                else:
                    a.e('L_isl_ret:')
                    if o.get('hi'):
                        a.e('s_cmp_lg_u32 s0, 0')
                        a.e('s_cbranch_scc1 L_isl_ret2')
            if t == o.get('late_touch', -1):
                self.sums(t3, [(sX, 128), (sJ, 4), (sV, 1)])
                a.e(f's_lshl_b32 {t2}, {t3}, 10')
                a.e('v_lshlrev_b32 v62, 7, v0')
                a.e('v_and_b32 v62, 0x3ff, v62')
                a.e(f'buffer_load_dword v31, v62, {WS}, {t2} offen')
            if t == 23:
                self.pv_block(0)
            if t == 24:
                self.pv_block(1)
        if self.alt:
            a.e('s_nop 7')
            a.e('s_branch L_join')
            return
        a.e('L_join:')
        self.late_scalars()
        a.e('v_mov_b32 v62, s23')
        a.e(f's_cmp_eq_u32 {sV}, 0')
        a.e(f's_cselect_b32 {t1}, {oOALpub}, {OOB}')
        self.lcmp()
        self.lstore([f'buffer_store_dword v62, off, {WSL}, {t1}'])
        self.pv_block(2)
        a.e('v_lshrrev_b32 v62, 1, v0')
        a.e('v_and_b32 v62, 8, v62')
        a.e('v_and_or_b32 v62, v0, 32, v62')
        a.e(f'v_add_u32 v62, {sW8}, v62')
        a.e(f'v_add_u32 v62, {6144 + 384}, v62')
        for tt in range(4):
            o0 = 16 * (tt >> 1) + (tt & 1)
            r = (20, 22, 8, 10)[tt]
            a.e(f'ds_read2_b32 {vr(r, 2)}, v62 offset0:{o0} offset1:{o0 + 4}')
        a.e('s_mov_b32 vcc_lo, 0x55555555')
        a.e('s_mov_b32 vcc_hi, 0x55555555')
        a.e('s_waitcnt lgkmcnt(0)')
        for r in (20, 21, 22, 23, 8, 9, 10, 11):
            a.e(f'v_cndmask_b32 v{r}, 0, v{r}, vcc')
        self.last_tiles(range(3))
        a.e(f's_cmp_eq_u32 {sLOC}, 0')
        a.e('s_cbranch_scc1 L_pre_slow')

    def last_tiles(self, which):
        a = self.a
        for tt in which:
            a.wait(vm=f'tile{28 + tt}')
            if tt == 3:
                self.stamp('kvdone')
            dst = [56, 58, 60, 62] * 2 if tt < 3 else [56, 58, 60, 62, 20, 22, 8, 12]
            n1 = 4 if tt < 3 else 8
            for e in range(n1):
                a.e(f'ds_read_b64_tr_b16 {vr(dst[e], 2)}, v{12 + e} offset:{tt * 4096}')
                a.tag_ds(f'v{e}')
            if tt == 3:
                self.rot8('v14', 2)
            for e in range(8):
                a.wait(ds=f'v{e}')
                d = vr(24 + 4 * e, 4)
                a.e(f'v_mfma_f32_16x16x16_bf16 {d}, {vr((20, 22, 8, 10)[tt], 2)}, {vr(dst[e], 2)}, {d}')
                if e + n1 < 8:
                    a.e(f'ds_read_b64_tr_b16 {vr(dst[e], 2)}, v{12 + e + n1} offset:{tt * 4096}')
                    a.tag_ds(f'v{e + n1}')
                if tt == 3 and e >= 4:
                    x = e - 4
                    a.e(f'v_add_f32_dpp v16, v{24 + 4 * x}, v{25 + 4 * x} {DPPI} row_mask:{1 << x} bank_mask:0xf')
        if 3 not in which:
            return
        for e in range(4, 8):
            a.e(f'v_add_f32_dpp v17, v{24 + 4 * e}, v{25 + 4 * e} {DPPI} row_mask:{1 << (e & 3)} bank_mask:0xf')
        a.e('v_mul_f32 v44, s22, v16')
        a.e('v_mul_f32 v45, s22, v17')
        a.e(f'v_lshl_add_u32 v46, v0, 2, {sW8}')
        a.e('v_mov_b32 v47, v14')
        self.stamp('pv1')

    def tail(self, mode):
        a = self.a
        o = self.o
        base = lambda s: int(s[2:s.index(':')])
        self.mode = mode
        if mode == 'slow':
            a.e('L_pre_slow:')
            a.e('s_nop 7')
            a.e('s_waitcnt vmcnt(0)')
        self.last_tiles([3])
        n0 = self.nst
        a.vmq = [['wo', ()]] + [[None, ()] for _ in range(len(o.get('touch', {}).get('s27', [])) if o.get('wo_at', 9) == 27 else 40)]
        l, g = base(WSL), base(WSG)
        a.e(f'L_top_{mode}:')
        self.combine_publish()
        self.stamp('opub')
        a.e(f's_mul_i32 {t0}, {sRES}, {sIT}')
        self.resid_track(G_YB, 20, 'v8', f's_cmp_eq_u32 {t0}, 3')
        a.e(f's_mul_i32 {t0}, {sIT}, {G_IT}')
        a.e(f's_add_u32 s{g}, s{g}, {t0}')
        a.e(f's_addc_u32 s{g + 1}, s{g + 1}, 0')

        def idle_a():
            b = self.a
            self.wuk_prep('v8', 'v9')
            self.wuk_issue('v8', 'v9')
            self.touches('i1', 'v60', 'v10')
            l1 = b.lab('it1')
            b.e(f's_cmp_eq_u32 {sIT}, 1')
            b.e(f's_cbranch_scc1 {l1}')
            self.clear_g1(56)
            self.touches('i0', 'v60', 'v10')
            if o.get('touch', {}).get('i0b'):
                lp = b.lab('lp')
                b.e(f'{lp}:')
                b.e('s_sleep 4')
                b.e(f'buffer_load_dword v12, {vL16}, {WSL}, {oO} offen sc1')
                b.e('s_waitcnt vmcnt(0)')
                b.e('v_cmp_eq_u32 vcc, -1, v12')
                self.retry_to(lp)
                b.e('s_barrier')
                self.touches('i0b', 'v60', 'v10')
            l2 = b.lab('it1')
            b.e(f's_branch {l2}')
            b.e(f'{l1}:')
            self.sleep('ia')
            b.e(f'{l2}:')

        def busy_a():
            self.outproj(True)
            self.lnq_tail(G_YA, True)
        self.ool_if(f's_cmp_ge_u32 {sJ}, 24', idle_a, busy_a, True)
        self.qabs()
        self.attn_b()
        self.red()
        self.uv()

        def nextpass():
            b = self.a
            b.e(f's_cmp_eq_u32 {sIT}, 1')
            b.e(f's_cbranch_scc1 L_final_{mode}')
            b.e(f's_add_u32 s{l}, s{l}, {L_IT}')
            b.e(f's_addc_u32 s{l + 1}, s{l + 1}, 0')
            b.e(f's_mov_b32 s{l + 2}, {L_SZ}')
            b.e(f's_mov_b32 {sIT}, 1')

        def idle_b():
            nextpass()
            self.touches('i2', 'v60', 'v10')
            self.sleep('ib')

        def busy_b():
            self.outproj(False)
            nextpass()
            self.lnq_tail(G_YB, False)
        self.ool_if(f's_cmp_ge_u32 {sJ}, 24', idle_b, busy_b, True)
        self.attn_a3()
        self.nper = self.nst - n0
        self.n0 = n0
        if o.get('stamps'):
            a.e('s_mov_b32 s97, 5')
        a.e(f's_branch L_top_{mode}')
        a.e(f'L_final_{mode}:')
        a.e(f's_cmp_lg_u32 {sRES}, 3')
        a.e('s_cbranch_scc1 L_fin2')
        self.resid(G_YB, 10, 'v8', True)
        a.e(f'buffer_store_dword v9, v8, {OUT}, {t0} offen')
        a.e('s_mov_b64 exec, -1')
        self.mode = None

    def build(self):
        a = self.a
        o = self.o
        base = lambda s: int(s[2:s.index(':')])
        self.prologue()
        altb = ''
        if o.get('hi'):
            import copy
            if o['hi'][0]:
                a.e('s_getreg_b32 s0, hwreg(HW_REG_XCC_ID, 0, 3)')
                a.e(f's_lshr_b32 s0, {o["hi"][0]}, s0')
                a.e('s_and_b32 s0, s0, 1')
            else:
                a.e(f's_cmp_ge_u32 {sJ}, 24')
                a.e('s_cselect_b32 s0, 1, 0')
            a.e('s_cbranch_scc1 L_alt')
            alt = Gen(dict(o, win=o['hi'][1]))
            alt.alt = True
            alt.a.uid = 300000
            alt.a.cold = True
            alt.a.vmq = copy.deepcopy(a.vmq)
            alt.make_items()
            alt.issued = self.issued
            alt.nst = self.nst
            alt.a.e('L_alt:')
            alt.stream()
            altb = alt.a.finish()
            altb = altb[:altb.index('L_isl_0:')]
        self.stream()
        self.tail('fast')
        a.e('L_fin2:')
        if o.get('diag_fixed'):
            a.e('L_dfx:')
            a.e('s_memrealtime s[94:95]')
            a.e('s_waitcnt lgkmcnt(0)')
            a.e('s_sub_u32 s94, s94, s100')
            a.e(f's_cmp_lt_u32 s94, {o["diag_fixed"]}')
            a.e('s_cbranch_scc1 L_dfx')
        if o.get('stamps'):
            a.e('s_waitcnt vmcnt(0) lgkmcnt(0)')
            self.stamp('end')
            a.e('s_waitcnt lgkmcnt(0)')
            a.e('v_writelane_b32 v7, s98, 62')
            a.e(f'v_writelane_b32 v7, {sPOLL}, 63')
            a.e('s_getreg_b32 s82, hwreg(HW_REG_XCC_ID, 0, 3)')
            a.e('s_getreg_b32 s83, hwreg(HW_REG_HW_ID)')
            a.e('s_lshl_b32 s83, s83, 4')
            a.e('s_or_b32 s82, s82, s83')
            a.e('v_writelane_b32 v7, s82, 61')
            self.sums(t1, [('s2', 1024), (sV, 256)], STAMP)
            a.e('v_lshlrev_b32 v8, 2, v0')
            a.e(f'buffer_store_dword v7, v8, {WS}, {t1} offen')
        a.e('L_end:')
        a.e('s_endpgm')
        slow = Gen(self.o)
        slow.a.uid = 500000
        slow.a.cold = True
        slow.tail('slow')
        slow.a.e('s_branch L_fin2')
        sb = slow.a.finish()
        sb = sb[:sb.index('L_isl_0:')]
        body = a.finish()
        ref = open('cdna_kernels/' + NAME + '.s.ref').read() if o.get('hdr', True) else ''
        hdr = ''.join(l + '\n' for l in ref.split('\n') if l.startswith(';') and '@launch' not in l and 'Override' not in l and 'grid=ceil' not in l)
        txt = hdr + '; @launch grid=(256,1,1) block=(256,1,1) lds=163840\n'
        txt += '.amdgcn_target "amdgcn-amd-amdhsa--gfx950"\n.text\n'
        txt += f'.globl {NAME}_kernel\n.p2align 8\n.type {NAME}_kernel,@function\n{NAME}_kernel:\n'
        txt += body
        txt += 'L_tailend:\n' + altb + 'L_codeend:\n' + sb
        txt += f"""    s_endpgm
.section .rodata,"a"
.p2align 6
.amdhsa_kernel {NAME}_kernel
  .amdhsa_next_free_vgpr 512
  .amdhsa_next_free_sgpr 102
  .amdhsa_accum_offset 256
  .amdhsa_group_segment_fixed_size 0
  .amdhsa_kernarg_size 112
  .amdhsa_user_sgpr_count 2
  .amdhsa_user_sgpr_kernarg_segment_ptr 1
  .amdhsa_system_sgpr_workgroup_id_x 1
.end_amdhsa_kernel
"""
        return txt


DEFAULT = dict(sleep=dict(h2a=7, h2b=7, h2c=3, ha=7, ia=30, ib=30, ha1=5, hc2=1, hc2b=2, hc4=1, fin=10), pol_c='nt', depth=3,
               touch=dict(w1b=['loc', 'code', 'wuk'], w1c=['loc'], w5=['code'], s27=['c1h'], i0=['Xc1:0:1', 'Xbwo'], i1=['loc', 'code'], i2=['loc']), wo_e=0, wo_pre=3, red_pre=4, tr_pre=4, pol_wq3='nt',
               late_touch=-1, wo_at=9, warm=0, c1_late=1, ml_early=2, qflag=0, ybar=0, atom_at=4, cnt_at=12, win=6, boost={}, win0=6)

if __name__ == '__main__':
    import json
    opt = dict(DEFAULT)
    out = sys.argv[1]
    if len(sys.argv) > 2:
        opt.update(json.loads(sys.argv[2]))
    g = Gen(opt)
    open(out, 'w').write(g.build())
    print('nops', g.a.nops, 'stamps', g.stnames, g.n0, g.nper)
```

```python
import sys, math, struct
from asmlib import Asm

NAME = 'interleave_layers__mha_block_cached__compressed_kv_cla__decode'


def f32(x):
    return '0x%08x' % struct.unpack('<I', struct.pack('<f', x))[0]


K1 = 1024
L_X = 128 * K1
L_IT = 72 * K1
L_SZ = 56 * K1
L_QA, L_QB, L_OA, L_OB, L_C1ML = 0, 16 * K1, 32 * K1, 40 * K1, 48 * K1
L_STA, L_STB, L_OAL, L_FL = 52 * K1, 52 * K1 + 256, 52 * K1 + 512, 52 * K1 + 640
L_CSA = 56 * K1
GB, G_IT = 0x100000, 384 * K1
G_YA, G_YB, G_QABS, G_C2L, G_C2 = 0, 24 * K1, 48 * K1, 80 * K1, 112 * K1
CB = 0x200000
STAMP = 0x800000
WS_SIZE = 0x1000000
OOB = 0x40000000
CKV = 65536
STG = 131072
ZML = STG + 7168
ZO = STG + 8192 + 7168
ZQ = STG + 2 * 8192 + 7168
K_, V_, CK, DBG, XIN, WQ, WO, BWQ, WUK, WUV, BWO, WS, WSL, WSG, OUT = ['s[%d:%d]' % (4 + 4 * i, 7 + 4 * i) for i in range(15)]
(sX, sJ, sV, sLOC, sW8, sKV, sKG, sIT, sPOLL, sM, sRES, sST, sH, sS,
 t0, t1, t2, t3, t4, t5) = ['s%d' % i for i in range(64, 84)]
MY = 's[84:85]'
(oY, oQA, oQB, oST, oQgA, oSTgA, oWQ, oWO, oWUK, oWUV, oYpub) = ['s%d' % i for i in range(86, 97)]
(oQgB, oSTgB, oQApub, oQAg, oC1pub, oMLpub, oC1g, oMLg, oC2pub, oC2Lpub, oC2g, oC2Lg,
 oOBpub, oOApub, oOALpub, oOALg, oRES, oO) = ['s%d' % i for i in range(4, 22)]
vT, vA, vL16 = 'v2', 'v3', 'v6'
TBL = [0, 8, 9, 1]
DPPI = 'quad_perm:[0,1,2,3]'
FULL = 'row_mask:0xf bank_mask:0xf'
QSCALE = math.log2(math.e) / math.sqrt(128.0)


def vr(a, n):
    return f'v[{a}:{a + n - 1}]' if n > 1 else f'v{a}'


class Gen:
    def __init__(self, opt):
        self.o = opt
        self.a = Asm()
        self.nst = 0
        self.stnames = []
        self.mode = None
        self.alt = False

    def stamp(self, name, level=1):
        if self.o.get('stamps', 0) < level or self.mode == 'slow':
            return
        if self.o.get('only') and name not in self.o['only'] and name != 'end':
            return
        a = self.a
        self.nst += 1
        self.stnames.append(name)
        a.e(f's_mov_b32 m0, {sST}')
        a.e(f's_pack_ll_b32_b16 s98, s98, {sPOLL}')
        a.e('v_writelane_b32 v7, s98, m0')
        a.e(f's_mov_b32 {sST}, {self.nst}')
        a.e(f's_bitset1_b32 {sST}, s97')
        a.e('s_memtime s[98:99]' if self.o.get('clk') else 's_memrealtime s[98:99]')

    def K(self, n, key=None, force=False):
        if key is not None:
            n = self.o.get('K', {}).get(key, n)
        if not self.o.get('warm', 1) and not force:
            return
        for i in range(n):
            self.a.e('v_mov_b32 v0, v0')
            self.a.e('s_nop 2')

    def H(self, key, n, junk):
        n = self.o.get('H', {}).get(key, n if self.o.get('heat', 1) else 0)
        for i in range(n):
            self.a.e(f'v_mfma_f32_16x16x4_f32 {vr(junk, 4)}, v0, v0, 0')

    def Wm(self):
        if self.o.get('warm', 1):
            self.a.e('v_mov_b32 v0, v0')

    def bar(self, n=2, vm=False):
        self.K(n)
        self.Wm()
        self.a.e('s_waitcnt vmcnt(0) lgkmcnt(0)' if vm else 's_waitcnt lgkmcnt(0)')
        self.Wm()
        self.a.e('s_barrier')
        self.Wm()

    def retry_to(self, top):
        a = self.a
        done, retry = a.lab('got'), a.lab('retry')
        a.e(f's_cbranch_vccnz {retry}')
        a.e(f'{done}:')
        a.ool(f'{retry}:\ns_cselect_b32 s3, 1, 0\ns_add_u32 {sPOLL}, {sPOLL}, 1\ns_cmp_gt_u32 {sPOLL}, 100000\ns_nop 1\ns_cbranch_scc0 {top}\n'
              f's_cmp_eq_u32 s3, 1\ns_branch {done}')

    def retry_with(self, lines, wait, chk):
        a = self.a
        done, retry = a.lab('got'), a.lab('retry')
        a.e(f's_cbranch_vccnz {retry}')
        a.e(f'{done}:')
        a.ool(f'{retry}:\n' + '\n'.join(lines) + f'\ns_add_u32 {sPOLL}, {sPOLL}, 1\ns_cmp_gt_u32 {sPOLL}, 100000\n{wait}\n'
              f's_cbranch_scc0 {chk}\ns_waitcnt vmcnt(0)\ns_branch {done}')
        return retry

    def ool_if(self, cond, fn, els=None, big=False):
        a = self.a
        go, back = a.lab('go'), a.lab('back')
        a.e(cond)
        a.e(f's_cbranch_scc1 {go}')
        if els and big:
            els()
            a.vmq, a.dsq = [], []
        elif els:
            a.begin_skip()
            els()
            a.end_skip()
        a.e(f'{back}:')
        sub = Asm()
        sub.uid = a.uid + 1000 * (1 + len(a.tail))
        self.a = sub
        sub.e(f'{go}:')
        sub.e('s_nop 1')
        fn()
        sub.e('s_nop 1')
        sub.e(f's_branch {back}')
        self.a = a
        tail, sub.tail = sub.tail, []
        body = sub.finish().split('\n')
        body = [x.strip() for x in body[:[i for i, x in enumerate(body) if x.startswith('L_isl_0')][0]] if x.strip()]
        for k in range(0, len(body), 14):
            part = body[k:k + 14]
            if k + 14 < len(body):
                nxt = a.lab('p')
                part.append(f's_branch {nxt}')
                body[k + 14] = f'{nxt}:\n' + body[k + 14]
            a.ool('\n'.join(part))
        for t in tail:
            a.ool(t)

    def lstore(self, lines):
        a = self.a
        if self.mode is not None:
            for l in lines:
                a.e(l + ' sc1' if self.mode == 'slow' and l.startswith('buffer_') else l)
            return
        slow, back = a.lab('slow'), a.lab('back')
        a.e(f's_cbranch_scc1 {slow}')
        for l in lines:
            a.e(l)
        a.e(f'{back}:')
        a.ool(('' if a.cold else '#cold') + f'{slow}:\ns_nop 7\n' + '\n'.join(l + ' sc1' if l.startswith('buffer_') else l for l in lines) + f'\ns_branch {back}')

    def lcmp(self):
        if self.mode is None:
            self.a.e(f's_cmp_eq_u32 {sLOC}, 0')

    def poll_begin(self):
        a = self.a
        self.ptop, self.pretry, self.pdone = a.lab('poll'), a.lab('retry'), a.lab('got')
        a.e(f'{self.ptop}:')

    def poll_end(self, vmax):
        a = self.a
        a.e(f'v_cmp_eq_u32 vcc, -1, {vmax}')
        a.e(f's_cbranch_vccnz {self.pretry}')
        a.e(f'{self.pdone}:')
        a.ool(f'{self.pretry}:\ns_add_u32 {sPOLL}, {sPOLL}, 1\ns_cmp_gt_u32 {sPOLL}, 100000\ns_cbranch_scc1 {self.pdone}\ns_nop 7\ns_branch {self.ptop}')

    def poll_cmp(self, vmax):
        self.a.e(f'v_cmp_eq_u32 vcc, -1, {vmax}')

    def poll_br(self, last=True):
        a = self.a
        done = a.lab('got')
        retry = a.lab('retry')
        a.e(f's_cbranch_vccnz {retry}')
        a.e(f'{done}:')
        a.ool(f'{retry}:\ns_cselect_b32 s3, 1, 0\ns_add_u32 {sPOLL}, {sPOLL}, 1\ns_cmp_gt_u32 {sPOLL}, 100000\ns_cbranch_scc0 {self.ptop}\n'
              f's_cmp_eq_u32 s3, 1\ns_branch {done}')

    def pipe_poll(self, ld, vmax, regs, key, mid=()):
        a = self.a
        n = sum(x.startswith('buffer') for x in ld)
        if self.o.get('pipe', {}).get(key, 1):
            self.poll_begin()
            for x in ld:
                self.H(key + '0', 0, 40)
                a.e(x)
            self.H(key + '1', 0, 40)
            a.e(f's_waitcnt vmcnt({n})')
            self.maxchain(vmax, regs, True)
            self.poll_cmp(vmax)
            for x in mid:
                a.e(x)
            self.poll_br()
        else:
            a.e('s_waitcnt vmcnt(0)')
            self.late_check(vmax, regs, ld)

    def late_check(self, vmax, regs, reissue):
        a = self.a
        chk, retry, done = a.lab('chk'), a.lab('retry'), a.lab('done')
        a.e(f'{chk}:')
        self.maxchain(vmax, regs, True)
        a.e(f'v_cmp_eq_u32 vcc, -1, {vmax}')
        a.e(f's_cbranch_vccnz {retry}')
        a.e(f'{done}:')
        a.ool(f'{retry}:\ns_add_u32 {sPOLL}, {sPOLL}, 1\ns_cmp_gt_u32 {sPOLL}, 100000\ns_cbranch_scc1 {done}\n'
              + '\n'.join(reissue) + f'\ns_waitcnt vmcnt(0)\ns_branch {chk}')

    def maxchain(self, vmax, regs, first):
        a = self.a
        regs = list(regs)
        if first:
            if len(regs) >= 3:
                a.e(f'v_max3_u32 {vmax}, v{regs[0]}, v{regs[1]}, v{regs[2]}')
                regs = regs[3:]
            elif len(regs) == 2:
                a.e(f'v_max_u32 {vmax}, v{regs[0]}, v{regs[1]}')
                regs = []
            else:
                a.e(f'v_mov_b32 {vmax}, v{regs[0]}')
                regs = []
        while len(regs) >= 2:
            a.e(f'v_max3_u32 {vmax}, {vmax}, v{regs[0]}, v{regs[1]}')
            regs = regs[2:]
        if regs:
            a.e(f'v_max_u32 {vmax}, {vmax}, v{regs[0]}')

    def sleep(self, key):
        n = self.o.get('sleep', {}).get(key, 0)
        if n:
            self.a.e(f's_sleep {n}')

    def wave_only(self, w):
        a = self.a
        l = a.lab('notw')
        a.e(f's_cmp_lg_u32 {sV}, {w}')
        a.e(f's_cbranch_scc1 {l}')
        a.begin_skip()
        return l

    def end_only(self, lab):
        self.a.end_skip()
        self.a.e(f'{lab}:')

    def pos_bytes(self, dst, tmp):
        a = self.a
        a.e(f'v_lshlrev_b32 {dst}, 3, v0')
        a.e(f'v_and_b32 {dst}, 16, {dst}')
        a.e(f'v_and_or_b32 {dst}, v0, 12, {dst}')

    def sp_addr(self, dst, base):
        a = self.a
        a.e(f'v_and_b32 {dst}, 48, v0')
        a.e(f'v_lshlrev_b32 {dst}, 1, {dst}')
        a.e(f'v_and_or_b32 {dst}, {vL16}, 16, {dst}')
        if base:
            a.e(f'v_add_u32 {dst}, {base}, {dst}')

    def sums(self, dst, terms, const=0):
        a = self.a
        first = True
        for reg, mul in terms:
            d = dst if first else t0
            if mul & (mul - 1) == 0:
                a.e(f's_lshl_b32 {d}, {reg}, {mul.bit_length() - 1}')
            else:
                a.e(f's_mul_i32 {d}, {reg}, {mul}')
            if not first:
                a.e(f's_add_u32 {dst}, {dst}, {t0}')
            first = False
        if const:
            a.e(f's_add_u32 {dst}, {dst}, {const}')

    def k64_addr(self, vt, vu):
        a = self.a
        a.e(f'v_lshrrev_b32 {vt}, 2, v0')
        a.e(f'v_lshlrev_b32 {vt}, 13, {vt}')
        a.e(f'v_and_or_b32 {vt}, {vL16}, 48, {vt}')

    def wq_prep(self, vt, vu):
        a = self.a
        a.e(f'v_lshrrev_b32 {vu}, 4, v0')
        a.e(f'v_lshlrev_b32 {vt}, 5, {vu}')
        a.e(f'v_xor_b32 {vt}, {vt}, {vL16}')
        a.e(f's_lshl_b32 {t1}, {sV}, 7')
        a.e(f'v_xor_b32 {vt}, {t1}, {vt}')
        a.e(f'v_and_b32 {vt}, 0xf0, {vt}')
        a.e(f'v_lshl_or_b32 {vt}, {vu}, 13, {vt}')

    def wq_issue(self, srd, vt, vu, parts, pol=''):
        a = self.a
        for i in parts:
            if i == parts[0] or i == 3:
                a.e(f's_add_u32 m0, {sW8}, {(i // 3) * 3072}')
            a.e(f's_add_u32 {t1}, {oWQ}, {i * 4 * 8192 - (i % 3) * 1024}')
            a.e(f'buffer_load_dwordx4 {vt}, {srd}, {t1} offen offset:{(i % 3) * 1024} {pol} lds')
        a.tag_vm('wq')

    def dma_wq(self, srd, vt, vu, pol=''):
        self.wq_prep(vt, vu)
        self.wq_issue(srd, vt, vu, list(range(6)), pol)

    def dma_wuv(self, vt):
        a = self.a
        pol = self.o.get('pol_w', '')
        self.k64_addr(vt, None)
        for i in range(4):
            a.e(f's_add_u32 m0, {sW8}, {i * 1024}')
            a.e(f's_add_u32 {t1}, {oWUV}, {i * 16 * 8192}')
            a.e(f'buffer_load_dwordx4 {vt}, {WUV}, {t1} offen {pol} lds')
        a.tag_vm('wuv')

    def wuk_prep(self, vt, vu):
        a = self.a
        a.e(f'v_lshrrev_b32 {vu}, 4, v0')
        a.e(f'v_lshlrev_b32 {vt}, 5, {vu}')
        a.e(f'v_xor_b32 {vt}, {vt}, {vL16}')
        a.e(f'v_and_b32 {vt}, 0xf0, {vt}')
        a.e(f'v_lshl_or_b32 {vt}, {vu}, 13, {vt}')

    def wuk_issue(self, vt, vu):
        a = self.a
        pol = self.o.get('pol_wuk', '')
        a.e(f's_mov_b32 m0, {sW8}')
        for q in range(4):
            a.e(f's_add_u32 {t1}, {oWUK}, {q * (4 * 8192 - 1024)}')
            if q:
                a.e(f'v_xor_b32 {vu}, {TBL[q] << 4}, {vt}')
            a.e(f'buffer_load_dwordx4 {vu if q else vt}, {WUK}, {t1} offen offset:{q * 1024} {pol} lds')
        a.tag_vm('wuk')

    def wo_prep(self, R, tmp):
        a = self.a
        for i in range(3):
            a.e(f'v_add_u32 v{R + i}, {64 * i}, v0')
            a.e(f'v_mul_u32_u24 {tmp}, 21846, v{R + i}')
            a.e(f'v_lshrrev_b32 {tmp}, 16, {tmp}')
            a.e(f'v_mul_u32_u24 {tmp}, {1152 - 48}, {tmp}')
            a.e(f'v_lshl_add_u32 v{R + i}, v0, 4, {tmp}')
        a.e(f's_add_u32 {t5}, {oWO}, {64 * 1152}')

    def wo_lines(self, srd, R, pol='', base=sW8):
        out = []
        for h in range(2):
            out.append(f's_add_u32 m0, {base}, {h * 3072}')
            for i in range(3):
                out.append(f'buffer_load_dwordx4 v{R + i}, {srd}, {t5 if h else oWO} offen offset:{i * 1024} {pol} lds')
        return out

    def wo_group(self, srd, R, lo, hi):
        out = []
        for k in range(lo, hi):
            h, i = divmod(k, 3)
            if k == lo or i == 0:
                out.append(f's_add_u32 m0, {sW8}, {h * 3072}')
            out.append(f'buffer_load_dwordx4 v{R + i}, {srd}, {t5 if h else oWO} offen offset:{i * 1024} lds')
        return out

    def dma_wo(self, srd, R, tmp):
        self.wo_prep(R, tmp)
        for x in self.wo_lines(srd, R, self.o.get('pol_wo1', '')):
            self.a.e(x)
        self.a.tag_vm('wo')

    def touch(self, what, vt, vd):
        a = self.a
        if what == 'code':
            l = a.lab('pc')
            self.sums(t1, [(sJ, 1024), (sV, 256)])
            a.e(f'v_lshl_add_u32 {vt}, v0, 7, {t1}')
            a.e(f'v_min_u32 {vt}, L_tailend-L_top_fast, {vt}')
            a.e('s_getpc_b64 s[0:1]')
            a.e(f'{l}:')
            a.e(f's_add_u32 s0, s0, L_top_fast-{l}')
            a.e(f's_addc_u32 s1, s1, {0 if self.mode is None else -1}')
            a.e('s_mov_b64 exec, 3')
            a.e(f'global_load_dword {vd}, {vt}, s[0:1]')
            a.e('s_mov_b64 exec, -1')
            return
        if what[0] == 'X':
            what, lo, hi = (what.split(':') + ['0', '9'])[:3]
            if what in ('Xbwq', 'Xwq', 'Xwuk', 'Xwuv'):
                srd, rows = {'Xbwq': (BWQ, 18), 'Xwq': (WQ, 18), 'Xwuk': (WUK, 12), 'Xwuv': (WUV, 16)}[what]
                a.e(f'v_lshrrev_b32 {vt}, 3, v0')
                a.e(f'v_lshlrev_b32 {vt}, 6, {vt}')
                a.e(f'v_and_or_b32 {vt}, v0, 7, {vt}')
                a.e(f'v_lshlrev_b32 {vt}, 7, {vt}')
                self.sums(t1, [(sX, 1024), (sJ, 4 * rows * 8192), (sV, rows * 8192)], (1 << 32) - 96 * rows * 8192)
                for k in range(0, rows, 8):
                    if rows - k < 8:
                        a.e(f's_mov_b32 exec_lo, {(1 << ((rows - k) * 8)) - 1}')
                        a.e('s_mov_b32 exec_hi, 0')
                    if int(lo) <= k // 8 < int(hi):
                        a.e(f'buffer_load_dword {vd}, {vt}, {srd}, {t1} offen')
                    a.e(f's_add_u32 {t1}, {t1}, 65536')
                a.e('s_mov_b64 exec, -1')
                return
            srd, base, per = {'Xc1': (WS, [(sX, 1 << 19)], 16384), 'Xbwo': (BWO, [(sX, 512 * 1152)], 18432), 'Xwo': (WO, [(sX, 512 * 1152)], 18432)}[what]
            a.e(f'v_lshlrev_b32 {vt}, 7, v0')
            self.sums(t1, base + [(sJ, 4 * per), (sV, per)], (CB if what == 'Xc1' else 0) - 96 * per + (1 << 32 if what != 'Xc1' else 0))
            for k in range(0, per, 8192):
                if per - k < 8192:
                    a.e(f's_mov_b64 exec, {(1 << ((per - k) // 128)) - 1}')
                if int(lo) <= k // 8192 < int(hi):
                    a.e(f'buffer_load_dword {vd}, {vt}, {srd}, {t1} offen')
                a.e(f's_add_u32 {t1}, {t1}, 8192')
            a.e('s_mov_b64 exec, -1')
            return
        half = None
        if what[-1] in '01' and what != 'c1':
            what, half = what[:-1], int(what[-1])
        if what in ('wq', 'bwq', 'wuv', 'wuk'):
            srd = {'wq': WQ, 'bwq': BWQ, 'wuv': WUV, 'wuk': WUK}[what]
            a.e(f'v_lshrrev_b32 {vt}, 3, v0')
            a.e(f'v_lshlrev_b32 {vt}, 6, {vt}')
            a.e(f'v_and_or_b32 {vt}, v0, 7, {vt}')
            a.e(f'v_lshlrev_b32 {vt}, 7, {vt}')
            rows = 5 if what in ('wq', 'bwq') else 4
            self.sums(t1, [(sJ, 4 * rows * 8192), (sV, rows * 8192), (sX, 1024)])
            n = 8 * rows
        elif what == 'loc':
            srd = WS
            a.e(f'v_lshlrev_b32 {vt}, 7, v0')
            self.sums(t1, [(sX, L_X), (sJ, 4096), (sV, 1024)])
            n = 8
        elif what == 'c1h':
            srd = WS
            a.e(f'v_lshlrev_b32 {vt}, 7, v0')
            self.sums(t1, [(sX, 1 << 19), (sJ, 16384), (sV, 2048)], CB + 8192)
            n = 16
        elif what == 'c1':
            srd = WS
            a.e(f'v_lshlrev_b32 {vt}, 7, v0')
            self.sums(t1, [(sX, 1 << 19), (sJ, 16384), (sV, 4096)], CB)
            n = 32
        else:
            srd = {'wo': WO, 'bwo': BWO}[what]
            a.e(f'v_lshlrev_b32 {vt}, 7, v0')
            self.sums(t1, [(sX, 512 * 1152), (sJ, 18432), (sV, 4608)])
            n = 36
        m = (1 << n) - 1
        if half == 0:
            m = (1 << (n // 2)) - 1
        elif half == 1:
            m ^= (1 << (n // 2)) - 1
        a.e(f's_mov_b32 exec_lo, {m & 0xffffffff}')
        a.e(f's_mov_b32 exec_hi, {m >> 32}')
        if vd is None:
            a.e(f's_add_u32 m0, {sW8}, 1024')
            a.e(f'buffer_load_dword {vt}, {srd}, {t1} offen lds')
        else:
            a.e(f'buffer_load_dword {vd}, {vt}, {srd}, {t1} offen')
        a.e('s_mov_b64 exec, -1')

    def touches(self, where, vt, vd):
        for w in self.o.get('touch', {}).get(where, []):
            self.touch(w, vt, vd)

    def lnq_addr(self):
        a = self.a
        a.e('v_lshrrev_b32 v52, 4, v0')
        a.e('v_bfe_u32 v53, v0, 2, 2')
        a.e('v_lshl_add_u32 v52, v52, 5, v53')
        a.e('v_and_b32 v53, 31, v0')
        a.e('v_lshlrev_b32 v53, 3, v53')
        a.e('v_lshl_or_b32 v52, v52, 8, v53')
        a.e(f's_lshl_b32 {t0}, {sV}, 6')
        a.e(f's_add_u32 {t0}, {t0}, {STG}')
        a.e(f'v_xor_b32 v52, {t0}, v52')
        a.e('v_xor_b32 v54, 32, v52')

    def lnq_prep(self):
        a = self.a
        a.wait(vm='wq')
        a.e('s_barrier')
        for rho in range(3):
            for tau in range(2):
                for half in range(2):
                    a.e(f'ds_read_b64_tr_b16 {vr(28 + 8 * rho + 4 * tau + 2 * half, 2)}, v{52 + 2 * tau} offset:{2048 * rho + 1024 * half}')
        a.e('s_waitcnt lgkmcnt(0)')
        a.e('s_barrier')

    def lnq_rows(self):
        a = self.a
        a.e('v_mov_b32 v53, 0x3f803f80')
        a.e(f's_lshl_b64 s[82:83], {MY}, 8')
        a.e('v_cndmask_b32 v16, 0, v53, s[82:83]')
        a.e('v_mov_b32 v17, v16')
        for r in range(18, 28, 2):
            a.e(f'v_mov_b64 {vr(r, 2)}, v[16:17]')

    def lnq_mfma(self, rho):
        a = self.a
        A = vr(16 + 4 * rho, 4)
        c = (lambda r: '0') if rho == 0 else (lambda r: r)
        return [f'v_mfma_f32_16x16x32_bf16 v[60:63], {A}, {A}, {c("v[60:63]")}',
                f'v_mfma_f32_16x16x32_bf16 v[52:55], {A}, {vr(28 + 8 * rho, 4)}, {c("v[52:55]")}',
                f'v_mfma_f32_16x16x32_bf16 v[56:59], {A}, {vr(32 + 8 * rho, 4)}, {c("v[56:59]")}']

    def lnq_reduce(self, isb, chk=False):
        a = self.a
        a.e('v_pk_add_f32 v[60:61], v[60:61], v[62:63]')
        a.e('v_add_f32 v60, v60, v61')
        if chk:
            a.e('v_cmp_u_f32 vcc, v60, v60')
        a.e('v_pk_add_f32 v[52:53], v[52:53], v[54:55]')
        a.e('v_mov_b32 v61, v60')
        a.e('v_pk_add_f32 v[56:57], v[56:57], v[58:59]')
        a.e('v_add_f32 v52, v52, v53')
        a.e('v_permlane16_swap_b32 v60, v61')
        a.e('v_add_f32 v56, v56, v57')
        a.e('v_add_f32 v60, v60, v61')
        a.e('v_permlane16_swap_b32 v52, v56')
        a.e(f'v_add_f32_dpp v60, v60, v60 quad_perm:[1,0,3,2] {FULL}')
        a.e('v_add_f32 v52, v52, v56')
        self.lcmp()
        a.e(f'v_add_f32_dpp v60, v60, v60 quad_perm:[2,3,0,1] {FULL}')
        if isb:
            a.e(f'v_mov_b32_dpp v53, v52 quad_perm:[1,0,3,2] {FULL}')
            a.e('v_cvt_pk_bf16_f32 v52, v52, v53')
        a.e(f'v_add_f32_dpp v60, v60, v60 row_half_mirror {FULL}')

    def lnq_pubaddr(self, isb, first):
        a = self.a
        if isb:
            self.pos_bytes('v14', None)
            a.e('v_and_b32 v15, 16, v0')
            a.e('v_lshl_or_b32 v14, v15, 4, v14')
            a.e('v_and_b32 v15, 32, v0')
            a.e('v_lshl_or_b32 v14, v15, 6, v14')
        else:
            a.e('v_and_b32 v14, 31, v0')
            a.e('v_lshlrev_b32 v14, 2, v14')
            if first:
                a.e('v_lshrrev_b32 v15, 5, v0')
                a.e(f'v_mul_u32_u24 v15, {L_CSA - L_QA}, v15')
                a.e('v_add_u32 v14, v14, v15')
        a.e('v_lshrrev_b32 v15, 1, v0')

    def lnq_publish(self, isb, first, q='v52', st='v60', qa='v14', sa='v15'):
        lines = []
        if isb:
            lines += ['s_mov_b32 exec_lo, 0x55555555', 's_mov_b32 exec_hi, 0x55555555']
        elif not first:
            lines += ['s_mov_b32 exec_hi, 0']
        lines += [f'buffer_store_dword {q}, {qa}, {WSL}, {oQB if isb else oQA} offen',
                  's_mov_b64 exec, 0x101',
                  f'buffer_store_dword {st}, {sa}, {WSL}, {oST} offen offset:{256 if isb else 0}',
                  's_mov_b64 exec, -1']
        self.lstore(lines)

    def lnq_tail(self, goff, isb):
        a = self.a
        if self.o.get('ybar', 1):
            a.e('s_barrier')
        self.lnq_rows()
        a.e('v_lshrrev_b32 v12, 2, v0')
        a.e('v_mul_u32_u24 v12, 3072, v12')
        a.e(f'v_and_or_b32 v12, {vL16}, 48, v12')
        a.e(f's_add_u32 {t4}, {oY}, {goff}')
        a.e(f's_add_u32 {t5}, {sW8}, 6144')
        self.dma_wq(BWQ if isb else WQ, 'v8', 'v9', self.o.get('pol_bwq', '') if isb else self.o.get('pol_wq3', ''))
        if not self.o.get('ybar', 1):
            a.e('s_barrier')
        self.lnq_addr()
        self.lnq_pubaddr(isb, False)
        a.e('v_and_b32 v11, 48, v0')
        a.e('v_lshlrev_b32 v11, 3, v11')
        a.e('v_and_or_b32 v11, v0, 7, v11')
        a.e('v_lshlrev_b32 v11, 6, v11')
        a.e(f'v_add_u32 v11, {STG + 6144}, v11')
        a.e('v_mov_b32 v13, 0')
        if isb:
            self.wuk_prep('v8', 'v9')

            def clear1():
                self.clear_g1(56)
                self.sleep('h2c')
            self.ool_if(f's_cmp_eq_u32 {sIT}, 0', clear1, lambda: self.sleep('h2a'))
        else:
            self.sleep('h2b')
        ld = [f's_mov_b32 m0, {t5}', 's_mov_b64 exec, 0x77777777',
              f'buffer_load_dword v13, v12, {WSG}, {t4} offen sc1',
              f'buffer_load_dwordx4 v12, {WSG}, {t4} offen sc1 lds',
              's_mov_b64 exec, -1']
        for i, x in enumerate(ld):
            a.e(x)
            if i in (2, 3):
                a.tag_vm(f'y{i}')
        self.touches('w1b' if isb else 'w1c', 'v60', 'v10')
        self.lnq_prep()
        self.stamp('wqrdy', 2)
        if isb:
            self.wuk_issue('v8', 'v9')
        chk, again = a.lab('chk'), a.lab('again')
        a.wait(vm='y2')
        a.e(f'{chk}:')
        a.e('v_cmp_eq_u32 vcc, -1, v13')
        a.wait(vm='y3')
        again = self.retry_with(ld, 's_waitcnt vmcnt(0)', chk)
        a.e(f's_mov_b64 exec, {MY}')
        a.e('s_barrier')
        for rho in range(3):
            a.e(f'ds_read_b128 {vr(16 + 4 * rho, 4)}, v11 offset:{16 * rho}')
            a.tag_ds(f'a{rho}')
        fl = isb and self.o.get('qflag', 1)
        if fl:
            self.lstore([f'buffer_store_dword v0, off, {WSL}, {t3} offset:{L_FL - L_OAL}'])
        a.e('s_mov_b64 exec, -1')
        self.stamp('h2got', 2)
        if fl:
            a.e('v_and_b32 v9, 7, v0')
            a.e('v_lshlrev_b32 v9, 2, v9')
        self.H('l1', 0, 56)
        mm = [self.lnq_mfma(rho) for rho in range(3)]
        for rho in range(3):
            a.wait(ds=f'a{rho}')
            a.e(mm[rho][0])
        g = ['v_pk_add_f32 v[60:61], v[60:61], v[62:63]', 'v_add_f32 v62, v60, v61', 'v_add_f32 v60, v60, v61', 'v_cmp_u_f32 vcc, v62, v62',
             'v_permlane16_swap_b32 v60, v62', 'v_add_f32 v60, v60, v62',
             f'v_add_f32_dpp v60, v60, v60 quad_perm:[1,0,3,2] {FULL}', f'v_add_f32_dpp v60, v60, v60 quad_perm:[2,3,0,1] {FULL}',
             f'v_add_f32_dpp v60, v60, v60 row_half_mirror {FULL}']
        a.e(mm[0][1]); a.e('s_nop 1')
        a.e(mm[1][1]); a.e('s_nop 1')
        a.e(mm[2][1]); a.e('s_nop 0'); a.e(g[0])
        a.e(mm[0][2]); a.e(g[1]); a.e(g[2])
        a.e(mm[1][2]); a.e(g[3]); a.e(g[4])
        a.e(mm[2][2]); a.e(g[5])
        a.e('v_pk_add_f32 v[52:53], v[52:53], v[54:55]')
        a.e('v_add_f32 v52, v52, v53')
        a.e(g[6])
        a.e(g[7])
        a.e('v_pk_add_f32 v[56:57], v[56:57], v[58:59]')
        a.e('v_add_f32 v56, v56, v57')
        a.e(g[8])
        again2 = a.lab('again')
        self.retry_to(again2)
        a.e('v_permlane16_swap_b32 v52, v56')
        a.e('v_add_f32 v52, v52, v56')
        if isb:
            a.e(f'v_mov_b32_dpp v53, v52 quad_perm:[1,0,3,2] {FULL}')
            a.e('v_cvt_pk_bf16_f32 v52, v52, v53')
        a.ool(f'{again2}:\ns_barrier\ns_branch {again}')
        if fl == 1:
            a.e(f'buffer_load_dword v10, v9, {WSL}, {oOALg} offen offset:{L_FL - L_OAL} sc1')
            a.tag_vm('fl')
        self.lnq_publish(isb, False)
        if fl == 2:
            a.e(f'buffer_load_dword v10, v9, {WSL}, {oOALg} offen offset:{L_FL - L_OAL} sc1')
            a.tag_vm('fl')
        self.stamp('qpub')

    def clear_g1(self, R):
        b = self.a
        for r in range(R, R + 4):
            b.e(f'v_mov_b32 v{r}, -1')
        self.sums(t1, [(sX, 128 * 384), (sJ, 4 * 384), (sV, 384)], GB + G_IT)
        b.e('s_mov_b64 exec, 0xffffff')
        b.e(f'buffer_store_dwordx4 {vr(R, 4)}, {vL16}, {WS}, {t1} offen sc1')
        b.e('s_mov_b64 exec, -1')

    def clear_c1(self, R, va, vt):
        b = self.a
        for r in range(R, R + 4):
            b.e(f'v_mov_b32 v{r}, -1')
        b.e(f'v_lshrrev_b32 {va}, 4, v0')
        b.e(f'v_and_b32 {vt}, 0xf0, {vL16}')
        b.e(f'v_lshl_or_b32 {va}, {va}, 16, {vt}')
        out = []
        for q in range(4):
            out.append(f's_add_u32 {t1}, {oC1pub}, {q * 4096}')
            out.append(f'buffer_store_dwordx4 {vr(R, 4)}, {va}, {WS}, {t1} offen')
        return out

    def oob(self, reg, mask):
        a = self.a
        a.e(f's_mov_b32 vcc_lo, {mask[0]}')
        a.e(f's_mov_b32 vcc_hi, {mask[1]}')
        a.e(f'v_cndmask_b32 {reg[0]}, {reg[1]}, 2.0, vcc')

    def c1_addr(self, dst, tmp):
        a = self.a
        a.e(f'v_lshrrev_b32 {tmp}, 4, v0')
        a.e(f'v_and_b32 {dst}, 0xf0, {vL16}')
        a.e(f'v_lshl_or_b32 {dst}, {tmp}, 12, {dst}')

    def stats(self, S):
        out = []
        for c in (4, 2, 1):
            out.append(f'v_add_f32_dpp v{S + 1}, v{S + 1}, v{S + 1} row_ror:{c} {FULL}')
            out.append(f'v_add_f32_dpp v{S}, v{S}, v{S} row_ror:{c} {FULL}')
        out.append(f'v_mul_f32 v{S + 1}, {f32(1.0 / (8 * 576))}, v{S + 1}')
        out.append(f'v_mul_f32 v{S}, {f32(1.0 / 576)}, v{S}')
        out.append(f'v_fma_f32 v{S}, -v{S + 1}, v{S + 1}, v{S}')
        out.append(f'v_max_f32 v{S}, 0, v{S}')
        out.append(f'v_add_f32 v{S}, {f32(1e-5)}, v{S}')
        out.append(f'v_rsq_f32 v{S}, v{S}')
        out.append(f'v_mul_f32 v{S + 1}, 0x3e000000, v{S + 1}')
        out.append(f'v_mul_f32 v{S}, {f32(QSCALE)}, v{S}')
        return out

    def mix(self, x, y):
        x, y = list(x), list(y)
        while x or y:
            if x:
                self.a.e(x.pop(0))
            if y:
                self.a.e(y.pop(0))

    def resid(self, goff, base, va, final):
        a = self.a
        a.e(f'v_lshlrev_b32 {va}, 2, v0')
        a.e(f's_add_u32 {t2}, {oRES}, {goff}')
        a.e('s_mov_b64 exec, 0xfff')
        if final:
            self.sleep('fin')
        self.poll_begin()
        for i in range(8):
            if i & 1 == 0:
                a.e(f's_add_u32 {t3}, {t2}, {i * 3072}')
            a.e(f'buffer_load_dword v{base + i}, {va}, {WSG}, {t3} offen offset:{(i & 1) * 3072} sc1')
        a.e(f'v_mov_b32 v{base + 8}, 0x3f80')
        a.e(f'v_mov_b32 v{base + 9}, 0x3f800000')
        a.e('v_mov_b64 v[4:5], 0')
        for i in range(8):
            if i & 1 == 0:
                a.e(f's_waitcnt vmcnt({6 - i})')
            a.e(f'v_dot2c_f32_bf16 v4, v{base + 8}, v{base + i}')
            a.e(f'v_dot2c_f32_bf16 v5, v{base + 9}, v{base + i}')
        a.e('s_nop 2')
        a.e('v_cmp_u_f32 vcc, v4, v5')
        if final:
            a.e('v_cvt_pk_bf16_f32 v9, v4, v5')
            a.e(f's_mul_i32 {t0}, {sJ}, 48')
        self.poll_br()

    def resid_track(self, goff, base, va, cond):
        a = self.a
        go, back = a.lab('res'), a.lab('resback')
        a.e(cond)
        a.e(f's_cbranch_scc1 {go}')
        a.e(f'{back}:')
        sub = Asm()
        sub.uid = a.uid + 1000 * (1 + len(a.tail))
        self.a = sub
        sub.e(f'{go}:')
        sub.e('s_nop 1')
        self.resid(goff, base, va, False)
        sub.e('s_mov_b64 exec, -1')
        sub.e(f's_branch {back}')
        self.a = a
        body = [i.text for i in sub.ins]
        cut = [k for k in range(0, len(body), 14)]
        for k in cut:
            part = body[k:k + 14]
            if k + 14 < len(body):
                nxt = a.lab('resp')
                part.append(f's_branch {nxt}')
                body[k + 14] = f'{nxt}:\n' + body[k + 14]
            a.ool('\n'.join(part))
        for t in sub.tail:
            a.ool(t)

    def qa_addr(self, T):
        a = self.a
        a.e(f'v_and_b32 v{T}, 4, v0')
        a.e(f'v_lshlrev_b32 v{T}, 3, v{T}')
        a.e(f'v_and_b32 v{T + 1}, 3, v0')
        a.e(f'v_lshl_or_b32 v{T}, v{T + 1}, 2, v{T}')
        a.e(f'v_lshrrev_b32 v{T + 1}, 5, v0')
        a.e(f'v_lshl_or_b32 v{T}, v{T + 1}, 4, v{T}')
        a.e(f'v_bfe_u32 v{T + 1}, v0, 4, 1')
        a.e(f'v_lshl_or_b32 v{T}, v{T + 1}, 1, v{T}')
        a.e(f's_lshl_b32 {t0}, {sV}, 6')
        a.e(f's_add_u32 {t0}, {t0}, {ZQ}')
        a.e(f'v_add_u32 v{T}, {t0}, v{T}')
        a.e(f'v_and_b32 v{T + 1}, 7, v0')
        a.e(f'v_lshlrev_b32 v{T + 1}, 3, v{T + 1}')
        self.oob((f'v{T + 1}', f'v{T + 1}'), (0xc0c0c0c0, 0xc0c0c0c0))
        self.oob((f'v{T + 3}', vL16), (0, 0xffff0000))
        self.sp_addr(f'v{T + 2}', ZQ)

    def red8(self, R):
        return [f'v_permlane32_swap_b32 v{R}, v{R + 2}',
                f'v_permlane32_swap_b32 v{R + 1}, v{R + 3}',
                f'v_pk_add_f32 {vr(R, 2)}, {vr(R, 2)}, {vr(R + 2, 2)}',
                f'v_permlane16_swap_b32 v{R}, v{R + 1}',
                f'v_add_f32 v{R}, v{R}, v{R + 1}',
                f'v_add_f32_dpp v{R}, v{R}, v{R} row_ror:8 {FULL}']

    def qa_loads(self, R, S, T):
        return [f'buffer_load_dwordx2 {vr(S, 2)}, v{T + 1}, {WSL}, {oSTgA} offen sc1',
                f'buffer_load_dwordx4 {vr(R, 4)}, v{T + 3}, {WSL}, {oQgA} offen sc1']

    def qa_finish(self, R, S, T, Q, br=False):
        a = self.a
        self.mix(self.stats(S), self.red8(R) + [f'v_and_b32 v{R + 1}, 0xffff0000, v1'])
        a.e(f'v_fma_f32 v{R}, -v{S + 1}, v{R + 1}, v{R}')
        a.e(f'v_mul_f32 v{R}, v{R}, v{S}')
        a.e(f'v_cvt_pk_bf16_f32 v{R}, v{R}, v{R}')
        a.e(f'ds_write_b16 v{T}, v{R}')
        if br:
            return
        self.bar(2, br)
        a.e(f'ds_read_b128 {vr(Q, 4)}, v{T + 2}')
        a.tag_ds('q0')
        a.e(f'ds_read_b128 {vr(Q + 4, 4)}, v{T + 2} offset:128')
        a.tag_ds('q1')

    def p_addr(self, r, t):
        a = self.a
        a.e(f'v_and_b32 {r}, 0x32, v0')
        a.e(f'v_lshlrev_b32 {r}, 3, {r}')
        a.e(f'v_and_b32 {t}, 8, v0')
        a.e(f'v_lshl_or_b32 {r}, {t}, 2, {r}')
        a.e(f'v_and_b32 {t}, 5, v0')
        a.e(f'v_lshl_or_b32 {r}, {t}, 1, {r}')
        a.e(f'v_add_u32 {r}, {sW8}, {r}')

    def qk_softmax(self, Q, D, S, T, fill=()):
        a = self.a
        for t in range(19):
            if t >= 3:
                d = D + 4 * ((t - 3) & 3)
                a.e(f'v_add_f32_dpp v{S + ((t - 3) & 3)}, v{d}, v{d + 1} {DPPI} row_mask:{1 << ((t - 3) >> 2)} bank_mask:0xf')
            if 4 <= t + 1 < 16:
                a.e(f'v_mov_b64 {vr(D + 4 * ((t + 1) & 3), 2)}, 0')
            if t < 16:
                d = vr(D + 4 * (t & 3), 4)
                if t == 0:
                    a.wait(ds='q0')
                a.e(f'v_smfmac_f32_16x16x64_bf16 {d}, {vr(Q, 4)}, a[{16 * t}:{16 * t + 7}], v1')
                if t == 0:
                    a.wait(ds='q1')
                elif t - 1 < len(fill):
                    for x in fill[t - 1]:
                        a.e(x)
                a.e(f'v_smfmac_f32_16x16x64_bf16 {d}, {vr(Q + 4, 4)}, a[{16 * t + 8}:{16 * t + 15}], v1')
        self.softmax_a(S, T, f'v{T + 1}')

    def softmax_a(self, S, T, pa, fill=()):
        a = self.a
        fill = list(fill)

        def f2():
            for _ in range(2):
                if fill:
                    a.e(fill.pop(0))
        m = f'v{T}'
        a.e(f'v_max3_f32 {m}, v{S}, v{S + 1}, v{S + 2}')
        a.e(f'v_max_f32 {m}, {m}, v{S + 3}')
        for c in ('row_ror:8', 'row_ror:4', 'row_ror:2', 'row_ror:1'):
            f2()
            a.e(f'v_max_f32_dpp {m}, {m}, {m} {c} {FULL}')
        f2()
        a.e(f'v_max_f32_dpp {m}, {m}, {m} row_bcast:15 row_mask:0xa bank_mask:0xf')
        f2()
        a.e(f'v_max_f32_dpp {m}, {m}, {m} row_bcast:31 row_mask:0xc bank_mask:0xf')
        a.e(f'v_readlane_b32 {sM}, {m}, 63')
        f2()
        assert not fill
        for r in range(4):
            a.e(f'v_subrev_f32 v{S + r}, {sM}, v{S + r}')
        for r in range(4):
            a.e(f'v_exp_f32 v{S + r}, v{S + r}')
        a.e(f'v_cvt_pk_bf16_f32 v{T + 2}, v{S}, v{S + 1}')
        a.e(f'v_cvt_pk_bf16_f32 v{T + 3}, v{S + 2}, v{S + 3}')
        a.e(f'ds_write_b16 {pa}, v{T + 2} offset:6144')
        a.e(f'ds_write_b16_d16_hi {pa}, v{T + 2} offset:{6144 + 4}')
        a.e(f'ds_write_b16 {pa}, v{T + 3} offset:{6144 + 64}')
        a.e(f'ds_write_b16_d16_hi {pa}, v{T + 3} offset:{6144 + 68}')

    def lsum(self, l, S):
        out = [f'v_pk_add_f32 {vr(S, 2)}, {vr(S, 2)}, {vr(S + 2, 2)}', f'v_add_f32 {l}, v{S}, v{S + 1}']
        for c in ('row_ror:8', 'row_ror:4', 'row_ror:2', 'row_ror:1'):
            out.append(f'v_add_f32_dpp {l}, {l}, {l} {c} {FULL}')
        out.append(f'v_add_f32_dpp {l}, {l}, {l} row_bcast:15 row_mask:0xa bank_mask:0xf')
        out.append(f'v_add_f32_dpp {l}, {l}, {l} row_bcast:31 row_mask:0xc bank_mask:0xf')
        return out

    def ml_write(self, T):
        return [f's_lshl_b32 {t0}, {sV}, 3', f's_add_u32 {t0}, {t0}, {ZML}', f'v_mov_b32 v{T + 2}, 0x30000', f'v_mov_b32 v{T}, {sM}',
                f'v_writelane_b32 v{T + 2}, {t0}, 63\nds_write_b64 v{T + 2}, {vr(T, 2)}']

    def ml_read(self, R, T):
        return [f'v_mov_b32 v{T}, {ZML}', f'ds_read_b128 {vr(R, 4)}, v{T}', f'ds_read_b128 {vr(R + 4, 4)}, v{T} offset:16']

    def ml_scale(self, R, T, F, LW):
        out = [f'v_max3_f32 v{T}, v{R}, v{R + 2}, v{R + 4}', f'v_max_f32 v{T}, v{T}, v{R + 6}']
        out += [f'v_sub_f32 v{R + 2 * w}, v{R + 2 * w}, v{T}' for w in range(4)]
        out += [f'v_sub_f32 v{F}, {sM}, v{T}']
        out += [f'v_exp_f32 v{R + 2 * w}, v{R + 2 * w}' for w in range(4)]
        out += [f'v_exp_f32 v{F}, v{F}', f'v_mul_f32 v{LW}, v{R}, v{R + 1}']
        out += [f'v_fmac_f32 v{LW}, v{R + 2 * w}, v{R + 2 * w + 1}' for w in range(1, 4)]
        out += [f'v_rcp_f32 v{R}, v{LW}', f'v_log_f32 v{LW}, v{LW}', f'v_mul_f32 v{F}, v{F}, v{R}', f'v_add_f32 v{LW}, v{LW}, v{T}']
        return out

    def combine_publish(self):
        a = self.a
        a.e('ds_write2st64_b32 v46, v44, v45 offset0:26 offset1:27')
        a.e(f'buffer_load_dword v16, v47, {WSL}, {oOALg} offen sc1')
        a.tag_vm('lw')
        a.e(f'v_mov_b32 v10, {STG + 6656}')
        a.e('v_lshl_add_u32 v8, v0, 3, v10')
        a.e('v_and_b32 v10, 56, v0')
        a.e('v_lshlrev_b32 v10, 5, v10')
        a.e(f'v_and_or_b32 v10, {vL16}, 16, v10')
        a.e('v_and_b32 v11, 6, v0')
        a.e('v_lshl_or_b32 v10, v11, 1, v10')
        a.e(f's_cmp_lg_u32 {sV}, 0')
        self.H('c1', 0, 12)
        a.e('s_waitcnt lgkmcnt(0)')
        a.e('s_barrier')
        l = a.lab('notw')
        a.e(f's_cbranch_scc1 {l}')
        a.begin_skip()
        for w in range(4):
            a.e(f'ds_read_b64 {vr(20 + 2 * w, 2)}, v8 offset:{w * 8192}')
            a.tag_ds(f'o{w}')
            if w == 0:
                self.H('c2', 0, 12)
        a.wait(ds='o1')
        a.e('v_pk_add_f32 v[20:21], v[20:21], v[22:23]')
        a.wait(ds='o3')
        a.e('v_pk_add_f32 v[24:25], v[24:25], v[26:27]')
        a.e('v_pk_add_f32 v[20:21], v[20:21], v[24:25]')
        a.e('v_cvt_pk_bf16_f32 v20, v20, v21')
        self.end_only(l)
        self.lstore([f'buffer_store_dword v20, v10, {WSL}, {oOApub} offen'])

    def w8(self, lw, t):
        return [f'v_max_f32_dpp {t}, {lw}, {lw} row_ror:4 {FULL}',
                f'v_max_f32_dpp {t}, {t}, {t} row_ror:2 {FULL}',
                f'v_max_f32_dpp {t}, {t}, {t} row_ror:1 {FULL}',
                f'v_sub_f32 {lw}, {lw}, {t}',
                f'v_exp_f32 {lw}, {lw}',
                f'v_add_f32_dpp {t}, {lw}, {lw} row_ror:4 {FULL}',
                f'v_add_f32_dpp {t}, {t}, {t} row_ror:2 {FULL}',
                f'v_add_f32_dpp {t}, {t}, {t} row_ror:1 {FULL}',
                f'v_rcp_f32 {t}, {t}']

    def rot8(self, dst, sh):
        a = self.a
        a.e(f'v_lshrrev_b32 {dst}, 4, v0')
        a.e(f'v_lshl_add_u32 {dst}, {dst}, 1, v0')
        a.e(f'v_and_b32 {dst}, 7, {dst}')
        a.e(f'v_lshlrev_b32 {dst}, {sh}, {dst}')

    def weigh2(self, skip=0, lw='v16', chk=False):
        a = self.a
        w = self.w8(lw, 'v17')
        for x in w[skip:6]:
            a.e(x)
        a.e('v_add_f32 v20, v20, v21')
        a.e('v_add_f32 v22, v22, v23')
        a.e(w[6])
        a.e('v_add_f32 v24, v24, v25')
        a.e('v_add_f32 v26, v26, v27')
        a.e(w[7])
        a.e(f'v_mul_f32_dpp v20, {lw}, v20 row_newbcast:0 {FULL}')
        a.e(f'v_mul_f32_dpp v24, {lw}, v24 row_newbcast:0 {FULL}')
        a.e(f'v_fmac_f32_dpp v20, {lw}, v22 row_newbcast:1 {FULL}')
        a.e(f'v_fmac_f32_dpp v24, {lw}, v26 row_newbcast:1 {FULL}')
        a.e(w[8])
        if chk:
            a.e('v_cmp_u_f32 vcc, v20, v20')
        a.e('v_permlane32_swap_b32 v20, v24')
        a.e('v_add_f32 v20, v20, v24')
        a.e('v_mul_f32 v20, v20, v17')

    def w8n(self, lw, t, W):
        return self.w8(lw, t) + [f'v_mul_f32_dpp v{W}, {lw}, {t} row_newbcast:0 {FULL}', f'v_mul_f32_dpp v{W + 1}, {lw}, {t} row_newbcast:1 {FULL}']

    def weigh2n(self, W, dup=None):
        a = self.a
        w = vr(W, 2)
        a.e(f'v_pk_mul_f32 v[20:21], v[20:21], {w} op_sel_hi:[1,0]')
        a.e(f'v_pk_fma_f32 v[20:21], v[22:23], {w}, v[20:21] op_sel:[0,1,0] op_sel_hi:[1,1,1]')
        a.e(f'v_pk_mul_f32 v[24:25], v[24:25], {w} op_sel_hi:[1,0]')
        a.e('v_add_f32 v20, v20, v21')
        a.e(f'v_pk_fma_f32 v[24:25], v[26:27], {w}, v[24:25] op_sel:[0,1,0] op_sel_hi:[1,1,1]')
        a.e('v_add_f32 v24, v24, v25')
        a.e('v_cmp_u_f32 vcc, v20, v20')
        a.e('v_permlane32_swap_b32 v20, v24')
        if dup:
            a.e(f'v_add_f32 {dup}, v20, v24')
        a.e('v_add_f32 v20, v20, v24')

    def outproj(self, isa):
        a = self.a
        if not isa:
            a.e(f's_add_u32 {t4}, {oO}, {L_OB - L_OA}')
        so = oO if isa else t4
        ld = [f'buffer_load_dwordx4 v[8:11], {vL16}, {WSL}, {so} offen sc1',
              f'buffer_load_dwordx4 v[12:15], {vL16}, {WSL}, {so} offen offset:1024 sc1']
        a.e('v_lshrrev_b32 v28, 4, v0')
        a.e('v_bfe_u32 v29, v0, 2, 2')
        a.e('v_lshl_add_u32 v28, v28, 3, v29')
        a.e('v_mul_u32_u24 v28, 48, v28')
        a.e('v_and_b32 v29, 3, v0')
        a.e('v_lshl_add_u32 v28, v29, 3, v28')
        a.e(f'v_add_u32 v28, {sW8}, v28')
        tr = []
        for blk in range(2):
            for tile in range(2):
                for hh in range(2):
                    for half in range(2):
                        off = (64 * blk + 32 * hh + 4 * half) * 48 + 32 * tile
                        tr.append(f'ds_read_b64_tr_b16 {vr(32 + 16 * tile + 8 * blk + 4 * hh + 2 * half, 2)}, v28 offset:{off}')
        a.e(f's_lshl_b32 {t2}, {sV}, 3')
        a.e(f's_add_u32 {t2}, {t2}, {ZO}')
        pre = ['v_and_b32 v18, 15, v0', 'v_lshrrev_b32 v19, 5, v0', 'v_lshl_add_u32 v18, v19, 4, v18', 'v_bfe_u32 v19, v0, 4, 1',
               'v_lshlrev_b32 v19, 2, v19', 'v_lshl_add_u32 v18, v18, 5, v19', f'v_add_u32 v18, {t2}, v18', f'v_mov_b32 v19, {ZO}',
               'v_and_b32 v29, 15, v0', 'v_lshl_add_u32 v19, v29, 6, v19', 'v_lshlrev_b32 v29, 2, v0']
        n1 = self.o.get('tr_pre', 8)
        if isa:
            a.e('s_waitcnt vmcnt(1)')
            a.vmq = []
        a.wait(vm='wo')
        for x in tr[:n1]:
            a.e(x)
        if isa:
            chk, again = a.lab('chk'), a.lab('again')
            a.e(f'{chk}:')
            a.e('v_cmp_eq_u32 vcc, -1, v16')
            a.e('v_mov_b32 v22, v16')
            self.retry_with([f'buffer_load_dword v16, v47, {WSL}, {oOALg} offen sc1'], 's_waitcnt vmcnt(1)', chk)
        self.sleep('h1' if isa else 'hd')
        for x in ld:
            a.e(x)
        if isa:
            pre = [x for p in zip(self.w8n('v22', 'v17', 30), pre) for x in p]
        self.mix(tr[n1:], pre)
        a.e(f's_add_u32 {t2}, {oYpub}, {G_YA if isa else G_YB}')
        top = a.lab('poll')
        a.e(f'{top}:')
        for x in ld:
            self.H('o0', 0, 20)
            a.e(x)
        for r in range(26, 18, -2):
            a.e(f'v_mov_b64 {vr(r, 2)}, 0')
        self.K(0, 'po', True)
        a.e(f's_waitcnt vmcnt({len(ld)}) lgkmcnt(0)')
        a.e('v_cmp_u_f32 vcc, v8, v12')
        a.e('v_smfmac_f32_16x16x64_bf16 v[20:23], v[8:11], v[32:39], v1')
        a.e('v_smfmac_f32_16x16x64_bf16 v[20:23], v[12:15], v[40:47], v1')
        self.retry_to(top)
        a.e('v_smfmac_f32_16x16x64_bf16 v[24:27], v[8:11], v[48:55], v1')
        a.e('v_smfmac_f32_16x16x64_bf16 v[24:27], v[12:15], v[56:63], v1')
        self.stamp('ogot')
        if isa:
            self.weigh2n(30)
        else:
            a.e('v_pk_add_f32 v[20:21], v[20:21], v[22:23]')
            a.e('v_add_f32 v20, v20, v21')
            a.e('v_cmp_u_f32 vcc, v20, v20')
            a.e('v_pk_add_f32 v[24:25], v[24:25], v[26:27]')
            a.e('v_add_f32 v24, v24, v25')
            a.e('v_permlane32_swap_b32 v20, v24')
            a.e('v_add_f32 v20, v20, v24')
        a.e('ds_write_b32 v18, v20')
        self.H('o1', 0, 24)
        self.retry_to(top)
        a.e(f's_bitcmp0_b32 {sRES}, 0')
        self.H('o2', 0, 24)
        self.bar(1, True)
        l = a.lab('noy')
        a.e(f's_cbranch_scc1 {l}')
        a.begin_skip()
        for i in range(4):
            a.e(f'ds_read_b128 {vr(32 + 4 * i, 4)}, v19 offset:{16 * i}')
            a.tag_ds(f'z{i}')
            if i == 1:
                self.H('o3', 0, 24)
        a.e('s_mov_b32 exec_hi, 0')
        self.K(2)
        self.Wm()
        a.wait(ds='z1')
        a.e('v_pk_add_f32 v[32:33], v[32:33], v[34:35]')
        a.e('v_pk_add_f32 v[36:37], v[36:37], v[38:39]')
        a.e('v_pk_add_f32 v[32:33], v[32:33], v[36:37]')
        a.e('v_add_f32 v32, v32, v33')
        a.wait(ds='z3')
        a.e('v_pk_add_f32 v[40:41], v[40:41], v[42:43]')
        a.e('v_pk_add_f32 v[44:45], v[44:45], v[46:47]')
        a.e('v_pk_add_f32 v[40:41], v[40:41], v[44:45]')
        a.e('v_add_f32 v33, v40, v41')
        a.e('v_pk_add_f32 v[32:33], v[32:33], v[4:5]')
        a.e('v_cvt_pk_bf16_f32 v32, v32, v33')
        a.e(f'buffer_store_dword v32, v29, {WSG}, {t2} offen sc1')
        a.e('s_mov_b32 exec_hi, -1')
        a.end_skip()
        a.e(f'{l}:')
        self.stamp('ypub')

    def qabs(self):
        a = self.a
        a.e('v_and_b32 v36, 7, v0')
        a.e('v_lshlrev_b32 v37, 3, v36')
        self.oob(('v37', 'v37'), (0xc0c0c0c0, 0xc0c0c0c0))
        self.oob(('v33', vL16), (0xf000f000, 0xf000f000))
        a.e(f's_sub_u32 {t0}, {sW8}, {sKV}')
        a.e(f'v_add_u32 v56, {t0}, {vA}')
        for ks in range(1, 4):
            a.e(f'v_xor_b32 v{56 + ks}, {ks << 6}, v56')
        a.e('v_and_b32 v38, 8, v0')
        a.e('v_lshlrev_b32 v38, 3, v38')
        a.e('v_lshl_or_b32 v38, v36, 1, v38')
        a.e(f's_lshl_b32 {t0}, {sV}, 4')
        a.e(f's_add_u32 {t0}, {t0}, {ZQ}')
        a.e(f'v_add_u32 v38, {t0}, v38')
        a.e(f'v_add_u32 v39, {ZQ}, {vL16}')
        if self.o.get('qflag', 1):
            chk, again = a.lab('chk'), a.lab('again')
            a.wait(vm='fl')
            a.e(f'{chk}:')
            a.e('v_cmp_eq_u32 vcc, -1, v10')
            self.retry_to(again)
            a.ool(f'{again}:\nbuffer_load_dword v10, v9, {WSL}, {oOALg} offen offset:{L_FL - L_OAL} sc1\ns_waitcnt vmcnt(1)\ns_branch {chk}')
        self.sleep('hqb')
        top = a.lab('poll')
        a.e(f'{top}:')
        a.e(f'buffer_load_dwordx2 v[34:35], v37, {WSL}, {oSTgB} offen sc1')
        a.tag_vm('st')
        for i in (2, 3, 0, 1):
            a.e(f'buffer_load_dwordx4 {vr(8 + 4 * i, 4)}, v33, {WSL}, {oQgB} offen offset:{i * 1024} sc1')
            a.tag_vm(f'q{i}')
        a.e('s_waitcnt vmcnt(5)')
        for ks in range(4):
            a.e(f'ds_read_b128 {vr(40 + 4 * ks, 4)}, v{56 + ks}')
            a.e(f'v_mov_b64 {vr(24 + 2 * ks, 2)}, 0')
        self.H('q1', 0, 60)
        a.wait(vm='st')
        a.e('v_cmp_u_f32 vcc, v34, v35')
        st = self.stats(34)
        for x in st[:4]:
            a.e(x)
        self.retry_to(top)
        for x in st[4:6]:
            a.e(x)
        a.e('s_waitcnt lgkmcnt(0)')
        a.wait(vm='q2')
        a.e('v_smfmac_f32_16x16x64_bf16 v[28:31], v[16:19], v[40:47], v1')
        for x in st[6:]:
            a.e(x)
        a.wait(vm='q3')
        a.e('v_smfmac_f32_16x16x64_bf16 v[28:31], v[20:23], v[48:55], v1')
        self.H('q2', 0, 60)
        a.wait(vm='q0')
        a.e('v_smfmac_f32_16x16x64_bf16 v[24:27], v[8:11], v[40:47], v1')
        self.K(1, 'qb3', True)
        a.e('v_pk_add_f32 v[28:29], v[28:29], v[30:31]')
        a.e('v_add_f32 v28, v28, v29')
        a.e('v_mul_f32 v28, v28, v35')
        a.e(f's_cmp_lg_u32 {sV}, 0')
        self.K(0, 'qb4', True)
        a.wait(vm='q1')
        a.e('v_smfmac_f32_16x16x64_bf16 v[24:27], v[12:15], v[48:55], v1')
        self.stamp('qgotB', 2)
        a.e('v_pk_add_f32 v[24:25], v[24:25], v[26:27]')
        a.e('v_sub_f32 v24, v24, v28')
        a.e('v_add_f32 v24, v24, v25')
        a.e('v_mul_f32 v25, v24, v34')
        a.e('v_mul_f32 v24, v24, v34')
        a.e('v_cmp_u_f32 vcc, v24, v24')
        a.e('v_permlane32_swap_b32 v24, v25')
        a.e('v_add_f32 v26, v24, v25')
        a.e('v_add_f32 v24, v24, v25')
        a.e('v_permlane16_swap_b32 v24, v26')
        a.e('v_add_f32 v24, v24, v26')
        a.e('v_cvt_pk_bf16_f32 v24, v24, v24')
        a.e('ds_write_b16 v38, v24')
        self.retry_to(top)
        a.e('s_waitcnt lgkmcnt(0)')
        a.e('s_barrier')
        l = a.lab('notw')
        a.e(f's_cbranch_scc1 {l}')
        a.begin_skip()
        a.e('s_mov_b64 exec, 0xff')
        a.e('ds_read_b128 v[24:27], v39')
        a.e('s_waitcnt lgkmcnt(0)')
        a.e(f'buffer_store_dwordx4 v[24:27], {vL16}, {WSG}, {oQApub} offen sc1')
        a.e('s_mov_b64 exec, -1')
        self.end_only(l)
        self.stamp('qapub')
        self.touches('w3', 'v8', 'v9')
        self.resid_track(G_YA, 10, 'v8', f's_cmp_eq_u32 {sRES}, 3')

    def attn_b(self):
        a = self.a
        a.e(f's_mul_i32 {t0}, {sV}, {4096 - 16384}')
        a.e(f's_add_u32 {t0}, {t0}, {CKV}')
        a.e(f'v_add_u32 v56, {t0}, {vA}')
        a.e('v_xor_b32 v57, 64, v56')
        ORD = [(r, ks) for kp in range(2) for r in range(4) for ks in (2 * kp, 2 * kp + 1)]
        ga = ['v_and_b32 v58, 12, v0', 'v_lshlrev_b32 v58, 4, v58', 'v_and_or_b32 v58, v0, 48, v58', 'v_lshlrev_b32 v58, 2, v58',
              f'v_and_or_b32 v58, {vL16}, 48, v58', 'v_lshlrev_b32 v8, 7, v0', 'v_mov_b32 v9, 0']
        for x in ga:
            a.e(x)
        a.e(f'v_add_u32 v59, {STG}, {vL16}')
        a.e('s_barrier')

        self.lstore(self.clear_c1(12, 'v16', 'v17'))
        self.sleep('ha')
        top = a.lab('poll')
        a.e(f'{top}:')
        ld = [f's_mov_b32 m0, {sW8}', 's_mov_b32 exec_hi, 0', f'buffer_load_dword v9, v8, {WSG}, {oQAg} offen sc1', 's_mov_b32 exec_hi, -1']
        for ks in range(4):
            ld.append(f'buffer_load_dwordx4 v58, {WSG}, {oQAg} offen offset:{ks * 1024} sc1 lds')
        for x in ld:
            a.e(x)
        for k in range(8):
            r, ks = ORD[k]
            a.e(f'ds_read_b128 {vr(24 + 4 * k, 4)}, v{56 + (ks & 1)} offset:{r * 16384}')
        a.e('v_xor_b32 v56, 128, v56')
        a.e('v_xor_b32 v57, 128, v57')
        self.k64_addr('v10', None)
        l4 = self.o.get('l4_wo', 0)
        if l4 == 2:
            self.wo_prep(12, 'v15')
        chk, again = a.lab('chk'), a.lab('again')
        a.e(f'{chk}:')
        a.e('s_waitcnt vmcnt(4)')
        a.e('v_cmp_eq_u32 vcc, -1, v9')
        self.retry_with(ld, 's_nop 0', chk)
        pol = self.o.get('pol_wuv', '')
        for i in range(1, 4):
            a.e(f's_add_u32 {[t1, t2, t3][i - 1]}, {oWUV}, {i * (16 * 8192 - 1024)}')
        a.e('v_mov_b32 v58, v10')
        half = self.o.get('qa_half', 1)
        if l4 == 2:
            a.e(f's_cmp_eq_u32 {sIT}, 1')
            a.e(f's_cselect_b32 {t0}, {sKV}, 0x30000')
            a.e(f's_cselect_b32 {t4}, {oWO}, {OOB}')
            a.e(f's_cselect_b32 {t5}, {t5}, {OOB}')
            for x in self.wo_lines(BWO, 12, '', t0):
                a.e(x.replace(f', {oWO} ', f', {t4} '))
        ex = 6 if l4 == 2 else 0
        a.e(f's_waitcnt vmcnt({(2 if half else 0) + ex}) lgkmcnt(0)')
        a.e('s_barrier')
        self.stamp('qagot')

        def qread(k):
            r, ks = ORD[k]
            a.e(f'ds_read_b128 {vr(8 + 4 * (k & 3), 4)}, v59 offset:{r * 8192 + ks * 1024}')
            a.tag_ds(f'q{k}')
        for k in range(4):
            qread(k)
        a.e(f's_add_u32 m0, {sW8}, 4096')
        SLOT = [16, 40, 48]

        def tread(e, ad='v57'):
            l = [f'v_xor_b32 {ad}, {CKV | (e << 5)}, {vT}']
            for t in range(4):
                l.append(f'ds_read_b64_tr_b16 {vr(SLOT[e % 3] + 2 * t, 2)}, {ad} offset:{t * 4096}')
            return l
        for k in range(16):
            a.wait(ds=f'q{k}')
            a.e(f'v_mfma_f32_16x16x32_bf16 v[60:63], {vr(24 + 4 * (k & 7), 4)}, {vr(8 + 4 * (k & 3), 4)}, {"v[60:63]" if k else "0"}')
            if k < 8:
                r, ks = ORD[k + 8]
                a.e(f'ds_read_b128 {vr(24 + 4 * k, 4)}, v{56 + (ks & 1)} offset:{r * 16384}')
            if k == 4 and half:
                a.e(f's_waitcnt vmcnt({2 + ex})')
                a.e('s_barrier')
            if k + 4 < 16:
                qread(k + 4)
            if k in (0, 2, 4, 6):
                a.e(f'buffer_load_dwordx4 v58, {WUV}, {[oWUV, t1, t2, t3][k >> 1]} offen offset:{(k >> 1) * 1024} {pol} lds')
            if k == 10:
                a.e('s_barrier')
            if k == 8:
                a.e(f'v_and_b32 v58, 0xf0, {vL16}')
                a.e(f's_lshl_b32 {t0}, {sV}, 2')
            if k == 9:
                a.e(f'v_add_u32 v58, {STG}, v58')
                a.e(f's_add_u32 {t1}, {oC1pub}, 4096')
            if k == 11:
                a.e(f'v_add_u32 v24, {t0}, v58')
                a.e(f's_add_u32 {t2}, {oC1pub}, 8192')
            if k == 12:
                a.e('v_xor_b32 v56, 128, v56')
                a.e(f'v_lshl_add_u32 v25, v0, 3, {sW8}')
            if k == 13:
                t1_ = tread(1)
                a.e(t1_[0]); a.e(t1_[1])
            if k == 14:
                a.e(t1_[2]); a.e(t1_[3])
        a.e(t1_[4])
        t0_, t2_ = tread(0), tread(2)
        a.e(f'v_mov_b32 v26, {STG}')
        a.e('v_lshl_add_u32 v26, v0, 3, v26')
        a.e(f's_add_u32 {t3}, {oC1pub}, 12288')
        for r in range(36, 40):
            a.e(f'v_mov_b32 v{r}, 0x3f803f80')
        a.e('v_max3_f32 v28, v60, v61, v62')
        a.e('v_max_f32 v29, v28, v63')
        a.e('v_max_f32 v28, v28, v63')
        a.e(t0_[0]); a.e(t0_[1])
        a.e('v_permlane32_swap_b32 v28, v29')
        a.e('v_max_f32 v30, v28, v29')
        a.e('v_max_f32 v28, v28, v29')
        a.e(t0_[2]); a.e(t0_[3])
        a.e('v_permlane16_swap_b32 v28, v30')
        a.e('v_max_f32 v28, v28, v30')
        a.e('ds_write_b32 v24, v28')
        a.tag_ds('mw')
        a.e(t0_[4])
        a.e(t2_[0])
        self.H('b0', 1, 32)
        a.e(t2_[1]); a.e(t2_[2]); a.e(t2_[3]); a.e(t2_[4])
        self.H('b1', 1, 32)
        a.wait(ds='mw')
        a.e('s_barrier')
        a.e('ds_read_b128 v[28:31], v58')
        a.tag_ds('mr')
        self.stamp('sbar', 2)
        self.H('b2', 1, 32)
        a.wait(ds='mr')
        a.e('v_max3_f32 v28, v28, v29, v30')
        a.e('v_max_f32 v28, v28, v31')
        a.e('v_pk_add_f32 v[60:61], v[60:61], v[28:29] op_sel_hi:[1,0] neg_lo:[0,1] neg_hi:[0,1]')
        a.e('v_pk_add_f32 v[62:63], v[62:63], v[28:29] op_sel_hi:[1,0] neg_lo:[0,1] neg_hi:[0,1]')
        for r in range(60, 64):
            a.e(f'v_exp_f32 v{r}, v{r}')
        a.e('v_cvt_pk_bf16_f32 v30, v60, v61')
        a.e('v_cvt_pk_bf16_f32 v31, v62, v63')
        a.e('ds_write_b64 v25, v[30:31] offset:1024')
        a.e('v_lshrrev_b32 v61, 4, v0')
        a.e(f'v_and_b32 v60, 0xf0, {vL16}')
        a.e('v_lshl_or_b32 v61, v61, 16, v60')
        a.e('v_mov_b32 v62, v28')
        a.e('v_xor_b32 v57, 64, v56')
        a.e('v_and_b32 v27, 12, v0')
        a.e('v_lshlrev_b32 v27, 4, v27')
        self.H('b3', 1, 32)
        self.lcmp()
        a.e('s_waitcnt lgkmcnt(0)')
        a.e('s_barrier')
        a.e('ds_read2st64_b64 v[8:11], v26 offset0:2 offset1:18')
        a.tag_ds('p0')
        a.e('ds_read2st64_b64 v[12:15], v26 offset0:34 offset1:50')
        a.tag_ds('p1')
        self.stamp('smax', 2)
        a.e('v_and_or_b32 v27, v0, 3, v27')
        a.e('v_lshlrev_b32 v27, 3, v27')
        self.K(2, 'b4', True)
        ACC = [28, 56, 36, 32]
        a.wait(ds='p0')
        a.e('v_cmp_u_f32 vcc, v8, v8')
        a.e(f'v_mfma_f32_16x16x32_bf16 v[28:31], v[8:11], {vr(SLOT[0], 4)}, 0')
        a.e('v_mfma_f32_16x16x32_bf16 v[32:35], v[36:39], v[8:11], 0')
        again = a.lab('again')
        self.retry_to(again)
        a.ool(f'{again}:\n' + '\n'.join(['s_waitcnt lgkmcnt(0)'] + ga) + f'\ns_barrier\ns_branch {top}')
        a.wait(ds='p1')
        a.e('v_mfma_f32_16x16x32_bf16 v[32:35], v[36:39], v[12:15], v[32:35]')
        so = [oC1pub, t1, t2, t3]
        ml = ['s_mov_b64 exec, 0xffff', f'buffer_store_dwordx2 v[62:63], v27, {WSL}, {oMLpub} offen', 's_mov_b64 exec, -1']
        mlat = self.o.get('ml_at', 2)

        def pack(q):
            d0, d1 = ACC[(2 * q) & 3], ACC[(2 * q + 1) & 3]
            return [f'v_cvt_pk_bf16_f32 v{24 + r}, v{d0 + r}, v{d1 + r}' for r in range(4)]

        def put(q):
            self.lstore([f'buffer_store_dwordx4 v[24:27], v61, {WS}, {so[q]} offen'] + (ml if q == mlat else []))
        F = {e: [[], []] for e in range(8)}
        early = self.o.get('ml_early', 1)
        mlat = -1
        F[1][1] = ['v_mov_b32 v63, v32']
        F[self.o.get('ml_e', 2)][1] += ['ML']
        F[3][0] = pack(0)[:2]
        F[3][1] = pack(0)[2:]
        F[5][0] = pack(1)[:2]
        F[5][1] = pack(1)[2:]
        F[6][0] = ['v_and_b32 v60, 3, v0', 'v_lshlrev_b32 v60, 6, v60']
        F[6][1] = ['v_and_or_b32 v60, v0, 60, v60', 'v_lshlrev_b32 v60, 1, v60']
        F[7][0] = pack(2)
        for e in range(8):
            a.wait(ds=f't{e}')
            d = vr(ACC[e & 3], 4)
            s = SLOT[e % 3]
            nx = tread(e + 3, 'v60') if e + 3 < 8 else []
            if nx:
                a.e(nx[0])
            if e:
                a.e(f'v_mfma_f32_16x16x32_bf16 {d}, v[8:11], {vr(s, 4)}, 0')
            if e in (4, 6):
                put((e - 4) // 2)
            for x in nx[1:3]:
                a.e(x)
            for x in F[e][0]:
                a.e(x)
            a.e(f'v_mfma_f32_16x16x32_bf16 {d}, v[12:15], {vr(s + 4, 4)}, {d}')
            for x in nx[3:]:
                a.e(x)
            if nx:
                a.tag_ds(f't{e + 3}')
            for x in F[e][1]:
                if x == 'ML':
                    self.lstore(ml)
                else:
                    a.e(x)
            if e == 7:
                put(2)
        if early == 1:
            a.e(f'buffer_load_dwordx2 v[22:23], v60, {WSL}, {oMLg} offen sc1')
            a.tag_vm('ml0')
        for x in pack(3):
            a.e(x)
        put(3)
        if early == 2:
            a.e(f'buffer_load_dwordx2 v[22:23], v60, {WSL}, {oMLg} offen sc1')
            a.tag_vm('ml0')
        self.stamp('c1pub')

    def red(self):
        a = self.a
        ld = f'buffer_load_dwordx2 v[22:23], v60, {WSL}, {oMLg} offen sc1'
        a.e('v_and_b32 v45, 56, v0')
        a.e('v_lshlrev_b32 v45, 1, v45')
        a.e('v_and_or_b32 v45, v0, 6, v45')
        a.e('v_lshlrev_b32 v45, 1, v45')
        a.e(f'v_and_or_b32 v45, {vL16}, 16, v45')
        a.e('v_lshlrev_b32 v46, 2, v0')
        for r in range(28, 36, 2):
            a.e(f'v_mov_b64 {vr(r, 2)}, 0')
        ne = self.o.get('wo_e', 0)
        if ne:
            self.wo_prep(41, 'v39')
            a.e('s_barrier')
        cl = [f'buffer_load_dwordx4 {vr(8 + 4 * i, 4)}, {vL16}, {WS}, {oC1g} offen offset:{i * 1024} sc1' for i in range(4)]
        ch = [f'v_max_f32_dpp v36, v22, v22 quad_perm:[1,0,3,2] {FULL}',
              f'v_max_f32_dpp v37, v36, v36 quad_perm:[2,3,0,1] {FULL}', f'v_max_f32_dpp v36, v36, v36 quad_perm:[2,3,0,1] {FULL}',
              'v_permlane32_swap_b32 v36, v37', 'v_max_f32 v38, v36, v37', 'v_max_f32 v36, v36, v37',
              'v_permlane16_swap_b32 v36, v38', 'v_max_f32 v36, v36, v38', 'v_sub_f32 v24, v24, v36', 'v_exp_f32 v24, v24',
              'v_mul_f32 v25, v25, v24', f'v_add_f32_dpp v25, v25, v25 quad_perm:[1,0,3,2] {FULL}',
              f'v_add_f32_dpp v37, v25, v25 quad_perm:[2,3,0,1] {FULL}', f'v_add_f32_dpp v25, v25, v25 quad_perm:[2,3,0,1] {FULL}',
              'v_permlane32_swap_b32 v25, v37', 'v_add_f32 v38, v25, v37', 'v_add_f32 v25, v25, v37',
              'v_permlane16_swap_b32 v25, v38', 'v_add_f32 v25, v25, v38', 'v_rcp_f32 v38, v25', 'v_log_f32 v37, v25',
              'v_mul_f32 v24, v24, v38', 'v_add_f32 v37, v37, v36', 'v_cvt_pk_bf16_f32 v26, v24, 0', 'v_cvt_pk_bf16_f32 v27, 0, v24']
        chk, again = a.lab('chk'), a.lab('again')
        if self.o.get('ml_early', 1) == 4:
            self.sleep('mld')
            a.e(ld)
            a.tag_vm('ml0')
            if self.o.get('sleep', {}).get('mld2'):
                self.sleep('mld2')
                a.e(ld)
        a.wait(vm='ml0')
        a.e(f'{chk}:')
        a.e('v_cmp_u_f32 vcc, v22, v23')
        a.e(ch[0])
        a.e('v_mov_b64 v[24:25], v[22:23]')
        self.retry_with([ld], 's_waitcnt vmcnt(1)', chk)
        self.stamp('mlgot', 2)
        npre = self.o.get('red_pre', 8)
        for x in ch[1:npre]:
            a.e(x)
        self.sleep('hc1')
        for i, x in enumerate(cl):
            a.e(x)
            a.tag_vm(f'c{i}')
        for x in self.wo_group(BWO, 41, 0, ne):
            a.e(x)
        for x in ch[max(npre, 1):]:
            a.e(x)
        lwe = self.o.get('lw_early', 1)
        lws = ['s_mov_b32 exec_hi, 0', f'buffer_store_dword v37, v46, {WSG}, {oC2Lpub} offen sc1', 's_mov_b32 exec_hi, -1']
        if lwe == 1 or lwe == 3:
            if lwe == 3:
                a.e('s_barrier')
            for x in lws:
                a.e(x)
        self.H('r1', 0, 48)
        top, again = a.lab('acc'), a.lab('again')
        a.e(f'{top}:')
        for i in range(4):
            if i:
                self.K(0, 'rd', True)
            a.wait(vm=f'c{i}')
            for d in range(4):
                a.e(f'v_dot2c_f32_bf16_dpp v{28 + 2 * d}, v26, v{8 + 4 * i + d} row_newbcast:{4 * d + i} {FULL}')
                a.e(f'v_dot2c_f32_bf16_dpp v{29 + 2 * d}, v27, v{8 + 4 * i + d} row_newbcast:{4 * d + i} {FULL}')
        for i in range(4):
            a.e(f'v_permlane32_swap_b32 v{28 + i}, v{32 + i}')
        a.e('v_pk_add_f32 v[28:29], v[28:29], v[32:33]')
        a.e('v_pk_add_f32 v[30:31], v[30:31], v[34:35]')
        a.e('v_cmp_u_f32 vcc, v28, v30')
        a.e('v_permlane16_swap_b32 v28, v30')
        a.e('v_permlane16_swap_b32 v29, v31')
        a.e('v_pk_add_f32 v[28:29], v[28:29], v[30:31]')
        a.e('v_cvt_pk_bf16_f32 v28, v28, v29')
        self.retry_to(again)
        a.ool(f'{again}:\n' + '\n'.join(cl) + '\n' + '\n'.join(f'v_mov_b64 {vr(r, 2)}, 0' for r in range(28, 36, 2)) + f'\ns_waitcnt vmcnt(0)\ns_branch {top}')
        a.e(f'buffer_store_dword v28, v45, {WSG}, {oC2pub} offen sc1')
        if lwe == 2:
            for x in lws:
                a.e(x)
        self.stamp('c2pub')
        a.e('v_and_b32 v40, 4, v0')
        a.e('v_lshlrev_b32 v40, 4, v40')
        a.e('v_and_or_b32 v40, v0, 48, v40')
        a.e('v_lshlrev_b32 v40, 1, v40')
        a.e('v_and_or_b32 v40, v0, 11, v40')
        a.e(f'v_lshl_add_u32 v40, v40, 3, {sW8}')
        for tau in range(2):
            for gam in range(2):
                for tt in range(2):
                    a.e(f'ds_read_b64_tr_b16 {vr(48 + 8 * tau + 4 * gam + 2 * tt, 2)}, v40 offset:{4096 + (32 * gam + 2 * tt) * 64 + 32 * tau}')
        if not ne:
            self.wo_prep(41, 'v39')
        if self.o.get('wo_pre', 6) > 4:
            a.e('s_waitcnt lgkmcnt(0)')
        a.e('s_barrier')
        if self.o.get('x_wo'):
            a.e('s_waitcnt vmcnt(0)')
            self.stamp('x_ack')

        def clear2():
            b = self.a
            for r in range(8, 12):
                b.e(f'v_mov_b32 v{r}, -1')
            self.sums(t2, [(sJ, 4 * 448), (sV, 448)], L_IT)
            b.e('s_mov_b64 exec, 0xfffffff')
            self.lstore([f'buffer_store_dwordx4 v[8:11], {vL16}, {WSL}, {t2} offen'])
            b.e('s_mov_b64 exec, -1')
        npre = self.o.get('wo_pre', 6)
        for x in self.wo_group(BWO, 41, ne, npre):
            a.e(x)
        if npre == 6:
            a.tag_vm('wo')
        self.ool_if(f's_cmp_eq_u32 {sIT}, 0', clear2, lambda: self.sleep('hc4'))
        self.wol = self.wo_group(BWO, 41, npre, 6)
        if self.o.get('x_wo'):
            self.stamp('x_iss')
            a.e('s_waitcnt vmcnt(0)')
            self.stamp('x_land')

    def wb(self, where):
        a = self.a
        if self.o.get('wb') != where:
            return
        l = a.lab('nowb')
        self.sums(t1, [(sJ, 8), (sV, 2), (sIT, 1)])
        a.e(f's_cmp_lg_u32 {t1}, {24 * 8 + 1}')
        a.e(f's_cbranch_scc1 {l}')
        a.begin_skip()
        a.e('buffer_wbl2 sc1')
        self.end_only(l)

    def uv(self):
        a = self.a
        a.e('v_lshrrev_b32 v28, 1, v0')
        a.e('v_and_or_b32 v28, v28, 16, 0')
        a.e('v_and_or_b32 v28, v0, 14, v28')
        a.e('v_lshlrev_b32 v28, 6, v28')
        a.e('v_and_or_b32 v28, v0, 16, v28')
        a.e('v_lshlrev_b32 v28, 1, v28')
        a.e(f'v_and_or_b32 v28, {vL16}, 16, v28')
        self.rot8('v29', 7)
        self.pos_bytes('v30', None)
        a.e('v_and_b32 v31, 32, v0')
        a.e('v_lshl_or_b32 v30, v31, 3, v30')
        self.touches('w5', 'v12', 'v13')
        a.e('s_waitcnt lgkmcnt(0)')
        self.sleep('hc2')
        ld = [f'buffer_load_dword v16, v29, {WSG}, {oC2Lg} offen sc1',
              f'buffer_load_dwordx4 v[8:11], v28, {WSG}, {oC2g} offen sc1']
        z = [f'v_mov_b64 {vr(r, 2)}, 0' for r in range(20, 28, 2)]
        lwe = self.o.get('lw_early', 1)
        a.e(ld[0])
        a.tag_vm('lw')
        if lwe:
            self.sleep('hc2b')
        a.e(ld[1])
        a.tag_vm('c2')
        for x in z:
            a.e(x)
        for x in self.wol:
            a.e(x)
        if self.wol:
            a.tag_vm('wo')
        top, top2 = a.lab('chk'), a.lab('chk')
        w = self.w8n('v16', 'v17', 18)
        a.wait(vm='lw')
        a.e(f'{top}:')
        a.e('v_cmp_eq_u32 vcc, -1, v16')
        for x in w[:3]:
            a.e(x)
        self.retry_with([ld[0]], 's_waitcnt vmcnt(0)', top)
        for x in w[3:]:
            a.e(x)
        self.H('u1', 0, 12)
        a.wait(vm='c2')
        a.e(f'{top2}:')
        a.e('v_cmp_u_f32 vcc, v8, v8')
        a.e('v_smfmac_f32_16x16x64_bf16 v[20:23], v[8:11], v[48:55], v1')
        a.e('v_smfmac_f32_16x16x64_bf16 v[24:27], v[8:11], v[56:63], v1')
        self.retry_with([ld[1], 's_nop 7'] + z, 's_waitcnt vmcnt(0)', top2)
        self.stamp('c2got', 2)
        self.weigh2n(18, 'v21')
        a.e('v_permlane16_swap_b32 v20, v21')
        a.e('v_add_f32 v20, v20, v21')
        self.retry_with([ld[1]] + z, 's_waitcnt vmcnt(0)', top2)
        a.e(f'v_mov_b32_dpp v21, v20 quad_perm:[1,0,3,2] {FULL}')
        a.e('v_cvt_pk_bf16_f32 v20, v20, v21')
        self.lstore(['s_mov_b32 exec_lo, 0x5555', 's_mov_b32 exec_hi, 0x5555',
                     f'buffer_store_dword v20, v30, {WSL}, {oOBpub} offen', 's_mov_b64 exec, -1'])
        self.stamp('dpub')
        self.wb('dpub')

    def attn_a3(self):
        a = self.a
        self.qa_addr(44)
        self.sleep('hqa')
        ld = self.qa_loads(8, 12, 44)
        for x in ld:
            a.e(x)
        a.e('v_mov_b64 v[20:21], 0')
        a.e(f'v_lshl_add_u32 v17, v0, 3, {sW8}')
        a.e('ds_write_b64 v17, v[20:21] offset:6656')
        a.e(f's_add_u32 {t0}, {sW8}, 6656')
        a.e(f'v_mov_b32 v17, {t0}')
        a.e('s_mov_b32 s22, 0x000f000f')
        a.e('s_mov_b32 s23, 0x000f000f')
        for c in range(4):
            a.e(f'v_cndmask_b32 v{56 + c}, v17, v46, s[22:23]')
            a.e('s_lshl_b64 s[22:23], s[22:23], 4')
        self.p_addr('v60', 'v17')
        self.wo_prep(61, 'v17')
        for r in (16, 24, 28):
            a.e(f'v_mov_b64 {vr(r, 2)}, 0')
        self.pipe_poll(ld, 'v38', [8, 12], 'pq', ['v_mov_b64 v[36:37], v[12:13]', 'v_mov_b64 v[32:33], v[8:9]', 'v_mov_b64 v[34:35], v[10:11]'])
        top = self.ptop
        self.stamp('qgotA', 2)
        self.qa_finish(32, 36, 44, None, True)
        a.e('v_lshlrev_b32 v33, 16, v32')
        a.e('v_cmp_u_f32 vcc, v33, v33')
        a.e(f's_sub_u32 {t2}, {sW8}, {ZQ - 6144}')
        a.e(f's_cmp_eq_u32 {sV}, 0')
        a.e(f's_cselect_b32 {t3}, {oOALpub}, {OOB}')
        a.e('s_mov_b32 s22, 0x000f000f')
        a.e('s_mov_b32 s23, 0x000f000f')
        self.H('a1', 1, 52)
        self.retry_to(top)
        a.e('s_waitcnt vmcnt(0) lgkmcnt(0)')
        a.e('s_barrier')
        self.H('a2', 1, 8)

        def qrd(c, b):
            a.e(f'ds_read_b128 {vr(32 + 8 * (c % 3) + 4 * b, 4)}, v{56 + c} offset:{128 * b}')
            a.tag_ds(f'q{c}{b}')
        for c in range(3):
            qrd(c, 0)
            qrd(c, 1)
        if self.o.get('wo3', 0):
            self.touch('wo', 'v15', None)
        self.stamp('qrdy')
        ds, va = [], []
        for e in range(8):
            for t in range(4):
                ds.append((e, f'ds_read_b64_tr_b16 a[{8 * e + 2 * t}:{8 * e + 2 * t + 1}], v{14 + (e & 1)} offset:{t * 4096}'))
        wl = self.wo_lines(WO, 61, self.o.get('pol_wo3', ''))
        other = {2: wl[0], 3: wl[1], 7: wl[2], 11: wl[3], 13: wl[4], 15: wl[5], 19: wl[6], 23: wl[7],
                 5: 'v_mov_b64 v[8:9], 0', 6: 'v_mov_b64 v[12:13], 0', 8: f'v_mov_b32 v10, {t2}'}
        wo3 = self.o.get('wo3', 0)
        late = {}
        if wo3:
            for k in (2, 3, 7, 11, 13, 15, 19, 23):
                del other[k]
            pos = {1: (0, 1, 4, 7, 9, 10, 13, 16), 2: (8, 9, 12, 15, 17, 18, 21, 24)}[wo3]
            late = dict(zip(pos, wl))
        for e, k in enumerate((4, 10, 14, 18, 22, 26, 30), 1):
            other[k] = f'v_xor_b32 v{14 + (e & 1)}, {e << 5}, {vT}'
        pc = []
        for c in range(4):
            pc.append('v_cndmask_b32 v11, 0, v10, s[22:23]')
            pc.append(f'v_add_u32 v{56 + c}, v{56 + c}, v11')
            if c < 3:
                pc.append('s_lshl_b64 s[22:23], s[22:23], 4')
        a.e(f'v_mov_b32 v14, {vT}')
        for k in range(32):
            c, r, b = k >> 3, (k >> 1) & 3, k & 1
            if r == 0:
                a.wait(ds=f'q{c}{b}')
            t = k >> 1
            a.e(f'v_smfmac_f32_16x16x64_bf16 {vr(16 + 4 * r, 4)}, {vr(32 + 8 * (c % 3) + 4 * b, 4)}, a[{16 * t + 8 * b}:{16 * t + 8 * b + 7}], v1')
            if k in (8, 9):
                qrd(3, k - 8)
            elif k >= 1:
                a.e(ds.pop(0)[1])
            if k in other:
                a.e(other[k])
        for r in range(4):
            if ds:
                a.e(ds.pop(0)[1])
            a.e(f'v_add_f32 v{16 + r}, v{16 + 4 * r}, v{17 + 4 * r}')
        self.softmax_a(16, 20, 'v60', pc)

        def prd(j):
            a.e(f'ds_read_b128 {vr(32 + 4 * (j % 6), 4)}, v{56 + (j >> 2)} offset:{128 * (j & 3)}')
            a.tag_ds(f'p{j}')
        for j in range(6):
            if j == 0:
                self.H('a3', 1, 24)
            prd(j)
        self.stamp('smaxA')
        ls = self.lsum('v21', 16)
        for x in ls[:4]:
            a.e(x)
        fill = [[x] for x in ls[4:]] + [self.ml_write(20)[:2], self.ml_write(20)[2:4], self.ml_write(20)[4:], [], [], ['BAR'],
                                        self.ml_read(24, 22)[:2], ['MLR'], [], [], []]
        sc = self.ml_scale(24, 22, 18, 19)
        fill += [['MLW'] + sc[:1]] + [sc[1:3], sc[3:5], sc[5:7]] + [[x] for x in sc[7:12]] + [sc[12:14], sc[14:16], sc[16:17], sc[17:18], sc[18:20], ['LW']]
        for j in range(16):
            c, U = j >> 2, j & 3
            for hf in range(2):
                e = c + 4 * hf
                if hf == 0:
                    a.wait(ds=f'p{j}')
                B = vr(64 + 64 * U + 8 * e, 8) if U < 3 else f'a[{8 * e}:{8 * e + 7}]'
                a.e(f'v_smfmac_f32_16x16x64_bf16 {vr(8 + 4 * hf, 4)}, {vr(32 + 4 * (j % 6), 4)}, {B}, v1')
                if 2 * j + hf in late:
                    a.e(late[2 * j + hf])
                if hf == 1 and j + 6 < 16:
                    prd(j + 6)
                for x in (fill.pop(0) if fill else []):
                    if x == 'BAR':
                        a.wait(ds='mlw')
                        a.e('s_barrier')
                    elif x == 'MLR':
                        a.e(self.ml_read(24, 22)[2])
                        a.tag_ds('mlr')
                    elif x == 'LW':
                        self.lstore([f'buffer_store_dword v19, off, {WSL}, {t3}'])
                    elif x == 'MLW':
                        a.wait(ds='mlr')
                    else:
                        a.e(x)
                        if 'ds_write_b64' in x:
                            a.tag_ds('mlw')
        assert not fill
        a.e(f'v_lshl_add_u32 v46, v0, 2, {sW8}')
        self.rot8('v47', 2)
        a.e('v_add_f32 v44, v8, v9')
        a.e('v_add_f32 v45, v12, v13')
        a.e('v_pk_mul_f32 v[44:45], v[44:45], v[18:19] op_sel_hi:[1,0]')
        self.stamp('pvA')

    def dma_tile(self, t):
        a = self.a
        pol = self.o.get('pol_kv', 'nt')
        srd = K_ if t < 16 else V_
        a.e(f's_add_u32 m0, {sKV}, {(t & 3) * 4096}')
        a.e(f's_add_u32 {t0}, {sKG}, {(t & 15) * 16384}')
        for q in range(4):
            a.e(f'buffer_load_dwordx4 v{8 + q}, {srd}, {t0} offen offset:{q * 1024} {pol} lds')
        a.tag_vm(f'tile{t}')

    def make_items(self):
        o = self.o
        pol, polc = o.get('pol_kv', 'nt'), o.get('pol_c', '')
        extra = {}
        c0, cs = o.get('ckv_from', 44), o.get('ckv_step', 2)
        for i in range(16):
            t, q = i >> 2, i & 3
            extra.setdefault(c0 + cs * i, []).append((f'c{i}', [
                f's_add_u32 m0, {sKV}, {CKV + i * 1024}', f'v_add_u32 v238, v{8 + q}, v254', f's_add_u32 {t0}, s1, {(16 * t + 4 * q) * 1024}',
                f'buffer_load_dwordx4 v238, {CK}, {t0} offen {polc} lds']))
        w0, wstep = o.get('wo_from', 52), o.get('wo_step', 4)
        for k in range(6):
            h, i = divmod(k, 3)
            extra.setdefault(w0 + wstep * k, []).append((f'w{k}', [
                f's_add_u32 m0, {sW8}, {h * 3072}', f's_add_u32 {t0}, {oWO}, {h * 64 * 1152}',
                f'buffer_load_dwordx4 v{(246, 247, 255)[i]}, {WO}, {t0} offen offset:{i * 1024} lds']))
        items = []
        self.extra = {tag: lines for v in extra.values() for tag, lines in v}
        for d in range(128):
            t, q = d >> 2, d & 3
            items.append((f'tile{t}' if q == 3 else f'd{d}', [
                f's_add_u32 m0, {sKV}, {(t & 3) * 4096}', f's_add_u32 {t0}, {sKG}, {(t & 15) * 16384}',
                f'buffer_load_dwordx4 v{8 + q}, {K_ if t < 16 else V_}, {t0} offen offset:{q * 1024} {pol} lds']))
        self.items = items
        self.pos = {tag: k for k, (tag, _) in enumerate(items)}
        self.issued = 0
        self.done_tile = -1
        self.lnq_done = False

    def issue_to(self, n):
        a = self.a
        prev = None
        lim = self.pos[f'tile{min(self.done_tile + 4, 31)}'] + 1
        while self.issued < min(n, lim):
            tag, lines = self.items[self.issued]
            if tag[0] == 'w':
                assert self.lnq_done, 'w_o staged before the q weights were read'
            assert tag[0] in 'td' or 2 < self.done_tile < 26
            for x in (lines if lines[:2] != prev else lines[2:]):
                a.e(x)
            a.tag_vm(tag)
            prev = lines[:2]
            self.issued += 1

    def prologue(self):
        a = self.a
        self.make_items()
        a.e('s_cmp_ge_u32 s2, 256')
        a.e('s_cbranch_scc1 L_end')
        if self.o.get('diag_fixed'):
            a.e('s_memrealtime s[100:101]')
        if self.o.get('stamps'):
            a.e('s_memtime s[98:99]' if self.o.get('clk') else 's_memrealtime s[98:99]')
        a.e('s_load_dwordx2 s[4:5], s[0:1], 8')
        ptrs = [(V_, 16), (CK, 48), (DBG, 96), (XIN, 0), (WQ, 24), (WO, 32), (BWQ, 56), (WUK, 64), (WUV, 72), (BWO, 80),
                (WS, 104), (OUT, 88)]
        sizes = {K_: 1 << 26, V_: 1 << 26, CK: 1 << 23, DBG: 256, XIN: 1152, WQ: 576 * 8192, WO: 4096 * 1152,
                 BWQ: 576 * 8192, WUK: 1 << 22, WUV: 1 << 22, BWO: 4096 * 1152, WS: WS_SIZE, WSL: L_X, WSG: G_IT, OUT: 1152}
        base = lambda s: int(s[2:s.index(':')])
        if self.o.get('code0', 1):
            a.e('s_getpc_b64 s[82:83]')
            a.e('L_pc:')
            a.e('s_and_b32 s3, s2, 0xf8')
            a.e('v_lshrrev_b32 v62, 5, v0')
            a.e('v_add_lshl_u32 v62, v62, s3, 7')
            a.e('v_min_u32 v62, L_codeend-L_pc, v62')
            a.e('global_load_dword v61, v62, s[82:83]')
        a.e('v_lshrrev_b32 v1, 6, v0')
        a.e('v_mov_b32 v63, v0')
        a.e(f'v_readfirstlane_b32 {sV}, v1')
        a.e('v_and_b32 v0, 63, v0')
        a.e(f's_and_b32 {sX}, s2, 7')
        a.e(f's_lshr_b32 {sJ}, s2, 3')
        a.e(f's_lshl_b32 {sKV}, {sV}, 14')
        self.sums(sKG, [(sX, 1 << 23), (sJ, 1 << 18), (sV, 1 << 12)])
        a.e(f'v_lshlrev_b32 {vL16}, 4, v0')
        a.e('v_and_b32 v12, 48, v0')
        a.e('v_lshlrev_b32 v12, 1, v12')
        a.e(f'v_xor_b32 v8, v12, {vL16}')
        for q in range(1, 4):
            a.e(f'v_xor_b32 v{8 + q}, {TBL[q] << 4}, v8')
        a.e(f's_mov_b32 s6, {sizes[K_]}')
        a.e('s_mov_b32 s7, 0x20000')
        a.e('s_waitcnt lgkmcnt(0)')
        for t in range(4):
            self.issue_to(min(4 * t + 4, self.o.get('win0', 8)))
            for srd, off in ptrs[3 * t:3 * t + 3]:
                b = base(srd)
                a.e(f's_load_dwordx2 s[{b}:{b + 1}], s[0:1], {off}')
        for srd, n in sizes.items():
            if srd != K_:
                a.e(f's_mov_b32 s{base(srd) + 2}, {n}')
                a.e(f's_mov_b32 s{base(srd) + 3}, 0x20000')
        if not self.o.get('code0', 1):
            a.e(f's_getpc_b64 s[82:83]')
            a.e('L_pc:')
            a.e('v_lshlrev_b32 v62, 7, v63')
            a.e(f'v_min_u32 v62, L_codeend-L_pc, v62')
            a.e('global_load_dword v61, v62, s[82:83]')
        a.e(f's_lshr_b32 {t1}, {sJ}, 3')
        self.sums(sH, [(sX, 4), (t1, 1)])
        a.e(f's_and_b32 {sS}, {sJ}, 7')
        a.e(f's_mov_b32 {sIT}, 0')
        a.e(f's_mov_b32 {sPOLL}, 0')
        a.e(f's_mov_b32 {sST}, 0')
        self.sums(sW8, [(sV, 8192)], STG)
        a.e('s_mov_b32 s84, 0x00ff00ff')
        a.e('s_mov_b32 s85, 0x00ff00ff')
        a.e(f's_mul_i32 {t2}, {sJ}, 43')
        a.e(f's_lshr_b32 {t2}, {t2}, 8')
        a.e(f's_mul_i32 {t3}, {t2}, 6')
        a.e(f's_sub_u32 {t3}, {sJ}, {t3}')
        self.sums(oY, [(t3, 512), (sV, 128)])
        self.sums(oQA, [(t2, 4096), (sV, 1024), (t3, 128)], L_QA)
        self.sums(oQB, [(t2, 4096), (sV, 512), (t3, 32)], L_QB)
        self.sums(oST, [(t2, 64), (t3, 8)], L_STA)
        self.sums(oWQ, [(t3, 96 * 8192), (sV, 24 * 8192), (sX, 1024), (t2, 256)])
        a.e(f's_cmp_eq_u32 {sV}, 0')
        a.e(f's_cselect_b32 {oST}, {oST}, {OOB}')
        a.e(f's_cmp_lt_u32 {sJ}, 24')
        for r in (oQA, oST, oWQ):
            a.e(f's_cselect_b32 {r}, {r}, {OOB}')
        self.sums(oQgA, [(t1, 4096), (sV, 1024)], L_QA)
        self.sums(oSTgA, [(t1, 64)], L_STA)
        self.sums(oWUV, [(sS, 64 * 8192), (sH, 256), (sV, 64)])
        self.sums(oWUK, [(sJ, 16 * 8192), (sX, 1024), (sV, 256)])
        self.sums(oWO, [(sX, 512 * 1152), (sV, 128 * 1152), (sJ, 48)])
        self.sums(oYpub, [(sX, 3072), (sJ, 128)])
        if self.o.get('asym'):
            a.e(f's_getreg_b32 {t0}, hwreg(HW_REG_XCC_ID, 0, 3)')
            a.e(f's_lshr_b32 {t0}, {self.o["asym"][0]}, {t0}')
            a.e(f's_lshl_b32 {t0}, {t0}, 31')
            a.e(f's_or_b32 {oYpub}, {oYpub}, {t0}')
        a.e(f's_cmp_lt_u32 {sJ}, 24')
        a.e(f's_cselect_b32 {oWO}, {oWO}, {OOB}')
        a.e(f's_cselect_b32 {sRES}, 1, 0')
        a.e(f's_cmp_eq_u32 {sV}, 3')
        a.e(f's_cselect_b32 {sRES}, {sRES}, 0')
        a.e(f's_mul_i32 {t0}, {sRES}, 3')
        a.e(f's_cmp_eq_u32 {sX}, 0')
        a.e(f's_cselect_b32 {sRES}, {t0}, {sRES}')
        if self.o.get('stamps'):
            a.e('v_mov_b32 v7, 0')
            a.e('s_mov_b32 s97, 8')
        a.e('v_and_b32 v14, 1, v0')
        a.e('v_mul_u32_u24 v1, 0xaaaa, v14')
        a.e('v_add_u32 v1, 0x4444, v1')

        def tbl(dst, x, tmp):
            a.e(f'v_lshrrev_b32 {tmp}, 1, {x}')
            a.e(f'v_xor_b32 {dst}, {x}, {tmp}')
            a.e(f'v_and_b32 {dst}, 1, {dst}')
            a.e(f'v_lshl_or_b32 {dst}, {dst}, 3, {tmp}')
        a.e('v_lshrrev_b32 v12, 4, v0')
        a.e('v_and_b32 v13, 15, v0')
        a.e('v_lshrrev_b32 v15, 2, v13')
        tbl('v16', 'v15', 'v17')
        a.e('v_and_b32 v17, 3, v13')
        a.e('v_lshlrev_b32 v18, 1, v17')
        a.e('v_xor_b32 v16, v16, v18')
        a.e('v_xor_b32 v16, v16, v12')
        a.e('v_lshlrev_b32 v16, 4, v16')
        a.e(f'v_lshl_or_b32 {vA}, v13, 8, v16')
        a.e(f'v_add_u32 {vA}, {sKV}, {vA}')
        tbl('v16', 'v12', 'v18')
        a.e('v_lshlrev_b32 v18, 1, v15')
        a.e('v_xor_b32 v16, v16, v18')
        a.e('v_lshrrev_b32 v18, 1, v17')
        a.e('v_xor_b32 v16, v16, v18')
        a.e('v_lshlrev_b32 v16, 4, v16')
        a.e('v_lshrrev_b32 v18, 2, v0')
        a.e('v_lshl_or_b32 v16, v18, 8, v16')
        a.e(f'v_lshl_or_b32 {vT}, v14, 3, v16')
        a.e(f'v_add_u32 {vT}, {sKV}, {vT}')
        a.e('s_waitcnt lgkmcnt(0)')
        self.stamp('start')
        w, l, g = base(WS), base(WSL), base(WSG)
        a.e(f's_lshl_b32 {t0}, {sX}, 17')
        a.e(f's_add_u32 s{l}, s{w}, {t0}')
        a.e(f's_addc_u32 s{l + 1}, s{w + 1}, 0')
        a.e(f's_add_u32 s{g}, s{w}, {GB}')
        a.e(f's_addc_u32 s{g + 1}, s{w + 1}, 0')
        self.dma_wq(WQ, 'v56', 'v57')
        self.lnq_rows()
        a.e(f's_mul_i32 {t0}, {t3}, 192')
        a.e('v_mul_u32_u24 v58, 3, v0')
        a.e('s_mov_b32 exec_lo, 0x00010001')
        a.e('s_mov_b32 exec_hi, 0x00010001')
        for rho in range(3):
            a.e(f'buffer_load_dwordx4 {vr(16 + 4 * rho, 4)}, v58, {XIN}, {t0} offen offset:{16 * rho}')
        a.e('s_mov_b64 exec, -1')
        a.e('v_lshlrev_b32 v58, 2, v0')
        a.e(f's_mul_i32 {t0}, {sJ}, 48')
        a.e(f's_cmp_eq_u32 {sRES}, 3')
        a.e(f's_cselect_b32 {t0}, {t0}, {OOB}')
        a.e(f'buffer_load_dword v5, v58, {XIN}, {t0} offen')
        for r in range(56, 60):
            a.e(f'v_mov_b32 v{r}, -1')
        self.sums(t4, [(sX, L_X), (sJ, 2560), (sV, 640)])
        self.sums(t1, [(sX, 128 * 384), (sJ, 4 * 384), (sV, 384)], GB)
        a.e('s_mov_b32 exec_hi, 0xff')
        a.e(f'buffer_store_dwordx4 v[56:59], {vL16}, {WS}, {t4} offen sc1')
        a.e('s_mov_b64 exec, 0xffffff')
        a.e(f'buffer_store_dwordx4 v[56:59], {vL16}, {WS}, {t1} offen sc1')
        a.e('s_mov_b64 exec, -1')
        a.tag_vm('clr')
        for ks in range(4):
            a.e(f'v_xor_b32 v{12 + ks}, {ks << 6}, {vA}')

    def late_scalars(self):
        a = self.a
        if self.o.get('asym'):
            a.e(f's_bitset0_b32 {oYpub}, 31')
        a.e(f's_lshr_b32 {t1}, {sJ}, 3')
        a.e(f's_and_b32 {t2}, {sJ}, 1')
        a.e(f's_lshr_b32 {t3}, {sJ}, 1')
        a.e(f's_lshr_b32 {t4}, {sX}, 2')
        a.e(f's_and_b32 {t5}, {sX}, 3')
        self.sums(oQgB, [(sV, 4096)], L_QB)
        self.sums(oSTgB, [(sV, 64)], L_STB)
        self.sums(oQApub, [(t4, 16384), (t3, 1024), (t5, 256), (t2, 128)], G_QABS)
        self.sums(oQAg, [(t2, 16384), (sV, 4096)], G_QABS)
        self.sums(oC1pub, [(sX, 1 << 19), (t2, 1 << 18), (sV, 16384), (t3, 256)], CB)
        self.sums(oMLpub, [(t2, 2048), (t3, 32)], L_C1ML)
        self.sums(oC1g, [(sX, 1 << 19), (sJ, 16384), (sV, 4096)], CB)
        a.e(f's_lshr_b32 {t4}, {sJ}, 2')
        self.sums(oMLg, [(t4, 512)], L_C1ML)
        self.sums(oC2pub, [(sJ, 8192), (sV, 2048), (sX, 256)], G_C2)
        self.sums(oC2Lpub, [(t4, 1024), (sX, 128)], G_C2L)
        a.e(f's_and_b32 {t4}, {sJ}, 3')
        a.e(f's_cselect_b32 {oC2Lpub}, {OOB}, {oC2Lpub}')
        self.sums(oC2g, [(sX, 32768), (sS, 4096), (t1, 64)], G_C2)
        self.sums(oC2Lg, [(sX, 1024), (t1, 16)], G_C2L)
        self.sums(oOBpub, [(t1, 2048), (sV, 512), (sS, 32)], L_OB)
        self.sums(oOApub, [(t1, 2048), (sS, 32)], L_OA)
        self.sums(oOALpub, [(sJ, 4)], L_OAL)
        self.sums(oOALg, [(sV, 32)], L_OAL)
        self.sums(oRES, [(sJ, 128)])
        self.sums(oO, [(sV, 2048)], L_OA)
        a.e(f's_cmp_eq_u32 {sV}, 0')
        a.e(f's_cselect_b32 {oMLpub}, {oMLpub}, {OOB}')
        a.e(f's_cselect_b32 {oOApub}, {oOApub}, {OOB}')
        a.e(f's_cselect_b32 {oC2Lpub}, {oC2Lpub}, {OOB}')

    def pv_block(self, U):
        a = self.a
        self.sp_addr('v63', sW8)
        a.e(f'ds_read_b128 v[20:23], v63 offset:{6144 + 128 * U}')
        a.e('s_waitcnt lgkmcnt(0)')
        for e in range(8):
            a.e(f'v_smfmac_f32_16x16x64_bf16 {vr(24 + 4 * e, 4)}, v[20:23], {vr(64 + 64 * U + 8 * e, 8)}, v1')

    def stream(self):
        a = self.a
        o = self.o
        landed = 0
        for t in range(28):
            win = o.get('win', 6) if t < o.get('wide_at', 99) else o.get('wide', 12)
            while landed <= self.pos[f'tile{t}']:
                if self.issued < landed + 1 + win or landed == self.pos[f'tile{t}']:
                    a.wait(vm=self.items[landed][0])
                    if o.get('sstamps') and t % 4 == 0 and landed == self.pos[f'tile{t}']:
                        self.stamp(f't{t}')
                    self.issue_to(landed + 1 + win)
                landed += 1
            slot = (t & 3) * 4096
            if t < 16:
                for ks in range(4):
                    a.e(f'ds_read_b128 a[{16 * t + 4 * ks}:{16 * t + 4 * ks + 3}], v{12 + ks} offset:{slot}')
            else:
                u = t - 16
                if u == 0:
                    for e in range(8):
                        a.e(f'v_xor_b32 v{12 + e}, {e << 5}, {vT}')
                for e in range(8):
                    a.e(f'ds_read_b64_tr_b16 {vr(64 + 64 * (u >> 2) + 8 * e + 2 * (u & 3), 2)}, v{12 + e} offset:{slot}')
            a.e('s_waitcnt lgkmcnt(0)')
            self.done_tile = t
            self.issue_to(landed + win + o.get('boost', {}).get(str(t), 0) if t < 27 else 999)
            if t == 2:
                a.e('v_lshrrev_b32 v254, 4, v0')
                a.e('v_mul_u32_u24 v254, 768, v254')
                a.e(f's_lshr_b32 {t2}, {sJ}, 1')
                self.sums('s1', [(sX, 1 << 20), (t2, 1 << 16), (sV, 256)])
                for i, r in enumerate((246, 247, 255)):
                    a.e(f'v_add_u32 v{r}, {64 * i}, v0')
                    a.e(f'v_mul_u32_u24 v{r}, 21846, v{r}')
                    a.e(f'v_lshrrev_b32 v{r}, 16, v{r}')
                    a.e(f'v_mul_u32_u24 v{r}, {1152 - 48}, v{r}')
                    a.e(f'v_lshl_add_u32 v{r}, v0, 4, v{r}')
            if t == 4:
                a.wait(vm='clr')
                a.e('v_lshlrev_b32 v60, 7, v0')
                a.e('s_mov_b64 exec, 31')
                a.e(f'buffer_load_dword v61, v60, {WS}, {t4} offen')
                a.e('s_mov_b64 exec, -1')
                a.tag_vm('touch')
                a.e('v_lshlrev_b32 v4, 16, v5')
                a.e('v_and_b32 v5, 0xffff0000, v5')
            if t == o.get('atom_at', 5):
                a.e('s_barrier')
                l = self.wave_only(1)
                a.e('s_getreg_b32 s82, hwreg(HW_REG_XCC_ID, 0, 3)')
                a.e('s_lshl_b32 s82, s82, 3')
                a.e('s_lshl_b64 s[82:83], 1, s82')
                a.e('v_mov_b32 v58, s82')
                a.e('v_mov_b32 v59, s83')
                a.e(f's_lshl_b32 {t0}, {sX}, 5')
                a.e('s_mov_b64 exec, 1')
                a.e(f'buffer_atomic_add_x2 v[58:59], v0, {DBG}, {t0} offen sc1')
                a.e('s_mov_b64 exec, -1')
                self.end_only(l)
            if t == 9:
                a.wait(vm='touch')
                self.lnq_addr()
                self.lnq_prep()
                for rho in range(3):
                    for x in self.lnq_mfma(rho):
                        a.e(x)
                self.lnq_reduce(False)
                self.lnq_done = True
            if t == o.get('cnt_at', 10):
                a.e('v_and_b32 v57, 7, v0')
                a.e('v_lshlrev_b32 v57, 5, v57')
                a.e(f'buffer_load_dwordx2 v[58:59], v57, {DBG}, 0 offen sc1')
                a.tag_vm('cnt')
            if t == 15:
                chk, retry, done = a.lab('chk'), a.lab('cretry'), a.lab('cdone')
                a.wait(vm='cnt')
                a.e(f'{chk}:')
                a.e('v_sad_u8 v61, v58, 0, 0')
                a.e('v_sad_u8 v61, v59, 0, v61')
                a.e('v_cmp_ne_u32 vcc, 32, v61')
                if not o.get('x_noinit'):
                    a.e(f's_cbranch_vccnz {retry}')
                a.e(f'{done}:')
                a.ool(f'{retry}:\ns_add_u32 {sPOLL}, {sPOLL}, 1\ns_cmp_gt_u32 {sPOLL}, 100000\ns_cbranch_scc1 {done}\ns_sleep 8\n'
                      f'buffer_load_dwordx2 v[58:59], v57, {DBG}, 0 offen sc1\ns_waitcnt vmcnt(0)\ns_branch {chk}')
                a.e('s_getreg_b32 s82, hwreg(HW_REG_XCC_ID, 0, 3)')
                a.e('s_lshl_b32 s82, s82, 3')
                a.e('s_lshl_b64 s[82:83], 32, s82')
                a.e(f'v_readlane_b32 {t2}, v58, {sX}')
                a.e(f'v_readlane_b32 {t3}, v59, {sX}')
                a.e(f's_cmp_eq_u64 s[82:83], s[80:81]')
                a.e(f's_cselect_b32 {sLOC}, {0 if o.get("force_slow") else 1}, {1 if o.get("x_noinit") else 0}')
                self.lnq_pubaddr(False, True)
                self.lcmp()
                self.lnq_publish(False, True)
            if t == 18:
                self.qa_addr(48)
                a.e(f's_add_u32 {t4}, {oQgA}, {L_CSA - L_QA}')
                ql = self.qa_loads(40, 52, 48) + [f'buffer_load_dwordx4 v[44:47], v51, {WSL}, {t4} offen sc1']
                for x in ql:
                    a.e(x)
                a.tag_vm('q')
            if t == 22:
                a.wait(vm='q')
                self.late_check('v20', list(range(40, 48)) + [52, 53], ql)
                for x in self.red8(44):
                    a.e(x)
                a.e('v_cvt_pk_bf16_f32 v44, 0, v44')
                a.e('v_or_b32 v1, v1, v44')
                self.qa_finish(40, 52, 48, 56)
                for r in range(24, 40, 4):
                    a.e(f'v_mov_b64 {vr(r, 2)}, 0')
                self.p_addr('v45', 'v44')
                self.qk_softmax(56, 24, 40, 44)
                for x in self.lsum('v57', 40):
                    a.e(x)
                for x in self.ml_write(56):
                    a.e(x)
                for r in range(24, 56, 4):
                    a.e(f'v_mov_b64 {vr(r, 2)}, 0')
                a.e('s_waitcnt lgkmcnt(0)')
            for i, at in enumerate(o.get('ckv_at', [10, 11, 12, 13])):
                if at == t:
                    for q in range(4):
                        for x in self.extra[f'c{4 * i + q}']:
                            a.e(x)
            if t == o.get('wo_at', 9):
                assert self.lnq_done
                for k in range(6):
                    for x in self.extra[f'w{k}']:
                        a.e(x)
            self.touches(f's{t}', 'v62', 'v31')
            if t == o.get('mlbar', 26):
                a.e('s_barrier')
                for x in self.ml_read(56, 20):
                    a.e(x)
                a.e('s_waitcnt lgkmcnt(0)')
                for x in self.ml_scale(56, 20, 21, 22):
                    a.e(x)
                a.e('v_readfirstlane_b32 s22, v21')
                a.e('v_readfirstlane_b32 s23, v22')
            if t == o.get('c1_late', 1) and t > 15:
                self.sums(t1, [(sX, 1 << 19), (sJ, 16384), (sV, 4096)], CB)
                for r in range(56, 60):
                    a.e(f'v_mov_b32 v{r}, -1')
                self.lcmp()
                self.lstore([f'buffer_store_dwordx4 v[56:59], {vL16}, {WS}, {t1} offen offset:{i * 1024}' for i in range(4)])
            if t == o.get('tlb_at', -1):
                g = o.get('tlb_n', 2)
                a.e(f's_mov_b64 exec, {(1 << g) - 1}')
                self.sums(t2, [(sX, 1 << 19)], CB)
                for srd, so, span in ((BWQ, oWQ, 24 * 8192), (WUK, oWUK, 16 * 8192), (WUV, oWUV, 64 * 8192), (BWO, oWO, 128 * 1152),
                                      (WS, t2, 1 << 19), (OUT, '0', 1024)):
                    a.e(f'v_mul_u32_u24 v62, {(span - 8192 if span > 8192 else span) // (g - 1) // 4 * 4}, v0')
                    a.e(f'buffer_load_dword v31, v62, {srd}, {so} offen')
                a.e('s_mov_b64 exec, -1')
            if t == o.get('isl_at', 12):
                a.e('s_branch L_isl_0')
                if self.alt:
                    a.e('L_isl_ret2:')
                else:
                    a.e('L_isl_ret:')
                    if o.get('hi'):
                        a.e('s_cmp_lg_u32 s0, 0')
                        a.e('s_cbranch_scc1 L_isl_ret2')
            if t == o.get('late_touch', -1):
                self.sums(t3, [(sX, 128), (sJ, 4), (sV, 1)])
                a.e(f's_lshl_b32 {t2}, {t3}, 10')
                a.e('v_lshlrev_b32 v62, 7, v0')
                a.e('v_and_b32 v62, 0x3ff, v62')
                a.e(f'buffer_load_dword v31, v62, {WS}, {t2} offen')
            if t == 23:
                self.pv_block(0)
            if t == 24:
                self.pv_block(1)
        if self.alt:
            a.e('s_nop 7')
            a.e('s_branch L_join')
            return
        a.e('L_join:')
        self.late_scalars()
        a.e('v_mov_b32 v62, s23')
        a.e(f's_cmp_eq_u32 {sV}, 0')
        a.e(f's_cselect_b32 {t1}, {oOALpub}, {OOB}')
        self.lcmp()
        self.lstore([f'buffer_store_dword v62, off, {WSL}, {t1}'])
        self.pv_block(2)
        a.e('v_lshrrev_b32 v62, 1, v0')
        a.e('v_and_b32 v62, 8, v62')
        a.e('v_and_or_b32 v62, v0, 32, v62')
        a.e(f'v_add_u32 v62, {sW8}, v62')
        a.e(f'v_add_u32 v62, {6144 + 384}, v62')
        for tt in range(4):
            o0 = 16 * (tt >> 1) + (tt & 1)
            r = (20, 22, 8, 10)[tt]
            a.e(f'ds_read2_b32 {vr(r, 2)}, v62 offset0:{o0} offset1:{o0 + 4}')
        a.e('s_mov_b32 vcc_lo, 0x55555555')
        a.e('s_mov_b32 vcc_hi, 0x55555555')
        a.e('s_waitcnt lgkmcnt(0)')
        for r in (20, 21, 22, 23, 8, 9, 10, 11):
            a.e(f'v_cndmask_b32 v{r}, 0, v{r}, vcc')
        self.last_tiles(range(3))
        a.e(f's_cmp_eq_u32 {sLOC}, 0')
        a.e('s_cbranch_scc1 L_pre_slow')

    def last_tiles(self, which):
        a = self.a
        for tt in which:
            a.wait(vm=f'tile{28 + tt}')
            if tt == 3:
                self.stamp('kvdone')
            dst = [56, 58, 60, 62] * 2 if tt < 3 else [56, 58, 60, 62, 20, 22, 8, 12]
            n1 = 4 if tt < 3 else 8
            for e in range(n1):
                a.e(f'ds_read_b64_tr_b16 {vr(dst[e], 2)}, v{12 + e} offset:{tt * 4096}')
                a.tag_ds(f'v{e}')
            if tt == 3:
                self.rot8('v14', 2)
            for e in range(8):
                a.wait(ds=f'v{e}')
                d = vr(24 + 4 * e, 4)
                a.e(f'v_mfma_f32_16x16x16_bf16 {d}, {vr((20, 22, 8, 10)[tt], 2)}, {vr(dst[e], 2)}, {d}')
                if e + n1 < 8:
                    a.e(f'ds_read_b64_tr_b16 {vr(dst[e], 2)}, v{12 + e + n1} offset:{tt * 4096}')
                    a.tag_ds(f'v{e + n1}')
                if tt == 3 and e >= 4:
                    x = e - 4
                    a.e(f'v_add_f32_dpp v16, v{24 + 4 * x}, v{25 + 4 * x} {DPPI} row_mask:{1 << x} bank_mask:0xf')
        if 3 not in which:
            return
        for e in range(4, 8):
            a.e(f'v_add_f32_dpp v17, v{24 + 4 * e}, v{25 + 4 * e} {DPPI} row_mask:{1 << (e & 3)} bank_mask:0xf')
        a.e('v_mul_f32 v44, s22, v16')
        a.e('v_mul_f32 v45, s22, v17')
        a.e(f'v_lshl_add_u32 v46, v0, 2, {sW8}')
        a.e('v_mov_b32 v47, v14')
        self.stamp('pv1')

    def tail(self, mode):
        a = self.a
        o = self.o
        base = lambda s: int(s[2:s.index(':')])
        self.mode = mode
        if mode == 'slow':
            a.e('L_pre_slow:')
            a.e('s_nop 7')
            a.e('s_waitcnt vmcnt(0)')
        self.last_tiles([3])
        n0 = self.nst
        a.vmq = [['wo', ()]] + [[None, ()] for _ in range(len(o.get('touch', {}).get('s27', [])) if o.get('wo_at', 9) == 27 else 40)]
        l, g = base(WSL), base(WSG)
        a.e(f'L_top_{mode}:')
        self.combine_publish()
        self.stamp('opub')
        a.e(f's_mul_i32 {t0}, {sRES}, {sIT}')
        self.resid_track(G_YB, 20, 'v8', f's_cmp_eq_u32 {t0}, 3')
        a.e(f's_mul_i32 {t0}, {sIT}, {G_IT}')
        a.e(f's_add_u32 s{g}, s{g}, {t0}')
        a.e(f's_addc_u32 s{g + 1}, s{g + 1}, 0')

        def idle_a():
            b = self.a
            self.wuk_prep('v8', 'v9')
            self.wuk_issue('v8', 'v9')
            self.touches('i1', 'v60', 'v10')
            l1 = b.lab('it1')
            b.e(f's_cmp_eq_u32 {sIT}, 1')
            b.e(f's_cbranch_scc1 {l1}')
            self.clear_g1(56)
            self.touches('i0', 'v60', 'v10')
            if o.get('touch', {}).get('i0b'):
                lp = b.lab('lp')
                b.e(f'{lp}:')
                b.e('s_sleep 4')
                b.e(f'buffer_load_dword v12, {vL16}, {WSL}, {oO} offen sc1')
                b.e('s_waitcnt vmcnt(0)')
                b.e('v_cmp_eq_u32 vcc, -1, v12')
                self.retry_to(lp)
                b.e('s_barrier')
                self.touches('i0b', 'v60', 'v10')
            l2 = b.lab('it1')
            b.e(f's_branch {l2}')
            b.e(f'{l1}:')
            self.sleep('ia')
            b.e(f'{l2}:')

        def busy_a():
            self.outproj(True)
            self.lnq_tail(G_YA, True)
        self.ool_if(f's_cmp_ge_u32 {sJ}, 24', idle_a, busy_a, True)
        self.qabs()
        self.attn_b()
        self.red()
        self.uv()

        def nextpass():
            b = self.a
            b.e(f's_cmp_eq_u32 {sIT}, 1')
            b.e(f's_cbranch_scc1 L_final_{mode}')
            b.e(f's_add_u32 s{l}, s{l}, {L_IT}')
            b.e(f's_addc_u32 s{l + 1}, s{l + 1}, 0')
            b.e(f's_mov_b32 s{l + 2}, {L_SZ}')
            b.e(f's_mov_b32 {sIT}, 1')

        def idle_b():
            nextpass()
            self.touches('i2', 'v60', 'v10')
            self.sleep('ib')

        def busy_b():
            self.outproj(False)
            nextpass()
            self.lnq_tail(G_YB, False)
        self.ool_if(f's_cmp_ge_u32 {sJ}, 24', idle_b, busy_b, True)
        self.attn_a3()
        self.nper = self.nst - n0
        self.n0 = n0
        if o.get('stamps'):
            a.e('s_mov_b32 s97, 5')
        a.e(f's_branch L_top_{mode}')
        a.e(f'L_final_{mode}:')
        a.e(f's_cmp_lg_u32 {sRES}, 3')
        a.e('s_cbranch_scc1 L_fin2')
        self.resid(G_YB, 10, 'v8', True)
        a.e(f'buffer_store_dword v9, v8, {OUT}, {t0} offen')
        a.e('s_mov_b64 exec, -1')
        self.mode = None

    def build(self):
        a = self.a
        o = self.o
        base = lambda s: int(s[2:s.index(':')])
        self.prologue()
        altb = ''
        if o.get('hi'):
            import copy
            if o['hi'][0]:
                a.e('s_getreg_b32 s0, hwreg(HW_REG_XCC_ID, 0, 3)')
                a.e(f's_lshr_b32 s0, {o["hi"][0]}, s0')
                a.e('s_and_b32 s0, s0, 1')
            else:
                a.e(f's_cmp_ge_u32 {sJ}, 24')
                a.e('s_cselect_b32 s0, 1, 0')
            a.e('s_cbranch_scc1 L_alt')
            alt = Gen(dict(o, win=o['hi'][1]))
            alt.alt = True
            alt.a.uid = 300000
            alt.a.cold = True
            alt.a.vmq = copy.deepcopy(a.vmq)
            alt.make_items()
            alt.issued = self.issued
            alt.nst = self.nst
            alt.a.e('L_alt:')
            alt.stream()
            altb = alt.a.finish()
            altb = altb[:altb.index('L_isl_0:')]
        self.stream()
        self.tail('fast')
        a.e('L_fin2:')
        if o.get('diag_fixed'):
            a.e('L_dfx:')
            a.e('s_memrealtime s[94:95]')
            a.e('s_waitcnt lgkmcnt(0)')
            a.e('s_sub_u32 s94, s94, s100')
            a.e(f's_cmp_lt_u32 s94, {o["diag_fixed"]}')
            a.e('s_cbranch_scc1 L_dfx')
        if o.get('stamps'):
            a.e('s_waitcnt vmcnt(0) lgkmcnt(0)')
            self.stamp('end')
            a.e('s_waitcnt lgkmcnt(0)')
            a.e('v_writelane_b32 v7, s98, 62')
            a.e(f'v_writelane_b32 v7, {sPOLL}, 63')
            a.e('s_getreg_b32 s82, hwreg(HW_REG_XCC_ID, 0, 3)')
            a.e('s_getreg_b32 s83, hwreg(HW_REG_HW_ID)')
            a.e('s_lshl_b32 s83, s83, 4')
            a.e('s_or_b32 s82, s82, s83')
            a.e('v_writelane_b32 v7, s82, 61')
            self.sums(t1, [('s2', 1024), (sV, 256)], STAMP)
            a.e('v_lshlrev_b32 v8, 2, v0')
            a.e(f'buffer_store_dword v7, v8, {WS}, {t1} offen')
        a.e('L_end:')
        a.e('s_endpgm')
        slow = Gen(self.o)
        slow.a.uid = 500000
        slow.a.cold = True
        slow.tail('slow')
        slow.a.e('s_branch L_fin2')
        sb = slow.a.finish()
        sb = sb[:sb.index('L_isl_0:')]
        body = a.finish()
        ref = open('cdna_kernels/' + NAME + '.s.ref').read() if o.get('hdr', True) else ''
        hdr = ''.join(l + '\n' for l in ref.split('\n') if l.startswith(';') and '@launch' not in l and 'Override' not in l and 'grid=ceil' not in l)
        txt = hdr + '; @launch grid=(256,1,1) block=(256,1,1) lds=163840\n'
        txt += '.amdgcn_target "amdgcn-amd-amdhsa--gfx950"\n.text\n'
        txt += f'.globl {NAME}_kernel\n.p2align 8\n.type {NAME}_kernel,@function\n{NAME}_kernel:\n'
        txt += body
        txt += 'L_tailend:\n' + altb + 'L_codeend:\n' + sb
        txt += f"""    s_endpgm
.section .rodata,"a"
.p2align 6
.amdhsa_kernel {NAME}_kernel
  .amdhsa_next_free_vgpr 512
  .amdhsa_next_free_sgpr 102
  .amdhsa_accum_offset 256
  .amdhsa_group_segment_fixed_size 0
  .amdhsa_kernarg_size 112
  .amdhsa_user_sgpr_count 2
  .amdhsa_user_sgpr_kernarg_segment_ptr 1
  .amdhsa_system_sgpr_workgroup_id_x 1
.end_amdhsa_kernel
"""
        return txt


DEFAULT = dict(sleep=dict(h2a=7, h2b=7, h2c=3, ha=7, ia=30, ib=30, ha1=5, hc2=1, hc2b=2, hc4=1, fin=10), pol_c='nt', depth=3,
               touch=dict(w1b=['loc', 'code', 'wuk'], w1c=['loc'], w5=['code'], s27=['c1h'], i0=['Xc1:0:1', 'Xbwo'], i1=['loc', 'code'], i2=['loc']), wo_e=0, wo_pre=3, red_pre=4, tr_pre=4, pol_wq3='nt',
               late_touch=-1, wo_at=9, warm=0, c1_late=1, ml_early=2, qflag=0, ybar=0, atom_at=4, cnt_at=12, win=6, boost={}, win0=6)

if __name__ == '__main__':
    import json
    opt = dict(DEFAULT)
    out = sys.argv[1]
    if len(sys.argv) > 2:
        opt.update(json.loads(sys.argv[2]))
    g = Gen(opt)
    open(out, 'w').write(g.build())
    print('nops', g.a.nops, 'stamps', g.stnames, g.n0, g.nper)
```

```python
import sys, math, struct
from asmlib import Asm

NAME = 'interleave_layers__mha_block_cached__compressed_kv_cla__decode'


def f32(x):
    return '0x%08x' % struct.unpack('<I', struct.pack('<f', x))[0]


K1 = 1024
L_X = 128 * K1
L_IT = 72 * K1
L_SZ = 56 * K1
L_QA, L_QB, L_OA, L_OB, L_C1ML = 0, 16 * K1, 32 * K1, 40 * K1, 48 * K1
L_STA, L_STB, L_OAL, L_FL = 52 * K1, 52 * K1 + 256, 52 * K1 + 512, 52 * K1 + 640
L_CSA = 56 * K1
GB, G_IT = 0x100000, 384 * K1
G_YA, G_YB, G_QABS, G_C2L, G_C2 = 0, 24 * K1, 48 * K1, 80 * K1, 112 * K1
CB = 0x200000
STAMP = 0x800000
WS_SIZE = 0x1000000
OOB = 0x40000000
CKV = 65536
STG = 131072
ZML = STG + 7168
ZO = STG + 8192 + 7168
ZQ = STG + 2 * 8192 + 7168
K_, V_, CK, DBG, XIN, WQ, WO, BWQ, WUK, WUV, BWO, WS, WSL, WSG, OUT = ['s[%d:%d]' % (4 + 4 * i, 7 + 4 * i) for i in range(15)]
(sX, sJ, sV, sLOC, sW8, sKV, sKG, sIT, sPOLL, sM, sRES, sST, sH, sS,
 t0, t1, t2, t3, t4, t5) = ['s%d' % i for i in range(64, 84)]
MY = 's[84:85]'
(oY, oQA, oQB, oST, oQgA, oSTgA, oWQ, oWO, oWUK, oWUV, oYpub) = ['s%d' % i for i in range(86, 97)]
(oQgB, oSTgB, oQApub, oQAg, oC1pub, oMLpub, oC1g, oMLg, oC2pub, oC2Lpub, oC2g, oC2Lg,
 oOBpub, oOApub, oOALpub, oOALg, oRES, oO) = ['s%d' % i for i in range(4, 22)]
vT, vA, vL16 = 'v2', 'v3', 'v6'
TBL = [0, 8, 9, 1]
DPPI = 'quad_perm:[0,1,2,3]'
FULL = 'row_mask:0xf bank_mask:0xf'
QSCALE = math.log2(math.e) / math.sqrt(128.0)


def vr(a, n):
    return f'v[{a}:{a + n - 1}]' if n > 1 else f'v{a}'


class Gen:
    def __init__(self, opt):
        self.o = opt
        self.a = Asm()
        self.nst = 0
        self.stnames = []
        self.mode = None
        self.alt = False

    def stamp(self, name, level=1):
        if self.o.get('stamps', 0) < level or self.mode == 'slow':
            return
        if self.o.get('only') and name not in self.o['only'] and name != 'end':
            return
        a = self.a
        self.nst += 1
        self.stnames.append(name)
        a.e(f's_mov_b32 m0, {sST}')
        a.e(f's_pack_ll_b32_b16 s98, s98, {sPOLL}')
        a.e('v_writelane_b32 v7, s98, m0')
        a.e(f's_mov_b32 {sST}, {self.nst}')
        a.e(f's_bitset1_b32 {sST}, s97')
        a.e('s_memtime s[98:99]' if self.o.get('clk') else 's_memrealtime s[98:99]')

    def K(self, n, key=None, force=False):
        if key is not None:
            n = self.o.get('K', {}).get(key, n)
        if not self.o.get('warm', 1) and not force:
            return
        for i in range(n):
            self.a.e('v_mov_b32 v0, v0')
            self.a.e('s_nop 2')

    def H(self, key, n, junk):
        n = self.o.get('H', {}).get(key, n if self.o.get('heat', 1) else 0)
        for i in range(n):
            self.a.e(f'v_mfma_f32_16x16x4_f32 {vr(junk, 4)}, v0, v0, 0')

    def Wm(self):
        if self.o.get('warm', 1):
            self.a.e('v_mov_b32 v0, v0')

    def bar(self, n=2, vm=False):
        self.K(n)
        self.Wm()
        self.a.e('s_waitcnt vmcnt(0) lgkmcnt(0)' if vm else 's_waitcnt lgkmcnt(0)')
        self.Wm()
        self.a.e('s_barrier')
        self.Wm()

    def retry_to(self, top):
        a = self.a
        done, retry = a.lab('got'), a.lab('retry')
        a.e(f's_cbranch_vccnz {retry}')
        a.e(f'{done}:')
        a.ool(f'{retry}:\ns_cselect_b32 s3, 1, 0\ns_add_u32 {sPOLL}, {sPOLL}, 1\ns_cmp_gt_u32 {sPOLL}, 200000\ns_nop 1\ns_cbranch_scc0 {top}\n'
              f's_cmp_eq_u32 s3, 1\ns_branch {done}')

    def retry_with(self, lines, wait, chk):
        a = self.a
        done, retry = a.lab('got'), a.lab('retry')
        a.e(f's_cbranch_vccnz {retry}')
        a.e(f'{done}:')
        a.ool(f'{retry}:\n' + '\n'.join(lines) + f'\ns_add_u32 {sPOLL}, {sPOLL}, 1\ns_cmp_gt_u32 {sPOLL}, 200000\n{wait}\n'
              f's_cbranch_scc0 {chk}\ns_waitcnt vmcnt(0)\ns_branch {done}')
        return retry

    def ool_if(self, cond, fn, els=None, big=False):
        a = self.a
        go, back = a.lab('go'), a.lab('back')
        a.e(cond)
        a.e(f's_cbranch_scc1 {go}')
        if els and big:
            els()
            a.vmq, a.dsq = [], []
        elif els:
            a.begin_skip()
            els()
            a.end_skip()
        a.e(f'{back}:')
        sub = Asm()
        sub.uid = a.uid + 1000 * (1 + len(a.tail))
        self.a = sub
        sub.e(f'{go}:')
        sub.e('s_nop 1')
        fn()
        sub.e('s_nop 1')
        sub.e(f's_branch {back}')
        self.a = a
        tail, sub.tail = sub.tail, []
        body = sub.finish().split('\n')
        body = [x.strip() for x in body[:[i for i, x in enumerate(body) if x.startswith('L_isl_0')][0]] if x.strip()]
        for k in range(0, len(body), 14):
            part = body[k:k + 14]
            if k + 14 < len(body):
                nxt = a.lab('p')
                part.append(f's_branch {nxt}')
                body[k + 14] = f'{nxt}:\n' + body[k + 14]
            a.ool('\n'.join(part))
        for t in tail:
            a.ool(t)

    def lstore(self, lines):
        a = self.a
        if self.mode is not None:
            for l in lines:
                a.e(l + ' sc1' if self.mode == 'slow' and l.startswith('buffer_') else l)
            return
        slow, back = a.lab('slow'), a.lab('back')
        a.e(f's_cbranch_scc1 {slow}')
        for l in lines:
            a.e(l)
        a.e(f'{back}:')
        a.ool(('' if a.cold else '#cold') + f'{slow}:\ns_nop 7\n' + '\n'.join(l + ' sc1' if l.startswith('buffer_') else l for l in lines) + f'\ns_branch {back}')

    def lcmp(self):
        if self.mode is None:
            self.a.e(f's_cmp_eq_u32 {sLOC}, 0')

    def poll_begin(self):
        a = self.a
        self.ptop, self.pretry, self.pdone = a.lab('poll'), a.lab('retry'), a.lab('got')
        a.e(f'{self.ptop}:')

    def poll_end(self, vmax):
        a = self.a
        a.e(f'v_cmp_eq_u32 vcc, -1, {vmax}')
        a.e(f's_cbranch_vccnz {self.pretry}')
        a.e(f'{self.pdone}:')
        a.ool(f'{self.pretry}:\ns_add_u32 {sPOLL}, {sPOLL}, 1\ns_cmp_gt_u32 {sPOLL}, 200000\ns_cbranch_scc1 {self.pdone}\ns_nop 7\ns_branch {self.ptop}')

    def poll_cmp(self, vmax):
        self.a.e(f'v_cmp_eq_u32 vcc, -1, {vmax}')

    def poll_br(self, last=True):
        a = self.a
        done = a.lab('got')
        retry = a.lab('retry')
        a.e(f's_cbranch_vccnz {retry}')
        a.e(f'{done}:')
        a.ool(f'{retry}:\ns_cselect_b32 s3, 1, 0\ns_add_u32 {sPOLL}, {sPOLL}, 1\ns_cmp_gt_u32 {sPOLL}, 200000\ns_cbranch_scc0 {self.ptop}\n'
              f's_cmp_eq_u32 s3, 1\ns_branch {done}')

    def pipe_poll(self, ld, vmax, regs, key, mid=()):
        a = self.a
        n = sum(x.startswith('buffer') for x in ld)
        if self.o.get('pipe', {}).get(key, 1):
            self.poll_begin()
            for x in ld:
                self.H(key + '0', 0, 40)
                a.e(x)
            self.H(key + '1', 0, 40)
            a.e(f's_waitcnt vmcnt({n})')
            self.maxchain(vmax, regs, True)
            self.poll_cmp(vmax)
            for x in mid:
                a.e(x)
            self.poll_br()
        else:
            a.e('s_waitcnt vmcnt(0)')
            self.late_check(vmax, regs, ld)

    def late_check(self, vmax, regs, reissue):
        a = self.a
        chk, retry, done = a.lab('chk'), a.lab('retry'), a.lab('done')
        a.e(f'{chk}:')
        self.maxchain(vmax, regs, True)
        a.e(f'v_cmp_eq_u32 vcc, -1, {vmax}')
        a.e(f's_cbranch_vccnz {retry}')
        a.e(f'{done}:')
        a.ool(f'{retry}:\ns_add_u32 {sPOLL}, {sPOLL}, 1\ns_cmp_gt_u32 {sPOLL}, 200000\ns_cbranch_scc1 {done}\n'
              + '\n'.join(reissue) + f'\ns_waitcnt vmcnt(0)\ns_branch {chk}')

    def maxchain(self, vmax, regs, first):
        a = self.a
        regs = list(regs)
        if first:
            if len(regs) >= 3:
                a.e(f'v_max3_u32 {vmax}, v{regs[0]}, v{regs[1]}, v{regs[2]}')
                regs = regs[3:]
            elif len(regs) == 2:
                a.e(f'v_max_u32 {vmax}, v{regs[0]}, v{regs[1]}')
                regs = []
            else:
                a.e(f'v_mov_b32 {vmax}, v{regs[0]}')
                regs = []
        while len(regs) >= 2:
            a.e(f'v_max3_u32 {vmax}, {vmax}, v{regs[0]}, v{regs[1]}')
            regs = regs[2:]
        if regs:
            a.e(f'v_max_u32 {vmax}, {vmax}, v{regs[0]}')

    def sleep(self, key):
        n = self.o.get('sleep', {}).get(key, 0)
        if n:
            self.a.e(f's_sleep {n}')

    def wave_only(self, w):
        a = self.a
        l = a.lab('notw')
        a.e(f's_cmp_lg_u32 {sV}, {w}')
        a.e(f's_cbranch_scc1 {l}')
        a.begin_skip()
        return l

    def end_only(self, lab):
        self.a.end_skip()
        self.a.e(f'{lab}:')

    def pos_bytes(self, dst, tmp):
        a = self.a
        a.e(f'v_lshlrev_b32 {dst}, 3, v0')
        a.e(f'v_and_b32 {dst}, 16, {dst}')
        a.e(f'v_and_or_b32 {dst}, v0, 12, {dst}')

    def sp_addr(self, dst, base):
        a = self.a
        a.e(f'v_and_b32 {dst}, 48, v0')
        a.e(f'v_lshlrev_b32 {dst}, 1, {dst}')
        a.e(f'v_and_or_b32 {dst}, {vL16}, 16, {dst}')
        if base:
            a.e(f'v_add_u32 {dst}, {base}, {dst}')

    def sums(self, dst, terms, const=0):
        a = self.a
        first = True
        for reg, mul in terms:
            d = dst if first else t0
            if mul & (mul - 1) == 0:
                a.e(f's_lshl_b32 {d}, {reg}, {mul.bit_length() - 1}')
            else:
                a.e(f's_mul_i32 {d}, {reg}, {mul}')
            if not first:
                a.e(f's_add_u32 {dst}, {dst}, {t0}')
            first = False
        if const:
            a.e(f's_add_u32 {dst}, {dst}, {const}')

    def k64_addr(self, vt, vu):
        a = self.a
        a.e(f'v_lshrrev_b32 {vt}, 2, v0')
        a.e(f'v_lshlrev_b32 {vt}, 13, {vt}')
        a.e(f'v_and_or_b32 {vt}, {vL16}, 48, {vt}')

    def wq_prep(self, vt, vu):
        a = self.a
        a.e(f'v_lshrrev_b32 {vu}, 4, v0')
        a.e(f'v_lshlrev_b32 {vt}, 5, {vu}')
        a.e(f'v_xor_b32 {vt}, {vt}, {vL16}')
        a.e(f's_lshl_b32 {t1}, {sV}, 7')
        a.e(f'v_xor_b32 {vt}, {t1}, {vt}')
        a.e(f'v_and_b32 {vt}, 0xf0, {vt}')
        a.e(f'v_lshl_or_b32 {vt}, {vu}, 13, {vt}')

    def wq_issue(self, srd, vt, vu, parts, pol=''):
        a = self.a
        for i in parts:
            if i == parts[0] or i == 3:
                a.e(f's_add_u32 m0, {sW8}, {(i // 3) * 3072}')
            a.e(f's_add_u32 {t1}, {oWQ}, {i * 4 * 8192 - (i % 3) * 1024}')
            a.e(f'buffer_load_dwordx4 {vt}, {srd}, {t1} offen offset:{(i % 3) * 1024} {pol} lds')
        a.tag_vm('wq')

    def dma_wq(self, srd, vt, vu, pol=''):
        self.wq_prep(vt, vu)
        self.wq_issue(srd, vt, vu, list(range(6)), pol)

    def dma_wuv(self, vt):
        a = self.a
        pol = self.o.get('pol_w', '')
        self.k64_addr(vt, None)
        for i in range(4):
            a.e(f's_add_u32 m0, {sW8}, {i * 1024}')
            a.e(f's_add_u32 {t1}, {oWUV}, {i * 16 * 8192}')
            a.e(f'buffer_load_dwordx4 {vt}, {WUV}, {t1} offen {pol} lds')
        a.tag_vm('wuv')

    def wuk_prep(self, vt, vu):
        a = self.a
        a.e(f'v_lshrrev_b32 {vu}, 4, v0')
        a.e(f'v_lshlrev_b32 {vt}, 5, {vu}')
        a.e(f'v_xor_b32 {vt}, {vt}, {vL16}')
        a.e(f'v_and_b32 {vt}, 0xf0, {vt}')
        a.e(f'v_lshl_or_b32 {vt}, {vu}, 13, {vt}')

    def wuk_issue(self, vt, vu):
        a = self.a
        pol = self.o.get('pol_wuk', '')
        a.e(f's_mov_b32 m0, {sW8}')
        for q in range(4):
            a.e(f's_add_u32 {t1}, {oWUK}, {q * (4 * 8192 - 1024)}')
            if q:
                a.e(f'v_xor_b32 {vu}, {TBL[q] << 4}, {vt}')
            a.e(f'buffer_load_dwordx4 {vu if q else vt}, {WUK}, {t1} offen offset:{q * 1024} {pol} lds')
        a.tag_vm('wuk')

    def wo_prep(self, R, tmp):
        a = self.a
        for i in range(3):
            a.e(f'v_add_u32 v{R + i}, {64 * i}, v0')
            a.e(f'v_mul_u32_u24 {tmp}, 21846, v{R + i}')
            a.e(f'v_lshrrev_b32 {tmp}, 16, {tmp}')
            a.e(f'v_mul_u32_u24 {tmp}, {1152 - 48}, {tmp}')
            a.e(f'v_lshl_add_u32 v{R + i}, v0, 4, {tmp}')
        a.e(f's_add_u32 {t5}, {oWO}, {64 * 1152}')

    def wo_lines(self, srd, R, pol='', base=sW8):
        out = []
        for h in range(2):
            out.append(f's_add_u32 m0, {base}, {h * 3072}')
            for i in range(3):
                out.append(f'buffer_load_dwordx4 v{R + i}, {srd}, {t5 if h else oWO} offen offset:{i * 1024} {pol} lds')
        return out

    def wo_group(self, srd, R, lo, hi):
        out = []
        for k in range(lo, hi):
            h, i = divmod(k, 3)
            if k == lo or i == 0:
                out.append(f's_add_u32 m0, {sW8}, {h * 3072}')
            out.append(f'buffer_load_dwordx4 v{R + i}, {srd}, {t5 if h else oWO} offen offset:{i * 1024} lds')
        return out

    def dma_wo(self, srd, R, tmp):
        self.wo_prep(R, tmp)
        for x in self.wo_lines(srd, R, self.o.get('pol_wo1', '')):
            self.a.e(x)
        self.a.tag_vm('wo')

    def touch(self, what, vt, vd):
        a = self.a
        if what == 'code':
            l = a.lab('pc')
            self.sums(t1, [(sJ, 1024), (sV, 256)])
            a.e(f'v_lshl_add_u32 {vt}, v0, 7, {t1}')
            a.e(f'v_min_u32 {vt}, L_tailend-L_top_fast, {vt}')
            a.e('s_getpc_b64 s[0:1]')
            a.e(f'{l}:')
            a.e(f's_add_u32 s0, s0, L_top_fast-{l}')
            a.e(f's_addc_u32 s1, s1, {0 if self.mode is None else -1}')
            a.e('s_mov_b64 exec, 3')
            a.e(f'global_load_dword {vd}, {vt}, s[0:1]')
            a.e('s_mov_b64 exec, -1')
            return
        if what[0] == 'X':
            what, lo, hi = (what.split(':') + ['0', '9'])[:3]
            if what in ('Xbwq', 'Xwq', 'Xwuk', 'Xwuv'):
                srd, rows = {'Xbwq': (BWQ, 18), 'Xwq': (WQ, 18), 'Xwuk': (WUK, 12), 'Xwuv': (WUV, 16)}[what]
                a.e(f'v_lshrrev_b32 {vt}, 3, v0')
                a.e(f'v_lshlrev_b32 {vt}, 6, {vt}')
                a.e(f'v_and_or_b32 {vt}, v0, 7, {vt}')
                a.e(f'v_lshlrev_b32 {vt}, 7, {vt}')
                self.sums(t1, [(sX, 1024), (sJ, 4 * rows * 8192), (sV, rows * 8192)], (1 << 32) - 96 * rows * 8192)
                for k in range(0, rows, 8):
                    if rows - k < 8:
                        a.e(f's_mov_b32 exec_lo, {(1 << ((rows - k) * 8)) - 1}')
                        a.e('s_mov_b32 exec_hi, 0')
                    if int(lo) <= k // 8 < int(hi):
                        a.e(f'buffer_load_dword {vd}, {vt}, {srd}, {t1} offen')
                    a.e(f's_add_u32 {t1}, {t1}, 65536')
                a.e('s_mov_b64 exec, -1')
                return
            srd, base, per = {'Xc1': (WS, [(sX, 1 << 19)], 16384), 'Xbwo': (BWO, [(sX, 512 * 1152)], 18432), 'Xwo': (WO, [(sX, 512 * 1152)], 18432)}[what]
            a.e(f'v_lshlrev_b32 {vt}, 7, v0')
            self.sums(t1, base + [(sJ, 4 * per), (sV, per)], (CB if what == 'Xc1' else 0) - 96 * per + (1 << 32 if what != 'Xc1' else 0))
            for k in range(0, per, 8192):
                if per - k < 8192:
                    a.e(f's_mov_b64 exec, {(1 << ((per - k) // 128)) - 1}')
                if int(lo) <= k // 8192 < int(hi):
                    a.e(f'buffer_load_dword {vd}, {vt}, {srd}, {t1} offen')
                a.e(f's_add_u32 {t1}, {t1}, 8192')
            a.e('s_mov_b64 exec, -1')
            return
        half = None
        if what[-1] in '01' and what != 'c1':
            what, half = what[:-1], int(what[-1])
        if what in ('wq', 'bwq', 'wuv', 'wuk'):
            srd = {'wq': WQ, 'bwq': BWQ, 'wuv': WUV, 'wuk': WUK}[what]
            a.e(f'v_lshrrev_b32 {vt}, 3, v0')
            a.e(f'v_lshlrev_b32 {vt}, 6, {vt}')
            a.e(f'v_and_or_b32 {vt}, v0, 7, {vt}')
            a.e(f'v_lshlrev_b32 {vt}, 7, {vt}')
            rows = 5 if what in ('wq', 'bwq') else 4
            self.sums(t1, [(sJ, 4 * rows * 8192), (sV, rows * 8192), (sX, 1024)])
            n = 8 * rows
        elif what == 'loc':
            srd = WS
            a.e(f'v_lshlrev_b32 {vt}, 7, v0')
            self.sums(t1, [(sX, L_X), (sJ, 4096), (sV, 1024)])
            n = 8
        elif what == 'c1h':
            srd = WS
            a.e(f'v_lshlrev_b32 {vt}, 7, v0')
            self.sums(t1, [(sX, 1 << 19), (sJ, 16384), (sV, 2048)], CB + 8192)
            n = 16
        elif what == 'c1':
            srd = WS
            a.e(f'v_lshlrev_b32 {vt}, 7, v0')
            self.sums(t1, [(sX, 1 << 19), (sJ, 16384), (sV, 4096)], CB)
            n = 32
        else:
            srd = {'wo': WO, 'bwo': BWO}[what]
            a.e(f'v_lshlrev_b32 {vt}, 7, v0')
            self.sums(t1, [(sX, 512 * 1152), (sJ, 18432), (sV, 4608)])
            n = 36
        m = (1 << n) - 1
        if half == 0:
            m = (1 << (n // 2)) - 1
        elif half == 1:
            m ^= (1 << (n // 2)) - 1
        a.e(f's_mov_b32 exec_lo, {m & 0xffffffff}')
        a.e(f's_mov_b32 exec_hi, {m >> 32}')
        if vd is None:
            a.e(f's_add_u32 m0, {sW8}, 1024')
            a.e(f'buffer_load_dword {vt}, {srd}, {t1} offen lds')
        else:
            a.e(f'buffer_load_dword {vd}, {vt}, {srd}, {t1} offen')
        a.e('s_mov_b64 exec, -1')

    def touches(self, where, vt, vd):
        for w in self.o.get('touch', {}).get(where, []):
            self.touch(w, vt, vd)

    def lnq_addr(self):
        a = self.a
        a.e('v_lshrrev_b32 v52, 4, v0')
        a.e('v_bfe_u32 v53, v0, 2, 2')
        a.e('v_lshl_add_u32 v52, v52, 5, v53')
        a.e('v_and_b32 v53, 31, v0')
        a.e('v_lshlrev_b32 v53, 3, v53')
        a.e('v_lshl_or_b32 v52, v52, 8, v53')
        a.e(f's_lshl_b32 {t0}, {sV}, 6')
        a.e(f's_add_u32 {t0}, {t0}, {STG}')
        a.e(f'v_xor_b32 v52, {t0}, v52')
        a.e('v_xor_b32 v54, 32, v52')

    def lnq_prep(self):
        a = self.a
        a.wait(vm='wq')
        a.e('s_barrier')
        for rho in range(3):
            for tau in range(2):
                for half in range(2):
                    a.e(f'ds_read_b64_tr_b16 {vr(28 + 8 * rho + 4 * tau + 2 * half, 2)}, v{52 + 2 * tau} offset:{2048 * rho + 1024 * half}')
        a.e('s_waitcnt lgkmcnt(0)')
        a.e('s_barrier')

    def lnq_rows(self):
        a = self.a
        a.e('v_mov_b32 v53, 0x3f803f80')
        a.e(f's_lshl_b64 s[82:83], {MY}, 8')
        a.e('v_cndmask_b32 v16, 0, v53, s[82:83]')
        a.e('v_mov_b32 v17, v16')
        for r in range(18, 28, 2):
            a.e(f'v_mov_b64 {vr(r, 2)}, v[16:17]')

    def lnq_mfma(self, rho):
        a = self.a
        A = vr(16 + 4 * rho, 4)
        c = (lambda r: '0') if rho == 0 else (lambda r: r)
        return [f'v_mfma_f32_16x16x32_bf16 v[60:63], {A}, {A}, {c("v[60:63]")}',
                f'v_mfma_f32_16x16x32_bf16 v[52:55], {A}, {vr(28 + 8 * rho, 4)}, {c("v[52:55]")}',
                f'v_mfma_f32_16x16x32_bf16 v[56:59], {A}, {vr(32 + 8 * rho, 4)}, {c("v[56:59]")}']

    def lnq_reduce(self, isb, chk=False):
        a = self.a
        a.e('v_pk_add_f32 v[60:61], v[60:61], v[62:63]')
        a.e('v_add_f32 v60, v60, v61')
        if chk:
            a.e('v_cmp_u_f32 vcc, v60, v60')
        a.e('v_pk_add_f32 v[52:53], v[52:53], v[54:55]')
        a.e('v_mov_b32 v61, v60')
        a.e('v_pk_add_f32 v[56:57], v[56:57], v[58:59]')
        a.e('v_add_f32 v52, v52, v53')
        a.e('v_permlane16_swap_b32 v60, v61')
        a.e('v_add_f32 v56, v56, v57')
        a.e('v_add_f32 v60, v60, v61')
        a.e('v_permlane16_swap_b32 v52, v56')
        a.e(f'v_add_f32_dpp v60, v60, v60 quad_perm:[1,0,3,2] {FULL}')
        a.e('v_add_f32 v52, v52, v56')
        self.lcmp()
        a.e(f'v_add_f32_dpp v60, v60, v60 quad_perm:[2,3,0,1] {FULL}')
        if isb:
            a.e(f'v_mov_b32_dpp v53, v52 quad_perm:[1,0,3,2] {FULL}')
            a.e('v_cvt_pk_bf16_f32 v52, v52, v53')
        a.e(f'v_add_f32_dpp v60, v60, v60 row_half_mirror {FULL}')

    def lnq_pubaddr(self, isb, first):
        a = self.a
        if isb:
            self.pos_bytes('v14', None)
            a.e('v_and_b32 v15, 16, v0')
            a.e('v_lshl_or_b32 v14, v15, 4, v14')
            a.e('v_and_b32 v15, 32, v0')
            a.e('v_lshl_or_b32 v14, v15, 6, v14')
        else:
            a.e('v_and_b32 v14, 31, v0')
            a.e('v_lshlrev_b32 v14, 2, v14')
            if first:
                a.e('v_lshrrev_b32 v15, 5, v0')
                a.e(f'v_mul_u32_u24 v15, {L_CSA - L_QA}, v15')
                a.e('v_add_u32 v14, v14, v15')
        a.e('v_lshrrev_b32 v15, 1, v0')
        if isb:
            self.oob(('v14', 'v14'), (0xaaaaaaaa, 0xaaaaaaaa))
        elif not first:
            self.oob(('v14', 'v14'), (0, 0xffffffff))
        self.oob(('v15', 'v15'), (0xfffffefe, 0xffffffff))

    def lnq_publish(self, isb, first, q='v52', st='v60', qa='v14', sa='v15'):
        self.lstore([f'buffer_store_dword {q}, {qa}, {WSL}, {oQB if isb else oQA} offen',
                     f'buffer_store_dword {st}, {sa}, {WSL}, {oST} offen offset:{256 if isb else 0}'])

    def keep_rounding(self):
        a = self.a
        a.e(f's_cmp_eq_u32 {sRES}, 3')
        a.e('s_cselect_b64 vcc, -1, 0')
        a.e('v_lshlrev_b32 v36, 16, v34')
        a.e('v_and_b32 v37, 0xffff0000, v34')
        a.e('v_pk_add_f32 v[32:33], v[32:33], v[36:37] neg_lo:[0,1] neg_hi:[0,1]')
        a.e('v_cndmask_b32 v4, 0, v32, vcc')
        a.e('v_cndmask_b32 v5, 0, v33, vcc')

    def lnq_tail(self, goff, isb):
        a = self.a
        pol = self.o.get('pol_bwq', '') if isb else self.o.get('pol_wq3', '')
        if self.o.get('wq_hoist', 1):
            self.wq_issue(BWQ if isb else WQ, 'v17', None, list(range(6)), pol)
            a.e('s_barrier')
        self.keep_rounding()
        if self.o.get('ybar', 1):
            a.e('s_barrier')
        self.lnq_rows()
        a.e('v_lshrrev_b32 v12, 2, v0')
        a.e('v_mul_u32_u24 v12, 3072, v12')
        a.e(f'v_and_or_b32 v12, {vL16}, 48, v12')
        a.e(f's_add_u32 {t4}, {oY}, {goff}')
        a.e(f's_add_u32 {t5}, {sW8}, 6144')
        if not self.o.get('wq_hoist', 1):
            self.dma_wq(BWQ if isb else WQ, 'v8', 'v9', pol)
            a.e('s_barrier')
        self.lnq_addr()
        self.lnq_pubaddr(isb, False)
        a.e('v_and_b32 v11, 48, v0')
        a.e('v_lshlrev_b32 v11, 3, v11')
        a.e('v_and_or_b32 v11, v0, 7, v11')
        a.e('v_lshlrev_b32 v11, 6, v11')
        a.e(f'v_add_u32 v11, {STG + 6144}, v11')
        a.e('v_mov_b32 v13, 0')
        if isb:
            self.wuk_prep('v8', 'v9')

            def clear1():
                self.clear_g1(56)
                self.sleep('h2c')
            self.ool_if(f's_cmp_eq_u32 {sIT}, 0', clear1, lambda: self.sleep('h2a'))
        else:
            self.sleep('h2b')
        ld = [f's_mov_b32 m0, {t5}', 's_mov_b64 exec, 0x77777777',
              f'buffer_load_dword v13, v12, {WSG}, {t4} offen sc1',
              f'buffer_load_dwordx4 v12, {WSG}, {t4} offen sc1 lds',
              's_mov_b64 exec, -1']
        for i, x in enumerate(ld):
            a.e(x)
            if i in (2, 3):
                a.tag_vm(f'y{i}')
        self.touches('w1b' if isb else 'w1c', 'v60', 'v10')
        self.lnq_prep()
        self.stamp('wqrdy', 2)
        if isb:
            self.wuk_issue('v8', 'v9')
        chk, again = a.lab('chk'), a.lab('again')
        a.wait(vm='y2')
        a.e(f'{chk}:')
        a.e('v_cmp_eq_u32 vcc, -1, v13')
        a.wait(vm='y3')
        again = self.retry_with(ld, 's_waitcnt vmcnt(0)', chk)
        a.e(f's_mov_b64 exec, {MY}')
        a.e('s_barrier')
        for rho in range(3):
            a.e(f'ds_read_b128 {vr(16 + 4 * rho, 4)}, v11 offset:{16 * rho}')
            a.tag_ds(f'a{rho}')
        fl = isb and self.o.get('qflag', 1)
        if fl:
            self.lstore([f'buffer_store_dword v0, off, {WSL}, {t3} offset:{L_FL - L_OAL}'])
        a.e('s_mov_b64 exec, -1')
        self.stamp('h2got', 2)
        if fl:
            a.e('v_and_b32 v9, 7, v0')
            a.e('v_lshlrev_b32 v9, 2, v9')
        self.H('l1', 0, 56)
        mm = [self.lnq_mfma(rho) for rho in range(3)]
        for rho in range(3):
            a.wait(ds=f'a{rho}')
            a.e(mm[rho][0])
        g = ['v_pk_add_f32 v[60:61], v[60:61], v[62:63]', 'v_add_f32 v62, v60, v61', 'v_add_f32 v60, v60, v61', 'v_cmp_u_f32 vcc, v62, v62',
             'v_permlane16_swap_b32 v60, v62', 'v_add_f32 v60, v60, v62',
             f'v_add_f32_dpp v60, v60, v60 quad_perm:[1,0,3,2] {FULL}', f'v_add_f32_dpp v60, v60, v60 quad_perm:[2,3,0,1] {FULL}',
             f'v_add_f32_dpp v60, v60, v60 row_half_mirror {FULL}']
        a.e(mm[0][1]); a.e('s_nop 1')
        a.e(mm[1][1]); a.e('s_nop 1')
        a.e(mm[2][1]); a.e('s_nop 0'); a.e(g[0])
        a.e(mm[0][2]); a.e(g[1]); a.e(g[2])
        a.e(mm[1][2]); a.e(g[3]); a.e(g[4])
        a.e(mm[2][2]); a.e(g[5])
        a.e('v_pk_add_f32 v[52:53], v[52:53], v[54:55]')
        a.e('v_add_f32 v52, v52, v53')
        a.e(g[6])
        a.e(g[7])
        a.e('v_pk_add_f32 v[56:57], v[56:57], v[58:59]')
        a.e('v_add_f32 v56, v56, v57')
        a.e(g[8])
        again2 = a.lab('again')
        self.retry_to(again2)
        a.e('v_permlane16_swap_b32 v52, v56')
        a.e('v_add_f32 v52, v52, v56')
        if isb:
            a.e(f'v_mov_b32_dpp v53, v52 quad_perm:[1,0,3,2] {FULL}')
            a.e('v_cvt_pk_bf16_f32 v52, v52, v53')
        a.ool(f'{again2}:\ns_barrier\ns_branch {again}')
        if fl == 1:
            a.e(f'buffer_load_dword v10, v9, {WSL}, {oOALg} offen offset:{L_FL - L_OAL} sc1')
            a.tag_vm('fl')
        self.lnq_publish(isb, False)
        if fl == 2:
            a.e(f'buffer_load_dword v10, v9, {WSL}, {oOALg} offen offset:{L_FL - L_OAL} sc1')
            a.tag_vm('fl')
        self.stamp('qpub')

    def clear_g1(self, R):
        b = self.a
        for r in range(R, R + 4):
            b.e(f'v_mov_b32 v{r}, -1')
        self.sums(t1, [(sX, 128 * 384), (sJ, 4 * 384), (sV, 384)], GB + G_IT)
        b.e('s_mov_b64 exec, 0xffffff')
        b.e(f'buffer_store_dwordx4 {vr(R, 4)}, {vL16}, {WS}, {t1} offen sc1')
        b.e('s_mov_b64 exec, -1')

    def clear_c1(self, R, va, vt):
        b = self.a
        for r in range(R, R + 4):
            b.e(f'v_mov_b32 v{r}, -1')
        b.e(f'v_lshrrev_b32 {va}, 4, v0')
        b.e(f'v_and_b32 {vt}, 0xf0, {vL16}')
        b.e(f'v_lshl_or_b32 {va}, {va}, 16, {vt}')
        out = []
        for q in range(4):
            out.append(f's_add_u32 {t1}, {oC1pub}, {q * 4096}')
            out.append(f'buffer_store_dwordx4 {vr(R, 4)}, {va}, {WS}, {t1} offen')
        return out

    def oob(self, reg, mask):
        a = self.a
        a.e(f's_mov_b32 vcc_lo, {mask[0]}')
        a.e(f's_mov_b32 vcc_hi, {mask[1]}')
        a.e(f'v_cndmask_b32 {reg[0]}, {reg[1]}, 2.0, vcc')

    def c1_addr(self, dst, tmp):
        a = self.a
        a.e(f'v_lshrrev_b32 {tmp}, 4, v0')
        a.e(f'v_and_b32 {dst}, 0xf0, {vL16}')
        a.e(f'v_lshl_or_b32 {dst}, {tmp}, 12, {dst}')

    def stats_const(self, C):
        return f'v_mov_b32 v{C}, {f32(64.0 / QSCALE ** 2)}'

    def stats(self, S, C):
        out = []
        for c in (4, 2, 1):
            out.append(f'v_add_f32_dpp v{S + 1}, v{S + 1}, v{S + 1} row_ror:{c} {FULL}')
            out.append(f'v_add_f32_dpp v{S}, v{S}, v{S} row_ror:{c} {FULL}')
        out.append(f'v_mul_f32 v{S + 1}, {f32(1.0 / (64 * 576))}, v{S + 1}')
        out.append(f'v_mul_f32 v{S}, {f32(1.0 / (64 * 576))}, v{S}')
        out.append(f'v_fma_f32 v{S}, -v{S + 1}, v{S + 1}, v{S}')
        out.append(f'v_max_f32 v{S}, 0, v{S}')
        out.append(f'v_fmaak_f32 v{S}, v{C}, v{S}, {f32(1e-5 / QSCALE ** 2)}')
        out.append(f'v_rsq_f32 v{S}, v{S}')
        return out

    def mix(self, x, y):
        x, y = list(x), list(y)
        while x or y:
            if x:
                self.a.e(x.pop(0))
            if y:
                self.a.e(y.pop(0))

    def resid(self, goff, base, va, final):
        a = self.a
        a.e(f'v_lshlrev_b32 {va}, 2, v0')
        a.e(f's_add_u32 {t2}, {oRES}, {goff}')
        a.e('s_mov_b64 exec, 0xfff')
        if final:
            self.sleep('fin')
        self.poll_begin()
        for i in range(8):
            if i & 1 == 0:
                a.e(f's_add_u32 {t3}, {t2}, {i * 3072}')
            a.e(f'buffer_load_dword v{base + i}, {va}, {WSG}, {t3} offen offset:{(i & 1) * 3072} sc1')
        a.e(f'v_mov_b32 v{base + 8}, 0x3f80')
        a.e(f'v_mov_b32 v{base + 9}, 0x3f800000')
        A = base + 10
        a.e(f'v_mov_b64 {vr(A, 2)}, v[4:5]')
        for i in range(8):
            if i & 1 == 0:
                a.e(f's_waitcnt vmcnt({6 - i})')
            a.e(f'v_dot2c_f32_bf16 v{A}, v{base + 8}, v{base + i}')
            a.e(f'v_dot2c_f32_bf16 v{A + 1}, v{base + 9}, v{base + i}')
        a.e('s_nop 2')
        a.e(f'v_cmp_u_f32 vcc, v{A}, v{A + 1}')
        if final:
            a.e(f'v_cvt_pk_bf16_f32 v9, v{A}, v{A + 1}')
            a.e(f's_mul_i32 {t0}, {sJ}, 48')
        self.poll_br()
        if not final:
            a.e(f'v_mov_b64 v[4:5], {vr(A, 2)}')

    def resid_track(self, goff, base, va, cond):
        a = self.a
        go, back = a.lab('res'), a.lab('resback')
        a.e(cond)
        a.e(f's_cbranch_scc1 {go}')
        a.e(f'{back}:')
        sub = Asm()
        sub.uid = a.uid + 1000 * (1 + len(a.tail))
        self.a = sub
        sub.e(f'{go}:')
        sub.e('s_nop 1')
        self.resid(goff, base, va, False)
        sub.e('s_mov_b64 exec, -1')
        sub.e(f's_branch {back}')
        self.a = a
        body = [i.text for i in sub.ins]
        cut = [k for k in range(0, len(body), 14)]
        for k in cut:
            part = body[k:k + 14]
            if k + 14 < len(body):
                nxt = a.lab('resp')
                part.append(f's_branch {nxt}')
                body[k + 14] = f'{nxt}:\n' + body[k + 14]
            a.ool('\n'.join(part))
        for t in sub.tail:
            a.ool(t)

    def qa_addr(self, T):
        a = self.a
        a.e(f'v_and_b32 v{T}, 4, v0')
        a.e(f'v_lshlrev_b32 v{T}, 3, v{T}')
        a.e(f'v_and_b32 v{T + 1}, 3, v0')
        a.e(f'v_lshl_or_b32 v{T}, v{T + 1}, 2, v{T}')
        a.e(f'v_lshrrev_b32 v{T + 1}, 5, v0')
        a.e(f'v_lshl_or_b32 v{T}, v{T + 1}, 4, v{T}')
        a.e(f'v_bfe_u32 v{T + 1}, v0, 4, 1')
        a.e(f'v_lshl_or_b32 v{T}, v{T + 1}, 1, v{T}')
        a.e(f's_lshl_b32 {t0}, {sV}, 6')
        a.e(f's_add_u32 {t0}, {t0}, {ZQ}')
        a.e(f'v_add_u32 v{T}, {t0}, v{T}')
        a.e(f'v_and_b32 v{T + 1}, 7, v0')
        a.e(f'v_lshlrev_b32 v{T + 1}, 3, v{T + 1}')
        self.oob((f'v{T + 1}', f'v{T + 1}'), (0xc0c0c0c0, 0xc0c0c0c0))
        self.oob((f'v{T + 3}', vL16), (0, 0xffff0000))
        self.sp_addr(f'v{T + 2}', ZQ)

    def red8(self, R):
        return [f'v_permlane32_swap_b32 v{R}, v{R + 2}',
                f'v_permlane32_swap_b32 v{R + 1}, v{R + 3}',
                f'v_pk_add_f32 {vr(R, 2)}, {vr(R, 2)}, {vr(R + 2, 2)}',
                f'v_permlane16_swap_b32 v{R}, v{R + 1}',
                f'v_add_f32 v{R}, v{R}, v{R + 1}',
                f'v_add_f32_dpp v{R}, v{R}, v{R} row_ror:8 {FULL}']

    def qa_loads(self, R, S, T):
        return [f'buffer_load_dwordx2 {vr(S, 2)}, v{T + 1}, {WSL}, {oSTgA} offen sc1',
                f'buffer_load_dwordx4 {vr(R, 4)}, v{T + 3}, {WSL}, {oQgA} offen sc1']

    def qa_finish(self, R, S, T, Q, C, br=False):
        a = self.a
        self.mix(self.stats(S, C), self.red8(R) + [f'v_and_b32 v{R + 1}, 0xffff0000, v1'])
        a.e(f'v_fma_f32 v{R}, -v{S + 1}, v{R + 1}, v{R}')
        a.e(f'v_mul_f32 v{R}, v{R}, v{S}')
        a.e(f'v_cvt_pk_bf16_f32 v{R}, v{R}, v{R}')
        a.e(f'ds_write_b16 v{T}, v{R}')
        if br:
            return
        self.bar(2, br)
        a.e(f'ds_read_b128 {vr(Q, 4)}, v{T + 2}')
        a.tag_ds('q0')
        a.e(f'ds_read_b128 {vr(Q + 4, 4)}, v{T + 2} offset:128')
        a.tag_ds('q1')

    def p_addr(self, r, t):
        a = self.a
        a.e(f'v_and_b32 {r}, 0x32, v0')
        a.e(f'v_lshlrev_b32 {r}, 3, {r}')
        a.e(f'v_and_b32 {t}, 8, v0')
        a.e(f'v_lshl_or_b32 {r}, {t}, 2, {r}')
        a.e(f'v_and_b32 {t}, 5, v0')
        a.e(f'v_lshl_or_b32 {r}, {t}, 1, {r}')
        a.e(f'v_add_u32 {r}, {sW8}, {r}')

    def qk_softmax(self, Q, D, S, T, fill=()):
        a = self.a
        for t in range(19):
            if t >= 3:
                d = D + 4 * ((t - 3) & 3)
                a.e(f'v_add_f32_dpp v{S + ((t - 3) & 3)}, v{d}, v{d + 1} {DPPI} row_mask:{1 << ((t - 3) >> 2)} bank_mask:0xf')
            if 4 <= t + 1 < 16:
                a.e(f'v_mov_b64 {vr(D + 4 * ((t + 1) & 3), 2)}, 0')
            if t < 16:
                d = vr(D + 4 * (t & 3), 4)
                if t == 0:
                    a.wait(ds='q0')
                a.e(f'v_smfmac_f32_16x16x64_bf16 {d}, {vr(Q, 4)}, a[{16 * t}:{16 * t + 7}], v1')
                if t == 0:
                    a.wait(ds='q1')
                elif t - 1 < len(fill):
                    for x in fill[t - 1]:
                        a.e(x)
                a.e(f'v_smfmac_f32_16x16x64_bf16 {d}, {vr(Q + 4, 4)}, a[{16 * t + 8}:{16 * t + 15}], v1')
        self.softmax_a(S, T, f'v{T + 1}')

    def softmax_a(self, S, T, pa, fill=()):
        a = self.a
        fill = list(fill)

        def f2():
            for _ in range(2):
                if fill:
                    a.e(fill.pop(0))
        m = f'v{T}'
        a.e(f'v_max3_f32 {m}, v{S}, v{S + 1}, v{S + 2}')
        a.e(f'v_max_f32 {m}, {m}, v{S + 3}')
        for c in ('row_ror:8', 'row_ror:4', 'row_ror:2', 'row_ror:1'):
            f2()
            a.e(f'v_max_f32_dpp {m}, {m}, {m} {c} {FULL}')
        f2()
        a.e(f'v_max_f32_dpp {m}, {m}, {m} row_bcast:15 row_mask:0xa bank_mask:0xf')
        f2()
        a.e(f'v_max_f32_dpp {m}, {m}, {m} row_bcast:31 row_mask:0xc bank_mask:0xf')
        a.e(f'v_readlane_b32 {sM}, {m}, 63')
        f2()
        assert not fill
        for r in range(4):
            a.e(f'v_subrev_f32 v{S + r}, {sM}, v{S + r}')
        for r in range(4):
            a.e(f'v_exp_f32 v{S + r}, v{S + r}')
        a.e(f'v_cvt_pk_bf16_f32 v{T + 2}, v{S}, v{S + 1}')
        a.e(f'v_cvt_pk_bf16_f32 v{T + 3}, v{S + 2}, v{S + 3}')
        a.e(f'ds_write_b16 {pa}, v{T + 2} offset:6144')
        a.e(f'ds_write_b16_d16_hi {pa}, v{T + 2} offset:{6144 + 4}')
        a.e(f'ds_write_b16 {pa}, v{T + 3} offset:{6144 + 64}')
        a.e(f'ds_write_b16_d16_hi {pa}, v{T + 3} offset:{6144 + 68}')

    def lsum(self, l, S):
        out = [f'v_pk_add_f32 {vr(S, 2)}, {vr(S, 2)}, {vr(S + 2, 2)}', f'v_add_f32 {l}, v{S}, v{S + 1}']
        for c in ('row_ror:8', 'row_ror:4', 'row_ror:2', 'row_ror:1'):
            out.append(f'v_add_f32_dpp {l}, {l}, {l} {c} {FULL}')
        out.append(f'v_add_f32_dpp {l}, {l}, {l} row_bcast:15 row_mask:0xa bank_mask:0xf')
        out.append(f'v_add_f32_dpp {l}, {l}, {l} row_bcast:31 row_mask:0xc bank_mask:0xf')
        return out

    def ml_write(self, T):
        return [f's_lshl_b32 {t0}, {sV}, 3', f's_add_u32 {t0}, {t0}, {ZML}', f'v_mov_b32 v{T + 2}, 0x30000', f'v_mov_b32 v{T}, {sM}',
                f'v_writelane_b32 v{T + 2}, {t0}, 63\nds_write_b64 v{T + 2}, {vr(T, 2)}']

    def ml_read(self, R, T):
        return [f'v_mov_b32 v{T}, {ZML}', f'ds_read_b128 {vr(R, 4)}, v{T}', f'ds_read_b128 {vr(R + 4, 4)}, v{T} offset:16']

    def ml_scale(self, R, T, F, LW):
        out = [f'v_max3_f32 v{T}, v{R}, v{R + 2}, v{R + 4}', f'v_max_f32 v{T}, v{T}, v{R + 6}']
        out += [f'v_sub_f32 v{R + 2 * w}, v{R + 2 * w}, v{T}' for w in range(4)]
        out += [f'v_sub_f32 v{F}, {sM}, v{T}']
        out += [f'v_exp_f32 v{R + 2 * w}, v{R + 2 * w}' for w in range(4)]
        out += [f'v_exp_f32 v{F}, v{F}', f'v_mul_f32 v{LW}, v{R}, v{R + 1}']
        out += [f'v_fmac_f32 v{LW}, v{R + 2 * w}, v{R + 2 * w + 1}' for w in range(1, 4)]
        out += [f'v_rcp_f32 v{R}, v{LW}', f'v_log_f32 v{LW}, v{LW}', f'v_mul_f32 v{F}, v{F}, v{R}', f'v_add_f32 v{LW}, v{LW}, v{T}']
        return out

    def combine_publish(self):
        a = self.a
        a.e('ds_write2st64_b32 v46, v44, v45 offset0:26 offset1:27')
        lwl = f'buffer_load_dword v16, v47, {WSL}, {oOALg} offen sc1'
        if self.o.get('lw_pos', 0) == 0:
            a.e(lwl)
        a.e(f'v_mov_b32 v10, {STG + 6656}')
        a.e('v_lshl_add_u32 v8, v0, 3, v10')
        a.e('v_and_b32 v10, 56, v0')
        a.e('v_lshlrev_b32 v10, 5, v10')
        a.e(f'v_and_or_b32 v10, {vL16}, 16, v10')
        a.e('v_and_b32 v11, 6, v0')
        a.e('v_lshl_or_b32 v10, v11, 1, v10')
        a.e(f's_cmp_lg_u32 {sV}, 0')
        a.e('s_waitcnt lgkmcnt(0)')
        a.e('s_barrier')
        l = a.lab('notw')
        if self.o.get('lw_pos', 0) == 0:
            a.e(f's_cbranch_scc1 {l}')
            a.begin_skip()
        for w in range(4):
            a.e(f'ds_read_b64 {vr(20 + 2 * w, 2)}, v8 offset:{w * 8192}')
            a.tag_ds(f'o{w}')
        if self.o.get('lw_pos', 0) == 1:
            a.e(lwl)
            a.e(f's_cbranch_scc1 {l}')
            a.begin_skip()
        a.wait(ds='o1')
        a.e('v_pk_add_f32 v[20:21], v[20:21], v[22:23]')
        a.wait(ds='o3')
        a.e('v_pk_add_f32 v[24:25], v[24:25], v[26:27]')
        a.e('v_pk_add_f32 v[20:21], v[20:21], v[24:25]')
        a.e('v_cvt_pk_bf16_f32 v20, v20, v21')
        self.end_only(l)
        self.lstore([f'buffer_store_dword v20, v10, {WSL}, {oOApub} offen'])
        a.e('s_waitcnt lgkmcnt(0)')

    def w8(self, lw, t):
        return [f'v_max_f32_dpp {t}, {lw}, {lw} row_ror:4 {FULL}',
                f'v_max_f32_dpp {t}, {t}, {t} row_ror:2 {FULL}',
                f'v_max_f32_dpp {t}, {t}, {t} row_ror:1 {FULL}',
                f'v_sub_f32 {lw}, {lw}, {t}',
                f'v_exp_f32 {lw}, {lw}',
                f'v_add_f32_dpp {t}, {lw}, {lw} row_ror:4 {FULL}',
                f'v_add_f32_dpp {t}, {t}, {t} row_ror:2 {FULL}',
                f'v_add_f32_dpp {t}, {t}, {t} row_ror:1 {FULL}',
                f'v_rcp_f32 {t}, {t}']

    def rot8(self, dst, sh):
        a = self.a
        a.e(f'v_lshrrev_b32 {dst}, 4, v0')
        a.e(f'v_lshl_add_u32 {dst}, {dst}, 1, v0')
        a.e(f'v_and_b32 {dst}, 7, {dst}')
        a.e(f'v_lshlrev_b32 {dst}, {sh}, {dst}')

    def weigh2(self, skip=0, lw='v16', chk=False):
        a = self.a
        w = self.w8(lw, 'v17')
        for x in w[skip:6]:
            a.e(x)
        a.e('v_add_f32 v20, v20, v21')
        a.e('v_add_f32 v22, v22, v23')
        a.e(w[6])
        a.e('v_add_f32 v24, v24, v25')
        a.e('v_add_f32 v26, v26, v27')
        a.e(w[7])
        a.e(f'v_mul_f32_dpp v20, {lw}, v20 row_newbcast:0 {FULL}')
        a.e(f'v_mul_f32_dpp v24, {lw}, v24 row_newbcast:0 {FULL}')
        a.e(f'v_fmac_f32_dpp v20, {lw}, v22 row_newbcast:1 {FULL}')
        a.e(f'v_fmac_f32_dpp v24, {lw}, v26 row_newbcast:1 {FULL}')
        a.e(w[8])
        if chk:
            a.e('v_cmp_u_f32 vcc, v20, v20')
        a.e('v_permlane32_swap_b32 v20, v24')
        a.e('v_add_f32 v20, v20, v24')
        a.e('v_mul_f32 v20, v20, v17')

    def w8n(self, lw, t, W):
        return self.w8(lw, t) + [f'v_mul_f32_dpp v{W}, {lw}, {t} row_newbcast:0 {FULL}', f'v_mul_f32_dpp v{W + 1}, {lw}, {t} row_newbcast:1 {FULL}']

    def weigh2n(self, W, dup=None):
        a = self.a
        w = vr(W, 2)
        a.e(f'v_pk_mul_f32 v[20:21], v[20:21], {w} op_sel_hi:[1,0]')
        a.e(f'v_pk_fma_f32 v[20:21], v[22:23], {w}, v[20:21] op_sel:[0,1,0] op_sel_hi:[1,1,1]')
        a.e(f'v_pk_mul_f32 v[24:25], v[24:25], {w} op_sel_hi:[1,0]')
        a.e('v_add_f32 v20, v20, v21')
        a.e(f'v_pk_fma_f32 v[24:25], v[26:27], {w}, v[24:25] op_sel:[0,1,0] op_sel_hi:[1,1,1]')
        a.e('v_add_f32 v24, v24, v25')
        a.e('v_cmp_u_f32 vcc, v20, v20')
        a.e('v_permlane32_swap_b32 v20, v24')
        if dup:
            a.e(f'v_add_f32 {dup}, v20, v24')
        a.e('v_add_f32 v20, v20, v24')

    def outproj(self, isa):
        a = self.a
        if not isa:
            a.e(f's_add_u32 {t4}, {oO}, {L_OB - L_OA}')
        so = oO if isa else t4
        ld = [f'buffer_load_dwordx4 v[8:11], {vL16}, {WSL}, {so} offen sc1',
              f'buffer_load_dwordx4 v[12:15], {vL16}, {WSL}, {so} offen offset:1024 sc1']
        a.e('v_lshrrev_b32 v28, 4, v0')
        a.e('v_bfe_u32 v29, v0, 2, 2')
        a.e('v_lshl_add_u32 v28, v28, 3, v29')
        a.e('v_mul_u32_u24 v28, 48, v28')
        a.e('v_and_b32 v29, 3, v0')
        a.e('v_lshl_add_u32 v28, v29, 3, v28')
        a.e(f'v_add_u32 v28, {sW8}, v28')
        tr = []
        for blk in range(2):
            for tile in range(2):
                for hh in range(2):
                    for half in range(2):
                        off = (64 * blk + 32 * hh + 4 * half) * 48 + 32 * tile
                        tr.append(f'ds_read_b64_tr_b16 {vr(32 + 16 * tile + 8 * blk + 4 * hh + 2 * half, 2)}, v28 offset:{off}')
        a.e(f's_lshl_b32 {t2}, {sV}, 3')
        a.e(f's_add_u32 {t2}, {t2}, {ZO}')
        pre = ['v_and_b32 v18, 15, v0', 'v_lshrrev_b32 v19, 5, v0', 'v_lshl_add_u32 v18, v19, 4, v18', 'v_bfe_u32 v19, v0, 4, 1',
               'v_lshlrev_b32 v19, 2, v19', 'v_lshl_add_u32 v18, v18, 5, v19', f'v_add_u32 v18, {t2}, v18', f'v_mov_b32 v19, {ZO}',
               'v_and_b32 v29, 15, v0', 'v_lshl_add_u32 v19, v29, 6, v19', 'v_lshlrev_b32 v29, 2, v0']
        n1 = self.o.get('tr_pre', 8)
        if isa:
            a.e('s_waitcnt vmcnt(1)')
            a.vmq = []
        a.wait(vm='wo')
        for x in tr[:n1]:
            a.e(x)
        if isa:
            chk, again = a.lab('chk'), a.lab('again')
            a.e(f'{chk}:')
            a.e('v_cmp_eq_u32 vcc, -1, v16')
            a.e('v_mov_b32 v22, v16')
            self.retry_with([f'buffer_load_dword v16, v47, {WSL}, {oOALg} offen sc1'], 's_waitcnt vmcnt(1)', chk)
        self.sleep('h1' if isa else 'hd')
        for x in ld:
            a.e(x)
        if isa:
            pre = [x for p in zip(self.w8n('v22', 'v17', 30), pre) for x in p]
        self.mix(tr[n1:], pre)
        a.e(f's_add_u32 {t2}, {oYpub}, {G_YA if isa else G_YB}')
        if self.o.get('wq_hoist', 1):
            self.wq_prep('v17', 'v28')
        top = a.lab('poll')
        a.e(f'{top}:')
        for x in ld:
            self.H('o0', 0, 20)
            a.e(x)
        for r in range(26, 18, -2):
            a.e(f'v_mov_b64 {vr(r, 2)}, 0')
        self.K(0, 'po', True)
        a.e(f's_waitcnt vmcnt({len(ld)}) lgkmcnt(0)')
        a.e('v_cmp_u_f32 vcc, v8, v12')
        a.e('v_smfmac_f32_16x16x64_bf16 v[20:23], v[8:11], v[32:39], v1')
        a.e('v_smfmac_f32_16x16x64_bf16 v[20:23], v[12:15], v[40:47], v1')
        self.retry_to(top)
        a.e('v_smfmac_f32_16x16x64_bf16 v[24:27], v[8:11], v[48:55], v1')
        a.e('v_smfmac_f32_16x16x64_bf16 v[24:27], v[12:15], v[56:63], v1')
        self.stamp('ogot')
        if isa:
            self.weigh2n(30)
        else:
            a.e('v_pk_add_f32 v[20:21], v[20:21], v[22:23]')
            a.e('v_add_f32 v20, v20, v21')
            a.e('v_cmp_u_f32 vcc, v20, v20')
            a.e('v_pk_add_f32 v[24:25], v[24:25], v[26:27]')
            a.e('v_add_f32 v24, v24, v25')
            a.e('v_permlane32_swap_b32 v20, v24')
            a.e('v_add_f32 v20, v20, v24')
        a.e('ds_write_b32 v18, v20')
        self.H('o1', 0, 24)
        self.retry_to(top)
        a.e(f's_bitcmp0_b32 {sRES}, 0')
        self.H('o2', 0, 24)
        self.bar(1, True)
        l = a.lab('noy')
        a.e(f's_cbranch_scc1 {l}')
        a.begin_skip()
        for i in range(4):
            a.e(f'ds_read_b128 {vr(32 + 4 * i, 4)}, v19 offset:{16 * i}')
            a.tag_ds(f'z{i}')
            if i == 1:
                self.H('o3', 0, 24)
        a.e('s_mov_b32 exec_hi, 0')
        self.K(2)
        self.Wm()
        a.wait(ds='z1')
        a.e('v_pk_add_f32 v[32:33], v[32:33], v[34:35]')
        a.e('v_pk_add_f32 v[36:37], v[36:37], v[38:39]')
        a.e('v_pk_add_f32 v[32:33], v[32:33], v[36:37]')
        a.e('v_add_f32 v32, v32, v33')
        a.wait(ds='z3')
        a.e('v_pk_add_f32 v[40:41], v[40:41], v[42:43]')
        a.e('v_pk_add_f32 v[44:45], v[44:45], v[46:47]')
        a.e('v_pk_add_f32 v[40:41], v[40:41], v[44:45]')
        a.e('v_add_f32 v33, v40, v41')
        a.e('v_pk_add_f32 v[32:33], v[32:33], v[4:5]')
        a.e('v_cvt_pk_bf16_f32 v34, v32, v33')
        a.e(f'buffer_store_dword v34, v29, {WSG}, {t2} offen sc1')
        a.e('s_mov_b32 exec_hi, -1')
        a.end_skip()
        a.e(f'{l}:')
        self.stamp('ypub')

    def qabs(self):
        a = self.a
        a.e('v_and_b32 v36, 7, v0')
        a.e('v_lshlrev_b32 v37, 3, v36')
        self.oob(('v37', 'v37'), (0xc0c0c0c0, 0xc0c0c0c0))
        self.oob(('v33', vL16), (0xf000f000, 0xf000f000))
        a.e(f's_sub_u32 {t0}, {sW8}, {sKV}')
        a.e(f'v_add_u32 v56, {t0}, {vA}')
        for ks in range(1, 4):
            a.e(f'v_xor_b32 v{56 + ks}, {ks << 6}, v56')
        a.e('v_and_b32 v38, 8, v0')
        a.e('v_lshlrev_b32 v38, 3, v38')
        a.e('v_lshl_or_b32 v38, v36, 1, v38')
        a.e(f's_lshl_b32 {t0}, {sV}, 4')
        a.e(f's_add_u32 {t0}, {t0}, {ZQ}')
        a.e(f'v_add_u32 v38, {t0}, v38')
        a.e(f'v_add_u32 v39, {ZQ}, {vL16}')
        a.e(self.stats_const(32))
        if self.o.get('qflag', 1):
            chk, again = a.lab('chk'), a.lab('again')
            a.wait(vm='fl')
            a.e(f'{chk}:')
            a.e('v_cmp_eq_u32 vcc, -1, v10')
            self.retry_to(again)
            a.ool(f'{again}:\nbuffer_load_dword v10, v9, {WSL}, {oOALg} offen offset:{L_FL - L_OAL} sc1\ns_waitcnt vmcnt(1)\ns_branch {chk}')
        self.sleep('hqb')
        top = a.lab('poll')
        a.e(f'{top}:')
        a.e(f'buffer_load_dwordx2 v[34:35], v37, {WSL}, {oSTgB} offen sc1')
        a.tag_vm('st')
        for i in (2, 3, 0, 1):
            a.e(f'buffer_load_dwordx4 {vr(8 + 4 * i, 4)}, v33, {WSL}, {oQgB} offen offset:{i * 1024} sc1')
            a.tag_vm(f'q{i}')
        a.e('s_waitcnt vmcnt(5)')
        for ks in range(4):
            a.e(f'ds_read_b128 {vr(40 + 4 * ks, 4)}, v{56 + ks}')
            a.e(f'v_mov_b64 {vr(24 + 2 * ks, 2)}, 0')
        self.H('q1', 0, 60)
        a.wait(vm='st')
        a.e('v_cmp_u_f32 vcc, v34, v35')
        st = self.stats(34, 32)
        for x in st[:4]:
            a.e(x)
        self.retry_to(top)
        for x in st[4:6]:
            a.e(x)
        a.e('s_waitcnt lgkmcnt(0)')
        a.wait(vm='q2')
        a.e('v_smfmac_f32_16x16x64_bf16 v[28:31], v[16:19], v[40:47], v1')
        for x in st[6:]:
            a.e(x)
        a.wait(vm='q3')
        a.e('v_smfmac_f32_16x16x64_bf16 v[28:31], v[20:23], v[48:55], v1')
        self.H('q2', 0, 60)
        a.wait(vm='q0')
        a.e('v_smfmac_f32_16x16x64_bf16 v[24:27], v[8:11], v[40:47], v1')
        self.K(1, 'qb3', True)
        a.e('v_pk_add_f32 v[28:29], v[28:29], v[30:31]')
        a.e('v_add_f32 v28, v28, v29')
        a.e('v_mul_f32 v28, v28, v35')
        a.e(f's_cmp_lg_u32 {sV}, 0')
        self.K(0, 'qb4', True)
        a.wait(vm='q1')
        a.e('v_smfmac_f32_16x16x64_bf16 v[24:27], v[12:15], v[48:55], v1')
        self.stamp('qgotB', 2)
        a.e('v_pk_add_f32 v[24:25], v[24:25], v[26:27]')
        a.e('v_sub_f32 v24, v24, v28')
        a.e('v_add_f32 v24, v24, v25')
        a.e('v_mul_f32 v25, v24, v34')
        a.e('v_mul_f32 v24, v24, v34')
        a.e('v_cmp_u_f32 vcc, v24, v24')
        a.e('v_permlane32_swap_b32 v24, v25')
        a.e('v_add_f32 v26, v24, v25')
        a.e('v_add_f32 v24, v24, v25')
        a.e('v_permlane16_swap_b32 v24, v26')
        a.e('v_add_f32 v24, v24, v26')
        a.e('v_cvt_pk_bf16_f32 v24, v24, v24')
        a.e('ds_write_b16 v38, v24')
        self.retry_to(top)
        a.e('s_waitcnt lgkmcnt(0)')
        a.e('s_barrier')
        l = a.lab('notw')
        a.e(f's_cbranch_scc1 {l}')
        a.begin_skip()
        a.e('s_mov_b64 exec, 0xff')
        a.e('ds_read_b128 v[24:27], v39')
        a.e('s_waitcnt lgkmcnt(0)')
        a.e(f'buffer_store_dwordx4 v[24:27], {vL16}, {WSG}, {oQApub} offen sc1')
        a.e('s_mov_b64 exec, -1')
        self.end_only(l)
        self.stamp('qapub')
        self.touches('w3', 'v8', 'v9')
        self.resid_track(G_YA, 10, 'v8', f's_cmp_eq_u32 {sRES}, 3')

    def attn_b(self):
        a = self.a
        a.e(f's_mul_i32 {t0}, {sV}, {4096 - 16384}')
        a.e(f's_add_u32 {t0}, {t0}, {CKV}')
        a.e(f'v_add_u32 v56, {t0}, {vA}')
        a.e('v_xor_b32 v57, 64, v56')
        ORD = [(r, ks) for kp in range(2) for r in range(4) for ks in (2 * kp, 2 * kp + 1)]
        ga = ['v_and_b32 v58, 12, v0', 'v_lshlrev_b32 v58, 4, v58', 'v_and_or_b32 v58, v0, 48, v58', 'v_lshlrev_b32 v58, 2, v58',
              f'v_and_or_b32 v58, {vL16}, 48, v58', 'v_lshlrev_b32 v8, 7, v0', 'v_mov_b32 v9, 0']
        for x in ga:
            a.e(x)
        a.e(f'v_add_u32 v59, {STG}, {vL16}')
        a.e('s_barrier')

        self.lstore(self.clear_c1(12, 'v16', 'v17'))
        self.sleep('ha')
        top = a.lab('poll')
        a.e(f'{top}:')
        ld = [f's_mov_b32 m0, {sW8}', 's_mov_b32 exec_hi, 0', f'buffer_load_dword v9, v8, {WSG}, {oQAg} offen sc1', 's_mov_b32 exec_hi, -1']
        for ks in range(4):
            ld.append(f'buffer_load_dwordx4 v58, {WSG}, {oQAg} offen offset:{ks * 1024} sc1 lds')
        for x in ld:
            a.e(x)
        for k in range(8):
            r, ks = ORD[k]
            a.e(f'ds_read_b128 {vr(24 + 4 * k, 4)}, v{56 + (ks & 1)} offset:{r * 16384}')
        a.e('v_xor_b32 v56, 128, v56')
        a.e('v_xor_b32 v57, 128, v57')
        self.k64_addr('v10', None)
        l4 = self.o.get('l4_wo', 0)
        if l4 == 2:
            self.wo_prep(12, 'v15')
        chk, again = a.lab('chk'), a.lab('again')
        a.e(f'{chk}:')
        a.e('s_waitcnt vmcnt(4)')
        a.e('v_cmp_eq_u32 vcc, -1, v9')
        self.retry_with(ld, 's_nop 0', chk)
        pol = self.o.get('pol_wuv', '')
        for i in range(1, 4):
            a.e(f's_add_u32 {[t1, t2, t3][i - 1]}, {oWUV}, {i * (16 * 8192 - 1024)}')
        a.e('v_mov_b32 v58, v10')
        half = self.o.get('qa_half', 1)
        if l4 == 2:
            a.e(f's_cmp_eq_u32 {sIT}, 1')
            a.e(f's_cselect_b32 {t0}, {sKV}, 0x30000')
            a.e(f's_cselect_b32 {t4}, {oWO}, {OOB}')
            a.e(f's_cselect_b32 {t5}, {t5}, {OOB}')
            for x in self.wo_lines(BWO, 12, '', t0):
                a.e(x.replace(f', {oWO} ', f', {t4} '))
        ex = 6 if l4 == 2 else 0
        a.e(f's_waitcnt vmcnt({(2 if half else 0) + ex}) lgkmcnt(0)')
        a.e('s_barrier')
        self.stamp('qagot')

        def qread(k):
            r, ks = ORD[k]
            a.e(f'ds_read_b128 {vr(8 + 4 * (k & 3), 4)}, v59 offset:{r * 8192 + ks * 1024}')
            a.tag_ds(f'q{k}')
        for k in range(4):
            qread(k)
        a.e(f's_add_u32 m0, {sW8}, 4096')
        SLOT = [16, 40, 48]

        def tread(e, ad='v57'):
            l = [f'v_xor_b32 {ad}, {CKV | (e << 5)}, {vT}']
            for t in range(4):
                l.append(f'ds_read_b64_tr_b16 {vr(SLOT[e % 3] + 2 * t, 2)}, {ad} offset:{t * 4096}')
            return l
        for k in range(16):
            a.wait(ds=f'q{k}')
            a.e(f'v_mfma_f32_16x16x32_bf16 v[60:63], {vr(24 + 4 * (k & 7), 4)}, {vr(8 + 4 * (k & 3), 4)}, {"v[60:63]" if k else "0"}')
            if k < 8:
                r, ks = ORD[k + 8]
                a.e(f'ds_read_b128 {vr(24 + 4 * k, 4)}, v{56 + (ks & 1)} offset:{r * 16384}')
            if k == 4 and half:
                a.e(f's_waitcnt vmcnt({2 + ex})')
                a.e('s_barrier')
            if k + 4 < 16:
                qread(k + 4)
            if k in (0, 2, 4, 6):
                a.e(f'buffer_load_dwordx4 v58, {WUV}, {[oWUV, t1, t2, t3][k >> 1]} offen offset:{(k >> 1) * 1024} {pol} lds')
            if k == 10:
                a.e('s_barrier')
            if k == 8:
                a.e(f'v_and_b32 v58, 0xf0, {vL16}')
                a.e(f's_lshl_b32 {t0}, {sV}, 2')
            if k == 9:
                a.e(f'v_add_u32 v58, {STG}, v58')
                a.e(f's_add_u32 {t1}, {oC1pub}, 4096')
            if k == 11:
                a.e(f'v_add_u32 v24, {t0}, v58')
                a.e(f's_add_u32 {t2}, {oC1pub}, 8192')
            if k == 12:
                a.e('v_xor_b32 v56, 128, v56')
                a.e(f'v_lshl_add_u32 v25, v0, 3, {sW8}')
            if k == 13:
                t1_ = tread(1)
                a.e(t1_[0]); a.e(t1_[1])
            if k == 14:
                a.e(t1_[2]); a.e(t1_[3])
        a.e(t1_[4])
        t0_, t2_ = tread(0), tread(2)
        a.e(f'v_mov_b32 v26, {STG}')
        a.e('v_lshl_add_u32 v26, v0, 3, v26')
        a.e(f's_add_u32 {t3}, {oC1pub}, 12288')
        for r in range(36, 40):
            a.e(f'v_mov_b32 v{r}, 0x3f803f80')
        a.e('v_max3_f32 v28, v60, v61, v62')
        a.e('v_max_f32 v29, v28, v63')
        a.e('v_max_f32 v28, v28, v63')
        a.e(t0_[0]); a.e(t0_[1])
        a.e('v_permlane32_swap_b32 v28, v29')
        a.e('v_max_f32 v30, v28, v29')
        a.e('v_max_f32 v28, v28, v29')
        a.e(t0_[2]); a.e(t0_[3])
        a.e('v_permlane16_swap_b32 v28, v30')
        a.e('v_max_f32 v28, v28, v30')
        a.e('ds_write_b32 v24, v28')
        a.tag_ds('mw')
        a.e(t0_[4])
        a.e(t2_[0])
        self.H('b0', 1, 32)
        a.e(t2_[1]); a.e(t2_[2]); a.e(t2_[3]); a.e(t2_[4])
        self.H('b1', 1, 32)
        a.wait(ds='mw')
        a.e('s_barrier')
        a.e('ds_read_b128 v[28:31], v58')
        a.tag_ds('mr')
        self.stamp('sbar', 2)
        self.H('b2', 1, 32)
        a.wait(ds='mr')
        a.e('v_max3_f32 v28, v28, v29, v30')
        a.e('v_max_f32 v28, v28, v31')
        a.e('v_pk_add_f32 v[60:61], v[60:61], v[28:29] op_sel_hi:[1,0] neg_lo:[0,1] neg_hi:[0,1]')
        a.e('v_pk_add_f32 v[62:63], v[62:63], v[28:29] op_sel_hi:[1,0] neg_lo:[0,1] neg_hi:[0,1]')
        for r in range(60, 64):
            a.e(f'v_exp_f32 v{r}, v{r}')
        a.e('v_cvt_pk_bf16_f32 v30, v60, v61')
        a.e('v_cvt_pk_bf16_f32 v31, v62, v63')
        a.e('ds_write_b64 v25, v[30:31] offset:1024')
        a.e('v_lshrrev_b32 v61, 4, v0')
        a.e(f'v_and_b32 v60, 0xf0, {vL16}')
        a.e('v_lshl_or_b32 v61, v61, 16, v60')
        a.e('v_mov_b32 v62, v28')
        a.e('v_xor_b32 v57, 64, v56')
        a.e('v_and_b32 v27, 12, v0')
        a.e('v_lshlrev_b32 v27, 4, v27')
        self.H('b3', 1, 32)
        self.lcmp()
        a.e('s_waitcnt lgkmcnt(0)')
        a.e('s_barrier')
        a.e('ds_read2st64_b64 v[8:11], v26 offset0:2 offset1:18')
        a.tag_ds('p0')
        a.e('ds_read2st64_b64 v[12:15], v26 offset0:34 offset1:50')
        a.tag_ds('p1')
        self.stamp('smax', 2)
        a.e('v_and_or_b32 v27, v0, 3, v27')
        a.e('v_lshlrev_b32 v27, 3, v27')
        self.K(2, 'b4', True)
        ACC = [28, 56, 36, 32]
        a.wait(ds='p0')
        a.e('v_cmp_u_f32 vcc, v8, v8')
        a.e(f'v_mfma_f32_16x16x32_bf16 v[28:31], v[8:11], {vr(SLOT[0], 4)}, 0')
        a.e('v_mfma_f32_16x16x32_bf16 v[32:35], v[36:39], v[8:11], 0')
        again = a.lab('again')
        self.retry_to(again)
        a.ool(f'{again}:\n' + '\n'.join(['s_waitcnt lgkmcnt(0)'] + ga) + f'\ns_barrier\ns_branch {top}')
        a.wait(ds='p1')
        a.e('v_mfma_f32_16x16x32_bf16 v[32:35], v[36:39], v[12:15], v[32:35]')
        so = [oC1pub, t1, t2, t3]
        ml = ['s_mov_b64 exec, 0xffff', f'buffer_store_dwordx2 v[62:63], v27, {WSL}, {oMLpub} offen', 's_mov_b64 exec, -1']
        mlat = self.o.get('ml_at', 2)

        def pack(q):
            d0, d1 = ACC[(2 * q) & 3], ACC[(2 * q + 1) & 3]
            return [f'v_cvt_pk_bf16_f32 v{24 + r}, v{d0 + r}, v{d1 + r}' for r in range(4)]

        def put(q):
            self.lstore([f'buffer_store_dwordx4 v[24:27], v61, {WS}, {so[q]} offen'] + (ml if q == mlat else []))
        F = {e: [[], []] for e in range(8)}
        early = self.o.get('ml_early', 1)
        mlat = -1
        F[1][1] = ['v_mov_b32 v63, v32']
        F[self.o.get('ml_e', 2)][1] += ['ML']
        F[3][0] = pack(0)[:2]
        F[3][1] = pack(0)[2:]
        F[5][0] = pack(1)[:2]
        F[5][1] = pack(1)[2:]
        F[6][0] = ['v_and_b32 v60, 3, v0', 'v_lshlrev_b32 v60, 6, v60']
        F[6][1] = ['v_and_or_b32 v60, v0, 60, v60', 'v_lshlrev_b32 v60, 1, v60']
        F[7][0] = pack(2)
        for e in range(8):
            a.wait(ds=f't{e}')
            d = vr(ACC[e & 3], 4)
            s = SLOT[e % 3]
            nx = tread(e + 3, 'v60') if e + 3 < 8 else []
            if nx:
                a.e(nx[0])
            if e:
                a.e(f'v_mfma_f32_16x16x32_bf16 {d}, v[8:11], {vr(s, 4)}, 0')
            if e in (4, 6):
                put((e - 4) // 2)
            for x in nx[1:3]:
                a.e(x)
            for x in F[e][0]:
                a.e(x)
            a.e(f'v_mfma_f32_16x16x32_bf16 {d}, v[12:15], {vr(s + 4, 4)}, {d}')
            for x in nx[3:]:
                a.e(x)
            if nx:
                a.tag_ds(f't{e + 3}')
            for x in F[e][1]:
                if x == 'ML':
                    self.lstore(ml)
                else:
                    a.e(x)
            if e == 7:
                put(2)
        if early == 1:
            a.e(f'buffer_load_dwordx2 v[22:23], v60, {WSL}, {oMLg} offen sc1')
            a.tag_vm('ml0')
        for x in pack(3):
            a.e(x)
        put(3)
        if early == 2:
            a.e(f'buffer_load_dwordx2 v[22:23], v60, {WSL}, {oMLg} offen sc1')
            a.tag_vm('ml0')
        self.stamp('c1pub')

    def red(self):
        a = self.a
        ld = f'buffer_load_dwordx2 v[22:23], v60, {WSL}, {oMLg} offen sc1'
        a.e('v_and_b32 v45, 56, v0')
        a.e('v_lshlrev_b32 v45, 1, v45')
        a.e('v_and_or_b32 v45, v0, 6, v45')
        a.e('v_lshlrev_b32 v45, 1, v45')
        a.e(f'v_and_or_b32 v45, {vL16}, 16, v45')
        a.e('v_lshlrev_b32 v46, 2, v0')
        for r in range(28, 36, 2):
            a.e(f'v_mov_b64 {vr(r, 2)}, 0')
        ne = self.o.get('wo_e', 0)
        if ne:
            self.wo_prep(41, 'v39')
            a.e('s_barrier')
        cl = [f'buffer_load_dwordx4 {vr(8 + 4 * i, 4)}, {vL16}, {WS}, {oC1g} offen offset:{i * 1024} sc1' for i in range(4)]
        ch = [f'v_max_f32_dpp v36, v22, v22 quad_perm:[1,0,3,2] {FULL}',
              f'v_max_f32_dpp v37, v36, v36 quad_perm:[2,3,0,1] {FULL}', f'v_max_f32_dpp v36, v36, v36 quad_perm:[2,3,0,1] {FULL}',
              'v_permlane32_swap_b32 v36, v37', 'v_max_f32 v38, v36, v37', 'v_max_f32 v36, v36, v37',
              'v_permlane16_swap_b32 v36, v38', 'v_max_f32 v36, v36, v38', 'v_sub_f32 v24, v24, v36', 'v_exp_f32 v24, v24',
              'v_mul_f32 v25, v25, v24', f'v_add_f32_dpp v25, v25, v25 quad_perm:[1,0,3,2] {FULL}',
              f'v_add_f32_dpp v37, v25, v25 quad_perm:[2,3,0,1] {FULL}', f'v_add_f32_dpp v25, v25, v25 quad_perm:[2,3,0,1] {FULL}',
              'v_permlane32_swap_b32 v25, v37', 'v_add_f32 v38, v25, v37', 'v_add_f32 v25, v25, v37',
              'v_permlane16_swap_b32 v25, v38', 'v_add_f32 v25, v25, v38', 'v_rcp_f32 v38, v25', 'v_log_f32 v37, v25',
              'v_mul_f32 v24, v24, v38', 'v_add_f32 v37, v37, v36', 'v_cvt_pk_bf16_f32 v26, v24, 0', 'v_cvt_pk_bf16_f32 v27, 0, v24']
        chk, again = a.lab('chk'), a.lab('again')
        if self.o.get('ml_early', 1) == 4:
            self.sleep('mld')
            a.e(ld)
            a.tag_vm('ml0')
            if self.o.get('sleep', {}).get('mld2'):
                self.sleep('mld2')
                a.e(ld)
        a.wait(vm='ml0')
        a.e(f'{chk}:')
        a.e('v_cmp_u_f32 vcc, v22, v23')
        a.e(ch[0])
        a.e('v_mov_b64 v[24:25], v[22:23]')
        self.retry_with([ld], 's_waitcnt vmcnt(1)', chk)
        self.stamp('mlgot', 2)
        npre = self.o.get('red_pre', 8)
        for x in ch[1:npre]:
            a.e(x)
        self.sleep('hc1')
        for i, x in enumerate(cl):
            a.e(x)
            a.tag_vm(f'c{i}')
        for x in self.wo_group(BWO, 41, 0, ne):
            a.e(x)
        for x in ch[max(npre, 1):]:
            a.e(x)
        lwe = self.o.get('lw_early', 1)
        lws = ['s_mov_b32 exec_hi, 0', f'buffer_store_dword v37, v46, {WSG}, {oC2Lpub} offen sc1', 's_mov_b32 exec_hi, -1']
        if lwe == 1 or lwe == 3:
            if lwe == 3:
                a.e('s_barrier')
            for x in lws:
                a.e(x)
        self.H('r1', 0, 48)
        top, again = a.lab('acc'), a.lab('again')
        a.e(f'{top}:')
        for i in range(4):
            if i:
                self.K(0, 'rd', True)
            a.wait(vm=f'c{i}')
            for d in range(4):
                a.e(f'v_dot2c_f32_bf16_dpp v{28 + 2 * d}, v26, v{8 + 4 * i + d} row_newbcast:{4 * d + i} {FULL}')
                a.e(f'v_dot2c_f32_bf16_dpp v{29 + 2 * d}, v27, v{8 + 4 * i + d} row_newbcast:{4 * d + i} {FULL}')
        for i in range(4):
            a.e(f'v_permlane32_swap_b32 v{28 + i}, v{32 + i}')
        a.e('v_pk_add_f32 v[28:29], v[28:29], v[32:33]')
        a.e('v_pk_add_f32 v[30:31], v[30:31], v[34:35]')
        a.e('v_cmp_u_f32 vcc, v28, v30')
        a.e('v_permlane16_swap_b32 v28, v30')
        a.e('v_permlane16_swap_b32 v29, v31')
        a.e('v_pk_add_f32 v[28:29], v[28:29], v[30:31]')
        a.e('v_cvt_pk_bf16_f32 v28, v28, v29')
        self.retry_to(again)
        a.ool(f'{again}:\n' + '\n'.join(cl) + '\n' + '\n'.join(f'v_mov_b64 {vr(r, 2)}, 0' for r in range(28, 36, 2)) + f'\ns_waitcnt vmcnt(0)\ns_branch {top}')
        a.e(f'buffer_store_dword v28, v45, {WSG}, {oC2pub} offen sc1')
        if lwe == 2:
            for x in lws:
                a.e(x)
        self.stamp('c2pub')
        a.e('v_and_b32 v40, 4, v0')
        a.e('v_lshlrev_b32 v40, 4, v40')
        a.e('v_and_or_b32 v40, v0, 48, v40')
        a.e('v_lshlrev_b32 v40, 1, v40')
        a.e('v_and_or_b32 v40, v0, 11, v40')
        a.e(f'v_lshl_add_u32 v40, v40, 3, {sW8}')
        for tau in range(2):
            for gam in range(2):
                for tt in range(2):
                    a.e(f'ds_read_b64_tr_b16 {vr(48 + 8 * tau + 4 * gam + 2 * tt, 2)}, v40 offset:{4096 + (32 * gam + 2 * tt) * 64 + 32 * tau}')
        if not ne:
            self.wo_prep(41, 'v39')
        if self.o.get('wo_pre', 6) > 4:
            a.e('s_waitcnt lgkmcnt(0)')
        a.e('s_barrier')
        if self.o.get('x_wo'):
            a.e('s_waitcnt vmcnt(0)')
            self.stamp('x_ack')

        def clear2():
            b = self.a
            for r in range(8, 12):
                b.e(f'v_mov_b32 v{r}, -1')
            self.sums(t2, [(sJ, 4 * 448), (sV, 448)], L_IT)
            b.e('s_mov_b64 exec, 0xfffffff')
            self.lstore([f'buffer_store_dwordx4 v[8:11], {vL16}, {WSL}, {t2} offen'])
            b.e('s_mov_b64 exec, -1')
        npre = self.o.get('wo_pre', 6)
        for x in self.wo_group(BWO, 41, ne, npre):
            a.e(x)
        if npre == 6:
            a.tag_vm('wo')
        self.ool_if(f's_cmp_eq_u32 {sIT}, 0', clear2, lambda: self.sleep('hc4'))
        self.wol = self.wo_group(BWO, 41, npre, 6)
        if self.o.get('x_wo'):
            self.stamp('x_iss')
            a.e('s_waitcnt vmcnt(0)')
            self.stamp('x_land')

    def wb(self, where):
        a = self.a
        if self.o.get('wb') != where:
            return
        l = a.lab('nowb')
        self.sums(t1, [(sJ, 8), (sV, 2), (sIT, 1)])
        a.e(f's_cmp_lg_u32 {t1}, {24 * 8 + 1}')
        a.e(f's_cbranch_scc1 {l}')
        a.begin_skip()
        a.e('buffer_wbl2 sc1')
        self.end_only(l)

    def uv(self):
        a = self.a
        a.e('v_lshrrev_b32 v28, 1, v0')
        a.e('v_and_or_b32 v28, v28, 16, 0')
        a.e('v_and_or_b32 v28, v0, 14, v28')
        a.e('v_lshlrev_b32 v28, 6, v28')
        a.e('v_and_or_b32 v28, v0, 16, v28')
        a.e('v_lshlrev_b32 v28, 1, v28')
        a.e(f'v_and_or_b32 v28, {vL16}, 16, v28')
        self.rot8('v29', 7)
        self.pos_bytes('v30', None)
        a.e('v_and_b32 v31, 32, v0')
        a.e('v_lshl_or_b32 v30, v31, 3, v30')
        self.oob(('v30', 'v30'), (0xffffaaaa, 0xffffaaaa))
        self.touches('w5', 'v12', 'v13')
        a.e('s_waitcnt lgkmcnt(0)')
        self.sleep('hc2')
        ld = [f'buffer_load_dword v16, v29, {WSG}, {oC2Lg} offen sc1',
              f'buffer_load_dwordx4 v[8:11], v28, {WSG}, {oC2g} offen sc1']
        z = [f'v_mov_b64 {vr(r, 2)}, 0' for r in range(20, 28, 2)]
        lwe = self.o.get('lw_early', 1)
        a.e(ld[0])
        a.tag_vm('lw')
        if lwe:
            self.sleep('hc2b')
        a.e(ld[1])
        a.tag_vm('c2')
        for x in z:
            a.e(x)
        for x in self.wol:
            a.e(x)
        if self.wol:
            a.tag_vm('wo')
        top, top2 = a.lab('chk'), a.lab('chk')
        w = self.w8n('v16', 'v17', 18)
        a.wait(vm='lw')
        a.e(f'{top}:')
        a.e('v_cmp_eq_u32 vcc, -1, v16')
        for x in w[:3]:
            a.e(x)
        self.retry_with([ld[0]], 's_waitcnt vmcnt(0)', top)
        for x in w[3:]:
            a.e(x)
        self.H('u1', 0, 12)
        a.wait(vm='c2')
        a.e(f'{top2}:')
        a.e('v_cmp_u_f32 vcc, v8, v8')
        a.e('v_smfmac_f32_16x16x64_bf16 v[20:23], v[8:11], v[48:55], v1')
        a.e('v_smfmac_f32_16x16x64_bf16 v[24:27], v[8:11], v[56:63], v1')
        self.retry_with([ld[1], 's_nop 7'] + z, 's_waitcnt vmcnt(0)', top2)
        self.stamp('c2got', 2)
        self.weigh2n(18, 'v21')
        a.e('v_permlane16_swap_b32 v20, v21')
        a.e('v_add_f32 v20, v20, v21')
        self.retry_with([ld[1]] + z, 's_waitcnt vmcnt(0)', top2)
        a.e(f'v_mov_b32_dpp v21, v20 quad_perm:[1,0,3,2] {FULL}')
        a.e('v_cvt_pk_bf16_f32 v20, v20, v21')
        self.lstore([f'buffer_store_dword v20, v30, {WSL}, {oOBpub} offen'])
        self.stamp('dpub')
        self.wb('dpub')

    def attn_a3(self):
        a = self.a
        self.qa_addr(44)
        self.sleep('hqa')
        ld = self.qa_loads(8, 12, 44)
        for x in ld:
            a.e(x)
        a.e('v_mov_b64 v[20:21], 0')
        a.e(f'v_lshl_add_u32 v17, v0, 3, {sW8}')
        a.e('ds_write_b64 v17, v[20:21] offset:6656')
        a.e(f's_add_u32 {t0}, {sW8}, 6656')
        a.e(f'v_mov_b32 v17, {t0}')
        a.e(f's_mov_b32 s22, {self.o.get("rowm", 0x000f000f)}')
        a.e(f's_mov_b32 s23, {self.o.get("rowm", 0x000f000f)}')
        for c in range(4):
            a.e(f'v_cndmask_b32 v{56 + c}, v17, v46, s[22:23]')
            a.e('s_lshl_b64 s[22:23], s[22:23], 4')
        self.p_addr('v60', 'v17')
        self.wo_prep(61, 'v17')
        for r in (16, 24, 28):
            a.e(f'v_mov_b64 {vr(r, 2)}, 0')
        a.e(self.stats_const(39))
        self.pipe_poll(ld, 'v38', [8, 12], 'pq', ['v_mov_b64 v[36:37], v[12:13]', 'v_mov_b64 v[32:33], v[8:9]', 'v_mov_b64 v[34:35], v[10:11]'])
        top = self.ptop
        self.stamp('qgotA', 2)
        self.qa_finish(32, 36, 44, None, 39, True)
        a.e('v_lshlrev_b32 v33, 16, v32')
        a.e('v_cmp_u_f32 vcc, v33, v33')
        a.e(f's_sub_u32 {t2}, {sW8}, {ZQ - 6144}')
        a.e(f's_cmp_eq_u32 {sV}, 0')
        a.e(f's_cselect_b32 {t3}, {oOALpub}, {OOB}')
        a.e(f's_mov_b32 s22, {self.o.get("rowm", 0x000f000f)}')
        a.e(f's_mov_b32 s23, {self.o.get("rowm", 0x000f000f)}')
        self.H('a1', 1, 52)
        self.retry_to(top)
        a.e('s_waitcnt vmcnt(0) lgkmcnt(0)')
        a.e('s_barrier')
        self.H('a2', 1, 8)

        def qrd(c, b):
            a.e(f'ds_read_b128 {vr(32 + 8 * (c % 3) + 4 * b, 4)}, v{56 + c} offset:{128 * b}')
            a.tag_ds(f'q{c}{b}')
        for c in range(3):
            qrd(c, 0)
            qrd(c, 1)
        if self.o.get('wo3', 0):
            self.touch('wo', 'v15', None)
        self.stamp('qrdy')
        ds, va = [], []
        for e in range(8):
            for t in range(4):
                ds.append((e, f'ds_read_b64_tr_b16 a[{8 * e + 2 * t}:{8 * e + 2 * t + 1}], v{14 + (e & 1)} offset:{t * 4096}'))
        wl = self.wo_lines(WO, 61, self.o.get('pol_wo3', ''))
        other = {2: wl[0], 3: wl[1], 7: wl[2], 11: wl[3], 13: wl[4], 15: wl[5], 19: wl[6], 23: wl[7],
                 5: 'v_mov_b64 v[8:9], 0', 6: 'v_mov_b64 v[12:13], 0', 8: f'v_mov_b32 v10, {t2}'}
        wo3 = self.o.get('wo3', 0)
        late = {}
        if wo3:
            for k in (2, 3, 7, 11, 13, 15, 19, 23):
                del other[k]
            pos = {1: (0, 1, 4, 7, 9, 10, 13, 16), 2: (8, 9, 12, 15, 17, 18, 21, 24)}[wo3]
            late = dict(zip(pos, wl))
        for e, k in enumerate((4, 10, 14, 18, 22, 26, 30), 1):
            other[k] = f'v_xor_b32 v{14 + (e & 1)}, {e << 5}, {vT}'
        pc = []
        for c in range(4):
            pc.append('v_cndmask_b32 v11, 0, v10, s[22:23]')
            pc.append(f'v_add_u32 v{56 + c}, v{56 + c}, v11')
            if c < 3:
                pc.append('s_lshl_b64 s[22:23], s[22:23], 4')
        a.e(f'v_mov_b32 v14, {vT}')
        for k in range(32):
            c, r, b = k >> 3, (k >> 1) & 3, k & 1
            if k < 2:
                a.wait(ds=f'q{c}{b}')
            elif k == 8:
                a.wait(ds='q21')
            elif k == 24:
                a.wait(ds='q31')
            t = k >> 1
            a.e(f'v_smfmac_f32_16x16x64_bf16 {vr(16 + 4 * r, 4)}, {vr(32 + 8 * (c % 3) + 4 * b, 4)}, a[{16 * t + 8 * b}:{16 * t + 8 * b + 7}], v1')
            if k in (8, 9):
                qrd(3, k - 8)
            elif k >= 1:
                a.e(ds.pop(0)[1])
            if k in other:
                a.e(other[k])
        for r in range(4):
            if ds:
                a.e(ds.pop(0)[1])
            a.e(f'v_add_f32 v{16 + r}, v{16 + 4 * r}, v{17 + 4 * r}')
        self.softmax_a(16, 20, 'v60', pc)

        def prd(j):
            a.e(f'ds_read_b128 {vr(32 + 4 * (j % 6), 4)}, v{56 + (j >> 2)} offset:{128 * (j & 3)}')
            a.tag_ds(f'p{j}')
        RD = self.o.get('pring', 4)
        self.H('a3', 1, 24)
        for j in range(RD):
            prd(j)
        self.stamp('smaxA')
        ls = self.lsum('v21', 16)
        mw = self.ml_write(20)
        for x in ls[:2] + mw[:2] + ls[2:3] + mw[2:4] + ls[3:4]:
            a.e(x)
        Q1, Q2 = f'quad_perm:[1,0,3,2] {FULL}', f'quad_perm:[2,3,0,1] {FULL}'
        fill = {0: ls[4], 1: ls[5], 2: ls[6], 3: ls[7], 4: mw[4], 6: 'v_and_b32 v23, 3, v0', 8: 'BAR',
                9: f'v_lshl_add_u32 v23, v23, 3, s23\nds_read_b64 v[24:25], v23', 13: 'MLW',
                14: f'v_max_f32_dpp v22, v24, v24 {Q1}', 15: f'v_max_f32_dpp v22, v22, v22 {Q2}',
                16: f'v_sub_f32 v24, v24, v22', 17: 'v_exp_f32 v24, v24', 18: 'v_mul_f32 v19, v24, v25',
                20: f'v_add_f32_dpp v19, v19, v19 {Q1}', 22: f'v_add_f32_dpp v19, v19, v19 {Q2}', 23: 'v_log_f32 v25, v19',
                24: 'v_add_f32 v25, v25, v22', 25: 'LW', 26: f'v_sub_f32 v18, {sM}, v25', 27: 'v_exp_f32 v18, v18',
                28: 'v_lshrrev_b32 v23, 4, v0', 29: 'v_lshl_add_u32 v23, v23, 1, v0', 30: 'v_and_b32 v23, 7, v23'}
        a.e(f's_mov_b32 s23, {ZML}')
        for j in range(16):
            c, U = j >> 2, j & 3
            for hf in range(2):
                e = c + 4 * hf
                if hf == 0 and (j < 2 or j & 1 == 0):
                    a.wait(ds=f'p{j if j < 2 else j + 1}')
                B = vr(64 + 64 * U + 8 * e, 8) if U < 3 else f'a[{8 * e}:{8 * e + 7}]'
                a.e(f'v_smfmac_f32_16x16x64_bf16 {vr(8 + 4 * hf, 4)}, {vr(32 + 4 * (j % 6), 4)}, {B}, v1')
                if 2 * j + hf in late:
                    a.e(late[2 * j + hf])
                if hf == 1 and j + RD < 16:
                    prd(j + RD)
                x = fill.pop(2 * j + hf, None)
                if x == 'BAR':
                    a.wait(ds='mlw')
                    a.e('s_barrier')
                elif x == 'MLW':
                    a.wait(ds='mlr')
                elif x == 'LW':
                    self.lstore([f'buffer_store_dword v25, off, {WSL}, {t3}'])
                elif x:
                    a.e(x)
                    if 'ds_write_b64' in x:
                        a.tag_ds('mlw')
                    if 'ds_read_b64' in x:
                        a.tag_ds('mlr')
        assert not fill
        a.e(f'v_lshl_add_u32 v46, v0, 2, {sW8}')
        a.e('v_lshlrev_b32 v47, 2, v23')
        a.e('v_add_f32 v44, v8, v9')
        a.e('v_add_f32 v45, v12, v13')
        a.e('v_pk_mul_f32 v[44:45], v[44:45], v[18:19] op_sel_hi:[1,0]')
        self.stamp('pvA')

    def dma_tile(self, t):
        a = self.a
        pol = self.o.get('pol_kv', 'nt')
        srd = K_ if t < 16 else V_
        a.e(f's_add_u32 m0, {sKV}, {(t & 3) * 4096}')
        a.e(f's_add_u32 {t0}, {sKG}, {(t & 15) * 16384}')
        for q in range(4):
            a.e(f'buffer_load_dwordx4 v{8 + q}, {srd}, {t0} offen offset:{q * 1024} {pol} lds')
        a.tag_vm(f'tile{t}')

    def make_items(self):
        o = self.o
        pol, polc = o.get('pol_kv', 'nt'), o.get('pol_c', '')
        extra = {}
        c0, cs = o.get('ckv_from', 44), o.get('ckv_step', 2)
        for i in range(16):
            t, q = i >> 2, i & 3
            extra.setdefault(c0 + cs * i, []).append((f'c{i}', [
                f's_add_u32 m0, {sKV}, {CKV + i * 1024}', f'v_add_u32 v238, v{8 + q}, v254', f's_add_u32 {t0}, s1, {(16 * t + 4 * q) * 1024}',
                f'buffer_load_dwordx4 v238, {CK}, {t0} offen {polc} lds']))
        w0, wstep = o.get('wo_from', 52), o.get('wo_step', 4)
        for k in range(6):
            h, i = divmod(k, 3)
            extra.setdefault(w0 + wstep * k, []).append((f'w{k}', [
                f's_add_u32 m0, {sW8}, {h * 3072}', f's_add_u32 {t0}, {oWO}, {h * 64 * 1152}',
                f'buffer_load_dwordx4 v{(246, 247, 255)[i]}, {WO}, {t0} offen offset:{i * 1024} lds']))
        items = []
        self.extra = {tag: lines for v in extra.values() for tag, lines in v}
        for d in range(128):
            t, q = d >> 2, d & 3
            items.append((f'tile{t}' if q == 3 else f'd{d}', [
                f's_add_u32 m0, {sKV}, {(t & 3) * 4096}', f's_add_u32 {t0}, {sKG}, {(t & 15) * 16384}',
                f'buffer_load_dwordx4 v{8 + q}, {K_ if t < 16 else V_}, {t0} offen offset:{q * 1024} {pol} lds']))
        self.items = items
        self.pos = {tag: k for k, (tag, _) in enumerate(items)}
        self.issued = 0
        self.done_tile = -1
        self.lnq_done = False

    def issue_to(self, n):
        a = self.a
        prev = None
        lim = self.pos[f'tile{min(self.done_tile + 4, 31)}'] + 1
        while self.issued < min(n, lim):
            tag, lines = self.items[self.issued]
            if tag[0] == 'w':
                assert self.lnq_done, 'w_o staged before the q weights were read'
            assert tag[0] in 'td' or 2 < self.done_tile < 26
            for x in (lines if lines[:2] != prev else lines[2:]):
                a.e(x)
            a.tag_vm(tag)
            prev = lines[:2]
            self.issued += 1

    def prologue(self):
        a = self.a
        self.make_items()
        a.e('s_cmp_ge_u32 s2, 256')
        a.e('s_cbranch_scc1 L_end')
        if self.o.get('diag_fixed'):
            a.e('s_memrealtime s[100:101]')
        if self.o.get('stamps'):
            a.e('s_memtime s[98:99]' if self.o.get('clk') else 's_memrealtime s[98:99]')
        a.e('s_load_dwordx2 s[4:5], s[0:1], 8')
        ptrs = [(V_, 16), (CK, 48), (DBG, 96), (XIN, 0), (WQ, 24), (WO, 32), (BWQ, 56), (WUK, 64), (WUV, 72), (BWO, 80),
                (WS, 104), (OUT, 88)]
        sizes = {K_: 1 << 26, V_: 1 << 26, CK: 1 << 23, DBG: 256, XIN: 1152, WQ: 576 * 8192, WO: 4096 * 1152,
                 BWQ: 576 * 8192, WUK: 1 << 22, WUV: 1 << 22, BWO: 4096 * 1152, WS: WS_SIZE, WSL: L_X, WSG: G_IT, OUT: 1152}
        base = lambda s: int(s[2:s.index(':')])
        if self.o.get('code0', 1):
            a.e('s_getpc_b64 s[82:83]')
            a.e('L_pc:')
            a.e('s_and_b32 s3, s2, 0xf8')
            a.e('v_lshrrev_b32 v62, 5, v0')
            a.e('v_add_lshl_u32 v62, v62, s3, 7')
            a.e('v_min_u32 v62, L_codeend-L_pc, v62')
            a.e('global_load_dword v61, v62, s[82:83]')
        a.e('v_lshrrev_b32 v1, 6, v0')
        a.e('v_mov_b32 v63, v0')
        a.e(f'v_readfirstlane_b32 {sV}, v1')
        a.e('v_and_b32 v0, 63, v0')
        a.e(f's_and_b32 {sX}, s2, 7')
        a.e(f's_lshr_b32 {sJ}, s2, 3')
        a.e(f's_lshl_b32 {sKV}, {sV}, 14')
        self.sums(sKG, [(sX, 1 << 23), (sJ, 1 << 18), (sV, 1 << 12)])
        a.e(f'v_lshlrev_b32 {vL16}, 4, v0')
        a.e('v_and_b32 v12, 48, v0')
        a.e('v_lshlrev_b32 v12, 1, v12')
        a.e(f'v_xor_b32 v8, v12, {vL16}')
        for q in range(1, 4):
            a.e(f'v_xor_b32 v{8 + q}, {TBL[q] << 4}, v8')
        a.e(f's_mov_b32 s6, {sizes[K_]}')
        a.e('s_mov_b32 s7, 0x20000')
        a.e('s_waitcnt lgkmcnt(0)')
        for t in range(4):
            self.issue_to(min(4 * t + 4, self.o.get('win0', 8)))
            for srd, off in ptrs[3 * t:3 * t + 3]:
                b = base(srd)
                a.e(f's_load_dwordx2 s[{b}:{b + 1}], s[0:1], {off}')
        for srd, n in sizes.items():
            if srd != K_:
                a.e(f's_mov_b32 s{base(srd) + 2}, {n}')
                a.e(f's_mov_b32 s{base(srd) + 3}, 0x20000')
        if not self.o.get('code0', 1):
            a.e(f's_getpc_b64 s[82:83]')
            a.e('L_pc:')
            a.e('v_lshlrev_b32 v62, 7, v63')
            a.e(f'v_min_u32 v62, L_codeend-L_pc, v62')
            a.e('global_load_dword v61, v62, s[82:83]')
        a.e(f's_lshr_b32 {t1}, {sJ}, 3')
        self.sums(sH, [(sX, 4), (t1, 1)])
        a.e(f's_and_b32 {sS}, {sJ}, 7')
        a.e(f's_mov_b32 {sIT}, 0')
        a.e(f's_mov_b32 {sPOLL}, 0')
        a.e(f's_mov_b32 {sST}, 0')
        self.sums(sW8, [(sV, 8192)], STG)
        a.e('s_mov_b32 s84, 0x00ff00ff')
        a.e('s_mov_b32 s85, 0x00ff00ff')
        a.e(f's_mul_i32 {t2}, {sJ}, 43')
        a.e(f's_lshr_b32 {t2}, {t2}, 8')
        a.e(f's_mul_i32 {t3}, {t2}, 6')
        a.e(f's_sub_u32 {t3}, {sJ}, {t3}')
        self.sums(oY, [(t3, 512), (sV, 128)])
        self.sums(oQA, [(t2, 4096), (sV, 1024), (t3, 128)], L_QA)
        self.sums(oQB, [(t2, 4096), (sV, 512), (t3, 32)], L_QB)
        self.sums(oST, [(t2, 64), (t3, 8)], L_STA)
        self.sums(oWQ, [(t3, 96 * 8192), (sV, 24 * 8192), (sX, 1024), (t2, 256)])
        a.e(f's_cmp_eq_u32 {sV}, 0')
        a.e(f's_cselect_b32 {oST}, {oST}, {OOB}')
        a.e(f's_cmp_lt_u32 {sJ}, 24')
        for r in (oQA, oST, oWQ):
            a.e(f's_cselect_b32 {r}, {r}, {OOB}')
        self.sums(oQgA, [(t1, 4096), (sV, 1024)], L_QA)
        self.sums(oSTgA, [(t1, 64)], L_STA)
        self.sums(oWUV, [(sS, 64 * 8192), (sH, 256), (sV, 64)])
        self.sums(oWUK, [(sJ, 16 * 8192), (sX, 1024), (sV, 256)])
        self.sums(oWO, [(sX, 512 * 1152), (sV, 128 * 1152), (sJ, 48)])
        self.sums(oYpub, [(sX, 3072), (sJ, 128)])
        if self.o.get('asym'):
            a.e(f's_getreg_b32 {t0}, hwreg(HW_REG_XCC_ID, 0, 3)')
            a.e(f's_lshr_b32 {t0}, {self.o["asym"][0]}, {t0}')
            a.e(f's_lshl_b32 {t0}, {t0}, 31')
            a.e(f's_or_b32 {oYpub}, {oYpub}, {t0}')
        a.e(f's_cmp_lt_u32 {sJ}, 24')
        a.e(f's_cselect_b32 {oWO}, {oWO}, {OOB}')
        a.e(f's_cselect_b32 {sRES}, 1, 0')
        a.e(f's_cmp_eq_u32 {sV}, 3')
        a.e(f's_cselect_b32 {sRES}, {sRES}, 0')
        a.e(f's_mul_i32 {t0}, {sRES}, 3')
        a.e(f's_cmp_eq_u32 {sX}, 0')
        a.e(f's_cselect_b32 {sRES}, {t0}, {sRES}')
        if self.o.get('stamps'):
            a.e('v_mov_b32 v7, 0')
            a.e('s_mov_b32 s97, 8')
        a.e('v_and_b32 v14, 1, v0')
        a.e('v_mul_u32_u24 v1, 0xaaaa, v14')
        a.e('v_add_u32 v1, 0x4444, v1')

        def tbl(dst, x, tmp):
            a.e(f'v_lshrrev_b32 {tmp}, 1, {x}')
            a.e(f'v_xor_b32 {dst}, {x}, {tmp}')
            a.e(f'v_and_b32 {dst}, 1, {dst}')
            a.e(f'v_lshl_or_b32 {dst}, {dst}, 3, {tmp}')
        a.e('v_lshrrev_b32 v12, 4, v0')
        a.e('v_and_b32 v13, 15, v0')
        a.e('v_lshrrev_b32 v15, 2, v13')
        tbl('v16', 'v15', 'v17')
        a.e('v_and_b32 v17, 3, v13')
        a.e('v_lshlrev_b32 v18, 1, v17')
        a.e('v_xor_b32 v16, v16, v18')
        a.e('v_xor_b32 v16, v16, v12')
        a.e('v_lshlrev_b32 v16, 4, v16')
        a.e(f'v_lshl_or_b32 {vA}, v13, 8, v16')
        a.e(f'v_add_u32 {vA}, {sKV}, {vA}')
        tbl('v16', 'v12', 'v18')
        a.e('v_lshlrev_b32 v18, 1, v15')
        a.e('v_xor_b32 v16, v16, v18')
        a.e('v_lshrrev_b32 v18, 1, v17')
        a.e('v_xor_b32 v16, v16, v18')
        a.e('v_lshlrev_b32 v16, 4, v16')
        a.e('v_lshrrev_b32 v18, 2, v0')
        a.e('v_lshl_or_b32 v16, v18, 8, v16')
        a.e(f'v_lshl_or_b32 {vT}, v14, 3, v16')
        a.e(f'v_add_u32 {vT}, {sKV}, {vT}')
        a.e('s_waitcnt lgkmcnt(0)')
        self.stamp('start')
        w, l, g = base(WS), base(WSL), base(WSG)
        a.e(f's_lshl_b32 {t0}, {sX}, 17')
        a.e(f's_add_u32 s{l}, s{w}, {t0}')
        a.e(f's_addc_u32 s{l + 1}, s{w + 1}, 0')
        a.e(f's_add_u32 s{g}, s{w}, {GB}')
        a.e(f's_addc_u32 s{g + 1}, s{w + 1}, 0')
        self.dma_wq(WQ, 'v56', 'v57')
        self.lnq_rows()
        a.e(f's_mul_i32 {t0}, {t3}, 192')
        a.e('v_mul_u32_u24 v58, 3, v0')
        a.e('s_mov_b32 exec_lo, 0x00010001')
        a.e('s_mov_b32 exec_hi, 0x00010001')
        for rho in range(3):
            a.e(f'buffer_load_dwordx4 {vr(16 + 4 * rho, 4)}, v58, {XIN}, {t0} offen offset:{16 * rho}')
        a.e('s_mov_b64 exec, -1')
        a.e('v_lshlrev_b32 v58, 2, v0')
        a.e(f's_mul_i32 {t0}, {sJ}, 48')
        a.e(f's_cmp_eq_u32 {sRES}, 3')
        a.e(f's_cselect_b32 {t0}, {t0}, {OOB}')
        a.e(f'buffer_load_dword v5, v58, {XIN}, {t0} offen')
        for r in range(56, 60):
            a.e(f'v_mov_b32 v{r}, -1')
        self.sums(t4, [(sX, L_X), (sJ, 2560), (sV, 640)])
        self.sums(t1, [(sX, 128 * 384), (sJ, 4 * 384), (sV, 384)], GB)
        a.e('s_mov_b32 exec_hi, 0xff')
        a.e(f'buffer_store_dwordx4 v[56:59], {vL16}, {WS}, {t4} offen sc1')
        a.e('s_mov_b64 exec, 0xffffff')
        a.e(f'buffer_store_dwordx4 v[56:59], {vL16}, {WS}, {t1} offen sc1')
        a.e('s_mov_b64 exec, -1')
        a.tag_vm('clr')
        for ks in range(4):
            a.e(f'v_xor_b32 v{12 + ks}, {ks << 6}, {vA}')

    def late_scalars(self):
        a = self.a
        if self.o.get('asym'):
            a.e(f's_bitset0_b32 {oYpub}, 31')
        a.e(f's_lshr_b32 {t1}, {sJ}, 3')
        a.e(f's_and_b32 {t2}, {sJ}, 1')
        a.e(f's_lshr_b32 {t3}, {sJ}, 1')
        a.e(f's_lshr_b32 {t4}, {sX}, 2')
        a.e(f's_and_b32 {t5}, {sX}, 3')
        self.sums(oQgB, [(sV, 4096)], L_QB)
        self.sums(oSTgB, [(sV, 64)], L_STB)
        self.sums(oQApub, [(t4, 16384), (t3, 1024), (t5, 256), (t2, 128)], G_QABS)
        self.sums(oQAg, [(t2, 16384), (sV, 4096)], G_QABS)
        self.sums(oC1pub, [(sX, 1 << 19), (t2, 1 << 18), (sV, 16384), (t3, 256)], CB)
        self.sums(oMLpub, [(t2, 2048), (t3, 32)], L_C1ML)
        self.sums(oC1g, [(sX, 1 << 19), (sJ, 16384), (sV, 4096)], CB)
        a.e(f's_lshr_b32 {t4}, {sJ}, 2')
        self.sums(oMLg, [(t4, 512)], L_C1ML)
        self.sums(oC2pub, [(sJ, 8192), (sV, 2048), (sX, 256)], G_C2)
        self.sums(oC2Lpub, [(t4, 1024), (sX, 128)], G_C2L)
        a.e(f's_and_b32 {t4}, {sJ}, 3')
        a.e(f's_cselect_b32 {oC2Lpub}, {OOB}, {oC2Lpub}')
        self.sums(oC2g, [(sX, 32768), (sS, 4096), (t1, 64)], G_C2)
        self.sums(oC2Lg, [(sX, 1024), (t1, 16)], G_C2L)
        self.sums(oOBpub, [(t1, 2048), (sV, 512), (sS, 32)], L_OB)
        self.sums(oOApub, [(t1, 2048), (sS, 32)], L_OA)
        self.sums(oOALpub, [(sJ, 4)], L_OAL)
        self.sums(oOALg, [(sV, 32)], L_OAL)
        self.sums(oRES, [(sJ, 128)])
        self.sums(oO, [(sV, 2048)], L_OA)
        a.e(f's_cmp_eq_u32 {sV}, 0')
        a.e(f's_cselect_b32 {oMLpub}, {oMLpub}, {OOB}')
        a.e(f's_cselect_b32 {oOApub}, {oOApub}, {OOB}')
        a.e(f's_cselect_b32 {oC2Lpub}, {oC2Lpub}, {OOB}')

    def pv_block(self, U):
        a = self.a
        self.sp_addr('v63', sW8)
        a.e(f'ds_read_b128 v[20:23], v63 offset:{6144 + 128 * U}')
        a.e('s_waitcnt lgkmcnt(0)')
        for e in range(8):
            a.e(f'v_smfmac_f32_16x16x64_bf16 {vr(24 + 4 * e, 4)}, v[20:23], {vr(64 + 64 * U + 8 * e, 8)}, v1')

    def stream(self):
        a = self.a
        o = self.o
        landed = 0
        for t in range(28):
            win = o.get('win', 6) if t < o.get('wide_at', 99) else o.get('wide', 12)
            while landed <= self.pos[f'tile{t}']:
                if self.issued < landed + 1 + win or landed == self.pos[f'tile{t}']:
                    a.wait(vm=self.items[landed][0])
                    if o.get('sstamps') and t % 4 == 0 and landed == self.pos[f'tile{t}']:
                        self.stamp(f't{t}')
                    self.issue_to(landed + 1 + win)
                landed += 1
            slot = (t & 3) * 4096
            if t < 16:
                for ks in range(4):
                    a.e(f'ds_read_b128 a[{16 * t + 4 * ks}:{16 * t + 4 * ks + 3}], v{12 + ks} offset:{slot}')
            else:
                u = t - 16
                if u == 0:
                    for e in range(8):
                        a.e(f'v_xor_b32 v{12 + e}, {e << 5}, {vT}')
                for e in range(8):
                    a.e(f'ds_read_b64_tr_b16 {vr(64 + 64 * (u >> 2) + 8 * e + 2 * (u & 3), 2)}, v{12 + e} offset:{slot}')
            a.e('s_waitcnt lgkmcnt(0)')
            self.done_tile = t
            self.issue_to(landed + win + o.get('boost', {}).get(str(t), 0) if t < 27 else 999)
            if t == 2:
                a.e('v_lshrrev_b32 v254, 4, v0')
                a.e('v_mul_u32_u24 v254, 768, v254')
                a.e(f's_lshr_b32 {t2}, {sJ}, 1')
                self.sums('s1', [(sX, 1 << 20), (t2, 1 << 16), (sV, 256)])
                for i, r in enumerate((246, 247, 255)):
                    a.e(f'v_add_u32 v{r}, {64 * i}, v0')
                    a.e(f'v_mul_u32_u24 v{r}, 21846, v{r}')
                    a.e(f'v_lshrrev_b32 v{r}, 16, v{r}')
                    a.e(f'v_mul_u32_u24 v{r}, {1152 - 48}, v{r}')
                    a.e(f'v_lshl_add_u32 v{r}, v0, 4, v{r}')
            if t == 4:
                a.wait(vm='clr')
                a.e('v_lshlrev_b32 v60, 7, v0')
                a.e('s_mov_b64 exec, 31')
                a.e(f'buffer_load_dword v61, v60, {WS}, {t4} offen')
                a.e('s_mov_b64 exec, -1')
                a.tag_vm('touch')
                a.e('v_lshlrev_b32 v4, 16, v5')
                a.e('v_and_b32 v5, 0xffff0000, v5')
            if t == o.get('atom_at', 5):
                a.e('s_barrier')
                l = self.wave_only(1)
                a.e('s_getreg_b32 s82, hwreg(HW_REG_XCC_ID, 0, 3)')
                a.e('s_lshl_b32 s82, s82, 3')
                a.e('s_lshl_b64 s[82:83], 1, s82')
                a.e('v_mov_b32 v58, s82')
                a.e('v_mov_b32 v59, s83')
                a.e(f's_lshl_b32 {t0}, {sX}, 5')
                a.e('s_mov_b64 exec, 1')
                a.e(f'buffer_atomic_add_x2 v[58:59], v0, {DBG}, {t0} offen sc1')
                a.e('s_mov_b64 exec, -1')
                self.end_only(l)
            if t == 9:
                a.wait(vm='touch')
                self.lnq_addr()
                self.lnq_prep()
                for rho in range(3):
                    for x in self.lnq_mfma(rho):
                        a.e(x)
                self.lnq_reduce(False)
                self.lnq_done = True
            if t == o.get('cnt_at', 10):
                a.e('v_and_b32 v57, 7, v0')
                a.e('v_lshlrev_b32 v57, 5, v57')
                a.e(f'buffer_load_dwordx2 v[58:59], v57, {DBG}, 0 offen sc1')
                a.tag_vm('cnt')
            if t == 15:
                chk, retry, done = a.lab('chk'), a.lab('cretry'), a.lab('cdone')
                a.wait(vm='cnt')
                a.e(f'{chk}:')
                a.e('v_sad_u8 v61, v58, 0, 0')
                a.e('v_sad_u8 v61, v59, 0, v61')
                a.e('v_cmp_ne_u32 vcc, 32, v61')
                if not o.get('x_noinit'):
                    a.e(f's_cbranch_vccnz {retry}')
                a.e(f'{done}:')
                a.ool(f'{retry}:\ns_add_u32 {sPOLL}, {sPOLL}, 1\ns_cmp_gt_u32 {sPOLL}, 200000\ns_cbranch_scc1 {done}\ns_sleep 8\n'
                      f'buffer_load_dwordx2 v[58:59], v57, {DBG}, 0 offen sc1\ns_waitcnt vmcnt(0)\ns_branch {chk}')
                a.e('s_getreg_b32 s82, hwreg(HW_REG_XCC_ID, 0, 3)')
                a.e('s_lshl_b32 s82, s82, 3')
                a.e('s_lshl_b64 s[82:83], 32, s82')
                a.e(f'v_readlane_b32 {t2}, v58, {sX}')
                a.e(f'v_readlane_b32 {t3}, v59, {sX}')
                a.e(f's_cmp_eq_u64 s[82:83], s[80:81]')
                a.e(f's_cselect_b32 {sLOC}, {0 if o.get("force_slow") else 1}, {1 if o.get("x_noinit") else 0}')
                self.lnq_pubaddr(False, True)
                self.lcmp()
                self.lnq_publish(False, True)
            if t == 18:
                self.qa_addr(48)
                a.e(f's_add_u32 {t4}, {oQgA}, {L_CSA - L_QA}')
                ql = self.qa_loads(40, 52, 48) + [f'buffer_load_dwordx4 v[44:47], v51, {WSL}, {t4} offen sc1']
                for x in ql:
                    a.e(x)
                a.tag_vm('q')
            if t == 22:
                a.wait(vm='q')
                self.late_check('v20', list(range(40, 48)) + [52, 53], ql)
                for x in self.red8(44):
                    a.e(x)
                a.e('v_cvt_pk_bf16_f32 v44, 0, v44')
                a.e('v_or_b32 v1, v1, v44')
                a.e(self.stats_const(54))
                self.qa_finish(40, 52, 48, 56, 54)
                for r in range(24, 40, 4):
                    a.e(f'v_mov_b64 {vr(r, 2)}, 0')
                self.p_addr('v45', 'v44')
                self.qk_softmax(56, 24, 40, 44)
                for x in self.lsum('v57', 40):
                    a.e(x)
                for x in self.ml_write(56):
                    a.e(x)
                for r in range(24, 56, 4):
                    a.e(f'v_mov_b64 {vr(r, 2)}, 0')
                a.e('s_waitcnt lgkmcnt(0)')
            for i, at in enumerate(o.get('ckv_at', [10, 11, 12, 13])):
                if at == t:
                    for q in range(4):
                        for x in self.extra[f'c{4 * i + q}']:
                            a.e(x)
            if t == o.get('wo_at', 9):
                assert self.lnq_done
                for k in range(6):
                    for x in self.extra[f'w{k}']:
                        a.e(x)
            self.touches(f's{t}', 'v62', 'v31')
            if t == o.get('mlbar', 26):
                a.e('s_barrier')
                for x in self.ml_read(56, 20):
                    a.e(x)
                a.e('s_waitcnt lgkmcnt(0)')
                for x in self.ml_scale(56, 20, 21, 22):
                    a.e(x)
                a.e('v_readfirstlane_b32 s22, v21')
                a.e('v_readfirstlane_b32 s23, v22')
            if t == o.get('c1_late', 1) and t > 15:
                self.sums(t1, [(sX, 1 << 19), (sJ, 16384), (sV, 4096)], CB)
                for r in range(56, 60):
                    a.e(f'v_mov_b32 v{r}, -1')
                self.lcmp()
                self.lstore([f'buffer_store_dwordx4 v[56:59], {vL16}, {WS}, {t1} offen offset:{i * 1024}' for i in range(4)])
            if t == o.get('tlb_at', -1):
                g = o.get('tlb_n', 2)
                a.e(f's_mov_b64 exec, {(1 << g) - 1}')
                self.sums(t2, [(sX, 1 << 19)], CB)
                for srd, so, span in ((BWQ, oWQ, 24 * 8192), (WUK, oWUK, 16 * 8192), (WUV, oWUV, 64 * 8192), (BWO, oWO, 128 * 1152),
                                      (WS, t2, 1 << 19), (OUT, '0', 1024)):
                    a.e(f'v_mul_u32_u24 v62, {(span - 8192 if span > 8192 else span) // (g - 1) // 4 * 4}, v0')
                    a.e(f'buffer_load_dword v31, v62, {srd}, {so} offen')
                a.e('s_mov_b64 exec, -1')
            if t == o.get('isl_at', 12):
                a.e('s_branch L_isl_0')
                if self.alt:
                    a.e('L_isl_ret2:')
                else:
                    a.e('L_isl_ret:')
                    if o.get('hi'):
                        a.e('s_cmp_lg_u32 s0, 0')
                        a.e('s_cbranch_scc1 L_isl_ret2')
            if t == o.get('late_touch', -1):
                self.sums(t3, [(sX, 128), (sJ, 4), (sV, 1)])
                a.e(f's_lshl_b32 {t2}, {t3}, 10')
                a.e('v_lshlrev_b32 v62, 7, v0')
                a.e('v_and_b32 v62, 0x3ff, v62')
                a.e(f'buffer_load_dword v31, v62, {WS}, {t2} offen')
            if t == 23:
                self.pv_block(0)
            if t == 24:
                self.pv_block(1)
        if self.alt:
            a.e('s_nop 7')
            a.e('s_branch L_join')
            return
        a.e('L_join:')
        self.late_scalars()
        a.e('v_mov_b32 v62, s23')
        a.e(f's_cmp_eq_u32 {sV}, 0')
        a.e(f's_cselect_b32 {t1}, {oOALpub}, {OOB}')
        self.lcmp()
        self.lstore([f'buffer_store_dword v62, off, {WSL}, {t1}'])
        self.pv_block(2)
        a.e('v_lshrrev_b32 v62, 1, v0')
        a.e('v_and_b32 v62, 8, v62')
        a.e('v_and_or_b32 v62, v0, 32, v62')
        a.e(f'v_add_u32 v62, {sW8}, v62')
        a.e(f'v_add_u32 v62, {6144 + 384}, v62')
        for tt in range(4):
            o0 = 16 * (tt >> 1) + (tt & 1)
            r = (20, 22, 8, 10)[tt]
            a.e(f'ds_read2_b32 {vr(r, 2)}, v62 offset0:{o0} offset1:{o0 + 4}')
        a.e('s_mov_b32 vcc_lo, 0x55555555')
        a.e('s_mov_b32 vcc_hi, 0x55555555')
        a.e('s_waitcnt lgkmcnt(0)')
        for r in (20, 21, 22, 23, 8, 9, 10, 11):
            a.e(f'v_cndmask_b32 v{r}, 0, v{r}, vcc')
        self.last_tiles(range(3))
        a.e(f's_cmp_eq_u32 {sLOC}, 0')
        a.e('s_cbranch_scc1 L_pre_slow')

    def last_tiles(self, which):
        a = self.a
        for tt in which:
            a.wait(vm=f'tile{28 + tt}')
            if tt == 3:
                self.stamp('kvdone')
            dst = [56, 58, 60, 62] * 2 if tt < 3 else [56, 58, 60, 62, 20, 22, 8, 12]
            n1 = 4 if tt < 3 else 8
            for e in range(n1):
                a.e(f'ds_read_b64_tr_b16 {vr(dst[e], 2)}, v{12 + e} offset:{tt * 4096}')
                a.tag_ds(f'v{e}')
            if tt == 3:
                self.rot8('v14', 2)
            for e in range(8):
                a.wait(ds=f'v{e}')
                d = vr(24 + 4 * e, 4)
                a.e(f'v_mfma_f32_16x16x16_bf16 {d}, {vr((20, 22, 8, 10)[tt], 2)}, {vr(dst[e], 2)}, {d}')
                if e + n1 < 8:
                    a.e(f'ds_read_b64_tr_b16 {vr(dst[e], 2)}, v{12 + e + n1} offset:{tt * 4096}')
                    a.tag_ds(f'v{e + n1}')
                if tt == 3 and e >= 4:
                    x = e - 4
                    a.e(f'v_add_f32_dpp v16, v{24 + 4 * x}, v{25 + 4 * x} {DPPI} row_mask:{1 << x} bank_mask:0xf')
        if 3 not in which:
            return
        for e in range(4, 8):
            a.e(f'v_add_f32_dpp v17, v{24 + 4 * e}, v{25 + 4 * e} {DPPI} row_mask:{1 << (e & 3)} bank_mask:0xf')
        a.e('v_mul_f32 v44, s22, v16')
        a.e('v_mul_f32 v45, s22, v17')
        a.e(f'v_lshl_add_u32 v46, v0, 2, {sW8}')
        a.e('v_mov_b32 v47, v14')
        self.stamp('pv1')

    def tail(self, mode):
        a = self.a
        o = self.o
        base = lambda s: int(s[2:s.index(':')])
        self.mode = mode
        if mode == 'slow':
            a.e('L_pre_slow:')
            a.e('s_nop 7')
            a.e('s_waitcnt vmcnt(0)')
        self.last_tiles([3])
        n0 = self.nst
        a.vmq = [['wo', ()]] + [[None, ()] for _ in range(len(o.get('touch', {}).get('s27', [])) if o.get('wo_at', 9) == 27 else 40)]
        l, g = base(WSL), base(WSG)
        a.e(f'L_top_{mode}:')
        self.combine_publish()
        self.stamp('opub')
        a.e(f's_mul_i32 {t0}, {sRES}, {sIT}')
        self.resid_track(G_YB, 20, 'v8', f's_cmp_eq_u32 {t0}, 3')
        a.e(f's_mul_i32 {t0}, {sIT}, {G_IT}')
        a.e(f's_add_u32 s{g}, s{g}, {t0}')
        a.e(f's_addc_u32 s{g + 1}, s{g + 1}, 0')

        def idle_a():
            b = self.a
            self.wuk_prep('v8', 'v9')
            self.wuk_issue('v8', 'v9')
            self.touches('i1', 'v60', 'v10')
            l1 = b.lab('it1')
            b.e(f's_cmp_eq_u32 {sIT}, 1')
            b.e(f's_cbranch_scc1 {l1}')
            self.clear_g1(56)
            self.touches('i0', 'v60', 'v10')
            if o.get('touch', {}).get('i0b'):
                lp = b.lab('lp')
                b.e(f'{lp}:')
                b.e('s_sleep 4')
                b.e(f'buffer_load_dword v12, {vL16}, {WSL}, {oO} offen sc1')
                b.e('s_waitcnt vmcnt(0)')
                b.e('v_cmp_eq_u32 vcc, -1, v12')
                self.retry_to(lp)
                b.e('s_barrier')
                self.touches('i0b', 'v60', 'v10')
            l2 = b.lab('it1')
            b.e(f's_branch {l2}')
            b.e(f'{l1}:')
            self.touches('i3', 'v60', 'v10')
            self.sleep('ia')
            b.e(f'{l2}:')

        def busy_a():
            self.outproj(True)
            self.lnq_tail(G_YA, True)
        self.ool_if(f's_cmp_ge_u32 {sJ}, 24', idle_a, busy_a, True)
        self.qabs()
        self.attn_b()
        self.red()
        self.uv()

        def nextpass():
            b = self.a
            b.e(f's_cmp_eq_u32 {sIT}, 1')
            b.e(f's_cbranch_scc1 L_final_{mode}')
            b.e(f's_add_u32 s{l}, s{l}, {L_IT}')
            b.e(f's_addc_u32 s{l + 1}, s{l + 1}, 0')
            b.e(f's_mov_b32 s{l + 2}, {L_SZ}')
            b.e(f's_mov_b32 {sIT}, 1')

        def idle_b():
            nextpass()
            self.touches('i2', 'v60', 'v10')
            self.sleep('ib')

        def busy_b():
            self.outproj(False)
            nextpass()
            self.lnq_tail(G_YB, False)
        self.ool_if(f's_cmp_ge_u32 {sJ}, 24', idle_b, busy_b, True)
        self.attn_a3()
        self.nper = self.nst - n0
        self.n0 = n0
        if o.get('stamps'):
            a.e('s_mov_b32 s97, 5')
        a.e(f's_branch L_top_{mode}')
        a.e(f'L_final_{mode}:')
        a.e(f's_cmp_lg_u32 {sRES}, 3')
        a.e('s_cbranch_scc1 L_fin2')
        self.keep_rounding()
        self.resid(G_YB, 10, 'v8', True)
        a.e(f'buffer_store_dword v9, v8, {OUT}, {t0} offen')
        a.e('s_mov_b64 exec, -1')
        self.mode = None

    def build(self):
        a = self.a
        o = self.o
        base = lambda s: int(s[2:s.index(':')])
        self.prologue()
        altb = ''
        if o.get('hi'):
            import copy
            if o['hi'][0]:
                a.e('s_getreg_b32 s0, hwreg(HW_REG_XCC_ID, 0, 3)')
                a.e(f's_lshr_b32 s0, {o["hi"][0]}, s0')
                a.e('s_and_b32 s0, s0, 1')
            else:
                a.e(f's_cmp_ge_u32 {sJ}, 24')
                a.e('s_cselect_b32 s0, 1, 0')
            a.e('s_cbranch_scc1 L_alt')
            alt = Gen(dict(o, win=o['hi'][1]))
            alt.alt = True
            alt.a.uid = 300000
            alt.a.cold = True
            alt.a.vmq = copy.deepcopy(a.vmq)
            alt.make_items()
            alt.issued = self.issued
            alt.nst = self.nst
            alt.a.e('L_alt:')
            alt.stream()
            altb = alt.a.finish()
            altb = altb[:altb.index('L_isl_0:')]
        self.stream()
        self.tail('fast')
        a.e('L_fin2:')
        if o.get('diag_fixed'):
            a.e('L_dfx:')
            a.e('s_memrealtime s[94:95]')
            a.e('s_waitcnt lgkmcnt(0)')
            a.e('s_sub_u32 s94, s94, s100')
            a.e(f's_cmp_lt_u32 s94, {o["diag_fixed"]}')
            a.e('s_cbranch_scc1 L_dfx')
        if o.get('stamps'):
            a.e('s_waitcnt vmcnt(0) lgkmcnt(0)')
            self.stamp('end')
            a.e('s_waitcnt lgkmcnt(0)')
            a.e('v_writelane_b32 v7, s98, 62')
            a.e(f'v_writelane_b32 v7, {sPOLL}, 63')
            a.e('s_getreg_b32 s82, hwreg(HW_REG_XCC_ID, 0, 3)')
            a.e('s_getreg_b32 s83, hwreg(HW_REG_HW_ID)')
            a.e('s_lshl_b32 s83, s83, 4')
            a.e('s_or_b32 s82, s82, s83')
            a.e('v_writelane_b32 v7, s82, 61')
            self.sums(t1, [('s2', 1024), (sV, 256)], STAMP)
            a.e('v_lshlrev_b32 v8, 2, v0')
            a.e(f'buffer_store_dword v7, v8, {WS}, {t1} offen')
        a.e('L_end:')
        a.e('s_endpgm')
        slow = Gen(self.o)
        slow.a.uid = 500000
        slow.a.cold = True
        slow.tail('slow')
        slow.a.e('s_branch L_fin2')
        sb = slow.a.finish()
        sb = sb[:sb.index('L_isl_0:')]
        body = a.finish()
        ref = open('cdna_kernels/' + NAME + '.s.ref').read() if o.get('hdr', True) else ''
        hdr = ''.join(l + '\n' for l in ref.split('\n') if l.startswith(';') and '@launch' not in l and 'Override' not in l and 'grid=ceil' not in l)
        txt = hdr + '; @launch grid=(256,1,1) block=(256,1,1) lds=163840\n'
        txt += '.amdgcn_target "amdgcn-amd-amdhsa--gfx950"\n.text\n'
        txt += f'.globl {NAME}_kernel\n.p2align 8\n.type {NAME}_kernel,@function\n{NAME}_kernel:\n'
        txt += body
        txt += 'L_tailend:\n' + altb + 'L_codeend:\n' + sb
        txt += f"""    s_endpgm
.section .rodata,"a"
.p2align 6
.amdhsa_kernel {NAME}_kernel
  .amdhsa_next_free_vgpr 512
  .amdhsa_next_free_sgpr 102
  .amdhsa_accum_offset 256
  .amdhsa_group_segment_fixed_size 0
  .amdhsa_kernarg_size 112
  .amdhsa_user_sgpr_count 2
  .amdhsa_user_sgpr_kernarg_segment_ptr 1
  .amdhsa_system_sgpr_workgroup_id_x 1
.end_amdhsa_kernel
"""
        return txt


DEFAULT = dict(sleep=dict(h2a=6, h2b=6, h2c=2, ha=7, ia=30, ib=30, ha1=5, hc2=1, hc2b=2, hc4=1, fin=10), pol_c='nt', depth=3,
               touch=dict(w1b=['loc', 'code', 'wuk'], w1c=['loc'], w5=['code'], s27=['c1h'], i0=['Xc1:0:1', 'Xbwo'], i1=['loc', 'code'], i2=['loc']), wo_e=0, wo_pre=3, red_pre=4, tr_pre=4, lw_pos=1, heat=0, rowm=0x00030003, K={'b4': 0, 'qb3': 0}, pol_wq3='nt',
               late_touch=-1, wo_at=9, warm=0, c1_late=1, ml_early=2, qflag=0, ybar=0, atom_at=4, cnt_at=12, win=6, boost={}, win0=6)

if __name__ == '__main__':
    import json
    opt = dict(DEFAULT)
    out = sys.argv[1]
    if len(sys.argv) > 2:
        opt.update(json.loads(sys.argv[2]))
    g = Gen(opt)
    open(out, 'w').write(g.build())
    print('nops', g.a.nops, 'stamps', g.stnames, g.n0, g.nper)
```

```python
import sys, math, struct
from asmlib import Asm

NAME = 'interleave_layers__mha_block_cached__compressed_kv_cla__decode'


def f32(x):
    return '0x%08x' % struct.unpack('<I', struct.pack('<f', x))[0]


K1 = 1024
L_X = 128 * K1
L_IT = 72 * K1
L_SZ = 56 * K1
L_QA, L_QB, L_OA, L_OB, L_C1ML = 0, 16 * K1, 32 * K1, 40 * K1, 48 * K1
L_STA, L_STB, L_OAL, L_FL = 52 * K1, 52 * K1 + 256, 52 * K1 + 512, 52 * K1 + 640
L_CSA = 56 * K1
GB, G_IT = 0x100000, 384 * K1
G_YA, G_YB, G_QABS, G_C2L, G_C2 = 0, 24 * K1, 48 * K1, 80 * K1, 112 * K1
CB = 0x200000
STAMP = 0x800000
WS_SIZE = 0x1000000
OOB = 0x40000000
CKV = 65536
STG = 131072
ZML = STG + 7168
ZO = STG + 8192 + 7168
ZQ = STG + 2 * 8192 + 7168
K_, V_, CK, DBG, XIN, WQ, WO, BWQ, WUK, WUV, BWO, WS, WSL, WSG, OUT = ['s[%d:%d]' % (4 + 4 * i, 7 + 4 * i) for i in range(15)]
(sX, sJ, sV, sLOC, sW8, sKV, sKG, sIT, sPOLL, sM, sRES, sST, sH, sS,
 t0, t1, t2, t3, t4, t5) = ['s%d' % i for i in range(64, 84)]
MY = 's[84:85]'
(oY, oQA, oQB, oST, oQgA, oSTgA, oWQ, oWO, oWUK, oWUV, oYpub) = ['s%d' % i for i in range(86, 97)]
(oQgB, oSTgB, oQApub, oQAg, oC1pub, oMLpub, oC1g, oMLg, oC2pub, oC2Lpub, oC2g, oC2Lg,
 oOBpub, oOApub, oOALpub, oOALg, oRES, oO) = ['s%d' % i for i in range(4, 22)]
vT, vA, vL16 = 'v2', 'v3', 'v6'
TBL = [0, 8, 9, 1]
DPPI = 'quad_perm:[0,1,2,3]'
FULL = 'row_mask:0xf bank_mask:0xf'
QSCALE = math.log2(math.e) / math.sqrt(128.0)


def vr(a, n):
    return f'v[{a}:{a + n - 1}]' if n > 1 else f'v{a}'


class Gen:
    def __init__(self, opt):
        self.o = opt
        self.a = Asm()
        self.nst = 0
        self.stnames = []
        self.mode = None
        self.alt = False

    def stamp(self, name, level=1):
        if self.o.get('diag_from') == name:
            l = self.a.lab('dg')
            self.a.e(f's_cselect_b32 s3, 1, 0')
            self.a.e(f's_cmp_eq_u32 {sIT}, 1')
            self.a.e(f's_cbranch_scc1 {l}')
            self.a.e('s_memrealtime s[100:101]')
            self.a.e(f'{l}:')
            self.a.e('s_cmp_eq_u32 s3, 1')
        if self.o.get('stamps', 0) < level or self.mode == 'slow':
            return
        if self.o.get('only') and name not in self.o['only'] and name != 'end':
            return
        a = self.a
        self.nst += 1
        self.stnames.append(name)
        a.e(f's_mov_b32 m0, {sST}')
        a.e(f's_pack_ll_b32_b16 s98, s98, {sPOLL}')
        a.e('v_writelane_b32 v7, s98, m0')
        a.e(f's_mov_b32 {sST}, {self.nst}')
        a.e(f's_bitset1_b32 {sST}, s97')
        a.e('s_memtime s[98:99]' if self.o.get('clk') else 's_memrealtime s[98:99]')

    def K(self, n, key=None, force=False):
        if key is not None:
            n = self.o.get('K', {}).get(key, n)
        if not self.o.get('warm', 1) and not force:
            return
        for i in range(n):
            self.a.e('v_mov_b32 v0, v0')
            self.a.e('s_nop 2')

    def H(self, key, n, junk):
        n = self.o.get('H', {}).get(key, n if self.o.get('heat', 1) else 0)
        for i in range(n):
            self.a.e(f'v_mfma_f32_16x16x4_f32 {vr(junk, 4)}, v0, v0, 0')

    def Wm(self):
        if self.o.get('warm', 1):
            self.a.e('v_mov_b32 v0, v0')

    def bar(self, n=2, vm=False):
        self.K(n)
        self.Wm()
        self.a.e('s_waitcnt vmcnt(0) lgkmcnt(0)' if vm else 's_waitcnt lgkmcnt(0)')
        self.Wm()
        self.a.e('s_barrier')
        self.Wm()

    def retry_to(self, top):
        a = self.a
        done, retry = a.lab('got'), a.lab('retry')
        a.e(f's_cbranch_vccnz {retry}')
        a.e(f'{done}:')
        a.ool(f'{retry}:\ns_cselect_b32 s3, 1, 0\ns_add_u32 {sPOLL}, {sPOLL}, 1\ns_cmp_gt_u32 {sPOLL}, 200000\ns_nop 1\ns_cbranch_scc0 {top}\n'
              f's_cmp_eq_u32 s3, 1\ns_branch {done}')

    def retry_with(self, lines, wait, chk):
        a = self.a
        done, retry = a.lab('got'), a.lab('retry')
        a.e(f's_cbranch_vccnz {retry}')
        a.e(f'{done}:')
        a.ool(f'{retry}:\n' + '\n'.join(lines) + f'\ns_add_u32 {sPOLL}, {sPOLL}, 1\ns_cmp_gt_u32 {sPOLL}, 200000\n{wait}\n'
              f's_cbranch_scc0 {chk}\ns_waitcnt vmcnt(0)\ns_branch {done}')
        return retry

    def ool_if(self, cond, fn, els=None, big=False):
        a = self.a
        go, back = a.lab('go'), a.lab('back')
        a.e(cond)
        a.e(f's_cbranch_scc1 {go}')
        if els and big:
            els()
            a.vmq, a.dsq = [], []
        elif els:
            a.begin_skip()
            els()
            a.end_skip()
        a.e(f'{back}:')
        sub = Asm()
        sub.uid = a.uid + 1000 * (1 + len(a.tail))
        self.a = sub
        sub.e(f'{go}:')
        sub.e('s_nop 1')
        fn()
        sub.e('s_nop 1')
        sub.e(f's_branch {back}')
        self.a = a
        tail, sub.tail = sub.tail, []
        body = sub.finish().split('\n')
        body = [x.strip() for x in body[:[i for i, x in enumerate(body) if x.startswith('L_isl_0')][0]] if x.strip()]
        for k in range(0, len(body), 14):
            part = body[k:k + 14]
            if k + 14 < len(body):
                nxt = a.lab('p')
                part.append(f's_branch {nxt}')
                body[k + 14] = f'{nxt}:\n' + body[k + 14]
            a.ool('\n'.join(part))
        for t in tail:
            a.ool(t)

    def lstore(self, lines):
        a = self.a
        if self.mode is not None:
            for l in lines:
                a.e(l + ' sc1' if self.mode == 'slow' and l.startswith('buffer_') else l)
            return
        slow, back = a.lab('slow'), a.lab('back')
        a.e(f's_cbranch_scc1 {slow}')
        for l in lines:
            a.e(l)
        a.e(f'{back}:')
        a.ool(('' if a.cold else '#cold') + f'{slow}:\ns_nop 7\n' + '\n'.join(l + ' sc1' if l.startswith('buffer_') else l for l in lines) + f'\ns_branch {back}')

    def lcmp(self):
        if self.mode is None:
            self.a.e(f's_cmp_eq_u32 {sLOC}, 0')

    def poll_begin(self):
        a = self.a
        self.ptop, self.pretry, self.pdone = a.lab('poll'), a.lab('retry'), a.lab('got')
        a.e(f'{self.ptop}:')

    def poll_end(self, vmax):
        a = self.a
        a.e(f'v_cmp_eq_u32 vcc, -1, {vmax}')
        a.e(f's_cbranch_vccnz {self.pretry}')
        a.e(f'{self.pdone}:')
        a.ool(f'{self.pretry}:\ns_add_u32 {sPOLL}, {sPOLL}, 1\ns_cmp_gt_u32 {sPOLL}, 200000\ns_cbranch_scc1 {self.pdone}\ns_nop 7\ns_branch {self.ptop}')

    def poll_cmp(self, vmax):
        self.a.e(f'v_cmp_eq_u32 vcc, -1, {vmax}')

    def poll_br(self, last=True):
        a = self.a
        done = a.lab('got')
        retry = a.lab('retry')
        a.e(f's_cbranch_vccnz {retry}')
        a.e(f'{done}:')
        a.ool(f'{retry}:\ns_cselect_b32 s3, 1, 0\ns_add_u32 {sPOLL}, {sPOLL}, 1\ns_cmp_gt_u32 {sPOLL}, 200000\ns_cbranch_scc0 {self.ptop}\n'
              f's_cmp_eq_u32 s3, 1\ns_branch {done}')

    def pipe_poll(self, ld, vmax, regs, key, mid=()):
        a = self.a
        n = sum(x.startswith('buffer') for x in ld)
        if self.o.get('pipe', {}).get(key, 1):
            self.poll_begin()
            for x in ld:
                self.H(key + '0', 0, 40)
                a.e(x)
            self.H(key + '1', 0, 40)
            a.e(f's_waitcnt vmcnt({n})')
            self.maxchain(vmax, regs, True)
            self.poll_cmp(vmax)
            for x in mid:
                a.e(x)
            self.poll_br()
        else:
            a.e('s_waitcnt vmcnt(0)')
            self.late_check(vmax, regs, ld)

    def late_check(self, vmax, regs, reissue):
        a = self.a
        chk, retry, done = a.lab('chk'), a.lab('retry'), a.lab('done')
        a.e(f'{chk}:')
        self.maxchain(vmax, regs, True)
        a.e(f'v_cmp_eq_u32 vcc, -1, {vmax}')
        a.e(f's_cbranch_vccnz {retry}')
        a.e(f'{done}:')
        a.ool(f'{retry}:\ns_add_u32 {sPOLL}, {sPOLL}, 1\ns_cmp_gt_u32 {sPOLL}, 200000\ns_cbranch_scc1 {done}\n'
              + '\n'.join(reissue) + f'\ns_waitcnt vmcnt(0)\ns_branch {chk}')

    def maxchain(self, vmax, regs, first):
        a = self.a
        regs = list(regs)
        if first:
            if len(regs) >= 3:
                a.e(f'v_max3_u32 {vmax}, v{regs[0]}, v{regs[1]}, v{regs[2]}')
                regs = regs[3:]
            elif len(regs) == 2:
                a.e(f'v_max_u32 {vmax}, v{regs[0]}, v{regs[1]}')
                regs = []
            else:
                a.e(f'v_mov_b32 {vmax}, v{regs[0]}')
                regs = []
        while len(regs) >= 2:
            a.e(f'v_max3_u32 {vmax}, {vmax}, v{regs[0]}, v{regs[1]}')
            regs = regs[2:]
        if regs:
            a.e(f'v_max_u32 {vmax}, {vmax}, v{regs[0]}')

    def sleep(self, key):
        n = self.o.get('sleep', {}).get(key, 0)
        if n:
            self.a.e(f's_sleep {n}')

    def wave_only(self, w):
        a = self.a
        l = a.lab('notw')
        a.e(f's_cmp_lg_u32 {sV}, {w}')
        a.e(f's_cbranch_scc1 {l}')
        a.begin_skip()
        return l

    def end_only(self, lab):
        self.a.end_skip()
        self.a.e(f'{lab}:')

    def pos_bytes(self, dst, tmp):
        a = self.a
        a.e(f'v_lshlrev_b32 {dst}, 3, v0')
        a.e(f'v_and_b32 {dst}, 16, {dst}')
        a.e(f'v_and_or_b32 {dst}, v0, 12, {dst}')

    def sp_addr(self, dst, base):
        a = self.a
        a.e(f'v_and_b32 {dst}, 48, v0')
        a.e(f'v_lshlrev_b32 {dst}, 1, {dst}')
        a.e(f'v_and_or_b32 {dst}, {vL16}, 16, {dst}')
        if base:
            a.e(f'v_add_u32 {dst}, {base}, {dst}')

    def sums(self, dst, terms, const=0):
        a = self.a
        first = True
        for reg, mul in terms:
            d = dst if first else t0
            if mul & (mul - 1) == 0:
                a.e(f's_lshl_b32 {d}, {reg}, {mul.bit_length() - 1}')
            else:
                a.e(f's_mul_i32 {d}, {reg}, {mul}')
            if not first:
                a.e(f's_add_u32 {dst}, {dst}, {t0}')
            first = False
        if const:
            a.e(f's_add_u32 {dst}, {dst}, {const}')

    def k64_addr(self, vt, vu):
        a = self.a
        a.e(f'v_lshrrev_b32 {vt}, 2, v0')
        a.e(f'v_lshlrev_b32 {vt}, 13, {vt}')
        a.e(f'v_and_or_b32 {vt}, {vL16}, 48, {vt}')

    def wq_prep(self, vt, vu):
        a = self.a
        a.e(f'v_lshrrev_b32 {vu}, 4, v0')
        a.e(f'v_lshlrev_b32 {vt}, 5, {vu}')
        a.e(f'v_xor_b32 {vt}, {vt}, {vL16}')
        a.e(f's_lshl_b32 {t1}, {sV}, 7')
        a.e(f'v_xor_b32 {vt}, {t1}, {vt}')
        a.e(f'v_and_b32 {vt}, 0xf0, {vt}')
        a.e(f'v_lshl_or_b32 {vt}, {vu}, 13, {vt}')

    def wq_issue(self, srd, vt, vu, parts, pol=''):
        a = self.a
        for i in parts:
            if i == parts[0] or i == 3:
                a.e(f's_add_u32 m0, {sW8}, {(i // 3) * 3072}')
            a.e(f's_add_u32 {t1}, {oWQ}, {i * 4 * 8192 - (i % 3) * 1024}')
            a.e(f'buffer_load_dwordx4 {vt}, {srd}, {t1} offen offset:{(i % 3) * 1024} {pol} lds')
        a.tag_vm('wq')

    def dma_wq(self, srd, vt, vu, pol=''):
        self.wq_prep(vt, vu)
        self.wq_issue(srd, vt, vu, list(range(6)), pol)

    def dma_wuv(self, vt):
        a = self.a
        pol = self.o.get('pol_w', '')
        self.k64_addr(vt, None)
        for i in range(4):
            a.e(f's_add_u32 m0, {sW8}, {i * 1024}')
            a.e(f's_add_u32 {t1}, {oWUV}, {i * 16 * 8192}')
            a.e(f'buffer_load_dwordx4 {vt}, {WUV}, {t1} offen {pol} lds')
        a.tag_vm('wuv')

    def wuk_prep(self, vt, vu):
        a = self.a
        a.e(f'v_lshrrev_b32 {vu}, 4, v0')
        a.e(f'v_lshlrev_b32 {vt}, 5, {vu}')
        a.e(f'v_xor_b32 {vt}, {vt}, {vL16}')
        a.e(f'v_and_b32 {vt}, 0xf0, {vt}')
        a.e(f'v_lshl_or_b32 {vt}, {vu}, 13, {vt}')

    def wuk_issue(self, vt, vu):
        a = self.a
        pol = self.o.get('pol_wuk', '')
        a.e(f's_mov_b32 m0, {sW8}')
        for q in range(4):
            a.e(f's_add_u32 {t1}, {oWUK}, {q * (4 * 8192 - 1024)}')
            if q:
                a.e(f'v_xor_b32 {vu}, {TBL[q] << 4}, {vt}')
            a.e(f'buffer_load_dwordx4 {vu if q else vt}, {WUK}, {t1} offen offset:{q * 1024} {pol} lds')
        a.tag_vm('wuk')

    def wo_prep(self, R, tmp):
        a = self.a
        for i in range(3):
            a.e(f'v_add_u32 v{R + i}, {64 * i}, v0')
            a.e(f'v_mul_u32_u24 {tmp}, 21846, v{R + i}')
            a.e(f'v_lshrrev_b32 {tmp}, 16, {tmp}')
            a.e(f'v_mul_u32_u24 {tmp}, {1152 - 48}, {tmp}')
            a.e(f'v_lshl_add_u32 v{R + i}, v0, 4, {tmp}')
        a.e(f's_add_u32 {t5}, {oWO}, {64 * 1152}')

    def wo_lines(self, srd, R, pol='', base=sW8):
        out = []
        for h in range(2):
            out.append(f's_add_u32 m0, {base}, {h * 3072}')
            for i in range(3):
                out.append(f'buffer_load_dwordx4 v{R + i}, {srd}, {t5 if h else oWO} offen offset:{i * 1024} {pol} lds')
        return out

    def wo_group(self, srd, R, lo, hi):
        out = []
        for k in range(lo, hi):
            h, i = divmod(k, 3)
            if k == lo or i == 0:
                out.append(f's_add_u32 m0, {sW8}, {h * 3072}')
            out.append(f'buffer_load_dwordx4 v{R + i}, {srd}, {t5 if h else oWO} offen offset:{i * 1024} lds')
        return out

    def dma_wo(self, srd, R, tmp):
        self.wo_prep(R, tmp)
        for x in self.wo_lines(srd, R, self.o.get('pol_wo1', '')):
            self.a.e(x)
        self.a.tag_vm('wo')

    def touch(self, what, vt, vd):
        a = self.a
        if what == 'code':
            l = a.lab('pc')
            self.sums(t1, [(sJ, 1024), (sV, 256)])
            a.e(f'v_lshl_add_u32 {vt}, v0, 7, {t1}')
            a.e(f'v_min_u32 {vt}, L_tailend-L_top_fast, {vt}')
            a.e('s_getpc_b64 s[0:1]')
            a.e(f'{l}:')
            a.e(f's_add_u32 s0, s0, L_top_fast-{l}')
            a.e(f's_addc_u32 s1, s1, {0 if self.mode is None else -1}')
            a.e('s_mov_b64 exec, 3')
            a.e(f'global_load_dword {vd}, {vt}, s[0:1]')
            a.e('s_mov_b64 exec, -1')
            return
        if what[0] == 'X':
            what, lo, hi = (what.split(':') + ['0', '9'])[:3]
            if what in ('Xbwq', 'Xwq', 'Xwuk', 'Xwuv'):
                srd, rows = {'Xbwq': (BWQ, 18), 'Xwq': (WQ, 18), 'Xwuk': (WUK, 12), 'Xwuv': (WUV, 16)}[what]
                a.e(f'v_lshrrev_b32 {vt}, 3, v0')
                a.e(f'v_lshlrev_b32 {vt}, 6, {vt}')
                a.e(f'v_and_or_b32 {vt}, v0, 7, {vt}')
                a.e(f'v_lshlrev_b32 {vt}, 7, {vt}')
                self.sums(t1, [(sX, 1024), (sJ, 4 * rows * 8192), (sV, rows * 8192)], (1 << 32) - 96 * rows * 8192)
                for k in range(0, rows, 8):
                    if rows - k < 8:
                        a.e(f's_mov_b32 exec_lo, {(1 << ((rows - k) * 8)) - 1}')
                        a.e('s_mov_b32 exec_hi, 0')
                    if int(lo) <= k // 8 < int(hi):
                        a.e(f'buffer_load_dword {vd}, {vt}, {srd}, {t1} offen')
                    a.e(f's_add_u32 {t1}, {t1}, 65536')
                a.e('s_mov_b64 exec, -1')
                return
            srd, base, per = {'Xc1': (WS, [(sX, 1 << 19)], 16384), 'Xbwo': (BWO, [(sX, 512 * 1152)], 18432), 'Xwo': (WO, [(sX, 512 * 1152)], 18432)}[what]
            a.e(f'v_lshlrev_b32 {vt}, 7, v0')
            self.sums(t1, base + [(sJ, 4 * per), (sV, per)], (CB if what == 'Xc1' else 0) - 96 * per + (1 << 32 if what != 'Xc1' else 0))
            for k in range(0, per, 8192):
                if per - k < 8192:
                    a.e(f's_mov_b64 exec, {(1 << ((per - k) // 128)) - 1}')
                if int(lo) <= k // 8192 < int(hi):
                    a.e(f'buffer_load_dword {vd}, {vt}, {srd}, {t1} offen')
                a.e(f's_add_u32 {t1}, {t1}, 8192')
            a.e('s_mov_b64 exec, -1')
            return
        half = None
        if what[-1] in '01' and what != 'c1':
            what, half = what[:-1], int(what[-1])
        if what in ('wq', 'bwq', 'wuv', 'wuk'):
            srd = {'wq': WQ, 'bwq': BWQ, 'wuv': WUV, 'wuk': WUK}[what]
            a.e(f'v_lshrrev_b32 {vt}, 3, v0')
            a.e(f'v_lshlrev_b32 {vt}, 6, {vt}')
            a.e(f'v_and_or_b32 {vt}, v0, 7, {vt}')
            a.e(f'v_lshlrev_b32 {vt}, 7, {vt}')
            rows = 5 if what in ('wq', 'bwq') else 4
            self.sums(t1, [(sJ, 4 * rows * 8192), (sV, rows * 8192), (sX, 1024)])
            n = 8 * rows
        elif what == 'loc':
            srd = WS
            a.e(f'v_lshlrev_b32 {vt}, 7, v0')
            self.sums(t1, [(sX, L_X), (sJ, 4096), (sV, 1024)])
            n = 8
        elif what == 'c1h':
            srd = WS
            a.e(f'v_lshlrev_b32 {vt}, 7, v0')
            self.sums(t1, [(sX, 1 << 19), (sJ, 16384), (sV, 2048)], CB + 8192)
            n = 16
        elif what == 'c1':
            srd = WS
            a.e(f'v_lshlrev_b32 {vt}, 7, v0')
            self.sums(t1, [(sX, 1 << 19), (sJ, 16384), (sV, 4096)], CB)
            n = 32
        else:
            srd = {'wo': WO, 'bwo': BWO}[what]
            a.e(f'v_lshlrev_b32 {vt}, 7, v0')
            self.sums(t1, [(sX, 512 * 1152), (sJ, 18432), (sV, 4608)])
            n = 36
        m = (1 << n) - 1
        if half == 0:
            m = (1 << (n // 2)) - 1
        elif half == 1:
            m ^= (1 << (n // 2)) - 1
        a.e(f's_mov_b32 exec_lo, {m & 0xffffffff}')
        a.e(f's_mov_b32 exec_hi, {m >> 32}')
        if vd is None:
            a.e(f's_add_u32 m0, {sW8}, 1024')
            a.e(f'buffer_load_dword {vt}, {srd}, {t1} offen lds')
        else:
            a.e(f'buffer_load_dword {vd}, {vt}, {srd}, {t1} offen')
        a.e('s_mov_b64 exec, -1')

    def touches(self, where, vt, vd):
        for w in self.o.get('touch', {}).get(where, []):
            self.touch(w, vt, vd)

    def lnq_addr(self):
        a = self.a
        a.e('v_lshrrev_b32 v52, 4, v0')
        a.e('v_bfe_u32 v53, v0, 2, 2')
        a.e('v_lshl_add_u32 v52, v52, 5, v53')
        a.e('v_and_b32 v53, 31, v0')
        a.e('v_lshlrev_b32 v53, 3, v53')
        a.e('v_lshl_or_b32 v52, v52, 8, v53')
        a.e(f's_lshl_b32 {t0}, {sV}, 6')
        a.e(f's_add_u32 {t0}, {t0}, {STG}')
        a.e(f'v_xor_b32 v52, {t0}, v52')
        a.e('v_xor_b32 v54, 32, v52')

    def lnq_prep(self):
        a = self.a
        a.wait(vm='wq')
        a.e('s_barrier')
        for rho in range(3):
            for tau in range(2):
                for half in range(2):
                    a.e(f'ds_read_b64_tr_b16 {vr(28 + 8 * rho + 4 * tau + 2 * half, 2)}, v{52 + 2 * tau} offset:{2048 * rho + 1024 * half}')
        a.e('s_waitcnt lgkmcnt(0)')
        a.e('s_barrier')

    def lnq_rows(self):
        a = self.a
        a.e('v_mov_b32 v53, 0x3f803f80')
        a.e(f's_lshl_b64 s[82:83], {MY}, 8')
        a.e('v_cndmask_b32 v16, 0, v53, s[82:83]')
        a.e('v_mov_b32 v17, v16')
        for r in range(18, 28, 2):
            a.e(f'v_mov_b64 {vr(r, 2)}, v[16:17]')

    def lnq_mfma(self, rho):
        a = self.a
        A = vr(16 + 4 * rho, 4)
        c = (lambda r: '0') if rho == 0 else (lambda r: r)
        return [f'v_mfma_f32_16x16x32_bf16 v[60:63], {A}, {A}, {c("v[60:63]")}',
                f'v_mfma_f32_16x16x32_bf16 v[52:55], {A}, {vr(28 + 8 * rho, 4)}, {c("v[52:55]")}',
                f'v_mfma_f32_16x16x32_bf16 v[56:59], {A}, {vr(32 + 8 * rho, 4)}, {c("v[56:59]")}']

    def lnq_reduce(self, isb, chk=False):
        a = self.a
        a.e('v_pk_add_f32 v[60:61], v[60:61], v[62:63]')
        a.e('v_add_f32 v60, v60, v61')
        if chk:
            a.e('v_cmp_u_f32 vcc, v60, v60')
        a.e('v_pk_add_f32 v[52:53], v[52:53], v[54:55]')
        a.e('v_mov_b32 v61, v60')
        a.e('v_pk_add_f32 v[56:57], v[56:57], v[58:59]')
        a.e('v_add_f32 v52, v52, v53')
        a.e('v_permlane16_swap_b32 v60, v61')
        a.e('v_add_f32 v56, v56, v57')
        a.e('v_add_f32 v60, v60, v61')
        a.e('v_permlane16_swap_b32 v52, v56')
        a.e(f'v_add_f32_dpp v60, v60, v60 quad_perm:[1,0,3,2] {FULL}')
        a.e('v_add_f32 v52, v52, v56')
        self.lcmp()
        a.e(f'v_add_f32_dpp v60, v60, v60 quad_perm:[2,3,0,1] {FULL}')
        if isb:
            a.e(f'v_mov_b32_dpp v53, v52 quad_perm:[1,0,3,2] {FULL}')
            a.e('v_cvt_pk_bf16_f32 v52, v52, v53')
        a.e(f'v_add_f32_dpp v60, v60, v60 row_half_mirror {FULL}')

    def lnq_pubaddr(self, isb, first):
        a = self.a
        if isb:
            self.pos_bytes('v14', None)
            a.e('v_and_b32 v15, 16, v0')
            a.e('v_lshl_or_b32 v14, v15, 4, v14')
            a.e('v_and_b32 v15, 32, v0')
            a.e('v_lshl_or_b32 v14, v15, 6, v14')
        else:
            a.e('v_and_b32 v14, 31, v0')
            a.e('v_lshlrev_b32 v14, 2, v14')
            if first:
                a.e('v_lshrrev_b32 v15, 5, v0')
                a.e(f'v_mul_u32_u24 v15, {L_CSA - L_QA}, v15')
                a.e('v_add_u32 v14, v14, v15')
        a.e('v_lshrrev_b32 v15, 1, v0')
        if isb:
            self.oob(('v14', 'v14'), (0xaaaaaaaa, 0xaaaaaaaa))
        elif not first:
            self.oob(('v14', 'v14'), (0, 0xffffffff))
        self.oob(('v15', 'v15'), (0xfffffefe, 0xffffffff))

    def lnq_publish(self, isb, first, q='v52', st='v60', qa='v14', sa='v15'):
        self.lstore([f'buffer_store_dword {q}, {qa}, {WSL}, {oQB if isb else oQA} offen',
                     f'buffer_store_dword {st}, {sa}, {WSL}, {oST} offen offset:{256 if isb else 0}'])

    def keep_rounding(self):
        a = self.a
        a.e(f's_cmp_eq_u32 {sRES}, 3')
        a.e('s_cselect_b64 vcc, -1, 0')
        a.e('v_lshlrev_b32 v36, 16, v34')
        a.e('v_and_b32 v37, 0xffff0000, v34')
        a.e('v_pk_add_f32 v[32:33], v[32:33], v[36:37] neg_lo:[0,1] neg_hi:[0,1]')
        a.e('v_cndmask_b32 v4, 0, v32, vcc')
        a.e('v_cndmask_b32 v5, 0, v33, vcc')

    def lnq_tail(self, goff, isb):
        a = self.a
        pol = self.o.get('pol_bwq', '') if isb else self.o.get('pol_wq3', '')
        if self.o.get('wq_hoist', 1):
            self.wq_issue(BWQ if isb else WQ, 'v17', None, list(range(6)), pol)
            a.e('s_barrier')
        self.keep_rounding()
        if self.o.get('ybar', 1):
            a.e('s_barrier')
        self.lnq_rows()
        a.e('v_lshrrev_b32 v12, 2, v0')
        a.e('v_mul_u32_u24 v12, 3072, v12')
        a.e(f'v_and_or_b32 v12, {vL16}, 48, v12')
        a.e(f's_add_u32 {t4}, {oY}, {goff}')
        a.e(f's_add_u32 {t5}, {sW8}, 6144')
        if not self.o.get('wq_hoist', 1):
            self.dma_wq(BWQ if isb else WQ, 'v8', 'v9', pol)
            a.e('s_barrier')
        self.lnq_addr()
        self.lnq_pubaddr(isb, False)
        a.e('v_and_b32 v11, 48, v0')
        a.e('v_lshlrev_b32 v11, 3, v11')
        a.e('v_and_or_b32 v11, v0, 7, v11')
        a.e('v_lshlrev_b32 v11, 6, v11')
        a.e(f'v_add_u32 v11, {STG + 6144}, v11')
        a.e('v_mov_b32 v13, 0')
        if isb:
            self.wuk_prep('v8', 'v9')

            def clear1():
                self.clear_g1(56)
                self.sleep('h2c')
            self.ool_if(f's_cmp_eq_u32 {sIT}, 0', clear1, lambda: self.sleep('h2a'))
        else:
            self.sleep('h2b')
        ld = [f's_mov_b32 m0, {t5}', 's_mov_b64 exec, 0x77777777',
              f'buffer_load_dword v13, v12, {WSG}, {t4} offen sc1',
              f'buffer_load_dwordx4 v12, {WSG}, {t4} offen sc1 lds',
              's_mov_b64 exec, -1']
        for i, x in enumerate(ld):
            a.e(x)
            if i in (2, 3):
                a.tag_vm(f'y{i}')
        self.touches('w1b' if isb else 'w1c', 'v60', 'v10')
        self.lnq_prep()
        self.stamp('wqrdy', 2)
        if isb:
            self.wuk_issue('v8', 'v9')
        chk, again = a.lab('chk'), a.lab('again')
        a.wait(vm='y2')
        a.e(f'{chk}:')
        a.e('v_cmp_eq_u32 vcc, -1, v13')
        a.wait(vm='y3')
        again = self.retry_with(ld, 's_waitcnt vmcnt(0)', chk)
        a.e(f's_mov_b64 exec, {MY}')
        a.e('s_barrier')
        for rho in range(3):
            a.e(f'ds_read_b128 {vr(16 + 4 * rho, 4)}, v11 offset:{16 * rho}')
            a.tag_ds(f'a{rho}')
        fl = isb and self.o.get('qflag', 1)
        if fl:
            self.lstore([f'buffer_store_dword v0, off, {WSL}, {t3} offset:{L_FL - L_OAL}'])
        a.e('s_mov_b64 exec, -1')
        self.stamp('h2got', 2)
        if fl:
            a.e('v_and_b32 v9, 7, v0')
            a.e('v_lshlrev_b32 v9, 2, v9')
        self.H('l1', 0, 56)
        mm = [self.lnq_mfma(rho) for rho in range(3)]
        for rho in range(3):
            a.wait(ds=f'a{rho}')
            a.e(mm[rho][0])
        g = ['v_pk_add_f32 v[60:61], v[60:61], v[62:63]', 'v_add_f32 v62, v60, v61', 'v_add_f32 v60, v60, v61', 'v_cmp_u_f32 vcc, v62, v62',
             'v_permlane16_swap_b32 v60, v62', 'v_add_f32 v60, v60, v62',
             f'v_add_f32_dpp v60, v60, v60 quad_perm:[1,0,3,2] {FULL}', f'v_add_f32_dpp v60, v60, v60 quad_perm:[2,3,0,1] {FULL}',
             f'v_add_f32_dpp v60, v60, v60 row_half_mirror {FULL}']
        a.e(mm[0][1]); a.e('s_nop 1')
        a.e(mm[1][1]); a.e('s_nop 1')
        a.e(mm[2][1]); a.e('s_nop 0'); a.e(g[0])
        a.e(mm[0][2]); a.e(g[1]); a.e(g[2])
        a.e(mm[1][2]); a.e(g[3]); a.e(g[4])
        a.e(mm[2][2]); a.e(g[5])
        a.e('v_pk_add_f32 v[52:53], v[52:53], v[54:55]')
        a.e('v_add_f32 v52, v52, v53')
        a.e(g[6])
        a.e(g[7])
        a.e('v_pk_add_f32 v[56:57], v[56:57], v[58:59]')
        a.e('v_add_f32 v56, v56, v57')
        a.e(g[8])
        again2 = a.lab('again')
        self.retry_to(again2)
        a.e('v_permlane16_swap_b32 v52, v56')
        a.e('v_add_f32 v52, v52, v56')
        if isb:
            a.e(f'v_mov_b32_dpp v53, v52 quad_perm:[1,0,3,2] {FULL}')
            a.e('v_cvt_pk_bf16_f32 v52, v52, v53')
        a.ool(f'{again2}:\ns_barrier\ns_branch {again}')
        if fl == 1:
            a.e(f'buffer_load_dword v10, v9, {WSL}, {oOALg} offen offset:{L_FL - L_OAL} sc1')
            a.tag_vm('fl')
        self.lnq_publish(isb, False)
        if fl == 2:
            a.e(f'buffer_load_dword v10, v9, {WSL}, {oOALg} offen offset:{L_FL - L_OAL} sc1')
            a.tag_vm('fl')
        self.stamp('qpub')

    def clear_g1(self, R):
        b = self.a
        for r in range(R, R + 4):
            b.e(f'v_mov_b32 v{r}, -1')
        self.sums(t1, [(sX, 128 * 384), (sJ, 4 * 384), (sV, 384)], GB + G_IT)
        b.e('s_mov_b64 exec, 0xffffff')
        b.e(f'buffer_store_dwordx4 {vr(R, 4)}, {vL16}, {WS}, {t1} offen sc1')
        b.e('s_mov_b64 exec, -1')

    def clear_c1(self, R, va, vt):
        b = self.a
        for r in range(R, R + 4):
            b.e(f'v_mov_b32 v{r}, -1')
        b.e(f'v_lshrrev_b32 {va}, 4, v0')
        b.e(f'v_and_b32 {vt}, 0xf0, {vL16}')
        b.e(f'v_lshl_or_b32 {va}, {va}, 16, {vt}')
        out = []
        for q in range(4):
            out.append(f's_add_u32 {t1}, {oC1pub}, {q * 4096}')
            out.append(f'buffer_store_dwordx4 {vr(R, 4)}, {va}, {WS}, {t1} offen')
        return out

    def oob(self, reg, mask):
        a = self.a
        a.e(f's_mov_b32 vcc_lo, {mask[0]}')
        a.e(f's_mov_b32 vcc_hi, {mask[1]}')
        a.e(f'v_cndmask_b32 {reg[0]}, {reg[1]}, 2.0, vcc')

    def c1_addr(self, dst, tmp):
        a = self.a
        a.e(f'v_lshrrev_b32 {tmp}, 4, v0')
        a.e(f'v_and_b32 {dst}, 0xf0, {vL16}')
        a.e(f'v_lshl_or_b32 {dst}, {tmp}, 12, {dst}')

    def stats_const(self, C):
        return f'v_mov_b32 v{C}, {f32(64.0 / QSCALE ** 2)}'

    def stats(self, S, C):
        out = []
        for c in (4, 2, 1):
            out.append(f'v_add_f32_dpp v{S + 1}, v{S + 1}, v{S + 1} row_ror:{c} {FULL}')
            out.append(f'v_add_f32_dpp v{S}, v{S}, v{S} row_ror:{c} {FULL}')
        out.append(f'v_mul_f32 v{S + 1}, {f32(1.0 / (64 * 576))}, v{S + 1}')
        out.append(f'v_mul_f32 v{S}, {f32(1.0 / (64 * 576))}, v{S}')
        out.append(f'v_fma_f32 v{S}, -v{S + 1}, v{S + 1}, v{S}')
        out.append(f'v_max_f32 v{S}, 0, v{S}')
        out.append(f'v_fmaak_f32 v{S}, v{C}, v{S}, {f32(1e-5 / QSCALE ** 2)}')
        out.append(f'v_rsq_f32 v{S}, v{S}')
        return out

    def mix(self, x, y):
        x, y = list(x), list(y)
        while x or y:
            if x:
                self.a.e(x.pop(0))
            if y:
                self.a.e(y.pop(0))

    def resid(self, goff, base, va, final):
        a = self.a
        a.e(f'v_lshlrev_b32 {va}, 2, v0')
        a.e(f's_add_u32 {t2}, {oRES}, {goff}')
        a.e('s_mov_b64 exec, 0xfff')
        if final:
            self.sleep('fin')
        self.poll_begin()
        for i in range(8):
            if i & 1 == 0:
                a.e(f's_add_u32 {t3}, {t2}, {i * 3072}')
            a.e(f'buffer_load_dword v{base + i}, {va}, {WSG}, {t3} offen offset:{(i & 1) * 3072} sc1')
        a.e(f'v_mov_b32 v{base + 8}, 0x3f80')
        a.e(f'v_mov_b32 v{base + 9}, 0x3f800000')
        A = base + 10
        a.e(f'v_mov_b64 {vr(A, 2)}, v[4:5]')
        for i in range(8):
            if i & 1 == 0:
                a.e(f's_waitcnt vmcnt({6 - i})')
            a.e(f'v_dot2c_f32_bf16 v{A}, v{base + 8}, v{base + i}')
            a.e(f'v_dot2c_f32_bf16 v{A + 1}, v{base + 9}, v{base + i}')
        a.e('s_nop 2')
        a.e(f'v_cmp_u_f32 vcc, v{A}, v{A + 1}')
        if final:
            a.e(f'v_cvt_pk_bf16_f32 v9, v{A}, v{A + 1}')
            a.e(f's_mul_i32 {t0}, {sJ}, 48')
        self.poll_br()
        if not final:
            a.e(f'v_mov_b64 v[4:5], {vr(A, 2)}')

    def resid_track(self, goff, base, va, cond):
        a = self.a
        go, back = a.lab('res'), a.lab('resback')
        a.e(cond)
        a.e(f's_cbranch_scc1 {go}')
        a.e(f'{back}:')
        sub = Asm()
        sub.uid = a.uid + 1000 * (1 + len(a.tail))
        self.a = sub
        sub.e(f'{go}:')
        sub.e('s_nop 1')
        self.resid(goff, base, va, False)
        sub.e('s_mov_b64 exec, -1')
        sub.e(f's_branch {back}')
        self.a = a
        body = [i.text for i in sub.ins]
        cut = [k for k in range(0, len(body), 14)]
        for k in cut:
            part = body[k:k + 14]
            if k + 14 < len(body):
                nxt = a.lab('resp')
                part.append(f's_branch {nxt}')
                body[k + 14] = f'{nxt}:\n' + body[k + 14]
            a.ool('\n'.join(part))
        for t in sub.tail:
            a.ool(t)

    def qa_addr(self, T):
        a = self.a
        a.e(f'v_and_b32 v{T}, 4, v0')
        a.e(f'v_lshlrev_b32 v{T}, 3, v{T}')
        a.e(f'v_and_b32 v{T + 1}, 3, v0')
        a.e(f'v_lshl_or_b32 v{T}, v{T + 1}, 2, v{T}')
        a.e(f'v_lshrrev_b32 v{T + 1}, 5, v0')
        a.e(f'v_lshl_or_b32 v{T}, v{T + 1}, 4, v{T}')
        a.e(f'v_bfe_u32 v{T + 1}, v0, 4, 1')
        a.e(f'v_lshl_or_b32 v{T}, v{T + 1}, 1, v{T}')
        a.e(f's_lshl_b32 {t0}, {sV}, 6')
        a.e(f's_add_u32 {t0}, {t0}, {ZQ}')
        a.e(f'v_add_u32 v{T}, {t0}, v{T}')
        a.e(f'v_and_b32 v{T + 1}, 7, v0')
        a.e(f'v_lshlrev_b32 v{T + 1}, 3, v{T + 1}')
        self.oob((f'v{T + 1}', f'v{T + 1}'), (0xc0c0c0c0, 0xc0c0c0c0))
        self.oob((f'v{T + 3}', vL16), (0, 0xffff0000))
        self.sp_addr(f'v{T + 2}', ZQ)

    def red8(self, R):
        return [f'v_permlane32_swap_b32 v{R}, v{R + 2}',
                f'v_permlane32_swap_b32 v{R + 1}, v{R + 3}',
                f'v_pk_add_f32 {vr(R, 2)}, {vr(R, 2)}, {vr(R + 2, 2)}',
                f'v_permlane16_swap_b32 v{R}, v{R + 1}',
                f'v_add_f32 v{R}, v{R}, v{R + 1}',
                f'v_add_f32_dpp v{R}, v{R}, v{R} row_ror:8 {FULL}']

    def qa_loads(self, R, S, T):
        return [f'buffer_load_dwordx2 {vr(S, 2)}, v{T + 1}, {WSL}, {oSTgA} offen sc1',
                f'buffer_load_dwordx4 {vr(R, 4)}, v{T + 3}, {WSL}, {oQgA} offen sc1']

    def qa_finish(self, R, S, T, Q, C, br=False):
        a = self.a
        self.mix(self.stats(S, C), self.red8(R) + [f'v_and_b32 v{R + 1}, 0xffff0000, v1'])
        a.e(f'v_fma_f32 v{R}, -v{S + 1}, v{R + 1}, v{R}')
        a.e(f'v_mul_f32 v{R}, v{R}, v{S}')
        a.e(f'v_cvt_pk_bf16_f32 v{R}, v{R}, v{R}')
        a.e(f'ds_write_b16 v{T}, v{R}')
        if br:
            return
        self.bar(2, br)
        a.e(f'ds_read_b128 {vr(Q, 4)}, v{T + 2}')
        a.tag_ds('q0')
        a.e(f'ds_read_b128 {vr(Q + 4, 4)}, v{T + 2} offset:128')
        a.tag_ds('q1')

    def p_addr(self, r, t):
        a = self.a
        a.e(f'v_and_b32 {r}, 0x32, v0')
        a.e(f'v_lshlrev_b32 {r}, 3, {r}')
        a.e(f'v_and_b32 {t}, 8, v0')
        a.e(f'v_lshl_or_b32 {r}, {t}, 2, {r}')
        a.e(f'v_and_b32 {t}, 5, v0')
        a.e(f'v_lshl_or_b32 {r}, {t}, 1, {r}')
        a.e(f'v_add_u32 {r}, {sW8}, {r}')

    def qk_softmax(self, Q, D, S, T, fill=()):
        a = self.a
        for t in range(19):
            if t >= 3:
                d = D + 4 * ((t - 3) & 3)
                a.e(f'v_add_f32_dpp v{S + ((t - 3) & 3)}, v{d}, v{d + 1} {DPPI} row_mask:{1 << ((t - 3) >> 2)} bank_mask:0xf')
            if 4 <= t + 1 < 16:
                a.e(f'v_mov_b64 {vr(D + 4 * ((t + 1) & 3), 2)}, 0')
            if t < 16:
                d = vr(D + 4 * (t & 3), 4)
                if t == 0:
                    a.wait(ds='q0')
                a.e(f'v_smfmac_f32_16x16x64_bf16 {d}, {vr(Q, 4)}, a[{16 * t}:{16 * t + 7}], v1')
                if t == 0:
                    a.wait(ds='q1')
                elif t - 1 < len(fill):
                    for x in fill[t - 1]:
                        a.e(x)
                a.e(f'v_smfmac_f32_16x16x64_bf16 {d}, {vr(Q + 4, 4)}, a[{16 * t + 8}:{16 * t + 15}], v1')
        self.softmax_a(S, T, f'v{T + 1}')

    def softmax_a(self, S, T, pa, fill=()):
        a = self.a
        fill = list(fill)

        def f2():
            for _ in range(2):
                if fill:
                    a.e(fill.pop(0))
        m = f'v{T}'
        a.e(f'v_max3_f32 {m}, v{S}, v{S + 1}, v{S + 2}')
        a.e(f'v_max_f32 {m}, {m}, v{S + 3}')
        for c in ('row_ror:8', 'row_ror:4', 'row_ror:2', 'row_ror:1'):
            f2()
            a.e(f'v_max_f32_dpp {m}, {m}, {m} {c} {FULL}')
        f2()
        a.e(f'v_max_f32_dpp {m}, {m}, {m} row_bcast:15 row_mask:0xa bank_mask:0xf')
        f2()
        a.e(f'v_max_f32_dpp {m}, {m}, {m} row_bcast:31 row_mask:0xc bank_mask:0xf')
        a.e(f'v_readlane_b32 {sM}, {m}, 63')
        f2()
        assert not fill
        for r in range(4):
            a.e(f'v_subrev_f32 v{S + r}, {sM}, v{S + r}')
        for r in range(4):
            a.e(f'v_exp_f32 v{S + r}, v{S + r}')
        a.e(f'v_cvt_pk_bf16_f32 v{T + 2}, v{S}, v{S + 1}')
        a.e(f'v_cvt_pk_bf16_f32 v{T + 3}, v{S + 2}, v{S + 3}')
        a.e(f'ds_write_b16 {pa}, v{T + 2} offset:6144')
        a.e(f'ds_write_b16_d16_hi {pa}, v{T + 2} offset:{6144 + 4}')
        a.e(f'ds_write_b16 {pa}, v{T + 3} offset:{6144 + 64}')
        a.e(f'ds_write_b16_d16_hi {pa}, v{T + 3} offset:{6144 + 68}')

    def lsum(self, l, S):
        out = [f'v_pk_add_f32 {vr(S, 2)}, {vr(S, 2)}, {vr(S + 2, 2)}', f'v_add_f32 {l}, v{S}, v{S + 1}']
        for c in ('row_ror:8', 'row_ror:4', 'row_ror:2', 'row_ror:1'):
            out.append(f'v_add_f32_dpp {l}, {l}, {l} {c} {FULL}')
        out.append(f'v_add_f32_dpp {l}, {l}, {l} row_bcast:15 row_mask:0xa bank_mask:0xf')
        out.append(f'v_add_f32_dpp {l}, {l}, {l} row_bcast:31 row_mask:0xc bank_mask:0xf')
        return out

    def ml_write(self, T):
        return [f's_lshl_b32 {t0}, {sV}, 3', f's_add_u32 {t0}, {t0}, {ZML}', f'v_mov_b32 v{T + 2}, 0x30000', f'v_mov_b32 v{T}, {sM}',
                f'v_writelane_b32 v{T + 2}, {t0}, 63\nds_write_b64 v{T + 2}, {vr(T, 2)}']

    def ml_read(self, R, T):
        return [f'v_mov_b32 v{T}, {ZML}', f'ds_read_b128 {vr(R, 4)}, v{T}', f'ds_read_b128 {vr(R + 4, 4)}, v{T} offset:16']

    def ml_scale(self, R, T, F, LW):
        out = [f'v_max3_f32 v{T}, v{R}, v{R + 2}, v{R + 4}', f'v_max_f32 v{T}, v{T}, v{R + 6}']
        out += [f'v_sub_f32 v{R + 2 * w}, v{R + 2 * w}, v{T}' for w in range(4)]
        out += [f'v_sub_f32 v{F}, {sM}, v{T}']
        out += [f'v_exp_f32 v{R + 2 * w}, v{R + 2 * w}' for w in range(4)]
        out += [f'v_exp_f32 v{F}, v{F}', f'v_mul_f32 v{LW}, v{R}, v{R + 1}']
        out += [f'v_fmac_f32 v{LW}, v{R + 2 * w}, v{R + 2 * w + 1}' for w in range(1, 4)]
        out += [f'v_rcp_f32 v{R}, v{LW}', f'v_log_f32 v{LW}, v{LW}', f'v_mul_f32 v{F}, v{F}, v{R}', f'v_add_f32 v{LW}, v{LW}, v{T}']
        return out

    def combine_publish(self):
        a = self.a
        a.e('ds_write2st64_b32 v46, v44, v45 offset0:26 offset1:27')
        lwl = f'buffer_load_dword v16, v47, {WSL}, {oOALg} offen sc1'
        if self.o.get('lw_pos', 0) == 0:
            a.e(lwl)
        a.e(f'v_mov_b32 v10, {STG + 6656}')
        a.e('v_lshl_add_u32 v8, v0, 3, v10')
        a.e('v_and_b32 v10, 56, v0')
        a.e('v_lshlrev_b32 v10, 5, v10')
        a.e(f'v_and_or_b32 v10, {vL16}, 16, v10')
        a.e('v_and_b32 v11, 6, v0')
        a.e('v_lshl_or_b32 v10, v11, 1, v10')
        a.e(f's_cmp_lg_u32 {sV}, 0')
        a.e('s_waitcnt lgkmcnt(0)')
        a.e('s_barrier')
        l = a.lab('notw')
        if self.o.get('lw_pos', 0) == 0:
            a.e(f's_cbranch_scc1 {l}')
            a.begin_skip()
        for w in range(4):
            a.e(f'ds_read_b64 {vr(20 + 2 * w, 2)}, v8 offset:{w * 8192}')
            a.tag_ds(f'o{w}')
        if self.o.get('lw_pos', 0) == 1:
            a.e(lwl)
            a.e(f's_cbranch_scc1 {l}')
            a.begin_skip()
        a.wait(ds='o1')
        a.e('v_pk_add_f32 v[20:21], v[20:21], v[22:23]')
        a.wait(ds='o3')
        a.e('v_pk_add_f32 v[24:25], v[24:25], v[26:27]')
        a.e('v_pk_add_f32 v[20:21], v[20:21], v[24:25]')
        a.e('v_cvt_pk_bf16_f32 v20, v20, v21')
        self.end_only(l)
        self.lstore([f'buffer_store_dword v20, v10, {WSL}, {oOApub} offen'])
        a.e('s_waitcnt lgkmcnt(0)')

    def w8(self, lw, t):
        return [f'v_max_f32_dpp {t}, {lw}, {lw} row_ror:4 {FULL}',
                f'v_max_f32_dpp {t}, {t}, {t} row_ror:2 {FULL}',
                f'v_max_f32_dpp {t}, {t}, {t} row_ror:1 {FULL}',
                f'v_sub_f32 {lw}, {lw}, {t}',
                f'v_exp_f32 {lw}, {lw}',
                f'v_add_f32_dpp {t}, {lw}, {lw} row_ror:4 {FULL}',
                f'v_add_f32_dpp {t}, {t}, {t} row_ror:2 {FULL}',
                f'v_add_f32_dpp {t}, {t}, {t} row_ror:1 {FULL}',
                f'v_rcp_f32 {t}, {t}']

    def rot8(self, dst, sh):
        a = self.a
        a.e(f'v_lshrrev_b32 {dst}, 4, v0')
        a.e(f'v_lshl_add_u32 {dst}, {dst}, 1, v0')
        a.e(f'v_and_b32 {dst}, 7, {dst}')
        a.e(f'v_lshlrev_b32 {dst}, {sh}, {dst}')

    def weigh2(self, skip=0, lw='v16', chk=False):
        a = self.a
        w = self.w8(lw, 'v17')
        for x in w[skip:6]:
            a.e(x)
        a.e('v_add_f32 v20, v20, v21')
        a.e('v_add_f32 v22, v22, v23')
        a.e(w[6])
        a.e('v_add_f32 v24, v24, v25')
        a.e('v_add_f32 v26, v26, v27')
        a.e(w[7])
        a.e(f'v_mul_f32_dpp v20, {lw}, v20 row_newbcast:0 {FULL}')
        a.e(f'v_mul_f32_dpp v24, {lw}, v24 row_newbcast:0 {FULL}')
        a.e(f'v_fmac_f32_dpp v20, {lw}, v22 row_newbcast:1 {FULL}')
        a.e(f'v_fmac_f32_dpp v24, {lw}, v26 row_newbcast:1 {FULL}')
        a.e(w[8])
        if chk:
            a.e('v_cmp_u_f32 vcc, v20, v20')
        a.e('v_permlane32_swap_b32 v20, v24')
        a.e('v_add_f32 v20, v20, v24')
        a.e('v_mul_f32 v20, v20, v17')

    def w8n(self, lw, t, W):
        return self.w8(lw, t) + [f'v_mul_f32_dpp v{W}, {lw}, {t} row_newbcast:0 {FULL}', f'v_mul_f32_dpp v{W + 1}, {lw}, {t} row_newbcast:1 {FULL}']

    def weigh2n(self, W, dup=None):
        a = self.a
        w = vr(W, 2)
        a.e(f'v_pk_mul_f32 v[20:21], v[20:21], {w} op_sel_hi:[1,0]')
        a.e(f'v_pk_fma_f32 v[20:21], v[22:23], {w}, v[20:21] op_sel:[0,1,0] op_sel_hi:[1,1,1]')
        a.e(f'v_pk_mul_f32 v[24:25], v[24:25], {w} op_sel_hi:[1,0]')
        a.e('v_add_f32 v20, v20, v21')
        a.e(f'v_pk_fma_f32 v[24:25], v[26:27], {w}, v[24:25] op_sel:[0,1,0] op_sel_hi:[1,1,1]')
        a.e('v_add_f32 v24, v24, v25')
        a.e('v_cmp_u_f32 vcc, v20, v20')
        a.e('v_permlane32_swap_b32 v20, v24')
        if dup:
            a.e(f'v_add_f32 {dup}, v20, v24')
        a.e('v_add_f32 v20, v20, v24')

    def outproj(self, isa):
        a = self.a
        if not isa:
            a.e(f's_add_u32 {t4}, {oO}, {L_OB - L_OA}')
        so = oO if isa else t4
        ld = [f'buffer_load_dwordx4 v[8:11], {vL16}, {WSL}, {so} offen sc1',
              f'buffer_load_dwordx4 v[12:15], {vL16}, {WSL}, {so} offen offset:1024 sc1']
        a.e('v_lshrrev_b32 v28, 4, v0')
        a.e('v_bfe_u32 v29, v0, 2, 2')
        a.e('v_lshl_add_u32 v28, v28, 3, v29')
        a.e('v_mul_u32_u24 v28, 48, v28')
        a.e('v_and_b32 v29, 3, v0')
        a.e('v_lshl_add_u32 v28, v29, 3, v28')
        a.e(f'v_add_u32 v28, {sW8}, v28')
        tr = []
        for blk in range(2):
            for tile in range(2):
                for hh in range(2):
                    for half in range(2):
                        off = (64 * blk + 32 * hh + 4 * half) * 48 + 32 * tile
                        tr.append(f'ds_read_b64_tr_b16 {vr(32 + 16 * tile + 8 * blk + 4 * hh + 2 * half, 2)}, v28 offset:{off}')
        a.e(f's_lshl_b32 {t2}, {sV}, 3')
        a.e(f's_add_u32 {t2}, {t2}, {ZO}')
        pre = ['v_and_b32 v18, 15, v0', 'v_lshrrev_b32 v19, 5, v0', 'v_lshl_add_u32 v18, v19, 4, v18', 'v_bfe_u32 v19, v0, 4, 1',
               'v_lshlrev_b32 v19, 2, v19', 'v_lshl_add_u32 v18, v18, 5, v19', f'v_add_u32 v18, {t2}, v18', f'v_mov_b32 v19, {ZO}',
               'v_and_b32 v29, 15, v0', 'v_lshl_add_u32 v19, v29, 6, v19', 'v_lshlrev_b32 v29, 2, v0']
        n1 = self.o.get('tr_pre', 8)
        if isa:
            a.e('s_waitcnt vmcnt(1)')
            a.vmq = []
        a.wait(vm='wo')
        for x in tr[:n1]:
            a.e(x)
        if isa:
            chk, again = a.lab('chk'), a.lab('again')
            a.e(f'{chk}:')
            a.e('v_cmp_eq_u32 vcc, -1, v16')
            a.e('v_mov_b32 v22, v16')
            self.retry_with([f'buffer_load_dword v16, v47, {WSL}, {oOALg} offen sc1'], 's_waitcnt vmcnt(1)', chk)
        self.sleep('h1' if isa else 'hd')
        for x in ld:
            a.e(x)
        if isa:
            pre = [x for p in zip(self.w8n('v22', 'v17', 30), pre) for x in p]
        self.mix(tr[n1:], pre)
        a.e(f's_add_u32 {t2}, {oYpub}, {G_YA if isa else G_YB}')
        if self.o.get('wq_hoist', 1):
            self.wq_prep('v17', 'v28')
        top = a.lab('poll')
        a.e(f'{top}:')
        for x in ld:
            self.H('o0', 0, 20)
            a.e(x)
        for r in range(26, 18, -2):
            a.e(f'v_mov_b64 {vr(r, 2)}, 0')
        self.K(0, 'po', True)
        a.e(f's_waitcnt vmcnt({len(ld)}) lgkmcnt(0)')
        a.e('v_cmp_u_f32 vcc, v8, v12')
        a.e('v_smfmac_f32_16x16x64_bf16 v[20:23], v[8:11], v[32:39], v1')
        a.e('v_smfmac_f32_16x16x64_bf16 v[20:23], v[12:15], v[40:47], v1')
        self.retry_to(top)
        a.e('v_smfmac_f32_16x16x64_bf16 v[24:27], v[8:11], v[48:55], v1')
        a.e('v_smfmac_f32_16x16x64_bf16 v[24:27], v[12:15], v[56:63], v1')
        self.stamp('ogot')
        if isa:
            self.weigh2n(30)
        else:
            a.e('v_pk_add_f32 v[20:21], v[20:21], v[22:23]')
            a.e('v_add_f32 v20, v20, v21')
            a.e('v_cmp_u_f32 vcc, v20, v20')
            a.e('v_pk_add_f32 v[24:25], v[24:25], v[26:27]')
            a.e('v_add_f32 v24, v24, v25')
            a.e('v_permlane32_swap_b32 v20, v24')
            a.e('v_add_f32 v20, v20, v24')
        a.e('ds_write_b32 v18, v20')
        self.H('o1', 0, 24)
        self.retry_to(top)
        a.e(f's_bitcmp0_b32 {sRES}, 0')
        self.H('o2', 0, 24)
        self.bar(1, True)
        l = a.lab('noy')
        a.e(f's_cbranch_scc1 {l}')
        a.begin_skip()
        for i in range(4):
            a.e(f'ds_read_b128 {vr(32 + 4 * i, 4)}, v19 offset:{16 * i}')
            a.tag_ds(f'z{i}')
            if i == 1:
                self.H('o3', 0, 24)
        a.e('s_mov_b32 exec_hi, 0')
        self.K(2)
        self.Wm()
        a.wait(ds='z1')
        a.e('v_pk_add_f32 v[32:33], v[32:33], v[34:35]')
        a.e('v_pk_add_f32 v[36:37], v[36:37], v[38:39]')
        a.e('v_pk_add_f32 v[32:33], v[32:33], v[36:37]')
        a.e('v_add_f32 v32, v32, v33')
        a.wait(ds='z3')
        a.e('v_pk_add_f32 v[40:41], v[40:41], v[42:43]')
        a.e('v_pk_add_f32 v[44:45], v[44:45], v[46:47]')
        a.e('v_pk_add_f32 v[40:41], v[40:41], v[44:45]')
        a.e('v_add_f32 v33, v40, v41')
        a.e('v_pk_add_f32 v[32:33], v[32:33], v[4:5]')
        a.e('v_cvt_pk_bf16_f32 v34, v32, v33')
        a.e(f'buffer_store_dword v34, v29, {WSG}, {t2} offen sc1')
        a.e('s_mov_b32 exec_hi, -1')
        a.end_skip()
        a.e(f'{l}:')
        self.stamp('ypub')

    def qabs(self):
        a = self.a
        a.e('v_and_b32 v36, 7, v0')
        a.e('v_lshlrev_b32 v37, 3, v36')
        self.oob(('v37', 'v37'), (0xc0c0c0c0, 0xc0c0c0c0))
        self.oob(('v33', vL16), (0xf000f000, 0xf000f000))
        a.e(f's_sub_u32 {t0}, {sW8}, {sKV}')
        a.e(f'v_add_u32 v56, {t0}, {vA}')
        for ks in range(1, 4):
            a.e(f'v_xor_b32 v{56 + ks}, {ks << 6}, v56')
        a.e('v_and_b32 v38, 8, v0')
        a.e('v_lshlrev_b32 v38, 3, v38')
        a.e('v_lshl_or_b32 v38, v36, 1, v38')
        a.e(f's_lshl_b32 {t0}, {sV}, 4')
        a.e(f's_add_u32 {t0}, {t0}, {ZQ}')
        a.e(f'v_add_u32 v38, {t0}, v38')
        a.e(f'v_add_u32 v39, {ZQ}, {vL16}')
        a.e(self.stats_const(32))
        if self.o.get('qflag', 1):
            chk, again = a.lab('chk'), a.lab('again')
            a.wait(vm='fl')
            a.e(f'{chk}:')
            a.e('v_cmp_eq_u32 vcc, -1, v10')
            self.retry_to(again)
            a.ool(f'{again}:\nbuffer_load_dword v10, v9, {WSL}, {oOALg} offen offset:{L_FL - L_OAL} sc1\ns_waitcnt vmcnt(1)\ns_branch {chk}')
        self.sleep('hqb')
        top = a.lab('poll')
        a.e(f'{top}:')
        a.e(f'buffer_load_dwordx2 v[34:35], v37, {WSL}, {oSTgB} offen sc1')
        a.tag_vm('st')
        for i in (2, 3, 0, 1):
            a.e(f'buffer_load_dwordx4 {vr(8 + 4 * i, 4)}, v33, {WSL}, {oQgB} offen offset:{i * 1024} sc1')
            a.tag_vm(f'q{i}')
        a.e('s_waitcnt vmcnt(5)')
        for ks in range(4):
            a.e(f'ds_read_b128 {vr(40 + 4 * ks, 4)}, v{56 + ks}')
            a.e(f'v_mov_b64 {vr(24 + 2 * ks, 2)}, 0')
        self.H('q1', 0, 60)
        a.wait(vm='st')
        a.e('v_cmp_u_f32 vcc, v34, v35')
        st = self.stats(34, 32)
        for x in st[:4]:
            a.e(x)
        self.retry_to(top)
        for x in st[4:6]:
            a.e(x)
        a.e('s_waitcnt lgkmcnt(0)')
        a.wait(vm='q2')
        a.e('v_smfmac_f32_16x16x64_bf16 v[28:31], v[16:19], v[40:47], v1')
        for x in st[6:]:
            a.e(x)
        a.wait(vm='q3')
        a.e('v_smfmac_f32_16x16x64_bf16 v[28:31], v[20:23], v[48:55], v1')
        self.H('q2', 0, 60)
        a.wait(vm='q0')
        a.e('v_smfmac_f32_16x16x64_bf16 v[24:27], v[8:11], v[40:47], v1')
        self.K(1, 'qb3', True)
        a.e('v_pk_add_f32 v[28:29], v[28:29], v[30:31]')
        a.e('v_add_f32 v28, v28, v29')
        a.e('v_mul_f32 v28, v28, v35')
        a.e(f's_cmp_lg_u32 {sV}, 0')
        self.K(0, 'qb4', True)
        a.wait(vm='q1')
        a.e('v_smfmac_f32_16x16x64_bf16 v[24:27], v[12:15], v[48:55], v1')
        self.stamp('qgotB', 2)
        a.e('v_pk_add_f32 v[24:25], v[24:25], v[26:27]')
        a.e('v_sub_f32 v24, v24, v28')
        a.e('v_add_f32 v24, v24, v25')
        a.e('v_mul_f32 v25, v24, v34')
        a.e('v_mul_f32 v24, v24, v34')
        a.e('v_cmp_u_f32 vcc, v24, v24')
        a.e('v_permlane32_swap_b32 v24, v25')
        a.e('v_add_f32 v26, v24, v25')
        a.e('v_add_f32 v24, v24, v25')
        a.e('v_permlane16_swap_b32 v24, v26')
        a.e('v_add_f32 v24, v24, v26')
        a.e('v_cvt_pk_bf16_f32 v24, v24, v24')
        a.e('ds_write_b16 v38, v24')
        self.retry_to(top)
        a.e('s_waitcnt lgkmcnt(0)')
        a.e('s_barrier')
        l = a.lab('notw')
        a.e(f's_cbranch_scc1 {l}')
        a.begin_skip()
        a.e('s_mov_b64 exec, 0xff')
        a.e('ds_read_b128 v[24:27], v39')
        a.e('s_waitcnt lgkmcnt(0)')
        a.e(f'buffer_store_dwordx4 v[24:27], {vL16}, {WSG}, {oQApub} offen sc1')
        a.e('s_mov_b64 exec, -1')
        self.end_only(l)
        self.stamp('qapub')
        self.touches('w3', 'v8', 'v9')
        self.resid_track(G_YA, 10, 'v8', f's_cmp_eq_u32 {sRES}, 3')

    def attn_b(self):
        a = self.a
        a.e(f's_mul_i32 {t0}, {sV}, {4096 - 16384}')
        a.e(f's_add_u32 {t0}, {t0}, {CKV}')
        a.e(f'v_add_u32 v56, {t0}, {vA}')
        a.e('v_xor_b32 v57, 64, v56')
        ORD = [(r, ks) for kp in range(2) for r in range(4) for ks in (2 * kp, 2 * kp + 1)]
        ga = ['v_and_b32 v58, 12, v0', 'v_lshlrev_b32 v58, 4, v58', 'v_and_or_b32 v58, v0, 48, v58', 'v_lshlrev_b32 v58, 2, v58',
              f'v_and_or_b32 v58, {vL16}, 48, v58', 'v_lshlrev_b32 v8, 7, v0', 'v_mov_b32 v9, 0']
        for x in ga:
            a.e(x)
        a.e(f'v_add_u32 v59, {STG}, {vL16}')
        a.e('s_barrier')

        self.lstore(self.clear_c1(12, 'v16', 'v17'))
        self.sleep('ha')
        top = a.lab('poll')
        a.e(f'{top}:')
        ld = [f's_mov_b32 m0, {sW8}', 's_mov_b32 exec_hi, 0', f'buffer_load_dword v9, v8, {WSG}, {oQAg} offen sc1', 's_mov_b32 exec_hi, -1']
        for ks in range(4):
            ld.append(f'buffer_load_dwordx4 v58, {WSG}, {oQAg} offen offset:{ks * 1024} sc1 lds')
        for x in ld:
            a.e(x)
        for k in range(8):
            r, ks = ORD[k]
            a.e(f'ds_read_b128 {vr(24 + 4 * k, 4)}, v{56 + (ks & 1)} offset:{r * 16384}')
        a.e('v_xor_b32 v56, 128, v56')
        a.e('v_xor_b32 v57, 128, v57')
        self.k64_addr('v10', None)
        l4 = self.o.get('l4_wo', 0)
        if l4 == 2:
            self.wo_prep(12, 'v15')
        chk, again = a.lab('chk'), a.lab('again')
        a.e(f'{chk}:')
        a.e('s_waitcnt vmcnt(4)')
        a.e('v_cmp_eq_u32 vcc, -1, v9')
        self.retry_with(ld, 's_nop 0', chk)
        pol = self.o.get('pol_wuv', '')
        for i in range(1, 4):
            a.e(f's_add_u32 {[t1, t2, t3][i - 1]}, {oWUV}, {i * (16 * 8192 - 1024)}')
        a.e('v_mov_b32 v58, v10')
        half = self.o.get('qa_half', 1)
        if l4 == 2:
            a.e(f's_cmp_eq_u32 {sIT}, 1')
            a.e(f's_cselect_b32 {t0}, {sKV}, 0x30000')
            a.e(f's_cselect_b32 {t4}, {oWO}, {OOB}')
            a.e(f's_cselect_b32 {t5}, {t5}, {OOB}')
            for x in self.wo_lines(BWO, 12, '', t0):
                a.e(x.replace(f', {oWO} ', f', {t4} '))
        ex = 6 if l4 == 2 else 0
        a.e(f's_waitcnt vmcnt({(2 if half else 0) + ex}) lgkmcnt(0)')
        a.e('s_barrier')
        self.stamp('qagot')

        def qread(k):
            r, ks = ORD[k]
            a.e(f'ds_read_b128 {vr(8 + 4 * (k & 3), 4)}, v59 offset:{r * 8192 + ks * 1024}')
            a.tag_ds(f'q{k}')
        for k in range(4):
            qread(k)
        a.e(f's_add_u32 m0, {sW8}, 4096')
        SLOT = [16, 40, 48]

        def tread(e, ad='v57'):
            l = [f'v_xor_b32 {ad}, {CKV | (e << 5)}, {vT}']
            for t in range(4):
                l.append(f'ds_read_b64_tr_b16 {vr(SLOT[e % 3] + 2 * t, 2)}, {ad} offset:{t * 4096}')
            return l
        for k in range(16):
            a.wait(ds=f'q{k}')
            a.e(f'v_mfma_f32_16x16x32_bf16 v[60:63], {vr(24 + 4 * (k & 7), 4)}, {vr(8 + 4 * (k & 3), 4)}, {"v[60:63]" if k else "0"}')
            if k < 8:
                r, ks = ORD[k + 8]
                a.e(f'ds_read_b128 {vr(24 + 4 * k, 4)}, v{56 + (ks & 1)} offset:{r * 16384}')
            if k == 4 and half:
                a.e(f's_waitcnt vmcnt({2 + ex})')
                a.e('s_barrier')
            if k + 4 < 16:
                qread(k + 4)
            if k in (0, 2, 4, 6):
                a.e(f'buffer_load_dwordx4 v58, {WUV}, {[oWUV, t1, t2, t3][k >> 1]} offen offset:{(k >> 1) * 1024} {pol} lds')
            if k == 10:
                a.e('s_barrier')
            if k == 8:
                a.e(f'v_and_b32 v58, 0xf0, {vL16}')
                a.e(f's_lshl_b32 {t0}, {sV}, 2')
            if k == 9:
                a.e(f'v_add_u32 v58, {STG}, v58')
                a.e(f's_add_u32 {t1}, {oC1pub}, 4096')
            if k == 11:
                a.e(f'v_add_u32 v24, {t0}, v58')
                a.e(f's_add_u32 {t2}, {oC1pub}, 8192')
            if k == 12:
                a.e('v_xor_b32 v56, 128, v56')
                a.e(f'v_lshl_add_u32 v25, v0, 3, {sW8}')
            if k == 13:
                t1_ = tread(1)
                a.e(t1_[0]); a.e(t1_[1])
            if k == 14:
                a.e(t1_[2]); a.e(t1_[3])
        a.e(t1_[4])
        t0_, t2_ = tread(0), tread(2)
        a.e(f'v_mov_b32 v26, {STG}')
        a.e('v_lshl_add_u32 v26, v0, 3, v26')
        a.e(f's_add_u32 {t3}, {oC1pub}, 12288')
        for r in range(36, 40):
            a.e(f'v_mov_b32 v{r}, 0x3f803f80')
        a.e('v_max3_f32 v28, v60, v61, v62')
        a.e('v_max_f32 v29, v28, v63')
        a.e('v_max_f32 v28, v28, v63')
        a.e(t0_[0]); a.e(t0_[1])
        a.e('v_permlane32_swap_b32 v28, v29')
        a.e('v_max_f32 v30, v28, v29')
        a.e('v_max_f32 v28, v28, v29')
        a.e(t0_[2]); a.e(t0_[3])
        a.e('v_permlane16_swap_b32 v28, v30')
        a.e('v_max_f32 v28, v28, v30')
        a.e('ds_write_b32 v24, v28')
        a.tag_ds('mw')
        a.e(t0_[4])
        a.e(t2_[0])
        self.H('b0', 1, 32)
        a.e(t2_[1]); a.e(t2_[2]); a.e(t2_[3]); a.e(t2_[4])
        self.H('b1', 1, 32)
        a.wait(ds='mw')
        a.e('s_barrier')
        a.e('ds_read_b128 v[28:31], v58')
        a.tag_ds('mr')
        self.stamp('sbar', 2)
        self.H('b2', 1, 32)
        a.wait(ds='mr')
        a.e('v_max3_f32 v28, v28, v29, v30')
        a.e('v_max_f32 v28, v28, v31')
        a.e('v_pk_add_f32 v[60:61], v[60:61], v[28:29] op_sel_hi:[1,0] neg_lo:[0,1] neg_hi:[0,1]')
        a.e('v_pk_add_f32 v[62:63], v[62:63], v[28:29] op_sel_hi:[1,0] neg_lo:[0,1] neg_hi:[0,1]')
        for r in range(60, 64):
            a.e(f'v_exp_f32 v{r}, v{r}')
        a.e('v_cvt_pk_bf16_f32 v30, v60, v61')
        a.e('v_cvt_pk_bf16_f32 v31, v62, v63')
        a.e('ds_write_b64 v25, v[30:31] offset:1024')
        a.e('v_lshrrev_b32 v61, 4, v0')
        a.e(f'v_and_b32 v60, 0xf0, {vL16}')
        a.e('v_lshl_or_b32 v61, v61, 16, v60')
        a.e('v_mov_b32 v62, v28')
        a.e('v_xor_b32 v57, 64, v56')
        a.e('v_and_b32 v27, 12, v0')
        a.e('v_lshlrev_b32 v27, 4, v27')
        self.H('b3', 1, 32)
        self.lcmp()
        a.e('s_waitcnt lgkmcnt(0)')
        a.e('s_barrier')
        a.e('ds_read2st64_b64 v[8:11], v26 offset0:2 offset1:18')
        a.tag_ds('p0')
        a.e('ds_read2st64_b64 v[12:15], v26 offset0:34 offset1:50')
        a.tag_ds('p1')
        self.stamp('smax', 2)
        a.e('v_and_or_b32 v27, v0, 3, v27')
        a.e('v_lshlrev_b32 v27, 3, v27')
        self.K(2, 'b4', True)
        ACC = [28, 56, 36, 32]
        a.wait(ds='p0')
        a.e('v_cmp_u_f32 vcc, v8, v8')
        a.e(f'v_mfma_f32_16x16x32_bf16 v[28:31], v[8:11], {vr(SLOT[0], 4)}, 0')
        a.e('v_mfma_f32_16x16x32_bf16 v[32:35], v[36:39], v[8:11], 0')
        again = a.lab('again')
        self.retry_to(again)
        a.ool(f'{again}:\n' + '\n'.join(['s_waitcnt lgkmcnt(0)'] + ga) + f'\ns_barrier\ns_branch {top}')
        a.wait(ds='p1')
        a.e('v_mfma_f32_16x16x32_bf16 v[32:35], v[36:39], v[12:15], v[32:35]')
        so = [oC1pub, t1, t2, t3]
        ml = ['s_mov_b64 exec, 0xffff', f'buffer_store_dwordx2 v[62:63], v27, {WSL}, {oMLpub} offen', 's_mov_b64 exec, -1']
        mlat = self.o.get('ml_at', 2)

        def pack(q):
            d0, d1 = ACC[(2 * q) & 3], ACC[(2 * q + 1) & 3]
            return [f'v_cvt_pk_bf16_f32 v{24 + r}, v{d0 + r}, v{d1 + r}' for r in range(4)]

        def put(q):
            self.lstore([f'buffer_store_dwordx4 v[24:27], v61, {WS}, {so[q]} offen'] + (ml if q == mlat else []))
        F = {e: [[], []] for e in range(8)}
        early = self.o.get('ml_early', 1)
        mlat = -1
        F[1][1] = ['v_mov_b32 v63, v32']
        F[self.o.get('ml_e', 2)][1] += ['ML']
        F[3][0] = pack(0)[:2]
        F[3][1] = pack(0)[2:]
        F[5][0] = pack(1)[:2]
        F[5][1] = pack(1)[2:]
        F[6][0] = ['v_and_b32 v60, 3, v0', 'v_lshlrev_b32 v60, 6, v60']
        F[6][1] = ['v_and_or_b32 v60, v0, 60, v60', 'v_lshlrev_b32 v60, 1, v60']
        F[7][0] = pack(2)
        for e in range(8):
            a.wait(ds=f't{e}')
            d = vr(ACC[e & 3], 4)
            s = SLOT[e % 3]
            nx = tread(e + 3, 'v60') if e + 3 < 8 else []
            if nx:
                a.e(nx[0])
            if e:
                a.e(f'v_mfma_f32_16x16x32_bf16 {d}, v[8:11], {vr(s, 4)}, 0')
            if e in (4, 6):
                put((e - 4) // 2)
            for x in nx[1:3]:
                a.e(x)
            for x in F[e][0]:
                a.e(x)
            a.e(f'v_mfma_f32_16x16x32_bf16 {d}, v[12:15], {vr(s + 4, 4)}, {d}')
            for x in nx[3:]:
                a.e(x)
            if nx:
                a.tag_ds(f't{e + 3}')
            for x in F[e][1]:
                if x == 'ML':
                    self.lstore(ml)
                else:
                    a.e(x)
            if e == 7:
                put(2)
        if early == 1:
            a.e(f'buffer_load_dwordx2 v[22:23], v60, {WSL}, {oMLg} offen sc1')
            a.tag_vm('ml0')
        for x in pack(3):
            a.e(x)
        put(3)
        if early == 2:
            a.e(f'buffer_load_dwordx2 v[22:23], v60, {WSL}, {oMLg} offen sc1')
            a.tag_vm('ml0')
        self.stamp('c1pub')

    def red(self):
        a = self.a
        ld = f'buffer_load_dwordx2 v[22:23], v60, {WSL}, {oMLg} offen sc1'
        a.e('v_and_b32 v45, 56, v0')
        a.e('v_lshlrev_b32 v45, 1, v45')
        a.e('v_and_or_b32 v45, v0, 6, v45')
        a.e('v_lshlrev_b32 v45, 1, v45')
        a.e(f'v_and_or_b32 v45, {vL16}, 16, v45')
        a.e('v_lshlrev_b32 v46, 2, v0')
        for r in range(28, 36, 2):
            a.e(f'v_mov_b64 {vr(r, 2)}, 0')
        ne = self.o.get('wo_e', 0)
        if ne:
            self.wo_prep(41, 'v39')
            a.e('s_barrier')
        cl = [f'buffer_load_dwordx4 {vr(8 + 4 * i, 4)}, {vL16}, {WS}, {oC1g} offen offset:{i * 1024} sc1' for i in range(4)]
        ch = [f'v_max_f32_dpp v36, v22, v22 quad_perm:[1,0,3,2] {FULL}',
              f'v_max_f32_dpp v37, v36, v36 quad_perm:[2,3,0,1] {FULL}', f'v_max_f32_dpp v36, v36, v36 quad_perm:[2,3,0,1] {FULL}',
              'v_permlane32_swap_b32 v36, v37', 'v_max_f32 v38, v36, v37', 'v_max_f32 v36, v36, v37',
              'v_permlane16_swap_b32 v36, v38', 'v_max_f32 v36, v36, v38', 'v_sub_f32 v24, v24, v36', 'v_exp_f32 v24, v24',
              'v_mul_f32 v25, v25, v24', f'v_add_f32_dpp v25, v25, v25 quad_perm:[1,0,3,2] {FULL}',
              f'v_add_f32_dpp v37, v25, v25 quad_perm:[2,3,0,1] {FULL}', f'v_add_f32_dpp v25, v25, v25 quad_perm:[2,3,0,1] {FULL}',
              'v_permlane32_swap_b32 v25, v37', 'v_add_f32 v38, v25, v37', 'v_add_f32 v25, v25, v37',
              'v_permlane16_swap_b32 v25, v38', 'v_add_f32 v25, v25, v38', 'v_rcp_f32 v38, v25', 'v_log_f32 v37, v25',
              'v_mul_f32 v24, v24, v38', 'v_add_f32 v37, v37, v36', 'v_cvt_pk_bf16_f32 v26, v24, 0', 'v_cvt_pk_bf16_f32 v27, 0, v24']
        chk, again = a.lab('chk'), a.lab('again')
        if self.o.get('ml_early', 1) == 4:
            self.sleep('mld')
            a.e(ld)
            a.tag_vm('ml0')
            if self.o.get('sleep', {}).get('mld2'):
                self.sleep('mld2')
                a.e(ld)
        a.wait(vm='ml0')
        a.e(f'{chk}:')
        a.e('v_cmp_u_f32 vcc, v22, v23')
        a.e(ch[0])
        a.e('v_mov_b64 v[24:25], v[22:23]')
        self.retry_with([ld], 's_waitcnt vmcnt(1)', chk)
        self.stamp('mlgot', 2)
        npre = self.o.get('red_pre', 8)
        for x in ch[1:npre]:
            a.e(x)
        self.sleep('hc1')
        for i, x in enumerate(cl):
            a.e(x)
            a.tag_vm(f'c{i}')
        for x in self.wo_group(BWO, 41, 0, ne):
            a.e(x)
        for x in ch[max(npre, 1):]:
            a.e(x)
        lwe = self.o.get('lw_early', 1)
        lws = ['s_mov_b32 exec_hi, 0', f'buffer_store_dword v37, v46, {WSG}, {oC2Lpub} offen sc1', 's_mov_b32 exec_hi, -1']
        if lwe == 1 or lwe == 3:
            if lwe == 3:
                a.e('s_barrier')
            for x in lws:
                a.e(x)
        self.H('r1', 0, 48)
        top, again = a.lab('acc'), a.lab('again')
        a.e(f'{top}:')
        for i in range(4):
            if i:
                self.K(0, 'rd', True)
            a.wait(vm=f'c{i}')
            for d in range(4):
                a.e(f'v_dot2c_f32_bf16_dpp v{28 + 2 * d}, v26, v{8 + 4 * i + d} row_newbcast:{4 * d + i} {FULL}')
                a.e(f'v_dot2c_f32_bf16_dpp v{29 + 2 * d}, v27, v{8 + 4 * i + d} row_newbcast:{4 * d + i} {FULL}')
        for i in range(4):
            a.e(f'v_permlane32_swap_b32 v{28 + i}, v{32 + i}')
        a.e('v_pk_add_f32 v[28:29], v[28:29], v[32:33]')
        a.e('v_pk_add_f32 v[30:31], v[30:31], v[34:35]')
        a.e('v_cmp_u_f32 vcc, v28, v30')
        a.e('v_permlane16_swap_b32 v28, v30')
        a.e('v_permlane16_swap_b32 v29, v31')
        a.e('v_pk_add_f32 v[28:29], v[28:29], v[30:31]')
        a.e('v_cvt_pk_bf16_f32 v28, v28, v29')
        self.retry_to(again)
        a.ool(f'{again}:\n' + '\n'.join(cl) + '\n' + '\n'.join(f'v_mov_b64 {vr(r, 2)}, 0' for r in range(28, 36, 2)) + f'\ns_waitcnt vmcnt(0)\ns_branch {top}')
        a.e(f'buffer_store_dword v28, v45, {WSG}, {oC2pub} offen sc1')
        if lwe == 2:
            for x in lws:
                a.e(x)
        self.stamp('c2pub')
        a.e('v_and_b32 v40, 4, v0')
        a.e('v_lshlrev_b32 v40, 4, v40')
        a.e('v_and_or_b32 v40, v0, 48, v40')
        a.e('v_lshlrev_b32 v40, 1, v40')
        a.e('v_and_or_b32 v40, v0, 11, v40')
        a.e(f'v_lshl_add_u32 v40, v40, 3, {sW8}')
        for tau in range(2):
            for gam in range(2):
                for tt in range(2):
                    a.e(f'ds_read_b64_tr_b16 {vr(48 + 8 * tau + 4 * gam + 2 * tt, 2)}, v40 offset:{4096 + (32 * gam + 2 * tt) * 64 + 32 * tau}')
        if not ne:
            self.wo_prep(41, 'v39')
        if self.o.get('wo_pre', 6) > 4:
            a.e('s_waitcnt lgkmcnt(0)')
        a.e('s_barrier')
        if self.o.get('x_wo'):
            a.e('s_waitcnt vmcnt(0)')
            self.stamp('x_ack')

        def clear2():
            b = self.a
            for r in range(8, 12):
                b.e(f'v_mov_b32 v{r}, -1')
            self.sums(t2, [(sJ, 4 * 448), (sV, 448)], L_IT)
            b.e('s_mov_b64 exec, 0xfffffff')
            self.lstore([f'buffer_store_dwordx4 v[8:11], {vL16}, {WSL}, {t2} offen'])
            b.e('s_mov_b64 exec, -1')
        npre = self.o.get('wo_pre', 6)
        for x in self.wo_group(BWO, 41, ne, npre):
            a.e(x)
        if npre == 6:
            a.tag_vm('wo')
        self.ool_if(f's_cmp_eq_u32 {sIT}, 0', clear2, lambda: self.sleep('hc4'))
        self.wol = self.wo_group(BWO, 41, npre, 6)
        if self.o.get('x_wo'):
            self.stamp('x_iss')
            a.e('s_waitcnt vmcnt(0)')
            self.stamp('x_land')

    def wb(self, where):
        a = self.a
        if self.o.get('wb') != where:
            return
        l = a.lab('nowb')
        self.sums(t1, [(sJ, 8), (sV, 2), (sIT, 1)])
        a.e(f's_cmp_lg_u32 {t1}, {24 * 8 + 1}')
        a.e(f's_cbranch_scc1 {l}')
        a.begin_skip()
        a.e('buffer_wbl2 sc1')
        self.end_only(l)

    def uv(self):
        a = self.a
        a.e('v_lshrrev_b32 v28, 1, v0')
        a.e('v_and_or_b32 v28, v28, 16, 0')
        a.e('v_and_or_b32 v28, v0, 14, v28')
        a.e('v_lshlrev_b32 v28, 6, v28')
        a.e('v_and_or_b32 v28, v0, 16, v28')
        a.e('v_lshlrev_b32 v28, 1, v28')
        a.e(f'v_and_or_b32 v28, {vL16}, 16, v28')
        self.rot8('v29', 7)
        self.pos_bytes('v30', None)
        a.e('v_and_b32 v31, 32, v0')
        a.e('v_lshl_or_b32 v30, v31, 3, v30')
        self.oob(('v30', 'v30'), (0xffffaaaa, 0xffffaaaa))
        self.touches('w5', 'v12', 'v13')
        a.e('s_waitcnt lgkmcnt(0)')
        self.sleep('hc2')
        ld = [f'buffer_load_dword v16, v29, {WSG}, {oC2Lg} offen sc1',
              f'buffer_load_dwordx4 v[8:11], v28, {WSG}, {oC2g} offen sc1']
        z = [f'v_mov_b64 {vr(r, 2)}, 0' for r in range(20, 28, 2)]
        lwe = self.o.get('lw_early', 1)
        a.e(ld[0])
        a.tag_vm('lw')
        if lwe:
            self.sleep('hc2b')
        a.e(ld[1])
        a.tag_vm('c2')
        for x in z:
            a.e(x)
        for x in self.wol:
            a.e(x)
        if self.wol:
            a.tag_vm('wo')
        top, top2 = a.lab('chk'), a.lab('chk')
        w = self.w8n('v16', 'v17', 18)
        a.wait(vm='lw')
        a.e(f'{top}:')
        a.e('v_cmp_eq_u32 vcc, -1, v16')
        for x in w[:3]:
            a.e(x)
        self.retry_with([ld[0]], 's_waitcnt vmcnt(0)', top)
        for x in w[3:]:
            a.e(x)
        self.H('u1', 0, 12)
        a.wait(vm='c2')
        a.e(f'{top2}:')
        a.e('v_cmp_u_f32 vcc, v8, v8')
        a.e('v_smfmac_f32_16x16x64_bf16 v[20:23], v[8:11], v[48:55], v1')
        a.e('v_smfmac_f32_16x16x64_bf16 v[24:27], v[8:11], v[56:63], v1')
        self.retry_with([ld[1], 's_nop 7'] + z, 's_waitcnt vmcnt(0)', top2)
        self.stamp('c2got', 2)
        self.weigh2n(18, 'v21')
        a.e('v_permlane16_swap_b32 v20, v21')
        a.e('v_add_f32 v20, v20, v21')
        self.retry_with([ld[1]] + z, 's_waitcnt vmcnt(0)', top2)
        a.e(f'v_mov_b32_dpp v21, v20 quad_perm:[1,0,3,2] {FULL}')
        a.e('v_cvt_pk_bf16_f32 v20, v20, v21')
        self.lstore([f'buffer_store_dword v20, v30, {WSL}, {oOBpub} offen'])
        self.stamp('dpub')
        self.wb('dpub')

    def attn_a3(self):
        a = self.a
        self.qa_addr(44)
        self.sleep('hqa')
        ld = self.qa_loads(8, 12, 44)
        for x in ld:
            a.e(x)
        a.e('v_mov_b64 v[20:21], 0')
        a.e(f'v_lshl_add_u32 v17, v0, 3, {sW8}')
        a.e('ds_write_b64 v17, v[20:21] offset:6656')
        a.e(f's_add_u32 {t0}, {sW8}, 6656')
        a.e(f'v_mov_b32 v17, {t0}')
        a.e(f's_mov_b32 s22, {self.o.get("rowm", 0x000f000f)}')
        a.e(f's_mov_b32 s23, {self.o.get("rowm", 0x000f000f)}')
        for c in range(4):
            a.e(f'v_cndmask_b32 v{56 + c}, v17, v46, s[22:23]')
            a.e('s_lshl_b64 s[22:23], s[22:23], 4')
        self.p_addr('v60', 'v17')
        self.wo_prep(61, 'v17')
        for r in (16, 24, 28):
            a.e(f'v_mov_b64 {vr(r, 2)}, 0')
        a.e(self.stats_const(39))
        self.pipe_poll(ld, 'v38', [8, 12], 'pq', ['v_mov_b64 v[36:37], v[12:13]', 'v_mov_b64 v[32:33], v[8:9]', 'v_mov_b64 v[34:35], v[10:11]'])
        top = self.ptop
        self.stamp('qgotA', 2)
        self.qa_finish(32, 36, 44, None, 39, True)
        a.e('v_lshlrev_b32 v33, 16, v32')
        a.e('v_cmp_u_f32 vcc, v33, v33')
        a.e(f's_sub_u32 {t2}, {sW8}, {ZQ - 6144}')
        a.e(f's_cmp_eq_u32 {sV}, 0')
        a.e(f's_cselect_b32 {t3}, {oOALpub}, {OOB}')
        a.e(f's_mov_b32 s22, {self.o.get("rowm", 0x000f000f)}')
        a.e(f's_mov_b32 s23, {self.o.get("rowm", 0x000f000f)}')
        self.H('a1', 1, 52)
        self.retry_to(top)
        a.e('s_waitcnt vmcnt(0) lgkmcnt(0)')
        a.e('s_barrier')
        self.H('a2', 1, 8)

        def qrd(c, b):
            a.e(f'ds_read_b128 {vr(32 + 8 * (c % 3) + 4 * b, 4)}, v{56 + c} offset:{128 * b}')
            a.tag_ds(f'q{c}{b}')
        for c in range(3):
            qrd(c, 0)
            qrd(c, 1)
        if self.o.get('wo3', 0):
            self.touch('wo', 'v15', None)
        self.stamp('qrdy')
        ds, va = [], []
        for e in range(8):
            for t in range(4):
                ds.append((e, f'ds_read_b64_tr_b16 a[{8 * e + 2 * t}:{8 * e + 2 * t + 1}], v{14 + (e & 1)} offset:{t * 4096}'))
        wl = self.wo_lines(WO, 61, self.o.get('pol_wo3', ''))
        other = {2: wl[0], 3: wl[1], 7: wl[2], 11: wl[3], 13: wl[4], 15: wl[5], 19: wl[6], 23: wl[7],
                 5: 'v_mov_b64 v[8:9], 0', 6: 'v_mov_b64 v[12:13], 0', 8: f'v_mov_b32 v10, {t2}'}
        wo3 = self.o.get('wo3', 0)
        late = {}
        if wo3:
            for k in (2, 3, 7, 11, 13, 15, 19, 23):
                del other[k]
            pos = {1: (0, 1, 4, 7, 9, 10, 13, 16), 2: (8, 9, 12, 15, 17, 18, 21, 24)}[wo3]
            late = dict(zip(pos, wl))
        for e, k in enumerate((4, 10, 14, 18, 22, 26, 30), 1):
            other[k] = f'v_xor_b32 v{14 + (e & 1)}, {e << 5}, {vT}'
        pc = []
        for c in range(4):
            pc.append('v_cndmask_b32 v11, 0, v10, s[22:23]')
            pc.append(f'v_add_u32 v{56 + c}, v{56 + c}, v11')
            if c < 3:
                pc.append('s_lshl_b64 s[22:23], s[22:23], 4')
        a.e(f'v_mov_b32 v14, {vT}')
        for k in range(32):
            c, r, b = k >> 3, (k >> 1) & 3, k & 1
            if k < 2:
                a.wait(ds=f'q{c}{b}')
            elif k == 8:
                a.wait(ds='q21')
            elif k == 24:
                a.wait(ds='q31')
            t = k >> 1
            a.e(f'v_smfmac_f32_16x16x64_bf16 {vr(16 + 4 * r, 4)}, {vr(32 + 8 * (c % 3) + 4 * b, 4)}, a[{16 * t + 8 * b}:{16 * t + 8 * b + 7}], v1')
            if k in (8, 9):
                qrd(3, k - 8)
            elif k >= 1:
                a.e(ds.pop(0)[1])
            if k in other:
                a.e(other[k])
        for r in range(4):
            if ds:
                a.e(ds.pop(0)[1])
            a.e(f'v_add_f32 v{16 + r}, v{16 + 4 * r}, v{17 + 4 * r}')
        self.softmax_a(16, 20, 'v60', pc)

        def prd(j):
            a.e(f'ds_read_b128 {vr(32 + 4 * (j % 6), 4)}, v{56 + (j >> 2)} offset:{128 * (j & 3)}')
            a.tag_ds(f'p{j}')
        RD = self.o.get('pring', 4)
        self.H('a3', 1, 24)
        for j in range(RD):
            prd(j)
        self.stamp('smaxA')
        ls = self.lsum('v21', 16)
        mw = self.ml_write(20)
        for x in ls[:2] + mw[:2] + ls[2:3] + mw[2:4] + ls[3:4]:
            a.e(x)
        Q1, Q2 = f'quad_perm:[1,0,3,2] {FULL}', f'quad_perm:[2,3,0,1] {FULL}'
        fill = {0: ls[4], 1: ls[5], 2: ls[6], 3: ls[7], 4: mw[4], 6: 'v_and_b32 v23, 3, v0', 8: 'BAR',
                9: f'v_lshl_add_u32 v23, v23, 3, s23\nds_read_b64 v[24:25], v23', 13: 'MLW',
                14: f'v_max_f32_dpp v22, v24, v24 {Q1}', 15: f'v_max_f32_dpp v22, v22, v22 {Q2}',
                16: f'v_sub_f32 v24, v24, v22', 17: 'v_exp_f32 v24, v24', 18: 'v_mul_f32 v19, v24, v25',
                20: f'v_add_f32_dpp v19, v19, v19 {Q1}', 22: f'v_add_f32_dpp v19, v19, v19 {Q2}', 23: 'v_log_f32 v25, v19',
                24: 'v_add_f32 v25, v25, v22', 25: 'LW', 26: f'v_sub_f32 v18, {sM}, v25', 27: 'v_exp_f32 v18, v18',
                28: 'v_lshrrev_b32 v23, 4, v0', 29: 'v_lshl_add_u32 v23, v23, 1, v0', 30: 'v_and_b32 v23, 7, v23'}
        a.e(f's_mov_b32 s23, {ZML}')
        for j in range(16):
            c, U = j >> 2, j & 3
            for hf in range(2):
                e = c + 4 * hf
                if hf == 0 and (j < 2 or j & 1 == 0):
                    a.wait(ds=f'p{j if j < 2 else j + 1}')
                B = vr(64 + 64 * U + 8 * e, 8) if U < 3 else f'a[{8 * e}:{8 * e + 7}]'
                a.e(f'v_smfmac_f32_16x16x64_bf16 {vr(8 + 4 * hf, 4)}, {vr(32 + 4 * (j % 6), 4)}, {B}, v1')
                if 2 * j + hf in late:
                    a.e(late[2 * j + hf])
                if hf == 1 and j + RD < 16:
                    prd(j + RD)
                x = fill.pop(2 * j + hf, None)
                if x == 'BAR':
                    a.wait(ds='mlw')
                    a.e('s_barrier')
                elif x == 'MLW':
                    a.wait(ds='mlr')
                elif x == 'LW':
                    self.lstore([f'buffer_store_dword v25, off, {WSL}, {t3}'])
                elif x:
                    a.e(x)
                    if 'ds_write_b64' in x:
                        a.tag_ds('mlw')
                    if 'ds_read_b64' in x:
                        a.tag_ds('mlr')
        assert not fill
        a.e(f'v_lshl_add_u32 v46, v0, 2, {sW8}')
        a.e('v_lshlrev_b32 v47, 2, v23')
        a.e('v_add_f32 v44, v8, v9')
        a.e('v_add_f32 v45, v12, v13')
        a.e('v_pk_mul_f32 v[44:45], v[44:45], v[18:19] op_sel_hi:[1,0]')
        self.stamp('pvA')

    def dma_tile(self, t):
        a = self.a
        pol = self.o.get('pol_kv', 'nt')
        srd = K_ if t < 16 else V_
        a.e(f's_add_u32 m0, {sKV}, {(t & 3) * 4096}')
        a.e(f's_add_u32 {t0}, {sKG}, {(t & 15) * 16384}')
        for q in range(4):
            a.e(f'buffer_load_dwordx4 v{8 + q}, {srd}, {t0} offen offset:{q * 1024} {pol} lds')
        a.tag_vm(f'tile{t}')

    def make_items(self):
        o = self.o
        pol, polc = o.get('pol_kv', 'nt'), o.get('pol_c', '')
        extra = {}
        c0, cs = o.get('ckv_from', 44), o.get('ckv_step', 2)
        for i in range(16):
            t, q = i >> 2, i & 3
            extra.setdefault(c0 + cs * i, []).append((f'c{i}', [
                f's_add_u32 m0, {sKV}, {CKV + i * 1024}', f'v_add_u32 v238, v{8 + q}, v254', f's_add_u32 {t0}, s1, {(16 * t + 4 * q) * 1024}',
                f'buffer_load_dwordx4 v238, {CK}, {t0} offen {polc} lds']))
        w0, wstep = o.get('wo_from', 52), o.get('wo_step', 4)
        for k in range(6):
            h, i = divmod(k, 3)
            extra.setdefault(w0 + wstep * k, []).append((f'w{k}', [
                f's_add_u32 m0, {sW8}, {h * 3072}', f's_add_u32 {t0}, {oWO}, {h * 64 * 1152}',
                f'buffer_load_dwordx4 v{(246, 247, 255)[i]}, {WO}, {t0} offen offset:{i * 1024} lds']))
        items = []
        self.extra = {tag: lines for v in extra.values() for tag, lines in v}
        for d in range(128):
            t, q = d >> 2, d & 3
            items.append((f'tile{t}' if q == 3 else f'd{d}', [
                f's_add_u32 m0, {sKV}, {(t & 3) * 4096}', f's_add_u32 {t0}, {sKG}, {(t & 15) * 16384}',
                f'buffer_load_dwordx4 v{8 + q}, {K_ if t < 16 else V_}, {t0} offen offset:{q * 1024} {pol} lds']))
        self.items = items
        self.pos = {tag: k for k, (tag, _) in enumerate(items)}
        self.issued = 0
        self.done_tile = -1
        self.lnq_done = False

    def issue_to(self, n):
        a = self.a
        prev = None
        lim = self.pos[f'tile{min(self.done_tile + 4, 31)}'] + 1
        while self.issued < min(n, lim):
            tag, lines = self.items[self.issued]
            if tag[0] == 'w':
                assert self.lnq_done, 'w_o staged before the q weights were read'
            assert tag[0] in 'td' or 2 < self.done_tile < 26
            for x in (lines if lines[:2] != prev else lines[2:]):
                a.e(x)
            a.tag_vm(tag)
            prev = lines[:2]
            self.issued += 1

    def prologue(self):
        a = self.a
        self.make_items()
        a.e('s_cmp_ge_u32 s2, 256')
        a.e('s_cbranch_scc1 L_end')
        if self.o.get('diag_fixed'):
            a.e('s_memrealtime s[100:101]')
        if self.o.get('stamps'):
            a.e('s_memtime s[98:99]' if self.o.get('clk') else 's_memrealtime s[98:99]')
        a.e('s_load_dwordx2 s[4:5], s[0:1], 8')
        ptrs = [(V_, 16), (CK, 48), (DBG, 96), (XIN, 0), (WQ, 24), (WO, 32), (BWQ, 56), (WUK, 64), (WUV, 72), (BWO, 80),
                (WS, 104), (OUT, 88)]
        sizes = {K_: 1 << 26, V_: 1 << 26, CK: 1 << 23, DBG: 256, XIN: 1152, WQ: 576 * 8192, WO: 4096 * 1152,
                 BWQ: 576 * 8192, WUK: 1 << 22, WUV: 1 << 22, BWO: 4096 * 1152, WS: WS_SIZE, WSL: L_X, WSG: G_IT, OUT: 1152}
        base = lambda s: int(s[2:s.index(':')])
        if self.o.get('code0', 1):
            a.e('s_getpc_b64 s[82:83]')
            a.e('L_pc:')
            a.e('s_and_b32 s3, s2, 0xf8')
            a.e('v_lshrrev_b32 v62, 5, v0')
            a.e('v_add_lshl_u32 v62, v62, s3, 7')
            a.e('v_min_u32 v62, L_codeend-L_pc, v62')
            a.e('global_load_dword v61, v62, s[82:83]')
        a.e('v_lshrrev_b32 v1, 6, v0')
        a.e('v_mov_b32 v63, v0')
        a.e(f'v_readfirstlane_b32 {sV}, v1')
        a.e('v_and_b32 v0, 63, v0')
        a.e(f's_and_b32 {sX}, s2, 7')
        a.e(f's_lshr_b32 {sJ}, s2, 3')
        a.e(f's_lshl_b32 {sKV}, {sV}, 14')
        self.sums(sKG, [(sX, 1 << 23), (sJ, 1 << 18), (sV, 1 << 12)])
        a.e(f'v_lshlrev_b32 {vL16}, 4, v0')
        a.e('v_and_b32 v12, 48, v0')
        a.e('v_lshlrev_b32 v12, 1, v12')
        a.e(f'v_xor_b32 v8, v12, {vL16}')
        for q in range(1, 4):
            a.e(f'v_xor_b32 v{8 + q}, {TBL[q] << 4}, v8')
        a.e(f's_mov_b32 s6, {sizes[K_]}')
        a.e('s_mov_b32 s7, 0x20000')
        a.e('s_waitcnt lgkmcnt(0)')
        for t in range(4):
            self.issue_to(min(4 * t + 4, self.o.get('win0', 8)))
            for srd, off in ptrs[3 * t:3 * t + 3]:
                b = base(srd)
                a.e(f's_load_dwordx2 s[{b}:{b + 1}], s[0:1], {off}')
        for srd, n in sizes.items():
            if srd != K_:
                a.e(f's_mov_b32 s{base(srd) + 2}, {n}')
                a.e(f's_mov_b32 s{base(srd) + 3}, 0x20000')
        if not self.o.get('code0', 1):
            a.e(f's_getpc_b64 s[82:83]')
            a.e('L_pc:')
            a.e('v_lshlrev_b32 v62, 7, v63')
            a.e(f'v_min_u32 v62, L_codeend-L_pc, v62')
            a.e('global_load_dword v61, v62, s[82:83]')
        a.e(f's_lshr_b32 {t1}, {sJ}, 3')
        self.sums(sH, [(sX, 4), (t1, 1)])
        a.e(f's_and_b32 {sS}, {sJ}, 7')
        a.e(f's_mov_b32 {sIT}, 0')
        a.e(f's_mov_b32 {sPOLL}, 0')
        a.e(f's_mov_b32 {sST}, 0')
        self.sums(sW8, [(sV, 8192)], STG)
        a.e('s_mov_b32 s84, 0x00ff00ff')
        a.e('s_mov_b32 s85, 0x00ff00ff')
        a.e(f's_mul_i32 {t2}, {sJ}, 43')
        a.e(f's_lshr_b32 {t2}, {t2}, 8')
        a.e(f's_mul_i32 {t3}, {t2}, 6')
        a.e(f's_sub_u32 {t3}, {sJ}, {t3}')
        self.sums(oY, [(t3, 512), (sV, 128)])
        self.sums(oQA, [(t2, 4096), (sV, 1024), (t3, 128)], L_QA)
        self.sums(oQB, [(t2, 4096), (sV, 512), (t3, 32)], L_QB)
        self.sums(oST, [(t2, 64), (t3, 8)], L_STA)
        self.sums(oWQ, [(t3, 96 * 8192), (sV, 24 * 8192), (sX, 1024), (t2, 256)])
        a.e(f's_cmp_eq_u32 {sV}, 0')
        a.e(f's_cselect_b32 {oST}, {oST}, {OOB}')
        a.e(f's_cmp_lt_u32 {sJ}, 24')
        for r in (oQA, oST, oWQ):
            a.e(f's_cselect_b32 {r}, {r}, {OOB}')
        self.sums(oQgA, [(t1, 4096), (sV, 1024)], L_QA)
        self.sums(oSTgA, [(t1, 64)], L_STA)
        self.sums(oWUV, [(sS, 64 * 8192), (sH, 256), (sV, 64)])
        self.sums(oWUK, [(sJ, 16 * 8192), (sX, 1024), (sV, 256)])
        self.sums(oWO, [(sX, 512 * 1152), (sV, 128 * 1152), (sJ, 48)])
        self.sums(oYpub, [(sX, 3072), (sJ, 128)])
        if self.o.get('asym'):
            a.e(f's_getreg_b32 {t0}, hwreg(HW_REG_XCC_ID, 0, 3)')
            a.e(f's_lshr_b32 {t0}, {self.o["asym"][0]}, {t0}')
            a.e(f's_lshl_b32 {t0}, {t0}, 31')
            a.e(f's_or_b32 {oYpub}, {oYpub}, {t0}')
        a.e(f's_cmp_lt_u32 {sJ}, 24')
        a.e(f's_cselect_b32 {oWO}, {oWO}, {OOB}')
        a.e(f's_cselect_b32 {sRES}, 1, 0')
        a.e(f's_cmp_eq_u32 {sV}, 3')
        a.e(f's_cselect_b32 {sRES}, {sRES}, 0')
        a.e(f's_mul_i32 {t0}, {sRES}, 3')
        a.e(f's_cmp_eq_u32 {sX}, 0')
        a.e(f's_cselect_b32 {sRES}, {t0}, {sRES}')
        if self.o.get('stamps'):
            a.e('v_mov_b32 v7, 0')
            a.e('s_mov_b32 s97, 8')
        a.e('v_and_b32 v14, 1, v0')
        a.e('v_mul_u32_u24 v1, 0xaaaa, v14')
        a.e('v_add_u32 v1, 0x4444, v1')

        def tbl(dst, x, tmp):
            a.e(f'v_lshrrev_b32 {tmp}, 1, {x}')
            a.e(f'v_xor_b32 {dst}, {x}, {tmp}')
            a.e(f'v_and_b32 {dst}, 1, {dst}')
            a.e(f'v_lshl_or_b32 {dst}, {dst}, 3, {tmp}')
        a.e('v_lshrrev_b32 v12, 4, v0')
        a.e('v_and_b32 v13, 15, v0')
        a.e('v_lshrrev_b32 v15, 2, v13')
        tbl('v16', 'v15', 'v17')
        a.e('v_and_b32 v17, 3, v13')
        a.e('v_lshlrev_b32 v18, 1, v17')
        a.e('v_xor_b32 v16, v16, v18')
        a.e('v_xor_b32 v16, v16, v12')
        a.e('v_lshlrev_b32 v16, 4, v16')
        a.e(f'v_lshl_or_b32 {vA}, v13, 8, v16')
        a.e(f'v_add_u32 {vA}, {sKV}, {vA}')
        tbl('v16', 'v12', 'v18')
        a.e('v_lshlrev_b32 v18, 1, v15')
        a.e('v_xor_b32 v16, v16, v18')
        a.e('v_lshrrev_b32 v18, 1, v17')
        a.e('v_xor_b32 v16, v16, v18')
        a.e('v_lshlrev_b32 v16, 4, v16')
        a.e('v_lshrrev_b32 v18, 2, v0')
        a.e('v_lshl_or_b32 v16, v18, 8, v16')
        a.e(f'v_lshl_or_b32 {vT}, v14, 3, v16')
        a.e(f'v_add_u32 {vT}, {sKV}, {vT}')
        a.e('s_waitcnt lgkmcnt(0)')
        self.stamp('start')
        w, l, g = base(WS), base(WSL), base(WSG)
        a.e(f's_lshl_b32 {t0}, {sX}, 17')
        a.e(f's_add_u32 s{l}, s{w}, {t0}')
        a.e(f's_addc_u32 s{l + 1}, s{w + 1}, 0')
        a.e(f's_add_u32 s{g}, s{w}, {GB}')
        a.e(f's_addc_u32 s{g + 1}, s{w + 1}, 0')
        self.dma_wq(WQ, 'v56', 'v57')
        self.lnq_rows()
        a.e(f's_mul_i32 {t0}, {t3}, 192')
        a.e('v_mul_u32_u24 v58, 3, v0')
        a.e('s_mov_b32 exec_lo, 0x00010001')
        a.e('s_mov_b32 exec_hi, 0x00010001')
        for rho in range(3):
            a.e(f'buffer_load_dwordx4 {vr(16 + 4 * rho, 4)}, v58, {XIN}, {t0} offen offset:{16 * rho}')
        a.e('s_mov_b64 exec, -1')
        a.e('v_lshlrev_b32 v58, 2, v0')
        a.e(f's_mul_i32 {t0}, {sJ}, 48')
        a.e(f's_cmp_eq_u32 {sRES}, 3')
        a.e(f's_cselect_b32 {t0}, {t0}, {OOB}')
        a.e(f'buffer_load_dword v5, v58, {XIN}, {t0} offen')
        for r in range(56, 60):
            a.e(f'v_mov_b32 v{r}, -1')
        self.sums(t4, [(sX, L_X), (sJ, 2560), (sV, 640)])
        self.sums(t1, [(sX, 128 * 384), (sJ, 4 * 384), (sV, 384)], GB)
        a.e('s_mov_b32 exec_hi, 0xff')
        a.e(f'buffer_store_dwordx4 v[56:59], {vL16}, {WS}, {t4} offen sc1')
        a.e('s_mov_b64 exec, 0xffffff')
        a.e(f'buffer_store_dwordx4 v[56:59], {vL16}, {WS}, {t1} offen sc1')
        a.e('s_mov_b64 exec, -1')
        a.tag_vm('clr')
        for ks in range(4):
            a.e(f'v_xor_b32 v{12 + ks}, {ks << 6}, {vA}')

    def late_scalars(self):
        a = self.a
        if self.o.get('asym'):
            a.e(f's_bitset0_b32 {oYpub}, 31')
        a.e(f's_lshr_b32 {t1}, {sJ}, 3')
        a.e(f's_and_b32 {t2}, {sJ}, 1')
        a.e(f's_lshr_b32 {t3}, {sJ}, 1')
        a.e(f's_lshr_b32 {t4}, {sX}, 2')
        a.e(f's_and_b32 {t5}, {sX}, 3')
        self.sums(oQgB, [(sV, 4096)], L_QB)
        self.sums(oSTgB, [(sV, 64)], L_STB)
        self.sums(oQApub, [(t4, 16384), (t3, 1024), (t5, 256), (t2, 128)], G_QABS)
        self.sums(oQAg, [(t2, 16384), (sV, 4096)], G_QABS)
        self.sums(oC1pub, [(sX, 1 << 19), (t2, 1 << 18), (sV, 16384), (t3, 256)], CB)
        self.sums(oMLpub, [(t2, 2048), (t3, 32)], L_C1ML)
        self.sums(oC1g, [(sX, 1 << 19), (sJ, 16384), (sV, 4096)], CB)
        a.e(f's_lshr_b32 {t4}, {sJ}, 2')
        self.sums(oMLg, [(t4, 512)], L_C1ML)
        self.sums(oC2pub, [(sJ, 8192), (sV, 2048), (sX, 256)], G_C2)
        self.sums(oC2Lpub, [(t4, 1024), (sX, 128)], G_C2L)
        a.e(f's_and_b32 {t4}, {sJ}, 3')
        a.e(f's_cselect_b32 {oC2Lpub}, {OOB}, {oC2Lpub}')
        self.sums(oC2g, [(sX, 32768), (sS, 4096), (t1, 64)], G_C2)
        self.sums(oC2Lg, [(sX, 1024), (t1, 16)], G_C2L)
        self.sums(oOBpub, [(t1, 2048), (sV, 512), (sS, 32)], L_OB)
        self.sums(oOApub, [(t1, 2048), (sS, 32)], L_OA)
        self.sums(oOALpub, [(sJ, 4)], L_OAL)
        self.sums(oOALg, [(sV, 32)], L_OAL)
        self.sums(oRES, [(sJ, 128)])
        self.sums(oO, [(sV, 2048)], L_OA)
        a.e(f's_cmp_eq_u32 {sV}, 0')
        a.e(f's_cselect_b32 {oMLpub}, {oMLpub}, {OOB}')
        a.e(f's_cselect_b32 {oOApub}, {oOApub}, {OOB}')
        a.e(f's_cselect_b32 {oC2Lpub}, {oC2Lpub}, {OOB}')

    def pv_block(self, U):
        a = self.a
        self.sp_addr('v63', sW8)
        a.e(f'ds_read_b128 v[20:23], v63 offset:{6144 + 128 * U}')
        a.e('s_waitcnt lgkmcnt(0)')
        for e in range(8):
            a.e(f'v_smfmac_f32_16x16x64_bf16 {vr(24 + 4 * e, 4)}, v[20:23], {vr(64 + 64 * U + 8 * e, 8)}, v1')

    def stream(self):
        a = self.a
        o = self.o
        landed = 0
        for t in range(28):
            win = o.get('win', 6) if t < o.get('wide_at', 99) else o.get('wide', 12)
            while landed <= self.pos[f'tile{t}']:
                if self.issued < landed + 1 + win or landed == self.pos[f'tile{t}']:
                    a.wait(vm=self.items[landed][0])
                    if o.get('sstamps') and t % 4 == 0 and landed == self.pos[f'tile{t}']:
                        self.stamp(f't{t}')
                    self.issue_to(landed + 1 + win)
                landed += 1
            slot = (t & 3) * 4096
            if t < 16:
                for ks in range(4):
                    a.e(f'ds_read_b128 a[{16 * t + 4 * ks}:{16 * t + 4 * ks + 3}], v{12 + ks} offset:{slot}')
            else:
                u = t - 16
                if u == 0:
                    for e in range(8):
                        a.e(f'v_xor_b32 v{12 + e}, {e << 5}, {vT}')
                for e in range(8):
                    a.e(f'ds_read_b64_tr_b16 {vr(64 + 64 * (u >> 2) + 8 * e + 2 * (u & 3), 2)}, v{12 + e} offset:{slot}')
            a.e('s_waitcnt lgkmcnt(0)')
            self.done_tile = t
            self.issue_to(landed + win + o.get('boost', {}).get(str(t), 0) if t < 27 else 999)
            if t == 2:
                a.e('v_lshrrev_b32 v254, 4, v0')
                a.e('v_mul_u32_u24 v254, 768, v254')
                a.e(f's_lshr_b32 {t2}, {sJ}, 1')
                self.sums('s1', [(sX, 1 << 20), (t2, 1 << 16), (sV, 256)])
                for i, r in enumerate((246, 247, 255)):
                    a.e(f'v_add_u32 v{r}, {64 * i}, v0')
                    a.e(f'v_mul_u32_u24 v{r}, 21846, v{r}')
                    a.e(f'v_lshrrev_b32 v{r}, 16, v{r}')
                    a.e(f'v_mul_u32_u24 v{r}, {1152 - 48}, v{r}')
                    a.e(f'v_lshl_add_u32 v{r}, v0, 4, v{r}')
            if t == 4:
                a.wait(vm='clr')
                a.e('v_lshlrev_b32 v60, 7, v0')
                a.e('s_mov_b64 exec, 31')
                a.e(f'buffer_load_dword v61, v60, {WS}, {t4} offen')
                a.e('s_mov_b64 exec, -1')
                a.tag_vm('touch')
                a.e('v_lshlrev_b32 v4, 16, v5')
                a.e('v_and_b32 v5, 0xffff0000, v5')
            if t == o.get('atom_at', 5):
                a.e('s_barrier')
                l = self.wave_only(1)
                a.e('s_getreg_b32 s82, hwreg(HW_REG_XCC_ID, 0, 3)')
                a.e('s_lshl_b32 s82, s82, 3')
                a.e('s_lshl_b64 s[82:83], 1, s82')
                a.e('v_mov_b32 v58, s82')
                a.e('v_mov_b32 v59, s83')
                a.e(f's_lshl_b32 {t0}, {sX}, 5')
                a.e('s_mov_b64 exec, 1')
                a.e(f'buffer_atomic_add_x2 v[58:59], v0, {DBG}, {t0} offen sc1')
                a.e('s_mov_b64 exec, -1')
                self.end_only(l)
            if t == 9:
                a.wait(vm='touch')
                self.lnq_addr()
                self.lnq_prep()
                for rho in range(3):
                    for x in self.lnq_mfma(rho):
                        a.e(x)
                self.lnq_reduce(False)
                self.lnq_done = True
            if t == o.get('cnt_at', 10):
                a.e('v_and_b32 v57, 7, v0')
                a.e('v_lshlrev_b32 v57, 5, v57')
                a.e(f'buffer_load_dwordx2 v[58:59], v57, {DBG}, 0 offen sc1')
                a.tag_vm('cnt')
            if t == 15:
                chk, retry, done = a.lab('chk'), a.lab('cretry'), a.lab('cdone')
                a.wait(vm='cnt')
                a.e(f'{chk}:')
                a.e('v_sad_u8 v61, v58, 0, 0')
                a.e('v_sad_u8 v61, v59, 0, v61')
                a.e('v_cmp_ne_u32 vcc, 32, v61')
                if not o.get('x_noinit'):
                    a.e(f's_cbranch_vccnz {retry}')
                a.e(f'{done}:')
                a.ool(f'{retry}:\ns_add_u32 {sPOLL}, {sPOLL}, 1\ns_cmp_gt_u32 {sPOLL}, 200000\ns_cbranch_scc1 {done}\ns_sleep 8\n'
                      f'buffer_load_dwordx2 v[58:59], v57, {DBG}, 0 offen sc1\ns_waitcnt vmcnt(0)\ns_branch {chk}')
                a.e('s_getreg_b32 s82, hwreg(HW_REG_XCC_ID, 0, 3)')
                a.e('s_lshl_b32 s82, s82, 3')
                a.e('s_lshl_b64 s[82:83], 32, s82')
                a.e(f'v_readlane_b32 {t2}, v58, {sX}')
                a.e(f'v_readlane_b32 {t3}, v59, {sX}')
                a.e(f's_cmp_eq_u64 s[82:83], s[80:81]')
                a.e(f's_cselect_b32 {sLOC}, {0 if o.get("force_slow") else 1}, {1 if o.get("x_noinit") else 0}')
                self.lnq_pubaddr(False, True)
                self.lcmp()
                self.lnq_publish(False, True)
            if t == 18:
                self.qa_addr(48)
                a.e(f's_add_u32 {t4}, {oQgA}, {L_CSA - L_QA}')
                ql = self.qa_loads(40, 52, 48) + [f'buffer_load_dwordx4 v[44:47], v51, {WSL}, {t4} offen sc1']
                for x in ql:
                    a.e(x)
                a.tag_vm('q')
            if t == 22:
                a.wait(vm='q')
                self.late_check('v20', list(range(40, 48)) + [52, 53], ql)
                for x in self.red8(44):
                    a.e(x)
                a.e('v_cvt_pk_bf16_f32 v44, 0, v44')
                a.e('v_or_b32 v1, v1, v44')
                a.e(self.stats_const(54))
                self.qa_finish(40, 52, 48, 56, 54)
                for r in range(24, 40, 4):
                    a.e(f'v_mov_b64 {vr(r, 2)}, 0')
                self.p_addr('v45', 'v44')
                self.qk_softmax(56, 24, 40, 44)
                for x in self.lsum('v57', 40):
                    a.e(x)
                for x in self.ml_write(56):
                    a.e(x)
                for r in range(24, 56, 4):
                    a.e(f'v_mov_b64 {vr(r, 2)}, 0')
                a.e('s_waitcnt lgkmcnt(0)')
            for i, at in enumerate(o.get('ckv_at', [10, 11, 12, 13])):
                if at == t:
                    for q in range(4):
                        for x in self.extra[f'c{4 * i + q}']:
                            a.e(x)
            if t == o.get('wo_at', 9):
                assert self.lnq_done
                for k in range(6):
                    for x in self.extra[f'w{k}']:
                        a.e(x)
            self.touches(f's{t}', 'v62', 'v31')
            if t == o.get('mlbar', 26):
                a.e('s_barrier')
                for x in self.ml_read(56, 20):
                    a.e(x)
                a.e('s_waitcnt lgkmcnt(0)')
                for x in self.ml_scale(56, 20, 21, 22):
                    a.e(x)
                a.e('v_readfirstlane_b32 s22, v21')
                a.e('v_readfirstlane_b32 s23, v22')
            if t == o.get('c1_late', 1) and t > 15:
                self.sums(t1, [(sX, 1 << 19), (sJ, 16384), (sV, 4096)], CB)
                for r in range(56, 60):
                    a.e(f'v_mov_b32 v{r}, -1')
                self.lcmp()
                self.lstore([f'buffer_store_dwordx4 v[56:59], {vL16}, {WS}, {t1} offen offset:{i * 1024}' for i in range(4)])
            if t == o.get('tlb_at', -1):
                g = o.get('tlb_n', 2)
                a.e(f's_mov_b64 exec, {(1 << g) - 1}')
                self.sums(t2, [(sX, 1 << 19)], CB)
                for srd, so, span in ((BWQ, oWQ, 24 * 8192), (WUK, oWUK, 16 * 8192), (WUV, oWUV, 64 * 8192), (BWO, oWO, 128 * 1152),
                                      (WS, t2, 1 << 19), (OUT, '0', 1024)):
                    a.e(f'v_mul_u32_u24 v62, {(span - 8192 if span > 8192 else span) // (g - 1) // 4 * 4}, v0')
                    a.e(f'buffer_load_dword v31, v62, {srd}, {so} offen')
                a.e('s_mov_b64 exec, -1')
            if t == o.get('isl_at', 12):
                a.e('s_branch L_isl_0')
                if self.alt:
                    a.e('L_isl_ret2:')
                else:
                    a.e('L_isl_ret:')
                    if o.get('hi'):
                        a.e('s_cmp_lg_u32 s0, 0')
                        a.e('s_cbranch_scc1 L_isl_ret2')
            if t == o.get('late_touch', -1):
                self.sums(t3, [(sX, 128), (sJ, 4), (sV, 1)])
                a.e(f's_lshl_b32 {t2}, {t3}, 10')
                a.e('v_lshlrev_b32 v62, 7, v0')
                a.e('v_and_b32 v62, 0x3ff, v62')
                a.e(f'buffer_load_dword v31, v62, {WS}, {t2} offen')
            if t == 23:
                self.pv_block(0)
            if t == 24:
                self.pv_block(1)
        if self.alt:
            a.e('s_nop 7')
            a.e('s_branch L_join')
            return
        a.e('L_join:')
        self.late_scalars()
        a.e('v_mov_b32 v62, s23')
        a.e(f's_cmp_eq_u32 {sV}, 0')
        a.e(f's_cselect_b32 {t1}, {oOALpub}, {OOB}')
        self.lcmp()
        self.lstore([f'buffer_store_dword v62, off, {WSL}, {t1}'])
        self.pv_block(2)
        a.e('v_lshrrev_b32 v62, 1, v0')
        a.e('v_and_b32 v62, 8, v62')
        a.e('v_and_or_b32 v62, v0, 32, v62')
        a.e(f'v_add_u32 v62, {sW8}, v62')
        a.e(f'v_add_u32 v62, {6144 + 384}, v62')
        for tt in range(4):
            o0 = 16 * (tt >> 1) + (tt & 1)
            r = (20, 22, 8, 10)[tt]
            a.e(f'ds_read2_b32 {vr(r, 2)}, v62 offset0:{o0} offset1:{o0 + 4}')
        a.e('s_mov_b32 vcc_lo, 0x55555555')
        a.e('s_mov_b32 vcc_hi, 0x55555555')
        a.e('s_waitcnt lgkmcnt(0)')
        for r in (20, 21, 22, 23, 8, 9, 10, 11):
            a.e(f'v_cndmask_b32 v{r}, 0, v{r}, vcc')
        self.last_tiles(range(3))
        a.e(f's_cmp_eq_u32 {sLOC}, 0')
        a.e('s_cbranch_scc1 L_pre_slow')

    def last_tiles(self, which):
        a = self.a
        for tt in which:
            a.wait(vm=f'tile{28 + tt}')
            if tt == 3:
                self.stamp('kvdone')
            dst = [56, 58, 60, 62] * 2 if tt < 3 else [56, 58, 60, 62, 20, 22, 8, 12]
            n1 = 4 if tt < 3 else 8
            for e in range(n1):
                a.e(f'ds_read_b64_tr_b16 {vr(dst[e], 2)}, v{12 + e} offset:{tt * 4096}')
                a.tag_ds(f'v{e}')
            if tt == 3:
                self.rot8('v14', 2)
            for e in range(8):
                a.wait(ds=f'v{e}')
                d = vr(24 + 4 * e, 4)
                a.e(f'v_mfma_f32_16x16x16_bf16 {d}, {vr((20, 22, 8, 10)[tt], 2)}, {vr(dst[e], 2)}, {d}')
                if e + n1 < 8:
                    a.e(f'ds_read_b64_tr_b16 {vr(dst[e], 2)}, v{12 + e + n1} offset:{tt * 4096}')
                    a.tag_ds(f'v{e + n1}')
                if tt == 3 and e >= 4:
                    x = e - 4
                    a.e(f'v_add_f32_dpp v16, v{24 + 4 * x}, v{25 + 4 * x} {DPPI} row_mask:{1 << x} bank_mask:0xf')
        if 3 not in which:
            return
        for e in range(4, 8):
            a.e(f'v_add_f32_dpp v17, v{24 + 4 * e}, v{25 + 4 * e} {DPPI} row_mask:{1 << (e & 3)} bank_mask:0xf')
        a.e('v_mul_f32 v44, s22, v16')
        a.e('v_mul_f32 v45, s22, v17')
        a.e(f'v_lshl_add_u32 v46, v0, 2, {sW8}')
        a.e('v_mov_b32 v47, v14')
        self.stamp('pv1')

    def tail(self, mode):
        a = self.a
        o = self.o
        base = lambda s: int(s[2:s.index(':')])
        self.mode = mode
        if mode == 'slow':
            a.e('L_pre_slow:')
            a.e('s_nop 7')
            a.e('s_waitcnt vmcnt(0)')
        self.last_tiles([3])
        n0 = self.nst
        a.vmq = [['wo', ()]] + [[None, ()] for _ in range(len(o.get('touch', {}).get('s27', [])) if o.get('wo_at', 9) == 27 else 40)]
        l, g = base(WSL), base(WSG)
        a.e(f'L_top_{mode}:')
        self.combine_publish()
        self.stamp('opub')
        a.e(f's_mul_i32 {t0}, {sRES}, {sIT}')
        self.resid_track(G_YB, 20, 'v8', f's_cmp_eq_u32 {t0}, 3')
        a.e(f's_mul_i32 {t0}, {sIT}, {G_IT}')
        a.e(f's_add_u32 s{g}, s{g}, {t0}')
        a.e(f's_addc_u32 s{g + 1}, s{g + 1}, 0')

        def idle_a():
            b = self.a
            self.wuk_prep('v8', 'v9')
            self.wuk_issue('v8', 'v9')
            self.touches('i1', 'v60', 'v10')
            l1 = b.lab('it1')
            b.e(f's_cmp_eq_u32 {sIT}, 1')
            b.e(f's_cbranch_scc1 {l1}')
            self.clear_g1(56)
            self.touches('i0', 'v60', 'v10')
            if o.get('touch', {}).get('i0b'):
                lp = b.lab('lp')
                b.e(f'{lp}:')
                b.e('s_sleep 4')
                b.e(f'buffer_load_dword v12, {vL16}, {WSL}, {oO} offen sc1')
                b.e('s_waitcnt vmcnt(0)')
                b.e('v_cmp_eq_u32 vcc, -1, v12')
                self.retry_to(lp)
                b.e('s_barrier')
                self.touches('i0b', 'v60', 'v10')
            l2 = b.lab('it1')
            b.e(f's_branch {l2}')
            b.e(f'{l1}:')
            self.touches('i3', 'v60', 'v10')
            self.sleep('ia')
            b.e(f'{l2}:')

        def busy_a():
            self.outproj(True)
            self.lnq_tail(G_YA, True)
        self.ool_if(f's_cmp_ge_u32 {sJ}, 24', idle_a, busy_a, True)
        self.qabs()
        self.attn_b()
        self.red()
        self.uv()

        def nextpass():
            b = self.a
            b.e(f's_cmp_eq_u32 {sIT}, 1')
            b.e(f's_cbranch_scc1 L_final_{mode}')
            b.e(f's_add_u32 s{l}, s{l}, {L_IT}')
            b.e(f's_addc_u32 s{l + 1}, s{l + 1}, 0')
            b.e(f's_mov_b32 s{l + 2}, {L_SZ}')
            b.e(f's_mov_b32 {sIT}, 1')

        def idle_b():
            nextpass()
            self.touches('i2', 'v60', 'v10')
            self.sleep('ib')

        def busy_b():
            self.outproj(False)
            nextpass()
            self.lnq_tail(G_YB, False)
        self.ool_if(f's_cmp_ge_u32 {sJ}, 24', idle_b, busy_b, True)
        self.attn_a3()
        self.nper = self.nst - n0
        self.n0 = n0
        if o.get('stamps'):
            a.e('s_mov_b32 s97, 5')
        a.e(f's_branch L_top_{mode}')
        a.e(f'L_final_{mode}:')
        a.e(f's_cmp_lg_u32 {sRES}, 3')
        a.e('s_cbranch_scc1 L_fin2')
        self.keep_rounding()
        self.resid(G_YB, 10, 'v8', True)
        a.e(f'buffer_store_dword v9, v8, {OUT}, {t0} offen')
        a.e('s_mov_b64 exec, -1')
        self.mode = None

    def build(self):
        a = self.a
        o = self.o
        base = lambda s: int(s[2:s.index(':')])
        self.prologue()
        altb = ''
        if o.get('hi'):
            import copy
            if o['hi'][0]:
                a.e('s_getreg_b32 s0, hwreg(HW_REG_XCC_ID, 0, 3)')
                a.e(f's_lshr_b32 s0, {o["hi"][0]}, s0')
                a.e('s_and_b32 s0, s0, 1')
            else:
                a.e(f's_cmp_ge_u32 {sJ}, 24')
                a.e('s_cselect_b32 s0, 1, 0')
            a.e('s_cbranch_scc1 L_alt')
            alt = Gen(dict(o, win=o['hi'][1]))
            alt.alt = True
            alt.a.uid = 300000
            alt.a.cold = True
            alt.a.vmq = copy.deepcopy(a.vmq)
            alt.make_items()
            alt.issued = self.issued
            alt.nst = self.nst
            alt.a.e('L_alt:')
            alt.stream()
            altb = alt.a.finish()
            altb = altb[:altb.index('L_isl_0:')]
        self.stream()
        self.tail('fast')
        a.e('L_fin2:')
        if o.get('diag_fixed'):
            a.e('L_dfx:')
            a.e('s_memrealtime s[94:95]')
            a.e('s_waitcnt lgkmcnt(0)')
            a.e('s_sub_u32 s94, s94, s100')
            a.e(f's_cmp_lt_u32 s94, {o["diag_fixed"]}')
            a.e('s_cbranch_scc1 L_dfx')
        if o.get('stamps'):
            a.e('s_waitcnt vmcnt(0) lgkmcnt(0)')
            self.stamp('end')
            a.e('s_waitcnt lgkmcnt(0)')
            a.e('v_writelane_b32 v7, s98, 62')
            a.e(f'v_writelane_b32 v7, {sPOLL}, 63')
            a.e('s_getreg_b32 s82, hwreg(HW_REG_XCC_ID, 0, 3)')
            a.e('s_getreg_b32 s83, hwreg(HW_REG_HW_ID)')
            a.e('s_lshl_b32 s83, s83, 4')
            a.e('s_or_b32 s82, s82, s83')
            a.e('v_writelane_b32 v7, s82, 61')
            self.sums(t1, [('s2', 1024), (sV, 256)], STAMP)
            a.e('v_lshlrev_b32 v8, 2, v0')
            a.e(f'buffer_store_dword v7, v8, {WS}, {t1} offen')
        a.e('L_end:')
        a.e('s_endpgm')
        slow = Gen(self.o)
        slow.a.uid = 500000
        slow.a.cold = True
        slow.tail('slow')
        slow.a.e('s_branch L_fin2')
        sb = slow.a.finish()
        sb = sb[:sb.index('L_isl_0:')]
        body = a.finish()
        ref = open('cdna_kernels/' + NAME + '.s.ref').read() if o.get('hdr', True) else ''
        hdr = ''.join(l + '\n' for l in ref.split('\n') if l.startswith(';') and '@launch' not in l and 'Override' not in l and 'grid=ceil' not in l)
        txt = hdr + '; @launch grid=(256,1,1) block=(256,1,1) lds=163840\n'
        txt += '.amdgcn_target "amdgcn-amd-amdhsa--gfx950"\n.text\n'
        txt += f'.globl {NAME}_kernel\n.p2align 8\n.type {NAME}_kernel,@function\n{NAME}_kernel:\n'
        txt += body
        txt += 'L_tailend:\n' + altb + 'L_codeend:\n' + sb
        txt += f"""    s_endpgm
.section .rodata,"a"
.p2align 6
.amdhsa_kernel {NAME}_kernel
  .amdhsa_next_free_vgpr 512
  .amdhsa_next_free_sgpr 102
  .amdhsa_accum_offset 256
  .amdhsa_group_segment_fixed_size 0
  .amdhsa_kernarg_size 112
  .amdhsa_user_sgpr_count 2
  .amdhsa_user_sgpr_kernarg_segment_ptr 1
  .amdhsa_system_sgpr_workgroup_id_x 1
.end_amdhsa_kernel
"""
        return txt


DEFAULT = dict(sleep=dict(h2a=6, h2b=6, h2c=2, ha=7, ia=30, ib=30, ha1=5, hc2=1, hc2b=2, hc4=1, fin=10), pol_c='nt', depth=3,
               touch=dict(w1b=['loc', 'code', 'wuk'], w1c=['loc'], w5=['code'], s27=['c1h'], i0=['Xc1:0:1', 'Xbwo'], i1=['loc', 'code'], i2=['loc']), wo_e=0, wo_pre=3, red_pre=4, tr_pre=4, lw_pos=1, heat=0, rowm=0x00030003, K={'b4': 0, 'qb3': 0}, pol_wq3='nt',
               late_touch=-1, wo_at=9, warm=0, c1_late=1, ml_early=2, qflag=0, ybar=0, atom_at=4, cnt_at=12, win=6, boost={}, win0=6)

if __name__ == '__main__':
    import json
    opt = dict(DEFAULT)
    out = sys.argv[1]
    if len(sys.argv) > 2:
        opt.update(json.loads(sys.argv[2]))
    g = Gen(opt)
    open(out, 'w').write(g.build())
    print('nops', g.a.nops, 'stamps', g.stnames, g.n0, g.nper)
```

```python
import sys, math, struct
from asmlib import Asm

NAME = 'interleave_layers__mha_block_cached__compressed_kv_cla__decode'


def f32(x):
    return '0x%08x' % struct.unpack('<I', struct.pack('<f', x))[0]


K1 = 1024
L_X = 128 * K1
L_IT = 72 * K1
L_SZ = 56 * K1
L_QA, L_QB, L_OA, L_OB, L_C1ML = 0, 16 * K1, 32 * K1, 40 * K1, 48 * K1
L_STA, L_STB, L_OAL, L_FL = 52 * K1, 52 * K1 + 256, 52 * K1 + 512, 52 * K1 + 640
L_CSA = 56 * K1
GB, G_IT = 0x100000, 384 * K1
G_YA, G_YB, G_QABS, G_C2L, G_C2 = 0, 24 * K1, 48 * K1, 80 * K1, 112 * K1
CB = 0x200000
STAMP = 0x800000
WS_SIZE = 0x1000000
OOB = 0x40000000
CKV = 65536
STG = 131072
ZML = STG + 7168
ZO = STG + 8192 + 7168
ZQ = STG + 2 * 8192 + 7168
K_, V_, CK, DBG, XIN, WQ, WO, BWQ, WUK, WUV, BWO, WS, WSL, WSG, OUT = ['s[%d:%d]' % (4 + 4 * i, 7 + 4 * i) for i in range(15)]
(sX, sJ, sV, sLOC, sW8, sKV, sKG, sIT, sPOLL, sM, sRES, sST, sH, sS,
 t0, t1, t2, t3, t4, t5) = ['s%d' % i for i in range(64, 84)]
MY = 's[84:85]'
(oY, oQA, oQB, oST, oQgA, oSTgA, oWQ, oWO, oWUK, oWUV, oYpub) = ['s%d' % i for i in range(86, 97)]
(oQgB, oSTgB, oQApub, oQAg, oC1pub, oMLpub, oC1g, oMLg, oC2pub, oC2Lpub, oC2g, oC2Lg,
 oOBpub, oOApub, oOALpub, oOALg, oRES, oO) = ['s%d' % i for i in range(4, 22)]
vT, vA, vL16 = 'v2', 'v3', 'v6'
TBL = [0, 8, 9, 1]
DPPI = 'quad_perm:[0,1,2,3]'
FULL = 'row_mask:0xf bank_mask:0xf'
QSCALE = math.log2(math.e) / math.sqrt(128.0)


def vr(a, n):
    return f'v[{a}:{a + n - 1}]' if n > 1 else f'v{a}'


class Gen:
    def __init__(self, opt):
        self.o = opt
        self.a = Asm()
        self.nst = 0
        self.stnames = []
        self.mode = None
        self.alt = False

    def stamp(self, name, level=1):
        if self.o.get('diag_from') == name:
            l = self.a.lab('dg')
            self.a.e(f's_cselect_b32 s3, 1, 0')
            self.a.e(f's_cmp_eq_u32 {sIT}, 1')
            self.a.e(f's_cbranch_scc1 {l}')
            self.a.e('s_memrealtime s[100:101]')
            self.a.e(f'{l}:')
            self.a.e('s_cmp_eq_u32 s3, 1')
        if self.o.get('stamps', 0) < level or self.mode == 'slow':
            return
        if self.o.get('only') and name not in self.o['only'] and name != 'end':
            return
        a = self.a
        self.nst += 1
        self.stnames.append(name)
        a.e(f's_mov_b32 m0, {sST}')
        a.e(f's_pack_ll_b32_b16 s98, s98, {sPOLL}')
        a.e('v_writelane_b32 v7, s98, m0')
        a.e(f's_mov_b32 {sST}, {self.nst}')
        a.e(f's_bitset1_b32 {sST}, s97')
        a.e('s_memtime s[98:99]' if self.o.get('clk') else 's_memrealtime s[98:99]')

    def K(self, n, key=None, force=False):
        if key is not None:
            n = self.o.get('K', {}).get(key, n)
        if not self.o.get('warm', 1) and not force:
            return
        for i in range(n):
            self.a.e('v_mov_b32 v0, v0')
            self.a.e('s_nop 2')

    def H(self, key, n, junk):
        n = self.o.get('H', {}).get(key, n if self.o.get('heat', 1) else 0)
        for i in range(n):
            self.a.e(f'v_mfma_f32_16x16x4_f32 {vr(junk, 4)}, v0, v0, 0')

    def Wm(self):
        if self.o.get('warm', 1):
            self.a.e('v_mov_b32 v0, v0')

    def bar(self, n=2, vm=False):
        self.K(n)
        self.Wm()
        self.a.e('s_waitcnt vmcnt(0) lgkmcnt(0)' if vm else 's_waitcnt lgkmcnt(0)')
        self.Wm()
        self.a.e('s_barrier')
        self.Wm()

    def retry_to(self, top):
        a = self.a
        done, retry = a.lab('got'), a.lab('retry')
        a.e(f's_cbranch_vccnz {retry}')
        a.e(f'{done}:')
        a.ool(f'{retry}:\ns_cselect_b32 s3, 1, 0\ns_add_u32 {sPOLL}, {sPOLL}, 1\ns_cmp_gt_u32 {sPOLL}, 200000\ns_nop 1\ns_cbranch_scc0 {top}\n'
              f's_cmp_eq_u32 s3, 1\ns_branch {done}')

    def retry_with(self, lines, wait, chk):
        a = self.a
        done, retry = a.lab('got'), a.lab('retry')
        a.e(f's_cbranch_vccnz {retry}')
        a.e(f'{done}:')
        a.ool(f'{retry}:\n' + '\n'.join(lines) + f'\ns_add_u32 {sPOLL}, {sPOLL}, 1\ns_cmp_gt_u32 {sPOLL}, 200000\n{wait}\n'
              f's_cbranch_scc0 {chk}\ns_waitcnt vmcnt(0)\ns_branch {done}')
        return retry

    def ool_if(self, cond, fn, els=None, big=False):
        a = self.a
        go, back = a.lab('go'), a.lab('back')
        a.e(cond)
        a.e(f's_cbranch_scc1 {go}')
        if els and big:
            els()
            a.vmq, a.dsq = [], []
        elif els:
            a.begin_skip()
            els()
            a.end_skip()
        a.e(f'{back}:')
        sub = Asm()
        sub.uid = a.uid + 1000 * (1 + len(a.tail))
        self.a = sub
        sub.e(f'{go}:')
        sub.e('s_nop 1')
        fn()
        sub.e('s_nop 1')
        sub.e(f's_branch {back}')
        self.a = a
        tail, sub.tail = sub.tail, []
        body = sub.finish().split('\n')
        body = [x.strip() for x in body[:[i for i, x in enumerate(body) if x.startswith('L_isl_0')][0]] if x.strip()]
        for k in range(0, len(body), 14):
            part = body[k:k + 14]
            if k + 14 < len(body):
                nxt = a.lab('p')
                part.append(f's_branch {nxt}')
                body[k + 14] = f'{nxt}:\n' + body[k + 14]
            a.ool('\n'.join(part))
        for t in tail:
            a.ool(t)

    def lstore(self, lines):
        a = self.a
        if self.mode is not None:
            for l in lines:
                a.e(l + ' sc1' if self.mode == 'slow' and l.startswith('buffer_') else l)
            return
        slow, back = a.lab('slow'), a.lab('back')
        a.e(f's_cbranch_scc1 {slow}')
        for l in lines:
            a.e(l)
        a.e(f'{back}:')
        a.ool(('' if a.cold else '#cold') + f'{slow}:\ns_nop 7\n' + '\n'.join(l + ' sc1' if l.startswith('buffer_') else l for l in lines) + f'\ns_branch {back}')

    def lcmp(self):
        if self.mode is None:
            self.a.e(f's_cmp_eq_u32 {sLOC}, 0')

    def poll_begin(self):
        a = self.a
        self.ptop, self.pretry, self.pdone = a.lab('poll'), a.lab('retry'), a.lab('got')
        a.e(f'{self.ptop}:')

    def poll_end(self, vmax):
        a = self.a
        a.e(f'v_cmp_eq_u32 vcc, -1, {vmax}')
        a.e(f's_cbranch_vccnz {self.pretry}')
        a.e(f'{self.pdone}:')
        a.ool(f'{self.pretry}:\ns_add_u32 {sPOLL}, {sPOLL}, 1\ns_cmp_gt_u32 {sPOLL}, 200000\ns_cbranch_scc1 {self.pdone}\ns_nop 7\ns_branch {self.ptop}')

    def poll_cmp(self, vmax):
        self.a.e(f'v_cmp_eq_u32 vcc, -1, {vmax}')

    def poll_br(self, last=True):
        a = self.a
        done = a.lab('got')
        retry = a.lab('retry')
        a.e(f's_cbranch_vccnz {retry}')
        a.e(f'{done}:')
        a.ool(f'{retry}:\ns_cselect_b32 s3, 1, 0\ns_add_u32 {sPOLL}, {sPOLL}, 1\ns_cmp_gt_u32 {sPOLL}, 200000\ns_cbranch_scc0 {self.ptop}\n'
              f's_cmp_eq_u32 s3, 1\ns_branch {done}')

    def pipe_poll(self, ld, vmax, regs, key, mid=()):
        a = self.a
        n = sum(x.startswith('buffer') for x in ld)
        if self.o.get('pipe', {}).get(key, 1):
            self.poll_begin()
            for x in ld:
                self.H(key + '0', 0, 40)
                a.e(x)
            self.H(key + '1', 0, 40)
            a.e(f's_waitcnt vmcnt({n})')
            self.maxchain(vmax, regs, True)
            self.poll_cmp(vmax)
            for x in mid:
                a.e(x)
            self.poll_br()
        else:
            a.e('s_waitcnt vmcnt(0)')
            self.late_check(vmax, regs, ld)

    def late_check(self, vmax, regs, reissue):
        a = self.a
        chk, retry, done = a.lab('chk'), a.lab('retry'), a.lab('done')
        a.e(f'{chk}:')
        self.maxchain(vmax, regs, True)
        a.e(f'v_cmp_eq_u32 vcc, -1, {vmax}')
        a.e(f's_cbranch_vccnz {retry}')
        a.e(f'{done}:')
        a.ool(f'{retry}:\ns_add_u32 {sPOLL}, {sPOLL}, 1\ns_cmp_gt_u32 {sPOLL}, 200000\ns_cbranch_scc1 {done}\n'
              + '\n'.join(reissue) + f'\ns_waitcnt vmcnt(0)\ns_branch {chk}')

    def maxchain(self, vmax, regs, first):
        a = self.a
        regs = list(regs)
        if first:
            if len(regs) >= 3:
                a.e(f'v_max3_u32 {vmax}, v{regs[0]}, v{regs[1]}, v{regs[2]}')
                regs = regs[3:]
            elif len(regs) == 2:
                a.e(f'v_max_u32 {vmax}, v{regs[0]}, v{regs[1]}')
                regs = []
            else:
                a.e(f'v_mov_b32 {vmax}, v{regs[0]}')
                regs = []
        while len(regs) >= 2:
            a.e(f'v_max3_u32 {vmax}, {vmax}, v{regs[0]}, v{regs[1]}')
            regs = regs[2:]
        if regs:
            a.e(f'v_max_u32 {vmax}, {vmax}, v{regs[0]}')

    def sleep(self, key):
        n = self.o.get('sleep', {}).get(key, 0)
        if n:
            self.a.e(f's_sleep {n}')

    def wave_only(self, w):
        a = self.a
        l = a.lab('notw')
        a.e(f's_cmp_lg_u32 {sV}, {w}')
        a.e(f's_cbranch_scc1 {l}')
        a.begin_skip()
        return l

    def end_only(self, lab):
        self.a.end_skip()
        self.a.e(f'{lab}:')

    def pos_bytes(self, dst, tmp):
        a = self.a
        a.e(f'v_lshlrev_b32 {dst}, 3, v0')
        a.e(f'v_and_b32 {dst}, 16, {dst}')
        a.e(f'v_and_or_b32 {dst}, v0, 12, {dst}')

    def sp_addr(self, dst, base):
        a = self.a
        a.e(f'v_and_b32 {dst}, 48, v0')
        a.e(f'v_lshlrev_b32 {dst}, 1, {dst}')
        a.e(f'v_and_or_b32 {dst}, {vL16}, 16, {dst}')
        if base:
            a.e(f'v_add_u32 {dst}, {base}, {dst}')

    def sums(self, dst, terms, const=0):
        a = self.a
        first = True
        for reg, mul in terms:
            d = dst if first else t0
            if mul & (mul - 1) == 0:
                a.e(f's_lshl_b32 {d}, {reg}, {mul.bit_length() - 1}')
            else:
                a.e(f's_mul_i32 {d}, {reg}, {mul}')
            if not first:
                a.e(f's_add_u32 {dst}, {dst}, {t0}')
            first = False
        if const:
            a.e(f's_add_u32 {dst}, {dst}, {const}')

    def k64_addr(self, vt, vu):
        a = self.a
        a.e(f'v_lshrrev_b32 {vt}, 2, v0')
        a.e(f'v_lshlrev_b32 {vt}, 13, {vt}')
        a.e(f'v_and_or_b32 {vt}, {vL16}, 48, {vt}')

    def wq_prep(self, vt, vu):
        a = self.a
        a.e(f'v_lshrrev_b32 {vu}, 4, v0')
        a.e(f'v_lshlrev_b32 {vt}, 5, {vu}')
        a.e(f'v_xor_b32 {vt}, {vt}, {vL16}')
        a.e(f's_lshl_b32 {t1}, {sV}, 7')
        a.e(f'v_xor_b32 {vt}, {t1}, {vt}')
        a.e(f'v_and_b32 {vt}, 0xf0, {vt}')
        a.e(f'v_lshl_or_b32 {vt}, {vu}, 13, {vt}')

    def wq_issue(self, srd, vt, vu, parts, pol=''):
        a = self.a
        for i in parts:
            if i == parts[0] or i == 3:
                a.e(f's_add_u32 m0, {sW8}, {(i // 3) * 3072}')
            a.e(f's_add_u32 {t1}, {oWQ}, {i * 4 * 8192 - (i % 3) * 1024}')
            a.e(f'buffer_load_dwordx4 {vt}, {srd}, {t1} offen offset:{(i % 3) * 1024} {pol} lds')
        a.tag_vm('wq')

    def dma_wq(self, srd, vt, vu, pol=''):
        self.wq_prep(vt, vu)
        self.wq_issue(srd, vt, vu, list(range(6)), pol)

    def dma_wuv(self, vt):
        a = self.a
        pol = self.o.get('pol_w', '')
        self.k64_addr(vt, None)
        for i in range(4):
            a.e(f's_add_u32 m0, {sW8}, {i * 1024}')
            a.e(f's_add_u32 {t1}, {oWUV}, {i * 16 * 8192}')
            a.e(f'buffer_load_dwordx4 {vt}, {WUV}, {t1} offen {pol} lds')
        a.tag_vm('wuv')

    def wuk_prep(self, vt, vu):
        a = self.a
        a.e(f'v_lshrrev_b32 {vu}, 4, v0')
        a.e(f'v_lshlrev_b32 {vt}, 5, {vu}')
        a.e(f'v_xor_b32 {vt}, {vt}, {vL16}')
        a.e(f'v_and_b32 {vt}, 0xf0, {vt}')
        a.e(f'v_lshl_or_b32 {vt}, {vu}, 13, {vt}')

    def wuk_issue(self, vt, vu):
        a = self.a
        pol = self.o.get('pol_wuk', '')
        a.e(f's_mov_b32 m0, {sW8}')
        for q in range(4):
            a.e(f's_add_u32 {t1}, {oWUK}, {q * (4 * 8192 - 1024)}')
            if q:
                a.e(f'v_xor_b32 {vu}, {TBL[q] << 4}, {vt}')
            a.e(f'buffer_load_dwordx4 {vu if q else vt}, {WUK}, {t1} offen offset:{q * 1024} {pol} lds')
        a.tag_vm('wuk')

    def wo_prep(self, R, tmp, second=True):
        a = self.a
        for i in range(3):
            a.e(f'v_add_u32 v{R + i}, {64 * i}, v0')
            a.e(f'v_mul_u32_u24 {tmp}, 21846, v{R + i}')
            a.e(f'v_lshrrev_b32 {tmp}, 16, {tmp}')
            a.e(f'v_mul_u32_u24 {tmp}, {1152 - 48}, {tmp}')
            a.e(f'v_lshl_add_u32 v{R + i}, v0, 4, {tmp}')
        if second:
            a.e(f's_add_u32 {t5}, {oWO}, {64 * 1152}')

    def wo_lines(self, srd, R, pol='', base=sW8):
        out = []
        for h in range(2):
            out.append(f's_add_u32 m0, {base}, {h * 3072}')
            for i in range(3):
                out.append(f'buffer_load_dwordx4 v{R + i}, {srd}, {t5 if h else oWO} offen offset:{i * 1024} {pol} lds')
        return out

    def wo_group(self, srd, R, lo, hi):
        out = []
        for k in range(lo, hi):
            h, i = divmod(k, 3)
            if k == lo or i == 0:
                out.append(f's_add_u32 m0, {sW8}, {h * 3072}')
            out.append(f'buffer_load_dwordx4 v{R + i}, {srd}, {t5 if h else oWO} offen offset:{i * 1024} lds')
        return out

    def dma_wo(self, srd, R, tmp):
        self.wo_prep(R, tmp)
        for x in self.wo_lines(srd, R, self.o.get('pol_wo1', '')):
            self.a.e(x)
        self.a.tag_vm('wo')

    def touch(self, what, vt, vd):
        a = self.a
        if what == 'code':
            l = a.lab('pc')
            self.sums(t1, [(sJ, 1024), (sV, 256)])
            a.e(f'v_lshl_add_u32 {vt}, v0, 7, {t1}')
            a.e(f'v_min_u32 {vt}, L_tailend-L_top_fast, {vt}')
            a.e('s_getpc_b64 s[0:1]')
            a.e(f'{l}:')
            a.e(f's_add_u32 s0, s0, L_top_fast-{l}')
            a.e(f's_addc_u32 s1, s1, {0 if self.mode is None else -1}')
            a.e('s_mov_b64 exec, 3')
            a.e(f'global_load_dword {vd}, {vt}, s[0:1]')
            a.e('s_mov_b64 exec, -1')
            return
        if what[0] == 'X':
            what, lo, hi = (what.split(':') + ['0', '9'])[:3]
            if what in ('Xbwq', 'Xwq', 'Xwuk', 'Xwuv'):
                srd, rows = {'Xbwq': (BWQ, 18), 'Xwq': (WQ, 18), 'Xwuk': (WUK, 12), 'Xwuv': (WUV, 16)}[what]
                a.e(f'v_lshrrev_b32 {vt}, 3, v0')
                a.e(f'v_lshlrev_b32 {vt}, 6, {vt}')
                a.e(f'v_and_or_b32 {vt}, v0, 7, {vt}')
                a.e(f'v_lshlrev_b32 {vt}, 7, {vt}')
                self.sums(t1, [(sX, 1024), (sJ, 4 * rows * 8192), (sV, rows * 8192)], (1 << 32) - 96 * rows * 8192)
                for k in range(0, rows, 8):
                    if rows - k < 8:
                        a.e(f's_mov_b32 exec_lo, {(1 << ((rows - k) * 8)) - 1}')
                        a.e('s_mov_b32 exec_hi, 0')
                    if int(lo) <= k // 8 < int(hi):
                        a.e(f'buffer_load_dword {vd}, {vt}, {srd}, {t1} offen')
                    a.e(f's_add_u32 {t1}, {t1}, 65536')
                a.e('s_mov_b64 exec, -1')
                return
            srd, base, per = {'Xc1': (WS, [(sX, 1 << 19)], 16384), 'Xbwo': (BWO, [(sX, 512 * 1152)], 18432), 'Xwo': (WO, [(sX, 512 * 1152)], 18432)}[what]
            a.e(f'v_lshlrev_b32 {vt}, 7, v0')
            self.sums(t1, base + [(sJ, 4 * per), (sV, per)], (CB if what == 'Xc1' else 0) - 96 * per + (1 << 32 if what != 'Xc1' else 0))
            for k in range(0, per, 8192):
                if per - k < 8192:
                    a.e(f's_mov_b64 exec, {(1 << ((per - k) // 128)) - 1}')
                if int(lo) <= k // 8192 < int(hi):
                    a.e(f'buffer_load_dword {vd}, {vt}, {srd}, {t1} offen')
                a.e(f's_add_u32 {t1}, {t1}, 8192')
            a.e('s_mov_b64 exec, -1')
            return
        half = None
        if what[-1] in '01' and what != 'c1':
            what, half = what[:-1], int(what[-1])
        if what in ('wq', 'bwq', 'wuv', 'wuk'):
            srd = {'wq': WQ, 'bwq': BWQ, 'wuv': WUV, 'wuk': WUK}[what]
            a.e(f'v_lshrrev_b32 {vt}, 3, v0')
            a.e(f'v_lshlrev_b32 {vt}, 6, {vt}')
            a.e(f'v_and_or_b32 {vt}, v0, 7, {vt}')
            a.e(f'v_lshlrev_b32 {vt}, 7, {vt}')
            rows = 5 if what in ('wq', 'bwq') else 4
            self.sums(t1, [(sJ, 4 * rows * 8192), (sV, rows * 8192), (sX, 1024)])
            n = 8 * rows
        elif what == 'loc':
            srd = WS
            a.e(f'v_lshlrev_b32 {vt}, 7, v0')
            self.sums(t1, [(sX, L_X), (sJ, 4096), (sV, 1024)])
            n = 8
        elif what == 'c1h':
            srd = WS
            a.e(f'v_lshlrev_b32 {vt}, 7, v0')
            self.sums(t1, [(sX, 1 << 19), (sJ, 16384), (sV, 2048)], CB + 8192)
            n = 16
        elif what == 'c1':
            srd = WS
            a.e(f'v_lshlrev_b32 {vt}, 7, v0')
            self.sums(t1, [(sX, 1 << 19), (sJ, 16384), (sV, 4096)], CB)
            n = 32
        else:
            srd = {'wo': WO, 'bwo': BWO}[what]
            a.e(f'v_lshlrev_b32 {vt}, 7, v0')
            self.sums(t1, [(sX, 512 * 1152), (sJ, 18432), (sV, 4608)])
            n = 36
        m = (1 << n) - 1
        if half == 0:
            m = (1 << (n // 2)) - 1
        elif half == 1:
            m ^= (1 << (n // 2)) - 1
        a.e(f's_mov_b32 exec_lo, {m & 0xffffffff}')
        a.e(f's_mov_b32 exec_hi, {m >> 32}')
        if vd is None:
            a.e(f's_add_u32 m0, {sW8}, 1024')
            a.e(f'buffer_load_dword {vt}, {srd}, {t1} offen lds')
        else:
            a.e(f'buffer_load_dword {vd}, {vt}, {srd}, {t1} offen')
        a.e('s_mov_b64 exec, -1')

    def touches(self, where, vt, vd):
        for w in self.o.get('touch', {}).get(where, []):
            self.touch(w, vt, vd)

    def lnq_addr(self):
        a = self.a
        a.e('v_lshrrev_b32 v52, 4, v0')
        a.e('v_bfe_u32 v53, v0, 2, 2')
        a.e('v_lshl_add_u32 v52, v52, 5, v53')
        a.e('v_and_b32 v53, 31, v0')
        a.e('v_lshlrev_b32 v53, 3, v53')
        a.e('v_lshl_or_b32 v52, v52, 8, v53')
        a.e(f's_lshl_b32 {t0}, {sV}, 6')
        a.e(f's_add_u32 {t0}, {t0}, {STG}')
        a.e(f'v_xor_b32 v52, {t0}, v52')
        a.e('v_xor_b32 v54, 32, v52')

    def lnq_prep(self):
        a = self.a
        a.wait(vm='wq')
        a.e('s_barrier')
        for rho in range(3):
            for tau in range(2):
                for half in range(2):
                    a.e(f'ds_read_b64_tr_b16 {vr(28 + 8 * rho + 4 * tau + 2 * half, 2)}, v{52 + 2 * tau} offset:{2048 * rho + 1024 * half}')
        a.e('s_waitcnt lgkmcnt(0)')
        a.e('s_barrier')

    def lnq_rows(self):
        a = self.a
        a.e('v_mov_b32 v53, 0x3f803f80')
        a.e(f's_lshl_b64 s[82:83], {MY}, 8')
        a.e('v_cndmask_b32 v16, 0, v53, s[82:83]')
        a.e('v_mov_b32 v17, v16')
        for r in range(18, 28, 2):
            a.e(f'v_mov_b64 {vr(r, 2)}, v[16:17]')

    def lnq_mfma(self, rho):
        a = self.a
        A = vr(16 + 4 * rho, 4)
        c = (lambda r: '0') if rho == 0 else (lambda r: r)
        return [f'v_mfma_f32_16x16x32_bf16 v[60:63], {A}, {A}, {c("v[60:63]")}',
                f'v_mfma_f32_16x16x32_bf16 v[52:55], {A}, {vr(28 + 8 * rho, 4)}, {c("v[52:55]")}',
                f'v_mfma_f32_16x16x32_bf16 v[56:59], {A}, {vr(32 + 8 * rho, 4)}, {c("v[56:59]")}']

    def lnq_reduce(self, isb, chk=False):
        a = self.a
        a.e('v_pk_add_f32 v[60:61], v[60:61], v[62:63]')
        a.e('v_add_f32 v60, v60, v61')
        if chk:
            a.e('v_cmp_u_f32 vcc, v60, v60')
        a.e('v_pk_add_f32 v[52:53], v[52:53], v[54:55]')
        a.e('v_mov_b32 v61, v60')
        a.e('v_pk_add_f32 v[56:57], v[56:57], v[58:59]')
        a.e('v_add_f32 v52, v52, v53')
        a.e('v_permlane16_swap_b32 v60, v61')
        a.e('v_add_f32 v56, v56, v57')
        a.e('v_add_f32 v60, v60, v61')
        a.e('v_permlane16_swap_b32 v52, v56')
        a.e(f'v_add_f32_dpp v60, v60, v60 quad_perm:[1,0,3,2] {FULL}')
        a.e('v_add_f32 v52, v52, v56')
        self.lcmp()
        a.e(f'v_add_f32_dpp v60, v60, v60 quad_perm:[2,3,0,1] {FULL}')
        if isb:
            a.e(f'v_mov_b32_dpp v53, v52 quad_perm:[1,0,3,2] {FULL}')
            a.e('v_cvt_pk_bf16_f32 v52, v52, v53')
        a.e(f'v_add_f32_dpp v60, v60, v60 row_half_mirror {FULL}')

    def lnq_pubaddr(self, isb, first):
        a = self.a
        if isb:
            self.pos_bytes('v14', None)
            a.e('v_and_b32 v15, 16, v0')
            a.e('v_lshl_or_b32 v14, v15, 4, v14')
            a.e('v_and_b32 v15, 32, v0')
            a.e('v_lshl_or_b32 v14, v15, 6, v14')
        else:
            a.e('v_and_b32 v14, 31, v0')
            a.e('v_lshlrev_b32 v14, 2, v14')
            if first:
                a.e('v_lshrrev_b32 v15, 5, v0')
                a.e(f'v_mul_u32_u24 v15, {L_CSA - L_QA}, v15')
                a.e('v_add_u32 v14, v14, v15')
        a.e('v_lshrrev_b32 v15, 1, v0')
        if isb:
            self.oob(('v14', 'v14'), (0xaaaaaaaa, 0xaaaaaaaa))
        elif not first:
            self.oob(('v14', 'v14'), (0, 0xffffffff))
        self.oob(('v15', 'v15'), (0xfffffefe, 0xffffffff))

    def lnq_publish(self, isb, first, q='v52', st='v60', qa='v14', sa='v15'):
        self.lstore([f'buffer_store_dword {q}, {qa}, {WSL}, {oQB if isb else oQA} offen',
                     f'buffer_store_dword {st}, {sa}, {WSL}, {oST} offen offset:{256 if isb else 0}'])

    def keep_rounding(self):
        a = self.a
        a.e(f's_cmp_eq_u32 {sRES}, 3')
        a.e('s_cselect_b64 vcc, -1, 0')
        a.e('v_lshlrev_b32 v36, 16, v34')
        a.e('v_and_b32 v37, 0xffff0000, v34')
        a.e('v_pk_add_f32 v[32:33], v[32:33], v[36:37] neg_lo:[0,1] neg_hi:[0,1]')
        a.e('v_cndmask_b32 v4, 0, v32, vcc')
        a.e('v_cndmask_b32 v5, 0, v33, vcc')

    def lnq_tail(self, goff, isb):
        a = self.a
        pol = self.o.get('pol_bwq', '') if isb else self.o.get('pol_wq3', '')
        if self.o.get('wq_hoist', 1):
            self.wq_issue(BWQ if isb else WQ, 'v17', None, list(range(6)), pol)
            a.e('s_barrier')
        self.keep_rounding()
        if self.o.get('ybar', 1):
            a.e('s_barrier')
        self.lnq_rows()
        a.e('v_lshrrev_b32 v12, 2, v0')
        a.e('v_mul_u32_u24 v12, 3072, v12')
        a.e(f'v_and_or_b32 v12, {vL16}, 48, v12')
        a.e(f's_add_u32 {t4}, {oY}, {goff}')
        a.e(f's_add_u32 {t5}, {sW8}, 6144')
        if not self.o.get('wq_hoist', 1):
            self.dma_wq(BWQ if isb else WQ, 'v8', 'v9', pol)
            a.e('s_barrier')
        self.lnq_addr()
        self.lnq_pubaddr(isb, False)
        a.e('v_and_b32 v11, 48, v0')
        a.e('v_lshlrev_b32 v11, 3, v11')
        a.e('v_and_or_b32 v11, v0, 7, v11')
        a.e('v_lshlrev_b32 v11, 6, v11')
        a.e(f'v_add_u32 v11, {STG + 6144}, v11')
        a.e('v_mov_b32 v13, 0')
        if isb:
            self.wuk_prep('v8', 'v9')

            def clear1():
                self.clear_g1(56)
                self.sleep('h2c')
            self.ool_if(f's_cmp_eq_u32 {sIT}, 0', clear1, lambda: self.sleep('h2a'))
        else:
            if self.o.get('wo_h2', 0):
                self.wo_prep(56, 'v59', False)
            self.sleep('h2b')
        ld = [f's_mov_b32 m0, {t5}', 's_mov_b64 exec, 0x77777777',
              f'buffer_load_dword v13, v12, {WSG}, {t4} offen sc1',
              f'buffer_load_dwordx4 v12, {WSG}, {t4} offen sc1 lds',
              's_mov_b64 exec, -1']
        for i, x in enumerate(ld):
            a.e(x)
            if i in (2, 3):
                a.tag_vm(f'y{i}')
        self.touches('w1b' if isb else 'w1c', 'v60', 'v10')
        self.lnq_prep()
        self.stamp('wqrdy', 2)
        if isb:
            self.wuk_issue('v8', 'v9')
        else:
            for x in self.wo_group(WO, 56, 0, self.o.get('wo_h2', 0)):
                a.e(x)
        chk, again = a.lab('chk'), a.lab('again')
        a.wait(vm='y2')
        a.e(f'{chk}:')
        a.e('v_cmp_eq_u32 vcc, -1, v13')
        a.wait(vm='y3')
        again = self.retry_with(ld, 's_waitcnt vmcnt(0)', chk)
        a.e(f's_mov_b64 exec, {MY}')
        a.e('s_barrier')
        for rho in range(3):
            a.e(f'ds_read_b128 {vr(16 + 4 * rho, 4)}, v11 offset:{16 * rho}')
            a.tag_ds(f'a{rho}')
        fl = isb and self.o.get('qflag', 1)
        if fl:
            self.lstore([f'buffer_store_dword v0, off, {WSL}, {t3} offset:{L_FL - L_OAL}'])
        a.e('s_mov_b64 exec, -1')
        self.stamp('h2got', 2)
        if fl:
            a.e('v_and_b32 v9, 7, v0')
            a.e('v_lshlrev_b32 v9, 2, v9')
        self.H('l1', 0, 56)
        mm = [self.lnq_mfma(rho) for rho in range(3)]
        for rho in range(3):
            a.wait(ds=f'a{rho}')
            a.e(mm[rho][0])
        g = ['v_pk_add_f32 v[60:61], v[60:61], v[62:63]', 'v_add_f32 v62, v60, v61', 'v_add_f32 v60, v60, v61', 'v_cmp_u_f32 vcc, v62, v62',
             'v_permlane16_swap_b32 v60, v62', 'v_add_f32 v60, v60, v62',
             f'v_add_f32_dpp v60, v60, v60 quad_perm:[1,0,3,2] {FULL}', f'v_add_f32_dpp v60, v60, v60 quad_perm:[2,3,0,1] {FULL}',
             f'v_add_f32_dpp v60, v60, v60 row_half_mirror {FULL}']
        a.e(mm[0][1]); a.e('s_nop 1')
        a.e(mm[1][1]); a.e('s_nop 1')
        a.e(mm[2][1]); a.e('s_nop 0'); a.e(g[0])
        a.e(mm[0][2]); a.e(g[1]); a.e(g[2])
        a.e(mm[1][2]); a.e(g[3]); a.e(g[4])
        a.e(mm[2][2]); a.e(g[5])
        a.e('v_pk_add_f32 v[52:53], v[52:53], v[54:55]')
        a.e('v_add_f32 v52, v52, v53')
        a.e(g[6])
        a.e(g[7])
        a.e('v_pk_add_f32 v[56:57], v[56:57], v[58:59]')
        a.e('v_add_f32 v56, v56, v57')
        a.e(g[8])
        again2 = a.lab('again')
        self.retry_to(again2)
        a.e('v_permlane16_swap_b32 v52, v56')
        a.e('v_add_f32 v52, v52, v56')
        if isb:
            a.e(f'v_mov_b32_dpp v53, v52 quad_perm:[1,0,3,2] {FULL}')
            a.e('v_cvt_pk_bf16_f32 v52, v52, v53')
        a.ool(f'{again2}:\ns_barrier\ns_branch {again}')
        if fl == 1:
            a.e(f'buffer_load_dword v10, v9, {WSL}, {oOALg} offen offset:{L_FL - L_OAL} sc1')
            a.tag_vm('fl')
        self.lnq_publish(isb, False)
        if fl == 2:
            a.e(f'buffer_load_dword v10, v9, {WSL}, {oOALg} offen offset:{L_FL - L_OAL} sc1')
            a.tag_vm('fl')
        self.stamp('qpub')

    def clear_g1(self, R):
        b = self.a
        for r in range(R, R + 4):
            b.e(f'v_mov_b32 v{r}, -1')
        self.sums(t1, [(sX, 128 * 384), (sJ, 4 * 384), (sV, 384)], GB + G_IT)
        b.e('s_mov_b64 exec, 0xffffff')
        b.e(f'buffer_store_dwordx4 {vr(R, 4)}, {vL16}, {WS}, {t1} offen sc1')
        b.e('s_mov_b64 exec, -1')

    def clear_c1(self, R, va, vt):
        b = self.a
        for r in range(R, R + 4):
            b.e(f'v_mov_b32 v{r}, -1')
        b.e(f'v_lshrrev_b32 {va}, 4, v0')
        b.e(f'v_and_b32 {vt}, 0xf0, {vL16}')
        b.e(f'v_lshl_or_b32 {va}, {va}, 16, {vt}')
        out = []
        for q in range(4):
            out.append(f's_add_u32 {t1}, {oC1pub}, {q * 4096}')
            out.append(f'buffer_store_dwordx4 {vr(R, 4)}, {va}, {WS}, {t1} offen')
        return out

    def oob(self, reg, mask):
        a = self.a
        a.e(f's_mov_b32 vcc_lo, {mask[0]}')
        a.e(f's_mov_b32 vcc_hi, {mask[1]}')
        a.e(f'v_cndmask_b32 {reg[0]}, {reg[1]}, 2.0, vcc')

    def c1_addr(self, dst, tmp):
        a = self.a
        a.e(f'v_lshrrev_b32 {tmp}, 4, v0')
        a.e(f'v_and_b32 {dst}, 0xf0, {vL16}')
        a.e(f'v_lshl_or_b32 {dst}, {tmp}, 12, {dst}')

    def stats_const(self, C):
        return f'v_mov_b32 v{C}, {f32(64.0 / QSCALE ** 2)}'

    def stats(self, S, C):
        out = []
        for c in (4, 2, 1):
            out.append(f'v_add_f32_dpp v{S + 1}, v{S + 1}, v{S + 1} row_ror:{c} {FULL}')
            out.append(f'v_add_f32_dpp v{S}, v{S}, v{S} row_ror:{c} {FULL}')
        out.append(f'v_mul_f32 v{S + 1}, {f32(1.0 / (64 * 576))}, v{S + 1}')
        out.append(f'v_mul_f32 v{S}, {f32(1.0 / (64 * 576))}, v{S}')
        out.append(f'v_fma_f32 v{S}, -v{S + 1}, v{S + 1}, v{S}')
        out.append(f'v_max_f32 v{S}, 0, v{S}')
        out.append(f'v_fmaak_f32 v{S}, v{C}, v{S}, {f32(1e-5 / QSCALE ** 2)}')
        out.append(f'v_rsq_f32 v{S}, v{S}')
        return out

    def mix(self, x, y):
        x, y = list(x), list(y)
        while x or y:
            if x:
                self.a.e(x.pop(0))
            if y:
                self.a.e(y.pop(0))

    def resid(self, goff, base, va, final):
        a = self.a
        a.e(f'v_lshlrev_b32 {va}, 2, v0')
        a.e(f's_add_u32 {t2}, {oRES}, {goff}')
        a.e('s_mov_b64 exec, 0xfff')
        if final:
            self.sleep('fin')
        self.poll_begin()
        for i in range(8):
            if i & 1 == 0:
                a.e(f's_add_u32 {t3}, {t2}, {i * 3072}')
            a.e(f'buffer_load_dword v{base + i}, {va}, {WSG}, {t3} offen offset:{(i & 1) * 3072} sc1')
        a.e(f'v_mov_b32 v{base + 8}, 0x3f80')
        a.e(f'v_mov_b32 v{base + 9}, 0x3f800000')
        A = base + 10
        a.e(f'v_mov_b64 {vr(A, 2)}, v[4:5]')
        for i in range(8):
            if i & 1 == 0:
                a.e(f's_waitcnt vmcnt({6 - i})')
            a.e(f'v_dot2c_f32_bf16 v{A}, v{base + 8}, v{base + i}')
            a.e(f'v_dot2c_f32_bf16 v{A + 1}, v{base + 9}, v{base + i}')
        a.e('s_nop 2')
        a.e(f'v_cmp_u_f32 vcc, v{A}, v{A + 1}')
        if final:
            a.e(f'v_cvt_pk_bf16_f32 v9, v{A}, v{A + 1}')
            a.e(f's_mul_i32 {t0}, {sJ}, 48')
        self.poll_br()
        if not final:
            a.e(f'v_mov_b64 v[4:5], {vr(A, 2)}')

    def resid_track(self, goff, base, va, cond):
        a = self.a
        go, back = a.lab('res'), a.lab('resback')
        a.e(cond)
        a.e(f's_cbranch_scc1 {go}')
        a.e(f'{back}:')
        sub = Asm()
        sub.uid = a.uid + 1000 * (1 + len(a.tail))
        self.a = sub
        sub.e(f'{go}:')
        sub.e('s_nop 1')
        self.resid(goff, base, va, False)
        sub.e('s_mov_b64 exec, -1')
        sub.e(f's_branch {back}')
        self.a = a
        body = [i.text for i in sub.ins]
        cut = [k for k in range(0, len(body), 14)]
        for k in cut:
            part = body[k:k + 14]
            if k + 14 < len(body):
                nxt = a.lab('resp')
                part.append(f's_branch {nxt}')
                body[k + 14] = f'{nxt}:\n' + body[k + 14]
            a.ool('\n'.join(part))
        for t in sub.tail:
            a.ool(t)

    def qa_addr(self, T):
        a = self.a
        a.e(f'v_and_b32 v{T}, 4, v0')
        a.e(f'v_lshlrev_b32 v{T}, 3, v{T}')
        a.e(f'v_and_b32 v{T + 1}, 3, v0')
        a.e(f'v_lshl_or_b32 v{T}, v{T + 1}, 2, v{T}')
        a.e(f'v_lshrrev_b32 v{T + 1}, 5, v0')
        a.e(f'v_lshl_or_b32 v{T}, v{T + 1}, 4, v{T}')
        a.e(f'v_bfe_u32 v{T + 1}, v0, 4, 1')
        a.e(f'v_lshl_or_b32 v{T}, v{T + 1}, 1, v{T}')
        a.e(f's_lshl_b32 {t0}, {sV}, 6')
        a.e(f's_add_u32 {t0}, {t0}, {ZQ}')
        a.e(f'v_add_u32 v{T}, {t0}, v{T}')
        a.e(f'v_and_b32 v{T + 1}, 7, v0')
        a.e(f'v_lshlrev_b32 v{T + 1}, 3, v{T + 1}')
        self.oob((f'v{T + 1}', f'v{T + 1}'), (0xc0c0c0c0, 0xc0c0c0c0))
        self.oob((f'v{T + 3}', vL16), (0, 0xffff0000))
        self.sp_addr(f'v{T + 2}', ZQ)

    def red8(self, R):
        return [f'v_permlane32_swap_b32 v{R}, v{R + 2}',
                f'v_permlane32_swap_b32 v{R + 1}, v{R + 3}',
                f'v_pk_add_f32 {vr(R, 2)}, {vr(R, 2)}, {vr(R + 2, 2)}',
                f'v_permlane16_swap_b32 v{R}, v{R + 1}',
                f'v_add_f32 v{R}, v{R}, v{R + 1}',
                f'v_add_f32_dpp v{R}, v{R}, v{R} row_ror:8 {FULL}']

    def qa_loads(self, R, S, T):
        return [f'buffer_load_dwordx2 {vr(S, 2)}, v{T + 1}, {WSL}, {oSTgA} offen sc1',
                f'buffer_load_dwordx4 {vr(R, 4)}, v{T + 3}, {WSL}, {oQgA} offen sc1']

    def qa_finish(self, R, S, T, Q, C, br=False):
        a = self.a
        self.mix(self.stats(S, C), self.red8(R) + [f'v_and_b32 v{R + 1}, 0xffff0000, v1'])
        a.e(f'v_fma_f32 v{R}, -v{S + 1}, v{R + 1}, v{R}')
        a.e(f'v_mul_f32 v{R}, v{R}, v{S}')
        a.e(f'v_cvt_pk_bf16_f32 v{R}, v{R}, v{R}')
        a.e(f'ds_write_b16 v{T}, v{R}')
        if br:
            return
        self.bar(2, br)
        a.e(f'ds_read_b128 {vr(Q, 4)}, v{T + 2}')
        a.tag_ds('q0')
        a.e(f'ds_read_b128 {vr(Q + 4, 4)}, v{T + 2} offset:128')
        a.tag_ds('q1')

    def p_addr(self, r, t):
        a = self.a
        a.e(f'v_and_b32 {r}, 0x32, v0')
        a.e(f'v_lshlrev_b32 {r}, 3, {r}')
        a.e(f'v_and_b32 {t}, 8, v0')
        a.e(f'v_lshl_or_b32 {r}, {t}, 2, {r}')
        a.e(f'v_and_b32 {t}, 5, v0')
        a.e(f'v_lshl_or_b32 {r}, {t}, 1, {r}')
        a.e(f'v_add_u32 {r}, {sW8}, {r}')

    def qk_softmax(self, Q, D, S, T, fill=()):
        a = self.a
        for t in range(19):
            if t >= 3:
                d = D + 4 * ((t - 3) & 3)
                a.e(f'v_add_f32_dpp v{S + ((t - 3) & 3)}, v{d}, v{d + 1} {DPPI} row_mask:{1 << ((t - 3) >> 2)} bank_mask:0xf')
            if 4 <= t + 1 < 16:
                a.e(f'v_mov_b64 {vr(D + 4 * ((t + 1) & 3), 2)}, 0')
            if t < 16:
                d = vr(D + 4 * (t & 3), 4)
                if t == 0:
                    a.wait(ds='q0')
                a.e(f'v_smfmac_f32_16x16x64_bf16 {d}, {vr(Q, 4)}, a[{16 * t}:{16 * t + 7}], v1')
                if t == 0:
                    a.wait(ds='q1')
                elif t - 1 < len(fill):
                    for x in fill[t - 1]:
                        a.e(x)
                a.e(f'v_smfmac_f32_16x16x64_bf16 {d}, {vr(Q + 4, 4)}, a[{16 * t + 8}:{16 * t + 15}], v1')
        self.softmax_a(S, T, f'v{T + 1}')

    def softmax_a(self, S, T, pa, fill=()):
        a = self.a
        fill = list(fill)

        def f2():
            for _ in range(2):
                if fill:
                    a.e(fill.pop(0))
        m = f'v{T}'
        a.e(f'v_max3_f32 {m}, v{S}, v{S + 1}, v{S + 2}')
        a.e(f'v_max_f32 {m}, {m}, v{S + 3}')
        for c in ('row_ror:8', 'row_ror:4', 'row_ror:2', 'row_ror:1'):
            f2()
            a.e(f'v_max_f32_dpp {m}, {m}, {m} {c} {FULL}')
        f2()
        a.e(f'v_max_f32_dpp {m}, {m}, {m} row_bcast:15 row_mask:0xa bank_mask:0xf')
        f2()
        a.e(f'v_max_f32_dpp {m}, {m}, {m} row_bcast:31 row_mask:0xc bank_mask:0xf')
        a.e(f'v_readlane_b32 {sM}, {m}, 63')
        f2()
        assert not fill
        for r in range(4):
            a.e(f'v_subrev_f32 v{S + r}, {sM}, v{S + r}')
        for r in range(4):
            a.e(f'v_exp_f32 v{S + r}, v{S + r}')
        a.e(f'v_cvt_pk_bf16_f32 v{T + 2}, v{S}, v{S + 1}')
        a.e(f'v_cvt_pk_bf16_f32 v{T + 3}, v{S + 2}, v{S + 3}')
        a.e(f'ds_write_b16 {pa}, v{T + 2} offset:6144')
        a.e(f'ds_write_b16_d16_hi {pa}, v{T + 2} offset:{6144 + 4}')
        a.e(f'ds_write_b16 {pa}, v{T + 3} offset:{6144 + 64}')
        a.e(f'ds_write_b16_d16_hi {pa}, v{T + 3} offset:{6144 + 68}')

    def lsum(self, l, S):
        out = [f'v_pk_add_f32 {vr(S, 2)}, {vr(S, 2)}, {vr(S + 2, 2)}', f'v_add_f32 {l}, v{S}, v{S + 1}']
        for c in ('row_ror:8', 'row_ror:4', 'row_ror:2', 'row_ror:1'):
            out.append(f'v_add_f32_dpp {l}, {l}, {l} {c} {FULL}')
        out.append(f'v_add_f32_dpp {l}, {l}, {l} row_bcast:15 row_mask:0xa bank_mask:0xf')
        out.append(f'v_add_f32_dpp {l}, {l}, {l} row_bcast:31 row_mask:0xc bank_mask:0xf')
        return out

    def ml_write(self, T):
        return [f's_lshl_b32 {t0}, {sV}, 3', f's_add_u32 {t0}, {t0}, {ZML}', f'v_mov_b32 v{T + 2}, 0x30000', f'v_mov_b32 v{T}, {sM}',
                f'v_writelane_b32 v{T + 2}, {t0}, 63\nds_write_b64 v{T + 2}, {vr(T, 2)}']

    def ml_read(self, R, T):
        return [f'v_mov_b32 v{T}, {ZML}', f'ds_read_b128 {vr(R, 4)}, v{T}', f'ds_read_b128 {vr(R + 4, 4)}, v{T} offset:16']

    def ml_scale(self, R, T, F, LW):
        out = [f'v_max3_f32 v{T}, v{R}, v{R + 2}, v{R + 4}', f'v_max_f32 v{T}, v{T}, v{R + 6}']
        out += [f'v_sub_f32 v{R + 2 * w}, v{R + 2 * w}, v{T}' for w in range(4)]
        out += [f'v_sub_f32 v{F}, {sM}, v{T}']
        out += [f'v_exp_f32 v{R + 2 * w}, v{R + 2 * w}' for w in range(4)]
        out += [f'v_exp_f32 v{F}, v{F}', f'v_mul_f32 v{LW}, v{R}, v{R + 1}']
        out += [f'v_fmac_f32 v{LW}, v{R + 2 * w}, v{R + 2 * w + 1}' for w in range(1, 4)]
        out += [f'v_rcp_f32 v{R}, v{LW}', f'v_log_f32 v{LW}, v{LW}', f'v_mul_f32 v{F}, v{F}, v{R}', f'v_add_f32 v{LW}, v{LW}, v{T}']
        return out

    def combine_publish(self):
        a = self.a
        a.e('ds_write2st64_b32 v46, v44, v45 offset0:26 offset1:27')
        lwl = f'buffer_load_dword v16, v47, {WSL}, {oOALg} offen sc1'
        if self.o.get('lw_pos', 0) == 0:
            a.e(lwl)
        a.e(f'v_mov_b32 v10, {STG + 6656}')
        a.e('v_lshl_add_u32 v8, v0, 3, v10')
        a.e('v_and_b32 v10, 56, v0')
        a.e('v_lshlrev_b32 v10, 5, v10')
        a.e(f'v_and_or_b32 v10, {vL16}, 16, v10')
        a.e('v_and_b32 v11, 6, v0')
        a.e('v_lshl_or_b32 v10, v11, 1, v10')
        a.e(f's_cmp_lg_u32 {sV}, 0')
        a.e('s_waitcnt lgkmcnt(0)')
        a.e('s_barrier')
        l = a.lab('notw')
        if self.o.get('lw_pos', 0) == 0:
            a.e(f's_cbranch_scc1 {l}')
            a.begin_skip()
        for w in range(4):
            a.e(f'ds_read_b64 {vr(20 + 2 * w, 2)}, v8 offset:{w * 8192}')
            a.tag_ds(f'o{w}')
        if self.o.get('lw_pos', 0) == 1:
            a.e(lwl)
            a.e(f's_cbranch_scc1 {l}')
            a.begin_skip()
        a.wait(ds='o1')
        a.e('v_pk_add_f32 v[20:21], v[20:21], v[22:23]')
        a.wait(ds='o3')
        a.e('v_pk_add_f32 v[24:25], v[24:25], v[26:27]')
        a.e('v_pk_add_f32 v[20:21], v[20:21], v[24:25]')
        a.e('v_cvt_pk_bf16_f32 v20, v20, v21')
        self.end_only(l)
        self.lstore([f'buffer_store_dword v20, v10, {WSL}, {oOApub} offen'])
        a.e('s_waitcnt lgkmcnt(0)')

    def w8(self, lw, t):
        return [f'v_max_f32_dpp {t}, {lw}, {lw} row_ror:4 {FULL}',
                f'v_max_f32_dpp {t}, {t}, {t} row_ror:2 {FULL}',
                f'v_max_f32_dpp {t}, {t}, {t} row_ror:1 {FULL}',
                f'v_sub_f32 {lw}, {lw}, {t}',
                f'v_exp_f32 {lw}, {lw}',
                f'v_add_f32_dpp {t}, {lw}, {lw} row_ror:4 {FULL}',
                f'v_add_f32_dpp {t}, {t}, {t} row_ror:2 {FULL}',
                f'v_add_f32_dpp {t}, {t}, {t} row_ror:1 {FULL}',
                f'v_rcp_f32 {t}, {t}']

    def rot8(self, dst, sh):
        a = self.a
        a.e(f'v_lshrrev_b32 {dst}, 4, v0')
        a.e(f'v_lshl_add_u32 {dst}, {dst}, 1, v0')
        a.e(f'v_and_b32 {dst}, 7, {dst}')
        a.e(f'v_lshlrev_b32 {dst}, {sh}, {dst}')

    def weigh2(self, skip=0, lw='v16', chk=False):
        a = self.a
        w = self.w8(lw, 'v17')
        for x in w[skip:6]:
            a.e(x)
        a.e('v_add_f32 v20, v20, v21')
        a.e('v_add_f32 v22, v22, v23')
        a.e(w[6])
        a.e('v_add_f32 v24, v24, v25')
        a.e('v_add_f32 v26, v26, v27')
        a.e(w[7])
        a.e(f'v_mul_f32_dpp v20, {lw}, v20 row_newbcast:0 {FULL}')
        a.e(f'v_mul_f32_dpp v24, {lw}, v24 row_newbcast:0 {FULL}')
        a.e(f'v_fmac_f32_dpp v20, {lw}, v22 row_newbcast:1 {FULL}')
        a.e(f'v_fmac_f32_dpp v24, {lw}, v26 row_newbcast:1 {FULL}')
        a.e(w[8])
        if chk:
            a.e('v_cmp_u_f32 vcc, v20, v20')
        a.e('v_permlane32_swap_b32 v20, v24')
        a.e('v_add_f32 v20, v20, v24')
        a.e('v_mul_f32 v20, v20, v17')

    def w8n(self, lw, t, W):
        return self.w8(lw, t) + [f'v_mul_f32_dpp v{W}, {lw}, {t} row_newbcast:0 {FULL}', f'v_mul_f32_dpp v{W + 1}, {lw}, {t} row_newbcast:1 {FULL}']

    def weigh2n(self, W, dup=None):
        a = self.a
        w = vr(W, 2)
        a.e(f'v_pk_mul_f32 v[20:21], v[20:21], {w} op_sel_hi:[1,0]')
        a.e(f'v_pk_fma_f32 v[20:21], v[22:23], {w}, v[20:21] op_sel:[0,1,0] op_sel_hi:[1,1,1]')
        a.e(f'v_pk_mul_f32 v[24:25], v[24:25], {w} op_sel_hi:[1,0]')
        a.e('v_add_f32 v20, v20, v21')
        a.e(f'v_pk_fma_f32 v[24:25], v[26:27], {w}, v[24:25] op_sel:[0,1,0] op_sel_hi:[1,1,1]')
        a.e('v_add_f32 v24, v24, v25')
        a.e('v_cmp_u_f32 vcc, v20, v20')
        a.e('v_permlane32_swap_b32 v20, v24')
        if dup:
            a.e(f'v_add_f32 {dup}, v20, v24')
        a.e('v_add_f32 v20, v20, v24')

    def outproj(self, isa):
        a = self.a
        if not isa:
            a.e(f's_add_u32 {t4}, {oO}, {L_OB - L_OA}')
        so = oO if isa else t4
        ld = [f'buffer_load_dwordx4 v[8:11], {vL16}, {WSL}, {so} offen sc1',
              f'buffer_load_dwordx4 v[12:15], {vL16}, {WSL}, {so} offen offset:1024 sc1']
        a.e('v_lshrrev_b32 v28, 4, v0')
        a.e('v_bfe_u32 v29, v0, 2, 2')
        a.e('v_lshl_add_u32 v28, v28, 3, v29')
        a.e('v_mul_u32_u24 v28, 48, v28')
        a.e('v_and_b32 v29, 3, v0')
        a.e('v_lshl_add_u32 v28, v29, 3, v28')
        a.e(f'v_add_u32 v28, {sW8}, v28')
        tr = []
        for blk in range(2):
            for tile in range(2):
                for hh in range(2):
                    for half in range(2):
                        off = (64 * blk + 32 * hh + 4 * half) * 48 + 32 * tile
                        tr.append(f'ds_read_b64_tr_b16 {vr(32 + 16 * tile + 8 * blk + 4 * hh + 2 * half, 2)}, v28 offset:{off}')
        a.e(f's_lshl_b32 {t2}, {sV}, 3')
        a.e(f's_add_u32 {t2}, {t2}, {ZO}')
        pre = ['v_and_b32 v18, 15, v0', 'v_lshrrev_b32 v19, 5, v0', 'v_lshl_add_u32 v18, v19, 4, v18', 'v_bfe_u32 v19, v0, 4, 1',
               'v_lshlrev_b32 v19, 2, v19', 'v_lshl_add_u32 v18, v18, 5, v19', f'v_add_u32 v18, {t2}, v18', f'v_mov_b32 v19, {ZO}',
               'v_and_b32 v29, 15, v0', 'v_lshl_add_u32 v19, v29, 6, v19', 'v_lshlrev_b32 v29, 2, v0']
        n1 = self.o.get('tr_pre', 8)
        if isa:
            a.e('s_waitcnt vmcnt(1)')
            a.vmq = []
        a.wait(vm='wo')
        for x in tr[:n1]:
            a.e(x)
        if isa:
            chk, again = a.lab('chk'), a.lab('again')
            a.e(f'{chk}:')
            a.e('v_cmp_eq_u32 vcc, -1, v16')
            a.e('v_mov_b32 v22, v16')
            self.retry_with([f'buffer_load_dword v16, v47, {WSL}, {oOALg} offen sc1'], 's_waitcnt vmcnt(1)', chk)
        self.sleep('h1' if isa else 'hd')
        for x in ld:
            a.e(x)
        if isa:
            pre = [x for p in zip(self.w8n('v22', 'v17', 30), pre) for x in p]
        self.mix(tr[n1:], pre)
        a.e(f's_add_u32 {t2}, {oYpub}, {G_YA if isa else G_YB}')
        if self.o.get('wq_hoist', 1):
            self.wq_prep('v17', 'v28')
        top = a.lab('poll')
        a.e(f'{top}:')
        for x in ld:
            self.H('o0', 0, 20)
            a.e(x)
        for r in range(26, 18, -2):
            a.e(f'v_mov_b64 {vr(r, 2)}, 0')
        self.K(0, 'po', True)
        a.e(f's_waitcnt vmcnt({len(ld)}) lgkmcnt(0)')
        a.e('v_cmp_u_f32 vcc, v8, v12')
        a.e('v_smfmac_f32_16x16x64_bf16 v[20:23], v[8:11], v[32:39], v1')
        a.e('v_smfmac_f32_16x16x64_bf16 v[20:23], v[12:15], v[40:47], v1')
        self.retry_to(top)
        a.e('v_smfmac_f32_16x16x64_bf16 v[24:27], v[8:11], v[48:55], v1')
        a.e('v_smfmac_f32_16x16x64_bf16 v[24:27], v[12:15], v[56:63], v1')
        self.stamp('ogot')
        if isa:
            self.weigh2n(30)
        else:
            a.e('v_pk_add_f32 v[20:21], v[20:21], v[22:23]')
            a.e('v_add_f32 v20, v20, v21')
            a.e('v_cmp_u_f32 vcc, v20, v20')
            a.e('v_pk_add_f32 v[24:25], v[24:25], v[26:27]')
            a.e('v_add_f32 v24, v24, v25')
            a.e('v_permlane32_swap_b32 v20, v24')
            a.e('v_add_f32 v20, v20, v24')
        a.e('ds_write_b32 v18, v20')
        self.H('o1', 0, 24)
        self.retry_to(top)
        a.e(f's_bitcmp0_b32 {sRES}, 0')
        self.H('o2', 0, 24)
        self.bar(1, True)
        l = a.lab('noy')
        a.e(f's_cbranch_scc1 {l}')
        a.begin_skip()
        for i in range(4):
            a.e(f'ds_read_b128 {vr(32 + 4 * i, 4)}, v19 offset:{16 * i}')
            a.tag_ds(f'z{i}')
            if i == 1:
                self.H('o3', 0, 24)
        a.e('s_mov_b32 exec_hi, 0')
        self.K(2)
        self.Wm()
        a.wait(ds='z1')
        a.e('v_pk_add_f32 v[32:33], v[32:33], v[34:35]')
        a.e('v_pk_add_f32 v[36:37], v[36:37], v[38:39]')
        a.e('v_pk_add_f32 v[32:33], v[32:33], v[36:37]')
        a.e('v_add_f32 v32, v32, v33')
        a.wait(ds='z3')
        a.e('v_pk_add_f32 v[40:41], v[40:41], v[42:43]')
        a.e('v_pk_add_f32 v[44:45], v[44:45], v[46:47]')
        a.e('v_pk_add_f32 v[40:41], v[40:41], v[44:45]')
        a.e('v_add_f32 v33, v40, v41')
        a.e('v_pk_add_f32 v[32:33], v[32:33], v[4:5]')
        a.e('v_cvt_pk_bf16_f32 v34, v32, v33')
        a.e(f'buffer_store_dword v34, v29, {WSG}, {t2} offen sc1')
        a.e('s_mov_b32 exec_hi, -1')
        a.end_skip()
        a.e(f'{l}:')
        self.stamp('ypub')

    def qabs(self):
        a = self.a
        a.e('v_and_b32 v36, 7, v0')
        a.e('v_lshlrev_b32 v37, 3, v36')
        self.oob(('v37', 'v37'), (0xc0c0c0c0, 0xc0c0c0c0))
        self.oob(('v33', vL16), (0xf000f000, 0xf000f000))
        a.e(f's_sub_u32 {t0}, {sW8}, {sKV}')
        a.e(f'v_add_u32 v56, {t0}, {vA}')
        for ks in range(1, 4):
            a.e(f'v_xor_b32 v{56 + ks}, {ks << 6}, v56')
        a.e('v_and_b32 v38, 8, v0')
        a.e('v_lshlrev_b32 v38, 3, v38')
        a.e('v_lshl_or_b32 v38, v36, 1, v38')
        a.e(f's_lshl_b32 {t0}, {sV}, 4')
        a.e(f's_add_u32 {t0}, {t0}, {ZQ}')
        a.e(f'v_add_u32 v38, {t0}, v38')
        a.e(f'v_add_u32 v39, {ZQ}, {vL16}')
        a.e(self.stats_const(32))
        if self.o.get('qflag', 1):
            chk, again = a.lab('chk'), a.lab('again')
            a.wait(vm='fl')
            a.e(f'{chk}:')
            a.e('v_cmp_eq_u32 vcc, -1, v10')
            self.retry_to(again)
            a.ool(f'{again}:\nbuffer_load_dword v10, v9, {WSL}, {oOALg} offen offset:{L_FL - L_OAL} sc1\ns_waitcnt vmcnt(1)\ns_branch {chk}')
        self.sleep('hqb')
        top = a.lab('poll')
        a.e(f'{top}:')
        a.e(f'buffer_load_dwordx2 v[34:35], v37, {WSL}, {oSTgB} offen sc1')
        a.tag_vm('st')
        for i in (2, 3, 0, 1):
            a.e(f'buffer_load_dwordx4 {vr(8 + 4 * i, 4)}, v33, {WSL}, {oQgB} offen offset:{i * 1024} sc1')
            a.tag_vm(f'q{i}')
        a.e('s_waitcnt vmcnt(5)')
        for ks in range(4):
            a.e(f'ds_read_b128 {vr(40 + 4 * ks, 4)}, v{56 + ks}')
            a.e(f'v_mov_b64 {vr(24 + 2 * ks, 2)}, 0')
        self.H('q1', 0, 60)
        a.wait(vm='st')
        a.e('v_cmp_u_f32 vcc, v34, v35')
        st = self.stats(34, 32)
        for x in st[:4]:
            a.e(x)
        self.retry_to(top)
        for x in st[4:6]:
            a.e(x)
        a.e('s_waitcnt lgkmcnt(0)')
        a.wait(vm='q2')
        a.e('v_smfmac_f32_16x16x64_bf16 v[28:31], v[16:19], v[40:47], v1')
        for x in st[6:]:
            a.e(x)
        a.wait(vm='q3')
        a.e('v_smfmac_f32_16x16x64_bf16 v[28:31], v[20:23], v[48:55], v1')
        self.H('q2', 0, 60)
        a.wait(vm='q0')
        a.e('v_smfmac_f32_16x16x64_bf16 v[24:27], v[8:11], v[40:47], v1')
        self.K(1, 'qb3', True)
        a.e('v_pk_add_f32 v[28:29], v[28:29], v[30:31]')
        a.e('v_add_f32 v28, v28, v29')
        a.e('v_mul_f32 v28, v28, v35')
        a.e(f's_cmp_lg_u32 {sV}, 0')
        self.K(0, 'qb4', True)
        a.wait(vm='q1')
        a.e('v_smfmac_f32_16x16x64_bf16 v[24:27], v[12:15], v[48:55], v1')
        self.stamp('qgotB', 2)
        a.e('v_pk_add_f32 v[24:25], v[24:25], v[26:27]')
        a.e('v_sub_f32 v24, v24, v28')
        a.e('v_add_f32 v24, v24, v25')
        a.e('v_mul_f32 v25, v24, v34')
        a.e('v_mul_f32 v24, v24, v34')
        a.e('v_cmp_u_f32 vcc, v24, v24')
        a.e('v_permlane32_swap_b32 v24, v25')
        a.e('v_add_f32 v26, v24, v25')
        a.e('v_add_f32 v24, v24, v25')
        a.e('v_permlane16_swap_b32 v24, v26')
        a.e('v_add_f32 v24, v24, v26')
        a.e('v_cvt_pk_bf16_f32 v24, v24, v24')
        a.e('ds_write_b16 v38, v24')
        self.retry_to(top)
        a.e('s_waitcnt lgkmcnt(0)')
        a.e('s_barrier')
        l = a.lab('notw')
        a.e(f's_cbranch_scc1 {l}')
        a.begin_skip()
        a.e('s_mov_b64 exec, 0xff')
        a.e('ds_read_b128 v[24:27], v39')
        a.e('s_waitcnt lgkmcnt(0)')
        a.e(f'buffer_store_dwordx4 v[24:27], {vL16}, {WSG}, {oQApub} offen sc1')
        a.e('s_mov_b64 exec, -1')
        self.end_only(l)
        self.stamp('qapub')
        self.touches('w3', 'v8', 'v9')
        self.resid_track(G_YA, 10, 'v8', f's_cmp_eq_u32 {sRES}, 3')

    def attn_b(self):
        a = self.a
        a.e(f's_mul_i32 {t0}, {sV}, {4096 - 16384}')
        a.e(f's_add_u32 {t0}, {t0}, {CKV}')
        a.e(f'v_add_u32 v56, {t0}, {vA}')
        a.e('v_xor_b32 v57, 64, v56')
        ORD = [(r, ks) for kp in range(2) for r in range(4) for ks in (2 * kp, 2 * kp + 1)]
        ga = ['v_and_b32 v58, 12, v0', 'v_lshlrev_b32 v58, 4, v58', 'v_and_or_b32 v58, v0, 48, v58', 'v_lshlrev_b32 v58, 2, v58',
              f'v_and_or_b32 v58, {vL16}, 48, v58', 'v_lshlrev_b32 v8, 7, v0', 'v_mov_b32 v9, 0']
        for x in ga:
            a.e(x)
        a.e(f'v_add_u32 v59, {STG}, {vL16}')
        a.e('s_barrier')

        self.lstore(self.clear_c1(12, 'v16', 'v17'))
        self.sleep('ha')
        top = a.lab('poll')
        a.e(f'{top}:')
        cm = self.o.get('canmask', 0xffffffff)
        ld = [f's_mov_b32 m0, {sW8}', f's_mov_b32 exec_lo, {cm}\ns_mov_b32 exec_hi, 0', f'buffer_load_dword v9, v8, {WSG}, {oQAg} offen sc1', 's_mov_b64 exec, -1']
        for ks in range(4):
            ld.append(f'buffer_load_dwordx4 v58, {WSG}, {oQAg} offen offset:{ks * 1024} sc1 lds')
        for x in ld:
            a.e(x)
        for k in range(8):
            r, ks = ORD[k]
            a.e(f'ds_read_b128 {vr(24 + 4 * k, 4)}, v{56 + (ks & 1)} offset:{r * 16384}')
        a.e('v_xor_b32 v56, 128, v56')
        a.e('v_xor_b32 v57, 128, v57')
        self.k64_addr('v10', None)
        l4 = self.o.get('l4_wo', 0)
        if l4 == 2:
            self.wo_prep(12, 'v15')
        chk, again = a.lab('chk'), a.lab('again')
        a.e(f'{chk}:')
        a.e('s_waitcnt vmcnt(4)')
        a.e('v_cmp_eq_u32 vcc, -1, v9')
        self.retry_with(ld, 's_nop 0', chk)
        pol = self.o.get('pol_wuv', '')
        for i in range(1, 4):
            a.e(f's_add_u32 {[t1, t2, t3][i - 1]}, {oWUV}, {i * (16 * 8192 - 1024)}')
        a.e('v_mov_b32 v58, v10')
        half = self.o.get('qa_half', 1)
        if l4 == 2:
            a.e(f's_cmp_eq_u32 {sIT}, 1')
            a.e(f's_cselect_b32 {t0}, {sKV}, 0x30000')
            a.e(f's_cselect_b32 {t4}, {oWO}, {OOB}')
            a.e(f's_cselect_b32 {t5}, {t5}, {OOB}')
            for x in self.wo_lines(BWO, 12, '', t0):
                a.e(x.replace(f', {oWO} ', f', {t4} '))
        ex = 6 if l4 == 2 else 0
        a.e(f's_waitcnt vmcnt({(2 if half else 0) + ex}) lgkmcnt(0)')
        a.e('s_barrier')
        self.stamp('qagot')

        def qread(k):
            r, ks = ORD[k]
            a.e(f'ds_read_b128 {vr(8 + 4 * (k & 3), 4)}, v59 offset:{r * 8192 + ks * 1024}')
            a.tag_ds(f'q{k}')
        for k in range(4):
            qread(k)
        a.e(f's_add_u32 m0, {sW8}, 4096')
        SLOT = [16, 40, 48]
        wpos = self.o.get('wuv_pos', [0, 2, 4, 6])
        wdma = [f'buffer_load_dwordx4 v58, {WUV}, {[oWUV, t1, t2, t3][i]} offen offset:{i * 1024} {pol} lds' for i in range(4)]

        def tread(e, ad='v57'):
            l = [f'v_xor_b32 {ad}, {CKV | (e << 5)}, {vT}']
            for t in range(4):
                l.append(f'ds_read_b64_tr_b16 {vr(SLOT[e % 3] + 2 * t, 2)}, {ad} offset:{t * 4096}')
            return l
        for k in range(16):
            a.wait(ds=f'q{k}')
            a.e(f'v_mfma_f32_16x16x32_bf16 v[60:63], {vr(24 + 4 * (k & 7), 4)}, {vr(8 + 4 * (k & 3), 4)}, {"v[60:63]" if k else "0"}')
            if k < 8:
                r, ks = ORD[k + 8]
                a.e(f'ds_read_b128 {vr(24 + 4 * k, 4)}, v{56 + (ks & 1)} offset:{r * 16384}')
            if k == 4 and half:
                a.e(f's_waitcnt vmcnt({sum(p < 4 for p in wpos) + ex})')
                a.e('s_barrier')
            if k + 4 < 16:
                qread(k + 4)
            for i, p in enumerate(wpos):
                if p == k:
                    a.e(wdma[i])
            if k == 10:
                a.e('s_barrier')
            if k == 8:
                a.e(f'v_and_b32 v27, 0xf0, {vL16}')
                a.e(f's_lshl_b32 {t0}, {sV}, 2')
            if k == 9:
                a.e(f'v_add_u32 v27, {STG}, v27')
            if k == 11:
                a.e(f'v_add_u32 v24, {t0}, v27')
            if k == 12:
                a.e('v_xor_b32 v56, 128, v56')
                a.e(f'v_lshl_add_u32 v25, v0, 3, {sW8}')
            if k == 13:
                t1_ = tread(1)
                a.e(t1_[0]); a.e(t1_[1])
            if k == 14:
                a.e(t1_[2]); a.e(t1_[3])
        a.e(t1_[4])
        t0_, t2_ = tread(0), tread(2)
        a.e(f'v_mov_b32 v26, {STG}')
        a.e('v_lshl_add_u32 v26, v0, 3, v26')
        for r in range(36, 40):
            a.e(f'v_mov_b32 v{r}, 0x3f803f80')
        a.e('v_max3_f32 v28, v60, v61, v62')
        a.e('v_max_f32 v29, v28, v63')
        a.e('v_max_f32 v28, v28, v63')
        a.e(t0_[0]); a.e(t0_[1])
        a.e('v_permlane32_swap_b32 v28, v29')
        a.e('v_max_f32 v30, v28, v29')
        a.e('v_max_f32 v28, v28, v29')
        a.e(t0_[2]); a.e(t0_[3])
        a.e('v_permlane16_swap_b32 v28, v30')
        a.e('v_max_f32 v28, v28, v30')
        a.e('ds_write_b32 v24, v28')
        a.tag_ds('mw')
        a.e(t0_[4])
        a.e(t2_[0])
        self.H('b0', 1, 32)
        a.e(t2_[1]); a.e(t2_[2]); a.e(t2_[3]); a.e(t2_[4])
        self.H('b1', 1, 32)
        a.wait(ds='mw')
        a.e('s_barrier')
        a.e('ds_read_b128 v[28:31], v27')
        a.tag_ds('mr')
        self.stamp('sbar', 2)
        for i, p in enumerate(wpos):
            if p == 16:
                a.e(f's_add_u32 m0, {sW8}, 4096')
                a.e(wdma[i])
        a.e(f's_add_u32 {t1}, {oC1pub}, 4096')
        a.e(f's_add_u32 {t2}, {oC1pub}, 8192')
        a.e(f's_add_u32 {t3}, {oC1pub}, 12288')
        self.H('b2', 1, 32)
        a.wait(ds='mr')
        a.e('v_max3_f32 v28, v28, v29, v30')
        a.e('v_max_f32 v28, v28, v31')
        a.e('v_pk_add_f32 v[60:61], v[60:61], v[28:29] op_sel_hi:[1,0] neg_lo:[0,1] neg_hi:[0,1]')
        a.e('v_pk_add_f32 v[62:63], v[62:63], v[28:29] op_sel_hi:[1,0] neg_lo:[0,1] neg_hi:[0,1]')
        for r in range(60, 64):
            a.e(f'v_exp_f32 v{r}, v{r}')
        a.e('v_cvt_pk_bf16_f32 v30, v60, v61')
        a.e('v_cvt_pk_bf16_f32 v31, v62, v63')
        a.e('ds_write_b64 v25, v[30:31] offset:1024')
        a.e('v_lshrrev_b32 v61, 4, v0')
        a.e(f'v_and_b32 v60, 0xf0, {vL16}')
        a.e('v_lshl_or_b32 v61, v61, 16, v60')
        a.e('v_mov_b32 v62, v28')
        a.e('v_xor_b32 v57, 64, v56')
        a.e('v_and_b32 v27, 12, v0')
        a.e('v_lshlrev_b32 v27, 4, v27')
        self.H('b3', 1, 32)
        self.lcmp()
        a.e('s_waitcnt lgkmcnt(0)')
        a.e('s_barrier')
        a.e('ds_read2st64_b64 v[8:11], v26 offset0:2 offset1:18')
        a.tag_ds('p0')
        a.e('ds_read2st64_b64 v[12:15], v26 offset0:34 offset1:50')
        a.tag_ds('p1')
        self.stamp('smax', 2)
        a.e('v_and_or_b32 v27, v0, 3, v27')
        a.e('v_lshlrev_b32 v27, 3, v27')
        self.K(2, 'b4', True)
        ACC = [28, 56, 36, 32]
        a.wait(ds='p0')
        a.e('v_cmp_u_f32 vcc, v8, v8')
        a.e(f'v_mfma_f32_16x16x32_bf16 v[28:31], v[8:11], {vr(SLOT[0], 4)}, 0')
        a.e('v_mfma_f32_16x16x32_bf16 v[32:35], v[36:39], v[8:11], 0')
        again = a.lab('again')
        self.retry_to(again)
        a.ool(f'{again}:\n' + '\n'.join(['s_waitcnt lgkmcnt(0)'] + ga) + f'\ns_barrier\ns_branch {top}')
        a.wait(ds='p1')
        a.e('v_mfma_f32_16x16x32_bf16 v[32:35], v[36:39], v[12:15], v[32:35]')
        so = [oC1pub, t1, t2, t3]
        ml = ['s_mov_b64 exec, 0xffff', f'buffer_store_dwordx2 v[62:63], v27, {WSL}, {oMLpub} offen', 's_mov_b64 exec, -1']
        mlat = self.o.get('ml_at', 2)

        def pack(q):
            d0, d1 = ACC[(2 * q) & 3], ACC[(2 * q + 1) & 3]
            return [f'v_cvt_pk_bf16_f32 v{24 + r}, v{d0 + r}, v{d1 + r}' for r in range(4)]

        def put(q):
            self.lstore([f'buffer_store_dwordx4 v[24:27], v61, {WS}, {so[q]} offen'] + (ml if q == mlat else []))
        F = {e: [[], []] for e in range(8)}
        early = self.o.get('ml_early', 1)
        mlat = -1
        F[1][1] = ['v_mov_b32 v63, v32']
        F[self.o.get('ml_e', 2)][1] += ['ML']
        F[3][0] = pack(0)[:2]
        F[3][1] = pack(0)[2:]
        F[5][0] = pack(1)[:2]
        F[5][1] = pack(1)[2:]
        F[6][0] = ['v_and_b32 v60, 3, v0', 'v_lshlrev_b32 v60, 6, v60']
        F[6][1] = ['v_and_or_b32 v60, v0, 60, v60', 'v_lshlrev_b32 v60, 1, v60']
        F[7][0] = pack(2)
        for e in range(8):
            a.wait(ds=f't{e}')
            d = vr(ACC[e & 3], 4)
            s = SLOT[e % 3]
            nx = tread(e + 3, 'v60') if e + 3 < 8 else []
            if nx:
                a.e(nx[0])
            if e:
                a.e(f'v_mfma_f32_16x16x32_bf16 {d}, v[8:11], {vr(s, 4)}, 0')
            if e in (4, 6):
                put((e - 4) // 2)
            for x in nx[1:3]:
                a.e(x)
            for x in F[e][0]:
                a.e(x)
            a.e(f'v_mfma_f32_16x16x32_bf16 {d}, v[12:15], {vr(s + 4, 4)}, {d}')
            for x in nx[3:]:
                a.e(x)
            if nx:
                a.tag_ds(f't{e + 3}')
            for x in F[e][1]:
                if x == 'ML':
                    self.lstore(ml)
                else:
                    a.e(x)
            if e == 7:
                put(2)
        if early == 1:
            a.e(f'buffer_load_dwordx2 v[22:23], v60, {WSL}, {oMLg} offen sc1')
            a.tag_vm('ml0')
        for x in pack(3):
            a.e(x)
        put(3)
        if early == 2:
            a.e(f'buffer_load_dwordx2 v[22:23], v60, {WSL}, {oMLg} offen sc1')
            a.tag_vm('ml0')
        self.stamp('c1pub')

    def red(self):
        a = self.a
        ld = f'buffer_load_dwordx2 v[22:23], v60, {WSL}, {oMLg} offen sc1'
        a.e('v_and_b32 v45, 56, v0')
        a.e('v_lshlrev_b32 v45, 1, v45')
        a.e('v_and_or_b32 v45, v0, 6, v45')
        a.e('v_lshlrev_b32 v45, 1, v45')
        a.e(f'v_and_or_b32 v45, {vL16}, 16, v45')
        a.e('v_lshlrev_b32 v46, 2, v0')
        for r in range(28, 36, 2):
            a.e(f'v_mov_b64 {vr(r, 2)}, 0')
        ne = self.o.get('wo_e', 0)
        if ne:
            self.wo_prep(41, 'v39')
            a.e('s_barrier')
        cl = [f'buffer_load_dwordx4 {vr(8 + 4 * i, 4)}, {vL16}, {WS}, {oC1g} offen offset:{i * 1024} sc1' for i in range(4)]
        ch = [f'v_max_f32_dpp v36, v22, v22 quad_perm:[1,0,3,2] {FULL}',
              f'v_max_f32_dpp v37, v36, v36 quad_perm:[2,3,0,1] {FULL}', f'v_max_f32_dpp v36, v36, v36 quad_perm:[2,3,0,1] {FULL}',
              'v_permlane32_swap_b32 v36, v37', 'v_max_f32 v38, v36, v37', 'v_max_f32 v36, v36, v37',
              'v_permlane16_swap_b32 v36, v38', 'v_max_f32 v36, v36, v38', 'v_sub_f32 v24, v24, v36', 'v_exp_f32 v24, v24',
              'v_mul_f32 v25, v25, v24', f'v_add_f32_dpp v25, v25, v25 quad_perm:[1,0,3,2] {FULL}',
              f'v_add_f32_dpp v37, v25, v25 quad_perm:[2,3,0,1] {FULL}', f'v_add_f32_dpp v25, v25, v25 quad_perm:[2,3,0,1] {FULL}',
              'v_permlane32_swap_b32 v25, v37', 'v_add_f32 v38, v25, v37', 'v_add_f32 v25, v25, v37',
              'v_permlane16_swap_b32 v25, v38', 'v_add_f32 v25, v25, v38', 'v_rcp_f32 v38, v25', 'v_log_f32 v37, v25',
              'v_mul_f32 v24, v24, v38', 'v_add_f32 v37, v37, v36', 'v_cvt_pk_bf16_f32 v26, v24, 0', 'v_cvt_pk_bf16_f32 v27, 0, v24']
        chk, again = a.lab('chk'), a.lab('again')
        if self.o.get('ml_early', 1) == 4:
            self.sleep('mld')
            a.e(ld)
            a.tag_vm('ml0')
            if self.o.get('sleep', {}).get('mld2'):
                self.sleep('mld2')
                a.e(ld)
        a.wait(vm='ml0')
        a.e(f'{chk}:')
        a.e('v_cmp_u_f32 vcc, v22, v23')
        a.e(ch[0])
        a.e('v_mov_b64 v[24:25], v[22:23]')
        self.retry_with([ld], 's_waitcnt vmcnt(1)', chk)
        self.stamp('mlgot', 2)
        npre = self.o.get('red_pre', 8)
        for x in ch[1:npre]:
            a.e(x)
        self.sleep('hc1')
        for i, x in enumerate(cl):
            a.e(x)
            a.tag_vm(f'c{i}')
        for x in self.wo_group(BWO, 41, 0, ne):
            a.e(x)
        for x in ch[max(npre, 1):]:
            a.e(x)
        lwe = self.o.get('lw_early', 1)
        lws = ['s_mov_b32 exec_hi, 0', f'buffer_store_dword v37, v46, {WSG}, {oC2Lpub} offen sc1', 's_mov_b32 exec_hi, -1']
        if lwe == 1 or lwe == 3:
            if lwe == 3:
                a.e('s_barrier')
            for x in lws:
                a.e(x)
        self.H('r1', 0, 48)
        top, again = a.lab('acc'), a.lab('again')
        a.e(f'{top}:')
        for i in range(4):
            if i:
                self.K(0, 'rd', True)
            a.wait(vm=f'c{i}')
            for d in range(4):
                a.e(f'v_dot2c_f32_bf16_dpp v{28 + 2 * d}, v26, v{8 + 4 * i + d} row_newbcast:{4 * d + i} {FULL}')
                a.e(f'v_dot2c_f32_bf16_dpp v{29 + 2 * d}, v27, v{8 + 4 * i + d} row_newbcast:{4 * d + i} {FULL}')
        for i in range(4):
            a.e(f'v_permlane32_swap_b32 v{28 + i}, v{32 + i}')
        a.e('v_pk_add_f32 v[28:29], v[28:29], v[32:33]')
        a.e('v_pk_add_f32 v[30:31], v[30:31], v[34:35]')
        a.e('v_cmp_u_f32 vcc, v28, v30')
        a.e('v_permlane16_swap_b32 v28, v30')
        a.e('v_permlane16_swap_b32 v29, v31')
        a.e('v_pk_add_f32 v[28:29], v[28:29], v[30:31]')
        a.e('v_cvt_pk_bf16_f32 v28, v28, v29')
        self.retry_to(again)
        a.ool(f'{again}:\n' + '\n'.join(cl) + '\n' + '\n'.join(f'v_mov_b64 {vr(r, 2)}, 0' for r in range(28, 36, 2)) + f'\ns_waitcnt vmcnt(0)\ns_branch {top}')
        a.e(f'buffer_store_dword v28, v45, {WSG}, {oC2pub} offen sc1')
        if lwe == 2:
            for x in lws:
                a.e(x)
        self.stamp('c2pub')
        a.e('v_and_b32 v40, 4, v0')
        a.e('v_lshlrev_b32 v40, 4, v40')
        a.e('v_and_or_b32 v40, v0, 48, v40')
        a.e('v_lshlrev_b32 v40, 1, v40')
        a.e('v_and_or_b32 v40, v0, 11, v40')
        a.e(f'v_lshl_add_u32 v40, v40, 3, {sW8}')
        for tau in range(2):
            for gam in range(2):
                for tt in range(2):
                    a.e(f'ds_read_b64_tr_b16 {vr(48 + 8 * tau + 4 * gam + 2 * tt, 2)}, v40 offset:{4096 + (32 * gam + 2 * tt) * 64 + 32 * tau}')
        if not ne:
            self.wo_prep(41, 'v39')
        if self.o.get('wo_pre', 6) > 4:
            a.e('s_waitcnt lgkmcnt(0)')
        a.e('s_barrier')
        if self.o.get('x_wo'):
            a.e('s_waitcnt vmcnt(0)')
            self.stamp('x_ack')

        def clear2():
            b = self.a
            for r in range(8, 12):
                b.e(f'v_mov_b32 v{r}, -1')
            self.sums(t2, [(sJ, 4 * 448), (sV, 448)], L_IT)
            b.e('s_mov_b64 exec, 0xfffffff')
            self.lstore([f'buffer_store_dwordx4 v[8:11], {vL16}, {WSL}, {t2} offen'])
            b.e('s_mov_b64 exec, -1')
        npre = self.o.get('wo_pre', 6)
        for x in self.wo_group(BWO, 41, ne, npre):
            a.e(x)
        if npre == 6:
            a.tag_vm('wo')
        self.ool_if(f's_cmp_eq_u32 {sIT}, 0', clear2, lambda: self.sleep('hc4'))
        self.wol = self.wo_group(BWO, 41, npre, 6)
        if self.o.get('x_wo'):
            self.stamp('x_iss')
            a.e('s_waitcnt vmcnt(0)')
            self.stamp('x_land')

    def wb(self, where):
        a = self.a
        if self.o.get('wb') != where:
            return
        l = a.lab('nowb')
        self.sums(t1, [(sJ, 8), (sV, 2), (sIT, 1)])
        a.e(f's_cmp_lg_u32 {t1}, {24 * 8 + 1}')
        a.e(f's_cbranch_scc1 {l}')
        a.begin_skip()
        a.e('buffer_wbl2 sc1')
        self.end_only(l)

    def uv(self):
        a = self.a
        a.e('v_lshrrev_b32 v28, 1, v0')
        a.e('v_and_or_b32 v28, v28, 16, 0')
        a.e('v_and_or_b32 v28, v0, 14, v28')
        a.e('v_lshlrev_b32 v28, 6, v28')
        a.e('v_and_or_b32 v28, v0, 16, v28')
        a.e('v_lshlrev_b32 v28, 1, v28')
        a.e(f'v_and_or_b32 v28, {vL16}, 16, v28')
        self.rot8('v29', 7)
        self.pos_bytes('v30', None)
        a.e('v_and_b32 v31, 32, v0')
        a.e('v_lshl_or_b32 v30, v31, 3, v30')
        self.oob(('v30', 'v30'), (0xffffaaaa, 0xffffaaaa))
        self.touches('w5', 'v12', 'v13')
        a.e('s_waitcnt lgkmcnt(0)')
        self.sleep('hc2')
        ld = [f'buffer_load_dword v16, v29, {WSG}, {oC2Lg} offen sc1',
              f'buffer_load_dwordx4 v[8:11], v28, {WSG}, {oC2g} offen sc1']
        z = [f'v_mov_b64 {vr(r, 2)}, 0' for r in range(20, 28, 2)]
        lwe = self.o.get('lw_early', 1)
        a.e(ld[0])
        a.tag_vm('lw')
        if lwe:
            self.sleep('hc2b')
        a.e(ld[1])
        a.tag_vm('c2')
        for x in z:
            a.e(x)
        for x in self.wol:
            a.e(x)
        if self.wol:
            a.tag_vm('wo')
        top, top2 = a.lab('chk'), a.lab('chk')
        w = self.w8n('v16', 'v17', 18)
        a.wait(vm='lw')
        a.e(f'{top}:')
        a.e('v_cmp_eq_u32 vcc, -1, v16')
        for x in w[:3]:
            a.e(x)
        self.retry_with([ld[0]], 's_waitcnt vmcnt(0)', top)
        for x in w[3:]:
            a.e(x)
        self.H('u1', 0, 12)
        a.wait(vm='c2')
        a.e(f'{top2}:')
        a.e('v_cmp_u_f32 vcc, v8, v8')
        a.e('v_smfmac_f32_16x16x64_bf16 v[20:23], v[8:11], v[48:55], v1')
        a.e('v_smfmac_f32_16x16x64_bf16 v[24:27], v[8:11], v[56:63], v1')
        self.retry_with([ld[1], 's_nop 7'] + z, 's_waitcnt vmcnt(0)', top2)
        self.stamp('c2got', 2)
        self.weigh2n(18, 'v21')
        a.e('v_permlane16_swap_b32 v20, v21')
        a.e('v_add_f32 v20, v20, v21')
        self.retry_with([ld[1]] + z, 's_waitcnt vmcnt(0)', top2)
        a.e(f'v_mov_b32_dpp v21, v20 quad_perm:[1,0,3,2] {FULL}')
        a.e('v_cvt_pk_bf16_f32 v20, v20, v21')
        self.lstore([f'buffer_store_dword v20, v30, {WSL}, {oOBpub} offen'])
        self.stamp('dpub')
        self.wb('dpub')

    def attn_a3(self):
        a = self.a
        self.qa_addr(44)
        self.sleep('hqa')
        ld = self.qa_loads(8, 12, 44)
        for x in ld:
            a.e(x)
        a.e('v_mov_b64 v[20:21], 0')
        a.e(f'v_lshl_add_u32 v17, v0, 3, {sW8}')
        a.e('ds_write_b64 v17, v[20:21] offset:6656')
        a.e(f's_add_u32 {t0}, {sW8}, 6656')
        a.e(f'v_mov_b32 v17, {t0}')
        a.e(f's_mov_b32 s22, {self.o.get("rowm", 0x000f000f)}')
        a.e(f's_mov_b32 s23, {self.o.get("rowm", 0x000f000f)}')
        for c in range(4):
            a.e(f'v_cndmask_b32 v{56 + c}, v17, v46, s[22:23]')
            a.e('s_lshl_b64 s[22:23], s[22:23], 4')
        self.p_addr('v60', 'v17')
        self.wo_prep(61, 'v17')
        for r in (16, 24, 28):
            a.e(f'v_mov_b64 {vr(r, 2)}, 0')
        a.e(self.stats_const(39))
        self.pipe_poll(ld, 'v38', [8, 12], 'pq', ['v_mov_b64 v[36:37], v[12:13]', 'v_mov_b64 v[32:33], v[8:9]', 'v_mov_b64 v[34:35], v[10:11]'])
        top = self.ptop
        self.stamp('qgotA', 2)
        self.qa_finish(32, 36, 44, None, 39, True)
        a.e('v_lshlrev_b32 v33, 16, v32')
        a.e('v_cmp_u_f32 vcc, v33, v33')
        a.e(f's_sub_u32 {t2}, {sW8}, {ZQ - 6144}')
        a.e(f's_cmp_eq_u32 {sV}, 0')
        a.e(f's_cselect_b32 {t3}, {oOALpub}, {OOB}')
        a.e(f's_mov_b32 s22, {self.o.get("rowm", 0x000f000f)}')
        a.e(f's_mov_b32 s23, {self.o.get("rowm", 0x000f000f)}')
        self.H('a1', 1, 52)
        self.retry_to(top)
        a.e('s_waitcnt vmcnt(0) lgkmcnt(0)')
        a.e('s_barrier')
        self.H('a2', 1, 8)

        def qrd(c, b):
            a.e(f'ds_read_b128 {vr(32 + 8 * (c % 3) + 4 * b, 4)}, v{56 + c} offset:{128 * b}')
            a.tag_ds(f'q{c}{b}')
        for c in range(3):
            qrd(c, 0)
            qrd(c, 1)
        if self.o.get('wo3', 0):
            self.touch('wo', 'v15', None)
        self.stamp('qrdy')
        ds, va = [], []
        for e in range(8):
            for t in range(4):
                ds.append((e, f'ds_read_b64_tr_b16 a[{8 * e + 2 * t}:{8 * e + 2 * t + 1}], v{14 + (e & 1)} offset:{t * 4096}'))
        wl = self.wo_lines(WO, 61, self.o.get('pol_wo3', ''))
        other = {2: wl[0], 3: wl[1], 7: wl[2], 11: wl[3], 13: wl[4], 15: wl[5], 19: wl[6], 23: wl[7],
                 5: 'v_mov_b64 v[8:9], 0', 6: 'v_mov_b64 v[12:13], 0', 8: f'v_mov_b32 v10, {t2}'}
        wo3 = self.o.get('wo3', 0)
        late = {}
        nh = self.o.get('wo_h2', 0)
        if nh or self.o.get('wo_pos'):
            for k in (2, 3, 7, 11, 13, 15, 19, 23):
                del other[k]
            pos = self.o.get('wo_pos') or {1: (3, 9, 15, 21, 27), 2: (3, 11, 19, 27), 3: (3, 13, 23)}[nh]
            for k, p in zip(range(nh, 6), pos):
                g2 = self.wo_group(WO, 61, k, k + 1)
                other[p - 1] = (other[p - 1] + '\n' if p - 1 in other else '') + g2[0]
                other[p] = g2[1]
        if wo3:
            for k in (2, 3, 7, 11, 13, 15, 19, 23):
                del other[k]
            pos = {1: (0, 1, 4, 7, 9, 10, 13, 16), 2: (8, 9, 12, 15, 17, 18, 21, 24)}[wo3]
            late = dict(zip(pos, wl))
        for e, k in enumerate((4, 10, 14, 18, 22, 26, 30), 1):
            other[k] = (other[k] + '\n' if k in other else '') + f'v_xor_b32 v{14 + (e & 1)}, {e << 5}, {vT}'
        pc = []
        for c in range(4):
            pc.append('v_cndmask_b32 v11, 0, v10, s[22:23]')
            pc.append(f'v_add_u32 v{56 + c}, v{56 + c}, v11')
            if c < 3:
                pc.append('s_lshl_b64 s[22:23], s[22:23], 4')
        a.e(f'v_mov_b32 v14, {vT}')
        for k in range(32):
            c, r, b = k >> 3, (k >> 1) & 3, k & 1
            if k < 2:
                a.wait(ds=f'q{c}{b}')
            elif k == 8:
                a.wait(ds='q21')
            elif k == 24:
                a.wait(ds='q31')
            t = k >> 1
            a.e(f'v_smfmac_f32_16x16x64_bf16 {vr(16 + 4 * r, 4)}, {vr(32 + 8 * (c % 3) + 4 * b, 4)}, a[{16 * t + 8 * b}:{16 * t + 8 * b + 7}], v1')
            if k in (8, 9):
                qrd(3, k - 8)
            elif k >= 1:
                a.e(ds.pop(0)[1])
            if k in other:
                a.e(other[k])
        for r in range(4):
            if ds:
                a.e(ds.pop(0)[1])
            a.e(f'v_add_f32 v{16 + r}, v{16 + 4 * r}, v{17 + 4 * r}')
        self.softmax_a(16, 20, 'v60', pc)

        def prd(j):
            a.e(f'ds_read_b128 {vr(32 + 4 * (j % 6), 4)}, v{56 + (j >> 2)} offset:{128 * (j & 3)}')
            a.tag_ds(f'p{j}')
        RD = self.o.get('pring', 4)
        self.H('a3', 1, 24)
        for j in range(RD):
            prd(j)
        self.stamp('smaxA')
        ls = self.lsum('v21', 16)
        mw = self.ml_write(20)
        for x in ls[:2] + mw[:2] + ls[2:3] + mw[2:4] + ls[3:4]:
            a.e(x)
        Q1, Q2 = f'quad_perm:[1,0,3,2] {FULL}', f'quad_perm:[2,3,0,1] {FULL}'
        fill = {0: ls[4], 1: ls[5], 2: ls[6], 3: ls[7], 4: mw[4], 6: 'v_and_b32 v23, 3, v0', 8: 'BAR',
                9: f'v_lshl_add_u32 v23, v23, 3, s23\nds_read_b64 v[24:25], v23', 13: 'MLW',
                14: f'v_max_f32_dpp v22, v24, v24 {Q1}', 15: f'v_max_f32_dpp v22, v22, v22 {Q2}',
                16: f'v_sub_f32 v24, v24, v22', 17: 'v_exp_f32 v24, v24', 18: 'v_mul_f32 v19, v24, v25',
                20: f'v_add_f32_dpp v19, v19, v19 {Q1}', 22: f'v_add_f32_dpp v19, v19, v19 {Q2}', 23: 'v_log_f32 v25, v19',
                24: 'v_add_f32 v25, v25, v22', 25: 'LW', 26: f'v_sub_f32 v18, {sM}, v25', 27: 'v_exp_f32 v18, v18',
                28: 'v_lshrrev_b32 v23, 4, v0', 29: 'v_lshl_add_u32 v23, v23, 1, v0', 30: 'v_and_b32 v23, 7, v23'}
        a.e(f's_mov_b32 s23, {ZML}')
        for j in range(16):
            c, U = j >> 2, j & 3
            for hf in range(2):
                e = c + 4 * hf
                if hf == 0 and (j < 2 or j & 1 == 0):
                    a.wait(ds=f'p{j if j < 2 else j + 1}')
                B = vr(64 + 64 * U + 8 * e, 8) if U < 3 else f'a[{8 * e}:{8 * e + 7}]'
                a.e(f'v_smfmac_f32_16x16x64_bf16 {vr(8 + 4 * hf, 4)}, {vr(32 + 4 * (j % 6), 4)}, {B}, v1')
                if 2 * j + hf in late:
                    a.e(late[2 * j + hf])
                if hf == 1 and j + RD < 16:
                    prd(j + RD)
                x = fill.pop(2 * j + hf, None)
                if x == 'BAR':
                    a.wait(ds='mlw')
                    a.e('s_barrier')
                elif x == 'MLW':
                    a.wait(ds='mlr')
                elif x == 'LW':
                    self.lstore([f'buffer_store_dword v25, off, {WSL}, {t3}'])
                elif x:
                    a.e(x)
                    if 'ds_write_b64' in x:
                        a.tag_ds('mlw')
                    if 'ds_read_b64' in x:
                        a.tag_ds('mlr')
        assert not fill
        a.e(f'v_lshl_add_u32 v46, v0, 2, {sW8}')
        a.e('v_lshlrev_b32 v47, 2, v23')
        a.e('v_add_f32 v44, v8, v9')
        a.e('v_add_f32 v45, v12, v13')
        a.e('v_pk_mul_f32 v[44:45], v[44:45], v[18:19] op_sel_hi:[1,0]')
        self.stamp('pvA')

    def dma_tile(self, t):
        a = self.a
        pol = self.o.get('pol_kv', 'nt')
        srd = K_ if t < 16 else V_
        a.e(f's_add_u32 m0, {sKV}, {(t & 3) * 4096}')
        a.e(f's_add_u32 {t0}, {sKG}, {(t & 15) * 16384}')
        for q in range(4):
            a.e(f'buffer_load_dwordx4 v{8 + q}, {srd}, {t0} offen offset:{q * 1024} {pol} lds')
        a.tag_vm(f'tile{t}')

    def make_items(self):
        o = self.o
        pol, polc = o.get('pol_kv', 'nt'), o.get('pol_c', '')
        extra = {}
        c0, cs = o.get('ckv_from', 44), o.get('ckv_step', 2)
        for i in range(16):
            t, q = i >> 2, i & 3
            extra.setdefault(c0 + cs * i, []).append((f'c{i}', [
                f's_add_u32 m0, {sKV}, {CKV + i * 1024}', f'v_add_u32 v238, v{8 + q}, v254', f's_add_u32 {t0}, s1, {(16 * t + 4 * q) * 1024}',
                f'buffer_load_dwordx4 v238, {CK}, {t0} offen {polc} lds']))
        w0, wstep = o.get('wo_from', 52), o.get('wo_step', 4)
        for k in range(6):
            h, i = divmod(k, 3)
            extra.setdefault(w0 + wstep * k, []).append((f'w{k}', [
                f's_add_u32 m0, {sW8}, {h * 3072}', f's_add_u32 {t0}, {oWO}, {h * 64 * 1152}',
                f'buffer_load_dwordx4 v{(246, 247, 255)[i]}, {WO}, {t0} offen offset:{i * 1024} lds']))
        items = []
        self.extra = {tag: lines for v in extra.values() for tag, lines in v}
        for d in range(128):
            t, q = d >> 2, d & 3
            items.append((f'tile{t}' if q == 3 else f'd{d}', [
                f's_add_u32 m0, {sKV}, {(t & 3) * 4096}', f's_add_u32 {t0}, {sKG}, {(t & 15) * 16384}',
                f'buffer_load_dwordx4 v{8 + q}, {K_ if t < 16 else V_}, {t0} offen offset:{q * 1024} {pol} lds']))
        self.items = items
        self.pos = {tag: k for k, (tag, _) in enumerate(items)}
        self.issued = 0
        self.done_tile = -1
        self.lnq_done = False

    def issue_to(self, n):
        a = self.a
        prev = None
        lim = self.pos[f'tile{min(self.done_tile + 4, 31)}'] + 1
        while self.issued < min(n, lim):
            tag, lines = self.items[self.issued]
            if tag[0] == 'w':
                assert self.lnq_done, 'w_o staged before the q weights were read'
            assert tag[0] in 'td' or 2 < self.done_tile < 26
            for x in (lines if lines[:2] != prev else lines[2:]):
                a.e(x)
            a.tag_vm(tag)
            prev = lines[:2]
            self.issued += 1

    def prologue(self):
        a = self.a
        self.make_items()
        a.e('s_cmp_ge_u32 s2, 256')
        a.e('s_cbranch_scc1 L_end')
        if self.o.get('diag_fixed'):
            a.e('s_memrealtime s[100:101]')
        if self.o.get('stamps'):
            a.e('s_memtime s[98:99]' if self.o.get('clk') else 's_memrealtime s[98:99]')
        a.e('s_load_dwordx2 s[4:5], s[0:1], 8')
        ptrs = [(V_, 16), (CK, 48), (DBG, 96), (XIN, 0), (WQ, 24), (WO, 32), (BWQ, 56), (WUK, 64), (WUV, 72), (BWO, 80),
                (WS, 104), (OUT, 88)]
        sizes = {K_: 1 << 26, V_: 1 << 26, CK: 1 << 23, DBG: 256, XIN: 1152, WQ: 576 * 8192, WO: 4096 * 1152,
                 BWQ: 576 * 8192, WUK: 1 << 22, WUV: 1 << 22, BWO: 4096 * 1152, WS: WS_SIZE, WSL: L_X, WSG: G_IT, OUT: 1152}
        base = lambda s: int(s[2:s.index(':')])
        if self.o.get('code0', 1):
            a.e('s_getpc_b64 s[82:83]')
            a.e('L_pc:')
            a.e('s_and_b32 s3, s2, 0xf8')
            a.e('v_lshrrev_b32 v62, 5, v0')
            a.e('v_add_lshl_u32 v62, v62, s3, 7')
            a.e('v_min_u32 v62, L_codeend-L_pc, v62')
            a.e('global_load_dword v61, v62, s[82:83]')
        a.e('v_lshrrev_b32 v1, 6, v0')
        a.e('v_mov_b32 v63, v0')
        a.e(f'v_readfirstlane_b32 {sV}, v1')
        a.e('v_and_b32 v0, 63, v0')
        a.e(f's_and_b32 {sX}, s2, 7')
        a.e(f's_lshr_b32 {sJ}, s2, 3')
        a.e(f's_lshl_b32 {sKV}, {sV}, 14')
        self.sums(sKG, [(sX, 1 << 23), (sJ, 1 << 18), (sV, 1 << 12)])
        a.e(f'v_lshlrev_b32 {vL16}, 4, v0')
        a.e('v_and_b32 v12, 48, v0')
        a.e('v_lshlrev_b32 v12, 1, v12')
        a.e(f'v_xor_b32 v8, v12, {vL16}')
        for q in range(1, 4):
            a.e(f'v_xor_b32 v{8 + q}, {TBL[q] << 4}, v8')
        a.e(f's_mov_b32 s6, {sizes[K_]}')
        a.e('s_mov_b32 s7, 0x20000')
        a.e('s_waitcnt lgkmcnt(0)')
        for t in range(4):
            self.issue_to(min(4 * t + 4, self.o.get('win0', 8)))
            for srd, off in ptrs[3 * t:3 * t + 3]:
                b = base(srd)
                a.e(f's_load_dwordx2 s[{b}:{b + 1}], s[0:1], {off}')
        for srd, n in sizes.items():
            if srd != K_:
                a.e(f's_mov_b32 s{base(srd) + 2}, {n}')
                a.e(f's_mov_b32 s{base(srd) + 3}, 0x20000')
        if not self.o.get('code0', 1):
            a.e(f's_getpc_b64 s[82:83]')
            a.e('L_pc:')
            a.e('v_lshlrev_b32 v62, 7, v63')
            a.e(f'v_min_u32 v62, L_codeend-L_pc, v62')
            a.e('global_load_dword v61, v62, s[82:83]')
        a.e(f's_lshr_b32 {t1}, {sJ}, 3')
        self.sums(sH, [(sX, 4), (t1, 1)])
        a.e(f's_and_b32 {sS}, {sJ}, 7')
        a.e(f's_mov_b32 {sIT}, 0')
        a.e(f's_mov_b32 {sPOLL}, 0')
        a.e(f's_mov_b32 {sST}, 0')
        self.sums(sW8, [(sV, 8192)], STG)
        a.e('s_mov_b32 s84, 0x00ff00ff')
        a.e('s_mov_b32 s85, 0x00ff00ff')
        a.e(f's_mul_i32 {t2}, {sJ}, 43')
        a.e(f's_lshr_b32 {t2}, {t2}, 8')
        a.e(f's_mul_i32 {t3}, {t2}, 6')
        a.e(f's_sub_u32 {t3}, {sJ}, {t3}')
        self.sums(oY, [(t3, 512), (sV, 128)])
        self.sums(oQA, [(t2, 4096), (sV, 1024), (t3, 128)], L_QA)
        self.sums(oQB, [(t2, 4096), (sV, 512), (t3, 32)], L_QB)
        self.sums(oST, [(t2, 64), (t3, 8)], L_STA)
        self.sums(oWQ, [(t3, 96 * 8192), (sV, 24 * 8192), (sX, 1024), (t2, 256)])
        a.e(f's_cmp_eq_u32 {sV}, 0')
        a.e(f's_cselect_b32 {oST}, {oST}, {OOB}')
        a.e(f's_cmp_lt_u32 {sJ}, 24')
        for r in (oQA, oST, oWQ):
            a.e(f's_cselect_b32 {r}, {r}, {OOB}')
        self.sums(oQgA, [(t1, 4096), (sV, 1024)], L_QA)
        self.sums(oSTgA, [(t1, 64)], L_STA)
        self.sums(oWUV, [(sS, 64 * 8192), (sH, 256), (sV, 64)])
        self.sums(oWUK, [(sJ, 16 * 8192), (sX, 1024), (sV, 256)])
        self.sums(oWO, [(sX, 512 * 1152), (sV, 128 * 1152), (sJ, 48)])
        self.sums(oYpub, [(sX, 3072), (sJ, 128)])
        if self.o.get('asym'):
            a.e(f's_getreg_b32 {t0}, hwreg(HW_REG_XCC_ID, 0, 3)')
            a.e(f's_lshr_b32 {t0}, {self.o["asym"][0]}, {t0}')
            a.e(f's_lshl_b32 {t0}, {t0}, 31')
            a.e(f's_or_b32 {oYpub}, {oYpub}, {t0}')
        a.e(f's_cmp_lt_u32 {sJ}, 24')
        a.e(f's_cselect_b32 {oWO}, {oWO}, {OOB}')
        a.e(f's_cselect_b32 {sRES}, 1, 0')
        a.e(f's_cmp_eq_u32 {sV}, 3')
        a.e(f's_cselect_b32 {sRES}, {sRES}, 0')
        a.e(f's_mul_i32 {t0}, {sRES}, 3')
        a.e(f's_cmp_eq_u32 {sX}, 0')
        a.e(f's_cselect_b32 {sRES}, {t0}, {sRES}')
        if self.o.get('stamps'):
            a.e('v_mov_b32 v7, 0')
            a.e('s_mov_b32 s97, 8')
        a.e('v_and_b32 v14, 1, v0')
        a.e('v_mul_u32_u24 v1, 0xaaaa, v14')
        a.e('v_add_u32 v1, 0x4444, v1')

        def tbl(dst, x, tmp):
            a.e(f'v_lshrrev_b32 {tmp}, 1, {x}')
            a.e(f'v_xor_b32 {dst}, {x}, {tmp}')
            a.e(f'v_and_b32 {dst}, 1, {dst}')
            a.e(f'v_lshl_or_b32 {dst}, {dst}, 3, {tmp}')
        a.e('v_lshrrev_b32 v12, 4, v0')
        a.e('v_and_b32 v13, 15, v0')
        a.e('v_lshrrev_b32 v15, 2, v13')
        tbl('v16', 'v15', 'v17')
        a.e('v_and_b32 v17, 3, v13')
        a.e('v_lshlrev_b32 v18, 1, v17')
        a.e('v_xor_b32 v16, v16, v18')
        a.e('v_xor_b32 v16, v16, v12')
        a.e('v_lshlrev_b32 v16, 4, v16')
        a.e(f'v_lshl_or_b32 {vA}, v13, 8, v16')
        a.e(f'v_add_u32 {vA}, {sKV}, {vA}')
        tbl('v16', 'v12', 'v18')
        a.e('v_lshlrev_b32 v18, 1, v15')
        a.e('v_xor_b32 v16, v16, v18')
        a.e('v_lshrrev_b32 v18, 1, v17')
        a.e('v_xor_b32 v16, v16, v18')
        a.e('v_lshlrev_b32 v16, 4, v16')
        a.e('v_lshrrev_b32 v18, 2, v0')
        a.e('v_lshl_or_b32 v16, v18, 8, v16')
        a.e(f'v_lshl_or_b32 {vT}, v14, 3, v16')
        a.e(f'v_add_u32 {vT}, {sKV}, {vT}')
        a.e('s_waitcnt lgkmcnt(0)')
        self.stamp('start')
        w, l, g = base(WS), base(WSL), base(WSG)
        a.e(f's_lshl_b32 {t0}, {sX}, 17')
        a.e(f's_add_u32 s{l}, s{w}, {t0}')
        a.e(f's_addc_u32 s{l + 1}, s{w + 1}, 0')
        a.e(f's_add_u32 s{g}, s{w}, {GB}')
        a.e(f's_addc_u32 s{g + 1}, s{w + 1}, 0')
        self.dma_wq(WQ, 'v56', 'v57')
        self.lnq_rows()
        a.e(f's_mul_i32 {t0}, {t3}, 192')
        a.e('v_mul_u32_u24 v58, 3, v0')
        a.e('s_mov_b32 exec_lo, 0x00010001')
        a.e('s_mov_b32 exec_hi, 0x00010001')
        for rho in range(3):
            a.e(f'buffer_load_dwordx4 {vr(16 + 4 * rho, 4)}, v58, {XIN}, {t0} offen offset:{16 * rho}')
        a.e('s_mov_b64 exec, -1')
        a.e('v_lshlrev_b32 v58, 2, v0')
        a.e(f's_mul_i32 {t0}, {sJ}, 48')
        a.e(f's_cmp_eq_u32 {sRES}, 3')
        a.e(f's_cselect_b32 {t0}, {t0}, {OOB}')
        a.e(f'buffer_load_dword v5, v58, {XIN}, {t0} offen')
        for r in range(56, 60):
            a.e(f'v_mov_b32 v{r}, -1')
        self.sums(t4, [(sX, L_X), (sJ, 2560), (sV, 640)])
        self.sums(t1, [(sX, 128 * 384), (sJ, 4 * 384), (sV, 384)], GB)
        a.e('s_mov_b32 exec_hi, 0xff')
        a.e(f'buffer_store_dwordx4 v[56:59], {vL16}, {WS}, {t4} offen sc1')
        a.e('s_mov_b64 exec, 0xffffff')
        a.e(f'buffer_store_dwordx4 v[56:59], {vL16}, {WS}, {t1} offen sc1')
        a.e('s_mov_b64 exec, -1')
        a.tag_vm('clr')
        for ks in range(4):
            a.e(f'v_xor_b32 v{12 + ks}, {ks << 6}, {vA}')

    def late_scalars(self):
        a = self.a
        if self.o.get('asym'):
            a.e(f's_bitset0_b32 {oYpub}, 31')
        a.e(f's_lshr_b32 {t1}, {sJ}, 3')
        a.e(f's_and_b32 {t2}, {sJ}, 1')
        a.e(f's_lshr_b32 {t3}, {sJ}, 1')
        a.e(f's_lshr_b32 {t4}, {sX}, 2')
        a.e(f's_and_b32 {t5}, {sX}, 3')
        self.sums(oQgB, [(sV, 4096)], L_QB)
        self.sums(oSTgB, [(sV, 64)], L_STB)
        self.sums(oQApub, [(t4, 16384), (t3, 1024), (t5, 256), (t2, 128)], G_QABS)
        self.sums(oQAg, [(t2, 16384), (sV, 4096)], G_QABS)
        self.sums(oC1pub, [(sX, 1 << 19), (t2, 1 << 18), (sV, 16384), (t3, 256)], CB)
        self.sums(oMLpub, [(t2, 2048), (t3, 32)], L_C1ML)
        self.sums(oC1g, [(sX, 1 << 19), (sJ, 16384), (sV, 4096)], CB)
        a.e(f's_lshr_b32 {t4}, {sJ}, 2')
        self.sums(oMLg, [(t4, 512)], L_C1ML)
        self.sums(oC2pub, [(sJ, 8192), (sV, 2048), (sX, 256)], G_C2)
        self.sums(oC2Lpub, [(t4, 1024), (sX, 128)], G_C2L)
        a.e(f's_and_b32 {t4}, {sJ}, 3')
        a.e(f's_cselect_b32 {oC2Lpub}, {OOB}, {oC2Lpub}')
        self.sums(oC2g, [(sX, 32768), (sS, 4096), (t1, 64)], G_C2)
        self.sums(oC2Lg, [(sX, 1024), (t1, 16)], G_C2L)
        self.sums(oOBpub, [(t1, 2048), (sV, 512), (sS, 32)], L_OB)
        self.sums(oOApub, [(t1, 2048), (sS, 32)], L_OA)
        self.sums(oOALpub, [(sJ, 4)], L_OAL)
        self.sums(oOALg, [(sV, 32)], L_OAL)
        self.sums(oRES, [(sJ, 128)])
        self.sums(oO, [(sV, 2048)], L_OA)
        a.e(f's_cmp_eq_u32 {sV}, 0')
        a.e(f's_cselect_b32 {oMLpub}, {oMLpub}, {OOB}')
        a.e(f's_cselect_b32 {oOApub}, {oOApub}, {OOB}')
        a.e(f's_cselect_b32 {oC2Lpub}, {oC2Lpub}, {OOB}')

    def pv_block(self, U):
        a = self.a
        self.sp_addr('v63', sW8)
        a.e(f'ds_read_b128 v[20:23], v63 offset:{6144 + 128 * U}')
        a.e('s_waitcnt lgkmcnt(0)')
        for e in range(8):
            a.e(f'v_smfmac_f32_16x16x64_bf16 {vr(24 + 4 * e, 4)}, v[20:23], {vr(64 + 64 * U + 8 * e, 8)}, v1')

    def stream(self):
        a = self.a
        o = self.o
        landed = 0
        for t in range(28):
            win = o.get('win', 6) if t < o.get('wide_at', 99) else o.get('wide', 12)
            while landed <= self.pos[f'tile{t}']:
                if self.issued < landed + 1 + win or landed == self.pos[f'tile{t}']:
                    a.wait(vm=self.items[landed][0])
                    if o.get('sstamps') and t % 4 == 0 and landed == self.pos[f'tile{t}']:
                        self.stamp(f't{t}')
                    self.issue_to(landed + 1 + win)
                landed += 1
            slot = (t & 3) * 4096
            if t < 16:
                for ks in range(4):
                    a.e(f'ds_read_b128 a[{16 * t + 4 * ks}:{16 * t + 4 * ks + 3}], v{12 + ks} offset:{slot}')
            else:
                u = t - 16
                if u == 0:
                    for e in range(8):
                        a.e(f'v_xor_b32 v{12 + e}, {e << 5}, {vT}')
                for e in range(8):
                    a.e(f'ds_read_b64_tr_b16 {vr(64 + 64 * (u >> 2) + 8 * e + 2 * (u & 3), 2)}, v{12 + e} offset:{slot}')
            a.e('s_waitcnt lgkmcnt(0)')
            self.done_tile = t
            self.issue_to(landed + win + o.get('boost', {}).get(str(t), 0) if t < 27 else 999)
            if t == 2:
                a.e('v_lshrrev_b32 v254, 4, v0')
                a.e('v_mul_u32_u24 v254, 768, v254')
                a.e(f's_lshr_b32 {t2}, {sJ}, 1')
                self.sums('s1', [(sX, 1 << 20), (t2, 1 << 16), (sV, 256)])
                for i, r in enumerate((246, 247, 255)):
                    a.e(f'v_add_u32 v{r}, {64 * i}, v0')
                    a.e(f'v_mul_u32_u24 v{r}, 21846, v{r}')
                    a.e(f'v_lshrrev_b32 v{r}, 16, v{r}')
                    a.e(f'v_mul_u32_u24 v{r}, {1152 - 48}, v{r}')
                    a.e(f'v_lshl_add_u32 v{r}, v0, 4, v{r}')
            if t == 4:
                a.wait(vm='clr')
                a.e('v_lshlrev_b32 v60, 7, v0')
                a.e('s_mov_b64 exec, 31')
                a.e(f'buffer_load_dword v61, v60, {WS}, {t4} offen')
                a.e('s_mov_b64 exec, -1')
                a.tag_vm('touch')
                a.e('v_lshlrev_b32 v4, 16, v5')
                a.e('v_and_b32 v5, 0xffff0000, v5')
            if t == o.get('atom_at', 5):
                a.e('s_barrier')
                l = self.wave_only(1)
                a.e('s_getreg_b32 s82, hwreg(HW_REG_XCC_ID, 0, 3)')
                a.e('s_lshl_b32 s82, s82, 3')
                a.e('s_lshl_b64 s[82:83], 1, s82')
                a.e('v_mov_b32 v58, s82')
                a.e('v_mov_b32 v59, s83')
                a.e(f's_lshl_b32 {t0}, {sX}, 5')
                a.e('s_mov_b64 exec, 1')
                a.e(f'buffer_atomic_add_x2 v[58:59], v0, {DBG}, {t0} offen sc1')
                a.e('s_mov_b64 exec, -1')
                self.end_only(l)
            if t == 9:
                a.wait(vm='touch')
                self.lnq_addr()
                self.lnq_prep()
                for rho in range(3):
                    for x in self.lnq_mfma(rho):
                        a.e(x)
                self.lnq_reduce(False)
                self.lnq_done = True
            if t == o.get('cnt_at', 10):
                a.e('v_and_b32 v57, 7, v0')
                a.e('v_lshlrev_b32 v57, 5, v57')
                a.e(f'buffer_load_dwordx2 v[58:59], v57, {DBG}, 0 offen sc1')
                a.tag_vm('cnt')
            if t == 15:
                chk, retry, done = a.lab('chk'), a.lab('cretry'), a.lab('cdone')
                a.wait(vm='cnt')
                a.e(f'{chk}:')
                a.e('v_sad_u8 v61, v58, 0, 0')
                a.e('v_sad_u8 v61, v59, 0, v61')
                a.e('v_cmp_ne_u32 vcc, 32, v61')
                if not o.get('x_noinit'):
                    a.e(f's_cbranch_vccnz {retry}')
                a.e(f'{done}:')
                a.ool(f'{retry}:\ns_add_u32 {sPOLL}, {sPOLL}, 1\ns_cmp_gt_u32 {sPOLL}, 200000\ns_cbranch_scc1 {done}\ns_sleep 8\n'
                      f'buffer_load_dwordx2 v[58:59], v57, {DBG}, 0 offen sc1\ns_waitcnt vmcnt(0)\ns_branch {chk}')
                a.e('s_getreg_b32 s82, hwreg(HW_REG_XCC_ID, 0, 3)')
                a.e('s_lshl_b32 s82, s82, 3')
                a.e('s_lshl_b64 s[82:83], 32, s82')
                a.e(f'v_readlane_b32 {t2}, v58, {sX}')
                a.e(f'v_readlane_b32 {t3}, v59, {sX}')
                a.e(f's_cmp_eq_u64 s[82:83], s[80:81]')
                a.e(f's_cselect_b32 {sLOC}, {0 if o.get("force_slow") else 1}, {1 if o.get("x_noinit") else 0}')
                self.lnq_pubaddr(False, True)
                self.lcmp()
                self.lnq_publish(False, True)
            if t == 18:
                self.qa_addr(48)
                a.e(f's_add_u32 {t4}, {oQgA}, {L_CSA - L_QA}')
                ql = self.qa_loads(40, 52, 48) + [f'buffer_load_dwordx4 v[44:47], v51, {WSL}, {t4} offen sc1']
                for x in ql:
                    a.e(x)
                a.tag_vm('q')
            if t == 22:
                a.wait(vm='q')
                self.late_check('v20', list(range(40, 48)) + [52, 53], ql)
                for x in self.red8(44):
                    a.e(x)
                a.e('v_cvt_pk_bf16_f32 v44, 0, v44')
                a.e('v_or_b32 v1, v1, v44')
                a.e(self.stats_const(54))
                self.qa_finish(40, 52, 48, 56, 54)
                for r in range(24, 40, 4):
                    a.e(f'v_mov_b64 {vr(r, 2)}, 0')
                self.p_addr('v45', 'v44')
                self.qk_softmax(56, 24, 40, 44)
                for x in self.lsum('v57', 40):
                    a.e(x)
                for x in self.ml_write(56):
                    a.e(x)
                for r in range(24, 56, 4):
                    a.e(f'v_mov_b64 {vr(r, 2)}, 0')
                a.e('s_waitcnt lgkmcnt(0)')
            for i, at in enumerate(o.get('ckv_at', [10, 11, 12, 13])):
                if at == t:
                    for q in range(4):
                        for x in self.extra[f'c{4 * i + q}']:
                            a.e(x)
            if t == o.get('wo_at', 9):
                assert self.lnq_done
                for k in range(6):
                    for x in self.extra[f'w{k}']:
                        a.e(x)
            self.touches(f's{t}', 'v62', 'v31')
            if t == o.get('mlbar', 26):
                a.e('s_barrier')
                for x in self.ml_read(56, 20):
                    a.e(x)
                a.e('s_waitcnt lgkmcnt(0)')
                for x in self.ml_scale(56, 20, 21, 22):
                    a.e(x)
                a.e('v_readfirstlane_b32 s22, v21')
                a.e('v_readfirstlane_b32 s23, v22')
            if t == o.get('c1_late', 1) and t > 15:
                self.sums(t1, [(sX, 1 << 19), (sJ, 16384), (sV, 4096)], CB)
                for r in range(56, 60):
                    a.e(f'v_mov_b32 v{r}, -1')
                self.lcmp()
                self.lstore([f'buffer_store_dwordx4 v[56:59], {vL16}, {WS}, {t1} offen offset:{i * 1024}' for i in range(4)])
            if t == o.get('tlb_at', -1):
                g = o.get('tlb_n', 2)
                a.e(f's_mov_b64 exec, {(1 << g) - 1}')
                self.sums(t2, [(sX, 1 << 19)], CB)
                for srd, so, span in ((BWQ, oWQ, 24 * 8192), (WUK, oWUK, 16 * 8192), (WUV, oWUV, 64 * 8192), (BWO, oWO, 128 * 1152),
                                      (WS, t2, 1 << 19), (OUT, '0', 1024)):
                    a.e(f'v_mul_u32_u24 v62, {(span - 8192 if span > 8192 else span) // (g - 1) // 4 * 4}, v0')
                    a.e(f'buffer_load_dword v31, v62, {srd}, {so} offen')
                a.e('s_mov_b64 exec, -1')
            if t == o.get('isl_at', 12):
                a.e('s_branch L_isl_0')
                if self.alt:
                    a.e('L_isl_ret2:')
                else:
                    a.e('L_isl_ret:')
                    if o.get('hi'):
                        a.e('s_cmp_lg_u32 s0, 0')
                        a.e('s_cbranch_scc1 L_isl_ret2')
            if t == o.get('late_touch', -1):
                self.sums(t3, [(sX, 128), (sJ, 4), (sV, 1)])
                a.e(f's_lshl_b32 {t2}, {t3}, 10')
                a.e('v_lshlrev_b32 v62, 7, v0')
                a.e('v_and_b32 v62, 0x3ff, v62')
                a.e(f'buffer_load_dword v31, v62, {WS}, {t2} offen')
            if t == 23:
                self.pv_block(0)
            if t == 24:
                self.pv_block(1)
        if self.alt:
            a.e('s_nop 7')
            a.e('s_branch L_join')
            return
        a.e('L_join:')
        self.late_scalars()
        a.e('v_mov_b32 v62, s23')
        a.e(f's_cmp_eq_u32 {sV}, 0')
        a.e(f's_cselect_b32 {t1}, {oOALpub}, {OOB}')
        self.lcmp()
        self.lstore([f'buffer_store_dword v62, off, {WSL}, {t1}'])
        self.pv_block(2)
        a.e('v_lshrrev_b32 v62, 1, v0')
        a.e('v_and_b32 v62, 8, v62')
        a.e('v_and_or_b32 v62, v0, 32, v62')
        a.e(f'v_add_u32 v62, {sW8}, v62')
        a.e(f'v_add_u32 v62, {6144 + 384}, v62')
        for tt in range(4):
            o0 = 16 * (tt >> 1) + (tt & 1)
            r = (20, 22, 8, 10)[tt]
            a.e(f'ds_read2_b32 {vr(r, 2)}, v62 offset0:{o0} offset1:{o0 + 4}')
        a.e('s_mov_b32 vcc_lo, 0x55555555')
        a.e('s_mov_b32 vcc_hi, 0x55555555')
        a.e('s_waitcnt lgkmcnt(0)')
        for r in (20, 21, 22, 23, 8, 9, 10, 11):
            a.e(f'v_cndmask_b32 v{r}, 0, v{r}, vcc')
        self.last_tiles(range(3))
        a.e(f's_cmp_eq_u32 {sLOC}, 0')
        a.e('s_cbranch_scc1 L_pre_slow')

    def last_tiles(self, which):
        a = self.a
        for tt in which:
            a.wait(vm=f'tile{28 + tt}')
            if tt == 3:
                self.stamp('kvdone')
            dst = [56, 58, 60, 62] * 2 if tt < 3 else [56, 58, 60, 62, 20, 22, 8, 12]
            n1 = 4 if tt < 3 else 8
            for e in range(n1):
                a.e(f'ds_read_b64_tr_b16 {vr(dst[e], 2)}, v{12 + e} offset:{tt * 4096}')
                a.tag_ds(f'v{e}')
            if tt == 3:
                self.rot8('v14', 2)
            for e in range(8):
                a.wait(ds=f'v{e}')
                d = vr(24 + 4 * e, 4)
                a.e(f'v_mfma_f32_16x16x16_bf16 {d}, {vr((20, 22, 8, 10)[tt], 2)}, {vr(dst[e], 2)}, {d}')
                if e + n1 < 8:
                    a.e(f'ds_read_b64_tr_b16 {vr(dst[e], 2)}, v{12 + e + n1} offset:{tt * 4096}')
                    a.tag_ds(f'v{e + n1}')
                if tt == 3 and e >= 4:
                    x = e - 4
                    a.e(f'v_add_f32_dpp v16, v{24 + 4 * x}, v{25 + 4 * x} {DPPI} row_mask:{1 << x} bank_mask:0xf')
        if 3 not in which:
            return
        for e in range(4, 8):
            a.e(f'v_add_f32_dpp v17, v{24 + 4 * e}, v{25 + 4 * e} {DPPI} row_mask:{1 << (e & 3)} bank_mask:0xf')
        a.e('v_mul_f32 v44, s22, v16')
        a.e('v_mul_f32 v45, s22, v17')
        a.e(f'v_lshl_add_u32 v46, v0, 2, {sW8}')
        a.e('v_mov_b32 v47, v14')
        self.stamp('pv1')

    def tail(self, mode):
        a = self.a
        o = self.o
        base = lambda s: int(s[2:s.index(':')])
        self.mode = mode
        if mode == 'slow':
            a.e('L_pre_slow:')
            a.e('s_nop 7')
            a.e('s_waitcnt vmcnt(0)')
        self.last_tiles([3])
        n0 = self.nst
        a.vmq = [['wo', ()]] + [[None, ()] for _ in range(len(o.get('touch', {}).get('s27', [])) if o.get('wo_at', 9) == 27 else 40)]
        l, g = base(WSL), base(WSG)
        a.e(f'L_top_{mode}:')
        self.combine_publish()
        self.stamp('opub')
        a.e(f's_mul_i32 {t0}, {sRES}, {sIT}')
        self.resid_track(G_YB, 20, 'v8', f's_cmp_eq_u32 {t0}, 3')
        a.e(f's_mul_i32 {t0}, {sIT}, {G_IT}')
        a.e(f's_add_u32 s{g}, s{g}, {t0}')
        a.e(f's_addc_u32 s{g + 1}, s{g + 1}, 0')

        def idle_a():
            b = self.a
            self.wuk_prep('v8', 'v9')
            self.wuk_issue('v8', 'v9')
            self.touches('i1', 'v60', 'v10')
            l1 = b.lab('it1')
            b.e(f's_cmp_eq_u32 {sIT}, 1')
            b.e(f's_cbranch_scc1 {l1}')
            self.clear_g1(56)
            self.touches('i0', 'v60', 'v10')
            if o.get('touch', {}).get('i0b'):
                lp = b.lab('lp')
                b.e(f'{lp}:')
                b.e('s_sleep 4')
                b.e(f'buffer_load_dword v12, {vL16}, {WSL}, {oO} offen sc1')
                b.e('s_waitcnt vmcnt(0)')
                b.e('v_cmp_eq_u32 vcc, -1, v12')
                self.retry_to(lp)
                b.e('s_barrier')
                self.touches('i0b', 'v60', 'v10')
            l2 = b.lab('it1')
            b.e(f's_branch {l2}')
            b.e(f'{l1}:')
            self.touches('i3', 'v60', 'v10')
            self.sleep('ia')
            b.e(f'{l2}:')

        def busy_a():
            self.outproj(True)
            self.lnq_tail(G_YA, True)
        self.ool_if(f's_cmp_ge_u32 {sJ}, 24', idle_a, busy_a, True)
        self.qabs()
        self.attn_b()
        self.red()
        self.uv()

        def nextpass():
            b = self.a
            b.e(f's_cmp_eq_u32 {sIT}, 1')
            b.e(f's_cbranch_scc1 L_final_{mode}')
            b.e(f's_add_u32 s{l}, s{l}, {L_IT}')
            b.e(f's_addc_u32 s{l + 1}, s{l + 1}, 0')
            b.e(f's_mov_b32 s{l + 2}, {L_SZ}')
            b.e(f's_mov_b32 {sIT}, 1')

        def idle_b():
            nextpass()
            self.touches('i2', 'v60', 'v10')
            self.sleep('ib')

        def busy_b():
            self.outproj(False)
            nextpass()
            self.lnq_tail(G_YB, False)
        self.ool_if(f's_cmp_ge_u32 {sJ}, 24', idle_b, busy_b, True)
        self.attn_a3()
        self.nper = self.nst - n0
        self.n0 = n0
        if o.get('stamps'):
            a.e('s_mov_b32 s97, 5')
        a.e(f's_branch L_top_{mode}')
        a.e(f'L_final_{mode}:')
        a.e(f's_cmp_lg_u32 {sRES}, 3')
        a.e('s_cbranch_scc1 L_fin2')
        self.keep_rounding()
        self.resid(G_YB, 10, 'v8', True)
        a.e(f'buffer_store_dword v9, v8, {OUT}, {t0} offen')
        a.e('s_mov_b64 exec, -1')
        self.mode = None

    def build(self):
        a = self.a
        o = self.o
        base = lambda s: int(s[2:s.index(':')])
        self.prologue()
        altb = ''
        if o.get('hi'):
            import copy
            if o['hi'][0]:
                a.e('s_getreg_b32 s0, hwreg(HW_REG_XCC_ID, 0, 3)')
                a.e(f's_lshr_b32 s0, {o["hi"][0]}, s0')
                a.e('s_and_b32 s0, s0, 1')
            else:
                a.e(f's_cmp_ge_u32 {sJ}, 24')
                a.e('s_cselect_b32 s0, 1, 0')
            a.e('s_cbranch_scc1 L_alt')
            alt = Gen(dict(o, win=o['hi'][1]))
            alt.alt = True
            alt.a.uid = 300000
            alt.a.cold = True
            alt.a.vmq = copy.deepcopy(a.vmq)
            alt.make_items()
            alt.issued = self.issued
            alt.nst = self.nst
            alt.a.e('L_alt:')
            alt.stream()
            altb = alt.a.finish()
            altb = altb[:altb.index('L_isl_0:')]
        self.stream()
        self.tail('fast')
        a.e('L_fin2:')
        if o.get('diag_fixed'):
            a.e('L_dfx:')
            a.e('s_memrealtime s[94:95]')
            a.e('s_waitcnt lgkmcnt(0)')
            a.e('s_sub_u32 s94, s94, s100')
            a.e(f's_cmp_lt_u32 s94, {o["diag_fixed"]}')
            a.e('s_cbranch_scc1 L_dfx')
        if o.get('stamps'):
            a.e('s_waitcnt vmcnt(0) lgkmcnt(0)')
            self.stamp('end')
            a.e('s_waitcnt lgkmcnt(0)')
            a.e('v_writelane_b32 v7, s98, 62')
            a.e(f'v_writelane_b32 v7, {sPOLL}, 63')
            a.e('s_getreg_b32 s82, hwreg(HW_REG_XCC_ID, 0, 3)')
            a.e('s_getreg_b32 s83, hwreg(HW_REG_HW_ID)')
            a.e('s_lshl_b32 s83, s83, 4')
            a.e('s_or_b32 s82, s82, s83')
            a.e('v_writelane_b32 v7, s82, 61')
            self.sums(t1, [('s2', 1024), (sV, 256)], STAMP)
            a.e('v_lshlrev_b32 v8, 2, v0')
            a.e(f'buffer_store_dword v7, v8, {WS}, {t1} offen')
        a.e('L_end:')
        a.e('s_endpgm')
        slow = Gen(self.o)
        slow.a.uid = 500000
        slow.a.cold = True
        slow.tail('slow')
        slow.a.e('s_branch L_fin2')
        sb = slow.a.finish()
        sb = sb[:sb.index('L_isl_0:')]
        body = a.finish()
        ref = open('cdna_kernels/' + NAME + '.s.ref').read() if o.get('hdr', True) else ''
        hdr = ''.join(l + '\n' for l in ref.split('\n') if l.startswith(';') and '@launch' not in l and 'Override' not in l and 'grid=ceil' not in l)
        txt = hdr + '; @launch grid=(256,1,1) block=(256,1,1) lds=163840\n'
        txt += '.amdgcn_target "amdgcn-amd-amdhsa--gfx950"\n.text\n'
        txt += f'.globl {NAME}_kernel\n.p2align 8\n.type {NAME}_kernel,@function\n{NAME}_kernel:\n'
        txt += body
        txt += 'L_tailend:\n' + altb + 'L_codeend:\n' + sb
        txt += f"""    s_endpgm
.section .rodata,"a"
.p2align 6
.amdhsa_kernel {NAME}_kernel
  .amdhsa_next_free_vgpr 512
  .amdhsa_next_free_sgpr 102
  .amdhsa_accum_offset 256
  .amdhsa_group_segment_fixed_size 0
  .amdhsa_kernarg_size 112
  .amdhsa_user_sgpr_count 2
  .amdhsa_user_sgpr_kernarg_segment_ptr 1
  .amdhsa_system_sgpr_workgroup_id_x 1
.end_amdhsa_kernel
"""
        return txt


DEFAULT = dict(sleep=dict(h2a=6, h2b=6, h2c=2, ha=7, ia=30, ib=30, ha1=5, hc2=1, hc2b=2, hc4=1, fin=10), pol_c='nt', depth=3,
               touch=dict(w1b=['loc', 'code', 'wuk'], w1c=['loc'], w5=['code'], s27=['c1h'], i0=['Xc1:0:1', 'Xbwo'], i1=['loc', 'code'], i2=['loc']), wo_e=0, wo_pre=3, red_pre=4, tr_pre=4, lw_pos=1, wuv_pos=[1, 3, 5, 7], wo_pos=[1, 7, 13, 19, 25, 31], heat=0, rowm=0x00030003, K={'b4': 0, 'qb3': 0}, pol_wq3='nt',
               late_touch=-1, wo_at=9, warm=0, c1_late=1, ml_early=2, qflag=0, ybar=0, atom_at=4, cnt_at=12, win=6, boost={}, win0=6)

if __name__ == '__main__':
    import json
    opt = dict(DEFAULT)
    out = sys.argv[1]
    if len(sys.argv) > 2:
        opt.update(json.loads(sys.argv[2]))
    g = Gen(opt)
    open(out, 'w').write(g.build())
    print('nops', g.a.nops, 'stamps', g.stnames, g.n0, g.nper)
```

```python
import sys, math, struct
from asmlib import Asm

NAME = 'interleave_layers__mha_block_cached__compressed_kv_cla__decode'


def f32(x):
    return '0x%08x' % struct.unpack('<I', struct.pack('<f', x))[0]


K1 = 1024
L_X = 128 * K1
L_IT = 72 * K1
L_SZ = 56 * K1
L_QA, L_QB, L_OA, L_OB, L_C1ML = 0, 16 * K1, 32 * K1, 40 * K1, 48 * K1
L_STA, L_STB, L_OAL, L_FL = 52 * K1, 52 * K1 + 256, 52 * K1 + 512, 52 * K1 + 640
L_CSA = 56 * K1
GB, G_IT = 0x100000, 384 * K1
G_YA, G_YB, G_QABS, G_C2L, G_C2 = 0, 24 * K1, 48 * K1, 80 * K1, 112 * K1
G_ML = G_C2L
CB = 0x200000
STAMP = 0xc00000
WS_SIZE = 0x1000000
OOB = 0x40000000
CKV = 65536
STG = 131072
ZML = STG + 7168
ZO = STG + 8192 + 7168
ZQ = STG + 2 * 8192 + 7168
K_, V_, CK, DBG, XIN, WQ, WO, BWQ, WUK, WUV, BWO, WS, WSL, WSG, OUT = ['s[%d:%d]' % (4 + 4 * i, 7 + 4 * i) for i in range(15)]
(sX, sJ, sV, sLOC, sW8, sKV, sKG, sIT, sPOLL, sM, sRES, sST, sH, sS,
 t0, t1, t2, t3, t4, t5) = ['s%d' % i for i in range(64, 84)]
MY = 's[84:85]'
(oY, oQA, oQB, oST, oQgA, oSTgA, oWQ, oWO, oWUK, oWUV, oYpub) = ['s%d' % i for i in range(86, 97)]
(oQgB, oSTgB, oQApub, oQAg, oC1pub, oMLpub, oC1g, oMLg, oC2pub, oC2Lpub, oC2g, oC2Lg,
 oOBpub, oOApub, oOALpub, oOALg, oRES, oO) = ['s%d' % i for i in range(4, 22)]
vT, vA, vL16 = 'v2', 'v3', 'v6'
TBL = [0, 8, 9, 1]
DPPI = 'quad_perm:[0,1,2,3]'
FULL = 'row_mask:0xf bank_mask:0xf'
QSCALE = math.log2(math.e) / math.sqrt(128.0)


def vr(a, n):
    return f'v[{a}:{a + n - 1}]' if n > 1 else f'v{a}'


DESCR = """;
;    (LDS-DMA ring) and stay on the CU for the second A layer: K in a0..a255, V in v64..v255 plus four tiles in LDS.
;  * LayerNorm is applied around the projection: q = rstd * (x W - mean * colsum W); softmax partials carry their
;    It also records the die of every workgroup: only if a whole group was seen on one die do its group-local hand-offs
;    use plain stores through that die's L2, otherwise the copy of the code with write-through stores runs.
;  * s_sleep appears only as back-off in front of or inside such polls (an early poll slows the writer down);
"""


class Gen:
    def __init__(self, opt):
        self.o = opt
        self.a = Asm()
        self.nst = 0
        self.stnames = []
        self.mode = None
        self.alt = False

    NOTE = dict(start='descriptors and lane constants ready', kvdone='last V tile landed', pv1='layer 1 attention done',
                opub='attention record published', ogot='records of the group arrived', ypub='projection record published',
                wqrdy='q weights in registers', h2got='projection records arrived', qpub='partial q published',
                qgotB='partial q arrived', qapub='q_abs line published', qagot='q_abs arrived', sbar='scores done', smax='probabilities done',
                c1pub='partial contexts published', mlgot='their maxima and sums arrived', c2pub='group context published',
                c2got='group contexts arrived', dpub='value projection published', qgotA='partial q arrived', qrdy='q ready',
                smaxA='probabilities done', pvA='layer 3 attention done')

    def stamp(self, name, level=1):
        if name in self.NOTE:
            self.a.e('; ---- ' + self.NOTE[name])
        if self.o.get('diag_from') == name:
            l = self.a.lab('dg')
            self.a.e(f's_cselect_b32 s3, 1, 0')
            self.a.e(f's_cmp_eq_u32 {sIT}, 1')
            self.a.e(f's_cbranch_scc1 {l}')
            self.a.e('s_memrealtime s[100:101]')
            self.a.e(f'{l}:')
            self.a.e('s_cmp_eq_u32 s3, 1')
        if self.o.get('stamps', 0) < level or self.mode == 'slow':
            return
        if self.o.get('only') and name not in self.o['only'] and name != 'end':
            return
        a = self.a
        self.nst += 1
        self.stnames.append(name)
        a.e(f's_mov_b32 m0, {sST}')
        a.e(f's_pack_ll_b32_b16 s98, s98, {sPOLL}')
        a.e('v_writelane_b32 v7, s98, m0')
        a.e(f's_mov_b32 {sST}, {self.nst}')
        a.e(f's_bitset1_b32 {sST}, s97')
        a.e('s_memtime s[98:99]' if self.o.get('clk') else 's_memrealtime s[98:99]')

    def K(self, n, key=None, force=False):
        if key is not None:
            n = self.o.get('K', {}).get(key, n)
        if not self.o.get('warm', 1) and not force:
            return
        for i in range(n):
            self.a.e('v_mov_b32 v0, v0')
            self.a.e('s_nop 2')

    def H(self, key, n, junk):
        n = self.o.get('H', {}).get(key, n if self.o.get('heat', 1) else 0)
        for i in range(n):
            self.a.e(f'v_mfma_f32_16x16x4_f32 {vr(junk, 4)}, v0, v0, 0')

    def Wm(self):
        if self.o.get('warm', 1):
            self.a.e('v_mov_b32 v0, v0')

    def bar(self, n=2, vm=False):
        self.K(n)
        self.Wm()
        self.a.e('s_waitcnt vmcnt(0) lgkmcnt(0)' if vm else 's_waitcnt lgkmcnt(0)')
        self.Wm()
        self.a.e('s_barrier')
        self.Wm()

    def retry_to(self, top):
        a = self.a
        done, retry = a.lab('got'), a.lab('retry')
        a.e(f's_cbranch_vccnz {retry}')
        a.e(f'{done}:')
        a.ool(f'{retry}:\ns_cselect_b32 s3, 1, 0\ns_add_u32 {sPOLL}, {sPOLL}, 1\ns_cmp_gt_u32 {sPOLL}, 200000\ns_nop 1\ns_cbranch_scc0 {top}\n'
              f's_cmp_eq_u32 s3, 1\ns_branch {done}')

    def retry_with(self, lines, wait, chk):
        a = self.a
        done, retry = a.lab('got'), a.lab('retry')
        a.e(f's_cbranch_vccnz {retry}')
        a.e(f'{done}:')
        a.ool(f'{retry}:\n' + '\n'.join(lines) + f'\ns_add_u32 {sPOLL}, {sPOLL}, 1\ns_cmp_gt_u32 {sPOLL}, 200000\n{wait}\n'
              f's_cbranch_scc0 {chk}\ns_waitcnt vmcnt(0)\ns_branch {done}')
        return retry

    def ool_if(self, cond, fn, els=None, big=False):
        a = self.a
        go, back = a.lab('go'), a.lab('back')
        a.e(cond)
        a.e(f's_cbranch_scc1 {go}')
        if els and big:
            els()
            a.vmq, a.dsq = [], []
        elif els:
            a.begin_skip()
            els()
            a.end_skip()
        a.e(f'{back}:')
        sub = Asm()
        sub.uid = a.uid + 1000 * (1 + len(a.tail))
        self.a = sub
        sub.e(f'{go}:')
        sub.e('s_nop 1')
        fn()
        sub.e('s_nop 1')
        sub.e(f's_branch {back}')
        self.a = a
        tail, sub.tail = sub.tail, []
        body = sub.finish().split('\n')
        body = [x.strip() for x in body[:[i for i, x in enumerate(body) if x.startswith('L_isl_0')][0]] if x.strip()]
        for k in range(0, len(body), 14):
            part = body[k:k + 14]
            if k + 14 < len(body):
                nxt = a.lab('p')
                part.append(f's_branch {nxt}')
                body[k + 14] = f'{nxt}:\n' + body[k + 14]
            a.ool('\n'.join(part))
        for t in tail:
            a.ool(t)

    def lstore(self, lines):
        a = self.a
        if self.mode is not None:
            for l in lines:
                a.e(l + ' sc1' if self.mode == 'slow' and l.startswith('buffer_') else l)
            return
        slow, back = a.lab('slow'), a.lab('back')
        a.e(f's_cbranch_scc1 {slow}')
        for l in lines:
            a.e(l)
        a.e(f'{back}:')
        a.ool(('' if a.cold else '#cold') + f'{slow}:\ns_nop 7\n' + '\n'.join(l + ' sc1' if l.startswith('buffer_') else l for l in lines) + f'\ns_branch {back}')

    def lcmp(self):
        if self.mode is None:
            self.a.e(f's_cmp_eq_u32 {sLOC}, 0')

    def poll_begin(self):
        a = self.a
        self.ptop, self.pretry, self.pdone = a.lab('poll'), a.lab('retry'), a.lab('got')
        a.e(f'{self.ptop}:')

    def poll_end(self, vmax):
        a = self.a
        a.e(f'v_cmp_eq_u32 vcc, -1, {vmax}')
        a.e(f's_cbranch_vccnz {self.pretry}')
        a.e(f'{self.pdone}:')
        a.ool(f'{self.pretry}:\ns_add_u32 {sPOLL}, {sPOLL}, 1\ns_cmp_gt_u32 {sPOLL}, 200000\ns_cbranch_scc1 {self.pdone}\ns_nop 7\ns_branch {self.ptop}')

    def poll_cmp(self, vmax):
        self.a.e(f'v_cmp_eq_u32 vcc, -1, {vmax}')

    def poll_br(self, last=True):
        a = self.a
        done = a.lab('got')
        retry = a.lab('retry')
        a.e(f's_cbranch_vccnz {retry}')
        a.e(f'{done}:')
        a.ool(f'{retry}:\ns_cselect_b32 s3, 1, 0\ns_add_u32 {sPOLL}, {sPOLL}, 1\ns_cmp_gt_u32 {sPOLL}, 200000\ns_cbranch_scc0 {self.ptop}\n'
              f's_cmp_eq_u32 s3, 1\ns_branch {done}')

    def pipe_poll(self, ld, vmax, regs, key, mid=()):
        a = self.a
        n = sum(x.startswith('buffer') for x in ld)
        if self.o.get('pipe', {}).get(key, 1):
            self.poll_begin()
            for x in ld:
                self.H(key + '0', 0, 40)
                a.e(x)
            self.H(key + '1', 0, 40)
            a.e(f's_waitcnt vmcnt({n})')
            self.maxchain(vmax, regs, True)
            self.poll_cmp(vmax)
            for x in mid:
                a.e(x)
            self.poll_br()
        else:
            a.e('s_waitcnt vmcnt(0)')
            self.late_check(vmax, regs, ld)

    def late_check(self, vmax, regs, reissue):
        a = self.a
        chk, retry, done = a.lab('chk'), a.lab('retry'), a.lab('done')
        a.e(f'{chk}:')
        self.maxchain(vmax, regs, True)
        a.e(f'v_cmp_eq_u32 vcc, -1, {vmax}')
        a.e(f's_cbranch_vccnz {retry}')
        a.e(f'{done}:')
        a.ool(f'{retry}:\ns_add_u32 {sPOLL}, {sPOLL}, 1\ns_cmp_gt_u32 {sPOLL}, 200000\ns_cbranch_scc1 {done}\n'
              + '\n'.join(reissue) + f'\ns_waitcnt vmcnt(0)\ns_branch {chk}')

    def maxchain(self, vmax, regs, first):
        a = self.a
        regs = list(regs)
        if first:
            if len(regs) >= 3:
                a.e(f'v_max3_u32 {vmax}, v{regs[0]}, v{regs[1]}, v{regs[2]}')
                regs = regs[3:]
            elif len(regs) == 2:
                a.e(f'v_max_u32 {vmax}, v{regs[0]}, v{regs[1]}')
                regs = []
            else:
                a.e(f'v_mov_b32 {vmax}, v{regs[0]}')
                regs = []
        while len(regs) >= 2:
            a.e(f'v_max3_u32 {vmax}, {vmax}, v{regs[0]}, v{regs[1]}')
            regs = regs[2:]
        if regs:
            a.e(f'v_max_u32 {vmax}, {vmax}, v{regs[0]}')

    def sleep(self, key):
        n = self.o.get('sleep', {}).get(key, 0)
        if n:
            self.a.e(f's_sleep {n}')

    def wave_only(self, w):
        a = self.a
        l = a.lab('notw')
        a.e(f's_cmp_lg_u32 {sV}, {w}')
        a.e(f's_cbranch_scc1 {l}')
        a.begin_skip()
        return l

    def end_only(self, lab):
        self.a.end_skip()
        self.a.e(f'{lab}:')

    def pos_bytes(self, dst, tmp):
        a = self.a
        a.e(f'v_lshlrev_b32 {dst}, 3, v0')
        a.e(f'v_and_b32 {dst}, 16, {dst}')
        a.e(f'v_and_or_b32 {dst}, v0, 12, {dst}')

    def sp_addr(self, dst, base):
        a = self.a
        a.e(f'v_and_b32 {dst}, 48, v0')
        a.e(f'v_lshlrev_b32 {dst}, 1, {dst}')
        a.e(f'v_and_or_b32 {dst}, {vL16}, 16, {dst}')
        if base:
            a.e(f'v_add_u32 {dst}, {base}, {dst}')

    def sums(self, dst, terms, const=0):
        a = self.a
        first = True
        for reg, mul in terms:
            d = dst if first else t0
            if mul & (mul - 1) == 0:
                a.e(f's_lshl_b32 {d}, {reg}, {mul.bit_length() - 1}')
            else:
                a.e(f's_mul_i32 {d}, {reg}, {mul}')
            if not first:
                a.e(f's_add_u32 {dst}, {dst}, {t0}')
            first = False
        if const:
            a.e(f's_add_u32 {dst}, {dst}, {const}')

    def k64_addr(self, vt, vu):
        a = self.a
        a.e(f'v_lshrrev_b32 {vt}, 2, v0')
        a.e(f'v_lshlrev_b32 {vt}, 13, {vt}')
        a.e(f'v_and_or_b32 {vt}, {vL16}, 48, {vt}')

    def wq_prep(self, vt, vu):
        a = self.a
        a.e(f'v_lshrrev_b32 {vu}, 4, v0')
        a.e(f'v_lshlrev_b32 {vt}, 5, {vu}')
        a.e(f'v_xor_b32 {vt}, {vt}, {vL16}')
        a.e(f's_lshl_b32 {t1}, {sV}, 7')
        a.e(f'v_xor_b32 {vt}, {t1}, {vt}')
        a.e(f'v_and_b32 {vt}, 0xf0, {vt}')
        a.e(f'v_lshl_or_b32 {vt}, {vu}, 13, {vt}')

    def wq_issue(self, srd, vt, vu, parts, pol=''):
        a = self.a
        for i in parts:
            if i == parts[0] or i == 3:
                a.e(f's_add_u32 m0, {sW8}, {(i // 3) * 3072}')
            a.e(f's_add_u32 {t1}, {oWQ}, {i * 4 * 8192 - (i % 3) * 1024}')
            a.e(f'buffer_load_dwordx4 {vt}, {srd}, {t1} offen offset:{(i % 3) * 1024} {pol} lds')
        a.tag_vm('wq')

    def dma_wq(self, srd, vt, vu, pol=''):
        self.wq_prep(vt, vu)
        self.wq_issue(srd, vt, vu, list(range(6)), pol)

    def dma_wuv(self, vt):
        a = self.a
        pol = self.o.get('pol_w', '')
        self.k64_addr(vt, None)
        for i in range(4):
            a.e(f's_add_u32 m0, {sW8}, {i * 1024}')
            a.e(f's_add_u32 {t1}, {oWUV}, {i * 16 * 8192}')
            a.e(f'buffer_load_dwordx4 {vt}, {WUV}, {t1} offen {pol} lds')
        a.tag_vm('wuv')

    def wuk_prep(self, vt, vu):
        a = self.a
        a.e(f'v_lshrrev_b32 {vu}, 4, v0')
        a.e(f'v_lshlrev_b32 {vt}, 5, {vu}')
        a.e(f'v_xor_b32 {vt}, {vt}, {vL16}')
        a.e(f'v_and_b32 {vt}, 0xf0, {vt}')
        a.e(f'v_lshl_or_b32 {vt}, {vu}, 13, {vt}')

    def wuk_issue(self, vt, vu):
        a = self.a
        pol = self.o.get('pol_wuk', '')
        a.e(f's_mov_b32 m0, {sW8}')
        for q in range(4):
            a.e(f's_add_u32 {t1}, {oWUK}, {q * (4 * 8192 - 1024)}')
            if q:
                a.e(f'v_xor_b32 {vu}, {TBL[q] << 4}, {vt}')
            a.e(f'buffer_load_dwordx4 {vu if q else vt}, {WUK}, {t1} offen offset:{q * 1024} {pol} lds')
        a.tag_vm('wuk')

    def wo_prep(self, R, tmp, second=True):
        a = self.a
        for i in range(3):
            a.e(f'v_add_u32 v{R + i}, {64 * i}, v0')
            a.e(f'v_mul_u32_u24 {tmp}, 21846, v{R + i}')
            a.e(f'v_lshrrev_b32 {tmp}, 16, {tmp}')
            a.e(f'v_mul_u32_u24 {tmp}, {1152 - 48}, {tmp}')
            a.e(f'v_lshl_add_u32 v{R + i}, v0, 4, {tmp}')
        if second:
            a.e(f's_add_u32 {t5}, {oWO}, {64 * 1152}')

    def wo_lines(self, srd, R, pol='', base=sW8):
        out = []
        for h in range(2):
            out.append(f's_add_u32 m0, {base}, {h * 3072}')
            for i in range(3):
                out.append(f'buffer_load_dwordx4 v{R + i}, {srd}, {t5 if h else oWO} offen offset:{i * 1024} {pol} lds')
        return out

    def wo_group(self, srd, R, lo, hi):
        out = []
        for k in range(lo, hi):
            h, i = divmod(k, 3)
            if k == lo or i == 0:
                out.append(f's_add_u32 m0, {sW8}, {h * 3072}')
            out.append(f'buffer_load_dwordx4 v{R + i}, {srd}, {t5 if h else oWO} offen offset:{i * 1024} lds')
        return out

    def dma_wo(self, srd, R, tmp):
        self.wo_prep(R, tmp)
        for x in self.wo_lines(srd, R, self.o.get('pol_wo1', '')):
            self.a.e(x)
        self.a.tag_vm('wo')

    def touch(self, what, vt, vd):
        a = self.a
        if what == 'code':
            l = a.lab('pc')
            self.sums(t1, [(sJ, 1024), (sV, 256)])
            a.e(f'v_lshl_add_u32 {vt}, v0, 7, {t1}')
            a.e(f'v_min_u32 {vt}, L_tailend-L_top_fast, {vt}')
            a.e('s_getpc_b64 s[78:79]')
            a.e(f'{l}:')
            a.e(f's_add_u32 s78, s78, L_top_fast-{l}')
            a.e(f's_addc_u32 s79, s79, {0 if self.mode is None else -1}')
            a.e('s_mov_b64 exec, 3')
            a.e(f'global_load_dword {vd}, {vt}, s[78:79]')
            a.e('s_mov_b64 exec, -1')
            return
        if what.startswith('Xclr'):
            for r in range(56, 60):
                a.e(f'v_mov_b32 v{r}, -1')
            self.sums(t1, [(sX, 1 << 19), (sJ, 65536), (sV, 16384)], CB + (int(what[4]) << 22) - 24 * 65536)
            for k in range(16):
                a.e(f'buffer_store_dwordx4 v[56:59], {vL16}, {WS}, {t1} offen offset:{(k & 3) * 1024} sc1')
                if k & 3 == 3:
                    a.e(f's_add_u32 {t1}, {t1}, 4096')
            return
        if what[0] == 'X':
            what, lo, hi = (what.split(':') + ['0', '9'])[:3]
            if what in ('Xbwq', 'Xwq', 'Xwuk', 'Xwuv'):
                srd, rows = {'Xbwq': (BWQ, 18), 'Xwq': (WQ, 18), 'Xwuk': (WUK, 12), 'Xwuv': (WUV, 16)}[what]
                a.e(f'v_lshrrev_b32 {vt}, 3, v0')
                a.e(f'v_lshlrev_b32 {vt}, 6, {vt}')
                a.e(f'v_and_or_b32 {vt}, v0, 7, {vt}')
                a.e(f'v_lshlrev_b32 {vt}, 7, {vt}')
                self.sums(t1, [(sX, 1024), (sJ, 4 * rows * 8192), (sV, rows * 8192)], (1 << 32) - 96 * rows * 8192)
                for k in range(0, rows, 8):
                    if rows - k < 8:
                        a.e(f's_mov_b32 exec_lo, {(1 << ((rows - k) * 8)) - 1}')
                        a.e('s_mov_b32 exec_hi, 0')
                    if int(lo) <= k // 8 < int(hi):
                        a.e(f'buffer_load_dword {vd}, {vt}, {srd}, {t1} offen')
                    a.e(f's_add_u32 {t1}, {t1}, 65536')
                a.e('s_mov_b64 exec, -1')
                return
            srd, base, per = {'Xc1': (WS, [(sX, 1 << 19)], 16384), 'Xbwo': (BWO, [(sX, 512 * 1152)], 18432), 'Xwo': (WO, [(sX, 512 * 1152)], 18432)}[what]
            a.e(f'v_lshlrev_b32 {vt}, 7, v0')
            self.sums(t1, base + [(sJ, 4 * per), (sV, per)], (CB if what == 'Xc1' else 0) - 96 * per + (1 << 32 if what != 'Xc1' else 0))
            for k in range(0, per, 8192):
                if per - k < 8192:
                    a.e(f's_mov_b64 exec, {(1 << ((per - k) // 128)) - 1}')
                if int(lo) <= k // 8192 < int(hi):
                    a.e(f'buffer_load_dword {vd}, {vt}, {srd}, {t1} offen')
                a.e(f's_add_u32 {t1}, {t1}, 8192')
            a.e('s_mov_b64 exec, -1')
            return
        half = None
        if what[-1] in '01' and what != 'c1':
            what, half = what[:-1], int(what[-1])
        if what in ('wq', 'bwq', 'wuv', 'wuk'):
            srd = {'wq': WQ, 'bwq': BWQ, 'wuv': WUV, 'wuk': WUK}[what]
            a.e(f'v_lshrrev_b32 {vt}, 3, v0')
            a.e(f'v_lshlrev_b32 {vt}, 6, {vt}')
            a.e(f'v_and_or_b32 {vt}, v0, 7, {vt}')
            a.e(f'v_lshlrev_b32 {vt}, 7, {vt}')
            rows = 5 if what in ('wq', 'bwq') else 4
            self.sums(t1, [(sJ, 4 * rows * 8192), (sV, rows * 8192), (sX, 1024)])
            n = 8 * rows
        elif what == 'loc':
            srd = WS
            a.e(f'v_lshlrev_b32 {vt}, 7, v0')
            self.sums(t1, [(sX, L_X), (sJ, 4096), (sV, 1024)])
            n = 8
        elif what == 'c1h':
            srd = WS
            a.e(f'v_lshlrev_b32 {vt}, 7, v0')
            self.sums(t1, [(sX, 1 << 19), (sJ, 16384), (sV, 2048)], CB + 8192)
            n = 16
        elif what == 'c1':
            srd = WS
            a.e(f'v_lshlrev_b32 {vt}, 7, v0')
            self.sums(t1, [(sX, 1 << 19), (sJ, 16384), (sV, 4096)], CB)
            n = 32
        else:
            srd = {'wo': WO, 'bwo': BWO}[what]
            a.e(f'v_lshlrev_b32 {vt}, 7, v0')
            self.sums(t1, [(sX, 512 * 1152), (sJ, 18432), (sV, 4608)])
            n = 36
        m = (1 << n) - 1
        if half == 0:
            m = (1 << (n // 2)) - 1
        elif half == 1:
            m ^= (1 << (n // 2)) - 1
        a.e(f's_mov_b32 exec_lo, {m & 0xffffffff}')
        a.e(f's_mov_b32 exec_hi, {m >> 32}')
        if vd is None:
            a.e(f's_add_u32 m0, {sW8}, 1024')
            a.e(f'buffer_load_dword {vt}, {srd}, {t1} offen lds')
        else:
            a.e(f'buffer_load_dword {vd}, {vt}, {srd}, {t1} offen')
        a.e('s_mov_b64 exec, -1')

    def touches(self, where, vt, vd):
        for w in self.o.get('touch', {}).get(where, []):
            self.touch(w, vt, vd)

    def lnq_addr(self):
        a = self.a
        a.e('v_lshrrev_b32 v52, 4, v0')
        a.e('v_bfe_u32 v53, v0, 2, 2')
        a.e('v_lshl_add_u32 v52, v52, 5, v53')
        a.e('v_and_b32 v53, 31, v0')
        a.e('v_lshlrev_b32 v53, 3, v53')
        a.e('v_lshl_or_b32 v52, v52, 8, v53')
        a.e(f's_lshl_b32 {t0}, {sV}, 6')
        a.e(f's_add_u32 {t0}, {t0}, {STG}')
        a.e(f'v_xor_b32 v52, {t0}, v52')
        a.e('v_xor_b32 v54, 32, v52')

    def lnq_prep(self):
        a = self.a
        a.wait(vm='wq')
        a.e('s_barrier')
        for rho in range(3):
            for tau in range(2):
                for half in range(2):
                    a.e(f'ds_read_b64_tr_b16 {vr(28 + 8 * rho + 4 * tau + 2 * half, 2)}, v{52 + 2 * tau} offset:{2048 * rho + 1024 * half}')
        a.e('s_waitcnt lgkmcnt(0)')
        a.e('s_barrier')

    def lnq_rows(self):
        a = self.a
        a.e('v_mov_b32 v53, 0x3f803f80')
        a.e(f's_lshl_b64 s[82:83], {MY}, 8')
        a.e('v_cndmask_b32 v16, 0, v53, s[82:83]')
        a.e('v_mov_b32 v17, v16')
        for r in range(18, 28, 2):
            a.e(f'v_mov_b64 {vr(r, 2)}, v[16:17]')

    def lnq_mfma(self, rho):
        a = self.a
        A = vr(16 + 4 * rho, 4)
        c = (lambda r: '0') if rho == 0 else (lambda r: r)
        return [f'v_mfma_f32_16x16x32_bf16 v[60:63], {A}, {A}, {c("v[60:63]")}',
                f'v_mfma_f32_16x16x32_bf16 v[52:55], {A}, {vr(28 + 8 * rho, 4)}, {c("v[52:55]")}',
                f'v_mfma_f32_16x16x32_bf16 v[56:59], {A}, {vr(32 + 8 * rho, 4)}, {c("v[56:59]")}']

    def lnq_reduce(self, isb, chk=False):
        a = self.a
        a.e('v_pk_add_f32 v[60:61], v[60:61], v[62:63]')
        a.e('v_add_f32 v60, v60, v61')
        if chk:
            a.e('v_cmp_u_f32 vcc, v60, v60')
        a.e('v_pk_add_f32 v[52:53], v[52:53], v[54:55]')
        a.e('v_mov_b32 v61, v60')
        a.e('v_pk_add_f32 v[56:57], v[56:57], v[58:59]')
        a.e('v_add_f32 v52, v52, v53')
        a.e('v_permlane16_swap_b32 v60, v61')
        a.e('v_add_f32 v56, v56, v57')
        a.e('v_add_f32 v60, v60, v61')
        a.e('v_permlane16_swap_b32 v52, v56')
        a.e(f'v_add_f32_dpp v60, v60, v60 quad_perm:[1,0,3,2] {FULL}')
        a.e('v_add_f32 v52, v52, v56')
        self.lcmp()
        a.e(f'v_add_f32_dpp v60, v60, v60 quad_perm:[2,3,0,1] {FULL}')
        if isb:
            a.e(f'v_mov_b32_dpp v53, v52 quad_perm:[1,0,3,2] {FULL}')
            a.e('v_cvt_pk_bf16_f32 v52, v52, v53')
        a.e(f'v_add_f32_dpp v60, v60, v60 row_half_mirror {FULL}')

    def lnq_pubaddr(self, isb, first):
        a = self.a
        if isb:
            self.pos_bytes('v14', None)
            a.e('v_and_b32 v15, 16, v0')
            a.e('v_lshl_or_b32 v14, v15, 4, v14')
            a.e('v_and_b32 v15, 32, v0')
            a.e('v_lshl_or_b32 v14, v15, 6, v14')
        else:
            a.e('v_and_b32 v14, 31, v0')
            a.e('v_lshlrev_b32 v14, 2, v14')
            if first:
                a.e('v_lshrrev_b32 v15, 5, v0')
                a.e(f'v_mul_u32_u24 v15, {L_CSA - L_QA}, v15')
                a.e('v_add_u32 v14, v14, v15')
        a.e('v_lshrrev_b32 v15, 1, v0')
        if isb:
            self.oob(('v14', 'v14'), (0xaaaaaaaa, 0xaaaaaaaa))
        elif not first:
            self.oob(('v14', 'v14'), (0, 0xffffffff))
        self.oob(('v15', 'v15'), (0xfffffefe, 0xffffffff))

    def lnq_publish(self, isb, first, q='v52', st='v60', qa='v14', sa='v15'):
        self.lstore([f'buffer_store_dword {q}, {qa}, {WSL}, {oQB if isb else oQA} offen',
                     f'buffer_store_dword {st}, {sa}, {WSL}, {oST} offen offset:{256 if isb else 0}'])

    def keep_rounding(self):
        a = self.a
        a.e(f's_cmp_eq_u32 {sRES}, 3')
        a.e('s_cselect_b64 vcc, -1, 0')
        a.e('v_lshlrev_b32 v36, 16, v34')
        a.e('v_and_b32 v37, 0xffff0000, v34')
        a.e('v_pk_add_f32 v[32:33], v[32:33], v[36:37] neg_lo:[0,1] neg_hi:[0,1]')
        a.e('v_cndmask_b32 v4, 0, v32, vcc')
        a.e('v_cndmask_b32 v5, 0, v33, vcc')

    def lnq_tail(self, goff, isb):
        a = self.a
        pol = self.o.get('pol_bwq', '') if isb else self.o.get('pol_wq3', '')
        if self.o.get('wq_hoist', 1):
            self.wq_issue(BWQ if isb else WQ, 'v17', None, list(range(6)), pol)
            a.e('s_barrier')
        self.keep_rounding()
        if self.o.get('ybar', 1):
            a.e('s_barrier')
        self.lnq_rows()
        a.e('v_lshrrev_b32 v12, 2, v0')
        a.e('v_mul_u32_u24 v12, 3072, v12')
        a.e(f'v_and_or_b32 v12, {vL16}, 48, v12')
        a.e(f's_add_u32 {t4}, {oY}, {goff}')
        a.e(f's_add_u32 {t5}, {sW8}, 6144')
        if not self.o.get('wq_hoist', 1):
            self.dma_wq(BWQ if isb else WQ, 'v8', 'v9', pol)
            a.e('s_barrier')
        self.lnq_addr()
        self.lnq_pubaddr(isb, False)
        a.e('v_and_b32 v11, 48, v0')
        a.e('v_lshlrev_b32 v11, 3, v11')
        a.e('v_and_or_b32 v11, v0, 7, v11')
        a.e('v_lshlrev_b32 v11, 6, v11')
        a.e(f'v_add_u32 v11, {STG + 6144}, v11')
        a.e('v_mov_b32 v13, 0')
        if isb:
            self.wuk_prep('v8', 'v9')

            def clear1():
                self.clear_g1(56)
                self.sleep('h2c')
            self.ool_if(f's_cmp_eq_u32 {sIT}, 0', clear1, lambda: self.sleep('h2a'))
        else:
            if self.o.get('wo_h2', 0):
                self.wo_prep(56, 'v59', False)
            self.sleep('h2b')
        ld = [f's_mov_b32 m0, {t5}', 's_mov_b64 exec, 0x77777777',
              f'buffer_load_dword v13, v12, {WSG}, {t4} offen sc1',
              f'buffer_load_dwordx4 v12, {WSG}, {t4} offen sc1 lds',
              's_mov_b64 exec, -1']
        for i, x in enumerate(ld):
            a.e(x)
            if i in (2, 3):
                a.tag_vm(f'y{i}')
        self.touches('w1b' if isb else 'w1c', 'v60', 'v10')
        self.lnq_prep()
        self.stamp('wqrdy', 2)
        if isb:
            self.wuk_issue('v8', 'v9')
        else:
            for x in self.wo_group(WO, 56, 0, self.o.get('wo_h2', 0)):
                a.e(x)
        chk, again = a.lab('chk'), a.lab('again')
        a.wait(vm='y2')
        a.e(f'{chk}:')
        a.e('v_cmp_eq_u32 vcc, -1, v13')
        a.wait(vm='y3')
        again = self.retry_with(ld, 's_waitcnt vmcnt(0)', chk)
        a.e(f's_mov_b64 exec, {MY}')
        a.e('s_barrier')
        for rho in range(3):
            a.e(f'ds_read_b128 {vr(16 + 4 * rho, 4)}, v11 offset:{16 * rho}')
            a.tag_ds(f'a{rho}')
        fl = isb and self.o.get('qflag', 1)
        if fl:
            self.lstore([f'buffer_store_dword v0, off, {WSL}, {t3} offset:{L_FL - L_OAL}'])
        a.e('s_mov_b64 exec, -1')
        self.stamp('h2got', 2)
        if fl:
            a.e('v_and_b32 v9, 7, v0')
            a.e('v_lshlrev_b32 v9, 2, v9')
        self.H('l1', 0, 56)
        mm = [self.lnq_mfma(rho) for rho in range(3)]
        for rho in range(3):
            a.wait(ds=f'a{rho}')
            a.e(mm[rho][0])
        g = ['v_pk_add_f32 v[60:61], v[60:61], v[62:63]', 'v_add_f32 v62, v60, v61', 'v_add_f32 v60, v60, v61', 'v_cmp_u_f32 vcc, v62, v62',
             'v_permlane16_swap_b32 v60, v62', 'v_add_f32 v60, v60, v62',
             f'v_add_f32_dpp v60, v60, v60 quad_perm:[1,0,3,2] {FULL}', f'v_add_f32_dpp v60, v60, v60 quad_perm:[2,3,0,1] {FULL}',
             f'v_add_f32_dpp v60, v60, v60 row_half_mirror {FULL}']
        a.e(mm[0][1]); a.e('s_nop 1')
        a.e(mm[1][1]); a.e('s_nop 1')
        a.e(mm[2][1]); a.e('s_nop 0'); a.e(g[0])
        a.e(mm[0][2]); a.e(g[1]); a.e(g[2])
        a.e(mm[1][2]); a.e(g[3]); a.e(g[4])
        a.e(mm[2][2]); a.e(g[5])
        a.e('v_pk_add_f32 v[52:53], v[52:53], v[54:55]')
        a.e('v_add_f32 v52, v52, v53')
        a.e(g[6])
        a.e(g[7])
        a.e('v_pk_add_f32 v[56:57], v[56:57], v[58:59]')
        a.e('v_add_f32 v56, v56, v57')
        a.e(g[8])
        again2 = a.lab('again')
        self.retry_to(again2)
        a.e('v_permlane16_swap_b32 v52, v56')
        a.e('v_add_f32 v52, v52, v56')
        if isb:
            a.e(f'v_mov_b32_dpp v53, v52 quad_perm:[1,0,3,2] {FULL}')
            a.e('v_cvt_pk_bf16_f32 v52, v52, v53')
        a.ool(f'{again2}:\ns_barrier\ns_branch {again}')
        if fl == 1:
            a.e(f'buffer_load_dword v10, v9, {WSL}, {oOALg} offen offset:{L_FL - L_OAL} sc1')
            a.tag_vm('fl')
        self.lnq_publish(isb, False)
        if fl == 2:
            a.e(f'buffer_load_dword v10, v9, {WSL}, {oOALg} offen offset:{L_FL - L_OAL} sc1')
            a.tag_vm('fl')
        self.stamp('qpub')

    def clear_g1(self, R):
        b = self.a
        for r in range(R, R + 4):
            b.e(f'v_mov_b32 v{r}, -1')
        gw = 128 if self.o.get('single') else 384
        self.sums(t1, [(sX, 128 * gw), (sJ, 4 * gw), (sV, gw)], GB + G_IT)
        b.e(f's_mov_b64 exec, {(1 << (gw // 16)) - 1}')
        b.e(f'buffer_store_dwordx4 {vr(R, 4)}, {vL16}, {WS}, {t1} offen sc1')
        b.e('s_mov_b64 exec, -1')
        if self.o.get('clr_h2') is not None:
            fl = self.o['clr_h2'] or ('sc1' if self.mode == 'slow' else '')
            for x in self.clear_c1(R, 'v60', 'v61'):
                b.e(x + ' ' + fl if x.startswith('buffer') else x)

    def c_addr(self, va):
        out = [f'v_and_b32 {va}, 48, v0', f'v_lshlrev_b32 {va}, 4, {va}', f'v_and_or_b32 {va}, v0, 8, {va}']
        if self.o.get('cswz', 1):
            out += [f'v_lshlrev_b32 {va}, 7, {va}', f'v_or_b32 {va}, {va}, v0', f'v_lshlrev_b32 {va}, 4, {va}', f'v_xor_b32 {va}, {oC2g}, {va}']
        else:
            out += [f'v_lshlrev_b32 {va}, 7, {va}', f'v_and_or_b32 {va}, v0, 7, {va}', f'v_lshlrev_b32 {va}, 4, {va}']
        return out

    def clear_c1(self, R, va, vt):
        b = self.a
        for r in range(R, R + 4):
            b.e(f'v_mov_b32 v{r}, -1')
        if self.o.get('single'):
            for x in self.c_addr(va):
                b.e(x)
            for r in range(4):
                b.e(f's_add_u32 {t1}, {oC1pub}, {r * 131072}')
                b.e(f'buffer_store_dwordx4 {vr(R, 4)}, {va}, {WS}, {t1} offen sc1')
            return []
        b.e(f'v_lshrrev_b32 {va}, 4, v0')
        b.e(f'v_and_b32 {vt}, 0xf0, {vL16}')
        b.e(f'v_lshl_or_b32 {va}, {va}, 16, {vt}')
        out = []
        for q in range(4):
            out.append(f's_add_u32 {t1}, {oC1pub}, {q * 4096}')
            out.append(f'buffer_store_dwordx4 {vr(R, 4)}, {va}, {WS}, {t1} offen')
        return out

    def oob(self, reg, mask):
        a = self.a
        a.e(f's_mov_b32 vcc_lo, {mask[0]}')
        a.e(f's_mov_b32 vcc_hi, {mask[1]}')
        a.e(f'v_cndmask_b32 {reg[0]}, {reg[1]}, 2.0, vcc')

    def c1_addr(self, dst, tmp):
        a = self.a
        a.e(f'v_lshrrev_b32 {tmp}, 4, v0')
        a.e(f'v_and_b32 {dst}, 0xf0, {vL16}')
        a.e(f'v_lshl_or_b32 {dst}, {tmp}, 12, {dst}')

    def stats_const(self, C):
        return f'v_mov_b32 v{C}, {f32(64.0 / QSCALE ** 2)}'

    def stats(self, S, C):
        out = []
        for c in (4, 2, 1):
            out.append(f'v_add_f32_dpp v{S + 1}, v{S + 1}, v{S + 1} row_ror:{c} {FULL}')
            out.append(f'v_add_f32_dpp v{S}, v{S}, v{S} row_ror:{c} {FULL}')
        out.append(f'v_mul_f32 v{S + 1}, {f32(1.0 / (64 * 576))}, v{S + 1}')
        out.append(f'v_mul_f32 v{S}, {f32(1.0 / (64 * 576))}, v{S}')
        out.append(f'v_fma_f32 v{S}, -v{S + 1}, v{S + 1}, v{S}')
        out.append(f'v_max_f32 v{S}, 0, v{S}')
        out.append(f'v_fmaak_f32 v{S}, v{C}, v{S}, {f32(1e-5 / QSCALE ** 2)}')
        out.append(f'v_rsq_f32 v{S}, v{S}')
        return out

    def mix(self, x, y):
        x, y = list(x), list(y)
        while x or y:
            if x:
                self.a.e(x.pop(0))
            if y:
                self.a.e(y.pop(0))

    def resid(self, goff, base, va, final):
        a = self.a
        a.e(f'v_lshlrev_b32 {va}, 2, v0')
        a.e(f's_add_u32 {t2}, {oRES}, {goff}')
        a.e('s_mov_b64 exec, 0xfff')
        if final:
            self.sleep('fin')
        self.poll_begin()
        for i in range(8):
            if i & 1 == 0:
                a.e(f's_add_u32 {t3}, {t2}, {i * 3072}')
            a.e(f'buffer_load_dword v{base + i}, {va}, {WSG}, {t3} offen offset:{(i & 1) * 3072} sc1')
        a.e(f'v_mov_b32 v{base + 8}, 0x3f80')
        a.e(f'v_mov_b32 v{base + 9}, 0x3f800000')
        A = base + 10
        a.e(f'v_mov_b64 {vr(A, 2)}, v[4:5]')
        for i in range(8):
            if i & 1 == 0:
                a.e(f's_waitcnt vmcnt({6 - i})')
            a.e(f'v_dot2c_f32_bf16 v{A}, v{base + 8}, v{base + i}')
            a.e(f'v_dot2c_f32_bf16 v{A + 1}, v{base + 9}, v{base + i}')
        a.e('s_nop 2')
        a.e(f'v_cmp_u_f32 vcc, v{A}, v{A + 1}')
        if final:
            a.e(f'v_cvt_pk_bf16_f32 v9, v{A}, v{A + 1}')
            a.e(f's_mul_i32 {t0}, {sJ}, 48')
        self.poll_br()
        if not final:
            a.e(f'v_mov_b64 v[4:5], {vr(A, 2)}')

    def resid_track(self, goff, base, va, cond):
        a = self.a
        go, back = a.lab('res'), a.lab('resback')
        a.e(cond)
        a.e(f's_cbranch_scc1 {go}')
        a.e(f'{back}:')
        sub = Asm()
        sub.uid = a.uid + 1000 * (1 + len(a.tail))
        self.a = sub
        sub.e(f'{go}:')
        sub.e('s_nop 1')
        self.resid(goff, base, va, False)
        sub.e('s_mov_b64 exec, -1')
        sub.e(f's_branch {back}')
        self.a = a
        body = [i.text for i in sub.ins]
        cut = [k for k in range(0, len(body), 14)]
        for k in cut:
            part = body[k:k + 14]
            if k + 14 < len(body):
                nxt = a.lab('resp')
                part.append(f's_branch {nxt}')
                body[k + 14] = f'{nxt}:\n' + body[k + 14]
            a.ool('\n'.join(part))
        for t in sub.tail:
            a.ool(t)

    def qa_addr(self, T):
        a = self.a
        a.e(f'v_and_b32 v{T}, 4, v0')
        a.e(f'v_lshlrev_b32 v{T}, 3, v{T}')
        a.e(f'v_and_b32 v{T + 1}, 3, v0')
        a.e(f'v_lshl_or_b32 v{T}, v{T + 1}, 2, v{T}')
        a.e(f'v_lshrrev_b32 v{T + 1}, 5, v0')
        a.e(f'v_lshl_or_b32 v{T}, v{T + 1}, 4, v{T}')
        a.e(f'v_bfe_u32 v{T + 1}, v0, 4, 1')
        a.e(f'v_lshl_or_b32 v{T}, v{T + 1}, 1, v{T}')
        a.e(f's_lshl_b32 {t0}, {sV}, 6')
        a.e(f's_add_u32 {t0}, {t0}, {ZQ}')
        a.e(f'v_add_u32 v{T}, {t0}, v{T}')
        a.e(f'v_and_b32 v{T + 1}, 7, v0')
        a.e(f'v_lshlrev_b32 v{T + 1}, 3, v{T + 1}')
        self.oob((f'v{T + 1}', f'v{T + 1}'), (0xc0c0c0c0, 0xc0c0c0c0))
        self.oob((f'v{T + 3}', vL16), (0, 0xffff0000))
        self.sp_addr(f'v{T + 2}', ZQ)

    def red8(self, R):
        return [f'v_permlane32_swap_b32 v{R}, v{R + 2}',
                f'v_permlane32_swap_b32 v{R + 1}, v{R + 3}',
                f'v_pk_add_f32 {vr(R, 2)}, {vr(R, 2)}, {vr(R + 2, 2)}',
                f'v_permlane16_swap_b32 v{R}, v{R + 1}',
                f'v_add_f32 v{R}, v{R}, v{R + 1}',
                f'v_add_f32_dpp v{R}, v{R}, v{R} row_ror:8 {FULL}']

    def qa_loads(self, R, S, T):
        return [f'buffer_load_dwordx2 {vr(S, 2)}, v{T + 1}, {WSL}, {oSTgA} offen sc1',
                f'buffer_load_dwordx4 {vr(R, 4)}, v{T + 3}, {WSL}, {oQgA} offen sc1']

    def qa_finish(self, R, S, T, Q, C, br=False):
        a = self.a
        self.mix(self.stats(S, C), self.red8(R) + [f'v_and_b32 v{R + 1}, 0xffff0000, v1'])
        a.e(f'v_fma_f32 v{R}, -v{S + 1}, v{R + 1}, v{R}')
        a.e(f'v_mul_f32 v{R}, v{R}, v{S}')
        a.e(f'v_cvt_pk_bf16_f32 v{R}, v{R}, v{R}')
        a.e(f'ds_write_b16 v{T}, v{R}')
        if br:
            return
        self.bar(2, br)
        a.e(f'ds_read_b128 {vr(Q, 4)}, v{T + 2}')
        a.tag_ds('q0')
        a.e(f'ds_read_b128 {vr(Q + 4, 4)}, v{T + 2} offset:128')
        a.tag_ds('q1')

    def p_addr(self, r, t):
        a = self.a
        a.e(f'v_and_b32 {r}, 0x32, v0')
        a.e(f'v_lshlrev_b32 {r}, 3, {r}')
        a.e(f'v_and_b32 {t}, 8, v0')
        a.e(f'v_lshl_or_b32 {r}, {t}, 2, {r}')
        a.e(f'v_and_b32 {t}, 5, v0')
        a.e(f'v_lshl_or_b32 {r}, {t}, 1, {r}')
        a.e(f'v_add_u32 {r}, {sW8}, {r}')

    def qk_softmax(self, Q, D, S, T, fill=()):
        a = self.a
        for t in range(19):
            if t >= 3:
                d = D + 4 * ((t - 3) & 3)
                a.e(f'v_add_f32_dpp v{S + ((t - 3) & 3)}, v{d}, v{d + 1} {DPPI} row_mask:{1 << ((t - 3) >> 2)} bank_mask:0xf')
            if 4 <= t + 1 < 16:
                a.e(f'v_mov_b64 {vr(D + 4 * ((t + 1) & 3), 2)}, 0')
            if t < 16:
                d = vr(D + 4 * (t & 3), 4)
                if t == 0:
                    a.wait(ds='q0')
                a.e(f'v_smfmac_f32_16x16x64_bf16 {d}, {vr(Q, 4)}, a[{16 * t}:{16 * t + 7}], v1')
                if t == 0:
                    a.wait(ds='q1')
                elif t - 1 < len(fill):
                    for x in fill[t - 1]:
                        a.e(x)
                a.e(f'v_smfmac_f32_16x16x64_bf16 {d}, {vr(Q + 4, 4)}, a[{16 * t + 8}:{16 * t + 15}], v1')
        self.softmax_a(S, T, f'v{T + 1}')

    def softmax_a(self, S, T, pa, fill=()):
        a = self.a
        fill = list(fill)

        def f2():
            for _ in range(2):
                if fill:
                    a.e(fill.pop(0))
        m = f'v{T}'
        a.e(f'v_max3_f32 {m}, v{S}, v{S + 1}, v{S + 2}')
        a.e(f'v_max_f32 {m}, {m}, v{S + 3}')
        for c in ('row_ror:8', 'row_ror:4', 'row_ror:2', 'row_ror:1'):
            f2()
            a.e(f'v_max_f32_dpp {m}, {m}, {m} {c} {FULL}')
        f2()
        a.e(f'v_max_f32_dpp {m}, {m}, {m} row_bcast:15 row_mask:0xa bank_mask:0xf')
        f2()
        a.e(f'v_max_f32_dpp {m}, {m}, {m} row_bcast:31 row_mask:0xc bank_mask:0xf')
        a.e(f'v_readlane_b32 {sM}, {m}, 63')
        f2()
        assert not fill
        for r in range(4):
            a.e(f'v_subrev_f32 v{S + r}, {sM}, v{S + r}')
        for r in range(4):
            a.e(f'v_exp_f32 v{S + r}, v{S + r}')
        a.e(f'v_cvt_pk_bf16_f32 v{T + 2}, v{S}, v{S + 1}')
        a.e(f'v_cvt_pk_bf16_f32 v{T + 3}, v{S + 2}, v{S + 3}')
        a.e(f'ds_write_b16 {pa}, v{T + 2} offset:6144')
        a.e(f'ds_write_b16_d16_hi {pa}, v{T + 2} offset:{6144 + 4}')
        a.e(f'ds_write_b16 {pa}, v{T + 3} offset:{6144 + 64}')
        a.e(f'ds_write_b16_d16_hi {pa}, v{T + 3} offset:{6144 + 68}')

    def lsum(self, l, S):
        out = [f'v_pk_add_f32 {vr(S, 2)}, {vr(S, 2)}, {vr(S + 2, 2)}', f'v_add_f32 {l}, v{S}, v{S + 1}']
        for c in ('row_ror:8', 'row_ror:4', 'row_ror:2', 'row_ror:1'):
            out.append(f'v_add_f32_dpp {l}, {l}, {l} {c} {FULL}')
        out.append(f'v_add_f32_dpp {l}, {l}, {l} row_bcast:15 row_mask:0xa bank_mask:0xf')
        out.append(f'v_add_f32_dpp {l}, {l}, {l} row_bcast:31 row_mask:0xc bank_mask:0xf')
        return out

    def ml_write(self, T):
        return [f's_lshl_b32 {t0}, {sV}, 3', f's_add_u32 {t0}, {t0}, {ZML}', f'v_mov_b32 v{T + 2}, 0x30000', f'v_mov_b32 v{T}, {sM}',
                f'v_writelane_b32 v{T + 2}, {t0}, 63\nds_write_b64 v{T + 2}, {vr(T, 2)}']

    def ml_read(self, R, T):
        return [f'v_mov_b32 v{T}, {ZML}', f'ds_read_b128 {vr(R, 4)}, v{T}', f'ds_read_b128 {vr(R + 4, 4)}, v{T} offset:16']

    def ml_scale(self, R, T, F, LW):
        out = [f'v_max3_f32 v{T}, v{R}, v{R + 2}, v{R + 4}', f'v_max_f32 v{T}, v{T}, v{R + 6}']
        out += [f'v_sub_f32 v{R + 2 * w}, v{R + 2 * w}, v{T}' for w in range(4)]
        out += [f'v_sub_f32 v{F}, {sM}, v{T}']
        out += [f'v_exp_f32 v{R + 2 * w}, v{R + 2 * w}' for w in range(4)]
        out += [f'v_exp_f32 v{F}, v{F}', f'v_mul_f32 v{LW}, v{R}, v{R + 1}']
        out += [f'v_fmac_f32 v{LW}, v{R + 2 * w}, v{R + 2 * w + 1}' for w in range(1, 4)]
        out += [f'v_rcp_f32 v{R}, v{LW}', f'v_log_f32 v{LW}, v{LW}', f'v_mul_f32 v{F}, v{F}, v{R}', f'v_add_f32 v{LW}, v{LW}, v{T}']
        return out

    def combine_publish(self):
        a = self.a
        a.e('ds_write2st64_b32 v46, v44, v45 offset0:26 offset1:27')
        lwl = f'buffer_load_dword v16, v47, {WSL}, {oOALg} offen sc1'
        if self.o.get('lw_pos', 0) == 0:
            a.e(lwl)
        a.e(f'v_mov_b32 v10, {STG + 6656}')
        a.e('v_lshl_add_u32 v8, v0, 3, v10')
        a.e('v_and_b32 v10, 56, v0')
        a.e('v_lshlrev_b32 v10, 5, v10')
        a.e(f'v_and_or_b32 v10, {vL16}, 16, v10')
        a.e('v_and_b32 v11, 6, v0')
        a.e('v_lshl_or_b32 v10, v11, 1, v10')
        a.e(f's_cmp_lg_u32 {sV}, 0')
        a.e('s_waitcnt lgkmcnt(0)')
        a.e('s_barrier')
        l = a.lab('notw')
        if self.o.get('lw_pos', 0) == 0:
            a.e(f's_cbranch_scc1 {l}')
            a.begin_skip()
        for w in range(4):
            a.e(f'ds_read_b64 {vr(20 + 2 * w, 2)}, v8 offset:{w * 8192}')
            a.tag_ds(f'o{w}')
        if self.o.get('lw_pos', 0) == 1:
            a.e(lwl)
            a.e(f's_cbranch_scc1 {l}')
            a.begin_skip()
        a.wait(ds='o1')
        a.e('v_pk_add_f32 v[20:21], v[20:21], v[22:23]')
        a.wait(ds='o3')
        a.e('v_pk_add_f32 v[24:25], v[24:25], v[26:27]')
        a.e('v_pk_add_f32 v[20:21], v[20:21], v[24:25]')
        a.e('v_cvt_pk_bf16_f32 v20, v20, v21')
        self.end_only(l)
        self.lstore([f'buffer_store_dword v20, v10, {WSL}, {oOApub} offen'])
        a.e('s_waitcnt lgkmcnt(0)')

    def w8(self, lw, t):
        return [f'v_max_f32_dpp {t}, {lw}, {lw} row_ror:4 {FULL}',
                f'v_max_f32_dpp {t}, {t}, {t} row_ror:2 {FULL}',
                f'v_max_f32_dpp {t}, {t}, {t} row_ror:1 {FULL}',
                f'v_sub_f32 {lw}, {lw}, {t}',
                f'v_exp_f32 {lw}, {lw}',
                f'v_add_f32_dpp {t}, {lw}, {lw} row_ror:4 {FULL}',
                f'v_add_f32_dpp {t}, {t}, {t} row_ror:2 {FULL}',
                f'v_add_f32_dpp {t}, {t}, {t} row_ror:1 {FULL}',
                f'v_rcp_f32 {t}, {t}']

    def rot8(self, dst, sh):
        a = self.a
        a.e(f'v_lshrrev_b32 {dst}, 4, v0')
        a.e(f'v_lshl_add_u32 {dst}, {dst}, 1, v0')
        a.e(f'v_and_b32 {dst}, 7, {dst}')
        a.e(f'v_lshlrev_b32 {dst}, {sh}, {dst}')

    def weigh2(self, skip=0, lw='v16', chk=False):
        a = self.a
        w = self.w8(lw, 'v17')
        for x in w[skip:6]:
            a.e(x)
        a.e('v_add_f32 v20, v20, v21')
        a.e('v_add_f32 v22, v22, v23')
        a.e(w[6])
        a.e('v_add_f32 v24, v24, v25')
        a.e('v_add_f32 v26, v26, v27')
        a.e(w[7])
        a.e(f'v_mul_f32_dpp v20, {lw}, v20 row_newbcast:0 {FULL}')
        a.e(f'v_mul_f32_dpp v24, {lw}, v24 row_newbcast:0 {FULL}')
        a.e(f'v_fmac_f32_dpp v20, {lw}, v22 row_newbcast:1 {FULL}')
        a.e(f'v_fmac_f32_dpp v24, {lw}, v26 row_newbcast:1 {FULL}')
        a.e(w[8])
        if chk:
            a.e('v_cmp_u_f32 vcc, v20, v20')
        a.e('v_permlane32_swap_b32 v20, v24')
        a.e('v_add_f32 v20, v20, v24')
        a.e('v_mul_f32 v20, v20, v17')

    def w8n(self, lw, t, W):
        return self.w8(lw, t) + [f'v_mul_f32_dpp v{W}, {lw}, {t} row_newbcast:0 {FULL}', f'v_mul_f32_dpp v{W + 1}, {lw}, {t} row_newbcast:1 {FULL}']

    def weigh2n(self, W, dup=None):
        a = self.a
        w = vr(W, 2)
        a.e(f'v_pk_mul_f32 v[20:21], v[20:21], {w} op_sel_hi:[1,0]')
        a.e(f'v_pk_fma_f32 v[20:21], v[22:23], {w}, v[20:21] op_sel:[0,1,0] op_sel_hi:[1,1,1]')
        a.e(f'v_pk_mul_f32 v[24:25], v[24:25], {w} op_sel_hi:[1,0]')
        a.e('v_add_f32 v20, v20, v21')
        a.e(f'v_pk_fma_f32 v[24:25], v[26:27], {w}, v[24:25] op_sel:[0,1,0] op_sel_hi:[1,1,1]')
        a.e('v_add_f32 v24, v24, v25')
        a.e('v_cmp_u_f32 vcc, v20, v20')
        a.e('v_permlane32_swap_b32 v20, v24')
        if dup:
            a.e(f'v_add_f32 {dup}, v20, v24')
        a.e('v_add_f32 v20, v20, v24')

    def outproj(self, isa):
        a = self.a
        if not isa:
            a.e(f's_add_u32 {t4}, {oO}, {L_OB - L_OA}')
        so = oO if isa else t4
        ld = [f'buffer_load_dwordx4 v[8:11], {vL16}, {WSL}, {so} offen sc1',
              f'buffer_load_dwordx4 v[12:15], {vL16}, {WSL}, {so} offen offset:1024 sc1']
        a.e('v_lshrrev_b32 v28, 4, v0')
        a.e('v_bfe_u32 v29, v0, 2, 2')
        a.e('v_lshl_add_u32 v28, v28, 3, v29')
        a.e('v_mul_u32_u24 v28, 48, v28')
        a.e('v_and_b32 v29, 3, v0')
        a.e('v_lshl_add_u32 v28, v29, 3, v28')
        a.e(f'v_add_u32 v28, {sW8}, v28')
        tr = []
        for blk in range(2):
            for tile in range(2):
                for hh in range(2):
                    for half in range(2):
                        off = (64 * blk + 32 * hh + 4 * half) * 48 + 32 * tile
                        tr.append(f'ds_read_b64_tr_b16 {vr(32 + 16 * tile + 8 * blk + 4 * hh + 2 * half, 2)}, v28 offset:{off}')
        a.e(f's_lshl_b32 {t2}, {sV}, 3')
        a.e(f's_add_u32 {t2}, {t2}, {ZO}')
        pre = ['v_and_b32 v18, 15, v0', 'v_lshrrev_b32 v19, 5, v0', 'v_lshl_add_u32 v18, v19, 4, v18', 'v_bfe_u32 v19, v0, 4, 1',
               'v_lshlrev_b32 v19, 2, v19', 'v_lshl_add_u32 v18, v18, 5, v19', f'v_add_u32 v18, {t2}, v18', f'v_mov_b32 v19, {ZO}',
               'v_and_b32 v29, 15, v0', 'v_lshl_add_u32 v19, v29, 6, v19', 'v_lshlrev_b32 v29, 2, v0']
        n1 = self.o.get('tr_pre', 8)
        if isa:
            a.e('s_waitcnt vmcnt(1)')
            a.vmq = []
        a.wait(vm='wo')
        for x in tr[:n1]:
            a.e(x)
        if isa:
            chk, again = a.lab('chk'), a.lab('again')
            a.e(f'{chk}:')
            a.e('v_cmp_eq_u32 vcc, -1, v16')
            a.e('v_mov_b32 v22, v16')
            self.retry_with([f'buffer_load_dword v16, v47, {WSL}, {oOALg} offen sc1'], 's_waitcnt vmcnt(1)', chk)
        self.sleep('h1' if isa else 'hd')
        for x in ld:
            a.e(x)
        if isa:
            pre = [x for p in zip(self.w8n('v22', 'v17', 30), pre) for x in p]
        self.mix(tr[n1:], pre)
        a.e(f's_add_u32 {t2}, {oYpub}, {G_YA if isa else G_YB}')
        if self.o.get('wq_hoist', 1):
            self.wq_prep('v17', 'v28')
        top = a.lab('poll')
        a.e(f'{top}:')
        for x in ld:
            self.H('o0', 0, 20)
            a.e(x)
        for r in range(26, 18, -2):
            a.e(f'v_mov_b64 {vr(r, 2)}, 0')
        self.K(0, 'po', True)
        a.e(f's_waitcnt vmcnt({len(ld)}) lgkmcnt(0)')
        a.e('v_cmp_u_f32 vcc, v8, v12')
        a.e('v_smfmac_f32_16x16x64_bf16 v[20:23], v[8:11], v[32:39], v1')
        a.e('v_smfmac_f32_16x16x64_bf16 v[20:23], v[12:15], v[40:47], v1')
        self.retry_to(top)
        a.e('v_smfmac_f32_16x16x64_bf16 v[24:27], v[8:11], v[48:55], v1')
        a.e('v_smfmac_f32_16x16x64_bf16 v[24:27], v[12:15], v[56:63], v1')
        self.stamp('ogot')
        if isa:
            self.weigh2n(30)
        else:
            a.e('v_pk_add_f32 v[20:21], v[20:21], v[22:23]')
            a.e('v_add_f32 v20, v20, v21')
            a.e('v_cmp_u_f32 vcc, v20, v20')
            a.e('v_pk_add_f32 v[24:25], v[24:25], v[26:27]')
            a.e('v_add_f32 v24, v24, v25')
            a.e('v_permlane32_swap_b32 v20, v24')
            a.e('v_add_f32 v20, v20, v24')
        a.e('ds_write_b32 v18, v20')
        self.H('o1', 0, 24)
        self.retry_to(top)
        a.e(f's_bitcmp0_b32 {sRES}, 0')
        self.H('o2', 0, 24)
        self.bar(1, True)
        l = a.lab('noy')
        a.e(f's_cbranch_scc1 {l}')
        a.begin_skip()
        for i in range(4):
            a.e(f'ds_read_b128 {vr(32 + 4 * i, 4)}, v19 offset:{16 * i}')
            a.tag_ds(f'z{i}')
            if i == 1:
                self.H('o3', 0, 24)
        a.e('s_mov_b32 exec_hi, 0')
        self.K(2)
        self.Wm()
        a.wait(ds='z1')
        a.e('v_pk_add_f32 v[32:33], v[32:33], v[34:35]')
        a.e('v_pk_add_f32 v[36:37], v[36:37], v[38:39]')
        a.e('v_pk_add_f32 v[32:33], v[32:33], v[36:37]')
        a.e('v_add_f32 v32, v32, v33')
        a.wait(ds='z3')
        a.e('v_pk_add_f32 v[40:41], v[40:41], v[42:43]')
        a.e('v_pk_add_f32 v[44:45], v[44:45], v[46:47]')
        a.e('v_pk_add_f32 v[40:41], v[40:41], v[44:45]')
        a.e('v_add_f32 v33, v40, v41')
        a.e('v_pk_add_f32 v[32:33], v[32:33], v[4:5]')
        a.e('v_cvt_pk_bf16_f32 v34, v32, v33')
        a.e(f'buffer_store_dword v34, v29, {WSG}, {t2} offen sc1')
        a.e('s_mov_b32 exec_hi, -1')
        a.end_skip()
        a.e(f'{l}:')
        self.stamp('ypub')

    def qabs(self):
        a = self.a
        a.e('v_and_b32 v36, 7, v0')
        a.e('v_lshlrev_b32 v37, 3, v36')
        self.oob(('v37', 'v37'), (0xc0c0c0c0, 0xc0c0c0c0))
        self.oob(('v33', vL16), (0xf000f000, 0xf000f000))
        a.e(f's_sub_u32 {t0}, {sW8}, {sKV}')
        a.e(f'v_add_u32 v56, {t0}, {vA}')
        for ks in range(1, 4):
            a.e(f'v_xor_b32 v{56 + ks}, {ks << 6}, v56')
        a.e('v_and_b32 v38, 8, v0')
        a.e('v_lshlrev_b32 v38, 3, v38')
        a.e('v_lshl_or_b32 v38, v36, 1, v38')
        a.e(f's_lshl_b32 {t0}, {sV}, 4')
        a.e(f's_add_u32 {t0}, {t0}, {ZQ}')
        a.e(f'v_add_u32 v38, {t0}, v38')
        a.e(f'v_add_u32 v39, {ZQ}, {vL16}')
        a.e(self.stats_const(32))
        if self.o.get('qflag', 1):
            chk, again = a.lab('chk'), a.lab('again')
            a.wait(vm='fl')
            a.e(f'{chk}:')
            a.e('v_cmp_eq_u32 vcc, -1, v10')
            self.retry_to(again)
            a.ool(f'{again}:\nbuffer_load_dword v10, v9, {WSL}, {oOALg} offen offset:{L_FL - L_OAL} sc1\ns_waitcnt vmcnt(1)\ns_branch {chk}')
        self.sleep('hqb')
        top = a.lab('poll')
        a.e(f'{top}:')
        a.e(f'buffer_load_dwordx2 v[34:35], v37, {WSL}, {oSTgB} offen sc1')
        a.tag_vm('st')
        for i in (2, 3, 0, 1):
            a.e(f'buffer_load_dwordx4 {vr(8 + 4 * i, 4)}, v33, {WSL}, {oQgB} offen offset:{i * 1024} sc1')
            a.tag_vm(f'q{i}')
        a.e('s_waitcnt vmcnt(5)')
        for ks in range(4):
            a.e(f'ds_read_b128 {vr(40 + 4 * ks, 4)}, v{56 + ks}')
            a.e(f'v_mov_b64 {vr(24 + 2 * ks, 2)}, 0')
        self.H('q1', 0, 60)
        a.wait(vm='st')
        a.e('v_cmp_u_f32 vcc, v34, v35')
        st = self.stats(34, 32)
        for x in st[:4]:
            a.e(x)
        self.retry_to(top)
        for x in st[4:6]:
            a.e(x)
        a.e('s_waitcnt lgkmcnt(0)')
        a.wait(vm='q2')
        a.e('v_smfmac_f32_16x16x64_bf16 v[28:31], v[16:19], v[40:47], v1')
        for x in st[6:]:
            a.e(x)
        a.wait(vm='q3')
        a.e('v_smfmac_f32_16x16x64_bf16 v[28:31], v[20:23], v[48:55], v1')
        self.H('q2', 0, 60)
        a.wait(vm='q0')
        a.e('v_smfmac_f32_16x16x64_bf16 v[24:27], v[8:11], v[40:47], v1')
        self.K(1, 'qb3', True)
        a.e('v_pk_add_f32 v[28:29], v[28:29], v[30:31]')
        a.e('v_add_f32 v28, v28, v29')
        a.e('v_mul_f32 v28, v28, v35')
        a.e(f's_cmp_lg_u32 {sV}, 0')
        self.K(0, 'qb4', True)
        a.wait(vm='q1')
        a.e('v_smfmac_f32_16x16x64_bf16 v[24:27], v[12:15], v[48:55], v1')
        self.stamp('qgotB', 2)
        a.e('v_pk_add_f32 v[24:25], v[24:25], v[26:27]')
        a.e('v_sub_f32 v24, v24, v28')
        a.e('v_add_f32 v24, v24, v25')
        a.e('v_mul_f32 v25, v24, v34')
        a.e('v_mul_f32 v24, v24, v34')
        a.e('v_cmp_u_f32 vcc, v24, v24')
        a.e('v_permlane32_swap_b32 v24, v25')
        a.e('v_add_f32 v26, v24, v25')
        a.e('v_add_f32 v24, v24, v25')
        a.e('v_permlane16_swap_b32 v24, v26')
        a.e('v_add_f32 v24, v24, v26')
        a.e('v_cvt_pk_bf16_f32 v24, v24, v24')
        a.e('ds_write_b16 v38, v24')
        self.retry_to(top)
        a.e('s_waitcnt lgkmcnt(0)')
        a.e('s_barrier')
        l = a.lab('notw')
        a.e(f's_cbranch_scc1 {l}')
        a.begin_skip()
        a.e('s_mov_b64 exec, 0xff')
        a.e('ds_read_b128 v[24:27], v39')
        a.e('s_waitcnt lgkmcnt(0)')
        a.e(f'buffer_store_dwordx4 v[24:27], {vL16}, {WSG}, {oQApub} offen sc1')
        a.e('s_mov_b64 exec, -1')
        self.end_only(l)
        self.stamp('qapub')
        self.touches('w3', 'v8', 'v9')
        self.resid_track(G_YA, 10, 'v8', f's_cmp_eq_u32 {sRES}, 3')

    def attn_b(self):
        a = self.a
        a.e(f's_mul_i32 {t0}, {sV}, {4096 - 16384}')
        a.e(f's_add_u32 {t0}, {t0}, {CKV}')
        a.e(f'v_add_u32 v56, {t0}, {vA}')
        a.e('v_xor_b32 v57, 64, v56')
        ORD = [(r, ks) for kp in range(2) for r in range(4) for ks in (2 * kp, 2 * kp + 1)]
        ga = ['v_and_b32 v58, 12, v0', 'v_lshlrev_b32 v58, 4, v58', 'v_and_or_b32 v58, v0, 48, v58', 'v_lshlrev_b32 v58, 2, v58',
              f'v_and_or_b32 v58, {vL16}, 48, v58', 'v_lshlrev_b32 v8, 7, v0', 'v_mov_b32 v9, 0']
        for x in ga:
            a.e(x)
        a.e(f'v_add_u32 v59, {STG}, {vL16}')
        a.e('s_barrier')

        nl = self.o.get('ckv_late', 0)

        def late_ckv():
            b = self.a
            b.e('s_mov_b64 s[80:81], s[0:1]')
            b.e('s_mov_b32 s82, 0x10000')
            b.e('s_mov_b32 s83, 0x20000')
            b.e('v_lshrrev_b32 v19, 4, v0')
            b.e('v_lshlrev_b32 v18, 5, v19')
            b.e(f'v_xor_b32 v18, v18, {vL16}')
            b.e('v_and_b32 v18, 0xf0, v18')
            b.e('v_lshl_or_b32 v18, v19, 10, v18')
            for q in range(4):
                b.e(f'v_xor_b32 v19, {TBL[q] << 4}, v18')
                b.e(f's_not_b64 exec, {MY}' if q in (0, 3) else f's_mov_b64 exec, {MY}')
                for t in range(4 - nl, 4):
                    b.e(f's_add_u32 m0, {sKV}, {CKV + t * 4096 + q * 1024}')
                    b.e(f's_mov_b32 {t1}, {(16 * t + 4 * q) * 1024}')
                    b.e(f'buffer_load_dwordx4 v19, s[80:83], {t1} offen {self.o.get("pol_cl", "nt")} lds')
                b.e('s_mov_b64 exec, -1')
        h2 = self.o.get('clr_h2') is not None

        def second():
            if h2:
                self.lstore(self.clear_c1(12, 'v16', 'v17'))
            self.sleep('ha1')
        if nl or h2:
            self.ool_if(f's_cmp_eq_u32 {sIT}, 0', late_ckv, second)
        cc = [] if self.o.get('xclr') or h2 else self.clear_c1(12, 'v16', 'v17')
        if self.o.get('clr0'):
            def thru():
                for x in cc:
                    self.a.e(x + ' ' + self.o['clr0'] if x.startswith('buffer') else x)
            self.ool_if(f's_cmp_eq_u32 {sIT}, 0', thru, lambda: self.lstore(cc))
        else:
            self.lstore(cc)
        self.sleep('ha')
        top = a.lab('poll')
        a.e(f'{top}:')
        cm = self.o.get('canmask', 0xffffffff)
        ld = [f's_mov_b32 m0, {sW8}', f's_mov_b32 exec_lo, {cm}\ns_mov_b32 exec_hi, 0', f'buffer_load_dword v9, v8, {WSG}, {oQAg} offen sc1', 's_mov_b64 exec, -1']
        for ks in range(4):
            ld.append(f'buffer_load_dwordx4 v58, {WSG}, {oQAg} offen offset:{ks * 1024} sc1 lds')
        for x in ld:
            a.e(x)
        for k in range(8):
            r, ks = ORD[k]
            a.e(f'ds_read_b128 {vr(24 + 4 * k, 4)}, v{56 + (ks & 1)} offset:{r * 16384}')
        a.e('v_xor_b32 v56, 128, v56')
        a.e('v_xor_b32 v57, 128, v57')
        single = self.o.get('single')
        if single:
            a.e('v_lshrrev_b32 v10, 5, v0')
            a.e('v_bfe_u32 v11, v0, 2, 3')
            a.e('v_lshl_add_u32 v10, v10, 4, v11')
            a.e('v_lshlrev_b32 v10, 13, v10')
            a.e(f'v_and_or_b32 v10, {vL16}, 48, v10')
        else:
            self.k64_addr('v10', None)
        l4 = self.o.get('l4_wo', 0)
        if l4 == 2:
            self.wo_prep(12, 'v15')
        chk, again = a.lab('chk'), a.lab('again')
        a.e(f'{chk}:')
        a.e('s_waitcnt vmcnt(4)')
        a.e('v_cmp_eq_u32 vcc, -1, v9')
        self.retry_with(ld, 's_nop 0', chk)
        pol = self.o.get('pol_wuv', '')
        for i in range(1, 4):
            a.e(f's_add_u32 {[t1, t2, t3][i - 1]}, {oWUV}, {i * ((32 if single else 16) * 8192 - 1024)}')
        a.e('v_mov_b32 v58, v10')
        half = self.o.get('qa_half', 1)
        if l4 == 2:
            a.e(f's_cmp_eq_u32 {sIT}, 1')
            a.e(f's_cselect_b32 {t0}, {sKV}, 0x30000')
            a.e(f's_cselect_b32 {t4}, {oWO}, {OOB}')
            a.e(f's_cselect_b32 {t5}, {t5}, {OOB}')
            for x in self.wo_lines(BWO, 12, '', t0):
                a.e(x.replace(f', {oWO} ', f', {t4} '))
        ex = 6 if l4 == 2 else 0
        a.e(f's_waitcnt vmcnt({(2 if half else 0) + ex}) lgkmcnt(0)')
        a.e('s_barrier')
        self.stamp('qagot')

        def qread(k):
            r, ks = ORD[k]
            a.e(f'ds_read_b128 {vr(8 + 4 * (k & 3), 4)}, v59 offset:{r * 8192 + ks * 1024}')
            a.tag_ds(f'q{k}')
        for k in range(4):
            qread(k)
        a.e(f's_add_u32 m0, {sW8}, 4096')
        SLOT = [16, 40, 48]
        wpos = self.o.get('wuv_pos', [0, 2, 4, 6])
        wdma = [f'buffer_load_dwordx4 v58, {WUV}, {[oWUV, t1, t2, t3][i]} offen offset:{i * 1024} {pol} lds' for i in range(4)]

        def tread(e, ad='v57'):
            l = [f'v_xor_b32 {ad}, {CKV | (e << 5)}, {vT}']
            for t in range(4):
                l.append(f'ds_read_b64_tr_b16 {vr(SLOT[e % 3] + 2 * t, 2)}, {ad} offset:{t * 4096}')
            return l
        for k in range(16):
            a.wait(ds=f'q{k}')
            a.e(f'v_mfma_f32_16x16x32_bf16 v[60:63], {vr(24 + 4 * (k & 7), 4)}, {vr(8 + 4 * (k & 3), 4)}, {"v[60:63]" if k else "0"}')
            if k < 8:
                r, ks = ORD[k + 8]
                a.e(f'ds_read_b128 {vr(24 + 4 * k, 4)}, v{56 + (ks & 1)} offset:{r * 16384}')
            if k == 4 and half:
                a.e(f's_waitcnt vmcnt({sum(p < 4 for p in wpos) + ex})')
                a.e('s_barrier')
            if k + 4 < 16:
                qread(k + 4)
            for i, p in enumerate(wpos):
                if p == k:
                    a.e(wdma[i])
            if k == 10:
                a.e('s_barrier')
            if k == 8:
                a.e(f'v_and_b32 v27, 0xf0, {vL16}')
                a.e(f's_lshl_b32 {t0}, {sV}, 2')
            if k == 9:
                a.e(f'v_add_u32 v27, {STG}, v27')
            if k == 11:
                a.e(f'v_add_u32 v24, {t0}, v27')
            if k == 12:
                a.e('v_xor_b32 v56, 128, v56')
                a.e(f'v_lshl_add_u32 v25, v0, 3, {sW8}')
            if k == 13:
                t1_ = tread(1)
                a.e(t1_[0]); a.e(t1_[1])
            if k == 14:
                a.e(t1_[2]); a.e(t1_[3])
        a.e(t1_[4])
        t0_, t2_ = tread(0), tread(2)
        a.e(f'v_mov_b32 v26, {STG}')
        a.e('v_lshl_add_u32 v26, v0, 3, v26')
        for r in range(36, 40):
            a.e(f'v_mov_b32 v{r}, 0x3f803f80')
        a.e('v_max3_f32 v28, v60, v61, v62')
        a.e('v_max_f32 v29, v28, v63')
        a.e('v_max_f32 v28, v28, v63')
        a.e(t0_[0]); a.e(t0_[1])
        a.e('v_permlane32_swap_b32 v28, v29')
        a.e('v_max_f32 v30, v28, v29')
        a.e('v_max_f32 v28, v28, v29')
        a.e(t0_[2]); a.e(t0_[3])
        a.e('v_permlane16_swap_b32 v28, v30')
        a.e('v_max_f32 v28, v28, v30')
        a.e('ds_write_b32 v24, v28')
        a.tag_ds('mw')
        a.e(t0_[4])
        a.e(t2_[0])
        self.H('b0', 1, 32)
        a.e(t2_[1]); a.e(t2_[2]); a.e(t2_[3]); a.e(t2_[4])
        self.H('b1', 1, 32)
        a.wait(ds='mw')
        a.e('s_barrier')
        a.e('ds_read_b128 v[28:31], v27')
        a.tag_ds('mr')
        self.stamp('sbar', 2)
        for i, p in enumerate(wpos):
            if p == 16:
                a.e(f's_add_u32 m0, {sW8}, 4096')
                a.e(wdma[i])
        if self.o.get('c1t') == 3:
            self.c1_fill('v58')
        st_ = 131072 if single else 4096
        a.e(f's_add_u32 {t1}, {oC1pub}, {st_}')
        a.e(f's_add_u32 {t2}, {oC1pub}, {2 * st_}')
        a.e(f's_add_u32 {t3}, {oC1pub}, {3 * st_}')
        self.H('b2', 1, 32)
        a.wait(ds='mr')
        a.e('v_max3_f32 v28, v28, v29, v30')
        a.e('v_max_f32 v28, v28, v31')
        a.e('v_pk_add_f32 v[60:61], v[60:61], v[28:29] op_sel_hi:[1,0] neg_lo:[0,1] neg_hi:[0,1]')
        a.e('v_pk_add_f32 v[62:63], v[62:63], v[28:29] op_sel_hi:[1,0] neg_lo:[0,1] neg_hi:[0,1]')
        for r in range(60, 64):
            a.e(f'v_exp_f32 v{r}, v{r}')
        a.e('v_cvt_pk_bf16_f32 v30, v60, v61')
        a.e('v_cvt_pk_bf16_f32 v31, v62, v63')
        a.e('ds_write_b64 v25, v[30:31] offset:1024')
        if single:
            for x in self.c_addr('v61')[:4]:
                a.e(x)
        else:
            a.e('v_lshrrev_b32 v61, 4, v0')
            a.e(f'v_and_b32 v60, 0xf0, {vL16}')
            a.e('v_lshl_or_b32 v61, v61, 16, v60')
        a.e('v_mov_b32 v62, v28')
        a.e('v_xor_b32 v57, 64, v56')
        if not single:
            a.e('v_and_b32 v27, 12, v0')
            a.e('v_lshlrev_b32 v27, 4, v27')
        if self.o.get('c1t') == 2:
            self.c1_fill('v58')
        self.H('b3', 1, 32)
        self.lcmp()
        a.e('s_waitcnt lgkmcnt(0)')
        a.e('s_barrier')
        a.e('ds_read2st64_b64 v[8:11], v26 offset0:2 offset1:18')
        a.tag_ds('p0')
        a.e('ds_read2st64_b64 v[12:15], v26 offset0:34 offset1:50')
        a.tag_ds('p1')
        self.stamp('smax', 2)
        if single:
            for x in self.c_addr('v61')[4:]:
                a.e(x)
            a.e('v_lshlrev_b32 v27, 3, v0')
        else:
            a.e('v_and_or_b32 v27, v0, 3, v27')
            a.e('v_lshlrev_b32 v27, 3, v27')
        self.K(2, 'b4', True)
        ACC = [28, 56, 36, 32]
        a.wait(ds='p0')
        a.e('v_cmp_u_f32 vcc, v8, v8')
        a.e(f'v_mfma_f32_16x16x32_bf16 v[28:31], v[8:11], {vr(SLOT[0], 4)}, 0')
        a.e('v_mfma_f32_16x16x32_bf16 v[32:35], v[36:39], v[8:11], 0')
        again = a.lab('again')
        self.retry_to(again)
        a.ool(f'{again}:\n' + '\n'.join(['s_waitcnt lgkmcnt(0)'] + ga) + f'\ns_barrier\ns_branch {top}')
        a.wait(ds='p1')
        a.e('v_mfma_f32_16x16x32_bf16 v[32:35], v[36:39], v[12:15], v[32:35]')
        so = [oC1pub, t1, t2, t3]
        if single:
            return self.pv_single(SLOT, tread, so)
        ml = ['s_mov_b64 exec, 0xffff', f'buffer_store_dwordx2 v[62:63], v27, {WSL}, {oMLpub} offen', 's_mov_b64 exec, -1']
        mlat = self.o.get('ml_at', 2)

        def pack(q):
            d0, d1 = ACC[(2 * q) & 3], ACC[(2 * q + 1) & 3]
            return [f'v_cvt_pk_bf16_f32 v{24 + r}, v{d0 + r}, v{d1 + r}' for r in range(4)]

        def put(q):
            self.lstore([f'buffer_store_dwordx4 v[24:27], v61, {WS}, {so[q]} offen'] + (ml if q == mlat else []))
        F = {e: [[], []] for e in range(8)}
        early = self.o.get('ml_early', 1)
        mlat = -1
        F[1][1] = ['v_mov_b32 v63, v32']
        F[self.o.get('ml_e', 2)][1] += ['ML']
        F[3][0] = pack(0)[:2]
        F[3][1] = pack(0)[2:]
        F[5][0] = pack(1)[:2]
        F[5][1] = pack(1)[2:]
        F[6][0] = ['v_and_b32 v60, 3, v0', 'v_lshlrev_b32 v60, 6, v60']
        F[6][1] = ['v_and_or_b32 v60, v0, 60, v60', 'v_lshlrev_b32 v60, 1, v60']
        F[7][0] = pack(2)
        for e in range(8):
            a.wait(ds=f't{e}')
            d = vr(ACC[e & 3], 4)
            s = SLOT[e % 3]
            nx = tread(e + 3, 'v60') if e + 3 < 8 else []
            if nx:
                a.e(nx[0])
            if e:
                a.e(f'v_mfma_f32_16x16x32_bf16 {d}, v[8:11], {vr(s, 4)}, 0')
            if e in (4, 6):
                put((e - 4) // 2)
            for x in nx[1:3]:
                a.e(x)
            for x in F[e][0]:
                a.e(x)
            a.e(f'v_mfma_f32_16x16x32_bf16 {d}, v[12:15], {vr(s + 4, 4)}, {d}')
            for x in nx[3:]:
                a.e(x)
            if nx:
                a.tag_ds(f't{e + 3}')
            for x in F[e][1]:
                if x == 'ML':
                    self.lstore(ml)
                else:
                    a.e(x)
            if e == 7:
                put(2)
        if early == 1:
            a.e(f'buffer_load_dwordx2 v[22:23], v60, {WSL}, {oMLg} offen sc1')
            a.tag_vm('ml0')
        for x in pack(3):
            a.e(x)
        put(3)
        if early == 2:
            a.e(f'buffer_load_dwordx2 v[22:23], v60, {WSL}, {oMLg} offen sc1')
            a.tag_vm('ml0')
        if self.o.get('c1t') == 1:
            self.c1_fill('v16')
        self.stamp('c1pub')

    def pv_single(self, SLOT, tread, so):
        a = self.a
        AC = [28, 56, 36, 32, 56, 24, 32, 56]
        O = [48, 52, 16, 20]
        ml = ['s_mov_b64 exec, 0xffff', f'buffer_store_dwordx2 v[62:63], v27, {WSG}, {oMLpub} offen sc1', 's_mov_b64 exec, -1']
        F = {e: [[], []] for e in range(8)}
        inpl = lambda q: [f'v_cvt_pk_bf16_f32 v{AC[2 * q] + r}, v{AC[2 * q] + r}, v{AC[2 * q + 1] + r}' for r in range(4)]
        fin = lambda q: [f'v_cvt_pk_bf16_f32 v{O[r] + q}, v{AC[2 * q] + r}, v{AC[2 * q + 1] + r}' for r in range(4)]
        mv = lambda q, rs: [f'v_mov_b32 v{O[r] + q}, v{AC[2 * q] + r}' for r in rs]
        F[1][1] = ['v_mov_b32 v63, v32']
        F[self.o.get('ml_e', 2)][1] += ml
        F[3][0] = inpl(0)[:2]
        F[3][1] = inpl(0)[2:]
        F[5][0] = inpl(1)[:2]
        F[5][1] = inpl(1)[2:]
        F[6][0] = mv(0, (0, 1)) + mv(1, (0, 1))
        F[6][1] = mv(0, (2, 3)) + fin(2)
        F[7][0] = mv(1, (2, 3))
        for e in range(8):
            a.wait(ds=f't{e}')
            d = vr(AC[e], 4)
            s = SLOT[e % 3]
            nx = tread(e + 3, 'v60') if e + 3 < 8 else []
            if nx:
                a.e(nx[0])
            if e:
                a.e(f'v_mfma_f32_16x16x32_bf16 {d}, v[8:11], {vr(s, 4)}, 0')
            for x in nx[1:3]:
                a.e(x)
            for x in F[e][0]:
                a.e(x)
            a.e(f'v_mfma_f32_16x16x32_bf16 {d}, v[12:15], {vr(s + 4, 4)}, {d}')
            for x in nx[3:]:
                a.e(x)
            if nx:
                a.tag_ds(f't{e + 3}')
            for x in F[e][1]:
                a.e(x)
        for x in fin(3):
            a.e(x)
        for r in range(4):
            a.e(f'buffer_store_dwordx4 {vr(O[r], 4)}, v61, {WS}, {so[r]} offen sc1')
        self.stamp('c1pub')

    def red_single(self):
        a = self.a
        o = self.o
        a.e('v_and_b32 v44, 3, v0')
        a.e('v_lshrrev_b32 v45, 3, v0')
        a.e('v_lshl_add_u32 v44, v44, 3, v45')
        a.e('v_lshlrev_b32 v44, 7, v44')
        if o.get('cswz', 1):
            a.e(f'v_xor_b32 v44, {oC2Lg}, v44')
        a.e('v_and_b32 v40, 12, v0')
        a.e('v_lshlrev_b32 v40, 4, v40')
        a.e('v_lshrrev_b32 v45, 1, v0')
        a.e('v_and_or_b32 v40, v45, 24, v40')
        a.e('v_and_or_b32 v40, v0, 3, v40')
        a.e(f'v_lshl_add_u32 v40, v40, 3, {sW8}')
        a.e('s_waitcnt vmcnt(5)')
        for tau in range(2):
            for gam in range(2):
                for tt in range(2):
                    a.e(f'ds_read_b64_tr_b16 {vr(48 + 8 * tau + 4 * gam + 2 * tt, 2)}, v40 offset:{4096 + (32 * tt + 4 * gam) * 64 + 32 * tau}')
        self.wo_prep(41, 'v39')
        a.e('v_and_b32 v45, 6, v0')
        a.e('v_lshlrev_b32 v45, 4, v45')
        a.e('v_and_or_b32 v45, v0, 16, v45')
        a.e('v_and_b32 v46, 1, v0')
        a.e('v_lshl_or_b32 v45, v46, 3, v45')
        a.e('v_lshrrev_b32 v46, 5, v0')
        a.e('v_lshl_or_b32 v45, v46, 2, v45')
        self.sums(t2, [(sV, 128)], ZQ)
        a.e(f'v_add_u32 v45, {t2}, v45')
        self.sp_addr('v46', ZQ)
        a.e('v_and_b32 v47, 6, v0')
        a.e('v_lshl_add_u32 v46, v47, 6, v46')
        self.pos_bytes('v47', None)
        a.e('v_and_b32 v39, 16, v0')
        a.e('v_lshl_or_b32 v47, v39, 4, v47')
        self.oob(('v47', 'v47'), (0xaaaaaaaa, 0xffffffff))
        a.e('s_waitcnt lgkmcnt(0)')
        a.e('s_barrier')

        def clear2():
            b = self.a
            for r in range(8, 12):
                b.e(f'v_mov_b32 v{r}, -1')
            self.sums(t2, [(sJ, 4 * 448), (sV, 448)], L_IT)
            b.e('s_mov_b64 exec, 0xfffffff')
            self.lstore([f'buffer_store_dwordx4 v[8:11], {vL16}, {WSL}, {t2} offen'])
            b.e('s_mov_b64 exec, -1')
        self.ool_if(f's_cmp_eq_u32 {sIT}, 0', clear2, lambda: self.sleep('hc4'))
        self.touches('w5', 'v12', 'v13')
        n0, n1, n2 = o.get('wo_s', [0, 3, 6])
        for x in self.wo_group(BWO, 41, 0, n0):
            a.e(x)
        self.sleep('mld')
        ld = f'buffer_load_dwordx2 v[24:25], v44, {WSG}, {oMLg} offen sc1'
        a.e(ld)
        a.tag_vm('ml')
        for x in self.wo_group(BWO, 41, n0, n1):
            a.e(x)
        z = [f'v_mov_b64 {vr(r, 2)}, 0' for r in range(28, 36, 2)]
        for x in z:
            a.e(x)
        chk = a.lab('chk')
        a.wait(vm='ml')
        a.e(f'{chk}:')
        a.e('v_cmp_u_f32 vcc, v24, v25')
        self.retry_with([ld], 's_waitcnt vmcnt(0)', chk)
        self.stamp('mlgot', 2)
        self.sleep('hc1')
        cl = [f'buffer_load_dwordx4 {vr(8 + 4 * i, 4)}, {vL16}, {WS}, {oC1g} offen offset:{i * 1024} sc1' for i in range(4)]
        for i, x in enumerate(cl):
            a.e(x)
            a.tag_vm(f'c{i}')
        for x in self.wo_group(BWO, 41, n1, n2):
            a.e(x)
        Q1, Q2 = f'quad_perm:[1,0,3,2] {FULL}', f'quad_perm:[2,3,0,1] {FULL}'

        def allred(op, r, src):
            a.e(f'{op}_dpp v{r}, v{src}, v{src} {Q1}')
            a.e(f'{op}_dpp v{r}, v{r}, v{r} {Q2}')
            a.e(f'{op}_dpp v38, v{r}, v{r} row_ror:8 {FULL}')
            a.e(f'{op}_dpp v{r}, v{r}, v{r} row_ror:8 {FULL}')
            a.e(f'v_permlane32_swap_b32 v{r}, v38')
            a.e(f'{op} v39, v{r}, v38')
            a.e(f'{op} v{r}, v{r}, v38')
            a.e(f'v_permlane16_swap_b32 v{r}, v39')
            a.e(f'{op} v{r}, v{r}, v39')
        allred('v_max_f32', 36, 24)
        a.e('v_sub_f32 v37, v24, v36')
        a.e('v_exp_f32 v37, v37')
        a.e('v_mul_f32 v37, v37, v25')
        allred('v_add_f32', 37, 37)
        self.sums(t2, [(sV, 8)], ZML)
        a.e(f'v_mov_b32 v38, {t2}')
        a.e('s_mov_b64 exec, 1')
        a.e('ds_write_b64 v38, v[36:37]')
        a.e('s_mov_b64 exec, -1')
        a.e('v_and_b32 v38, 3, v0')
        a.e(f's_mov_b32 {t2}, {ZML}')
        a.e(f'v_lshl_add_u32 v38, v38, 3, {t2}')
        a.e('s_waitcnt lgkmcnt(0)')
        a.e('s_barrier')
        a.e('ds_read_b64 v[36:37], v38')
        a.e('s_waitcnt lgkmcnt(0)')
        a.e(f'v_max_f32_dpp v38, v36, v36 {Q1}')
        a.e(f'v_max_f32_dpp v38, v38, v38 {Q2}')
        a.e('v_sub_f32 v36, v36, v38')
        a.e('v_exp_f32 v36, v36')
        a.e('v_mul_f32 v36, v36, v37')
        a.e(f'v_add_f32_dpp v36, v36, v36 {Q1}')
        a.e(f'v_add_f32_dpp v36, v36, v36 {Q2}')
        a.e('v_log_f32 v36, v36')
        a.e('v_sub_f32 v24, v24, v38')
        a.e('v_sub_f32 v24, v24, v36')
        a.e('v_exp_f32 v24, v24')
        a.e('v_cvt_pk_bf16_f32 v26, v24, 0')
        a.e('v_cvt_pk_bf16_f32 v27, 0, v24')
        a.e('v_mov_b64 v[36:37], 0')
        a.e('v_mov_b64 v[38:39], 0')
        top = a.lab('acc')
        a.e(f'{top}:')
        for i in range(4):
            a.wait(vm=f'c{i}')
            for d in range(4):
                a.e(f'v_dot2c_f32_bf16_dpp v{28 + 2 * d}, v26, v{8 + 4 * i + d} quad_perm:[{i},{i},{i},{i}] {FULL}')
                a.e(f'v_dot2c_f32_bf16_dpp v{29 + 2 * d}, v27, v{8 + 4 * i + d} quad_perm:[{i},{i},{i},{i}] {FULL}')
        for i in range(4):
            a.e(f'v_permlane32_swap_b32 v{28 + i}, v{32 + i}')
        a.e('v_pk_add_f32 v[28:29], v[28:29], v[32:33]')
        a.e('v_pk_add_f32 v[30:31], v[30:31], v[34:35]')
        a.e('v_cmp_u_f32 vcc, v28, v30')
        a.e('v_permlane16_swap_b32 v28, v30')
        a.e('v_permlane16_swap_b32 v29, v31')
        a.e('v_pk_add_f32 v[28:29], v[28:29], v[30:31]')
        self.retry_with(cl + z, 's_waitcnt vmcnt(0)', top)
        a.e(f'v_add_f32_dpp v28, v28, v28 row_ror:8 {FULL}')
        a.e(f'v_add_f32_dpp v29, v29, v29 row_ror:8 {FULL}')
        a.e('v_cvt_pk_bf16_f32 v28, v28, v29')
        a.e('ds_write_b32 v45, v28')
        a.e('v_mov_b64 v[32:33], 0')
        a.e('v_mov_b64 v[34:35], 0')
        a.e('s_waitcnt lgkmcnt(0)')
        a.e('s_barrier')
        a.e('ds_read_b128 v[8:11], v46')
        self.stamp('c2got', 2)
        a.e('s_waitcnt lgkmcnt(0)')
        a.e('v_smfmac_f32_16x16x64_bf16 v[32:35], v[8:11], v[48:55], v1')
        a.e('v_smfmac_f32_16x16x64_bf16 v[36:39], v[8:11], v[56:63], v1')
        a.e('v_pk_add_f32 v[32:33], v[32:33], v[34:35]')
        a.e('v_pk_add_f32 v[36:37], v[36:37], v[38:39]')
        a.e('v_add_f32 v32, v32, v33')
        a.e('v_add_f32 v36, v36, v37')
        a.e('v_permlane16_swap_b32 v32, v36')
        a.e('v_add_f32 v32, v32, v36')
        a.e(f'v_mov_b32_dpp v33, v32 {Q1}')
        a.e('v_cvt_pk_bf16_f32 v32, v32, v33')
        self.lstore([f'buffer_store_dword v32, v47, {WSL}, {oOBpub} offen'])
        a.vmq = [['wo', ()], [None, ()]]
        if n2 < 6:
            for x in self.wo_group(BWO, 41, n2, 6):
                a.e(x)
            a.tag_vm('wo')
        self.stamp('dpub')

    def c1_fill(self, vt):
        a = self.a
        a.e(f's_cmp_eq_u32 {sIT}, 0')
        a.e(f's_cselect_b32 {t0}, {oC1g}, {OOB}')
        a.e(f'v_lshlrev_b32 {vt}, 7, v0')
        a.e(f's_add_u32 m0, {sW8}, 2048')
        a.e('s_mov_b32 exec_hi, 0')
        a.e(f'buffer_load_dword {vt}, {WS}, {t0} offen lds')
        a.e('s_mov_b32 exec_hi, -1')

    def red(self):
        a = self.a
        ld = f'buffer_load_dwordx2 v[22:23], v60, {WSL}, {oMLg} offen sc1'
        a.e('v_and_b32 v45, 56, v0')
        a.e('v_lshlrev_b32 v45, 1, v45')
        a.e('v_and_or_b32 v45, v0, 6, v45')
        a.e('v_lshlrev_b32 v45, 1, v45')
        a.e(f'v_and_or_b32 v45, {vL16}, 16, v45')
        a.e('v_lshlrev_b32 v46, 2, v0')
        for r in range(28, 36, 2):
            a.e(f'v_mov_b64 {vr(r, 2)}, 0')
        ne = self.o.get('wo_e', 0)
        if ne:
            self.wo_prep(41, 'v39')
            a.e('s_barrier')
        cl = [f'buffer_load_dwordx4 {vr(8 + 4 * i, 4)}, {vL16}, {WS}, {oC1g} offen offset:{i * 1024} sc1' for i in range(4)]
        ch = [f'v_max_f32_dpp v36, v22, v22 quad_perm:[1,0,3,2] {FULL}',
              f'v_max_f32_dpp v37, v36, v36 quad_perm:[2,3,0,1] {FULL}', f'v_max_f32_dpp v36, v36, v36 quad_perm:[2,3,0,1] {FULL}',
              'v_permlane32_swap_b32 v36, v37', 'v_max_f32 v38, v36, v37', 'v_max_f32 v36, v36, v37',
              'v_permlane16_swap_b32 v36, v38', 'v_max_f32 v36, v36, v38', 'v_sub_f32 v24, v24, v36', 'v_exp_f32 v24, v24',
              'v_mul_f32 v25, v25, v24', f'v_add_f32_dpp v25, v25, v25 quad_perm:[1,0,3,2] {FULL}',
              f'v_add_f32_dpp v37, v25, v25 quad_perm:[2,3,0,1] {FULL}', f'v_add_f32_dpp v25, v25, v25 quad_perm:[2,3,0,1] {FULL}',
              'v_permlane32_swap_b32 v25, v37', 'v_add_f32 v38, v25, v37', 'v_add_f32 v25, v25, v37',
              'v_permlane16_swap_b32 v25, v38', 'v_add_f32 v25, v25, v38', 'v_rcp_f32 v38, v25', 'v_log_f32 v37, v25',
              'v_mul_f32 v24, v24, v38', 'v_add_f32 v37, v37, v36', 'v_cvt_pk_bf16_f32 v26, v24, 0', 'v_cvt_pk_bf16_f32 v27, 0, v24']
        chk, again = a.lab('chk'), a.lab('again')
        if self.o.get('ml_early', 1) == 4:
            self.sleep('mld')
            a.e(ld)
            a.tag_vm('ml0')
            if self.o.get('sleep', {}).get('mld2'):
                self.sleep('mld2')
                a.e(ld)
        a.wait(vm='ml0')
        a.e(f'{chk}:')
        a.e('v_cmp_u_f32 vcc, v22, v23')
        a.e(ch[0])
        a.e('v_mov_b64 v[24:25], v[22:23]')
        self.retry_with([ld], 's_waitcnt vmcnt(1)', chk)
        self.stamp('mlgot', 2)
        npre = self.o.get('red_pre', 8)
        for x in ch[1:npre]:
            a.e(x)
        self.sleep('hc1')
        for i, x in enumerate(cl):
            a.e(x)
            a.tag_vm(f'c{i}')
        for x in self.wo_group(BWO, 41, 0, ne):
            a.e(x)
        for x in ch[max(npre, 1):]:
            a.e(x)
        lwe = self.o.get('lw_early', 1)
        lws = ['s_mov_b32 exec_hi, 0', f'buffer_store_dword v37, v46, {WSG}, {oC2Lpub} offen sc1', 's_mov_b32 exec_hi, -1']
        if lwe == 1 or lwe == 3:
            if lwe == 3:
                a.e('s_barrier')
            for x in lws:
                a.e(x)
        self.H('r1', 0, 48)
        top, again = a.lab('acc'), a.lab('again')
        a.e(f'{top}:')
        for i in range(4):
            if i:
                self.K(0, 'rd', True)
            a.wait(vm=f'c{i}')
            for d in range(4):
                a.e(f'v_dot2c_f32_bf16_dpp v{28 + 2 * d}, v26, v{8 + 4 * i + d} row_newbcast:{4 * d + i} {FULL}')
                a.e(f'v_dot2c_f32_bf16_dpp v{29 + 2 * d}, v27, v{8 + 4 * i + d} row_newbcast:{4 * d + i} {FULL}')
        for i in range(4):
            a.e(f'v_permlane32_swap_b32 v{28 + i}, v{32 + i}')
        a.e('v_pk_add_f32 v[28:29], v[28:29], v[32:33]')
        a.e('v_pk_add_f32 v[30:31], v[30:31], v[34:35]')
        a.e('v_cmp_u_f32 vcc, v28, v30')
        a.e('v_permlane16_swap_b32 v28, v30')
        a.e('v_permlane16_swap_b32 v29, v31')
        a.e('v_pk_add_f32 v[28:29], v[28:29], v[30:31]')
        a.e('v_cvt_pk_bf16_f32 v28, v28, v29')
        self.retry_to(again)
        a.ool(f'{again}:\n' + '\n'.join(cl) + '\n' + '\n'.join(f'v_mov_b64 {vr(r, 2)}, 0' for r in range(28, 36, 2)) + f'\ns_waitcnt vmcnt(0)\ns_branch {top}')
        a.e(f'buffer_store_dword v28, v45, {WSG}, {oC2pub} offen sc1')
        if lwe == 2:
            for x in lws:
                a.e(x)
        self.stamp('c2pub')
        a.e('v_and_b32 v40, 4, v0')
        a.e('v_lshlrev_b32 v40, 4, v40')
        a.e('v_and_or_b32 v40, v0, 48, v40')
        a.e('v_lshlrev_b32 v40, 1, v40')
        a.e('v_and_or_b32 v40, v0, 11, v40')
        a.e(f'v_lshl_add_u32 v40, v40, 3, {sW8}')
        for tau in range(2):
            for gam in range(2):
                for tt in range(2):
                    a.e(f'ds_read_b64_tr_b16 {vr(48 + 8 * tau + 4 * gam + 2 * tt, 2)}, v40 offset:{4096 + (32 * gam + 2 * tt) * 64 + 32 * tau}')
        if not ne:
            self.wo_prep(41, 'v39')
        if self.o.get('wo_pre', 6) > 4:
            a.e('s_waitcnt lgkmcnt(0)')
        a.e('s_barrier')
        if self.o.get('x_wo'):
            a.e('s_waitcnt vmcnt(0)')
            self.stamp('x_ack')

        def clear2():
            b = self.a
            for r in range(8, 12):
                b.e(f'v_mov_b32 v{r}, -1')
            self.sums(t2, [(sJ, 4 * 448), (sV, 448)], L_IT)
            b.e('s_mov_b64 exec, 0xfffffff')
            self.lstore([f'buffer_store_dwordx4 v[8:11], {vL16}, {WSL}, {t2} offen'])
            b.e('s_mov_b64 exec, -1')
        npre = self.o.get('wo_pre', 6)
        for x in self.wo_group(BWO, 41, ne, npre):
            a.e(x)
        if npre == 6:
            a.tag_vm('wo')
        self.ool_if(f's_cmp_eq_u32 {sIT}, 0', clear2, lambda: self.sleep('hc4'))
        self.wol = self.wo_group(BWO, 41, npre, 6)
        if self.o.get('x_wo'):
            self.stamp('x_iss')
            a.e('s_waitcnt vmcnt(0)')
            self.stamp('x_land')

    def wb(self, where):
        a = self.a
        if self.o.get('wb') != where:
            return
        l = a.lab('nowb')
        self.sums(t1, [(sJ, 8), (sV, 2), (sIT, 1)])
        a.e(f's_cmp_lg_u32 {t1}, {24 * 8 + 1}')
        a.e(f's_cbranch_scc1 {l}')
        a.begin_skip()
        a.e('buffer_wbl2 sc1')
        self.end_only(l)

    def uv(self):
        a = self.a
        a.e('v_lshrrev_b32 v28, 1, v0')
        a.e('v_and_or_b32 v28, v28, 16, 0')
        a.e('v_and_or_b32 v28, v0, 14, v28')
        a.e('v_lshlrev_b32 v28, 6, v28')
        a.e('v_and_or_b32 v28, v0, 16, v28')
        a.e('v_lshlrev_b32 v28, 1, v28')
        a.e(f'v_and_or_b32 v28, {vL16}, 16, v28')
        self.rot8('v29', 7)
        self.pos_bytes('v30', None)
        a.e('v_and_b32 v31, 32, v0')
        a.e('v_lshl_or_b32 v30, v31, 3, v30')
        self.oob(('v30', 'v30'), (0xffffaaaa, 0xffffaaaa))
        self.touches('w5', 'v12', 'v13')
        a.e('s_waitcnt lgkmcnt(0)')
        self.sleep('hc2')
        ld = [f'buffer_load_dword v16, v29, {WSG}, {oC2Lg} offen sc1',
              f'buffer_load_dwordx4 v[8:11], v28, {WSG}, {oC2g} offen sc1']
        z = [f'v_mov_b64 {vr(r, 2)}, 0' for r in range(20, 28, 2)]
        lwe = self.o.get('lw_early', 1)
        a.e(ld[0])
        a.tag_vm('lw')
        if lwe:
            self.sleep('hc2b')
        a.e(ld[1])
        a.tag_vm('c2')
        for x in z:
            a.e(x)
        for x in self.wol:
            a.e(x)
        if self.wol:
            a.tag_vm('wo')
        top, top2 = a.lab('chk'), a.lab('chk')
        w = self.w8n('v16', 'v17', 18)
        a.wait(vm='lw')
        a.e(f'{top}:')
        a.e('v_cmp_eq_u32 vcc, -1, v16')
        for x in w[:3]:
            a.e(x)
        self.retry_with([ld[0]], 's_waitcnt vmcnt(0)', top)
        for x in w[3:]:
            a.e(x)
        self.H('u1', 0, 12)
        a.wait(vm='c2')
        a.e(f'{top2}:')
        a.e('v_cmp_u_f32 vcc, v8, v8')
        a.e('v_smfmac_f32_16x16x64_bf16 v[20:23], v[8:11], v[48:55], v1')
        a.e('v_smfmac_f32_16x16x64_bf16 v[24:27], v[8:11], v[56:63], v1')
        self.retry_with([ld[1], 's_nop 7'] + z, 's_waitcnt vmcnt(0)', top2)
        self.stamp('c2got', 2)
        self.weigh2n(18, 'v21')
        a.e('v_permlane16_swap_b32 v20, v21')
        a.e('v_add_f32 v20, v20, v21')
        self.retry_with([ld[1]] + z, 's_waitcnt vmcnt(0)', top2)
        a.e(f'v_mov_b32_dpp v21, v20 quad_perm:[1,0,3,2] {FULL}')
        a.e('v_cvt_pk_bf16_f32 v20, v20, v21')
        self.lstore([f'buffer_store_dword v20, v30, {WSL}, {oOBpub} offen'])
        self.stamp('dpub')
        self.wb('dpub')

    def attn_a3(self):
        a = self.a
        self.qa_addr(44)
        self.sleep('hqa')
        ld = self.qa_loads(8, 12, 44)
        for x in ld:
            a.e(x)
        a.e('v_mov_b64 v[20:21], 0')
        a.e(f'v_lshl_add_u32 v17, v0, 3, {sW8}')
        a.e('ds_write_b64 v17, v[20:21] offset:6656')
        a.e(f's_add_u32 {t0}, {sW8}, 6656')
        a.e(f'v_mov_b32 v17, {t0}')
        a.e(f's_mov_b32 s22, {self.o.get("rowm", 0x000f000f)}')
        a.e(f's_mov_b32 s23, {self.o.get("rowm", 0x000f000f)}')
        for c in range(4):
            a.e(f'v_cndmask_b32 v{56 + c}, v17, v46, s[22:23]')
            a.e('s_lshl_b64 s[22:23], s[22:23], 4')
        self.p_addr('v60', 'v17')
        self.wo_prep(61, 'v17')
        for r in (16, 24, 28):
            a.e(f'v_mov_b64 {vr(r, 2)}, 0')
        a.e(self.stats_const(39))
        self.pipe_poll(ld, 'v38', [8, 12], 'pq', ['v_mov_b64 v[36:37], v[12:13]', 'v_mov_b64 v[32:33], v[8:9]', 'v_mov_b64 v[34:35], v[10:11]'])
        top = self.ptop
        self.stamp('qgotA', 2)
        self.qa_finish(32, 36, 44, None, 39, True)
        a.e('v_lshlrev_b32 v33, 16, v32')
        a.e('v_cmp_u_f32 vcc, v33, v33')
        a.e(f's_sub_u32 {t2}, {sW8}, {ZQ - 6144}')
        a.e(f's_cmp_eq_u32 {sV}, 0')
        a.e(f's_cselect_b32 {t3}, {oOALpub}, {OOB}')
        a.e(f's_mov_b32 s22, {self.o.get("rowm", 0x000f000f)}')
        a.e(f's_mov_b32 s23, {self.o.get("rowm", 0x000f000f)}')
        self.H('a1', 1, 52)
        self.retry_to(top)
        a.e('s_waitcnt vmcnt(0) lgkmcnt(0)')
        a.e('s_barrier')
        self.H('a2', 1, 8)

        def qrd(c, b):
            a.e(f'ds_read_b128 {vr(32 + 8 * (c % 3) + 4 * b, 4)}, v{56 + c} offset:{128 * b}')
            a.tag_ds(f'q{c}{b}')
        for c in range(3):
            qrd(c, 0)
            qrd(c, 1)
        if self.o.get('wo3', 0):
            self.touch('wo', 'v15', None)
        self.stamp('qrdy')
        ds, va = [], []
        for e in range(8):
            for t in range(4):
                ds.append((e, f'ds_read_b64_tr_b16 a[{8 * e + 2 * t}:{8 * e + 2 * t + 1}], v{14 + (e & 1)} offset:{t * 4096}'))
        wl = self.wo_lines(WO, 61, self.o.get('pol_wo3', ''))
        other = {2: wl[0], 3: wl[1], 7: wl[2], 11: wl[3], 13: wl[4], 15: wl[5], 19: wl[6], 23: wl[7],
                 5: 'v_mov_b64 v[8:9], 0', 6: 'v_mov_b64 v[12:13], 0', 8: f'v_mov_b32 v10, {t2}'}
        wo3 = self.o.get('wo3', 0)
        late = {}
        nh = self.o.get('wo_h2', 0)
        if nh or self.o.get('wo_pos'):
            for k in (2, 3, 7, 11, 13, 15, 19, 23):
                del other[k]
            pos = self.o.get('wo_pos') or {1: (3, 9, 15, 21, 27), 2: (3, 11, 19, 27), 3: (3, 13, 23)}[nh]
            for k, p in zip(range(nh, 6), pos):
                g2 = self.wo_group(WO, 61, k, k + 1)
                other[p - 1] = (other[p - 1] + '\n' if p - 1 in other else '') + g2[0]
                other[p] = g2[1]
        if wo3:
            for k in (2, 3, 7, 11, 13, 15, 19, 23):
                del other[k]
            pos = {1: (0, 1, 4, 7, 9, 10, 13, 16), 2: (8, 9, 12, 15, 17, 18, 21, 24)}[wo3]
            late = dict(zip(pos, wl))
        for e, k in enumerate((4, 10, 14, 18, 22, 26, 30), 1):
            other[k] = (other[k] + '\n' if k in other else '') + f'v_xor_b32 v{14 + (e & 1)}, {e << 5}, {vT}'
        pc = []
        for c in range(4):
            pc.append('v_cndmask_b32 v11, 0, v10, s[22:23]')
            pc.append(f'v_add_u32 v{56 + c}, v{56 + c}, v11')
            if c < 3:
                pc.append('s_lshl_b64 s[22:23], s[22:23], 4')
        a.e(f'v_mov_b32 v14, {vT}')
        for k in range(32):
            c, r, b = k >> 3, (k >> 1) & 3, k & 1
            if k < 2:
                a.wait(ds=f'q{c}{b}')
            elif k == 8:
                a.wait(ds='q21')
            elif k == 24:
                a.wait(ds='q31')
            t = k >> 1
            a.e(f'v_smfmac_f32_16x16x64_bf16 {vr(16 + 4 * r, 4)}, {vr(32 + 8 * (c % 3) + 4 * b, 4)}, a[{16 * t + 8 * b}:{16 * t + 8 * b + 7}], v1')
            if k in (8, 9):
                qrd(3, k - 8)
            elif k >= 1:
                a.e(ds.pop(0)[1])
            if k in other:
                a.e(other[k])
        for r in range(4):
            if ds:
                a.e(ds.pop(0)[1])
            a.e(f'v_add_f32 v{16 + r}, v{16 + 4 * r}, v{17 + 4 * r}')
        self.softmax_a(16, 20, 'v60', pc)

        def prd(j):
            a.e(f'ds_read_b128 {vr(32 + 4 * (j % 6), 4)}, v{56 + (j >> 2)} offset:{128 * (j & 3)}')
            a.tag_ds(f'p{j}')
        RD = self.o.get('pring', 4)
        self.H('a3', 1, 24)
        for j in range(RD):
            prd(j)
        self.stamp('smaxA')
        ls = self.lsum('v21', 16)
        mw = self.ml_write(20)
        for x in ls[:2] + mw[:2] + ls[2:3] + mw[2:4] + ls[3:4]:
            a.e(x)
        Q1, Q2 = f'quad_perm:[1,0,3,2] {FULL}', f'quad_perm:[2,3,0,1] {FULL}'
        fill = {0: ls[4], 1: ls[5], 2: ls[6], 3: ls[7], 4: mw[4], 6: 'v_and_b32 v23, 3, v0', 8: 'BAR',
                9: f'v_lshl_add_u32 v23, v23, 3, s23\nds_read_b64 v[24:25], v23', 13: 'MLW',
                14: f'v_max_f32_dpp v22, v24, v24 {Q1}', 15: f'v_max_f32_dpp v22, v22, v22 {Q2}',
                16: f'v_sub_f32 v24, v24, v22', 17: 'v_exp_f32 v24, v24', 18: 'v_mul_f32 v19, v24, v25',
                20: f'v_add_f32_dpp v19, v19, v19 {Q1}', 22: f'v_add_f32_dpp v19, v19, v19 {Q2}', 23: 'v_log_f32 v25, v19',
                24: 'v_add_f32 v25, v25, v22', 25: 'LW', 26: f'v_sub_f32 v18, {sM}, v25', 27: 'v_exp_f32 v18, v18',
                28: 'v_lshrrev_b32 v23, 4, v0', 29: 'v_lshl_add_u32 v23, v23, 1, v0', 30: 'v_and_b32 v23, 7, v23'}
        a.e(f's_mov_b32 s23, {ZML}')
        for j in range(16):
            c, U = j >> 2, j & 3
            for hf in range(2):
                e = c + 4 * hf
                if hf == 0 and (j < 2 or j & 1 == 0):
                    a.wait(ds=f'p{j if j < 2 else j + 1}')
                B = vr(64 + 64 * U + 8 * e, 8) if U < 3 else f'a[{8 * e}:{8 * e + 7}]'
                a.e(f'v_smfmac_f32_16x16x64_bf16 {vr(8 + 4 * hf, 4)}, {vr(32 + 4 * (j % 6), 4)}, {B}, v1')
                if 2 * j + hf in late:
                    a.e(late[2 * j + hf])
                if hf == 1 and j + RD < 16:
                    prd(j + RD)
                x = fill.pop(2 * j + hf, None)
                if x == 'BAR':
                    a.wait(ds='mlw')
                    a.e('s_barrier')
                elif x == 'MLW':
                    a.wait(ds='mlr')
                elif x == 'LW':
                    self.lstore([f'buffer_store_dword v25, off, {WSL}, {t3}'])
                elif x:
                    a.e(x)
                    if 'ds_write_b64' in x:
                        a.tag_ds('mlw')
                    if 'ds_read_b64' in x:
                        a.tag_ds('mlr')
        assert not fill
        a.e(f'v_lshl_add_u32 v46, v0, 2, {sW8}')
        a.e('v_lshlrev_b32 v47, 2, v23')
        a.e('v_add_f32 v44, v8, v9')
        a.e('v_add_f32 v45, v12, v13')
        a.e('v_pk_mul_f32 v[44:45], v[44:45], v[18:19] op_sel_hi:[1,0]')
        self.stamp('pvA')

    def dma_tile(self, t):
        a = self.a
        pol = self.o.get('pol_kv', 'nt')
        srd = K_ if t < 16 else V_
        a.e(f's_add_u32 m0, {sKV}, {(t & 3) * 4096}')
        a.e(f's_add_u32 {t0}, {sKG}, {(t & 15) * 16384}')
        for q in range(4):
            a.e(f'buffer_load_dwordx4 v{8 + q}, {srd}, {t0} offen offset:{q * 1024} {pol} lds')
        a.tag_vm(f'tile{t}')

    def make_items(self):
        o = self.o
        pol, polc = o.get('pol_kv', 'nt'), o.get('pol_c', '')
        extra = {}
        c0, cs = o.get('ckv_from', 44), o.get('ckv_step', 2)
        for i in range(16):
            t, q = i >> 2, i & 3
            extra.setdefault(c0 + cs * i, []).append((f'c{i}', [
                f's_add_u32 m0, {sKV}, {CKV + i * 1024}', f'v_add_u32 v238, v{8 + q}, v254', f's_add_u32 {t0}, s1, {(16 * t + 4 * q) * 1024}',
                f'buffer_load_dwordx4 v238, {CK}, {t0} offen {polc} lds']))
        w0, wstep = o.get('wo_from', 52), o.get('wo_step', 4)
        for k in range(6):
            h, i = divmod(k, 3)
            extra.setdefault(w0 + wstep * k, []).append((f'w{k}', [
                f's_add_u32 m0, {sW8}, {h * 3072}', f's_add_u32 {t0}, {oWO}, {h * 64 * 1152}',
                f'buffer_load_dwordx4 v{(246, 247, 255)[i]}, {WO}, {t0} offen offset:{i * 1024} lds']))
        items = []
        self.extra = {tag: lines for v in extra.values() for tag, lines in v}
        for d in range(128):
            t, q = d >> 2, d & 3
            items.append((f'tile{t}' if q == 3 else f'd{d}', [
                f's_add_u32 m0, {sKV}, {(t & 3) * 4096}', f's_add_u32 {t0}, {sKG}, {(t & 15) * 16384}',
                f'buffer_load_dwordx4 v{8 + q}, {K_ if t < 16 else V_}, {t0} offen offset:{q * 1024} {pol} lds']))
        self.items = items
        self.pos = {tag: k for k, (tag, _) in enumerate(items)}
        self.issued = 0
        self.done_tile = -1
        self.lnq_done = False

    def issue_to(self, n):
        a = self.a
        prev = None
        lim = self.pos[f'tile{min(self.done_tile + 4, 31)}'] + 1
        while self.issued < min(n, lim):
            tag, lines = self.items[self.issued]
            if tag[0] == 'w':
                assert self.lnq_done, 'w_o staged before the q weights were read'
            assert tag[0] in 'td' or 2 < self.done_tile < 26
            for x in (lines if lines[:2] != prev else lines[2:]):
                a.e(x)
            a.tag_vm(tag)
            prev = lines[:2]
            self.issued += 1

    def prologue(self):
        a = self.a
        self.make_items()
        a.e('s_cmp_ge_u32 s2, 256')
        a.e('s_cbranch_scc1 L_end')
        if self.o.get('diag_fixed'):
            a.e('s_memrealtime s[100:101]')
        if self.o.get('stamps'):
            a.e('s_memtime s[98:99]' if self.o.get('clk') else 's_memrealtime s[98:99]')
        a.e('s_load_dwordx2 s[4:5], s[0:1], 8')
        ptrs = [(V_, 16), (CK, 48), (DBG, 96), (XIN, 0), (WQ, 24), (WO, 32), (BWQ, 56), (WUK, 64), (WUV, 72), (BWO, 80),
                (WS, 104), (OUT, 88)]
        sizes = {K_: 1 << 26, V_: 1 << 26, CK: 1 << 23, DBG: 256, XIN: 1152, WQ: 576 * 8192, WO: 4096 * 1152,
                 BWQ: 576 * 8192, WUK: 1 << 22, WUV: 1 << 22, BWO: 4096 * 1152, WS: WS_SIZE, WSL: L_X, WSG: G_IT, OUT: 1152}
        base = lambda s: int(s[2:s.index(':')])
        if self.o.get('code0', 1):
            a.e('s_getpc_b64 s[82:83]')
            a.e('L_pc:')
            a.e('s_and_b32 s3, s2, 0xf8')
            a.e('v_lshrrev_b32 v62, 5, v0')
            a.e('v_add_lshl_u32 v62, v62, s3, 7')
            a.e('v_min_u32 v62, L_codeend-L_pc, v62')
            a.e('global_load_dword v61, v62, s[82:83]')
        a.e('v_lshrrev_b32 v1, 6, v0')
        a.e('v_mov_b32 v63, v0')
        a.e(f'v_readfirstlane_b32 {sV}, v1')
        a.e('v_and_b32 v0, 63, v0')
        a.e(f's_and_b32 {sX}, s2, 7')
        a.e(f's_lshr_b32 {sJ}, s2, 3')
        a.e(f's_lshl_b32 {sKV}, {sV}, 14')
        self.sums(sKG, [(sX, 1 << 23), (sJ, 1 << 18), (sV, 1 << 12)])
        a.e(f'v_lshlrev_b32 {vL16}, 4, v0')
        a.e('v_and_b32 v12, 48, v0')
        a.e('v_lshlrev_b32 v12, 1, v12')
        a.e(f'v_xor_b32 v8, v12, {vL16}')
        for q in range(1, 4):
            a.e(f'v_xor_b32 v{8 + q}, {TBL[q] << 4}, v8')
        a.e(f's_mov_b32 s6, {sizes[K_]}')
        a.e('s_mov_b32 s7, 0x20000')
        a.e('s_waitcnt lgkmcnt(0)')
        for t in range(4):
            self.issue_to(min(4 * t + 4, self.o.get('win0', 8)))
            for srd, off in ptrs[3 * t:3 * t + 3]:
                b = base(srd)
                a.e(f's_load_dwordx2 s[{b}:{b + 1}], s[0:1], {off}')
        for srd, n in sizes.items():
            if srd != K_:
                a.e(f's_mov_b32 s{base(srd) + 2}, {n}')
                a.e(f's_mov_b32 s{base(srd) + 3}, 0x20000')
        if not self.o.get('code0', 1):
            a.e(f's_getpc_b64 s[82:83]')
            a.e('L_pc:')
            a.e('v_lshlrev_b32 v62, 7, v63')
            a.e(f'v_min_u32 v62, L_codeend-L_pc, v62')
            a.e('global_load_dword v61, v62, s[82:83]')
        a.e(f's_lshr_b32 {t1}, {sJ}, 3')
        self.sums(sH, [(sX, 4), (t1, 1)])
        a.e(f's_and_b32 {sS}, {sJ}, 7')
        a.e(f's_mov_b32 {sIT}, 0')
        a.e(f's_mov_b32 {sPOLL}, 0')
        a.e(f's_mov_b32 {sST}, 0')
        self.sums(sW8, [(sV, 8192)], STG)
        a.e('s_mov_b32 s84, 0x00ff00ff')
        a.e('s_mov_b32 s85, 0x00ff00ff')
        a.e(f's_mul_i32 {t2}, {sJ}, 43')
        a.e(f's_lshr_b32 {t2}, {t2}, 8')
        a.e(f's_mul_i32 {t3}, {t2}, 6')
        a.e(f's_sub_u32 {t3}, {sJ}, {t3}')
        self.sums(oY, [(t3, 512), (sV, 128)])
        self.sums(oQA, [(t2, 4096), (sV, 1024), (t3, 128)], L_QA)
        self.sums(oQB, [(t2, 4096), (sV, 512), (t3, 32)], L_QB)
        self.sums(oST, [(t2, 64), (t3, 8)], L_STA)
        self.sums(oWQ, [(t3, 96 * 8192), (sV, 24 * 8192), (sX, 1024), (t2, 256)])
        a.e(f's_cmp_eq_u32 {sV}, 0')
        a.e(f's_cselect_b32 {oST}, {oST}, {OOB}')
        a.e(f's_cmp_lt_u32 {sJ}, 24')
        for r in (oQA, oST, oWQ):
            a.e(f's_cselect_b32 {r}, {r}, {OOB}')
        self.sums(oQgA, [(t1, 4096), (sV, 1024)], L_QA)
        self.sums(oSTgA, [(t1, 64)], L_STA)
        if self.o.get('single'):
            a.e(f's_lshr_b32 {t2}, {sS}, 1')
            a.e(f's_and_b32 s3, {sS}, 1')
            self.sums(oWUV, [(t2, 128 * 8192), ('s3', 8 * 8192), (sH, 256), (sV, 64)])
        else:
            self.sums(oWUV, [(sS, 64 * 8192), (sH, 256), (sV, 64)])
        self.sums(oWUK, [(sJ, 16 * 8192), (sX, 1024), (sV, 256)])
        self.sums(oWO, [(sX, 512 * 1152), (sV, 128 * 1152), (sJ, 48)])
        self.sums(oYpub, [(sX, 3072), (sJ, 128)])
        if self.o.get('asym'):
            a.e(f's_getreg_b32 {t0}, hwreg(HW_REG_XCC_ID, 0, 3)')
            a.e(f's_lshr_b32 {t0}, {self.o["asym"][0]}, {t0}')
            a.e(f's_lshl_b32 {t0}, {t0}, 31')
            a.e(f's_or_b32 {oYpub}, {oYpub}, {t0}')
        a.e(f's_cmp_lt_u32 {sJ}, 24')
        a.e(f's_cselect_b32 {oWO}, {oWO}, {OOB}')
        a.e(f's_cselect_b32 {sRES}, 1, 0')
        a.e(f's_cmp_eq_u32 {sV}, 3')
        a.e(f's_cselect_b32 {sRES}, {sRES}, 0')
        a.e(f's_mul_i32 {t0}, {sRES}, 3')
        a.e(f's_cmp_eq_u32 {sX}, 0')
        a.e(f's_cselect_b32 {sRES}, {t0}, {sRES}')
        if self.o.get('stamps'):
            a.e('v_mov_b32 v7, 0')
            a.e('s_mov_b32 s97, 8')
        a.e('v_and_b32 v14, 1, v0')
        a.e('v_mul_u32_u24 v1, 0xaaaa, v14')
        a.e('v_add_u32 v1, 0x4444, v1')

        def tbl(dst, x, tmp):
            a.e(f'v_lshrrev_b32 {tmp}, 1, {x}')
            a.e(f'v_xor_b32 {dst}, {x}, {tmp}')
            a.e(f'v_and_b32 {dst}, 1, {dst}')
            a.e(f'v_lshl_or_b32 {dst}, {dst}, 3, {tmp}')
        a.e('v_lshrrev_b32 v12, 4, v0')
        a.e('v_and_b32 v13, 15, v0')
        a.e('v_lshrrev_b32 v15, 2, v13')
        tbl('v16', 'v15', 'v17')
        a.e('v_and_b32 v17, 3, v13')
        a.e('v_lshlrev_b32 v18, 1, v17')
        a.e('v_xor_b32 v16, v16, v18')
        a.e('v_xor_b32 v16, v16, v12')
        a.e('v_lshlrev_b32 v16, 4, v16')
        a.e(f'v_lshl_or_b32 {vA}, v13, 8, v16')
        a.e(f'v_add_u32 {vA}, {sKV}, {vA}')
        tbl('v16', 'v12', 'v18')
        a.e('v_lshlrev_b32 v18, 1, v15')
        a.e('v_xor_b32 v16, v16, v18')
        a.e('v_lshrrev_b32 v18, 1, v17')
        a.e('v_xor_b32 v16, v16, v18')
        a.e('v_lshlrev_b32 v16, 4, v16')
        a.e('v_lshrrev_b32 v18, 2, v0')
        a.e('v_lshl_or_b32 v16, v18, 8, v16')
        a.e(f'v_lshl_or_b32 {vT}, v14, 3, v16')
        a.e(f'v_add_u32 {vT}, {sKV}, {vT}')
        a.e('s_waitcnt lgkmcnt(0)')
        self.stamp('start')
        w, l, g = base(WS), base(WSL), base(WSG)
        a.e(f's_lshl_b32 {t0}, {sX}, 17')
        a.e(f's_add_u32 s{l}, s{w}, {t0}')
        a.e(f's_addc_u32 s{l + 1}, s{w + 1}, 0')
        a.e(f's_add_u32 s{g}, s{w}, {GB}')
        a.e(f's_addc_u32 s{g + 1}, s{w + 1}, 0')
        if self.o.get('tlb0'):
            a.e('s_mov_b64 exec, 1')
            a.e(f'buffer_load_dword v61, off, {V_}, {sKG} nt')
            a.e(f's_lshl_b32 {t0}, {sX}, 20')
            a.e(f'buffer_load_dword v61, off, {CK}, {t0}')
            a.e(f'buffer_load_dword v61, off, {WO}, {oWO}')
            if self.o['tlb0'] > 1:
                for srd, so in ((BWQ, oWQ), (WUK, oWUK), (WUV, oWUV), (BWO, oWO)):
                    a.e(f'buffer_load_dword v61, off, {srd}, {so}')
                self.sums(t1, [(sX, 1 << 19)], CB)
                a.e(f'buffer_load_dword v61, off, {WS}, {t1}')
            a.e('s_mov_b64 exec, -1')
        self.dma_wq(WQ, 'v56', 'v57')
        self.lnq_rows()
        a.e(f's_mul_i32 {t0}, {t3}, 192')
        a.e('v_mul_u32_u24 v58, 3, v0')
        a.e('s_mov_b32 exec_lo, 0x00010001')
        a.e('s_mov_b32 exec_hi, 0x00010001')
        for rho in range(3):
            a.e(f'buffer_load_dwordx4 {vr(16 + 4 * rho, 4)}, v58, {XIN}, {t0} offen offset:{16 * rho}')
        a.e('s_mov_b64 exec, -1')
        a.e('v_lshlrev_b32 v58, 2, v0')
        a.e(f's_mul_i32 {t0}, {sJ}, 48')
        a.e(f's_cmp_eq_u32 {sRES}, 3')
        a.e(f's_cselect_b32 {t0}, {t0}, {OOB}')
        a.e(f'buffer_load_dword v5, v58, {XIN}, {t0} offen')
        for r in range(56, 60):
            a.e(f'v_mov_b32 v{r}, -1')
        self.sums(t4, [(sX, L_X), (sJ, 2560), (sV, 640)])
        gw = 128 if self.o.get('single') else 384
        self.sums(t1, [(sX, 128 * gw), (sJ, 4 * gw), (sV, gw)], GB)
        a.e('s_mov_b32 exec_hi, 0xff')
        a.e(f'buffer_store_dwordx4 v[56:59], {vL16}, {WS}, {t4} offen sc1')
        a.e(f's_mov_b64 exec, {(1 << (gw // 16)) - 1}')
        a.e(f'buffer_store_dwordx4 v[56:59], {vL16}, {WS}, {t1} offen sc1')
        a.e('s_mov_b64 exec, -1')
        a.tag_vm('clr')
        for ks in range(4):
            a.e(f'v_xor_b32 v{12 + ks}, {ks << 6}, {vA}')

    def late_scalars(self):
        a = self.a
        if self.o.get('ckv_late', 0):
            a.e('s_add_u32 s0, s12, s1')
            a.e('s_addc_u32 s1, s13, 0')
        if self.o.get('asym'):
            a.e(f's_bitset0_b32 {oYpub}, 31')
        a.e(f's_lshr_b32 {t1}, {sJ}, 3')
        a.e(f's_and_b32 {t2}, {sJ}, 1')
        a.e(f's_lshr_b32 {t3}, {sJ}, 1')
        a.e(f's_lshr_b32 {t4}, {sX}, 2')
        a.e(f's_and_b32 {t5}, {sX}, 3')
        self.sums(oQgB, [(sV, 4096)], L_QB)
        self.sums(oSTgB, [(sV, 64)], L_STB)
        self.sums(oQApub, [(t4, 16384), (t3, 1024), (t5, 256), (t2, 128)], G_QABS)
        self.sums(oQAg, [(t2, 16384), (sV, 4096)], G_QABS)
        self.sums(oC1pub, [(sX, 1 << 19), (t2, 1 << 18), (sV, 16384), (t3, 256)], CB)
        self.sums(oMLpub, [(t2, 2048), (t3, 32)], L_C1ML)
        self.sums(oC1g, [(sX, 1 << 19), (sJ, 16384), (sV, 4096)], CB)
        a.e(f's_lshr_b32 {t4}, {sJ}, 2')
        self.sums(oMLg, [(t4, 512)], L_C1ML)
        self.sums(oC2pub, [(sJ, 8192), (sV, 2048), (sX, 256)], G_C2)
        self.sums(oC2Lpub, [(t4, 1024), (sX, 128)], G_C2L)
        a.e(f's_and_b32 {t4}, {sJ}, 3')
        a.e(f's_cselect_b32 {oC2Lpub}, {OOB}, {oC2Lpub}')
        self.sums(oC2g, [(sX, 32768), (sS, 4096), (t1, 64)], G_C2)
        self.sums(oC2Lg, [(sX, 1024), (t1, 16)], G_C2L)
        if self.o.get('single'):
            if self.o.get('cswz', 1):
                self.sums(oC1pub, [(t2, 1 << 21), (sV, 32768), (sX, 2048)], CB)
                a.e(f's_and_b32 {t4}, {sV}, 1')
                a.e(f's_lshl_b32 {t4}, {t4}, 3')
                a.e(f's_xor_b32 {t4}, {t4}, {t3}')
                a.e(f's_lshl_b32 {oC2g}, {t4}, 7')
                a.e(f's_and_b32 {t4}, {sS}, 1')
                a.e(f's_and_b32 s3, {sS}, 2')
                self.sums(oC2Lg, [(t4, 128), (t5, 256), ('s3', 512)])
            else:
                self.sums(oC1pub, [(t2, 1 << 21), (sV, 32768), (sX, 2048), (t3, 128)], CB)
            self.sums(oMLpub, [(t2, 16384), (sX, 2048), (t3, 128)], G_ML)
            self.sums(oC1g, [(sH, 131072), (sS, 16384), (sV, 4096)], CB)
            a.e(f's_lshr_b32 {t4}, {sH}, 4')
            a.e(f's_and_b32 {t5}, {sH}, 15')
            self.sums(oMLg, [(t4, 16384), (sV, 4096), (t5, 8)], G_ML)
        self.sums(oOBpub, [(t1, 2048), (sV, 512), (sS, 32)], L_OB)
        self.sums(oOApub, [(t1, 2048), (sS, 32)], L_OA)
        self.sums(oOALpub, [(sJ, 4)], L_OAL)
        self.sums(oOALg, [(sV, 32)], L_OAL)
        self.sums(oRES, [(sJ, 128)])
        self.sums(oO, [(sV, 2048)], L_OA)
        a.e(f's_cmp_eq_u32 {sV}, 0')
        a.e(f's_cselect_b32 {oMLpub}, {oMLpub}, {OOB}')
        a.e(f's_cselect_b32 {oOApub}, {oOApub}, {OOB}')
        a.e(f's_cselect_b32 {oC2Lpub}, {oC2Lpub}, {OOB}')

    def pv_block(self, U):
        a = self.a
        self.sp_addr('v63', sW8)
        a.e(f'ds_read_b128 v[20:23], v63 offset:{6144 + 128 * U}')
        a.e('s_waitcnt lgkmcnt(0)')
        for e in range(8):
            a.e(f'v_smfmac_f32_16x16x64_bf16 {vr(24 + 4 * e, 4)}, v[20:23], {vr(64 + 64 * U + 8 * e, 8)}, v1')

    def stream(self):
        a = self.a
        o = self.o
        landed = 0
        for t in range(28):
            win = o.get('win', 6) if t < o.get('wide_at', 99) else o.get('wide', 12)
            while landed <= self.pos[f'tile{t}']:
                if self.issued < landed + 1 + win or landed == self.pos[f'tile{t}']:
                    a.wait(vm=self.items[landed][0])
                    if o.get('sstamps') and t % 4 == 0 and landed == self.pos[f'tile{t}']:
                        self.stamp(f't{t}')
                    self.issue_to(landed + 1 + win)
                landed += 1
            slot = (t & 3) * 4096
            if t < 16:
                for ks in range(4):
                    a.e(f'ds_read_b128 a[{16 * t + 4 * ks}:{16 * t + 4 * ks + 3}], v{12 + ks} offset:{slot}')
            else:
                u = t - 16
                if u == 0:
                    for e in range(8):
                        a.e(f'v_xor_b32 v{12 + e}, {e << 5}, {vT}')
                for e in range(8):
                    a.e(f'ds_read_b64_tr_b16 {vr(64 + 64 * (u >> 2) + 8 * e + 2 * (u & 3), 2)}, v{12 + e} offset:{slot}')
            a.e('s_waitcnt lgkmcnt(0)')
            self.done_tile = t
            self.issue_to(landed + win + o.get('boost', {}).get(str(t), 0) if t < 27 else 999)
            if t == 2:
                a.e('v_lshrrev_b32 v254, 4, v0')
                a.e('v_mul_u32_u24 v254, 768, v254')
                a.e(f's_lshr_b32 {t2}, {sJ}, 1')
                self.sums('s1', [(sX, 1 << 20), (t2, 1 << 16), (sV, 256)])
                for i, r in enumerate((246, 247, 255)):
                    a.e(f'v_add_u32 v{r}, {64 * i}, v0')
                    a.e(f'v_mul_u32_u24 v{r}, 21846, v{r}')
                    a.e(f'v_lshrrev_b32 v{r}, 16, v{r}')
                    a.e(f'v_mul_u32_u24 v{r}, {1152 - 48}, v{r}')
                    a.e(f'v_lshl_add_u32 v{r}, v0, 4, v{r}')
            if t == 4:
                a.wait(vm='clr')
                a.e('v_lshlrev_b32 v60, 7, v0')
                a.e('s_mov_b64 exec, 31')
                a.e(f'buffer_load_dword v61, v60, {WS}, {t4} offen')
                a.e('s_mov_b64 exec, -1')
                a.tag_vm('touch')
                a.e('v_lshlrev_b32 v4, 16, v5')
                a.e('v_and_b32 v5, 0xffff0000, v5')
            if t == o.get('atom_at', 5):
                a.e('s_barrier')
                l = self.wave_only(1)
                a.e('s_getreg_b32 s82, hwreg(HW_REG_XCC_ID, 0, 3)')
                a.e('s_lshl_b32 s82, s82, 3')
                a.e('s_lshl_b64 s[82:83], 1, s82')
                a.e('v_mov_b32 v58, s82')
                a.e('v_mov_b32 v59, s83')
                a.e(f's_lshl_b32 {t0}, {sX}, 5')
                a.e('s_mov_b64 exec, 1')
                a.e(f'buffer_atomic_add_x2 v[58:59], v0, {DBG}, {t0} offen sc1')
                a.e('s_mov_b64 exec, -1')
                self.end_only(l)
            if t == 9:
                a.wait(vm='touch')
                self.lnq_addr()
                self.lnq_prep()
                for rho in range(3):
                    for x in self.lnq_mfma(rho):
                        a.e(x)
                self.lnq_reduce(False)
                self.lnq_done = True
            if t == o.get('cnt_at', 10):
                a.e('v_and_b32 v57, 7, v0')
                a.e('v_lshlrev_b32 v57, 5, v57')
                a.e(f'buffer_load_dwordx2 v[58:59], v57, {DBG}, 0 offen sc1')
                a.tag_vm('cnt')
            if t == 15:
                chk, retry, done = a.lab('chk'), a.lab('cretry'), a.lab('cdone')
                a.wait(vm='cnt')
                a.e(f'{chk}:')
                a.e('v_sad_u8 v61, v58, 0, 0')
                a.e('v_sad_u8 v61, v59, 0, v61')
                a.e('v_cmp_ne_u32 vcc, 32, v61')
                if not o.get('x_noinit'):
                    a.e(f's_cbranch_vccnz {retry}')
                a.e(f'{done}:')
                a.ool(f'{retry}:\ns_add_u32 {sPOLL}, {sPOLL}, 1\ns_cmp_gt_u32 {sPOLL}, 200000\ns_cbranch_scc1 {done}\ns_sleep 8\n'
                      f'buffer_load_dwordx2 v[58:59], v57, {DBG}, 0 offen sc1\ns_waitcnt vmcnt(0)\ns_branch {chk}')
                a.e('s_getreg_b32 s82, hwreg(HW_REG_XCC_ID, 0, 3)')
                a.e('s_lshl_b32 s82, s82, 3')
                a.e('s_lshl_b64 s[82:83], 32, s82')
                a.e(f'v_readlane_b32 {t2}, v58, {sX}')
                a.e(f'v_readlane_b32 {t3}, v59, {sX}')
                a.e(f's_cmp_eq_u64 s[82:83], s[80:81]')
                a.e(f's_cselect_b32 {sLOC}, {0 if o.get("force_slow") else 1}, {1 if o.get("x_noinit") else 0}')
                self.lnq_pubaddr(False, True)
                self.lcmp()
                self.lnq_publish(False, True)
            if t == 18:
                self.qa_addr(48)
                a.e(f's_add_u32 {t4}, {oQgA}, {L_CSA - L_QA}')
                ql = self.qa_loads(40, 52, 48) + [f'buffer_load_dwordx4 v[44:47], v51, {WSL}, {t4} offen sc1']
                for x in ql:
                    a.e(x)
                a.tag_vm('q')
            if t == 22:
                a.wait(vm='q')
                self.late_check('v20', list(range(40, 48)) + [52, 53], ql)
                for x in self.red8(44):
                    a.e(x)
                a.e('v_cvt_pk_bf16_f32 v44, 0, v44')
                a.e('v_or_b32 v1, v1, v44')
                a.e(self.stats_const(54))
                self.qa_finish(40, 52, 48, 56, 54)
                for r in range(24, 40, 4):
                    a.e(f'v_mov_b64 {vr(r, 2)}, 0')
                self.p_addr('v45', 'v44')
                self.qk_softmax(56, 24, 40, 44)
                for x in self.lsum('v57', 40):
                    a.e(x)
                for x in self.ml_write(56):
                    a.e(x)
                for r in range(24, 56, 4):
                    a.e(f'v_mov_b64 {vr(r, 2)}, 0')
                a.e('s_waitcnt lgkmcnt(0)')
            for i, at in enumerate(o.get('ckv_at', [10, 11, 12, 13])):
                if at == t:
                    if t == 27:
                        a.e('v_lshrrev_b32 v62, 4, v0')
                        a.e('v_mul_u32_u24 v62, 768, v62')
                        for q in range(4):
                            self.extra[f'c{4 * i + q}'] = [x.replace('v238', 'v63').replace('v254', 'v62') for x in self.extra[f'c{4 * i + q}']]
                    for q in range(4):
                        if i >= 4 - o.get('ckv_late', 0):
                            lines = self.extra[f'c{4 * i + q}']
                            for x in lines[:-1]:
                                a.e(x)
                            a.e(f's_mov_b64 exec, {MY}' if q in (0, 3) else f's_not_b64 exec, {MY}')
                            a.e(lines[-1])
                            a.e('s_mov_b64 exec, -1')
                            continue
                        for x in self.extra[f'c{4 * i + q}']:
                            a.e(x)
            if t == o.get('wo_at', 9):
                assert self.lnq_done
                for k in range(6):
                    for x in self.extra[f'w{k}']:
                        a.e(x)
            self.touches(f's{t}', 'v62', 'v31')
            if t == o.get('mlbar', 26):
                a.e('s_barrier')
                for x in self.ml_read(56, 20):
                    a.e(x)
                a.e('s_waitcnt lgkmcnt(0)')
                for x in self.ml_scale(56, 20, 21, 22):
                    a.e(x)
                a.e('v_readfirstlane_b32 s22, v21')
                a.e('v_readfirstlane_b32 s23, v22')
            if t == o.get('c1_late', 1) and t > 15:
                self.sums(t1, [(sX, 1 << 19), (sJ, 16384), (sV, 4096)], CB)
                for r in range(56, 60):
                    a.e(f'v_mov_b32 v{r}, -1')
                self.lcmp()
                self.lstore([f'buffer_store_dwordx4 v[56:59], {vL16}, {WS}, {t1} offen offset:{i * 1024}' for i in range(4)])
            if t == o.get('tlb_at', -1):
                g = o.get('tlb_n', 2)
                a.e(f's_mov_b64 exec, {(1 << g) - 1}')
                self.sums(t2, [(sX, 1 << 19)], CB)
                for srd, so, span in ((BWQ, oWQ, 24 * 8192), (WUK, oWUK, 16 * 8192), (WUV, oWUV, 64 * 8192), (BWO, oWO, 128 * 1152),
                                      (WS, t2, 1 << 19), (OUT, '0', 1024)):
                    a.e(f'v_mul_u32_u24 v62, {(span - 8192 if span > 8192 else span) // (g - 1) // 4 * 4}, v0')
                    a.e(f'buffer_load_dword v31, v62, {srd}, {so} offen')
                a.e('s_mov_b64 exec, -1')
            if t == o.get('isl_at', 12):
                a.e('s_branch L_isl_0')
                if self.alt:
                    a.e('L_isl_ret2:')
                else:
                    a.e('L_isl_ret:')
                    if o.get('hi'):
                        a.e('s_cmp_lg_u32 s0, 0')
                        a.e('s_cbranch_scc1 L_isl_ret2')
            if t == o.get('late_touch', -1):
                self.sums(t3, [(sX, 128), (sJ, 4), (sV, 1)])
                a.e(f's_lshl_b32 {t2}, {t3}, 10')
                a.e('v_lshlrev_b32 v62, 7, v0')
                a.e('v_and_b32 v62, 0x3ff, v62')
                a.e(f'buffer_load_dword v31, v62, {WS}, {t2} offen')
            if t == 23:
                self.pv_block(0)
            if t == 24:
                self.pv_block(1)
        if self.alt:
            a.e('s_nop 7')
            a.e('s_branch L_join')
            return
        a.e('L_join:')
        self.late_scalars()
        a.e('v_mov_b32 v62, s23')
        a.e(f's_cmp_eq_u32 {sV}, 0')
        a.e(f's_cselect_b32 {t1}, {oOALpub}, {OOB}')
        self.lcmp()
        self.lstore([f'buffer_store_dword v62, off, {WSL}, {t1}'])
        self.pv_block(2)
        a.e('v_lshrrev_b32 v62, 1, v0')
        a.e('v_and_b32 v62, 8, v62')
        a.e('v_and_or_b32 v62, v0, 32, v62')
        a.e(f'v_add_u32 v62, {sW8}, v62')
        a.e(f'v_add_u32 v62, {6144 + 384}, v62')
        for tt in range(4):
            o0 = 16 * (tt >> 1) + (tt & 1)
            r = (20, 22, 8, 10)[tt]
            a.e(f'ds_read2_b32 {vr(r, 2)}, v62 offset0:{o0} offset1:{o0 + 4}')
        a.e('s_mov_b32 vcc_lo, 0x55555555')
        a.e('s_mov_b32 vcc_hi, 0x55555555')
        a.e('s_waitcnt lgkmcnt(0)')
        for r in (20, 21, 22, 23, 8, 9, 10, 11):
            a.e(f'v_cndmask_b32 v{r}, 0, v{r}, vcc')
        self.last_tiles(range(3))
        a.e(f's_cmp_eq_u32 {sLOC}, 0')
        a.e('s_cbranch_scc1 L_pre_slow')

    def last_tiles(self, which):
        a = self.a
        for tt in which:
            a.wait(vm=f'tile{28 + tt}')
            if tt == 3:
                self.stamp('kvdone')
            dst = [56, 58, 60, 62] * 2 if tt < 3 else [56, 58, 60, 62, 20, 22, 8, 12]
            n1 = 4 if tt < 3 else 8
            for e in range(n1):
                a.e(f'ds_read_b64_tr_b16 {vr(dst[e], 2)}, v{12 + e} offset:{tt * 4096}')
                a.tag_ds(f'v{e}')
            if tt == 3:
                self.rot8('v14', 2)
            for e in range(8):
                a.wait(ds=f'v{e}')
                d = vr(24 + 4 * e, 4)
                a.e(f'v_mfma_f32_16x16x16_bf16 {d}, {vr((20, 22, 8, 10)[tt], 2)}, {vr(dst[e], 2)}, {d}')
                if e + n1 < 8:
                    a.e(f'ds_read_b64_tr_b16 {vr(dst[e], 2)}, v{12 + e + n1} offset:{tt * 4096}')
                    a.tag_ds(f'v{e + n1}')
                if tt == 3 and e >= 4:
                    x = e - 4
                    a.e(f'v_add_f32_dpp v16, v{24 + 4 * x}, v{25 + 4 * x} {DPPI} row_mask:{1 << x} bank_mask:0xf')
        if 3 not in which:
            return
        for e in range(4, 8):
            a.e(f'v_add_f32_dpp v17, v{24 + 4 * e}, v{25 + 4 * e} {DPPI} row_mask:{1 << (e & 3)} bank_mask:0xf')
        a.e('v_mul_f32 v44, s22, v16')
        a.e('v_mul_f32 v45, s22, v17')
        a.e(f'v_lshl_add_u32 v46, v0, 2, {sW8}')
        a.e('v_mov_b32 v47, v14')
        self.stamp('pv1')

    def tail(self, mode):
        a = self.a
        o = self.o
        base = lambda s: int(s[2:s.index(':')])
        self.mode = mode
        if mode == 'slow':
            a.e('L_pre_slow:')
            a.e('s_nop 7')
            a.e('s_waitcnt vmcnt(0)')
        self.last_tiles([3])
        n0 = self.nst
        a.vmq = [['wo', ()]] + [[None, ()] for _ in range(len(o.get('touch', {}).get('s27', [])) if o.get('wo_at', 9) == 27 else 40)]
        l, g = base(WSL), base(WSG)
        a.e(f'L_top_{mode}:')
        self.combine_publish()
        self.stamp('opub')
        a.e(f's_mul_i32 {t0}, {sRES}, {sIT}')
        self.resid_track(G_YB, 20, 'v8', f's_cmp_eq_u32 {t0}, 3')
        a.e(f's_mul_i32 {t0}, {sIT}, {G_IT}')
        a.e(f's_add_u32 s{g}, s{g}, {t0}')
        a.e(f's_addc_u32 s{g + 1}, s{g + 1}, 0')

        def idle_a():
            b = self.a
            self.wuk_prep('v8', 'v9')
            self.wuk_issue('v8', 'v9')
            self.touches('i1', 'v60', 'v10')
            l1 = b.lab('it1')
            b.e(f's_cmp_eq_u32 {sIT}, 1')
            b.e(f's_cbranch_scc1 {l1}')
            self.clear_g1(56)
            self.touches('i0', 'v60', 'v10')
            if o.get('touch', {}).get('i0b'):
                lp = b.lab('lp')
                b.e(f'{lp}:')
                b.e('s_sleep 4')
                b.e(f'buffer_load_dword v12, {vL16}, {WSL}, {oO} offen sc1')
                b.e('s_waitcnt vmcnt(0)')
                b.e('v_cmp_eq_u32 vcc, -1, v12')
                self.retry_to(lp)
                b.e('s_barrier')
                self.touches('i0b', 'v60', 'v10')
            l2 = b.lab('it1')
            b.e(f's_branch {l2}')
            b.e(f'{l1}:')
            self.touches('i3', 'v60', 'v10')
            self.sleep('ia')
            b.e(f'{l2}:')

        def busy_a():
            self.outproj(True)
            self.lnq_tail(G_YA, True)
        self.ool_if(f's_cmp_ge_u32 {sJ}, 24', idle_a, busy_a, True)
        self.qabs()
        self.attn_b()
        if o.get('single'):
            self.red_single()
        else:
            self.red()
            self.uv()

        def nextpass():
            b = self.a
            b.e(f's_cmp_eq_u32 {sIT}, 1')
            b.e(f's_cbranch_scc1 L_final_{mode}')
            b.e(f's_add_u32 s{l}, s{l}, {L_IT}')
            b.e(f's_addc_u32 s{l + 1}, s{l + 1}, 0')
            b.e(f's_mov_b32 s{l + 2}, {L_SZ}')
            b.e(f's_mov_b32 {sIT}, 1')
            if o.get('single'):
                b.e(f's_add_u32 {oC1pub}, {oC1pub}, {1 << 22}')
                b.e(f's_add_u32 {oC1g}, {oC1g}, {1 << 22}')

        def idle_b():
            nextpass()
            self.touches('i2', 'v60', 'v10')
            self.sleep('ib')

        def busy_b():
            self.outproj(False)
            nextpass()
            self.lnq_tail(G_YB, False)
        self.ool_if(f's_cmp_ge_u32 {sJ}, 24', idle_b, busy_b, True)
        self.attn_a3()
        self.nper = self.nst - n0
        self.n0 = n0
        if o.get('stamps'):
            a.e('s_mov_b32 s97, 5')
        a.e(f's_branch L_top_{mode}')
        a.e(f'L_final_{mode}:')
        a.e(f's_cmp_lg_u32 {sRES}, 3')
        a.e('s_cbranch_scc1 L_fin2')
        self.keep_rounding()
        self.resid(G_YB, 10, 'v8', True)
        a.e(f'buffer_store_dword v9, v8, {OUT}, {t0} offen')
        a.e('s_mov_b64 exec, -1')
        self.mode = None

    def build(self):
        a = self.a
        o = self.o
        base = lambda s: int(s[2:s.index(':')])
        self.prologue()
        altb = ''
        if o.get('hi'):
            import copy
            if o['hi'][0]:
                a.e('s_getreg_b32 s0, hwreg(HW_REG_XCC_ID, 0, 3)')
                a.e(f's_lshr_b32 s0, {o["hi"][0]}, s0')
                a.e('s_and_b32 s0, s0, 1')
            else:
                a.e(f's_cmp_ge_u32 {sJ}, 24')
                a.e('s_cselect_b32 s0, 1, 0')
            a.e('s_cbranch_scc1 L_alt')
            alt = Gen(dict(o, win=o['hi'][1]))
            alt.alt = True
            alt.a.uid = 300000
            alt.a.cold = True
            alt.a.vmq = copy.deepcopy(a.vmq)
            alt.make_items()
            alt.issued = self.issued
            alt.nst = self.nst
            alt.a.e('L_alt:')
            alt.stream()
            altb = alt.a.finish()
            altb = altb[:altb.index('L_isl_0:')]
        self.stream()
        self.tail('fast')
        a.e('L_fin2:')
        if o.get('diag_fixed'):
            a.e('L_dfx:')
            a.e('s_memrealtime s[94:95]')
            a.e('s_waitcnt lgkmcnt(0)')
            a.e('s_sub_u32 s94, s94, s100')
            a.e(f's_cmp_lt_u32 s94, {o["diag_fixed"]}')
            a.e('s_cbranch_scc1 L_dfx')
        if o.get('stamps'):
            a.e('s_waitcnt vmcnt(0) lgkmcnt(0)')
            self.stamp('end')
            a.e('s_waitcnt lgkmcnt(0)')
            a.e('v_writelane_b32 v7, s98, 62')
            a.e(f'v_writelane_b32 v7, {sPOLL}, 63')
            a.e('s_getreg_b32 s82, hwreg(HW_REG_XCC_ID, 0, 3)')
            a.e('s_getreg_b32 s83, hwreg(HW_REG_HW_ID)')
            a.e('s_lshl_b32 s83, s83, 4')
            a.e('s_or_b32 s82, s82, s83')
            a.e('v_writelane_b32 v7, s82, 61')
            self.sums(t1, [('s2', 1024), (sV, 256)], STAMP)
            a.e('v_lshlrev_b32 v8, 2, v0')
            a.e(f'buffer_store_dword v7, v8, {WS}, {t1} offen')
        a.e('L_end:')
        a.e('s_endpgm')
        slow = Gen(self.o)
        slow.a.uid = 500000
        slow.a.cold = True
        slow.tail('slow')
        slow.a.e('s_branch L_fin2')
        sb = slow.a.finish()
        sb = sb[:sb.index('L_isl_0:')]
        body = a.finish()
        ref = open('cdna_kernels/' + NAME + '.s.ref').read() if o.get('hdr', True) else ''
        hdr = ''.join(l + '\n' for l in ref.split('\n') if l.startswith(';') and '@launch' not in l and 'Override' not in l and 'grid=ceil' not in l)
        txt = hdr + '; @launch grid=(256,1,1) block=(256,1,1) lds=163840\n'
        txt += DESCR
        txt += '.amdgcn_target "amdgcn-amd-amdhsa--gfx950"\n.text\n'
        txt += f'.globl {NAME}_kernel\n.p2align 8\n.type {NAME}_kernel,@function\n{NAME}_kernel:\n'
        txt += body
        txt += 'L_tailend:\n' + altb + 'L_codeend:\n' + sb
        txt += f"""    s_endpgm
.section .rodata,"a"
.p2align 6
.amdhsa_kernel {NAME}_kernel
  .amdhsa_next_free_vgpr 512
  .amdhsa_next_free_sgpr 102
  .amdhsa_accum_offset 256
  .amdhsa_group_segment_fixed_size 0
  .amdhsa_kernarg_size 112
  .amdhsa_user_sgpr_count 2
  .amdhsa_user_sgpr_kernarg_segment_ptr 1
  .amdhsa_system_sgpr_workgroup_id_x 1
.end_amdhsa_kernel
"""
        return txt


DEFAULT = dict(sleep=dict(h2a=6, h2b=6, h2c=2, ha=2, ha1=5, ia=30, ib=30, hc2=1, hc2b=2, hc4=1, fin=10), pol_c='nt', depth=3,
               touch=dict(w1b=['loc', 'code', 'wuk'], w1c=['loc'], w5=['code'], i0=['Xbwq:0:1', 'Xbwo'], i1=['loc', 'code'], i2=['loc']), wo_e=0, wo_pre=3, red_pre=4, tr_pre=4, lw_pos=1, ckv_late=2, wuv_pos=[1, 3, 5, 7], wo_pos=[1, 7, 13, 19, 25, 31], heat=0, rowm=0x00030003, K={'b4': 0, 'qb3': 0}, pol_wq3='nt',
               late_touch=-1, wo_at=9, warm=0, c1_late=1, ml_early=2, qflag=0, ybar=0, atom_at=4, cnt_at=12, win=6, boost={}, win0=6)

if __name__ == '__main__':
    import json
    opt = dict(DEFAULT)
    out = sys.argv[1]
    if len(sys.argv) > 2:
        opt.update(json.loads(sys.argv[2]))
    g = Gen(opt)
    open(out, 'w').write(g.build())
    print('nops', g.a.nops, 'stamps', g.stnames, g.n0, g.nper)
```

```python
import sys, math, struct
from asmlib import Asm

NAME = 'interleave_layers__mha_block_cached__compressed_kv_cla__decode'


def f32(x):
    return '0x%08x' % struct.unpack('<I', struct.pack('<f', x))[0]


K1 = 1024
L_X = 128 * K1
L_IT = 72 * K1
L_SZ = 56 * K1
L_QA, L_QB, L_OA, L_OB, L_C1ML = 0, 16 * K1, 32 * K1, 40 * K1, 48 * K1
L_STA, L_STB, L_OAL, L_FL = 52 * K1, 52 * K1 + 256, 52 * K1 + 512, 52 * K1 + 640
L_CSA = 56 * K1
GB, G_IT = 0x100000, 384 * K1
G_YA, G_YB, G_QABS, G_C2L, G_C2 = 0, 24 * K1, 48 * K1, 80 * K1, 112 * K1
G_ML = G_C2L
CB = 0x200000
STAMP = 0xc00000
WS_SIZE = 0x1000000
OOB = 0x40000000
CKV = 65536
STG = 131072
ZML = STG + 7168
ZO = STG + 8192 + 7168
ZQ = STG + 2 * 8192 + 7168
K_, V_, CK, DBG, XIN, WQ, WO, BWQ, WUK, WUV, BWO, WS, WSL, WSG, OUT = ['s[%d:%d]' % (4 + 4 * i, 7 + 4 * i) for i in range(15)]
(sX, sJ, sV, sLOC, sW8, sKV, sKG, sIT, sPOLL, sM, sRES, sST, sH, sS,
 t0, t1, t2, t3, t4, t5) = ['s%d' % i for i in range(64, 84)]
MY = 's[84:85]'
(oY, oQA, oQB, oST, oQgA, oSTgA, oWQ, oWO, oWUK, oWUV, oYpub) = ['s%d' % i for i in range(86, 97)]
(oQgB, oSTgB, oQApub, oQAg, oC1pub, oMLpub, oC1g, oMLg, oC2pub, oC2Lpub, oC2g, oC2Lg,
 oOBpub, oOApub, oOALpub, oOALg, oRES, oO) = ['s%d' % i for i in range(4, 22)]
vT, vA, vL16 = 'v2', 'v3', 'v6'
TBL = [0, 8, 9, 1]
DPPI = 'quad_perm:[0,1,2,3]'
FULL = 'row_mask:0xf bank_mask:0xf'
QSCALE = math.log2(math.e) / math.sqrt(128.0)


def vr(a, n):
    return f'v[{a}:{a + n - 1}]' if n > 1 else f'v{a}'


DESCR = """;
;    (LDS-DMA ring) and stay on the CU for the second A layer: K in a0..a255, V in v64..v255 plus four tiles in LDS.
;  * LayerNorm is applied around the projection: q = rstd * (x W - mean * colsum W); softmax partials carry their
;    It also records the die of every workgroup: only if a whole group was seen on one die do its group-local hand-offs
;    use plain stores through that die's L2, otherwise the copy of the code with write-through stores runs.
;  * s_sleep appears only as back-off in front of or inside such polls (an early poll slows the writer down);
"""


class Gen:
    def __init__(self, opt):
        self.o = opt
        self.a = Asm()
        self.nst = 0
        self.stnames = []
        self.mode = None
        self.alt = False
        self.first_only = False

    NOTE = dict(start='descriptors and lane constants ready', kvdone='last V tile landed', pv1='layer 1 attention done',
                opub='attention record published', ogot='records of the group arrived', ypub='projection record published',
                wqrdy='q weights in registers', h2got='projection records arrived', qpub='partial q published',
                qgotB='partial q arrived', qapub='q_abs line published', qagot='q_abs arrived', sbar='scores done', smax='probabilities done',
                c1pub='partial contexts published', mlgot='their maxima and sums arrived', c2pub='group context published',
                c2got='group contexts arrived', dpub='value projection published', qgotA='partial q arrived', qrdy='q ready',
                smaxA='probabilities done', pvA='layer 3 attention done')

    def stamp(self, name, level=1):
        if name in self.NOTE:
            self.a.e('; ---- ' + self.NOTE[name])
        if self.o.get('diag_from') == name:
            l = self.a.lab('dg')
            self.a.e(f's_cselect_b32 s3, 1, 0')
            self.a.e(f's_cmp_eq_u32 {sIT}, 1')
            self.a.e(f's_cbranch_scc1 {l}')
            self.a.e('s_memrealtime s[100:101]')
            self.a.e(f'{l}:')
            self.a.e('s_cmp_eq_u32 s3, 1')
        if self.o.get('stamps', 0) < level or self.mode == 'slow':
            return
        if self.o.get('only') and name not in self.o['only'] and name != 'end':
            return
        a = self.a
        self.nst += 1
        self.stnames.append(name)
        if self.o.get('light'):
            a.e(f's_mov_b32 {sST}, s97')
            a.e('s_mov_b32 s97, s101')
            a.e('s_mov_b32 s101, s100')
            a.e('s_mov_b32 s100, s98')
            a.e('s_memrealtime s[98:99]')
            return
        a.e(f's_mov_b32 m0, {sST}')
        a.e(f's_pack_ll_b32_b16 s98, s98, {sPOLL}')
        a.e('v_writelane_b32 v7, s98, m0')
        a.e(f's_mov_b32 {sST}, {self.nst}')
        a.e(f's_bitset1_b32 {sST}, s97')
        a.e('s_memtime s[98:99]' if self.o.get('clk') else 's_memrealtime s[98:99]')

    def K(self, n, key=None, force=False):
        if key is not None:
            n = self.o.get('K', {}).get(key, n)
        if not self.o.get('warm', 1) and not force:
            return
        for i in range(n):
            self.a.e('v_mov_b32 v0, v0')
            self.a.e('s_nop 2')

    def H(self, key, n, junk):
        n = self.o.get('H', {}).get(key, n if self.o.get('heat', 1) else 0)
        for i in range(n):
            self.a.e(f'v_mfma_f32_16x16x4_f32 {vr(junk, 4)}, v0, v0, 0')

    def Wm(self):
        if self.o.get('warm', 1):
            self.a.e('v_mov_b32 v0, v0')

    def bar(self, n=2, vm=False):
        self.K(n)
        self.Wm()
        self.a.e('s_waitcnt vmcnt(0) lgkmcnt(0)' if vm else 's_waitcnt lgkmcnt(0)')
        self.Wm()
        self.a.e('s_barrier')
        self.Wm()

    def retry_to(self, top):
        a = self.a
        done, retry = a.lab('got'), a.lab('retry')
        a.e(f's_cbranch_vccnz {retry}')
        a.e(f'{done}:')
        a.ool(f'{retry}:\ns_cselect_b32 s3, 1, 0\ns_add_u32 {sPOLL}, {sPOLL}, 1\ns_cmp_gt_u32 {sPOLL}, 200000\ns_nop 1\ns_cbranch_scc0 {top}\n'
              f's_cmp_eq_u32 s3, 1\ns_branch {done}')

    def retry_with(self, lines, wait, chk):
        a = self.a
        done, retry = a.lab('got'), a.lab('retry')
        a.e(f's_cbranch_vccnz {retry}')
        a.e(f'{done}:')
        a.ool(f'{retry}:\ns_cmp_gt_u32 {sPOLL}, 200000\ns_cbranch_scc1 {done}\n' + '\n'.join(lines)
              + f'\ns_add_u32 {sPOLL}, {sPOLL}, 1\n{wait}\ns_branch {chk}')
        return retry

    def ool_if(self, cond, fn, els=None, big=False):
        a = self.a
        go, back = a.lab('go'), a.lab('back')
        a.e(cond)
        a.e(f's_cbranch_scc1 {go}')
        if els and big:
            els()
            a.vmq, a.dsq = [], []
        elif els:
            a.begin_skip()
            els()
            a.end_skip()
        a.e(f'{back}:')
        sub = Asm()
        sub.uid = a.uid + 1000 * (1 + len(a.tail))
        self.a = sub
        sub.e(f'{go}:')
        sub.e('s_nop 1')
        fn()
        sub.e('s_nop 1')
        sub.e(f's_branch {back}')
        self.a = a
        tail, sub.tail = sub.tail, []
        body = sub.finish().split('\n')
        body = [x.strip() for x in body[:[i for i, x in enumerate(body) if x.startswith('L_isl_0')][0]] if x.strip()]
        for k in range(0, len(body), 14):
            part = body[k:k + 14]
            if k + 14 < len(body):
                nxt = a.lab('p')
                part.append(f's_branch {nxt}')
                body[k + 14] = f'{nxt}:\n' + body[k + 14]
            a.ool('\n'.join(part))
        for t in tail:
            a.ool(t)

    def lstore(self, lines):
        a = self.a
        if self.mode is not None:
            for l in lines:
                a.e(l + ' sc1' if self.mode == 'slow' and l.startswith('buffer_') else l)
            return
        slow, back = a.lab('slow'), a.lab('back')
        a.e(f's_cbranch_scc1 {slow}')
        for l in lines:
            a.e(l)
        a.e(f'{back}:')
        a.ool(('' if a.cold else '#cold') + f'{slow}:\ns_nop 7\n' + '\n'.join(l + ' sc1' if l.startswith('buffer_') else l for l in lines) + f'\ns_branch {back}')

    def lcmp(self):
        if self.mode is None:
            self.a.e(f's_cmp_eq_u32 {sLOC}, 0')

    def poll_begin(self):
        a = self.a
        self.ptop, self.pretry, self.pdone = a.lab('poll'), a.lab('retry'), a.lab('got')
        a.e(f'{self.ptop}:')

    def poll_end(self, vmax):
        a = self.a
        a.e(f'v_cmp_eq_u32 vcc, -1, {vmax}')
        a.e(f's_cbranch_vccnz {self.pretry}')
        a.e(f'{self.pdone}:')
        a.ool(f'{self.pretry}:\ns_add_u32 {sPOLL}, {sPOLL}, 1\ns_cmp_gt_u32 {sPOLL}, 200000\ns_cbranch_scc1 {self.pdone}\ns_nop 7\ns_branch {self.ptop}')

    def poll_cmp(self, vmax):
        self.a.e(f'v_cmp_eq_u32 vcc, -1, {vmax}')

    def poll_br(self, last=True):
        a = self.a
        done = a.lab('got')
        retry = a.lab('retry')
        a.e(f's_cbranch_vccnz {retry}')
        a.e(f'{done}:')
        a.ool(f'{retry}:\ns_cselect_b32 s3, 1, 0\ns_add_u32 {sPOLL}, {sPOLL}, 1\ns_cmp_gt_u32 {sPOLL}, 200000\ns_cbranch_scc0 {self.ptop}\n'
              f's_cmp_eq_u32 s3, 1\ns_branch {done}')

    def pipe_poll(self, ld, vmax, regs, key, mid=()):
        a = self.a
        n = sum(x.startswith('buffer') for x in ld)
        if self.o.get('pipe', {}).get(key, 1):
            self.poll_begin()
            for x in ld:
                self.H(key + '0', 0, 40)
                a.e(x)
            self.H(key + '1', 0, 40)
            a.e(f's_waitcnt vmcnt({n})')
            self.maxchain(vmax, regs, True)
            self.poll_cmp(vmax)
            for x in mid:
                a.e(x)
            self.poll_br()
        else:
            a.e('s_waitcnt vmcnt(0)')
            self.late_check(vmax, regs, ld)

    def late_check(self, vmax, regs, reissue):
        a = self.a
        chk, retry, done = a.lab('chk'), a.lab('retry'), a.lab('done')
        a.e(f'{chk}:')
        self.maxchain(vmax, regs, True)
        a.e(f'v_cmp_eq_u32 vcc, -1, {vmax}')
        a.e(f's_cbranch_vccnz {retry}')
        a.e(f'{done}:')
        a.ool(f'{retry}:\ns_add_u32 {sPOLL}, {sPOLL}, 1\ns_cmp_gt_u32 {sPOLL}, 200000\ns_cbranch_scc1 {done}\n'
              + '\n'.join(reissue) + f'\ns_waitcnt vmcnt(0)\ns_branch {chk}')

    def maxchain(self, vmax, regs, first):
        a = self.a
        regs = list(regs)
        if first:
            if len(regs) >= 3:
                a.e(f'v_max3_u32 {vmax}, v{regs[0]}, v{regs[1]}, v{regs[2]}')
                regs = regs[3:]
            elif len(regs) == 2:
                a.e(f'v_max_u32 {vmax}, v{regs[0]}, v{regs[1]}')
                regs = []
            else:
                a.e(f'v_mov_b32 {vmax}, v{regs[0]}')
                regs = []
        while len(regs) >= 2:
            a.e(f'v_max3_u32 {vmax}, {vmax}, v{regs[0]}, v{regs[1]}')
            regs = regs[2:]
        if regs:
            a.e(f'v_max_u32 {vmax}, {vmax}, v{regs[0]}')

    def sleep(self, key):
        n = self.o.get('sleep', {}).get(key, 0)
        if n:
            self.a.e(f's_sleep {n}')

    def wave_only(self, w):
        a = self.a
        l = a.lab('notw')
        a.e(f's_cmp_lg_u32 {sV}, {w}')
        a.e(f's_cbranch_scc1 {l}')
        a.begin_skip()
        return l

    def end_only(self, lab):
        self.a.end_skip()
        self.a.e(f'{lab}:')

    def pos_bytes(self, dst, tmp):
        a = self.a
        a.e(f'v_lshlrev_b32 {dst}, 3, v0')
        a.e(f'v_and_b32 {dst}, 16, {dst}')
        a.e(f'v_and_or_b32 {dst}, v0, 12, {dst}')

    def sp_addr(self, dst, base):
        a = self.a
        a.e(f'v_and_b32 {dst}, 48, v0')
        a.e(f'v_lshlrev_b32 {dst}, 1, {dst}')
        a.e(f'v_and_or_b32 {dst}, {vL16}, 16, {dst}')
        if base:
            a.e(f'v_add_u32 {dst}, {base}, {dst}')

    def sums(self, dst, terms, const=0):
        a = self.a
        first = True
        for reg, mul in terms:
            d = dst if first else t0
            if mul & (mul - 1) == 0:
                a.e(f's_lshl_b32 {d}, {reg}, {mul.bit_length() - 1}')
            else:
                a.e(f's_mul_i32 {d}, {reg}, {mul}')
            if not first:
                a.e(f's_add_u32 {dst}, {dst}, {t0}')
            first = False
        if const:
            a.e(f's_add_u32 {dst}, {dst}, {const}')

    def k64_addr(self, vt, vu):
        a = self.a
        a.e(f'v_lshrrev_b32 {vt}, 2, v0')
        a.e(f'v_lshlrev_b32 {vt}, 13, {vt}')
        a.e(f'v_and_or_b32 {vt}, {vL16}, 48, {vt}')

    def wq_prep(self, vt, vu):
        a = self.a
        a.e(f'v_lshrrev_b32 {vu}, 4, v0')
        a.e(f'v_lshlrev_b32 {vt}, 5, {vu}')
        a.e(f'v_xor_b32 {vt}, {vt}, {vL16}')
        a.e(f's_lshl_b32 {t1}, {sV}, 7')
        a.e(f'v_xor_b32 {vt}, {t1}, {vt}')
        a.e(f'v_and_b32 {vt}, 0xf0, {vt}')
        a.e(f'v_lshl_or_b32 {vt}, {vu}, 13, {vt}')

    def wq_issue(self, srd, vt, vu, parts, pol=''):
        a = self.a
        for i in parts:
            if i == parts[0] or i == 3:
                a.e(f's_add_u32 m0, {sW8}, {(i // 3) * 3072}')
            a.e(f's_add_u32 {t1}, {oWQ}, {i * 4 * 8192 - (i % 3) * 1024}')
            a.e(f'buffer_load_dwordx4 {vt}, {srd}, {t1} offen offset:{(i % 3) * 1024} {pol} lds')
        a.tag_vm('wq')

    def dma_wq(self, srd, vt, vu, pol=''):
        self.wq_prep(vt, vu)
        self.wq_issue(srd, vt, vu, list(range(6)), pol)

    def dma_wuv(self, vt):
        a = self.a
        pol = self.o.get('pol_w', '')
        self.k64_addr(vt, None)
        for i in range(4):
            a.e(f's_add_u32 m0, {sW8}, {i * 1024}')
            a.e(f's_add_u32 {t1}, {oWUV}, {i * 16 * 8192}')
            a.e(f'buffer_load_dwordx4 {vt}, {WUV}, {t1} offen {pol} lds')
        a.tag_vm('wuv')

    def wuk_prep(self, vt, vu):
        a = self.a
        a.e(f'v_lshrrev_b32 {vu}, 4, v0')
        a.e(f'v_lshlrev_b32 {vt}, 5, {vu}')
        a.e(f'v_xor_b32 {vt}, {vt}, {vL16}')
        a.e(f'v_and_b32 {vt}, 0xf0, {vt}')
        a.e(f'v_lshl_or_b32 {vt}, {vu}, 13, {vt}')

    def wuk_issue(self, vt, vu):
        a = self.a
        pol = self.o.get('pol_wuk', '')
        a.e(f's_mov_b32 m0, {sW8}')
        for q in range(4):
            a.e(f's_add_u32 {t1}, {oWUK}, {q * (4 * 8192 - 1024)}')
            if q:
                a.e(f'v_xor_b32 {vu}, {TBL[q] << 4}, {vt}')
            a.e(f'buffer_load_dwordx4 {vu if q else vt}, {WUK}, {t1} offen offset:{q * 1024} {pol} lds')
        a.tag_vm('wuk')

    def wo_prep(self, R, tmp, second=True):
        a = self.a
        for i in range(3):
            a.e(f'v_add_u32 v{R + i}, {64 * i}, v0')
            a.e(f'v_mul_u32_u24 {tmp}, 21846, v{R + i}')
            a.e(f'v_lshrrev_b32 {tmp}, 16, {tmp}')
            a.e(f'v_mul_u32_u24 {tmp}, {1152 - 48}, {tmp}')
            a.e(f'v_lshl_add_u32 v{R + i}, v0, 4, {tmp}')
        if second:
            a.e(f's_add_u32 {t5}, {oWO}, {64 * 1152}')

    def wo_lines(self, srd, R, pol='', base=sW8):
        out = []
        for h in range(2):
            out.append(f's_add_u32 m0, {base}, {h * 3072}')
            for i in range(3):
                out.append(f'buffer_load_dwordx4 v{R + i}, {srd}, {t5 if h else oWO} offen offset:{i * 1024} {pol} lds')
        return out

    def wo_group(self, srd, R, lo, hi):
        out = []
        for k in range(lo, hi):
            h, i = divmod(k, 3)
            if k == lo or i == 0:
                out.append(f's_add_u32 m0, {sW8}, {h * 3072}')
            out.append(f'buffer_load_dwordx4 v{R + i}, {srd}, {t5 if h else oWO} offen offset:{i * 1024} lds')
        return out

    def woq_prep(self, R):
        a = self.a
        a.e(f'v_lshrrev_b32 v{R}, 2, v0')
        a.e(f'v_mul_u32_u24 v{R}, 1152, v{R}')
        a.e(f'v_and_or_b32 v{R}, {vL16}, 48, v{R}')
        self.oob((f'v{R}', f'v{R}'), (0x88888888, 0x88888888))

    def woq_group(self, srd, R, lo, hi):
        out = []
        for k in range(lo, hi):
            if k == lo or k == 4:
                out.append(f's_add_u32 m0, {sW8}, {(k >> 2) * 4096}')
            out.append(f's_add_u32 {t5}, {oWO}, {k * 16 * 1152 - (k & 3) * 1024}')
            out.append(f'buffer_load_dwordx4 v{R}, {srd}, {t5} offen offset:{(k & 3) * 1024} lds')
        return out

    def dma_wo(self, srd, R, tmp):
        self.wo_prep(R, tmp)
        for x in self.wo_lines(srd, R, self.o.get('pol_wo1', '')):
            self.a.e(x)
        self.a.tag_vm('wo')

    def touch(self, what, vt, vd):
        a = self.a
        if what == 'code':
            l = a.lab('pc')
            self.sums(t1, [(sJ, 1024), (sV, 256)])
            a.e(f'v_lshl_add_u32 {vt}, v0, 7, {t1}')
            a.e(f'v_min_u32 {vt}, L_tailend-L_top_fast, {vt}')
            a.e('s_getpc_b64 s[78:79]')
            a.e(f'{l}:')
            a.e(f's_add_u32 s78, s78, L_top_fast-{l}')
            a.e(f's_addc_u32 s79, s79, {0 if self.mode is None else -1}')
            a.e('s_mov_b64 exec, 3')
            a.e(f'global_load_dword {vd}, {vt}, s[78:79]')
            a.e('s_mov_b64 exec, -1')
            return
        if what.startswith('Xclr'):
            for r in range(56, 60):
                a.e(f'v_mov_b32 v{r}, -1')
            self.sums(t1, [(sX, 1 << 19), (sJ, 65536), (sV, 16384)], CB + (int(what[4]) << 22) - 24 * 65536)
            for k in range(16):
                a.e(f'buffer_store_dwordx4 v[56:59], {vL16}, {WS}, {t1} offen offset:{(k & 3) * 1024} sc1')
                if k & 3 == 3:
                    a.e(f's_add_u32 {t1}, {t1}, 4096')
            return
        if what[0] == 'X':
            what, lo, hi = (what.split(':') + ['0', '9'])[:3]
            if what in ('Xbwq', 'Xwq', 'Xwuk', 'Xwuv'):
                srd, rows = {'Xbwq': (BWQ, 18), 'Xwq': (WQ, 18), 'Xwuk': (WUK, 12), 'Xwuv': (WUV, 16)}[what]
                a.e(f'v_lshrrev_b32 {vt}, 3, v0')
                a.e(f'v_lshlrev_b32 {vt}, 6, {vt}')
                a.e(f'v_and_or_b32 {vt}, v0, 7, {vt}')
                a.e(f'v_lshlrev_b32 {vt}, 7, {vt}')
                self.sums(t1, [(sX, 1024), (sJ, 4 * rows * 8192), (sV, rows * 8192)], (1 << 32) - 96 * rows * 8192)
                for k in range(0, rows, 8):
                    if rows - k < 8:
                        a.e(f's_mov_b32 exec_lo, {(1 << ((rows - k) * 8)) - 1}')
                        a.e('s_mov_b32 exec_hi, 0')
                    if int(lo) <= k // 8 < int(hi):
                        a.e(f'buffer_load_dword {vd}, {vt}, {srd}, {t1} offen')
                    a.e(f's_add_u32 {t1}, {t1}, 65536')
                a.e('s_mov_b64 exec, -1')
                return
            srd, base, per = {'Xc1': (WS, [(sX, 1 << 19)], 16384), 'Xbwo': (BWO, [(sX, 512 * 1152)], 18432), 'Xwo': (WO, [(sX, 512 * 1152)], 18432)}[what]
            a.e(f'v_lshlrev_b32 {vt}, 7, v0')
            self.sums(t1, base + [(sJ, 4 * per), (sV, per)], (CB if what == 'Xc1' else 0) - 96 * per + (1 << 32 if what != 'Xc1' else 0))
            for k in range(0, per, 8192):
                if per - k < 8192:
                    a.e(f's_mov_b64 exec, {(1 << ((per - k) // 128)) - 1}')
                if int(lo) <= k // 8192 < int(hi):
                    a.e(f'buffer_load_dword {vd}, {vt}, {srd}, {t1} offen')
                a.e(f's_add_u32 {t1}, {t1}, 8192')
            a.e('s_mov_b64 exec, -1')
            return
        half = None
        if what[-1] in '01' and what != 'c1':
            what, half = what[:-1], int(what[-1])
        if what in ('wq', 'bwq', 'wuv', 'wuk'):
            srd = {'wq': WQ, 'bwq': BWQ, 'wuv': WUV, 'wuk': WUK}[what]
            a.e(f'v_lshrrev_b32 {vt}, 3, v0')
            a.e(f'v_lshlrev_b32 {vt}, 6, {vt}')
            a.e(f'v_and_or_b32 {vt}, v0, 7, {vt}')
            a.e(f'v_lshlrev_b32 {vt}, 7, {vt}')
            rows = 5 if what in ('wq', 'bwq') else 4
            self.sums(t1, [(sJ, 4 * rows * 8192), (sV, rows * 8192), (sX, 1024)])
            n = 8 * rows
        elif what == 'loc':
            srd = WS
            a.e(f'v_lshlrev_b32 {vt}, 7, v0')
            self.sums(t1, [(sX, L_X), (sJ, 4096), (sV, 1024)])
            n = 8
        elif what == 'c1h':
            srd = WS
            a.e(f'v_lshlrev_b32 {vt}, 7, v0')
            self.sums(t1, [(sX, 1 << 19), (sJ, 16384), (sV, 2048)], CB + 8192)
            n = 16
        elif what == 'c1':
            srd = WS
            a.e(f'v_lshlrev_b32 {vt}, 7, v0')
            self.sums(t1, [(sX, 1 << 19), (sJ, 16384), (sV, 4096)], CB)
            n = 32
        else:
            srd = {'wo': WO, 'bwo': BWO}[what]
            a.e(f'v_lshlrev_b32 {vt}, 7, v0')
            self.sums(t1, [(sX, 512 * 1152), (sJ, 18432), (sV, 4608)])
            n = 36
        if self.first_only:
            a.e(f's_cmp_eq_u32 {sIT}, 0')
            a.e(f's_cselect_b32 {t1}, {t1}, {OOB}')
        m = (1 << n) - 1
        if half == 0:
            m = (1 << (n // 2)) - 1
        elif half == 1:
            m ^= (1 << (n // 2)) - 1
        a.e(f's_mov_b32 exec_lo, {m & 0xffffffff}')
        a.e(f's_mov_b32 exec_hi, {m >> 32}')
        if vd is None:
            a.e(f's_add_u32 m0, {sW8}, 1024')
            a.e(f'buffer_load_dword {vt}, {srd}, {t1} offen lds')
        else:
            a.e(f'buffer_load_dword {vd}, {vt}, {srd}, {t1} offen')
        a.e('s_mov_b64 exec, -1')

    def touches(self, where, vt, vd):
        for w in self.o.get('touch', {}).get(where, []):
            self.first_only = w.endswith('!')
            self.touch(w.rstrip('!'), vt, vd)

    def lnq_addr(self):
        a = self.a
        a.e('v_lshrrev_b32 v52, 4, v0')
        a.e('v_bfe_u32 v53, v0, 2, 2')
        a.e('v_lshl_add_u32 v52, v52, 5, v53')
        a.e('v_and_b32 v53, 31, v0')
        a.e('v_lshlrev_b32 v53, 3, v53')
        a.e('v_lshl_or_b32 v52, v52, 8, v53')
        a.e(f's_lshl_b32 {t0}, {sV}, 6')
        a.e(f's_add_u32 {t0}, {t0}, {STG}')
        a.e(f'v_xor_b32 v52, {t0}, v52')
        a.e('v_xor_b32 v54, 32, v52')

    def lnq_prep(self):
        a = self.a
        a.wait(vm='wq')
        a.e('s_barrier')
        for rho in range(3):
            for tau in range(2):
                for half in range(2):
                    a.e(f'ds_read_b64_tr_b16 {vr(28 + 8 * rho + 4 * tau + 2 * half, 2)}, v{52 + 2 * tau} offset:{2048 * rho + 1024 * half}')
        a.e('s_waitcnt lgkmcnt(0)')
        a.e('s_barrier')

    def lnq_rows(self):
        a = self.a
        a.e('v_mov_b32 v53, 0x3f803f80')
        a.e(f's_lshl_b64 s[82:83], {MY}, 8')
        a.e('v_cndmask_b32 v16, 0, v53, s[82:83]')
        a.e('v_mov_b32 v17, v16')
        for r in range(18, 28, 2):
            a.e(f'v_mov_b64 {vr(r, 2)}, v[16:17]')

    def lnq_mfma(self, rho):
        a = self.a
        A = vr(16 + 4 * rho, 4)
        c = (lambda r: '0') if rho == 0 else (lambda r: r)
        return [f'v_mfma_f32_16x16x32_bf16 v[60:63], {A}, {A}, {c("v[60:63]")}',
                f'v_mfma_f32_16x16x32_bf16 v[52:55], {A}, {vr(28 + 8 * rho, 4)}, {c("v[52:55]")}',
                f'v_mfma_f32_16x16x32_bf16 v[56:59], {A}, {vr(32 + 8 * rho, 4)}, {c("v[56:59]")}']

    def lnq_reduce(self, isb, chk=False):
        a = self.a
        a.e('v_pk_add_f32 v[60:61], v[60:61], v[62:63]')
        a.e('v_add_f32 v60, v60, v61')
        if chk:
            a.e('v_cmp_u_f32 vcc, v60, v60')
        a.e('v_pk_add_f32 v[52:53], v[52:53], v[54:55]')
        a.e('v_mov_b32 v61, v60')
        a.e('v_pk_add_f32 v[56:57], v[56:57], v[58:59]')
        a.e('v_add_f32 v52, v52, v53')
        a.e('v_permlane16_swap_b32 v60, v61')
        a.e('v_add_f32 v56, v56, v57')
        a.e('v_add_f32 v60, v60, v61')
        a.e('v_permlane16_swap_b32 v52, v56')
        a.e(f'v_add_f32_dpp v60, v60, v60 quad_perm:[1,0,3,2] {FULL}')
        a.e('v_add_f32 v52, v52, v56')
        self.lcmp()
        a.e(f'v_add_f32_dpp v60, v60, v60 quad_perm:[2,3,0,1] {FULL}')
        if isb:
            a.e(f'v_mov_b32_dpp v53, v52 quad_perm:[1,0,3,2] {FULL}')
            a.e('v_cvt_pk_bf16_f32 v52, v52, v53')
        a.e(f'v_add_f32_dpp v60, v60, v60 row_half_mirror {FULL}')

    def lnq_pubaddr(self, isb, first):
        a = self.a
        if isb:
            self.pos_bytes('v14', None)
            a.e('v_and_b32 v15, 16, v0')
            a.e('v_lshl_or_b32 v14, v15, 4, v14')
            a.e('v_and_b32 v15, 32, v0')
            a.e('v_lshl_or_b32 v14, v15, 6, v14')
        else:
            a.e('v_and_b32 v14, 31, v0')
            a.e('v_lshlrev_b32 v14, 2, v14')
            if first:
                a.e('v_lshrrev_b32 v15, 5, v0')
                a.e(f'v_mul_u32_u24 v15, {L_CSA - L_QA}, v15')
                a.e('v_add_u32 v14, v14, v15')
        a.e('v_lshrrev_b32 v15, 1, v0')
        if isb:
            self.oob(('v14', 'v14'), (0xaaaaaaaa, 0xaaaaaaaa))
        elif not first:
            self.oob(('v14', 'v14'), (0, 0xffffffff))
        if first or not self.o.get('mst', 1):
            self.oob(('v15', 'v15'), (0xfffffefe, 0xffffffff))
            return
        a.e(f's_sub_u32 {t0}, {oST}, {oQB if isb else oQA}')
        if isb:
            a.e(f's_add_u32 {t0}, {t0}, 256')
        a.e(f'v_writelane_b32 v14, {t0}, {1 if isb else 32}')
        a.e(f's_add_u32 {t0}, {t0}, 4')
        a.e(f'v_writelane_b32 v14, {t0}, {9 if isb else 40}')
        a.e('s_mov_b64 s[22:23], 0x202')

    def lnq_publish(self, isb, first, q='v52', st='v60', qa='v14', sa='v15'):
        if not first and self.o.get('mst', 1):
            self.a.e(f'v_cndmask_b32 {q}, {q}, {st}, s[22:23]' if isb else f'v_permlane32_swap_b32 {q}, {st}')
            self.lstore([f'buffer_store_dword {q}, {qa}, {WSL}, {oQB if isb else oQA} offen'])
            return
        self.lstore([f'buffer_store_dword {q}, {qa}, {WSL}, {oQB if isb else oQA} offen',
                     f'buffer_store_dword {st}, {sa}, {WSL}, {oST} offen offset:{256 if isb else 0}'])

    def keep_rounding(self):
        a = self.a
        a.e(f's_cmp_eq_u32 {sRES}, 3')
        a.e('s_cselect_b64 vcc, -1, 0')
        a.e('v_lshlrev_b32 v36, 16, v34')
        a.e('v_and_b32 v37, 0xffff0000, v34')
        a.e('v_pk_add_f32 v[32:33], v[32:33], v[36:37] neg_lo:[0,1] neg_hi:[0,1]')
        a.e('v_cndmask_b32 v4, 0, v32, vcc')
        a.e('v_cndmask_b32 v5, 0, v33, vcc')

    def lnq_tail(self, goff, isb):
        a = self.a
        pol = self.o.get('pol_bwq', '') if isb else self.o.get('pol_wq3', '')
        if self.o.get('wq_hoist', 1):
            self.wq_issue(BWQ if isb else WQ, 'v17', None, list(range(6)), pol)
            a.e('s_barrier')
        self.keep_rounding()
        if self.o.get('ybar', 1):
            a.e('s_barrier')
        self.lnq_rows()
        a.e('v_lshrrev_b32 v12, 2, v0')
        a.e('v_mul_u32_u24 v12, 3072, v12')
        a.e(f'v_and_or_b32 v12, {vL16}, 48, v12')
        a.e(f's_add_u32 {t4}, {oY}, {goff}')
        a.e(f's_add_u32 {t5}, {sW8}, 6144')
        if not self.o.get('wq_hoist', 1):
            self.dma_wq(BWQ if isb else WQ, 'v8', 'v9', pol)
            a.e('s_barrier')
        self.lnq_addr()
        self.lnq_pubaddr(isb, False)
        a.e('v_and_b32 v11, 48, v0')
        a.e('v_lshlrev_b32 v11, 3, v11')
        a.e('v_and_or_b32 v11, v0, 7, v11')
        a.e('v_lshlrev_b32 v11, 6, v11')
        a.e(f'v_add_u32 v11, {STG + 6144}, v11')
        a.e('v_mov_b32 v13, 0')
        if isb:
            self.wuk_prep('v8', 'v9')

            def clear1():
                self.clear_g1(56)
                self.sleep('h2c')
            self.ool_if(f's_cmp_eq_u32 {sIT}, 0', clear1, lambda: self.sleep('h2a'))
        else:
            if self.o.get('wo_h2', 0):
                self.wo_prep(56, 'v59', False)
            self.sleep('h2b')
        ld = [f's_mov_b32 m0, {t5}', 's_mov_b64 exec, 0x77777777',
              f'buffer_load_dword v13, v12, {WSG}, {t4} offen sc1',
              f'buffer_load_dwordx4 v12, {WSG}, {t4} offen sc1 lds',
              's_mov_b64 exec, -1']
        for i, x in enumerate(ld):
            a.e(x)
            if i in (2, 3):
                a.tag_vm(f'y{i}')
        self.touches('w1b' if isb else 'w1c', 'v60', 'v10')
        self.lnq_prep()
        self.stamp('wqrdy', 2)
        if isb:
            self.wuk_issue('v8', 'v9')
        else:
            for x in self.wo_group(WO, 56, 0, self.o.get('wo_h2', 0)):
                a.e(x)
        chk, again = a.lab('chk'), a.lab('again')
        a.wait(vm='y2')
        a.e(f'{chk}:')
        a.e('v_cmp_eq_u32 vcc, -1, v13')
        a.wait(vm='y3')
        again = self.retry_with(ld, 's_waitcnt vmcnt(0)', chk)
        a.e(f's_mov_b64 exec, {MY}')
        a.e('s_barrier')
        for rho in range(3):
            a.e(f'ds_read_b128 {vr(16 + 4 * rho, 4)}, v11 offset:{16 * rho}')
            a.tag_ds(f'a{rho}')
        fl = isb and self.o.get('qflag', 1)
        if fl:
            self.lstore([f'buffer_store_dword v0, off, {WSL}, {t3} offset:{L_FL - L_OAL}'])
        a.e('s_mov_b64 exec, -1')
        self.stamp('h2got', 2)
        if fl:
            a.e('v_and_b32 v9, 7, v0')
            a.e('v_lshlrev_b32 v9, 2, v9')
        self.H('l1', 0, 56)
        mm = [self.lnq_mfma(rho) for rho in range(3)]
        for rho in range(3):
            a.wait(ds=f'a{rho}')
            a.e(mm[rho][0])
        g = ['v_pk_add_f32 v[60:61], v[60:61], v[62:63]', 'v_add_f32 v62, v60, v61', 'v_add_f32 v60, v60, v61', 'v_cmp_u_f32 vcc, v62, v62',
             'v_permlane16_swap_b32 v60, v62', 'v_add_f32 v60, v60, v62',
             f'v_add_f32_dpp v60, v60, v60 quad_perm:[1,0,3,2] {FULL}', f'v_add_f32_dpp v60, v60, v60 quad_perm:[2,3,0,1] {FULL}',
             f'v_add_f32_dpp v60, v60, v60 row_half_mirror {FULL}']
        a.e(mm[0][1]); a.e('s_nop 1')
        a.e(mm[1][1]); a.e('s_nop 1')
        a.e(mm[2][1]); a.e('s_nop 0'); a.e(g[0])
        a.e(mm[0][2]); a.e(g[1]); a.e(g[2])
        a.e(mm[1][2]); a.e(g[3]); a.e(g[4])
        a.e(mm[2][2]); a.e(g[5])
        a.e('v_pk_add_f32 v[52:53], v[52:53], v[54:55]')
        a.e('v_add_f32 v52, v52, v53')
        a.e(g[6])
        a.e(g[7])
        a.e('v_pk_add_f32 v[56:57], v[56:57], v[58:59]')
        a.e('v_add_f32 v56, v56, v57')
        a.e(g[8])
        again2 = a.lab('again')
        self.retry_to(again2)
        a.e('v_permlane16_swap_b32 v52, v56')
        a.e('v_add_f32 v52, v52, v56')
        if isb:
            a.e(f'v_mov_b32_dpp v53, v52 quad_perm:[1,0,3,2] {FULL}')
            a.e('v_cvt_pk_bf16_f32 v52, v52, v53')
        a.ool(f'{again2}:\ns_barrier\ns_branch {again}')
        if fl == 1:
            a.e(f'buffer_load_dword v10, v9, {WSL}, {oOALg} offen offset:{L_FL - L_OAL} sc1')
            a.tag_vm('fl')
        self.lnq_publish(isb, False)
        if fl == 2:
            a.e(f'buffer_load_dword v10, v9, {WSL}, {oOALg} offen offset:{L_FL - L_OAL} sc1')
            a.tag_vm('fl')
        self.stamp('qpub')

    def clear_g1(self, R):
        b = self.a
        for r in range(R, R + 4):
            b.e(f'v_mov_b32 v{r}, -1')
        gw = 128 if self.o.get('single') else 384
        self.sums(t1, [(sX, 128 * gw), (sJ, 4 * gw), (sV, gw)], GB + G_IT)
        b.e(f's_mov_b64 exec, {(1 << (gw // 16)) - 1}')
        b.e(f'buffer_store_dwordx4 {vr(R, 4)}, {vL16}, {WS}, {t1} offen sc1')
        b.e('s_mov_b64 exec, -1')
        if self.o.get('clr_h2') is not None:
            fl = self.o['clr_h2'] or ('sc1' if self.mode == 'slow' else '')
            for x in self.clear_c1(R, 'v60', 'v61'):
                b.e(x + ' ' + fl if x.startswith('buffer') else x)

    def c_addr(self, va):
        out = [f'v_and_b32 {va}, 48, v0', f'v_lshlrev_b32 {va}, 4, {va}', f'v_and_or_b32 {va}, v0, 8, {va}']
        if self.o.get('cswz', 1):
            out += [f'v_lshlrev_b32 {va}, 7, {va}', f'v_or_b32 {va}, {va}, v0', f'v_lshlrev_b32 {va}, 4, {va}', f'v_xor_b32 {va}, {oC2g}, {va}']
        else:
            out += [f'v_lshlrev_b32 {va}, 7, {va}', f'v_and_or_b32 {va}, v0, 7, {va}', f'v_lshlrev_b32 {va}, 4, {va}']
        return out

    def clear_c1(self, R, va, vt):
        b = self.a
        for r in range(R, R + 4):
            b.e(f'v_mov_b32 v{r}, -1')
        if self.o.get('single'):
            for x in self.c_addr(va):
                b.e(x)
            for r in range(4):
                b.e(f's_add_u32 {t1}, {oC1pub}, {r * 131072}')
                b.e(f'buffer_store_dwordx4 {vr(R, 4)}, {va}, {WS}, {t1} offen sc1')
            return []
        b.e(f'v_lshrrev_b32 {va}, 4, v0')
        b.e(f'v_and_b32 {vt}, 0xf0, {vL16}')
        b.e(f'v_lshl_or_b32 {va}, {va}, 16, {vt}')
        out = []
        for q in range(4):
            out.append(f's_add_u32 {t1}, {oC1pub}, {q * 4096}')
            out.append(f'buffer_store_dwordx4 {vr(R, 4)}, {va}, {WS}, {t1} offen')
        return out

    def oob(self, reg, mask):
        a = self.a
        a.e(f's_mov_b32 vcc_lo, {mask[0]}')
        a.e(f's_mov_b32 vcc_hi, {mask[1]}')
        a.e(f'v_cndmask_b32 {reg[0]}, {reg[1]}, 2.0, vcc')

    def c1_addr(self, dst, tmp):
        a = self.a
        a.e(f'v_lshrrev_b32 {tmp}, 4, v0')
        a.e(f'v_and_b32 {dst}, 0xf0, {vL16}')
        a.e(f'v_lshl_or_b32 {dst}, {tmp}, 12, {dst}')

    def stats_const(self, C):
        return f'v_mov_b32 v{C}, {f32(64.0 / QSCALE ** 2)}'

    def stats(self, S, C):
        out = []
        for c in (4, 2, 1):
            out.append(f'v_add_f32_dpp v{S + 1}, v{S + 1}, v{S + 1} row_ror:{c} {FULL}')
            out.append(f'v_add_f32_dpp v{S}, v{S}, v{S} row_ror:{c} {FULL}')
        out.append(f'v_mul_f32 v{S + 1}, {f32(1.0 / (64 * 576))}, v{S + 1}')
        out.append(f'v_mul_f32 v{S}, {f32(1.0 / (64 * 576))}, v{S}')
        out.append(f'v_fma_f32 v{S}, -v{S + 1}, v{S + 1}, v{S}')
        out.append(f'v_max_f32 v{S}, 0, v{S}')
        out.append(f'v_fmaak_f32 v{S}, v{C}, v{S}, {f32(1e-5 / QSCALE ** 2)}')
        out.append(f'v_rsq_f32 v{S}, v{S}')
        return out

    def mix(self, x, y):
        x, y = list(x), list(y)
        while x or y:
            if x:
                self.a.e(x.pop(0))
            if y:
                self.a.e(y.pop(0))

    def resid(self, goff, base, va, final):
        a = self.a
        a.e(f'v_lshlrev_b32 {va}, 2, v0')
        a.e(f's_add_u32 {t2}, {oRES}, {goff}')
        a.e('s_mov_b64 exec, 0xfff')
        if final:
            self.sleep('fin')
        self.poll_begin()
        for i in range(8):
            if i & 1 == 0:
                a.e(f's_add_u32 {t3}, {t2}, {i * 3072}')
            a.e(f'buffer_load_dword v{base + i}, {va}, {WSG}, {t3} offen offset:{(i & 1) * 3072} sc1')
        a.e(f'v_mov_b32 v{base + 8}, 0x3f80')
        a.e(f'v_mov_b32 v{base + 9}, 0x3f800000')
        A = base + 10
        a.e(f'v_mov_b64 {vr(A, 2)}, v[4:5]')
        for i in range(8):
            if i & 1 == 0:
                a.e(f's_waitcnt vmcnt({6 - i})')
            a.e(f'v_dot2c_f32_bf16 v{A}, v{base + 8}, v{base + i}')
            a.e(f'v_dot2c_f32_bf16 v{A + 1}, v{base + 9}, v{base + i}')
        a.e('s_nop 2')
        a.e(f'v_cmp_u_f32 vcc, v{A}, v{A + 1}')
        if final:
            a.e(f'v_cvt_pk_bf16_f32 v9, v{A}, v{A + 1}')
            a.e(f's_mul_i32 {t0}, {sJ}, 48')
        self.poll_br()
        if not final:
            a.e(f'v_mov_b64 v[4:5], {vr(A, 2)}')

    def resid_track(self, goff, base, va, cond):
        a = self.a
        go, back = a.lab('res'), a.lab('resback')
        a.e(cond)
        a.e(f's_cbranch_scc1 {go}')
        a.e(f'{back}:')
        sub = Asm()
        sub.uid = a.uid + 1000 * (1 + len(a.tail))
        self.a = sub
        sub.e(f'{go}:')
        sub.e('s_nop 1')
        self.resid(goff, base, va, False)
        sub.e('s_mov_b64 exec, -1')
        sub.e(f's_branch {back}')
        self.a = a
        body = [i.text for i in sub.ins]
        cut = [k for k in range(0, len(body), 14)]
        for k in cut:
            part = body[k:k + 14]
            if k + 14 < len(body):
                nxt = a.lab('resp')
                part.append(f's_branch {nxt}')
                body[k + 14] = f'{nxt}:\n' + body[k + 14]
            a.ool('\n'.join(part))
        for t in sub.tail:
            a.ool(t)

    def qa_addr(self, T):
        a = self.a
        a.e(f'v_and_b32 v{T}, 4, v0')
        a.e(f'v_lshlrev_b32 v{T}, 3, v{T}')
        a.e(f'v_and_b32 v{T + 1}, 3, v0')
        a.e(f'v_lshl_or_b32 v{T}, v{T + 1}, 2, v{T}')
        a.e(f'v_lshrrev_b32 v{T + 1}, 5, v0')
        a.e(f'v_lshl_or_b32 v{T}, v{T + 1}, 4, v{T}')
        a.e(f'v_bfe_u32 v{T + 1}, v0, 4, 1')
        a.e(f'v_lshl_or_b32 v{T}, v{T + 1}, 1, v{T}')
        a.e(f's_lshl_b32 {t0}, {sV}, 6')
        a.e(f's_add_u32 {t0}, {t0}, {ZQ}')
        a.e(f'v_add_u32 v{T}, {t0}, v{T}')
        a.e(f'v_and_b32 v{T + 1}, 7, v0')
        a.e(f'v_lshlrev_b32 v{T + 1}, 3, v{T + 1}')
        self.oob((f'v{T + 1}', f'v{T + 1}'), (0xc0c0c0c0, 0xc0c0c0c0))
        self.oob((f'v{T + 3}', vL16), (0, 0xffff0000))
        self.sp_addr(f'v{T + 2}', ZQ)

    def red8(self, R):
        return [f'v_permlane32_swap_b32 v{R}, v{R + 2}',
                f'v_permlane32_swap_b32 v{R + 1}, v{R + 3}',
                f'v_pk_add_f32 {vr(R, 2)}, {vr(R, 2)}, {vr(R + 2, 2)}',
                f'v_permlane16_swap_b32 v{R}, v{R + 1}',
                f'v_add_f32 v{R}, v{R}, v{R + 1}',
                f'v_add_f32_dpp v{R}, v{R}, v{R} row_ror:8 {FULL}']

    def qa_loads(self, R, S, T):
        return [f'buffer_load_dwordx2 {vr(S, 2)}, v{T + 1}, {WSL}, {oSTgA} offen sc1',
                f'buffer_load_dwordx4 {vr(R, 4)}, v{T + 3}, {WSL}, {oQgA} offen sc1']

    def qa_finish(self, R, S, T, Q, C, br=False):
        a = self.a
        self.mix(self.stats(S, C), self.red8(R) + [f'v_and_b32 v{R + 1}, 0xffff0000, v1'])
        a.e(f'v_fma_f32 v{R}, -v{S + 1}, v{R + 1}, v{R}')
        a.e(f'v_mul_f32 v{R}, v{R}, v{S}')
        a.e(f'v_cvt_pk_bf16_f32 v{R}, v{R}, v{R}')
        a.e(f'ds_write_b16 v{T}, v{R}')
        if br:
            return
        self.bar(2, br)
        a.e(f'ds_read_b128 {vr(Q, 4)}, v{T + 2}')
        a.tag_ds('q0')
        a.e(f'ds_read_b128 {vr(Q + 4, 4)}, v{T + 2} offset:128')
        a.tag_ds('q1')

    def p_addr(self, r, t):
        a = self.a
        a.e(f'v_and_b32 {r}, 0x32, v0')
        a.e(f'v_lshlrev_b32 {r}, 3, {r}')
        a.e(f'v_and_b32 {t}, 8, v0')
        a.e(f'v_lshl_or_b32 {r}, {t}, 2, {r}')
        a.e(f'v_and_b32 {t}, 5, v0')
        a.e(f'v_lshl_or_b32 {r}, {t}, 1, {r}')
        a.e(f'v_add_u32 {r}, {sW8}, {r}')

    def qk_softmax(self, Q, D, S, T, fill=()):
        a = self.a
        for t in range(19):
            if t >= 3:
                d = D + 4 * ((t - 3) & 3)
                a.e(f'v_add_f32_dpp v{S + ((t - 3) & 3)}, v{d}, v{d + 1} {DPPI} row_mask:{1 << ((t - 3) >> 2)} bank_mask:0xf')
            if 4 <= t + 1 < 16:
                a.e(f'v_mov_b64 {vr(D + 4 * ((t + 1) & 3), 2)}, 0')
            if t < 16:
                d = vr(D + 4 * (t & 3), 4)
                if t == 0:
                    a.wait(ds='q0')
                a.e(f'v_smfmac_f32_16x16x64_bf16 {d}, {vr(Q, 4)}, a[{16 * t}:{16 * t + 7}], v1')
                if t == 0:
                    a.wait(ds='q1')
                elif t - 1 < len(fill):
                    for x in fill[t - 1]:
                        a.e(x)
                a.e(f'v_smfmac_f32_16x16x64_bf16 {d}, {vr(Q + 4, 4)}, a[{16 * t + 8}:{16 * t + 15}], v1')
        self.softmax_a(S, T, f'v{T + 1}')

    def softmax_a(self, S, T, pa, fill=()):
        a = self.a
        fill = list(fill)

        def f2():
            for _ in range(2):
                if fill:
                    a.e(fill.pop(0))
        m = f'v{T}'
        a.e(f'v_max3_f32 {m}, v{S}, v{S + 1}, v{S + 2}')
        a.e(f'v_max_f32 {m}, {m}, v{S + 3}')
        for c in ('row_ror:8', 'row_ror:4', 'row_ror:2', 'row_ror:1'):
            f2()
            a.e(f'v_max_f32_dpp {m}, {m}, {m} {c} {FULL}')
        f2()
        a.e(f'v_max_f32_dpp {m}, {m}, {m} row_bcast:15 row_mask:0xa bank_mask:0xf')
        f2()
        a.e(f'v_max_f32_dpp {m}, {m}, {m} row_bcast:31 row_mask:0xc bank_mask:0xf')
        a.e(f'v_readlane_b32 {sM}, {m}, 63')
        f2()
        assert not fill
        for r in range(4):
            a.e(f'v_subrev_f32 v{S + r}, {sM}, v{S + r}')
        for r in range(4):
            a.e(f'v_exp_f32 v{S + r}, v{S + r}')
        a.e(f'v_cvt_pk_bf16_f32 v{T + 2}, v{S}, v{S + 1}')
        a.e(f'v_cvt_pk_bf16_f32 v{T + 3}, v{S + 2}, v{S + 3}')
        a.e(f'ds_write_b16 {pa}, v{T + 2} offset:6144')
        a.e(f'ds_write_b16_d16_hi {pa}, v{T + 2} offset:{6144 + 4}')
        a.e(f'ds_write_b16 {pa}, v{T + 3} offset:{6144 + 64}')
        a.e(f'ds_write_b16_d16_hi {pa}, v{T + 3} offset:{6144 + 68}')

    def lsum(self, l, S):
        out = [f'v_pk_add_f32 {vr(S, 2)}, {vr(S, 2)}, {vr(S + 2, 2)}', f'v_add_f32 {l}, v{S}, v{S + 1}']
        for c in ('row_ror:8', 'row_ror:4', 'row_ror:2', 'row_ror:1'):
            out.append(f'v_add_f32_dpp {l}, {l}, {l} {c} {FULL}')
        out.append(f'v_add_f32_dpp {l}, {l}, {l} row_bcast:15 row_mask:0xa bank_mask:0xf')
        out.append(f'v_add_f32_dpp {l}, {l}, {l} row_bcast:31 row_mask:0xc bank_mask:0xf')
        return out

    def ml_write(self, T):
        return [f's_lshl_b32 {t0}, {sV}, 3', f's_add_u32 {t0}, {t0}, {ZML}', f'v_mov_b32 v{T + 2}, 0x30000', f'v_mov_b32 v{T}, {sM}',
                f'v_writelane_b32 v{T + 2}, {t0}, 63\nds_write_b64 v{T + 2}, {vr(T, 2)}']

    def ml_read(self, R, T):
        return [f'v_mov_b32 v{T}, {ZML}', f'ds_read_b128 {vr(R, 4)}, v{T}', f'ds_read_b128 {vr(R + 4, 4)}, v{T} offset:16']

    def ml_scale(self, R, T, F, LW):
        out = [f'v_max3_f32 v{T}, v{R}, v{R + 2}, v{R + 4}', f'v_max_f32 v{T}, v{T}, v{R + 6}']
        out += [f'v_sub_f32 v{R + 2 * w}, v{R + 2 * w}, v{T}' for w in range(4)]
        out += [f'v_sub_f32 v{F}, {sM}, v{T}']
        out += [f'v_exp_f32 v{R + 2 * w}, v{R + 2 * w}' for w in range(4)]
        out += [f'v_exp_f32 v{F}, v{F}', f'v_mul_f32 v{LW}, v{R}, v{R + 1}']
        out += [f'v_fmac_f32 v{LW}, v{R + 2 * w}, v{R + 2 * w + 1}' for w in range(1, 4)]
        out += [f'v_rcp_f32 v{R}, v{LW}', f'v_log_f32 v{LW}, v{LW}', f'v_mul_f32 v{F}, v{F}, v{R}', f'v_add_f32 v{LW}, v{LW}, v{T}']
        return out

    def combine_publish(self):
        a = self.a
        a.e('ds_write2st64_b32 v46, v44, v45 offset0:26 offset1:27')
        lwl = f'buffer_load_dword v16, v47, {WSL}, {oOALg} offen sc1'
        if self.o.get('lw_pos', 0) == 0:
            a.e(lwl)
        a.e(f'v_mov_b32 v10, {STG + 6656}')
        a.e('v_lshl_add_u32 v8, v0, 3, v10')
        a.e('v_and_b32 v10, 56, v0')
        a.e('v_lshlrev_b32 v10, 5, v10')
        a.e(f'v_and_or_b32 v10, {vL16}, 16, v10')
        a.e('v_and_b32 v11, 6, v0')
        a.e('v_lshl_or_b32 v10, v11, 1, v10')
        a.e(f's_cmp_lg_u32 {sV}, 0')
        a.e('s_waitcnt lgkmcnt(0)')
        a.e('s_barrier')
        l = a.lab('notw')
        if self.o.get('lw_pos', 0) == 0:
            a.e(f's_cbranch_scc1 {l}')
            a.begin_skip()
        for w in range(4):
            a.e(f'ds_read_b64 {vr(20 + 2 * w, 2)}, v8 offset:{w * 8192}')
            a.tag_ds(f'o{w}')
        if self.o.get('lw_pos', 0) == 1:
            a.e(lwl)
            a.e(f's_cbranch_scc1 {l}')
            a.begin_skip()
        a.wait(ds='o1')
        a.e('v_pk_add_f32 v[20:21], v[20:21], v[22:23]')
        a.wait(ds='o3')
        a.e('v_pk_add_f32 v[24:25], v[24:25], v[26:27]')
        a.e('v_pk_add_f32 v[20:21], v[20:21], v[24:25]')
        a.e('v_cvt_pk_bf16_f32 v20, v20, v21')
        self.end_only(l)
        self.lstore([f'buffer_store_dword v20, v10, {WSL}, {oOApub} offen'])
        a.e('s_waitcnt lgkmcnt(0)')

    def w8(self, lw, t):
        return [f'v_max_f32_dpp {t}, {lw}, {lw} row_ror:4 {FULL}',
                f'v_max_f32_dpp {t}, {t}, {t} row_ror:2 {FULL}',
                f'v_max_f32_dpp {t}, {t}, {t} row_ror:1 {FULL}',
                f'v_sub_f32 {lw}, {lw}, {t}',
                f'v_exp_f32 {lw}, {lw}',
                f'v_add_f32_dpp {t}, {lw}, {lw} row_ror:4 {FULL}',
                f'v_add_f32_dpp {t}, {t}, {t} row_ror:2 {FULL}',
                f'v_add_f32_dpp {t}, {t}, {t} row_ror:1 {FULL}',
                f'v_rcp_f32 {t}, {t}']

    def rot8(self, dst, sh):
        a = self.a
        a.e(f'v_lshrrev_b32 {dst}, 4, v0')
        a.e(f'v_lshl_add_u32 {dst}, {dst}, 1, v0')
        a.e(f'v_and_b32 {dst}, 7, {dst}')
        a.e(f'v_lshlrev_b32 {dst}, {sh}, {dst}')

    def weigh2(self, skip=0, lw='v16', chk=False):
        a = self.a
        w = self.w8(lw, 'v17')
        for x in w[skip:6]:
            a.e(x)
        a.e('v_add_f32 v20, v20, v21')
        a.e('v_add_f32 v22, v22, v23')
        a.e(w[6])
        a.e('v_add_f32 v24, v24, v25')
        a.e('v_add_f32 v26, v26, v27')
        a.e(w[7])
        a.e(f'v_mul_f32_dpp v20, {lw}, v20 row_newbcast:0 {FULL}')
        a.e(f'v_mul_f32_dpp v24, {lw}, v24 row_newbcast:0 {FULL}')
        a.e(f'v_fmac_f32_dpp v20, {lw}, v22 row_newbcast:1 {FULL}')
        a.e(f'v_fmac_f32_dpp v24, {lw}, v26 row_newbcast:1 {FULL}')
        a.e(w[8])
        if chk:
            a.e('v_cmp_u_f32 vcc, v20, v20')
        a.e('v_permlane32_swap_b32 v20, v24')
        a.e('v_add_f32 v20, v20, v24')
        a.e('v_mul_f32 v20, v20, v17')

    def w8n(self, lw, t, W):
        return self.w8(lw, t) + [f'v_mul_f32_dpp v{W}, {lw}, {t} row_newbcast:0 {FULL}', f'v_mul_f32_dpp v{W + 1}, {lw}, {t} row_newbcast:1 {FULL}']

    def weigh2n(self, W, dup=None):
        a = self.a
        w = vr(W, 2)
        a.e(f'v_pk_mul_f32 v[20:21], v[20:21], {w} op_sel_hi:[1,0]')
        a.e(f'v_pk_fma_f32 v[20:21], v[22:23], {w}, v[20:21] op_sel:[0,1,0] op_sel_hi:[1,1,1]')
        a.e(f'v_pk_mul_f32 v[24:25], v[24:25], {w} op_sel_hi:[1,0]')
        a.e('v_add_f32 v20, v20, v21')
        a.e(f'v_pk_fma_f32 v[24:25], v[26:27], {w}, v[24:25] op_sel:[0,1,0] op_sel_hi:[1,1,1]')
        a.e('v_add_f32 v24, v24, v25')
        a.e('v_cmp_u_f32 vcc, v20, v20')
        a.e('v_permlane32_swap_b32 v20, v24')
        if dup:
            a.e(f'v_add_f32 {dup}, v20, v24')
        a.e('v_add_f32 v20, v20, v24')

    def outproj(self, isa):
        a = self.a
        if not isa:
            a.e(f's_add_u32 {t4}, {oO}, {L_OB - L_OA}')
        so = oO if isa else t4
        ld = [f'buffer_load_dwordx4 v[8:11], {vL16}, {WSL}, {so} offen sc1',
              f'buffer_load_dwordx4 v[12:15], {vL16}, {WSL}, {so} offen offset:1024 sc1']
        a.e('v_lshrrev_b32 v28, 4, v0')
        a.e('v_bfe_u32 v29, v0, 2, 2')
        a.e('v_lshl_add_u32 v28, v28, 3, v29')
        pitch = 64 if not isa and self.o.get('woq') is not None else 48
        a.e(f'v_mul_u32_u24 v28, {pitch}, v28')
        a.e('v_and_b32 v29, 3, v0')
        a.e('v_lshl_add_u32 v28, v29, 3, v28')
        a.e(f'v_add_u32 v28, {sW8}, v28')
        tr = []
        for blk in range(2):
            for tile in range(2):
                for hh in range(2):
                    for half in range(2):
                        off = (64 * blk + 32 * hh + 4 * half) * pitch + 32 * tile
                        tr.append(f'ds_read_b64_tr_b16 {vr(32 + 16 * tile + 8 * blk + 4 * hh + 2 * half, 2)}, v28 offset:{off}')
        a.e(f's_lshl_b32 {t2}, {sV}, 3')
        a.e(f's_add_u32 {t2}, {t2}, {ZO}')
        pre = ['v_and_b32 v18, 15, v0', 'v_lshrrev_b32 v19, 5, v0', 'v_lshl_add_u32 v18, v19, 4, v18', 'v_bfe_u32 v19, v0, 4, 1',
               'v_lshlrev_b32 v19, 2, v19', 'v_lshl_add_u32 v18, v18, 5, v19', f'v_add_u32 v18, {t2}, v18', f'v_mov_b32 v19, {ZO}',
               'v_and_b32 v29, 15, v0', 'v_lshl_add_u32 v19, v29, 6, v19', 'v_lshlrev_b32 v29, 2, v0']
        n1 = self.o.get('tr_pre', 8)
        if isa:
            a.e('s_waitcnt vmcnt(1)')
            a.vmq = []
        a.wait(vm='wo')
        for x in tr[:n1]:
            a.e(x)
        if isa:
            chk, again = a.lab('chk'), a.lab('again')
            a.e(f'{chk}:')
            a.e('v_cmp_eq_u32 vcc, -1, v16')
            a.e('v_mov_b32 v22, v16')
            self.retry_with([f'buffer_load_dword v16, v47, {WSL}, {oOALg} offen sc1'], 's_waitcnt vmcnt(1)', chk)
        self.sleep('h1' if isa else 'hd')
        for x in ld:
            a.e(x)
        if isa:
            pre = [x for p in zip(self.w8n('v22', 'v17', 30), pre) for x in p]
        self.mix(tr[n1:], pre)
        a.e(f's_add_u32 {t2}, {oYpub}, {G_YA if isa else G_YB}')
        if self.o.get('wq_hoist', 1):
            self.wq_prep('v17', 'v28')
        if pitch == 64:
            a.e('s_waitcnt lgkmcnt(0)')
            a.e('s_barrier')
        top = a.lab('poll')
        a.e(f'{top}:')
        for x in ld:
            self.H('o0', 0, 20)
            a.e(x)
        for r in range(26, 18, -2):
            a.e(f'v_mov_b64 {vr(r, 2)}, 0')
        self.K(0, 'po', True)
        a.e(f's_waitcnt vmcnt({len(ld)}) lgkmcnt(0)')
        a.e('v_cmp_u_f32 vcc, v8, v12')
        a.e('v_smfmac_f32_16x16x64_bf16 v[20:23], v[8:11], v[32:39], v1')
        a.e('v_smfmac_f32_16x16x64_bf16 v[20:23], v[12:15], v[40:47], v1')
        self.retry_to(top)
        a.e('v_smfmac_f32_16x16x64_bf16 v[24:27], v[8:11], v[48:55], v1')
        a.e('v_smfmac_f32_16x16x64_bf16 v[24:27], v[12:15], v[56:63], v1')
        self.stamp('ogot')
        if isa:
            self.weigh2n(30)
        else:
            a.e('v_pk_add_f32 v[20:21], v[20:21], v[22:23]')
            a.e('v_add_f32 v20, v20, v21')
            a.e('v_cmp_u_f32 vcc, v20, v20')
            a.e('v_pk_add_f32 v[24:25], v[24:25], v[26:27]')
            a.e('v_add_f32 v24, v24, v25')
            a.e('v_permlane32_swap_b32 v20, v24')
            a.e('v_add_f32 v20, v20, v24')
        a.e('ds_write_b32 v18, v20')
        self.H('o1', 0, 24)
        self.retry_to(top)
        a.e(f's_bitcmp0_b32 {sRES}, 0')
        self.H('o2', 0, 24)
        self.bar(1, True)
        l = a.lab('noy')
        a.e(f's_cbranch_scc1 {l}')
        a.begin_skip()
        for i in range(4):
            a.e(f'ds_read_b128 {vr(32 + 4 * i, 4)}, v19 offset:{16 * i}')
            a.tag_ds(f'z{i}')
            if i == 1:
                self.H('o3', 0, 24)
        a.e('s_mov_b32 exec_hi, 0')
        self.K(2)
        self.Wm()
        a.wait(ds='z1')
        a.e('v_pk_add_f32 v[32:33], v[32:33], v[34:35]')
        a.e('v_pk_add_f32 v[36:37], v[36:37], v[38:39]')
        a.e('v_pk_add_f32 v[32:33], v[32:33], v[36:37]')
        a.e('v_add_f32 v32, v32, v33')
        a.wait(ds='z3')
        a.e('v_pk_add_f32 v[40:41], v[40:41], v[42:43]')
        a.e('v_pk_add_f32 v[44:45], v[44:45], v[46:47]')
        a.e('v_pk_add_f32 v[40:41], v[40:41], v[44:45]')
        a.e('v_add_f32 v33, v40, v41')
        a.e('v_pk_add_f32 v[32:33], v[32:33], v[4:5]')
        a.e('v_cvt_pk_bf16_f32 v34, v32, v33')
        a.e(f'buffer_store_dword v34, v29, {WSG}, {t2} offen sc1')
        a.e('s_mov_b32 exec_hi, -1')
        a.end_skip()
        a.e(f'{l}:')
        self.stamp('ypub')

    def tc(self):
        return self.o.get('tcache', 1) and (not self.o.get('stamps') or self.o.get('light'))

    def qabs(self):
        a = self.a
        tc = self.tc()
        a.e(f's_sub_u32 {t0}, {sW8}, {sKV}')
        a.e(f'v_add_u32 v56, {t0}, {vA}')
        for ks in range(1, 4):
            a.e(f'v_xor_b32 v{56 + ks}, {ks << 6}, v56')
        a.e('v_and_b32 v36, 7, v0')
        a.e('v_lshlrev_b32 v37, 3, v36')
        self.oob(('v37', 'v37'), (0xc0c0c0c0, 0xc0c0c0c0))
        self.oob(('v33', vL16), (0xf000f000, 0xf000f000))
        a.e(f's_waitcnt vmcnt({1 if self.o.get("mst", 1) else 2})')
        for ks in range(4):
            a.e(f'ds_read_b128 {vr(40 + 4 * ks, 4)}, v{56 + ks}')
            if tc:
                a.e(f'v_mov_b64 {vr(16 + 2 * ks, 2)}, 0')
        self.sleep('hqb')
        top = a.lab('poll')
        a.e(f'{top}:')
        ql = lambda i: f'buffer_load_dwordx4 {vr(8 + 4 * i, 4)}, v33, {WSL}, {oQgB} offen offset:{i * 1024} sc1'
        if tc:
            go, back = a.lab('cs'), a.lab('csb')
            a.e(f's_cmp_eq_u32 {sIT}, 0')
            a.e(f's_cbranch_scc1 {go}')
            a.e(f'{back}:')
            a.ool(f'{go}:\n{ql(2)}\n{ql(3)}\ns_branch {back}')
        else:
            a.e(ql(2))
            a.e(ql(3))
        a.e(f'buffer_load_dwordx2 v[34:35], v37, {WSL}, {oSTgB} offen sc1')
        a.tag_vm('st')
        for i in range(2):
            a.e(ql(i))
            a.tag_vm(f'q{i}')
        for r in range(24, 32, 2):
            a.e(f'v_mov_b64 {vr(r, 2)}, 0')
        a.e('v_and_b32 v38, 8, v0')
        a.e('v_lshlrev_b32 v38, 3, v38')
        a.e('v_lshl_or_b32 v38, v36, 1, v38')
        a.e(f's_lshl_b32 {t0}, {sV}, 4')
        a.e(f's_add_u32 {t0}, {t0}, {ZQ}')
        a.e(f'v_add_u32 v38, {t0}, v38')
        a.e(f'v_add_u32 v39, {ZQ}, {vL16}')
        a.e(self.stats_const(32))
        a.e(f's_cmp_lg_u32 {sV}, 0')
        a.e('s_waitcnt vmcnt(3) lgkmcnt(0)')
        a.e('v_smfmac_f32_16x16x64_bf16 v[28:31], v[16:19], v[40:47], v1')
        a.e('v_smfmac_f32_16x16x64_bf16 v[28:31], v[20:23], v[48:55], v1')
        a.wait(vm='st')
        a.e('v_cmp_u_f32 vcc, v34, v35')
        st = self.stats(34, 32)
        for x in st[:4]:
            a.e(x)
        self.retry_to(top)
        a.wait(vm='q0')
        a.e('v_smfmac_f32_16x16x64_bf16 v[24:27], v[8:11], v[40:47], v1')
        rest = st[4:6] + ['v_pk_add_f32 v[28:29], v[28:29], v[30:31]'] + st[6:8] + ['v_add_f32 v28, v28, v29'] + st[8:10]
        rest += (['v_add_f32 v30, v28, v7'] if tc else []) + st[10:12] + [f'v_mul_f32 v28, {"v30" if tc else "v28"}, v35']
        nq = self.o.get('q_mid', 4)
        for x in rest[:nq]:
            a.e(x)
        a.wait(vm='q1')
        a.e('v_smfmac_f32_16x16x64_bf16 v[24:27], v[12:15], v[48:55], v1')
        self.stamp('qgotB', 2)
        for x in rest[nq:]:
            a.e(x)
        a.e('v_pk_add_f32 v[24:25], v[24:25], v[26:27]')
        a.e('v_sub_f32 v24, v24, v28')
        a.e('v_add_f32 v24, v24, v25')
        a.e('v_mul_f32 v25, v24, v34')
        a.e('v_mul_f32 v24, v24, v34')
        a.e('v_cmp_u_f32 vcc, v24, v24')
        a.e('v_permlane32_swap_b32 v24, v25')
        a.e('v_add_f32 v26, v24, v25')
        a.e('v_add_f32 v24, v24, v25')
        a.e('v_permlane16_swap_b32 v24, v26')
        a.e('v_add_f32 v24, v24, v26')
        a.e('v_cvt_pk_bf16_f32 v24, v24, v24')
        a.e('ds_write_b16 v38, v24')
        self.retry_to(top)
        if self.tc():
            a.e('v_mov_b32 v7, v30')
        a.e('s_waitcnt lgkmcnt(0)')
        a.e('s_barrier')
        l = a.lab('notw')
        a.e(f's_cbranch_scc1 {l}')
        a.begin_skip()
        a.e('s_mov_b64 exec, 0xff')
        a.e('ds_read_b128 v[24:27], v39')
        a.e('s_waitcnt lgkmcnt(0)')
        a.e(f'buffer_store_dwordx4 v[24:27], {vL16}, {WSG}, {oQApub} offen sc1')
        a.e('s_mov_b64 exec, -1')
        self.end_only(l)
        self.stamp('qapub')
        self.touches('w3', 'v8', 'v9')
        self.resid_track(G_YA, 10, 'v8', f's_cmp_eq_u32 {sRES}, 3')

    def attn_b(self):
        a = self.a
        a.e(f's_mul_i32 {t0}, {sV}, {4096 - 16384}')
        a.e(f's_add_u32 {t0}, {t0}, {CKV}')
        a.e(f'v_add_u32 v56, {t0}, {vA}')
        a.e('v_xor_b32 v57, 64, v56')
        ORD = [(r, ks) for kp in range(2) for r in range(4) for ks in (2 * kp, 2 * kp + 1)]
        ga = ['v_and_b32 v58, 12, v0', 'v_lshlrev_b32 v58, 4, v58', 'v_and_or_b32 v58, v0, 48, v58', 'v_lshlrev_b32 v58, 2, v58',
              f'v_and_or_b32 v58, {vL16}, 48, v58', 'v_lshlrev_b32 v8, 7, v0', 'v_mov_b32 v9, 0']
        for x in ga:
            a.e(x)
        a.e(f'v_add_u32 v59, {STG}, {vL16}')
        a.e('s_barrier')

        nl = self.o.get('ckv_late', 0)

        def late_ckv():
            b = self.a
            b.e('s_mov_b64 s[80:81], s[0:1]')
            b.e('s_mov_b32 s82, 0x10000')
            b.e('s_mov_b32 s83, 0x20000')
            b.e('v_lshrrev_b32 v19, 4, v0')
            b.e('v_lshlrev_b32 v18, 5, v19')
            b.e(f'v_xor_b32 v18, v18, {vL16}')
            b.e('v_and_b32 v18, 0xf0, v18')
            b.e('v_lshl_or_b32 v18, v19, 10, v18')
            for q in range(4):
                b.e(f'v_xor_b32 v19, {TBL[q] << 4}, v18')
                b.e(f's_not_b64 exec, {MY}' if q in (0, 3) else f's_mov_b64 exec, {MY}')
                for t in range(4 - nl, 4):
                    b.e(f's_add_u32 m0, {sKV}, {CKV + t * 4096 + q * 1024}')
                    b.e(f's_mov_b32 {t1}, {(16 * t + 4 * q) * 1024}')
                    b.e(f'buffer_load_dwordx4 v19, s[80:83], {t1} offen {self.o.get("pol_cl", "nt")} lds')
                b.e('s_mov_b64 exec, -1')
        h2 = self.o.get('clr_h2') is not None

        def second():
            if h2:
                self.lstore(self.clear_c1(12, 'v16', 'v17'))
            self.sleep('ha1')
        if nl or h2:
            self.ool_if(f's_cmp_eq_u32 {sIT}, 0', late_ckv, second)
        cc = [] if self.o.get('xclr') or h2 else self.clear_c1(12, 'v16', 'v17')
        if self.o.get('clr0'):
            def thru():
                for x in cc:
                    self.a.e(x + ' ' + self.o['clr0'] if x.startswith('buffer') else x)
            self.ool_if(f's_cmp_eq_u32 {sIT}, 0', thru, lambda: self.lstore(cc))
        else:
            self.lstore(cc)
        self.sleep('ha')
        top = a.lab('poll')
        a.e(f'{top}:')
        cm = self.o.get('canmask', 0xffffffff)
        ld = [f's_mov_b32 m0, {sW8}', f's_mov_b32 exec_lo, {cm}\ns_mov_b32 exec_hi, 0', f'buffer_load_dword v9, v8, {WSG}, {oQAg} offen sc1', 's_mov_b64 exec, -1']
        for ks in range(4):
            ld.append(f'buffer_load_dwordx4 v58, {WSG}, {oQAg} offen offset:{ks * 1024} sc1 lds')
        for x in ld:
            a.e(x)
        for k in range(8):
            r, ks = ORD[k]
            a.e(f'ds_read_b128 {vr(24 + 4 * k, 4)}, v{56 + (ks & 1)} offset:{r * 16384}')
        a.e('v_xor_b32 v56, 128, v56')
        a.e('v_xor_b32 v57, 128, v57')
        single = self.o.get('single')
        if single:
            a.e('v_lshrrev_b32 v10, 5, v0')
            a.e('v_bfe_u32 v11, v0, 2, 3')
            a.e('v_lshl_add_u32 v10, v10, 4, v11')
            a.e('v_lshlrev_b32 v10, 13, v10')
            a.e(f'v_and_or_b32 v10, {vL16}, 48, v10')
        else:
            self.k64_addr('v10', None)
        l4 = self.o.get('l4_wo', 0)
        if l4 == 2:
            self.wo_prep(12, 'v15')
        chk, again = a.lab('chk'), a.lab('again')
        a.e(f'{chk}:')
        a.e('s_waitcnt vmcnt(4)')
        a.e('v_cmp_eq_u32 vcc, -1, v9')
        self.retry_with(ld, 's_nop 0', chk)
        pol = self.o.get('pol_wuv', '')
        for i in range(1, 4):
            a.e(f's_add_u32 {[t1, t2, t3][i - 1]}, {oWUV}, {i * ((32 if single else 16) * 8192 - 1024)}')
        a.e('v_mov_b32 v58, v10')
        half = self.o.get('qa_half', 1)
        if l4 == 2:
            a.e(f's_cmp_eq_u32 {sIT}, 1')
            a.e(f's_cselect_b32 {t0}, {sKV}, 0x30000')
            a.e(f's_cselect_b32 {t4}, {oWO}, {OOB}')
            a.e(f's_cselect_b32 {t5}, {t5}, {OOB}')
            for x in self.wo_lines(BWO, 12, '', t0):
                a.e(x.replace(f', {oWO} ', f', {t4} '))
        ex = 6 if l4 == 2 else 0
        a.e(f's_waitcnt vmcnt({(2 if half else 0) + ex}) lgkmcnt(0)')
        a.e('s_barrier')
        self.stamp('qagot')

        def qread(k):
            r, ks = ORD[k]
            a.e(f'ds_read_b128 {vr(8 + 4 * (k & 3), 4)}, v59 offset:{r * 8192 + ks * 1024}')
            a.tag_ds(f'q{k}')
        for k in range(4):
            qread(k)
        a.e(f's_add_u32 m0, {sW8}, 4096')
        SLOT = [16, 40, 48]
        wpos = self.o.get('wuv_pos', [0, 2, 4, 6])
        wdma = [f'buffer_load_dwordx4 v58, {WUV}, {[oWUV, t1, t2, t3][i]} offen offset:{i * 1024} {pol} lds' for i in range(4)]

        def tread(e, ad='v57'):
            l = [f'v_xor_b32 {ad}, {CKV | (e << 5)}, {vT}']
            for t in range(4):
                l.append(f'ds_read_b64_tr_b16 {vr(SLOT[e % 3] + 2 * t, 2)}, {ad} offset:{t * 4096}')
            return l
        for k in range(16):
            a.wait(ds=f'q{k}')
            a.e(f'v_mfma_f32_16x16x32_bf16 v[60:63], {vr(24 + 4 * (k & 7), 4)}, {vr(8 + 4 * (k & 3), 4)}, {"v[60:63]" if k else "0"}')
            if k < 8:
                r, ks = ORD[k + 8]
                a.e(f'ds_read_b128 {vr(24 + 4 * k, 4)}, v{56 + (ks & 1)} offset:{r * 16384}')
            if k == 4 and half:
                a.e(f's_waitcnt vmcnt({sum(p < 4 for p in wpos) + ex})')
                a.e('s_barrier')
            if k + 4 < 16:
                qread(k + 4)
            for i, p in enumerate(wpos):
                if p == k:
                    a.e(wdma[i])
            if k == 10:
                a.e('s_barrier')
            if k == 8:
                a.e(f'v_and_b32 v27, 0xf0, {vL16}')
                a.e(f's_lshl_b32 {t0}, {sV}, 2')
            if k == 9:
                a.e(f'v_add_u32 v27, {STG}, v27')
            if k == 11:
                a.e(f'v_add_u32 v24, {t0}, v27')
            if k == 12:
                a.e('v_xor_b32 v56, 128, v56')
                a.e(f'v_lshl_add_u32 v25, v0, 3, {sW8}')
            if k == 13:
                t1_ = tread(1)
                a.e(t1_[0]); a.e(t1_[1])
            if k == 14:
                a.e(t1_[2]); a.e(t1_[3])
        a.e(t1_[4])
        t0_, t2_ = tread(0), tread(2)
        a.e(f'v_mov_b32 v26, {STG}')
        a.e('v_lshl_add_u32 v26, v0, 3, v26')
        for r in range(36, 40):
            a.e(f'v_mov_b32 v{r}, 0x3f803f80')
        a.e('v_max3_f32 v28, v60, v61, v62')
        a.e('v_max_f32 v29, v28, v63')
        a.e('v_max_f32 v28, v28, v63')
        a.e(t0_[0]); a.e(t0_[1])
        a.e('v_permlane32_swap_b32 v28, v29')
        a.e('v_max_f32 v30, v28, v29')
        a.e('v_max_f32 v28, v28, v29')
        a.e(t0_[2]); a.e(t0_[3])
        a.e('v_permlane16_swap_b32 v28, v30')
        a.e('v_max_f32 v28, v28, v30')
        a.e('ds_write_b32 v24, v28')
        a.tag_ds('mw')
        a.e(t0_[4])
        a.e(t2_[0])
        self.H('b0', 1, 32)
        a.e(t2_[1]); a.e(t2_[2]); a.e(t2_[3]); a.e(t2_[4])
        self.H('b1', 1, 32)
        a.wait(ds='mw')
        a.e('s_barrier')
        a.e('ds_read_b128 v[28:31], v27')
        a.tag_ds('mr')
        self.stamp('sbar', 2)
        for i, p in enumerate(wpos):
            if p == 16:
                a.e(f's_add_u32 m0, {sW8}, 4096')
                a.e(wdma[i])
        if self.o.get('c1t') == 3:
            self.c1_fill('v58')
        st_ = 131072 if single else 4096
        a.e(f's_add_u32 {t1}, {oC1pub}, {st_}')
        a.e(f's_add_u32 {t2}, {oC1pub}, {2 * st_}')
        a.e(f's_add_u32 {t3}, {oC1pub}, {3 * st_}')
        self.H('b2', 1, 32)
        a.wait(ds='mr')
        a.e('v_max3_f32 v28, v28, v29, v30')
        a.e('v_max_f32 v28, v28, v31')
        a.e('v_pk_add_f32 v[60:61], v[60:61], v[28:29] op_sel_hi:[1,0] neg_lo:[0,1] neg_hi:[0,1]')
        a.e('v_pk_add_f32 v[62:63], v[62:63], v[28:29] op_sel_hi:[1,0] neg_lo:[0,1] neg_hi:[0,1]')
        for r in range(60, 64):
            a.e(f'v_exp_f32 v{r}, v{r}')
        a.e('v_cvt_pk_bf16_f32 v30, v60, v61')
        a.e('v_cvt_pk_bf16_f32 v31, v62, v63')
        a.e('ds_write_b64 v25, v[30:31] offset:1024')
        if single:
            for x in self.c_addr('v61')[:4]:
                a.e(x)
        else:
            a.e('v_lshrrev_b32 v61, 4, v0')
            a.e(f'v_and_b32 v60, 0xf0, {vL16}')
            a.e('v_lshl_or_b32 v61, v61, 16, v60')
        a.e('v_mov_b32 v62, v28')
        a.e('v_xor_b32 v57, 64, v56')
        if not single:
            a.e('v_and_b32 v27, 12, v0')
            a.e('v_lshlrev_b32 v27, 2, v27')
        if self.o.get('c1t') == 2:
            self.c1_fill('v58')
        self.H('b3', 1, 32)
        self.lcmp()
        a.e('s_waitcnt lgkmcnt(0)')
        a.e('s_barrier')
        a.e('ds_read2st64_b64 v[8:11], v26 offset0:2 offset1:18')
        a.tag_ds('p0')
        a.e('ds_read2st64_b64 v[12:15], v26 offset0:34 offset1:50')
        a.tag_ds('p1')
        self.stamp('smax', 2)
        if single:
            for x in self.c_addr('v61')[4:]:
                a.e(x)
            a.e('v_lshlrev_b32 v27, 3, v0')
        else:
            a.e('v_and_or_b32 v27, v0, 3, v27')
            a.e('v_lshlrev_b32 v27, 5, v27')
            a.e('v_and_b32 v60, 48, v0')
            a.e('v_lshl_or_b32 v27, v60, 20, v27')
        self.K(2, 'b4', True)
        ACC = [28, 56, 36, 32]
        a.wait(ds='p0')
        a.e('v_cmp_u_f32 vcc, v8, v8')
        a.e(f'v_mfma_f32_16x16x32_bf16 v[28:31], v[8:11], {vr(SLOT[0], 4)}, 0')
        a.e('v_mfma_f32_16x16x32_bf16 v[32:35], v[36:39], v[8:11], 0')
        again = a.lab('again')
        self.retry_to(again)
        a.ool(f'{again}:\n' + '\n'.join(['s_waitcnt lgkmcnt(0)'] + ga) + f'\ns_barrier\ns_branch {top}')
        a.wait(ds='p1')
        a.e('v_mfma_f32_16x16x32_bf16 v[32:35], v[36:39], v[12:15], v[32:35]')
        so = [oC1pub, t1, t2, t3]
        if single:
            return self.pv_single(SLOT, tread, so)
        ml = [f'buffer_store_dwordx2 v[62:63], v27, {WSL}, {oMLpub} offen']
        mlat = self.o.get('ml_at', 2)

        def pack(q):
            d0, d1 = ACC[(2 * q) & 3], ACC[(2 * q + 1) & 3]
            return [f'v_cvt_pk_bf16_f32 v{24 + r}, v{d0 + r}, v{d1 + r}' for r in range(4)]

        def put(q):
            self.lstore([f'buffer_store_dwordx4 v[24:27], v61, {WS}, {so[q]} offen'] + (ml if q == mlat else []))
        F = {e: [[], []] for e in range(8)}
        early = self.o.get('ml_early', 1)
        mlat = -1
        F[1][1] = ['v_mov_b32 v63, v32']
        F[self.o.get('ml_e', 2)][1] += ['ML']
        F[3][0] = pack(0)[:2]
        F[3][1] = pack(0)[2:]
        F[5][0] = pack(1)[:2]
        F[5][1] = pack(1)[2:]
        F[6][0] = ['v_lshlrev_b32 v60, 3, v0']
        F[7][0] = pack(2)
        for e in range(8):
            a.wait(ds=f't{e}')
            d = vr(ACC[e & 3], 4)
            s = SLOT[e % 3]
            nx = tread(e + 3, 'v60') if e + 3 < 8 else []
            if nx:
                a.e(nx[0])
            if e:
                a.e(f'v_mfma_f32_16x16x32_bf16 {d}, v[8:11], {vr(s, 4)}, 0')
            if e in (4, 6):
                put((e - 4) // 2)
            for x in nx[1:3]:
                a.e(x)
            for x in F[e][0]:
                a.e(x)
            a.e(f'v_mfma_f32_16x16x32_bf16 {d}, v[12:15], {vr(s + 4, 4)}, {d}')
            for x in nx[3:]:
                a.e(x)
            if nx:
                a.tag_ds(f't{e + 3}')
            for x in F[e][1]:
                if x == 'ML':
                    self.lstore(ml)
                else:
                    a.e(x)
            if e == 7:
                put(2)
        if early == 1:
            a.e(f'buffer_load_dwordx2 v[22:23], v60, {WSL}, {oMLg} offen sc1')
            a.tag_vm('ml0')
        for x in pack(3):
            a.e(x)
        put(3)
        if early == 2:
            a.e(f'buffer_load_dwordx2 v[22:23], v60, {WSL}, {oMLg} offen sc1')
            a.tag_vm('ml0')
        if self.o.get('c1t') == 1:
            self.c1_fill('v16')
        self.stamp('c1pub')

    def pv_single(self, SLOT, tread, so):
        a = self.a
        AC = [28, 56, 36, 32, 56, 24, 32, 56]
        O = [48, 52, 16, 20]
        ml = ['s_mov_b64 exec, 0xffff', f'buffer_store_dwordx2 v[62:63], v27, {WSG}, {oMLpub} offen sc1', 's_mov_b64 exec, -1']
        F = {e: [[], []] for e in range(8)}
        inpl = lambda q: [f'v_cvt_pk_bf16_f32 v{AC[2 * q] + r}, v{AC[2 * q] + r}, v{AC[2 * q + 1] + r}' for r in range(4)]
        fin = lambda q: [f'v_cvt_pk_bf16_f32 v{O[r] + q}, v{AC[2 * q] + r}, v{AC[2 * q + 1] + r}' for r in range(4)]
        mv = lambda q, rs: [f'v_mov_b32 v{O[r] + q}, v{AC[2 * q] + r}' for r in rs]
        F[1][1] = ['v_mov_b32 v63, v32']
        F[self.o.get('ml_e', 2)][1] += ml
        F[3][0] = inpl(0)[:2]
        F[3][1] = inpl(0)[2:]
        F[5][0] = inpl(1)[:2]
        F[5][1] = inpl(1)[2:]
        F[6][0] = mv(0, (0, 1)) + mv(1, (0, 1))
        F[6][1] = mv(0, (2, 3)) + fin(2)
        F[7][0] = mv(1, (2, 3))
        for e in range(8):
            a.wait(ds=f't{e}')
            d = vr(AC[e], 4)
            s = SLOT[e % 3]
            nx = tread(e + 3, 'v60') if e + 3 < 8 else []
            if nx:
                a.e(nx[0])
            if e:
                a.e(f'v_mfma_f32_16x16x32_bf16 {d}, v[8:11], {vr(s, 4)}, 0')
            for x in nx[1:3]:
                a.e(x)
            for x in F[e][0]:
                a.e(x)
            a.e(f'v_mfma_f32_16x16x32_bf16 {d}, v[12:15], {vr(s + 4, 4)}, {d}')
            for x in nx[3:]:
                a.e(x)
            if nx:
                a.tag_ds(f't{e + 3}')
            for x in F[e][1]:
                a.e(x)
        for x in fin(3):
            a.e(x)
        for r in range(4):
            a.e(f'buffer_store_dwordx4 {vr(O[r], 4)}, v61, {WS}, {so[r]} offen sc1')
        self.stamp('c1pub')

    def red_single(self):
        a = self.a
        o = self.o
        a.e('v_and_b32 v44, 3, v0')
        a.e('v_lshrrev_b32 v45, 3, v0')
        a.e('v_lshl_add_u32 v44, v44, 3, v45')
        a.e('v_lshlrev_b32 v44, 7, v44')
        if o.get('cswz', 1):
            a.e(f'v_xor_b32 v44, {oC2Lg}, v44')
        a.e('v_and_b32 v40, 12, v0')
        a.e('v_lshlrev_b32 v40, 4, v40')
        a.e('v_lshrrev_b32 v45, 1, v0')
        a.e('v_and_or_b32 v40, v45, 24, v40')
        a.e('v_and_or_b32 v40, v0, 3, v40')
        a.e(f'v_lshl_add_u32 v40, v40, 3, {sW8}')
        a.e('s_waitcnt vmcnt(5)')
        for tau in range(2):
            for gam in range(2):
                for tt in range(2):
                    a.e(f'ds_read_b64_tr_b16 {vr(48 + 8 * tau + 4 * gam + 2 * tt, 2)}, v40 offset:{4096 + (32 * tt + 4 * gam) * 64 + 32 * tau}')
        self.wo_prep(41, 'v39')
        a.e('v_and_b32 v45, 6, v0')
        a.e('v_lshlrev_b32 v45, 4, v45')
        a.e('v_and_or_b32 v45, v0, 16, v45')
        a.e('v_and_b32 v46, 1, v0')
        a.e('v_lshl_or_b32 v45, v46, 3, v45')
        a.e('v_lshrrev_b32 v46, 5, v0')
        a.e('v_lshl_or_b32 v45, v46, 2, v45')
        self.sums(t2, [(sV, 128)], ZQ)
        a.e(f'v_add_u32 v45, {t2}, v45')
        self.sp_addr('v46', ZQ)
        a.e('v_and_b32 v47, 6, v0')
        a.e('v_lshl_add_u32 v46, v47, 6, v46')
        self.pos_bytes('v47', None)
        a.e('v_and_b32 v39, 16, v0')
        a.e('v_lshl_or_b32 v47, v39, 4, v47')
        self.oob(('v47', 'v47'), (0xaaaaaaaa, 0xffffffff))
        a.e('s_waitcnt lgkmcnt(0)')
        a.e('s_barrier')

        def clear2():
            b = self.a
            for r in range(8, 12):
                b.e(f'v_mov_b32 v{r}, -1')
            self.sums(t2, [(sJ, 4 * 448), (sV, 448)], L_IT)
            b.e('s_mov_b64 exec, 0xfffffff')
            self.lstore([f'buffer_store_dwordx4 v[8:11], {vL16}, {WSL}, {t2} offen'])
            b.e('s_mov_b64 exec, -1')
        self.ool_if(f's_cmp_eq_u32 {sIT}, 0', clear2, lambda: self.sleep('hc4'))
        self.touches('w5', 'v12', 'v13')
        n0, n1, n2 = o.get('wo_s', [0, 3, 6])
        for x in self.wo_group(BWO, 41, 0, n0):
            a.e(x)
        self.sleep('mld')
        ld = f'buffer_load_dwordx2 v[24:25], v44, {WSG}, {oMLg} offen sc1'
        a.e(ld)
        a.tag_vm('ml')
        for x in self.wo_group(BWO, 41, n0, n1):
            a.e(x)
        z = [f'v_mov_b64 {vr(r, 2)}, 0' for r in range(28, 36, 2)]
        for x in z:
            a.e(x)
        chk = a.lab('chk')
        a.wait(vm='ml')
        a.e(f'{chk}:')
        a.e('v_cmp_u_f32 vcc, v24, v25')
        self.retry_with([ld], 's_waitcnt vmcnt(0)', chk)
        self.stamp('mlgot', 2)
        self.sleep('hc1')
        cl = [f'buffer_load_dwordx4 {vr(8 + 4 * i, 4)}, {vL16}, {WS}, {oC1g} offen offset:{i * 1024} sc1' for i in range(4)]
        for i, x in enumerate(cl):
            a.e(x)
            a.tag_vm(f'c{i}')
        for x in self.wo_group(BWO, 41, n1, n2):
            a.e(x)
        Q1, Q2 = f'quad_perm:[1,0,3,2] {FULL}', f'quad_perm:[2,3,0,1] {FULL}'

        def allred(op, r, src):
            a.e(f'{op}_dpp v{r}, v{src}, v{src} {Q1}')
            a.e(f'{op}_dpp v{r}, v{r}, v{r} {Q2}')
            a.e(f'{op}_dpp v38, v{r}, v{r} row_ror:8 {FULL}')
            a.e(f'{op}_dpp v{r}, v{r}, v{r} row_ror:8 {FULL}')
            a.e(f'v_permlane32_swap_b32 v{r}, v38')
            a.e(f'{op} v39, v{r}, v38')
            a.e(f'{op} v{r}, v{r}, v38')
            a.e(f'v_permlane16_swap_b32 v{r}, v39')
            a.e(f'{op} v{r}, v{r}, v39')
        allred('v_max_f32', 36, 24)
        a.e('v_sub_f32 v37, v24, v36')
        a.e('v_exp_f32 v37, v37')
        a.e('v_mul_f32 v37, v37, v25')
        allred('v_add_f32', 37, 37)
        self.sums(t2, [(sV, 8)], ZML)
        a.e(f'v_mov_b32 v38, {t2}')
        a.e('s_mov_b64 exec, 1')
        a.e('ds_write_b64 v38, v[36:37]')
        a.e('s_mov_b64 exec, -1')
        a.e('v_and_b32 v38, 3, v0')
        a.e(f's_mov_b32 {t2}, {ZML}')
        a.e(f'v_lshl_add_u32 v38, v38, 3, {t2}')
        a.e('s_waitcnt lgkmcnt(0)')
        a.e('s_barrier')
        a.e('ds_read_b64 v[36:37], v38')
        a.e('s_waitcnt lgkmcnt(0)')
        a.e(f'v_max_f32_dpp v38, v36, v36 {Q1}')
        a.e(f'v_max_f32_dpp v38, v38, v38 {Q2}')
        a.e('v_sub_f32 v36, v36, v38')
        a.e('v_exp_f32 v36, v36')
        a.e('v_mul_f32 v36, v36, v37')
        a.e(f'v_add_f32_dpp v36, v36, v36 {Q1}')
        a.e(f'v_add_f32_dpp v36, v36, v36 {Q2}')
        a.e('v_log_f32 v36, v36')
        a.e('v_sub_f32 v24, v24, v38')
        a.e('v_sub_f32 v24, v24, v36')
        a.e('v_exp_f32 v24, v24')
        a.e('v_cvt_pk_bf16_f32 v26, v24, 0')
        a.e('v_cvt_pk_bf16_f32 v27, 0, v24')
        a.e('v_mov_b64 v[36:37], 0')
        a.e('v_mov_b64 v[38:39], 0')
        top = a.lab('acc')
        a.e(f'{top}:')
        for i in range(4):
            a.wait(vm=f'c{i}')
            for d in range(4):
                a.e(f'v_dot2c_f32_bf16_dpp v{28 + 2 * d}, v26, v{8 + 4 * i + d} quad_perm:[{i},{i},{i},{i}] {FULL}')
                a.e(f'v_dot2c_f32_bf16_dpp v{29 + 2 * d}, v27, v{8 + 4 * i + d} quad_perm:[{i},{i},{i},{i}] {FULL}')
        for i in range(4):
            a.e(f'v_permlane32_swap_b32 v{28 + i}, v{32 + i}')
        a.e('v_pk_add_f32 v[28:29], v[28:29], v[32:33]')
        a.e('v_pk_add_f32 v[30:31], v[30:31], v[34:35]')
        a.e('v_cmp_u_f32 vcc, v28, v30')
        a.e('v_permlane16_swap_b32 v28, v30')
        a.e('v_permlane16_swap_b32 v29, v31')
        a.e('v_pk_add_f32 v[28:29], v[28:29], v[30:31]')
        self.retry_with(cl + z, 's_waitcnt vmcnt(0)', top)
        a.e(f'v_add_f32_dpp v28, v28, v28 row_ror:8 {FULL}')
        a.e(f'v_add_f32_dpp v29, v29, v29 row_ror:8 {FULL}')
        a.e('v_cvt_pk_bf16_f32 v28, v28, v29')
        a.e('ds_write_b32 v45, v28')
        a.e('v_mov_b64 v[32:33], 0')
        a.e('v_mov_b64 v[34:35], 0')
        a.e('s_waitcnt lgkmcnt(0)')
        a.e('s_barrier')
        a.e('ds_read_b128 v[8:11], v46')
        self.stamp('c2got', 2)
        a.e('s_waitcnt lgkmcnt(0)')
        a.e('v_smfmac_f32_16x16x64_bf16 v[32:35], v[8:11], v[48:55], v1')
        a.e('v_smfmac_f32_16x16x64_bf16 v[36:39], v[8:11], v[56:63], v1')
        a.e('v_pk_add_f32 v[32:33], v[32:33], v[34:35]')
        a.e('v_pk_add_f32 v[36:37], v[36:37], v[38:39]')
        a.e('v_add_f32 v32, v32, v33')
        a.e('v_add_f32 v36, v36, v37')
        a.e('v_permlane16_swap_b32 v32, v36')
        a.e('v_add_f32 v32, v32, v36')
        a.e(f'v_mov_b32_dpp v33, v32 {Q1}')
        a.e('v_cvt_pk_bf16_f32 v32, v32, v33')
        self.lstore([f'buffer_store_dword v32, v47, {WSL}, {oOBpub} offen'])
        a.vmq = [['wo', ()], [None, ()]]
        if n2 < 6:
            for x in self.wo_group(BWO, 41, n2, 6):
                a.e(x)
            a.tag_vm('wo')
        self.stamp('dpub')

    def c1_fill(self, vt):
        a = self.a
        a.e(f's_cmp_eq_u32 {sIT}, 0')
        a.e(f's_cselect_b32 {t0}, {oC1g}, {OOB}')
        a.e(f'v_lshlrev_b32 {vt}, 7, v0')
        a.e(f's_add_u32 m0, {sW8}, 2048')
        a.e('s_mov_b32 exec_hi, 0')
        a.e(f'buffer_load_dword {vt}, {WS}, {t0} offen lds')
        a.e('s_mov_b32 exec_hi, -1')

    def red(self):
        a = self.a
        ld = f'buffer_load_dwordx2 v[22:23], v60, {WSL}, {oMLg} offen sc1'
        a.e('v_and_b32 v45, 56, v0')
        a.e('v_lshlrev_b32 v45, 1, v45')
        a.e('v_and_or_b32 v45, v0, 6, v45')
        a.e('v_lshlrev_b32 v45, 1, v45')
        a.e(f'v_and_or_b32 v45, {vL16}, 16, v45')
        a.e('v_lshlrev_b32 v46, 2, v0')
        self.oob(('v46', 'v46'), (0, 0xffffffff))
        for r in range(28, 36, 2):
            a.e(f'v_mov_b64 {vr(r, 2)}, 0')
        ne = self.o.get('wo_e', 0)
        if ne:
            self.wo_prep(41, 'v39')
            a.e('s_barrier')
        cl = [f'buffer_load_dwordx4 {vr(8 + 4 * i, 4)}, {vL16}, {WS}, {oC1g} offen offset:{i * 1024} sc1' for i in range(4)]
        ch = [f'v_max_f32_dpp v36, v22, v22 quad_perm:[1,0,3,2] {FULL}',
              f'v_max_f32_dpp v37, v36, v36 quad_perm:[2,3,0,1] {FULL}', f'v_max_f32_dpp v36, v36, v36 quad_perm:[2,3,0,1] {FULL}',
              'v_permlane32_swap_b32 v36, v37', 'v_max_f32 v38, v36, v37', 'v_max_f32 v36, v36, v37',
              'v_permlane16_swap_b32 v36, v38', 'v_max_f32 v36, v36, v38', 'v_sub_f32 v24, v24, v36', 'v_exp_f32 v24, v24',
              'v_mul_f32 v25, v25, v24', f'v_add_f32_dpp v25, v25, v25 quad_perm:[1,0,3,2] {FULL}',
              f'v_add_f32_dpp v37, v25, v25 quad_perm:[2,3,0,1] {FULL}', f'v_add_f32_dpp v25, v25, v25 quad_perm:[2,3,0,1] {FULL}',
              'v_permlane32_swap_b32 v25, v37', 'v_add_f32 v38, v25, v37', 'v_add_f32 v25, v25, v37',
              'v_permlane16_swap_b32 v25, v38', 'v_add_f32 v25, v25, v38', 'v_rcp_f32 v38, v25', 'v_log_f32 v37, v25',
              'v_mul_f32 v24, v24, v38', 'v_add_f32 v37, v37, v36', 'v_cvt_pk_bf16_f32 v26, v24, 0', 'v_cvt_pk_bf16_f32 v27, 0, v24']
        chk, again = a.lab('chk'), a.lab('again')
        if self.o.get('ml_early', 1) == 4:
            self.sleep('mld')
            a.e(ld)
            a.tag_vm('ml0')
            if self.o.get('sleep', {}).get('mld2'):
                self.sleep('mld2')
                a.e(ld)
        a.wait(vm='ml0')
        a.e(f'{chk}:')
        a.e('v_cmp_u_f32 vcc, v22, v23')
        a.e(ch[0])
        a.e('v_mov_b64 v[24:25], v[22:23]')
        self.retry_with([ld], 's_waitcnt vmcnt(1)', chk)
        self.stamp('mlgot', 2)
        npre = self.o.get('red_pre', 8)
        for x in ch[1:npre]:
            a.e(x)
        self.sleep('hc1')
        for i, x in enumerate(cl):
            a.e(x)
            a.tag_vm(f'c{i}')
        for x in self.wo_group(BWO, 41, 0, ne):
            a.e(x)
        for x in ch[max(npre, 1):]:
            a.e(x)
        lwe = self.o.get('lw_early', 1)
        lws = [f'buffer_store_dword v37, v46, {WSG}, {oC2Lpub} offen sc1']
        if lwe == 1 or lwe == 3:
            if lwe == 3:
                a.e('s_barrier')
            for x in lws:
                a.e(x)
        self.H('r1', 0, 48)
        top, again = a.lab('acc'), a.lab('again')
        a.e(f'{top}:')
        for i in range(4):
            if i:
                self.K(0, 'rd', True)
            a.wait(vm=f'c{i}')
            for d in range(4):
                a.e(f'v_dot2c_f32_bf16_dpp v{28 + 2 * d}, v26, v{8 + 4 * i + d} row_newbcast:{4 * d + i} {FULL}')
                a.e(f'v_dot2c_f32_bf16_dpp v{29 + 2 * d}, v27, v{8 + 4 * i + d} row_newbcast:{4 * d + i} {FULL}')
        for i in range(4):
            a.e(f'v_permlane32_swap_b32 v{28 + i}, v{32 + i}')
        a.e('v_pk_add_f32 v[28:29], v[28:29], v[32:33]')
        a.e('v_pk_add_f32 v[30:31], v[30:31], v[34:35]')
        a.e('v_cmp_u_f32 vcc, v28, v30')
        a.e('v_permlane16_swap_b32 v28, v30')
        a.e('v_permlane16_swap_b32 v29, v31')
        a.e('v_pk_add_f32 v[28:29], v[28:29], v[30:31]')
        a.e('v_cvt_pk_bf16_f32 v28, v28, v29')
        self.retry_to(again)
        a.ool(f'{again}:\n' + '\n'.join(cl) + '\n' + '\n'.join(f'v_mov_b64 {vr(r, 2)}, 0' for r in range(28, 36, 2)) + f'\ns_waitcnt vmcnt(0)\ns_branch {top}')
        a.e(f'buffer_store_dword v28, v45, {WSG}, {oC2pub} offen sc1')
        if lwe == 2:
            for x in lws:
                a.e(x)
        self.stamp('c2pub')
        a.e('v_and_b32 v40, 4, v0')
        a.e('v_lshlrev_b32 v40, 4, v40')
        a.e('v_and_or_b32 v40, v0, 48, v40')
        a.e('v_lshlrev_b32 v40, 1, v40')
        a.e('v_and_or_b32 v40, v0, 11, v40')
        a.e(f'v_lshl_add_u32 v40, v40, 3, {sW8}')
        for tau in range(2):
            for gam in range(2):
                for tt in range(2):
                    a.e(f'ds_read_b64_tr_b16 {vr(48 + 8 * tau + 4 * gam + 2 * tt, 2)}, v40 offset:{4096 + (32 * gam + 2 * tt) * 64 + 32 * tau}')
        woq = self.o.get('woq')
        if woq is not None:
            self.woq_prep(41)
        elif not ne:
            self.wo_prep(41, 'v39')
        if (self.o.get('wo_pre', 6) if woq is None else woq) > 4:
            a.e('s_waitcnt lgkmcnt(0)')
        a.e('s_barrier')
        if self.o.get('x_wo'):
            a.e('s_waitcnt vmcnt(0)')
            self.stamp('x_ack')

        def clear2():
            b = self.a
            for r in range(8, 12):
                b.e(f'v_mov_b32 v{r}, -1')
            self.sums(t2, [(sJ, 4 * 448), (sV, 448)], L_IT)
            b.e('s_mov_b64 exec, 0xfffffff')
            self.lstore([f'buffer_store_dwordx4 v[8:11], {vL16}, {WSL}, {t2} offen'])
            b.e('s_mov_b64 exec, -1')
        npre = self.o.get('wo_pre', 6)
        for x in (self.wo_group(BWO, 41, ne, npre) if woq is None else self.woq_group(BWO, 41, 0, woq)):
            a.e(x)
        if (npre == 6 and woq is None) or woq == 8:
            a.tag_vm('wo')
        self.ool_if(f's_cmp_eq_u32 {sIT}, 0', clear2, lambda: self.sleep('hc4'))
        self.wol = self.wo_group(BWO, 41, npre, 6) if woq is None else self.woq_group(BWO, 41, woq, 8)
        if self.o.get('x_wo'):
            self.stamp('x_iss')
            a.e('s_waitcnt vmcnt(0)')
            self.stamp('x_land')

    def wb(self, where):
        a = self.a
        if self.o.get('wb') != where:
            return
        l = a.lab('nowb')
        self.sums(t1, [(sJ, 8), (sV, 2), (sIT, 1)])
        a.e(f's_cmp_lg_u32 {t1}, {24 * 8 + 1}')
        a.e(f's_cbranch_scc1 {l}')
        a.begin_skip()
        a.e('buffer_wbl2 sc1')
        self.end_only(l)

    def uv(self):
        a = self.a
        a.e('v_lshrrev_b32 v28, 1, v0')
        a.e('v_and_or_b32 v28, v28, 16, 0')
        a.e('v_and_or_b32 v28, v0, 14, v28')
        a.e('v_lshlrev_b32 v28, 6, v28')
        a.e('v_and_or_b32 v28, v0, 16, v28')
        a.e('v_lshlrev_b32 v28, 1, v28')
        a.e(f'v_and_or_b32 v28, {vL16}, 16, v28')
        a.e('v_and_b32 v29, 56, v0')
        a.e('v_lshlrev_b32 v29, 4, v29')
        self.pos_bytes('v30', None)
        a.e('v_and_b32 v31, 32, v0')
        a.e('v_lshl_or_b32 v30, v31, 3, v30')
        self.oob(('v30', 'v30'), (0xffffaaaa, 0xffffaaaa))
        self.touches('w5', 'v12', 'v13')
        a.e('s_waitcnt lgkmcnt(0)')
        self.sleep('hc2')
        ld = [f'buffer_load_dword v16, v29, {WSG}, {oC2Lg} offen sc1',
              f'buffer_load_dwordx4 v[8:11], v28, {WSG}, {oC2g} offen sc1']
        z = [f'v_mov_b64 {vr(r, 2)}, 0' for r in range(20, 28, 2)]
        lwe = self.o.get('lw_early', 1)
        a.e(ld[0])
        a.tag_vm('lw')
        if lwe:
            self.sleep('hc2b')
        a.e(ld[1])
        a.tag_vm('c2')
        for x in z:
            a.e(x)
        for x in self.wol:
            a.e(x)
        if self.wol:
            a.tag_vm('wo')
        top, top2 = a.lab('chk'), a.lab('chk')

        def red3(op, r, src):
            return [f'{op}_dpp v12, v{src}, v{src} row_ror:8 {FULL}', f'{op}_dpp v{r}, v{src}, v{src} row_ror:8 {FULL}',
                    f'v_permlane32_swap_b32 v{r}, v12', f'{op} v14, v{r}, v12', f'{op} v{r}, v{r}, v12',
                    f'v_permlane16_swap_b32 v{r}, v14', f'{op} v{r}, v{r}, v14']
        w = red3('v_max_f32', 17, 16) + ['v_sub_f32 v16, v16, v17', 'v_exp_f32 v16, v16'] + red3('v_add_f32', 17, 16) + \
            ['v_rcp_f32 v17, v17', f'v_mul_f32_dpp v18, v16, v17 row_newbcast:0 {FULL}', f'v_mul_f32_dpp v19, v16, v17 row_newbcast:8 {FULL}']
        a.wait(vm='lw')
        a.e(f'{top}:')
        a.e('v_cmp_eq_u32 vcc, -1, v16')
        for x in w[:5]:
            a.e(x)
        self.retry_with([ld[0]], 's_waitcnt vmcnt(0)', top)
        for x in w[5:]:
            a.e(x)
        self.H('u1', 0, 12)
        a.wait(vm='c2')
        a.e(f'{top2}:')
        a.e('v_cmp_u_f32 vcc, v8, v8')
        a.e('v_smfmac_f32_16x16x64_bf16 v[20:23], v[8:11], v[48:55], v1')
        a.e('v_smfmac_f32_16x16x64_bf16 v[24:27], v[8:11], v[56:63], v1')
        self.retry_with([ld[1], 's_nop 7'] + z, 's_waitcnt vmcnt(0)', top2)
        self.stamp('c2got', 2)
        self.weigh2n(18, 'v21')
        a.e('v_permlane16_swap_b32 v20, v21')
        a.e('v_add_f32 v20, v20, v21')
        self.retry_with([ld[1]] + z, 's_waitcnt vmcnt(0)', top2)
        a.e(f'v_mov_b32_dpp v21, v20 quad_perm:[1,0,3,2] {FULL}')
        a.e('v_cvt_pk_bf16_f32 v20, v20, v21')
        self.lstore([f'buffer_store_dword v20, v30, {WSL}, {oOBpub} offen'])
        self.stamp('dpub')
        self.wb('dpub')

    def attn_a3(self):
        a = self.a
        self.qa_addr(44)
        self.sleep('hqa')
        ld = self.qa_loads(8, 12, 44)
        for x in ld:
            a.e(x)
        a.e('v_mov_b64 v[20:21], 0')
        a.e(f'v_lshl_add_u32 v17, v0, 3, {sW8}')
        a.e('ds_write_b64 v17, v[20:21] offset:6656')
        a.e(f's_add_u32 {t0}, {sW8}, 6656')
        a.e(f'v_mov_b32 v17, {t0}')
        a.e(f's_mov_b32 s22, {self.o.get("rowm", 0x000f000f)}')
        a.e(f's_mov_b32 s23, {self.o.get("rowm", 0x000f000f)}')
        for c in range(4):
            a.e(f'v_cndmask_b32 v{56 + c}, v17, v46, s[22:23]')
            a.e('s_lshl_b64 s[22:23], s[22:23], 4')
        self.p_addr('v60', 'v17')
        self.wo_prep(61, 'v17')
        for r in (16, 24, 28):
            a.e(f'v_mov_b64 {vr(r, 2)}, 0')
        a.e(self.stats_const(39))
        self.pipe_poll(ld, 'v38', [8, 12], 'pq', ['v_mov_b64 v[36:37], v[12:13]', 'v_mov_b64 v[32:33], v[8:9]', 'v_mov_b64 v[34:35], v[10:11]'])
        top = self.ptop
        self.stamp('qgotA', 2)
        self.qa_finish(32, 36, 44, None, 39, True)
        a.e('v_lshlrev_b32 v33, 16, v32')
        a.e('v_cmp_u_f32 vcc, v33, v33')
        a.e(f's_sub_u32 {t2}, {sW8}, {ZQ - 6144}')
        a.e(f's_cmp_eq_u32 {sV}, 0')
        a.e(f's_cselect_b32 {t3}, {oOALpub}, {OOB}')
        a.e(f's_mov_b32 s22, {self.o.get("rowm", 0x000f000f)}')
        a.e(f's_mov_b32 s23, {self.o.get("rowm", 0x000f000f)}')
        self.H('a1', 1, 52)
        self.retry_to(top)
        a.e('s_waitcnt vmcnt(0) lgkmcnt(0)')
        a.e('s_barrier')
        self.H('a2', 1, 8)

        def qrd(c, b):
            a.e(f'ds_read_b128 {vr(32 + 8 * (c % 3) + 4 * b, 4)}, v{56 + c} offset:{128 * b}')
            a.tag_ds(f'q{c}{b}')
        for c in range(3):
            qrd(c, 0)
            qrd(c, 1)
        if self.o.get('wo3', 0):
            self.touch('wo', 'v15', None)
        self.stamp('qrdy')
        ds, va = [], []
        for e in range(8):
            for t in range(4):
                ds.append((e, f'ds_read_b64_tr_b16 a[{8 * e + 2 * t}:{8 * e + 2 * t + 1}], v{14 + (e & 1)} offset:{t * 4096}'))
        wl = self.wo_lines(WO, 61, self.o.get('pol_wo3', ''))
        other = {2: wl[0], 3: wl[1], 7: wl[2], 11: wl[3], 13: wl[4], 15: wl[5], 19: wl[6], 23: wl[7],
                 5: 'v_mov_b64 v[8:9], 0', 6: 'v_mov_b64 v[12:13], 0', 8: f'v_mov_b32 v10, {t2}'}
        wo3 = self.o.get('wo3', 0)
        late = {}
        nh = self.o.get('wo_h2', 0)
        if nh or self.o.get('wo_pos'):
            for k in (2, 3, 7, 11, 13, 15, 19, 23):
                del other[k]
            pos = self.o.get('wo_pos') or {1: (3, 9, 15, 21, 27), 2: (3, 11, 19, 27), 3: (3, 13, 23)}[nh]
            for k, p in zip(range(nh, 6), pos):
                g2 = self.wo_group(WO, 61, k, k + 1)
                other[p - 1] = (other[p - 1] + '\n' if p - 1 in other else '') + g2[0]
                other[p] = g2[1]
        if wo3:
            for k in (2, 3, 7, 11, 13, 15, 19, 23):
                del other[k]
            pos = {1: (0, 1, 4, 7, 9, 10, 13, 16), 2: (8, 9, 12, 15, 17, 18, 21, 24)}[wo3]
            late = dict(zip(pos, wl))
        for e, k in enumerate((4, 10, 14, 18, 22, 26, 30), 1):
            other[k] = (other[k] + '\n' if k in other else '') + f'v_xor_b32 v{14 + (e & 1)}, {e << 5}, {vT}'
        pc = []
        for c in range(4):
            pc.append('v_cndmask_b32 v11, 0, v10, s[22:23]')
            pc.append(f'v_add_u32 v{56 + c}, v{56 + c}, v11')
            if c < 3:
                pc.append('s_lshl_b64 s[22:23], s[22:23], 4')
        a.e(f'v_mov_b32 v14, {vT}')
        for k in range(32):
            c, r, b = k >> 3, (k >> 1) & 3, k & 1
            if k < 2:
                a.wait(ds=f'q{c}{b}')
            elif k == 8:
                a.wait(ds='q21')
            elif k == 24:
                a.wait(ds='q31')
            t = k >> 1
            a.e(f'v_smfmac_f32_16x16x64_bf16 {vr(16 + 4 * r, 4)}, {vr(32 + 8 * (c % 3) + 4 * b, 4)}, a[{16 * t + 8 * b}:{16 * t + 8 * b + 7}], v1')
            if k in (8, 9):
                qrd(3, k - 8)
            elif k >= 1:
                a.e(ds.pop(0)[1])
            if k in other:
                a.e(other[k])
        for r in range(4):
            if ds:
                a.e(ds.pop(0)[1])
            a.e(f'v_add_f32 v{16 + r}, v{16 + 4 * r}, v{17 + 4 * r}')
        self.softmax_a(16, 20, 'v60', pc)

        def prd(j):
            a.e(f'ds_read_b128 {vr(32 + 4 * (j % 6), 4)}, v{56 + (j >> 2)} offset:{128 * (j & 3)}')
            a.tag_ds(f'p{j}')
        RD = self.o.get('pring', 4)
        self.H('a3', 1, 24)
        for j in range(RD):
            prd(j)
        self.stamp('smaxA')
        ls = self.lsum('v21', 16)
        mw = self.ml_write(20)
        for x in ls[:2] + mw[:2] + ls[2:3] + mw[2:4] + ls[3:4]:
            a.e(x)
        Q1, Q2 = f'quad_perm:[1,0,3,2] {FULL}', f'quad_perm:[2,3,0,1] {FULL}'
        fill = {0: ls[4], 1: ls[5], 2: ls[6], 3: ls[7], 4: mw[4], 6: 'v_and_b32 v23, 3, v0', 8: 'BAR',
                9: f'v_lshl_add_u32 v23, v23, 3, s23\nds_read_b64 v[24:25], v23', 13: 'MLW',
                14: f'v_max_f32_dpp v22, v24, v24 {Q1}', 15: f'v_max_f32_dpp v22, v22, v22 {Q2}',
                16: f'v_sub_f32 v24, v24, v22', 17: 'v_exp_f32 v24, v24', 18: 'v_mul_f32 v19, v24, v25',
                20: f'v_add_f32_dpp v19, v19, v19 {Q1}', 22: f'v_add_f32_dpp v19, v19, v19 {Q2}', 23: 'v_log_f32 v25, v19',
                24: 'v_add_f32 v25, v25, v22', 25: 'LW', 26: f'v_sub_f32 v18, {sM}, v25', 27: 'v_exp_f32 v18, v18',
                28: 'v_lshrrev_b32 v23, 4, v0', 29: 'v_lshl_add_u32 v23, v23, 1, v0', 30: 'v_and_b32 v23, 7, v23'}
        a.e(f's_mov_b32 s23, {ZML}')
        for j in range(16):
            c, U = j >> 2, j & 3
            for hf in range(2):
                e = c + 4 * hf
                if hf == 0 and (j < 2 or j & 1 == 0):
                    a.wait(ds=f'p{j if j < 2 else j + 1}')
                B = vr(64 + 64 * U + 8 * e, 8) if U < 3 else f'a[{8 * e}:{8 * e + 7}]'
                a.e(f'v_smfmac_f32_16x16x64_bf16 {vr(8 + 4 * hf, 4)}, {vr(32 + 4 * (j % 6), 4)}, {B}, v1')
                if 2 * j + hf in late:
                    a.e(late[2 * j + hf])
                if hf == 1 and j + RD < 16:
                    prd(j + RD)
                x = fill.pop(2 * j + hf, None)
                if x == 'BAR':
                    a.wait(ds='mlw')
                    a.e('s_barrier')
                elif x == 'MLW':
                    a.wait(ds='mlr')
                elif x == 'LW':
                    self.lstore([f'buffer_store_dword v25, off, {WSL}, {t3}'])
                elif x:
                    a.e(x)
                    if 'ds_write_b64' in x:
                        a.tag_ds('mlw')
                    if 'ds_read_b64' in x:
                        a.tag_ds('mlr')
        assert not fill
        a.e(f'v_lshl_add_u32 v46, v0, 2, {sW8}')
        a.e('v_lshlrev_b32 v47, 2, v23')
        a.e('v_add_f32 v44, v8, v9')
        a.e('v_add_f32 v45, v12, v13')
        a.e('v_pk_mul_f32 v[44:45], v[44:45], v[18:19] op_sel_hi:[1,0]')
        self.stamp('pvA')

    def dma_tile(self, t):
        a = self.a
        pol = self.o.get('pol_kv', 'nt')
        srd = K_ if t < 16 else V_
        a.e(f's_add_u32 m0, {sKV}, {(t & 3) * 4096}')
        a.e(f's_add_u32 {t0}, {sKG}, {(t & 15) * 16384}')
        for q in range(4):
            a.e(f'buffer_load_dwordx4 v{8 + q}, {srd}, {t0} offen offset:{q * 1024} {pol} lds')
        a.tag_vm(f'tile{t}')

    def make_items(self):
        o = self.o
        pol, polc = o.get('pol_kv', 'nt'), o.get('pol_c', '')
        extra = {}
        c0, cs = o.get('ckv_from', 44), o.get('ckv_step', 2)
        for i in range(16):
            t, q = i >> 2, i & 3
            extra.setdefault(c0 + cs * i, []).append((f'c{i}', [
                f's_add_u32 m0, {sKV}, {CKV + i * 1024}', f'v_add_u32 v238, v{8 + q}, v254', f's_add_u32 {t0}, s1, {(16 * t + 4 * q) * 1024}',
                f'buffer_load_dwordx4 v238, {CK}, {t0} offen {polc} lds']))
        w0, wstep = o.get('wo_from', 52), o.get('wo_step', 4)
        for k in range(6):
            h, i = divmod(k, 3)
            extra.setdefault(w0 + wstep * k, []).append((f'w{k}', [
                f's_add_u32 m0, {sW8}, {h * 3072}', f's_add_u32 {t0}, {oWO}, {h * 64 * 1152}',
                f'buffer_load_dwordx4 v{(246, 247, 255)[i]}, {WO}, {t0} offen offset:{i * 1024} lds']))
        items = []
        self.extra = {tag: lines for v in extra.values() for tag, lines in v}
        for d in range(128):
            t, q = d >> 2, d & 3
            items.append((f'tile{t}' if q == 3 else f'd{d}', [
                f's_add_u32 m0, {sKV}, {(t & 3) * 4096}', f's_add_u32 {t0}, {sKG}, {(t & 15) * 16384}',
                f'buffer_load_dwordx4 v{8 + q}, {K_ if t < 16 else V_}, {t0} offen offset:{q * 1024} {pol} lds']))
        self.items = items
        self.pos = {tag: k for k, (tag, _) in enumerate(items)}
        self.issued = 0
        self.done_tile = -1
        self.lnq_done = False

    def issue_to(self, n):
        a = self.a
        prev = None
        lim = self.pos[f'tile{min(self.done_tile + 4, 31)}'] + 1
        while self.issued < min(n, lim):
            tag, lines = self.items[self.issued]
            if tag[0] == 'w':
                assert self.lnq_done, 'w_o staged before the q weights were read'
            assert tag[0] in 'td' or 2 < self.done_tile < 26
            for x in (lines if lines[:2] != prev else lines[2:]):
                a.e(x)
            a.tag_vm(tag)
            prev = lines[:2]
            self.issued += 1

    def prologue(self):
        a = self.a
        self.make_items()
        a.e('s_cmp_ge_u32 s2, 256')
        a.e('s_cbranch_scc1 L_end')
        if self.o.get('diag_fixed'):
            a.e('s_memrealtime s[100:101]')
        if self.o.get('stamps'):
            a.e('s_memtime s[98:99]' if self.o.get('clk') else 's_memrealtime s[98:99]')
        a.e('s_load_dwordx2 s[4:5], s[0:1], 8')
        ptrs = [(V_, 16), (CK, 48), (DBG, 96), (XIN, 0), (WQ, 24), (WO, 32), (BWQ, 56), (WUK, 64), (WUV, 72), (BWO, 80),
                (WS, 104), (OUT, 88)]
        sizes = {K_: 1 << 26, V_: 1 << 26, CK: 1 << 23, DBG: 256, XIN: 1152, WQ: 576 * 8192, WO: 4096 * 1152,
                 BWQ: 576 * 8192, WUK: 1 << 22, WUV: 1 << 22, BWO: 4096 * 1152, WS: WS_SIZE, WSL: L_X, WSG: G_IT, OUT: 1152}
        base = lambda s: int(s[2:s.index(':')])
        if self.o.get('code0', 1):
            a.e('s_getpc_b64 s[82:83]')
            a.e('L_pc:')
            a.e('s_and_b32 s3, s2, 0xf8')
            a.e('v_lshrrev_b32 v62, 5, v0')
            a.e('v_add_lshl_u32 v62, v62, s3, 7')
            a.e('v_min_u32 v62, L_codeend-L_pc, v62')
            a.e('global_load_dword v61, v62, s[82:83]')
        a.e('v_lshrrev_b32 v1, 6, v0')
        a.e('v_mov_b32 v63, v0')
        a.e(f'v_readfirstlane_b32 {sV}, v1')
        a.e('v_and_b32 v0, 63, v0')
        a.e(f's_and_b32 {sX}, s2, 7')
        a.e(f's_lshr_b32 {sJ}, s2, 3')
        a.e(f's_lshl_b32 {sKV}, {sV}, 14')
        self.sums(sKG, [(sX, 1 << 23), (sJ, 1 << 18), (sV, 1 << 12)])
        a.e(f'v_lshlrev_b32 {vL16}, 4, v0')
        a.e('v_and_b32 v12, 48, v0')
        a.e('v_lshlrev_b32 v12, 1, v12')
        a.e(f'v_xor_b32 v8, v12, {vL16}')
        for q in range(1, 4):
            a.e(f'v_xor_b32 v{8 + q}, {TBL[q] << 4}, v8')
        a.e(f's_mov_b32 s6, {sizes[K_]}')
        a.e('s_mov_b32 s7, 0x20000')
        a.e('s_waitcnt lgkmcnt(0)')
        for t in range(4):
            self.issue_to(min(4 * t + 4, self.o.get('win0', 8)))
            for srd, off in ptrs[3 * t:3 * t + 3]:
                b = base(srd)
                a.e(f's_load_dwordx2 s[{b}:{b + 1}], s[0:1], {off}')
        for srd, n in sizes.items():
            if srd != K_:
                a.e(f's_mov_b32 s{base(srd) + 2}, {n}')
                a.e(f's_mov_b32 s{base(srd) + 3}, 0x20000')
        if not self.o.get('code0', 1):
            a.e(f's_getpc_b64 s[82:83]')
            a.e('L_pc:')
            a.e('v_lshlrev_b32 v62, 7, v63')
            a.e(f'v_min_u32 v62, L_codeend-L_pc, v62')
            a.e('global_load_dword v61, v62, s[82:83]')
        a.e(f's_lshr_b32 {t1}, {sJ}, 3')
        self.sums(sH, [(sX, 4), (t1, 1)])
        a.e(f's_and_b32 {sS}, {sJ}, 7')
        a.e(f's_mov_b32 {sIT}, 0')
        a.e(f's_mov_b32 {sPOLL}, 0')
        a.e(f's_mov_b32 {sST}, 0')
        self.sums(sW8, [(sV, 8192)], STG)
        a.e('s_mov_b32 s84, 0x00ff00ff')
        a.e('s_mov_b32 s85, 0x00ff00ff')
        a.e(f's_mul_i32 {t2}, {sJ}, 43')
        a.e(f's_lshr_b32 {t2}, {t2}, 8')
        a.e(f's_mul_i32 {t3}, {t2}, 6')
        a.e(f's_sub_u32 {t3}, {sJ}, {t3}')
        self.sums(oY, [(t3, 512), (sV, 128)])
        self.sums(oQA, [(t2, 4096), (sV, 1024), (t3, 128)], L_QA)
        self.sums(oQB, [(t2, 4096), (sV, 512), (t3, 32)], L_QB)
        self.sums(oST, [(t2, 64), (t3, 8)], L_STA)
        self.sums(oWQ, [(t3, 96 * 8192), (sV, 24 * 8192), (sX, 1024), (t2, 256)])
        a.e(f's_cmp_eq_u32 {sV}, 0')
        a.e(f's_cselect_b32 {oST}, {oST}, {OOB}')
        a.e(f's_cmp_lt_u32 {sJ}, 24')
        for r in (oQA, oST, oWQ):
            a.e(f's_cselect_b32 {r}, {r}, {OOB}')
        self.sums(oQgA, [(t1, 4096), (sV, 1024)], L_QA)
        self.sums(oSTgA, [(t1, 64)], L_STA)
        if self.o.get('single'):
            a.e(f's_lshr_b32 {t2}, {sS}, 1')
            a.e(f's_and_b32 s3, {sS}, 1')
            self.sums(oWUV, [(t2, 128 * 8192), ('s3', 8 * 8192), (sH, 256), (sV, 64)])
        else:
            self.sums(oWUV, [(sS, 64 * 8192), (sH, 256), (sV, 64)])
        self.sums(oWUK, [(sJ, 16 * 8192), (sX, 1024), (sV, 256)])
        self.sums(oWO, [(sX, 512 * 1152), (sV, 128 * 1152), (sJ, 48)])
        self.sums(oYpub, [(sX, 3072), (sJ, 128)])
        if self.o.get('asym'):
            a.e(f's_getreg_b32 {t0}, hwreg(HW_REG_XCC_ID, 0, 3)')
            a.e(f's_lshr_b32 {t0}, {self.o["asym"][0]}, {t0}')
            a.e(f's_lshl_b32 {t0}, {t0}, 31')
            a.e(f's_or_b32 {oYpub}, {oYpub}, {t0}')
        a.e(f's_cmp_lt_u32 {sJ}, 24')
        a.e(f's_cselect_b32 {oWO}, {oWO}, {OOB}')
        a.e(f's_cselect_b32 {sRES}, 1, 0')
        a.e(f's_cmp_eq_u32 {sV}, 3')
        a.e(f's_cselect_b32 {sRES}, {sRES}, 0')
        a.e(f's_mul_i32 {t0}, {sRES}, 3')
        a.e(f's_cmp_eq_u32 {sX}, 0')
        a.e(f's_cselect_b32 {sRES}, {t0}, {sRES}')
        if self.tc():
            a.e('v_mov_b32 v7, 0')
        if self.o.get('stamps'):
            a.e('v_mov_b32 v7, 0')
            a.e('s_mov_b32 s97, 8')
        a.e('v_and_b32 v14, 1, v0')
        a.e('v_mul_u32_u24 v1, 0xaaaa, v14')
        a.e('v_add_u32 v1, 0x4444, v1')

        def tbl(dst, x, tmp):
            a.e(f'v_lshrrev_b32 {tmp}, 1, {x}')
            a.e(f'v_xor_b32 {dst}, {x}, {tmp}')
            a.e(f'v_and_b32 {dst}, 1, {dst}')
            a.e(f'v_lshl_or_b32 {dst}, {dst}, 3, {tmp}')
        a.e('v_lshrrev_b32 v12, 4, v0')
        a.e('v_and_b32 v13, 15, v0')
        a.e('v_lshrrev_b32 v15, 2, v13')
        tbl('v16', 'v15', 'v17')
        a.e('v_and_b32 v17, 3, v13')
        a.e('v_lshlrev_b32 v18, 1, v17')
        a.e('v_xor_b32 v16, v16, v18')
        a.e('v_xor_b32 v16, v16, v12')
        a.e('v_lshlrev_b32 v16, 4, v16')
        a.e(f'v_lshl_or_b32 {vA}, v13, 8, v16')
        a.e(f'v_add_u32 {vA}, {sKV}, {vA}')
        tbl('v16', 'v12', 'v18')
        a.e('v_lshlrev_b32 v18, 1, v15')
        a.e('v_xor_b32 v16, v16, v18')
        a.e('v_lshrrev_b32 v18, 1, v17')
        a.e('v_xor_b32 v16, v16, v18')
        a.e('v_lshlrev_b32 v16, 4, v16')
        a.e('v_lshrrev_b32 v18, 2, v0')
        a.e('v_lshl_or_b32 v16, v18, 8, v16')
        a.e(f'v_lshl_or_b32 {vT}, v14, 3, v16')
        a.e(f'v_add_u32 {vT}, {sKV}, {vT}')
        a.e('s_waitcnt lgkmcnt(0)')
        self.stamp('start')
        w, l, g = base(WS), base(WSL), base(WSG)
        a.e(f's_lshl_b32 {t0}, {sX}, 17')
        a.e(f's_add_u32 s{l}, s{w}, {t0}')
        a.e(f's_addc_u32 s{l + 1}, s{w + 1}, 0')
        a.e(f's_add_u32 s{g}, s{w}, {GB}')
        a.e(f's_addc_u32 s{g + 1}, s{w + 1}, 0')
        if self.o.get('tlb0'):
            a.e('s_mov_b64 exec, 1')
            a.e(f'buffer_load_dword v61, off, {V_}, {sKG} nt')
            a.e(f's_lshl_b32 {t0}, {sX}, 20')
            a.e(f'buffer_load_dword v61, off, {CK}, {t0}')
            a.e(f'buffer_load_dword v61, off, {WO}, {oWO}')
            if self.o['tlb0'] > 1:
                for srd, so in ((BWQ, oWQ), (WUK, oWUK), (WUV, oWUV), (BWO, oWO)):
                    a.e(f'buffer_load_dword v61, off, {srd}, {so}')
                self.sums(t1, [(sX, 1 << 19)], CB)
                a.e(f'buffer_load_dword v61, off, {WS}, {t1}')
            a.e('s_mov_b64 exec, -1')
        self.dma_wq(WQ, 'v56', 'v57')
        self.lnq_rows()
        a.e(f's_mul_i32 {t0}, {t3}, 192')
        a.e('v_mul_u32_u24 v58, 3, v0')
        a.e('s_mov_b32 exec_lo, 0x00010001')
        a.e('s_mov_b32 exec_hi, 0x00010001')
        for rho in range(3):
            a.e(f'buffer_load_dwordx4 {vr(16 + 4 * rho, 4)}, v58, {XIN}, {t0} offen offset:{16 * rho}')
        a.e('s_mov_b64 exec, -1')
        a.e('v_lshlrev_b32 v58, 2, v0')
        a.e(f's_mul_i32 {t0}, {sJ}, 48')
        a.e(f's_cmp_eq_u32 {sRES}, 3')
        a.e(f's_cselect_b32 {t0}, {t0}, {OOB}')
        a.e(f'buffer_load_dword v5, v58, {XIN}, {t0} offen')
        for r in range(56, 60):
            a.e(f'v_mov_b32 v{r}, -1')
        self.sums(t4, [(sX, L_X), (sJ, 2560), (sV, 640)])
        gw = 128 if self.o.get('single') else 384
        self.sums(t1, [(sX, 128 * gw), (sJ, 4 * gw), (sV, gw)], GB)
        a.e('s_mov_b32 exec_hi, 0xff')
        a.e(f'buffer_store_dwordx4 v[56:59], {vL16}, {WS}, {t4} offen sc1')
        a.e(f's_mov_b64 exec, {(1 << (gw // 16)) - 1}')
        a.e(f'buffer_store_dwordx4 v[56:59], {vL16}, {WS}, {t1} offen sc1')
        a.e('s_mov_b64 exec, -1')
        a.tag_vm('clr')
        for ks in range(4):
            a.e(f'v_xor_b32 v{12 + ks}, {ks << 6}, {vA}')

    def late_scalars(self):
        a = self.a
        if self.o.get('ckv_late', 0):
            a.e('s_add_u32 s0, s12, s1')
            a.e('s_addc_u32 s1, s13, 0')
        if self.o.get('asym'):
            a.e(f's_bitset0_b32 {oYpub}, 31')
        a.e(f's_lshr_b32 {t1}, {sJ}, 3')
        a.e(f's_and_b32 {t2}, {sJ}, 1')
        a.e(f's_lshr_b32 {t3}, {sJ}, 1')
        a.e(f's_lshr_b32 {t4}, {sX}, 2')
        a.e(f's_and_b32 {t5}, {sX}, 3')
        self.sums(oQgB, [(sV, 4096)], L_QB)
        self.sums(oSTgB, [(sV, 64)], L_STB)
        self.sums(oQApub, [(t4, 16384), (t3, 1024), (t5, 256), (t2, 128)], G_QABS)
        self.sums(oQAg, [(t2, 16384), (sV, 4096)], G_QABS)
        self.sums(oC1pub, [(sX, 1 << 19), (t2, 1 << 18), (sV, 16384), (t3, 256)], CB)
        a.e(f's_and_b32 {t4}, {t3}, 3')
        self.sums(oMLpub, [(t2, 2048), (t4, 128), (t1, 8)], L_C1ML)
        self.sums(oC1g, [(sX, 1 << 19), (sJ, 16384), (sV, 4096)], CB)
        a.e(f's_lshr_b32 {t4}, {sJ}, 2')
        self.sums(oMLg, [(t4, 512)], L_C1ML)
        self.sums(oC2pub, [(sJ, 8192), (sV, 2048), (sX, 256)], G_C2)
        self.sums(oC2Lpub, [(t4, 1024), (sX, 128)], G_C2L)
        a.e(f's_and_b32 {t4}, {sJ}, 3')
        a.e(f's_cselect_b32 {oC2Lpub}, {OOB}, {oC2Lpub}')
        self.sums(oC2g, [(sX, 32768), (sS, 4096), (t1, 64)], G_C2)
        self.sums(oC2Lg, [(sX, 1024), (t1, 16)], G_C2L)
        if self.o.get('single'):
            if self.o.get('cswz', 1):
                self.sums(oC1pub, [(t2, 1 << 21), (sV, 32768), (sX, 2048)], CB)
                a.e(f's_and_b32 {t4}, {sV}, 1')
                a.e(f's_lshl_b32 {t4}, {t4}, 3')
                a.e(f's_xor_b32 {t4}, {t4}, {t3}')
                a.e(f's_lshl_b32 {oC2g}, {t4}, 7')
                a.e(f's_and_b32 {t4}, {sS}, 1')
                a.e(f's_and_b32 s3, {sS}, 2')
                self.sums(oC2Lg, [(t4, 128), (t5, 256), ('s3', 512)])
            else:
                self.sums(oC1pub, [(t2, 1 << 21), (sV, 32768), (sX, 2048), (t3, 128)], CB)
            self.sums(oMLpub, [(t2, 16384), (sX, 2048), (t3, 128)], G_ML)
            self.sums(oC1g, [(sH, 131072), (sS, 16384), (sV, 4096)], CB)
            a.e(f's_lshr_b32 {t4}, {sH}, 4')
            a.e(f's_and_b32 {t5}, {sH}, 15')
            self.sums(oMLg, [(t4, 16384), (sV, 4096), (t5, 8)], G_ML)
        self.sums(oOBpub, [(t1, 2048), (sV, 512), (sS, 32)], L_OB)
        self.sums(oOApub, [(t1, 2048), (sS, 32)], L_OA)
        self.sums(oOALpub, [(sJ, 4)], L_OAL)
        self.sums(oOALg, [(sV, 32)], L_OAL)
        self.sums(oRES, [(sJ, 128)])
        self.sums(oO, [(sV, 2048)], L_OA)
        a.e(f's_cmp_eq_u32 {sV}, 0')
        a.e(f's_cselect_b32 {oMLpub}, {oMLpub}, {OOB}')
        a.e(f's_cselect_b32 {oOApub}, {oOApub}, {OOB}')
        a.e(f's_cselect_b32 {oC2Lpub}, {oC2Lpub}, {OOB}')

    def pv_block(self, U):
        a = self.a
        self.sp_addr('v63', sW8)
        a.e(f'ds_read_b128 v[20:23], v63 offset:{6144 + 128 * U}')
        a.e('s_waitcnt lgkmcnt(0)')
        for e in range(8):
            a.e(f'v_smfmac_f32_16x16x64_bf16 {vr(24 + 4 * e, 4)}, v[20:23], {vr(64 + 64 * U + 8 * e, 8)}, v1')

    def stream(self):
        a = self.a
        o = self.o
        landed = 0
        for t in range(28):
            win = o.get('win', 6) if t < o.get('wide_at', 99) else o.get('wide', 12)
            while landed <= self.pos[f'tile{t}']:
                if self.issued < landed + 1 + win or landed == self.pos[f'tile{t}']:
                    a.wait(vm=self.items[landed][0])
                    if o.get('sstamps') and t % 4 == 0 and landed == self.pos[f'tile{t}']:
                        self.stamp(f't{t}')
                    self.issue_to(landed + 1 + win)
                landed += 1
            slot = (t & 3) * 4096
            if t < 16:
                for ks in range(4):
                    a.e(f'ds_read_b128 a[{16 * t + 4 * ks}:{16 * t + 4 * ks + 3}], v{12 + ks} offset:{slot}')
            else:
                u = t - 16
                if u == 0:
                    for e in range(8):
                        a.e(f'v_xor_b32 v{12 + e}, {e << 5}, {vT}')
                for e in range(8):
                    a.e(f'ds_read_b64_tr_b16 {vr(64 + 64 * (u >> 2) + 8 * e + 2 * (u & 3), 2)}, v{12 + e} offset:{slot}')
            a.e('s_waitcnt lgkmcnt(0)')
            self.done_tile = t
            self.issue_to(landed + win + o.get('boost', {}).get(str(t), 0) if t < 27 else 999)
            if t == 2:
                a.e('v_lshrrev_b32 v254, 4, v0')
                a.e('v_mul_u32_u24 v254, 768, v254')
                a.e(f's_lshr_b32 {t2}, {sJ}, 1')
                self.sums('s1', [(sX, 1 << 20), (t2, 1 << 16), (sV, 256)])
                for i, r in enumerate((246, 247, 255)):
                    a.e(f'v_add_u32 v{r}, {64 * i}, v0')
                    a.e(f'v_mul_u32_u24 v{r}, 21846, v{r}')
                    a.e(f'v_lshrrev_b32 v{r}, 16, v{r}')
                    a.e(f'v_mul_u32_u24 v{r}, {1152 - 48}, v{r}')
                    a.e(f'v_lshl_add_u32 v{r}, v0, 4, v{r}')
            if t == 4:
                a.wait(vm='clr')
                a.e('v_lshlrev_b32 v230, 7, v0')
                a.e('s_mov_b64 exec, 31')
                a.e(f'buffer_load_dword v239, v230, {WS}, {t4} offen')
                a.e('s_mov_b64 exec, -1')
                a.tag_vm('touch')
                a.e('v_lshlrev_b32 v4, 16, v5')
                a.e('v_and_b32 v5, 0xffff0000, v5')
            if t == o.get('lnq_at', 9):
                a.wait(vm='clr')
                self.lnq_addr()
                self.lnq_prep()
                for rho in range(3):
                    for x in self.lnq_mfma(rho):
                        a.e(x)
                self.lnq_reduce(False)
                self.lnq_done = True
            if t == o.get('atom_at', 5):
                if t != o.get('lnq_at', 9):
                    a.e('s_barrier')
                l = self.wave_only(1)
                a.e('s_getreg_b32 s82, hwreg(HW_REG_XCC_ID, 0, 3)')
                a.e('s_lshl_b32 s82, s82, 3')
                a.e('s_lshl_b64 s[82:83], 1, s82')
                a.e('v_mov_b32 v222, s82')
                a.e('v_mov_b32 v223, s83')
                a.e(f's_lshl_b32 {t0}, {sX}, 5')
                a.e('s_mov_b64 exec, 1')
                a.e(f'buffer_atomic_add_x2 v[222:223], v0, {DBG}, {t0} offen sc1')
                a.e('s_mov_b64 exec, -1')
                self.end_only(l)
            if t == o.get('cnt_at', 10):
                a.e('v_and_b32 v57, 7, v0')
                a.e('v_lshlrev_b32 v57, 5, v57')
                a.e(f'buffer_load_dwordx2 v[58:59], v57, {DBG}, 0 offen sc1')
                a.tag_vm('cnt')
            if t == 15:
                chk, retry, done = a.lab('chk'), a.lab('cretry'), a.lab('cdone')
                a.wait(vm='cnt')
                a.e(f'{chk}:')
                a.e('v_sad_u8 v61, v58, 0, 0')
                a.e('v_sad_u8 v61, v59, 0, v61')
                a.e('v_cmp_ne_u32 vcc, 32, v61')
                if not o.get('x_noinit'):
                    a.e(f's_cbranch_vccnz {retry}')
                a.e(f'{done}:')
                a.ool(f'{retry}:\ns_add_u32 {sPOLL}, {sPOLL}, 1\ns_cmp_gt_u32 {sPOLL}, 200000\ns_cbranch_scc1 {done}\ns_sleep 8\n'
                      f'buffer_load_dwordx2 v[58:59], v57, {DBG}, 0 offen sc1\ns_waitcnt vmcnt(0)\ns_branch {chk}')
                a.e('s_getreg_b32 s82, hwreg(HW_REG_XCC_ID, 0, 3)')
                a.e('s_lshl_b32 s82, s82, 3')
                a.e('s_lshl_b64 s[82:83], 32, s82')
                a.e(f'v_readlane_b32 {t2}, v58, {sX}')
                a.e(f'v_readlane_b32 {t3}, v59, {sX}')
                a.e(f's_cmp_eq_u64 s[82:83], s[80:81]')
                a.e(f's_cselect_b32 {sLOC}, {0 if o.get("force_slow") else 1}, {1 if o.get("x_noinit") else 0}')
                self.lnq_pubaddr(False, True)
                self.lcmp()
                self.lnq_publish(False, True)
            if t == 18:
                self.qa_addr(48)
                a.e(f's_add_u32 {t4}, {oQgA}, {L_CSA - L_QA}')
                ql = self.qa_loads(40, 52, 48) + [f'buffer_load_dwordx4 v[44:47], v51, {WSL}, {t4} offen sc1']
                for x in ql:
                    a.e(x)
                a.tag_vm('q')
            if t == 22:
                a.wait(vm='q')
                self.late_check('v20', list(range(40, 48)) + [52, 53], ql)
                for x in self.red8(44):
                    a.e(x)
                a.e('v_cvt_pk_bf16_f32 v44, 0, v44')
                a.e('v_or_b32 v1, v1, v44')
                a.e(self.stats_const(54))
                self.qa_finish(40, 52, 48, 56, 54)
                for r in range(24, 40, 4):
                    a.e(f'v_mov_b64 {vr(r, 2)}, 0')
                self.p_addr('v45', 'v44')
                self.qk_softmax(56, 24, 40, 44)
                for x in self.lsum('v57', 40):
                    a.e(x)
                for x in self.ml_write(56):
                    a.e(x)
                for r in range(24, 56, 4):
                    a.e(f'v_mov_b64 {vr(r, 2)}, 0')
                a.e('s_waitcnt lgkmcnt(0)')
            for i, at in enumerate(o.get('ckv_at', [10, 11, 12, 13])):
                if at == t:
                    if t == 27:
                        a.e('v_lshrrev_b32 v62, 4, v0')
                        a.e('v_mul_u32_u24 v62, 768, v62')
                        for q in range(4):
                            self.extra[f'c{4 * i + q}'] = [x.replace('v238', 'v63').replace('v254', 'v62') for x in self.extra[f'c{4 * i + q}']]
                    for q in range(4):
                        if i >= 4 - o.get('ckv_late', 0):
                            lines = self.extra[f'c{4 * i + q}']
                            for x in lines[:-1]:
                                a.e(x)
                            a.e(f's_mov_b64 exec, {MY}' if q in (0, 3) else f's_not_b64 exec, {MY}')
                            a.e(lines[-1])
                            a.e('s_mov_b64 exec, -1')
                            continue
                        for x in self.extra[f'c{4 * i + q}']:
                            a.e(x)
            if t == o.get('wo_at', 9):
                assert self.lnq_done
                for k in range(6):
                    for x in self.extra[f'w{k}']:
                        a.e(x)
            self.touches(f's{t}', 'v62', 'v31')
            if t == o.get('mlbar', 26):
                a.e('s_barrier')
                for x in self.ml_read(56, 20):
                    a.e(x)
                a.e('s_waitcnt lgkmcnt(0)')
                for x in self.ml_scale(56, 20, 21, 22):
                    a.e(x)
                a.e('v_readfirstlane_b32 s22, v21')
                a.e('v_readfirstlane_b32 s23, v22')
            if t == o.get('c1_late', 1) and t > 15:
                self.sums(t1, [(sX, 1 << 19), (sJ, 16384), (sV, 4096)], CB)
                for r in range(56, 60):
                    a.e(f'v_mov_b32 v{r}, -1')
                self.lcmp()
                self.lstore([f'buffer_store_dwordx4 v[56:59], {vL16}, {WS}, {t1} offen offset:{i * 1024}' for i in range(4)])
            if t == o.get('tlb_at', -1):
                g = o.get('tlb_n', 2)
                a.e(f's_mov_b64 exec, {(1 << g) - 1}')
                self.sums(t2, [(sX, 1 << 19)], CB)
                for srd, so, span in ((BWQ, oWQ, 24 * 8192), (WUK, oWUK, 16 * 8192), (WUV, oWUV, 64 * 8192), (BWO, oWO, 128 * 1152),
                                      (WS, t2, 1 << 19), (OUT, '0', 1024)):
                    a.e(f'v_mul_u32_u24 v62, {(span - 8192 if span > 8192 else span) // (g - 1) // 4 * 4}, v0')
                    a.e(f'buffer_load_dword v31, v62, {srd}, {so} offen')
                a.e('s_mov_b64 exec, -1')
            if t == o.get('isl_at', 12):
                a.e('s_branch L_isl_0')
                if self.alt:
                    a.e('L_isl_ret2:')
                else:
                    a.e('L_isl_ret:')
                    if o.get('hi'):
                        a.e('s_cmp_lg_u32 s0, 0')
                        a.e('s_cbranch_scc1 L_isl_ret2')
            if t == o.get('late_touch', -1):
                self.sums(t3, [(sX, 128), (sJ, 4), (sV, 1)])
                a.e(f's_lshl_b32 {t2}, {t3}, 10')
                a.e('v_lshlrev_b32 v62, 7, v0')
                a.e('v_and_b32 v62, 0x3ff, v62')
                a.e(f'buffer_load_dword v31, v62, {WS}, {t2} offen')
            if t == 23:
                self.pv_block(0)
            if t == 24:
                self.pv_block(1)
        if self.alt:
            a.e('s_nop 7')
            a.e('s_branch L_join')
            return
        a.e('L_join:')
        self.late_scalars()
        a.e('v_mov_b32 v62, s23')
        a.e(f's_cmp_eq_u32 {sV}, 0')
        a.e(f's_cselect_b32 {t1}, {oOALpub}, {OOB}')
        self.lcmp()
        self.lstore([f'buffer_store_dword v62, off, {WSL}, {t1}'])
        self.pv_block(2)
        a.e('v_lshrrev_b32 v62, 1, v0')
        a.e('v_and_b32 v62, 8, v62')
        a.e('v_and_or_b32 v62, v0, 32, v62')
        a.e(f'v_add_u32 v62, {sW8}, v62')
        a.e(f'v_add_u32 v62, {6144 + 384}, v62')
        for tt in range(4):
            o0 = 16 * (tt >> 1) + (tt & 1)
            r = (20, 22, 8, 10)[tt]
            a.e(f'ds_read2_b32 {vr(r, 2)}, v62 offset0:{o0} offset1:{o0 + 4}')
        a.e('s_mov_b32 vcc_lo, 0x55555555')
        a.e('s_mov_b32 vcc_hi, 0x55555555')
        a.e('s_waitcnt lgkmcnt(0)')
        for r in (20, 21, 22, 23, 8, 9, 10, 11):
            a.e(f'v_cndmask_b32 v{r}, 0, v{r}, vcc')
        self.last_tiles(range(3))
        a.e(f's_cmp_eq_u32 {sLOC}, 0')
        a.e('s_cbranch_scc1 L_pre_slow')

    def last_tiles(self, which):
        a = self.a
        for tt in which:
            a.wait(vm=f'tile{28 + tt}')
            if tt == 3:
                self.stamp('kvdone')
            dst = [56, 58, 60, 62] * 2 if tt < 3 else [56, 58, 60, 62, 20, 22, 8, 12]
            n1 = 4 if tt < 3 else 8
            for e in range(n1):
                a.e(f'ds_read_b64_tr_b16 {vr(dst[e], 2)}, v{12 + e} offset:{tt * 4096}')
                a.tag_ds(f'v{e}')
            if tt == 3:
                self.rot8('v14', 2)
            for e in range(8):
                a.wait(ds=f'v{e}')
                d = vr(24 + 4 * e, 4)
                a.e(f'v_mfma_f32_16x16x16_bf16 {d}, {vr((20, 22, 8, 10)[tt], 2)}, {vr(dst[e], 2)}, {d}')
                if e + n1 < 8:
                    a.e(f'ds_read_b64_tr_b16 {vr(dst[e], 2)}, v{12 + e + n1} offset:{tt * 4096}')
                    a.tag_ds(f'v{e + n1}')
                if tt == 3 and e >= 4:
                    x = e - 4
                    a.e(f'v_add_f32_dpp v16, v{24 + 4 * x}, v{25 + 4 * x} {DPPI} row_mask:{1 << x} bank_mask:0xf')
        if 3 not in which:
            return
        for e in range(4, 8):
            a.e(f'v_add_f32_dpp v17, v{24 + 4 * e}, v{25 + 4 * e} {DPPI} row_mask:{1 << (e & 3)} bank_mask:0xf')
        a.e('v_mul_f32 v44, s22, v16')
        a.e('v_mul_f32 v45, s22, v17')
        a.e(f'v_lshl_add_u32 v46, v0, 2, {sW8}')
        a.e('v_mov_b32 v47, v14')
        self.stamp('pv1')

    def tail(self, mode):
        a = self.a
        o = self.o
        base = lambda s: int(s[2:s.index(':')])
        self.mode = mode
        if mode == 'slow':
            a.e('L_pre_slow:')
            a.e('s_nop 7')
            a.e('s_waitcnt vmcnt(0)')
        self.last_tiles([3])
        n0 = self.nst
        a.vmq = [['wo', ()]] + [[None, ()] for _ in range(len(o.get('touch', {}).get('s27', [])) if o.get('wo_at', 9) == 27 else 40)]
        l, g = base(WSL), base(WSG)
        a.e(f'L_top_{mode}:')
        self.combine_publish()
        self.stamp('opub')
        a.e(f's_mul_i32 {t0}, {sRES}, {sIT}')
        self.resid_track(G_YB, 20, 'v8', f's_cmp_eq_u32 {t0}, 3')
        a.e(f's_mul_i32 {t0}, {sIT}, {G_IT}')
        a.e(f's_add_u32 s{g}, s{g}, {t0}')
        a.e(f's_addc_u32 s{g + 1}, s{g + 1}, 0')

        def idle_a():
            b = self.a
            self.wuk_prep('v8', 'v9')
            self.wuk_issue('v8', 'v9')
            self.touches('i1', 'v60', 'v10')
            l1 = b.lab('it1')
            b.e(f's_cmp_eq_u32 {sIT}, 1')
            b.e(f's_cbranch_scc1 {l1}')
            self.clear_g1(56)
            self.touches('i0', 'v60', 'v10')
            if o.get('touch', {}).get('i0b'):
                lp = b.lab('lp')
                b.e(f'{lp}:')
                b.e('s_sleep 4')
                b.e(f'buffer_load_dword v12, {vL16}, {WSL}, {oO} offen sc1')
                b.e('s_waitcnt vmcnt(0)')
                b.e('v_cmp_eq_u32 vcc, -1, v12')
                self.retry_to(lp)
                b.e('s_barrier')
                self.touches('i0b', 'v60', 'v10')
            l2 = b.lab('it1')
            b.e(f's_branch {l2}')
            b.e(f'{l1}:')
            self.touches('i3', 'v60', 'v10')
            self.sleep('ia')
            b.e(f'{l2}:')
            b.e('s_waitcnt vmcnt(0)')

        def busy_a():
            self.outproj(True)
            self.lnq_tail(G_YA, True)
        self.ool_if(f's_cmp_ge_u32 {sJ}, 24', idle_a, busy_a, True)
        self.qabs()
        self.attn_b()
        if o.get('single'):
            self.red_single()
        else:
            self.red()
            self.uv()

        def nextpass():
            b = self.a
            b.e(f's_cmp_eq_u32 {sIT}, 1')
            b.e(f's_cbranch_scc1 L_final_{mode}')
            b.e(f's_add_u32 s{l}, s{l}, {L_IT}')
            b.e(f's_addc_u32 s{l + 1}, s{l + 1}, 0')
            b.e(f's_mov_b32 s{l + 2}, {L_SZ}')
            b.e(f's_mov_b32 {sIT}, 1')
            if o.get('single'):
                b.e(f's_add_u32 {oC1pub}, {oC1pub}, {1 << 22}')
                b.e(f's_add_u32 {oC1g}, {oC1g}, {1 << 22}')

        def idle_b():
            nextpass()
            self.touches('i2', 'v60', 'v10')
            self.sleep('ib')
            self.a.e('s_waitcnt vmcnt(0)')
            self.a.e('s_barrier')

        def busy_b():
            self.outproj(False)
            nextpass()
            self.lnq_tail(G_YB, False)
        self.ool_if(f's_cmp_ge_u32 {sJ}, 24', idle_b, busy_b, True)
        self.attn_a3()
        self.nper = self.nst - n0
        self.n0 = n0
        if o.get('stamps') and not o.get('light'):
            a.e('s_mov_b32 s97, 5')
        a.e(f's_branch L_top_{mode}')
        a.e(f'L_final_{mode}:')
        a.e(f's_cmp_lg_u32 {sRES}, 3')
        a.e('s_cbranch_scc1 L_fin2')
        self.keep_rounding()
        a.e('v_lshrrev_b32 v8, 4, v0')
        a.e('v_mul_u32_u24 v8, 768, v8')
        a.e('v_and_or_b32 v8, v0, 15, v8')
        a.e('v_lshlrev_b32 v8, 2, v8')
        self.oob(('v8', 'v8'), (0xf000f000, 0xf000f000))
        a.e('s_mov_b64 vcc, 0xfff')
        a.e('v_cndmask_b32 v4, 0, v4, vcc')
        a.e('v_cndmask_b32 v5, 0, v5, vcc')
        a.e('v_and_b32 v9, 15, v0')
        a.e('v_lshrrev_b32 v10, 5, v0')
        a.e('v_lshl_or_b32 v9, v9, 1, v10')
        a.e('v_lshlrev_b32 v9, 1, v9')
        self.oob(('v9', 'v9'), (0xfffff000, 0xfffff000))
        a.e('v_mov_b32 v12, 0x3f80')
        a.e('v_mov_b32 v13, 0x3f800000')
        a.e(f's_add_u32 {t2}, {oRES}, {G_YB}')
        a.e(f's_add_u32 {t3}, {t2}, {4 * 3072}')
        a.e(f's_mul_i32 {t0}, {sJ}, 48')
        self.sleep('fin')
        ld = [f'buffer_load_dword v10, v8, {WSG}, {t2} offen sc1', f'buffer_load_dword v11, v8, {WSG}, {t3} offen sc1', 'v_mov_b64 v[14:15], v[4:5]']
        for x in ld:
            a.e(x)
        chk = a.lab('chk')
        a.e('s_waitcnt vmcnt(0)')
        a.e(f'{chk}:')
        a.e('v_cmp_u_f32 vcc, v10, v11')
        a.e('v_dot2c_f32_bf16 v14, v12, v10')
        a.e('v_dot2c_f32_bf16 v15, v13, v10')
        a.e('v_dot2c_f32_bf16 v14, v12, v11')
        a.e('v_dot2c_f32_bf16 v15, v13, v11')
        self.retry_with(ld[:2] + ['s_nop 1', ld[2]], 's_waitcnt vmcnt(0)', chk)
        a.e('v_permlane32_swap_b32 v14, v15')
        a.e('v_add_f32 v16, v14, v15')
        a.e('v_add_f32 v14, v14, v15')
        a.e('v_permlane16_swap_b32 v14, v16')
        a.e('v_add_f32 v14, v14, v16')
        a.e('v_cvt_pk_bf16_f32 v14, v14, v14')
        a.e(f'buffer_store_short v14, v9, {OUT}, {t0} offen')
        self.mode = None

    def build(self):
        a = self.a
        o = self.o
        base = lambda s: int(s[2:s.index(':')])
        self.prologue()
        altb = ''
        if o.get('hi'):
            import copy
            if o['hi'][0]:
                a.e('s_getreg_b32 s0, hwreg(HW_REG_XCC_ID, 0, 3)')
                a.e(f's_lshr_b32 s0, {o["hi"][0]}, s0')
                a.e('s_and_b32 s0, s0, 1')
            else:
                a.e(f's_cmp_ge_u32 {sJ}, 24')
                a.e('s_cselect_b32 s0, 1, 0')
            a.e('s_cbranch_scc1 L_alt')
            alt = Gen(dict(o, win=o['hi'][1]))
            alt.alt = True
            alt.a.uid = 300000
            alt.a.cold = True
            alt.a.vmq = copy.deepcopy(a.vmq)
            alt.make_items()
            alt.issued = self.issued
            alt.nst = self.nst
            alt.a.e('L_alt:')
            alt.stream()
            altb = alt.a.finish()
            altb = altb[:altb.index('L_isl_0:')]
        self.stream()
        self.tail('fast')
        a.e('L_fin2:')
        if o.get('diag_fixed'):
            a.e('L_dfx:')
            a.e('s_memrealtime s[94:95]')
            a.e('s_waitcnt lgkmcnt(0)')
            a.e('s_sub_u32 s94, s94, s100')
            a.e(f's_cmp_lt_u32 s94, {o["diag_fixed"]}')
            a.e('s_cbranch_scc1 L_dfx')
        if o.get('stamps'):
            a.e('s_waitcnt vmcnt(0) lgkmcnt(0)')
            self.stamp('end')
            a.e('s_waitcnt lgkmcnt(0)')
            if o.get('light'):
                for lane, r in ((0, sST), (1, 's97'), (2, 's101'), (34, 's100')):
                    a.e(f'v_writelane_b32 v7, {r}, {lane}')
            a.e('v_writelane_b32 v7, s98, 62')
            a.e(f'v_writelane_b32 v7, {sPOLL}, 63')
            a.e('s_getreg_b32 s82, hwreg(HW_REG_XCC_ID, 0, 3)')
            a.e('s_getreg_b32 s83, hwreg(HW_REG_HW_ID)')
            a.e('s_lshl_b32 s83, s83, 4')
            a.e('s_or_b32 s82, s82, s83')
            a.e('v_writelane_b32 v7, s82, 61')
            self.sums(t1, [('s2', 1024), (sV, 256)], STAMP)
            a.e('v_lshlrev_b32 v8, 2, v0')
            a.e(f'buffer_store_dword v7, v8, {WS}, {t1} offen')
        a.e('L_end:')
        a.e('s_endpgm')
        slow = Gen(self.o)
        slow.a.uid = 500000
        slow.a.cold = True
        slow.tail('slow')
        slow.a.e('s_branch L_fin2')
        sb = slow.a.finish()
        sb = sb[:sb.index('L_isl_0:')]
        body = a.finish()
        ref = open('cdna_kernels/' + NAME + '.s.ref').read() if o.get('hdr', True) else ''
        hdr = ''.join(l + '\n' for l in ref.split('\n') if l.startswith(';') and '@launch' not in l and 'Override' not in l and 'grid=ceil' not in l)
        txt = hdr + '; @launch grid=(256,1,1) block=(256,1,1) lds=163840\n'
        txt += DESCR
        txt += '.amdgcn_target "amdgcn-amd-amdhsa--gfx950"\n.text\n'
        txt += f'.globl {NAME}_kernel\n.p2align 8\n.type {NAME}_kernel,@function\n{NAME}_kernel:\n'
        txt += body
        txt += 'L_tailend:\n' + altb + 'L_codeend:\n' + sb
        txt += f"""    s_endpgm
.section .rodata,"a"
.p2align 6
.amdhsa_kernel {NAME}_kernel
  .amdhsa_next_free_vgpr 512
  .amdhsa_next_free_sgpr 102
  .amdhsa_accum_offset 256
  .amdhsa_group_segment_fixed_size 0
  .amdhsa_kernarg_size 112
  .amdhsa_user_sgpr_count 2
  .amdhsa_user_sgpr_kernarg_segment_ptr 1
  .amdhsa_system_sgpr_workgroup_id_x 1
.end_amdhsa_kernel
"""
        return txt


DEFAULT = dict(sleep=dict(h2a=6, h2b=6, h2c=2, ha=2, ha1=5, ia=30, ib=30, hc2=1, hc2b=3, hc4=1, fin=6, hqa=1), pol_c='nt', depth=3,
               touch=dict(w1b=['loc', 'code', 'wuk!'], w1c=['loc'], w5=['code'], i0=['Xbwq:0:1', 'Xbwo'], i1=['loc', 'code'], i2=['loc']), wo_e=0, wo_pre=3, red_pre=8, ml_e=1, woq=5, tr_pre=8, lw_pos=1, ckv_late=2, wuv_pos=[1, 3, 5, 7], wo_pos=[1, 7, 13, 19, 25, 31], heat=0, rowm=0x00030003, K={'b4': 0, 'qb3': 0}, pol_wq3='nt',
               late_touch=-1, wo_at=9, warm=0, c1_late=1, ml_early=2, qflag=0, ybar=0, atom_at=4, cnt_at=12, win=6, boost={}, win0=6, wide_at=25, wide=9)

if __name__ == '__main__':
    import json
    opt = dict(DEFAULT)
    out = sys.argv[1]
    if len(sys.argv) > 2:
        opt.update(json.loads(sys.argv[2]))
    g = Gen(opt)
    open(out, 'w').write(g.build())
    print('nops', g.a.nops, 'stamps', g.stnames, g.n0, g.nper)
```

```python
import sys, math, struct
from asmlib import Asm

NAME = 'interleave_layers__mha_block_cached__compressed_kv_cla__decode'


def f32(x):
    return '0x%08x' % struct.unpack('<I', struct.pack('<f', x))[0]


K1 = 1024
L_X = 128 * K1
L_IT = 72 * K1
L_SZ = 56 * K1
L_QA, L_QB, L_OA, L_OB, L_C1ML = 0, 16 * K1, 32 * K1, 40 * K1, 48 * K1
L_STA, L_STB, L_OAL, L_FL = 52 * K1, 52 * K1 + 256, 52 * K1 + 512, 52 * K1 + 640
L_CSA = 56 * K1
GB, G_IT = 0x100000, 384 * K1
G_YA, G_YB, G_QABS, G_C2L, G_C2 = 0, 24 * K1, 48 * K1, 80 * K1, 112 * K1
G_ML = G_C2L
CB = 0x200000
STAMP = 0xc00000
WS_SIZE = 0x1000000
OOB = 0x40000000
CKV = 65536
STG = 131072
ZML = STG + 7168
ZO = STG + 8192 + 7168
ZQ = STG + 2 * 8192 + 7168
K_, V_, CK, DBG, XIN, WQ, WO, BWQ, WUK, WUV, BWO, WS, WSL, WSG, OUT = ['s[%d:%d]' % (4 + 4 * i, 7 + 4 * i) for i in range(15)]
(sX, sJ, sV, sLOC, sW8, sKV, sKG, sIT, sPOLL, sM, sRES, sST, sH, sS,
 t0, t1, t2, t3, t4, t5) = ['s%d' % i for i in range(64, 84)]
MY = 's[84:85]'
(oY, oQA, oQB, oST, oQgA, oSTgA, oWQ, oWO, oWUK, oWUV, oYpub) = ['s%d' % i for i in range(86, 97)]
(oQgB, oSTgB, oQApub, oQAg, oC1pub, oMLpub, oC1g, oMLg, oC2pub, oC2Lpub, oC2g, oC2Lg,
 oOBpub, oOApub, oOALpub, oOALg, oRES, oO) = ['s%d' % i for i in range(4, 22)]
vT, vA, vL16 = 'v2', 'v3', 'v6'
TBL = [0, 8, 9, 1]
DPPI = 'quad_perm:[0,1,2,3]'
FULL = 'row_mask:0xf bank_mask:0xf'
QSCALE = math.log2(math.e) / math.sqrt(128.0)


def vr(a, n):
    return f'v[{a}:{a + n - 1}]' if n > 1 else f'v{a}'


DESCR = """;
;    (LDS-DMA ring) and stay on the CU for the second A layer: K in a0..a255, V in v64..v255 plus four tiles in LDS.
;  * LayerNorm is applied around the projection: q = rstd * (x W - mean * colsum W); softmax partials carry their
;    It also records the die of every workgroup: only if a whole group was seen on one die do its group-local hand-offs
;    use plain stores through that die's L2, otherwise the copy of the code with write-through stores runs.
;  * s_sleep appears only as back-off in front of or inside such polls (an early poll slows the writer down);
"""


class Gen:
    def __init__(self, opt):
        self.o = opt
        self.a = Asm()
        self.nst = 0
        self.stnames = []
        self.mode = None
        self.alt = False
        self.first_only = False

    NOTE = dict(start='descriptors and lane constants ready', kvdone='last V tile landed', pv1='layer 1 attention done',
                opub='attention record published', ogot='records of the group arrived', ypub='projection record published',
                wqrdy='q weights in registers', h2got='projection records arrived', qpub='partial q published',
                qgotB='partial q arrived', qapub='q_abs line published', qagot='q_abs arrived', sbar='scores done', smax='probabilities done',
                c1pub='partial contexts published', mlgot='their maxima and sums arrived', c2pub='group context published',
                c2got='group contexts arrived', dpub='value projection published', qgotA='partial q arrived', qrdy='q ready',
                smaxA='probabilities done', pvA='layer 3 attention done')

    def stamp(self, name, level=1):
        if name in self.NOTE:
            self.a.e('; ---- ' + self.NOTE[name])
        if self.o.get('diag_from') == name:
            l = self.a.lab('dg')
            self.a.e(f's_cselect_b32 s3, 1, 0')
            self.a.e(f's_cmp_eq_u32 {sIT}, 1')
            self.a.e(f's_cbranch_scc1 {l}')
            self.a.e('s_memrealtime s[100:101]')
            self.a.e(f'{l}:')
            self.a.e('s_cmp_eq_u32 s3, 1')
        if self.o.get('stamps', 0) < level or self.mode == 'slow':
            return
        if self.o.get('only') and name not in self.o['only'] and name != 'end':
            return
        a = self.a
        self.nst += 1
        self.stnames.append(name)
        if self.o.get('light'):
            a.e(f's_mov_b32 {sST}, s97')
            a.e('s_mov_b32 s97, s101')
            a.e('s_mov_b32 s101, s100')
            a.e('s_mov_b32 s100, s98')
            a.e('s_memrealtime s[98:99]')
            return
        a.e(f's_mov_b32 m0, {sST}')
        a.e(f's_pack_ll_b32_b16 s98, s98, {sPOLL}')
        a.e('v_writelane_b32 v7, s98, m0')
        a.e(f's_mov_b32 {sST}, {self.nst}')
        a.e(f's_bitset1_b32 {sST}, s97')
        a.e('s_memtime s[98:99]' if self.o.get('clk') else 's_memrealtime s[98:99]')

    def K(self, n, key=None, force=False):
        if key is not None:
            n = self.o.get('K', {}).get(key, n)
        if not self.o.get('warm', 1) and not force:
            return
        for i in range(n):
            self.a.e('v_mov_b32 v0, v0')
            self.a.e('s_nop 2')

    def H(self, key, n, junk):
        n = self.o.get('H', {}).get(key, n if self.o.get('heat', 1) else 0)
        for i in range(n):
            self.a.e(f'v_mfma_f32_16x16x4_f32 {vr(junk, 4)}, v0, v0, 0')

    def Wm(self):
        if self.o.get('warm', 1):
            self.a.e('v_mov_b32 v0, v0')

    def bar(self, n=2, vm=False):
        self.K(n)
        self.Wm()
        self.a.e('s_waitcnt vmcnt(0) lgkmcnt(0)' if vm else 's_waitcnt lgkmcnt(0)')
        self.Wm()
        self.a.e('s_barrier')
        self.Wm()

    def retry_to(self, top):
        a = self.a
        done, retry = a.lab('got'), a.lab('retry')
        a.e(f's_cbranch_vccnz {retry}')
        a.e(f'{done}:')
        a.ool(f'{retry}:\ns_cselect_b32 s3, 1, 0\ns_add_u32 {sPOLL}, {sPOLL}, 1\ns_cmp_gt_u32 {sPOLL}, 200000\ns_nop 1\ns_cbranch_scc0 {top}\n'
              f's_cmp_eq_u32 s3, 1\ns_branch {done}')

    def retry_with(self, lines, wait, chk):
        a = self.a
        done, retry = a.lab('got'), a.lab('retry')
        a.e(f's_cbranch_vccnz {retry}')
        a.e(f'{done}:')
        a.ool(f'{retry}:\ns_cmp_gt_u32 {sPOLL}, 200000\ns_cbranch_scc1 {done}\n' + '\n'.join(lines)
              + f'\ns_add_u32 {sPOLL}, {sPOLL}, 1\n{wait}\ns_branch {chk}')
        return retry

    def ool_if(self, cond, fn, els=None, big=False):
        a = self.a
        go, back = a.lab('go'), a.lab('back')
        a.e(cond)
        a.e(f's_cbranch_scc1 {go}')
        if els and big:
            els()
            a.vmq, a.dsq = [], []
        elif els:
            a.begin_skip()
            els()
            a.end_skip()
        a.e(f'{back}:')
        sub = Asm()
        sub.uid = a.uid + 1000 * (1 + len(a.tail))
        self.a = sub
        sub.e(f'{go}:')
        sub.e('s_nop 1')
        fn()
        sub.e('s_nop 1')
        sub.e(f's_branch {back}')
        self.a = a
        tail, sub.tail = sub.tail, []
        body = sub.finish().split('\n')
        body = [x.strip() for x in body[:[i for i, x in enumerate(body) if x.startswith('L_isl_0')][0]] if x.strip()]
        for k in range(0, len(body), 14):
            part = body[k:k + 14]
            if k + 14 < len(body):
                nxt = a.lab('p')
                part.append(f's_branch {nxt}')
                body[k + 14] = f'{nxt}:\n' + body[k + 14]
            a.ool('\n'.join(part))
        for t in tail:
            a.ool(t)

    def lstore(self, lines):
        a = self.a
        if self.mode is not None:
            for l in lines:
                a.e(l + ' sc1' if self.mode == 'slow' and l.startswith('buffer_') else l)
            return
        slow, back = a.lab('slow'), a.lab('back')
        a.e(f's_cbranch_scc1 {slow}')
        for l in lines:
            a.e(l)
        a.e(f'{back}:')
        a.ool(('' if a.cold else '#cold') + f'{slow}:\ns_nop 7\n' + '\n'.join(l + ' sc1' if l.startswith('buffer_') else l for l in lines) + f'\ns_branch {back}')

    def lcmp(self):
        if self.mode is None:
            self.a.e(f's_cmp_eq_u32 {sLOC}, 0')

    def poll_begin(self):
        a = self.a
        self.ptop, self.pretry, self.pdone = a.lab('poll'), a.lab('retry'), a.lab('got')
        a.e(f'{self.ptop}:')

    def poll_end(self, vmax):
        a = self.a
        a.e(f'v_cmp_eq_u32 vcc, -1, {vmax}')
        a.e(f's_cbranch_vccnz {self.pretry}')
        a.e(f'{self.pdone}:')
        a.ool(f'{self.pretry}:\ns_add_u32 {sPOLL}, {sPOLL}, 1\ns_cmp_gt_u32 {sPOLL}, 200000\ns_cbranch_scc1 {self.pdone}\ns_nop 7\ns_branch {self.ptop}')

    def poll_cmp(self, vmax):
        self.a.e(f'v_cmp_eq_u32 vcc, -1, {vmax}')

    def poll_br(self, last=True):
        a = self.a
        done = a.lab('got')
        retry = a.lab('retry')
        a.e(f's_cbranch_vccnz {retry}')
        a.e(f'{done}:')
        a.ool(f'{retry}:\ns_cselect_b32 s3, 1, 0\ns_add_u32 {sPOLL}, {sPOLL}, 1\ns_cmp_gt_u32 {sPOLL}, 200000\ns_cbranch_scc0 {self.ptop}\n'
              f's_cmp_eq_u32 s3, 1\ns_branch {done}')

    def pipe_poll(self, ld, vmax, regs, key, mid=()):
        a = self.a
        n = sum(x.startswith('buffer') for x in ld)
        if self.o.get('pipe', {}).get(key, 1):
            self.poll_begin()
            for x in ld:
                self.H(key + '0', 0, 40)
                a.e(x)
            self.H(key + '1', 0, 40)
            a.e(f's_waitcnt vmcnt({n})')
            self.maxchain(vmax, regs, True)
            self.poll_cmp(vmax)
            for x in mid:
                a.e(x)
            self.poll_br()
        else:
            a.e('s_waitcnt vmcnt(0)')
            self.late_check(vmax, regs, ld)

    def late_check(self, vmax, regs, reissue):
        a = self.a
        chk, retry, done = a.lab('chk'), a.lab('retry'), a.lab('done')
        a.e(f'{chk}:')
        self.maxchain(vmax, regs, True)
        a.e(f'v_cmp_eq_u32 vcc, -1, {vmax}')
        a.e(f's_cbranch_vccnz {retry}')
        a.e(f'{done}:')
        a.ool(f'{retry}:\ns_add_u32 {sPOLL}, {sPOLL}, 1\ns_cmp_gt_u32 {sPOLL}, 200000\ns_cbranch_scc1 {done}\n'
              + '\n'.join(reissue) + f'\ns_waitcnt vmcnt(0)\ns_branch {chk}')

    def maxchain(self, vmax, regs, first):
        a = self.a
        regs = list(regs)
        if first:
            if len(regs) >= 3:
                a.e(f'v_max3_u32 {vmax}, v{regs[0]}, v{regs[1]}, v{regs[2]}')
                regs = regs[3:]
            elif len(regs) == 2:
                a.e(f'v_max_u32 {vmax}, v{regs[0]}, v{regs[1]}')
                regs = []
            else:
                a.e(f'v_mov_b32 {vmax}, v{regs[0]}')
                regs = []
        while len(regs) >= 2:
            a.e(f'v_max3_u32 {vmax}, {vmax}, v{regs[0]}, v{regs[1]}')
            regs = regs[2:]
        if regs:
            a.e(f'v_max_u32 {vmax}, {vmax}, v{regs[0]}')

    def sleep(self, key):
        n = self.o.get('sleep', {}).get(key, 0)
        if n:
            self.a.e(f's_sleep {n}')

    def wave_only(self, w):
        a = self.a
        l = a.lab('notw')
        a.e(f's_cmp_lg_u32 {sV}, {w}')
        a.e(f's_cbranch_scc1 {l}')
        a.begin_skip()
        return l

    def end_only(self, lab):
        self.a.end_skip()
        self.a.e(f'{lab}:')

    def pos_bytes(self, dst, tmp):
        a = self.a
        a.e(f'v_lshlrev_b32 {dst}, 3, v0')
        a.e(f'v_and_b32 {dst}, 16, {dst}')
        a.e(f'v_and_or_b32 {dst}, v0, 12, {dst}')

    def sp_addr(self, dst, base):
        a = self.a
        a.e(f'v_and_b32 {dst}, 48, v0')
        a.e(f'v_lshlrev_b32 {dst}, 1, {dst}')
        a.e(f'v_and_or_b32 {dst}, {vL16}, 16, {dst}')
        if base:
            a.e(f'v_add_u32 {dst}, {base}, {dst}')

    def sums(self, dst, terms, const=0):
        a = self.a
        first = True
        for reg, mul in terms:
            d = dst if first else t0
            if mul & (mul - 1) == 0:
                a.e(f's_lshl_b32 {d}, {reg}, {mul.bit_length() - 1}')
            else:
                a.e(f's_mul_i32 {d}, {reg}, {mul}')
            if not first:
                a.e(f's_add_u32 {dst}, {dst}, {t0}')
            first = False
        if const:
            a.e(f's_add_u32 {dst}, {dst}, {const}')

    def k64_addr(self, vt, vu):
        a = self.a
        a.e(f'v_lshrrev_b32 {vt}, 2, v0')
        a.e(f'v_lshlrev_b32 {vt}, 13, {vt}')
        a.e(f'v_and_or_b32 {vt}, {vL16}, 48, {vt}')

    def wq_prep(self, vt, vu):
        a = self.a
        a.e(f'v_lshrrev_b32 {vu}, 4, v0')
        a.e(f'v_lshlrev_b32 {vt}, 5, {vu}')
        a.e(f'v_xor_b32 {vt}, {vt}, {vL16}')
        a.e(f's_lshl_b32 {t1}, {sV}, 7')
        a.e(f'v_xor_b32 {vt}, {t1}, {vt}')
        a.e(f'v_and_b32 {vt}, 0xf0, {vt}')
        a.e(f'v_lshl_or_b32 {vt}, {vu}, 13, {vt}')

    def wq_issue(self, srd, vt, vu, parts, pol=''):
        a = self.a
        for i in parts:
            if i == parts[0] or i == 3:
                a.e(f's_add_u32 m0, {sW8}, {(i // 3) * 3072}')
            a.e(f's_add_u32 {t1}, {oWQ}, {i * 4 * 8192 - (i % 3) * 1024}')
            a.e(f'buffer_load_dwordx4 {vt}, {srd}, {t1} offen offset:{(i % 3) * 1024} {pol} lds')
        a.tag_vm('wq')

    def dma_wq(self, srd, vt, vu, pol=''):
        self.wq_prep(vt, vu)
        self.wq_issue(srd, vt, vu, list(range(6)), pol)

    def dma_wuv(self, vt):
        a = self.a
        pol = self.o.get('pol_w', '')
        self.k64_addr(vt, None)
        for i in range(4):
            a.e(f's_add_u32 m0, {sW8}, {i * 1024}')
            a.e(f's_add_u32 {t1}, {oWUV}, {i * 16 * 8192}')
            a.e(f'buffer_load_dwordx4 {vt}, {WUV}, {t1} offen {pol} lds')
        a.tag_vm('wuv')

    def wuk_prep(self, vt, vu):
        a = self.a
        a.e(f'v_lshrrev_b32 {vu}, 4, v0')
        a.e(f'v_lshlrev_b32 {vt}, 5, {vu}')
        a.e(f'v_xor_b32 {vt}, {vt}, {vL16}')
        a.e(f'v_and_b32 {vt}, 0xf0, {vt}')
        a.e(f'v_lshl_or_b32 {vt}, {vu}, 13, {vt}')

    def wuk_issue(self, vt, vu):
        a = self.a
        pol = self.o.get('pol_wuk', '')
        a.e(f's_mov_b32 m0, {sW8}')
        for q in range(4):
            a.e(f's_add_u32 {t1}, {oWUK}, {q * (4 * 8192 - 1024)}')
            if q:
                a.e(f'v_xor_b32 {vu}, {TBL[q] << 4}, {vt}')
            a.e(f'buffer_load_dwordx4 {vu if q else vt}, {WUK}, {t1} offen offset:{q * 1024} {pol} lds')
        a.tag_vm('wuk')

    def wo_prep(self, R, tmp, second=True):
        a = self.a
        for i in range(3):
            a.e(f'v_add_u32 v{R + i}, {64 * i}, v0')
            a.e(f'v_mul_u32_u24 {tmp}, 21846, v{R + i}')
            a.e(f'v_lshrrev_b32 {tmp}, 16, {tmp}')
            a.e(f'v_mul_u32_u24 {tmp}, {1152 - 48}, {tmp}')
            a.e(f'v_lshl_add_u32 v{R + i}, v0, 4, {tmp}')
        if second:
            a.e(f's_add_u32 {t5}, {oWO}, {64 * 1152}')

    def wo_lines(self, srd, R, pol='', base=sW8):
        out = []
        for h in range(2):
            out.append(f's_add_u32 m0, {base}, {h * 3072}')
            for i in range(3):
                out.append(f'buffer_load_dwordx4 v{R + i}, {srd}, {t5 if h else oWO} offen offset:{i * 1024} {pol} lds')
        return out

    def wo_group(self, srd, R, lo, hi):
        out = []
        for k in range(lo, hi):
            h, i = divmod(k, 3)
            if k == lo or i == 0:
                out.append(f's_add_u32 m0, {sW8}, {h * 3072}')
            out.append(f'buffer_load_dwordx4 v{R + i}, {srd}, {t5 if h else oWO} offen offset:{i * 1024} lds')
        return out

    def woq_prep(self, R):
        a = self.a
        a.e(f'v_lshrrev_b32 v{R}, 2, v0')
        a.e(f'v_mul_u32_u24 v{R}, 1152, v{R}')
        a.e(f'v_and_or_b32 v{R}, {vL16}, 48, v{R}')
        self.oob((f'v{R}', f'v{R}'), (0x88888888, 0x88888888))

    def woq_group(self, srd, R, lo, hi):
        out = []
        for k in range(lo, hi):
            if k == lo or k == 4:
                out.append(f's_add_u32 m0, {sW8}, {(k >> 2) * 4096}')
            out.append(f's_add_u32 {t5}, {oWO}, {k * 16 * 1152 - (k & 3) * 1024}')
            out.append(f'buffer_load_dwordx4 v{R}, {srd}, {t5} offen offset:{(k & 3) * 1024} lds')
        return out

    def dma_wo(self, srd, R, tmp):
        self.wo_prep(R, tmp)
        for x in self.wo_lines(srd, R, self.o.get('pol_wo1', '')):
            self.a.e(x)
        self.a.tag_vm('wo')

    def touch(self, what, vt, vd):
        a = self.a
        if what in ('code', 'Xcode'):
            l = a.lab('pc')
            if what == 'code':
                self.sums(t1, [(sJ, 1024), (sV, 256)])
            else:
                self.sums(t1, [(sJ, 2048), (sV, 512)], (1 << 32) - 24 * 2048)
            a.e(f'v_lshl_add_u32 {vt}, v0, 7, {t1}')
            a.e(f'v_min_u32 {vt}, L_tailend-L_top_fast, {vt}')
            a.e('s_getpc_b64 s[78:79]')
            a.e(f'{l}:')
            a.e(f's_add_u32 s78, s78, L_top_fast-{l}')
            a.e(f's_addc_u32 s79, s79, {0 if self.mode is None else -1}')
            a.e(f's_mov_b64 exec, {3 if what == "code" else 15}')
            a.e(f'global_load_dword {vd}, {vt}, s[78:79]')
            a.e('s_mov_b64 exec, -1')
            return
        if what.startswith('Xclr'):
            for r in range(56, 60):
                a.e(f'v_mov_b32 v{r}, -1')
            self.sums(t1, [(sX, 1 << 19), (sJ, 65536), (sV, 16384)], CB + (int(what[4]) << 22) - 24 * 65536)
            for k in range(16):
                a.e(f'buffer_store_dwordx4 v[56:59], {vL16}, {WS}, {t1} offen offset:{(k & 3) * 1024} sc1')
                if k & 3 == 3:
                    a.e(f's_add_u32 {t1}, {t1}, 4096')
            return
        if what[0] == 'X':
            what, lo, hi = (what.split(':') + ['0', '9'])[:3]
            if what in ('Xbwq', 'Xwq', 'Xwuk', 'Xwuv'):
                srd, rows = {'Xbwq': (BWQ, 18), 'Xwq': (WQ, 18), 'Xwuk': (WUK, 12), 'Xwuv': (WUV, 16)}[what]
                a.e(f'v_lshrrev_b32 {vt}, 3, v0')
                a.e(f'v_lshlrev_b32 {vt}, 6, {vt}')
                a.e(f'v_and_or_b32 {vt}, v0, 7, {vt}')
                a.e(f'v_lshlrev_b32 {vt}, 7, {vt}')
                self.sums(t1, [(sX, 1024), (sJ, 4 * rows * 8192), (sV, rows * 8192)], (1 << 32) - 96 * rows * 8192)
                for k in range(0, rows, 8):
                    if rows - k < 8:
                        a.e(f's_mov_b32 exec_lo, {(1 << ((rows - k) * 8)) - 1}')
                        a.e('s_mov_b32 exec_hi, 0')
                    if int(lo) <= k // 8 < int(hi):
                        a.e(f'buffer_load_dword {vd}, {vt}, {srd}, {t1} offen')
                    a.e(f's_add_u32 {t1}, {t1}, 65536')
                a.e('s_mov_b64 exec, -1')
                return
            srd, base, per = {'Xloc': (WS, [(sX, L_X)], 4096), 'Xc1': (WS, [(sX, 1 << 19)], 16384), 'Xbwo': (BWO, [(sX, 512 * 1152)], 18432), 'Xwo': (WO, [(sX, 512 * 1152)], 18432)}[what]
            a.e(f'v_lshlrev_b32 {vt}, 7, v0')
            self.sums(t1, base + [(sJ, 4 * per), (sV, per)], (CB if what == 'Xc1' else 0) - 96 * per + (1 << 32 if what != 'Xc1' else 0))
            for k in range(0, per, 8192):
                if per - k < 8192:
                    a.e(f's_mov_b32 exec_lo, {(1 << ((per - k) // 128)) - 1}')
                    a.e('s_mov_b32 exec_hi, 0')
                if int(lo) <= k // 8192 < int(hi):
                    a.e(f'buffer_load_dword {vd}, {vt}, {srd}, {t1} offen')
                a.e(f's_add_u32 {t1}, {t1}, 8192')
            a.e('s_mov_b64 exec, -1')
            return
        half = None
        if what[-1] in '01' and what != 'c1':
            what, half = what[:-1], int(what[-1])
        if what in ('wq', 'bwq', 'wuv', 'wuk'):
            srd = {'wq': WQ, 'bwq': BWQ, 'wuv': WUV, 'wuk': WUK}[what]
            a.e(f'v_lshrrev_b32 {vt}, 3, v0')
            a.e(f'v_lshlrev_b32 {vt}, 6, {vt}')
            a.e(f'v_and_or_b32 {vt}, v0, 7, {vt}')
            a.e(f'v_lshlrev_b32 {vt}, 7, {vt}')
            rows = 5 if what in ('wq', 'bwq') else 4
            self.sums(t1, [(sJ, 4 * rows * 8192), (sV, rows * 8192), (sX, 1024)])
            n = 8 * rows
        elif what == 'loc':
            srd = WS
            a.e(f'v_lshlrev_b32 {vt}, 7, v0')
            self.sums(t1, [(sX, L_X), (sJ, 4096), (sV, 1024)])
            n = 8
        elif what == 'c1h':
            srd = WS
            a.e(f'v_lshlrev_b32 {vt}, 7, v0')
            self.sums(t1, [(sX, 1 << 19), (sJ, 16384), (sV, 2048)], CB + 8192)
            n = 16
        elif what == 'c1':
            srd = WS
            a.e(f'v_lshlrev_b32 {vt}, 7, v0')
            self.sums(t1, [(sX, 1 << 19), (sJ, 16384), (sV, 4096)], CB)
            n = 32
        else:
            srd = {'wo': WO, 'bwo': BWO}[what]
            a.e(f'v_lshlrev_b32 {vt}, 7, v0')
            self.sums(t1, [(sX, 512 * 1152), (sJ, 18432), (sV, 4608)])
            n = 36
        if self.first_only:
            a.e(f's_cmp_eq_u32 {sIT}, 0')
            a.e(f's_cselect_b32 {t1}, {t1}, {OOB}')
        m = (1 << n) - 1
        if half == 0:
            m = (1 << (n // 2)) - 1
        elif half == 1:
            m ^= (1 << (n // 2)) - 1
        a.e(f's_mov_b32 exec_lo, {m & 0xffffffff}')
        a.e(f's_mov_b32 exec_hi, {m >> 32}')
        if vd is None:
            a.e(f's_add_u32 m0, {sW8}, 1024')
            a.e(f'buffer_load_dword {vt}, {srd}, {t1} offen lds')
        else:
            a.e(f'buffer_load_dword {vd}, {vt}, {srd}, {t1} offen')
        a.e('s_mov_b64 exec, -1')

    def touches(self, where, vt, vd):
        for w in self.o.get('touch', {}).get(where, []):
            self.first_only = w.endswith('!')
            self.touch(w.rstrip('!'), vt, vd)

    def lnq_addr(self):
        a = self.a
        a.e('v_lshrrev_b32 v52, 4, v0')
        a.e('v_bfe_u32 v53, v0, 2, 2')
        a.e('v_lshl_add_u32 v52, v52, 5, v53')
        a.e('v_and_b32 v53, 31, v0')
        a.e('v_lshlrev_b32 v53, 3, v53')
        a.e('v_lshl_or_b32 v52, v52, 8, v53')
        a.e(f's_lshl_b32 {t0}, {sV}, 6')
        a.e(f's_add_u32 {t0}, {t0}, {STG}')
        a.e(f'v_xor_b32 v52, {t0}, v52')
        a.e('v_xor_b32 v54, 32, v52')

    def lnq_prep(self):
        a = self.a
        a.wait(vm='wq')
        a.e('s_barrier')
        for rho in range(3):
            for tau in range(2):
                for half in range(2):
                    a.e(f'ds_read_b64_tr_b16 {vr(28 + 8 * rho + 4 * tau + 2 * half, 2)}, v{52 + 2 * tau} offset:{2048 * rho + 1024 * half}')
        a.e('s_waitcnt lgkmcnt(0)')
        a.e('s_barrier')

    def lnq_rows(self):
        a = self.a
        a.e('v_mov_b32 v53, 0x3f803f80')
        a.e(f's_lshl_b64 s[82:83], {MY}, 8')
        a.e('v_cndmask_b32 v16, 0, v53, s[82:83]')
        a.e('v_mov_b32 v17, v16')
        for r in range(18, 28, 2):
            a.e(f'v_mov_b64 {vr(r, 2)}, v[16:17]')

    def lnq_mfma(self, rho):
        a = self.a
        A = vr(16 + 4 * rho, 4)
        c = (lambda r: '0') if rho == 0 else (lambda r: r)
        return [f'v_mfma_f32_16x16x32_bf16 v[60:63], {A}, {A}, {c("v[60:63]")}',
                f'v_mfma_f32_16x16x32_bf16 v[52:55], {A}, {vr(28 + 8 * rho, 4)}, {c("v[52:55]")}',
                f'v_mfma_f32_16x16x32_bf16 v[56:59], {A}, {vr(32 + 8 * rho, 4)}, {c("v[56:59]")}']

    def lnq_reduce(self, isb, chk=False):
        a = self.a
        a.e('v_pk_add_f32 v[60:61], v[60:61], v[62:63]')
        a.e('v_add_f32 v60, v60, v61')
        if chk:
            a.e('v_cmp_u_f32 vcc, v60, v60')
        a.e('v_pk_add_f32 v[52:53], v[52:53], v[54:55]')
        a.e('v_mov_b32 v61, v60')
        a.e('v_pk_add_f32 v[56:57], v[56:57], v[58:59]')
        a.e('v_add_f32 v52, v52, v53')
        a.e('v_permlane16_swap_b32 v60, v61')
        a.e('v_add_f32 v56, v56, v57')
        a.e('v_add_f32 v60, v60, v61')
        a.e('v_permlane16_swap_b32 v52, v56')
        a.e(f'v_add_f32_dpp v60, v60, v60 quad_perm:[1,0,3,2] {FULL}')
        a.e('v_add_f32 v52, v52, v56')
        self.lcmp()
        a.e(f'v_add_f32_dpp v60, v60, v60 quad_perm:[2,3,0,1] {FULL}')
        if isb:
            a.e(f'v_mov_b32_dpp v53, v52 quad_perm:[1,0,3,2] {FULL}')
            a.e('v_cvt_pk_bf16_f32 v52, v52, v53')
        a.e(f'v_add_f32_dpp v60, v60, v60 row_half_mirror {FULL}')

    def lnq_pubaddr(self, isb, first):
        a = self.a
        if isb:
            self.pos_bytes('v14', None)
            a.e('v_and_b32 v15, 16, v0')
            a.e('v_lshl_or_b32 v14, v15, 4, v14')
            a.e('v_and_b32 v15, 32, v0')
            a.e('v_lshl_or_b32 v14, v15, 6, v14')
        else:
            a.e('v_and_b32 v14, 31, v0')
            a.e('v_lshlrev_b32 v14, 2, v14')
            if first:
                a.e('v_lshrrev_b32 v15, 5, v0')
                a.e(f'v_mul_u32_u24 v15, {L_CSA - L_QA}, v15')
                a.e('v_add_u32 v14, v14, v15')
        a.e('v_lshrrev_b32 v15, 1, v0')
        if isb:
            self.oob(('v14', 'v14'), (0xaaaaaaaa, 0xaaaaaaaa))
        elif not first:
            self.oob(('v14', 'v14'), (0, 0xffffffff))
        if first or not self.o.get('mst', 1):
            self.oob(('v15', 'v15'), (0xfffffefe, 0xffffffff))
            return
        a.e(f's_sub_u32 {t0}, {oST}, {oQB if isb else oQA}')
        if isb:
            a.e(f's_add_u32 {t0}, {t0}, 256')
        a.e(f'v_writelane_b32 v14, {t0}, {1 if isb else 32}')
        a.e(f's_add_u32 {t0}, {t0}, 4')
        a.e(f'v_writelane_b32 v14, {t0}, {9 if isb else 40}')
        a.e('s_mov_b64 s[22:23], 0x202')

    def lnq_publish(self, isb, first, q='v52', st='v60', qa='v14', sa='v15'):
        if not first and self.o.get('mst', 1):
            self.a.e(f'v_cndmask_b32 {q}, {q}, {st}, s[22:23]' if isb else f'v_permlane32_swap_b32 {q}, {st}')
            self.lstore([f'buffer_store_dword {q}, {qa}, {WSL}, {oQB if isb else oQA} offen'])
            return
        self.lstore([f'buffer_store_dword {q}, {qa}, {WSL}, {oQB if isb else oQA} offen',
                     f'buffer_store_dword {st}, {sa}, {WSL}, {oST} offen offset:{256 if isb else 0}'])

    def keep_rounding(self):
        a = self.a
        a.e(f's_cmp_eq_u32 {sRES}, 3')
        a.e('s_cselect_b64 vcc, -1, 0')
        a.e('v_lshlrev_b32 v36, 16, v34')
        a.e('v_and_b32 v37, 0xffff0000, v34')
        a.e('v_pk_add_f32 v[32:33], v[32:33], v[36:37] neg_lo:[0,1] neg_hi:[0,1]')
        a.e('v_cndmask_b32 v4, 0, v32, vcc')
        a.e('v_cndmask_b32 v5, 0, v33, vcc')

    def lnq_tail(self, goff, isb):
        a = self.a
        pol = self.o.get('pol_bwq', '') if isb else self.o.get('pol_wq3', '')
        if self.o.get('wq_hoist', 1):
            self.wq_issue(BWQ if isb else WQ, 'v17', None, list(range(6)), pol)
            a.e('s_barrier')
        self.keep_rounding()
        if self.o.get('ybar', 1):
            a.e('s_barrier')
        self.lnq_rows()
        a.e('v_lshrrev_b32 v12, 2, v0')
        a.e('v_mul_u32_u24 v12, 3072, v12')
        a.e(f'v_and_or_b32 v12, {vL16}, 48, v12')
        a.e(f's_add_u32 {t4}, {oY}, {goff}')
        a.e(f's_add_u32 {t5}, {sW8}, 6144')
        if not self.o.get('wq_hoist', 1):
            self.dma_wq(BWQ if isb else WQ, 'v8', 'v9', pol)
            a.e('s_barrier')
        self.lnq_addr()
        self.lnq_pubaddr(isb, False)
        a.e('v_and_b32 v11, 48, v0')
        a.e('v_lshlrev_b32 v11, 3, v11')
        a.e('v_and_or_b32 v11, v0, 7, v11')
        a.e('v_lshlrev_b32 v11, 6, v11')
        a.e(f'v_add_u32 v11, {STG + 6144}, v11')
        a.e('v_mov_b32 v13, 0')
        if isb:
            self.wuk_prep('v8', 'v9')

            def clear1():
                self.touches('w1a', 'v60', 'v10')
                self.clear_g1(56)
                self.sleep('h2c')

            def again1():
                if self.o.get('reclr') == 'h2':
                    self.lstore(self.clear_c1(56, 'v60', 'v61'))
                self.sleep('h2a')
            self.ool_if(f's_cmp_eq_u32 {sIT}, 0', clear1, again1)
        else:
            if self.o.get('wo_h2', 0):
                self.wo_prep(56, 'v59', False)
            self.sleep('h2b')
        ld = [f's_mov_b32 m0, {t5}', 's_mov_b64 exec, 0x77777777',
              f'buffer_load_dword v13, v12, {WSG}, {t4} offen sc1',
              f'buffer_load_dwordx4 v12, {WSG}, {t4} offen sc1 lds',
              's_mov_b64 exec, -1']
        for i, x in enumerate(ld):
            a.e(x)
            if i in (2, 3):
                a.tag_vm(f'y{i}')
        self.touches('w1b' if isb else 'w1c', 'v60', 'v10')
        self.lnq_prep()
        self.stamp('wqrdy', 2)
        if isb:
            self.wuk_issue('v8', 'v9')
        else:
            for x in self.wo_group(WO, 56, 0, self.o.get('wo_h2', 0)):
                a.e(x)
        chk, again = a.lab('chk'), a.lab('again')
        a.wait(vm='y2')
        a.e(f'{chk}:')
        a.e('v_cmp_eq_u32 vcc, -1, v13')
        a.wait(vm='y3')
        again = self.retry_with(ld, 's_waitcnt vmcnt(0)', chk)
        a.e(f's_mov_b64 exec, {MY}')
        a.e('s_barrier')
        for rho in range(3):
            a.e(f'ds_read_b128 {vr(16 + 4 * rho, 4)}, v11 offset:{16 * rho}')
            a.tag_ds(f'a{rho}')
        fl = isb and self.o.get('qflag', 1)
        if fl:
            self.lstore([f'buffer_store_dword v0, off, {WSL}, {t3} offset:{L_FL - L_OAL}'])
        a.e('s_mov_b64 exec, -1')
        self.stamp('h2got', 2)
        if fl:
            a.e('v_and_b32 v9, 7, v0')
            a.e('v_lshlrev_b32 v9, 2, v9')
        self.H('l1', 0, 56)
        mm = [self.lnq_mfma(rho) for rho in range(3)]
        for rho in range(3):
            a.wait(ds=f'a{rho}')
            a.e(mm[rho][0])
        g = ['v_pk_add_f32 v[60:61], v[60:61], v[62:63]', 'v_add_f32 v62, v60, v61', 'v_add_f32 v60, v60, v61', 'v_cmp_u_f32 vcc, v62, v62',
             'v_permlane16_swap_b32 v60, v62', 'v_add_f32 v60, v60, v62',
             f'v_add_f32_dpp v60, v60, v60 quad_perm:[1,0,3,2] {FULL}', f'v_add_f32_dpp v60, v60, v60 quad_perm:[2,3,0,1] {FULL}',
             f'v_add_f32_dpp v60, v60, v60 row_half_mirror {FULL}']
        a.e(mm[0][1]); a.e('s_nop 1')
        a.e(mm[1][1]); a.e('s_nop 1')
        a.e(mm[2][1]); a.e('s_nop 0'); a.e(g[0])
        a.e(mm[0][2]); a.e(g[1]); a.e(g[2])
        a.e(mm[1][2]); a.e(g[3]); a.e(g[4])
        a.e(mm[2][2]); a.e(g[5])
        a.e('v_pk_add_f32 v[52:53], v[52:53], v[54:55]')
        a.e('v_add_f32 v52, v52, v53')
        a.e(g[6])
        a.e(g[7])
        a.e('v_pk_add_f32 v[56:57], v[56:57], v[58:59]')
        a.e('v_add_f32 v56, v56, v57')
        a.e(g[8])
        again2 = a.lab('again')
        self.retry_to(again2)
        a.e('v_permlane16_swap_b32 v52, v56')
        a.e('v_add_f32 v52, v52, v56')
        if isb:
            a.e(f'v_mov_b32_dpp v53, v52 quad_perm:[1,0,3,2] {FULL}')
            a.e('v_cvt_pk_bf16_f32 v52, v52, v53')
        a.ool(f'{again2}:\ns_barrier\ns_branch {again}')
        if fl == 1:
            a.e(f'buffer_load_dword v10, v9, {WSL}, {oOALg} offen offset:{L_FL - L_OAL} sc1')
            a.tag_vm('fl')
        self.lnq_publish(isb, False)
        if fl == 2:
            a.e(f'buffer_load_dword v10, v9, {WSL}, {oOALg} offen offset:{L_FL - L_OAL} sc1')
            a.tag_vm('fl')
        self.stamp('qpub')

    def clear_g1(self, R):
        b = self.a
        for r in range(R, R + 4):
            b.e(f'v_mov_b32 v{r}, -1')
        gw = 128 if self.o.get('single') else 384
        self.sums(t1, [(sX, 128 * gw), (sJ, 4 * gw), (sV, gw)], GB + G_IT)
        b.e(f's_mov_b64 exec, {(1 << (gw // 16)) - 1}')
        b.e(f'buffer_store_dwordx4 {vr(R, 4)}, {vL16}, {WS}, {t1} offen sc1')
        b.e('s_mov_b64 exec, -1')
        if self.o.get('clr_h2') is not None:
            fl = self.o['clr_h2'] or ('sc1' if self.mode == 'slow' else '')
            for x in self.clear_c1(R, 'v60', 'v61'):
                b.e(x + ' ' + fl if x.startswith('buffer') else x)

    def c_addr(self, va):
        out = [f'v_and_b32 {va}, 48, v0', f'v_lshlrev_b32 {va}, 4, {va}', f'v_and_or_b32 {va}, v0, 8, {va}']
        if self.o.get('cswz', 1):
            out += [f'v_lshlrev_b32 {va}, 7, {va}', f'v_or_b32 {va}, {va}, v0', f'v_lshlrev_b32 {va}, 4, {va}', f'v_xor_b32 {va}, {oC2g}, {va}']
        else:
            out += [f'v_lshlrev_b32 {va}, 7, {va}', f'v_and_or_b32 {va}, v0, 7, {va}', f'v_lshlrev_b32 {va}, 4, {va}']
        return out

    def clear_c1(self, R, va, vt):
        b = self.a
        for r in range(R, R + 4):
            b.e(f'v_mov_b32 v{r}, -1')
        if self.o.get('single'):
            for x in self.c_addr(va):
                b.e(x)
            for r in range(4):
                b.e(f's_add_u32 {t1}, {oC1pub}, {r * 131072}')
                b.e(f'buffer_store_dwordx4 {vr(R, 4)}, {va}, {WS}, {t1} offen sc1')
            return []
        b.e(f'v_lshrrev_b32 {va}, 4, v0')
        b.e(f'v_and_b32 {vt}, 0xf0, {vL16}')
        b.e(f'v_lshl_or_b32 {va}, {va}, 16, {vt}')
        out = []
        for q in range(4):
            out.append(f's_add_u32 {t1}, {oC1pub}, {q * 4096}')
            out.append(f'buffer_store_dwordx4 {vr(R, 4)}, {va}, {WS}, {t1} offen')
        return out

    def oob(self, reg, mask):
        a = self.a
        a.e(f's_mov_b32 vcc_lo, {mask[0]}')
        a.e(f's_mov_b32 vcc_hi, {mask[1]}')
        a.e(f'v_cndmask_b32 {reg[0]}, {reg[1]}, 2.0, vcc')

    def c1_addr(self, dst, tmp):
        a = self.a
        a.e(f'v_lshrrev_b32 {tmp}, 4, v0')
        a.e(f'v_and_b32 {dst}, 0xf0, {vL16}')
        a.e(f'v_lshl_or_b32 {dst}, {tmp}, 12, {dst}')

    def stats_const(self, C):
        return f'v_mov_b32 v{C}, {f32(64.0 / QSCALE ** 2)}'

    def stats(self, S, C):
        out = []
        for c in (4, 2, 1):
            out.append(f'v_add_f32_dpp v{S + 1}, v{S + 1}, v{S + 1} row_ror:{c} {FULL}')
            out.append(f'v_add_f32_dpp v{S}, v{S}, v{S} row_ror:{c} {FULL}')
        out.append(f'v_mul_f32 v{S + 1}, {f32(1.0 / (64 * 576))}, v{S + 1}')
        out.append(f'v_mul_f32 v{S}, {f32(1.0 / (64 * 576))}, v{S}')
        out.append(f'v_fma_f32 v{S}, -v{S + 1}, v{S + 1}, v{S}')
        out.append(f'v_max_f32 v{S}, 0, v{S}')
        out.append(f'v_fmaak_f32 v{S}, v{C}, v{S}, {f32(1e-5 / QSCALE ** 2)}')
        out.append(f'v_rsq_f32 v{S}, v{S}')
        return out

    def mix(self, x, y):
        x, y = list(x), list(y)
        while x or y:
            if x:
                self.a.e(x.pop(0))
            if y:
                self.a.e(y.pop(0))

    def resid(self, goff, base, va, final):
        a = self.a
        a.e(f'v_lshlrev_b32 {va}, 2, v0')
        a.e(f's_add_u32 {t2}, {oRES}, {goff}')
        a.e('s_mov_b64 exec, 0xfff')
        if final:
            self.sleep('fin')
        self.poll_begin()
        for i in range(8):
            if i & 1 == 0:
                a.e(f's_add_u32 {t3}, {t2}, {i * 3072}')
            a.e(f'buffer_load_dword v{base + i}, {va}, {WSG}, {t3} offen offset:{(i & 1) * 3072} sc1')
        a.e(f'v_mov_b32 v{base + 8}, 0x3f80')
        a.e(f'v_mov_b32 v{base + 9}, 0x3f800000')
        A = base + 10
        a.e(f'v_mov_b64 {vr(A, 2)}, v[4:5]')
        for i in range(8):
            if i & 1 == 0:
                a.e(f's_waitcnt vmcnt({6 - i})')
            a.e(f'v_dot2c_f32_bf16 v{A}, v{base + 8}, v{base + i}')
            a.e(f'v_dot2c_f32_bf16 v{A + 1}, v{base + 9}, v{base + i}')
        a.e('s_nop 2')
        a.e(f'v_cmp_u_f32 vcc, v{A}, v{A + 1}')
        if final:
            a.e(f'v_cvt_pk_bf16_f32 v9, v{A}, v{A + 1}')
            a.e(f's_mul_i32 {t0}, {sJ}, 48')
        self.poll_br()
        if not final:
            a.e(f'v_mov_b64 v[4:5], {vr(A, 2)}')

    def resid_track(self, goff, base, va, cond):
        a = self.a
        go, back = a.lab('res'), a.lab('resback')
        a.e(cond)
        a.e(f's_cbranch_scc1 {go}')
        a.e(f'{back}:')
        sub = Asm()
        sub.uid = a.uid + 1000 * (1 + len(a.tail))
        self.a = sub
        sub.e(f'{go}:')
        sub.e('s_nop 1')
        self.resid(goff, base, va, False)
        sub.e('s_mov_b64 exec, -1')
        sub.e(f's_branch {back}')
        self.a = a
        body = [i.text for i in sub.ins]
        cut = [k for k in range(0, len(body), 14)]
        for k in cut:
            part = body[k:k + 14]
            if k + 14 < len(body):
                nxt = a.lab('resp')
                part.append(f's_branch {nxt}')
                body[k + 14] = f'{nxt}:\n' + body[k + 14]
            a.ool('\n'.join(part))
        for t in sub.tail:
            a.ool(t)

    def qa_addr(self, T):
        a = self.a
        a.e(f'v_and_b32 v{T}, 4, v0')
        a.e(f'v_lshlrev_b32 v{T}, 3, v{T}')
        a.e(f'v_and_b32 v{T + 1}, 3, v0')
        a.e(f'v_lshl_or_b32 v{T}, v{T + 1}, 2, v{T}')
        a.e(f'v_lshrrev_b32 v{T + 1}, 5, v0')
        a.e(f'v_lshl_or_b32 v{T}, v{T + 1}, 4, v{T}')
        a.e(f'v_bfe_u32 v{T + 1}, v0, 4, 1')
        a.e(f'v_lshl_or_b32 v{T}, v{T + 1}, 1, v{T}')
        a.e(f's_lshl_b32 {t0}, {sV}, 6')
        a.e(f's_add_u32 {t0}, {t0}, {ZQ}')
        a.e(f'v_add_u32 v{T}, {t0}, v{T}')
        a.e(f'v_and_b32 v{T + 1}, 7, v0')
        a.e(f'v_lshlrev_b32 v{T + 1}, 3, v{T + 1}')
        self.oob((f'v{T + 1}', f'v{T + 1}'), (0xc0c0c0c0, 0xc0c0c0c0))
        self.oob((f'v{T + 3}', vL16), (0, 0xffff0000))
        self.sp_addr(f'v{T + 2}', ZQ)

    def red8(self, R):
        return [f'v_permlane32_swap_b32 v{R}, v{R + 2}',
                f'v_permlane32_swap_b32 v{R + 1}, v{R + 3}',
                f'v_pk_add_f32 {vr(R, 2)}, {vr(R, 2)}, {vr(R + 2, 2)}',
                f'v_permlane16_swap_b32 v{R}, v{R + 1}',
                f'v_add_f32 v{R}, v{R}, v{R + 1}',
                f'v_add_f32_dpp v{R}, v{R}, v{R} row_ror:8 {FULL}']

    def qa_loads(self, R, S, T):
        return [f'buffer_load_dwordx2 {vr(S, 2)}, v{T + 1}, {WSL}, {oSTgA} offen sc1',
                f'buffer_load_dwordx4 {vr(R, 4)}, v{T + 3}, {WSL}, {oQgA} offen sc1']

    def qa_finish(self, R, S, T, Q, C, br=False):
        a = self.a
        self.mix(self.stats(S, C), self.red8(R) + [f'v_and_b32 v{R + 1}, 0xffff0000, v1'])
        a.e(f'v_fma_f32 v{R}, -v{S + 1}, v{R + 1}, v{R}')
        a.e(f'v_mul_f32 v{R}, v{R}, v{S}')
        a.e(f'v_cvt_pk_bf16_f32 v{R}, v{R}, v{R}')
        a.e(f'ds_write_b16 v{T}, v{R}')
        if br:
            return
        self.bar(2, br)
        a.e(f'ds_read_b128 {vr(Q, 4)}, v{T + 2}')
        a.tag_ds('q0')
        a.e(f'ds_read_b128 {vr(Q + 4, 4)}, v{T + 2} offset:128')
        a.tag_ds('q1')

    def p_addr(self, r, t):
        a = self.a
        a.e(f'v_and_b32 {r}, 0x32, v0')
        a.e(f'v_lshlrev_b32 {r}, 3, {r}')
        a.e(f'v_and_b32 {t}, 8, v0')
        a.e(f'v_lshl_or_b32 {r}, {t}, 2, {r}')
        a.e(f'v_and_b32 {t}, 5, v0')
        a.e(f'v_lshl_or_b32 {r}, {t}, 1, {r}')
        a.e(f'v_add_u32 {r}, {sW8}, {r}')

    def qk_softmax(self, Q, D, S, T, fill=()):
        a = self.a
        for t in range(19):
            if t >= 3:
                d = D + 4 * ((t - 3) & 3)
                a.e(f'v_add_f32_dpp v{S + ((t - 3) & 3)}, v{d}, v{d + 1} {DPPI} row_mask:{1 << ((t - 3) >> 2)} bank_mask:0xf')
            if 4 <= t + 1 < 16:
                a.e(f'v_mov_b64 {vr(D + 4 * ((t + 1) & 3), 2)}, 0')
            if t < 16:
                d = vr(D + 4 * (t & 3), 4)
                if t == 0:
                    a.wait(ds='q0')
                a.e(f'v_smfmac_f32_16x16x64_bf16 {d}, {vr(Q, 4)}, a[{16 * t}:{16 * t + 7}], v1')
                if t == 0:
                    a.wait(ds='q1')
                elif t - 1 < len(fill):
                    for x in fill[t - 1]:
                        a.e(x)
                a.e(f'v_smfmac_f32_16x16x64_bf16 {d}, {vr(Q + 4, 4)}, a[{16 * t + 8}:{16 * t + 15}], v1')
        self.softmax_a(S, T, f'v{T + 1}')

    def softmax_a(self, S, T, pa, fill=()):
        a = self.a
        fill = list(fill)

        def f2():
            for _ in range(2):
                if fill:
                    a.e(fill.pop(0))
        m = f'v{T}'
        a.e(f'v_max3_f32 {m}, v{S}, v{S + 1}, v{S + 2}')
        a.e(f'v_max_f32 {m}, {m}, v{S + 3}')
        for c in ('row_ror:8', 'row_ror:4', 'row_ror:2', 'row_ror:1'):
            f2()
            a.e(f'v_max_f32_dpp {m}, {m}, {m} {c} {FULL}')
        f2()
        a.e(f'v_max_f32_dpp {m}, {m}, {m} row_bcast:15 row_mask:0xa bank_mask:0xf')
        f2()
        a.e(f'v_max_f32_dpp {m}, {m}, {m} row_bcast:31 row_mask:0xc bank_mask:0xf')
        a.e(f'v_readlane_b32 {sM}, {m}, 63')
        f2()
        assert not fill
        for r in range(4):
            a.e(f'v_subrev_f32 v{S + r}, {sM}, v{S + r}')
        for r in range(4):
            a.e(f'v_exp_f32 v{S + r}, v{S + r}')
        a.e(f'v_cvt_pk_bf16_f32 v{T + 2}, v{S}, v{S + 1}')
        a.e(f'v_cvt_pk_bf16_f32 v{T + 3}, v{S + 2}, v{S + 3}')
        a.e(f'ds_write_b16 {pa}, v{T + 2} offset:6144')
        a.e(f'ds_write_b16_d16_hi {pa}, v{T + 2} offset:{6144 + 4}')
        a.e(f'ds_write_b16 {pa}, v{T + 3} offset:{6144 + 64}')
        a.e(f'ds_write_b16_d16_hi {pa}, v{T + 3} offset:{6144 + 68}')

    def lsum(self, l, S):
        out = [f'v_pk_add_f32 {vr(S, 2)}, {vr(S, 2)}, {vr(S + 2, 2)}', f'v_add_f32 {l}, v{S}, v{S + 1}']
        for c in ('row_ror:8', 'row_ror:4', 'row_ror:2', 'row_ror:1'):
            out.append(f'v_add_f32_dpp {l}, {l}, {l} {c} {FULL}')
        out.append(f'v_add_f32_dpp {l}, {l}, {l} row_bcast:15 row_mask:0xa bank_mask:0xf')
        out.append(f'v_add_f32_dpp {l}, {l}, {l} row_bcast:31 row_mask:0xc bank_mask:0xf')
        return out

    def ml_write(self, T):
        return [f's_lshl_b32 {t0}, {sV}, 3', f's_add_u32 {t0}, {t0}, {ZML}', f'v_mov_b32 v{T + 2}, 0x30000', f'v_mov_b32 v{T}, {sM}',
                f'v_writelane_b32 v{T + 2}, {t0}, 63\nds_write_b64 v{T + 2}, {vr(T, 2)}']

    def ml_read(self, R, T):
        return [f'v_mov_b32 v{T}, {ZML}', f'ds_read_b128 {vr(R, 4)}, v{T}', f'ds_read_b128 {vr(R + 4, 4)}, v{T} offset:16']

    def ml_scale(self, R, T, F, LW):
        out = [f'v_max3_f32 v{T}, v{R}, v{R + 2}, v{R + 4}', f'v_max_f32 v{T}, v{T}, v{R + 6}']
        out += [f'v_sub_f32 v{R + 2 * w}, v{R + 2 * w}, v{T}' for w in range(4)]
        out += [f'v_sub_f32 v{F}, {sM}, v{T}']
        out += [f'v_exp_f32 v{R + 2 * w}, v{R + 2 * w}' for w in range(4)]
        out += [f'v_exp_f32 v{F}, v{F}', f'v_mul_f32 v{LW}, v{R}, v{R + 1}']
        out += [f'v_fmac_f32 v{LW}, v{R + 2 * w}, v{R + 2 * w + 1}' for w in range(1, 4)]
        out += [f'v_rcp_f32 v{R}, v{LW}', f'v_log_f32 v{LW}, v{LW}', f'v_mul_f32 v{F}, v{F}, v{R}', f'v_add_f32 v{LW}, v{LW}, v{T}']
        return out

    def combine_publish(self):
        a = self.a
        a.e('ds_write2st64_b32 v46, v44, v45 offset0:26 offset1:27')
        lwl = f'buffer_load_dword v16, v47, {WSL}, {oOALg} offen sc1'
        if self.o.get('lw_pos', 0) == 0:
            a.e(lwl)
        a.e(f'v_mov_b32 v10, {STG + 6656}')
        a.e('v_lshl_add_u32 v8, v0, 3, v10')
        a.e('v_and_b32 v10, 56, v0')
        a.e('v_lshlrev_b32 v10, 5, v10')
        a.e(f'v_and_or_b32 v10, {vL16}, 16, v10')
        a.e('v_and_b32 v11, 6, v0')
        a.e('v_lshl_or_b32 v10, v11, 1, v10')
        a.e(f's_cmp_lg_u32 {sV}, 0')
        a.e('s_waitcnt lgkmcnt(0)')
        a.e('s_barrier')
        l = a.lab('notw')
        if self.o.get('lw_pos', 0) == 0:
            a.e(f's_cbranch_scc1 {l}')
            a.begin_skip()
        for w in range(4):
            a.e(f'ds_read_b64 {vr(20 + 2 * w, 2)}, v8 offset:{w * 8192}')
            a.tag_ds(f'o{w}')
        if self.o.get('lw_pos', 0) == 1:
            a.e(lwl)
            a.e(f's_cbranch_scc1 {l}')
            a.begin_skip()
        a.wait(ds='o1')
        a.e('v_pk_add_f32 v[20:21], v[20:21], v[22:23]')
        a.wait(ds='o3')
        a.e('v_pk_add_f32 v[24:25], v[24:25], v[26:27]')
        a.e('v_pk_add_f32 v[20:21], v[20:21], v[24:25]')
        a.e('v_cvt_pk_bf16_f32 v20, v20, v21')
        self.end_only(l)
        self.lstore([f'buffer_store_dword v20, v10, {WSL}, {oOApub} offen'])
        a.e('s_waitcnt lgkmcnt(0)')

    def w8(self, lw, t):
        return [f'v_max_f32_dpp {t}, {lw}, {lw} row_ror:4 {FULL}',
                f'v_max_f32_dpp {t}, {t}, {t} row_ror:2 {FULL}',
                f'v_max_f32_dpp {t}, {t}, {t} row_ror:1 {FULL}',
                f'v_sub_f32 {lw}, {lw}, {t}',
                f'v_exp_f32 {lw}, {lw}',
                f'v_add_f32_dpp {t}, {lw}, {lw} row_ror:4 {FULL}',
                f'v_add_f32_dpp {t}, {t}, {t} row_ror:2 {FULL}',
                f'v_add_f32_dpp {t}, {t}, {t} row_ror:1 {FULL}',
                f'v_rcp_f32 {t}, {t}']

    def rot8(self, dst, sh):
        a = self.a
        a.e(f'v_lshrrev_b32 {dst}, 4, v0')
        a.e(f'v_lshl_add_u32 {dst}, {dst}, 1, v0')
        a.e(f'v_and_b32 {dst}, 7, {dst}')
        a.e(f'v_lshlrev_b32 {dst}, {sh}, {dst}')

    def weigh2(self, skip=0, lw='v16', chk=False):
        a = self.a
        w = self.w8(lw, 'v17')
        for x in w[skip:6]:
            a.e(x)
        a.e('v_add_f32 v20, v20, v21')
        a.e('v_add_f32 v22, v22, v23')
        a.e(w[6])
        a.e('v_add_f32 v24, v24, v25')
        a.e('v_add_f32 v26, v26, v27')
        a.e(w[7])
        a.e(f'v_mul_f32_dpp v20, {lw}, v20 row_newbcast:0 {FULL}')
        a.e(f'v_mul_f32_dpp v24, {lw}, v24 row_newbcast:0 {FULL}')
        a.e(f'v_fmac_f32_dpp v20, {lw}, v22 row_newbcast:1 {FULL}')
        a.e(f'v_fmac_f32_dpp v24, {lw}, v26 row_newbcast:1 {FULL}')
        a.e(w[8])
        if chk:
            a.e('v_cmp_u_f32 vcc, v20, v20')
        a.e('v_permlane32_swap_b32 v20, v24')
        a.e('v_add_f32 v20, v20, v24')
        a.e('v_mul_f32 v20, v20, v17')

    def w8n(self, lw, t, W):
        return self.w8(lw, t) + [f'v_mul_f32_dpp v{W}, {lw}, {t} row_newbcast:0 {FULL}', f'v_mul_f32_dpp v{W + 1}, {lw}, {t} row_newbcast:1 {FULL}']

    def weigh2n(self, W, dup=None):
        a = self.a
        w = vr(W, 2)
        a.e(f'v_pk_mul_f32 v[20:21], v[20:21], {w} op_sel_hi:[1,0]')
        a.e(f'v_pk_fma_f32 v[20:21], v[22:23], {w}, v[20:21] op_sel:[0,1,0] op_sel_hi:[1,1,1]')
        a.e(f'v_pk_mul_f32 v[24:25], v[24:25], {w} op_sel_hi:[1,0]')
        a.e('v_add_f32 v20, v20, v21')
        a.e(f'v_pk_fma_f32 v[24:25], v[26:27], {w}, v[24:25] op_sel:[0,1,0] op_sel_hi:[1,1,1]')
        a.e('v_add_f32 v24, v24, v25')
        a.e('v_cmp_u_f32 vcc, v20, v20')
        a.e('v_permlane32_swap_b32 v20, v24')
        if dup:
            a.e(f'v_add_f32 {dup}, v20, v24')
        a.e('v_add_f32 v20, v20, v24')

    def outproj(self, isa):
        a = self.a
        if not isa:
            a.e(f's_add_u32 {t4}, {oO}, {L_OB - L_OA}')
        so = oO if isa else t4
        ld = [f'buffer_load_dwordx4 v[8:11], {vL16}, {WSL}, {so} offen sc1',
              f'buffer_load_dwordx4 v[12:15], {vL16}, {WSL}, {so} offen offset:1024 sc1']
        a.e('v_lshrrev_b32 v28, 4, v0')
        a.e('v_bfe_u32 v29, v0, 2, 2')
        a.e('v_lshl_add_u32 v28, v28, 3, v29')
        pitch = 64 if not isa and self.o.get('woq') is not None else 48
        a.e(f'v_mul_u32_u24 v28, {pitch}, v28')
        a.e('v_and_b32 v29, 3, v0')
        a.e('v_lshl_add_u32 v28, v29, 3, v28')
        a.e(f'v_add_u32 v28, {sW8}, v28')
        tr = []
        for blk in range(2):
            for tile in range(2):
                for hh in range(2):
                    for half in range(2):
                        off = (64 * blk + 32 * hh + 4 * half) * pitch + 32 * tile
                        tr.append(f'ds_read_b64_tr_b16 {vr(32 + 16 * tile + 8 * blk + 4 * hh + 2 * half, 2)}, v28 offset:{off}')
        a.e(f's_lshl_b32 {t2}, {sV}, 3')
        a.e(f's_add_u32 {t2}, {t2}, {ZO}')
        pre = ['v_and_b32 v18, 15, v0', 'v_lshrrev_b32 v19, 5, v0', 'v_lshl_add_u32 v18, v19, 4, v18', 'v_bfe_u32 v19, v0, 4, 1',
               'v_lshlrev_b32 v19, 2, v19', 'v_lshl_add_u32 v18, v18, 5, v19', f'v_add_u32 v18, {t2}, v18', f'v_mov_b32 v19, {ZO}',
               'v_and_b32 v29, 15, v0', 'v_lshl_add_u32 v19, v29, 6, v19', 'v_lshlrev_b32 v29, 2, v0']
        n1 = self.o.get('tr_pre', 8)
        if isa:
            a.e('s_waitcnt vmcnt(1)')
            a.vmq = []
        a.wait(vm='wo')
        for x in tr[:n1]:
            a.e(x)
        if isa:
            chk, again = a.lab('chk'), a.lab('again')
            a.e(f'{chk}:')
            a.e('v_cmp_eq_u32 vcc, -1, v16')
            a.e('v_mov_b32 v22, v16')
            self.retry_with([f'buffer_load_dword v16, v47, {WSL}, {oOALg} offen sc1'], 's_waitcnt vmcnt(1)', chk)
        self.sleep('h1' if isa else 'hd')
        for x in ld:
            a.e(x)
        if isa:
            pre = [x for p in zip(self.w8n('v22', 'v17', 30), pre) for x in p]
        self.mix(tr[n1:], pre)
        a.e(f's_add_u32 {t2}, {oYpub}, {G_YA if isa else G_YB}')
        if self.o.get('wq_hoist', 1):
            self.wq_prep('v17', 'v28')
        if pitch == 64:
            a.e('s_waitcnt lgkmcnt(0)')
            a.e('s_barrier')
        top = a.lab('poll')
        a.e(f'{top}:')
        for x in ld:
            self.H('o0', 0, 20)
            a.e(x)
        for r in range(26, 18, -2):
            a.e(f'v_mov_b64 {vr(r, 2)}, 0')
        self.K(0, 'po', True)
        a.e(f's_waitcnt vmcnt({len(ld)}) lgkmcnt(0)')
        a.e('v_cmp_u_f32 vcc, v8, v12')
        a.e('v_smfmac_f32_16x16x64_bf16 v[20:23], v[8:11], v[32:39], v1')
        a.e('v_smfmac_f32_16x16x64_bf16 v[20:23], v[12:15], v[40:47], v1')
        self.retry_to(top)
        a.e('v_smfmac_f32_16x16x64_bf16 v[24:27], v[8:11], v[48:55], v1')
        a.e('v_smfmac_f32_16x16x64_bf16 v[24:27], v[12:15], v[56:63], v1')
        self.stamp('ogot')
        if isa:
            self.weigh2n(30)
        else:
            a.e('v_pk_add_f32 v[20:21], v[20:21], v[22:23]')
            a.e('v_add_f32 v20, v20, v21')
            a.e('v_cmp_u_f32 vcc, v20, v20')
            a.e('v_pk_add_f32 v[24:25], v[24:25], v[26:27]')
            a.e('v_add_f32 v24, v24, v25')
            a.e('v_permlane32_swap_b32 v20, v24')
            a.e('v_add_f32 v20, v20, v24')
        a.e('ds_write_b32 v18, v20')
        self.H('o1', 0, 24)
        self.retry_to(top)
        a.e(f's_bitcmp0_b32 {sRES}, 0')
        self.H('o2', 0, 24)
        self.bar(1, True)
        l = a.lab('noy')
        a.e(f's_cbranch_scc1 {l}')
        a.begin_skip()
        for i in range(4):
            a.e(f'ds_read_b128 {vr(32 + 4 * i, 4)}, v19 offset:{16 * i}')
            a.tag_ds(f'z{i}')
            if i == 1:
                self.H('o3', 0, 24)
        a.e('s_mov_b32 exec_hi, 0')
        self.K(2)
        self.Wm()
        a.wait(ds='z1')
        a.e('v_pk_add_f32 v[32:33], v[32:33], v[34:35]')
        a.e('v_pk_add_f32 v[36:37], v[36:37], v[38:39]')
        a.e('v_pk_add_f32 v[32:33], v[32:33], v[36:37]')
        a.e('v_add_f32 v32, v32, v33')
        a.wait(ds='z3')
        a.e('v_pk_add_f32 v[40:41], v[40:41], v[42:43]')
        a.e('v_pk_add_f32 v[44:45], v[44:45], v[46:47]')
        a.e('v_pk_add_f32 v[40:41], v[40:41], v[44:45]')
        a.e('v_add_f32 v33, v40, v41')
        a.e('v_pk_add_f32 v[32:33], v[32:33], v[4:5]')
        a.e('v_cvt_pk_bf16_f32 v34, v32, v33')
        a.e(f'buffer_store_dword v34, v29, {WSG}, {t2} offen sc1')
        a.e('s_mov_b32 exec_hi, -1')
        a.end_skip()
        a.e(f'{l}:')
        self.stamp('ypub')

    def tc(self):
        return self.o.get('tcache', 1) and (not self.o.get('stamps') or self.o.get('light'))

    def qabs(self):
        a = self.a
        tc = self.tc()
        a.e(f's_sub_u32 {t0}, {sW8}, {sKV}')
        a.e(f'v_add_u32 v56, {t0}, {vA}')
        for ks in range(1, 4):
            a.e(f'v_xor_b32 v{56 + ks}, {ks << 6}, v56')
        a.e('v_and_b32 v36, 7, v0')
        a.e('v_lshlrev_b32 v37, 3, v36')
        self.oob(('v37', 'v37'), (0xc0c0c0c0, 0xc0c0c0c0))
        self.oob(('v33', vL16), (0xf000f000, 0xf000f000))
        a.e(f's_waitcnt vmcnt({1 if self.o.get("mst", 1) else 2})')
        for ks in range(4):
            a.e(f'ds_read_b128 {vr(40 + 4 * ks, 4)}, v{56 + ks}')
            if tc:
                a.e(f'v_mov_b64 {vr(16 + 2 * ks, 2)}, 0')
        self.sleep('hqb')
        top = a.lab('poll')
        a.e(f'{top}:')
        ql = lambda i: f'buffer_load_dwordx4 {vr(8 + 4 * i, 4)}, v33, {WSL}, {oQgB} offen offset:{i * 1024} sc1'
        if tc:
            go, back = a.lab('cs'), a.lab('csb')
            a.e(f's_cmp_eq_u32 {sIT}, 0')
            a.e(f's_cbranch_scc1 {go}')
            a.e(f'{back}:')
            a.ool(f'{go}:\n{ql(2)}\n{ql(3)}\ns_branch {back}')
        else:
            a.e(ql(2))
            a.e(ql(3))
        a.e(f'buffer_load_dwordx2 v[34:35], v37, {WSL}, {oSTgB} offen sc1')
        a.tag_vm('st')
        for i in range(2):
            a.e(ql(i))
            a.tag_vm(f'q{i}')
        for r in range(24, 32, 2):
            a.e(f'v_mov_b64 {vr(r, 2)}, 0')
        a.e('v_and_b32 v38, 8, v0')
        a.e('v_lshlrev_b32 v38, 3, v38')
        a.e('v_lshl_or_b32 v38, v36, 1, v38')
        a.e(f's_lshl_b32 {t0}, {sV}, 4')
        a.e(f's_add_u32 {t0}, {t0}, {ZQ}')
        a.e(f'v_add_u32 v38, {t0}, v38')
        a.e(f'v_add_u32 v39, {ZQ}, {vL16}')
        a.e(self.stats_const(32))
        a.e(f's_cmp_lg_u32 {sV}, 0')
        a.e('s_waitcnt vmcnt(3) lgkmcnt(0)')
        a.e('v_smfmac_f32_16x16x64_bf16 v[28:31], v[16:19], v[40:47], v1')
        a.e('v_smfmac_f32_16x16x64_bf16 v[28:31], v[20:23], v[48:55], v1')
        a.wait(vm='st')
        a.e('v_cmp_u_f32 vcc, v34, v35')
        st = self.stats(34, 32)
        for x in st[:4]:
            a.e(x)
        self.retry_to(top)
        a.wait(vm='q0')
        a.e('v_smfmac_f32_16x16x64_bf16 v[24:27], v[8:11], v[40:47], v1')
        rest = st[4:6] + ['v_pk_add_f32 v[28:29], v[28:29], v[30:31]'] + st[6:8] + ['v_add_f32 v28, v28, v29'] + st[8:10]
        rest += (['v_add_f32 v30, v28, v7'] if tc else []) + st[10:12] + [f'v_mul_f32 v28, {"v30" if tc else "v28"}, v35']
        nq = self.o.get('q_mid', 4)
        for x in rest[:nq]:
            a.e(x)
        a.wait(vm='q1')
        a.e('v_smfmac_f32_16x16x64_bf16 v[24:27], v[12:15], v[48:55], v1')
        self.stamp('qgotB', 2)
        for x in rest[nq:]:
            a.e(x)
        a.e('v_pk_add_f32 v[24:25], v[24:25], v[26:27]')
        a.e('v_sub_f32 v24, v24, v28')
        a.e('v_add_f32 v24, v24, v25')
        a.e('v_mul_f32 v25, v24, v34')
        a.e('v_mul_f32 v24, v24, v34')
        a.e('v_cmp_u_f32 vcc, v24, v24')
        a.e('v_permlane32_swap_b32 v24, v25')
        a.e('v_add_f32 v26, v24, v25')
        a.e('v_add_f32 v24, v24, v25')
        a.e('v_permlane16_swap_b32 v24, v26')
        a.e('v_add_f32 v24, v24, v26')
        a.e('v_cvt_pk_bf16_f32 v24, v24, v24')
        a.e('ds_write_b16 v38, v24')
        self.retry_to(top)
        if self.tc():
            a.e('v_mov_b32 v7, v30')
        a.e('s_waitcnt lgkmcnt(0)')
        a.e('s_barrier')
        l = a.lab('notw')
        a.e(f's_cbranch_scc1 {l}')
        a.begin_skip()
        a.e('s_mov_b64 exec, 0xff')
        a.e('ds_read_b128 v[24:27], v39')
        a.e('s_waitcnt lgkmcnt(0)')
        a.e(f'buffer_store_dwordx4 v[24:27], {vL16}, {WSG}, {oQApub} offen sc1')
        a.e('s_mov_b64 exec, -1')
        self.end_only(l)
        self.stamp('qapub')
        self.touches('w3', 'v8', 'v9')
        self.resid_track(G_YA, 10, 'v8', f's_cmp_eq_u32 {sRES}, 3')

    def attn_b(self):
        a = self.a
        a.e(f's_mul_i32 {t0}, {sV}, {4096 - 16384}')
        a.e(f's_add_u32 {t0}, {t0}, {CKV}')
        a.e(f'v_add_u32 v56, {t0}, {vA}')
        a.e('v_xor_b32 v57, 64, v56')
        ORD = [(r, ks) for kp in range(2) for r in range(4) for ks in (2 * kp, 2 * kp + 1)]
        ga = ['v_and_b32 v58, 12, v0', 'v_lshlrev_b32 v58, 4, v58', 'v_and_or_b32 v58, v0, 48, v58', 'v_lshlrev_b32 v58, 2, v58',
              f'v_and_or_b32 v58, {vL16}, 48, v58', 'v_lshlrev_b32 v8, 7, v0', 'v_mov_b32 v9, 0']
        for x in ga:
            a.e(x)
        a.e(f'v_add_u32 v59, {STG}, {vL16}')
        a.e('s_barrier')

        nl = self.o.get('ckv_late', 0)

        def late_ckv():
            b = self.a
            b.e('s_mov_b64 s[80:81], s[0:1]')
            b.e('s_mov_b32 s82, 0x10000')
            b.e('s_mov_b32 s83, 0x20000')
            b.e('v_lshrrev_b32 v19, 4, v0')
            b.e('v_lshlrev_b32 v18, 5, v19')
            b.e(f'v_xor_b32 v18, v18, {vL16}')
            b.e('v_and_b32 v18, 0xf0, v18')
            b.e('v_lshl_or_b32 v18, v19, 10, v18')
            for q in range(4):
                b.e(f'v_xor_b32 v19, {TBL[q] << 4}, v18')
                b.e(f's_not_b64 exec, {MY}' if q in (0, 3) else f's_mov_b64 exec, {MY}')
                for t in range(4 - nl, 4):
                    b.e(f's_add_u32 m0, {sKV}, {CKV + t * 4096 + q * 1024}')
                    b.e(f's_mov_b32 {t1}, {(16 * t + 4 * q) * 1024}')
                    b.e(f'buffer_load_dwordx4 v19, s[80:83], {t1} offen {self.o.get("pol_cl", "nt")} lds')
                b.e('s_mov_b64 exec, -1')

        def first():
            if self.o.get('clr_first'):
                self.lstore(self.clear_c1(12, 'v16', 'v17'))
            if nl:
                late_ckv()
            if not self.o.get('clr_first'):
                self.lstore(self.clear_c1(12, 'v16', 'v17'))
            self.sleep('ha0')

        def second():
            self.lstore(self.clear_c1(12, 'v16', 'v17'))
            self.sleep('ha')
        self.ool_if(f's_cmp_eq_u32 {sIT}, 0', first, second)
        top = a.lab('poll')
        a.e(f'{top}:')
        cm = self.o.get('canmask', 0xffffffff)
        ld = [f's_mov_b32 m0, {sW8}', f's_mov_b32 exec_lo, {cm}\ns_mov_b32 exec_hi, 0', f'buffer_load_dword v9, v8, {WSG}, {oQAg} offen sc1', 's_mov_b64 exec, -1']
        for ks in range(4):
            ld.append(f'buffer_load_dwordx4 v58, {WSG}, {oQAg} offen offset:{ks * 1024} sc1 lds')
        for x in ld:
            a.e(x)
        for k in range(8):
            r, ks = ORD[k]
            a.e(f'ds_read_b128 {vr(24 + 4 * k, 4)}, v{56 + (ks & 1)} offset:{r * 16384}')
        a.e('v_xor_b32 v56, 128, v56')
        a.e('v_xor_b32 v57, 128, v57')
        single = self.o.get('single')
        if single:
            a.e('v_lshrrev_b32 v10, 5, v0')
            a.e('v_bfe_u32 v11, v0, 2, 3')
            a.e('v_lshl_add_u32 v10, v10, 4, v11')
            a.e('v_lshlrev_b32 v10, 13, v10')
            a.e(f'v_and_or_b32 v10, {vL16}, 48, v10')
        else:
            self.k64_addr('v10', None)
        l4 = self.o.get('l4_wo', 0)
        if l4 == 2:
            self.wo_prep(12, 'v15')
        chk, again = a.lab('chk'), a.lab('again')
        a.e(f'{chk}:')
        a.e('s_waitcnt vmcnt(4)')
        a.e('v_cmp_eq_u32 vcc, -1, v9')
        self.retry_with(ld, 's_nop 0', chk)
        pol = self.o.get('pol_wuv', '')
        for i in range(1, 4):
            a.e(f's_add_u32 {[t1, t2, t3][i - 1]}, {oWUV}, {i * ((32 if single else 16) * 8192 - 1024)}')
        a.e('v_mov_b32 v58, v10')
        half = self.o.get('qa_half', 1)
        if l4 == 2:
            a.e(f's_cmp_eq_u32 {sIT}, 1')
            a.e(f's_cselect_b32 {t0}, {sKV}, 0x30000')
            a.e(f's_cselect_b32 {t4}, {oWO}, {OOB}')
            a.e(f's_cselect_b32 {t5}, {t5}, {OOB}')
            for x in self.wo_lines(BWO, 12, '', t0):
                a.e(x.replace(f', {oWO} ', f', {t4} '))
        ex = 6 if l4 == 2 else 0
        a.e(f's_waitcnt vmcnt({(2 if half else 0) + ex}) lgkmcnt(0)')
        a.e('s_barrier')
        self.stamp('qagot')

        def qread(k):
            r, ks = ORD[k]
            a.e(f'ds_read_b128 {vr(8 + 4 * (k & 3), 4)}, v59 offset:{r * 8192 + ks * 1024}')
            a.tag_ds(f'q{k}')
        for k in range(4):
            qread(k)
        a.e(f's_add_u32 m0, {sW8}, 4096')
        SLOT = [16, 40, 48]
        wpos = self.o.get('wuv_pos', [0, 2, 4, 6])
        wdma = [f'buffer_load_dwordx4 v58, {WUV}, {[oWUV, t1, t2, t3][i]} offen offset:{i * 1024} {pol} lds' for i in range(4)]

        def tread(e, ad='v57'):
            l = [f'v_xor_b32 {ad}, {CKV | (e << 5)}, {vT}']
            for t in range(4):
                l.append(f'ds_read_b64_tr_b16 {vr(SLOT[e % 3] + 2 * t, 2)}, {ad} offset:{t * 4096}')
            return l
        for k in range(16):
            a.wait(ds=f'q{k}')
            a.e(f'v_mfma_f32_16x16x32_bf16 v[60:63], {vr(24 + 4 * (k & 7), 4)}, {vr(8 + 4 * (k & 3), 4)}, {"v[60:63]" if k else "0"}')
            if k < 8:
                r, ks = ORD[k + 8]
                a.e(f'ds_read_b128 {vr(24 + 4 * k, 4)}, v{56 + (ks & 1)} offset:{r * 16384}')
            if k == 4 and half:
                a.e(f's_waitcnt vmcnt({sum(p < 4 for p in wpos) + ex})')
                a.e('s_barrier')
            if k + 4 < 16:
                qread(k + 4)
            for i, p in enumerate(wpos):
                if p == k:
                    a.e(wdma[i])
            if k == 10:
                a.e('s_barrier')
            if k == 8:
                a.e(f'v_and_b32 v27, 0xf0, {vL16}')
                a.e(f's_lshl_b32 {t0}, {sV}, 2')
            if k == 9:
                a.e(f'v_add_u32 v27, {STG}, v27')
            if k == 11:
                a.e(f'v_add_u32 v24, {t0}, v27')
            if k == 12:
                a.e('v_xor_b32 v56, 128, v56')
                a.e(f'v_lshl_add_u32 v25, v0, 3, {sW8}')
            if k == 13:
                t1_ = tread(1)
                a.e(t1_[0]); a.e(t1_[1])
            if k == 14:
                a.e(t1_[2]); a.e(t1_[3])
        a.e(t1_[4])
        t0_, t2_ = tread(0), tread(2)
        a.e(f'v_mov_b32 v26, {STG}')
        a.e('v_lshl_add_u32 v26, v0, 3, v26')
        for r in range(36, 40):
            a.e(f'v_mov_b32 v{r}, 0x3f803f80')
        a.e('v_max3_f32 v28, v60, v61, v62')
        a.e('v_max_f32 v29, v28, v63')
        a.e('v_max_f32 v28, v28, v63')
        a.e(t0_[0]); a.e(t0_[1])
        a.e('v_permlane32_swap_b32 v28, v29')
        a.e('v_max_f32 v30, v28, v29')
        a.e('v_max_f32 v28, v28, v29')
        a.e(t0_[2]); a.e(t0_[3])
        a.e('v_permlane16_swap_b32 v28, v30')
        a.e('v_max_f32 v28, v28, v30')
        a.e('ds_write_b32 v24, v28')
        a.tag_ds('mw')
        a.e(t0_[4])
        a.e(t2_[0])
        self.H('b0', 1, 32)
        a.e(t2_[1]); a.e(t2_[2]); a.e(t2_[3]); a.e(t2_[4])
        self.H('b1', 1, 32)
        a.wait(ds='mw')
        a.e('s_barrier')
        a.e('ds_read_b128 v[28:31], v27')
        a.tag_ds('mr')
        self.stamp('sbar', 2)
        for i, p in enumerate(wpos):
            if p == 16:
                a.e(f's_add_u32 m0, {sW8}, 4096')
                a.e(wdma[i])
        if self.o.get('c1t') == 3:
            self.c1_fill('v58')
        st_ = 131072 if single else 4096
        a.e(f's_add_u32 {t1}, {oC1pub}, {st_}')
        a.e(f's_add_u32 {t2}, {oC1pub}, {2 * st_}')
        a.e(f's_add_u32 {t3}, {oC1pub}, {3 * st_}')
        self.H('b2', 1, 32)
        a.wait(ds='mr')
        a.e('v_max3_f32 v28, v28, v29, v30')
        a.e('v_max_f32 v28, v28, v31')
        a.e('v_pk_add_f32 v[60:61], v[60:61], v[28:29] op_sel_hi:[1,0] neg_lo:[0,1] neg_hi:[0,1]')
        a.e('v_pk_add_f32 v[62:63], v[62:63], v[28:29] op_sel_hi:[1,0] neg_lo:[0,1] neg_hi:[0,1]')
        for r in range(60, 64):
            a.e(f'v_exp_f32 v{r}, v{r}')
        a.e('v_cvt_pk_bf16_f32 v30, v60, v61')
        a.e('v_cvt_pk_bf16_f32 v31, v62, v63')
        a.e('ds_write_b64 v25, v[30:31] offset:1024')
        if single:
            for x in self.c_addr('v61')[:4]:
                a.e(x)
        else:
            a.e('v_lshrrev_b32 v61, 4, v0')
            a.e(f'v_and_b32 v60, 0xf0, {vL16}')
            a.e('v_lshl_or_b32 v61, v61, 16, v60')
        a.e('v_mov_b32 v62, v28')
        a.e('v_xor_b32 v57, 64, v56')
        if not single:
            a.e('v_and_b32 v27, 12, v0')
            a.e('v_lshlrev_b32 v27, 2, v27')
        if self.o.get('c1t') == 2:
            self.c1_fill('v58')
        self.H('b3', 1, 32)
        self.lcmp()
        a.e('s_waitcnt lgkmcnt(0)')
        a.e('s_barrier')
        a.e('ds_read2st64_b64 v[8:11], v26 offset0:2 offset1:18')
        a.tag_ds('p0')
        a.e('ds_read2st64_b64 v[12:15], v26 offset0:34 offset1:50')
        a.tag_ds('p1')
        self.stamp('smax', 2)
        if single:
            for x in self.c_addr('v61')[4:]:
                a.e(x)
            a.e('v_lshlrev_b32 v27, 3, v0')
        else:
            a.e('v_and_or_b32 v27, v0, 3, v27')
            a.e('v_lshlrev_b32 v27, 5, v27')
            a.e('v_and_b32 v60, 48, v0')
            a.e('v_lshl_or_b32 v27, v60, 20, v27')
        self.K(2, 'b4', True)
        ACC = [28, 56, 36, 32]
        a.wait(ds='p0')
        a.e('v_cmp_u_f32 vcc, v8, v8')
        a.e(f'v_mfma_f32_16x16x32_bf16 v[28:31], v[8:11], {vr(SLOT[0], 4)}, 0')
        a.e('v_mfma_f32_16x16x32_bf16 v[32:35], v[36:39], v[8:11], 0')
        again = a.lab('again')
        self.retry_to(again)
        a.ool(f'{again}:\n' + '\n'.join(['s_waitcnt lgkmcnt(0)'] + ga) + f'\ns_barrier\ns_branch {top}')
        a.wait(ds='p1')
        a.e('v_mfma_f32_16x16x32_bf16 v[32:35], v[36:39], v[12:15], v[32:35]')
        so = [oC1pub, t1, t2, t3]
        if single:
            return self.pv_single(SLOT, tread, so)
        ml = [f'buffer_store_dwordx2 v[62:63], v27, {WSL}, {oMLpub} offen']
        mlat = self.o.get('ml_at', 2)

        def pack(q):
            d0, d1 = ACC[(2 * q) & 3], ACC[(2 * q + 1) & 3]
            return [f'v_cvt_pk_bf16_f32 v{24 + r}, v{d0 + r}, v{d1 + r}' for r in range(4)]

        def put(q):
            self.lstore([f'buffer_store_dwordx4 v[24:27], v61, {WS}, {so[q]} offen'] + (ml if q == mlat else []))
        F = {e: [[], []] for e in range(8)}
        early = self.o.get('ml_early', 1)
        mlat = -1
        F[1][1] = ['v_mov_b32 v63, v32']
        F[self.o.get('ml_e', 2)][1] += ['ML']
        F[3][0] = pack(0)[:2]
        F[3][1] = pack(0)[2:]
        F[5][0] = pack(1)[:2]
        F[5][1] = pack(1)[2:]
        F[6][0] = ['v_lshlrev_b32 v60, 3, v0']
        F[7][0] = pack(2)
        for e in range(8):
            a.wait(ds=f't{e}')
            d = vr(ACC[e & 3], 4)
            s = SLOT[e % 3]
            nx = tread(e + 3, 'v60') if e + 3 < 8 else []
            if nx:
                a.e(nx[0])
            if e:
                a.e(f'v_mfma_f32_16x16x32_bf16 {d}, v[8:11], {vr(s, 4)}, 0')
            if e in (4, 6):
                put((e - 4) // 2)
            for x in nx[1:3]:
                a.e(x)
            for x in F[e][0]:
                a.e(x)
            a.e(f'v_mfma_f32_16x16x32_bf16 {d}, v[12:15], {vr(s + 4, 4)}, {d}')
            for x in nx[3:]:
                a.e(x)
            if nx:
                a.tag_ds(f't{e + 3}')
            for x in F[e][1]:
                if x == 'ML':
                    self.lstore(ml)
                else:
                    a.e(x)
            if e == 7:
                put(2)
        if early == 1:
            a.e(f'buffer_load_dwordx2 v[22:23], v60, {WSL}, {oMLg} offen sc1')
            a.tag_vm('ml0')
        for x in pack(3):
            a.e(x)
        put(3)
        if early == 2:
            a.e(f'buffer_load_dwordx2 v[22:23], v60, {WSL}, {oMLg} offen sc1')
            a.tag_vm('ml0')
        if self.o.get('c1t') == 1:
            self.c1_fill('v16')
        self.stamp('c1pub')

    def pv_single(self, SLOT, tread, so):
        a = self.a
        AC = [28, 56, 36, 32, 56, 24, 32, 56]
        O = [48, 52, 16, 20]
        ml = ['s_mov_b64 exec, 0xffff', f'buffer_store_dwordx2 v[62:63], v27, {WSG}, {oMLpub} offen sc1', 's_mov_b64 exec, -1']
        F = {e: [[], []] for e in range(8)}
        inpl = lambda q: [f'v_cvt_pk_bf16_f32 v{AC[2 * q] + r}, v{AC[2 * q] + r}, v{AC[2 * q + 1] + r}' for r in range(4)]
        fin = lambda q: [f'v_cvt_pk_bf16_f32 v{O[r] + q}, v{AC[2 * q] + r}, v{AC[2 * q + 1] + r}' for r in range(4)]
        mv = lambda q, rs: [f'v_mov_b32 v{O[r] + q}, v{AC[2 * q] + r}' for r in rs]
        F[1][1] = ['v_mov_b32 v63, v32']
        F[self.o.get('ml_e', 2)][1] += ml
        F[3][0] = inpl(0)[:2]
        F[3][1] = inpl(0)[2:]
        F[5][0] = inpl(1)[:2]
        F[5][1] = inpl(1)[2:]
        F[6][0] = mv(0, (0, 1)) + mv(1, (0, 1))
        F[6][1] = mv(0, (2, 3)) + fin(2)
        F[7][0] = mv(1, (2, 3))
        for e in range(8):
            a.wait(ds=f't{e}')
            d = vr(AC[e], 4)
            s = SLOT[e % 3]
            nx = tread(e + 3, 'v60') if e + 3 < 8 else []
            if nx:
                a.e(nx[0])
            if e:
                a.e(f'v_mfma_f32_16x16x32_bf16 {d}, v[8:11], {vr(s, 4)}, 0')
            for x in nx[1:3]:
                a.e(x)
            for x in F[e][0]:
                a.e(x)
            a.e(f'v_mfma_f32_16x16x32_bf16 {d}, v[12:15], {vr(s + 4, 4)}, {d}')
            for x in nx[3:]:
                a.e(x)
            if nx:
                a.tag_ds(f't{e + 3}')
            for x in F[e][1]:
                a.e(x)
        for x in fin(3):
            a.e(x)
        for r in range(4):
            a.e(f'buffer_store_dwordx4 {vr(O[r], 4)}, v61, {WS}, {so[r]} offen sc1')
        self.stamp('c1pub')

    def red_single(self):
        a = self.a
        o = self.o
        a.e('v_and_b32 v44, 3, v0')
        a.e('v_lshrrev_b32 v45, 3, v0')
        a.e('v_lshl_add_u32 v44, v44, 3, v45')
        a.e('v_lshlrev_b32 v44, 7, v44')
        if o.get('cswz', 1):
            a.e(f'v_xor_b32 v44, {oC2Lg}, v44')
        a.e('v_and_b32 v40, 12, v0')
        a.e('v_lshlrev_b32 v40, 4, v40')
        a.e('v_lshrrev_b32 v45, 1, v0')
        a.e('v_and_or_b32 v40, v45, 24, v40')
        a.e('v_and_or_b32 v40, v0, 3, v40')
        a.e(f'v_lshl_add_u32 v40, v40, 3, {sW8}')
        a.e('s_waitcnt vmcnt(5)')
        for tau in range(2):
            for gam in range(2):
                for tt in range(2):
                    a.e(f'ds_read_b64_tr_b16 {vr(48 + 8 * tau + 4 * gam + 2 * tt, 2)}, v40 offset:{4096 + (32 * tt + 4 * gam) * 64 + 32 * tau}')
        self.wo_prep(41, 'v39')
        a.e('v_and_b32 v45, 6, v0')
        a.e('v_lshlrev_b32 v45, 4, v45')
        a.e('v_and_or_b32 v45, v0, 16, v45')
        a.e('v_and_b32 v46, 1, v0')
        a.e('v_lshl_or_b32 v45, v46, 3, v45')
        a.e('v_lshrrev_b32 v46, 5, v0')
        a.e('v_lshl_or_b32 v45, v46, 2, v45')
        self.sums(t2, [(sV, 128)], ZQ)
        a.e(f'v_add_u32 v45, {t2}, v45')
        self.sp_addr('v46', ZQ)
        a.e('v_and_b32 v47, 6, v0')
        a.e('v_lshl_add_u32 v46, v47, 6, v46')
        self.pos_bytes('v47', None)
        a.e('v_and_b32 v39, 16, v0')
        a.e('v_lshl_or_b32 v47, v39, 4, v47')
        self.oob(('v47', 'v47'), (0xaaaaaaaa, 0xffffffff))
        a.e('s_waitcnt lgkmcnt(0)')
        a.e('s_barrier')

        def clear2():
            b = self.a
            for r in range(8, 12):
                b.e(f'v_mov_b32 v{r}, -1')
            self.sums(t2, [(sJ, 4 * 448), (sV, 448)], L_IT)
            b.e('s_mov_b64 exec, 0xfffffff')
            self.lstore([f'buffer_store_dwordx4 v[8:11], {vL16}, {WSL}, {t2} offen'])
            b.e('s_mov_b64 exec, -1')
        self.ool_if(f's_cmp_eq_u32 {sIT}, 0', clear2, lambda: self.sleep('hc4'))
        self.touches('w5', 'v12', 'v13')
        n0, n1, n2 = o.get('wo_s', [0, 3, 6])
        for x in self.wo_group(BWO, 41, 0, n0):
            a.e(x)
        self.sleep('mld')
        ld = f'buffer_load_dwordx2 v[24:25], v44, {WSG}, {oMLg} offen sc1'
        a.e(ld)
        a.tag_vm('ml')
        for x in self.wo_group(BWO, 41, n0, n1):
            a.e(x)
        z = [f'v_mov_b64 {vr(r, 2)}, 0' for r in range(28, 36, 2)]
        for x in z:
            a.e(x)
        chk = a.lab('chk')
        a.wait(vm='ml')
        a.e(f'{chk}:')
        a.e('v_cmp_u_f32 vcc, v24, v25')
        self.retry_with([ld], 's_waitcnt vmcnt(0)', chk)
        self.stamp('mlgot', 2)
        self.sleep('hc1')
        cl = [f'buffer_load_dwordx4 {vr(8 + 4 * i, 4)}, {vL16}, {WS}, {oC1g} offen offset:{i * 1024} sc1' for i in range(4)]
        for i, x in enumerate(cl):
            a.e(x)
            a.tag_vm(f'c{i}')
        for x in self.wo_group(BWO, 41, n1, n2):
            a.e(x)
        Q1, Q2 = f'quad_perm:[1,0,3,2] {FULL}', f'quad_perm:[2,3,0,1] {FULL}'

        def allred(op, r, src):
            a.e(f'{op}_dpp v{r}, v{src}, v{src} {Q1}')
            a.e(f'{op}_dpp v{r}, v{r}, v{r} {Q2}')
            a.e(f'{op}_dpp v38, v{r}, v{r} row_ror:8 {FULL}')
            a.e(f'{op}_dpp v{r}, v{r}, v{r} row_ror:8 {FULL}')
            a.e(f'v_permlane32_swap_b32 v{r}, v38')
            a.e(f'{op} v39, v{r}, v38')
            a.e(f'{op} v{r}, v{r}, v38')
            a.e(f'v_permlane16_swap_b32 v{r}, v39')
            a.e(f'{op} v{r}, v{r}, v39')
        allred('v_max_f32', 36, 24)
        a.e('v_sub_f32 v37, v24, v36')
        a.e('v_exp_f32 v37, v37')
        a.e('v_mul_f32 v37, v37, v25')
        allred('v_add_f32', 37, 37)
        self.sums(t2, [(sV, 8)], ZML)
        a.e(f'v_mov_b32 v38, {t2}')
        a.e('s_mov_b64 exec, 1')
        a.e('ds_write_b64 v38, v[36:37]')
        a.e('s_mov_b64 exec, -1')
        a.e('v_and_b32 v38, 3, v0')
        a.e(f's_mov_b32 {t2}, {ZML}')
        a.e(f'v_lshl_add_u32 v38, v38, 3, {t2}')
        a.e('s_waitcnt lgkmcnt(0)')
        a.e('s_barrier')
        a.e('ds_read_b64 v[36:37], v38')
        a.e('s_waitcnt lgkmcnt(0)')
        a.e(f'v_max_f32_dpp v38, v36, v36 {Q1}')
        a.e(f'v_max_f32_dpp v38, v38, v38 {Q2}')
        a.e('v_sub_f32 v36, v36, v38')
        a.e('v_exp_f32 v36, v36')
        a.e('v_mul_f32 v36, v36, v37')
        a.e(f'v_add_f32_dpp v36, v36, v36 {Q1}')
        a.e(f'v_add_f32_dpp v36, v36, v36 {Q2}')
        a.e('v_log_f32 v36, v36')
        a.e('v_sub_f32 v24, v24, v38')
        a.e('v_sub_f32 v24, v24, v36')
        a.e('v_exp_f32 v24, v24')
        a.e('v_cvt_pk_bf16_f32 v26, v24, 0')
        a.e('v_cvt_pk_bf16_f32 v27, 0, v24')
        a.e('v_mov_b64 v[36:37], 0')
        a.e('v_mov_b64 v[38:39], 0')
        top = a.lab('acc')
        a.e(f'{top}:')
        for i in range(4):
            a.wait(vm=f'c{i}')
            for d in range(4):
                a.e(f'v_dot2c_f32_bf16_dpp v{28 + 2 * d}, v26, v{8 + 4 * i + d} quad_perm:[{i},{i},{i},{i}] {FULL}')
                a.e(f'v_dot2c_f32_bf16_dpp v{29 + 2 * d}, v27, v{8 + 4 * i + d} quad_perm:[{i},{i},{i},{i}] {FULL}')
        for i in range(4):
            a.e(f'v_permlane32_swap_b32 v{28 + i}, v{32 + i}')
        a.e('v_pk_add_f32 v[28:29], v[28:29], v[32:33]')
        a.e('v_pk_add_f32 v[30:31], v[30:31], v[34:35]')
        a.e('v_cmp_u_f32 vcc, v28, v30')
        a.e('v_permlane16_swap_b32 v28, v30')
        a.e('v_permlane16_swap_b32 v29, v31')
        a.e('v_pk_add_f32 v[28:29], v[28:29], v[30:31]')
        self.retry_with(cl + z, 's_waitcnt vmcnt(0)', top)
        a.e(f'v_add_f32_dpp v28, v28, v28 row_ror:8 {FULL}')
        a.e(f'v_add_f32_dpp v29, v29, v29 row_ror:8 {FULL}')
        a.e('v_cvt_pk_bf16_f32 v28, v28, v29')
        a.e('ds_write_b32 v45, v28')
        a.e('v_mov_b64 v[32:33], 0')
        a.e('v_mov_b64 v[34:35], 0')
        a.e('s_waitcnt lgkmcnt(0)')
        a.e('s_barrier')
        a.e('ds_read_b128 v[8:11], v46')
        self.stamp('c2got', 2)
        a.e('s_waitcnt lgkmcnt(0)')
        a.e('v_smfmac_f32_16x16x64_bf16 v[32:35], v[8:11], v[48:55], v1')
        a.e('v_smfmac_f32_16x16x64_bf16 v[36:39], v[8:11], v[56:63], v1')
        a.e('v_pk_add_f32 v[32:33], v[32:33], v[34:35]')
        a.e('v_pk_add_f32 v[36:37], v[36:37], v[38:39]')
        a.e('v_add_f32 v32, v32, v33')
        a.e('v_add_f32 v36, v36, v37')
        a.e('v_permlane16_swap_b32 v32, v36')
        a.e('v_add_f32 v32, v32, v36')
        a.e(f'v_mov_b32_dpp v33, v32 {Q1}')
        a.e('v_cvt_pk_bf16_f32 v32, v32, v33')
        self.lstore([f'buffer_store_dword v32, v47, {WSL}, {oOBpub} offen'])
        a.vmq = [['wo', ()], [None, ()]]
        if n2 < 6:
            for x in self.wo_group(BWO, 41, n2, 6):
                a.e(x)
            a.tag_vm('wo')
        self.stamp('dpub')

    def c1_fill(self, vt):
        a = self.a
        a.e(f's_cmp_eq_u32 {sIT}, 0')
        a.e(f's_cselect_b32 {t0}, {oC1g}, {OOB}')
        a.e(f'v_lshlrev_b32 {vt}, 7, v0')
        a.e(f's_add_u32 m0, {sW8}, 2048')
        a.e('s_mov_b32 exec_hi, 0')
        a.e(f'buffer_load_dword {vt}, {WS}, {t0} offen lds')
        a.e('s_mov_b32 exec_hi, -1')

    def red(self):
        a = self.a
        ld = f'buffer_load_dwordx2 v[22:23], v60, {WSL}, {oMLg} offen sc1'
        a.e('v_and_b32 v45, 56, v0')
        a.e('v_lshlrev_b32 v45, 1, v45')
        a.e('v_and_or_b32 v45, v0, 6, v45')
        a.e('v_lshlrev_b32 v45, 1, v45')
        a.e(f'v_and_or_b32 v45, {vL16}, 16, v45')
        a.e('v_lshlrev_b32 v46, 2, v0')
        self.oob(('v46', 'v46'), (0, 0xffffffff))
        for r in range(28, 36, 2):
            a.e(f'v_mov_b64 {vr(r, 2)}, 0')
        ne = self.o.get('wo_e', 0)
        if ne:
            self.wo_prep(41, 'v39')
            a.e('s_barrier')
        cl = [f'buffer_load_dwordx4 {vr(8 + 4 * i, 4)}, {vL16}, {WS}, {oC1g} offen offset:{i * 1024} sc1' for i in range(4)]
        ch = [f'v_max_f32_dpp v36, v22, v22 quad_perm:[1,0,3,2] {FULL}',
              f'v_max_f32_dpp v37, v36, v36 quad_perm:[2,3,0,1] {FULL}', f'v_max_f32_dpp v36, v36, v36 quad_perm:[2,3,0,1] {FULL}',
              'v_permlane32_swap_b32 v36, v37', 'v_max_f32 v38, v36, v37', 'v_max_f32 v36, v36, v37',
              'v_permlane16_swap_b32 v36, v38', 'v_max_f32 v36, v36, v38', 'v_sub_f32 v24, v24, v36', 'v_exp_f32 v24, v24',
              'v_mul_f32 v25, v25, v24', f'v_add_f32_dpp v25, v25, v25 quad_perm:[1,0,3,2] {FULL}',
              f'v_add_f32_dpp v37, v25, v25 quad_perm:[2,3,0,1] {FULL}', f'v_add_f32_dpp v25, v25, v25 quad_perm:[2,3,0,1] {FULL}',
              'v_permlane32_swap_b32 v25, v37', 'v_add_f32 v38, v25, v37', 'v_add_f32 v25, v25, v37',
              'v_permlane16_swap_b32 v25, v38', 'v_add_f32 v25, v25, v38', 'v_rcp_f32 v38, v25', 'v_log_f32 v37, v25',
              'v_mul_f32 v24, v24, v38', 'v_add_f32 v37, v37, v36', 'v_cvt_pk_bf16_f32 v26, v24, 0', 'v_cvt_pk_bf16_f32 v27, 0, v24']
        chk, again = a.lab('chk'), a.lab('again')
        if self.o.get('ml_early', 1) == 4:
            self.sleep('mld')
            a.e(ld)
            a.tag_vm('ml0')
            if self.o.get('sleep', {}).get('mld2'):
                self.sleep('mld2')
                a.e(ld)
        a.wait(vm='ml0')
        a.e(f'{chk}:')
        a.e('v_cmp_u_f32 vcc, v22, v23')
        a.e(ch[0])
        a.e('v_mov_b64 v[24:25], v[22:23]')
        self.retry_with([ld], 's_waitcnt vmcnt(1)', chk)
        self.stamp('mlgot', 2)
        npre = self.o.get('red_pre', 8)
        for x in ch[1:npre]:
            a.e(x)
        self.sleep('hc1')
        for i, x in enumerate(cl):
            a.e(x)
            a.tag_vm(f'c{i}')
        for x in self.wo_group(BWO, 41, 0, ne):
            a.e(x)
        for x in ch[max(npre, 1):]:
            a.e(x)
        lwe = self.o.get('lw_early', 1)
        lws = [f'buffer_store_dword v37, v46, {WSG}, {oC2Lpub} offen sc1']
        if lwe == 1 or lwe == 3:
            if lwe == 3:
                a.e('s_barrier')
            for x in lws:
                a.e(x)
        self.H('r1', 0, 48)
        top, again = a.lab('acc'), a.lab('again')
        a.e(f'{top}:')
        for i in range(4):
            if i:
                self.K(0, 'rd', True)
            a.wait(vm=f'c{i}')
            for d in range(4):
                a.e(f'v_dot2c_f32_bf16_dpp v{28 + 2 * d}, v26, v{8 + 4 * i + d} row_newbcast:{4 * d + i} {FULL}')
                a.e(f'v_dot2c_f32_bf16_dpp v{29 + 2 * d}, v27, v{8 + 4 * i + d} row_newbcast:{4 * d + i} {FULL}')
        for i in range(4):
            a.e(f'v_permlane32_swap_b32 v{28 + i}, v{32 + i}')
        a.e('v_pk_add_f32 v[28:29], v[28:29], v[32:33]')
        a.e('v_pk_add_f32 v[30:31], v[30:31], v[34:35]')
        a.e('v_cmp_u_f32 vcc, v28, v30')
        a.e('v_permlane16_swap_b32 v28, v30')
        a.e('v_permlane16_swap_b32 v29, v31')
        a.e('v_pk_add_f32 v[28:29], v[28:29], v[30:31]')
        a.e('v_cvt_pk_bf16_f32 v28, v28, v29')
        self.retry_to(again)
        a.ool(f'{again}:\n' + '\n'.join(cl) + '\n' + '\n'.join(f'v_mov_b64 {vr(r, 2)}, 0' for r in range(28, 36, 2)) + f'\ns_waitcnt vmcnt(0)\ns_branch {top}')
        a.e(f'buffer_store_dword v28, v45, {WSG}, {oC2pub} offen sc1')
        if lwe == 2:
            for x in lws:
                a.e(x)
        self.stamp('c2pub')
        a.e('v_and_b32 v40, 4, v0')
        a.e('v_lshlrev_b32 v40, 4, v40')
        a.e('v_and_or_b32 v40, v0, 48, v40')
        a.e('v_lshlrev_b32 v40, 1, v40')
        a.e('v_and_or_b32 v40, v0, 11, v40')
        a.e(f'v_lshl_add_u32 v40, v40, 3, {sW8}')
        for tau in range(2):
            for gam in range(2):
                for tt in range(2):
                    a.e(f'ds_read_b64_tr_b16 {vr(48 + 8 * tau + 4 * gam + 2 * tt, 2)}, v40 offset:{4096 + (32 * gam + 2 * tt) * 64 + 32 * tau}')
        woq = self.o.get('woq')
        if woq is not None:
            self.woq_prep(41)
        elif not ne:
            self.wo_prep(41, 'v39')
        if (self.o.get('wo_pre', 6) if woq is None else woq) > 4:
            a.e('s_waitcnt lgkmcnt(0)')
        a.e('s_barrier')
        if self.o.get('x_wo'):
            a.e('s_waitcnt vmcnt(0)')
            self.stamp('x_ack')

        def clear2():
            b = self.a
            for r in range(8, 12):
                b.e(f'v_mov_b32 v{r}, -1')
            self.sums(t2, [(sJ, 4 * 448), (sV, 448)], L_IT)
            b.e('s_mov_b64 exec, 0xfffffff')
            self.lstore([f'buffer_store_dwordx4 v[8:11], {vL16}, {WSL}, {t2} offen'])
            b.e('s_mov_b64 exec, -1')
        npre = self.o.get('wo_pre', 6)
        for x in (self.wo_group(BWO, 41, ne, npre) if woq is None else self.woq_group(BWO, 41, 0, woq)):
            a.e(x)
        if (npre == 6 and woq is None) or woq == 8:
            a.tag_vm('wo')
        self.ool_if(f's_cmp_eq_u32 {sIT}, 0', clear2, lambda: self.sleep('hc4'))
        self.wol = self.wo_group(BWO, 41, npre, 6) if woq is None else self.woq_group(BWO, 41, woq, 8)
        if self.o.get('x_wo'):
            self.stamp('x_iss')
            a.e('s_waitcnt vmcnt(0)')
            self.stamp('x_land')

    def wb(self, where):
        a = self.a
        if self.o.get('wb') != where:
            return
        l = a.lab('nowb')
        self.sums(t1, [(sJ, 8), (sV, 2), (sIT, 1)])
        a.e(f's_cmp_lg_u32 {t1}, {24 * 8 + 1}')
        a.e(f's_cbranch_scc1 {l}')
        a.begin_skip()
        a.e('buffer_wbl2 sc1')
        self.end_only(l)

    def uv(self):
        a = self.a
        a.e('v_lshrrev_b32 v28, 1, v0')
        a.e('v_and_or_b32 v28, v28, 16, 0')
        a.e('v_and_or_b32 v28, v0, 14, v28')
        a.e('v_lshlrev_b32 v28, 6, v28')
        a.e('v_and_or_b32 v28, v0, 16, v28')
        a.e('v_lshlrev_b32 v28, 1, v28')
        a.e(f'v_and_or_b32 v28, {vL16}, 16, v28')
        a.e('v_and_b32 v29, 56, v0')
        a.e('v_lshlrev_b32 v29, 4, v29')
        self.pos_bytes('v30', None)
        a.e('v_and_b32 v31, 32, v0')
        a.e('v_lshl_or_b32 v30, v31, 3, v30')
        self.oob(('v30', 'v30'), (0xffffaaaa, 0xffffaaaa))
        self.touches('w5', 'v12', 'v13')
        a.e('s_waitcnt lgkmcnt(0)')
        self.sleep('hc2')
        ld = [f'buffer_load_dword v16, v29, {WSG}, {oC2Lg} offen sc1',
              f'buffer_load_dwordx4 v[8:11], v28, {WSG}, {oC2g} offen sc1']
        z = [f'v_mov_b64 {vr(r, 2)}, 0' for r in range(20, 28, 2)]
        lwe = self.o.get('lw_early', 1)
        a.e(ld[0])
        a.tag_vm('lw')
        if lwe:
            self.sleep('hc2b')
        a.e(ld[1])
        a.tag_vm('c2')
        for x in z:
            a.e(x)
        for x in self.wol:
            a.e(x)
        if self.wol:
            a.tag_vm('wo')
        top, top2 = a.lab('chk'), a.lab('chk')

        def red3(op, r, src):
            return [f'{op}_dpp v12, v{src}, v{src} row_ror:8 {FULL}', f'{op}_dpp v{r}, v{src}, v{src} row_ror:8 {FULL}',
                    f'v_permlane32_swap_b32 v{r}, v12', f'{op} v14, v{r}, v12', f'{op} v{r}, v{r}, v12',
                    f'v_permlane16_swap_b32 v{r}, v14', f'{op} v{r}, v{r}, v14']
        w = red3('v_max_f32', 17, 16) + ['v_sub_f32 v16, v16, v17', 'v_exp_f32 v16, v16'] + red3('v_add_f32', 17, 16) + \
            ['v_rcp_f32 v17, v17', f'v_mul_f32_dpp v18, v16, v17 row_newbcast:0 {FULL}', f'v_mul_f32_dpp v19, v16, v17 row_newbcast:8 {FULL}']
        a.wait(vm='lw')
        a.e(f'{top}:')
        a.e('v_cmp_eq_u32 vcc, -1, v16')
        for x in w[:5]:
            a.e(x)
        self.retry_with([ld[0]], 's_waitcnt vmcnt(0)', top)
        for x in w[5:]:
            a.e(x)
        self.H('u1', 0, 12)
        a.wait(vm='c2')
        a.e(f'{top2}:')
        a.e('v_cmp_u_f32 vcc, v8, v8')
        a.e('v_smfmac_f32_16x16x64_bf16 v[20:23], v[8:11], v[48:55], v1')
        a.e('v_smfmac_f32_16x16x64_bf16 v[24:27], v[8:11], v[56:63], v1')
        self.retry_with([ld[1], 's_nop 7'] + z, 's_waitcnt vmcnt(0)', top2)
        self.stamp('c2got', 2)
        self.weigh2n(18, 'v21')
        a.e('v_permlane16_swap_b32 v20, v21')
        a.e('v_add_f32 v20, v20, v21')
        self.retry_with([ld[1]] + z, 's_waitcnt vmcnt(0)', top2)
        a.e(f'v_mov_b32_dpp v21, v20 quad_perm:[1,0,3,2] {FULL}')
        a.e('v_cvt_pk_bf16_f32 v20, v20, v21')
        self.lstore([f'buffer_store_dword v20, v30, {WSL}, {oOBpub} offen'])
        self.stamp('dpub')
        self.wb('dpub')

    def attn_a3(self):
        a = self.a
        self.qa_addr(44)
        self.sleep('hqa')
        ld = self.qa_loads(8, 12, 44)
        for x in ld:
            a.e(x)
        a.e('v_mov_b64 v[20:21], 0')
        a.e(f'v_lshl_add_u32 v17, v0, 3, {sW8}')
        a.e('ds_write_b64 v17, v[20:21] offset:6656')
        a.e(f's_add_u32 {t0}, {sW8}, 6656')
        a.e(f'v_mov_b32 v17, {t0}')
        a.e(f's_mov_b32 s22, {self.o.get("rowm", 0x000f000f)}')
        a.e(f's_mov_b32 s23, {self.o.get("rowm", 0x000f000f)}')
        for c in range(4):
            a.e(f'v_cndmask_b32 v{56 + c}, v17, v46, s[22:23]')
            a.e('s_lshl_b64 s[22:23], s[22:23], 4')
        self.p_addr('v60', 'v17')
        self.wo_prep(61, 'v17')
        for r in (16, 24, 28):
            a.e(f'v_mov_b64 {vr(r, 2)}, 0')
        a.e(self.stats_const(39))
        self.pipe_poll(ld, 'v38', [8, 12], 'pq', ['v_mov_b64 v[36:37], v[12:13]', 'v_mov_b64 v[32:33], v[8:9]', 'v_mov_b64 v[34:35], v[10:11]'])
        top = self.ptop
        self.stamp('qgotA', 2)
        self.qa_finish(32, 36, 44, None, 39, True)
        a.e('v_lshlrev_b32 v33, 16, v32')
        a.e('v_cmp_u_f32 vcc, v33, v33')
        a.e(f's_sub_u32 {t2}, {sW8}, {ZQ - 6144}')
        a.e(f's_cmp_eq_u32 {sV}, 0')
        a.e(f's_cselect_b32 {t3}, {oOALpub}, {OOB}')
        a.e(f's_mov_b32 s22, {self.o.get("rowm", 0x000f000f)}')
        a.e(f's_mov_b32 s23, {self.o.get("rowm", 0x000f000f)}')
        self.H('a1', 1, 52)
        self.retry_to(top)
        a.e('s_waitcnt vmcnt(0) lgkmcnt(0)')
        a.e('s_barrier')
        self.H('a2', 1, 8)

        def qrd(c, b):
            a.e(f'ds_read_b128 {vr(32 + 8 * (c % 3) + 4 * b, 4)}, v{56 + c} offset:{128 * b}')
            a.tag_ds(f'q{c}{b}')
        for c in range(3):
            qrd(c, 0)
            qrd(c, 1)
        if self.o.get('wo3', 0):
            self.touch('wo', 'v15', None)
        self.stamp('qrdy')
        ds, va = [], []
        for e in range(8):
            for t in range(4):
                ds.append((e, f'ds_read_b64_tr_b16 a[{8 * e + 2 * t}:{8 * e + 2 * t + 1}], v{14 + (e & 1)} offset:{t * 4096}'))
        wl = self.wo_lines(WO, 61, self.o.get('pol_wo3', ''))
        other = {2: wl[0], 3: wl[1], 7: wl[2], 11: wl[3], 13: wl[4], 15: wl[5], 19: wl[6], 23: wl[7],
                 5: 'v_mov_b64 v[8:9], 0', 6: 'v_mov_b64 v[12:13], 0', 8: f'v_mov_b32 v10, {t2}'}
        wo3 = self.o.get('wo3', 0)
        late = {}
        nh = self.o.get('wo_h2', 0)
        if nh or self.o.get('wo_pos'):
            for k in (2, 3, 7, 11, 13, 15, 19, 23):
                del other[k]
            pos = self.o.get('wo_pos') or {1: (3, 9, 15, 21, 27), 2: (3, 11, 19, 27), 3: (3, 13, 23)}[nh]
            for k, p in zip(range(nh, 6), pos):
                g2 = self.wo_group(WO, 61, k, k + 1)
                other[p - 1] = (other[p - 1] + '\n' if p - 1 in other else '') + g2[0]
                other[p] = g2[1]
        if wo3:
            for k in (2, 3, 7, 11, 13, 15, 19, 23):
                del other[k]
            pos = {1: (0, 1, 4, 7, 9, 10, 13, 16), 2: (8, 9, 12, 15, 17, 18, 21, 24)}[wo3]
            late = dict(zip(pos, wl))
        for e, k in enumerate((4, 10, 14, 18, 22, 26, 30), 1):
            other[k] = (other[k] + '\n' if k in other else '') + f'v_xor_b32 v{14 + (e & 1)}, {e << 5}, {vT}'
        pc = []
        for c in range(4):
            pc.append('v_cndmask_b32 v11, 0, v10, s[22:23]')
            pc.append(f'v_add_u32 v{56 + c}, v{56 + c}, v11')
            if c < 3:
                pc.append('s_lshl_b64 s[22:23], s[22:23], 4')
        a.e(f'v_mov_b32 v14, {vT}')
        for k in range(32):
            c, r, b = k >> 3, (k >> 1) & 3, k & 1
            if k < 2:
                a.wait(ds=f'q{c}{b}')
            elif k == 8:
                a.wait(ds='q21')
            elif k == 24:
                a.wait(ds='q31')
            t = k >> 1
            a.e(f'v_smfmac_f32_16x16x64_bf16 {vr(16 + 4 * r, 4)}, {vr(32 + 8 * (c % 3) + 4 * b, 4)}, a[{16 * t + 8 * b}:{16 * t + 8 * b + 7}], v1')
            if k in (8, 9):
                qrd(3, k - 8)
            elif k >= 1:
                a.e(ds.pop(0)[1])
            if k in other:
                a.e(other[k])
        for r in range(4):
            if ds:
                a.e(ds.pop(0)[1])
            a.e(f'v_add_f32 v{16 + r}, v{16 + 4 * r}, v{17 + 4 * r}')
        self.softmax_a(16, 20, 'v60', pc)

        def prd(j):
            a.e(f'ds_read_b128 {vr(32 + 4 * (j % 6), 4)}, v{56 + (j >> 2)} offset:{128 * (j & 3)}')
            a.tag_ds(f'p{j}')
        RD = self.o.get('pring', 4)
        self.H('a3', 1, 24)
        for j in range(RD):
            prd(j)
        self.stamp('smaxA')
        ls = self.lsum('v21', 16)
        mw = self.ml_write(20)
        for x in ls[:2] + mw[:2] + ls[2:3] + mw[2:4] + ls[3:4]:
            a.e(x)
        Q1, Q2 = f'quad_perm:[1,0,3,2] {FULL}', f'quad_perm:[2,3,0,1] {FULL}'
        fill = {0: ls[4], 1: ls[5], 2: ls[6], 3: ls[7], 4: mw[4], 6: 'v_and_b32 v23, 3, v0', 8: 'BAR',
                9: f'v_lshl_add_u32 v23, v23, 3, s23\nds_read_b64 v[24:25], v23', 13: 'MLW',
                14: f'v_max_f32_dpp v22, v24, v24 {Q1}', 15: f'v_max_f32_dpp v22, v22, v22 {Q2}',
                16: f'v_sub_f32 v24, v24, v22', 17: 'v_exp_f32 v24, v24', 18: 'v_mul_f32 v19, v24, v25',
                20: f'v_add_f32_dpp v19, v19, v19 {Q1}', 22: f'v_add_f32_dpp v19, v19, v19 {Q2}', 23: 'v_log_f32 v25, v19',
                24: 'v_add_f32 v25, v25, v22', 25: 'LW', 26: f'v_sub_f32 v18, {sM}, v25', 27: 'v_exp_f32 v18, v18',
                28: 'v_lshrrev_b32 v23, 4, v0', 29: 'v_lshl_add_u32 v23, v23, 1, v0', 30: 'v_and_b32 v23, 7, v23'}
        a.e(f's_mov_b32 s23, {ZML}')
        for j in range(16):
            c, U = j >> 2, j & 3
            for hf in range(2):
                e = c + 4 * hf
                if hf == 0 and (j < 2 or j & 1 == 0):
                    a.wait(ds=f'p{j if j < 2 else j + 1}')
                B = vr(64 + 64 * U + 8 * e, 8) if U < 3 else f'a[{8 * e}:{8 * e + 7}]'
                a.e(f'v_smfmac_f32_16x16x64_bf16 {vr(8 + 4 * hf, 4)}, {vr(32 + 4 * (j % 6), 4)}, {B}, v1')
                if 2 * j + hf in late:
                    a.e(late[2 * j + hf])
                if hf == 1 and j + RD < 16:
                    prd(j + RD)
                x = fill.pop(2 * j + hf, None)
                if x == 'BAR':
                    a.wait(ds='mlw')
                    a.e('s_barrier')
                elif x == 'MLW':
                    a.wait(ds='mlr')
                elif x == 'LW':
                    self.lstore([f'buffer_store_dword v25, off, {WSL}, {t3}'])
                elif x:
                    a.e(x)
                    if 'ds_write_b64' in x:
                        a.tag_ds('mlw')
                    if 'ds_read_b64' in x:
                        a.tag_ds('mlr')
        assert not fill
        a.e(f'v_lshl_add_u32 v46, v0, 2, {sW8}')
        a.e('v_lshlrev_b32 v47, 2, v23')
        a.e('v_add_f32 v44, v8, v9')
        a.e('v_add_f32 v45, v12, v13')
        a.e('v_pk_mul_f32 v[44:45], v[44:45], v[18:19] op_sel_hi:[1,0]')
        self.stamp('pvA')

    def dma_tile(self, t):
        a = self.a
        pol = self.o.get('pol_kv', 'nt')
        srd = K_ if t < 16 else V_
        a.e(f's_add_u32 m0, {sKV}, {(t & 3) * 4096}')
        a.e(f's_add_u32 {t0}, {sKG}, {(t & 15) * 16384}')
        for q in range(4):
            a.e(f'buffer_load_dwordx4 v{8 + q}, {srd}, {t0} offen offset:{q * 1024} {pol} lds')
        a.tag_vm(f'tile{t}')

    def make_items(self):
        o = self.o
        pol, polc = o.get('pol_kv', 'nt'), o.get('pol_c', '')
        extra = {}
        c0, cs = o.get('ckv_from', 44), o.get('ckv_step', 2)
        for i in range(16):
            t, q = i >> 2, i & 3
            extra.setdefault(c0 + cs * i, []).append((f'c{i}', [
                f's_add_u32 m0, {sKV}, {CKV + i * 1024}', f'v_add_u32 v238, v{8 + q}, v254', f's_add_u32 {t0}, s1, {(16 * t + 4 * q) * 1024}',
                f'buffer_load_dwordx4 v238, {CK}, {t0} offen {polc} lds']))
        w0, wstep = o.get('wo_from', 52), o.get('wo_step', 4)
        for k in range(6):
            h, i = divmod(k, 3)
            extra.setdefault(w0 + wstep * k, []).append((f'w{k}', [
                f's_add_u32 m0, {sW8}, {h * 3072}', f's_add_u32 {t0}, {oWO}, {h * 64 * 1152}',
                f'buffer_load_dwordx4 v{(246, 247, 255)[i]}, {WO}, {t0} offen offset:{i * 1024} lds']))
        items = []
        self.extra = {tag: lines for v in extra.values() for tag, lines in v}
        for d in range(128):
            t, q = d >> 2, d & 3
            items.append((f'tile{t}' if q == 3 else f'd{d}', [
                f's_add_u32 m0, {sKV}, {(t & 3) * 4096}', f's_add_u32 {t0}, {sKG}, {(t & 15) * 16384}',
                f'buffer_load_dwordx4 v{8 + q}, {K_ if t < 16 else V_}, {t0} offen offset:{q * 1024} {pol} lds']))
        self.items = items
        self.pos = {tag: k for k, (tag, _) in enumerate(items)}
        self.issued = 0
        self.done_tile = -1
        self.lnq_done = False

    def issue_to(self, n):
        a = self.a
        prev = None
        lim = self.pos[f'tile{min(self.done_tile + 4, 31)}'] + 1
        while self.issued < min(n, lim):
            tag, lines = self.items[self.issued]
            if tag[0] == 'w':
                assert self.lnq_done, 'w_o staged before the q weights were read'
            assert tag[0] in 'td' or 2 < self.done_tile < 26
            for x in (lines if lines[:2] != prev else lines[2:]):
                a.e(x)
            a.tag_vm(tag)
            prev = lines[:2]
            self.issued += 1

    def prologue(self):
        a = self.a
        self.make_items()
        a.e('s_cmp_ge_u32 s2, 256')
        a.e('s_cbranch_scc1 L_end')
        if self.o.get('diag_fixed'):
            a.e('s_memrealtime s[100:101]')
        if self.o.get('stamps'):
            a.e('s_memtime s[98:99]' if self.o.get('clk') else 's_memrealtime s[98:99]')
        a.e('s_load_dwordx2 s[4:5], s[0:1], 8')
        ptrs = [(V_, 16), (CK, 48), (DBG, 96), (XIN, 0), (WQ, 24), (WO, 32), (BWQ, 56), (WUK, 64), (WUV, 72), (BWO, 80),
                (WS, 104), (OUT, 88)]
        sizes = {K_: 1 << 26, V_: 1 << 26, CK: 1 << 23, DBG: 256, XIN: 1152, WQ: 576 * 8192, WO: 4096 * 1152,
                 BWQ: 576 * 8192, WUK: 1 << 22, WUV: 1 << 22, BWO: 4096 * 1152, WS: WS_SIZE, WSL: L_X, WSG: G_IT, OUT: 1152}
        base = lambda s: int(s[2:s.index(':')])
        if self.o.get('code0', 1):
            a.e('s_getpc_b64 s[82:83]')
            a.e('L_pc:')
            a.e('s_and_b32 s3, s2, 0xf8')
            a.e('v_lshrrev_b32 v62, 5, v0')
            a.e('v_add_lshl_u32 v62, v62, s3, 7')
            a.e('v_min_u32 v62, L_codeend-L_pc, v62')
            a.e('global_load_dword v61, v62, s[82:83]')
        a.e('v_lshrrev_b32 v1, 6, v0')
        a.e('v_mov_b32 v63, v0')
        a.e(f'v_readfirstlane_b32 {sV}, v1')
        a.e('v_and_b32 v0, 63, v0')
        a.e(f's_and_b32 {sX}, s2, 7')
        a.e(f's_lshr_b32 {sJ}, s2, 3')
        a.e(f's_lshl_b32 {sKV}, {sV}, 14')
        self.sums(sKG, [(sX, 1 << 23), (sJ, 1 << 18), (sV, 1 << 12)])
        a.e(f'v_lshlrev_b32 {vL16}, 4, v0')
        a.e('v_and_b32 v12, 48, v0')
        a.e('v_lshlrev_b32 v12, 1, v12')
        a.e(f'v_xor_b32 v8, v12, {vL16}')
        for q in range(1, 4):
            a.e(f'v_xor_b32 v{8 + q}, {TBL[q] << 4}, v8')
        a.e(f's_mov_b32 s6, {sizes[K_]}')
        a.e('s_mov_b32 s7, 0x20000')
        a.e('s_waitcnt lgkmcnt(0)')
        for t in range(4):
            self.issue_to(min(4 * t + 4, self.o.get('win0', 8)))
            for srd, off in ptrs[3 * t:3 * t + 3]:
                b = base(srd)
                a.e(f's_load_dwordx2 s[{b}:{b + 1}], s[0:1], {off}')
        for srd, n in sizes.items():
            if srd != K_:
                a.e(f's_mov_b32 s{base(srd) + 2}, {n}')
                a.e(f's_mov_b32 s{base(srd) + 3}, 0x20000')
        if not self.o.get('code0', 1):
            a.e(f's_getpc_b64 s[82:83]')
            a.e('L_pc:')
            a.e('v_lshlrev_b32 v62, 7, v63')
            a.e(f'v_min_u32 v62, L_codeend-L_pc, v62')
            a.e('global_load_dword v61, v62, s[82:83]')
        a.e(f's_lshr_b32 {t1}, {sJ}, 3')
        self.sums(sH, [(sX, 4), (t1, 1)])
        a.e(f's_and_b32 {sS}, {sJ}, 7')
        a.e(f's_mov_b32 {sIT}, 0')
        a.e(f's_mov_b32 {sPOLL}, 0')
        a.e(f's_mov_b32 {sST}, 0')
        self.sums(sW8, [(sV, 8192)], STG)
        a.e('s_mov_b32 s84, 0x00ff00ff')
        a.e('s_mov_b32 s85, 0x00ff00ff')
        a.e(f's_mul_i32 {t2}, {sJ}, 43')
        a.e(f's_lshr_b32 {t2}, {t2}, 8')
        a.e(f's_mul_i32 {t3}, {t2}, 6')
        a.e(f's_sub_u32 {t3}, {sJ}, {t3}')
        self.sums(oY, [(t3, 512), (sV, 128)])
        self.sums(oQA, [(t2, 4096), (sV, 1024), (t3, 128)], L_QA)
        self.sums(oQB, [(t2, 4096), (sV, 512), (t3, 32)], L_QB)
        self.sums(oST, [(t2, 64), (t3, 8)], L_STA)
        self.sums(oWQ, [(t3, 96 * 8192), (sV, 24 * 8192), (sX, 1024), (t2, 256)])
        a.e(f's_cmp_eq_u32 {sV}, 0')
        a.e(f's_cselect_b32 {oST}, {oST}, {OOB}')
        a.e(f's_cmp_lt_u32 {sJ}, 24')
        for r in (oQA, oST, oWQ):
            a.e(f's_cselect_b32 {r}, {r}, {OOB}')
        self.sums(oQgA, [(t1, 4096), (sV, 1024)], L_QA)
        self.sums(oSTgA, [(t1, 64)], L_STA)
        if self.o.get('single'):
            a.e(f's_lshr_b32 {t2}, {sS}, 1')
            a.e(f's_and_b32 s3, {sS}, 1')
            self.sums(oWUV, [(t2, 128 * 8192), ('s3', 8 * 8192), (sH, 256), (sV, 64)])
        else:
            self.sums(oWUV, [(sS, 64 * 8192), (sH, 256), (sV, 64)])
        self.sums(oWUK, [(sJ, 16 * 8192), (sX, 1024), (sV, 256)])
        self.sums(oWO, [(sX, 512 * 1152), (sV, 128 * 1152), (sJ, 48)])
        self.sums(oYpub, [(sX, 3072), (sJ, 128)])
        if self.o.get('asym'):
            a.e(f's_getreg_b32 {t0}, hwreg(HW_REG_XCC_ID, 0, 3)')
            a.e(f's_lshr_b32 {t0}, {self.o["asym"][0]}, {t0}')
            a.e(f's_lshl_b32 {t0}, {t0}, 31')
            a.e(f's_or_b32 {oYpub}, {oYpub}, {t0}')
        a.e(f's_cmp_lt_u32 {sJ}, 24')
        a.e(f's_cselect_b32 {oWO}, {oWO}, {OOB}')
        a.e(f's_cselect_b32 {sRES}, 1, 0')
        a.e(f's_cmp_eq_u32 {sV}, 3')
        a.e(f's_cselect_b32 {sRES}, {sRES}, 0')
        a.e(f's_mul_i32 {t0}, {sRES}, 3')
        a.e(f's_cmp_eq_u32 {sX}, 0')
        a.e(f's_cselect_b32 {sRES}, {t0}, {sRES}')
        if self.tc():
            a.e('v_mov_b32 v7, 0')
        if self.o.get('stamps'):
            a.e('v_mov_b32 v7, 0')
            a.e('s_mov_b32 s97, 8')
        a.e('v_and_b32 v14, 1, v0')
        a.e('v_mul_u32_u24 v1, 0xaaaa, v14')
        a.e('v_add_u32 v1, 0x4444, v1')

        def tbl(dst, x, tmp):
            a.e(f'v_lshrrev_b32 {tmp}, 1, {x}')
            a.e(f'v_xor_b32 {dst}, {x}, {tmp}')
            a.e(f'v_and_b32 {dst}, 1, {dst}')
            a.e(f'v_lshl_or_b32 {dst}, {dst}, 3, {tmp}')
        a.e('v_lshrrev_b32 v12, 4, v0')
        a.e('v_and_b32 v13, 15, v0')
        a.e('v_lshrrev_b32 v15, 2, v13')
        tbl('v16', 'v15', 'v17')
        a.e('v_and_b32 v17, 3, v13')
        a.e('v_lshlrev_b32 v18, 1, v17')
        a.e('v_xor_b32 v16, v16, v18')
        a.e('v_xor_b32 v16, v16, v12')
        a.e('v_lshlrev_b32 v16, 4, v16')
        a.e(f'v_lshl_or_b32 {vA}, v13, 8, v16')
        a.e(f'v_add_u32 {vA}, {sKV}, {vA}')
        tbl('v16', 'v12', 'v18')
        a.e('v_lshlrev_b32 v18, 1, v15')
        a.e('v_xor_b32 v16, v16, v18')
        a.e('v_lshrrev_b32 v18, 1, v17')
        a.e('v_xor_b32 v16, v16, v18')
        a.e('v_lshlrev_b32 v16, 4, v16')
        a.e('v_lshrrev_b32 v18, 2, v0')
        a.e('v_lshl_or_b32 v16, v18, 8, v16')
        a.e(f'v_lshl_or_b32 {vT}, v14, 3, v16')
        a.e(f'v_add_u32 {vT}, {sKV}, {vT}')
        a.e('s_waitcnt lgkmcnt(0)')
        self.stamp('start')
        w, l, g = base(WS), base(WSL), base(WSG)
        a.e(f's_lshl_b32 {t0}, {sX}, 17')
        a.e(f's_add_u32 s{l}, s{w}, {t0}')
        a.e(f's_addc_u32 s{l + 1}, s{w + 1}, 0')
        a.e(f's_add_u32 s{g}, s{w}, {GB}')
        a.e(f's_addc_u32 s{g + 1}, s{w + 1}, 0')
        if self.o.get('tlb0'):
            a.e('s_mov_b64 exec, 1')
            a.e(f'buffer_load_dword v61, off, {V_}, {sKG} nt')
            a.e(f's_lshl_b32 {t0}, {sX}, 20')
            a.e(f'buffer_load_dword v61, off, {CK}, {t0}')
            a.e(f'buffer_load_dword v61, off, {WO}, {oWO}')
            if self.o['tlb0'] > 1:
                for srd, so in ((BWQ, oWQ), (WUK, oWUK), (WUV, oWUV), (BWO, oWO)):
                    a.e(f'buffer_load_dword v61, off, {srd}, {so}')
                self.sums(t1, [(sX, 1 << 19)], CB)
                a.e(f'buffer_load_dword v61, off, {WS}, {t1}')
            a.e('s_mov_b64 exec, -1')
        self.dma_wq(WQ, 'v56', 'v57')
        self.lnq_rows()
        a.e(f's_mul_i32 {t0}, {t3}, 192')
        a.e('v_mul_u32_u24 v58, 3, v0')
        a.e('s_mov_b32 exec_lo, 0x00010001')
        a.e('s_mov_b32 exec_hi, 0x00010001')
        for rho in range(3):
            a.e(f'buffer_load_dwordx4 {vr(16 + 4 * rho, 4)}, v58, {XIN}, {t0} offen offset:{16 * rho}')
        a.e('s_mov_b64 exec, -1')
        a.e('v_lshlrev_b32 v58, 2, v0')
        a.e(f's_mul_i32 {t0}, {sJ}, 48')
        a.e(f's_cmp_eq_u32 {sRES}, 3')
        a.e(f's_cselect_b32 {t0}, {t0}, {OOB}')
        a.e(f'buffer_load_dword v5, v58, {XIN}, {t0} offen')
        for r in range(56, 60):
            a.e(f'v_mov_b32 v{r}, -1')
        self.sums(t4, [(sX, L_X), (sJ, 2560), (sV, 640)])
        gw = 128 if self.o.get('single') else 384
        self.sums(t1, [(sX, 128 * gw), (sJ, 4 * gw), (sV, gw)], GB)
        a.e('s_mov_b32 exec_hi, 0xff')
        a.e(f'buffer_store_dwordx4 v[56:59], {vL16}, {WS}, {t4} offen sc1')
        a.e(f's_mov_b64 exec, {(1 << (gw // 16)) - 1}')
        a.e(f'buffer_store_dwordx4 v[56:59], {vL16}, {WS}, {t1} offen sc1')
        a.e('s_mov_b64 exec, -1')
        a.tag_vm('clr')
        for ks in range(4):
            a.e(f'v_xor_b32 v{12 + ks}, {ks << 6}, {vA}')

    def late_scalars(self):
        a = self.a
        if self.o.get('ckv_late', 0):
            a.e('s_add_u32 s0, s12, s1')
            a.e('s_addc_u32 s1, s13, 0')
        if self.o.get('asym'):
            a.e(f's_bitset0_b32 {oYpub}, 31')
        a.e(f's_lshr_b32 {t1}, {sJ}, 3')
        a.e(f's_and_b32 {t2}, {sJ}, 1')
        a.e(f's_lshr_b32 {t3}, {sJ}, 1')
        a.e(f's_lshr_b32 {t4}, {sX}, 2')
        a.e(f's_and_b32 {t5}, {sX}, 3')
        self.sums(oQgB, [(sV, 4096)], L_QB)
        self.sums(oSTgB, [(sV, 64)], L_STB)
        self.sums(oQApub, [(t4, 16384), (t3, 1024), (t5, 256), (t2, 128)], G_QABS)
        self.sums(oQAg, [(t2, 16384), (sV, 4096)], G_QABS)
        self.sums(oC1pub, [(sX, 1 << 19), (t2, 1 << 18), (sV, 16384), (t3, 256)], CB)
        a.e(f's_and_b32 {t4}, {t3}, 3')
        self.sums(oMLpub, [(t2, 2048), (t4, 128), (t1, 8)], L_C1ML)
        self.sums(oC1g, [(sX, 1 << 19), (sJ, 16384), (sV, 4096)], CB)
        a.e(f's_lshr_b32 {t4}, {sJ}, 2')
        self.sums(oMLg, [(t4, 512)], L_C1ML)
        self.sums(oC2pub, [(sJ, 8192), (sV, 2048), (sX, 256)], G_C2)
        self.sums(oC2Lpub, [(t4, 1024), (sX, 128)], G_C2L)
        a.e(f's_and_b32 {t4}, {sJ}, 3')
        a.e(f's_cselect_b32 {oC2Lpub}, {OOB}, {oC2Lpub}')
        self.sums(oC2g, [(sX, 32768), (sS, 4096), (t1, 64)], G_C2)
        self.sums(oC2Lg, [(sX, 1024), (t1, 16)], G_C2L)
        if self.o.get('single'):
            if self.o.get('cswz', 1):
                self.sums(oC1pub, [(t2, 1 << 21), (sV, 32768), (sX, 2048)], CB)
                a.e(f's_and_b32 {t4}, {sV}, 1')
                a.e(f's_lshl_b32 {t4}, {t4}, 3')
                a.e(f's_xor_b32 {t4}, {t4}, {t3}')
                a.e(f's_lshl_b32 {oC2g}, {t4}, 7')
                a.e(f's_and_b32 {t4}, {sS}, 1')
                a.e(f's_and_b32 s3, {sS}, 2')
                self.sums(oC2Lg, [(t4, 128), (t5, 256), ('s3', 512)])
            else:
                self.sums(oC1pub, [(t2, 1 << 21), (sV, 32768), (sX, 2048), (t3, 128)], CB)
            self.sums(oMLpub, [(t2, 16384), (sX, 2048), (t3, 128)], G_ML)
            self.sums(oC1g, [(sH, 131072), (sS, 16384), (sV, 4096)], CB)
            a.e(f's_lshr_b32 {t4}, {sH}, 4')
            a.e(f's_and_b32 {t5}, {sH}, 15')
            self.sums(oMLg, [(t4, 16384), (sV, 4096), (t5, 8)], G_ML)
        self.sums(oOBpub, [(t1, 2048), (sV, 512), (sS, 32)], L_OB)
        self.sums(oOApub, [(t1, 2048), (sS, 32)], L_OA)
        self.sums(oOALpub, [(sJ, 4)], L_OAL)
        self.sums(oOALg, [(sV, 32)], L_OAL)
        self.sums(oRES, [(sJ, 128)])
        self.sums(oO, [(sV, 2048)], L_OA)
        a.e(f's_cmp_eq_u32 {sV}, 0')
        a.e(f's_cselect_b32 {oMLpub}, {oMLpub}, {OOB}')
        a.e(f's_cselect_b32 {oOApub}, {oOApub}, {OOB}')
        a.e(f's_cselect_b32 {oC2Lpub}, {oC2Lpub}, {OOB}')

    def pv_block(self, U):
        a = self.a
        self.sp_addr('v63', sW8)
        a.e(f'ds_read_b128 v[20:23], v63 offset:{6144 + 128 * U}')
        a.e('s_waitcnt lgkmcnt(0)')
        for e in range(8):
            a.e(f'v_smfmac_f32_16x16x64_bf16 {vr(24 + 4 * e, 4)}, v[20:23], {vr(64 + 64 * U + 8 * e, 8)}, v1')

    def stream(self):
        a = self.a
        o = self.o
        landed = 0
        for t in range(28):
            win = o.get('win', 6) if t < o.get('wide_at', 99) else o.get('wide', 12)
            while landed <= self.pos[f'tile{t}']:
                if self.issued < landed + 1 + win or landed == self.pos[f'tile{t}']:
                    a.wait(vm=self.items[landed][0])
                    if o.get('sstamps') and t % 4 == 0 and landed == self.pos[f'tile{t}']:
                        self.stamp(f't{t}')
                    self.issue_to(landed + 1 + win)
                landed += 1
            slot = (t & 3) * 4096
            if t < 16:
                for ks in range(4):
                    a.e(f'ds_read_b128 a[{16 * t + 4 * ks}:{16 * t + 4 * ks + 3}], v{12 + ks} offset:{slot}')
            else:
                u = t - 16
                if u == 0:
                    for e in range(8):
                        a.e(f'v_xor_b32 v{12 + e}, {e << 5}, {vT}')
                for e in range(8):
                    a.e(f'ds_read_b64_tr_b16 {vr(64 + 64 * (u >> 2) + 8 * e + 2 * (u & 3), 2)}, v{12 + e} offset:{slot}')
            a.e('s_waitcnt lgkmcnt(0)')
            self.done_tile = t
            self.issue_to(landed + win + o.get('boost', {}).get(str(t), 0) if t < 27 else 999)
            if t == 2:
                a.e('v_lshrrev_b32 v254, 4, v0')
                a.e('v_mul_u32_u24 v254, 768, v254')
                a.e(f's_lshr_b32 {t2}, {sJ}, 1')
                self.sums('s1', [(sX, 1 << 20), (t2, 1 << 16), (sV, 256)])
                for i, r in enumerate((246, 247, 255)):
                    a.e(f'v_add_u32 v{r}, {64 * i}, v0')
                    a.e(f'v_mul_u32_u24 v{r}, 21846, v{r}')
                    a.e(f'v_lshrrev_b32 v{r}, 16, v{r}')
                    a.e(f'v_mul_u32_u24 v{r}, {1152 - 48}, v{r}')
                    a.e(f'v_lshl_add_u32 v{r}, v0, 4, v{r}')
            if t == 4:
                a.wait(vm='clr')
                a.e('v_lshlrev_b32 v230, 7, v0')
                a.e('s_mov_b64 exec, 31')
                a.e(f'buffer_load_dword v239, v230, {WS}, {t4} offen')
                a.e('s_mov_b64 exec, -1')
                a.tag_vm('touch')
                a.e('v_lshlrev_b32 v4, 16, v5')
                a.e('v_and_b32 v5, 0xffff0000, v5')
            if t == o.get('lnq_at', 9):
                a.wait(vm='clr')
                self.lnq_addr()
                self.lnq_prep()
                for rho in range(3):
                    for x in self.lnq_mfma(rho):
                        a.e(x)
                self.lnq_reduce(False)
                self.lnq_done = True
            if t == o.get('atom_at', 5):
                if t != o.get('lnq_at', 9):
                    a.e('s_barrier')
                l = self.wave_only(1)
                a.e('s_getreg_b32 s82, hwreg(HW_REG_XCC_ID, 0, 3)')
                a.e('s_lshl_b32 s82, s82, 3')
                a.e('s_lshl_b64 s[82:83], 1, s82')
                a.e('v_mov_b32 v222, s82')
                a.e('v_mov_b32 v223, s83')
                a.e(f's_lshl_b32 {t0}, {sX}, 5')
                a.e('s_mov_b64 exec, 1')
                a.e(f'buffer_atomic_add_x2 v[222:223], v0, {DBG}, {t0} offen sc1')
                a.e('s_mov_b64 exec, -1')
                self.end_only(l)
            if t == o.get('cnt_at', 10):
                a.e('v_and_b32 v57, 7, v0')
                a.e('v_lshlrev_b32 v57, 5, v57')
                a.e(f'buffer_load_dwordx2 v[58:59], v57, {DBG}, 0 offen sc1')
                a.tag_vm('cnt')
            if t == 15:
                chk, retry, done = a.lab('chk'), a.lab('cretry'), a.lab('cdone')
                a.wait(vm='cnt')
                a.e(f'{chk}:')
                a.e('v_sad_u8 v61, v58, 0, 0')
                a.e('v_sad_u8 v61, v59, 0, v61')
                a.e('v_cmp_ne_u32 vcc, 32, v61')
                if not o.get('x_noinit'):
                    a.e(f's_cbranch_vccnz {retry}')
                a.e(f'{done}:')
                a.ool(f'{retry}:\ns_add_u32 {sPOLL}, {sPOLL}, 1\ns_cmp_gt_u32 {sPOLL}, 200000\ns_cbranch_scc1 {done}\ns_sleep 8\n'
                      f'buffer_load_dwordx2 v[58:59], v57, {DBG}, 0 offen sc1\ns_waitcnt vmcnt(0)\ns_branch {chk}')
                a.e('s_getreg_b32 s82, hwreg(HW_REG_XCC_ID, 0, 3)')
                a.e('s_lshl_b32 s82, s82, 3')
                a.e('s_lshl_b64 s[82:83], 32, s82')
                a.e(f'v_readlane_b32 {t2}, v58, {sX}')
                a.e(f'v_readlane_b32 {t3}, v59, {sX}')
                a.e(f's_cmp_eq_u64 s[82:83], s[80:81]')
                a.e(f's_cselect_b32 {sLOC}, {0 if o.get("force_slow") else 1}, {1 if o.get("x_noinit") else 0}')
                self.lnq_pubaddr(False, True)
                self.lcmp()
                self.lnq_publish(False, True)
            if t == 18:
                self.qa_addr(48)
                a.e(f's_add_u32 {t4}, {oQgA}, {L_CSA - L_QA}')
                ql = self.qa_loads(40, 52, 48) + [f'buffer_load_dwordx4 v[44:47], v51, {WSL}, {t4} offen sc1']
                for x in ql:
                    a.e(x)
                a.tag_vm('q')
            if t == 22:
                a.wait(vm='q')
                self.late_check('v20', list(range(40, 48)) + [52, 53], ql)
                for x in self.red8(44):
                    a.e(x)
                a.e('v_cvt_pk_bf16_f32 v44, 0, v44')
                a.e('v_or_b32 v1, v1, v44')
                a.e(self.stats_const(54))
                self.qa_finish(40, 52, 48, 56, 54)
                for r in range(24, 40, 4):
                    a.e(f'v_mov_b64 {vr(r, 2)}, 0')
                self.p_addr('v45', 'v44')
                self.qk_softmax(56, 24, 40, 44)
                for x in self.lsum('v57', 40):
                    a.e(x)
                for x in self.ml_write(56):
                    a.e(x)
                for r in range(24, 56, 4):
                    a.e(f'v_mov_b64 {vr(r, 2)}, 0')
                a.e('s_waitcnt lgkmcnt(0)')
            for i, at in enumerate(o.get('ckv_at', [10, 11, 12, 13])):
                if at == t:
                    if t == 27:
                        a.e('v_lshrrev_b32 v62, 4, v0')
                        a.e('v_mul_u32_u24 v62, 768, v62')
                        for q in range(4):
                            self.extra[f'c{4 * i + q}'] = [x.replace('v238', 'v63').replace('v254', 'v62') for x in self.extra[f'c{4 * i + q}']]
                    for q in range(4):
                        if i >= 4 - o.get('ckv_late', 0):
                            lines = self.extra[f'c{4 * i + q}']
                            for x in lines[:-1]:
                                a.e(x)
                            a.e(f's_mov_b64 exec, {MY}' if q in (0, 3) else f's_not_b64 exec, {MY}')
                            a.e(lines[-1])
                            a.e('s_mov_b64 exec, -1')
                            continue
                        for x in self.extra[f'c{4 * i + q}']:
                            a.e(x)
            if t == o.get('wo_at', 9):
                assert self.lnq_done
                for k in range(6):
                    for x in self.extra[f'w{k}']:
                        a.e(x)
            self.touches(f's{t}', 'v62', 'v31')
            if t == o.get('mlbar', 26):
                a.e('s_barrier')
                for x in self.ml_read(56, 20):
                    a.e(x)
                a.e('s_waitcnt lgkmcnt(0)')
                for x in self.ml_scale(56, 20, 21, 22):
                    a.e(x)
                a.e('v_readfirstlane_b32 s22, v21')
                a.e('v_readfirstlane_b32 s23, v22')
            if t == o.get('c1_late', 1) and t > 15:
                self.sums(t1, [(sX, 1 << 19), (sJ, 16384), (sV, 4096)], CB)
                for r in range(56, 60):
                    a.e(f'v_mov_b32 v{r}, -1')
                self.lcmp()
                self.lstore([f'buffer_store_dwordx4 v[56:59], {vL16}, {WS}, {t1} offen offset:{i * 1024}' for i in range(4)])
            if t == o.get('tlb_at', -1):
                g = o.get('tlb_n', 2)
                a.e(f's_mov_b64 exec, {(1 << g) - 1}')
                self.sums(t2, [(sX, 1 << 19)], CB)
                for srd, so, span in ((BWQ, oWQ, 24 * 8192), (WUK, oWUK, 16 * 8192), (WUV, oWUV, 64 * 8192), (BWO, oWO, 128 * 1152),
                                      (WS, t2, 1 << 19), (OUT, '0', 1024)):
                    a.e(f'v_mul_u32_u24 v62, {(span - 8192 if span > 8192 else span) // (g - 1) // 4 * 4}, v0')
                    a.e(f'buffer_load_dword v31, v62, {srd}, {so} offen')
                a.e('s_mov_b64 exec, -1')
            if t == o.get('isl_at', 12):
                a.e('s_branch L_isl_0')
                if self.alt:
                    a.e('L_isl_ret2:')
                else:
                    a.e('L_isl_ret:')
                    if o.get('hi'):
                        a.e('s_cmp_lg_u32 s0, 0')
                        a.e('s_cbranch_scc1 L_isl_ret2')
            if t == o.get('late_touch', -1):
                self.sums(t3, [(sX, 128), (sJ, 4), (sV, 1)])
                a.e(f's_lshl_b32 {t2}, {t3}, 10')
                a.e('v_lshlrev_b32 v62, 7, v0')
                a.e('v_and_b32 v62, 0x3ff, v62')
                a.e(f'buffer_load_dword v31, v62, {WS}, {t2} offen')
            if t == 23:
                self.pv_block(0)
            if t == 24:
                self.pv_block(1)
        if self.alt:
            a.e('s_nop 7')
            a.e('s_branch L_join')
            return
        a.e('L_join:')
        self.late_scalars()
        a.e('v_mov_b32 v62, s23')
        a.e(f's_cmp_eq_u32 {sV}, 0')
        a.e(f's_cselect_b32 {t1}, {oOALpub}, {OOB}')
        self.lcmp()
        self.lstore([f'buffer_store_dword v62, off, {WSL}, {t1}'])
        self.pv_block(2)
        a.e('v_lshrrev_b32 v62, 1, v0')
        a.e('v_and_b32 v62, 8, v62')
        a.e('v_and_or_b32 v62, v0, 32, v62')
        a.e(f'v_add_u32 v62, {sW8}, v62')
        a.e(f'v_add_u32 v62, {6144 + 384}, v62')
        for tt in range(4):
            o0 = 16 * (tt >> 1) + (tt & 1)
            r = (20, 22, 8, 10)[tt]
            a.e(f'ds_read2_b32 {vr(r, 2)}, v62 offset0:{o0} offset1:{o0 + 4}')
        a.e('s_mov_b32 vcc_lo, 0x55555555')
        a.e('s_mov_b32 vcc_hi, 0x55555555')
        a.e('s_waitcnt lgkmcnt(0)')
        for r in (20, 21, 22, 23, 8, 9, 10, 11):
            a.e(f'v_cndmask_b32 v{r}, 0, v{r}, vcc')
        self.last_tiles(range(3))
        a.e(f's_cmp_eq_u32 {sLOC}, 0')
        a.e('s_cbranch_scc1 L_pre_slow')

    def last_tiles(self, which):
        a = self.a
        for tt in which:
            a.wait(vm=f'tile{28 + tt}')
            if tt == 3:
                self.stamp('kvdone')
            dst = [56, 58, 60, 62] * 2 if tt < 3 else [56, 58, 60, 62, 20, 22, 8, 12]
            n1 = 4 if tt < 3 else 8
            for e in range(n1):
                a.e(f'ds_read_b64_tr_b16 {vr(dst[e], 2)}, v{12 + e} offset:{tt * 4096}')
                a.tag_ds(f'v{e}')
            if tt == 3:
                self.rot8('v14', 2)
            for e in range(8):
                a.wait(ds=f'v{e}')
                d = vr(24 + 4 * e, 4)
                a.e(f'v_mfma_f32_16x16x16_bf16 {d}, {vr((20, 22, 8, 10)[tt], 2)}, {vr(dst[e], 2)}, {d}')
                if e + n1 < 8:
                    a.e(f'ds_read_b64_tr_b16 {vr(dst[e], 2)}, v{12 + e + n1} offset:{tt * 4096}')
                    a.tag_ds(f'v{e + n1}')
                if tt == 3 and e >= 4:
                    x = e - 4
                    a.e(f'v_add_f32_dpp v16, v{24 + 4 * x}, v{25 + 4 * x} {DPPI} row_mask:{1 << x} bank_mask:0xf')
        if 3 not in which:
            return
        for e in range(4, 8):
            a.e(f'v_add_f32_dpp v17, v{24 + 4 * e}, v{25 + 4 * e} {DPPI} row_mask:{1 << (e & 3)} bank_mask:0xf')
        a.e('v_mul_f32 v44, s22, v16')
        a.e('v_mul_f32 v45, s22, v17')
        a.e(f'v_lshl_add_u32 v46, v0, 2, {sW8}')
        a.e('v_mov_b32 v47, v14')
        self.stamp('pv1')

    def tail(self, mode):
        a = self.a
        o = self.o
        base = lambda s: int(s[2:s.index(':')])
        self.mode = mode
        if mode == 'slow':
            a.e('L_pre_slow:')
            a.e('s_nop 7')
            a.e('s_waitcnt vmcnt(0)')
        self.last_tiles([3])
        n0 = self.nst
        a.vmq = [['wo', ()]] + [[None, ()] for _ in range(len(o.get('touch', {}).get('s27', [])) if o.get('wo_at', 9) == 27 else 40)]
        l, g = base(WSL), base(WSG)
        a.e(f'L_top_{mode}:')
        self.combine_publish()
        self.stamp('opub')
        a.e(f's_mul_i32 {t0}, {sRES}, {sIT}')
        self.resid_track(G_YB, 20, 'v8', f's_cmp_eq_u32 {t0}, 3')
        a.e(f's_mul_i32 {t0}, {sIT}, {G_IT}')
        a.e(f's_add_u32 s{g}, s{g}, {t0}')
        a.e(f's_addc_u32 s{g + 1}, s{g + 1}, 0')

        def idle_a():
            b = self.a
            self.wuk_prep('v8', 'v9')
            self.wuk_issue('v8', 'v9')
            self.touches('i1', 'v60', 'v10')
            l1 = b.lab('it1')
            b.e(f's_cmp_eq_u32 {sIT}, 1')
            b.e(f's_cbranch_scc1 {l1}')
            self.clear_g1(56)
            self.touches('i0', 'v60', 'v10')
            if o.get('touch', {}).get('i0b'):
                lp = b.lab('lp')
                b.e(f'{lp}:')
                b.e('s_sleep 4')
                b.e(f'buffer_load_dword v12, {vL16}, {WSL}, {oO} offen sc1')
                b.e('s_waitcnt vmcnt(0)')
                b.e('v_cmp_eq_u32 vcc, -1, v12')
                self.retry_to(lp)
                b.e('s_barrier')
                self.touches('i0b', 'v60', 'v10')
            l2 = b.lab('it1')
            b.e(f's_branch {l2}')
            b.e(f'{l1}:')
            self.touches('i3', 'v60', 'v10')
            if o.get('reclr') == 'h2':
                self.lstore(self.clear_c1(56, 'v60', 'v61'))
            self.sleep('ia')
            b.e(f'{l2}:')
            b.e('s_waitcnt vmcnt(0)')

        def busy_a():
            self.outproj(True)
            self.lnq_tail(G_YA, True)
        self.ool_if(f's_cmp_ge_u32 {sJ}, 24', idle_a, busy_a, True)
        self.qabs()
        self.attn_b()
        if o.get('single'):
            self.red_single()
        else:
            self.red()
            self.uv()

        def nextpass():
            b = self.a
            b.e(f's_cmp_eq_u32 {sIT}, 1')
            b.e(f's_cbranch_scc1 L_final_{mode}')
            b.e(f's_add_u32 s{l}, s{l}, {L_IT}')
            b.e(f's_addc_u32 s{l + 1}, s{l + 1}, 0')
            b.e(f's_mov_b32 s{l + 2}, {L_SZ}')
            b.e(f's_mov_b32 {sIT}, 1')
            if o.get('single'):
                b.e(f's_add_u32 {oC1pub}, {oC1pub}, {1 << 22}')
                b.e(f's_add_u32 {oC1g}, {oC1g}, {1 << 22}')

        def idle_b():
            nextpass()
            self.touches('i2', 'v60', 'v10')
            self.sleep('ib')
            self.a.e('s_waitcnt vmcnt(0)')
            self.a.e('s_barrier')

        def busy_b():
            self.outproj(False)
            nextpass()
            self.lnq_tail(G_YB, False)
        self.ool_if(f's_cmp_ge_u32 {sJ}, 24', idle_b, busy_b, True)
        self.attn_a3()
        self.nper = self.nst - n0
        self.n0 = n0
        if o.get('stamps') and not o.get('light'):
            a.e('s_mov_b32 s97, 5')
        a.e(f's_branch L_top_{mode}')
        a.e(f'L_final_{mode}:')
        a.e(f's_cmp_lg_u32 {sRES}, 3')
        a.e('s_cbranch_scc1 L_fin2')
        self.keep_rounding()
        a.e('v_lshrrev_b32 v8, 4, v0')
        a.e('v_mul_u32_u24 v8, 768, v8')
        a.e('v_and_or_b32 v8, v0, 15, v8')
        a.e('v_lshlrev_b32 v8, 2, v8')
        self.oob(('v8', 'v8'), (0xf000f000, 0xf000f000))
        a.e('s_mov_b64 vcc, 0xfff')
        a.e('v_cndmask_b32 v4, 0, v4, vcc')
        a.e('v_cndmask_b32 v5, 0, v5, vcc')
        a.e('v_and_b32 v9, 15, v0')
        a.e('v_lshrrev_b32 v10, 5, v0')
        a.e('v_lshl_or_b32 v9, v9, 1, v10')
        a.e('v_lshlrev_b32 v9, 1, v9')
        self.oob(('v9', 'v9'), (0xfffff000, 0xfffff000))
        a.e('v_mov_b32 v12, 0x3f80')
        a.e('v_mov_b32 v13, 0x3f800000')
        a.e(f's_add_u32 {t2}, {oRES}, {G_YB}')
        a.e(f's_add_u32 {t3}, {t2}, {4 * 3072}')
        a.e(f's_mul_i32 {t0}, {sJ}, 48')
        self.sleep('fin')
        ld = [f'buffer_load_dword v10, v8, {WSG}, {t2} offen sc1', f'buffer_load_dword v11, v8, {WSG}, {t3} offen sc1', 'v_mov_b64 v[14:15], v[4:5]']
        for x in ld:
            a.e(x)
        chk = a.lab('chk')
        a.e('s_waitcnt vmcnt(0)')
        a.e(f'{chk}:')
        a.e('v_cmp_u_f32 vcc, v10, v11')
        a.e('v_dot2c_f32_bf16 v14, v12, v10')
        a.e('v_dot2c_f32_bf16 v15, v13, v10')
        a.e('v_dot2c_f32_bf16 v14, v12, v11')
        a.e('v_dot2c_f32_bf16 v15, v13, v11')
        self.retry_with(ld[:2] + ['s_nop 1', ld[2]], 's_waitcnt vmcnt(0)', chk)
        a.e('v_permlane32_swap_b32 v14, v15')
        a.e('v_add_f32 v16, v14, v15')
        a.e('v_add_f32 v14, v14, v15')
        a.e('v_permlane16_swap_b32 v14, v16')
        a.e('v_add_f32 v14, v14, v16')
        a.e('v_cvt_pk_bf16_f32 v14, v14, v14')
        a.e(f'buffer_store_short v14, v9, {OUT}, {t0} offen')
        self.mode = None

    def build(self):
        a = self.a
        o = self.o
        base = lambda s: int(s[2:s.index(':')])
        self.prologue()
        altb = ''
        if o.get('hi'):
            import copy
            if o['hi'][0]:
                a.e('s_getreg_b32 s0, hwreg(HW_REG_XCC_ID, 0, 3)')
                a.e(f's_lshr_b32 s0, {o["hi"][0]}, s0')
                a.e('s_and_b32 s0, s0, 1')
            else:
                a.e(f's_cmp_ge_u32 {sJ}, 24')
                a.e('s_cselect_b32 s0, 1, 0')
            a.e('s_cbranch_scc1 L_alt')
            alt = Gen(dict(o, win=o['hi'][1]))
            alt.alt = True
            alt.a.uid = 300000
            alt.a.cold = True
            alt.a.vmq = copy.deepcopy(a.vmq)
            alt.make_items()
            alt.issued = self.issued
            alt.nst = self.nst
            alt.a.e('L_alt:')
            alt.stream()
            altb = alt.a.finish()
            altb = altb[:altb.index('L_isl_0:')]
        self.stream()
        self.tail('fast')
        a.e('L_fin2:')
        if o.get('diag_fixed'):
            a.e('L_dfx:')
            a.e('s_memrealtime s[94:95]')
            a.e('s_waitcnt lgkmcnt(0)')
            a.e('s_sub_u32 s94, s94, s100')
            a.e(f's_cmp_lt_u32 s94, {o["diag_fixed"]}')
            a.e('s_cbranch_scc1 L_dfx')
        if o.get('stamps'):
            a.e('s_waitcnt vmcnt(0) lgkmcnt(0)')
            self.stamp('end')
            a.e('s_waitcnt lgkmcnt(0)')
            if o.get('light'):
                for lane, r in ((0, sST), (1, 's97'), (2, 's101'), (34, 's100')):
                    a.e(f'v_writelane_b32 v7, {r}, {lane}')
            a.e('v_writelane_b32 v7, s98, 62')
            a.e(f'v_writelane_b32 v7, {sPOLL}, 63')
            a.e('s_getreg_b32 s82, hwreg(HW_REG_XCC_ID, 0, 3)')
            a.e('s_getreg_b32 s83, hwreg(HW_REG_HW_ID)')
            a.e('s_lshl_b32 s83, s83, 4')
            a.e('s_or_b32 s82, s82, s83')
            a.e('v_writelane_b32 v7, s82, 61')
            self.sums(t1, [('s2', 1024), (sV, 256)], STAMP)
            a.e('v_lshlrev_b32 v8, 2, v0')
            a.e(f'buffer_store_dword v7, v8, {WS}, {t1} offen')
        a.e('L_end:')
        a.e('s_endpgm')
        slow = Gen(self.o)
        slow.a.uid = 500000
        slow.a.cold = True
        slow.tail('slow')
        slow.a.e('s_branch L_fin2')
        sb = slow.a.finish()
        sb = sb[:sb.index('L_isl_0:')]
        body = a.finish()
        ref = open('cdna_kernels/' + NAME + '.s.ref').read() if o.get('hdr', True) else ''
        hdr = ''.join(l + '\n' for l in ref.split('\n') if l.startswith(';') and '@launch' not in l and 'Override' not in l and 'grid=ceil' not in l)
        txt = hdr + '; @launch grid=(256,1,1) block=(256,1,1) lds=163840\n'
        txt += DESCR
        txt += '.amdgcn_target "amdgcn-amd-amdhsa--gfx950"\n.text\n'
        txt += f'.globl {NAME}_kernel\n.p2align 8\n.type {NAME}_kernel,@function\n{NAME}_kernel:\n'
        txt += body
        txt += 'L_tailend:\n' + altb + 'L_codeend:\n' + sb
        txt += f"""    s_endpgm
.section .rodata,"a"
.p2align 6
.amdhsa_kernel {NAME}_kernel
  .amdhsa_next_free_vgpr 512
  .amdhsa_next_free_sgpr 102
  .amdhsa_accum_offset 256
  .amdhsa_group_segment_fixed_size 0
  .amdhsa_kernarg_size 112
  .amdhsa_user_sgpr_count 2
  .amdhsa_user_sgpr_kernarg_segment_ptr 1
  .amdhsa_system_sgpr_workgroup_id_x 1
.end_amdhsa_kernel
"""
        return txt


DEFAULT = dict(sleep=dict(h2a=6, h2b=6, h2c=10, ha=6, ha0=2, ia=30, ib=30, hc2=1, hc2b=3, hc4=1, fin=6, hqa=1), pol_c='nt', depth=3,
               touch=dict(i0=['Xwuk', 'Xbwo'], w1b=['loc', 'code'], w1c=['loc'], i1=['loc', 'code'], i2=['loc'], w5=['code']), wo_e=0, wo_pre=3, red_pre=8, ml_e=1, woq=5, tr_pre=8, lw_pos=1, ckv_late=2, wuv_pos=[1, 3, 5, 7], wo_pos=[1, 7, 13, 19, 25, 31], heat=0, rowm=0x00030003, K={'b4': 0, 'qb3': 0}, pol_wq3='nt',
               late_touch=-1, wo_at=9, warm=0, c1_late=1, ml_early=2, qflag=0, ybar=0, atom_at=4, cnt_at=12, win=6, boost={}, win0=6, wide_at=25, wide=9)

if __name__ == '__main__':
    import json
    opt = dict(DEFAULT)
    out = sys.argv[1]
    if len(sys.argv) > 2:
        opt.update(json.loads(sys.argv[2]))
    g = Gen(opt)
    open(out, 'w').write(g.build())
    print('nops', g.a.nops, 'stamps', g.stnames, g.n0, g.nper)
```
